```python
import torch

def _softmax(x, axis=-1):
    return torch.softmax(x, dim=axis)

def _gelu(x):
    return torch.nn.functional.gelu(x, approximate='tanh')

def _silu(x):
    return torch.nn.functional.silu(x)

def _sigmoid(x):
    return torch.sigmoid(x)

def _layernorm(x, axis=-1, eps=1e-05):
    m = x.mean(dim=axis, keepdim=True)
    v = x.var(dim=axis, keepdim=True, unbiased=False)
    return (x - m) / torch.sqrt(v + eps)

def _scatter_add(tgt, idx, src, axis=0):
    return tgt.clone().index_add_(axis, idx, src)

def _segment_sum(src, seg, n):
    out = torch.zeros((n,) + src.shape[1:], dtype=src.dtype)
    return out.index_add_(0, seg, src)

def _pad(x, pw):
    flat = tuple((v for pair in reversed(pw) for v in pair))
    return torch.nn.functional.pad(x, flat)
kernel_name = 'gather_scatter__tensor_product_equiv_equiformer__graph'

def setup_inputs():

    _w = lambda a: (lambda t: t.to(torch.bfloat16) if t.is_floating_point() else t)(torch.as_tensor(a))
    N, deg, C, De = (12500, 64, 64, max(4, 1))
    E = N * deg
    src = (lambda lo, hi, *s: torch.randint(lo, hi, s))(0, N, E).to(torch.int64)
    dst = (lambda lo, hi, *s: torch.randint(lo, hi, s))(0, N, E).to(torch.int64)
    rvec = (lambda *s: torch.randn(*s, dtype=torch.bfloat16) * 0.05)(E, 3).to(float)
    rn = (torch.linalg.norm(rvec, dim=-1, keepdim=True) + 1e-06).to(float)
    rhat = (rvec / rn).to(float)
    eps = torch.zeros((3, 3, 3), dtype=float)
    eps[0, 1, 2] = eps[1, 2, 0] = eps[2, 0, 1] = 1.0
    eps[0, 2, 1] = eps[2, 1, 0] = eps[1, 0, 2] = -1.0
    return {'x': _w((lambda *s: torch.randn(*s, dtype=torch.bfloat16) * 0.4)(N, 4 * C).to(float)), 'rhat': _w(rhat), 'e_attr': _w((lambda *s: torch.randn(*s, dtype=torch.bfloat16) * 0.4)(E, De).to(float)), 'src': _w(src), 'dst': _w(dst), 'w_rad': _w((lambda *s: torch.randn(*s, dtype=torch.bfloat16) * 0.4)(De, 5 * C).to(float)), 'w_si0': _w((lambda *s: torch.randn(*s, dtype=torch.bfloat16) * 0.4)(2 * C, C).to(float)), 'w_si1': _w((lambda *s: torch.randn(*s, dtype=torch.bfloat16) * 0.05)(3 * C, C).to(float)), 'cg_eps': _w(eps)}

def reference(x, rhat, e_attr, src, dst, w_rad, w_si0, w_si1, cg_eps):
    N = x.shape[0]
    C = w_si0.shape[1]
    E = rhat.shape[0]
    x0 = x[:, :C].clone()
    x1 = x[:, C:].reshape(N, 3, C)
    R = (e_attr @ w_rad).reshape(E, 5, C)
    f0 = x0[src]
    f1 = x1[src]
    Y1 = rhat
    p00_0 = f0 * R[:, 0, :]
    p11_0 = torch.einsum('ejc,ej->ec', f1, Y1) * R[:, 1, :]
    p01_1 = torch.einsum('ec,ej->ejc', f0, Y1) * R[:, 2, :][:, None, :]
    p10_1 = f1 * R[:, 3, :][:, None, :]
    p11_1 = torch.einsum('ijk,ekc,ej->eic', cg_eps, f1, Y1) * R[:, 4, :][:, None, :]
    m0 = torch.concatenate([p00_0, p11_0], axis=-1) @ w_si0
    m1 = torch.einsum('ejp,pc->ejc', torch.concatenate([p01_1, p10_1, p11_1], axis=-1), w_si1)
    agg0 = _segment_sum(m0, dst, N)
    agg1 = _segment_sum(m1.reshape(E, 3 * C), dst, N).reshape(N, 3, C)
    gate = _sigmoid(agg0)
    out1 = agg1 * gate[:, None, :]
    return torch.concatenate([agg0, out1.reshape(N, 3 * C)], axis=-1)
```

```python
import re

TRANS = ("v_exp_f32", "v_log_f32", "v_rcp_f32", "v_rsq_f32", "v_sqrt_f32", "v_sin_f32", "v_cos_f32")

def regs_of(tok):
    tok = tok.strip()
    tok = re.sub(r"^-|^\||\|$", "", tok)
    m = re.fullmatch(r"abs\((.*)\)", tok)
    if m: tok = m.group(1)
    m = re.fullmatch(r"([vsa])(\d+)", tok)
    if m: return [(m.group(1), int(m.group(2)))]
    m = re.fullmatch(r"([vsa])\[(\d+):(\d+)\]", tok)
    if m: return [(m.group(1), i) for i in range(int(m.group(2)), int(m.group(3)) + 1)]
    if tok in ("vcc", "vcc_lo", "vcc_hi"): return [("vcc", 0)]
    if tok in ("exec", "exec_lo", "exec_hi"): return [("exec", 0)]
    if tok == "m0": return [("m0", 0)]
    return []

def split_ops(rest):
    out, depth, cur = [], 0, ""
    for ch in rest:
        if ch == "[": depth += 1
        if ch == "]": depth -= 1
        if ch == "," and depth == 0:
            out.append(cur.strip()); cur = ""
        else: cur += ch
    if cur.strip(): out.append(cur.strip())
    res = []
    for o in out:
        res.append(o.split()[0] if o.split() else o)
    return res

class Emitter:
    def __init__(self):
        self.lines = []
        self.hist = []
        self.nnops = 0
    def raw(self, s):
        self.lines.append(s)
    def comment(self, s):
        self.lines.append("    ; " + s)
    def label(self, name):
        self.lines.append(name + ":")
    def flush(self, n=None):
        need = 0
        dist = 0
        for h in reversed(self.hist):
            w = 0
            if h["kind"] == "mfma": w = 8 if h["passes"] == 4 else 12
            elif h["kind"] == "valu":
                w = 2
                if any(r[0] in ("s", "vcc") for r in h["w"]): w = 5
                if any(r[0] == "exec" for r in h["w"]): w = 5
            need = max(need, w - dist)
            dist += h["states"]
            if dist > 12: break
        if need > 0: self.nop(need)
    def nop(self, n):
        while n > 0:
            k = min(n, 16)
            self.lines.append(f"    s_nop {k-1}")
            self.hist.append(dict(kind="nop", w=[], r=[], states=k, mn="s_nop"))
            self.nnops += 1
            n -= k
    def classify(self, mn, ops, full):
        w, r = [], []
        kind = "salu"
        passes = 0
        dpp = ("quad_perm" in full or "row_shr" in full or "row_bcast" in full or "row_ror" in full or "row_shl" in full
               or "wave_shr" in full or "row_mirror" in full or "row_half_mirror" in full or "row_newbcast" in full)
        if mn.startswith("v_mfma"):
            kind = "mfma"; passes = 8 if "32x32" in mn else 4
            w = regs_of(ops[0]); r = sum((regs_of(o) for o in ops[1:]), [])
        elif mn.startswith("v_cmpx"):
            kind = "valu"; w = regs_of(ops[0]) + [("exec", 0)]; r = sum((regs_of(o) for o in ops[1:]), [])
        elif mn.startswith("v_"):
            kind = "valu"
            w = regs_of(ops[0]); srcs = ops[1:]
            if mn.startswith(("v_add_co", "v_sub_co", "v_addc_co", "v_subb_co")):
                w += regs_of(ops[1]); srcs = ops[2:]
            r = sum((regs_of(o) for o in srcs), [])
            if mn.startswith(("v_fmac", "v_mac", "v_writelane", "v_pk_fmac", "v_dot2c")) or dpp or "sdwa" in mn or "op_sel" in full and mn.startswith("v_cvt") : r += regs_of(ops[0])
            if mn.startswith("v_permlane"): w += regs_of(ops[1]); r += regs_of(ops[0])
            if mn.startswith("v_cndmask") and len(ops) == 3: r += [("vcc", 0)]
        elif mn.startswith("ds_"):
            kind = "lds"
            if mn.startswith(("ds_read", "ds_bpermute", "ds_permute", "ds_swizzle")) or "_rtn" in mn:
                w = regs_of(ops[0]); r = sum((regs_of(o) for o in ops[1:]), [])
            else:
                r = sum((regs_of(o) for o in ops), [])
        elif mn.startswith(("buffer_", "global_")):
            kind = "vmem"
            if "load" in mn or ("atomic" in mn and "sc0" in full):
                w = regs_of(ops[0]); r = sum((regs_of(o) for o in ops[1:]), [])
                if "d16" in mn or "atomic" in mn: r += regs_of(ops[0])
            else:
                r = sum((regs_of(o) for o in ops), [])
        else:
            kind = "salu"
            if mn.startswith(("s_cmp", "s_cbranch", "s_branch", "s_waitcnt", "s_barrier", "s_nop", "s_sleep", "s_endpgm", "s_setprio", "s_bitcmp")):
                r = sum((regs_of(o) for o in ops), [])
            else:
                if ops: w = regs_of(ops[0]); r = sum((regs_of(o) for o in ops[1:]), [])
                if "saveexec" in mn: w += [("exec", 0)]
        return kind, w, r, passes, dpp
    def I(self, text):
        text = text.strip()
        code = text.split(";")[0].strip()
        parts = code.split(None, 1)
        mn = parts[0]
        ops = split_ops(parts[1]) if len(parts) > 1 else []
        kind, w, r, passes, dpp = self.classify(mn, ops, code)
        if mn == "s_nop":
            k = int(ops[0]) + 1
            self.lines.append("    " + text)
            self.hist.append(dict(kind="nop", w=[], r=[], states=k, mn=mn)); return
        need = 0
        dist = 0
        rs, ws = set(r), set(w)
        wide_store_data = set()
        for h in reversed(self.hist):
            req = 0
            hw, hr = set(h["w"]), set(h["r"])
            if h["kind"] == "valu":
                sw = {x for x in hw if x[0] in ("s", "vcc")}
                vw = {x for x in hw if x[0] in ("v", "a")}
                if kind == "vmem" and (sw & rs): req = max(req, 5)
                if kind == "valu" and (sw & rs):
                    req = max(req, 4 if mn.startswith(("v_readlane", "v_writelane")) and len(ops) > 2 and set(regs_of(ops[2])) & sw else 2)
                if kind == "valu" and dpp and (vw & rs): req = max(req, 2)
                if kind == "valu" and mn.startswith(("v_readlane", "v_readfirstlane")) and (vw & rs): req = max(req, 1)
                if kind == "valu" and mn.startswith("v_permlane") and (vw & rs): req = max(req, 2)
                if kind == "mfma" and (vw & rs): req = max(req, 2)
                if h["mn"].startswith(TRANS) and kind in ("valu",) and not mn.startswith(TRANS) and (vw & rs): req = max(req, 1)
                if h.get("opsel") and kind == "valu" and (vw & (rs | ws)): req = max(req, 1)
                if ("exec", 0) in hw:
                    if kind == "valu" and dpp: req = max(req, 5)
                    if kind == "valu" and mn.startswith(("v_readlane", "v_readfirstlane", "v_writelane", "v_permlane")): req = max(req, 4)
                    if kind == "mfma": req = max(req, 4)
                    if kind == "valu" and ("exec", 0) in rs: req = max(req, 2)
            elif h["kind"] == "mfma":
                p = h["passes"]
                D = hw
                if kind == "mfma":
                    srcc = set(regs_of(ops[3])); ab = set(regs_of(ops[1])) | set(regs_of(ops[2]))
                    if D & ab: req = max(req, 8 if p == 4 else 12)
                    if D & srcc and not (D == srcc and passes == p): req = max(req, 6 if p == 4 else 10)
                    if D & ws and not (D == srcc): req = max(req, 6 if p == 4 else 10)
                elif kind in ("valu", "lds", "vmem"):
                    if D & (rs | ws): req = max(req, 8 if p == 4 else 12)
                if kind == "valu" and (set(h["srcc"]) & ws): req = max(req, 3 if p == 4 else 7)
            elif h["kind"] == "vmem" and h.get("wide_store"):
                if kind == "valu" and (set(h["data"]) & ws): req = max(req, 2)
                elif (set(h["data"]) & ws): req = max(req, 1)
            elif h["kind"] == "salu":
                if ("m0", 0) in hw and (kind == "vmem" and "lds" in code): req = max(req, 1)
            need = max(need, req - dist)
            dist += h["states"]
            if dist > 20: break
        if need > 0: self.nop(need)
        ent = dict(kind=kind, w=w, r=r, states=1, mn=mn, passes=passes)
        if kind == "mfma": ent["srcc"] = regs_of(ops[3])
        if kind == "vmem" and "store" in mn and ("x3" in mn or "x4" in mn):
            ent["wide_store"] = True; ent["data"] = regs_of(ops[0])
        if kind == "valu" and ("sdwa" in mn or ("op_sel" in code and not mn.startswith("v_pk"))): ent["opsel"] = True
        self.lines.append("    " + text)
        self.hist.append(ent)
        if len(self.hist) > 64: self.hist = self.hist[-40:]
    def branch(self, text):
        self.flush()
        self.I(text)
    def text(self):
        return "\n".join(self.lines) + "\n"
```

```python
import sys
from emit import Emitter

N, E = 12500, 800000
NB, NODES = 250, 50
NCH, CH = 250, 3200
CSTRIDE = 55424
KEYOFF, TABOFF = 51200, 54400
WFOFF = NCH * CSTRIDE
WSBYTES = WFOFF + 40960

class Cfg:
    pf1_lines = 0
    pf1_pos = "late"
    st_flags = ""
    ld_flags = ""
    rec_flags = ""
    out_flags = ""
    pf2_lines = 0
    pf2b_lines = 0
    pf2b_tile = 2
    stamps = False
    cap = 3584

def srd(e, d, b, nbytes):
    e.I(f"s_mov_b32 s{d}, s{b}")
    e.I(f"s_mov_b32 s{d+1}, s{b+1}")
    e.I(f"s_mov_b32 s{d+2}, {nbytes}")
    e.I(f"s_mov_b32 s{d+3}, 0x20000")

def scan64(e, v):
    for sh in (1, 2, 4, 8):
        e.I(f"v_add_u32_dpp v{v}, v{v}, v{v} row_shr:{sh} row_mask:0xf bank_mask:0xf")
    e.I(f"v_add_u32_dpp v{v}, v{v}, v{v} row_bcast:15 row_mask:0xa bank_mask:0xf")
    e.I(f"v_add_u32_dpp v{v}, v{v}, v{v} row_bcast:31 row_mask:0xc bank_mask:0xf")

def prefetch_x(e, c, nlines, vt, vtid, nthreads, slice_s, half, srdx, tag):
    if nlines <= 0: return
    e.I(f"s_mul_i32 s46, s{slice_s}, 782")
    it = (nlines + nthreads - 1) // nthreads
    for k in range(it):
        e.I(f"v_add_u32 v{vt}, {k*nthreads}, v{vtid}")
        lim = nlines
        e.I(f"v_cmp_gt_u32 vcc, {lim}, v{vt}" if lim <= 64 else f"s_mov_b32 s47, {lim}")
        if lim > 64: e.I(f"v_cmp_gt_u32 vcc, s47, v{vt}")
        e.I(f"v_add_u32 v{vt}, s46, v{vt}")
        e.I(f"v_and_b32 v{vt+1}, 1, v{vt}")
        e.I(f"v_lshrrev_b32 v{vt}, 1, v{vt}")
        e.I(f"v_lshlrev_b32 v{vt}, 9, v{vt}")
        e.I(f"v_lshl_add_u32 v{vt}, v{vt+1}, 7, v{vt}")
        e.I(f"v_cndmask_b32 v{vt}, 2.0, v{vt}, vcc")
        e.I(f"buffer_load_dword v{vt+2}, v{vt}, s[{srdx}:{srdx+3}], 0 offen offset:{half*256}")

def stamp(e, c, slot, tmp_s=90):
    if not c.stamps: return
    e.I(f"s_memrealtime s[{tmp_s}:{tmp_s+1}]")
    e.I("s_waitcnt lgkmcnt(0)")
    e.I(f"v_writelane_b32 v{c.stampv}, s{tmp_s}, {slot}")

def stamp_store(e, c, srdws, kid, vtmp):
    if not c.stamps: return
    e.I(f"v_lshrrev_b32 v{vtmp}, 6, v{c.tidv}")
    e.I(f"s_lshl_b32 s90, s2, 4")
    e.I(f"v_add_u32 v{vtmp}, s90, v{vtmp}")
    e.I(f"v_lshlrev_b32 v{vtmp}, 6, v{vtmp}")
    e.I(f"v_and_b32 v{vtmp+1}, 63, v{c.tidv}")
    e.I(f"v_lshl_add_u32 v{vtmp}, v{vtmp+1}, 2, v{vtmp}")
    e.I(f"v_cmp_gt_u32 vcc, 16, v{vtmp+1}")
    e.I(f"v_cndmask_b32 v{vtmp}, 2.0, v{vtmp}, vcc")
    e.I(f"s_mov_b32 s90, {(16+kid) << 20}")
    e.I(f"buffer_store_dword v{c.stampv}, v{vtmp}, s[{srdws}:{srdws+3}], s90 offen")

def kernel_header(e, name):
    e.raw(f".globl {name}")
    e.raw(".p2align 8")
    e.raw(f".type {name},@function")
    e.raw(f"{name}:")
    e.hist = []

def kd(name, nv, ns):
    return f""".amdhsa_kernel {name}
  .amdhsa_next_free_vgpr {nv}
  .amdhsa_next_free_sgpr {ns}
  .amdhsa_accum_offset {(nv+3)//4*4}
  .amdhsa_group_segment_fixed_size 0
  .amdhsa_kernarg_size 96
  .amdhsa_user_sgpr_count 2
  .amdhsa_user_sgpr_kernarg_segment_ptr 1
  .amdhsa_system_sgpr_workgroup_id_x 1
  .amdhsa_float_denorm_mode_32 3
.end_amdhsa_kernel
"""

K1_HIST = 55424
K1_BASE = K1_HIST + 1024
K1_LDS = K1_BASE + 1024

def gen_k1(e, c):
    name = "eqsort_kernel"
    kernel_header(e, name)
    c.stampv, c.tidv = 60, 0
    I = e.I
    wsbytes = (32 << 20) if c.stamps else WSBYTES
    I("s_cmp_ge_u32 s2, 256")
    I("s_cbranch_scc1 L1_end")
    if c.stamps: I("v_mov_b32 v60, 0")
    stamp(e, c, 0)
    I("s_load_dwordx4 s[4:7], s[0:1], 0")
    I("s_load_dwordx4 s[8:11], s[0:1], 16")
    I("s_load_dwordx2 s[12:13], s[0:1], 32")
    I("s_load_dwordx4 s[16:19], s[0:1], 48")
    I("s_load_dwordx2 s[14:15], s[0:1], 88")
    I("v_lshlrev_b32 v1, 4, v0")
    I("v_lshlrev_b32 v2, 5, v0")
    I("v_mul_u32_u24 v3, 24, v0")
    I("v_lshlrev_b32 v40, 2, v0")
    I("v_mov_b32 v41, 0")
    I("v_mov_b32 v42, 1")
    I("s_mul_i32 s44, s2, 12800")
    I("s_mul_i32 s45, s2, 25600")
    I("s_mul_i32 s50, s2, 19200")
    I(f"s_mul_i32 s51, s2, {CSTRIDE}")
    I("s_lshr_b32 s52, s2, 3")
    I("s_mov_b32 s53, -50")
    I("s_movk_i32 s54, 800")
    I("v_readfirstlane_b32 s55, v0")
    I("s_lshr_b32 s55, s55, 6")
    I("v_subrev_u32 v50, 832, v0")
    I("s_waitcnt lgkmcnt(0)")
    srd(e, 20, 4, N * 512)
    srd(e, 24, 6, E * 6)
    srd(e, 28, 8, E * 8)
    srd(e, 32, 10, E * 4)
    srd(e, 36, 12, E * 4)
    srd(e, 40, 14, wsbytes)
    I("s_cmp_ge_u32 s2, 250")
    e.branch("s_cbranch_scc1 L1_helper")
    I("s_cmp_ge_u32 s55, 13")
    e.branch("s_cbranch_scc1 L1_idle0")
    I("v_cmp_gt_u32 vcc, s54, v0")
    I("s_and_saveexec_b64 s[48:49], vcc")
    lf = c.ld_flags
    I(f"buffer_load_dwordx4 v[4:7], v1, s[36:39], s44 offen {lf}")
    I(f"buffer_load_dwordx4 v[8:11], v1, s[32:35], s44 offen {lf}")
    I(f"buffer_load_dwordx4 v[12:15], v2, s[28:31], s45 offen {lf}")
    I(f"buffer_load_dwordx4 v[16:19], v2, s[28:31], s45 offen offset:16 {lf}")
    I(f"buffer_load_dwordx4 v[20:23], v3, s[24:27], s50 offen {lf}")
    I(f"buffer_load_dwordx2 v[24:25], v3, s[24:27], s50 offen offset:16 {lf}")
    I("s_mov_b64 exec, s[48:49]")
    I("s_cmp_ge_u32 s55, 4")
    e.branch("s_cbranch_scc1 L1_nz")
    I(f"ds_write_b32 v40, v41 offset:{K1_HIST}")
    I("s_waitcnt lgkmcnt(0)")
    e.label("L1_nz")
    I("s_barrier")
    I("s_and_b64 exec, exec, vcc")
    I("s_waitcnt vmcnt(5)")
    stamp(e, c, 1)
    for i in range(4):
        I(f"v_mul_u32_u24 v{44+i}, 0x147b, v{4+i}")
    for i in range(4):
        I(f"v_lshrrev_b32 v{44+i}, 18, v{44+i}")
    for i in range(4):
        I(f"v_mad_i32_i24 v{4+i}, v{44+i}, s53, v{4+i}")
        I(f"v_lshlrev_b32 v{44+i}, 2, v{44+i}")
    for i in range(4):
        I(f"ds_add_rtn_u32 v{36+i}, v{44+i}, v42 offset:{K1_HIST}")
    I("s_waitcnt lgkmcnt(0)")
    I("s_barrier")
    I("s_cmp_lg_u32 s55, 0")
    e.branch("s_cbranch_scc1 L1_noscan")
    I(f"ds_read_b128 v[52:55], v1 offset:{K1_HIST}")
    I("s_waitcnt lgkmcnt(0)")
    I("v_add_u32 v56, v52, v53")
    I("v_add_u32 v57, v56, v54")
    I("v_add_u32 v58, v57, v55")
    I("v_mov_b32 v59, v58")
    scan64(e, 59)
    I("v_sub_u32 v59, v59, v58")
    I("v_add_u32 v28, v59, v52")
    I("v_add_u32 v29, v59, v56")
    I("v_add_u32 v30, v59, v57")
    I("v_mov_b32 v32, v59"); I("v_mov_b32 v33, v28"); I("v_mov_b32 v34, v29"); I("v_mov_b32 v35, v30")
    I(f"ds_write_b128 v1, v[32:35] offset:{K1_BASE}")
    I("v_lshl_or_b32 v52, v52, 16, v59")
    I("v_lshl_or_b32 v53, v53, 16, v28")
    I("v_lshl_or_b32 v54, v54, 16, v29")
    I("v_lshl_or_b32 v55, v55, 16, v30")
    I(f"ds_write_b128 v1, v[52:55] offset:{TABOFF}")
    I("s_waitcnt lgkmcnt(0)")
    e.label("L1_noscan")
    I("s_barrier")
    for i in range(4):
        I(f"ds_read_b32 v{44+i}, v{44+i} offset:{K1_BASE}")
    I("s_mov_b32 s56, 0x05040100")
    I("s_mov_b32 s57, 0x05040302")
    I("s_waitcnt vmcnt(0)")
    stamp(e, c, 2)
    I("v_mov_b32 v28, v20")
    I("v_perm_b32 v29, v8, v21, s56")
    I("v_alignbit_b32 v30, v22, v21, 16")
    I("v_perm_b32 v31, v9, v22, s57")
    I("v_mov_b32 v32, v23")
    I("v_perm_b32 v33, v10, v24, s56")
    I("v_alignbit_b32 v34, v25, v24, 16")
    I("v_perm_b32 v35, v11, v25, s57")
    I("s_waitcnt lgkmcnt(0)")
    for i in range(4):
        I(f"v_add_u32 v{36+i}, v{36+i}, v{44+i}")
        I(f"v_lshlrev_b32 v{44+i}, 4, v{36+i}")
    for i in range(4):
        I(f"ds_write2_b64 v{44+i}, v[{12+2*i}:{13+2*i}], v[{28+2*i}:{29+2*i}] offset0:0 offset1:1")
        I(f"ds_write_b8 v{36+i}, v{4+i} offset:{KEYOFF}")
    I("s_mov_b64 exec, -1")
    I("s_waitcnt lgkmcnt(0)")
    e.branch("s_branch L1_copy")
    e.label("L1_idle0")
    if c.pf1_pos == "early": prefetch_x(e, c, c.pf1_lines, 4, 50, 192, 52, 0, 20, "a")
    I("s_barrier"); I("s_barrier")
    if c.pf1_pos == "mid": prefetch_x(e, c, c.pf1_lines, 4, 50, 192, 52, 0, 20, "a")
    I("s_barrier")
    if c.pf1_pos == "late": prefetch_x(e, c, c.pf1_lines, 4, 50, 192, 52, 0, 20, "a")
    e.flush()
    e.label("L1_copy")
    I("s_barrier")
    stamp(e, c, 3)
    I("ds_read_b128 v[8:11], v1")
    I("ds_read_b128 v[12:15], v1 offset:16384")
    I("ds_read_b128 v[16:19], v1 offset:32768")
    I("ds_read_b128 v[20:23], v1 offset:49152")
    I("v_add_u32 v2, 16384, v1")
    I("v_add_u32 v3, 32768, v1")
    I("v_add_u32 v24, 49152, v1")
    I("s_movk_i32 s54, 392")
    I("v_cmp_gt_u32 vcc, s54, v0")
    sf = c.st_flags
    I("s_waitcnt lgkmcnt(3)")
    I(f"buffer_store_dwordx4 v[8:11], v1, s[40:43], s51 offen {sf}")
    I("s_waitcnt lgkmcnt(2)")
    I(f"buffer_store_dwordx4 v[12:15], v2, s[40:43], s51 offen {sf}")
    I("s_waitcnt lgkmcnt(1)")
    I(f"buffer_store_dwordx4 v[16:19], v3, s[40:43], s51 offen {sf}")
    I("s_and_saveexec_b64 s[48:49], vcc")
    e.branch("s_cbranch_execz L1_st_done")
    I("s_waitcnt lgkmcnt(0)")
    I(f"buffer_store_dwordx4 v[20:23], v24, s[40:43], s51 offen {sf}")
    e.label("L1_st_done")
    I("s_mov_b64 exec, -1")
    if c.stamps:
        stamp(e, c, 4)
        I("s_waitcnt vmcnt(0)")
        stamp(e, c, 5)
        stamp_store(e, c, 40, 0, 26)
    I("s_endpgm")
    e.label("L1_helper")
    I("s_cmp_lt_u32 s55, 13")
    e.branch("s_cbranch_scc1 L1_h_w")
    prefetch_x(e, c, c.pf1_lines, 4, 50, 192, 52, 0, 20, "h")
    I("s_waitcnt vmcnt(0)")
    I("s_endpgm")
    e.label("L1_h_w")
    I("s_sub_u32 s44, s2, 250")
    I("s_mul_i32 s44, s44, 13")
    I("s_add_u32 s44, s44, s55")
    I("s_cmp_ge_u32 s44, 40")
    e.branch("s_cbranch_scc1 L1_end")
    I("s_and_b32 s45, s44, 3")
    I("s_lshr_b32 s46, s44, 2")
    I("s_cmp_lt_u32 s46, 4")
    I("s_cselect_b32 s24, s16, s18")
    I("s_cselect_b32 s25, s17, s19")
    I("s_movk_i32 s26, 24576")
    I("s_cselect_b32 s26, 16384, s26")
    I("s_cselect_b32 s47, 0, 4")
    I("s_mov_b32 s27, 0x20000")
    I("s_sub_u32 s46, s46, s47")
    I("s_lshl_b32 s46, s46, 12")
    I("s_lshl_b32 s45, s45, 5")
    I("s_add_u32 s46, s46, s45")
    I("v_and_b32 v4, 63, v0")
    I("v_lshrrev_b32 v5, 4, v4")
    I("v_and_b32 v6, 15, v4")
    I("v_lshlrev_b32 v5, 10, v5")
    I("v_lshl_add_u32 v5, v6, 1, v5")
    for q in range(8):
        I(f"buffer_load_ushort v{12+q}, v5, s[24:27], s46 offen offset:{q*128}")
    I("v_lshlrev_b32 v4, 4, v4")
    I("s_lshl_b32 s44, s44, 10")
    I(f"s_add_u32 s44, s44, {WFOFF}")
    I("s_waitcnt vmcnt(0)")
    for k in range(4):
        I(f"v_lshl_or_b32 v{8+k}, v{13+2*k}, 16, v{12+2*k}")
    I("buffer_store_dwordx4 v[8:11], v4, s[40:43], s44 offen")
    e.label("L1_end")
    I("s_endpgm")
    return name, 64, 96

def path_of(jp, blk):
    if blk == 0: return (0, 0, 1) if jp == 0 else (2, jp, 1)
    k = blk - 1
    if jp == 0: return (3, 1 + k, 1)
    j = jp - 1
    if j == k: return (1, 0, 1)
    i = 3 - j - k
    return (4, 1 + i, 1 if k == (j + 1) % 3 else -1)

def gen_k2(e, c):
    name = "eqmain_kernel"
    CAP = c.cap
    HIST = 0
    RAW = 1024
    T = (RAW + CAP * 16 + 512 + 1023) // 1024 * 1024
    WRAD = T + NODES * 1024
    SCR = WRAD + 16384
    HIST2, CUR2, CNT = HIST + 256, HIST + 512, HIST + 768
    NEXT, DONE, GDONE = CNT, CNT + 16, CNT + 64
    lds = SCR + 12 * 1024
    lds = max(lds, T + 64 * 1024)
    c.k2_lds = lds
    kernel_header(e, name)
    I = e.I
    wsbytes = (32 << 20) if c.stamps else WSBYTES
    c.stampv, c.tidv = 127, 126
    I("s_cmp_ge_u32 s2, 250")
    I("s_cbranch_scc1 L2_end")
    if c.stamps:
        I("v_mov_b32 v127, 0")
        I("v_mov_b32 v126, v0")
    stamp(e, c, 0)
    I("s_load_dwordx2 s[42:43], s[0:1], 0")
    I("s_load_dwordx2 s[44:45], s[0:1], 40")
    I("s_load_dwordx2 s[46:47], s[0:1], 72")
    I("s_load_dwordx2 s[48:49], s[0:1], 88")
    I("s_and_b32 s20, s2, 7")
    I("s_min_u32 s21, s20, 2")
    I("s_mul_i32 s20, s20, 31")
    I("s_add_u32 s20, s20, s21")
    I("s_lshr_b32 s31, s2, 3")
    I("s_add_u32 s20, s20, s31")
    I("v_readfirstlane_b32 s21, v0")
    I("s_lshr_b32 s21, s21, 6")
    I("s_mov_b32 s22, 0")
    I("s_movk_i32 s23, 250")
    I("s_mov_b32 s24, 1")
    I("s_mov_b32 s26, 0xaaaaaaaa")
    I("s_mov_b32 s27, 0xaaaaaaaa")
    I("s_mov_b32 s28, 0x05040100")
    I("s_mov_b32 s29, 0x07060302")
    I("s_mov_b32 s30, 0xffff0000")
    I("s_waitcnt lgkmcnt(0)")
    srd(e, 4, 42, N * 512)
    srd(e, 8, 48, wsbytes)
    srd(e, 12, 46, N * 512)
    srd(e, 16, 44, 2560)
    I("s_cmp_lt_u32 s21, 4")
    e.branch("s_cbranch_scc1 L2_gemm")

    VLANE, VINFO, VNEXT = 108, 109, 110
    VLOFF, VSRCC, VRAWC, VSLOT, VSCRW, VTRA, VWR, VL16 = 111, 112, 113, 114, 115, 116, 117, 118
    VT0, VT1, VONE, VZERO = 119, 120, 121, 122
    VJ, VCH, VSEG = 123, 124, 125
    I(f"v_and_b32 v{VLANE}, 63, v0")
    I(f"v_subrev_u32 v{VT0}, 256, v0")
    I(f"v_and_b32 v{VJ}, 15, v{VT0}")
    I(f"v_lshrrev_b32 v{VSEG}, 4, v{VT0}")
    I(f"s_mov_b32 s42, {CSTRIDE}")
    I(f"v_mul_u32_u24 v{VCH}, s42, v{VSEG}")
    I(f"v_mov_b32 v{VONE}, 1")
    I(f"v_mov_b32 v{VZERO}, 0")
    I(f"v_and_b32 v{VT0}, 15, v{VLANE}")
    I(f"v_lshlrev_b32 v{VLOFF}, 4, v{VT0}")
    I(f"v_lshrrev_b32 v{VT1}, 4, v{VLANE}")
    I(f"v_lshl_add_u32 v{VSRCC}, v{VT1}, 4, 14")
    I(f"v_lshrrev_b32 v{VSLOT}, 1, v{VLANE}")
    I(f"v_lshlrev_b32 v{VRAWC}, 4, v{VSLOT}")
    I(f"v_lshlrev_b32 v{VL16}, 4, v{VLANE}")
    I("s_sub_u32 s43, s21, 4")
    I("s_lshl_b32 s43, s43, 10")
    I(f"s_add_u32 s43, s43, {SCR}")
    I(f"v_add_u32 v{VSCRW}, s43, v{VL16}")
    I(f"v_lshlrev_b32 v{VTRA}, 5, v{VT1}")
    I(f"v_bfe_u32 v{VT1}, v{VLANE}, 2, 2")
    I(f"v_lshl_add_u32 v{VTRA}, v{VT1}, 7, v{VTRA}")
    I(f"v_and_b32 v{VT1}, 3, v{VLANE}")
    I(f"v_lshl_add_u32 v{VTRA}, v{VT1}, 3, v{VTRA}")
    I(f"v_add_u32 v{VTRA}, s43, v{VTRA}")
    I(f"v_add_u32 v{VWR}, {WRAD}, v{VL16}")

    e.label("L2_g_round")
    PAY, KEY, RNK, TAB, KAD, PAD = 0, 48, 60, 72, 78, 84
    MSK = 50
    rf = c.rec_flags
    I("s_lshl_b32 s42, s20, 2")
    I(f"s_add_u32 s42, s42, {TABOFF}")
    for p in range(6):
        if p == 5:
            I("s_cmp_ge_u32 s21, 7")
            I(f"v_mov_b32 v{TAB+5}, 0")
            e.branch("s_cbranch_scc1 L2_notab5")
        I(f"buffer_load_dword v{TAB+p}, v{VCH}, s[8:11], s42 offen {rf}")
        if p < 5: I(f"s_add_u32 s42, s42, {48*CSTRIDE}")
    e.label("L2_notab5")
    I("s_waitcnt vmcnt(0)")
    stamp(e, c, 1)
    for p in range(6):
        I(f"s_sub_u32 s42, {48*p}, s22")
        I(f"v_add_u32 v{VT0}, s42, v{VSEG}")
        I(f"v_cmp_gt_u32 vcc, s23, v{VT0}")
        I(f"v_and_b32 v{KAD+p}, 0xffff, v{TAB+p}")
        I(f"v_lshrrev_b32 v{TAB+p}, 16, v{TAB+p}")
        I(f"v_cndmask_b32 v{TAB+p}, 0, v{TAB+p}, vcc")
        I(f"v_add_u32 v{KAD+p}, v{KAD+p}, v{VJ}")
        I(f"v_lshl_add_u32 v{PAD+p}, v{KAD+p}, 4, v{VCH}")
        I(f"v_add_u32 v{KAD+p}, v{KAD+p}, v{VCH}")
        I(f"v_cmp_lt_u32 s[{MSK+4*p}:{MSK+4*p+1}], v{VJ}, v{TAB+p}")
        I(f"v_add_u32 v{VT0}, 16, v{VJ}")
        I(f"v_cmp_lt_u32 s[{MSK+4*p+2}:{MSK+4*p+3}], v{VT0}, v{TAB+p}")
        I(f"s_mov_b32 s{74+p}, {48*p*CSTRIDE}")
        I(f"s_mov_b32 s{80+p}, {48*p*CSTRIDE+KEYOFF}")
        I(f"v_cndmask_b32 v{PAD+p}, 2.0, v{PAD+p}, s[{MSK+4*p}:{MSK+4*p+1}]")
    e.flush()
    for p in range(6):
        I(f"s_mov_b64 exec, s[{MSK+4*p+2}:{MSK+4*p+3}]")
        I(f"s_cbranch_execz L2_w1skip{p}")
        I(f"buffer_load_ubyte v{KEY+2*p+1}, v{KAD+p}, s[8:11], s{80+p} offen offset:16 {rf}")
        I(f"buffer_load_dwordx4 v[{PAY+8*p+4}:{PAY+8*p+7}], v{PAD+p}, s[8:11], s{74+p} offen offset:256 {rf}")
        e.label(f"L2_w1skip{p}")
    for p in range(6):
        I(f"s_mov_b64 exec, s[{MSK+4*p}:{MSK+4*p+1}]")
        if p == 5: I("s_cbranch_execz L2_k5skip")
        I(f"buffer_load_ubyte v{KEY+2*p}, v{KAD+p}, s[8:11], s{80+p} offen {rf}")
    e.label("L2_k5skip")
    I("s_mov_b64 exec, -1")
    for p in range(6):
        if p == 5:
            I("s_cmp_ge_u32 s21, 7")
            I("s_cbranch_scc1 L2_p5skip")
        I(f"buffer_load_dwordx4 v[{PAY+8*p}:{PAY+8*p+3}], v{PAD+p}, s[8:11], s{74+p} offen {rf}")
    e.label("L2_p5skip")
    I("s_barrier")
    I("s_waitcnt vmcnt(5)")
    stamp(e, c, 2)
    for k in range(12):
        I(f"v_lshlrev_b32 v{KEY+k}, 2, v{KEY+k}")
    for p in range(6):
        for w in range(2):
            I(f"s_mov_b64 exec, s[{MSK+4*p+2*w}:{MSK+4*p+2*w+1}]")
            I(f"ds_add_rtn_u32 v{RNK+2*p+w}, v{KEY+2*p+w}, v{VONE} offset:{HIST}")
    I("s_mov_b64 exec, -1")
    I(f"v_max3_u32 v{VT0}, v{TAB}, v{TAB+1}, v{TAB+2}")
    I(f"v_max3_u32 v{VT0}, v{VT0}, v{TAB+3}, v{TAB+4}")
    I(f"v_max_u32 v{VT0}, v{VT0}, v{TAB+5}")
    I(f"v_cmp_lt_u32 vcc, 32, v{VT0}")
    I("s_mov_b32 s25, 0")
    e.flush()
    I("s_cmp_eq_u64 vcc, 0")
    I("s_cbranch_scc1 L2_noextraA")
    I("s_mov_b32 s25, 1")
    for p in range(6):
        I(f"v_add_u32 v{VT0}, 32, v{VJ}")
        I(f"v_add_u32 v{VT1}, 32, v{KAD+p}")
        e.label(f"L2_xa{p}")
        I(f"v_cmp_lt_u32 vcc, v{VT0}, v{TAB+p}")
        I("s_and_saveexec_b64 s[44:45], vcc")
        e.branch(f"s_cbranch_execz L2_xa{p}_done")
        I(f"buffer_load_ubyte v90, v{VT1}, s[8:11], s{80+p} offen")
        I("s_waitcnt vmcnt(0)")
        I("v_lshlrev_b32 v90, 2, v90")
        I(f"ds_add_u32 v90, v{VONE} offset:{HIST2}")
        I("s_mov_b64 exec, -1")
        I(f"v_add_u32 v{VT0}, 16, v{VT0}")
        I(f"v_add_u32 v{VT1}, 16, v{VT1}")
        e.branch(f"s_branch L2_xa{p}")
        e.label(f"L2_xa{p}_done")
        I("s_mov_b64 exec, -1")
    e.label("L2_noextraA")
    I("s_waitcnt lgkmcnt(0)")
    I("s_barrier")
    I(f"v_lshlrev_b32 v{VT0}, 2, v{VLANE}")
    I(f"ds_read_b32 v90, v{VT0} offset:{HIST}")
    I(f"ds_read_b32 v91, v{VT0} offset:{HIST2}")
    I("s_waitcnt lgkmcnt(0)")
    I("v_add_u32 v91, v90, v91")
    I("v_mov_b32 v92, v91")
    scan64(e, 92)
    I("v_readlane_b32 s42, v92, 63")
    I("v_sub_u32 v92, v92, v91")
    I(f"v_lshl_or_b32 v{VINFO}, v91, 16, v92")
    e.flush()
    I(f"s_cmp_gt_u32 s42, {CAP}")
    I("s_cbranch_scc1 L2_g_overflow")
    for k in range(12):
        I(f"ds_bpermute_b32 v{KEY+k}, v{KEY+k}, v92")
    I("s_waitcnt vmcnt(0) lgkmcnt(0)")
    stamp(e, c, 3)
    for k in range(12):
        I(f"v_add_lshl_u32 v{KEY+k}, v{KEY+k}, v{RNK+k}, 4")
    for p in range(6):
        for w in range(2):
            I(f"s_mov_b64 exec, s[{MSK+4*p+2*w}:{MSK+4*p+2*w+1}]")
            I(f"ds_write_b128 v{KEY+2*p+w}, v[{PAY+8*p+4*w}:{PAY+8*p+4*w+3}] offset:{RAW}")
    I("s_mov_b64 exec, -1")
    I("s_cmp_eq_u32 s25, 0")
    I("s_cbranch_scc1 L2_noextraB")
    I("v_add_u32 v92, v92, v90")
    for p in range(6):
        I(f"v_add_u32 v{VT0}, 32, v{VJ}")
        I(f"v_add_u32 v{VT1}, 32, v{KAD+p}")
        I(f"v_add_u32 v93, 512, v{PAD+p}")
        e.label(f"L2_xb{p}")
        I(f"v_cmp_lt_u32 vcc, v{VT0}, v{TAB+p}")
        I("s_and_saveexec_b64 s[44:45], vcc")
        e.branch(f"s_cbranch_execz L2_xb{p}_done")
        I(f"buffer_load_ubyte v94, v{VT1}, s[8:11], s{80+p} offen")
        I(f"buffer_load_dwordx4 v[96:99], v93, s[8:11], s{74+p} offen")
        I("s_waitcnt vmcnt(0)")
        I("v_lshlrev_b32 v94, 2, v94")
        I(f"ds_add_rtn_u32 v95, v94, v{VONE} offset:{CUR2}")
        I("s_mov_b64 exec, -1")
        I("ds_bpermute_b32 v94, v94, v92")
        I("s_waitcnt lgkmcnt(0)")
        I("v_add_lshl_u32 v94, v94, v95, 4")
        I("s_mov_b64 exec, vcc")
        I(f"ds_write_b128 v94, v[96:99] offset:{RAW}")
        I("s_mov_b64 exec, -1")
        I(f"v_add_u32 v{VT0}, 16, v{VT0}")
        I(f"v_add_u32 v{VT1}, 16, v{VT1}")
        I("v_add_u32 v93, 256, v93")
        e.branch(f"s_branch L2_xb{p}")
        e.label(f"L2_xb{p}_done")
        I("s_mov_b64 exec, -1")
    e.label("L2_noextraB")
    ACC, LD, B, A, AD = 0, 32, 64, 96, 100
    for k in range(32):
        I(f"v_mov_b32 v{LD+k}, 0")
    I("s_waitcnt lgkmcnt(0)")
    I("s_barrier")
    stamp(e, c, 4)

    sNA, sNR, sNH, sNN, sNF, sNV = 32, 33, 34, 35, 36, 37
    sCN, sCH, sCF, sCL = 38, 39, 40, 41

    def fetch_issue():
        I("s_mov_b64 exec, 1")
        I(f"ds_add_rtn_u32 v{VNEXT}, v{VZERO}, v{VONE} offset:{NEXT}")
        I("s_mov_b64 exec, -1")
    def setup_item(tag):
        I(f"v_readfirstlane_b32 s42, v{VNEXT}")
        I(f"s_mov_b32 s{sNV}, 0")
        e.flush()
        I(f"s_cmp_ge_u32 s42, {2*NODES}")
        I(f"s_cbranch_scc1 L2_noitem{tag}")
        I(f"s_cmp_ge_u32 s42, {NODES}")
        I(f"s_cselect_b32 s{sNH}, 256, 0")
        I(f"s_cselect_b32 s43, {NODES}, 0")
        I(f"s_sub_u32 s{sNN}, s42, s43")
        I(f"v_readlane_b32 s42, v{VINFO}, s{sNN}")
        I(f"s_mov_b32 s{sNV}, 1")
        I(f"s_mov_b32 s{sNF}, 1")
        e.flush()
        I(f"s_lshr_b32 s{sNR}, s42, 16")
        I("s_and_b32 s42, s42, 0xffff")
        I(f"s_lshl_b32 s{sNA}, s42, 4")
        e.label(f"L2_noitem{tag}")
    def prep_reads(tag):
        I(f"v_add_u32 v{VT0}, s{sNA}, v{VSRCC}")
        I(f"v_add_u32 v{VT1}, s{sNA}, v{VRAWC}")
        for i in range(8):
            I(f"ds_read_u16 v{AD+i}, v{VT0} offset:{RAW+64*i}")
        I(f"ds_read_b128 v[{B}:{B+3}], v{VT1} offset:{RAW}")
        I(f"s_cmp_gt_u32 s{sNR}, 32")
        I(f"s_cbranch_scc1 L2_nofetch{tag}")
        fetch_issue()
        e.label(f"L2_nofetch{tag}")
    def prep_compute():
        for i in range(8):
            I(f"v_lshl_add_u32 v{AD+i}, v{AD+i}, 9, v{VLOFF}")
        r = B
        I(f"v_cmp_gt_u32 vcc, s{sNR}, v{VSLOT}")
        I(f"v_lshlrev_b32 v{r+4}, 16, v{r}")
        I(f"v_and_b32 v{r+5}, s30, v{r}")
        I(f"v_lshlrev_b32 v{r+6}, 16, v{r+1}")
        I(f"v_and_b32 v{r+7}, s30, v{r+1}")
        I(f"v_and_b32 v{r+8}, s30, v{r+2}")
        I(f"v_cndmask_b32 v{r+10}, v{r+2}, v{r+3}, s[26:27]")
        I(f"v_cndmask_b32 v{r+8}, 1.0, v{r+8}, s[26:27]")
        I(f"v_lshlrev_b32 v{r+10}, 16, v{r+10}")
        for k in range(4):
            I(f"v_mul_f32 v{r+12+k}, v{r+4+k}, v{r+8}")
        for k in range(4):
            I(f"v_mul_f32 v{r+16+k}, v{r+4+k}, v{r+10}")
        for k in range(4):
            I(f"v_cvt_pk_bf16_f32 v{r+20+k}, v{r+12+2*k}, v{r+13+2*k}")
        for k in range(4):
            I(f"v_cndmask_b32 v{r+20+k}, 0, v{r+20+k}, vcc")
        I(f"ds_write_b128 v{VSCRW}, v[{r+20}:{r+23}]")
    def issue_loads(tag):
        def ld(i): I(f"buffer_load_dwordx4 v[{LD+4*i}:{LD+4*i+3}], v{AD+i}, s[4:7], s{sNH} offen")
        I(f"s_cmp_gt_u32 s{sNR}, 28")
        I(f"s_cbranch_scc1 L2_ldfull{tag}")
        for i in range(7):
            I(f"s_cmp_le_u32 s{sNR}, {4*i}")
            I(f"s_cbranch_scc1 L2_lddone{tag}")
            ld(i)
        I(f"s_branch L2_lddone{tag}")
        e.label(f"L2_ldfull{tag}")
        for i in range(8): ld(i)
        e.label(f"L2_lddone{tag}")

    fetch_issue()
    I("s_waitcnt lgkmcnt(0)")
    setup_item("0")
    I(f"s_cmp_eq_u32 s{sNV}, 0")
    I("s_cbranch_scc1 L2_g_done")
    prep_reads("0")
    I("s_waitcnt lgkmcnt(0)")
    prep_compute()
    issue_loads("0")
    e.label("L2_loop")
    I(f"s_mov_b32 s{sCN}, s{sNN}")
    I(f"s_mov_b32 s{sCH}, s{sNH}")
    I(f"s_mov_b32 s{sCF}, s{sNF}")
    I(f"ds_read_b64_tr_b16 v[{A}:{A+1}], v{VTRA}")
    I(f"ds_read_b64_tr_b16 v[{A+2}:{A+3}], v{VTRA} offset:512")
    I(f"s_cmp_gt_u32 s{sNR}, 32")
    I("s_cbranch_scc0 L2_adv_item")
    I(f"s_mov_b32 s{sCL}, 0")
    I(f"s_sub_u32 s{sNR}, s{sNR}, 32")
    I(f"s_add_u32 s{sNA}, s{sNA}, 512")
    I(f"s_mov_b32 s{sNF}, 0")
    I("s_branch L2_adv_done")
    e.label("L2_adv_item")
    I(f"s_mov_b32 s{sCL}, 1")
    setup_item("1")
    I(f"s_cmp_eq_u32 s{sNV}, 0")
    I("s_cbranch_scc1 L2_noprep")
    e.label("L2_adv_done")
    prep_reads("1")
    I("s_waitcnt lgkmcnt(0)")
    prep_compute()
    e.label("L2_noprep")
    I("s_waitcnt vmcnt(0)")
    for q in range(8):
        for jj in range(4):
            I(f"v_perm_b32 v{B+4*q+jj}, v{LD+4*(2*jj+1)+q//2}, v{LD+4*(2*jj)+q//2}, s{29 if q & 1 else 28}")
    I(f"s_cmp_eq_u32 s{sNV}, 0")
    I("s_cbranch_scc1 L2_noload")
    issue_loads("1")
    e.label("L2_noload")
    I("s_waitcnt lgkmcnt(0)")
    I(f"s_cmp_eq_u32 s{sCF}, 0")
    I("s_cbranch_scc1 L2_mf_acc")
    for q in range(8):
        I(f"v_mfma_f32_16x16x32_bf16 v[{ACC+4*q}:{ACC+4*q+3}], v[{A}:{A+3}], v[{B+4*q}:{B+4*q+3}], 0")
    I("s_branch L2_mf_done")
    e.label("L2_mf_acc")
    for q in range(8):
        I(f"v_mfma_f32_16x16x32_bf16 v[{ACC+4*q}:{ACC+4*q+3}], v[{A}:{A+3}], v[{B+4*q}:{B+4*q+3}], v[{ACC+4*q}:{ACC+4*q+3}]")
    e.label("L2_mf_done")
    I(f"s_cmp_eq_u32 s{sCL}, 0")
    I("s_cbranch_scc1 L2_loop")
    I(f"s_lshl_b32 s42, s{sCH}, 5")
    I(f"v_add_u32 v{VT0}, s42, v{VWR}")
    for q in range(8):
        I(f"ds_read_b128 v[{B+4*q}:{B+4*q+3}], v{VT0} offset:{q*1024}")
    I(f"s_lshr_b32 s43, s{sCN}, 4")
    I(f"s_lshl_b32 s43, s43, 2")
    I(f"s_cmp_eq_u32 s{sCH}, 0")
    I("s_cbranch_scc1 L2_nowar")
    I(f"v_mov_b32 v{VT1}, s43")
    I("s_mov_b32 s45, 0")
    e.label("L2_war")
    I(f"ds_read_b32 v{VT0}, v{VT1} offset:{GDONE}")
    I("s_waitcnt lgkmcnt(0)")
    I(f"v_readfirstlane_b32 s44, v{VT0}")
    e.flush()
    I("s_cmp_ge_u32 s44, 4")
    I("s_cbranch_scc1 L2_war_ok")
    I("s_add_u32 s45, s45, 1")
    I("s_cmp_lt_u32 s45, 0x400000")
    I("s_cbranch_scc1 L2_war")
    e.label("L2_war_ok")
    I("s_add_u32 s43, s43, 16")
    e.label("L2_nowar")
    I(f"s_and_b32 s44, s{sCN}, 15")
    I("s_lshl_b32 s44, s44, 4")
    I(f"s_lshl_b32 s45, s{sCN}, 10")
    I(f"s_add_u32 s45, s45, {T}")
    I(f"v_xor_b32 v{VT0}, s44, v{VL16}")
    I(f"v_add_u32 v{VT0}, s45, v{VT0}")
    I(f"v_mov_b32 v{VT1}, s43")
    I("s_waitcnt lgkmcnt(0)")
    e.nop(2)
    for q in range(8):
        I(f"v_mul_f32 v{B+4*q}, v{B+4*q}, v{ACC+4*q}")
    for d in range(1, 4):
        for q in range(8):
            I(f"v_fmac_f32 v{B+4*q}, v{B+4*q+d}, v{ACC+4*q+d}")
    for k in range(4):
        I(f"v_cvt_pk_bf16_f32 v{A+k}, v{B+8*k}, v{B+8*k+4}")
    I(f"ds_write_b128 v{VT0}, v[{A}:{A+3}]")
    I("s_waitcnt lgkmcnt(0)")
    I("s_mov_b64 exec, 1")
    I(f"ds_add_u32 v{VT1}, v{VONE} offset:{DONE}")
    I("s_mov_b64 exec, -1")
    I(f"s_cmp_lg_u32 s{sNV}, 0")
    I("s_cbranch_scc1 L2_loop")
    e.label("L2_g_done")
    stamp(e, c, 5)
    I("s_cmp_lg_u32 s24, 0")
    e.branch("s_cbranch_scc1 L2_g_exit")
    I("s_waitcnt lgkmcnt(0)")
    I("s_barrier")
    I("s_add_u32 s22, s22, 1")
    I(f"s_cmp_eq_u32 s22, {NCH-1}")
    I("s_cselect_b32 s24, 1, 0")
    e.branch("s_branch L2_g_round")
    e.label("L2_g_overflow")
    I("s_waitcnt vmcnt(0)")
    I("s_mov_b32 s22, 0")
    I("s_mov_b32 s23, 1")
    I("s_mov_b32 s24, 0")
    I("s_barrier")
    e.branch("s_branch L2_g_round")
    e.label("L2_g_exit")
    stamp_store(e, c, 8, 1, 90)
    I("s_endpgm")

    e.label("L2_gemm")
    W, G, TA, TF = 0, 40, 104, 108
    X0, X1 = 124, 125
    if c.stamps: X0, X1 = 124, 125
    I("v_and_b32 v104, 63, v0")
    I("v_mov_b32 v117, v0")
    I("v_lshlrev_b32 v105, 4, v104")
    I("s_lshl_b32 s42, s21, 10")
    I(f"s_add_u32 s42, s42, {WFOFF}")
    for f in range(10):
        I(f"buffer_load_dwordx4 v[{W+4*f}:{W+4*f+3}], v105, s[8:11], s42 offen")
        if f < 9: I("s_add_u32 s42, s42, 4096")
    lut = 0
    for jp in range(4):
        for blk in range(4):
            p, i, s = path_of(jp, blk)
            lut |= (p | (8 if s < 0 else 0)) << (4 * (jp * 4 + blk))
    I(f"s_mov_b32 s44, {lut & 0xffffffff}")
    I(f"s_mov_b32 s45, {lut >> 32}")
    for h in range(2):
        I("v_lshrrev_b32 v106, 4, v104")
        I("v_bfe_u32 v107, v104, 3, 1")
        I("v_lshl_add_u32 v106, v106, 2, v107")
        I(f"v_add_lshl_u32 v106, v106, {2*h}, 2")
        I(f"v_lshrrev_b64 v[108:109], v106, s[44:45]")
        I(f"v_and_b32 v106, 7, v108")
        I(f"v_and_b32 v{110+h}, 8, v108")
        I(f"v_lshlrev_b32 v{110+h}, 28, v{110+h}")
        I("v_and_b32 v107, 7, v104")
        I("v_lshlrev_b32 v107, 3, v107")
        I("v_lshl_add_u32 v106, v106, 6, v107")
        I("v_add_u32 v106, s21, v106")
        I(f"v_lshlrev_b32 v{112+h}, 1, v106")
    for k in range(4):
        h, qo = k >> 1, (k & 1) * 4
        for d in range(4):
            I(f"buffer_load_ushort v{G+4*k+d}, v{112+h}, s[16:19], 0 offen offset:{d*640+qo*2}")
    prefetch_x(e, c, c.pf2_lines, 114, 117, 256, 31, 0, 4, "p")
    I("s_lshl_b32 s42, s21, 10")
    I(f"s_add_u32 s42, s42, {WRAD}")
    I("v_add_u32 v105, s42, v105")
    npf = (c.pf2_lines + 255) // 256
    I(f"s_waitcnt vmcnt({npf})")
    for k in range(4):
        h = k >> 1
        for d in range(4):
            I(f"v_lshlrev_b32 v{G+4*k+d}, 16, v{G+4*k+d}")
            I(f"v_xor_b32 v{G+4*k+d}, v{110+h}, v{G+4*k+d}")
        I(f"ds_write_b128 v105, v[{G+4*k}:{G+4*k+3}] offset:{(k>>1)*8192 + (k&1)*4096}")
    I("v_and_b32 v106, 15, v104")
    I("v_lshrrev_b32 v107, 4, v104")
    I(f"v_lshlrev_b32 v{X0}, 2, v104")
    I(f"s_mul_i32 s42, s20, {NODES*512}")
    I("s_lshl_b32 s43, s21, 5")
    I("s_add_u32 s42, s42, s43")
    I(f"v_lshlrev_b32 v{X1}, 9, v106")
    I(f"v_lshl_add_u32 v{X1}, v107, 3, v{X1}")
    I(f"v_add_u32 v{X1}, s42, v{X1}")
    I(f"v_cmp_gt_u32 s[50:51], {NODES-48}, v106")
    I("v_lshlrev_b32 v108, 10, v106")
    I(f"v_add_u32 v108, {T}, v108")
    for u in (3, 2, 1, 0):
        I(f"v_add_u32 v109, {4*u}, v107")
        I("v_xor_b32 v109, v109, v106")
        I(f"v_lshl_add_u32 v{TF+4+u}, v109, 4, v108")
    I("s_waitcnt lgkmcnt(0)")
    for u in range(4):
        I(f"v_mov_b32 v{TA+u}, v{TF+4+u}")
    for k in range(64):
        I(f"v_mov_b32 v{G+k}, 0")
    e.label("L2_m_round")
    I("s_cmp_lg_u32 s21, 0")
    I("s_cbranch_scc1 L2_m_nz")
    I(f"v_mov_b32 v{TF}, 0"); I(f"v_mov_b32 v{TF+1}, 0"); I(f"v_mov_b32 v{TF+2}, 0"); I(f"v_mov_b32 v{TF+3}, 0")
    I(f"v_lshlrev_b32 v{TF+4}, 2, v{X0}")
    I(f"ds_write_b128 v{TF+4}, v[{TF}:{TF+3}] offset:{HIST}")
    I("s_waitcnt lgkmcnt(0)")
    e.label("L2_m_nz")
    I("s_barrier")
    I("s_barrier")
    I(f"ds_read_b32 v{TF}, v{X0} offset:{HIST}")
    I(f"ds_read_b32 v{TF+1}, v{X0} offset:{HIST2}")
    I("s_waitcnt lgkmcnt(0)")
    I(f"v_add_u32 v{TF}, v{TF}, v{TF+1}")
    scan64(e, TF)
    I(f"v_readlane_b32 s42, v{TF}, 63")
    e.flush()
    I(f"s_cmp_gt_u32 s42, {CAP}")
    I("s_cbranch_scc1 L2_m_overflow")
    I("s_barrier")
    I("s_waitcnt vmcnt(0)")
    stamp(e, c, 4)
    for h in range(2):
        for t in range(4):
            need = 16 if t < 3 else NODES - 48
            I(f"v_mov_b32 v{TF}, 0")
            I("s_mov_b32 s43, 0")
            e.label(f"L2_poll{h}{t}")
            I(f"ds_read_b32 v{TF+1}, v{TF} offset:{DONE + 16*h + 4*t}")
            I("s_waitcnt lgkmcnt(0)")
            I(f"v_readfirstlane_b32 s42, v{TF+1}")
            e.flush()
            I(f"s_cmp_ge_u32 s42, {need}")
            I(f"s_cbranch_scc1 L2_go{h}{t}")
            I("s_sleep 2")
            I("s_add_u32 s43, s43, 1")
            I("s_cmp_lt_u32 s43, 0x400000")
            I(f"s_cbranch_scc1 L2_poll{h}{t}")
            e.label(f"L2_go{h}{t}")
            def rd(ks):
                I(f"ds_read_b128 v[{TF+4*(ks&3)}:{TF+4*(ks&3)+3}], v{TA+(ks&3)} offset:{t*16384 + (ks>>2)*256}")
            for ks in range(4): rd(ks)
            for ks in range(16):
                jp, blk = ks >> 2, 2 * h + ((ks >> 1) & 1)
                p, i, s = path_of(jp, blk)
                f = p * 2 + (ks & 1)
                I(f"s_waitcnt lgkmcnt({min(3, 15-ks)})")
                g = G + 16 * t + 4 * i
                I(f"v_mfma_f32_16x16x32_bf16 v[{g}:{g+3}], v[{W+4*f}:{W+4*f+3}], v[{TF+4*(ks&3)}:{TF+4*(ks&3)+3}], v[{g}:{g+3}]")
                if ks + 4 < 16: rd(ks + 4)
            if h == 0:
                I(f"v_mov_b32 v{TF}, 0")
                I(f"v_mov_b32 v{TF+1}, 1")
                I("s_mov_b64 exec, 1")
                I(f"ds_add_u32 v{TF}, v{TF+1} offset:{GDONE + 4*t}")
                I("s_mov_b64 exec, -1")
                if t == c.pf2b_tile:
                    if c.pf2b_lines:
                        I("s_lshl_b32 s42, s21, 6")
                        I(f"v_lshrrev_b32 v{TF+3}, 2, v{X0}")
                        I(f"v_add_u32 v{TF+3}, s42, v{TF+3}")
                    prefetch_x(e, c, c.pf2b_lines, TF + 4, TF + 3, 256, 31, 1, 4, "q")
                    if c.pf2b_lines: I("s_waitcnt vmcnt(0)")
            else:
                I("s_cmp_eq_u32 s24, 0")
                e.branch(f"s_cbranch_scc1 L2_nofin{t}")
                g = G + 16 * t
                I("s_mov_b32 s42, 0xbfb8aa3b")
                for r in range(4): I(f"v_mul_f32 v{TF+r}, s42, v{g+r}")
                for r in range(4): I(f"v_exp_f32 v{TF+r}, v{TF+r}")
                for r in range(4): I(f"v_add_f32 v{TF+r}, 1.0, v{TF+r}")
                for r in range(4): I(f"v_rcp_f32 v{TF+r}, v{TF+r}")
                for i in range(1, 4):
                    for r in range(4): I(f"v_mul_f32 v{g+4*i+r}, v{g+4*i+r}, v{TF+r}")
                for i in range(4):
                    I(f"v_cvt_pk_bf16_f32 v{TF+4+2*i}, v{g+4*i}, v{g+4*i+1}")
                    I(f"v_cvt_pk_bf16_f32 v{TF+5+2*i}, v{g+4*i+2}, v{g+4*i+3}")
                I(f"s_mov_b32 s42, {t*16*512}")
                if t == 3: I("s_mov_b64 exec, s[50:51]")
                for i in range(4):
                    I(f"buffer_store_dwordx2 v[{TF+4+2*i}:{TF+5+2*i}], v{X1}, s[12:15], s42 offen offset:{i*128} {c.out_flags}")
                if t == 3: I("s_mov_b64 exec, -1")
                e.label(f"L2_nofin{t}")
    stamp(e, c, 5)
    I("s_cmp_lg_u32 s24, 0")
    e.branch("s_cbranch_scc1 L2_m_exit")
    I("s_waitcnt lgkmcnt(0)")
    I("s_barrier")
    I("s_add_u32 s22, s22, 1")
    I(f"s_cmp_eq_u32 s22, {NCH-1}")
    I("s_cselect_b32 s24, 1, 0")
    e.branch("s_branch L2_m_round")
    e.label("L2_m_overflow")
    I("s_mov_b32 s22, 0")
    I("s_mov_b32 s23, 1")
    I("s_mov_b32 s24, 0")
    I("s_barrier")
    e.branch("s_branch L2_m_round")
    e.label("L2_m_exit")
    if c.stamps:
        I("s_waitcnt vmcnt(0)")
        stamp(e, c, 6)
        stamp_store(e, c, 8, 1, TF)
    e.label("L2_end")
    I("s_endpgm")
    return name, 128, 96

HEADER = """; equiformer tensor-product message passing: bin edges by destination (eqsort), then per bin of 50 nodes
"""

def generate(c):
    e = Emitter()
    e.raw('.amdgcn_target "amdgcn-amd-amdhsa--gfx950"')
    e.raw(".text")
    k1 = gen_k1(e, c)
    k2 = gen_k2(e, c)
    head = HEADER
    head += f"; @launch kernel={k1[0]} grid=(256,1,1) block=(1024,1,1) lds={K1_LDS}\n"
    head += f"; @launch kernel={k2[0]} grid=(250,1,1) block=(1024,1,1) lds={c.k2_lds}\n"
    tail = '.section .rodata,"a"\n.p2align 6\n' + kd(*k1) + ".p2align 6\n" + kd(*k2)
    return head + e.text() + tail

if __name__ == "__main__":
    c = Cfg()
    out = sys.argv[1]
    for kv in sys.argv[2:]:
        k, v = kv.split("=", 1)
        old = getattr(c, k)
        setattr(c, k, type(old)(int(v)) if isinstance(old, (bool, int)) else v.replace("+", " "))
    open(out, "w").write(generate(c))
```

```python
import sys
from emit import Emitter

N, E = 12500, 800000
NB, NODES = 250, 50
NCH, CH = 250, 3200
CSTRIDE = 55424
KEYOFF, TABOFF = 51200, 54400
WFOFF = NCH * CSTRIDE
WSBYTES = WFOFF + 40960

class Cfg:
    pf1_lines = 0
    pf1_pos = "late"
    st_flags = ""
    ld_flags = ""
    rec_flags = ""
    out_flags = ""
    pf2_lines = 0
    pf2b_lines = 0
    pf2b_tile = 2
    stamps = False
    cap = 3584
    x_noperm = 0
    x_noexp = 0
    x_nomfma = 0
    x_noload = 0
    x_samehalf = 0
    dummy = 0

def srd(e, d, b, nbytes):
    e.I(f"s_mov_b32 s{d}, s{b}")
    e.I(f"s_mov_b32 s{d+1}, s{b+1}")
    e.I(f"s_mov_b32 s{d+2}, {nbytes}")
    e.I(f"s_mov_b32 s{d+3}, 0x20000")

def scan64(e, v):
    for sh in (1, 2, 4, 8):
        e.I(f"v_add_u32_dpp v{v}, v{v}, v{v} row_shr:{sh} row_mask:0xf bank_mask:0xf")
    e.I(f"v_add_u32_dpp v{v}, v{v}, v{v} row_bcast:15 row_mask:0xa bank_mask:0xf")
    e.I(f"v_add_u32_dpp v{v}, v{v}, v{v} row_bcast:31 row_mask:0xc bank_mask:0xf")

def prefetch_x(e, c, nlines, vt, vtid, nthreads, slice_s, half, srdx, tag):
    if nlines <= 0: return
    e.I(f"s_mul_i32 s46, s{slice_s}, 782")
    it = (nlines + nthreads - 1) // nthreads
    for k in range(it):
        e.I(f"v_add_u32 v{vt}, {k*nthreads}, v{vtid}")
        lim = nlines
        e.I(f"v_cmp_gt_u32 vcc, {lim}, v{vt}" if lim <= 64 else f"s_mov_b32 s47, {lim}")
        if lim > 64: e.I(f"v_cmp_gt_u32 vcc, s47, v{vt}")
        e.I(f"v_add_u32 v{vt}, s46, v{vt}")
        e.I(f"v_and_b32 v{vt+1}, 1, v{vt}")
        e.I(f"v_lshrrev_b32 v{vt}, 1, v{vt}")
        e.I(f"v_lshlrev_b32 v{vt}, 9, v{vt}")
        e.I(f"v_lshl_add_u32 v{vt}, v{vt+1}, 7, v{vt}")
        e.I(f"v_cndmask_b32 v{vt}, 2.0, v{vt}, vcc")
        e.I(f"buffer_load_dword v{vt+2}, v{vt}, s[{srdx}:{srdx+3}], 0 offen offset:{half*256}")

def stamp(e, c, slot, tmp_s=90):
    if not c.stamps: return
    e.I(f"s_memrealtime s[{tmp_s}:{tmp_s+1}]")
    e.I("s_waitcnt lgkmcnt(0)")
    e.I(f"v_writelane_b32 v{c.stampv}, s{tmp_s}, {slot}")

def stamp_store(e, c, srdws, kid, vtmp):
    if not c.stamps: return
    e.I(f"v_lshrrev_b32 v{vtmp}, 6, v{c.tidv}")
    e.I(f"s_lshl_b32 s90, s2, 4")
    e.I(f"v_add_u32 v{vtmp}, s90, v{vtmp}")
    e.I(f"v_lshlrev_b32 v{vtmp}, 6, v{vtmp}")
    e.I(f"v_and_b32 v{vtmp+1}, 63, v{c.tidv}")
    e.I(f"v_lshl_add_u32 v{vtmp}, v{vtmp+1}, 2, v{vtmp}")
    e.I(f"v_cmp_gt_u32 vcc, 16, v{vtmp+1}")
    e.I(f"v_cndmask_b32 v{vtmp}, 2.0, v{vtmp}, vcc")
    e.I(f"s_mov_b32 s90, {(16+kid) << 20}")
    e.I(f"buffer_store_dword v{c.stampv}, v{vtmp}, s[{srdws}:{srdws+3}], s90 offen")

def kernel_header(e, name):
    e.raw(f".globl {name}")
    e.raw(".p2align 8")
    e.raw(f".type {name},@function")
    e.raw(f"{name}:")
    e.hist = []

def kd(name, nv, ns):
    return f""".amdhsa_kernel {name}
  .amdhsa_next_free_vgpr {nv}
  .amdhsa_next_free_sgpr {ns}
  .amdhsa_accum_offset {(nv+3)//4*4}
  .amdhsa_group_segment_fixed_size 0
  .amdhsa_kernarg_size 96
  .amdhsa_user_sgpr_count 2
  .amdhsa_user_sgpr_kernarg_segment_ptr 1
  .amdhsa_system_sgpr_workgroup_id_x 1
  .amdhsa_float_denorm_mode_32 3
.end_amdhsa_kernel
"""

K1_HIST = 55424
K1_BASE = K1_HIST + 1024
K1_LDS = K1_BASE + 1024

def gen_k1(e, c):
    name = "eqsort_kernel"
    kernel_header(e, name)
    c.stampv, c.tidv = 60, 0
    I = e.I
    wsbytes = (32 << 20) if c.stamps else WSBYTES
    I("s_cmp_ge_u32 s2, 256")
    I("s_cbranch_scc1 L1_end")
    if c.stamps: I("v_mov_b32 v60, 0")
    stamp(e, c, 0)
    I("s_load_dwordx4 s[4:7], s[0:1], 0")
    I("s_load_dwordx4 s[8:11], s[0:1], 16")
    I("s_load_dwordx2 s[12:13], s[0:1], 32")
    I("s_load_dwordx4 s[16:19], s[0:1], 48")
    I("s_load_dwordx2 s[14:15], s[0:1], 88")
    I("v_lshlrev_b32 v1, 4, v0")
    I("v_lshlrev_b32 v2, 5, v0")
    I("v_mul_u32_u24 v3, 24, v0")
    I("v_lshlrev_b32 v40, 2, v0")
    I("v_mov_b32 v41, 0")
    I("v_mov_b32 v42, 1")
    I("s_mul_i32 s44, s2, 12800")
    I("s_mul_i32 s45, s2, 25600")
    I("s_mul_i32 s50, s2, 19200")
    I(f"s_mul_i32 s51, s2, {CSTRIDE}")
    I("s_lshr_b32 s52, s2, 3")
    I("s_mov_b32 s53, -50")
    I("s_movk_i32 s54, 800")
    I("v_readfirstlane_b32 s55, v0")
    I("s_lshr_b32 s55, s55, 6")
    I("v_subrev_u32 v50, 832, v0")
    I("s_waitcnt lgkmcnt(0)")
    srd(e, 20, 4, N * 512)
    srd(e, 24, 6, E * 6)
    srd(e, 28, 8, E * 8)
    srd(e, 32, 10, E * 4)
    srd(e, 36, 12, E * 4)
    srd(e, 40, 14, wsbytes)
    I("s_cmp_ge_u32 s2, 250")
    e.branch("s_cbranch_scc1 L1_helper")
    I("s_cmp_ge_u32 s55, 13")
    e.branch("s_cbranch_scc1 L1_idle0")
    I("v_cmp_gt_u32 vcc, s54, v0")
    I("s_and_saveexec_b64 s[48:49], vcc")
    lf = c.ld_flags
    I(f"buffer_load_dwordx4 v[4:7], v1, s[36:39], s44 offen {lf}")
    I(f"buffer_load_dwordx4 v[8:11], v1, s[32:35], s44 offen {lf}")
    I(f"buffer_load_dwordx4 v[12:15], v2, s[28:31], s45 offen {lf}")
    I(f"buffer_load_dwordx4 v[16:19], v2, s[28:31], s45 offen offset:16 {lf}")
    I(f"buffer_load_dwordx4 v[20:23], v3, s[24:27], s50 offen {lf}")
    I(f"buffer_load_dwordx2 v[24:25], v3, s[24:27], s50 offen offset:16 {lf}")
    I("s_mov_b64 exec, s[48:49]")
    I("s_cmp_ge_u32 s55, 4")
    e.branch("s_cbranch_scc1 L1_nz")
    I(f"ds_write_b32 v40, v41 offset:{K1_HIST}")
    I("s_waitcnt lgkmcnt(0)")
    e.label("L1_nz")
    I("s_barrier")
    I("s_and_b64 exec, exec, vcc")
    I("s_waitcnt vmcnt(5)")
    stamp(e, c, 1)
    for i in range(4):
        I(f"v_mul_u32_u24 v{44+i}, 0x147b, v{4+i}")
    for i in range(4):
        I(f"v_lshrrev_b32 v{44+i}, 18, v{44+i}")
    for i in range(4):
        I(f"v_mad_i32_i24 v{4+i}, v{44+i}, s53, v{4+i}")
        I(f"v_lshlrev_b32 v{44+i}, 2, v{44+i}")
    for i in range(4):
        I(f"ds_add_rtn_u32 v{36+i}, v{44+i}, v42 offset:{K1_HIST}")
    I("s_waitcnt lgkmcnt(0)")
    I("s_barrier")
    I("s_cmp_lg_u32 s55, 0")
    e.branch("s_cbranch_scc1 L1_noscan")
    I(f"ds_read_b128 v[52:55], v1 offset:{K1_HIST}")
    I("s_waitcnt lgkmcnt(0)")
    I("v_add_u32 v56, v52, v53")
    I("v_add_u32 v57, v56, v54")
    I("v_add_u32 v58, v57, v55")
    I("v_mov_b32 v59, v58")
    scan64(e, 59)
    I("v_sub_u32 v59, v59, v58")
    I("v_add_u32 v28, v59, v52")
    I("v_add_u32 v29, v59, v56")
    I("v_add_u32 v30, v59, v57")
    I("v_mov_b32 v32, v59"); I("v_mov_b32 v33, v28"); I("v_mov_b32 v34, v29"); I("v_mov_b32 v35, v30")
    I(f"ds_write_b128 v1, v[32:35] offset:{K1_BASE}")
    I("v_lshl_or_b32 v52, v52, 16, v59")
    I("v_lshl_or_b32 v53, v53, 16, v28")
    I("v_lshl_or_b32 v54, v54, 16, v29")
    I("v_lshl_or_b32 v55, v55, 16, v30")
    I(f"ds_write_b128 v1, v[52:55] offset:{TABOFF}")
    I("s_waitcnt lgkmcnt(0)")
    e.label("L1_noscan")
    I("s_barrier")
    for i in range(4):
        I(f"ds_read_b32 v{44+i}, v{44+i} offset:{K1_BASE}")
    I("s_mov_b32 s56, 0x05040100")
    I("s_mov_b32 s57, 0x05040302")
    I("s_waitcnt vmcnt(0)")
    stamp(e, c, 2)
    I("v_mov_b32 v28, v20")
    I("v_perm_b32 v29, v8, v21, s56")
    I("v_alignbit_b32 v30, v22, v21, 16")
    I("v_perm_b32 v31, v9, v22, s57")
    I("v_mov_b32 v32, v23")
    I("v_perm_b32 v33, v10, v24, s56")
    I("v_alignbit_b32 v34, v25, v24, 16")
    I("v_perm_b32 v35, v11, v25, s57")
    I("s_waitcnt lgkmcnt(0)")
    for i in range(4):
        I(f"v_add_u32 v{36+i}, v{36+i}, v{44+i}")
        I(f"v_lshlrev_b32 v{44+i}, 4, v{36+i}")
    for i in range(4):
        I(f"ds_write2_b64 v{44+i}, v[{12+2*i}:{13+2*i}], v[{28+2*i}:{29+2*i}] offset0:0 offset1:1")
        I(f"ds_write_b8 v{36+i}, v{4+i} offset:{KEYOFF}")
    I("s_mov_b64 exec, -1")
    I("s_waitcnt lgkmcnt(0)")
    e.branch("s_branch L1_copy")
    e.label("L1_idle0")
    if c.pf1_pos == "early": prefetch_x(e, c, c.pf1_lines, 4, 50, 192, 52, 0, 20, "a")
    I("s_barrier"); I("s_barrier")
    if c.pf1_pos == "mid": prefetch_x(e, c, c.pf1_lines, 4, 50, 192, 52, 0, 20, "a")
    I("s_barrier")
    if c.pf1_pos == "late": prefetch_x(e, c, c.pf1_lines, 4, 50, 192, 52, 0, 20, "a")
    e.flush()
    e.label("L1_copy")
    I("s_barrier")
    stamp(e, c, 3)
    I("ds_read_b128 v[8:11], v1")
    I("ds_read_b128 v[12:15], v1 offset:16384")
    I("ds_read_b128 v[16:19], v1 offset:32768")
    I("ds_read_b128 v[20:23], v1 offset:49152")
    I("v_add_u32 v2, 16384, v1")
    I("v_add_u32 v3, 32768, v1")
    I("v_add_u32 v24, 49152, v1")
    I("s_movk_i32 s54, 392")
    I("v_cmp_gt_u32 vcc, s54, v0")
    sf = c.st_flags
    I("s_waitcnt lgkmcnt(3)")
    I(f"buffer_store_dwordx4 v[8:11], v1, s[40:43], s51 offen {sf}")
    I("s_waitcnt lgkmcnt(2)")
    I(f"buffer_store_dwordx4 v[12:15], v2, s[40:43], s51 offen {sf}")
    I("s_waitcnt lgkmcnt(1)")
    I(f"buffer_store_dwordx4 v[16:19], v3, s[40:43], s51 offen {sf}")
    I("s_and_saveexec_b64 s[48:49], vcc")
    e.branch("s_cbranch_execz L1_st_done")
    I("s_waitcnt lgkmcnt(0)")
    I(f"buffer_store_dwordx4 v[20:23], v24, s[40:43], s51 offen {sf}")
    e.label("L1_st_done")
    I("s_mov_b64 exec, -1")
    if c.stamps:
        stamp(e, c, 4)
        I("s_waitcnt vmcnt(0)")
        stamp(e, c, 5)
        stamp_store(e, c, 40, 0, 26)
    I("s_endpgm")
    e.label("L1_helper")
    I("s_cmp_lt_u32 s55, 13")
    e.branch("s_cbranch_scc1 L1_h_w")
    prefetch_x(e, c, c.pf1_lines, 4, 50, 192, 52, 0, 20, "h")
    I("s_waitcnt vmcnt(0)")
    I("s_endpgm")
    e.label("L1_h_w")
    I("s_sub_u32 s44, s2, 250")
    I("s_mul_i32 s44, s44, 13")
    I("s_add_u32 s44, s44, s55")
    I("s_cmp_ge_u32 s44, 40")
    e.branch("s_cbranch_scc1 L1_end")
    I("s_and_b32 s45, s44, 3")
    I("s_lshr_b32 s46, s44, 2")
    I("s_cmp_lt_u32 s46, 4")
    I("s_cselect_b32 s24, s16, s18")
    I("s_cselect_b32 s25, s17, s19")
    I("s_movk_i32 s26, 24576")
    I("s_cselect_b32 s26, 16384, s26")
    I("s_cselect_b32 s47, 0, 4")
    I("s_mov_b32 s27, 0x20000")
    I("s_sub_u32 s46, s46, s47")
    I("s_lshl_b32 s46, s46, 12")
    I("s_lshl_b32 s45, s45, 5")
    I("s_add_u32 s46, s46, s45")
    I("v_and_b32 v4, 63, v0")
    I("v_lshrrev_b32 v5, 4, v4")
    I("v_and_b32 v6, 15, v4")
    I("v_lshlrev_b32 v5, 10, v5")
    I("v_lshl_add_u32 v5, v6, 1, v5")
    for q in range(8):
        I(f"buffer_load_ushort v{12+q}, v5, s[24:27], s46 offen offset:{q*128}")
    I("v_lshlrev_b32 v4, 4, v4")
    I("s_lshl_b32 s44, s44, 10")
    I(f"s_add_u32 s44, s44, {WFOFF}")
    I("s_waitcnt vmcnt(0)")
    for k in range(4):
        I(f"v_lshl_or_b32 v{8+k}, v{13+2*k}, 16, v{12+2*k}")
    I("buffer_store_dwordx4 v[8:11], v4, s[40:43], s44 offen")
    e.label("L1_end")
    I("s_endpgm")
    return name, 64, 96

def path_of(jp, blk):
    if blk == 0: return (0, 0, 1) if jp == 0 else (2, jp, 1)
    k = blk - 1
    if jp == 0: return (3, 1 + k, 1)
    j = jp - 1
    if j == k: return (1, 0, 1)
    i = 3 - j - k
    return (4, 1 + i, 1 if k == (j + 1) % 3 else -1)

def gen_k2(e, c):
    name = "eqmain_kernel"
    CAP = c.cap
    HIST = 0
    RAW = 1024
    T = (RAW + CAP * 16 + 512 + 1023) // 1024 * 1024
    WRAD = T + NODES * 1024
    SCR = WRAD + 16384
    HIST2, CUR2, CNT = HIST + 256, HIST + 512, HIST + 768
    NEXT, DONE, GDONE = CNT, CNT + 16, CNT + 64
    lds = SCR + 12 * 1024
    lds = max(lds, T + 64 * 1024)
    c.k2_lds = lds
    kernel_header(e, name)
    I = e.I
    wsbytes = (32 << 20) if c.stamps else WSBYTES
    c.stampv, c.tidv = 127, 126
    I("s_cmp_ge_u32 s2, 250")
    I("s_cbranch_scc1 L2_end")
    if c.stamps:
        I("v_mov_b32 v127, 0")
        I("v_mov_b32 v126, v0")
    stamp(e, c, 0)
    I("s_load_dwordx2 s[42:43], s[0:1], 0")
    I("s_load_dwordx2 s[44:45], s[0:1], 40")
    I("s_load_dwordx2 s[46:47], s[0:1], 72")
    I("s_load_dwordx2 s[48:49], s[0:1], 88")
    I("s_and_b32 s20, s2, 7")
    I("s_min_u32 s21, s20, 2")
    I("s_mul_i32 s20, s20, 31")
    I("s_add_u32 s20, s20, s21")
    I("s_lshr_b32 s31, s2, 3")
    I("s_add_u32 s20, s20, s31")
    I("v_readfirstlane_b32 s21, v0")
    I("s_lshr_b32 s21, s21, 6")
    I("s_mov_b32 s22, 0")
    I("s_movk_i32 s23, 250")
    I("s_mov_b32 s24, 1")
    I("s_mov_b32 s26, 0xaaaaaaaa")
    I("s_mov_b32 s27, 0xaaaaaaaa")
    I("s_mov_b32 s28, 0x05040100")
    I("s_mov_b32 s29, 0x07060302")
    I("s_mov_b32 s30, 0xffff0000")
    I("s_waitcnt lgkmcnt(0)")
    srd(e, 4, 42, N * 512)
    srd(e, 8, 48, wsbytes)
    srd(e, 12, 46, N * 512)
    srd(e, 16, 44, 2560)
    I("s_cmp_lt_u32 s21, 4")
    e.branch("s_cbranch_scc1 L2_gemm")

    VLANE, VINFO, VNEXT = 108, 109, 110
    VLOFF, VSRCC, VRAWC, VSLOT, VSCRW, VTRA, VWR, VL16 = 111, 112, 113, 114, 115, 116, 117, 118
    VT0, VT1, VONE, VZERO = 119, 120, 121, 122
    VJ, VCH, VSEG = 123, 124, 125
    I(f"v_and_b32 v{VLANE}, 63, v0")
    I(f"v_subrev_u32 v{VT0}, 256, v0")
    I(f"v_and_b32 v{VJ}, 15, v{VT0}")
    I(f"v_lshrrev_b32 v{VSEG}, 4, v{VT0}")
    I(f"s_mov_b32 s42, {CSTRIDE}")
    I(f"v_mul_u32_u24 v{VCH}, s42, v{VSEG}")
    I(f"v_mov_b32 v{VONE}, 1")
    I(f"v_mov_b32 v{VZERO}, 0")
    I(f"v_and_b32 v{VT0}, 15, v{VLANE}")
    I(f"v_lshlrev_b32 v{VLOFF}, 4, v{VT0}")
    I(f"v_lshrrev_b32 v{VT1}, 4, v{VLANE}")
    I(f"v_lshl_add_u32 v{VSRCC}, v{VT1}, 4, 14")
    I(f"v_lshrrev_b32 v{VSLOT}, 1, v{VLANE}")
    I(f"v_lshlrev_b32 v{VRAWC}, 4, v{VSLOT}")
    I(f"v_lshlrev_b32 v{VL16}, 4, v{VLANE}")
    I("s_sub_u32 s43, s21, 4")
    I("s_lshl_b32 s43, s43, 10")
    I(f"s_add_u32 s43, s43, {SCR}")
    I(f"v_add_u32 v{VSCRW}, s43, v{VL16}")
    I(f"v_lshlrev_b32 v{VTRA}, 5, v{VT1}")
    I(f"v_bfe_u32 v{VT1}, v{VLANE}, 2, 2")
    I(f"v_lshl_add_u32 v{VTRA}, v{VT1}, 7, v{VTRA}")
    I(f"v_and_b32 v{VT1}, 3, v{VLANE}")
    I(f"v_lshl_add_u32 v{VTRA}, v{VT1}, 3, v{VTRA}")
    I(f"v_add_u32 v{VTRA}, s43, v{VTRA}")
    I(f"v_add_u32 v{VWR}, {WRAD}, v{VL16}")

    e.label("L2_g_round")
    PAY, KEY, RNK, TAB, KAD, PAD = 0, 48, 60, 72, 78, 84
    MSK = 50
    rf = c.rec_flags
    I("s_lshl_b32 s42, s20, 2")
    I(f"s_add_u32 s42, s42, {TABOFF}")
    for p in range(6):
        if p == 5:
            I("s_cmp_ge_u32 s21, 7")
            I(f"v_mov_b32 v{TAB+5}, 0")
            e.branch("s_cbranch_scc1 L2_notab5")
        I(f"buffer_load_dword v{TAB+p}, v{VCH}, s[8:11], s42 offen {rf}")
        if p < 5: I(f"s_add_u32 s42, s42, {48*CSTRIDE}")
    e.label("L2_notab5")
    I("s_waitcnt vmcnt(0)")
    stamp(e, c, 1)
    for p in range(6):
        I(f"s_sub_u32 s42, {48*p}, s22")
        I(f"v_add_u32 v{VT0}, s42, v{VSEG}")
        I(f"v_cmp_gt_u32 vcc, s23, v{VT0}")
        I(f"v_and_b32 v{KAD+p}, 0xffff, v{TAB+p}")
        I(f"v_lshrrev_b32 v{TAB+p}, 16, v{TAB+p}")
        I(f"v_cndmask_b32 v{TAB+p}, 0, v{TAB+p}, vcc")
        I(f"v_add_u32 v{KAD+p}, v{KAD+p}, v{VJ}")
        I(f"v_lshl_add_u32 v{PAD+p}, v{KAD+p}, 4, v{VCH}")
        I(f"v_add_u32 v{KAD+p}, v{KAD+p}, v{VCH}")
        I(f"v_cmp_lt_u32 s[{MSK+4*p}:{MSK+4*p+1}], v{VJ}, v{TAB+p}")
        I(f"v_add_u32 v{VT0}, 16, v{VJ}")
        I(f"v_cmp_lt_u32 s[{MSK+4*p+2}:{MSK+4*p+3}], v{VT0}, v{TAB+p}")
        I(f"s_mov_b32 s{74+p}, {48*p*CSTRIDE}")
        I(f"s_mov_b32 s{80+p}, {48*p*CSTRIDE+KEYOFF}")
        I(f"v_cndmask_b32 v{PAD+p}, 2.0, v{PAD+p}, s[{MSK+4*p}:{MSK+4*p+1}]")
    e.flush()
    for p in range(6):
        I(f"s_mov_b64 exec, s[{MSK+4*p+2}:{MSK+4*p+3}]")
        I(f"s_cbranch_execz L2_w1skip{p}")
        I(f"buffer_load_ubyte v{KEY+2*p+1}, v{KAD+p}, s[8:11], s{80+p} offen offset:16 {rf}")
        I(f"buffer_load_dwordx4 v[{PAY+8*p+4}:{PAY+8*p+7}], v{PAD+p}, s[8:11], s{74+p} offen offset:256 {rf}")
        e.label(f"L2_w1skip{p}")
    for p in range(6):
        I(f"s_mov_b64 exec, s[{MSK+4*p}:{MSK+4*p+1}]")
        if p == 5: I("s_cbranch_execz L2_k5skip")
        I(f"buffer_load_ubyte v{KEY+2*p}, v{KAD+p}, s[8:11], s{80+p} offen {rf}")
    e.label("L2_k5skip")
    I("s_mov_b64 exec, -1")
    for p in range(6):
        if p == 5:
            I("s_cmp_ge_u32 s21, 7")
            I("s_cbranch_scc1 L2_p5skip")
        I(f"buffer_load_dwordx4 v[{PAY+8*p}:{PAY+8*p+3}], v{PAD+p}, s[8:11], s{74+p} offen {rf}")
    e.label("L2_p5skip")
    I("s_barrier")
    I("s_waitcnt vmcnt(5)")
    stamp(e, c, 2)
    for k in range(12):
        I(f"v_lshlrev_b32 v{KEY+k}, 2, v{KEY+k}")
    for p in range(6):
        for w in range(2):
            I(f"s_mov_b64 exec, s[{MSK+4*p+2*w}:{MSK+4*p+2*w+1}]")
            I(f"ds_add_rtn_u32 v{RNK+2*p+w}, v{KEY+2*p+w}, v{VONE} offset:{HIST}")
    I("s_mov_b64 exec, -1")
    I(f"v_max3_u32 v{VT0}, v{TAB}, v{TAB+1}, v{TAB+2}")
    I(f"v_max3_u32 v{VT0}, v{VT0}, v{TAB+3}, v{TAB+4}")
    I(f"v_max_u32 v{VT0}, v{VT0}, v{TAB+5}")
    I(f"v_cmp_lt_u32 vcc, 32, v{VT0}")
    I("s_mov_b32 s25, 0")
    e.flush()
    I("s_cmp_eq_u64 vcc, 0")
    I("s_cbranch_scc1 L2_noextraA")
    I("s_mov_b32 s25, 1")
    for p in range(6):
        I(f"v_add_u32 v{VT0}, 32, v{VJ}")
        I(f"v_add_u32 v{VT1}, 32, v{KAD+p}")
        e.label(f"L2_xa{p}")
        I(f"v_cmp_lt_u32 vcc, v{VT0}, v{TAB+p}")
        I("s_and_saveexec_b64 s[44:45], vcc")
        e.branch(f"s_cbranch_execz L2_xa{p}_done")
        I(f"buffer_load_ubyte v90, v{VT1}, s[8:11], s{80+p} offen")
        I("s_waitcnt vmcnt(0)")
        I("v_lshlrev_b32 v90, 2, v90")
        I(f"ds_add_u32 v90, v{VONE} offset:{HIST2}")
        I("s_mov_b64 exec, -1")
        I(f"v_add_u32 v{VT0}, 16, v{VT0}")
        I(f"v_add_u32 v{VT1}, 16, v{VT1}")
        e.branch(f"s_branch L2_xa{p}")
        e.label(f"L2_xa{p}_done")
        I("s_mov_b64 exec, -1")
    e.label("L2_noextraA")
    I("s_waitcnt lgkmcnt(0)")
    I("s_barrier")
    I(f"v_lshlrev_b32 v{VT0}, 2, v{VLANE}")
    I(f"ds_read_b32 v90, v{VT0} offset:{HIST}")
    I(f"ds_read_b32 v91, v{VT0} offset:{HIST2}")
    I("s_waitcnt lgkmcnt(0)")
    I("v_add_u32 v91, v90, v91")
    I("v_mov_b32 v92, v91")
    scan64(e, 92)
    I("v_readlane_b32 s42, v92, 63")
    I("v_sub_u32 v92, v92, v91")
    I(f"v_lshl_or_b32 v{VINFO}, v91, 16, v92")
    e.flush()
    I(f"s_cmp_gt_u32 s42, {CAP}")
    I("s_cbranch_scc1 L2_g_overflow")
    for k in range(12):
        I(f"ds_bpermute_b32 v{KEY+k}, v{KEY+k}, v92")
    I("s_waitcnt vmcnt(0) lgkmcnt(0)")
    stamp(e, c, 3)
    for k in range(12):
        I(f"v_add_lshl_u32 v{KEY+k}, v{KEY+k}, v{RNK+k}, 4")
    for p in range(6):
        for w in range(2):
            I(f"s_mov_b64 exec, s[{MSK+4*p+2*w}:{MSK+4*p+2*w+1}]")
            I(f"ds_write_b128 v{KEY+2*p+w}, v[{PAY+8*p+4*w}:{PAY+8*p+4*w+3}] offset:{RAW}")
    I("s_mov_b64 exec, -1")
    I("s_cmp_eq_u32 s25, 0")
    I("s_cbranch_scc1 L2_noextraB")
    I("v_add_u32 v92, v92, v90")
    for p in range(6):
        I(f"v_add_u32 v{VT0}, 32, v{VJ}")
        I(f"v_add_u32 v{VT1}, 32, v{KAD+p}")
        I(f"v_add_u32 v93, 512, v{PAD+p}")
        e.label(f"L2_xb{p}")
        I(f"v_cmp_lt_u32 vcc, v{VT0}, v{TAB+p}")
        I("s_and_saveexec_b64 s[44:45], vcc")
        e.branch(f"s_cbranch_execz L2_xb{p}_done")
        I(f"buffer_load_ubyte v94, v{VT1}, s[8:11], s{80+p} offen")
        I(f"buffer_load_dwordx4 v[96:99], v93, s[8:11], s{74+p} offen")
        I("s_waitcnt vmcnt(0)")
        I("v_lshlrev_b32 v94, 2, v94")
        I(f"ds_add_rtn_u32 v95, v94, v{VONE} offset:{CUR2}")
        I("s_mov_b64 exec, -1")
        I("ds_bpermute_b32 v94, v94, v92")
        I("s_waitcnt lgkmcnt(0)")
        I("v_add_lshl_u32 v94, v94, v95, 4")
        I("s_mov_b64 exec, vcc")
        I(f"ds_write_b128 v94, v[96:99] offset:{RAW}")
        I("s_mov_b64 exec, -1")
        I(f"v_add_u32 v{VT0}, 16, v{VT0}")
        I(f"v_add_u32 v{VT1}, 16, v{VT1}")
        I("v_add_u32 v93, 256, v93")
        e.branch(f"s_branch L2_xb{p}")
        e.label(f"L2_xb{p}_done")
        I("s_mov_b64 exec, -1")
    e.label("L2_noextraB")
    ACC, LD, B, A, AD = 0, 32, 64, 96, 100
    for k in range(32):
        I(f"v_mov_b32 v{LD+k}, 0")
    I("s_waitcnt lgkmcnt(0)")
    I("s_barrier")
    stamp(e, c, 4)

    sNA, sNR, sNH, sNN, sNF, sNV = 32, 33, 34, 35, 36, 37
    sCN, sCH, sCF, sCL = 38, 39, 40, 41

    def fetch_issue():
        I("s_mov_b64 exec, 1")
        I(f"ds_add_rtn_u32 v{VNEXT}, v{VZERO}, v{VONE} offset:{NEXT}")
        I("s_mov_b64 exec, -1")
    def setup_item(tag):
        I(f"v_readfirstlane_b32 s42, v{VNEXT}")
        I(f"s_mov_b32 s{sNV}, 0")
        e.flush()
        I(f"s_cmp_ge_u32 s42, {2*NODES}")
        I(f"s_cbranch_scc1 L2_noitem{tag}")
        I(f"s_cmp_ge_u32 s42, {NODES}")
        I(f"s_cselect_b32 s{sNH}, 256, 0")
        I(f"s_cselect_b32 s43, {NODES}, 0")
        I(f"s_sub_u32 s{sNN}, s42, s43")
        I(f"v_readlane_b32 s42, v{VINFO}, s{sNN}")
        I(f"s_mov_b32 s{sNV}, 1")
        I(f"s_mov_b32 s{sNF}, 1")
        e.flush()
        I(f"s_lshr_b32 s{sNR}, s42, 16")
        I("s_and_b32 s42, s42, 0xffff")
        I(f"s_lshl_b32 s{sNA}, s42, 4")
        e.label(f"L2_noitem{tag}")
    def prep_reads(tag):
        I(f"v_add_u32 v{VT0}, s{sNA}, v{VSRCC}")
        I(f"v_add_u32 v{VT1}, s{sNA}, v{VRAWC}")
        for i in range(8):
            I(f"ds_read_u16 v{AD+i}, v{VT0} offset:{RAW+64*i}")
        I(f"ds_read_b128 v[{B}:{B+3}], v{VT1} offset:{RAW}")
        I(f"s_cmp_gt_u32 s{sNR}, 32")
        I(f"s_cbranch_scc1 L2_nofetch{tag}")
        fetch_issue()
        e.label(f"L2_nofetch{tag}")
    def prep_compute():
        for i in range(8):
            I(f"v_lshl_add_u32 v{AD+i}, v{AD+i}, 9, v{VLOFF}")
        r = B
        if c.x_noexp:
            I(f"ds_write_b128 v{VSCRW}, v[{r+20}:{r+23}]")
            return
        I(f"v_cmp_gt_u32 vcc, s{sNR}, v{VSLOT}")
        I(f"v_lshlrev_b32 v{r+4}, 16, v{r}")
        I(f"v_and_b32 v{r+5}, s30, v{r}")
        I(f"v_lshlrev_b32 v{r+6}, 16, v{r+1}")
        I(f"v_and_b32 v{r+7}, s30, v{r+1}")
        I(f"v_and_b32 v{r+8}, s30, v{r+2}")
        I(f"v_cndmask_b32 v{r+10}, v{r+2}, v{r+3}, s[26:27]")
        I(f"v_cndmask_b32 v{r+8}, 1.0, v{r+8}, s[26:27]")
        I(f"v_lshlrev_b32 v{r+10}, 16, v{r+10}")
        for k in range(4):
            I(f"v_mul_f32 v{r+12+k}, v{r+4+k}, v{r+8}")
        for k in range(4):
            I(f"v_mul_f32 v{r+16+k}, v{r+4+k}, v{r+10}")
        for k in range(4):
            I(f"v_cvt_pk_bf16_f32 v{r+20+k}, v{r+12+2*k}, v{r+13+2*k}")
        for k in range(4):
            I(f"v_cndmask_b32 v{r+20+k}, 0, v{r+20+k}, vcc")
        I(f"ds_write_b128 v{VSCRW}, v[{r+20}:{r+23}]")
    def issue_loads(tag):
        def ld(i):
            if c.x_noload: return
            I(f"buffer_load_dwordx4 v[{LD+4*i}:{LD+4*i+3}], v{AD+i}, s[4:7], {'0' if c.x_samehalf else 's%d' % sNH} offen")
        I(f"s_cmp_gt_u32 s{sNR}, 28")
        I(f"s_cbranch_scc1 L2_ldfull{tag}")
        for i in range(7):
            I(f"s_cmp_le_u32 s{sNR}, {4*i}")
            I(f"s_cbranch_scc1 L2_lddone{tag}")
            ld(i)
        I(f"s_branch L2_lddone{tag}")
        e.label(f"L2_ldfull{tag}")
        for i in range(8): ld(i)
        e.label(f"L2_lddone{tag}")

    fetch_issue()
    I("s_waitcnt lgkmcnt(0)")
    setup_item("0")
    I(f"s_cmp_eq_u32 s{sNV}, 0")
    I("s_cbranch_scc1 L2_g_done")
    prep_reads("0")
    I("s_waitcnt lgkmcnt(0)")
    prep_compute()
    issue_loads("0")
    e.label("L2_loop")
    I(f"s_mov_b32 s{sCN}, s{sNN}")
    I(f"s_mov_b32 s{sCH}, s{sNH}")
    I(f"s_mov_b32 s{sCF}, s{sNF}")
    I(f"ds_read_b64_tr_b16 v[{A}:{A+1}], v{VTRA}")
    I(f"ds_read_b64_tr_b16 v[{A+2}:{A+3}], v{VTRA} offset:512")
    I(f"s_cmp_gt_u32 s{sNR}, 32")
    I("s_cbranch_scc0 L2_adv_item")
    I(f"s_mov_b32 s{sCL}, 0")
    I(f"s_sub_u32 s{sNR}, s{sNR}, 32")
    I(f"s_add_u32 s{sNA}, s{sNA}, 512")
    I(f"s_mov_b32 s{sNF}, 0")
    I("s_branch L2_adv_done")
    e.label("L2_adv_item")
    I(f"s_mov_b32 s{sCL}, 1")
    setup_item("1")
    I(f"s_cmp_eq_u32 s{sNV}, 0")
    I("s_cbranch_scc1 L2_noprep")
    e.label("L2_adv_done")
    prep_reads("1")
    I("s_waitcnt lgkmcnt(0)")
    prep_compute()
    e.label("L2_noprep")
    I("s_waitcnt vmcnt(0)")
    for q in range(8):
        for jj in range(4):
            if c.x_noperm: continue
            I(f"v_perm_b32 v{B+4*q+jj}, v{LD+4*(2*jj+1)+q//2}, v{LD+4*(2*jj)+q//2}, s{29 if q & 1 else 28}")
    I(f"s_cmp_eq_u32 s{sNV}, 0")
    I("s_cbranch_scc1 L2_noload")
    issue_loads("1")
    e.label("L2_noload")
    I("s_waitcnt lgkmcnt(0)")
    I(f"s_cmp_eq_u32 s{sCF}, 0")
    I("s_cbranch_scc1 L2_mf_acc")
    for q in range(8):
        if c.x_nomfma: continue
        I(f"v_mfma_f32_16x16x32_bf16 v[{ACC+4*q}:{ACC+4*q+3}], v[{A}:{A+3}], v[{B+4*q}:{B+4*q+3}], 0")
    I("s_branch L2_mf_done")
    e.label("L2_mf_acc")
    for q in range(8):
        if c.x_nomfma: continue
        I(f"v_mfma_f32_16x16x32_bf16 v[{ACC+4*q}:{ACC+4*q+3}], v[{A}:{A+3}], v[{B+4*q}:{B+4*q+3}], v[{ACC+4*q}:{ACC+4*q+3}]")
    e.label("L2_mf_done")
    I(f"s_cmp_eq_u32 s{sCL}, 0")
    I("s_cbranch_scc1 L2_loop")
    I(f"s_lshl_b32 s42, s{sCH}, 5")
    I(f"v_add_u32 v{VT0}, s42, v{VWR}")
    for q in range(8):
        I(f"ds_read_b128 v[{B+4*q}:{B+4*q+3}], v{VT0} offset:{q*1024}")
    I(f"s_lshr_b32 s43, s{sCN}, 4")
    I(f"s_lshl_b32 s43, s43, 2")
    I(f"s_cmp_eq_u32 s{sCH}, 0")
    I("s_cbranch_scc1 L2_nowar")
    I(f"v_mov_b32 v{VT1}, s43")
    I("s_mov_b32 s45, 0")
    e.label("L2_war")
    I(f"ds_read_b32 v{VT0}, v{VT1} offset:{GDONE}")
    I("s_waitcnt lgkmcnt(0)")
    I(f"v_readfirstlane_b32 s44, v{VT0}")
    e.flush()
    I("s_cmp_ge_u32 s44, 4")
    I("s_cbranch_scc1 L2_war_ok")
    I("s_add_u32 s45, s45, 1")
    I("s_cmp_lt_u32 s45, 0x400000")
    I("s_cbranch_scc1 L2_war")
    e.label("L2_war_ok")
    I("s_add_u32 s43, s43, 16")
    e.label("L2_nowar")
    I(f"s_and_b32 s44, s{sCN}, 15")
    I("s_lshl_b32 s44, s44, 4")
    I(f"s_lshl_b32 s45, s{sCN}, 10")
    I(f"s_add_u32 s45, s45, {T}")
    I(f"v_xor_b32 v{VT0}, s44, v{VL16}")
    I(f"v_add_u32 v{VT0}, s45, v{VT0}")
    I(f"v_mov_b32 v{VT1}, s43")
    I("s_waitcnt lgkmcnt(0)")
    e.nop(2)
    for q in range(8):
        I(f"v_mul_f32 v{B+4*q}, v{B+4*q}, v{ACC+4*q}")
    for d in range(1, 4):
        for q in range(8):
            I(f"v_fmac_f32 v{B+4*q}, v{B+4*q+d}, v{ACC+4*q+d}")
    for k in range(4):
        I(f"v_cvt_pk_bf16_f32 v{A+k}, v{B+8*k}, v{B+8*k+4}")
    I(f"ds_write_b128 v{VT0}, v[{A}:{A+3}]")
    I("s_waitcnt lgkmcnt(0)")
    I("s_mov_b64 exec, 1")
    I(f"ds_add_u32 v{VT1}, v{VONE} offset:{DONE}")
    I("s_mov_b64 exec, -1")
    I(f"s_cmp_lg_u32 s{sNV}, 0")
    I("s_cbranch_scc1 L2_loop")
    e.label("L2_g_done")
    stamp(e, c, 5)
    I("s_cmp_lg_u32 s24, 0")
    e.branch("s_cbranch_scc1 L2_g_exit")
    I("s_waitcnt lgkmcnt(0)")
    I("s_barrier")
    I("s_add_u32 s22, s22, 1")
    I(f"s_cmp_eq_u32 s22, {NCH-1}")
    I("s_cselect_b32 s24, 1, 0")
    e.branch("s_branch L2_g_round")
    e.label("L2_g_overflow")
    I("s_waitcnt vmcnt(0)")
    I("s_mov_b32 s22, 0")
    I("s_mov_b32 s23, 1")
    I("s_mov_b32 s24, 0")
    I("s_barrier")
    e.branch("s_branch L2_g_round")
    e.label("L2_g_exit")
    stamp_store(e, c, 8, 1, 90)
    I("s_endpgm")

    e.label("L2_gemm")
    W, G, TA, TF = 0, 40, 104, 108
    X0, X1 = 124, 125
    if c.stamps: X0, X1 = 124, 125
    I("v_and_b32 v104, 63, v0")
    I("v_mov_b32 v117, v0")
    I("v_lshlrev_b32 v105, 4, v104")
    I("s_lshl_b32 s42, s21, 10")
    I(f"s_add_u32 s42, s42, {WFOFF}")
    for f in range(10):
        I(f"buffer_load_dwordx4 v[{W+4*f}:{W+4*f+3}], v105, s[8:11], s42 offen")
        if f < 9: I("s_add_u32 s42, s42, 4096")
    lut = 0
    for jp in range(4):
        for blk in range(4):
            p, i, s = path_of(jp, blk)
            lut |= (p | (8 if s < 0 else 0)) << (4 * (jp * 4 + blk))
    I(f"s_mov_b32 s44, {lut & 0xffffffff}")
    I(f"s_mov_b32 s45, {lut >> 32}")
    for h in range(2):
        I("v_lshrrev_b32 v106, 4, v104")
        I("v_bfe_u32 v107, v104, 3, 1")
        I("v_lshl_add_u32 v106, v106, 2, v107")
        I(f"v_add_lshl_u32 v106, v106, {2*h}, 2")
        I(f"v_lshrrev_b64 v[108:109], v106, s[44:45]")
        I(f"v_and_b32 v106, 7, v108")
        I(f"v_and_b32 v{110+h}, 8, v108")
        I(f"v_lshlrev_b32 v{110+h}, 28, v{110+h}")
        I("v_and_b32 v107, 7, v104")
        I("v_lshlrev_b32 v107, 3, v107")
        I("v_lshl_add_u32 v106, v106, 6, v107")
        I("v_add_u32 v106, s21, v106")
        I(f"v_lshlrev_b32 v{112+h}, 1, v106")
    for k in range(4):
        h, qo = k >> 1, (k & 1) * 4
        for d in range(4):
            I(f"buffer_load_ushort v{G+4*k+d}, v{112+h}, s[16:19], 0 offen offset:{d*640+qo*2}")
    prefetch_x(e, c, c.pf2_lines, 114, 117, 256, 31, 0, 4, "p")
    I("s_lshl_b32 s42, s21, 10")
    I(f"s_add_u32 s42, s42, {WRAD}")
    I("v_add_u32 v105, s42, v105")
    npf = (c.pf2_lines + 255) // 256
    I(f"s_waitcnt vmcnt({npf})")
    for k in range(4):
        h = k >> 1
        for d in range(4):
            I(f"v_lshlrev_b32 v{G+4*k+d}, 16, v{G+4*k+d}")
            I(f"v_xor_b32 v{G+4*k+d}, v{110+h}, v{G+4*k+d}")
        I(f"ds_write_b128 v105, v[{G+4*k}:{G+4*k+3}] offset:{(k>>1)*8192 + (k&1)*4096}")
    I("v_and_b32 v106, 15, v104")
    I("v_lshrrev_b32 v107, 4, v104")
    I(f"v_lshlrev_b32 v{X0}, 2, v104")
    I(f"s_mul_i32 s42, s20, {NODES*512}")
    I("s_lshl_b32 s43, s21, 5")
    I("s_add_u32 s42, s42, s43")
    I(f"v_lshlrev_b32 v{X1}, 9, v106")
    I(f"v_lshl_add_u32 v{X1}, v107, 3, v{X1}")
    I(f"v_add_u32 v{X1}, s42, v{X1}")
    I(f"v_cmp_gt_u32 s[50:51], {NODES-48}, v106")
    I("v_lshlrev_b32 v108, 10, v106")
    I(f"v_add_u32 v108, {T}, v108")
    for u in (3, 2, 1, 0):
        I(f"v_add_u32 v109, {4*u}, v107")
        I("v_xor_b32 v109, v109, v106")
        I(f"v_lshl_add_u32 v{TF+4+u}, v109, 4, v108")
    I("s_waitcnt lgkmcnt(0)")
    for u in range(4):
        I(f"v_mov_b32 v{TA+u}, v{TF+4+u}")
    for k in range(64):
        I(f"v_mov_b32 v{G+k}, 0")
    e.label("L2_m_round")
    I("s_cmp_lg_u32 s21, 0")
    I("s_cbranch_scc1 L2_m_nz")
    I(f"v_mov_b32 v{TF}, 0"); I(f"v_mov_b32 v{TF+1}, 0"); I(f"v_mov_b32 v{TF+2}, 0"); I(f"v_mov_b32 v{TF+3}, 0")
    I(f"v_lshlrev_b32 v{TF+4}, 2, v{X0}")
    I(f"ds_write_b128 v{TF+4}, v[{TF}:{TF+3}] offset:{HIST}")
    I("s_waitcnt lgkmcnt(0)")
    e.label("L2_m_nz")
    I("s_barrier")
    I("s_barrier")
    I(f"ds_read_b32 v{TF}, v{X0} offset:{HIST}")
    I(f"ds_read_b32 v{TF+1}, v{X0} offset:{HIST2}")
    I("s_waitcnt lgkmcnt(0)")
    I(f"v_add_u32 v{TF}, v{TF}, v{TF+1}")
    scan64(e, TF)
    I(f"v_readlane_b32 s42, v{TF}, 63")
    e.flush()
    I(f"s_cmp_gt_u32 s42, {CAP}")
    I("s_cbranch_scc1 L2_m_overflow")
    I("s_barrier")
    I("s_waitcnt vmcnt(0)")
    stamp(e, c, 4)
    for h in range(2):
        for t in range(4):
            need = 16 if t < 3 else NODES - 48
            I(f"v_mov_b32 v{TF}, 0")
            I("s_mov_b32 s43, 0")
            e.label(f"L2_poll{h}{t}")
            I(f"ds_read_b32 v{TF+1}, v{TF} offset:{DONE + 16*h + 4*t}")
            I("s_waitcnt lgkmcnt(0)")
            I(f"v_readfirstlane_b32 s42, v{TF+1}")
            e.flush()
            I(f"s_cmp_ge_u32 s42, {need}")
            I(f"s_cbranch_scc1 L2_go{h}{t}")
            I("s_sleep 2")
            I("s_add_u32 s43, s43, 1")
            I("s_cmp_lt_u32 s43, 0x400000")
            I(f"s_cbranch_scc1 L2_poll{h}{t}")
            e.label(f"L2_go{h}{t}")
            stamp(e, c, 7 + 4*h + t)
            def rd(ks):
                I(f"ds_read_b128 v[{TF+4*(ks&3)}:{TF+4*(ks&3)+3}], v{TA+(ks&3)} offset:{t*16384 + (ks>>2)*256}")
            for ks in range(4): rd(ks)
            for ks in range(16):
                jp, blk = ks >> 2, 2 * h + ((ks >> 1) & 1)
                p, i, s = path_of(jp, blk)
                f = p * 2 + (ks & 1)
                I(f"s_waitcnt lgkmcnt({min(3, 15-ks)})")
                g = G + 16 * t + 4 * i
                I(f"v_mfma_f32_16x16x32_bf16 v[{g}:{g+3}], v[{W+4*f}:{W+4*f+3}], v[{TF+4*(ks&3)}:{TF+4*(ks&3)+3}], v[{g}:{g+3}]")
                if ks + 4 < 16: rd(ks + 4)
            if h == 0:
                I(f"v_mov_b32 v{TF}, 0")
                I(f"v_mov_b32 v{TF+1}, 1")
                I("s_mov_b64 exec, 1")
                I(f"ds_add_u32 v{TF}, v{TF+1} offset:{GDONE + 4*t}")
                I("s_mov_b64 exec, -1")
                if t == c.pf2b_tile:
                    if c.pf2b_lines:
                        I("s_lshl_b32 s42, s21, 6")
                        I(f"v_lshrrev_b32 v{TF+3}, 2, v{X0}")
                        I(f"v_add_u32 v{TF+3}, s42, v{TF+3}")
                    prefetch_x(e, c, c.pf2b_lines, TF + 4, TF + 3, 256, 31, 1, 4, "q")
                    if c.pf2b_lines: I("s_waitcnt vmcnt(0)")
            else:
                I("s_cmp_eq_u32 s24, 0")
                e.branch(f"s_cbranch_scc1 L2_nofin{t}")
                g = G + 16 * t
                I("s_mov_b32 s42, 0xbfb8aa3b")
                for r in range(4): I(f"v_mul_f32 v{TF+r}, s42, v{g+r}")
                for r in range(4): I(f"v_exp_f32 v{TF+r}, v{TF+r}")
                for r in range(4): I(f"v_add_f32 v{TF+r}, 1.0, v{TF+r}")
                for r in range(4): I(f"v_rcp_f32 v{TF+r}, v{TF+r}")
                for i in range(1, 4):
                    for r in range(4): I(f"v_mul_f32 v{g+4*i+r}, v{g+4*i+r}, v{TF+r}")
                for i in range(4):
                    I(f"v_cvt_pk_bf16_f32 v{TF+4+2*i}, v{g+4*i}, v{g+4*i+1}")
                    I(f"v_cvt_pk_bf16_f32 v{TF+5+2*i}, v{g+4*i+2}, v{g+4*i+3}")
                I(f"s_mov_b32 s42, {t*16*512}")
                if t == 3: I("s_mov_b64 exec, s[50:51]")
                for i in range(4):
                    I(f"buffer_store_dwordx2 v[{TF+4+2*i}:{TF+5+2*i}], v{X1}, s[12:15], s42 offen offset:{i*128} {c.out_flags}")
                if t == 3: I("s_mov_b64 exec, -1")
                e.label(f"L2_nofin{t}")
    stamp(e, c, 5)
    I("s_cmp_lg_u32 s24, 0")
    e.branch("s_cbranch_scc1 L2_m_exit")
    I("s_waitcnt lgkmcnt(0)")
    I("s_barrier")
    I("s_add_u32 s22, s22, 1")
    I(f"s_cmp_eq_u32 s22, {NCH-1}")
    I("s_cselect_b32 s24, 1, 0")
    e.branch("s_branch L2_m_round")
    e.label("L2_m_overflow")
    I("s_mov_b32 s22, 0")
    I("s_mov_b32 s23, 1")
    I("s_mov_b32 s24, 0")
    I("s_barrier")
    e.branch("s_branch L2_m_round")
    e.label("L2_m_exit")
    if c.stamps:
        I("s_waitcnt vmcnt(0)")
        stamp(e, c, 6)
        stamp_store(e, c, 8, 1, TF)
    e.label("L2_end")
    I("s_endpgm")
    return name, 128, 96

HEADER = """; equiformer tensor-product message passing: bin edges by destination (eqsort), then per bin of 50 nodes
"""

def generate(c):
    e = Emitter()
    e.raw('.amdgcn_target "amdgcn-amd-amdhsa--gfx950"')
    e.raw(".text")
    k1 = gen_k1(e, c)
    k2 = gen_k2(e, c)
    head = HEADER
    dk = ""
    if c.dummy:
        kernel_header(e, "eqdummy_kernel")
        e.I("s_endpgm")
        dk = ".p2align 6\n" + kd("eqdummy_kernel", 8, 16)
    if c.dummy == 2: head += "; @launch kernel=eqdummy_kernel grid=(1,1,1) block=(64,1,1) lds=0\n"
    head += f"; @launch kernel={k1[0]} grid=(256,1,1) block=(1024,1,1) lds={K1_LDS}\n"
    head += f"; @launch kernel={k2[0]} grid=(250,1,1) block=(1024,1,1) lds={c.k2_lds}\n"
    if c.dummy == 1: head += "; @launch kernel=eqdummy_kernel grid=(1,1,1) block=(64,1,1) lds=0\n"
    tail = '.section .rodata,"a"\n.p2align 6\n' + kd(*k1) + ".p2align 6\n" + kd(*k2) + dk
    return head + e.text() + tail

if __name__ == "__main__":
    c = Cfg()
    out = sys.argv[1]
    for kv in sys.argv[2:]:
        k, v = kv.split("=", 1)
        old = getattr(c, k)
        setattr(c, k, type(old)(int(v)) if isinstance(old, (bool, int)) else v.replace("+", " "))
    open(out, "w").write(generate(c))
```

```python
import sys
from emit import Emitter

N, E = 12500, 800000
NB, NODES = 250, 50
NCH, CH = 250, 3200
CSTRIDE = 55424
KEYOFF, TABOFF = 51200, 54400
WFOFF = NCH * CSTRIDE
WSBYTES = WFOFF + 40960

class Cfg:
    pf1_lines = 0
    pf1_pos = "late"
    st_flags = ""
    ld_flags = ""
    rec_flags = ""
    out_flags = ""
    pf2_lines = 0
    pf2b_lines = 0
    pf2b_tile = 2
    stamps = False
    cap = 3584
    x_noperm = 0
    x_noexp = 0
    x_nomfma = 0
    x_noload = 0
    x_samehalf = 0
    dbgstamps = 0
    dummy = 0

def srd(e, d, b, nbytes):
    e.I(f"s_mov_b32 s{d}, s{b}")
    e.I(f"s_mov_b32 s{d+1}, s{b+1}")
    e.I(f"s_mov_b32 s{d+2}, {nbytes}")
    e.I(f"s_mov_b32 s{d+3}, 0x20000")

def scan64(e, v):
    for sh in (1, 2, 4, 8):
        e.I(f"v_add_u32_dpp v{v}, v{v}, v{v} row_shr:{sh} row_mask:0xf bank_mask:0xf")
    e.I(f"v_add_u32_dpp v{v}, v{v}, v{v} row_bcast:15 row_mask:0xa bank_mask:0xf")
    e.I(f"v_add_u32_dpp v{v}, v{v}, v{v} row_bcast:31 row_mask:0xc bank_mask:0xf")

def prefetch_x(e, c, nlines, vt, vtid, nthreads, slice_s, half, srdx, tag):
    if nlines <= 0: return
    e.I(f"s_mul_i32 s46, s{slice_s}, 782")
    it = (nlines + nthreads - 1) // nthreads
    for k in range(it):
        e.I(f"v_add_u32 v{vt}, {k*nthreads}, v{vtid}")
        lim = nlines
        e.I(f"v_cmp_gt_u32 vcc, {lim}, v{vt}" if lim <= 64 else f"s_mov_b32 s47, {lim}")
        if lim > 64: e.I(f"v_cmp_gt_u32 vcc, s47, v{vt}")
        e.I(f"v_add_u32 v{vt}, s46, v{vt}")
        e.I(f"v_and_b32 v{vt+1}, 1, v{vt}")
        e.I(f"v_lshrrev_b32 v{vt}, 1, v{vt}")
        e.I(f"v_lshlrev_b32 v{vt}, 9, v{vt}")
        e.I(f"v_lshl_add_u32 v{vt}, v{vt+1}, 7, v{vt}")
        e.I(f"v_cndmask_b32 v{vt}, 2.0, v{vt}, vcc")
        e.I(f"buffer_load_dword v{vt+2}, v{vt}, s[{srdx}:{srdx+3}], 0 offen offset:{half*256}")

def stamp(e, c, slot, tmp_s=90):
    if not c.stamps: return
    e.I(f"s_memrealtime s[{tmp_s}:{tmp_s+1}]")
    e.I("s_waitcnt lgkmcnt(0)")
    e.I(f"v_writelane_b32 v{c.stampv}, s{tmp_s}, {slot}")

def stamp_store(e, c, srdws, kid, vtmp, role=0):
    if not c.stamps: return
    if c.dbgstamps:
        e.I("s_load_dwordx2 s[92:93], s[0:1], 80")
        e.I("s_waitcnt lgkmcnt(0)")
        if not kid: e.I("s_add_u32 s92, s92, 512"); e.I("s_addc_u32 s93, s93, 0")
        e.I("s_mov_b32 s88, s92"); e.I("s_mov_b32 s89, s93"); e.I("s_mov_b32 s90, 64"); e.I("s_mov_b32 s91, 0x20000")
        e.I(f"v_readlane_b32 s94, v{c.stampv}, 0")
        e.I("s_nop 4")
        e.I("s_not_b32 s94, s94")
        e.I(f"v_writelane_b32 v{c.stampv}, s94, 7")
        e.I(f"v_and_b32 v{vtmp+1}, 63, v{c.tidv}")
        e.I(f"v_lshlrev_b32 v{vtmp}, 2, v{vtmp+1}")
        e.I(f"v_and_b32 v{vtmp+1}, 0x2ff, v{c.tidv}")
        e.I(f"v_cmp_gt_u32 vcc, 8, v{vtmp+1}")
        e.I(f"v_cndmask_b32 v{vtmp}, 2.0, v{vtmp}, vcc")
        e.I(f"buffer_atomic_umax v{c.stampv}, v{vtmp}, s[88:91], 0 offen offset:{kid*32}")
        return
    e.I(f"v_lshrrev_b32 v{vtmp}, 6, v{c.tidv}")
    e.I(f"s_lshl_b32 s90, s2, 4")
    e.I(f"v_add_u32 v{vtmp}, s90, v{vtmp}")
    e.I(f"v_lshlrev_b32 v{vtmp}, 6, v{vtmp}")
    e.I(f"v_and_b32 v{vtmp+1}, 63, v{c.tidv}")
    e.I(f"v_lshl_add_u32 v{vtmp}, v{vtmp+1}, 2, v{vtmp}")
    e.I(f"v_cmp_gt_u32 vcc, 16, v{vtmp+1}")
    e.I(f"v_cndmask_b32 v{vtmp}, 2.0, v{vtmp}, vcc")
    e.I(f"s_mov_b32 s90, {(16+kid) << 20}")
    e.I(f"buffer_store_dword v{c.stampv}, v{vtmp}, s[{srdws}:{srdws+3}], s90 offen")

def kernel_header(e, name):
    e.raw(f".globl {name}")
    e.raw(".p2align 8")
    e.raw(f".type {name},@function")
    e.raw(f"{name}:")
    e.hist = []

def kd(name, nv, ns):
    return f""".amdhsa_kernel {name}
  .amdhsa_next_free_vgpr {nv}
  .amdhsa_next_free_sgpr {ns}
  .amdhsa_accum_offset {(nv+3)//4*4}
  .amdhsa_group_segment_fixed_size 0
  .amdhsa_kernarg_size 96
  .amdhsa_user_sgpr_count 2
  .amdhsa_user_sgpr_kernarg_segment_ptr 1
  .amdhsa_system_sgpr_workgroup_id_x 1
  .amdhsa_float_denorm_mode_32 3
.end_amdhsa_kernel
"""

K1_HIST = 55424
K1_BASE = K1_HIST + 1024
K1_LDS = K1_BASE + 1024

def gen_k1(e, c):
    name = "eqsort_kernel"
    kernel_header(e, name)
    c.stampv, c.tidv = 60, 0
    I = e.I
    wsbytes = (32 << 20) if c.stamps else WSBYTES
    I("s_cmp_ge_u32 s2, 256")
    I("s_cbranch_scc1 L1_end")
    if c.stamps: I("v_mov_b32 v60, 0")
    stamp(e, c, 0)
    I("s_load_dwordx4 s[4:7], s[0:1], 0")
    I("s_load_dwordx4 s[8:11], s[0:1], 16")
    I("s_load_dwordx2 s[12:13], s[0:1], 32")
    I("s_load_dwordx4 s[16:19], s[0:1], 48")
    I("s_load_dwordx2 s[14:15], s[0:1], 88")
    I("v_lshlrev_b32 v1, 4, v0")
    I("v_lshlrev_b32 v2, 5, v0")
    I("v_mul_u32_u24 v3, 24, v0")
    I("v_lshlrev_b32 v40, 2, v0")
    I("v_mov_b32 v41, 0")
    I("v_mov_b32 v42, 1")
    I("s_mul_i32 s44, s2, 12800")
    I("s_mul_i32 s45, s2, 25600")
    I("s_mul_i32 s50, s2, 19200")
    I(f"s_mul_i32 s51, s2, {CSTRIDE}")
    I("s_lshr_b32 s52, s2, 3")
    I("s_mov_b32 s53, -50")
    I("s_movk_i32 s54, 800")
    I("v_readfirstlane_b32 s55, v0")
    I("s_lshr_b32 s55, s55, 6")
    I("v_subrev_u32 v50, 832, v0")
    I("s_waitcnt lgkmcnt(0)")
    srd(e, 20, 4, N * 512)
    srd(e, 24, 6, E * 6)
    srd(e, 28, 8, E * 8)
    srd(e, 32, 10, E * 4)
    srd(e, 36, 12, E * 4)
    srd(e, 40, 14, wsbytes)
    I("s_cmp_ge_u32 s2, 250")
    e.branch("s_cbranch_scc1 L1_helper")
    I("s_cmp_ge_u32 s55, 13")
    e.branch("s_cbranch_scc1 L1_idle0")
    I("v_cmp_gt_u32 vcc, s54, v0")
    I("s_and_saveexec_b64 s[48:49], vcc")
    lf = c.ld_flags
    I(f"buffer_load_dwordx4 v[4:7], v1, s[36:39], s44 offen {lf}")
    I(f"buffer_load_dwordx4 v[8:11], v1, s[32:35], s44 offen {lf}")
    I(f"buffer_load_dwordx4 v[12:15], v2, s[28:31], s45 offen {lf}")
    I(f"buffer_load_dwordx4 v[16:19], v2, s[28:31], s45 offen offset:16 {lf}")
    I(f"buffer_load_dwordx4 v[20:23], v3, s[24:27], s50 offen {lf}")
    I(f"buffer_load_dwordx2 v[24:25], v3, s[24:27], s50 offen offset:16 {lf}")
    I("s_mov_b64 exec, s[48:49]")
    I("s_cmp_ge_u32 s55, 4")
    e.branch("s_cbranch_scc1 L1_nz")
    I(f"ds_write_b32 v40, v41 offset:{K1_HIST}")
    I("s_waitcnt lgkmcnt(0)")
    e.label("L1_nz")
    I("s_barrier")
    I("s_and_b64 exec, exec, vcc")
    I("s_waitcnt vmcnt(5)")
    stamp(e, c, 1)
    for i in range(4):
        I(f"v_mul_u32_u24 v{44+i}, 0x147b, v{4+i}")
    for i in range(4):
        I(f"v_lshrrev_b32 v{44+i}, 18, v{44+i}")
    for i in range(4):
        I(f"v_mad_i32_i24 v{4+i}, v{44+i}, s53, v{4+i}")
        I(f"v_lshlrev_b32 v{44+i}, 2, v{44+i}")
    for i in range(4):
        I(f"ds_add_rtn_u32 v{36+i}, v{44+i}, v42 offset:{K1_HIST}")
    I("s_waitcnt lgkmcnt(0)")
    I("s_barrier")
    I("s_cmp_lg_u32 s55, 0")
    e.branch("s_cbranch_scc1 L1_noscan")
    I(f"ds_read_b128 v[52:55], v1 offset:{K1_HIST}")
    I("s_waitcnt lgkmcnt(0)")
    I("v_add_u32 v56, v52, v53")
    I("v_add_u32 v57, v56, v54")
    I("v_add_u32 v58, v57, v55")
    I("v_mov_b32 v59, v58")
    scan64(e, 59)
    I("v_sub_u32 v59, v59, v58")
    I("v_add_u32 v28, v59, v52")
    I("v_add_u32 v29, v59, v56")
    I("v_add_u32 v30, v59, v57")
    I("v_mov_b32 v32, v59"); I("v_mov_b32 v33, v28"); I("v_mov_b32 v34, v29"); I("v_mov_b32 v35, v30")
    I(f"ds_write_b128 v1, v[32:35] offset:{K1_BASE}")
    I("v_lshl_or_b32 v52, v52, 16, v59")
    I("v_lshl_or_b32 v53, v53, 16, v28")
    I("v_lshl_or_b32 v54, v54, 16, v29")
    I("v_lshl_or_b32 v55, v55, 16, v30")
    I(f"ds_write_b128 v1, v[52:55] offset:{TABOFF}")
    I("s_waitcnt lgkmcnt(0)")
    e.label("L1_noscan")
    I("s_barrier")
    for i in range(4):
        I(f"ds_read_b32 v{44+i}, v{44+i} offset:{K1_BASE}")
    I("s_mov_b32 s56, 0x05040100")
    I("s_mov_b32 s57, 0x05040302")
    I("s_waitcnt vmcnt(0)")
    stamp(e, c, 2)
    I("v_mov_b32 v28, v20")
    I("v_perm_b32 v29, v8, v21, s56")
    I("v_alignbit_b32 v30, v22, v21, 16")
    I("v_perm_b32 v31, v9, v22, s57")
    I("v_mov_b32 v32, v23")
    I("v_perm_b32 v33, v10, v24, s56")
    I("v_alignbit_b32 v34, v25, v24, 16")
    I("v_perm_b32 v35, v11, v25, s57")
    I("s_waitcnt lgkmcnt(0)")
    for i in range(4):
        I(f"v_add_u32 v{36+i}, v{36+i}, v{44+i}")
        I(f"v_lshlrev_b32 v{44+i}, 4, v{36+i}")
    for i in range(4):
        I(f"ds_write2_b64 v{44+i}, v[{12+2*i}:{13+2*i}], v[{28+2*i}:{29+2*i}] offset0:0 offset1:1")
        I(f"ds_write_b8 v{36+i}, v{4+i} offset:{KEYOFF}")
    I("s_mov_b64 exec, -1")
    I("s_waitcnt lgkmcnt(0)")
    e.branch("s_branch L1_copy")
    e.label("L1_idle0")
    if c.pf1_pos == "early": prefetch_x(e, c, c.pf1_lines, 4, 50, 192, 52, 0, 20, "a")
    I("s_barrier"); I("s_barrier")
    if c.pf1_pos == "mid": prefetch_x(e, c, c.pf1_lines, 4, 50, 192, 52, 0, 20, "a")
    I("s_barrier")
    if c.pf1_pos == "late": prefetch_x(e, c, c.pf1_lines, 4, 50, 192, 52, 0, 20, "a")
    e.flush()
    e.label("L1_copy")
    I("s_barrier")
    stamp(e, c, 3)
    I("ds_read_b128 v[8:11], v1")
    I("ds_read_b128 v[12:15], v1 offset:16384")
    I("ds_read_b128 v[16:19], v1 offset:32768")
    I("ds_read_b128 v[20:23], v1 offset:49152")
    I("v_add_u32 v2, 16384, v1")
    I("v_add_u32 v3, 32768, v1")
    I("v_add_u32 v24, 49152, v1")
    I("s_movk_i32 s54, 392")
    I("v_cmp_gt_u32 vcc, s54, v0")
    sf = c.st_flags
    I("s_waitcnt lgkmcnt(3)")
    I(f"buffer_store_dwordx4 v[8:11], v1, s[40:43], s51 offen {sf}")
    I("s_waitcnt lgkmcnt(2)")
    I(f"buffer_store_dwordx4 v[12:15], v2, s[40:43], s51 offen {sf}")
    I("s_waitcnt lgkmcnt(1)")
    I(f"buffer_store_dwordx4 v[16:19], v3, s[40:43], s51 offen {sf}")
    I("s_and_saveexec_b64 s[48:49], vcc")
    e.branch("s_cbranch_execz L1_st_done")
    I("s_waitcnt lgkmcnt(0)")
    I(f"buffer_store_dwordx4 v[20:23], v24, s[40:43], s51 offen {sf}")
    e.label("L1_st_done")
    I("s_mov_b64 exec, -1")
    if c.stamps:
        stamp(e, c, 4)
        I("s_waitcnt vmcnt(0)")
        stamp(e, c, 5)
        stamp_store(e, c, 40, 0, 26)
    I("s_endpgm")
    e.label("L1_helper")
    I("s_cmp_lt_u32 s55, 13")
    e.branch("s_cbranch_scc1 L1_h_w")
    prefetch_x(e, c, c.pf1_lines, 4, 50, 192, 52, 0, 20, "h")
    I("s_waitcnt vmcnt(0)")
    I("s_endpgm")
    e.label("L1_h_w")
    I("s_sub_u32 s44, s2, 250")
    I("s_mul_i32 s44, s44, 13")
    I("s_add_u32 s44, s44, s55")
    I("s_cmp_ge_u32 s44, 40")
    e.branch("s_cbranch_scc1 L1_end")
    I("s_and_b32 s45, s44, 3")
    I("s_lshr_b32 s46, s44, 2")
    I("s_cmp_lt_u32 s46, 4")
    I("s_cselect_b32 s24, s16, s18")
    I("s_cselect_b32 s25, s17, s19")
    I("s_movk_i32 s26, 24576")
    I("s_cselect_b32 s26, 16384, s26")
    I("s_cselect_b32 s47, 0, 4")
    I("s_mov_b32 s27, 0x20000")
    I("s_sub_u32 s46, s46, s47")
    I("s_lshl_b32 s46, s46, 12")
    I("s_lshl_b32 s45, s45, 5")
    I("s_add_u32 s46, s46, s45")
    I("v_and_b32 v4, 63, v0")
    I("v_lshrrev_b32 v5, 4, v4")
    I("v_and_b32 v6, 15, v4")
    I("v_lshlrev_b32 v5, 10, v5")
    I("v_lshl_add_u32 v5, v6, 1, v5")
    for q in range(8):
        I(f"buffer_load_ushort v{12+q}, v5, s[24:27], s46 offen offset:{q*128}")
    I("v_lshlrev_b32 v4, 4, v4")
    I("s_lshl_b32 s44, s44, 10")
    I(f"s_add_u32 s44, s44, {WFOFF}")
    I("s_waitcnt vmcnt(0)")
    for k in range(4):
        I(f"v_lshl_or_b32 v{8+k}, v{13+2*k}, 16, v{12+2*k}")
    I("buffer_store_dwordx4 v[8:11], v4, s[40:43], s44 offen")
    e.label("L1_end")
    I("s_endpgm")
    return name, 64, 96

def path_of(jp, blk):
    if blk == 0: return (0, 0, 1) if jp == 0 else (2, jp, 1)
    k = blk - 1
    if jp == 0: return (3, 1 + k, 1)
    j = jp - 1
    if j == k: return (1, 0, 1)
    i = 3 - j - k
    return (4, 1 + i, 1 if k == (j + 1) % 3 else -1)

def gen_k2(e, c):
    name = "eqmain_kernel"
    CAP = c.cap
    HIST = 0
    RAW = 1024
    T = (RAW + CAP * 16 + 512 + 1023) // 1024 * 1024
    WRAD = T + NODES * 1024
    SCR = WRAD + 16384
    HIST2, CUR2, CNT = HIST + 256, HIST + 512, HIST + 768
    NEXT, DONE, GDONE = CNT, CNT + 16, CNT + 64
    lds = SCR + 12 * 1024
    lds = max(lds, T + 64 * 1024)
    c.k2_lds = lds
    kernel_header(e, name)
    I = e.I
    wsbytes = (32 << 20) if c.stamps else WSBYTES
    c.stampv, c.tidv = 127, 126
    I("s_cmp_ge_u32 s2, 250")
    I("s_cbranch_scc1 L2_end")
    if c.stamps:
        I("v_mov_b32 v127, 0")
        I("v_mov_b32 v126, v0")
    stamp(e, c, 0)
    I("s_load_dwordx2 s[42:43], s[0:1], 0")
    I("s_load_dwordx2 s[44:45], s[0:1], 40")
    I("s_load_dwordx2 s[46:47], s[0:1], 72")
    I("s_load_dwordx2 s[48:49], s[0:1], 88")
    I("s_and_b32 s20, s2, 7")
    I("s_min_u32 s21, s20, 2")
    I("s_mul_i32 s20, s20, 31")
    I("s_add_u32 s20, s20, s21")
    I("s_lshr_b32 s31, s2, 3")
    I("s_add_u32 s20, s20, s31")
    I("v_readfirstlane_b32 s21, v0")
    I("s_lshr_b32 s21, s21, 6")
    I("s_mov_b32 s22, 0")
    I("s_movk_i32 s23, 250")
    I("s_mov_b32 s24, 1")
    I("s_mov_b32 s26, 0xaaaaaaaa")
    I("s_mov_b32 s27, 0xaaaaaaaa")
    I("s_mov_b32 s28, 0x05040100")
    I("s_mov_b32 s29, 0x07060302")
    I("s_mov_b32 s30, 0xffff0000")
    I("s_waitcnt lgkmcnt(0)")
    srd(e, 4, 42, N * 512)
    srd(e, 8, 48, wsbytes)
    srd(e, 12, 46, N * 512)
    srd(e, 16, 44, 2560)
    I("s_cmp_lt_u32 s21, 4")
    e.branch("s_cbranch_scc1 L2_gemm")

    VLANE, VINFO, VNEXT = 108, 109, 110
    VLOFF, VSRCC, VRAWC, VSLOT, VSCRW, VTRA, VWR, VL16 = 111, 112, 113, 114, 115, 116, 117, 118
    VT0, VT1, VONE, VZERO = 119, 120, 121, 122
    VJ, VCH, VSEG = 123, 124, 125
    I(f"v_and_b32 v{VLANE}, 63, v0")
    I(f"v_subrev_u32 v{VT0}, 256, v0")
    I(f"v_and_b32 v{VJ}, 15, v{VT0}")
    I(f"v_lshrrev_b32 v{VSEG}, 4, v{VT0}")
    I(f"s_mov_b32 s42, {CSTRIDE}")
    I(f"v_mul_u32_u24 v{VCH}, s42, v{VSEG}")
    I(f"v_mov_b32 v{VONE}, 1")
    I(f"v_mov_b32 v{VZERO}, 0")
    I(f"v_and_b32 v{VT0}, 15, v{VLANE}")
    I(f"v_lshlrev_b32 v{VLOFF}, 4, v{VT0}")
    I(f"v_lshrrev_b32 v{VT1}, 4, v{VLANE}")
    I(f"v_lshl_add_u32 v{VSRCC}, v{VT1}, 4, 14")
    I(f"v_lshrrev_b32 v{VSLOT}, 1, v{VLANE}")
    I(f"v_lshlrev_b32 v{VRAWC}, 4, v{VSLOT}")
    I(f"v_lshlrev_b32 v{VL16}, 4, v{VLANE}")
    I("s_sub_u32 s43, s21, 4")
    I("s_lshl_b32 s43, s43, 10")
    I(f"s_add_u32 s43, s43, {SCR}")
    I(f"v_add_u32 v{VSCRW}, s43, v{VL16}")
    I(f"v_lshlrev_b32 v{VTRA}, 5, v{VT1}")
    I(f"v_bfe_u32 v{VT1}, v{VLANE}, 2, 2")
    I(f"v_lshl_add_u32 v{VTRA}, v{VT1}, 7, v{VTRA}")
    I(f"v_and_b32 v{VT1}, 3, v{VLANE}")
    I(f"v_lshl_add_u32 v{VTRA}, v{VT1}, 3, v{VTRA}")
    I(f"v_add_u32 v{VTRA}, s43, v{VTRA}")
    I(f"v_add_u32 v{VWR}, {WRAD}, v{VL16}")

    e.label("L2_g_round")
    PAY, KEY, RNK, TAB, KAD, PAD = 0, 48, 60, 72, 78, 84
    MSK = 50
    rf = c.rec_flags
    I("s_lshl_b32 s42, s20, 2")
    I(f"s_add_u32 s42, s42, {TABOFF}")
    for p in range(6):
        if p == 5:
            I("s_cmp_ge_u32 s21, 7")
            I(f"v_mov_b32 v{TAB+5}, 0")
            e.branch("s_cbranch_scc1 L2_notab5")
        I(f"buffer_load_dword v{TAB+p}, v{VCH}, s[8:11], s42 offen {rf}")
        if p < 5: I(f"s_add_u32 s42, s42, {48*CSTRIDE}")
    e.label("L2_notab5")
    I("s_waitcnt vmcnt(0)")
    stamp(e, c, 1)
    for p in range(6):
        I(f"s_sub_u32 s42, {48*p}, s22")
        I(f"v_add_u32 v{VT0}, s42, v{VSEG}")
        I(f"v_cmp_gt_u32 vcc, s23, v{VT0}")
        I(f"v_and_b32 v{KAD+p}, 0xffff, v{TAB+p}")
        I(f"v_lshrrev_b32 v{TAB+p}, 16, v{TAB+p}")
        I(f"v_cndmask_b32 v{TAB+p}, 0, v{TAB+p}, vcc")
        I(f"v_add_u32 v{KAD+p}, v{KAD+p}, v{VJ}")
        I(f"v_lshl_add_u32 v{PAD+p}, v{KAD+p}, 4, v{VCH}")
        I(f"v_add_u32 v{KAD+p}, v{KAD+p}, v{VCH}")
        I(f"v_cmp_lt_u32 s[{MSK+4*p}:{MSK+4*p+1}], v{VJ}, v{TAB+p}")
        I(f"v_add_u32 v{VT0}, 16, v{VJ}")
        I(f"v_cmp_lt_u32 s[{MSK+4*p+2}:{MSK+4*p+3}], v{VT0}, v{TAB+p}")
        I(f"s_mov_b32 s{74+p}, {48*p*CSTRIDE}")
        I(f"s_mov_b32 s{80+p}, {48*p*CSTRIDE+KEYOFF}")
        I(f"v_cndmask_b32 v{PAD+p}, 2.0, v{PAD+p}, s[{MSK+4*p}:{MSK+4*p+1}]")
    e.flush()
    for p in range(6):
        I(f"s_mov_b64 exec, s[{MSK+4*p+2}:{MSK+4*p+3}]")
        I(f"s_cbranch_execz L2_w1skip{p}")
        I(f"buffer_load_ubyte v{KEY+2*p+1}, v{KAD+p}, s[8:11], s{80+p} offen offset:16 {rf}")
        I(f"buffer_load_dwordx4 v[{PAY+8*p+4}:{PAY+8*p+7}], v{PAD+p}, s[8:11], s{74+p} offen offset:256 {rf}")
        e.label(f"L2_w1skip{p}")
    for p in range(6):
        I(f"s_mov_b64 exec, s[{MSK+4*p}:{MSK+4*p+1}]")
        if p == 5: I("s_cbranch_execz L2_k5skip")
        I(f"buffer_load_ubyte v{KEY+2*p}, v{KAD+p}, s[8:11], s{80+p} offen {rf}")
    e.label("L2_k5skip")
    I("s_mov_b64 exec, -1")
    for p in range(6):
        if p == 5:
            I("s_cmp_ge_u32 s21, 7")
            I("s_cbranch_scc1 L2_p5skip")
        I(f"buffer_load_dwordx4 v[{PAY+8*p}:{PAY+8*p+3}], v{PAD+p}, s[8:11], s{74+p} offen {rf}")
    e.label("L2_p5skip")
    I("s_barrier")
    I("s_waitcnt vmcnt(5)")
    stamp(e, c, 2)
    for k in range(12):
        I(f"v_lshlrev_b32 v{KEY+k}, 2, v{KEY+k}")
    for p in range(6):
        for w in range(2):
            I(f"s_mov_b64 exec, s[{MSK+4*p+2*w}:{MSK+4*p+2*w+1}]")
            I(f"ds_add_rtn_u32 v{RNK+2*p+w}, v{KEY+2*p+w}, v{VONE} offset:{HIST}")
    I("s_mov_b64 exec, -1")
    I(f"v_max3_u32 v{VT0}, v{TAB}, v{TAB+1}, v{TAB+2}")
    I(f"v_max3_u32 v{VT0}, v{VT0}, v{TAB+3}, v{TAB+4}")
    I(f"v_max_u32 v{VT0}, v{VT0}, v{TAB+5}")
    I(f"v_cmp_lt_u32 vcc, 32, v{VT0}")
    I("s_mov_b32 s25, 0")
    e.flush()
    I("s_cmp_eq_u64 vcc, 0")
    I("s_cbranch_scc1 L2_noextraA")
    I("s_mov_b32 s25, 1")
    for p in range(6):
        I(f"v_add_u32 v{VT0}, 32, v{VJ}")
        I(f"v_add_u32 v{VT1}, 32, v{KAD+p}")
        e.label(f"L2_xa{p}")
        I(f"v_cmp_lt_u32 vcc, v{VT0}, v{TAB+p}")
        I("s_and_saveexec_b64 s[44:45], vcc")
        e.branch(f"s_cbranch_execz L2_xa{p}_done")
        I(f"buffer_load_ubyte v90, v{VT1}, s[8:11], s{80+p} offen")
        I("s_waitcnt vmcnt(0)")
        I("v_lshlrev_b32 v90, 2, v90")
        I(f"ds_add_u32 v90, v{VONE} offset:{HIST2}")
        I("s_mov_b64 exec, -1")
        I(f"v_add_u32 v{VT0}, 16, v{VT0}")
        I(f"v_add_u32 v{VT1}, 16, v{VT1}")
        e.branch(f"s_branch L2_xa{p}")
        e.label(f"L2_xa{p}_done")
        I("s_mov_b64 exec, -1")
    e.label("L2_noextraA")
    I("s_waitcnt lgkmcnt(0)")
    I("s_barrier")
    I(f"v_lshlrev_b32 v{VT0}, 2, v{VLANE}")
    I(f"ds_read_b32 v90, v{VT0} offset:{HIST}")
    I(f"ds_read_b32 v91, v{VT0} offset:{HIST2}")
    I("s_waitcnt lgkmcnt(0)")
    I("v_add_u32 v91, v90, v91")
    I("v_mov_b32 v92, v91")
    scan64(e, 92)
    I("v_readlane_b32 s42, v92, 63")
    I("v_sub_u32 v92, v92, v91")
    I(f"v_lshl_or_b32 v{VINFO}, v91, 16, v92")
    e.flush()
    I(f"s_cmp_gt_u32 s42, {CAP}")
    I("s_cbranch_scc1 L2_g_overflow")
    for k in range(12):
        I(f"ds_bpermute_b32 v{KEY+k}, v{KEY+k}, v92")
    I("s_waitcnt vmcnt(0) lgkmcnt(0)")
    stamp(e, c, 3)
    for k in range(12):
        I(f"v_add_lshl_u32 v{KEY+k}, v{KEY+k}, v{RNK+k}, 4")
    for p in range(6):
        for w in range(2):
            I(f"s_mov_b64 exec, s[{MSK+4*p+2*w}:{MSK+4*p+2*w+1}]")
            I(f"ds_write_b128 v{KEY+2*p+w}, v[{PAY+8*p+4*w}:{PAY+8*p+4*w+3}] offset:{RAW}")
    I("s_mov_b64 exec, -1")
    I("s_cmp_eq_u32 s25, 0")
    I("s_cbranch_scc1 L2_noextraB")
    I("v_add_u32 v92, v92, v90")
    for p in range(6):
        I(f"v_add_u32 v{VT0}, 32, v{VJ}")
        I(f"v_add_u32 v{VT1}, 32, v{KAD+p}")
        I(f"v_add_u32 v93, 512, v{PAD+p}")
        e.label(f"L2_xb{p}")
        I(f"v_cmp_lt_u32 vcc, v{VT0}, v{TAB+p}")
        I("s_and_saveexec_b64 s[44:45], vcc")
        e.branch(f"s_cbranch_execz L2_xb{p}_done")
        I(f"buffer_load_ubyte v94, v{VT1}, s[8:11], s{80+p} offen")
        I(f"buffer_load_dwordx4 v[96:99], v93, s[8:11], s{74+p} offen")
        I("s_waitcnt vmcnt(0)")
        I("v_lshlrev_b32 v94, 2, v94")
        I(f"ds_add_rtn_u32 v95, v94, v{VONE} offset:{CUR2}")
        I("s_mov_b64 exec, -1")
        I("ds_bpermute_b32 v94, v94, v92")
        I("s_waitcnt lgkmcnt(0)")
        I("v_add_lshl_u32 v94, v94, v95, 4")
        I("s_mov_b64 exec, vcc")
        I(f"ds_write_b128 v94, v[96:99] offset:{RAW}")
        I("s_mov_b64 exec, -1")
        I(f"v_add_u32 v{VT0}, 16, v{VT0}")
        I(f"v_add_u32 v{VT1}, 16, v{VT1}")
        I("v_add_u32 v93, 256, v93")
        e.branch(f"s_branch L2_xb{p}")
        e.label(f"L2_xb{p}_done")
        I("s_mov_b64 exec, -1")
    e.label("L2_noextraB")
    ACC, LD, B, A, AD = 0, 32, 64, 96, 100
    for k in range(32):
        I(f"v_mov_b32 v{LD+k}, 0")
    I("s_waitcnt lgkmcnt(0)")
    I("s_barrier")
    stamp(e, c, 4)

    sNA, sNR, sNH, sNN, sNF, sNV = 32, 33, 34, 35, 36, 37
    sCN, sCH, sCF, sCL = 38, 39, 40, 41

    def fetch_issue():
        I("s_mov_b64 exec, 1")
        I(f"ds_add_rtn_u32 v{VNEXT}, v{VZERO}, v{VONE} offset:{NEXT}")
        I("s_mov_b64 exec, -1")
    def setup_item(tag):
        I(f"v_readfirstlane_b32 s42, v{VNEXT}")
        I(f"s_mov_b32 s{sNV}, 0")
        e.flush()
        I(f"s_cmp_ge_u32 s42, {2*NODES}")
        I(f"s_cbranch_scc1 L2_noitem{tag}")
        I(f"s_cmp_ge_u32 s42, {NODES}")
        I(f"s_cselect_b32 s{sNH}, 256, 0")
        I(f"s_cselect_b32 s43, {NODES}, 0")
        I(f"s_sub_u32 s{sNN}, s42, s43")
        I(f"v_readlane_b32 s42, v{VINFO}, s{sNN}")
        I(f"s_mov_b32 s{sNV}, 1")
        I(f"s_mov_b32 s{sNF}, 1")
        e.flush()
        I(f"s_lshr_b32 s{sNR}, s42, 16")
        I("s_and_b32 s42, s42, 0xffff")
        I(f"s_lshl_b32 s{sNA}, s42, 4")
        e.label(f"L2_noitem{tag}")
    def prep_reads(tag):
        I(f"v_add_u32 v{VT0}, s{sNA}, v{VSRCC}")
        I(f"v_add_u32 v{VT1}, s{sNA}, v{VRAWC}")
        for i in range(8):
            I(f"ds_read_u16 v{AD+i}, v{VT0} offset:{RAW+64*i}")
        I(f"ds_read_b128 v[{B}:{B+3}], v{VT1} offset:{RAW}")
        I(f"s_cmp_gt_u32 s{sNR}, 32")
        I(f"s_cbranch_scc1 L2_nofetch{tag}")
        fetch_issue()
        e.label(f"L2_nofetch{tag}")
    def prep_compute():
        for i in range(8):
            I(f"v_lshl_add_u32 v{AD+i}, v{AD+i}, 9, v{VLOFF}")
        r = B
        if c.x_noexp:
            I(f"ds_write_b128 v{VSCRW}, v[{r+20}:{r+23}]")
            return
        I(f"v_cmp_gt_u32 vcc, s{sNR}, v{VSLOT}")
        I(f"v_lshlrev_b32 v{r+4}, 16, v{r}")
        I(f"v_and_b32 v{r+5}, s30, v{r}")
        I(f"v_lshlrev_b32 v{r+6}, 16, v{r+1}")
        I(f"v_and_b32 v{r+7}, s30, v{r+1}")
        I(f"v_and_b32 v{r+8}, s30, v{r+2}")
        I(f"v_cndmask_b32 v{r+10}, v{r+2}, v{r+3}, s[26:27]")
        I(f"v_cndmask_b32 v{r+8}, 1.0, v{r+8}, s[26:27]")
        I(f"v_lshlrev_b32 v{r+10}, 16, v{r+10}")
        for k in range(4):
            I(f"v_mul_f32 v{r+12+k}, v{r+4+k}, v{r+8}")
        for k in range(4):
            I(f"v_mul_f32 v{r+16+k}, v{r+4+k}, v{r+10}")
        for k in range(4):
            I(f"v_cvt_pk_bf16_f32 v{r+20+k}, v{r+12+2*k}, v{r+13+2*k}")
        for k in range(4):
            I(f"v_cndmask_b32 v{r+20+k}, 0, v{r+20+k}, vcc")
        I(f"ds_write_b128 v{VSCRW}, v[{r+20}:{r+23}]")
    def issue_loads(tag):
        def ld(i):
            if c.x_noload: return
            I(f"buffer_load_dwordx4 v[{LD+4*i}:{LD+4*i+3}], v{AD+i}, s[4:7], {'0' if c.x_samehalf else 's%d' % sNH} offen")
        I(f"s_cmp_gt_u32 s{sNR}, 28")
        I(f"s_cbranch_scc1 L2_ldfull{tag}")
        for i in range(7):
            I(f"s_cmp_le_u32 s{sNR}, {4*i}")
            I(f"s_cbranch_scc1 L2_lddone{tag}")
            ld(i)
        I(f"s_branch L2_lddone{tag}")
        e.label(f"L2_ldfull{tag}")
        for i in range(8): ld(i)
        e.label(f"L2_lddone{tag}")

    fetch_issue()
    I("s_waitcnt lgkmcnt(0)")
    setup_item("0")
    I(f"s_cmp_eq_u32 s{sNV}, 0")
    I("s_cbranch_scc1 L2_g_done")
    prep_reads("0")
    I("s_waitcnt lgkmcnt(0)")
    prep_compute()
    issue_loads("0")
    e.label("L2_loop")
    I(f"s_mov_b32 s{sCN}, s{sNN}")
    I(f"s_mov_b32 s{sCH}, s{sNH}")
    I(f"s_mov_b32 s{sCF}, s{sNF}")
    I(f"ds_read_b64_tr_b16 v[{A}:{A+1}], v{VTRA}")
    I(f"ds_read_b64_tr_b16 v[{A+2}:{A+3}], v{VTRA} offset:512")
    I(f"s_cmp_gt_u32 s{sNR}, 32")
    I("s_cbranch_scc0 L2_adv_item")
    I(f"s_mov_b32 s{sCL}, 0")
    I(f"s_sub_u32 s{sNR}, s{sNR}, 32")
    I(f"s_add_u32 s{sNA}, s{sNA}, 512")
    I(f"s_mov_b32 s{sNF}, 0")
    I("s_branch L2_adv_done")
    e.label("L2_adv_item")
    I(f"s_mov_b32 s{sCL}, 1")
    setup_item("1")
    I(f"s_cmp_eq_u32 s{sNV}, 0")
    I("s_cbranch_scc1 L2_noprep")
    e.label("L2_adv_done")
    prep_reads("1")
    I("s_waitcnt lgkmcnt(0)")
    prep_compute()
    e.label("L2_noprep")
    I("s_waitcnt vmcnt(0)")
    for q in range(8):
        for jj in range(4):
            if c.x_noperm: continue
            I(f"v_perm_b32 v{B+4*q+jj}, v{LD+4*(2*jj+1)+q//2}, v{LD+4*(2*jj)+q//2}, s{29 if q & 1 else 28}")
    I(f"s_cmp_eq_u32 s{sNV}, 0")
    I("s_cbranch_scc1 L2_noload")
    issue_loads("1")
    e.label("L2_noload")
    I("s_waitcnt lgkmcnt(0)")
    I(f"s_cmp_eq_u32 s{sCF}, 0")
    I("s_cbranch_scc1 L2_mf_acc")
    for q in range(8):
        if c.x_nomfma: continue
        I(f"v_mfma_f32_16x16x32_bf16 v[{ACC+4*q}:{ACC+4*q+3}], v[{A}:{A+3}], v[{B+4*q}:{B+4*q+3}], 0")
    I("s_branch L2_mf_done")
    e.label("L2_mf_acc")
    for q in range(8):
        if c.x_nomfma: continue
        I(f"v_mfma_f32_16x16x32_bf16 v[{ACC+4*q}:{ACC+4*q+3}], v[{A}:{A+3}], v[{B+4*q}:{B+4*q+3}], v[{ACC+4*q}:{ACC+4*q+3}]")
    e.label("L2_mf_done")
    I(f"s_cmp_eq_u32 s{sCL}, 0")
    I("s_cbranch_scc1 L2_loop")
    I(f"s_lshl_b32 s42, s{sCH}, 5")
    I(f"v_add_u32 v{VT0}, s42, v{VWR}")
    for q in range(8):
        I(f"ds_read_b128 v[{B+4*q}:{B+4*q+3}], v{VT0} offset:{q*1024}")
    I(f"s_lshr_b32 s43, s{sCN}, 4")
    I(f"s_lshl_b32 s43, s43, 2")
    I(f"s_cmp_eq_u32 s{sCH}, 0")
    I("s_cbranch_scc1 L2_nowar")
    I(f"v_mov_b32 v{VT1}, s43")
    I("s_mov_b32 s45, 0")
    e.label("L2_war")
    I(f"ds_read_b32 v{VT0}, v{VT1} offset:{GDONE}")
    I("s_waitcnt lgkmcnt(0)")
    I(f"v_readfirstlane_b32 s44, v{VT0}")
    e.flush()
    I("s_cmp_ge_u32 s44, 4")
    I("s_cbranch_scc1 L2_war_ok")
    I("s_add_u32 s45, s45, 1")
    I("s_cmp_lt_u32 s45, 0x400000")
    I("s_cbranch_scc1 L2_war")
    e.label("L2_war_ok")
    I("s_add_u32 s43, s43, 16")
    e.label("L2_nowar")
    I(f"s_and_b32 s44, s{sCN}, 15")
    I("s_lshl_b32 s44, s44, 4")
    I(f"s_lshl_b32 s45, s{sCN}, 10")
    I(f"s_add_u32 s45, s45, {T}")
    I(f"v_xor_b32 v{VT0}, s44, v{VL16}")
    I(f"v_add_u32 v{VT0}, s45, v{VT0}")
    I(f"v_mov_b32 v{VT1}, s43")
    I("s_waitcnt lgkmcnt(0)")
    e.nop(2)
    for q in range(8):
        I(f"v_mul_f32 v{B+4*q}, v{B+4*q}, v{ACC+4*q}")
    for d in range(1, 4):
        for q in range(8):
            I(f"v_fmac_f32 v{B+4*q}, v{B+4*q+d}, v{ACC+4*q+d}")
    for k in range(4):
        I(f"v_cvt_pk_bf16_f32 v{A+k}, v{B+8*k}, v{B+8*k+4}")
    I(f"ds_write_b128 v{VT0}, v[{A}:{A+3}]")
    I("s_waitcnt lgkmcnt(0)")
    I("s_mov_b64 exec, 1")
    I(f"ds_add_u32 v{VT1}, v{VONE} offset:{DONE}")
    I("s_mov_b64 exec, -1")
    I(f"s_cmp_lg_u32 s{sNV}, 0")
    I("s_cbranch_scc1 L2_loop")
    e.label("L2_g_done")
    stamp(e, c, 5)
    I("s_cmp_lg_u32 s24, 0")
    e.branch("s_cbranch_scc1 L2_g_exit")
    I("s_waitcnt lgkmcnt(0)")
    I("s_barrier")
    I("s_add_u32 s22, s22, 1")
    I(f"s_cmp_eq_u32 s22, {NCH-1}")
    I("s_cselect_b32 s24, 1, 0")
    e.branch("s_branch L2_g_round")
    e.label("L2_g_overflow")
    I("s_waitcnt vmcnt(0)")
    I("s_mov_b32 s22, 0")
    I("s_mov_b32 s23, 1")
    I("s_mov_b32 s24, 0")
    I("s_barrier")
    e.branch("s_branch L2_g_round")
    e.label("L2_g_exit")
    stamp_store(e, c, 8, 1, 90)
    I("s_endpgm")

    e.label("L2_gemm")
    W, G, TA, TF = 0, 40, 104, 108
    X0, X1 = 124, 125
    if c.stamps: X0, X1 = 124, 125
    I("v_and_b32 v104, 63, v0")
    I("v_mov_b32 v117, v0")
    I("v_lshlrev_b32 v105, 4, v104")
    I("s_lshl_b32 s42, s21, 10")
    I(f"s_add_u32 s42, s42, {WFOFF}")
    for f in range(10):
        I(f"buffer_load_dwordx4 v[{W+4*f}:{W+4*f+3}], v105, s[8:11], s42 offen")
        if f < 9: I("s_add_u32 s42, s42, 4096")
    lut = 0
    for jp in range(4):
        for blk in range(4):
            p, i, s = path_of(jp, blk)
            lut |= (p | (8 if s < 0 else 0)) << (4 * (jp * 4 + blk))
    I(f"s_mov_b32 s44, {lut & 0xffffffff}")
    I(f"s_mov_b32 s45, {lut >> 32}")
    for h in range(2):
        I("v_lshrrev_b32 v106, 4, v104")
        I("v_bfe_u32 v107, v104, 3, 1")
        I("v_lshl_add_u32 v106, v106, 2, v107")
        I(f"v_add_lshl_u32 v106, v106, {2*h}, 2")
        I(f"v_lshrrev_b64 v[108:109], v106, s[44:45]")
        I(f"v_and_b32 v106, 7, v108")
        I(f"v_and_b32 v{110+h}, 8, v108")
        I(f"v_lshlrev_b32 v{110+h}, 28, v{110+h}")
        I("v_and_b32 v107, 7, v104")
        I("v_lshlrev_b32 v107, 3, v107")
        I("v_lshl_add_u32 v106, v106, 6, v107")
        I("v_add_u32 v106, s21, v106")
        I(f"v_lshlrev_b32 v{112+h}, 1, v106")
    for k in range(4):
        h, qo = k >> 1, (k & 1) * 4
        for d in range(4):
            I(f"buffer_load_ushort v{G+4*k+d}, v{112+h}, s[16:19], 0 offen offset:{d*640+qo*2}")
    prefetch_x(e, c, c.pf2_lines, 114, 117, 256, 31, 0, 4, "p")
    I("s_lshl_b32 s42, s21, 10")
    I(f"s_add_u32 s42, s42, {WRAD}")
    I("v_add_u32 v105, s42, v105")
    npf = (c.pf2_lines + 255) // 256
    I(f"s_waitcnt vmcnt({npf})")
    for k in range(4):
        h = k >> 1
        for d in range(4):
            I(f"v_lshlrev_b32 v{G+4*k+d}, 16, v{G+4*k+d}")
            I(f"v_xor_b32 v{G+4*k+d}, v{110+h}, v{G+4*k+d}")
        I(f"ds_write_b128 v105, v[{G+4*k}:{G+4*k+3}] offset:{(k>>1)*8192 + (k&1)*4096}")
    I("v_and_b32 v106, 15, v104")
    I("v_lshrrev_b32 v107, 4, v104")
    I(f"v_lshlrev_b32 v{X0}, 2, v104")
    I(f"s_mul_i32 s42, s20, {NODES*512}")
    I("s_lshl_b32 s43, s21, 5")
    I("s_add_u32 s42, s42, s43")
    I(f"v_lshlrev_b32 v{X1}, 9, v106")
    I(f"v_lshl_add_u32 v{X1}, v107, 3, v{X1}")
    I(f"v_add_u32 v{X1}, s42, v{X1}")
    I(f"v_cmp_gt_u32 s[50:51], {NODES-48}, v106")
    I("v_lshlrev_b32 v108, 10, v106")
    I(f"v_add_u32 v108, {T}, v108")
    for u in (3, 2, 1, 0):
        I(f"v_add_u32 v109, {4*u}, v107")
        I("v_xor_b32 v109, v109, v106")
        I(f"v_lshl_add_u32 v{TF+4+u}, v109, 4, v108")
    I("s_waitcnt lgkmcnt(0)")
    for u in range(4):
        I(f"v_mov_b32 v{TA+u}, v{TF+4+u}")
    for k in range(64):
        I(f"v_mov_b32 v{G+k}, 0")
    e.label("L2_m_round")
    I("s_cmp_lg_u32 s21, 0")
    I("s_cbranch_scc1 L2_m_nz")
    I(f"v_mov_b32 v{TF}, 0"); I(f"v_mov_b32 v{TF+1}, 0"); I(f"v_mov_b32 v{TF+2}, 0"); I(f"v_mov_b32 v{TF+3}, 0")
    I(f"v_lshlrev_b32 v{TF+4}, 2, v{X0}")
    I(f"ds_write_b128 v{TF+4}, v[{TF}:{TF+3}] offset:{HIST}")
    I("s_waitcnt lgkmcnt(0)")
    e.label("L2_m_nz")
    I("s_barrier")
    I("s_barrier")
    I(f"ds_read_b32 v{TF}, v{X0} offset:{HIST}")
    I(f"ds_read_b32 v{TF+1}, v{X0} offset:{HIST2}")
    I("s_waitcnt lgkmcnt(0)")
    I(f"v_add_u32 v{TF}, v{TF}, v{TF+1}")
    scan64(e, TF)
    I(f"v_readlane_b32 s42, v{TF}, 63")
    e.flush()
    I(f"s_cmp_gt_u32 s42, {CAP}")
    I("s_cbranch_scc1 L2_m_overflow")
    I("s_barrier")
    I("s_waitcnt vmcnt(0)")
    stamp(e, c, 4)
    for h in range(2):
        for t in range(4):
            need = 16 if t < 3 else NODES - 48
            I(f"v_mov_b32 v{TF}, 0")
            I("s_mov_b32 s43, 0")
            e.label(f"L2_poll{h}{t}")
            I(f"ds_read_b32 v{TF+1}, v{TF} offset:{DONE + 16*h + 4*t}")
            I("s_waitcnt lgkmcnt(0)")
            I(f"v_readfirstlane_b32 s42, v{TF+1}")
            e.flush()
            I(f"s_cmp_ge_u32 s42, {need}")
            I(f"s_cbranch_scc1 L2_go{h}{t}")
            I("s_sleep 2")
            I("s_add_u32 s43, s43, 1")
            I("s_cmp_lt_u32 s43, 0x400000")
            I(f"s_cbranch_scc1 L2_poll{h}{t}")
            e.label(f"L2_go{h}{t}")
            stamp(e, c, 7 + 4*h + t)
            def rd(ks):
                I(f"ds_read_b128 v[{TF+4*(ks&3)}:{TF+4*(ks&3)+3}], v{TA+(ks&3)} offset:{t*16384 + (ks>>2)*256}")
            for ks in range(4): rd(ks)
            for ks in range(16):
                jp, blk = ks >> 2, 2 * h + ((ks >> 1) & 1)
                p, i, s = path_of(jp, blk)
                f = p * 2 + (ks & 1)
                I(f"s_waitcnt lgkmcnt({min(3, 15-ks)})")
                g = G + 16 * t + 4 * i
                I(f"v_mfma_f32_16x16x32_bf16 v[{g}:{g+3}], v[{W+4*f}:{W+4*f+3}], v[{TF+4*(ks&3)}:{TF+4*(ks&3)+3}], v[{g}:{g+3}]")
                if ks + 4 < 16: rd(ks + 4)
            if h == 0:
                I(f"v_mov_b32 v{TF}, 0")
                I(f"v_mov_b32 v{TF+1}, 1")
                I("s_mov_b64 exec, 1")
                I(f"ds_add_u32 v{TF}, v{TF+1} offset:{GDONE + 4*t}")
                I("s_mov_b64 exec, -1")
                if t == c.pf2b_tile:
                    if c.pf2b_lines:
                        I("s_lshl_b32 s42, s21, 6")
                        I(f"v_lshrrev_b32 v{TF+3}, 2, v{X0}")
                        I(f"v_add_u32 v{TF+3}, s42, v{TF+3}")
                    prefetch_x(e, c, c.pf2b_lines, TF + 4, TF + 3, 256, 31, 1, 4, "q")
                    if c.pf2b_lines: I("s_waitcnt vmcnt(0)")
            else:
                I("s_cmp_eq_u32 s24, 0")
                e.branch(f"s_cbranch_scc1 L2_nofin{t}")
                g = G + 16 * t
                I("s_mov_b32 s42, 0xbfb8aa3b")
                for r in range(4): I(f"v_mul_f32 v{TF+r}, s42, v{g+r}")
                for r in range(4): I(f"v_exp_f32 v{TF+r}, v{TF+r}")
                for r in range(4): I(f"v_add_f32 v{TF+r}, 1.0, v{TF+r}")
                for r in range(4): I(f"v_rcp_f32 v{TF+r}, v{TF+r}")
                for i in range(1, 4):
                    for r in range(4): I(f"v_mul_f32 v{g+4*i+r}, v{g+4*i+r}, v{TF+r}")
                for i in range(4):
                    I(f"v_cvt_pk_bf16_f32 v{TF+4+2*i}, v{g+4*i}, v{g+4*i+1}")
                    I(f"v_cvt_pk_bf16_f32 v{TF+5+2*i}, v{g+4*i+2}, v{g+4*i+3}")
                I(f"s_mov_b32 s42, {t*16*512}")
                if t == 3: I("s_mov_b64 exec, s[50:51]")
                for i in range(4):
                    I(f"buffer_store_dwordx2 v[{TF+4+2*i}:{TF+5+2*i}], v{X1}, s[12:15], s42 offen offset:{i*128} {c.out_flags}")
                if t == 3: I("s_mov_b64 exec, -1")
                e.label(f"L2_nofin{t}")
    stamp(e, c, 5)
    I("s_cmp_lg_u32 s24, 0")
    e.branch("s_cbranch_scc1 L2_m_exit")
    I("s_waitcnt lgkmcnt(0)")
    I("s_barrier")
    I("s_add_u32 s22, s22, 1")
    I(f"s_cmp_eq_u32 s22, {NCH-1}")
    I("s_cselect_b32 s24, 1, 0")
    e.branch("s_branch L2_m_round")
    e.label("L2_m_overflow")
    I("s_mov_b32 s22, 0")
    I("s_mov_b32 s23, 1")
    I("s_mov_b32 s24, 0")
    I("s_barrier")
    e.branch("s_branch L2_m_round")
    e.label("L2_m_exit")
    if c.stamps:
        I("s_waitcnt vmcnt(0)")
        stamp(e, c, 6)
        stamp_store(e, c, 8, 1, TF)
    e.label("L2_end")
    I("s_endpgm")
    return name, 128, 96

HEADER = """; equiformer tensor-product message passing: bin edges by destination (eqsort), then per bin of 50 nodes
"""

def generate(c):
    e = Emitter()
    e.raw('.amdgcn_target "amdgcn-amd-amdhsa--gfx950"')
    e.raw(".text")
    k1 = gen_k1(e, c)
    k2 = gen_k2(e, c)
    head = HEADER
    dk = ""
    if c.dummy:
        kernel_header(e, "eqdummy_kernel")
        e.I("s_endpgm")
        dk = ".p2align 6\n" + kd("eqdummy_kernel", 8, 16)
    if c.dummy == 2: head += "; @launch kernel=eqdummy_kernel grid=(1,1,1) block=(64,1,1) lds=0\n"
    head += f"; @launch kernel={k1[0]} grid=(256,1,1) block=(1024,1,1) lds={K1_LDS}\n"
    head += f"; @launch kernel={k2[0]} grid=(250,1,1) block=(1024,1,1) lds={c.k2_lds}\n"
    if c.dummy == 1: head += "; @launch kernel=eqdummy_kernel grid=(1,1,1) block=(64,1,1) lds=0\n"
    tail = '.section .rodata,"a"\n.p2align 6\n' + kd(*k1) + ".p2align 6\n" + kd(*k2) + dk
    return head + e.text() + tail

if __name__ == "__main__":
    c = Cfg()
    out = sys.argv[1]
    for kv in sys.argv[2:]:
        k, v = kv.split("=", 1)
        old = getattr(c, k)
        setattr(c, k, type(old)(int(v)) if isinstance(old, (bool, int)) else v.replace("+", " "))
    open(out, "w").write(generate(c))
```

```python
import sys
from emit import Emitter

N, E = 12500, 800000
NB, NODES = 250, 50
NCH, CH = 250, 3200
CSTRIDE = 55424
KEYOFF, TABOFF = 51200, 54400
WFOFF = NCH * CSTRIDE
WSBYTES = WFOFF + 40960

class Cfg:
    pf1_lines = 0
    pf1_pos = "late"
    st_flags = ""
    ld_flags = ""
    rec_flags = ""
    out_flags = ""
    pf2_lines = 0
    pf2b_lines = 0
    pf2b_tile = 2
    stamps = False
    cap = 3584
    x_noperm = 0
    x_noexp = 0
    x_nomfma = 0
    x_noload = 0
    x_samehalf = 0
    dbgstamps = 0
    probe = ""
    dummy = 0

def srd(e, d, b, nbytes):
    e.I(f"s_mov_b32 s{d}, s{b}")
    e.I(f"s_mov_b32 s{d+1}, s{b+1}")
    e.I(f"s_mov_b32 s{d+2}, {nbytes}")
    e.I(f"s_mov_b32 s{d+3}, 0x20000")

def scan64(e, v):
    for sh in (1, 2, 4, 8):
        e.I(f"v_add_u32_dpp v{v}, v{v}, v{v} row_shr:{sh} row_mask:0xf bank_mask:0xf")
    e.I(f"v_add_u32_dpp v{v}, v{v}, v{v} row_bcast:15 row_mask:0xa bank_mask:0xf")
    e.I(f"v_add_u32_dpp v{v}, v{v}, v{v} row_bcast:31 row_mask:0xc bank_mask:0xf")

def prefetch_x(e, c, nlines, vt, vtid, nthreads, slice_s, half, srdx, tag):
    if nlines <= 0: return
    e.I(f"s_mul_i32 s46, s{slice_s}, 782")
    it = (nlines + nthreads - 1) // nthreads
    for k in range(it):
        e.I(f"v_add_u32 v{vt}, {k*nthreads}, v{vtid}")
        lim = nlines
        e.I(f"v_cmp_gt_u32 vcc, {lim}, v{vt}" if lim <= 64 else f"s_mov_b32 s47, {lim}")
        if lim > 64: e.I(f"v_cmp_gt_u32 vcc, s47, v{vt}")
        e.I(f"v_add_u32 v{vt}, s46, v{vt}")
        e.I(f"v_and_b32 v{vt+1}, 1, v{vt}")
        e.I(f"v_lshrrev_b32 v{vt}, 1, v{vt}")
        e.I(f"v_lshlrev_b32 v{vt}, 9, v{vt}")
        e.I(f"v_lshl_add_u32 v{vt}, v{vt+1}, 7, v{vt}")
        e.I(f"v_cndmask_b32 v{vt}, 2.0, v{vt}, vcc")
        e.I(f"buffer_load_dword v{vt+2}, v{vt}, s[{srdx}:{srdx+3}], 0 offen offset:{half*256}")

def stamp(e, c, slot, tmp_s=90):
    if not c.stamps: return
    e.I(f"s_memrealtime s[{tmp_s}:{tmp_s+1}]")
    e.I("s_waitcnt lgkmcnt(0)")
    e.I(f"v_writelane_b32 v{c.stampv}, s{tmp_s}, {slot}")

def stamp_store(e, c, srdws, kid, vtmp, role=0):
    if not c.stamps: return
    if c.dbgstamps:
        e.I("s_load_dwordx2 s[92:93], s[0:1], 80")
        e.I("s_waitcnt lgkmcnt(0)")
        if not kid: e.I("s_add_u32 s92, s92, 512"); e.I("s_addc_u32 s93, s93, 0")
        e.I("s_mov_b32 s88, s92"); e.I("s_mov_b32 s89, s93"); e.I("s_mov_b32 s90, 64"); e.I("s_mov_b32 s91, 0x20000")
        e.I(f"v_readlane_b32 s94, v{c.stampv}, 0")
        e.I("s_nop 4")
        e.I("s_not_b32 s94, s94")
        e.I(f"v_writelane_b32 v{c.stampv}, s94, 7")
        e.I(f"v_and_b32 v{vtmp+1}, 63, v{c.tidv}")
        e.I(f"v_lshlrev_b32 v{vtmp}, 2, v{vtmp+1}")
        e.I(f"v_and_b32 v{vtmp+1}, 0x2ff, v{c.tidv}")
        e.I(f"v_cmp_gt_u32 vcc, 8, v{vtmp+1}")
        e.I(f"v_cndmask_b32 v{vtmp}, 2.0, v{vtmp}, vcc")
        e.I(f"buffer_atomic_umax v{c.stampv}, v{vtmp}, s[88:91], 0 offen offset:{kid*32}")
        return
    e.I(f"v_lshrrev_b32 v{vtmp}, 6, v{c.tidv}")
    e.I(f"s_lshl_b32 s90, s2, 4")
    e.I(f"v_add_u32 v{vtmp}, s90, v{vtmp}")
    e.I(f"v_lshlrev_b32 v{vtmp}, 6, v{vtmp}")
    e.I(f"v_and_b32 v{vtmp+1}, 63, v{c.tidv}")
    e.I(f"v_lshl_add_u32 v{vtmp}, v{vtmp+1}, 2, v{vtmp}")
    e.I(f"v_cmp_gt_u32 vcc, 16, v{vtmp+1}")
    e.I(f"v_cndmask_b32 v{vtmp}, 2.0, v{vtmp}, vcc")
    e.I(f"s_mov_b32 s90, {(16+kid) << 20}")
    e.I(f"buffer_store_dword v{c.stampv}, v{vtmp}, s[{srdws}:{srdws+3}], s90 offen")

def kernel_header(e, name):
    e.raw(f".globl {name}")
    e.raw(".p2align 8")
    e.raw(f".type {name},@function")
    e.raw(f"{name}:")
    e.hist = []

def kd(name, nv, ns):
    return f""".amdhsa_kernel {name}
  .amdhsa_next_free_vgpr {nv}
  .amdhsa_next_free_sgpr {ns}
  .amdhsa_accum_offset {(nv+3)//4*4}
  .amdhsa_group_segment_fixed_size 0
  .amdhsa_kernarg_size 96
  .amdhsa_user_sgpr_count 2
  .amdhsa_user_sgpr_kernarg_segment_ptr 1
  .amdhsa_system_sgpr_workgroup_id_x 1
  .amdhsa_float_denorm_mode_32 3
.end_amdhsa_kernel
"""

K1_HIST = 55424
K1_BASE = K1_HIST + 1024
K1_LDS = K1_BASE + 1024

def gen_k1(e, c):
    name = "eqsort_kernel"
    kernel_header(e, name)
    c.stampv, c.tidv = 60, 0
    I = e.I
    wsbytes = (32 << 20) if c.stamps else WSBYTES
    I("s_cmp_ge_u32 s2, 256")
    I("s_cbranch_scc1 L1_end")
    if c.stamps: I("v_mov_b32 v60, 0")
    stamp(e, c, 0)
    I("s_load_dwordx4 s[4:7], s[0:1], 0")
    I("s_load_dwordx4 s[8:11], s[0:1], 16")
    I("s_load_dwordx2 s[12:13], s[0:1], 32")
    I("s_load_dwordx4 s[16:19], s[0:1], 48")
    I("s_load_dwordx2 s[14:15], s[0:1], 88")
    I("v_lshlrev_b32 v1, 4, v0")
    I("v_lshlrev_b32 v2, 5, v0")
    I("v_mul_u32_u24 v3, 24, v0")
    I("v_lshlrev_b32 v40, 2, v0")
    I("v_mov_b32 v41, 0")
    I("v_mov_b32 v42, 1")
    I("s_mul_i32 s44, s2, 12800")
    I("s_mul_i32 s45, s2, 25600")
    I("s_mul_i32 s50, s2, 19200")
    I(f"s_mul_i32 s51, s2, {CSTRIDE}")
    I("s_lshr_b32 s52, s2, 3")
    I("s_mov_b32 s53, -50")
    I("s_movk_i32 s54, 800")
    I("v_readfirstlane_b32 s55, v0")
    I("s_lshr_b32 s55, s55, 6")
    I("v_subrev_u32 v50, 832, v0")
    I("s_waitcnt lgkmcnt(0)")
    srd(e, 20, 4, N * 512)
    srd(e, 24, 6, E * 6)
    srd(e, 28, 8, E * 8)
    srd(e, 32, 10, E * 4)
    srd(e, 36, 12, E * 4)
    srd(e, 40, 14, wsbytes)
    I("s_cmp_ge_u32 s2, 250")
    e.branch("s_cbranch_scc1 L1_helper")
    I("s_cmp_ge_u32 s55, 13")
    e.branch("s_cbranch_scc1 L1_idle0")
    I("v_cmp_gt_u32 vcc, s54, v0")
    I("s_and_saveexec_b64 s[48:49], vcc")
    lf = c.ld_flags
    I(f"buffer_load_dwordx4 v[4:7], v1, s[36:39], s44 offen {lf}")
    I(f"buffer_load_dwordx4 v[8:11], v1, s[32:35], s44 offen {lf}")
    I(f"buffer_load_dwordx4 v[12:15], v2, s[28:31], s45 offen {lf}")
    I(f"buffer_load_dwordx4 v[16:19], v2, s[28:31], s45 offen offset:16 {lf}")
    I(f"buffer_load_dwordx4 v[20:23], v3, s[24:27], s50 offen {lf}")
    I(f"buffer_load_dwordx2 v[24:25], v3, s[24:27], s50 offen offset:16 {lf}")
    I("s_mov_b64 exec, s[48:49]")
    I("s_cmp_ge_u32 s55, 4")
    e.branch("s_cbranch_scc1 L1_nz")
    I(f"ds_write_b32 v40, v41 offset:{K1_HIST}")
    I("s_waitcnt lgkmcnt(0)")
    e.label("L1_nz")
    I("s_barrier")
    I("s_and_b64 exec, exec, vcc")
    I("s_waitcnt vmcnt(5)")
    stamp(e, c, 1)
    for i in range(4):
        I(f"v_mul_u32_u24 v{44+i}, 0x147b, v{4+i}")
    for i in range(4):
        I(f"v_lshrrev_b32 v{44+i}, 18, v{44+i}")
    for i in range(4):
        I(f"v_mad_i32_i24 v{4+i}, v{44+i}, s53, v{4+i}")
        I(f"v_lshlrev_b32 v{44+i}, 2, v{44+i}")
    for i in range(4):
        I(f"ds_add_rtn_u32 v{36+i}, v{44+i}, v42 offset:{K1_HIST}")
    I("s_waitcnt lgkmcnt(0)")
    I("s_barrier")
    I("s_cmp_lg_u32 s55, 0")
    e.branch("s_cbranch_scc1 L1_noscan")
    I(f"ds_read_b128 v[52:55], v1 offset:{K1_HIST}")
    I("s_waitcnt lgkmcnt(0)")
    I("v_add_u32 v56, v52, v53")
    I("v_add_u32 v57, v56, v54")
    I("v_add_u32 v58, v57, v55")
    I("v_mov_b32 v59, v58")
    scan64(e, 59)
    I("v_sub_u32 v59, v59, v58")
    I("v_add_u32 v28, v59, v52")
    I("v_add_u32 v29, v59, v56")
    I("v_add_u32 v30, v59, v57")
    I("v_mov_b32 v32, v59"); I("v_mov_b32 v33, v28"); I("v_mov_b32 v34, v29"); I("v_mov_b32 v35, v30")
    I(f"ds_write_b128 v1, v[32:35] offset:{K1_BASE}")
    I("v_lshl_or_b32 v52, v52, 16, v59")
    I("v_lshl_or_b32 v53, v53, 16, v28")
    I("v_lshl_or_b32 v54, v54, 16, v29")
    I("v_lshl_or_b32 v55, v55, 16, v30")
    I(f"ds_write_b128 v1, v[52:55] offset:{TABOFF}")
    I("s_waitcnt lgkmcnt(0)")
    e.label("L1_noscan")
    I("s_barrier")
    for i in range(4):
        I(f"ds_read_b32 v{44+i}, v{44+i} offset:{K1_BASE}")
    I("s_mov_b32 s56, 0x05040100")
    I("s_mov_b32 s57, 0x05040302")
    I("s_waitcnt vmcnt(0)")
    stamp(e, c, 2)
    I("v_mov_b32 v28, v20")
    I("v_perm_b32 v29, v8, v21, s56")
    I("v_alignbit_b32 v30, v22, v21, 16")
    I("v_perm_b32 v31, v9, v22, s57")
    I("v_mov_b32 v32, v23")
    I("v_perm_b32 v33, v10, v24, s56")
    I("v_alignbit_b32 v34, v25, v24, 16")
    I("v_perm_b32 v35, v11, v25, s57")
    I("s_waitcnt lgkmcnt(0)")
    for i in range(4):
        I(f"v_add_u32 v{36+i}, v{36+i}, v{44+i}")
        I(f"v_lshlrev_b32 v{44+i}, 4, v{36+i}")
    for i in range(4):
        I(f"ds_write2_b64 v{44+i}, v[{12+2*i}:{13+2*i}], v[{28+2*i}:{29+2*i}] offset0:0 offset1:1")
        I(f"ds_write_b8 v{36+i}, v{4+i} offset:{KEYOFF}")
    I("s_mov_b64 exec, -1")
    I("s_waitcnt lgkmcnt(0)")
    e.branch("s_branch L1_copy")
    e.label("L1_idle0")
    if c.pf1_pos == "early": prefetch_x(e, c, c.pf1_lines, 4, 50, 192, 52, 0, 20, "a")
    I("s_barrier"); I("s_barrier")
    if c.pf1_pos == "mid": prefetch_x(e, c, c.pf1_lines, 4, 50, 192, 52, 0, 20, "a")
    I("s_barrier")
    if c.pf1_pos == "late": prefetch_x(e, c, c.pf1_lines, 4, 50, 192, 52, 0, 20, "a")
    e.flush()
    e.label("L1_copy")
    I("s_barrier")
    stamp(e, c, 3)
    I("ds_read_b128 v[8:11], v1")
    I("ds_read_b128 v[12:15], v1 offset:16384")
    I("ds_read_b128 v[16:19], v1 offset:32768")
    I("ds_read_b128 v[20:23], v1 offset:49152")
    I("v_add_u32 v2, 16384, v1")
    I("v_add_u32 v3, 32768, v1")
    I("v_add_u32 v24, 49152, v1")
    I("s_movk_i32 s54, 392")
    I("v_cmp_gt_u32 vcc, s54, v0")
    sf = c.st_flags
    I("s_waitcnt lgkmcnt(3)")
    I(f"buffer_store_dwordx4 v[8:11], v1, s[40:43], s51 offen {sf}")
    I("s_waitcnt lgkmcnt(2)")
    I(f"buffer_store_dwordx4 v[12:15], v2, s[40:43], s51 offen {sf}")
    I("s_waitcnt lgkmcnt(1)")
    I(f"buffer_store_dwordx4 v[16:19], v3, s[40:43], s51 offen {sf}")
    I("s_and_saveexec_b64 s[48:49], vcc")
    e.branch("s_cbranch_execz L1_st_done")
    I("s_waitcnt lgkmcnt(0)")
    I(f"buffer_store_dwordx4 v[20:23], v24, s[40:43], s51 offen {sf}")
    e.label("L1_st_done")
    I("s_mov_b64 exec, -1")
    if c.stamps:
        stamp(e, c, 4)
        I("s_waitcnt vmcnt(0)")
        stamp(e, c, 5)
        stamp_store(e, c, 40, 0, 26)
    I("s_endpgm")
    e.label("L1_helper")
    I("s_cmp_lt_u32 s55, 13")
    e.branch("s_cbranch_scc1 L1_h_w")
    prefetch_x(e, c, c.pf1_lines, 4, 50, 192, 52, 0, 20, "h")
    I("s_waitcnt vmcnt(0)")
    I("s_endpgm")
    e.label("L1_h_w")
    I("s_sub_u32 s44, s2, 250")
    I("s_mul_i32 s44, s44, 13")
    I("s_add_u32 s44, s44, s55")
    I("s_cmp_ge_u32 s44, 40")
    e.branch("s_cbranch_scc1 L1_end")
    I("s_and_b32 s45, s44, 3")
    I("s_lshr_b32 s46, s44, 2")
    I("s_cmp_lt_u32 s46, 4")
    I("s_cselect_b32 s24, s16, s18")
    I("s_cselect_b32 s25, s17, s19")
    I("s_movk_i32 s26, 24576")
    I("s_cselect_b32 s26, 16384, s26")
    I("s_cselect_b32 s47, 0, 4")
    I("s_mov_b32 s27, 0x20000")
    I("s_sub_u32 s46, s46, s47")
    I("s_lshl_b32 s46, s46, 12")
    I("s_lshl_b32 s45, s45, 5")
    I("s_add_u32 s46, s46, s45")
    I("v_and_b32 v4, 63, v0")
    I("v_lshrrev_b32 v5, 4, v4")
    I("v_and_b32 v6, 15, v4")
    I("v_lshlrev_b32 v5, 10, v5")
    I("v_lshl_add_u32 v5, v6, 1, v5")
    for q in range(8):
        I(f"buffer_load_ushort v{12+q}, v5, s[24:27], s46 offen offset:{q*128}")
    I("v_lshlrev_b32 v4, 4, v4")
    I("s_lshl_b32 s44, s44, 10")
    I(f"s_add_u32 s44, s44, {WFOFF}")
    I("s_waitcnt vmcnt(0)")
    for k in range(4):
        I(f"v_lshl_or_b32 v{8+k}, v{13+2*k}, 16, v{12+2*k}")
    I("buffer_store_dwordx4 v[8:11], v4, s[40:43], s44 offen")
    e.label("L1_end")
    I("s_endpgm")
    return name, 64, 96

def path_of(jp, blk):
    if blk == 0: return (0, 0, 1) if jp == 0 else (2, jp, 1)
    k = blk - 1
    if jp == 0: return (3, 1 + k, 1)
    j = jp - 1
    if j == k: return (1, 0, 1)
    i = 3 - j - k
    return (4, 1 + i, 1 if k == (j + 1) % 3 else -1)

def gen_k2(e, c):
    name = "eqmain_kernel"
    CAP = c.cap
    HIST = 0
    RAW = 1024
    T = (RAW + CAP * 16 + 512 + 1023) // 1024 * 1024
    WRAD = T + NODES * 1024
    SCR = WRAD + 16384
    HIST2, CUR2, CNT = HIST + 256, HIST + 512, HIST + 768
    NEXT, DONE, GDONE = CNT, CNT + 16, CNT + 64
    lds = SCR + 12 * 1024
    lds = max(lds, T + 64 * 1024)
    c.k2_lds = lds
    kernel_header(e, name)
    I = e.I
    wsbytes = (32 << 20) if c.stamps else WSBYTES
    c.stampv, c.tidv = 127, 126
    I("s_cmp_ge_u32 s2, 250")
    I("s_cbranch_scc1 L2_end")
    if c.stamps:
        I("v_mov_b32 v127, 0")
        I("v_mov_b32 v126, v0")
    stamp(e, c, 0)
    I("s_load_dwordx2 s[42:43], s[0:1], 0")
    I("s_load_dwordx2 s[44:45], s[0:1], 40")
    I("s_load_dwordx2 s[46:47], s[0:1], 72")
    I("s_load_dwordx2 s[48:49], s[0:1], 88")
    I("s_and_b32 s20, s2, 7")
    I("s_min_u32 s21, s20, 2")
    I("s_mul_i32 s20, s20, 31")
    I("s_add_u32 s20, s20, s21")
    I("s_lshr_b32 s31, s2, 3")
    I("s_add_u32 s20, s20, s31")
    I("v_readfirstlane_b32 s21, v0")
    I("s_lshr_b32 s21, s21, 6")
    I("s_mov_b32 s22, 0")
    I("s_movk_i32 s23, 250")
    I("s_mov_b32 s24, 1")
    I("s_mov_b32 s26, 0xaaaaaaaa")
    I("s_mov_b32 s27, 0xaaaaaaaa")
    I("s_mov_b32 s28, 0x05040100")
    I("s_mov_b32 s29, 0x07060302")
    I("s_mov_b32 s30, 0xffff0000")
    I("s_waitcnt lgkmcnt(0)")
    srd(e, 4, 42, N * 512)
    srd(e, 8, 48, wsbytes)
    srd(e, 12, 46, N * 512)
    srd(e, 16, 44, 2560)
    I("s_cmp_lt_u32 s21, 4")
    e.branch("s_cbranch_scc1 L2_gemm")

    VLANE, VINFO, VNEXT = 108, 109, 110
    VLOFF, VSRCC, VRAWC, VSLOT, VSCRW, VTRA, VWR, VL16 = 111, 112, 113, 114, 115, 116, 117, 118
    VT0, VT1, VONE, VZERO = 119, 120, 121, 122
    VJ, VCH, VSEG = 123, 124, 125
    I(f"v_and_b32 v{VLANE}, 63, v0")
    I(f"v_subrev_u32 v{VT0}, 256, v0")
    I(f"v_and_b32 v{VJ}, 15, v{VT0}")
    I(f"v_lshrrev_b32 v{VSEG}, 4, v{VT0}")
    I(f"s_mov_b32 s42, {CSTRIDE}")
    I(f"v_mul_u32_u24 v{VCH}, s42, v{VSEG}")
    I(f"v_mov_b32 v{VONE}, 1")
    I(f"v_mov_b32 v{VZERO}, 0")
    I(f"v_and_b32 v{VT0}, 15, v{VLANE}")
    I(f"v_lshlrev_b32 v{VLOFF}, 4, v{VT0}")
    I(f"v_lshrrev_b32 v{VT1}, 4, v{VLANE}")
    I(f"v_lshl_add_u32 v{VSRCC}, v{VT1}, 4, 14")
    I(f"v_lshrrev_b32 v{VSLOT}, 1, v{VLANE}")
    I(f"v_lshlrev_b32 v{VRAWC}, 4, v{VSLOT}")
    I(f"v_lshlrev_b32 v{VL16}, 4, v{VLANE}")
    I("s_sub_u32 s43, s21, 4")
    I("s_lshl_b32 s43, s43, 10")
    I(f"s_add_u32 s43, s43, {SCR}")
    I(f"v_add_u32 v{VSCRW}, s43, v{VL16}")
    I(f"v_lshlrev_b32 v{VTRA}, 5, v{VT1}")
    I(f"v_bfe_u32 v{VT1}, v{VLANE}, 2, 2")
    I(f"v_lshl_add_u32 v{VTRA}, v{VT1}, 7, v{VTRA}")
    I(f"v_and_b32 v{VT1}, 3, v{VLANE}")
    I(f"v_lshl_add_u32 v{VTRA}, v{VT1}, 3, v{VTRA}")
    I(f"v_add_u32 v{VTRA}, s43, v{VTRA}")
    I(f"v_add_u32 v{VWR}, {WRAD}, v{VL16}")

    e.label("L2_g_round")
    PAY, KEY, RNK, TAB, KAD, PAD = 0, 48, 60, 72, 78, 84
    MSK = 50
    rf = c.rec_flags
    I("s_lshl_b32 s42, s20, 2")
    I(f"s_add_u32 s42, s42, {TABOFF}")
    for p in range(6):
        if p == 5:
            I("s_cmp_ge_u32 s21, 7")
            I(f"v_mov_b32 v{TAB+5}, 0")
            e.branch("s_cbranch_scc1 L2_notab5")
        I(f"buffer_load_dword v{TAB+p}, v{VCH}, s[8:11], s42 offen {rf}")
        if p < 5: I(f"s_add_u32 s42, s42, {48*CSTRIDE}")
    e.label("L2_notab5")
    I("s_waitcnt vmcnt(0)")
    stamp(e, c, 1)
    for p in range(6):
        I(f"s_sub_u32 s42, {48*p}, s22")
        I(f"v_add_u32 v{VT0}, s42, v{VSEG}")
        I(f"v_cmp_gt_u32 vcc, s23, v{VT0}")
        I(f"v_and_b32 v{KAD+p}, 0xffff, v{TAB+p}")
        I(f"v_lshrrev_b32 v{TAB+p}, 16, v{TAB+p}")
        I(f"v_cndmask_b32 v{TAB+p}, 0, v{TAB+p}, vcc")
        I(f"v_add_u32 v{KAD+p}, v{KAD+p}, v{VJ}")
        I(f"v_lshl_add_u32 v{PAD+p}, v{KAD+p}, 4, v{VCH}")
        I(f"v_add_u32 v{KAD+p}, v{KAD+p}, v{VCH}")
        I(f"v_cmp_lt_u32 s[{MSK+4*p}:{MSK+4*p+1}], v{VJ}, v{TAB+p}")
        I(f"v_add_u32 v{VT0}, 16, v{VJ}")
        I(f"v_cmp_lt_u32 s[{MSK+4*p+2}:{MSK+4*p+3}], v{VT0}, v{TAB+p}")
        I(f"s_mov_b32 s{74+p}, {48*p*CSTRIDE}")
        I(f"s_mov_b32 s{80+p}, {48*p*CSTRIDE+KEYOFF}")
        I(f"v_cndmask_b32 v{PAD+p}, 2.0, v{PAD+p}, s[{MSK+4*p}:{MSK+4*p+1}]")
    e.flush()
    for p in range(6):
        I(f"s_mov_b64 exec, s[{MSK+4*p+2}:{MSK+4*p+3}]")
        I(f"s_cbranch_execz L2_w1skip{p}")
        I(f"buffer_load_ubyte v{KEY+2*p+1}, v{KAD+p}, s[8:11], s{80+p} offen offset:16 {rf}")
        I(f"buffer_load_dwordx4 v[{PAY+8*p+4}:{PAY+8*p+7}], v{PAD+p}, s[8:11], s{74+p} offen offset:256 {rf}")
        e.label(f"L2_w1skip{p}")
    for p in range(6):
        I(f"s_mov_b64 exec, s[{MSK+4*p}:{MSK+4*p+1}]")
        if p == 5: I("s_cbranch_execz L2_k5skip")
        I(f"buffer_load_ubyte v{KEY+2*p}, v{KAD+p}, s[8:11], s{80+p} offen {rf}")
    e.label("L2_k5skip")
    I("s_mov_b64 exec, -1")
    for p in range(6):
        if p == 5:
            I("s_cmp_ge_u32 s21, 7")
            I("s_cbranch_scc1 L2_p5skip")
        I(f"buffer_load_dwordx4 v[{PAY+8*p}:{PAY+8*p+3}], v{PAD+p}, s[8:11], s{74+p} offen {rf}")
    e.label("L2_p5skip")
    I("s_barrier")
    I("s_waitcnt vmcnt(5)")
    stamp(e, c, 2)
    for k in range(12):
        I(f"v_lshlrev_b32 v{KEY+k}, 2, v{KEY+k}")
    for p in range(6):
        for w in range(2):
            I(f"s_mov_b64 exec, s[{MSK+4*p+2*w}:{MSK+4*p+2*w+1}]")
            I(f"ds_add_rtn_u32 v{RNK+2*p+w}, v{KEY+2*p+w}, v{VONE} offset:{HIST}")
    I("s_mov_b64 exec, -1")
    I(f"v_max3_u32 v{VT0}, v{TAB}, v{TAB+1}, v{TAB+2}")
    I(f"v_max3_u32 v{VT0}, v{VT0}, v{TAB+3}, v{TAB+4}")
    I(f"v_max_u32 v{VT0}, v{VT0}, v{TAB+5}")
    I(f"v_cmp_lt_u32 vcc, 32, v{VT0}")
    I("s_mov_b32 s25, 0")
    e.flush()
    I("s_cmp_eq_u64 vcc, 0")
    I("s_cbranch_scc1 L2_noextraA")
    I("s_mov_b32 s25, 1")
    for p in range(6):
        I(f"v_add_u32 v{VT0}, 32, v{VJ}")
        I(f"v_add_u32 v{VT1}, 32, v{KAD+p}")
        e.label(f"L2_xa{p}")
        I(f"v_cmp_lt_u32 vcc, v{VT0}, v{TAB+p}")
        I("s_and_saveexec_b64 s[44:45], vcc")
        e.branch(f"s_cbranch_execz L2_xa{p}_done")
        I(f"buffer_load_ubyte v90, v{VT1}, s[8:11], s{80+p} offen")
        I("s_waitcnt vmcnt(0)")
        I("v_lshlrev_b32 v90, 2, v90")
        I(f"ds_add_u32 v90, v{VONE} offset:{HIST2}")
        I("s_mov_b64 exec, -1")
        I(f"v_add_u32 v{VT0}, 16, v{VT0}")
        I(f"v_add_u32 v{VT1}, 16, v{VT1}")
        e.branch(f"s_branch L2_xa{p}")
        e.label(f"L2_xa{p}_done")
        I("s_mov_b64 exec, -1")
    e.label("L2_noextraA")
    I("s_waitcnt lgkmcnt(0)")
    I("s_barrier")
    I(f"v_lshlrev_b32 v{VT0}, 2, v{VLANE}")
    I(f"ds_read_b32 v90, v{VT0} offset:{HIST}")
    I(f"ds_read_b32 v91, v{VT0} offset:{HIST2}")
    I("s_waitcnt lgkmcnt(0)")
    I("v_add_u32 v91, v90, v91")
    I("v_mov_b32 v92, v91")
    scan64(e, 92)
    I("v_readlane_b32 s42, v92, 63")
    I("v_sub_u32 v92, v92, v91")
    I(f"v_lshl_or_b32 v{VINFO}, v91, 16, v92")
    e.flush()
    I(f"s_cmp_gt_u32 s42, {CAP}")
    I("s_cbranch_scc1 L2_g_overflow")
    for k in range(12):
        I(f"ds_bpermute_b32 v{KEY+k}, v{KEY+k}, v92")
    I("s_waitcnt vmcnt(0) lgkmcnt(0)")
    stamp(e, c, 3)
    for k in range(12):
        I(f"v_add_lshl_u32 v{KEY+k}, v{KEY+k}, v{RNK+k}, 4")
    for p in range(6):
        for w in range(2):
            I(f"s_mov_b64 exec, s[{MSK+4*p+2*w}:{MSK+4*p+2*w+1}]")
            I(f"ds_write_b128 v{KEY+2*p+w}, v[{PAY+8*p+4*w}:{PAY+8*p+4*w+3}] offset:{RAW}")
    I("s_mov_b64 exec, -1")
    I("s_cmp_eq_u32 s25, 0")
    I("s_cbranch_scc1 L2_noextraB")
    I("v_add_u32 v92, v92, v90")
    for p in range(6):
        I(f"v_add_u32 v{VT0}, 32, v{VJ}")
        I(f"v_add_u32 v{VT1}, 32, v{KAD+p}")
        I(f"v_add_u32 v93, 512, v{PAD+p}")
        e.label(f"L2_xb{p}")
        I(f"v_cmp_lt_u32 vcc, v{VT0}, v{TAB+p}")
        I("s_and_saveexec_b64 s[44:45], vcc")
        e.branch(f"s_cbranch_execz L2_xb{p}_done")
        I(f"buffer_load_ubyte v94, v{VT1}, s[8:11], s{80+p} offen")
        I(f"buffer_load_dwordx4 v[96:99], v93, s[8:11], s{74+p} offen")
        I("s_waitcnt vmcnt(0)")
        I("v_lshlrev_b32 v94, 2, v94")
        I(f"ds_add_rtn_u32 v95, v94, v{VONE} offset:{CUR2}")
        I("s_mov_b64 exec, -1")
        I("ds_bpermute_b32 v94, v94, v92")
        I("s_waitcnt lgkmcnt(0)")
        I("v_add_lshl_u32 v94, v94, v95, 4")
        I("s_mov_b64 exec, vcc")
        I(f"ds_write_b128 v94, v[96:99] offset:{RAW}")
        I("s_mov_b64 exec, -1")
        I(f"v_add_u32 v{VT0}, 16, v{VT0}")
        I(f"v_add_u32 v{VT1}, 16, v{VT1}")
        I("v_add_u32 v93, 256, v93")
        e.branch(f"s_branch L2_xb{p}")
        e.label(f"L2_xb{p}_done")
        I("s_mov_b64 exec, -1")
    e.label("L2_noextraB")
    ACC, LD, B, A, AD = 0, 32, 64, 96, 100
    for k in range(32):
        I(f"v_mov_b32 v{LD+k}, 0")
    I("s_waitcnt lgkmcnt(0)")
    I("s_barrier")
    stamp(e, c, 4)

    sNA, sNR, sNH, sNN, sNF, sNV = 32, 33, 34, 35, 36, 37
    sCN, sCH, sCF, sCL = 38, 39, 40, 41

    def fetch_issue():
        I("s_mov_b64 exec, 1")
        I(f"ds_add_rtn_u32 v{VNEXT}, v{VZERO}, v{VONE} offset:{NEXT}")
        I("s_mov_b64 exec, -1")
    def setup_item(tag):
        I(f"v_readfirstlane_b32 s42, v{VNEXT}")
        I(f"s_mov_b32 s{sNV}, 0")
        e.flush()
        I(f"s_cmp_ge_u32 s42, {2*NODES}")
        I(f"s_cbranch_scc1 L2_noitem{tag}")
        I(f"s_cmp_ge_u32 s42, {NODES}")
        I(f"s_cselect_b32 s{sNH}, 256, 0")
        I(f"s_cselect_b32 s43, {NODES}, 0")
        I(f"s_sub_u32 s{sNN}, s42, s43")
        I(f"v_readlane_b32 s42, v{VINFO}, s{sNN}")
        I(f"s_mov_b32 s{sNV}, 1")
        I(f"s_mov_b32 s{sNF}, 1")
        e.flush()
        I(f"s_lshr_b32 s{sNR}, s42, 16")
        I("s_and_b32 s42, s42, 0xffff")
        I(f"s_lshl_b32 s{sNA}, s42, 4")
        e.label(f"L2_noitem{tag}")
    def prep_reads(tag):
        I(f"v_add_u32 v{VT0}, s{sNA}, v{VSRCC}")
        I(f"v_add_u32 v{VT1}, s{sNA}, v{VRAWC}")
        for i in range(8):
            I(f"ds_read_u16 v{AD+i}, v{VT0} offset:{RAW+64*i}")
        I(f"ds_read_b128 v[{B}:{B+3}], v{VT1} offset:{RAW}")
        I(f"s_cmp_gt_u32 s{sNR}, 32")
        I(f"s_cbranch_scc1 L2_nofetch{tag}")
        fetch_issue()
        e.label(f"L2_nofetch{tag}")
    def prep_compute():
        for i in range(8):
            I(f"v_lshl_add_u32 v{AD+i}, v{AD+i}, 9, v{VLOFF}")
        r = B
        if c.x_noexp:
            I(f"ds_write_b128 v{VSCRW}, v[{r+20}:{r+23}]")
            return
        I(f"v_cmp_gt_u32 vcc, s{sNR}, v{VSLOT}")
        I(f"v_lshlrev_b32 v{r+4}, 16, v{r}")
        I(f"v_and_b32 v{r+5}, s30, v{r}")
        I(f"v_lshlrev_b32 v{r+6}, 16, v{r+1}")
        I(f"v_and_b32 v{r+7}, s30, v{r+1}")
        I(f"v_and_b32 v{r+8}, s30, v{r+2}")
        I(f"v_cndmask_b32 v{r+10}, v{r+2}, v{r+3}, s[26:27]")
        I(f"v_cndmask_b32 v{r+8}, 1.0, v{r+8}, s[26:27]")
        I(f"v_lshlrev_b32 v{r+10}, 16, v{r+10}")
        for k in range(4):
            I(f"v_mul_f32 v{r+12+k}, v{r+4+k}, v{r+8}")
        for k in range(4):
            I(f"v_mul_f32 v{r+16+k}, v{r+4+k}, v{r+10}")
        for k in range(4):
            I(f"v_cvt_pk_bf16_f32 v{r+20+k}, v{r+12+2*k}, v{r+13+2*k}")
        for k in range(4):
            I(f"v_cndmask_b32 v{r+20+k}, 0, v{r+20+k}, vcc")
        I(f"ds_write_b128 v{VSCRW}, v[{r+20}:{r+23}]")
    def issue_loads(tag):
        def ld(i):
            if c.x_noload: return
            I(f"buffer_load_dwordx4 v[{LD+4*i}:{LD+4*i+3}], v{AD+i}, s[4:7], {'0' if c.x_samehalf else 's%d' % sNH} offen")
        I(f"s_cmp_gt_u32 s{sNR}, 28")
        I(f"s_cbranch_scc1 L2_ldfull{tag}")
        for i in range(7):
            I(f"s_cmp_le_u32 s{sNR}, {4*i}")
            I(f"s_cbranch_scc1 L2_lddone{tag}")
            ld(i)
        I(f"s_branch L2_lddone{tag}")
        e.label(f"L2_ldfull{tag}")
        for i in range(8): ld(i)
        e.label(f"L2_lddone{tag}")

    fetch_issue()
    I("s_waitcnt lgkmcnt(0)")
    setup_item("0")
    I(f"s_cmp_eq_u32 s{sNV}, 0")
    I("s_cbranch_scc1 L2_g_done")
    prep_reads("0")
    I("s_waitcnt lgkmcnt(0)")
    prep_compute()
    issue_loads("0")
    e.label("L2_loop")
    I(f"s_mov_b32 s{sCN}, s{sNN}")
    I(f"s_mov_b32 s{sCH}, s{sNH}")
    I(f"s_mov_b32 s{sCF}, s{sNF}")
    I(f"ds_read_b64_tr_b16 v[{A}:{A+1}], v{VTRA}")
    I(f"ds_read_b64_tr_b16 v[{A+2}:{A+3}], v{VTRA} offset:512")
    I(f"s_cmp_gt_u32 s{sNR}, 32")
    I("s_cbranch_scc0 L2_adv_item")
    I(f"s_mov_b32 s{sCL}, 0")
    I(f"s_sub_u32 s{sNR}, s{sNR}, 32")
    I(f"s_add_u32 s{sNA}, s{sNA}, 512")
    I(f"s_mov_b32 s{sNF}, 0")
    I("s_branch L2_adv_done")
    e.label("L2_adv_item")
    I(f"s_mov_b32 s{sCL}, 1")
    setup_item("1")
    I(f"s_cmp_eq_u32 s{sNV}, 0")
    I("s_cbranch_scc1 L2_noprep")
    e.label("L2_adv_done")
    prep_reads("1")
    I("s_waitcnt lgkmcnt(0)")
    prep_compute()
    e.label("L2_noprep")
    I("s_waitcnt vmcnt(0)")
    for q in range(8):
        for jj in range(4):
            if c.x_noperm: continue
            I(f"v_perm_b32 v{B+4*q+jj}, v{LD+4*(2*jj+1)+q//2}, v{LD+4*(2*jj)+q//2}, s{29 if q & 1 else 28}")
    I(f"s_cmp_eq_u32 s{sNV}, 0")
    I("s_cbranch_scc1 L2_noload")
    issue_loads("1")
    e.label("L2_noload")
    I("s_waitcnt lgkmcnt(0)")
    I(f"s_cmp_eq_u32 s{sCF}, 0")
    I("s_cbranch_scc1 L2_mf_acc")
    for q in range(8):
        if c.x_nomfma: continue
        I(f"v_mfma_f32_16x16x32_bf16 v[{ACC+4*q}:{ACC+4*q+3}], v[{A}:{A+3}], v[{B+4*q}:{B+4*q+3}], 0")
    I("s_branch L2_mf_done")
    e.label("L2_mf_acc")
    for q in range(8):
        if c.x_nomfma: continue
        I(f"v_mfma_f32_16x16x32_bf16 v[{ACC+4*q}:{ACC+4*q+3}], v[{A}:{A+3}], v[{B+4*q}:{B+4*q+3}], v[{ACC+4*q}:{ACC+4*q+3}]")
    e.label("L2_mf_done")
    I(f"s_cmp_eq_u32 s{sCL}, 0")
    I("s_cbranch_scc1 L2_loop")
    I(f"s_lshl_b32 s42, s{sCH}, 5")
    I(f"v_add_u32 v{VT0}, s42, v{VWR}")
    for q in range(8):
        I(f"ds_read_b128 v[{B+4*q}:{B+4*q+3}], v{VT0} offset:{q*1024}")
    I(f"s_lshr_b32 s43, s{sCN}, 4")
    I(f"s_lshl_b32 s43, s43, 2")
    I(f"s_cmp_eq_u32 s{sCH}, 0")
    I("s_cbranch_scc1 L2_nowar")
    I(f"v_mov_b32 v{VT1}, s43")
    I("s_mov_b32 s45, 0")
    e.label("L2_war")
    I(f"ds_read_b32 v{VT0}, v{VT1} offset:{GDONE}")
    I("s_waitcnt lgkmcnt(0)")
    I(f"v_readfirstlane_b32 s44, v{VT0}")
    e.flush()
    I("s_cmp_ge_u32 s44, 4")
    I("s_cbranch_scc1 L2_war_ok")
    I("s_add_u32 s45, s45, 1")
    I("s_cmp_lt_u32 s45, 0x400000")
    I("s_cbranch_scc1 L2_war")
    e.label("L2_war_ok")
    I("s_add_u32 s43, s43, 16")
    e.label("L2_nowar")
    I(f"s_and_b32 s44, s{sCN}, 15")
    I("s_lshl_b32 s44, s44, 4")
    I(f"s_lshl_b32 s45, s{sCN}, 10")
    I(f"s_add_u32 s45, s45, {T}")
    I(f"v_xor_b32 v{VT0}, s44, v{VL16}")
    I(f"v_add_u32 v{VT0}, s45, v{VT0}")
    I(f"v_mov_b32 v{VT1}, s43")
    I("s_waitcnt lgkmcnt(0)")
    e.nop(2)
    for q in range(8):
        I(f"v_mul_f32 v{B+4*q}, v{B+4*q}, v{ACC+4*q}")
    for d in range(1, 4):
        for q in range(8):
            I(f"v_fmac_f32 v{B+4*q}, v{B+4*q+d}, v{ACC+4*q+d}")
    for k in range(4):
        I(f"v_cvt_pk_bf16_f32 v{A+k}, v{B+8*k}, v{B+8*k+4}")
    I(f"ds_write_b128 v{VT0}, v[{A}:{A+3}]")
    I("s_waitcnt lgkmcnt(0)")
    I("s_mov_b64 exec, 1")
    I(f"ds_add_u32 v{VT1}, v{VONE} offset:{DONE}")
    I("s_mov_b64 exec, -1")
    I(f"s_cmp_lg_u32 s{sNV}, 0")
    I("s_cbranch_scc1 L2_loop")
    e.label("L2_g_done")
    stamp(e, c, 5)
    I("s_cmp_lg_u32 s24, 0")
    e.branch("s_cbranch_scc1 L2_g_exit")
    I("s_waitcnt lgkmcnt(0)")
    I("s_barrier")
    I("s_add_u32 s22, s22, 1")
    I(f"s_cmp_eq_u32 s22, {NCH-1}")
    I("s_cselect_b32 s24, 1, 0")
    e.branch("s_branch L2_g_round")
    e.label("L2_g_overflow")
    I("s_waitcnt vmcnt(0)")
    I("s_mov_b32 s22, 0")
    I("s_mov_b32 s23, 1")
    I("s_mov_b32 s24, 0")
    I("s_barrier")
    e.branch("s_branch L2_g_round")
    e.label("L2_g_exit")
    stamp_store(e, c, 8, 1, 90)
    I("s_endpgm")

    e.label("L2_gemm")
    W, G, TA, TF = 0, 40, 104, 108
    X0, X1 = 124, 125
    if c.stamps: X0, X1 = 124, 125
    I("v_and_b32 v104, 63, v0")
    I("v_mov_b32 v117, v0")
    I("v_lshlrev_b32 v105, 4, v104")
    I("s_lshl_b32 s42, s21, 10")
    I(f"s_add_u32 s42, s42, {WFOFF}")
    for f in range(10):
        I(f"buffer_load_dwordx4 v[{W+4*f}:{W+4*f+3}], v105, s[8:11], s42 offen")
        if f < 9: I("s_add_u32 s42, s42, 4096")
    lut = 0
    for jp in range(4):
        for blk in range(4):
            p, i, s = path_of(jp, blk)
            lut |= (p | (8 if s < 0 else 0)) << (4 * (jp * 4 + blk))
    I(f"s_mov_b32 s44, {lut & 0xffffffff}")
    I(f"s_mov_b32 s45, {lut >> 32}")
    for h in range(2):
        I("v_lshrrev_b32 v106, 4, v104")
        I("v_bfe_u32 v107, v104, 3, 1")
        I("v_lshl_add_u32 v106, v106, 2, v107")
        I(f"v_add_lshl_u32 v106, v106, {2*h}, 2")
        I(f"v_lshrrev_b64 v[108:109], v106, s[44:45]")
        I(f"v_and_b32 v106, 7, v108")
        I(f"v_and_b32 v{110+h}, 8, v108")
        I(f"v_lshlrev_b32 v{110+h}, 28, v{110+h}")
        I("v_and_b32 v107, 7, v104")
        I("v_lshlrev_b32 v107, 3, v107")
        I("v_lshl_add_u32 v106, v106, 6, v107")
        I("v_add_u32 v106, s21, v106")
        I(f"v_lshlrev_b32 v{112+h}, 1, v106")
    for k in range(4):
        h, qo = k >> 1, (k & 1) * 4
        for d in range(4):
            I(f"buffer_load_ushort v{G+4*k+d}, v{112+h}, s[16:19], 0 offen offset:{d*640+qo*2}")
    prefetch_x(e, c, c.pf2_lines, 114, 117, 256, 31, 0, 4, "p")
    I("s_lshl_b32 s42, s21, 10")
    I(f"s_add_u32 s42, s42, {WRAD}")
    I("v_add_u32 v105, s42, v105")
    npf = (c.pf2_lines + 255) // 256
    I(f"s_waitcnt vmcnt({npf})")
    for k in range(4):
        h = k >> 1
        for d in range(4):
            I(f"v_lshlrev_b32 v{G+4*k+d}, 16, v{G+4*k+d}")
            I(f"v_xor_b32 v{G+4*k+d}, v{110+h}, v{G+4*k+d}")
        I(f"ds_write_b128 v105, v[{G+4*k}:{G+4*k+3}] offset:{(k>>1)*8192 + (k&1)*4096}")
    I("v_and_b32 v106, 15, v104")
    I("v_lshrrev_b32 v107, 4, v104")
    I(f"v_lshlrev_b32 v{X0}, 2, v104")
    I(f"s_mul_i32 s42, s20, {NODES*512}")
    I("s_lshl_b32 s43, s21, 5")
    I("s_add_u32 s42, s42, s43")
    I(f"v_lshlrev_b32 v{X1}, 9, v106")
    I(f"v_lshl_add_u32 v{X1}, v107, 3, v{X1}")
    I(f"v_add_u32 v{X1}, s42, v{X1}")
    I(f"v_cmp_gt_u32 s[50:51], {NODES-48}, v106")
    I("v_lshlrev_b32 v108, 10, v106")
    I(f"v_add_u32 v108, {T}, v108")
    for u in (3, 2, 1, 0):
        I(f"v_add_u32 v109, {4*u}, v107")
        I("v_xor_b32 v109, v109, v106")
        I(f"v_lshl_add_u32 v{TF+4+u}, v109, 4, v108")
    I("s_waitcnt lgkmcnt(0)")
    for u in range(4):
        I(f"v_mov_b32 v{TA+u}, v{TF+4+u}")
    for k in range(64):
        I(f"v_mov_b32 v{G+k}, 0")
    e.label("L2_m_round")
    I("s_cmp_lg_u32 s21, 0")
    I("s_cbranch_scc1 L2_m_nz")
    I(f"v_mov_b32 v{TF}, 0"); I(f"v_mov_b32 v{TF+1}, 0"); I(f"v_mov_b32 v{TF+2}, 0"); I(f"v_mov_b32 v{TF+3}, 0")
    I(f"v_lshlrev_b32 v{TF+4}, 2, v{X0}")
    I(f"ds_write_b128 v{TF+4}, v[{TF}:{TF+3}] offset:{HIST}")
    I("s_waitcnt lgkmcnt(0)")
    e.label("L2_m_nz")
    I("s_barrier")
    I("s_barrier")
    I(f"ds_read_b32 v{TF}, v{X0} offset:{HIST}")
    I(f"ds_read_b32 v{TF+1}, v{X0} offset:{HIST2}")
    I("s_waitcnt lgkmcnt(0)")
    I(f"v_add_u32 v{TF}, v{TF}, v{TF+1}")
    scan64(e, TF)
    I(f"v_readlane_b32 s42, v{TF}, 63")
    e.flush()
    I(f"s_cmp_gt_u32 s42, {CAP}")
    I("s_cbranch_scc1 L2_m_overflow")
    I("s_barrier")
    I("s_waitcnt vmcnt(0)")
    stamp(e, c, 4)
    for h in range(2):
        for t in range(4):
            need = 16 if t < 3 else NODES - 48
            I(f"v_mov_b32 v{TF}, 0")
            I("s_mov_b32 s43, 0")
            e.label(f"L2_poll{h}{t}")
            I(f"ds_read_b32 v{TF+1}, v{TF} offset:{DONE + 16*h + 4*t}")
            I("s_waitcnt lgkmcnt(0)")
            I(f"v_readfirstlane_b32 s42, v{TF+1}")
            e.flush()
            I(f"s_cmp_ge_u32 s42, {need}")
            I(f"s_cbranch_scc1 L2_go{h}{t}")
            I("s_sleep 2")
            I("s_add_u32 s43, s43, 1")
            I("s_cmp_lt_u32 s43, 0x400000")
            I(f"s_cbranch_scc1 L2_poll{h}{t}")
            e.label(f"L2_go{h}{t}")
            stamp(e, c, 7 + 4*h + t)
            def rd(ks):
                I(f"ds_read_b128 v[{TF+4*(ks&3)}:{TF+4*(ks&3)+3}], v{TA+(ks&3)} offset:{t*16384 + (ks>>2)*256}")
            for ks in range(4): rd(ks)
            for ks in range(16):
                jp, blk = ks >> 2, 2 * h + ((ks >> 1) & 1)
                p, i, s = path_of(jp, blk)
                f = p * 2 + (ks & 1)
                I(f"s_waitcnt lgkmcnt({min(3, 15-ks)})")
                g = G + 16 * t + 4 * i
                I(f"v_mfma_f32_16x16x32_bf16 v[{g}:{g+3}], v[{W+4*f}:{W+4*f+3}], v[{TF+4*(ks&3)}:{TF+4*(ks&3)+3}], v[{g}:{g+3}]")
                if ks + 4 < 16: rd(ks + 4)
            if h == 0:
                I(f"v_mov_b32 v{TF}, 0")
                I(f"v_mov_b32 v{TF+1}, 1")
                I("s_mov_b64 exec, 1")
                I(f"ds_add_u32 v{TF}, v{TF+1} offset:{GDONE + 4*t}")
                I("s_mov_b64 exec, -1")
                if t == c.pf2b_tile:
                    if c.pf2b_lines:
                        I("s_lshl_b32 s42, s21, 6")
                        I(f"v_lshrrev_b32 v{TF+3}, 2, v{X0}")
                        I(f"v_add_u32 v{TF+3}, s42, v{TF+3}")
                    prefetch_x(e, c, c.pf2b_lines, TF + 4, TF + 3, 256, 31, 1, 4, "q")
                    if c.pf2b_lines: I("s_waitcnt vmcnt(0)")
            else:
                I("s_cmp_eq_u32 s24, 0")
                e.branch(f"s_cbranch_scc1 L2_nofin{t}")
                g = G + 16 * t
                I("s_mov_b32 s42, 0xbfb8aa3b")
                for r in range(4): I(f"v_mul_f32 v{TF+r}, s42, v{g+r}")
                for r in range(4): I(f"v_exp_f32 v{TF+r}, v{TF+r}")
                for r in range(4): I(f"v_add_f32 v{TF+r}, 1.0, v{TF+r}")
                for r in range(4): I(f"v_rcp_f32 v{TF+r}, v{TF+r}")
                for i in range(1, 4):
                    for r in range(4): I(f"v_mul_f32 v{g+4*i+r}, v{g+4*i+r}, v{TF+r}")
                for i in range(4):
                    I(f"v_cvt_pk_bf16_f32 v{TF+4+2*i}, v{g+4*i}, v{g+4*i+1}")
                    I(f"v_cvt_pk_bf16_f32 v{TF+5+2*i}, v{g+4*i+2}, v{g+4*i+3}")
                I(f"s_mov_b32 s42, {t*16*512}")
                if t == 3: I("s_mov_b64 exec, s[50:51]")
                for i in range(4):
                    I(f"buffer_store_dwordx2 v[{TF+4+2*i}:{TF+5+2*i}], v{X1}, s[12:15], s42 offen offset:{i*128} {c.out_flags}")
                if t == 3: I("s_mov_b64 exec, -1")
                e.label(f"L2_nofin{t}")
    stamp(e, c, 5)
    I("s_cmp_lg_u32 s24, 0")
    e.branch("s_cbranch_scc1 L2_m_exit")
    I("s_waitcnt lgkmcnt(0)")
    I("s_barrier")
    I("s_add_u32 s22, s22, 1")
    I(f"s_cmp_eq_u32 s22, {NCH-1}")
    I("s_cselect_b32 s24, 1, 0")
    e.branch("s_branch L2_m_round")
    e.label("L2_m_overflow")
    I("s_mov_b32 s22, 0")
    I("s_mov_b32 s23, 1")
    I("s_mov_b32 s24, 0")
    I("s_barrier")
    e.branch("s_branch L2_m_round")
    e.label("L2_m_exit")
    if c.stamps:
        I("s_waitcnt vmcnt(0)")
        stamp(e, c, 6)
        stamp_store(e, c, 8, 1, TF)
    e.label("L2_end")
    I("s_endpgm")
    return name, 128, 96

HEADER = """; equiformer tensor-product message passing: bin edges by destination (eqsort), then per bin of 50 nodes
"""

def gen_probe(e, c):
    kA, a0, a1, sA, oA, kB, b0, b1, sB, oB = c.probe.split(",")
    kernel_header(e, "eqprobe_kernel")
    I = e.I
    I("s_cmp_ge_u32 s2, 1")
    I("s_cbranch_scc1 LP_end")
    I("s_load_dwordx2 s[4:5], s[0:1], 88")
    I("s_waitcnt lgkmcnt(0)")
    srd(e, 8, 4, 32 << 20)
    I("v_min_u32 v1, 249, v0")
    I("v_lshlrev_b32 v1, 10, v1")
    I("v_mov_b32 v10, 0"); I("v_mov_b32 v11, -1"); I("v_mov_b32 v12, 0")
    I("ds_write_b32 v10, v11 offset:0"); I("ds_write_b32 v10, v12 offset:4"); I("ds_write_b32 v10, v11 offset:8"); I("ds_write_b32 v10, v12 offset:12")
    I("s_waitcnt lgkmcnt(0)"); I("s_barrier")
    for (k, w0, w1, sl, off) in ((kA, a0, a1, sA, 0), (kB, b0, b1, sB, 8)):
        I(f"s_mov_b32 s12, {(16 + int(k)) << 20}")
        for w in range(int(w0), int(w1)):
            I(f"buffer_load_dword v2, v1, s[8:11], s12 offen offset:{w*64 + int(sl)*4}")
            I("s_waitcnt vmcnt(0)")
            I(f"ds_min_u32 v10, v2 offset:{off}")
            I(f"ds_max_u32 v10, v2 offset:{off+4}")
    I("s_waitcnt lgkmcnt(0)"); I("s_barrier")
    I(f"ds_read_b32 v3, v10 offset:{0 if oA == 'min' else 4}")
    I(f"ds_read_b32 v4, v10 offset:{8 if oB == 'min' else 12}")
    I("s_waitcnt lgkmcnt(0)")
    I("v_sub_u32 v3, v3, v4")
    I("v_min_u32 v3, 0x2000, v3")
    I("v_readfirstlane_b32 s14, v3")
    I("s_memrealtime s[16:17]")
    I("s_mul_i32 s14, s14, 10")
    I("s_waitcnt lgkmcnt(0)")
    e.label("LP_spin")
    I("s_memrealtime s[18:19]")
    I("s_waitcnt lgkmcnt(0)")
    I("s_sub_u32 s18, s18, s16")
    I("s_cmp_lt_u32 s18, s14")
    I("s_cbranch_scc1 LP_spin")
    e.label("LP_end")
    I("s_endpgm")
    return "eqprobe_kernel", 16, 32

def generate(c):
    e = Emitter()
    e.raw('.amdgcn_target "amdgcn-amd-amdhsa--gfx950"')
    e.raw(".text")
    k1 = gen_k1(e, c)
    k2 = gen_k2(e, c)
    head = HEADER
    dk = ""
    if c.dummy:
        kernel_header(e, "eqdummy_kernel")
        e.I("s_endpgm")
        dk = ".p2align 6\n" + kd("eqdummy_kernel", 8, 16)
    if c.dummy == 2: head += "; @launch kernel=eqdummy_kernel grid=(1,1,1) block=(64,1,1) lds=0\n"
    head += f"; @launch kernel={k1[0]} grid=(256,1,1) block=(1024,1,1) lds={K1_LDS}\n"
    head += f"; @launch kernel={k2[0]} grid=(250,1,1) block=(1024,1,1) lds={c.k2_lds}\n"
    if c.probe:
        kp = gen_probe(e, c)
        dk += ".p2align 6\n" + kd(*kp)
        head += "; @launch kernel=eqprobe_kernel grid=(1,1,1) block=(256,1,1) lds=64\n"
    if c.dummy == 1: head += "; @launch kernel=eqdummy_kernel grid=(1,1,1) block=(64,1,1) lds=0\n"
    tail = '.section .rodata,"a"\n.p2align 6\n' + kd(*k1) + ".p2align 6\n" + kd(*k2) + dk
    return head + e.text() + tail

if __name__ == "__main__":
    c = Cfg()
    out = sys.argv[1]
    for kv in sys.argv[2:]:
        k, v = kv.split("=", 1)
        old = getattr(c, k)
        setattr(c, k, type(old)(int(v)) if isinstance(old, (bool, int)) else v.replace("+", " "))
    open(out, "w").write(generate(c))
```

```python
import sys
from emit import Emitter

N, E = 12500, 800000
NB, NODES = 250, 50
NCH, CH = 250, 3200
CSTRIDE = 55424
KEYOFF, TABOFF = 51200, 54400
WFOFF = NCH * CSTRIDE
WSBYTES = WFOFF + 40960

class Cfg:
    pf1_lines = 0
    pf1_pos = "late"
    st_flags = ""
    ld_flags = ""
    rec_flags = ""
    out_flags = ""
    pf2_lines = 0
    pf2b_lines = 0
    pf2b_tile = 2
    stamps = False
    cap = 3584
    x_noperm = 0
    x_noexp = 0
    x_nomfma = 0
    x_noload = 0
    x_samehalf = 0
    dbgstamps = 0
    probe = ""
    dummy = 0

def srd(e, d, b, nbytes):
    e.I(f"s_mov_b32 s{d}, s{b}")
    e.I(f"s_mov_b32 s{d+1}, s{b+1}")
    e.I(f"s_mov_b32 s{d+2}, {nbytes}")
    e.I(f"s_mov_b32 s{d+3}, 0x20000")

def scan64(e, v):
    for sh in (1, 2, 4, 8):
        e.I(f"v_add_u32_dpp v{v}, v{v}, v{v} row_shr:{sh} row_mask:0xf bank_mask:0xf")
    e.I(f"v_add_u32_dpp v{v}, v{v}, v{v} row_bcast:15 row_mask:0xa bank_mask:0xf")
    e.I(f"v_add_u32_dpp v{v}, v{v}, v{v} row_bcast:31 row_mask:0xc bank_mask:0xf")

def prefetch_x(e, c, nlines, vt, vtid, nthreads, slice_s, half, srdx, tag):
    if nlines <= 0: return
    e.I(f"s_mul_i32 s46, s{slice_s}, 782")
    it = (nlines + nthreads - 1) // nthreads
    for k in range(it):
        e.I(f"v_add_u32 v{vt}, {k*nthreads}, v{vtid}")
        lim = nlines
        e.I(f"v_cmp_gt_u32 vcc, {lim}, v{vt}" if lim <= 64 else f"s_mov_b32 s47, {lim}")
        if lim > 64: e.I(f"v_cmp_gt_u32 vcc, s47, v{vt}")
        e.I(f"v_add_u32 v{vt}, s46, v{vt}")
        e.I(f"v_and_b32 v{vt+1}, 1, v{vt}")
        e.I(f"v_lshrrev_b32 v{vt}, 1, v{vt}")
        e.I(f"v_lshlrev_b32 v{vt}, 9, v{vt}")
        e.I(f"v_lshl_add_u32 v{vt}, v{vt+1}, 7, v{vt}")
        e.I(f"v_cndmask_b32 v{vt}, 2.0, v{vt}, vcc")
        e.I(f"buffer_load_dword v{vt+2}, v{vt}, s[{srdx}:{srdx+3}], 0 offen offset:{half*256}")

def stamp(e, c, slot, tmp_s=90):
    if not c.stamps: return
    e.I(f"s_memrealtime s[{tmp_s}:{tmp_s+1}]")
    e.I("s_waitcnt lgkmcnt(0)")
    e.I(f"v_writelane_b32 v{c.stampv}, s{tmp_s}, {slot}")

def stamp_store(e, c, srdws, kid, vtmp, role=0):
    if not c.stamps: return
    if c.dbgstamps:
        e.I("s_load_dwordx2 s[92:93], s[0:1], 80")
        e.I("s_waitcnt lgkmcnt(0)")
        if not kid: e.I("s_add_u32 s92, s92, 512"); e.I("s_addc_u32 s93, s93, 0")
        e.I("s_mov_b32 s88, s92"); e.I("s_mov_b32 s89, s93"); e.I("s_mov_b32 s90, 64"); e.I("s_mov_b32 s91, 0x20000")
        e.I(f"v_readlane_b32 s94, v{c.stampv}, 0")
        e.I("s_nop 4")
        e.I("s_not_b32 s94, s94")
        e.I(f"v_writelane_b32 v{c.stampv}, s94, 7")
        e.I(f"v_and_b32 v{vtmp+1}, 63, v{c.tidv}")
        e.I(f"v_lshlrev_b32 v{vtmp}, 2, v{vtmp+1}")
        e.I(f"v_and_b32 v{vtmp+1}, 0x2ff, v{c.tidv}")
        e.I(f"v_cmp_gt_u32 vcc, 8, v{vtmp+1}")
        e.I(f"v_cndmask_b32 v{vtmp}, 2.0, v{vtmp}, vcc")
        e.I(f"buffer_atomic_umax v{c.stampv}, v{vtmp}, s[88:91], 0 offen offset:{kid*32}")
        return
    e.I(f"v_lshrrev_b32 v{vtmp}, 6, v{c.tidv}")
    e.I(f"s_lshl_b32 s90, s2, 4")
    e.I(f"v_add_u32 v{vtmp}, s90, v{vtmp}")
    e.I(f"v_lshlrev_b32 v{vtmp}, 6, v{vtmp}")
    e.I(f"v_and_b32 v{vtmp+1}, 63, v{c.tidv}")
    e.I(f"v_lshl_add_u32 v{vtmp}, v{vtmp+1}, 2, v{vtmp}")
    e.I(f"v_cmp_gt_u32 vcc, 16, v{vtmp+1}")
    e.I(f"v_cndmask_b32 v{vtmp}, 2.0, v{vtmp}, vcc")
    e.I(f"s_mov_b32 s90, {(16+kid) << 20}")
    e.I(f"buffer_store_dword v{c.stampv}, v{vtmp}, s[{srdws}:{srdws+3}], s90 offen")

def kernel_header(e, name):
    e.raw(f".globl {name}")
    e.raw(".p2align 8")
    e.raw(f".type {name},@function")
    e.raw(f"{name}:")
    e.hist = []

def kd(name, nv, ns):
    return f""".amdhsa_kernel {name}
  .amdhsa_next_free_vgpr {nv}
  .amdhsa_next_free_sgpr {ns}
  .amdhsa_accum_offset {(nv+3)//4*4}
  .amdhsa_group_segment_fixed_size 0
  .amdhsa_kernarg_size 96
  .amdhsa_user_sgpr_count 2
  .amdhsa_user_sgpr_kernarg_segment_ptr 1
  .amdhsa_system_sgpr_workgroup_id_x 1
  .amdhsa_float_denorm_mode_32 3
.end_amdhsa_kernel
"""

K1_HIST = 55424
K1_BASE = K1_HIST + 1024
K1_LDS = K1_BASE + 1024

def gen_k1(e, c):
    name = "eqsort_kernel"
    kernel_header(e, name)
    c.stampv, c.tidv = 60, 0
    I = e.I
    wsbytes = (32 << 20) if c.stamps else WSBYTES
    I("s_cmp_ge_u32 s2, 256")
    I("s_cbranch_scc1 L1_end")
    if c.stamps: I("v_mov_b32 v60, 0")
    stamp(e, c, 0)
    I("s_load_dwordx4 s[4:7], s[0:1], 0")
    I("s_load_dwordx4 s[8:11], s[0:1], 16")
    I("s_load_dwordx2 s[12:13], s[0:1], 32")
    I("s_load_dwordx4 s[16:19], s[0:1], 48")
    I("s_load_dwordx2 s[14:15], s[0:1], 88")
    I("v_lshlrev_b32 v1, 4, v0")
    I("v_lshlrev_b32 v2, 5, v0")
    I("v_mul_u32_u24 v3, 24, v0")
    I("v_lshlrev_b32 v40, 2, v0")
    I("v_mov_b32 v41, 0")
    I("v_mov_b32 v42, 1")
    I("s_mul_i32 s44, s2, 12800")
    I("s_mul_i32 s45, s2, 25600")
    I("s_mul_i32 s50, s2, 19200")
    I(f"s_mul_i32 s51, s2, {CSTRIDE}")
    I("s_lshr_b32 s52, s2, 3")
    I("s_mov_b32 s53, -50")
    I("s_movk_i32 s54, 800")
    I("v_readfirstlane_b32 s55, v0")
    I("s_lshr_b32 s55, s55, 6")
    I("v_subrev_u32 v50, 832, v0")
    I("s_waitcnt lgkmcnt(0)")
    srd(e, 20, 4, N * 512)
    srd(e, 24, 6, E * 6)
    srd(e, 28, 8, E * 8)
    srd(e, 32, 10, E * 4)
    srd(e, 36, 12, E * 4)
    srd(e, 40, 14, wsbytes)
    I("s_cmp_ge_u32 s2, 250")
    e.branch("s_cbranch_scc1 L1_helper")
    I("s_cmp_ge_u32 s55, 13")
    e.branch("s_cbranch_scc1 L1_idle0")
    I("v_cmp_gt_u32 vcc, s54, v0")
    I("s_and_saveexec_b64 s[48:49], vcc")
    lf = c.ld_flags
    I(f"buffer_load_dwordx4 v[4:7], v1, s[36:39], s44 offen {lf}")
    I(f"buffer_load_dwordx4 v[8:11], v1, s[32:35], s44 offen {lf}")
    I(f"buffer_load_dwordx4 v[12:15], v2, s[28:31], s45 offen {lf}")
    I(f"buffer_load_dwordx4 v[16:19], v2, s[28:31], s45 offen offset:16 {lf}")
    I(f"buffer_load_dwordx4 v[20:23], v3, s[24:27], s50 offen {lf}")
    I(f"buffer_load_dwordx2 v[24:25], v3, s[24:27], s50 offen offset:16 {lf}")
    I("s_mov_b64 exec, s[48:49]")
    I("s_cmp_ge_u32 s55, 4")
    e.branch("s_cbranch_scc1 L1_nz")
    I(f"ds_write_b32 v40, v41 offset:{K1_HIST}")
    I("s_waitcnt lgkmcnt(0)")
    e.label("L1_nz")
    I("s_barrier")
    I("s_and_b64 exec, exec, vcc")
    I("s_waitcnt vmcnt(5)")
    stamp(e, c, 1)
    for i in range(4):
        I(f"v_mul_u32_u24 v{44+i}, 0x147b, v{4+i}")
    for i in range(4):
        I(f"v_lshrrev_b32 v{44+i}, 18, v{44+i}")
    for i in range(4):
        I(f"v_mad_i32_i24 v{4+i}, v{44+i}, s53, v{4+i}")
        I(f"v_lshlrev_b32 v{44+i}, 2, v{44+i}")
    for i in range(4):
        I(f"ds_add_rtn_u32 v{36+i}, v{44+i}, v42 offset:{K1_HIST}")
    I("s_waitcnt lgkmcnt(0)")
    I("s_barrier")
    I("s_cmp_lg_u32 s55, 0")
    e.branch("s_cbranch_scc1 L1_noscan")
    I(f"ds_read_b128 v[52:55], v1 offset:{K1_HIST}")
    I("s_waitcnt lgkmcnt(0)")
    I("v_add_u32 v56, v52, v53")
    I("v_add_u32 v57, v56, v54")
    I("v_add_u32 v58, v57, v55")
    I("v_mov_b32 v59, v58")
    scan64(e, 59)
    I("v_sub_u32 v59, v59, v58")
    I("v_add_u32 v28, v59, v52")
    I("v_add_u32 v29, v59, v56")
    I("v_add_u32 v30, v59, v57")
    I("v_mov_b32 v32, v59"); I("v_mov_b32 v33, v28"); I("v_mov_b32 v34, v29"); I("v_mov_b32 v35, v30")
    I(f"ds_write_b128 v1, v[32:35] offset:{K1_BASE}")
    I("v_lshl_or_b32 v52, v52, 16, v59")
    I("v_lshl_or_b32 v53, v53, 16, v28")
    I("v_lshl_or_b32 v54, v54, 16, v29")
    I("v_lshl_or_b32 v55, v55, 16, v30")
    I(f"ds_write_b128 v1, v[52:55] offset:{TABOFF}")
    I("s_waitcnt lgkmcnt(0)")
    e.label("L1_noscan")
    I("s_barrier")
    for i in range(4):
        I(f"ds_read_b32 v{44+i}, v{44+i} offset:{K1_BASE}")
    I("s_mov_b32 s56, 0x05040100")
    I("s_mov_b32 s57, 0x05040302")
    I("s_waitcnt vmcnt(0)")
    stamp(e, c, 2)
    I("v_mov_b32 v28, v20")
    I("v_perm_b32 v29, v8, v21, s56")
    I("v_alignbit_b32 v30, v22, v21, 16")
    I("v_perm_b32 v31, v9, v22, s57")
    I("v_mov_b32 v32, v23")
    I("v_perm_b32 v33, v10, v24, s56")
    I("v_alignbit_b32 v34, v25, v24, 16")
    I("v_perm_b32 v35, v11, v25, s57")
    I("s_waitcnt lgkmcnt(0)")
    for i in range(4):
        I(f"v_add_u32 v{36+i}, v{36+i}, v{44+i}")
        I(f"v_lshlrev_b32 v{44+i}, 4, v{36+i}")
    for i in range(4):
        I(f"ds_write2_b64 v{44+i}, v[{12+2*i}:{13+2*i}], v[{28+2*i}:{29+2*i}] offset0:0 offset1:1")
        I(f"ds_write_b8 v{36+i}, v{4+i} offset:{KEYOFF}")
    I("s_mov_b64 exec, -1")
    I("s_waitcnt lgkmcnt(0)")
    e.branch("s_branch L1_copy")
    e.label("L1_idle0")
    if c.pf1_pos == "early": prefetch_x(e, c, c.pf1_lines, 4, 50, 192, 52, 0, 20, "a")
    I("s_barrier"); I("s_barrier")
    if c.pf1_pos == "mid": prefetch_x(e, c, c.pf1_lines, 4, 50, 192, 52, 0, 20, "a")
    I("s_barrier")
    if c.pf1_pos == "late": prefetch_x(e, c, c.pf1_lines, 4, 50, 192, 52, 0, 20, "a")
    e.flush()
    e.label("L1_copy")
    I("s_barrier")
    stamp(e, c, 3)
    I("ds_read_b128 v[8:11], v1")
    I("ds_read_b128 v[12:15], v1 offset:16384")
    I("ds_read_b128 v[16:19], v1 offset:32768")
    I("ds_read_b128 v[20:23], v1 offset:49152")
    I("v_add_u32 v2, 16384, v1")
    I("v_add_u32 v3, 32768, v1")
    I("v_add_u32 v24, 49152, v1")
    I("s_movk_i32 s54, 392")
    I("v_cmp_gt_u32 vcc, s54, v0")
    sf = c.st_flags
    I("s_waitcnt lgkmcnt(3)")
    I(f"buffer_store_dwordx4 v[8:11], v1, s[40:43], s51 offen {sf}")
    I("s_waitcnt lgkmcnt(2)")
    I(f"buffer_store_dwordx4 v[12:15], v2, s[40:43], s51 offen {sf}")
    I("s_waitcnt lgkmcnt(1)")
    I(f"buffer_store_dwordx4 v[16:19], v3, s[40:43], s51 offen {sf}")
    I("s_and_saveexec_b64 s[48:49], vcc")
    e.branch("s_cbranch_execz L1_st_done")
    I("s_waitcnt lgkmcnt(0)")
    I(f"buffer_store_dwordx4 v[20:23], v24, s[40:43], s51 offen {sf}")
    e.label("L1_st_done")
    I("s_mov_b64 exec, -1")
    if c.stamps:
        stamp(e, c, 4)
        I("s_waitcnt vmcnt(0)")
        stamp(e, c, 5)
        stamp_store(e, c, 40, 0, 26)
    I("s_endpgm")
    e.label("L1_helper")
    I("s_cmp_lt_u32 s55, 13")
    e.branch("s_cbranch_scc1 L1_h_w")
    prefetch_x(e, c, c.pf1_lines, 4, 50, 192, 52, 0, 20, "h")
    I("s_waitcnt vmcnt(0)")
    I("s_endpgm")
    e.label("L1_h_w")
    I("s_sub_u32 s44, s2, 250")
    I("s_mul_i32 s44, s44, 13")
    I("s_add_u32 s44, s44, s55")
    I("s_cmp_ge_u32 s44, 40")
    e.branch("s_cbranch_scc1 L1_end")
    I("s_and_b32 s45, s44, 3")
    I("s_lshr_b32 s46, s44, 2")
    I("s_cmp_lt_u32 s46, 4")
    I("s_cselect_b32 s24, s16, s18")
    I("s_cselect_b32 s25, s17, s19")
    I("s_movk_i32 s26, 24576")
    I("s_cselect_b32 s26, 16384, s26")
    I("s_cselect_b32 s47, 0, 4")
    I("s_mov_b32 s27, 0x20000")
    I("s_sub_u32 s46, s46, s47")
    I("s_lshl_b32 s46, s46, 12")
    I("s_lshl_b32 s45, s45, 5")
    I("s_add_u32 s46, s46, s45")
    I("v_and_b32 v4, 63, v0")
    I("v_lshrrev_b32 v5, 4, v4")
    I("v_and_b32 v6, 15, v4")
    I("v_lshlrev_b32 v5, 10, v5")
    I("v_lshl_add_u32 v5, v6, 1, v5")
    for q in range(8):
        I(f"buffer_load_ushort v{12+q}, v5, s[24:27], s46 offen offset:{q*128}")
    I("v_lshlrev_b32 v4, 4, v4")
    I("s_lshl_b32 s44, s44, 10")
    I(f"s_add_u32 s44, s44, {WFOFF}")
    I("s_waitcnt vmcnt(0)")
    for k in range(4):
        I(f"v_lshl_or_b32 v{8+k}, v{13+2*k}, 16, v{12+2*k}")
    I("buffer_store_dwordx4 v[8:11], v4, s[40:43], s44 offen")
    e.label("L1_end")
    I("s_endpgm")
    return name, 64, 96

def path_of(jp, blk):
    if blk == 0: return (0, 0, 1) if jp == 0 else (2, jp, 1)
    k = blk - 1
    if jp == 0: return (3, 1 + k, 1)
    j = jp - 1
    if j == k: return (1, 0, 1)
    i = 3 - j - k
    return (4, 1 + i, 1 if k == (j + 1) % 3 else -1)

def gen_k2(e, c):
    name = "eqmain_kernel"
    CAP = c.cap
    HIST = 0
    RAW = 1024
    T = (RAW + CAP * 16 + 512 + 1023) // 1024 * 1024
    WRAD = T + NODES * 1024
    SCR = WRAD + 16384
    HIST2, CUR2, CNT = HIST + 256, HIST + 512, HIST + 768
    NEXT, DONE, GDONE = CNT, CNT + 16, CNT + 64
    lds = SCR + 12 * 1024
    lds = max(lds, T + 64 * 1024)
    c.k2_lds = lds
    kernel_header(e, name)
    I = e.I
    wsbytes = (32 << 20) if c.stamps else WSBYTES
    c.stampv, c.tidv = 127, 126
    I("s_cmp_ge_u32 s2, 250")
    I("s_cbranch_scc1 L2_end")
    if c.stamps:
        I("v_mov_b32 v127, 0")
        I("v_mov_b32 v126, v0")
    stamp(e, c, 0)
    I("s_load_dwordx2 s[42:43], s[0:1], 0")
    I("s_load_dwordx2 s[44:45], s[0:1], 40")
    I("s_load_dwordx2 s[46:47], s[0:1], 72")
    I("s_load_dwordx2 s[48:49], s[0:1], 88")
    I("s_and_b32 s20, s2, 7")
    I("s_min_u32 s21, s20, 2")
    I("s_mul_i32 s20, s20, 31")
    I("s_add_u32 s20, s20, s21")
    I("s_lshr_b32 s31, s2, 3")
    I("s_add_u32 s20, s20, s31")
    I("v_readfirstlane_b32 s21, v0")
    I("s_lshr_b32 s21, s21, 6")
    I("s_mov_b32 s22, 0")
    I("s_movk_i32 s23, 250")
    I("s_mov_b32 s24, 1")
    I("s_mov_b32 s26, 0xaaaaaaaa")
    I("s_mov_b32 s27, 0xaaaaaaaa")
    I("s_mov_b32 s28, 0x05040100")
    I("s_mov_b32 s29, 0x07060302")
    I("s_mov_b32 s30, 0xffff0000")
    I("s_waitcnt lgkmcnt(0)")
    srd(e, 4, 42, N * 512)
    srd(e, 8, 48, wsbytes)
    srd(e, 12, 46, N * 512)
    srd(e, 16, 44, 2560)
    I("s_cmp_lt_u32 s21, 4")
    e.branch("s_cbranch_scc1 L2_gemm")

    VLANE, VINFO, VNEXT = 108, 109, 110
    VLOFF, VSRCC, VRAWC, VSLOT, VSCRW, VTRA, VWR, VL16 = 111, 112, 113, 114, 115, 116, 117, 118
    VT0, VT1, VONE, VZERO = 119, 120, 121, 122
    VJ, VCH, VSEG = 123, 124, 125
    I(f"v_and_b32 v{VLANE}, 63, v0")
    I(f"v_subrev_u32 v{VT0}, 256, v0")
    I(f"v_and_b32 v{VJ}, 15, v{VT0}")
    I(f"v_lshrrev_b32 v{VSEG}, 4, v{VT0}")
    I(f"s_mov_b32 s42, {CSTRIDE}")
    I(f"v_mul_u32_u24 v{VCH}, s42, v{VSEG}")
    I(f"v_mov_b32 v{VONE}, 1")
    I(f"v_mov_b32 v{VZERO}, 0")
    I(f"v_and_b32 v{VT0}, 15, v{VLANE}")
    I(f"v_lshlrev_b32 v{VLOFF}, 4, v{VT0}")
    I(f"v_lshrrev_b32 v{VT1}, 4, v{VLANE}")
    I(f"v_lshl_add_u32 v{VSRCC}, v{VT1}, 4, 14")
    I(f"v_lshrrev_b32 v{VSLOT}, 1, v{VLANE}")
    I(f"v_lshlrev_b32 v{VRAWC}, 4, v{VSLOT}")
    I(f"v_lshlrev_b32 v{VL16}, 4, v{VLANE}")
    I("s_sub_u32 s43, s21, 4")
    I("s_lshl_b32 s43, s43, 10")
    I(f"s_add_u32 s43, s43, {SCR}")
    I(f"v_add_u32 v{VSCRW}, s43, v{VL16}")
    I(f"v_lshlrev_b32 v{VTRA}, 5, v{VT1}")
    I(f"v_bfe_u32 v{VT1}, v{VLANE}, 2, 2")
    I(f"v_lshl_add_u32 v{VTRA}, v{VT1}, 7, v{VTRA}")
    I(f"v_and_b32 v{VT1}, 3, v{VLANE}")
    I(f"v_lshl_add_u32 v{VTRA}, v{VT1}, 3, v{VTRA}")
    I(f"v_add_u32 v{VTRA}, s43, v{VTRA}")
    I(f"v_add_u32 v{VWR}, {WRAD}, v{VL16}")

    e.label("L2_g_round")
    PAY, KEY, RNK, TAB, KAD, PAD = 0, 48, 60, 72, 78, 84
    MSK = 50
    rf = c.rec_flags
    I("s_lshl_b32 s42, s20, 2")
    I(f"s_add_u32 s42, s42, {TABOFF}")
    for p in range(6):
        if p == 5:
            I("s_cmp_ge_u32 s21, 7")
            I(f"v_mov_b32 v{TAB+5}, 0")
            e.branch("s_cbranch_scc1 L2_notab5")
        I(f"buffer_load_dword v{TAB+p}, v{VCH}, s[8:11], s42 offen {rf}")
        if p < 5: I(f"s_add_u32 s42, s42, {48*CSTRIDE}")
    e.label("L2_notab5")
    I("s_waitcnt vmcnt(0)")
    stamp(e, c, 1)
    for p in range(6):
        I(f"s_sub_u32 s42, {48*p}, s22")
        I(f"v_add_u32 v{VT0}, s42, v{VSEG}")
        I(f"v_cmp_gt_u32 vcc, s23, v{VT0}")
        I(f"v_and_b32 v{KAD+p}, 0xffff, v{TAB+p}")
        I(f"v_lshrrev_b32 v{TAB+p}, 16, v{TAB+p}")
        I(f"v_cndmask_b32 v{TAB+p}, 0, v{TAB+p}, vcc")
        I(f"v_add_u32 v{KAD+p}, v{KAD+p}, v{VJ}")
        I(f"v_lshl_add_u32 v{PAD+p}, v{KAD+p}, 4, v{VCH}")
        I(f"v_add_u32 v{KAD+p}, v{KAD+p}, v{VCH}")
        I(f"v_cmp_lt_u32 s[{MSK+4*p}:{MSK+4*p+1}], v{VJ}, v{TAB+p}")
        I(f"v_add_u32 v{VT0}, 16, v{VJ}")
        I(f"v_cmp_lt_u32 s[{MSK+4*p+2}:{MSK+4*p+3}], v{VT0}, v{TAB+p}")
        I(f"s_mov_b32 s{74+p}, {48*p*CSTRIDE}")
        I(f"s_mov_b32 s{80+p}, {48*p*CSTRIDE+KEYOFF}")
        I(f"v_cndmask_b32 v{PAD+p}, 2.0, v{PAD+p}, s[{MSK+4*p}:{MSK+4*p+1}]")
    e.flush()
    for p in range(6):
        I(f"s_mov_b64 exec, s[{MSK+4*p+2}:{MSK+4*p+3}]")
        I(f"s_cbranch_execz L2_w1skip{p}")
        I(f"buffer_load_ubyte v{KEY+2*p+1}, v{KAD+p}, s[8:11], s{80+p} offen offset:16 {rf}")
        I(f"buffer_load_dwordx4 v[{PAY+8*p+4}:{PAY+8*p+7}], v{PAD+p}, s[8:11], s{74+p} offen offset:256 {rf}")
        e.label(f"L2_w1skip{p}")
    for p in range(6):
        I(f"s_mov_b64 exec, s[{MSK+4*p}:{MSK+4*p+1}]")
        if p == 5: I("s_cbranch_execz L2_k5skip")
        I(f"buffer_load_ubyte v{KEY+2*p}, v{KAD+p}, s[8:11], s{80+p} offen {rf}")
    e.label("L2_k5skip")
    I("s_mov_b64 exec, -1")
    for p in range(6):
        if p == 5:
            I("s_cmp_ge_u32 s21, 7")
            I("s_cbranch_scc1 L2_p5skip")
        I(f"buffer_load_dwordx4 v[{PAY+8*p}:{PAY+8*p+3}], v{PAD+p}, s[8:11], s{74+p} offen {rf}")
    e.label("L2_p5skip")
    I("s_barrier")
    I("s_waitcnt vmcnt(5)")
    stamp(e, c, 2)
    for k in range(12):
        I(f"v_lshlrev_b32 v{KEY+k}, 2, v{KEY+k}")
    for p in range(6):
        for w in range(2):
            I(f"s_mov_b64 exec, s[{MSK+4*p+2*w}:{MSK+4*p+2*w+1}]")
            I(f"ds_add_rtn_u32 v{RNK+2*p+w}, v{KEY+2*p+w}, v{VONE} offset:{HIST}")
    I("s_mov_b64 exec, -1")
    I(f"v_max3_u32 v{VT0}, v{TAB}, v{TAB+1}, v{TAB+2}")
    I(f"v_max3_u32 v{VT0}, v{VT0}, v{TAB+3}, v{TAB+4}")
    I(f"v_max_u32 v{VT0}, v{VT0}, v{TAB+5}")
    I(f"v_cmp_lt_u32 vcc, 32, v{VT0}")
    I("s_mov_b32 s25, 0")
    e.flush()
    I("s_cmp_eq_u64 vcc, 0")
    I("s_cbranch_scc1 L2_noextraA")
    I("s_mov_b32 s25, 1")
    for p in range(6):
        I(f"v_add_u32 v{VT0}, 32, v{VJ}")
        I(f"v_add_u32 v{VT1}, 32, v{KAD+p}")
        e.label(f"L2_xa{p}")
        I(f"v_cmp_lt_u32 vcc, v{VT0}, v{TAB+p}")
        I("s_and_saveexec_b64 s[44:45], vcc")
        e.branch(f"s_cbranch_execz L2_xa{p}_done")
        I(f"buffer_load_ubyte v90, v{VT1}, s[8:11], s{80+p} offen")
        I("s_waitcnt vmcnt(0)")
        I("v_lshlrev_b32 v90, 2, v90")
        I(f"ds_add_u32 v90, v{VONE} offset:{HIST2}")
        I("s_mov_b64 exec, -1")
        I(f"v_add_u32 v{VT0}, 16, v{VT0}")
        I(f"v_add_u32 v{VT1}, 16, v{VT1}")
        e.branch(f"s_branch L2_xa{p}")
        e.label(f"L2_xa{p}_done")
        I("s_mov_b64 exec, -1")
    e.label("L2_noextraA")
    I("s_waitcnt lgkmcnt(0)")
    I("s_barrier")
    I(f"v_lshlrev_b32 v{VT0}, 2, v{VLANE}")
    I(f"ds_read_b32 v90, v{VT0} offset:{HIST}")
    I(f"ds_read_b32 v91, v{VT0} offset:{HIST2}")
    I("s_waitcnt lgkmcnt(0)")
    I("v_add_u32 v91, v90, v91")
    I("v_mov_b32 v92, v91")
    scan64(e, 92)
    I("v_readlane_b32 s42, v92, 63")
    I("v_sub_u32 v92, v92, v91")
    I(f"v_lshl_or_b32 v{VINFO}, v91, 16, v92")
    e.flush()
    I(f"s_cmp_gt_u32 s42, {CAP}")
    I("s_cbranch_scc1 L2_g_overflow")
    for k in range(12):
        I(f"ds_bpermute_b32 v{KEY+k}, v{KEY+k}, v92")
    I("s_waitcnt vmcnt(0) lgkmcnt(0)")
    stamp(e, c, 3)
    for k in range(12):
        I(f"v_add_lshl_u32 v{KEY+k}, v{KEY+k}, v{RNK+k}, 4")
    for p in range(6):
        for w in range(2):
            I(f"s_mov_b64 exec, s[{MSK+4*p+2*w}:{MSK+4*p+2*w+1}]")
            I(f"ds_write_b128 v{KEY+2*p+w}, v[{PAY+8*p+4*w}:{PAY+8*p+4*w+3}] offset:{RAW}")
    I("s_mov_b64 exec, -1")
    I("s_cmp_eq_u32 s25, 0")
    I("s_cbranch_scc1 L2_noextraB")
    I("v_add_u32 v92, v92, v90")
    for p in range(6):
        I(f"v_add_u32 v{VT0}, 32, v{VJ}")
        I(f"v_add_u32 v{VT1}, 32, v{KAD+p}")
        I(f"v_add_u32 v93, 512, v{PAD+p}")
        e.label(f"L2_xb{p}")
        I(f"v_cmp_lt_u32 vcc, v{VT0}, v{TAB+p}")
        I("s_and_saveexec_b64 s[44:45], vcc")
        e.branch(f"s_cbranch_execz L2_xb{p}_done")
        I(f"buffer_load_ubyte v94, v{VT1}, s[8:11], s{80+p} offen")
        I(f"buffer_load_dwordx4 v[96:99], v93, s[8:11], s{74+p} offen")
        I("s_waitcnt vmcnt(0)")
        I("v_lshlrev_b32 v94, 2, v94")
        I(f"ds_add_rtn_u32 v95, v94, v{VONE} offset:{CUR2}")
        I("s_mov_b64 exec, -1")
        I("ds_bpermute_b32 v94, v94, v92")
        I("s_waitcnt lgkmcnt(0)")
        I("v_add_lshl_u32 v94, v94, v95, 4")
        I("s_mov_b64 exec, vcc")
        I(f"ds_write_b128 v94, v[96:99] offset:{RAW}")
        I("s_mov_b64 exec, -1")
        I(f"v_add_u32 v{VT0}, 16, v{VT0}")
        I(f"v_add_u32 v{VT1}, 16, v{VT1}")
        I("v_add_u32 v93, 256, v93")
        e.branch(f"s_branch L2_xb{p}")
        e.label(f"L2_xb{p}_done")
        I("s_mov_b64 exec, -1")
    e.label("L2_noextraB")
    ACC, LD, B, A, AD = 0, 32, 64, 96, 100
    for k in range(32):
        I(f"v_mov_b32 v{LD+k}, 0")
    I("s_waitcnt lgkmcnt(0)")
    I("s_barrier")
    stamp(e, c, 4)

    sNA, sNR, sNH, sNN, sNF, sNV = 32, 33, 34, 35, 36, 37
    sCN, sCH, sCF, sCL = 38, 39, 40, 41

    def fetch_issue():
        I("s_mov_b64 exec, 1")
        I(f"ds_add_rtn_u32 v{VNEXT}, v{VZERO}, v{VONE} offset:{NEXT}")
        I("s_mov_b64 exec, -1")
    def setup_item(tag):
        I(f"v_readfirstlane_b32 s42, v{VNEXT}")
        I(f"s_mov_b32 s{sNV}, 0")
        e.flush()
        I(f"s_cmp_ge_u32 s42, {2*NODES}")
        I(f"s_cbranch_scc1 L2_noitem{tag}")
        I(f"s_cmp_ge_u32 s42, {NODES}")
        I(f"s_cselect_b32 s{sNH}, 256, 0")
        I(f"s_cselect_b32 s43, {NODES}, 0")
        I(f"s_sub_u32 s{sNN}, s42, s43")
        I(f"v_readlane_b32 s42, v{VINFO}, s{sNN}")
        I(f"s_mov_b32 s{sNV}, 1")
        I(f"s_mov_b32 s{sNF}, 1")
        e.flush()
        I(f"s_lshr_b32 s{sNR}, s42, 16")
        I("s_and_b32 s42, s42, 0xffff")
        I(f"s_lshl_b32 s{sNA}, s42, 4")
        e.label(f"L2_noitem{tag}")
    def prep_reads(tag):
        I(f"v_add_u32 v{VT0}, s{sNA}, v{VSRCC}")
        I(f"v_add_u32 v{VT1}, s{sNA}, v{VRAWC}")
        for i in range(8):
            I(f"ds_read_u16 v{AD+i}, v{VT0} offset:{RAW+64*i}")
        I(f"ds_read_b128 v[{B}:{B+3}], v{VT1} offset:{RAW}")
        I(f"s_cmp_gt_u32 s{sNR}, 32")
        I(f"s_cbranch_scc1 L2_nofetch{tag}")
        fetch_issue()
        e.label(f"L2_nofetch{tag}")
    def prep_compute():
        for i in range(8):
            I(f"v_lshl_add_u32 v{AD+i}, v{AD+i}, 9, v{VLOFF}")
        r = B
        if c.x_noexp:
            I(f"ds_write_b128 v{VSCRW}, v[{r+20}:{r+23}]")
            return
        I(f"v_cmp_gt_u32 vcc, s{sNR}, v{VSLOT}")
        I(f"v_lshlrev_b32 v{r+4}, 16, v{r}")
        I(f"v_and_b32 v{r+5}, s30, v{r}")
        I(f"v_lshlrev_b32 v{r+6}, 16, v{r+1}")
        I(f"v_and_b32 v{r+7}, s30, v{r+1}")
        I(f"v_and_b32 v{r+8}, s30, v{r+2}")
        I(f"v_cndmask_b32 v{r+10}, v{r+2}, v{r+3}, s[26:27]")
        I(f"v_cndmask_b32 v{r+8}, 1.0, v{r+8}, s[26:27]")
        I(f"v_lshlrev_b32 v{r+10}, 16, v{r+10}")
        for k in range(4):
            I(f"v_mul_f32 v{r+12+k}, v{r+4+k}, v{r+8}")
        for k in range(4):
            I(f"v_mul_f32 v{r+16+k}, v{r+4+k}, v{r+10}")
        for k in range(4):
            I(f"v_cvt_pk_bf16_f32 v{r+20+k}, v{r+12+2*k}, v{r+13+2*k}")
        for k in range(4):
            I(f"v_cndmask_b32 v{r+20+k}, 0, v{r+20+k}, vcc")
        I(f"ds_write_b128 v{VSCRW}, v[{r+20}:{r+23}]")
    def issue_loads(tag):
        def ld(i):
            if c.x_noload: return
            I(f"buffer_load_dwordx4 v[{LD+4*i}:{LD+4*i+3}], v{AD+i}, s[4:7], {'0' if c.x_samehalf else 's%d' % sNH} offen")
        I(f"s_cmp_gt_u32 s{sNR}, 28")
        I(f"s_cbranch_scc1 L2_ldfull{tag}")
        for i in range(7):
            I(f"s_cmp_le_u32 s{sNR}, {4*i}")
            I(f"s_cbranch_scc1 L2_lddone{tag}")
            ld(i)
        I(f"s_branch L2_lddone{tag}")
        e.label(f"L2_ldfull{tag}")
        for i in range(8): ld(i)
        e.label(f"L2_lddone{tag}")

    fetch_issue()
    I("s_waitcnt lgkmcnt(0)")
    setup_item("0")
    I(f"s_cmp_eq_u32 s{sNV}, 0")
    I("s_cbranch_scc1 L2_g_done")
    prep_reads("0")
    I("s_waitcnt lgkmcnt(0)")
    prep_compute()
    issue_loads("0")
    e.label("L2_loop")
    I(f"s_mov_b32 s{sCN}, s{sNN}")
    I(f"s_mov_b32 s{sCH}, s{sNH}")
    I(f"s_mov_b32 s{sCF}, s{sNF}")
    I(f"ds_read_b64_tr_b16 v[{A}:{A+1}], v{VTRA}")
    I(f"ds_read_b64_tr_b16 v[{A+2}:{A+3}], v{VTRA} offset:512")
    I(f"s_cmp_gt_u32 s{sNR}, 32")
    I("s_cbranch_scc0 L2_adv_item")
    I(f"s_mov_b32 s{sCL}, 0")
    I(f"s_sub_u32 s{sNR}, s{sNR}, 32")
    I(f"s_add_u32 s{sNA}, s{sNA}, 512")
    I(f"s_mov_b32 s{sNF}, 0")
    I("s_branch L2_adv_done")
    e.label("L2_adv_item")
    I(f"s_mov_b32 s{sCL}, 1")
    setup_item("1")
    I(f"s_cmp_eq_u32 s{sNV}, 0")
    I("s_cbranch_scc1 L2_noprep")
    e.label("L2_adv_done")
    prep_reads("1")
    I("s_waitcnt lgkmcnt(0)")
    prep_compute()
    e.label("L2_noprep")
    I("s_waitcnt vmcnt(0)")
    for q in range(8):
        for jj in range(4):
            if c.x_noperm: continue
            I(f"v_perm_b32 v{B+4*q+jj}, v{LD+4*(2*jj+1)+q//2}, v{LD+4*(2*jj)+q//2}, s{29 if q & 1 else 28}")
    I(f"s_cmp_eq_u32 s{sNV}, 0")
    I("s_cbranch_scc1 L2_noload")
    issue_loads("1")
    e.label("L2_noload")
    I("s_waitcnt lgkmcnt(0)")
    I(f"s_cmp_eq_u32 s{sCF}, 0")
    I("s_cbranch_scc1 L2_mf_acc")
    for q in range(8):
        if c.x_nomfma: continue
        I(f"v_mfma_f32_16x16x32_bf16 v[{ACC+4*q}:{ACC+4*q+3}], v[{A}:{A+3}], v[{B+4*q}:{B+4*q+3}], 0")
    I("s_branch L2_mf_done")
    e.label("L2_mf_acc")
    for q in range(8):
        if c.x_nomfma: continue
        I(f"v_mfma_f32_16x16x32_bf16 v[{ACC+4*q}:{ACC+4*q+3}], v[{A}:{A+3}], v[{B+4*q}:{B+4*q+3}], v[{ACC+4*q}:{ACC+4*q+3}]")
    e.label("L2_mf_done")
    I(f"s_cmp_eq_u32 s{sCL}, 0")
    I("s_cbranch_scc1 L2_loop")
    I(f"s_lshl_b32 s42, s{sCH}, 5")
    I(f"v_add_u32 v{VT0}, s42, v{VWR}")
    for q in range(8):
        I(f"ds_read_b128 v[{B+4*q}:{B+4*q+3}], v{VT0} offset:{q*1024}")
    I(f"s_lshr_b32 s43, s{sCN}, 4")
    I(f"s_lshl_b32 s43, s43, 2")
    I(f"s_cmp_eq_u32 s{sCH}, 0")
    I("s_cbranch_scc1 L2_nowar")
    I(f"v_mov_b32 v{VT1}, s43")
    I("s_mov_b32 s45, 0")
    e.label("L2_war")
    I(f"ds_read_b32 v{VT0}, v{VT1} offset:{GDONE}")
    I("s_waitcnt lgkmcnt(0)")
    I(f"v_readfirstlane_b32 s44, v{VT0}")
    e.flush()
    I("s_cmp_ge_u32 s44, 4")
    I("s_cbranch_scc1 L2_war_ok")
    I("s_add_u32 s45, s45, 1")
    I("s_cmp_lt_u32 s45, 0x400000")
    I("s_cbranch_scc1 L2_war")
    e.label("L2_war_ok")
    I("s_add_u32 s43, s43, 16")
    e.label("L2_nowar")
    I(f"s_and_b32 s44, s{sCN}, 15")
    I("s_lshl_b32 s44, s44, 4")
    I(f"s_lshl_b32 s45, s{sCN}, 10")
    I(f"s_add_u32 s45, s45, {T}")
    I(f"v_xor_b32 v{VT0}, s44, v{VL16}")
    I(f"v_add_u32 v{VT0}, s45, v{VT0}")
    I(f"v_mov_b32 v{VT1}, s43")
    I("s_waitcnt lgkmcnt(0)")
    e.nop(2)
    for q in range(8):
        I(f"v_mul_f32 v{B+4*q}, v{B+4*q}, v{ACC+4*q}")
    for d in range(1, 4):
        for q in range(8):
            I(f"v_fmac_f32 v{B+4*q}, v{B+4*q+d}, v{ACC+4*q+d}")
    for k in range(4):
        I(f"v_cvt_pk_bf16_f32 v{A+k}, v{B+8*k}, v{B+8*k+4}")
    I(f"ds_write_b128 v{VT0}, v[{A}:{A+3}]")
    I("s_waitcnt lgkmcnt(0)")
    I("s_mov_b64 exec, 1")
    I(f"ds_add_u32 v{VT1}, v{VONE} offset:{DONE}")
    I("s_mov_b64 exec, -1")
    I(f"s_cmp_lg_u32 s{sNV}, 0")
    I("s_cbranch_scc1 L2_loop")
    e.label("L2_g_done")
    stamp(e, c, 5)
    I("s_cmp_lg_u32 s24, 0")
    e.branch("s_cbranch_scc1 L2_g_exit")
    I("s_waitcnt lgkmcnt(0)")
    I("s_barrier")
    I("s_add_u32 s22, s22, 1")
    I(f"s_cmp_eq_u32 s22, {NCH-1}")
    I("s_cselect_b32 s24, 1, 0")
    e.branch("s_branch L2_g_round")
    e.label("L2_g_overflow")
    I("s_waitcnt vmcnt(0)")
    I("s_mov_b32 s22, 0")
    I("s_mov_b32 s23, 1")
    I("s_mov_b32 s24, 0")
    I("s_barrier")
    e.branch("s_branch L2_g_round")
    e.label("L2_g_exit")
    stamp_store(e, c, 8, 1, 90)
    I("s_endpgm")

    e.label("L2_gemm")
    W, G, TA, TF = 0, 40, 104, 108
    X0, X1 = 124, 125
    if c.stamps: X0, X1 = 124, 125
    I("v_and_b32 v104, 63, v0")
    I("v_mov_b32 v117, v0")
    I("v_lshlrev_b32 v105, 4, v104")
    I("s_lshl_b32 s42, s21, 10")
    I(f"s_add_u32 s42, s42, {WFOFF}")
    for f in range(10):
        I(f"buffer_load_dwordx4 v[{W+4*f}:{W+4*f+3}], v105, s[8:11], s42 offen")
        if f < 9: I("s_add_u32 s42, s42, 4096")
    lut = 0
    for jp in range(4):
        for blk in range(4):
            p, i, s = path_of(jp, blk)
            lut |= (p | (8 if s < 0 else 0)) << (4 * (jp * 4 + blk))
    I(f"s_mov_b32 s44, {lut & 0xffffffff}")
    I(f"s_mov_b32 s45, {lut >> 32}")
    for h in range(2):
        I("v_lshrrev_b32 v106, 4, v104")
        I("v_bfe_u32 v107, v104, 3, 1")
        I("v_lshl_add_u32 v106, v106, 2, v107")
        I(f"v_add_lshl_u32 v106, v106, {2*h}, 2")
        I(f"v_lshrrev_b64 v[108:109], v106, s[44:45]")
        I(f"v_and_b32 v106, 7, v108")
        I(f"v_and_b32 v{110+h}, 8, v108")
        I(f"v_lshlrev_b32 v{110+h}, 28, v{110+h}")
        I("v_and_b32 v107, 7, v104")
        I("v_lshlrev_b32 v107, 3, v107")
        I("v_lshl_add_u32 v106, v106, 6, v107")
        I("v_add_u32 v106, s21, v106")
        I(f"v_lshlrev_b32 v{112+h}, 1, v106")
    for k in range(4):
        h, qo = k >> 1, (k & 1) * 4
        for d in range(4):
            I(f"buffer_load_ushort v{G+4*k+d}, v{112+h}, s[16:19], 0 offen offset:{d*640+qo*2}")
    prefetch_x(e, c, c.pf2_lines, 114, 117, 256, 31, 0, 4, "p")
    I("s_lshl_b32 s42, s21, 10")
    I(f"s_add_u32 s42, s42, {WRAD}")
    I("v_add_u32 v105, s42, v105")
    npf = (c.pf2_lines + 255) // 256
    I(f"s_waitcnt vmcnt({npf})")
    for k in range(4):
        h = k >> 1
        for d in range(4):
            I(f"v_lshlrev_b32 v{G+4*k+d}, 16, v{G+4*k+d}")
            I(f"v_xor_b32 v{G+4*k+d}, v{110+h}, v{G+4*k+d}")
        I(f"ds_write_b128 v105, v[{G+4*k}:{G+4*k+3}] offset:{(k>>1)*8192 + (k&1)*4096}")
    I("v_and_b32 v106, 15, v104")
    I("v_lshrrev_b32 v107, 4, v104")
    I(f"v_lshlrev_b32 v{X0}, 2, v104")
    I(f"s_mul_i32 s42, s20, {NODES*512}")
    I("s_lshl_b32 s43, s21, 5")
    I("s_add_u32 s42, s42, s43")
    I(f"v_lshlrev_b32 v{X1}, 9, v106")
    I(f"v_lshl_add_u32 v{X1}, v107, 3, v{X1}")
    I(f"v_add_u32 v{X1}, s42, v{X1}")
    I(f"v_cmp_gt_u32 s[50:51], {NODES-48}, v106")
    I("v_lshlrev_b32 v108, 10, v106")
    I(f"v_add_u32 v108, {T}, v108")
    for u in (3, 2, 1, 0):
        I(f"v_add_u32 v109, {4*u}, v107")
        I("v_xor_b32 v109, v109, v106")
        I(f"v_lshl_add_u32 v{TF+4+u}, v109, 4, v108")
    I("s_waitcnt lgkmcnt(0)")
    for u in range(4):
        I(f"v_mov_b32 v{TA+u}, v{TF+4+u}")
    for k in range(64):
        I(f"v_mov_b32 v{G+k}, 0")
    e.label("L2_m_round")
    I("s_cmp_lg_u32 s21, 0")
    I("s_cbranch_scc1 L2_m_nz")
    I(f"v_mov_b32 v{TF}, 0"); I(f"v_mov_b32 v{TF+1}, 0"); I(f"v_mov_b32 v{TF+2}, 0"); I(f"v_mov_b32 v{TF+3}, 0")
    I(f"v_lshlrev_b32 v{TF+4}, 2, v{X0}")
    I(f"ds_write_b128 v{TF+4}, v[{TF}:{TF+3}] offset:{HIST}")
    I("s_waitcnt lgkmcnt(0)")
    e.label("L2_m_nz")
    I("s_barrier")
    I("s_barrier")
    I(f"ds_read_b32 v{TF}, v{X0} offset:{HIST}")
    I(f"ds_read_b32 v{TF+1}, v{X0} offset:{HIST2}")
    I("s_waitcnt lgkmcnt(0)")
    I(f"v_add_u32 v{TF}, v{TF}, v{TF+1}")
    scan64(e, TF)
    I(f"v_readlane_b32 s42, v{TF}, 63")
    e.flush()
    I(f"s_cmp_gt_u32 s42, {CAP}")
    I("s_cbranch_scc1 L2_m_overflow")
    I("s_barrier")
    I("s_waitcnt vmcnt(0)")
    stamp(e, c, 4)
    for h in range(2):
        for t in range(4):
            need = 16 if t < 3 else NODES - 48
            I(f"v_mov_b32 v{TF}, 0")
            I("s_mov_b32 s43, 0")
            e.label(f"L2_poll{h}{t}")
            I(f"ds_read_b32 v{TF+1}, v{TF} offset:{DONE + 16*h + 4*t}")
            I("s_waitcnt lgkmcnt(0)")
            I(f"v_readfirstlane_b32 s42, v{TF+1}")
            e.flush()
            I(f"s_cmp_ge_u32 s42, {need}")
            I(f"s_cbranch_scc1 L2_go{h}{t}")
            I("s_sleep 2")
            I("s_add_u32 s43, s43, 1")
            I("s_cmp_lt_u32 s43, 0x400000")
            I(f"s_cbranch_scc1 L2_poll{h}{t}")
            e.label(f"L2_go{h}{t}")
            stamp(e, c, 7 + 4*h + t)
            def rd(ks):
                I(f"ds_read_b128 v[{TF+4*(ks&3)}:{TF+4*(ks&3)+3}], v{TA+(ks&3)} offset:{t*16384 + (ks>>2)*256}")
            for ks in range(4): rd(ks)
            for ks in range(16):
                jp, blk = ks >> 2, 2 * h + ((ks >> 1) & 1)
                p, i, s = path_of(jp, blk)
                f = p * 2 + (ks & 1)
                I(f"s_waitcnt lgkmcnt({min(3, 15-ks)})")
                g = G + 16 * t + 4 * i
                I(f"v_mfma_f32_16x16x32_bf16 v[{g}:{g+3}], v[{W+4*f}:{W+4*f+3}], v[{TF+4*(ks&3)}:{TF+4*(ks&3)+3}], v[{g}:{g+3}]")
                if ks + 4 < 16: rd(ks + 4)
            if h == 0:
                I(f"v_mov_b32 v{TF}, 0")
                I(f"v_mov_b32 v{TF+1}, 1")
                I("s_mov_b64 exec, 1")
                I(f"ds_add_u32 v{TF}, v{TF+1} offset:{GDONE + 4*t}")
                I("s_mov_b64 exec, -1")
                if t == c.pf2b_tile:
                    if c.pf2b_lines:
                        I("s_lshl_b32 s42, s21, 6")
                        I(f"v_lshrrev_b32 v{TF+3}, 2, v{X0}")
                        I(f"v_add_u32 v{TF+3}, s42, v{TF+3}")
                    prefetch_x(e, c, c.pf2b_lines, TF + 4, TF + 3, 256, 31, 1, 4, "q")
                    if c.pf2b_lines: I("s_waitcnt vmcnt(0)")
            else:
                I("s_cmp_eq_u32 s24, 0")
                e.branch(f"s_cbranch_scc1 L2_nofin{t}")
                g = G + 16 * t
                I("s_mov_b32 s42, 0xbfb8aa3b")
                for r in range(4): I(f"v_mul_f32 v{TF+r}, s42, v{g+r}")
                for r in range(4): I(f"v_exp_f32 v{TF+r}, v{TF+r}")
                for r in range(4): I(f"v_add_f32 v{TF+r}, 1.0, v{TF+r}")
                for r in range(4): I(f"v_rcp_f32 v{TF+r}, v{TF+r}")
                for i in range(1, 4):
                    for r in range(4): I(f"v_mul_f32 v{g+4*i+r}, v{g+4*i+r}, v{TF+r}")
                for i in range(4):
                    I(f"v_cvt_pk_bf16_f32 v{TF+4+2*i}, v{g+4*i}, v{g+4*i+1}")
                    I(f"v_cvt_pk_bf16_f32 v{TF+5+2*i}, v{g+4*i+2}, v{g+4*i+3}")
                I(f"s_mov_b32 s42, {t*16*512}")
                if t == 3: I("s_mov_b64 exec, s[50:51]")
                for i in range(4):
                    I(f"buffer_store_dwordx2 v[{TF+4+2*i}:{TF+5+2*i}], v{X1}, s[12:15], s42 offen offset:{i*128} {c.out_flags}")
                if t == 3: I("s_mov_b64 exec, -1")
                e.label(f"L2_nofin{t}")
    stamp(e, c, 5)
    I("s_cmp_lg_u32 s24, 0")
    e.branch("s_cbranch_scc1 L2_m_exit")
    I("s_waitcnt lgkmcnt(0)")
    I("s_barrier")
    I("s_add_u32 s22, s22, 1")
    I(f"s_cmp_eq_u32 s22, {NCH-1}")
    I("s_cselect_b32 s24, 1, 0")
    e.branch("s_branch L2_m_round")
    e.label("L2_m_overflow")
    I("s_mov_b32 s22, 0")
    I("s_mov_b32 s23, 1")
    I("s_mov_b32 s24, 0")
    I("s_barrier")
    e.branch("s_branch L2_m_round")
    e.label("L2_m_exit")
    if c.stamps:
        I("s_waitcnt vmcnt(0)")
        stamp(e, c, 6)
        stamp_store(e, c, 8, 1, TF)
    e.label("L2_end")
    I("s_endpgm")
    return name, 128, 96

HEADER = """; equiformer tensor-product message passing: bin edges by destination (eqsort), then per bin of 50 nodes
"""

def gen_probe(e, c):
    kA, a0, a1, sA, oA, kB, b0, b1, sB, oB = c.probe.split(",")
    kernel_header(e, "eqprobe_kernel")
    I = e.I
    I("s_cmp_ge_u32 s2, 1")
    I("s_cbranch_scc1 LP_end")
    I("s_memrealtime s[20:21]")
    I("s_load_dwordx2 s[4:5], s[0:1], 88")
    I("s_waitcnt lgkmcnt(0)")
    srd(e, 8, 4, 32 << 20)
    I("v_min_u32 v1, 249, v0")
    I("v_lshlrev_b32 v1, 10, v1")
    I("v_mov_b32 v10, 0"); I("v_mov_b32 v11, -1"); I("v_mov_b32 v12, 0")
    I("ds_write_b32 v10, v11 offset:0"); I("ds_write_b32 v10, v12 offset:4"); I("ds_write_b32 v10, v11 offset:8"); I("ds_write_b32 v10, v12 offset:12")
    I("s_waitcnt lgkmcnt(0)"); I("s_barrier")
    regs = []
    for (k, w0, w1, sl, off) in ((kA, a0, a1, sA, 0), (kB, b0, b1, sB, 8)):
        if k == "now":
            I(f"v_mov_b32 v{16+len(regs)}, s20"); regs.append(off); continue
        I(f"s_mov_b32 s12, {(16 + int(k)) << 20}")
        for w in range(int(w0), int(w1)):
            I(f"buffer_load_dword v{16+len(regs)}, v1, s[8:11], s12 offen offset:{w*64 + int(sl)*4}")
            regs.append(off)
    I("s_waitcnt vmcnt(0)")
    for n, off in enumerate(regs):
        I(f"ds_min_u32 v10, v{16+n} offset:{off}")
        I(f"ds_max_u32 v10, v{16+n} offset:{off+4}")
    I("s_waitcnt lgkmcnt(0)"); I("s_barrier")
    I(f"ds_read_b32 v3, v10 offset:{0 if oA == 'min' else 4}")
    I(f"ds_read_b32 v4, v10 offset:{8 if oB == 'min' else 12}")
    I("s_waitcnt lgkmcnt(0)")
    I("v_sub_u32 v3, v3, v4")
    I("v_min_u32 v3, 0x2000, v3")
    I("v_readfirstlane_b32 s14, v3")
    I("s_memrealtime s[16:17]")
    I("s_mul_i32 s14, s14, 10")
    I("s_waitcnt lgkmcnt(0)")
    e.label("LP_spin")
    I("s_memrealtime s[18:19]")
    I("s_waitcnt lgkmcnt(0)")
    I("s_sub_u32 s18, s18, s16")
    I("s_cmp_lt_u32 s18, s14")
    I("s_cbranch_scc1 LP_spin")
    e.label("LP_end")
    I("s_endpgm")
    return "eqprobe_kernel", 64, 32

def generate(c):
    e = Emitter()
    e.raw('.amdgcn_target "amdgcn-amd-amdhsa--gfx950"')
    e.raw(".text")
    k1 = gen_k1(e, c)
    k2 = gen_k2(e, c)
    head = HEADER
    dk = ""
    if c.dummy:
        kernel_header(e, "eqdummy_kernel")
        e.I("s_endpgm")
        dk = ".p2align 6\n" + kd("eqdummy_kernel", 8, 16)
    if c.dummy == 2: head += "; @launch kernel=eqdummy_kernel grid=(1,1,1) block=(64,1,1) lds=0\n"
    head += f"; @launch kernel={k1[0]} grid=(256,1,1) block=(1024,1,1) lds={K1_LDS}\n"
    head += f"; @launch kernel={k2[0]} grid=(250,1,1) block=(1024,1,1) lds={c.k2_lds}\n"
    if c.probe:
        kp = gen_probe(e, c)
        dk += ".p2align 6\n" + kd(*kp)
        head += "; @launch kernel=eqprobe_kernel grid=(1,1,1) block=(256,1,1) lds=64\n"
    if c.dummy == 1: head += "; @launch kernel=eqdummy_kernel grid=(1,1,1) block=(64,1,1) lds=0\n"
    tail = '.section .rodata,"a"\n.p2align 6\n' + kd(*k1) + ".p2align 6\n" + kd(*k2) + dk
    return head + e.text() + tail

if __name__ == "__main__":
    c = Cfg()
    out = sys.argv[1]
    for kv in sys.argv[2:]:
        k, v = kv.split("=", 1)
        old = getattr(c, k)
        setattr(c, k, type(old)(int(v)) if isinstance(old, (bool, int)) else v.replace("+", " "))
    open(out, "w").write(generate(c))
```

```python
import sys
from emit import Emitter

N, E = 12500, 800000
NB, NODES = 250, 50
NCH, CH = 250, 3200
CSTRIDE = 55424
KEYOFF, TABOFF = 51200, 54400
WFOFF = NCH * CSTRIDE
WSBYTES = WFOFF + 40960

class Cfg:
    pf1_lines = 0
    pf1_pos = "late"
    st_flags = "sc1"
    ld_flags = ""
    rec_flags = ""
    out_flags = ""
    pf2_lines = 0
    pf2b_lines = 0
    pf2b_tile = 2
    stamps = False
    cap = 3584
    x_noperm = 0
    x_noexp = 0
    x_nomfma = 0
    x_noload = 0
    x_samehalf = 0
    dbgstamps = 0
    probe = ""
    prio = 0
    codepf = 0
    dummy = 0

def srd(e, d, b, nbytes):
    e.I(f"s_mov_b32 s{d}, s{b}")
    e.I(f"s_mov_b32 s{d+1}, s{b+1}")
    e.I(f"s_mov_b32 s{d+2}, {nbytes}")
    e.I(f"s_mov_b32 s{d+3}, 0x20000")

def scan64(e, v):
    for sh in (1, 2, 4, 8):
        e.I(f"v_add_u32_dpp v{v}, v{v}, v{v} row_shr:{sh} row_mask:0xf bank_mask:0xf")
    e.I(f"v_add_u32_dpp v{v}, v{v}, v{v} row_bcast:15 row_mask:0xa bank_mask:0xf")
    e.I(f"v_add_u32_dpp v{v}, v{v}, v{v} row_bcast:31 row_mask:0xc bank_mask:0xf")

def prefetch_x(e, c, nlines, vt, vtid, nthreads, slice_s, half, srdx, tag):
    if nlines <= 0: return
    e.I(f"s_mul_i32 s46, s{slice_s}, 782")
    it = (nlines + nthreads - 1) // nthreads
    for k in range(it):
        e.I(f"v_add_u32 v{vt}, {k*nthreads}, v{vtid}")
        lim = nlines
        e.I(f"v_cmp_gt_u32 vcc, {lim}, v{vt}" if lim <= 64 else f"s_mov_b32 s47, {lim}")
        if lim > 64: e.I(f"v_cmp_gt_u32 vcc, s47, v{vt}")
        e.I(f"v_add_u32 v{vt}, s46, v{vt}")
        e.I(f"v_and_b32 v{vt+1}, 1, v{vt}")
        e.I(f"v_lshrrev_b32 v{vt}, 1, v{vt}")
        e.I(f"v_lshlrev_b32 v{vt}, 9, v{vt}")
        e.I(f"v_lshl_add_u32 v{vt}, v{vt+1}, 7, v{vt}")
        e.I(f"v_cndmask_b32 v{vt}, 2.0, v{vt}, vcc")
        e.I(f"buffer_load_dword v{vt+2}, v{vt}, s[{srdx}:{srdx+3}], 0 offen offset:{half*256}")

def stamp(e, c, slot, tmp_s=90):
    if not c.stamps: return
    e.I(f"s_memrealtime s[{tmp_s}:{tmp_s+1}]")
    e.I("s_waitcnt lgkmcnt(0)")
    e.I(f"v_writelane_b32 v{c.stampv}, s{tmp_s}, {slot}")

def stamp_store(e, c, srdws, kid, vtmp, role=0):
    if not c.stamps: return
    if c.dbgstamps:
        e.I("s_load_dwordx2 s[92:93], s[0:1], 80")
        e.I("s_waitcnt lgkmcnt(0)")
        if not kid: e.I("s_add_u32 s92, s92, 512"); e.I("s_addc_u32 s93, s93, 0")
        e.I("s_mov_b32 s88, s92"); e.I("s_mov_b32 s89, s93"); e.I("s_mov_b32 s90, 64"); e.I("s_mov_b32 s91, 0x20000")
        e.I(f"v_readlane_b32 s94, v{c.stampv}, 0")
        e.I("s_nop 4")
        e.I("s_not_b32 s94, s94")
        e.I(f"v_writelane_b32 v{c.stampv}, s94, 7")
        e.I(f"v_and_b32 v{vtmp+1}, 63, v{c.tidv}")
        e.I(f"v_lshlrev_b32 v{vtmp}, 2, v{vtmp+1}")
        e.I(f"v_and_b32 v{vtmp+1}, 0x2ff, v{c.tidv}")
        e.I(f"v_cmp_gt_u32 vcc, 8, v{vtmp+1}")
        e.I(f"v_cndmask_b32 v{vtmp}, 2.0, v{vtmp}, vcc")
        e.I(f"buffer_atomic_umax v{c.stampv}, v{vtmp}, s[88:91], 0 offen offset:{kid*32}")
        return
    e.I(f"v_lshrrev_b32 v{vtmp}, 6, v{c.tidv}")
    e.I(f"s_lshl_b32 s90, s2, 4")
    e.I(f"v_add_u32 v{vtmp}, s90, v{vtmp}")
    e.I(f"v_lshlrev_b32 v{vtmp}, 6, v{vtmp}")
    e.I(f"v_and_b32 v{vtmp+1}, 63, v{c.tidv}")
    e.I(f"v_lshl_add_u32 v{vtmp}, v{vtmp+1}, 2, v{vtmp}")
    e.I(f"v_cmp_gt_u32 vcc, 16, v{vtmp+1}")
    e.I(f"v_cndmask_b32 v{vtmp}, 2.0, v{vtmp}, vcc")
    e.I(f"s_mov_b32 s90, {(16+kid) << 20}")
    e.I(f"buffer_store_dword v{c.stampv}, v{vtmp}, s[{srdws}:{srdws+3}], s90 offen")

def kernel_header(e, name):
    e.raw(f".globl {name}")
    e.raw(".p2align 8")
    e.raw(f".type {name},@function")
    e.raw(f"{name}:")
    e.hist = []

def kd(name, nv, ns):
    return f""".amdhsa_kernel {name}
  .amdhsa_next_free_vgpr {nv}
  .amdhsa_next_free_sgpr {ns}
  .amdhsa_accum_offset {(nv+3)//4*4}
  .amdhsa_group_segment_fixed_size 0
  .amdhsa_kernarg_size 96
  .amdhsa_user_sgpr_count 2
  .amdhsa_user_sgpr_kernarg_segment_ptr 1
  .amdhsa_system_sgpr_workgroup_id_x 1
  .amdhsa_float_denorm_mode_32 3
.end_amdhsa_kernel
"""

K1_HIST = 55424
K1_BASE = K1_HIST + 1024
K1_LDS = K1_BASE + 1024

def gen_k1(e, c):
    name = "eqsort_kernel"
    kernel_header(e, name)
    c.stampv, c.tidv = 60, 0
    I = e.I
    wsbytes = (32 << 20) if c.stamps else WSBYTES
    I("s_cmp_ge_u32 s2, 256")
    I("s_cbranch_scc1 L1_end")
    if c.stamps: I("v_mov_b32 v60, 0")
    stamp(e, c, 0)
    I("s_load_dwordx4 s[4:7], s[0:1], 0")
    I("s_load_dwordx4 s[8:11], s[0:1], 16")
    I("s_load_dwordx2 s[12:13], s[0:1], 32")
    I("s_load_dwordx4 s[16:19], s[0:1], 48")
    I("s_load_dwordx2 s[14:15], s[0:1], 88")
    I("v_lshlrev_b32 v1, 4, v0")
    I("v_lshlrev_b32 v2, 5, v0")
    I("v_mul_u32_u24 v3, 24, v0")
    I("v_lshlrev_b32 v40, 2, v0")
    I("v_mov_b32 v41, 0")
    I("v_mov_b32 v42, 1")
    I("s_mul_i32 s44, s2, 12800")
    I("s_mul_i32 s45, s2, 25600")
    I("s_mul_i32 s50, s2, 19200")
    I(f"s_mul_i32 s51, s2, {CSTRIDE}")
    I("s_lshr_b32 s52, s2, 3")
    I("s_mov_b32 s53, -50")
    I("s_movk_i32 s54, 800")
    I("v_readfirstlane_b32 s55, v0")
    I("s_lshr_b32 s55, s55, 6")
    I("v_subrev_u32 v50, 832, v0")
    I("s_waitcnt lgkmcnt(0)")
    srd(e, 20, 4, N * 512)
    srd(e, 24, 6, E * 6)
    srd(e, 28, 8, E * 8)
    srd(e, 32, 10, E * 4)
    srd(e, 36, 12, E * 4)
    srd(e, 40, 14, wsbytes)
    I("s_cmp_ge_u32 s2, 250")
    e.branch("s_cbranch_scc1 L1_helper")
    I("s_cmp_ge_u32 s55, 13")
    e.branch("s_cbranch_scc1 L1_idle0")
    I("v_cmp_gt_u32 vcc, s54, v0")
    I("s_and_saveexec_b64 s[48:49], vcc")
    lf = c.ld_flags
    I(f"buffer_load_dwordx4 v[4:7], v1, s[36:39], s44 offen {lf}")
    I(f"buffer_load_dwordx4 v[8:11], v1, s[32:35], s44 offen {lf}")
    I(f"buffer_load_dwordx4 v[12:15], v2, s[28:31], s45 offen {lf}")
    I(f"buffer_load_dwordx4 v[16:19], v2, s[28:31], s45 offen offset:16 {lf}")
    I(f"buffer_load_dwordx4 v[20:23], v3, s[24:27], s50 offen {lf}")
    I(f"buffer_load_dwordx2 v[24:25], v3, s[24:27], s50 offen offset:16 {lf}")
    I("s_mov_b64 exec, s[48:49]")
    I("s_cmp_ge_u32 s55, 4")
    e.branch("s_cbranch_scc1 L1_nz")
    I(f"ds_write_b32 v40, v41 offset:{K1_HIST}")
    I("s_waitcnt lgkmcnt(0)")
    e.label("L1_nz")
    I("s_barrier")
    I("s_and_b64 exec, exec, vcc")
    I("s_waitcnt vmcnt(5)")
    stamp(e, c, 1)
    for i in range(4):
        I(f"v_mul_u32_u24 v{44+i}, 0x147b, v{4+i}")
    for i in range(4):
        I(f"v_lshrrev_b32 v{44+i}, 18, v{44+i}")
    for i in range(4):
        I(f"v_mad_i32_i24 v{4+i}, v{44+i}, s53, v{4+i}")
        I(f"v_lshlrev_b32 v{44+i}, 2, v{44+i}")
    for i in range(4):
        I(f"ds_add_rtn_u32 v{36+i}, v{44+i}, v42 offset:{K1_HIST}")
    I("s_waitcnt lgkmcnt(0)")
    I("s_barrier")
    I("s_cmp_lg_u32 s55, 0")
    e.branch("s_cbranch_scc1 L1_noscan")
    I(f"ds_read_b128 v[52:55], v1 offset:{K1_HIST}")
    I("s_waitcnt lgkmcnt(0)")
    I("v_add_u32 v56, v52, v53")
    I("v_add_u32 v57, v56, v54")
    I("v_add_u32 v58, v57, v55")
    I("v_mov_b32 v59, v58")
    scan64(e, 59)
    I("v_sub_u32 v59, v59, v58")
    I("v_add_u32 v28, v59, v52")
    I("v_add_u32 v29, v59, v56")
    I("v_add_u32 v30, v59, v57")
    I("v_mov_b32 v32, v59"); I("v_mov_b32 v33, v28"); I("v_mov_b32 v34, v29"); I("v_mov_b32 v35, v30")
    I(f"ds_write_b128 v1, v[32:35] offset:{K1_BASE}")
    I("v_lshl_or_b32 v52, v52, 16, v59")
    I("v_lshl_or_b32 v53, v53, 16, v28")
    I("v_lshl_or_b32 v54, v54, 16, v29")
    I("v_lshl_or_b32 v55, v55, 16, v30")
    I(f"ds_write_b128 v1, v[52:55] offset:{TABOFF}")
    I("s_waitcnt lgkmcnt(0)")
    e.label("L1_noscan")
    I("s_barrier")
    for i in range(4):
        I(f"ds_read_b32 v{44+i}, v{44+i} offset:{K1_BASE}")
    I("s_mov_b32 s56, 0x05040100")
    I("s_mov_b32 s57, 0x05040302")
    I("s_waitcnt vmcnt(0)")
    stamp(e, c, 2)
    I("v_mov_b32 v28, v20")
    I("v_perm_b32 v29, v8, v21, s56")
    I("v_alignbit_b32 v30, v22, v21, 16")
    I("v_perm_b32 v31, v9, v22, s57")
    I("v_mov_b32 v32, v23")
    I("v_perm_b32 v33, v10, v24, s56")
    I("v_alignbit_b32 v34, v25, v24, 16")
    I("v_perm_b32 v35, v11, v25, s57")
    I("s_waitcnt lgkmcnt(0)")
    for i in range(4):
        I(f"v_add_u32 v{36+i}, v{36+i}, v{44+i}")
        I(f"v_lshlrev_b32 v{44+i}, 4, v{36+i}")
    for i in range(4):
        I(f"ds_write2_b64 v{44+i}, v[{12+2*i}:{13+2*i}], v[{28+2*i}:{29+2*i}] offset0:0 offset1:1")
        I(f"ds_write_b8 v{36+i}, v{4+i} offset:{KEYOFF}")
    I("s_mov_b64 exec, -1")
    I("s_waitcnt lgkmcnt(0)")
    e.branch("s_branch L1_copy")
    e.label("L1_idle0")
    if c.codepf:
        I("s_getpc_b64 s[60:61]")
        I(f"s_mov_b32 s62, {c.codepf*1024}")
        I("s_mov_b32 s63, 0x20000")
        I("v_lshlrev_b32 v4, 7, v50")
        I("buffer_load_dword v5, v4, s[60:63], 0 offen")
    if c.pf1_pos == "early": prefetch_x(e, c, c.pf1_lines, 4, 50, 192, 52, 0, 20, "a")
    I("s_barrier"); I("s_barrier")
    if c.pf1_pos == "mid": prefetch_x(e, c, c.pf1_lines, 4, 50, 192, 52, 0, 20, "a")
    I("s_barrier")
    if c.pf1_pos == "late": prefetch_x(e, c, c.pf1_lines, 4, 50, 192, 52, 0, 20, "a")
    e.flush()
    e.label("L1_copy")
    I("s_barrier")
    stamp(e, c, 3)
    I("ds_read_b128 v[8:11], v1")
    I("ds_read_b128 v[12:15], v1 offset:16384")
    I("ds_read_b128 v[16:19], v1 offset:32768")
    I("ds_read_b128 v[20:23], v1 offset:49152")
    I("v_add_u32 v2, 16384, v1")
    I("v_add_u32 v3, 32768, v1")
    I("v_add_u32 v24, 49152, v1")
    I("s_movk_i32 s54, 392")
    I("v_cmp_gt_u32 vcc, s54, v0")
    sf = c.st_flags
    I("s_waitcnt lgkmcnt(3)")
    I(f"buffer_store_dwordx4 v[8:11], v1, s[40:43], s51 offen {sf}")
    I("s_waitcnt lgkmcnt(2)")
    I(f"buffer_store_dwordx4 v[12:15], v2, s[40:43], s51 offen {sf}")
    I("s_waitcnt lgkmcnt(1)")
    I(f"buffer_store_dwordx4 v[16:19], v3, s[40:43], s51 offen {sf}")
    I("s_and_saveexec_b64 s[48:49], vcc")
    e.branch("s_cbranch_execz L1_st_done")
    I("s_waitcnt lgkmcnt(0)")
    I(f"buffer_store_dwordx4 v[20:23], v24, s[40:43], s51 offen {sf}")
    e.label("L1_st_done")
    I("s_mov_b64 exec, -1")
    if c.stamps:
        stamp(e, c, 4)
        I("s_waitcnt vmcnt(0)")
        stamp(e, c, 5)
        stamp_store(e, c, 40, 0, 26)
    I("s_endpgm")
    e.label("L1_helper")
    I("s_cmp_lt_u32 s55, 13")
    e.branch("s_cbranch_scc1 L1_h_w")
    prefetch_x(e, c, c.pf1_lines, 4, 50, 192, 52, 0, 20, "h")
    I("s_waitcnt vmcnt(0)")
    I("s_endpgm")
    e.label("L1_h_w")
    I("s_sub_u32 s44, s2, 250")
    I("s_mul_i32 s44, s44, 13")
    I("s_add_u32 s44, s44, s55")
    I("s_cmp_ge_u32 s44, 40")
    e.branch("s_cbranch_scc1 L1_end")
    I("s_and_b32 s45, s44, 3")
    I("s_lshr_b32 s46, s44, 2")
    I("s_cmp_lt_u32 s46, 4")
    I("s_cselect_b32 s24, s16, s18")
    I("s_cselect_b32 s25, s17, s19")
    I("s_movk_i32 s26, 24576")
    I("s_cselect_b32 s26, 16384, s26")
    I("s_cselect_b32 s47, 0, 4")
    I("s_mov_b32 s27, 0x20000")
    I("s_sub_u32 s46, s46, s47")
    I("s_lshl_b32 s46, s46, 12")
    I("s_lshl_b32 s45, s45, 5")
    I("s_add_u32 s46, s46, s45")
    I("v_and_b32 v4, 63, v0")
    I("v_lshrrev_b32 v5, 4, v4")
    I("v_and_b32 v6, 15, v4")
    I("v_lshlrev_b32 v5, 10, v5")
    I("v_lshl_add_u32 v5, v6, 1, v5")
    for q in range(8):
        I(f"buffer_load_ushort v{12+q}, v5, s[24:27], s46 offen offset:{q*128}")
    I("v_lshlrev_b32 v4, 4, v4")
    I("s_lshl_b32 s44, s44, 10")
    I(f"s_add_u32 s44, s44, {WFOFF}")
    I("s_waitcnt vmcnt(0)")
    for k in range(4):
        I(f"v_lshl_or_b32 v{8+k}, v{13+2*k}, 16, v{12+2*k}")
    I("buffer_store_dwordx4 v[8:11], v4, s[40:43], s44 offen")
    e.label("L1_end")
    I("s_endpgm")
    return name, 64, 96

def path_of(jp, blk):
    if blk == 0: return (0, 0, 1) if jp == 0 else (2, jp, 1)
    k = blk - 1
    if jp == 0: return (3, 1 + k, 1)
    j = jp - 1
    if j == k: return (1, 0, 1)
    i = 3 - j - k
    return (4, 1 + i, 1 if k == (j + 1) % 3 else -1)

def gen_k2(e, c):
    name = "eqmain_kernel"
    CAP = c.cap
    HIST = 0
    RAW = 1024
    T = (RAW + (CAP + 64) * 16 + 1023) // 1024 * 1024
    WRAD = T + NODES * 1024
    SCR = WRAD + 16384
    HIST2, CUR2, CNT = HIST + 256, HIST + 512, HIST + 768
    NEXT, DONE, GDONE = CNT, CNT + 16, CNT + 64
    SSTR, PL1, OSC = 2560, 1056, 2080
    lds = SCR + 12 * SSTR
    lds = max(lds, T + 64 * 1024)
    c.k2_lds = lds
    kernel_header(e, name)
    I = e.I
    wsbytes = (32 << 20) if c.stamps else WSBYTES
    c.stampv, c.tidv = 127, 126
    I("s_cmp_ge_u32 s2, 250")
    I("s_cbranch_scc1 L2_end")
    if c.stamps:
        I("v_mov_b32 v127, 0")
        I("v_mov_b32 v126, v0")
    stamp(e, c, 0)
    I("s_load_dwordx2 s[42:43], s[0:1], 0")
    I("s_load_dwordx2 s[44:45], s[0:1], 40")
    I("s_load_dwordx2 s[46:47], s[0:1], 72")
    I("s_load_dwordx2 s[48:49], s[0:1], 88")
    I("s_and_b32 s20, s2, 7")
    I("s_min_u32 s21, s20, 2")
    I("s_mul_i32 s20, s20, 31")
    I("s_add_u32 s20, s20, s21")
    I("s_lshr_b32 s31, s2, 3")
    I("s_add_u32 s20, s20, s31")
    I("v_readfirstlane_b32 s21, v0")
    I("s_lshr_b32 s21, s21, 6")
    I("s_mov_b32 s22, 0")
    I("s_movk_i32 s23, 250")
    I("s_mov_b32 s24, 1")
    I("s_mov_b32 s26, 0xaaaaaaaa")
    I("s_mov_b32 s27, 0xaaaaaaaa")
    I("s_mov_b32 s28, 0x05040100")
    I("s_mov_b32 s29, 0x07060302")
    I("s_mov_b32 s30, 0xffff0000")
    I("s_waitcnt lgkmcnt(0)")
    srd(e, 4, 42, N * 512)
    srd(e, 8, 48, wsbytes)
    srd(e, 12, 46, N * 512)
    srd(e, 16, 44, 2560)
    I("s_cmp_lt_u32 s21, 4")
    e.branch("s_cbranch_scc1 L2_gemm")

    VLANE, VINFO, VNEXT = 108, 109, 110
    VLOFF, VMASK, VOW, VOR, VSCRW, VTRA, VWR, VL16 = 111, 112, 113, 114, 115, 116, 117, 118
    VT0, VT1, VONE, VZERO = 119, 120, 121, 122
    VJ, VCH, VSEG = 123, 124, 125
    I(f"v_and_b32 v{VLANE}, 63, v0")
    I(f"v_subrev_u32 v{VT0}, 256, v0")
    I(f"v_and_b32 v{VJ}, 15, v{VT0}")
    I(f"v_lshrrev_b32 v{VSEG}, 4, v{VT0}")
    I(f"s_mov_b32 s42, {CSTRIDE}")
    I(f"v_mul_u32_u24 v{VCH}, s42, v{VSEG}")
    I(f"v_mov_b32 v{VONE}, 1")
    I(f"v_mov_b32 v{VZERO}, 0")
    I(f"v_mov_b32 v{VMASK}, s30")
    I(f"v_and_b32 v{VT0}, 15, v{VLANE}")
    I(f"v_lshlrev_b32 v{VLOFF}, 4, v{VT0}")
    I(f"v_lshrrev_b32 v{VT1}, 4, v{VLANE}")
    I(f"v_lshlrev_b32 v{VL16}, 4, v{VLANE}")
    I("s_sub_u32 s43, s21, 4")
    I(f"s_mul_i32 s43, s43, {SSTR}")
    I(f"s_add_u32 s43, s43, {SCR}")
    I(f"v_add_u32 v{VSCRW}, s43, v{VL16}")
    I(f"v_lshlrev_b32 v{VOR}, 5, v{VT1}")
    I(f"v_add_u32 v{VOR}, s43, v{VOR}")
    I(f"v_lshlrev_b32 v{VTRA}, 4, v{VT1}")
    I(f"v_bfe_u32 v{VT1}, v{VLANE}, 2, 2")
    I(f"v_lshl_add_u32 v{VTRA}, v{VT1}, 6, v{VTRA}")
    I(f"v_and_b32 v{VT1}, 1, v{VLANE}")
    I(f"v_lshl_add_u32 v{VTRA}, v{VT1}, 3, v{VTRA}")
    I(f"v_bfe_u32 v{VT1}, v{VLANE}, 1, 1")
    I(f"v_mul_u32_u24 v{VT1}, {PL1}, v{VT1}")
    I(f"v_add3_u32 v{VTRA}, v{VTRA}, v{VT1}, s43")
    I(f"v_and_b32 v{VOW}, 32, v{VLANE}")
    I(f"v_and_b32 v{VT1}, 3, v{VLANE}")
    I(f"v_lshl_add_u32 v{VOW}, v{VT1}, 3, v{VOW}")
    I(f"v_bfe_u32 v{VT1}, v{VLANE}, 2, 3")
    I(f"v_add_u32 v{VOW}, v{VOW}, v{VT1}")
    I(f"v_lshlrev_b32 v{VOW}, 2, v{VOW}")
    I(f"v_add_u32 v{VOW}, s43, v{VOW}")
    I(f"v_add_u32 v{VWR}, {WRAD}, v{VL16}")

    e.label("L2_g_round")
    PAY, KEY, RNK, TAB, KAD, PAD = 0, 48, 60, 72, 78, 84
    MSK = 50
    rf = c.rec_flags
    I("s_lshl_b32 s42, s20, 2")
    I(f"s_add_u32 s42, s42, {TABOFF}")
    for p in range(6):
        if p == 5:
            I("s_cmp_ge_u32 s21, 7")
            I(f"v_mov_b32 v{TAB+5}, 0")
            e.branch("s_cbranch_scc1 L2_notab5")
        I(f"buffer_load_dword v{TAB+p}, v{VCH}, s[8:11], s42 offen {rf}")
        if p < 5: I(f"s_add_u32 s42, s42, {48*CSTRIDE}")
    e.label("L2_notab5")
    I("s_waitcnt vmcnt(0)")
    stamp(e, c, 1)
    for p in range(6):
        I(f"s_sub_u32 s42, {48*p}, s22")
        I(f"v_add_u32 v{VT0}, s42, v{VSEG}")
        I(f"v_cmp_gt_u32 vcc, s23, v{VT0}")
        I(f"v_and_b32 v{KAD+p}, 0xffff, v{TAB+p}")
        I(f"v_lshrrev_b32 v{TAB+p}, 16, v{TAB+p}")
        I(f"v_cndmask_b32 v{TAB+p}, 0, v{TAB+p}, vcc")
        I(f"v_add_u32 v{KAD+p}, v{KAD+p}, v{VJ}")
        I(f"v_lshl_add_u32 v{PAD+p}, v{KAD+p}, 4, v{VCH}")
        I(f"v_add_u32 v{KAD+p}, v{KAD+p}, v{VCH}")
        I(f"v_cmp_lt_u32 s[{MSK+4*p}:{MSK+4*p+1}], v{VJ}, v{TAB+p}")
        I(f"v_add_u32 v{VT0}, 16, v{VJ}")
        I(f"v_cmp_lt_u32 s[{MSK+4*p+2}:{MSK+4*p+3}], v{VT0}, v{TAB+p}")
        I(f"s_mov_b32 s{74+p}, {48*p*CSTRIDE}")
        I(f"s_mov_b32 s{80+p}, {48*p*CSTRIDE+KEYOFF}")
        I(f"v_cndmask_b32 v{PAD+p}, 2.0, v{PAD+p}, s[{MSK+4*p}:{MSK+4*p+1}]")
    e.flush()
    for p in range(6):
        I(f"s_mov_b64 exec, s[{MSK+4*p+2}:{MSK+4*p+3}]")
        I(f"s_cbranch_execz L2_w1skip{p}")
        I(f"buffer_load_ubyte v{KEY+2*p+1}, v{KAD+p}, s[8:11], s{80+p} offen offset:16 {rf}")
        I(f"buffer_load_dwordx4 v[{PAY+8*p+4}:{PAY+8*p+7}], v{PAD+p}, s[8:11], s{74+p} offen offset:256 {rf}")
        e.label(f"L2_w1skip{p}")
    for p in range(6):
        I(f"s_mov_b64 exec, s[{MSK+4*p}:{MSK+4*p+1}]")
        if p == 5: I("s_cbranch_execz L2_k5skip")
        I(f"buffer_load_ubyte v{KEY+2*p}, v{KAD+p}, s[8:11], s{80+p} offen {rf}")
    e.label("L2_k5skip")
    I("s_mov_b64 exec, -1")
    for p in range(6):
        if p == 5:
            I("s_cmp_ge_u32 s21, 7")
            I("s_cbranch_scc1 L2_p5skip")
        I(f"buffer_load_dwordx4 v[{PAY+8*p}:{PAY+8*p+3}], v{PAD+p}, s[8:11], s{74+p} offen {rf}")
    e.label("L2_p5skip")
    I("s_barrier")
    I("s_waitcnt vmcnt(5)")
    stamp(e, c, 2)
    for k in range(12):
        I(f"v_lshlrev_b32 v{KEY+k}, 2, v{KEY+k}")
    for p in range(6):
        for w in range(2):
            I(f"s_mov_b64 exec, s[{MSK+4*p+2*w}:{MSK+4*p+2*w+1}]")
            I(f"ds_add_rtn_u32 v{RNK+2*p+w}, v{KEY+2*p+w}, v{VONE} offset:{HIST}")
    I("s_mov_b64 exec, -1")
    I(f"v_max3_u32 v{VT0}, v{TAB}, v{TAB+1}, v{TAB+2}")
    I(f"v_max3_u32 v{VT0}, v{VT0}, v{TAB+3}, v{TAB+4}")
    I(f"v_max_u32 v{VT0}, v{VT0}, v{TAB+5}")
    I(f"v_cmp_lt_u32 vcc, 32, v{VT0}")
    I("s_mov_b32 s25, 0")
    e.flush()
    I("s_cmp_eq_u64 vcc, 0")
    I("s_cbranch_scc1 L2_noextraA")
    I("s_mov_b32 s25, 1")
    for p in range(6):
        I(f"v_add_u32 v{VT0}, 32, v{VJ}")
        I(f"v_add_u32 v{VT1}, 32, v{KAD+p}")
        e.label(f"L2_xa{p}")
        I(f"v_cmp_lt_u32 vcc, v{VT0}, v{TAB+p}")
        I("s_and_saveexec_b64 s[44:45], vcc")
        e.branch(f"s_cbranch_execz L2_xa{p}_done")
        I(f"buffer_load_ubyte v90, v{VT1}, s[8:11], s{80+p} offen")
        I("s_waitcnt vmcnt(0)")
        I("v_lshlrev_b32 v90, 2, v90")
        I(f"ds_add_u32 v90, v{VONE} offset:{HIST2}")
        I("s_mov_b64 exec, -1")
        I(f"v_add_u32 v{VT0}, 16, v{VT0}")
        I(f"v_add_u32 v{VT1}, 16, v{VT1}")
        e.branch(f"s_branch L2_xa{p}")
        e.label(f"L2_xa{p}_done")
        I("s_mov_b64 exec, -1")
    e.label("L2_noextraA")
    I("s_waitcnt lgkmcnt(0)")
    I("s_barrier")
    I(f"v_lshlrev_b32 v{VT0}, 2, v{VLANE}")
    I(f"ds_read_b32 v90, v{VT0} offset:{HIST}")
    I(f"ds_read_b32 v91, v{VT0} offset:{HIST2}")
    I("s_waitcnt lgkmcnt(0)")
    I("v_add_u32 v91, v90, v91")
    I("v_mov_b32 v92, v91")
    scan64(e, 92)
    I("v_readlane_b32 s46, v92, 63")
    I("v_sub_u32 v92, v92, v91")
    I(f"v_lshl_or_b32 v{VINFO}, v91, 16, v92")
    e.flush()
    I(f"s_cmp_gt_u32 s46, {CAP}")
    I("s_cbranch_scc1 L2_g_overflow")
    for k in range(12):
        I(f"ds_bpermute_b32 v{KEY+k}, v{KEY+k}, v92")
    I("s_waitcnt vmcnt(0) lgkmcnt(0)")
    stamp(e, c, 3)
    for k in range(12):
        I(f"v_add_lshl_u32 v{KEY+k}, v{KEY+k}, v{RNK+k}, 4")
    for p in range(6):
        for w in range(2):
            I(f"s_mov_b64 exec, s[{MSK+4*p+2*w}:{MSK+4*p+2*w+1}]")
            I(f"ds_write_b128 v{KEY+2*p+w}, v[{PAY+8*p+4*w}:{PAY+8*p+4*w+3}] offset:{RAW}")
    I("s_mov_b64 exec, -1")
    I("s_cmp_eq_u32 s25, 0")
    I("s_cbranch_scc1 L2_noextraB")
    I("v_add_u32 v92, v92, v90")
    for p in range(6):
        I(f"v_add_u32 v{VT0}, 32, v{VJ}")
        I(f"v_add_u32 v{VT1}, 32, v{KAD+p}")
        I(f"v_add_u32 v93, 512, v{PAD+p}")
        e.label(f"L2_xb{p}")
        I(f"v_cmp_lt_u32 vcc, v{VT0}, v{TAB+p}")
        I("s_and_saveexec_b64 s[44:45], vcc")
        e.branch(f"s_cbranch_execz L2_xb{p}_done")
        I(f"buffer_load_ubyte v94, v{VT1}, s[8:11], s{80+p} offen")
        I(f"buffer_load_dwordx4 v[96:99], v93, s[8:11], s{74+p} offen")
        I("s_waitcnt vmcnt(0)")
        I("v_lshlrev_b32 v94, 2, v94")
        I(f"ds_add_rtn_u32 v95, v94, v{VONE} offset:{CUR2}")
        I("s_mov_b64 exec, -1")
        I("ds_bpermute_b32 v94, v94, v92")
        I("s_waitcnt lgkmcnt(0)")
        I("v_add_lshl_u32 v94, v94, v95, 4")
        I("s_mov_b64 exec, vcc")
        I(f"ds_write_b128 v94, v[96:99] offset:{RAW}")
        I("s_mov_b64 exec, -1")
        I(f"v_add_u32 v{VT0}, 16, v{VT0}")
        I(f"v_add_u32 v{VT1}, 16, v{VT1}")
        I("v_add_u32 v93, 256, v93")
        e.branch(f"s_branch L2_xb{p}")
        e.label(f"L2_xb{p}_done")
        I("s_mov_b64 exec, -1")
    e.label("L2_noextraB")
    ACC, LD, B, A, AD = 0, 32, 64, 96, 100
    for k in range(32):
        I(f"v_mov_b32 v{LD+k}, 0")
    I("s_cmp_lg_u32 s21, 4")
    I("s_cbranch_scc1 L2_noguard")
    I("s_lshl_b32 s46, s46, 4")
    I(f"v_add_u32 v{VT0}, s46, v{VL16}")
    I(f"ds_write_b128 v{VT0}, v[{LD}:{LD+3}] offset:{RAW}")
    e.label("L2_noguard")
    I("s_waitcnt lgkmcnt(0)")
    I("s_barrier")
    stamp(e, c, 4)

    sA, sR, sH, sN, sNV = 32, 33, 34, 35, 37
    sCN, sCH, sCF, sCR, sL = 38, 39, 40, 41, 36
    uid = [0]
    def lab(p):
        uid[0] += 1
        return f"L2_{p}{uid[0]}"
    def fetch_issue():
        I("s_mov_b64 exec, 1")
        I(f"ds_add_rtn_u32 v{VNEXT}, v{VZERO}, v{VONE} offset:{NEXT}")
        I("s_mov_b64 exec, -1")
    def setup_item(none_label):
        I(f"v_readfirstlane_b32 s42, v{VNEXT}")
        e.nop(1)
        I(f"s_cmp_ge_u32 s42, {2*NODES}")
        I(f"s_cbranch_scc1 {none_label}")
        I(f"s_cmp_ge_u32 s42, {NODES}")
        I(f"s_cselect_b32 s{sH}, 256, 0")
        I(f"s_cselect_b32 s43, {NODES}, 0")
        I(f"s_sub_u32 s{sN}, s42, s43")
        I(f"v_readlane_b32 s42, v{VINFO}, s{sN}")
        e.nop(1)
        I(f"s_lshr_b32 s{sR}, s42, 16")
        I("s_and_b32 s42, s42, 0xffff")
        I(f"s_lshl_b32 s{sA}, s42, 4")
    def off_read(hf):
        I(f"ds_read_b128 v[{AD}:{AD+3}], v{VOR} offset:{OSC+128*hf}")
        I(f"ds_read_b128 v[{AD+4}:{AD+7}], v{VOR} offset:{OSC+128*hf+16}")
    def off_add():
        for i in range(8):
            I(f"v_add_u32 v{AD+i}, v{AD+i}, v{VLOFF}")
    def prep_block():
        r = B
        I(f"v_add_u32 v{VT0}, s{sA}, v{VL16}")
        I(f"ds_read_b128 v[{r}:{r+3}], v{VT0} offset:{RAW}")
        l = lab("nf")
        I(f"s_cmp_gt_u32 s{sR}, 64")
        I(f"s_cbranch_scc1 {l}")
        fetch_issue()
        e.label(l)
        I(f"v_cmp_gt_u32 vcc, s{sR}, v{VLANE}")
        I("s_waitcnt lgkmcnt(0)")
        I(f"v_lshrrev_b32 v{r+11}, 16, v{r+3}")
        I(f"v_lshlrev_b32 v{r+11}, 9, v{r+11}")
        I(f"ds_write_b32 v{VOW}, v{r+11} offset:{OSC}")
        off_read(0)
        if not c.x_noexp:
            I(f"v_cndmask_b32 v{r}, 0, v{r}, vcc")
            I(f"v_cndmask_b32 v{r+1}, 0, v{r+1}, vcc")
            I(f"v_lshlrev_b32 v{r+8}, 16, v{r+2}")
            I(f"v_and_b32 v{r+9}, v{VMASK}, v{r+2}")
            I(f"v_lshlrev_b32 v{r+10}, 16, v{r+3}")
            I(f"v_lshlrev_b32 v{r+4}, 16, v{r}")
            I(f"v_and_b32 v{r+5}, v{VMASK}, v{r}")
            I(f"v_lshlrev_b32 v{r+6}, 16, v{r+1}")
            I(f"v_and_b32 v{r+7}, v{VMASK}, v{r+1}")
            for j in range(3):
                for d in range(4):
                    I(f"v_mul_f32 v{r+12+4*j+d}, v{r+4+d}, v{r+8+j}")
            I(f"v_cvt_pk_bf16_f32 v{r+2}, v{r+12}, v{r+13}")
            I(f"v_cvt_pk_bf16_f32 v{r+3}, v{r+14}, v{r+15}")
            for k in range(4):
                I(f"v_cvt_pk_bf16_f32 v{r+24+k}, v{r+16+2*k}, v{r+17+2*k}")
        I(f"ds_write_b128 v{VSCRW}, v[{r}:{r+3}]")
        I(f"ds_write_b128 v{VSCRW}, v[{r+24}:{r+27}] offset:{PL1}")
        I("s_waitcnt lgkmcnt(2)")
        off_add()
    def ld(i):
        if c.x_noload: return
        I(f"buffer_load_dwordx4 v[{LD+4*i}:{LD+4*i+3}], v{AD+i}, s[4:7], {'0' if c.x_samehalf else 's%d' % sH} offen")
    def perm(q, jj, k16=False):
        if c.x_noperm: return
        d = B + 2*q + jj if k16 else B + 4*q + jj
        I(f"v_perm_b32 v{d}, v{LD+4*(2*jj+1)+q//2}, v{LD+4*(2*jj)+q//2}, s{29 if q & 1 else 28}")
    def loads_partial(done):
        for i in range(7):
            I(f"s_cmp_le_u32 s{sL}, {4*i}")
            I(f"s_cbranch_scc1 {done}")
            ld(i)
    def perms_loads():
        part, done = lab("pp"), lab("pd")
        I("s_waitcnt vmcnt(0)")
        if c.prio: I(f"s_setprio {c.prio}")
        I(f"s_cmp_le_u32 s{sL}, 28")
        I(f"s_cbranch_scc1 {part}")
        for jj in range(4):
            for q in range(8): perm(q, jj)
            ld(2*jj); ld(2*jj+1)
        I(f"s_branch {done}")
        e.label(part)
        for jj in range(4):
            for q in range(8): perm(q, jj)
        loads_partial(done)
        e.label(done)
        if c.prio: I("s_setprio 0")
    def mfmas(first, k16=False):
        if c.x_nomfma: return
        for q in range(8):
            d = f"v[{ACC+4*q}:{ACC+4*q+3}]"
            if k16: I(f"v_mfma_f32_16x16x16_bf16 {d}, v[{A}:{A+1}], v[{B+2*q}:{B+2*q+1}], {'0' if first else d}")
            else: I(f"v_mfma_f32_16x16x32_bf16 {d}, v[{A}:{A+3}], v[{B+4*q}:{B+4*q+3}], {'0' if first else d}")
    def tr_read(hf):
        I(f"ds_read_b64_tr_b16 v[{A}:{A+1}], v{VTRA} offset:{512*hf}")
        I(f"ds_read_b64_tr_b16 v[{A+2}:{A+3}], v{VTRA} offset:{512*hf+256}")

    fetch_issue()
    I("s_waitcnt lgkmcnt(0)")
    setup_item("L2_g_done")
    prep_block()
    I(f"s_mov_b32 s{sL}, s{sR}")
    I(f"s_cmp_le_u32 s{sL}, 28")
    I("s_cbranch_scc1 L2_i_part")
    for i in range(8): ld(i)
    I("s_branch L2_A1")
    e.label("L2_i_part")
    loads_partial("L2_A1")
    for first in (1, 0):
        e.label(f"L2_A{first}")
        tr_read(0)
        I(f"s_cmp_gt_u32 s{sR}, 32")
        I(f"s_cbranch_scc1 L2_AB{first}")
        I(f"s_mov_b32 s{sCF}, {first}")
        I(f"s_mov_b32 s{sCR}, s{sR}")
        I("s_branch L2_XN")
        e.label(f"L2_AB{first}")
        off_read(1)
        I(f"s_sub_u32 s{sL}, s{sR}, 32")
        I("s_waitcnt lgkmcnt(0)")
        off_add()
        perms_loads()
        mfmas(first)
        if first: I("s_branch L2_B")
    e.label("L2_B")
    tr_read(1)
    I(f"s_cmp_gt_u32 s{sR}, 64")
    I("s_cbranch_scc0 L2_BN")
    I(f"s_sub_u32 s{sR}, s{sR}, 64")
    I(f"s_add_u32 s{sA}, s{sA}, 1024")
    I(f"s_mov_b32 s{sL}, s{sR}")
    prep_block()
    perms_loads()
    I("s_waitcnt lgkmcnt(0)")
    mfmas(0)
    I("s_branch L2_A0")
    e.label("L2_BN")
    I(f"s_mov_b32 s{sCF}, 0")
    I(f"s_sub_u32 s{sCR}, s{sR}, 32")
    e.label("L2_XN")
    I(f"s_mov_b32 s{sCN}, s{sN}")
    I(f"s_mov_b32 s{sCH}, s{sH}")
    I(f"s_mov_b32 s{sNV}, 1")
    setup_item("L2_XN_none")
    I(f"s_mov_b32 s{sL}, s{sR}")
    prep_block()
    I("s_branch L2_XN_go")
    e.label("L2_XN_none")
    I(f"s_mov_b32 s{sNV}, 0")
    I(f"s_mov_b32 s{sL}, 0")
    e.label("L2_XN_go")
    I(f"s_cmp_le_u32 s{sCR}, 16")
    I("s_cbranch_scc1 L2_XN_k16")
    perms_loads()
    I("s_waitcnt lgkmcnt(0)")
    I(f"s_cmp_eq_u32 s{sCF}, 0")
    I("s_cbranch_scc1 L2_XN_acc")
    mfmas(1)
    I("s_branch L2_XN_epi")
    e.label("L2_XN_acc")
    mfmas(0)
    I("s_branch L2_XN_epi")
    e.label("L2_XN_k16")
    I("s_waitcnt vmcnt(0)")
    if c.prio: I(f"s_setprio {c.prio}")
    for jj in range(2):
        for q in range(8): perm(q, jj, True)
    I(f"s_cmp_le_u32 s{sL}, 28")
    I("s_cbranch_scc1 L2_XN_k16p")
    for i in range(8): ld(i)
    I("s_branch L2_XN_k16d")
    e.label("L2_XN_k16p")
    loads_partial("L2_XN_k16d")
    e.label("L2_XN_k16d")
    if c.prio: I("s_setprio 0")
    I("s_waitcnt lgkmcnt(0)")
    I(f"s_cmp_eq_u32 s{sCF}, 0")
    I("s_cbranch_scc1 L2_XN_k16acc")
    mfmas(1, True)
    I("s_branch L2_XN_epi")
    e.label("L2_XN_k16acc")
    mfmas(0, True)
    e.label("L2_XN_epi")
    I(f"s_lshl_b32 s42, s{sCH}, 5")
    I(f"v_add_u32 v{VT0}, s42, v{VWR}")
    for q in range(8):
        I(f"ds_read_b128 v[{B+4*q}:{B+4*q+3}], v{VT0} offset:{q*1024}")
    I(f"s_lshr_b32 s43, s{sCN}, 4")
    I(f"s_lshl_b32 s43, s43, 2")
    I(f"s_cmp_eq_u32 s{sCH}, 0")
    I("s_cbranch_scc1 L2_nowar")
    I(f"v_mov_b32 v{VT1}, s43")
    I("s_mov_b32 s45, 0")
    e.label("L2_war")
    I(f"ds_read_b32 v{VT0}, v{VT1} offset:{GDONE}")
    I("s_waitcnt lgkmcnt(0)")
    I(f"v_readfirstlane_b32 s44, v{VT0}")
    e.nop(1)
    I("s_cmp_ge_u32 s44, 4")
    I("s_cbranch_scc1 L2_war_ok")
    I("s_add_u32 s45, s45, 1")
    I("s_cmp_lt_u32 s45, 0x400000")
    I("s_cbranch_scc1 L2_war")
    e.label("L2_war_ok")
    I("s_add_u32 s43, s43, 16")
    e.label("L2_nowar")
    I(f"s_and_b32 s44, s{sCN}, 15")
    I("s_lshl_b32 s44, s44, 4")
    I(f"s_lshl_b32 s45, s{sCN}, 10")
    I(f"s_add_u32 s45, s45, {T}")
    I(f"v_xor_b32 v{VT0}, s44, v{VL16}")
    I(f"v_add_u32 v{VT0}, s45, v{VT0}")
    I(f"v_mov_b32 v{VT1}, s43")
    I("s_waitcnt lgkmcnt(0)")
    for q in range(8):
        I(f"v_mul_f32 v{B+4*q}, v{B+4*q}, v{ACC+4*q}")
    for d in range(1, 4):
        for q in range(8):
            I(f"v_fmac_f32 v{B+4*q}, v{B+4*q+d}, v{ACC+4*q+d}")
    for k in range(4):
        I(f"v_cvt_pk_bf16_f32 v{A+k}, v{B+8*k}, v{B+8*k+4}")
    I(f"ds_write_b128 v{VT0}, v[{A}:{A+3}]")
    I("s_waitcnt lgkmcnt(0)")
    I("s_mov_b64 exec, 1")
    I(f"ds_add_u32 v{VT1}, v{VONE} offset:{DONE}")
    I("s_mov_b64 exec, -1")
    I(f"s_cmp_lg_u32 s{sNV}, 0")
    I("s_cbranch_scc1 L2_A1")
    e.label("L2_g_done")
    stamp(e, c, 5)
    I("s_cmp_lg_u32 s24, 0")
    e.branch("s_cbranch_scc1 L2_g_exit")
    I("s_waitcnt lgkmcnt(0)")
    I("s_barrier")
    I("s_add_u32 s22, s22, 1")
    I(f"s_cmp_eq_u32 s22, {NCH-1}")
    I("s_cselect_b32 s24, 1, 0")
    e.branch("s_branch L2_g_round")
    e.label("L2_g_overflow")
    I("s_waitcnt vmcnt(0)")
    I("s_mov_b32 s22, 0")
    I("s_mov_b32 s23, 1")
    I("s_mov_b32 s24, 0")
    I("s_barrier")
    e.branch("s_branch L2_g_round")
    e.label("L2_g_exit")
    stamp_store(e, c, 8, 1, 90)
    I("s_endpgm")

    e.label("L2_gemm")
    W, G, TA, TF = 0, 40, 104, 108
    X0, X1 = 124, 125
    if c.stamps: X0, X1 = 124, 125
    I("v_and_b32 v104, 63, v0")
    I("v_mov_b32 v117, v0")
    I("v_lshlrev_b32 v105, 4, v104")
    I("s_lshl_b32 s42, s21, 10")
    I(f"s_add_u32 s42, s42, {WFOFF}")
    for f in range(10):
        I(f"buffer_load_dwordx4 v[{W+4*f}:{W+4*f+3}], v105, s[8:11], s42 offen")
        if f < 9: I("s_add_u32 s42, s42, 4096")
    lut = 0
    for jp in range(4):
        for blk in range(4):
            p, i, s = path_of(jp, blk)
            lut |= (p | (8 if s < 0 else 0)) << (4 * (jp * 4 + blk))
    I(f"s_mov_b32 s44, {lut & 0xffffffff}")
    I(f"s_mov_b32 s45, {lut >> 32}")
    for h in range(2):
        I("v_lshrrev_b32 v106, 4, v104")
        I("v_bfe_u32 v107, v104, 3, 1")
        I("v_lshl_add_u32 v106, v106, 2, v107")
        I(f"v_add_lshl_u32 v106, v106, {2*h}, 2")
        I(f"v_lshrrev_b64 v[108:109], v106, s[44:45]")
        I(f"v_and_b32 v106, 7, v108")
        I(f"v_and_b32 v{110+h}, 8, v108")
        I(f"v_lshlrev_b32 v{110+h}, 28, v{110+h}")
        I("v_and_b32 v107, 7, v104")
        I("v_lshlrev_b32 v107, 3, v107")
        I("v_lshl_add_u32 v106, v106, 6, v107")
        I("v_add_u32 v106, s21, v106")
        I(f"v_lshlrev_b32 v{112+h}, 1, v106")
    for k in range(4):
        h, qo = k >> 1, (k & 1) * 4
        for d in range(4):
            I(f"buffer_load_ushort v{G+4*k+d}, v{112+h}, s[16:19], 0 offen offset:{d*640+qo*2}")
    prefetch_x(e, c, c.pf2_lines, 114, 117, 256, 31, 0, 4, "p")
    I("s_lshl_b32 s42, s21, 10")
    I(f"s_add_u32 s42, s42, {WRAD}")
    I("v_add_u32 v105, s42, v105")
    npf = (c.pf2_lines + 255) // 256
    I(f"s_waitcnt vmcnt({npf})")
    for k in range(4):
        h = k >> 1
        for d in range(4):
            I(f"v_lshlrev_b32 v{G+4*k+d}, 16, v{G+4*k+d}")
            I(f"v_xor_b32 v{G+4*k+d}, v{110+h}, v{G+4*k+d}")
        I(f"ds_write_b128 v105, v[{G+4*k}:{G+4*k+3}] offset:{(k>>1)*8192 + (k&1)*4096}")
    I("v_and_b32 v106, 15, v104")
    I("v_lshrrev_b32 v107, 4, v104")
    I(f"v_lshlrev_b32 v{X0}, 2, v104")
    I(f"s_mul_i32 s42, s20, {NODES*512}")
    I("s_lshl_b32 s43, s21, 5")
    I("s_add_u32 s42, s42, s43")
    I(f"v_lshlrev_b32 v{X1}, 9, v106")
    I(f"v_lshl_add_u32 v{X1}, v107, 3, v{X1}")
    I(f"v_add_u32 v{X1}, s42, v{X1}")
    I(f"v_cmp_gt_u32 s[50:51], {NODES-48}, v106")
    I("v_lshlrev_b32 v108, 10, v106")
    I(f"v_add_u32 v108, {T}, v108")
    for u in (3, 2, 1, 0):
        I(f"v_add_u32 v109, {4*u}, v107")
        I("v_xor_b32 v109, v109, v106")
        I(f"v_lshl_add_u32 v{TF+4+u}, v109, 4, v108")
    I("s_waitcnt lgkmcnt(0)")
    for u in range(4):
        I(f"v_mov_b32 v{TA+u}, v{TF+4+u}")
    for k in range(64):
        I(f"v_mov_b32 v{G+k}, 0")
    e.label("L2_m_round")
    I("s_cmp_lg_u32 s21, 0")
    I("s_cbranch_scc1 L2_m_nz")
    I(f"v_mov_b32 v{TF}, 0"); I(f"v_mov_b32 v{TF+1}, 0"); I(f"v_mov_b32 v{TF+2}, 0"); I(f"v_mov_b32 v{TF+3}, 0")
    I(f"v_lshlrev_b32 v{TF+4}, 2, v{X0}")
    I(f"ds_write_b128 v{TF+4}, v[{TF}:{TF+3}] offset:{HIST}")
    I("s_waitcnt lgkmcnt(0)")
    e.label("L2_m_nz")
    I("s_barrier")
    I("s_barrier")
    I(f"ds_read_b32 v{TF}, v{X0} offset:{HIST}")
    I(f"ds_read_b32 v{TF+1}, v{X0} offset:{HIST2}")
    I("s_waitcnt lgkmcnt(0)")
    I(f"v_add_u32 v{TF}, v{TF}, v{TF+1}")
    scan64(e, TF)
    I(f"v_readlane_b32 s42, v{TF}, 63")
    e.flush()
    I(f"s_cmp_gt_u32 s42, {CAP}")
    I("s_cbranch_scc1 L2_m_overflow")
    I("s_barrier")
    I("s_waitcnt vmcnt(0)")
    stamp(e, c, 4)
    for h in range(2):
        for t in range(4):
            need = 16 if t < 3 else NODES - 48
            I(f"v_mov_b32 v{TF}, 0")
            I("s_mov_b32 s43, 0")
            e.label(f"L2_poll{h}{t}")
            I(f"ds_read_b32 v{TF+1}, v{TF} offset:{DONE + 16*h + 4*t}")
            I("s_waitcnt lgkmcnt(0)")
            I(f"v_readfirstlane_b32 s42, v{TF+1}")
            e.flush()
            I(f"s_cmp_ge_u32 s42, {need}")
            I(f"s_cbranch_scc1 L2_go{h}{t}")
            I("s_sleep 2")
            I("s_add_u32 s43, s43, 1")
            I("s_cmp_lt_u32 s43, 0x400000")
            I(f"s_cbranch_scc1 L2_poll{h}{t}")
            e.label(f"L2_go{h}{t}")
            stamp(e, c, 7 + 4*h + t)
            def rd(ks):
                I(f"ds_read_b128 v[{TF+4*(ks&3)}:{TF+4*(ks&3)+3}], v{TA+(ks&3)} offset:{t*16384 + (ks>>2)*256}")
            for ks in range(4): rd(ks)
            for ks in range(16):
                jp, blk = ks >> 2, 2 * h + ((ks >> 1) & 1)
                p, i, s = path_of(jp, blk)
                f = p * 2 + (ks & 1)
                I(f"s_waitcnt lgkmcnt({min(3, 15-ks)})")
                g = G + 16 * t + 4 * i
                I(f"v_mfma_f32_16x16x32_bf16 v[{g}:{g+3}], v[{W+4*f}:{W+4*f+3}], v[{TF+4*(ks&3)}:{TF+4*(ks&3)+3}], v[{g}:{g+3}]")
                if ks + 4 < 16: rd(ks + 4)
            if h == 0:
                I(f"v_mov_b32 v{TF}, 0")
                I(f"v_mov_b32 v{TF+1}, 1")
                I("s_mov_b64 exec, 1")
                I(f"ds_add_u32 v{TF}, v{TF+1} offset:{GDONE + 4*t}")
                I("s_mov_b64 exec, -1")
                if t == c.pf2b_tile:
                    if c.pf2b_lines:
                        I("s_lshl_b32 s42, s21, 6")
                        I(f"v_lshrrev_b32 v{TF+3}, 2, v{X0}")
                        I(f"v_add_u32 v{TF+3}, s42, v{TF+3}")
                    prefetch_x(e, c, c.pf2b_lines, TF + 4, TF + 3, 256, 31, 1, 4, "q")
                    if c.pf2b_lines: I("s_waitcnt vmcnt(0)")
            else:
                I("s_cmp_eq_u32 s24, 0")
                e.branch(f"s_cbranch_scc1 L2_nofin{t}")
                g = G + 16 * t
                I("s_mov_b32 s42, 0xbfb8aa3b")
                for r in range(4): I(f"v_mul_f32 v{TF+r}, s42, v{g+r}")
                for r in range(4): I(f"v_exp_f32 v{TF+r}, v{TF+r}")
                for r in range(4): I(f"v_add_f32 v{TF+r}, 1.0, v{TF+r}")
                for r in range(4): I(f"v_rcp_f32 v{TF+r}, v{TF+r}")
                for i in range(1, 4):
                    for r in range(4): I(f"v_mul_f32 v{g+4*i+r}, v{g+4*i+r}, v{TF+r}")
                for i in range(4):
                    I(f"v_cvt_pk_bf16_f32 v{TF+4+2*i}, v{g+4*i}, v{g+4*i+1}")
                    I(f"v_cvt_pk_bf16_f32 v{TF+5+2*i}, v{g+4*i+2}, v{g+4*i+3}")
                I(f"s_mov_b32 s42, {t*16*512}")
                if t == 3: I("s_mov_b64 exec, s[50:51]")
                for i in range(4):
                    I(f"buffer_store_dwordx2 v[{TF+4+2*i}:{TF+5+2*i}], v{X1}, s[12:15], s42 offen offset:{i*128} {c.out_flags}")
                if t == 3: I("s_mov_b64 exec, -1")
                e.label(f"L2_nofin{t}")
    stamp(e, c, 5)
    I("s_cmp_lg_u32 s24, 0")
    e.branch("s_cbranch_scc1 L2_m_exit")
    I("s_waitcnt lgkmcnt(0)")
    I("s_barrier")
    I("s_add_u32 s22, s22, 1")
    I(f"s_cmp_eq_u32 s22, {NCH-1}")
    I("s_cselect_b32 s24, 1, 0")
    e.branch("s_branch L2_m_round")
    e.label("L2_m_overflow")
    I("s_mov_b32 s22, 0")
    I("s_mov_b32 s23, 1")
    I("s_mov_b32 s24, 0")
    I("s_barrier")
    e.branch("s_branch L2_m_round")
    e.label("L2_m_exit")
    if c.stamps:
        I("s_waitcnt vmcnt(0)")
        stamp(e, c, 6)
        stamp_store(e, c, 8, 1, TF)
    e.label("L2_end")
    I("s_endpgm")
    return name, 128, 96

HEADER = """; equiformer tensor-product message passing: bin edges by destination (eqsort), then per bin of 50 nodes
"""

def gen_probe(e, c):
    kA, a0, a1, sA, oA, kB, b0, b1, sB, oB = c.probe.split(",")
    kernel_header(e, "eqprobe_kernel")
    I = e.I
    I("s_cmp_ge_u32 s2, 1")
    I("s_cbranch_scc1 LP_end")
    I("s_memrealtime s[20:21]")
    I("s_load_dwordx2 s[4:5], s[0:1], 88")
    I("s_waitcnt lgkmcnt(0)")
    srd(e, 8, 4, 32 << 20)
    I("v_min_u32 v1, 249, v0")
    I("v_lshlrev_b32 v1, 10, v1")
    I("v_mov_b32 v10, 0"); I("v_mov_b32 v11, -1"); I("v_mov_b32 v12, 0")
    I("ds_write_b32 v10, v11 offset:0"); I("ds_write_b32 v10, v12 offset:4"); I("ds_write_b32 v10, v11 offset:8"); I("ds_write_b32 v10, v12 offset:12")
    I("s_waitcnt lgkmcnt(0)"); I("s_barrier")
    regs = []
    for (k, w0, w1, sl, off) in ((kA, a0, a1, sA, 0), (kB, b0, b1, sB, 8)):
        if k == "now":
            I(f"v_mov_b32 v{16+len(regs)}, s20"); regs.append(off); continue
        I(f"s_mov_b32 s12, {(16 + int(k)) << 20}")
        for w in range(int(w0), int(w1)):
            I(f"buffer_load_dword v{16+len(regs)}, v1, s[8:11], s12 offen offset:{w*64 + int(sl)*4}")
            regs.append(off)
    I("s_waitcnt vmcnt(0)")
    for n, off in enumerate(regs):
        I(f"ds_min_u32 v10, v{16+n} offset:{off}")
        I(f"ds_max_u32 v10, v{16+n} offset:{off+4}")
    I("s_waitcnt lgkmcnt(0)"); I("s_barrier")
    I(f"ds_read_b32 v3, v10 offset:{0 if oA == 'min' else 4}")
    I(f"ds_read_b32 v4, v10 offset:{8 if oB == 'min' else 12}")
    I("s_waitcnt lgkmcnt(0)")
    I("v_sub_u32 v3, v3, v4")
    I("v_min_u32 v3, 0x2000, v3")
    I("v_readfirstlane_b32 s14, v3")
    I("s_memrealtime s[16:17]")
    I("s_mul_i32 s14, s14, 10")
    I("s_waitcnt lgkmcnt(0)")
    e.label("LP_spin")
    I("s_memrealtime s[18:19]")
    I("s_waitcnt lgkmcnt(0)")
    I("s_sub_u32 s18, s18, s16")
    I("s_cmp_lt_u32 s18, s14")
    I("s_cbranch_scc1 LP_spin")
    e.label("LP_end")
    I("s_endpgm")
    return "eqprobe_kernel", 64, 32

def generate(c):
    e = Emitter()
    e.raw('.amdgcn_target "amdgcn-amd-amdhsa--gfx950"')
    e.raw(".text")
    k1 = gen_k1(e, c)
    k2 = gen_k2(e, c)
    head = HEADER
    dk = ""
    if c.dummy:
        kernel_header(e, "eqdummy_kernel")
        e.I("s_endpgm")
        dk = ".p2align 6\n" + kd("eqdummy_kernel", 8, 16)
    if c.dummy == 2: head += "; @launch kernel=eqdummy_kernel grid=(1,1,1) block=(64,1,1) lds=0\n"
    head += f"; @launch kernel={k1[0]} grid=(256,1,1) block=(1024,1,1) lds={K1_LDS}\n"
    head += f"; @launch kernel={k2[0]} grid=(250,1,1) block=(1024,1,1) lds={c.k2_lds}\n"
    if c.probe:
        kp = gen_probe(e, c)
        dk += ".p2align 6\n" + kd(*kp)
        head += "; @launch kernel=eqprobe_kernel grid=(1,1,1) block=(256,1,1) lds=64\n"
    if c.dummy == 1: head += "; @launch kernel=eqdummy_kernel grid=(1,1,1) block=(64,1,1) lds=0\n"
    tail = '.section .rodata,"a"\n.p2align 6\n' + kd(*k1) + ".p2align 6\n" + kd(*k2) + dk
    return head + e.text() + tail

if __name__ == "__main__":
    c = Cfg()
    out = sys.argv[1]
    for kv in sys.argv[2:]:
        k, v = kv.split("=", 1)
        old = getattr(c, k)
        setattr(c, k, type(old)(int(v)) if isinstance(old, (bool, int)) else v.replace("+", " "))
    open(out, "w").write(generate(c))
```

```python
import sys
from emit import Emitter

N, E = 12500, 800000
NB, NODES = 250, 50
NCH, CH = 250, 3200
CSTRIDE = 55424
KEYOFF, TABOFF = 51200, 54400
WFOFF = NCH * CSTRIDE
WSBYTES = WFOFF + 40960

class Cfg:
    pf1_lines = 0
    pf1_pos = "late"
    st_flags = "sc1"
    ld_flags = ""
    rec_flags = ""
    out_flags = ""
    pf2_lines = 0
    pf2b_lines = 0
    pf2b_tile = 2
    stamps = False
    cap = 3584
    x_noperm = 0
    x_noexp = 0
    x_nomfma = 0
    x_noload = 0
    x_samehalf = 0
    dbgstamps = 0
    probe = ""
    prio = 0
    codepf = 0
    dummy = 0

def srd(e, d, b, nbytes):
    e.I(f"s_mov_b32 s{d}, s{b}")
    e.I(f"s_mov_b32 s{d+1}, s{b+1}")
    e.I(f"s_mov_b32 s{d+2}, {nbytes}")
    e.I(f"s_mov_b32 s{d+3}, 0x20000")

def scan64(e, v):
    for sh in (1, 2, 4, 8):
        e.I(f"v_add_u32_dpp v{v}, v{v}, v{v} row_shr:{sh} row_mask:0xf bank_mask:0xf")
    e.I(f"v_add_u32_dpp v{v}, v{v}, v{v} row_bcast:15 row_mask:0xa bank_mask:0xf")
    e.I(f"v_add_u32_dpp v{v}, v{v}, v{v} row_bcast:31 row_mask:0xc bank_mask:0xf")

def prefetch_x(e, c, nlines, vt, vtid, nthreads, slice_s, half, srdx, tag):
    if nlines <= 0: return
    e.I(f"s_mul_i32 s46, s{slice_s}, 782")
    it = (nlines + nthreads - 1) // nthreads
    for k in range(it):
        e.I(f"v_add_u32 v{vt}, {k*nthreads}, v{vtid}")
        lim = nlines
        e.I(f"v_cmp_gt_u32 vcc, {lim}, v{vt}" if lim <= 64 else f"s_mov_b32 s47, {lim}")
        if lim > 64: e.I(f"v_cmp_gt_u32 vcc, s47, v{vt}")
        e.I(f"v_add_u32 v{vt}, s46, v{vt}")
        e.I(f"v_and_b32 v{vt+1}, 1, v{vt}")
        e.I(f"v_lshrrev_b32 v{vt}, 1, v{vt}")
        e.I(f"v_lshlrev_b32 v{vt}, 9, v{vt}")
        e.I(f"v_lshl_add_u32 v{vt}, v{vt+1}, 7, v{vt}")
        e.I(f"v_cndmask_b32 v{vt}, 2.0, v{vt}, vcc")
        e.I(f"buffer_load_dword v{vt+2}, v{vt}, s[{srdx}:{srdx+3}], 0 offen offset:{half*256}")

def stamp(e, c, slot, tmp_s=90):
    if not c.stamps: return
    e.I(f"s_memrealtime s[{tmp_s}:{tmp_s+1}]")
    e.I("s_waitcnt lgkmcnt(0)")
    e.I(f"v_writelane_b32 v{c.stampv}, s{tmp_s}, {slot}")

def stamp_store(e, c, srdws, kid, vtmp, role=0):
    if not c.stamps: return
    if c.dbgstamps:
        e.I("s_load_dwordx2 s[92:93], s[0:1], 80")
        e.I("s_waitcnt lgkmcnt(0)")
        if not kid: e.I("s_add_u32 s92, s92, 512"); e.I("s_addc_u32 s93, s93, 0")
        e.I("s_mov_b32 s88, s92"); e.I("s_mov_b32 s89, s93"); e.I("s_mov_b32 s90, 64"); e.I("s_mov_b32 s91, 0x20000")
        e.I(f"v_readlane_b32 s94, v{c.stampv}, 0")
        e.I("s_nop 4")
        e.I("s_not_b32 s94, s94")
        e.I(f"v_writelane_b32 v{c.stampv}, s94, 7")
        e.I(f"v_and_b32 v{vtmp+1}, 63, v{c.tidv}")
        e.I(f"v_lshlrev_b32 v{vtmp}, 2, v{vtmp+1}")
        e.I(f"v_and_b32 v{vtmp+1}, 0x2ff, v{c.tidv}")
        e.I(f"v_cmp_gt_u32 vcc, 8, v{vtmp+1}")
        e.I(f"v_cndmask_b32 v{vtmp}, 2.0, v{vtmp}, vcc")
        e.I(f"buffer_atomic_umax v{c.stampv}, v{vtmp}, s[88:91], 0 offen offset:{kid*32}")
        return
    e.I(f"v_lshrrev_b32 v{vtmp}, 6, v{c.tidv}")
    e.I(f"s_lshl_b32 s90, s2, 4")
    e.I(f"v_add_u32 v{vtmp}, s90, v{vtmp}")
    e.I(f"v_lshlrev_b32 v{vtmp}, 6, v{vtmp}")
    e.I(f"v_and_b32 v{vtmp+1}, 63, v{c.tidv}")
    e.I(f"v_lshl_add_u32 v{vtmp}, v{vtmp+1}, 2, v{vtmp}")
    e.I(f"v_cmp_gt_u32 vcc, 16, v{vtmp+1}")
    e.I(f"v_cndmask_b32 v{vtmp}, 2.0, v{vtmp}, vcc")
    e.I(f"s_mov_b32 s90, {(16+kid) << 20}")
    e.I(f"buffer_store_dword v{c.stampv}, v{vtmp}, s[{srdws}:{srdws+3}], s90 offen")

def kernel_header(e, name):
    e.raw(f".globl {name}")
    e.raw(".p2align 8")
    e.raw(f".type {name},@function")
    e.raw(f"{name}:")
    e.hist = []

def kd(name, nv, ns):
    return f""".amdhsa_kernel {name}
  .amdhsa_next_free_vgpr {nv}
  .amdhsa_next_free_sgpr {ns}
  .amdhsa_accum_offset {(nv+3)//4*4}
  .amdhsa_group_segment_fixed_size 0
  .amdhsa_kernarg_size 96
  .amdhsa_user_sgpr_count 2
  .amdhsa_user_sgpr_kernarg_segment_ptr 1
  .amdhsa_system_sgpr_workgroup_id_x 1
  .amdhsa_float_denorm_mode_32 3
.end_amdhsa_kernel
"""

K1_HIST = 55424
K1_BASE = K1_HIST + 1024
K1_LDS = K1_BASE + 1024

def gen_k1(e, c):
    name = "eqsort_kernel"
    kernel_header(e, name)
    c.stampv, c.tidv = 60, 0
    I = e.I
    wsbytes = (32 << 20) if c.stamps else WSBYTES
    I("s_cmp_ge_u32 s2, 256")
    I("s_cbranch_scc1 L1_end")
    if c.stamps: I("v_mov_b32 v60, 0")
    stamp(e, c, 0)
    I("s_load_dwordx4 s[4:7], s[0:1], 0")
    I("s_load_dwordx4 s[8:11], s[0:1], 16")
    I("s_load_dwordx2 s[12:13], s[0:1], 32")
    I("s_load_dwordx4 s[16:19], s[0:1], 48")
    I("s_load_dwordx2 s[14:15], s[0:1], 88")
    I("v_lshlrev_b32 v1, 4, v0")
    I("v_lshlrev_b32 v2, 5, v0")
    I("v_mul_u32_u24 v3, 24, v0")
    I("v_lshlrev_b32 v40, 2, v0")
    I("v_mov_b32 v41, 0")
    I("v_mov_b32 v42, 1")
    I("s_mul_i32 s44, s2, 12800")
    I("s_mul_i32 s45, s2, 25600")
    I("s_mul_i32 s50, s2, 19200")
    I(f"s_mul_i32 s51, s2, {CSTRIDE}")
    I("s_lshr_b32 s52, s2, 3")
    I("s_mov_b32 s53, -50")
    I("s_movk_i32 s54, 800")
    I("v_readfirstlane_b32 s55, v0")
    I("s_lshr_b32 s55, s55, 6")
    I("v_subrev_u32 v50, 832, v0")
    I("s_waitcnt lgkmcnt(0)")
    srd(e, 20, 4, N * 512)
    srd(e, 24, 6, E * 6)
    srd(e, 28, 8, E * 8)
    srd(e, 32, 10, E * 4)
    srd(e, 36, 12, E * 4)
    srd(e, 40, 14, wsbytes)
    I("s_cmp_ge_u32 s2, 250")
    e.branch("s_cbranch_scc1 L1_helper")
    I("s_cmp_ge_u32 s55, 13")
    e.branch("s_cbranch_scc1 L1_idle0")
    I("v_cmp_gt_u32 vcc, s54, v0")
    I("s_and_saveexec_b64 s[48:49], vcc")
    lf = c.ld_flags
    I(f"buffer_load_dwordx4 v[4:7], v1, s[36:39], s44 offen {lf}")
    I(f"buffer_load_dwordx4 v[8:11], v1, s[32:35], s44 offen {lf}")
    I(f"buffer_load_dwordx4 v[12:15], v2, s[28:31], s45 offen {lf}")
    I(f"buffer_load_dwordx4 v[16:19], v2, s[28:31], s45 offen offset:16 {lf}")
    I(f"buffer_load_dwordx4 v[20:23], v3, s[24:27], s50 offen {lf}")
    I(f"buffer_load_dwordx2 v[24:25], v3, s[24:27], s50 offen offset:16 {lf}")
    I("s_mov_b64 exec, s[48:49]")
    I("s_cmp_ge_u32 s55, 4")
    e.branch("s_cbranch_scc1 L1_nz")
    I(f"ds_write_b32 v40, v41 offset:{K1_HIST}")
    I("s_waitcnt lgkmcnt(0)")
    e.label("L1_nz")
    I("s_barrier")
    I("s_and_b64 exec, exec, vcc")
    I("s_waitcnt vmcnt(5)")
    stamp(e, c, 1)
    for i in range(4):
        I(f"v_mul_u32_u24 v{44+i}, 0x147b, v{4+i}")
    for i in range(4):
        I(f"v_lshrrev_b32 v{44+i}, 18, v{44+i}")
    for i in range(4):
        I(f"v_mad_i32_i24 v{4+i}, v{44+i}, s53, v{4+i}")
        I(f"v_lshlrev_b32 v{44+i}, 2, v{44+i}")
    for i in range(4):
        I(f"ds_add_rtn_u32 v{36+i}, v{44+i}, v42 offset:{K1_HIST}")
    I("s_waitcnt lgkmcnt(0)")
    I("s_barrier")
    I("s_cmp_lg_u32 s55, 0")
    e.branch("s_cbranch_scc1 L1_noscan")
    I(f"ds_read_b128 v[52:55], v1 offset:{K1_HIST}")
    I("s_waitcnt lgkmcnt(0)")
    I("v_add_u32 v56, v52, v53")
    I("v_add_u32 v57, v56, v54")
    I("v_add_u32 v58, v57, v55")
    I("v_mov_b32 v59, v58")
    scan64(e, 59)
    I("v_sub_u32 v59, v59, v58")
    I("v_add_u32 v28, v59, v52")
    I("v_add_u32 v29, v59, v56")
    I("v_add_u32 v30, v59, v57")
    I("v_mov_b32 v32, v59"); I("v_mov_b32 v33, v28"); I("v_mov_b32 v34, v29"); I("v_mov_b32 v35, v30")
    I(f"ds_write_b128 v1, v[32:35] offset:{K1_BASE}")
    I("v_lshl_or_b32 v52, v52, 16, v59")
    I("v_lshl_or_b32 v53, v53, 16, v28")
    I("v_lshl_or_b32 v54, v54, 16, v29")
    I("v_lshl_or_b32 v55, v55, 16, v30")
    I(f"ds_write_b128 v1, v[52:55] offset:{TABOFF}")
    I("s_waitcnt lgkmcnt(0)")
    e.label("L1_noscan")
    I("s_barrier")
    for i in range(4):
        I(f"ds_read_b32 v{44+i}, v{44+i} offset:{K1_BASE}")
    I("s_mov_b32 s56, 0x05040100")
    I("s_mov_b32 s57, 0x05040302")
    I("s_waitcnt vmcnt(0)")
    stamp(e, c, 2)
    I("v_mov_b32 v28, v20")
    I("v_perm_b32 v29, v8, v21, s56")
    I("v_alignbit_b32 v30, v22, v21, 16")
    I("v_perm_b32 v31, v9, v22, s57")
    I("v_mov_b32 v32, v23")
    I("v_perm_b32 v33, v10, v24, s56")
    I("v_alignbit_b32 v34, v25, v24, 16")
    I("v_perm_b32 v35, v11, v25, s57")
    I("s_waitcnt lgkmcnt(0)")
    for i in range(4):
        I(f"v_add_u32 v{36+i}, v{36+i}, v{44+i}")
        I(f"v_lshlrev_b32 v{44+i}, 4, v{36+i}")
    for i in range(4):
        I(f"ds_write2_b64 v{44+i}, v[{12+2*i}:{13+2*i}], v[{28+2*i}:{29+2*i}] offset0:0 offset1:1")
        I(f"ds_write_b8 v{36+i}, v{4+i} offset:{KEYOFF}")
    I("s_mov_b64 exec, -1")
    I("s_waitcnt lgkmcnt(0)")
    e.branch("s_branch L1_copy")
    e.label("L1_idle0")
    if c.codepf:
        I("s_getpc_b64 s[60:61]")
        I(f"s_mov_b32 s62, {c.codepf*1024}")
        I("s_mov_b32 s63, 0x20000")
        I("v_lshlrev_b32 v4, 7, v50")
        I("buffer_load_dword v5, v4, s[60:63], 0 offen")
    if c.pf1_pos == "early": prefetch_x(e, c, c.pf1_lines, 4, 50, 192, 52, 0, 20, "a")
    I("s_barrier"); I("s_barrier")
    if c.pf1_pos == "mid": prefetch_x(e, c, c.pf1_lines, 4, 50, 192, 52, 0, 20, "a")
    I("s_barrier")
    if c.pf1_pos == "late": prefetch_x(e, c, c.pf1_lines, 4, 50, 192, 52, 0, 20, "a")
    e.flush()
    e.label("L1_copy")
    I("s_barrier")
    stamp(e, c, 3)
    I("ds_read_b128 v[8:11], v1")
    I("ds_read_b128 v[12:15], v1 offset:16384")
    I("ds_read_b128 v[16:19], v1 offset:32768")
    I("ds_read_b128 v[20:23], v1 offset:49152")
    I("v_add_u32 v2, 16384, v1")
    I("v_add_u32 v3, 32768, v1")
    I("v_add_u32 v24, 49152, v1")
    I("s_movk_i32 s54, 392")
    I("v_cmp_gt_u32 vcc, s54, v0")
    sf = c.st_flags
    I("s_waitcnt lgkmcnt(3)")
    I(f"buffer_store_dwordx4 v[8:11], v1, s[40:43], s51 offen {sf}")
    I("s_waitcnt lgkmcnt(2)")
    I(f"buffer_store_dwordx4 v[12:15], v2, s[40:43], s51 offen {sf}")
    I("s_waitcnt lgkmcnt(1)")
    I(f"buffer_store_dwordx4 v[16:19], v3, s[40:43], s51 offen {sf}")
    I("s_and_saveexec_b64 s[48:49], vcc")
    e.branch("s_cbranch_execz L1_st_done")
    I("s_waitcnt lgkmcnt(0)")
    I(f"buffer_store_dwordx4 v[20:23], v24, s[40:43], s51 offen {sf}")
    e.label("L1_st_done")
    I("s_mov_b64 exec, -1")
    if c.stamps:
        stamp(e, c, 4)
        I("s_waitcnt vmcnt(0)")
        stamp(e, c, 5)
        stamp_store(e, c, 40, 0, 26)
    I("s_endpgm")
    e.label("L1_helper")
    I("s_cmp_lt_u32 s55, 13")
    e.branch("s_cbranch_scc1 L1_h_w")
    prefetch_x(e, c, c.pf1_lines, 4, 50, 192, 52, 0, 20, "h")
    I("s_waitcnt vmcnt(0)")
    I("s_endpgm")
    e.label("L1_h_w")
    I("s_sub_u32 s44, s2, 250")
    I("s_mul_i32 s44, s44, 13")
    I("s_add_u32 s44, s44, s55")
    I("s_cmp_ge_u32 s44, 40")
    e.branch("s_cbranch_scc1 L1_end")
    I("s_and_b32 s45, s44, 3")
    I("s_lshr_b32 s46, s44, 2")
    I("s_cmp_lt_u32 s46, 4")
    I("s_cselect_b32 s24, s16, s18")
    I("s_cselect_b32 s25, s17, s19")
    I("s_movk_i32 s26, 24576")
    I("s_cselect_b32 s26, 16384, s26")
    I("s_cselect_b32 s47, 0, 4")
    I("s_mov_b32 s27, 0x20000")
    I("s_sub_u32 s46, s46, s47")
    I("s_lshl_b32 s46, s46, 12")
    I("s_lshl_b32 s45, s45, 5")
    I("s_add_u32 s46, s46, s45")
    I("v_and_b32 v4, 63, v0")
    I("v_lshrrev_b32 v5, 4, v4")
    I("v_and_b32 v6, 15, v4")
    I("v_lshlrev_b32 v5, 10, v5")
    I("v_lshl_add_u32 v5, v6, 1, v5")
    for q in range(8):
        I(f"buffer_load_ushort v{12+q}, v5, s[24:27], s46 offen offset:{q*128}")
    I("v_lshlrev_b32 v4, 4, v4")
    I("s_lshl_b32 s44, s44, 10")
    I(f"s_add_u32 s44, s44, {WFOFF}")
    I("s_waitcnt vmcnt(0)")
    for k in range(4):
        I(f"v_lshl_or_b32 v{8+k}, v{13+2*k}, 16, v{12+2*k}")
    I("buffer_store_dwordx4 v[8:11], v4, s[40:43], s44 offen")
    e.label("L1_end")
    I("s_endpgm")
    return name, 64, 96

def path_of(jp, blk):
    if blk == 0: return (0, 0, 1) if jp == 0 else (2, jp, 1)
    k = blk - 1
    if jp == 0: return (3, 1 + k, 1)
    j = jp - 1
    if j == k: return (1, 0, 1)
    i = 3 - j - k
    return (4, 1 + i, 1 if k == (j + 1) % 3 else -1)

def gen_k2(e, c):
    name = "eqmain_kernel"
    CAP = c.cap
    HIST = 0
    RAW = 1024
    T = (RAW + (CAP + 64) * 16 + 1023) // 1024 * 1024
    WRAD = T + NODES * 1024
    SCR = WRAD + 16384
    HIST2, CUR2, CNT = HIST + 256, HIST + 512, HIST + 768
    NEXT, DONE, GDONE = CNT, CNT + 16, CNT + 64
    SSTR, PL1, OSC = 2560, 1056, 2080
    lds = SCR + 12 * SSTR
    lds = max(lds, T + 64 * 1024)
    c.k2_lds = lds
    kernel_header(e, name)
    I = e.I
    wsbytes = (32 << 20) if c.stamps else WSBYTES
    c.stampv, c.tidv = 127, 126
    I("s_cmp_ge_u32 s2, 250")
    I("s_cbranch_scc1 L2_end")
    if c.stamps:
        I("v_mov_b32 v127, 0")
        I("v_mov_b32 v126, v0")
    stamp(e, c, 0)
    I("s_load_dwordx2 s[42:43], s[0:1], 0")
    I("s_load_dwordx2 s[44:45], s[0:1], 40")
    I("s_load_dwordx2 s[46:47], s[0:1], 72")
    I("s_load_dwordx2 s[48:49], s[0:1], 88")
    I("s_and_b32 s20, s2, 7")
    I("s_min_u32 s21, s20, 2")
    I("s_mul_i32 s20, s20, 31")
    I("s_add_u32 s20, s20, s21")
    I("s_lshr_b32 s31, s2, 3")
    I("s_add_u32 s20, s20, s31")
    I("v_readfirstlane_b32 s21, v0")
    I("s_lshr_b32 s21, s21, 6")
    I("s_mov_b32 s22, 0")
    I("s_movk_i32 s23, 250")
    I("s_mov_b32 s24, 1")
    I("s_mov_b32 s26, 0xaaaaaaaa")
    I("s_mov_b32 s27, 0xaaaaaaaa")
    I("s_mov_b32 s28, 0x05040100")
    I("s_mov_b32 s29, 0x07060302")
    I("s_mov_b32 s30, 0xffff0000")
    I("s_waitcnt lgkmcnt(0)")
    srd(e, 4, 42, N * 512)
    srd(e, 8, 48, wsbytes)
    srd(e, 12, 46, N * 512)
    srd(e, 16, 44, 2560)
    I("s_cmp_lt_u32 s21, 4")
    e.branch("s_cbranch_scc1 L2_gemm")

    VLANE, VINFO, VNEXT = 108, 109, 110
    VLOFF, VMASK, VOW, VOR, VSCRW, VTRA, VWR, VL16 = 111, 112, 113, 114, 115, 116, 117, 118
    VT0, VT1, VONE, VZERO = 119, 120, 121, 122
    VJ, VCH, VSEG = 123, 124, 125
    I(f"v_and_b32 v{VLANE}, 63, v0")
    I(f"v_subrev_u32 v{VT0}, 256, v0")
    I(f"v_and_b32 v{VJ}, 15, v{VT0}")
    I(f"v_lshrrev_b32 v{VSEG}, 4, v{VT0}")
    I(f"s_mov_b32 s42, {CSTRIDE}")
    I(f"v_mul_u32_u24 v{VCH}, s42, v{VSEG}")
    I(f"v_mov_b32 v{VONE}, 1")
    I(f"v_mov_b32 v{VZERO}, 0")
    I(f"v_mov_b32 v{VMASK}, s30")
    I(f"v_and_b32 v{VT0}, 15, v{VLANE}")
    I(f"v_lshlrev_b32 v{VLOFF}, 4, v{VT0}")
    I(f"v_lshrrev_b32 v{VT1}, 4, v{VLANE}")
    I(f"v_lshlrev_b32 v{VL16}, 4, v{VLANE}")
    I("s_sub_u32 s43, s21, 4")
    I(f"s_mul_i32 s43, s43, {SSTR}")
    I(f"s_add_u32 s43, s43, {SCR}")
    I(f"v_add_u32 v{VSCRW}, s43, v{VL16}")
    I(f"v_lshlrev_b32 v{VOR}, 5, v{VT1}")
    I(f"v_add_u32 v{VOR}, s43, v{VOR}")
    I(f"v_lshlrev_b32 v{VTRA}, 4, v{VT1}")
    I(f"v_bfe_u32 v{VT1}, v{VLANE}, 2, 2")
    I(f"v_lshl_add_u32 v{VTRA}, v{VT1}, 6, v{VTRA}")
    I(f"v_and_b32 v{VT1}, 1, v{VLANE}")
    I(f"v_lshl_add_u32 v{VTRA}, v{VT1}, 3, v{VTRA}")
    I(f"v_bfe_u32 v{VT1}, v{VLANE}, 1, 1")
    I(f"v_mul_u32_u24 v{VT1}, {PL1}, v{VT1}")
    I(f"v_add3_u32 v{VTRA}, v{VTRA}, v{VT1}, s43")
    I(f"v_and_b32 v{VOW}, 32, v{VLANE}")
    I(f"v_and_b32 v{VT1}, 3, v{VLANE}")
    I(f"v_lshl_add_u32 v{VOW}, v{VT1}, 3, v{VOW}")
    I(f"v_bfe_u32 v{VT1}, v{VLANE}, 2, 3")
    I(f"v_add_u32 v{VOW}, v{VOW}, v{VT1}")
    I(f"v_lshlrev_b32 v{VOW}, 2, v{VOW}")
    I(f"v_add_u32 v{VOW}, s43, v{VOW}")
    I(f"v_add_u32 v{VWR}, {WRAD}, v{VL16}")

    e.label("L2_g_round")
    PAY, KEY, RNK, TAB, KAD, PAD = 0, 48, 60, 72, 78, 84
    MSK = 50
    rf = c.rec_flags
    I("s_lshl_b32 s42, s20, 2")
    I(f"s_add_u32 s42, s42, {TABOFF}")
    for p in range(6):
        if p == 5:
            I("s_cmp_ge_u32 s21, 7")
            I(f"v_mov_b32 v{TAB+5}, 0")
            e.branch("s_cbranch_scc1 L2_notab5")
        I(f"buffer_load_dword v{TAB+p}, v{VCH}, s[8:11], s42 offen {rf}")
        if p < 5: I(f"s_add_u32 s42, s42, {48*CSTRIDE}")
    e.label("L2_notab5")
    I("s_waitcnt vmcnt(0)")
    stamp(e, c, 1)
    for p in range(6):
        I(f"s_sub_u32 s42, {48*p}, s22")
        I(f"v_add_u32 v{VT0}, s42, v{VSEG}")
        I(f"v_cmp_gt_u32 vcc, s23, v{VT0}")
        I(f"v_and_b32 v{KAD+p}, 0xffff, v{TAB+p}")
        I(f"v_lshrrev_b32 v{TAB+p}, 16, v{TAB+p}")
        I(f"v_cndmask_b32 v{TAB+p}, 0, v{TAB+p}, vcc")
        I(f"v_add_u32 v{KAD+p}, v{KAD+p}, v{VJ}")
        I(f"v_lshl_add_u32 v{PAD+p}, v{KAD+p}, 4, v{VCH}")
        I(f"v_add_u32 v{KAD+p}, v{KAD+p}, v{VCH}")
        I(f"v_cmp_lt_u32 s[{MSK+4*p}:{MSK+4*p+1}], v{VJ}, v{TAB+p}")
        I(f"v_add_u32 v{VT0}, 16, v{VJ}")
        I(f"v_cmp_lt_u32 s[{MSK+4*p+2}:{MSK+4*p+3}], v{VT0}, v{TAB+p}")
        I(f"s_mov_b32 s{74+p}, {48*p*CSTRIDE}")
        I(f"s_mov_b32 s{80+p}, {48*p*CSTRIDE+KEYOFF}")
        I(f"v_cndmask_b32 v{PAD+p}, 2.0, v{PAD+p}, s[{MSK+4*p}:{MSK+4*p+1}]")
    e.flush()
    for p in range(6):
        I(f"s_mov_b64 exec, s[{MSK+4*p+2}:{MSK+4*p+3}]")
        I(f"s_cbranch_execz L2_w1skip{p}")
        I(f"buffer_load_ubyte v{KEY+2*p+1}, v{KAD+p}, s[8:11], s{80+p} offen offset:16 {rf}")
        I(f"buffer_load_dwordx4 v[{PAY+8*p+4}:{PAY+8*p+7}], v{PAD+p}, s[8:11], s{74+p} offen offset:256 {rf}")
        e.label(f"L2_w1skip{p}")
    for p in range(6):
        I(f"s_mov_b64 exec, s[{MSK+4*p}:{MSK+4*p+1}]")
        if p == 5: I("s_cbranch_execz L2_k5skip")
        I(f"buffer_load_ubyte v{KEY+2*p}, v{KAD+p}, s[8:11], s{80+p} offen {rf}")
    e.label("L2_k5skip")
    I("s_mov_b64 exec, -1")
    for p in range(6):
        if p == 5:
            I("s_cmp_ge_u32 s21, 7")
            I("s_cbranch_scc1 L2_p5skip")
        I(f"buffer_load_dwordx4 v[{PAY+8*p}:{PAY+8*p+3}], v{PAD+p}, s[8:11], s{74+p} offen {rf}")
    e.label("L2_p5skip")
    I("s_barrier")
    I("s_waitcnt vmcnt(5)")
    stamp(e, c, 2)
    for k in range(12):
        I(f"v_lshlrev_b32 v{KEY+k}, 2, v{KEY+k}")
    for p in range(6):
        for w in range(2):
            I(f"s_mov_b64 exec, s[{MSK+4*p+2*w}:{MSK+4*p+2*w+1}]")
            I(f"ds_add_rtn_u32 v{RNK+2*p+w}, v{KEY+2*p+w}, v{VONE} offset:{HIST}")
    I("s_mov_b64 exec, -1")
    I(f"v_max3_u32 v{VT0}, v{TAB}, v{TAB+1}, v{TAB+2}")
    I(f"v_max3_u32 v{VT0}, v{VT0}, v{TAB+3}, v{TAB+4}")
    I(f"v_max_u32 v{VT0}, v{VT0}, v{TAB+5}")
    I(f"v_cmp_lt_u32 vcc, 32, v{VT0}")
    I("s_mov_b32 s25, 0")
    e.flush()
    I("s_cmp_eq_u64 vcc, 0")
    I("s_cbranch_scc1 L2_noextraA")
    I("s_mov_b32 s25, 1")
    for p in range(6):
        I(f"v_add_u32 v{VT0}, 32, v{VJ}")
        I(f"v_add_u32 v{VT1}, 32, v{KAD+p}")
        e.label(f"L2_xa{p}")
        I(f"v_cmp_lt_u32 vcc, v{VT0}, v{TAB+p}")
        I("s_and_saveexec_b64 s[44:45], vcc")
        e.branch(f"s_cbranch_execz L2_xa{p}_done")
        I(f"buffer_load_ubyte v90, v{VT1}, s[8:11], s{80+p} offen")
        I("s_waitcnt vmcnt(0)")
        I("v_lshlrev_b32 v90, 2, v90")
        I(f"ds_add_u32 v90, v{VONE} offset:{HIST2}")
        I("s_mov_b64 exec, -1")
        I(f"v_add_u32 v{VT0}, 16, v{VT0}")
        I(f"v_add_u32 v{VT1}, 16, v{VT1}")
        e.branch(f"s_branch L2_xa{p}")
        e.label(f"L2_xa{p}_done")
        I("s_mov_b64 exec, -1")
    e.label("L2_noextraA")
    I("s_waitcnt lgkmcnt(0)")
    I("s_barrier")
    I(f"v_lshlrev_b32 v{VT0}, 2, v{VLANE}")
    I(f"ds_read_b32 v90, v{VT0} offset:{HIST}")
    I(f"ds_read_b32 v91, v{VT0} offset:{HIST2}")
    I("s_waitcnt lgkmcnt(0)")
    I("v_add_u32 v91, v90, v91")
    I("v_mov_b32 v92, v91")
    scan64(e, 92)
    I("v_readlane_b32 s46, v92, 63")
    I("v_sub_u32 v92, v92, v91")
    I(f"v_lshl_or_b32 v{VINFO}, v91, 16, v92")
    e.flush()
    I(f"s_cmp_gt_u32 s46, {CAP}")
    I("s_cbranch_scc1 L2_g_overflow")
    for k in range(12):
        I(f"ds_bpermute_b32 v{KEY+k}, v{KEY+k}, v92")
    I("s_waitcnt vmcnt(0) lgkmcnt(0)")
    stamp(e, c, 3)
    for k in range(12):
        I(f"v_add_lshl_u32 v{KEY+k}, v{KEY+k}, v{RNK+k}, 4")
    for p in range(6):
        for w in range(2):
            I(f"s_mov_b64 exec, s[{MSK+4*p+2*w}:{MSK+4*p+2*w+1}]")
            I(f"ds_write_b128 v{KEY+2*p+w}, v[{PAY+8*p+4*w}:{PAY+8*p+4*w+3}] offset:{RAW}")
    I("s_mov_b64 exec, -1")
    I("s_cmp_eq_u32 s25, 0")
    I("s_cbranch_scc1 L2_noextraB")
    I("v_add_u32 v92, v92, v90")
    for p in range(6):
        I(f"v_add_u32 v{VT0}, 32, v{VJ}")
        I(f"v_add_u32 v{VT1}, 32, v{KAD+p}")
        I(f"v_add_u32 v93, 512, v{PAD+p}")
        e.label(f"L2_xb{p}")
        I(f"v_cmp_lt_u32 vcc, v{VT0}, v{TAB+p}")
        I("s_and_saveexec_b64 s[44:45], vcc")
        e.branch(f"s_cbranch_execz L2_xb{p}_done")
        I(f"buffer_load_ubyte v94, v{VT1}, s[8:11], s{80+p} offen")
        I(f"buffer_load_dwordx4 v[96:99], v93, s[8:11], s{74+p} offen")
        I("s_waitcnt vmcnt(0)")
        I("v_lshlrev_b32 v94, 2, v94")
        I(f"ds_add_rtn_u32 v95, v94, v{VONE} offset:{CUR2}")
        I("s_mov_b64 exec, -1")
        I("ds_bpermute_b32 v94, v94, v92")
        I("s_waitcnt lgkmcnt(0)")
        I("v_add_lshl_u32 v94, v94, v95, 4")
        I("s_mov_b64 exec, vcc")
        I(f"ds_write_b128 v94, v[96:99] offset:{RAW}")
        I("s_mov_b64 exec, -1")
        I(f"v_add_u32 v{VT0}, 16, v{VT0}")
        I(f"v_add_u32 v{VT1}, 16, v{VT1}")
        I("v_add_u32 v93, 256, v93")
        e.branch(f"s_branch L2_xb{p}")
        e.label(f"L2_xb{p}_done")
        I("s_mov_b64 exec, -1")
    e.label("L2_noextraB")
    ACC, LD, B, A, AD = 0, 32, 64, 96, 100
    for k in range(32):
        I(f"v_mov_b32 v{LD+k}, 0")
    I("s_cmp_lg_u32 s21, 4")
    I("s_cbranch_scc1 L2_noguard")
    I("s_lshl_b32 s46, s46, 4")
    I(f"v_add_u32 v{VT0}, s46, v{VL16}")
    I(f"ds_write_b128 v{VT0}, v[{LD}:{LD+3}] offset:{RAW}")
    e.label("L2_noguard")
    I("s_waitcnt lgkmcnt(0)")
    I("s_barrier")
    stamp(e, c, 4)

    sA, sR, sH, sN, sNV = 32, 33, 34, 35, 37
    sCN, sCH, sCF, sCR, sL = 38, 39, 40, 41, 36
    uid = [0]
    def lab(p):
        uid[0] += 1
        return f"L2_{p}{uid[0]}"
    def fetch_issue():
        I("s_mov_b64 exec, 1")
        I(f"ds_add_rtn_u32 v{VNEXT}, v{VZERO}, v{VONE} offset:{NEXT}")
        I("s_mov_b64 exec, -1")
    def setup_item(none_label):
        I(f"v_readfirstlane_b32 s42, v{VNEXT}")
        e.nop(1)
        I(f"s_cmp_ge_u32 s42, {2*NODES}")
        I(f"s_cbranch_scc1 {none_label}")
        I(f"s_cmp_ge_u32 s42, {NODES}")
        I(f"s_cselect_b32 s{sH}, 256, 0")
        I(f"s_cselect_b32 s43, {NODES}, 0")
        I(f"s_sub_u32 s{sN}, s42, s43")
        I(f"v_readlane_b32 s42, v{VINFO}, s{sN}")
        e.nop(1)
        I(f"s_lshr_b32 s{sR}, s42, 16")
        I("s_and_b32 s42, s42, 0xffff")
        I(f"s_lshl_b32 s{sA}, s42, 4")
    def off_read(hf):
        I(f"ds_read_b128 v[{AD}:{AD+3}], v{VOR} offset:{OSC+128*hf}")
        I(f"ds_read_b128 v[{AD+4}:{AD+7}], v{VOR} offset:{OSC+128*hf+16}")
    def off_add():
        for i in range(8):
            I(f"v_add_u32 v{AD+i}, v{AD+i}, v{VLOFF}")
    def prep_block():
        r = B
        I(f"v_add_u32 v{VT0}, s{sA}, v{VL16}")
        I(f"ds_read_b128 v[{r}:{r+3}], v{VT0} offset:{RAW}")
        l = lab("nf")
        I(f"s_cmp_gt_u32 s{sR}, 64")
        I(f"s_cbranch_scc1 {l}")
        fetch_issue()
        e.label(l)
        I(f"v_cmp_gt_u32 vcc, s{sR}, v{VLANE}")
        I("s_waitcnt lgkmcnt(0)")
        I(f"v_lshrrev_b32 v{r+11}, 16, v{r+3}")
        I(f"v_lshlrev_b32 v{r+11}, 9, v{r+11}")
        I(f"ds_write_b32 v{VOW}, v{r+11} offset:{OSC}")
        off_read(0)
        if not c.x_noexp:
            I(f"v_cndmask_b32 v{r}, 0, v{r}, vcc")
            I(f"v_cndmask_b32 v{r+1}, 0, v{r+1}, vcc")
            I(f"v_lshlrev_b32 v{r+8}, 16, v{r+2}")
            I(f"v_and_b32 v{r+9}, v{VMASK}, v{r+2}")
            I(f"v_lshlrev_b32 v{r+10}, 16, v{r+3}")
            I(f"v_lshlrev_b32 v{r+4}, 16, v{r}")
            I(f"v_and_b32 v{r+5}, v{VMASK}, v{r}")
            I(f"v_lshlrev_b32 v{r+6}, 16, v{r+1}")
            I(f"v_and_b32 v{r+7}, v{VMASK}, v{r+1}")
            for j in range(3):
                for d in range(4):
                    I(f"v_mul_f32 v{r+12+4*j+d}, v{r+4+d}, v{r+8+j}")
            I(f"v_cvt_pk_bf16_f32 v{r+2}, v{r+12}, v{r+13}")
            I(f"v_cvt_pk_bf16_f32 v{r+3}, v{r+14}, v{r+15}")
            for k in range(4):
                I(f"v_cvt_pk_bf16_f32 v{r+24+k}, v{r+16+2*k}, v{r+17+2*k}")
        I(f"ds_write_b128 v{VSCRW}, v[{r}:{r+3}]")
        I(f"ds_write_b128 v{VSCRW}, v[{r+24}:{r+27}] offset:{PL1}")
        I("s_waitcnt lgkmcnt(2)")
        off_add()
    def ld(i):
        if c.x_noload: return
        I(f"buffer_load_dwordx4 v[{LD+4*i}:{LD+4*i+3}], v{AD+i}, s[4:7], {'0' if c.x_samehalf else 's%d' % sH} offen")
    def perm(q, jj, k16=False):
        if c.x_noperm: return
        d = B + 2*q + jj if k16 else B + 4*q + jj
        I(f"v_perm_b32 v{d}, v{LD+4*(2*jj+1)+q//2}, v{LD+4*(2*jj)+q//2}, s{29 if q & 1 else 28}")
    def loads_partial(done):
        for i in range(7):
            I(f"s_cmp_le_u32 s{sL}, {4*i}")
            I(f"s_cbranch_scc1 {done}")
            ld(i)
    def perms_loads():
        part, done = lab("pp"), lab("pd")
        I("s_waitcnt vmcnt(0)")
        if c.prio: I(f"s_setprio {c.prio}")
        I(f"s_cmp_le_u32 s{sL}, 28")
        I(f"s_cbranch_scc1 {part}")
        for jj in range(4):
            for q in range(8): perm(q, jj)
            ld(2*jj); ld(2*jj+1)
        I(f"s_branch {done}")
        e.label(part)
        for jj in range(4):
            for q in range(8): perm(q, jj)
        loads_partial(done)
        e.label(done)
        if c.prio: I("s_setprio 0")
    def mfmas(first, k16=False):
        if c.x_nomfma: return
        for q in range(8):
            d = f"v[{ACC+4*q}:{ACC+4*q+3}]"
            if k16: I(f"v_mfma_f32_16x16x16_bf16 {d}, v[{A}:{A+1}], v[{B+2*q}:{B+2*q+1}], {'0' if first else d}")
            else: I(f"v_mfma_f32_16x16x32_bf16 {d}, v[{A}:{A+3}], v[{B+4*q}:{B+4*q+3}], {'0' if first else d}")
    def tr_read(hf):
        I(f"ds_read_b64_tr_b16 v[{A}:{A+1}], v{VTRA} offset:{512*hf}")
        I(f"ds_read_b64_tr_b16 v[{A+2}:{A+3}], v{VTRA} offset:{512*hf+256}")

    fetch_issue()
    I("s_waitcnt lgkmcnt(0)")
    setup_item("L2_g_done")
    prep_block()
    I(f"s_mov_b32 s{sL}, s{sR}")
    I(f"s_cmp_le_u32 s{sL}, 28")
    I("s_cbranch_scc1 L2_i_part")
    for i in range(8): ld(i)
    I("s_branch L2_A1")
    e.label("L2_i_part")
    loads_partial("L2_A1")
    for first in (1, 0):
        e.label(f"L2_A{first}")
        tr_read(0)
        I(f"s_cmp_gt_u32 s{sR}, 32")
        I(f"s_cbranch_scc1 L2_AB{first}")
        I(f"s_mov_b32 s{sCF}, {first}")
        I(f"s_mov_b32 s{sCR}, s{sR}")
        I("s_branch L2_XN")
        e.label(f"L2_AB{first}")
        off_read(1)
        I(f"s_sub_u32 s{sL}, s{sR}, 32")
        I("s_waitcnt lgkmcnt(0)")
        off_add()
        perms_loads()
        mfmas(first)
        if first: I("s_branch L2_B")
    e.label("L2_B")
    tr_read(1)
    I(f"s_cmp_gt_u32 s{sR}, 64")
    I("s_cbranch_scc0 L2_BN")
    I(f"s_sub_u32 s{sR}, s{sR}, 64")
    I(f"s_add_u32 s{sA}, s{sA}, 1024")
    I(f"s_mov_b32 s{sL}, s{sR}")
    prep_block()
    perms_loads()
    I("s_waitcnt lgkmcnt(0)")
    mfmas(0)
    I("s_branch L2_A0")
    e.label("L2_BN")
    I(f"s_mov_b32 s{sCF}, 0")
    I(f"s_sub_u32 s{sCR}, s{sR}, 32")
    e.label("L2_XN")
    I(f"s_mov_b32 s{sCN}, s{sN}")
    I(f"s_mov_b32 s{sCH}, s{sH}")
    I(f"s_mov_b32 s{sNV}, 1")
    setup_item("L2_XN_none")
    I(f"s_mov_b32 s{sL}, s{sR}")
    prep_block()
    I("s_branch L2_XN_go")
    e.label("L2_XN_none")
    I(f"s_mov_b32 s{sNV}, 0")
    I(f"s_mov_b32 s{sL}, 0")
    e.label("L2_XN_go")
    I(f"s_cmp_le_u32 s{sCR}, 16")
    I("s_cbranch_scc1 L2_XN_k16")
    perms_loads()
    I("s_waitcnt lgkmcnt(0)")
    I(f"s_cmp_eq_u32 s{sCF}, 0")
    I("s_cbranch_scc1 L2_XN_acc")
    mfmas(1)
    I("s_branch L2_XN_epi")
    e.label("L2_XN_acc")
    mfmas(0)
    I("s_branch L2_XN_epi")
    e.label("L2_XN_k16")
    I("s_waitcnt vmcnt(0)")
    if c.prio: I(f"s_setprio {c.prio}")
    for jj in range(2):
        for q in range(8): perm(q, jj, True)
    I(f"s_cmp_le_u32 s{sL}, 28")
    I("s_cbranch_scc1 L2_XN_k16p")
    for i in range(8): ld(i)
    I("s_branch L2_XN_k16d")
    e.label("L2_XN_k16p")
    loads_partial("L2_XN_k16d")
    e.label("L2_XN_k16d")
    if c.prio: I("s_setprio 0")
    I("s_waitcnt lgkmcnt(0)")
    I(f"s_cmp_eq_u32 s{sCF}, 0")
    I("s_cbranch_scc1 L2_XN_k16acc")
    mfmas(1, True)
    I("s_branch L2_XN_epi")
    e.label("L2_XN_k16acc")
    mfmas(0, True)
    e.label("L2_XN_epi")
    I(f"s_lshl_b32 s42, s{sCH}, 5")
    I(f"v_add_u32 v{VT0}, s42, v{VWR}")
    for q in range(8):
        I(f"ds_read_b128 v[{B+4*q}:{B+4*q+3}], v{VT0} offset:{q*1024}")
    I(f"s_lshr_b32 s43, s{sCN}, 4")
    I(f"s_lshl_b32 s43, s43, 2")
    I(f"s_cmp_eq_u32 s{sCH}, 0")
    I("s_cbranch_scc1 L2_nowar")
    I(f"v_mov_b32 v{VT1}, s43")
    I("s_mov_b32 s45, 0")
    e.label("L2_war")
    I(f"ds_read_b32 v{VT0}, v{VT1} offset:{GDONE}")
    I("s_waitcnt lgkmcnt(0)")
    I(f"v_readfirstlane_b32 s44, v{VT0}")
    e.nop(1)
    I("s_cmp_ge_u32 s44, 4")
    I("s_cbranch_scc1 L2_war_ok")
    I("s_add_u32 s45, s45, 1")
    I("s_cmp_lt_u32 s45, 0x400000")
    I("s_cbranch_scc1 L2_war")
    e.label("L2_war_ok")
    I("s_add_u32 s43, s43, 16")
    e.label("L2_nowar")
    I(f"s_and_b32 s44, s{sCN}, 15")
    I("s_lshl_b32 s44, s44, 4")
    I(f"s_lshl_b32 s45, s{sCN}, 10")
    I(f"s_add_u32 s45, s45, {T}")
    I(f"v_xor_b32 v{VT0}, s44, v{VL16}")
    I(f"v_add_u32 v{VT0}, s45, v{VT0}")
    I(f"v_mov_b32 v{VT1}, s43")
    I("s_waitcnt lgkmcnt(0)")
    for q in range(8):
        I(f"v_mul_f32 v{B+4*q}, v{B+4*q}, v{ACC+4*q}")
    for d in range(1, 4):
        for q in range(8):
            I(f"v_fmac_f32 v{B+4*q}, v{B+4*q+d}, v{ACC+4*q+d}")
    for k in range(4):
        I(f"v_cvt_pk_bf16_f32 v{A+k}, v{B+8*k}, v{B+8*k+4}")
    I(f"ds_write_b128 v{VT0}, v[{A}:{A+3}]")
    I("s_waitcnt lgkmcnt(0)")
    I("s_mov_b64 exec, 1")
    I(f"ds_add_u32 v{VT1}, v{VONE} offset:{DONE}")
    I("s_mov_b64 exec, -1")
    I(f"s_cmp_lg_u32 s{sNV}, 0")
    I("s_cbranch_scc1 L2_A1")
    e.label("L2_g_done")
    stamp(e, c, 5)
    I("s_cmp_lg_u32 s24, 0")
    e.branch("s_cbranch_scc1 L2_g_exit")
    I("s_waitcnt lgkmcnt(0)")
    I("s_barrier")
    I("s_add_u32 s22, s22, 1")
    I(f"s_cmp_eq_u32 s22, {NCH-1}")
    I("s_cselect_b32 s24, 1, 0")
    e.branch("s_branch L2_g_round")
    e.label("L2_g_overflow")
    I("s_waitcnt vmcnt(0)")
    I("s_mov_b32 s22, 0")
    I("s_mov_b32 s23, 1")
    I("s_mov_b32 s24, 0")
    I("s_barrier")
    e.branch("s_branch L2_g_round")
    e.label("L2_g_exit")
    stamp_store(e, c, 8, 1, 90)
    I("s_endpgm")

    e.label("L2_gemm")
    W, G, TA, TF = 0, 40, 104, 108
    X0, X1 = 124, 125
    if c.stamps: X0, X1 = 124, 125
    I("v_and_b32 v104, 63, v0")
    I("v_mov_b32 v117, v0")
    I("v_lshlrev_b32 v105, 4, v104")
    I("s_lshl_b32 s42, s21, 10")
    I(f"s_add_u32 s42, s42, {WFOFF}")
    for f in range(10):
        I(f"buffer_load_dwordx4 v[{W+4*f}:{W+4*f+3}], v105, s[8:11], s42 offen")
        if f < 9: I("s_add_u32 s42, s42, 4096")
    lut = 0
    for jp in range(4):
        for blk in range(4):
            p, i, s = path_of(jp, blk)
            lut |= (p | (8 if s < 0 else 0)) << (4 * (jp * 4 + blk))
    I(f"s_mov_b32 s44, {lut & 0xffffffff}")
    I(f"s_mov_b32 s45, {lut >> 32}")
    for h in range(2):
        I("v_lshrrev_b32 v106, 4, v104")
        I("v_bfe_u32 v107, v104, 3, 1")
        I("v_lshl_add_u32 v106, v106, 2, v107")
        I(f"v_add_lshl_u32 v106, v106, {2*h}, 2")
        I(f"v_lshrrev_b64 v[108:109], v106, s[44:45]")
        I(f"v_and_b32 v106, 7, v108")
        I(f"v_and_b32 v{110+h}, 8, v108")
        I(f"v_lshlrev_b32 v{110+h}, 28, v{110+h}")
        I("v_and_b32 v107, 7, v104")
        I("v_lshlrev_b32 v107, 3, v107")
        I("v_lshl_add_u32 v106, v106, 6, v107")
        I("v_add_u32 v106, s21, v106")
        I(f"v_lshlrev_b32 v{112+h}, 1, v106")
    for k in range(4):
        h, qo = k >> 1, (k & 1) * 4
        for d in range(4):
            I(f"buffer_load_ushort v{G+4*k+d}, v{112+h}, s[16:19], 0 offen offset:{d*640+qo*2}")
    prefetch_x(e, c, c.pf2_lines, 114, 117, 256, 31, 0, 4, "p")
    I("s_lshl_b32 s42, s21, 10")
    I(f"s_add_u32 s42, s42, {WRAD}")
    I("v_add_u32 v105, s42, v105")
    npf = (c.pf2_lines + 255) // 256
    I(f"s_waitcnt vmcnt({npf})")
    for k in range(4):
        h = k >> 1
        for d in range(4):
            I(f"v_lshlrev_b32 v{G+4*k+d}, 16, v{G+4*k+d}")
            I(f"v_xor_b32 v{G+4*k+d}, v{110+h}, v{G+4*k+d}")
        I(f"ds_write_b128 v105, v[{G+4*k}:{G+4*k+3}] offset:{(k>>1)*8192 + (k&1)*4096}")
    I("v_and_b32 v106, 15, v104")
    I("v_lshrrev_b32 v107, 4, v104")
    I(f"v_lshlrev_b32 v{X0}, 2, v104")
    I(f"s_mul_i32 s42, s20, {NODES*512}")
    I("s_lshl_b32 s43, s21, 5")
    I("s_add_u32 s42, s42, s43")
    I(f"v_lshlrev_b32 v{X1}, 9, v106")
    I(f"v_lshl_add_u32 v{X1}, v107, 3, v{X1}")
    I(f"v_add_u32 v{X1}, s42, v{X1}")
    I(f"v_cmp_gt_u32 s[50:51], {NODES-48}, v106")
    I("v_lshlrev_b32 v108, 10, v106")
    I(f"v_add_u32 v108, {T}, v108")
    for u in (3, 2, 1, 0):
        I(f"v_add_u32 v109, {4*u}, v107")
        I("v_xor_b32 v109, v109, v106")
        I(f"v_lshl_add_u32 v{TF+4+u}, v109, 4, v108")
    I("s_waitcnt lgkmcnt(0)")
    for u in range(4):
        I(f"v_mov_b32 v{TA+u}, v{TF+4+u}")
    for k in range(64):
        I(f"v_mov_b32 v{G+k}, 0")
    e.label("L2_m_round")
    I("s_cmp_lg_u32 s21, 0")
    I("s_cbranch_scc1 L2_m_nz")
    I(f"v_mov_b32 v{TF}, 0"); I(f"v_mov_b32 v{TF+1}, 0"); I(f"v_mov_b32 v{TF+2}, 0"); I(f"v_mov_b32 v{TF+3}, 0")
    I(f"v_lshlrev_b32 v{TF+4}, 2, v{X0}")
    I(f"ds_write_b128 v{TF+4}, v[{TF}:{TF+3}] offset:{HIST}")
    I("s_waitcnt lgkmcnt(0)")
    e.label("L2_m_nz")
    I("s_barrier")
    I("s_barrier")
    I(f"ds_read_b32 v{TF}, v{X0} offset:{HIST}")
    I(f"ds_read_b32 v{TF+1}, v{X0} offset:{HIST2}")
    I("s_waitcnt lgkmcnt(0)")
    I(f"v_add_u32 v{TF}, v{TF}, v{TF+1}")
    scan64(e, TF)
    I(f"v_readlane_b32 s42, v{TF}, 63")
    e.flush()
    I(f"s_cmp_gt_u32 s42, {CAP}")
    I("s_cbranch_scc1 L2_m_overflow")
    I("s_barrier")
    I("s_waitcnt vmcnt(0)")
    stamp(e, c, 4)
    for h in range(2):
        for t in range(4):
            need = 16 if t < 3 else NODES - 48
            I(f"v_mov_b32 v{TF}, 0")
            I("s_mov_b32 s43, 0")
            e.label(f"L2_poll{h}{t}")
            I(f"ds_read_b32 v{TF+1}, v{TF} offset:{DONE + 16*h + 4*t}")
            I("s_waitcnt lgkmcnt(0)")
            I(f"v_readfirstlane_b32 s42, v{TF+1}")
            e.flush()
            I(f"s_cmp_ge_u32 s42, {need}")
            I(f"s_cbranch_scc1 L2_go{h}{t}")
            I("s_sleep 2")
            I("s_add_u32 s43, s43, 1")
            I("s_cmp_lt_u32 s43, 0x400000")
            I(f"s_cbranch_scc1 L2_poll{h}{t}")
            e.label(f"L2_go{h}{t}")
            stamp(e, c, 7 + 4*h + t)
            def rd(ks):
                I(f"ds_read_b128 v[{TF+4*(ks&3)}:{TF+4*(ks&3)+3}], v{TA+(ks&3)} offset:{t*16384 + (ks>>2)*256}")
            for ks in range(4): rd(ks)
            for ks in range(16):
                jp, blk = ks >> 2, 2 * h + ((ks >> 1) & 1)
                p, i, s = path_of(jp, blk)
                f = p * 2 + (ks & 1)
                I(f"s_waitcnt lgkmcnt({min(3, 15-ks)})")
                g = G + 16 * t + 4 * i
                I(f"v_mfma_f32_16x16x32_bf16 v[{g}:{g+3}], v[{W+4*f}:{W+4*f+3}], v[{TF+4*(ks&3)}:{TF+4*(ks&3)+3}], v[{g}:{g+3}]")
                if ks + 4 < 16: rd(ks + 4)
            if h == 0:
                I(f"v_mov_b32 v{TF}, 0")
                I(f"v_mov_b32 v{TF+1}, 1")
                I("s_mov_b64 exec, 1")
                I(f"ds_add_u32 v{TF}, v{TF+1} offset:{GDONE + 4*t}")
                I("s_mov_b64 exec, -1")
                if t == c.pf2b_tile:
                    if c.pf2b_lines:
                        I("s_lshl_b32 s42, s21, 6")
                        I(f"v_lshrrev_b32 v{TF+3}, 2, v{X0}")
                        I(f"v_add_u32 v{TF+3}, s42, v{TF+3}")
                    prefetch_x(e, c, c.pf2b_lines, TF + 4, TF + 3, 256, 31, 1, 4, "q")
                    if c.pf2b_lines: I("s_waitcnt vmcnt(0)")
            else:
                I("s_cmp_eq_u32 s24, 0")
                e.branch(f"s_cbranch_scc1 L2_nofin{t}")
                g = G + 16 * t
                I("s_mov_b32 s42, 0xbfb8aa3b")
                for r in range(4): I(f"v_mul_f32 v{TF+r}, s42, v{g+r}")
                for r in range(4): I(f"v_exp_f32 v{TF+r}, v{TF+r}")
                for r in range(4): I(f"v_add_f32 v{TF+r}, 1.0, v{TF+r}")
                for r in range(4): I(f"v_rcp_f32 v{TF+r}, v{TF+r}")
                for i in range(1, 4):
                    for r in range(4): I(f"v_mul_f32 v{g+4*i+r}, v{g+4*i+r}, v{TF+r}")
                for i in range(4):
                    I(f"v_cvt_pk_bf16_f32 v{TF+4+2*i}, v{g+4*i}, v{g+4*i+1}")
                    I(f"v_cvt_pk_bf16_f32 v{TF+5+2*i}, v{g+4*i+2}, v{g+4*i+3}")
                I(f"s_mov_b32 s42, {t*16*512}")
                if t == 3: I("s_mov_b64 exec, s[50:51]")
                for i in range(4):
                    I(f"buffer_store_dwordx2 v[{TF+4+2*i}:{TF+5+2*i}], v{X1}, s[12:15], s42 offen offset:{i*128} {c.out_flags}")
                if t == 3: I("s_mov_b64 exec, -1")
                e.label(f"L2_nofin{t}")
    stamp(e, c, 5)
    I("s_cmp_lg_u32 s24, 0")
    e.branch("s_cbranch_scc1 L2_m_exit")
    I("s_waitcnt lgkmcnt(0)")
    I("s_barrier")
    I("s_add_u32 s22, s22, 1")
    I(f"s_cmp_eq_u32 s22, {NCH-1}")
    I("s_cselect_b32 s24, 1, 0")
    e.branch("s_branch L2_m_round")
    e.label("L2_m_overflow")
    I("s_mov_b32 s22, 0")
    I("s_mov_b32 s23, 1")
    I("s_mov_b32 s24, 0")
    I("s_barrier")
    e.branch("s_branch L2_m_round")
    e.label("L2_m_exit")
    if c.stamps:
        I("s_waitcnt vmcnt(0)")
        stamp(e, c, 6)
        stamp_store(e, c, 8, 1, TF)
    e.label("L2_end")
    I("s_endpgm")
    return name, 128, 96

HEADER = """; equiformer tensor-product message passing: bin edges by destination (eqsort), then per bin of 50 nodes
"""

def gen_probe(e, c):
    kA, a0, a1, sA, oA, kB, b0, b1, sB, oB = c.probe.split(",")
    kernel_header(e, "eqprobe_kernel")
    I = e.I
    I("s_cmp_ge_u32 s2, 1")
    I("s_cbranch_scc1 LP_end")
    I("s_memrealtime s[20:21]")
    I("s_load_dwordx2 s[4:5], s[0:1], 88")
    I("s_waitcnt lgkmcnt(0)")
    srd(e, 8, 4, 32 << 20)
    I("v_min_u32 v1, 249, v0")
    I("v_lshlrev_b32 v1, 10, v1")
    I("v_mov_b32 v10, 0"); I("v_mov_b32 v11, -1"); I("v_mov_b32 v12, 0")
    I("ds_write_b32 v10, v11 offset:0"); I("ds_write_b32 v10, v12 offset:4"); I("ds_write_b32 v10, v11 offset:8"); I("ds_write_b32 v10, v12 offset:12")
    I("s_waitcnt lgkmcnt(0)"); I("s_barrier")
    regs = []
    for (k, w0, w1, sl, off) in ((kA, a0, a1, sA, 0), (kB, b0, b1, sB, 8)):
        if k == "now":
            I(f"v_mov_b32 v{16+len(regs)}, s20"); regs.append(off); continue
        I(f"s_mov_b32 s12, {(16 + int(k)) << 20}")
        for w in range(int(w0), int(w1)):
            I(f"buffer_load_dword v{16+len(regs)}, v1, s[8:11], s12 offen offset:{w*64 + int(sl)*4}")
            regs.append(off)
    I("s_waitcnt vmcnt(0)")
    for off, op in ((0, oA), (8, oB)):
        idx = [n for n, o in enumerate(regs) if o == off]
        for n in idx[1:]:
            I(f"v_{op}_u32 v{16+idx[0]}, v{16+idx[0]}, v{16+n}")
        I(f"ds_{op}_u32 v10, v{16+idx[0]} offset:{off + (0 if op == 'min' else 4)}")
    I("s_waitcnt lgkmcnt(0)"); I("s_barrier")
    I(f"ds_read_b32 v3, v10 offset:{0 if oA == 'min' else 4}")
    I(f"ds_read_b32 v4, v10 offset:{8 if oB == 'min' else 12}")
    I("s_waitcnt lgkmcnt(0)")
    I("v_sub_u32 v3, v3, v4")
    I("v_min_u32 v3, 0x2000, v3")
    I("v_readfirstlane_b32 s14, v3")
    I("s_memrealtime s[16:17]")
    I("s_mul_i32 s14, s14, 10")
    I("s_waitcnt lgkmcnt(0)")
    e.label("LP_spin")
    I("s_memrealtime s[18:19]")
    I("s_waitcnt lgkmcnt(0)")
    I("s_sub_u32 s18, s18, s16")
    I("s_cmp_lt_u32 s18, s14")
    I("s_cbranch_scc1 LP_spin")
    e.label("LP_end")
    I("s_endpgm")
    return "eqprobe_kernel", 64, 32

def generate(c):
    e = Emitter()
    e.raw('.amdgcn_target "amdgcn-amd-amdhsa--gfx950"')
    e.raw(".text")
    k1 = gen_k1(e, c)
    k2 = gen_k2(e, c)
    head = HEADER
    dk = ""
    if c.dummy:
        kernel_header(e, "eqdummy_kernel")
        e.I("s_endpgm")
        dk = ".p2align 6\n" + kd("eqdummy_kernel", 8, 16)
    if c.dummy == 2: head += "; @launch kernel=eqdummy_kernel grid=(1,1,1) block=(64,1,1) lds=0\n"
    head += f"; @launch kernel={k1[0]} grid=(256,1,1) block=(1024,1,1) lds={K1_LDS}\n"
    head += f"; @launch kernel={k2[0]} grid=(250,1,1) block=(1024,1,1) lds={c.k2_lds}\n"
    if c.probe:
        kp = gen_probe(e, c)
        dk += ".p2align 6\n" + kd(*kp)
        head += "; @launch kernel=eqprobe_kernel grid=(1,1,1) block=(256,1,1) lds=64\n"
    if c.dummy == 1: head += "; @launch kernel=eqdummy_kernel grid=(1,1,1) block=(64,1,1) lds=0\n"
    tail = '.section .rodata,"a"\n.p2align 6\n' + kd(*k1) + ".p2align 6\n" + kd(*k2) + dk
    return head + e.text() + tail

if __name__ == "__main__":
    c = Cfg()
    out = sys.argv[1]
    for kv in sys.argv[2:]:
        k, v = kv.split("=", 1)
        old = getattr(c, k)
        setattr(c, k, type(old)(int(v)) if isinstance(old, (bool, int)) else v.replace("+", " "))
    open(out, "w").write(generate(c))
```

```python
import sys
from emit import Emitter

N, E = 12500, 800000
NB, NODES = 250, 50
NCH, CH = 250, 3200
CSTRIDE = 56448
KEYOFF, TABOFF = 51200, 54400
WSBYTES = NCH * CSTRIDE
KNAME = "gather_scatter__tensor_product_equiv_equiformer__graph_kernel"

class Cfg:
    st_flags = "sc1"
    ld_flags = ""
    rec_flags = "sc1"
    out_flags = ""
    pfx_lines = 0
    pfx_pos = "store"
    pf2b_lines = 0
    pf2b_tile = 2
    stamps = False
    cap = 3584
    x_noperm = 0
    x_noexp = 0
    x_nomfma = 0
    x_noload = 0
    x_samehalf = 0
    prio = 0
    codepf = 0
    sleep = 2
    psleep = 1
    probe = ""
    poll_all = 0
    wpos = 0
    tagpos = 0

def srd(e, d, b, nbytes):
    e.I(f"s_mov_b32 s{d}, s{b}")
    e.I(f"s_mov_b32 s{d+1}, s{b+1}")
    e.I(f"s_mov_b32 s{d+2}, {nbytes}")
    e.I(f"s_mov_b32 s{d+3}, 0x20000")

def scan64(e, v):
    for sh in (1, 2, 4, 8):
        e.I(f"v_add_u32_dpp v{v}, v{v}, v{v} row_shr:{sh} row_mask:0xf bank_mask:0xf")
    e.I(f"v_add_u32_dpp v{v}, v{v}, v{v} row_bcast:15 row_mask:0xa bank_mask:0xf")
    e.I(f"v_add_u32_dpp v{v}, v{v}, v{v} row_bcast:31 row_mask:0xc bank_mask:0xf")

def prefetch_x(e, nlines, vt, vtid, nthreads, slice_s, half, srdx):
    if nlines <= 0: return 0
    e.I(f"s_mul_i32 s46, s{slice_s}, 782")
    e.I(f"s_mov_b32 s47, {nlines}")
    it = (nlines + nthreads - 1) // nthreads
    for k in range(it):
        e.I(f"v_add_u32 v{vt}, {k*nthreads}, v{vtid}")
        e.I(f"v_cmp_gt_u32 vcc, s47, v{vt}")
        e.I(f"v_add_u32 v{vt}, s46, v{vt}")
        e.I(f"v_and_b32 v{vt+1}, 1, v{vt}")
        e.I(f"v_lshrrev_b32 v{vt}, 1, v{vt}")
        e.I(f"v_lshlrev_b32 v{vt}, 9, v{vt}")
        e.I(f"v_lshl_add_u32 v{vt}, v{vt+1}, 7, v{vt}")
        e.I(f"v_cndmask_b32 v{vt}, 2.0, v{vt}, vcc")
        e.I(f"buffer_load_dword v{vt+2}, v{vt}, s[{srdx}:{srdx+3}], 0 offen offset:{half*256}")
    return it

STV, TIDV = 127, 126
def stamp(e, c, slot):
    if not c.stamps: return
    e.I("s_memrealtime s[90:91]")
    e.I("s_waitcnt lgkmcnt(0)")
    e.I(f"v_writelane_b32 v{STV}, s90, {slot}")

def stamp_store(e, c, vtmp):
    if not c.stamps: return
    e.I(f"v_lshrrev_b32 v{vtmp}, 6, v{TIDV}")
    e.I(f"s_lshl_b32 s90, s2, 4")
    e.I(f"v_add_u32 v{vtmp}, s90, v{vtmp}")
    e.I(f"v_lshlrev_b32 v{vtmp}, 7, v{vtmp}")
    e.I(f"v_and_b32 v{vtmp+1}, 63, v{TIDV}")
    e.I(f"v_lshl_add_u32 v{vtmp}, v{vtmp+1}, 2, v{vtmp}")
    e.I(f"v_cmp_gt_u32 vcc, 32, v{vtmp+1}")
    e.I(f"v_cndmask_b32 v{vtmp}, 2.0, v{vtmp}, vcc")
    e.I(f"s_mov_b32 s90, {16 << 20}")
    e.I(f"buffer_store_dword v{STV}, v{vtmp}, s[8:11], s90 offen")

def kernel_header(e, name):
    e.raw(f".globl {name}")
    e.raw(".p2align 8")
    e.raw(f".type {name},@function")
    e.raw(f"{name}:")
    e.hist = []

def kd(name, nv, ns):
    return f""".amdhsa_kernel {name}
  .amdhsa_next_free_vgpr {nv}
  .amdhsa_next_free_sgpr {ns}
  .amdhsa_accum_offset {(nv+3)//4*4}
  .amdhsa_group_segment_fixed_size 0
  .amdhsa_kernarg_size 96
  .amdhsa_user_sgpr_count 2
  .amdhsa_user_sgpr_kernarg_segment_ptr 1
  .amdhsa_system_sgpr_workgroup_id_x 1
  .amdhsa_float_denorm_mode_32 3
.end_amdhsa_kernel
"""

def path_of(jp, blk):
    if blk == 0: return (0, 0, 1) if jp == 0 else (2, jp, 1)
    k = blk - 1
    if jp == 0: return (3, 1 + k, 1)
    j = jp - 1
    if j == k: return (1, 0, 1)
    i = 3 - j - k
    return (4, 1 + i, 1 if k == (j + 1) % 3 else -1)

def gen_main(e, c):
    CAP = c.cap
    HIST, HIST2, CUR2, CNT = 0, 256, 512, 768
    NEXT, DONE, GDONE = CNT, CNT + 16, CNT + 64
    H1, B1, NONCE = 1024, 2048, 3072
    RAW = 3200
    T = (RAW + max((CAP + 64) * 16, 54400) + 1023) // 1024 * 1024
    WRAD = T + NODES * 1024
    SCR = WRAD + 16384
    SSTR, PL1, OSC = 2560, 1056, 2080
    WST = H1
    lds = max(SCR + 12 * SSTR, T + 64 * 1024)
    assert lds <= 163840, lds
    c.lds = lds
    kernel_header(e, KNAME)
    I = e.I
    wsbytes = (32 << 20) if c.stamps else WSBYTES
    I("s_cmp_ge_u32 s2, 250")
    I("s_cbranch_scc1 L_end")
    if c.stamps:
        I(f"v_mov_b32 v{STV}, 0")
        I(f"v_mov_b32 v{TIDV}, v0")
    stamp(e, c, 0)
    I("s_load_dwordx8 s[32:39], s[0:1], 0")
    I("s_load_dwordx8 s[40:47], s[0:1], 32")
    I("s_load_dwordx4 s[80:83], s[0:1], 72")
    I("s_load_dwordx2 s[84:85], s[0:1], 88")
    I("v_lshlrev_b32 v1, 4, v0")
    I("v_lshlrev_b32 v2, 5, v0")
    I("v_mul_u32_u24 v3, 24, v0")
    I("v_readfirstlane_b32 s21, v0")
    I("s_mul_i32 s48, s2, 12800")
    I("s_mul_i32 s49, s2, 25600")
    I("s_mul_i32 s50, s2, 19200")
    I("s_lshr_b32 s21, s21, 6")
    I("s_movk_i32 s51, 800")
    I("v_cmp_gt_u32 vcc, s51, v0")
    I("s_waitcnt lgkmcnt(0)")
    srd(e, 64, 40, E * 4)
    srd(e, 60, 38, E * 4)
    srd(e, 56, 36, E * 8)
    srd(e, 52, 34, E * 6)
    I("s_cmp_ge_u32 s21, 13")
    I("s_cbranch_scc1 L1_setup")
    I("s_and_saveexec_b64 s[26:27], vcc")
    lf = c.ld_flags
    I(f"buffer_load_dwordx4 v[4:7], v1, s[64:67], s48 offen {lf}")
    I(f"buffer_load_dwordx4 v[8:11], v1, s[60:63], s48 offen {lf}")
    I(f"buffer_load_dwordx4 v[12:15], v2, s[56:59], s49 offen {lf}")
    I(f"buffer_load_dwordx4 v[16:19], v2, s[56:59], s49 offen offset:16 {lf}")
    I(f"buffer_load_dwordx4 v[20:23], v3, s[52:55], s50 offen {lf}")
    I(f"buffer_load_dwordx2 v[24:25], v3, s[52:55], s50 offen offset:16 {lf}")
    I("s_mov_b64 exec, -1")
    e.label("L1_setup")
    srd(e, 4, 32, N * 512)
    srd(e, 8, 84, wsbytes)
    srd(e, 12, 80, N * 512)
    srd(e, 16, 42, 2560)
    srd(e, 68, 44, 16384)
    srd(e, 72, 46, 24576)
    srd(e, 76, 82, 256)
    I("s_and_b32 s20, s2, 7")
    I("s_min_u32 s22, s20, 2")
    I("s_mul_i32 s20, s20, 31")
    I("s_add_u32 s20, s20, s22")
    I("s_lshr_b32 s31, s2, 3")
    I("s_add_u32 s20, s20, s31")
    I("s_mov_b32 s22, 0")
    I("s_movk_i32 s23, 250")
    I("s_mov_b32 s24, 1")
    I("s_mov_b32 s28, 0x05040100")
    I("s_mov_b32 s29, 0x07060302")
    I("s_mov_b32 s30, 0xffff0000")
    I(f"s_mul_i32 s51, s2, {CSTRIDE}")
    I("s_cmp_ge_u32 s21, 13")
    I("s_cbranch_scc1 L1_aux")
    I("v_lshlrev_b32 v40, 2, v0")
    I("v_mov_b32 v41, 0")
    I("v_mov_b32 v42, 1")
    I("s_mov_b32 s48, -50")
    I(f"s_movk_i32 s49, {RAW}")
    I("s_mov_b32 s50, 0x05040302")
    I("s_cmp_ge_u32 s21, 4")
    I("s_cbranch_scc1 L1_nz")
    I(f"ds_write_b32 v40, v41 offset:{H1}")
    I("s_waitcnt lgkmcnt(0)")
    e.label("L1_nz")
    I("s_barrier")
    I("s_and_b64 exec, exec, vcc")
    I("s_waitcnt vmcnt(5)")
    stamp(e, c, 1)
    for i in range(4):
        I(f"v_mul_u32_u24 v{44+i}, 0x147b, v{4+i}")
    for i in range(4):
        I(f"v_lshrrev_b32 v{44+i}, 18, v{44+i}")
    for i in range(4):
        I(f"v_mad_i32_i24 v{4+i}, v{44+i}, s48, v{4+i}")
        I(f"v_lshlrev_b32 v{44+i}, 2, v{44+i}")
    for i in range(4):
        I(f"ds_add_rtn_u32 v{36+i}, v{44+i}, v42 offset:{H1}")
    I("s_waitcnt lgkmcnt(0)")
    I("s_barrier")
    I("s_cmp_lg_u32 s21, 0")
    I("s_cbranch_scc1 L1_noscan")
    I(f"ds_read_b128 v[52:55], v1 offset:{H1}")
    I("s_waitcnt lgkmcnt(0)")
    I("v_add_u32 v56, v52, v53")
    I("v_add_u32 v57, v56, v54")
    I("v_add_u32 v58, v57, v55")
    I("v_mov_b32 v59, v58")
    scan64(e, 59)
    I("v_sub_u32 v32, v59, v58")
    I("v_add_u32 v33, v32, v52")
    I("v_add_u32 v34, v32, v56")
    I("v_add_u32 v35, v32, v57")
    I(f"ds_write_b128 v1, v[32:35] offset:{B1}")
    for i in range(4):
        I(f"v_lshl_or_b32 v{52+i}, v{52+i}, 12, v{32+i}")
    I("s_waitcnt lgkmcnt(0)")
    e.label("L1_noscan")
    I("s_barrier")
    for i in range(4):
        I(f"ds_read_b32 v{44+i}, v{44+i} offset:{B1}")
    I("s_waitcnt lgkmcnt(0)")
    for i in range(4):
        I(f"v_add_u32 v{36+i}, v{36+i}, v{44+i}")
        I(f"v_lshl_add_u32 v{44+i}, v{36+i}, 4, s49")
    for i in range(4):
        I(f"ds_write_b8 v{36+i}, v{4+i} offset:{RAW+KEYOFF}")
    I("s_waitcnt vmcnt(0)")
    stamp(e, c, 2)
    I("v_mov_b32 v28, v20")
    I("v_perm_b32 v29, v8, v21, s28")
    I("ds_write2_b64 v44, v[12:13], v[28:29] offset0:0 offset1:1")
    I("v_alignbit_b32 v30, v22, v21, 16")
    I("v_perm_b32 v31, v9, v22, s50")
    I("ds_write2_b64 v45, v[14:15], v[30:31] offset0:0 offset1:1")
    I("v_mov_b32 v32, v23")
    I("v_perm_b32 v33, v10, v24, s28")
    I("ds_write2_b64 v46, v[16:17], v[32:33] offset0:0 offset1:1")
    I("v_alignbit_b32 v34, v25, v24, 16")
    I("v_perm_b32 v35, v11, v25, s50")
    I("ds_write2_b64 v47, v[18:19], v[34:35] offset0:0 offset1:1")
    I("s_mov_b64 exec, -1")
    I("s_waitcnt lgkmcnt(0)")
    I("s_branch L1_copy")
    e.label("L1_aux")
    I("v_subrev_u32 v64, 832, v0")
    I("v_lshlrev_b32 v65, 4, v64")
    if c.codepf:
        I("s_getpc_b64 s[40:41]")
        I(f"s_mov_b32 s42, {c.codepf*1024}")
        I("s_mov_b32 s43, 0x20000")
        I("v_lshlrev_b32 v72, 7, v64")
        I("buffer_load_dword v73, v72, s[40:43], 0 offen")
    I("s_cmp_lg_u32 s21, 15")
    I("s_cbranch_scc1 L1_notag")
    I("s_cmp_lg_u32 s2, 0")
    I("s_cbranch_scc1 L1_notag")
    I("s_memrealtime s[44:45]")
    I("s_waitcnt lgkmcnt(0)")
    I("s_and_b32 s45, s45, 0x7f")
    I("s_or_b32 s45, s45, 0x80")
    I("s_lshl_b32 s45, s45, 24")
    I("v_mov_b32 v68, s44")
    I("v_mov_b32 v69, s45")
    I("s_mov_b64 exec, 1")
    I("buffer_store_dwordx2 v[68:69], off, s[76:79], 0 sc1")
    I("s_mov_b64 exec, -1")
    e.label("L1_notag")
    if c.pfx_pos == "start": prefetch_x(e, c.pfx_lines, 74, 64, 192, 31, 0, 4)
    I("s_barrier"); I("s_barrier"); I("s_barrier")
    I("s_cmp_lg_u32 s21, 15")
    I("s_cbranch_scc1 L1_notag2")
    I("s_mov_b32 s44, 0")
    e.label("L1_tagpoll")
    I("buffer_load_dwordx2 v[68:69], off, s[76:79], 0 sc1")
    I("s_add_u32 s44, s44, 1")
    I("s_waitcnt vmcnt(0)")
    I("v_readfirstlane_b32 s45, v69")
    e.nop(1)
    I("s_cmp_lg_u32 s45, 0")
    I("s_cbranch_scc1 L1_tagok")
    I("s_cmp_lt_u32 s44, 0x100000")
    I("s_cbranch_scc1 L1_tagpoll")
    e.label("L1_tagok")
    I("v_mov_b32 v70, 0")
    I("s_mov_b64 exec, 1")
    I(f"ds_write_b64 v70, v[68:69] offset:{NONCE}")
    I("s_mov_b64 exec, -1")
    e.label("L1_notag2")
    if c.pfx_pos == "sort": prefetch_x(e, c.pfx_lines, 74, 64, 192, 31, 0, 4)
    I("s_waitcnt lgkmcnt(0)")
    e.flush()
    e.label("L1_copy")
    I("s_barrier")
    stamp(e, c, 3)
    I(f"ds_read_b128 v[8:11], v1 offset:{RAW}")
    I(f"ds_read_b128 v[12:15], v1 offset:{RAW+16384}")
    I(f"ds_read_b128 v[16:19], v1 offset:{RAW+32768}")
    I(f"ds_read_b128 v[20:23], v1 offset:{RAW+49152}")
    I("v_mov_b32 v25, 0")
    I(f"ds_read_b64 v[26:27], v25 offset:{NONCE}")
    I("v_add_u32 v2, 16384, v1")
    I("v_add_u32 v3, 32768, v1")
    I("v_add_u32 v24, 49152, v1")
    I("s_movk_i32 s48, 328")
    I("v_cmp_gt_u32 vcc, s48, v0")
    sf = c.st_flags
    I("s_waitcnt lgkmcnt(4)")
    I(f"buffer_store_dwordx4 v[8:11], v1, s[8:11], s51 offen {sf}")
    I("s_waitcnt lgkmcnt(3)")
    I(f"buffer_store_dwordx4 v[12:15], v2, s[8:11], s51 offen {sf}")
    I("s_waitcnt lgkmcnt(2)")
    I(f"buffer_store_dwordx4 v[16:19], v3, s[8:11], s51 offen {sf}")
    I("s_and_saveexec_b64 s[26:27], vcc")
    I("s_cbranch_execz L1_st_done")
    I("s_waitcnt lgkmcnt(1)")
    I(f"buffer_store_dwordx4 v[20:23], v24, s[8:11], s51 offen {sf}")
    e.label("L1_st_done")
    I("s_mov_b64 exec, -1")
    I("s_waitcnt lgkmcnt(0)")
    I("v_readfirstlane_b32 s86, v26")
    I("v_readfirstlane_b32 s87, v27")
    stamp(e, c, 4)
    I("s_cmp_lt_u32 s21, 4")
    e.branch("s_cbranch_scc1 L2_gemm")

    VLANE, VINFO, VNEXT = 108, 109, 110
    VLOFF, VMASK, VOW, VOR, VSCRW, VTRA, VWR, VL16 = 111, 112, 113, 114, 115, 116, 117, 118
    VT0, VT1, VONE, VZERO = 119, 120, 121, 122
    VJ, VCH, VSEG = 123, 124, 125
    I(f"v_and_b32 v{VLANE}, 63, v0")
    I(f"v_subrev_u32 v{VT0}, 256, v0")
    I(f"v_and_b32 v{VJ}, 15, v{VT0}")
    I(f"v_lshrrev_b32 v{VSEG}, 4, v{VT0}")
    I(f"s_mov_b32 s42, {CSTRIDE}")
    I(f"v_mul_u32_u24 v{VCH}, s42, v{VSEG}")
    I(f"v_mov_b32 v{VONE}, 1")
    I(f"v_mov_b32 v{VZERO}, 0")
    I(f"v_mov_b32 v{VMASK}, s30")
    I(f"v_and_b32 v{VT0}, 15, v{VLANE}")
    I(f"v_lshlrev_b32 v{VLOFF}, 4, v{VT0}")
    I(f"v_lshrrev_b32 v{VT1}, 4, v{VLANE}")
    I(f"v_lshlrev_b32 v{VL16}, 4, v{VLANE}")
    I("s_sub_u32 s43, s21, 4")
    I(f"s_mul_i32 s43, s43, {SSTR}")
    I(f"s_add_u32 s43, s43, {SCR}")
    I(f"v_add_u32 v{VSCRW}, s43, v{VL16}")
    I(f"v_lshlrev_b32 v{VOR}, 5, v{VT1}")
    I(f"v_add_u32 v{VOR}, s43, v{VOR}")
    I(f"v_lshlrev_b32 v{VTRA}, 4, v{VT1}")
    I(f"v_bfe_u32 v{VT1}, v{VLANE}, 2, 2")
    I(f"v_lshl_add_u32 v{VTRA}, v{VT1}, 6, v{VTRA}")
    I(f"v_and_b32 v{VT1}, 1, v{VLANE}")
    I(f"v_lshl_add_u32 v{VTRA}, v{VT1}, 3, v{VTRA}")
    I(f"v_bfe_u32 v{VT1}, v{VLANE}, 1, 1")
    I(f"v_mul_u32_u24 v{VT1}, {PL1}, v{VT1}")
    I(f"v_add3_u32 v{VTRA}, v{VTRA}, v{VT1}, s43")
    I(f"v_and_b32 v{VOW}, 32, v{VLANE}")
    I(f"v_and_b32 v{VT1}, 3, v{VLANE}")
    I(f"v_lshl_add_u32 v{VOW}, v{VT1}, 3, v{VOW}")
    I(f"v_bfe_u32 v{VT1}, v{VLANE}, 2, 3")
    I(f"v_add_u32 v{VOW}, v{VOW}, v{VT1}")
    I(f"v_lshlrev_b32 v{VOW}, 2, v{VOW}")
    I(f"v_add_u32 v{VOW}, s43, v{VOW}")
    I(f"v_add_u32 v{VWR}, {WRAD}, v{VL16}")
    for p in range(6):
        I(f"s_mov_b32 s{74+p}, {48*p*CSTRIDE}")
        I(f"s_mov_b32 s{80+p}, {48*p*CSTRIDE+KEYOFF}")
    I("s_waitcnt vmcnt(0)")
    stamp(e, c, 5)
    I("s_barrier")

    PAY, KEY, RNK, TAB, KAD, PAD, X = 0, 48, 60, 72, 84, 90, 96
    MSK = 50
    rf = c.rec_flags
    e.label("L2_g_round")
    I("s_lshl_b32 s43, s20, 3")
    I(f"s_add_u32 s43, s43, {TABOFF}")
    I("s_mov_b32 s44, 0")
    def tagdiff(dst, p):
        I(f"v_xor_b32 v{dst}, s87, v{TAB+2*p}")
        I(f"v_lshrrev_b32 v{dst}, 24, v{dst}")
        I(f"v_xor_b32 v{X+1}, s86, v{TAB+2*p+1}")
        I(f"v_or_b32 v{dst}, v{dst}, v{X+1}")
    if not c.poll_all:
        e.label("L2_poll0")
        I(f"buffer_load_dwordx2 v[{TAB}:{TAB+1}], v{VCH}, s[8:11], s43 offen {rf}")
        I("s_waitcnt vmcnt(0)")
        tagdiff(X, 0)
        I(f"v_cmp_ne_u32 vcc, 0, v{X}")
        I("s_add_u32 s44, s44, 1")
        e.nop(2)
        I("s_cmp_eq_u64 vcc, 0")
        I("s_cbranch_scc1 L2_poll0_ok")
        I(f"s_sleep {c.psleep}")
        I("s_cmp_lt_u32 s44, 0x100000")
        I("s_cbranch_scc1 L2_poll0")
        e.label("L2_poll0_ok")
        stamp(e, c, 6)
    I(f"v_cmp_gt_u32 s[46:47], 10, v{VSEG}")
    e.label("L2_poll1")
    I(f"v_mov_b32 v{TAB+10}, s87")
    I(f"v_mov_b32 v{TAB+11}, s86")
    I("s_mov_b32 s42, s43")
    if c.poll_all: I(f"buffer_load_dwordx2 v[{TAB}:{TAB+1}], v{VCH}, s[8:11], s43 offen {rf}")
    for p in range(1, 6):
        I(f"s_add_u32 s42, s42, {48*CSTRIDE}")
        if p == 5:
            I("s_mov_b64 exec, s[46:47]")
            I("s_cbranch_execz L2_notab5")
        I(f"buffer_load_dwordx2 v[{TAB+2*p}:{TAB+2*p+1}], v{VCH}, s[8:11], s42 offen {rf}")
    e.label("L2_notab5")
    I("s_mov_b64 exec, -1")
    I("s_waitcnt vmcnt(0)")
    tagdiff(X, 1)
    for p in ([0] if c.poll_all else []) + list(range(2, 6)):
        tagdiff(X+2, p)
        I(f"v_or_b32 v{X}, v{X}, v{X+2}")
    I(f"v_cmp_ne_u32 vcc, 0, v{X}")
    I("s_add_u32 s44, s44, 1")
    e.nop(2)
    I("s_cmp_eq_u64 vcc, 0")
    I("s_cbranch_scc1 L2_poll1_ok")
    I(f"s_sleep {c.psleep}")
    I("s_cmp_lt_u32 s44, 0x100000")
    I("s_cbranch_scc1 L2_poll1")
    e.label("L2_poll1_ok")
    stamp(e, c, 7)
    I(f"v_add_u32 v{X+1}, 16, v{VJ}")
    for p in range(6):
        cnt = TAB + 2*p
        I(f"s_sub_u32 s42, {48*p}, s22")
        I(f"v_add_u32 v{X}, s42, v{VSEG}")
        I(f"v_cmp_gt_u32 vcc, s23, v{X}")
        I(f"v_and_b32 v{KAD+p}, 0xfff, v{cnt}")
        I(f"v_bfe_u32 v{cnt}, v{cnt}, 12, 12")
        I(f"v_add_u32 v{KAD+p}, v{KAD+p}, v{VJ}")
        I(f"v_cndmask_b32 v{cnt}, 0, v{cnt}, vcc")
        I(f"v_lshl_add_u32 v{PAD+p}, v{KAD+p}, 4, v{VCH}")
        I(f"v_add_u32 v{KAD+p}, v{KAD+p}, v{VCH}")
        I(f"v_cmp_lt_u32 s[{MSK+4*p}:{MSK+4*p+1}], v{VJ}, v{cnt}")
        I(f"v_cmp_lt_u32 s[{MSK+4*p+2}:{MSK+4*p+3}], v{X+1}, v{cnt}")
        I(f"v_cndmask_b32 v{PAD+p}, 2.0, v{PAD+p}, s[{MSK+4*p}:{MSK+4*p+1}]")
    e.flush()
    for p in range(6):
        I(f"s_mov_b64 exec, s[{MSK+4*p+2}:{MSK+4*p+3}]")
        I(f"s_cbranch_execz L2_w1skip{p}")
        I(f"buffer_load_ubyte v{KEY+2*p+1}, v{KAD+p}, s[8:11], s{80+p} offen offset:16 {rf}")
        I(f"buffer_load_dwordx4 v[{PAY+8*p+4}:{PAY+8*p+7}], v{PAD+p}, s[8:11], s{74+p} offen offset:256 {rf}")
        e.label(f"L2_w1skip{p}")
    for p in range(6):
        I(f"s_mov_b64 exec, s[{MSK+4*p}:{MSK+4*p+1}]")
        if p == 5: I("s_cbranch_execz L2_k5skip")
        I(f"buffer_load_ubyte v{KEY+2*p}, v{KAD+p}, s[8:11], s{80+p} offen {rf}")
    e.label("L2_k5skip")
    I("s_mov_b64 exec, -1")
    for p in range(6):
        if p == 5:
            I("s_cmp_ge_u32 s21, 7")
            I("s_cbranch_scc1 L2_p5skip")
        I(f"buffer_load_dwordx4 v[{PAY+8*p}:{PAY+8*p+3}], v{PAD+p}, s[8:11], s{74+p} offen {rf}")
    e.label("L2_p5skip")
    I("s_barrier")
    I("s_waitcnt vmcnt(5)")
    stamp(e, c, 8)
    for k in range(12):
        I(f"v_lshlrev_b32 v{KEY+k}, 2, v{KEY+k}")
    for p in range(6):
        for w in range(2):
            I(f"s_mov_b64 exec, s[{MSK+4*p+2*w}:{MSK+4*p+2*w+1}]")
            I(f"ds_add_rtn_u32 v{RNK+2*p+w}, v{KEY+2*p+w}, v{VONE} offset:{HIST}")
    I("s_mov_b64 exec, -1")
    I(f"v_max3_u32 v{VT0}, v{TAB}, v{TAB+2}, v{TAB+4}")
    I(f"v_max3_u32 v{VT0}, v{VT0}, v{TAB+6}, v{TAB+8}")
    I(f"v_max_u32 v{VT0}, v{VT0}, v{TAB+10}")
    I(f"v_cmp_lt_u32 vcc, 32, v{VT0}")
    I("s_mov_b32 s25, 0")
    e.flush()
    I("s_cmp_eq_u64 vcc, 0")
    I("s_cbranch_scc1 L2_noextraA")
    I("s_mov_b32 s25, 1")
    for p in range(6):
        I(f"v_add_u32 v{VT0}, 32, v{VJ}")
        I(f"v_add_u32 v{VT1}, 32, v{KAD+p}")
        e.label(f"L2_xa{p}")
        I(f"v_cmp_lt_u32 vcc, v{VT0}, v{TAB+2*p}")
        I("s_and_saveexec_b64 s[44:45], vcc")
        e.branch(f"s_cbranch_execz L2_xa{p}_done")
        I(f"buffer_load_ubyte v{X}, v{VT1}, s[8:11], s{80+p} offen {rf}")
        I("s_waitcnt vmcnt(0)")
        I(f"v_lshlrev_b32 v{X}, 2, v{X}")
        I(f"ds_add_u32 v{X}, v{VONE} offset:{HIST2}")
        I("s_mov_b64 exec, -1")
        I(f"v_add_u32 v{VT0}, 16, v{VT0}")
        I(f"v_add_u32 v{VT1}, 16, v{VT1}")
        e.branch(f"s_branch L2_xa{p}")
        e.label(f"L2_xa{p}_done")
        I("s_mov_b64 exec, -1")
    e.label("L2_noextraA")
    I("s_waitcnt lgkmcnt(0)")
    I("s_barrier")
    C1, CT, BS = X, X + 1, X + 2
    I(f"v_lshlrev_b32 v{VT0}, 2, v{VLANE}")
    I(f"ds_read_b32 v{C1}, v{VT0} offset:{HIST}")
    I(f"ds_read_b32 v{CT}, v{VT0} offset:{HIST2}")
    I("s_waitcnt lgkmcnt(0)")
    I(f"v_add_u32 v{CT}, v{C1}, v{CT}")
    I(f"v_mov_b32 v{BS}, v{CT}")
    scan64(e, BS)
    I(f"v_readlane_b32 s46, v{BS}, 63")
    I(f"v_sub_u32 v{BS}, v{BS}, v{CT}")
    I(f"v_lshl_or_b32 v{VINFO}, v{CT}, 16, v{BS}")
    e.flush()
    I(f"s_cmp_gt_u32 s46, {CAP}")
    I("s_cbranch_scc1 L2_g_overflow")
    for k in range(12):
        I(f"ds_bpermute_b32 v{KEY+k}, v{KEY+k}, v{BS}")
    I("s_waitcnt lgkmcnt(0)")
    for k in range(12):
        I(f"v_add_lshl_u32 v{KEY+k}, v{KEY+k}, v{RNK+k}, 4")
    I("s_waitcnt vmcnt(0)")
    stamp(e, c, 9)
    for p in range(6):
        for w in range(2):
            I(f"s_mov_b64 exec, s[{MSK+4*p+2*w}:{MSK+4*p+2*w+1}]")
            if w: I(f"s_cbranch_execz L2_sc{p}")
            I(f"ds_write_b128 v{KEY+2*p+w}, v[{PAY+8*p+4*w}:{PAY+8*p+4*w+3}] offset:{RAW}")
        e.label(f"L2_sc{p}")
    I("s_mov_b64 exec, -1")
    I("s_cmp_eq_u32 s25, 0")
    I("s_cbranch_scc1 L2_noextraB")
    I(f"v_add_u32 v{BS}, v{BS}, v{C1}")
    for p in range(6):
        I(f"v_add_u32 v{VT0}, 32, v{VJ}")
        I(f"v_add_u32 v{VT1}, 32, v{KAD+p}")
        I(f"v_add_u32 v{X+3}, 512, v{PAD+p}")
        e.label(f"L2_xb{p}")
        I(f"v_cmp_lt_u32 vcc, v{VT0}, v{TAB+2*p}")
        I("s_and_saveexec_b64 s[44:45], vcc")
        e.branch(f"s_cbranch_execz L2_xb{p}_done")
        I(f"buffer_load_ubyte v{X+4}, v{VT1}, s[8:11], s{80+p} offen {rf}")
        I(f"buffer_load_dwordx4 v[{X+8}:{X+11}], v{X+3}, s[8:11], s{74+p} offen {rf}")
        I("s_waitcnt vmcnt(0)")
        I(f"v_lshlrev_b32 v{X+4}, 2, v{X+4}")
        I(f"ds_add_rtn_u32 v{X+5}, v{X+4}, v{VONE} offset:{CUR2}")
        I("s_mov_b64 exec, -1")
        I(f"ds_bpermute_b32 v{X+4}, v{X+4}, v{BS}")
        I("s_waitcnt lgkmcnt(0)")
        I(f"v_add_lshl_u32 v{X+4}, v{X+4}, v{X+5}, 4")
        I("s_mov_b64 exec, vcc")
        I(f"ds_write_b128 v{X+4}, v[{X+8}:{X+11}] offset:{RAW}")
        I("s_mov_b64 exec, -1")
        I(f"v_add_u32 v{VT0}, 16, v{VT0}")
        I(f"v_add_u32 v{VT1}, 16, v{VT1}")
        I(f"v_add_u32 v{X+3}, 256, v{X+3}")
        e.branch(f"s_branch L2_xb{p}")
        e.label(f"L2_xb{p}_done")
        I("s_mov_b64 exec, -1")
    e.label("L2_noextraB")
    ACC, LD, B, A, AD = 0, 32, 64, 96, 100
    I("s_waitcnt lgkmcnt(0)")
    for k in range(32):
        I(f"v_mov_b32 v{LD+k}, 0")
    I("s_cmp_lg_u32 s21, 4")
    I("s_cbranch_scc1 L2_noguard")
    I("s_lshl_b32 s46, s46, 4")
    I(f"v_add_u32 v{VT0}, s46, v{VL16}")
    I(f"ds_write_b128 v{VT0}, v[{LD}:{LD+3}] offset:{RAW}")
    I("s_waitcnt lgkmcnt(0)")
    e.label("L2_noguard")
    I("s_barrier")
    stamp(e, c, 10)
    c.lay = dict(RAW=RAW, T=T, WRAD=WRAD, NEXT=NEXT, DONE=DONE, GDONE=GDONE, OSC=OSC, PL1=PL1)
    gather_loop(e, c, locals())
    e.label("L2_g_done")
    stamp(e, c, 11)
    I("s_cmp_lg_u32 s24, 0")
    e.branch("s_cbranch_scc1 L2_g_exit")
    I("s_waitcnt lgkmcnt(0)")
    I("s_barrier")
    I("s_add_u32 s22, s22, 1")
    I(f"s_cmp_eq_u32 s22, {NCH-1}")
    I("s_cselect_b32 s24, 1, 0")
    e.branch("s_branch L2_g_round")
    e.label("L2_g_overflow")
    I("s_waitcnt vmcnt(0)")
    I("s_mov_b32 s22, 0")
    I("s_mov_b32 s23, 1")
    I("s_mov_b32 s24, 0")
    I("s_barrier")
    e.branch("s_branch L2_g_round")
    e.label("L2_g_exit")
    stamp_store(e, c, 90)
    I("s_endpgm")

    e.label("L2_gemm")
    I("s_mov_b32 s25, 0")
    W, G, TA, TF = 0, 40, 104, 108
    X0, X1 = 124, 125
    I("v_and_b32 v104, 63, v0")
    I("v_mov_b32 v117, v0")
    I("v_lshlrev_b32 v105, 4, v104")
    lut = 0
    for jp in range(4):
        for blk in range(4):
            p, i, s = path_of(jp, blk)
            lut |= (p | (8 if s < 0 else 0)) << (4 * (jp * 4 + blk))
    I(f"s_mov_b32 s44, {lut & 0xffffffff}")
    I(f"s_mov_b32 s45, {lut >> 32}")
    for h in range(2):
        I("v_lshrrev_b32 v106, 4, v104")
        I("v_bfe_u32 v107, v104, 3, 1")
        I("v_lshl_add_u32 v106, v106, 2, v107")
        I(f"v_add_lshl_u32 v106, v106, {2*h}, 2")
        I(f"v_lshrrev_b64 v[108:109], v106, s[44:45]")
        I(f"v_and_b32 v106, 7, v108")
        I(f"v_and_b32 v{110+h}, 8, v108")
        I(f"v_lshlrev_b32 v{110+h}, 28, v{110+h}")
        I("v_and_b32 v107, 7, v104")
        I("v_lshlrev_b32 v107, 3, v107")
        I("v_lshl_add_u32 v106, v106, 6, v107")
        I("v_add_u32 v106, s21, v106")
        I(f"v_lshlrev_b32 v{112+h}, 1, v106")
    I("s_waitcnt vmcnt(0)")
    stamp(e, c, 5)
    I("s_barrier")
    I("s_cmp_lg_u32 s21, 0")
    I("s_cbranch_scc1 L2_notab")
    for i in range(4):
        I(f"v_or_b32 v{56+2*i}, s87, v{52+i}")
        I(f"v_mov_b32 v{57+2*i}, s86")
    I("v_lshlrev_b32 v114, 5, v104")
    I(f"s_add_u32 s42, s51, {TABOFF}")
    I(f"buffer_store_dwordx4 v[56:59], v114, s[8:11], s42 offen {sf}")
    I(f"buffer_store_dwordx4 v[60:63], v114, s[8:11], s42 offen offset:16 {sf}")
    e.label("L2_notab")
    WT = 64
    I("s_lshl_b32 s42, s21, 10")
    for k in range(10):
        sr, off = (68, k * 4096) if k < 4 else (72, (k - 4) * 4096)
        I(f"s_add_u32 s43, s42, {off}")
        I(f"buffer_load_dwordx4 v[{W+4*k}:{W+4*k+3}], v105, s[{sr}:{sr+3}], s43 offen")
    for k in range(4):
        h, qo = k >> 1, (k & 1) * 4
        for d in range(4):
            I(f"buffer_load_ushort v{WT+4*k+d}, v{112+h}, s[16:19], 0 offen offset:{d*640+qo*2}")
    npf = 0
    if c.pfx_pos == "store": npf = prefetch_x(e, c.pfx_lines, 114, 117, 256, 31, 0, 4)
    I("s_lshl_b32 s42, s21, 10")
    I(f"s_add_u32 s42, s42, {WRAD}")
    I("v_add_u32 v105, s42, v105")
    I("s_lshl_b32 s42, s21, 10")
    I(f"s_add_u32 s42, s42, {T}")
    I(f"v_lshl_add_u32 v106, v104, 4, s42")
    I(f"s_waitcnt vmcnt({npf})")
    for k in range(10):
        I(f"ds_write_b128 v106, v[{W+4*k}:{W+4*k+3}] offset:{k*4096}")
    for k in range(4):
        h = k >> 1
        for d in range(4):
            I(f"v_lshlrev_b32 v{WT+4*k+d}, 16, v{WT+4*k+d}")
            I(f"v_xor_b32 v{WT+4*k+d}, v{110+h}, v{WT+4*k+d}")
        I(f"ds_write_b128 v105, v[{WT+4*k}:{WT+4*k+3}] offset:{(k>>1)*8192 + (k&1)*4096}")
    I("v_and_b32 v106, 15, v104")
    I("v_lshrrev_b32 v107, 4, v104")
    I(f"v_lshlrev_b32 v{X0}, 2, v104")
    I(f"s_mul_i32 s42, s20, {NODES*512}")
    I("s_lshl_b32 s43, s21, 5")
    I("s_add_u32 s42, s42, s43")
    I(f"v_lshlrev_b32 v{X1}, 9, v106")
    I(f"v_lshl_add_u32 v{X1}, v107, 3, v{X1}")
    I(f"v_add_u32 v{X1}, s42, v{X1}")
    I(f"v_cmp_gt_u32 s[50:51], {NODES-48}, v106")
    I("v_lshlrev_b32 v108, 10, v106")
    I(f"v_add_u32 v108, {T}, v108")
    for u in (3, 2, 1, 0):
        I(f"v_add_u32 v109, {4*u}, v107")
        I("v_xor_b32 v109, v109, v106")
        I(f"v_lshl_add_u32 v{TF+4+u}, v109, 4, v108")
    I("s_waitcnt lgkmcnt(0)")
    for u in range(4):
        I(f"v_mov_b32 v{TA+u}, v{TF+4+u}")
    for k in range(64):
        I(f"v_mov_b32 v{G+k}, 0")
    e.label("L2_m_round")
    I("s_cmp_lg_u32 s21, 1")
    I("s_cbranch_scc1 L2_m_nz")
    I(f"v_mov_b32 v{TF}, 0"); I(f"v_mov_b32 v{TF+1}, 0"); I(f"v_mov_b32 v{TF+2}, 0"); I(f"v_mov_b32 v{TF+3}, 0")
    I(f"v_lshlrev_b32 v{TF+4}, 2, v{X0}")
    I(f"ds_write_b128 v{TF+4}, v[{TF}:{TF+3}] offset:{HIST}")
    I("s_waitcnt lgkmcnt(0)")
    e.label("L2_m_nz")
    I("s_barrier")
    I("s_cmp_lg_u32 s25, 0")
    I("s_cbranch_scc1 L2_haveW")
    I("s_mov_b32 s25, 1")
    I(f"v_lshrrev_b32 v{TF}, 6, v{X0}")
    I(f"v_lshlrev_b32 v{TF}, 10, v{TF}")
    I(f"v_bfe_u32 v{TF+1}, v{X0}, 4, 2")
    I(f"v_lshl_add_u32 v{TF}, v{TF+1}, 7, v{TF}")
    I(f"v_bfe_u32 v{TF+1}, v{X0}, 2, 2")
    I(f"v_lshl_add_u32 v{TF}, v{TF+1}, 3, v{TF}")
    I("s_lshl_b32 s42, s21, 5")
    I(f"s_add_u32 s42, s42, {T}")
    I(f"v_add_u32 v{TF}, s42, v{TF}")
    for f in range(10):
        I(f"ds_read_b64_tr_b16 v[{W+4*f}:{W+4*f+1}], v{TF} offset:{f*4096}")
        I(f"ds_read_b64_tr_b16 v[{W+4*f+2}:{W+4*f+3}], v{TF} offset:{f*4096+512}")
    I("s_waitcnt lgkmcnt(0)")
    e.label("L2_haveW")
    I("s_barrier")
    I(f"ds_read_b32 v{TF}, v{X0} offset:{HIST}")
    I(f"ds_read_b32 v{TF+1}, v{X0} offset:{HIST2}")
    I("s_waitcnt lgkmcnt(0)")
    I(f"v_add_u32 v{TF}, v{TF}, v{TF+1}")
    scan64(e, TF)
    I(f"v_readlane_b32 s42, v{TF}, 63")
    e.flush()
    I(f"s_cmp_gt_u32 s42, {CAP}")
    I("s_cbranch_scc1 L2_m_overflow")
    I("s_barrier")
    stamp(e, c, 10)
    I("s_waitcnt vmcnt(0)")
    for h in range(2):
        for t in range(4):
            need = 16 if t < 3 else NODES - 48
            I(f"v_mov_b32 v{TF}, 0")
            I("s_mov_b32 s43, 0")
            e.label(f"L2_poll{h}{t}")
            I(f"ds_read_b32 v{TF+1}, v{TF} offset:{DONE + 16*h + 4*t}")
            I("s_waitcnt lgkmcnt(0)")
            I(f"v_readfirstlane_b32 s42, v{TF+1}")
            e.nop(1)
            I(f"s_cmp_ge_u32 s42, {need}")
            I(f"s_cbranch_scc1 L2_go{h}{t}")
            I(f"s_sleep {c.sleep if (h, t) < (1, 2) else 1}")
            I("s_add_u32 s43, s43, 1")
            I("s_cmp_lt_u32 s43, 0x400000")
            I(f"s_cbranch_scc1 L2_poll{h}{t}")
            e.label(f"L2_go{h}{t}")
            stamp(e, c, 16 + 4*h + t)
            def rd(ks):
                I(f"ds_read_b128 v[{TF+4*(ks&3)}:{TF+4*(ks&3)+3}], v{TA+(ks&3)} offset:{t*16384 + (ks>>2)*256}")
            for ks in range(4): rd(ks)
            for ks in range(16):
                jp, blk = ks >> 2, 2 * h + ((ks >> 1) & 1)
                p, i, s = path_of(jp, blk)
                f = p * 2 + (ks & 1)
                I(f"s_waitcnt lgkmcnt({min(3, 15-ks)})")
                g = G + 16 * t + 4 * i
                I(f"v_mfma_f32_16x16x32_bf16 v[{g}:{g+3}], v[{W+4*f}:{W+4*f+3}], v[{TF+4*(ks&3)}:{TF+4*(ks&3)+3}], v[{g}:{g+3}]")
                if ks + 4 < 16: rd(ks + 4)
            if h == 0:
                I(f"v_mov_b32 v{TF}, 0")
                I(f"v_mov_b32 v{TF+1}, 1")
                I("s_mov_b64 exec, 1")
                I(f"ds_add_u32 v{TF}, v{TF+1} offset:{GDONE + 4*t}")
                I("s_mov_b64 exec, -1")
                if t == c.pf2b_tile and c.pf2b_lines:
                    I("s_lshl_b32 s42, s21, 6")
                    I(f"v_lshrrev_b32 v{TF+3}, 2, v{X0}")
                    I(f"v_add_u32 v{TF+3}, s42, v{TF+3}")
                    prefetch_x(e, c.pf2b_lines, TF + 4, TF + 3, 256, 31, 1, 4)
                    I("s_waitcnt vmcnt(0)")
            else:
                I("s_cmp_eq_u32 s24, 0")
                e.branch(f"s_cbranch_scc1 L2_nofin{t}")
                g = G + 16 * t
                I("s_mov_b32 s42, 0xbfb8aa3b")
                for r in range(4): I(f"v_mul_f32 v{TF+r}, s42, v{g+r}")
                for r in range(4): I(f"v_exp_f32 v{TF+r}, v{TF+r}")
                for r in range(4): I(f"v_add_f32 v{TF+r}, 1.0, v{TF+r}")
                for r in range(4): I(f"v_rcp_f32 v{TF+r}, v{TF+r}")
                for i in range(1, 4):
                    for r in range(4): I(f"v_mul_f32 v{g+4*i+r}, v{g+4*i+r}, v{TF+r}")
                for i in range(4):
                    I(f"v_cvt_pk_bf16_f32 v{TF+4+2*i}, v{g+4*i}, v{g+4*i+1}")
                    I(f"v_cvt_pk_bf16_f32 v{TF+5+2*i}, v{g+4*i+2}, v{g+4*i+3}")
                I(f"s_mov_b32 s42, {t*16*512}")
                if t == 3: I("s_mov_b64 exec, s[50:51]")
                for i in range(4):
                    I(f"buffer_store_dwordx2 v[{TF+4+2*i}:{TF+5+2*i}], v{X1}, s[12:15], s42 offen offset:{i*128} {c.out_flags}")
                if t == 3: I("s_mov_b64 exec, -1")
                e.label(f"L2_nofin{t}")
    stamp(e, c, 11)
    I("s_cmp_lg_u32 s24, 0")
    e.branch("s_cbranch_scc1 L2_m_exit")
    I("s_waitcnt lgkmcnt(0)")
    I("s_barrier")
    I("s_add_u32 s22, s22, 1")
    I(f"s_cmp_eq_u32 s22, {NCH-1}")
    I("s_cselect_b32 s24, 1, 0")
    e.branch("s_branch L2_m_round")
    e.label("L2_m_overflow")
    I("s_mov_b32 s22, 0")
    I("s_mov_b32 s23, 1")
    I("s_mov_b32 s24, 0")
    I("s_barrier")
    e.branch("s_branch L2_m_round")
    e.label("L2_m_exit")
    if c.stamps:
        I("s_waitcnt vmcnt(0)")
        stamp(e, c, 12)
        stamp_store(e, c, TF)
    e.label("L_end")
    I("s_endpgm")
    return KNAME, 128, 96

def gather_loop(e, c, L):
    I = e.I
    g = lambda n: L[n]
    RAW, T, NEXT, DONE, GDONE, OSC, PL1 = (L[k] for k in ("RAW", "T", "NEXT", "DONE", "GDONE", "OSC", "PL1"))
    VLANE, VINFO, VNEXT, VLOFF, VMASK, VOW, VOR, VSCRW, VTRA, VWR, VL16, VT0, VT1, VONE, VZERO = (L[k] for k in
        "VLANE VINFO VNEXT VLOFF VMASK VOW VOR VSCRW VTRA VWR VL16 VT0 VT1 VONE VZERO".split())
    ACC, LD, B, A, AD = 0, 32, 64, 96, 100
    sA, sR, sH, sN, sNV = 32, 33, 34, 35, 37
    sCN, sCH, sCF, sCR, sL = 38, 39, 40, 41, 36
    uid = [0]
    def lab(p):
        uid[0] += 1
        return f"L2_{p}{uid[0]}"
    def fetch_issue():
        I("s_mov_b64 exec, 1")
        I(f"ds_add_rtn_u32 v{VNEXT}, v{VZERO}, v{VONE} offset:{NEXT}")
        I("s_mov_b64 exec, -1")
    def setup_item(none_label):
        I(f"v_readfirstlane_b32 s42, v{VNEXT}")
        e.nop(1)
        I(f"s_cmp_ge_u32 s42, {2*NODES}")
        I(f"s_cbranch_scc1 {none_label}")
        I(f"s_cmp_ge_u32 s42, {NODES}")
        I(f"s_cselect_b32 s{sH}, 256, 0")
        I(f"s_cselect_b32 s43, {NODES}, 0")
        I(f"s_sub_u32 s{sN}, s42, s43")
        I(f"v_readlane_b32 s42, v{VINFO}, s{sN}")
        e.nop(1)
        I(f"s_lshr_b32 s{sR}, s42, 16")
        I("s_and_b32 s42, s42, 0xffff")
        I(f"s_lshl_b32 s{sA}, s42, 4")
    def off_read(hf):
        I(f"ds_read_b128 v[{AD}:{AD+3}], v{VOR} offset:{OSC+128*hf}")
        I(f"ds_read_b128 v[{AD+4}:{AD+7}], v{VOR} offset:{OSC+128*hf+16}")
    def off_add():
        for i in range(8):
            I(f"v_add_u32 v{AD+i}, v{AD+i}, v{VLOFF}")
    def prep_block():
        r = B
        I(f"v_add_u32 v{VT0}, s{sA}, v{VL16}")
        I(f"ds_read_b128 v[{r}:{r+3}], v{VT0} offset:{RAW}")
        l = lab("nf")
        I(f"s_cmp_gt_u32 s{sR}, 64")
        I(f"s_cbranch_scc1 {l}")
        fetch_issue()
        e.label(l)
        I(f"v_cmp_gt_u32 vcc, s{sR}, v{VLANE}")
        I("s_waitcnt lgkmcnt(0)")
        I(f"v_lshrrev_b32 v{r+11}, 16, v{r+3}")
        I(f"v_lshlrev_b32 v{r+11}, 9, v{r+11}")
        I(f"ds_write_b32 v{VOW}, v{r+11} offset:{OSC}")
        off_read(0)
        if not c.x_noexp:
            I(f"v_cndmask_b32 v{r}, 0, v{r}, vcc")
            I(f"v_cndmask_b32 v{r+1}, 0, v{r+1}, vcc")
            I(f"v_lshlrev_b32 v{r+8}, 16, v{r+2}")
            I(f"v_and_b32 v{r+9}, v{VMASK}, v{r+2}")
            I(f"v_lshlrev_b32 v{r+10}, 16, v{r+3}")
            I(f"v_lshlrev_b32 v{r+4}, 16, v{r}")
            I(f"v_and_b32 v{r+5}, v{VMASK}, v{r}")
            I(f"v_lshlrev_b32 v{r+6}, 16, v{r+1}")
            I(f"v_and_b32 v{r+7}, v{VMASK}, v{r+1}")
            for j in range(3):
                for d in range(4):
                    I(f"v_mul_f32 v{r+12+4*j+d}, v{r+4+d}, v{r+8+j}")
            I(f"v_cvt_pk_bf16_f32 v{r+2}, v{r+12}, v{r+13}")
            I(f"v_cvt_pk_bf16_f32 v{r+3}, v{r+14}, v{r+15}")
            for k in range(4):
                I(f"v_cvt_pk_bf16_f32 v{r+24+k}, v{r+16+2*k}, v{r+17+2*k}")
        I(f"ds_write_b128 v{VSCRW}, v[{r}:{r+3}]")
        I(f"ds_write_b128 v{VSCRW}, v[{r+24}:{r+27}] offset:{PL1}")
        I("s_waitcnt lgkmcnt(2)")
        off_add()
    def ld(i):
        if c.x_noload: return
        I(f"buffer_load_dwordx4 v[{LD+4*i}:{LD+4*i+3}], v{AD+i}, s[4:7], {'0' if c.x_samehalf else 's%d' % sH} offen")
    def perm(q, jj, k16=False):
        if c.x_noperm: return
        d = B + 2*q + jj if k16 else B + 4*q + jj
        I(f"v_perm_b32 v{d}, v{LD+4*(2*jj+1)+q//2}, v{LD+4*(2*jj)+q//2}, s{29 if q & 1 else 28}")
    def loads_partial(done):
        for i in range(7):
            I(f"s_cmp_le_u32 s{sL}, {4*i}")
            I(f"s_cbranch_scc1 {done}")
            ld(i)
    def perms_loads():
        part, done = lab("pp"), lab("pd")
        I("s_waitcnt vmcnt(0)")
        if c.prio: I(f"s_setprio {c.prio}")
        I(f"s_cmp_le_u32 s{sL}, 28")
        I(f"s_cbranch_scc1 {part}")
        for jj in range(4):
            for q in range(8): perm(q, jj)
            ld(2*jj); ld(2*jj+1)
        I(f"s_branch {done}")
        e.label(part)
        for jj in range(4):
            for q in range(8): perm(q, jj)
        loads_partial(done)
        e.label(done)
        if c.prio: I("s_setprio 0")
    def mfmas(first, k16=False):
        if c.x_nomfma: return
        for q in range(8):
            d = f"v[{ACC+4*q}:{ACC+4*q+3}]"
            if k16: I(f"v_mfma_f32_16x16x16_bf16 {d}, v[{A}:{A+1}], v[{B+2*q}:{B+2*q+1}], {'0' if first else d}")
            else: I(f"v_mfma_f32_16x16x32_bf16 {d}, v[{A}:{A+3}], v[{B+4*q}:{B+4*q+3}], {'0' if first else d}")
    def tr_read(hf):
        I(f"ds_read_b64_tr_b16 v[{A}:{A+1}], v{VTRA} offset:{512*hf}")
        I(f"ds_read_b64_tr_b16 v[{A+2}:{A+3}], v{VTRA} offset:{512*hf+256}")

    fetch_issue()
    I("s_waitcnt lgkmcnt(0)")
    setup_item("L2_g_done")
    prep_block()
    I(f"s_mov_b32 s{sL}, s{sR}")
    I(f"s_cmp_le_u32 s{sL}, 28")
    I("s_cbranch_scc1 L2_i_part")
    for i in range(8): ld(i)
    I("s_branch L2_A1")
    e.label("L2_i_part")
    loads_partial("L2_A1")
    for first in (1, 0):
        e.label(f"L2_A{first}")
        tr_read(0)
        I(f"s_cmp_gt_u32 s{sR}, 32")
        I(f"s_cbranch_scc1 L2_AB{first}")
        I(f"s_mov_b32 s{sCF}, {first}")
        I(f"s_mov_b32 s{sCR}, s{sR}")
        I("s_branch L2_XN")
        e.label(f"L2_AB{first}")
        off_read(1)
        I(f"s_sub_u32 s{sL}, s{sR}, 32")
        I("s_waitcnt lgkmcnt(0)")
        off_add()
        perms_loads()
        mfmas(first)
        if first: I("s_branch L2_B")
    e.label("L2_B")
    tr_read(1)
    I(f"s_cmp_gt_u32 s{sR}, 64")
    I("s_cbranch_scc0 L2_BN")
    I(f"s_sub_u32 s{sR}, s{sR}, 64")
    I(f"s_add_u32 s{sA}, s{sA}, 1024")
    I(f"s_mov_b32 s{sL}, s{sR}")
    prep_block()
    perms_loads()
    I("s_waitcnt lgkmcnt(0)")
    mfmas(0)
    I("s_branch L2_A0")
    e.label("L2_BN")
    I(f"s_mov_b32 s{sCF}, 0")
    I(f"s_sub_u32 s{sCR}, s{sR}, 32")
    e.label("L2_XN")
    I(f"s_mov_b32 s{sCN}, s{sN}")
    I(f"s_mov_b32 s{sCH}, s{sH}")
    I(f"s_mov_b32 s{sNV}, 1")
    setup_item("L2_XN_none")
    I(f"s_mov_b32 s{sL}, s{sR}")
    prep_block()
    I("s_branch L2_XN_go")
    e.label("L2_XN_none")
    I(f"s_mov_b32 s{sNV}, 0")
    I(f"s_mov_b32 s{sL}, 0")
    e.label("L2_XN_go")
    I(f"s_cmp_le_u32 s{sCR}, 16")
    I("s_cbranch_scc1 L2_XN_k16")
    perms_loads()
    I("s_waitcnt lgkmcnt(0)")
    I(f"s_cmp_eq_u32 s{sCF}, 0")
    I("s_cbranch_scc1 L2_XN_acc")
    mfmas(1)
    I("s_branch L2_XN_epi")
    e.label("L2_XN_acc")
    mfmas(0)
    I("s_branch L2_XN_epi")
    e.label("L2_XN_k16")
    I("s_waitcnt vmcnt(0)")
    if c.prio: I(f"s_setprio {c.prio}")
    for jj in range(2):
        for q in range(8): perm(q, jj, True)
    I(f"s_cmp_le_u32 s{sL}, 28")
    I("s_cbranch_scc1 L2_XN_k16p")
    for i in range(8): ld(i)
    I("s_branch L2_XN_k16d")
    e.label("L2_XN_k16p")
    loads_partial("L2_XN_k16d")
    e.label("L2_XN_k16d")
    if c.prio: I("s_setprio 0")
    I("s_waitcnt lgkmcnt(0)")
    I(f"s_cmp_eq_u32 s{sCF}, 0")
    I("s_cbranch_scc1 L2_XN_k16acc")
    mfmas(1, True)
    I("s_branch L2_XN_epi")
    e.label("L2_XN_k16acc")
    mfmas(0, True)
    e.label("L2_XN_epi")
    I(f"s_lshl_b32 s42, s{sCH}, 5")
    I(f"v_add_u32 v{VT0}, s42, v{VWR}")
    for q in range(8):
        I(f"ds_read_b128 v[{B+4*q}:{B+4*q+3}], v{VT0} offset:{q*1024}")
    I(f"s_lshr_b32 s43, s{sCN}, 4")
    I(f"s_lshl_b32 s43, s43, 2")
    I(f"s_cmp_eq_u32 s{sCH}, 0")
    I("s_cbranch_scc1 L2_nowar")
    I(f"v_mov_b32 v{VT1}, s43")
    I("s_mov_b32 s45, 0")
    e.label("L2_war")
    I(f"ds_read_b32 v{VT0}, v{VT1} offset:{GDONE}")
    I("s_waitcnt lgkmcnt(0)")
    I(f"v_readfirstlane_b32 s44, v{VT0}")
    e.nop(1)
    I("s_cmp_ge_u32 s44, 4")
    I("s_cbranch_scc1 L2_war_ok")
    I("s_add_u32 s45, s45, 1")
    I("s_cmp_lt_u32 s45, 0x400000")
    I("s_cbranch_scc1 L2_war")
    e.label("L2_war_ok")
    I("s_add_u32 s43, s43, 16")
    e.label("L2_nowar")
    I(f"s_and_b32 s44, s{sCN}, 15")
    I("s_lshl_b32 s44, s44, 4")
    I(f"s_lshl_b32 s45, s{sCN}, 10")
    I(f"s_add_u32 s45, s45, {T}")
    I(f"v_xor_b32 v{VT0}, s44, v{VL16}")
    I(f"v_add_u32 v{VT0}, s45, v{VT0}")
    I(f"v_mov_b32 v{VT1}, s43")
    I("s_waitcnt lgkmcnt(0)")
    for q in range(8):
        I(f"v_mul_f32 v{B+4*q}, v{B+4*q}, v{ACC+4*q}")
    for d in range(1, 4):
        for q in range(8):
            I(f"v_fmac_f32 v{B+4*q}, v{B+4*q+d}, v{ACC+4*q+d}")
    for k in range(4):
        I(f"v_cvt_pk_bf16_f32 v{A+k}, v{B+8*k}, v{B+8*k+4}")
    I(f"ds_write_b128 v{VT0}, v[{A}:{A+3}]")
    I("s_waitcnt lgkmcnt(0)")
    I("s_mov_b64 exec, 1")
    I(f"ds_add_u32 v{VT1}, v{VONE} offset:{DONE}")
    I("s_mov_b64 exec, -1")
    I(f"s_cmp_lg_u32 s{sNV}, 0")
    I("s_cbranch_scc1 L2_A1")

HEADER = """; equiformer tensor-product message passing, one persistent launch (250 workgroups, one per CU):
; (write-through stores, table entries tagged with a per-launch tag agreed through d_debug); phase 2 sorts a
"""

def generate(c):
    e = Emitter()
    e.raw('.amdgcn_target "amdgcn-amd-amdhsa--gfx950"')
    e.raw(".text")
    k = gen_main(e, c)
    head = HEADER + f"; @launch grid=(250,1,1) block=(1024,1,1) lds={c.lds}\n"
    tail = '.section .rodata,"a"\n.p2align 6\n' + kd(*k)
    return head + e.text() + tail

if __name__ == "__main__":
    c = Cfg()
    out = sys.argv[1]
    for kv in sys.argv[2:]:
        k, v = kv.split("=", 1)
        old = getattr(c, k)
        setattr(c, k, type(old)(int(v)) if isinstance(old, (bool, int)) else v.replace("+", " "))
    open(out, "w").write(generate(c))
```

```python
import sys
from emit import Emitter

N, E = 12500, 800000
NB, NODES = 250, 50
NCH, CH = 250, 3200
CSTRIDE = 58496
KEYOFF, PAYOFF, TABOFF = 0, 3200, 54400
HN = 25
WSBYTES = NCH * CSTRIDE
KNAME = "gather_scatter__tensor_product_equiv_equiformer__graph_kernel"

class Cfg:
    st_flags = "sc1"
    ld_flags = ""
    rec_flags = "sc1"
    tab_flags = "sc1"
    out_flags = ""
    pfx_lines = 0
    pfx_pos = "store"
    pf2b_lines = 0
    pf2b_tile = 2
    stamps = False
    cap = 1888
    x_noperm = 0
    x_noexp = 0
    x_nomfma = 0
    x_noload = 0
    x_samehalf = 0
    prio = 0
    codepf = 0
    sleep = 32
    psleep = 4
    probe = ""
    poll_all = 0
    bdelay = -1
    keyfirst = 1
    reorder = 1
    splitw = 1
    ppipe = 0
    late_b = 1
    dbuf = 0
    wpos = 0
    tagpos = 0

def srd(e, d, b, nbytes):
    e.I(f"s_mov_b32 s{d}, s{b}")
    e.I(f"s_mov_b32 s{d+1}, s{b+1}")
    e.I(f"s_mov_b32 s{d+2}, {nbytes}")
    e.I(f"s_mov_b32 s{d+3}, 0x20000")

def scan64(e, v):
    for sh in (1, 2, 4, 8):
        e.I(f"v_add_u32_dpp v{v}, v{v}, v{v} row_shr:{sh} row_mask:0xf bank_mask:0xf")
    e.I(f"v_add_u32_dpp v{v}, v{v}, v{v} row_bcast:15 row_mask:0xa bank_mask:0xf")
    e.I(f"v_add_u32_dpp v{v}, v{v}, v{v} row_bcast:31 row_mask:0xc bank_mask:0xf")

def prefetch_x(e, nlines, vt, vtid, nthreads, slice_s, half, srdx):
    if nlines <= 0: return 0
    e.I(f"s_mul_i32 s46, s{slice_s}, 782")
    e.I(f"s_mov_b32 s47, {nlines}")
    it = (nlines + nthreads - 1) // nthreads
    for k in range(it):
        e.I(f"v_add_u32 v{vt}, {k*nthreads}, v{vtid}")
        e.I(f"v_cmp_gt_u32 vcc, s47, v{vt}")
        e.I(f"v_add_u32 v{vt}, s46, v{vt}")
        e.I(f"v_and_b32 v{vt+1}, 1, v{vt}")
        e.I(f"v_lshrrev_b32 v{vt}, 1, v{vt}")
        e.I(f"v_lshlrev_b32 v{vt}, 9, v{vt}")
        e.I(f"v_lshl_add_u32 v{vt}, v{vt+1}, 7, v{vt}")
        e.I(f"v_cndmask_b32 v{vt}, 2.0, v{vt}, vcc")
        e.I(f"buffer_load_dword v{vt+2}, v{vt}, s[{srdx}:{srdx+3}], 0 offen offset:{half*256}")
    return it

STV, TIDV = 127, 126
def stamp(e, c, slot):
    if not c.stamps: return
    e.I("s_memrealtime s[90:91]")
    e.I("s_waitcnt lgkmcnt(0)")
    e.I(f"v_writelane_b32 v{STV}, s90, {slot}")

def cstamp(e, c, slot):
    if not c.stamps: return
    e.I("s_memtime s[90:91]")
    e.I("s_waitcnt lgkmcnt(0)")
    e.I(f"v_writelane_b32 v{STV}, s90, {slot}")

def stamp_store(e, c, vtmp):
    if not c.stamps: return
    e.I(f"v_lshrrev_b32 v{vtmp}, 6, v{TIDV}")
    e.I(f"s_lshl_b32 s90, s2, 4")
    e.I(f"v_add_u32 v{vtmp}, s90, v{vtmp}")
    e.I(f"v_lshlrev_b32 v{vtmp}, 7, v{vtmp}")
    e.I(f"v_and_b32 v{vtmp+1}, 63, v{TIDV}")
    e.I(f"v_lshl_add_u32 v{vtmp}, v{vtmp+1}, 2, v{vtmp}")
    e.I(f"v_cmp_gt_u32 vcc, 32, v{vtmp+1}")
    e.I(f"v_cndmask_b32 v{vtmp}, 2.0, v{vtmp}, vcc")
    e.I(f"s_mov_b32 s90, {16 << 20}")
    e.I(f"buffer_store_dword v{STV}, v{vtmp}, s[8:11], s90 offen")

def kernel_header(e, name):
    e.raw(f".globl {name}")
    e.raw(".p2align 8")
    e.raw(f".type {name},@function")
    e.raw(f"{name}:")
    e.hist = []

def kd(name, nv, ns):
    return f""".amdhsa_kernel {name}
  .amdhsa_next_free_vgpr {nv}
  .amdhsa_next_free_sgpr {ns}
  .amdhsa_accum_offset {(nv+3)//4*4}
  .amdhsa_group_segment_fixed_size 0
  .amdhsa_kernarg_size 96
  .amdhsa_user_sgpr_count 2
  .amdhsa_user_sgpr_kernarg_segment_ptr 1
  .amdhsa_system_sgpr_workgroup_id_x 1
  .amdhsa_float_denorm_mode_32 3
.end_amdhsa_kernel
"""

def path_of(jp, blk):
    if blk == 0: return (0, 0, 1) if jp == 0 else (2, jp, 1)
    k = blk - 1
    if jp == 0: return (3, 1 + k, 1)
    j = jp - 1
    if j == k: return (1, 0, 1)
    i = 3 - j - k
    return (4, 1 + i, 1 if k == (j + 1) % 3 else -1)

def gen_main(e, c):
    CAP = c.cap
    BOFF = CAP + 64
    HIST, HIST2, CUR2, CNT = 0, 256, 512, 768
    NEXT, DONE, GDONE, BSYNC, BREADY, TOTB = CNT, CNT + 16, CNT + 64, CNT + 80, CNT + 84, CNT + 88
    HISTB, HIST2B, CUR2B, INFO, NONCE = 1024, 1280, 1536, 1792, 2048
    RAW = 2176
    T = (RAW + 2 * BOFF * 16 + 255) // 256 * 256
    WRAD = T + NODES * 1024
    SCR = WRAD + 16384
    H1 = WRAD
    SSTR, PL1, OSC = 2368, 1056, 2080
    lds = max(SCR + 12 * SSTR, T + 64 * 1024)
    assert lds <= 163840 and 2 * BOFF >= 3200 + 64, lds
    c.lds = lds
    kernel_header(e, KNAME)
    I = e.I
    wsbytes = (32 << 20) if c.stamps else WSBYTES
    I("s_cmp_ge_u32 s2, 250")
    I("s_cbranch_scc1 L_end")
    if c.stamps:
        I(f"v_mov_b32 v{STV}, 0")
        I(f"v_mov_b32 v{TIDV}, v0")
    stamp(e, c, 0)
    cstamp(e, c, 26)
    I("s_load_dwordx8 s[32:39], s[0:1], 0")
    I("s_load_dwordx8 s[40:47], s[0:1], 32")
    I("s_load_dwordx4 s[80:83], s[0:1], 72")
    I("s_load_dwordx2 s[84:85], s[0:1], 88")
    I("v_lshlrev_b32 v1, 4, v0")
    I("v_lshlrev_b32 v2, 5, v0")
    I("v_mul_u32_u24 v3, 24, v0")
    I("v_readfirstlane_b32 s21, v0")
    I("s_mul_i32 s48, s2, 12800")
    I("s_mul_i32 s49, s2, 25600")
    I("s_mul_i32 s50, s2, 19200")
    I("s_lshr_b32 s21, s21, 6")
    I("s_movk_i32 s51, 800")
    I("v_cmp_gt_u32 vcc, s51, v0")
    I("s_waitcnt lgkmcnt(0)")
    srd(e, 64, 40, E * 4)
    srd(e, 60, 38, E * 4)
    srd(e, 56, 36, E * 8)
    srd(e, 52, 34, E * 6)
    I("s_cmp_ge_u32 s21, 13")
    I("s_cbranch_scc1 L1_setup")
    I("s_and_saveexec_b64 s[26:27], vcc")
    lf = c.ld_flags
    I(f"buffer_load_dwordx4 v[4:7], v1, s[64:67], s48 offen {lf}")
    I(f"buffer_load_dwordx4 v[8:11], v1, s[60:63], s48 offen {lf}")
    I(f"buffer_load_dwordx4 v[12:15], v2, s[56:59], s49 offen {lf}")
    I(f"buffer_load_dwordx4 v[16:19], v2, s[56:59], s49 offen offset:16 {lf}")
    I(f"buffer_load_dwordx4 v[20:23], v3, s[52:55], s50 offen {lf}")
    I(f"buffer_load_dwordx2 v[24:25], v3, s[52:55], s50 offen offset:16 {lf}")
    I("s_mov_b64 exec, -1")
    e.label("L1_setup")
    srd(e, 4, 32, N * 512)
    srd(e, 8, 84, wsbytes)
    srd(e, 12, 80, N * 512)
    srd(e, 16, 42, 2560)
    srd(e, 68, 44, 16384)
    srd(e, 72, 46, 24576)
    srd(e, 76, 82, 256)
    I("s_and_b32 s20, s2, 7")
    I("s_min_u32 s22, s20, 2")
    I("s_mul_i32 s20, s20, 31")
    I("s_add_u32 s20, s20, s22")
    I("s_lshr_b32 s31, s2, 3")
    I("s_add_u32 s20, s20, s31")
    I("s_mov_b32 s22, 0")
    I("s_movk_i32 s23, 250")
    I("s_mov_b32 s24, 1")
    I("s_mov_b32 s28, 0x05040100")
    I("s_mov_b32 s29, 0x07060302")
    I("s_mov_b32 s30, 0xffff0000")
    I(f"s_mul_i32 s51, s2, {CSTRIDE}")
    I("s_cmp_ge_u32 s21, 13")
    I("s_cbranch_scc1 L1_aux")
    I(f"s_mov_b32 s46, {H1}")
    I("v_lshl_add_u32 v40, v0, 2, s46")
    I("v_mov_b32 v41, 0")
    I("v_mov_b32 v42, 1")
    I("s_mov_b32 s48, -25")
    I(f"s_movk_i32 s49, {RAW+PAYOFF}")
    I("s_mov_b32 s50, 0x05040302")
    I("s_movk_i32 s47, 249")
    I("s_cmp_ge_u32 s21, 8")
    I("s_cbranch_scc1 L1_nz")
    I("ds_write_b32 v40, v41")
    I("s_waitcnt lgkmcnt(0)")
    e.label("L1_nz")
    I("s_barrier")
    I("s_and_b64 exec, exec, vcc")
    I("s_waitcnt vmcnt(5)")
    stamp(e, c, 1)
    for i in range(4):
        I(f"v_mul_u32_u24 v{44+i}, 0x147b, v{4+i}")
    for i in range(4):
        I(f"v_lshrrev_b32 v{44+i}, 17, v{44+i}")
    for i in range(4):
        I(f"v_cmp_lt_u32 s[{32+2*i}:{33+2*i}], s47, v{44+i}")
    for i in range(4):
        I(f"v_cndmask_b32 v{36+i}, 0, 1, s[{32+2*i}:{33+2*i}]")
    for i in range(4):
        I(f"v_sub_u32 v{48+i}, v{44+i}, v{36+i}")
        I(f"v_mad_u32_u24 v{44+i}, v{36+i}, 6, v{44+i}")
    for i in range(4):
        I(f"v_mad_i32_i24 v{4+i}, v{48+i}, s48, v{4+i}")
        I(f"v_lshl_add_u32 v{44+i}, v{44+i}, 2, s46")
    for i in range(4):
        I(f"ds_add_rtn_u32 v{36+i}, v{44+i}, v42")
    I("s_waitcnt lgkmcnt(0)")
    I("s_barrier")
    I("s_cmp_lg_u32 s21, 0")
    I("s_cbranch_scc1 L1_noscan")
    I("v_add_u32 v60, s46, v2")
    I("ds_read_b128 v[52:55], v60")
    I("ds_read_b128 v[56:59], v60 offset:16")
    I("s_waitcnt lgkmcnt(0)")
    I("v_mov_b32 v64, 0")
    I("v_mov_b32 v65, v52")
    for k in range(2, 8):
        I(f"v_add_u32 v{64+k}, v{63+k}, v{51+k}")
    I("v_add_u32 v61, v71, v59")
    I("v_mov_b32 v62, v61")
    scan64(e, 62)
    I("v_sub_u32 v62, v62, v61")
    for k in range(8):
        I(f"v_add_u32 v{64+k}, v{64+k}, v62")
    I("ds_write_b128 v60, v[64:67] offset:2048")
    I("ds_write_b128 v60, v[68:71] offset:2064")
    for k in range(8):
        I(f"v_lshl_or_b32 v{52+k}, v{52+k}, 12, v{64+k}")
    I("v_readlane_b32 s88, v62, 32")
    I("s_waitcnt lgkmcnt(0)")
    e.label("L1_noscan")
    I("s_barrier")
    for i in range(4):
        I(f"ds_read_b32 v{44+i}, v{44+i} offset:2048")
    I("s_waitcnt lgkmcnt(0)")
    for i in range(4):
        I(f"v_add_u32 v{36+i}, v{36+i}, v{44+i}")
        I(f"v_lshl_add_u32 v{44+i}, v{36+i}, 4, s49")
    for i in range(4):
        I(f"ds_write_b8 v{36+i}, v{4+i} offset:{RAW+KEYOFF}")
    if c.splitw:
        I("s_waitcnt vmcnt(2)")
        for i in range(4):
            I(f"ds_write_b64 v{44+i}, v[{12+2*i}:{13+2*i}]")
        I("s_waitcnt vmcnt(1)")
        I("v_mov_b32 v28, v20")
        I("v_perm_b32 v29, v8, v21, s28")
        I("ds_write_b64 v44, v[28:29] offset:8")
        I("v_alignbit_b32 v30, v22, v21, 16")
        I("v_perm_b32 v31, v9, v22, s50")
        I("ds_write_b64 v45, v[30:31] offset:8")
        I("s_waitcnt vmcnt(0)")
        stamp(e, c, 2)
        I("v_mov_b32 v32, v23")
        I("v_perm_b32 v33, v10, v24, s28")
        I("ds_write_b64 v46, v[32:33] offset:8")
        I("v_alignbit_b32 v34, v25, v24, 16")
        I("v_perm_b32 v35, v11, v25, s50")
        I("ds_write_b64 v47, v[34:35] offset:8")
    else:
        I("s_waitcnt vmcnt(0)")
        stamp(e, c, 2)
        I("v_mov_b32 v28, v20")
        I("v_perm_b32 v29, v8, v21, s28")
        I("ds_write2_b64 v44, v[12:13], v[28:29] offset0:0 offset1:1")
        I("v_alignbit_b32 v30, v22, v21, 16")
        I("v_perm_b32 v31, v9, v22, s50")
        I("ds_write2_b64 v45, v[14:15], v[30:31] offset0:0 offset1:1")
        I("v_mov_b32 v32, v23")
        I("v_perm_b32 v33, v10, v24, s28")
        I("ds_write2_b64 v46, v[16:17], v[32:33] offset0:0 offset1:1")
        I("v_alignbit_b32 v34, v25, v24, 16")
        I("v_perm_b32 v35, v11, v25, s50")
        I("ds_write2_b64 v47, v[18:19], v[34:35] offset0:0 offset1:1")
    I("s_mov_b64 exec, -1")
    I("s_waitcnt lgkmcnt(0)")
    I("s_branch L1_copy")
    e.label("L1_aux")
    I("v_subrev_u32 v64, 832, v0")
    I("v_lshlrev_b32 v65, 4, v64")
    if c.codepf:
        I("s_getpc_b64 s[40:41]")
        I(f"s_mov_b32 s42, {c.codepf*1024}")
        I("s_mov_b32 s43, 0x20000")
        I("v_lshlrev_b32 v72, 7, v64")
        I("buffer_load_dword v73, v72, s[40:43], 0 offen")
    I("s_cmp_lg_u32 s21, 15")
    I("s_cbranch_scc1 L1_notag")
    I("s_cmp_lg_u32 s2, 0")
    I("s_cbranch_scc1 L1_notag")
    I("s_memrealtime s[44:45]")
    I("s_waitcnt lgkmcnt(0)")
    I("s_and_b32 s45, s45, 0x7f")
    I("s_or_b32 s45, s45, 0x80")
    I("s_lshl_b32 s45, s45, 24")
    I("v_mov_b32 v68, s44")
    I("v_mov_b32 v69, s45")
    I("s_mov_b64 exec, 1")
    I("buffer_store_dwordx2 v[68:69], off, s[76:79], 0 sc1")
    I("s_mov_b64 exec, -1")
    e.label("L1_notag")
    I("s_cmp_lg_u32 s21, 13")
    I("s_cbranch_scc1 L1_nozero")
    for k in range(4): I(f"v_mov_b32 v{4+k}, 0")
    I("ds_write_b128 v65, v[4:7]")
    I("ds_write_b128 v65, v[4:7] offset:1024")
    e.label("L1_nozero")
    if c.pfx_pos == "start": prefetch_x(e, c.pfx_lines, 74, 64, 192, 31, 0, 4)
    I("s_barrier"); I("s_barrier"); I("s_barrier")
    I("s_cmp_lg_u32 s21, 15")
    I("s_cbranch_scc1 L1_notag2")
    I("s_mov_b32 s44, 0")
    e.label("L1_tagpoll")
    I("buffer_load_dwordx2 v[68:69], off, s[76:79], 0 sc1")
    I("s_add_u32 s44, s44, 1")
    I("s_waitcnt vmcnt(0)")
    I("v_readfirstlane_b32 s45, v69")
    e.nop(1)
    I("s_cmp_lg_u32 s45, 0")
    I("s_cbranch_scc1 L1_tagok")
    I("s_cmp_lt_u32 s44, 0x100000")
    I("s_cbranch_scc1 L1_tagpoll")
    e.label("L1_tagok")
    I("v_mov_b32 v70, 0")
    I("s_mov_b64 exec, 1")
    I(f"ds_write_b64 v70, v[68:69] offset:{NONCE}")
    I("s_mov_b64 exec, -1")
    e.label("L1_notag2")
    for k in range(8):
        I(f"s_movk_i32 s46, {k*3072}")
        I(f"buffer_load_dwordx4 v[{28+4*k}:{31+4*k}], v65, s[72:75], s46 offen")
    for k in range(6):
        I(f"s_movk_i32 s46, {k*3072}")
        I(f"buffer_load_dwordx4 v[{72+4*k}:{75+4*k}], v65, s[68:71], s46 offen")
    if c.pfx_pos == "sort": prefetch_x(e, c.pfx_lines, 74, 64, 192, 31, 0, 4)
    I("s_waitcnt lgkmcnt(0)")
    e.flush()
    e.label("L1_copy")
    I("s_barrier")
    stamp(e, c, 3)
    I(f"ds_read_b128 v[20:23], v1 offset:{RAW+49152}")
    I(f"ds_read_b128 v[8:11], v1 offset:{RAW}")
    I(f"ds_read_b128 v[12:15], v1 offset:{RAW+16384}")
    I(f"ds_read_b128 v[16:19], v1 offset:{RAW+32768}")
    I("v_mov_b32 v25, 0")
    I(f"ds_read_b64 v[26:27], v25 offset:{NONCE}")
    I("v_add_u32 v2, 16384, v1")
    I("v_add_u32 v3, 32768, v1")
    I("v_add_u32 v24, 49152, v1")
    I("s_movk_i32 s48, 328")
    I("v_cmp_gt_u32 vcc, s48, v0")
    sf = c.st_flags
    def st_b(tag):
        I(f"buffer_store_dwordx4 v[16:19], v3, s[8:11], s51 offen {sf}")
        I("s_mov_b64 exec, s[26:27]")
        I(f"s_cbranch_execz L1_st_skip{tag}")
        I(f"buffer_store_dwordx4 v[20:23], v24, s[8:11], s51 offen {sf}")
        e.label(f"L1_st_skip{tag}")
        I("s_mov_b64 exec, -1")
    if c.late_b:
        I("s_mov_b64 s[26:27], vcc")
        I("s_waitcnt lgkmcnt(3)")
        I(f"buffer_store_dwordx4 v[8:11], v1, s[8:11], s51 offen {sf}")
        I("s_waitcnt lgkmcnt(2)")
        I(f"buffer_store_dwordx4 v[12:15], v2, s[8:11], s51 offen {sf}")
        I("s_waitcnt lgkmcnt(0)")
    else:
        I("s_and_saveexec_b64 s[26:27], vcc")
        I("s_cbranch_execz L1_st_skip")
        I("s_waitcnt lgkmcnt(4)")
        I(f"buffer_store_dwordx4 v[20:23], v24, s[8:11], s51 offen {sf}")
        e.label("L1_st_skip")
        I("s_mov_b64 exec, -1")
        I("s_waitcnt lgkmcnt(3)")
        I(f"buffer_store_dwordx4 v[8:11], v1, s[8:11], s51 offen {sf}")
        I("s_waitcnt lgkmcnt(2)")
        I(f"buffer_store_dwordx4 v[12:15], v2, s[8:11], s51 offen {sf}")
        I("s_waitcnt lgkmcnt(1)")
        I(f"buffer_store_dwordx4 v[16:19], v3, s[8:11], s51 offen {sf}")
        I("s_waitcnt lgkmcnt(0)")
    I("v_readfirstlane_b32 s86, v26")
    I("v_readfirstlane_b32 s87, v27")
    stamp(e, c, 4)
    I("s_cmp_lt_u32 s21, 4")
    e.branch("s_cbranch_scc1 L2_gemm")

    npost = 0
    if c.pfx_pos == "post" and c.pfx_lines:
        I("v_subrev_u32 v99, 256, v0")
        npost = prefetch_x(e, c.pfx_lines, 96, 99, 768, 31, 0, 4)
    if c.dbuf:
        VINFO, VNEXT, VLOFF, VMASK, VOW, VOR, VSCRW, VTRA, VRAWC, VL16, VSELA, VSELB = range(108, 120)
        VLANE, VT0, VT1, VONE, VJ, VCH = 120, 121, 122, 123, 124, 125
        VSEG, VZERO, VWR = 107, 106, None
        I(f"v_and_b32 v{VLANE}, 63, v0")
        I(f"v_mov_b32 v{VMASK}, s30")
        I(f"v_and_b32 v{VT0}, 15, v{VLANE}")
        I(f"v_lshlrev_b32 v{VLOFF}, 4, v{VT0}")
        I(f"v_lshrrev_b32 v{VT1}, 4, v{VLANE}")
        I(f"v_lshlrev_b32 v{VL16}, 4, v{VLANE}")
        I("s_sub_u32 s43, s21, 4")
        I(f"s_mul_i32 s43, s43, {SSTR}")
        I(f"s_add_u32 s43, s43, {SCR}")
        I(f"v_add_u32 v{VSCRW}, s43, v{VL16}")
        I(f"v_lshlrev_b32 v{VOR}, 5, v{VT1}")
        I(f"v_add_u32 v{VOR}, s43, v{VOR}")
        I(f"v_bfe_u32 v{VT0}, v{VLANE}, 2, 2")
        I(f"v_lshl_add_u32 v{VTRA}, v{VT0}, 7, v{VOR}")
        I(f"v_and_b32 v{VT0}, 3, v{VLANE}")
        I(f"v_lshl_add_u32 v{VTRA}, v{VT0}, 3, v{VTRA}")
        I(f"v_lshrrev_b32 v{VT0}, 1, v{VLANE}")
        I(f"v_lshlrev_b32 v{VRAWC}, 4, v{VT0}")
        I(f"v_and_b32 v{VT1}, 3, v{VT0}")
        I(f"v_lshrrev_b32 v{VT0}, 2, v{VT0}")
        I(f"v_lshl_add_u32 v{VOW}, v{VT1}, 3, v{VT0}")
        I(f"v_lshlrev_b32 v{VOW}, 2, v{VOW}")
        I(f"v_add_u32 v{VOW}, s43, v{VOW}")
        I(f"v_and_b32 v{VT0}, 1, v{VLANE}")
        I(f"v_cmp_eq_u32 vcc, 1, v{VT0}")
        I(f"v_mov_b32 v{VSELA}, 0x03020100")
        I(f"v_mov_b32 v{VT0}, 0x07060c0c")
        I(f"v_cndmask_b32 v{VSELA}, v{VSELA}, v{VT0}, vcc")
        I(f"v_mov_b32 v{VSELB}, 0x01000c0c")
        I(f"v_mov_b32 v{VT0}, 0x05040c0c")
        I(f"v_cndmask_b32 v{VSELB}, v{VSELB}, v{VT0}, vcc")
    else:
        VLANE, VINFO, VNEXT = 108, 109, 110
        VLOFF, VMASK, VOW, VOR, VSCRW, VTRA, VWR, VL16 = 111, 112, 113, 114, 115, 116, 117, 118
        VT0, VT1, VONE, VZERO = 119, 120, 121, 122
        VJ, VCH, VSEG = 123, 124, 125
        I(f"v_and_b32 v{VLANE}, 63, v0")
        I(f"v_subrev_u32 v{VT0}, 256, v0")
        I(f"v_and_b32 v{VJ}, 15, v{VT0}")
        I(f"v_lshrrev_b32 v{VSEG}, 4, v{VT0}")
        I(f"s_mov_b32 s42, {CSTRIDE}")
        I(f"v_mul_u32_u24 v{VCH}, s42, v{VSEG}")
        I(f"v_mov_b32 v{VONE}, 1")
        I(f"v_mov_b32 v{VZERO}, 0")
        I(f"v_mov_b32 v{VMASK}, s30")
        I(f"v_and_b32 v{VT0}, 15, v{VLANE}")
        I(f"v_lshlrev_b32 v{VLOFF}, 4, v{VT0}")
        I(f"v_lshrrev_b32 v{VT1}, 4, v{VLANE}")
        I(f"v_lshlrev_b32 v{VL16}, 4, v{VLANE}")
        I("s_sub_u32 s43, s21, 4")
        I(f"s_mul_i32 s43, s43, {SSTR}")
        I(f"s_add_u32 s43, s43, {SCR}")
        I(f"v_add_u32 v{VSCRW}, s43, v{VL16}")
        I(f"v_lshlrev_b32 v{VOR}, 5, v{VT1}")
        I(f"v_add_u32 v{VOR}, s43, v{VOR}")
        I(f"v_lshlrev_b32 v{VTRA}, 4, v{VT1}")
        I(f"v_bfe_u32 v{VT1}, v{VLANE}, 2, 2")
        I(f"v_lshl_add_u32 v{VTRA}, v{VT1}, 6, v{VTRA}")
        I(f"v_and_b32 v{VT1}, 1, v{VLANE}")
        I(f"v_lshl_add_u32 v{VTRA}, v{VT1}, 3, v{VTRA}")
        I(f"v_bfe_u32 v{VT1}, v{VLANE}, 1, 1")
        I(f"v_mul_u32_u24 v{VT1}, {PL1}, v{VT1}")
        I(f"v_add3_u32 v{VTRA}, v{VTRA}, v{VT1}, s43")
        I(f"v_and_b32 v{VOW}, 32, v{VLANE}")
        I(f"v_and_b32 v{VT1}, 3, v{VLANE}")
        I(f"v_lshl_add_u32 v{VOW}, v{VT1}, 3, v{VOW}")
        I(f"v_bfe_u32 v{VT1}, v{VLANE}, 2, 3")
        I(f"v_add_u32 v{VOW}, v{VOW}, v{VT1}")
        I(f"v_lshlrev_b32 v{VOW}, 2, v{VOW}")
        I(f"v_add_u32 v{VOW}, s43, v{VOW}")
        I(f"v_add_u32 v{VWR}, {WRAD}, v{VL16}")
    NP, NW = 3, 3
    for p in range(NP):
        I(f"s_mov_b32 s{74+p}, {96*p*CSTRIDE+PAYOFF}")
        I(f"s_mov_b32 s{80+p}, {96*p*CSTRIDE+KEYOFF}")
    I("s_mov_b32 s88, s20")
    I("s_mov_b32 s89, 0")
    I(f"s_movk_i32 s48, {HN}")
    I(f"s_waitcnt vmcnt({(0 if c.late_b else 1)+npost})")
    stamp(e, c, 6)
    I("s_barrier")
    if c.late_b: st_b("g")
    I("s_cmp_lt_u32 s21, 13")
    I("s_cbranch_scc1 L2_noW")
    I(f"v_add_u32 v65, {T}, v65")
    for k in range(8):
        I(f"ds_write_b128 v65, v[{28+4*k}:{31+4*k}] offset:{16384 + k*3072}")
    for k in range(5):
        I(f"ds_write_b128 v65, v[{72+4*k}:{75+4*k}] offset:{k*3072}")
    I("s_cmp_lg_u32 s21, 13")
    I("s_cbranch_scc1 L2_noW")
    I(f"ds_write_b128 v65, v[92:95] offset:{5*3072}")
    e.label("L2_noW")
    I("s_waitcnt lgkmcnt(0)")
    I(f"s_waitcnt vmcnt({npost})")
    stamp(e, c, 5)
    I("s_barrier")
    PAY, KEY, RNK, TAB, KAD, PAD, X = 0, 36, 45, 54, 60, 63, 68
    MSK = 50
    rf = c.rec_flags
    e.label("L2_g_round")
    I(f"v_lshrrev_b32 v{VLANE}, 4, v{VL16}")
    I("s_sub_u32 s42, s21, 4")
    I("s_lshl_b32 s42, s42, 3")
    I(f"v_and_b32 v{VJ}, 7, v{VLANE}")
    I(f"v_lshrrev_b32 v{VSEG}, 3, v{VLANE}")
    I(f"v_add_u32 v{VSEG}, s42, v{VSEG}")
    I(f"s_mov_b32 s42, {CSTRIDE}")
    I(f"v_mul_u32_u24 v{VCH}, s42, v{VSEG}")
    I(f"v_mov_b32 v{VONE}, 1")
    I(f"v_cmp_gt_u32 s[46:47], {NCH-192}, v{VSEG}")
    I("s_lshl_b32 s43, s88, 3")
    I(f"s_add_u32 s43, s43, {TABOFF}")
    I("s_mov_b32 s44, 0")
    def tagdiff(dst, reg, tmp):
        I(f"v_xor_b32 v{dst}, s87, v{reg}")
        I(f"v_lshrrev_b32 v{dst}, 24, v{dst}")
        I(f"v_xor_b32 v{tmp}, s86, v{reg+1}")
        I(f"v_or_b32 v{dst}, v{dst}, v{tmp}")
    if c.ppipe:
        TAB2 = 0
        def tab_issue(r, tag):
            I(f"v_mov_b32 v{r+4}, s87")
            I(f"v_mov_b32 v{r+5}, s86")
            I("s_mov_b32 s42, s43")
            for p in range(NP):
                if p: I(f"s_add_u32 s42, s42, {96*CSTRIDE}")
                if p == NP - 1:
                    I(f"v_cndmask_b32 v{X+3}, 2.0, v{VCH}, s[46:47]")
                    I(f"buffer_load_dwordx2 v[{r+6}:{r+7}], v{X+3}, s[8:11], s42 offen {c.tab_flags}")
                else:
                    I(f"buffer_load_dwordx2 v[{r+2*p}:{r+2*p+1}], v{VCH}, s[8:11], s42 offen {c.tab_flags}")
        def tab_check(r, ok):
            I(f"v_cndmask_b32 v{r+4}, v{r+4}, v{r+6}, s[46:47]")
            I(f"v_cndmask_b32 v{r+5}, v{r+5}, v{r+7}, s[46:47]")
            tagdiff(X, r, X+1)
            for p in range(1, NP):
                tagdiff(X+2, r+2*p, X+1)
                I(f"v_or_b32 v{X}, v{X}, v{X+2}")
            I(f"v_cmp_ne_u32 vcc, 0, v{X}")
            I("s_add_u32 s44, s44, 1")
            e.nop(2)
            I("s_cmp_eq_u64 vcc, 0")
            I(f"s_cbranch_scc1 {ok}")
        tab_issue(8, "a")
        I(f"s_sleep {c.psleep}")
        e.label("L2_poll1")
        tab_issue(16, "b")
        I("s_waitcnt vmcnt(3)")
        tab_check(8, "L2_pollA_ok")
        tab_issue(8, "c")
        I("s_waitcnt vmcnt(3)")
        tab_check(16, "L2_pollB2_ok")
        I("s_cmp_lt_u32 s44, 0x100000")
        I("s_cbranch_scc1 L2_poll1")
        e.label("L2_pollB2_ok")
        for k in range(6): I(f"v_mov_b32 v{TAB+k}, v{16+k}")
        I("s_branch L2_poll1_ok")
        e.label("L2_pollA_ok")
        for k in range(6): I(f"v_mov_b32 v{TAB+k}, v{8+k}")
    else:
        e.label("L2_poll1")
        I(f"v_mov_b32 v{TAB+4}, s87")
        I(f"v_mov_b32 v{TAB+5}, s86")
        I("s_mov_b32 s42, s43")
        for p in range(NP):
            if p: I(f"s_add_u32 s42, s42, {96*CSTRIDE}")
            if p == NP - 1:
                I("s_mov_b64 exec, s[46:47]")
                I("s_cbranch_execz L2_notabl")
            I(f"buffer_load_dwordx2 v[{TAB+2*p}:{TAB+2*p+1}], v{VCH}, s[8:11], s42 offen {c.tab_flags}")
        e.label("L2_notabl")
        I("s_mov_b64 exec, -1")
        I("s_waitcnt vmcnt(0)")
        tagdiff(X, TAB, X+1)
        for p in range(1, NP):
            tagdiff(X+2, TAB+2*p, X+1)
            I(f"v_or_b32 v{X}, v{X}, v{X+2}")
        I(f"v_cmp_ne_u32 vcc, 0, v{X}")
        I("s_add_u32 s44, s44, 1")
        e.nop(2)
        I("s_cmp_eq_u64 vcc, 0")
        I("s_cbranch_scc1 L2_poll1_ok")
        I(f"s_sleep {c.psleep}")
        I("s_cmp_lt_u32 s44, 0x100000")
        I("s_cbranch_scc1 L2_poll1")
    e.label("L2_poll1_ok")
    stamp(e, c, 7)
    I(f"v_add_u32 v{X+1}, 8, v{VJ}")
    I(f"v_add_u32 v{X+2}, 16, v{VJ}")
    def msk(p, w): return f"s[{MSK+6*p+2*w}:{MSK+6*p+2*w+1}]"
    for p in range(NP):
        cnt = TAB + 2*p
        I(f"s_sub_u32 s42, {96*p}, s22")
        I(f"v_add_u32 v{X}, s42, v{VSEG}")
        I(f"v_cmp_gt_u32 vcc, s23, v{X}")
        I(f"v_and_b32 v{KAD+p}, 0xfff, v{cnt}")
        I(f"v_bfe_u32 v{cnt}, v{cnt}, 12, 12")
        I(f"v_add_u32 v{KAD+p}, v{KAD+p}, v{VJ}")
        I(f"v_cndmask_b32 v{cnt}, 0, v{cnt}, vcc")
        I(f"v_lshl_add_u32 v{PAD+p}, v{KAD+p}, 4, v{VCH}")
        I(f"v_add_u32 v{KAD+p}, v{KAD+p}, v{VCH}")
        I(f"v_cmp_lt_u32 {msk(p,0)}, v{VJ}, v{cnt}")
        I(f"v_cmp_lt_u32 {msk(p,1)}, v{X+1}, v{cnt}")
        I(f"v_cmp_lt_u32 {msk(p,2)}, v{X+2}, v{cnt}")
        I(f"v_cndmask_b32 v{PAD+p}, 2.0, v{PAD+p}, {msk(p,0)}")
    e.flush()
    def pay(p, w): return f"v[{PAY+12*p+4*w}:{PAY+12*p+4*w+3}]"
    if c.keyfirst:
        for w in range(NW):
            for p in range(NP):
                I(f"s_mov_b64 exec, {msk(p,w)}")
                I(f"s_cbranch_execz L2_kskip{p}{w}")
                I(f"buffer_load_ubyte v{KEY+3*p+w}, v{KAD+p}, s[8:11], s{80+p} offen offset:{8*w} {rf}")
                e.label(f"L2_kskip{p}{w}")
        I("s_waitcnt vmcnt(0)")
        for w in range(NW):
            for p in range(NP):
                I(f"s_mov_b64 exec, {msk(p,w)}")
                I(f"s_cbranch_execz L2_pskip{p}{w}")
                I(f"buffer_load_dwordx4 {pay(p,w)}, v{PAD+p}, s[8:11], s{74+p} offen offset:{128*w} {rf}")
                e.label(f"L2_pskip{p}{w}")
        I("s_mov_b64 exec, -1")
    else:
        for p in range(NP):
            I(f"s_mov_b64 exec, {msk(p,2)}")
            I(f"s_cbranch_execz L2_w2skip{p}")
            I(f"buffer_load_ubyte v{KEY+3*p+2}, v{KAD+p}, s[8:11], s{80+p} offen offset:16 {rf}")
            I(f"buffer_load_dwordx4 {pay(p,2)}, v{PAD+p}, s[8:11], s{74+p} offen offset:256 {rf}")
            e.label(f"L2_w2skip{p}")
        for w in range(2):
            for p in range(NP):
                I(f"s_mov_b64 exec, {msk(p,w)}")
                I(f"s_cbranch_execz L2_kskip{p}{w}")
                I(f"buffer_load_ubyte v{KEY+3*p+w}, v{KAD+p}, s[8:11], s{80+p} offen offset:{8*w} {rf}")
                e.label(f"L2_kskip{p}{w}")
        I("s_mov_b64 exec, -1")
        for p in range(NP):
            if p == NP - 1:
                I("s_cmp_ge_u32 s21, 12")
                I("s_cbranch_scc1 L2_plskip")
            I(f"buffer_load_dwordx4 {pay(p,0)}, v{PAD+p}, s[8:11], s{74+p} offen {rf}")
        e.label("L2_plskip")
        for p in range(NP):
            I(f"s_mov_b64 exec, {msk(p,1)}")
            I(f"s_cbranch_execz L2_w1skip{p}")
            I(f"buffer_load_dwordx4 {pay(p,1)}, v{PAD+p}, s[8:11], s{74+p} offen offset:128 {rf}")
            e.label(f"L2_w1skip{p}")
        I("s_mov_b64 exec, -1")
        I(f"s_cmp_eq_u64 {msk(0,1)}, 0")
        I("s_cbranch_scc1 L2_kw2")
        I(f"s_cmp_eq_u64 {msk(1,1)}, 0")
        I("s_cbranch_scc1 L2_kw2")
        I("s_waitcnt vmcnt(4)")
        I("s_branch L2_kwd")
        e.label("L2_kw2")
        I("s_waitcnt vmcnt(2)")
        e.label("L2_kwd")
    stamp(e, c, 8)
    for k in range(NP*NW):
        I(f"v_lshlrev_b32 v{KEY+k}, 2, v{KEY+k}")
    for p in range(NP):
        for w in range(NW):
            I(f"s_mov_b64 exec, {msk(p,w)}")
            if w == 2: I(f"s_cbranch_execz L2_ra{p}")
            I(f"ds_add_rtn_u32 v{RNK+3*p+w}, v{KEY+3*p+w}, v{VONE} offset:{HIST}")
        e.label(f"L2_ra{p}")
    I("s_mov_b64 exec, -1")
    I(f"v_max3_u32 v{VT0}, v{TAB}, v{TAB+2}, v{TAB+4}")
    I(f"v_cmp_lt_u32 vcc, {8*NW}, v{VT0}")
    I("s_mov_b32 s25, 0")
    e.flush()
    I("s_cmp_eq_u64 vcc, 0")
    I("s_cbranch_scc1 L2_noextraA")
    I("s_mov_b32 s25, 1")
    for p in range(NP):
        I(f"v_add_u32 v{VT0}, {8*NW}, v{VJ}")
        I(f"v_add_u32 v{VT1}, {8*NW}, v{KAD+p}")
        e.label(f"L2_xa{p}")
        I(f"v_cmp_lt_u32 vcc, v{VT0}, v{TAB+2*p}")
        I("s_and_saveexec_b64 s[44:45], vcc")
        e.branch(f"s_cbranch_execz L2_xa{p}_done")
        I(f"buffer_load_ubyte v{X}, v{VT1}, s[8:11], s{80+p} offen {rf}")
        I("s_waitcnt vmcnt(0)")
        I(f"v_lshlrev_b32 v{X}, 2, v{X}")
        I(f"ds_add_u32 v{X}, v{VONE} offset:{HIST2}")
        I("s_mov_b64 exec, -1")
        I(f"v_add_u32 v{VT0}, 8, v{VT0}")
        I(f"v_add_u32 v{VT1}, 8, v{VT1}")
        e.branch(f"s_branch L2_xa{p}")
        e.label(f"L2_xa{p}_done")
        I("s_mov_b64 exec, -1")
    e.label("L2_noextraA")
    I("s_waitcnt lgkmcnt(0)")
    stamp(e, c, 14)
    I("s_barrier")
    stamp(e, c, 15)
    C1, CT, BS = X, X + 1, X + 2
    I(f"v_lshlrev_b32 v{VT0}, 2, v{VLANE}")
    I(f"ds_read_b32 v{C1}, v{VT0} offset:{HIST}")
    I(f"ds_read_b32 v{CT}, v{VT0} offset:{HIST2}")
    I("s_waitcnt lgkmcnt(0)")
    I(f"v_add_u32 v{CT}, v{C1}, v{CT}")
    I(f"v_mov_b32 v{BS}, v{CT}")
    scan64(e, BS)
    I(f"v_readlane_b32 s46, v{BS}, 63")
    I(f"v_sub_u32 v{BS}, v{BS}, v{CT}")
    I(f"v_lshl_or_b32 v{VINFO}, v{CT}, 16, v{BS}")
    I(f"s_cmp_eq_u32 s23, 1")
    I(f"s_cselect_b32 s42, -1, {CAP}")
    e.flush()
    I(f"s_cmp_gt_u32 s46, s42")
    I("s_cbranch_scc1 L2_g_overflow")
    for p in range(NP):
        for w in range(2):
            I(f"ds_bpermute_b32 v{KEY+3*p+w}, v{KEY+3*p+w}, v{BS}")
    I(f"s_or_b64 s[44:45], {msk(0,2)}, {msk(1,2)}")
    I(f"s_or_b64 s[44:45], s[44:45], {msk(2,2)}")
    I("s_cbranch_scc0 L2_now2")
    for p in range(NP):
        I(f"ds_bpermute_b32 v{KEY+3*p+2}, v{KEY+3*p+2}, v{BS}")
    e.label("L2_now2")
    I("s_cmp_lg_u32 s21, 5")
    I("s_cbranch_scc1 L2_noinfo")
    I(f"s_mov_b64 exec, {(1 << HN) - 1}")
    I(f"ds_write_b32 v{VT0}, v{VINFO} offset:{INFO}")
    I("s_mov_b64 exec, -1")
    e.label("L2_noinfo")
    I("s_waitcnt lgkmcnt(0)")
    for k in range(NP*NW):
        I(f"v_add_lshl_u32 v{KEY+k}, v{KEY+k}, v{RNK+k}, 4")
    stamp(e, c, 27)
    I("s_waitcnt vmcnt(0)")
    stamp(e, c, 9)
    for p in range(NP):
        for w in range(NW):
            I(f"s_mov_b64 exec, {msk(p,w)}")
            I(f"s_cbranch_execz L2_sc{p}")
            I(f"ds_write_b128 v{KEY+3*p+w}, {pay(p,w)} offset:{RAW}")
        e.label(f"L2_sc{p}")
    I("s_mov_b64 exec, -1")
    I("s_cmp_eq_u32 s25, 0")
    I("s_cbranch_scc1 L2_noextraB")
    I(f"v_add_u32 v{BS}, v{BS}, v{C1}")
    for p in range(NP):
        I(f"v_add_u32 v{VT0}, {8*NW}, v{VJ}")
        I(f"v_add_u32 v{VT1}, {8*NW}, v{KAD+p}")
        I(f"v_add_u32 v{X+3}, {128*NW}, v{PAD+p}")
        e.label(f"L2_xb{p}")
        I(f"v_cmp_lt_u32 vcc, v{VT0}, v{TAB+2*p}")
        I("s_and_saveexec_b64 s[44:45], vcc")
        e.branch(f"s_cbranch_execz L2_xb{p}_done")
        I(f"buffer_load_ubyte v{X+4}, v{VT1}, s[8:11], s{80+p} offen {rf}")
        I(f"buffer_load_dwordx4 v[{X+8}:{X+11}], v{X+3}, s[8:11], s{74+p} offen {rf}")
        I("s_waitcnt vmcnt(0)")
        I(f"v_lshlrev_b32 v{X+4}, 2, v{X+4}")
        I(f"ds_add_rtn_u32 v{X+5}, v{X+4}, v{VONE} offset:{CUR2}")
        I("s_mov_b64 exec, -1")
        I(f"ds_bpermute_b32 v{X+4}, v{X+4}, v{BS}")
        I("s_waitcnt lgkmcnt(0)")
        I(f"v_add_lshl_u32 v{X+4}, v{X+4}, v{X+5}, 4")
        I("s_mov_b64 exec, vcc")
        I(f"ds_write_b128 v{X+4}, v[{X+8}:{X+11}] offset:{RAW}")
        I("s_mov_b64 exec, -1")
        I(f"v_add_u32 v{VT0}, 8, v{VT0}")
        I(f"v_add_u32 v{VT1}, 8, v{VT1}")
        I(f"v_add_u32 v{X+3}, 128, v{X+3}")
        e.branch(f"s_branch L2_xb{p}")
        e.label(f"L2_xb{p}_done")
        I("s_mov_b64 exec, -1")
    e.label("L2_noextraB")
    ACC, LD, B, A, AD = 0, 32, 64, 96, 100
    I("s_waitcnt lgkmcnt(0)")
    for k in range(4 if c.dbuf else 32):
        I(f"v_mov_b32 v{LD+k}, 0")
    I("s_cmp_lg_u32 s21, 4")
    I("s_cbranch_scc1 L2_noguard")
    I("s_lshl_b32 s46, s46, 4")
    I(f"v_add_u32 v{VT0}, s46, v{VL16}")
    I(f"ds_write_b128 v{VT0}, v[{LD}:{LD+3}] offset:{RAW}")
    I("s_waitcnt lgkmcnt(0)")
    e.label("L2_noguard")
    stamp(e, c, 28)
    I("s_barrier")
    I(f"ds_read_b32 v{VT0}, v{VL16} offset:{TOTB}")
    I("s_mov_b64 exec, 1")
    I(f"ds_inc_rtn_u32 v{VNEXT}, v{VL16}, v{VMASK} offset:{NEXT}")
    I("s_mov_b64 exec, -1")
    I("s_waitcnt lgkmcnt(0)")
    I(f"v_readfirstlane_b32 s42, v{VT0}")
    e.nop(1)
    I(f"s_cmp_gt_u32 s42, {CAP}")
    I("s_cbranch_scc1 L2_g_overflow")
    stamp(e, c, 10)
    cstamp(e, c, 24)
    (gather_loop2 if c.dbuf else gather_loop)(e, c, locals())
    e.label("L2_g_done")
    stamp(e, c, 11)
    cstamp(e, c, 25)
    I("s_cmp_lg_u32 s24, 0")
    e.branch("s_cbranch_scc1 L2_g_exit")
    I("s_add_u32 s89, s89, 1")
    I("s_branch L2_g_slow")
    e.label("L2_g_overflow")
    I("s_mov_b32 s89, 0")
    I("s_mov_b32 s23, 1")
    I("s_movk_i32 s48, 64")
    e.label("L2_g_slow")
    I("s_waitcnt vmcnt(0) lgkmcnt(0)")
    I("s_barrier")
    I("s_lshr_b32 s22, s89, 1")
    I("s_and_b32 s88, s89, 1")
    I("s_lshl_b32 s88, s88, 8")
    I("s_add_u32 s88, s88, s20")
    I(f"s_cmp_eq_u32 s89, {2*NCH-1}")
    I("s_cselect_b32 s24, 1, 0")
    I("s_barrier")
    e.branch("s_branch L2_g_round")
    e.label("L2_g_exit")
    stamp_store(e, c, 90)
    I("s_endpgm")

    e.label("L2_gemm")
    W, G, TA, TF = 0, 40, 104, 108
    X0, X1 = 124, 125
    I("v_and_b32 v104, 63, v0")
    I("v_mov_b32 v117, v0")
    I("v_lshlrev_b32 v105, 4, v104")
    lut = 0
    for jp in range(4):
        for blk in range(4):
            p, i, s = path_of(jp, blk)
            lut |= (p | (8 if s < 0 else 0)) << (4 * (jp * 4 + blk))
    I(f"s_mov_b32 s44, {lut & 0xffffffff}")
    I(f"s_mov_b32 s45, {lut >> 32}")
    for h in range(2):
        I("v_lshrrev_b32 v106, 4, v104")
        I("v_bfe_u32 v107, v104, 3, 1")
        I("v_lshl_add_u32 v106, v106, 2, v107")
        I(f"v_add_lshl_u32 v106, v106, {2*h}, 2")
        I(f"v_lshrrev_b64 v[108:109], v106, s[44:45]")
        I(f"v_and_b32 v106, 7, v108")
        I(f"v_and_b32 v{110+h}, 8, v108")
        I(f"v_lshlrev_b32 v{110+h}, 28, v{110+h}")
        I("v_and_b32 v107, 7, v104")
        I("v_lshlrev_b32 v107, 3, v107")
        I("v_lshl_add_u32 v106, v106, 6, v107")
        I("v_add_u32 v106, s21, v106")
        I(f"v_lshlrev_b32 v{112+h}, 1, v106")
    I(f"s_add_u32 s49, s51, {TABOFF}")
    def publish(k0, k1):
        for k in range(k0, k1):
            I(f"buffer_store_dwordx4 v[{64+4*k}:{67+4*k}], v105, s[8:11], s49 offen offset:{1024*k} {sf}")
    I("s_cmp_lg_u32 s21, 0")
    I("s_cbranch_scc1 L2_nocomp")
    for i in range(8):
        I(f"v_or_b32 v{64+2*i}, s87, v{52+i}")
        I(f"v_mov_b32 v{65+2*i}, s86")
    I(f"s_mov_b32 s42, {H1}")
    I("v_lshl_add_u32 v114, v104, 6, s42")
    for k in range(4):
        I(f"ds_write_b128 v114, v[{64+4*k}:{67+4*k}] offset:{16*k}")
    I("v_add_u32 v114, s42, v105")
    for k in range(4):
        I(f"ds_read_b128 v[{64+4*k}:{67+4*k}], v114 offset:{1024*k}")
    I("s_waitcnt lgkmcnt(0)")
    e.label("L2_nocomp")
    I("s_mov_b32 s32, 0")
    I(f"s_waitcnt vmcnt({0 if c.late_b else 1})")
    I("s_barrier")
    I("s_cmp_lg_u32 s21, 0")
    I("s_cbranch_scc1 L2_notabA")
    I(f"s_cmp_gt_u32 s88, {(32768-PAYOFF)//16}")
    I("s_cbranch_scc1 L2_notabA")
    publish(0, 2)
    I("s_mov_b32 s32, 1")
    if not c.late_b:
        I("s_waitcnt vmcnt(2)")
        I("s_branch L2_P2")
    e.label("L2_notabA")
    if c.late_b: st_b("m")
    I("s_waitcnt vmcnt(0)")
    e.label("L2_P2")
    stamp(e, c, 5)
    I("s_barrier")
    I("s_cmp_lg_u32 s21, 0")
    I("s_cbranch_scc1 L2_notabB")
    publish(2, 4)
    I("s_cmp_lg_u32 s32, 0")
    I("s_cbranch_scc1 L2_notabB")
    publish(0, 2)
    e.label("L2_notabB")
    WT = 80
    for k in range(4):
        h, qo = k >> 1, (k & 1) * 4
        for d in range(4):
            I(f"buffer_load_ushort v{WT+4*k+d}, v{112+h}, s[16:19], 0 offen offset:{d*640+qo*2}")
    I("v_lshrrev_b32 v106, 4, v104")
    I("v_lshlrev_b32 v106, 10, v106")
    I("v_bfe_u32 v107, v104, 2, 2")
    I("v_lshl_add_u32 v106, v107, 7, v106")
    I("v_and_b32 v107, 3, v104")
    I("v_lshl_add_u32 v106, v107, 3, v106")
    I("s_lshl_b32 s42, s21, 5")
    I(f"s_add_u32 s42, s42, {T}")
    I("v_add_u32 v106, s42, v106")
    for f in range(10):
        I(f"ds_read_b64_tr_b16 v[{W+4*f}:{W+4*f+1}], v106 offset:{f*4096}")
        I(f"ds_read_b64_tr_b16 v[{W+4*f+2}:{W+4*f+3}], v106 offset:{f*4096+512}")
    npf = 0
    if c.pfx_pos == "store": npf = prefetch_x(e, c.pfx_lines, 114, 117, 256, 31, 0, 4)
    I("s_lshl_b32 s42, s21, 10")
    I(f"s_add_u32 s43, s42, {WRAD}")
    I("v_add_u32 v105, s43, v105")
    I(f"s_waitcnt vmcnt({npf})")
    for k in range(4):
        h = k >> 1
        for d in range(4):
            I(f"v_lshlrev_b32 v{WT+4*k+d}, 16, v{WT+4*k+d}")
            I(f"v_xor_b32 v{WT+4*k+d}, v{110+h}, v{WT+4*k+d}")
        I(f"ds_write_b128 v105, v[{WT+4*k}:{WT+4*k+3}] offset:{(k>>1)*8192 + (k&1)*4096}")
    I("v_and_b32 v106, 15, v104")
    I("v_lshrrev_b32 v107, 4, v104")
    I(f"v_lshlrev_b32 v{X0}, 2, v104")
    I(f"s_mul_i32 s42, s20, {HN*512}")
    I("s_lshl_b32 s43, s21, 5")
    I("s_add_u32 s42, s42, s43")
    I(f"v_lshlrev_b32 v{X1}, 9, v106")
    I(f"v_lshl_add_u32 v{X1}, v107, 3, v{X1}")
    I(f"v_add_u32 v{X1}, s42, v{X1}")
    I(f"v_cmp_gt_u32 s[50:51], {NODES-48}, v106")
    I(f"v_cmp_le_u32 s[84:85], {HN-16}, v106")
    I("v_lshlrev_b32 v108, 10, v106")
    I(f"v_add_u32 v108, {T}, v108")
    for u in (3, 2, 1, 0):
        I(f"v_add_u32 v109, {4*u}, v107")
        I("v_xor_b32 v109, v109, v106")
        I(f"v_lshl_add_u32 v{TF+4+u}, v109, 4, v108")
    I("s_waitcnt lgkmcnt(0)")
    for u in range(4):
        I(f"v_mov_b32 v{TA+u}, v{TF+4+u}")
    I("s_mov_b32 s89, 0")
    NPB = 8
    TB, SJ, KB, RB = 40, 56, 64, 80
    LJ, LCH, LONE, Y = 96, 97, 98, 99
    I(f"v_lshrrev_b32 v{Y}, 2, v{X0}")
    I(f"v_and_b32 v{LJ}, 7, v{Y}")
    I(f"v_lshrrev_b32 v{Y}, 3, v{Y}")
    I("s_lshl_b32 s42, s21, 3")
    I(f"v_add_u32 v{Y}, s42, v{Y}")
    I(f"s_mov_b32 s42, {CSTRIDE}")
    I(f"v_mul_u32_u24 v{LCH}, s42, v{Y}")
    I(f"v_cmp_gt_u32 s[46:47], {NCH-224}, v{Y}")
    I(f"v_mov_b32 v{LONE}, 1")
    I("s_lshl_b32 s36, s20, 3")
    I(f"s_add_u32 s36, s36, {TABOFF+2048}")
    I("s_mov_b32 s44, 0")
    def tabB_issue():
        I(f"v_mov_b32 v{TB+14}, s87")
        I(f"v_mov_b32 v{TB+15}, s86")
        I("s_mov_b32 s42, s36")
        for p in range(NPB):
            if p: I(f"s_add_u32 s42, s42, {32*CSTRIDE}")
            if p == NPB - 1: I("s_mov_b64 exec, s[46:47]")
            I(f"buffer_load_dwordx2 v[{TB+2*p}:{TB+2*p+1}], v{LCH}, s[8:11], s42 offen {c.tab_flags}")
        I("s_mov_b64 exec, -1")
    if c.bdelay > 0: I(f"s_sleep {c.bdelay}")
    if c.bdelay >= 0: tabB_issue()
    stamp(e, c, 14)
    e.label("L2_m_round")
    I("s_barrier")
    def pf_here(pos):
        if c.pfx_pos == pos and c.pfx_lines:
            I("s_lshl_b32 s42, s21, 6")
            I(f"v_lshrrev_b32 v{TF+11}, 2, v{X0}")
            I(f"v_add_u32 v{TF+11}, s42, v{TF+11}")
            prefetch_x(e, c.pfx_lines, TF + 8, TF + 11, 256, 31, 0, 4)
    I(f"ds_read_b32 v{TF}, v{X0} offset:{HIST}")
    I(f"ds_read_b32 v{TF+1}, v{X0} offset:{HIST2}")
    I("s_waitcnt lgkmcnt(0)")
    I(f"v_add_u32 v{TF}, v{TF}, v{TF+1}")
    scan64(e, TF)
    I(f"v_readlane_b32 s42, v{TF}, 63")
    I("s_cmp_eq_u32 s23, 1")
    I("s_cbranch_scc1 L2_m_slowC")
    e.flush()
    I(f"s_cmp_gt_u32 s42, {CAP}")
    I("s_cbranch_scc1 L2_m_overflow")
    NPB = 8
    TB, SJ, KB, RB = 40, 56, 64, 80
    LJ, LCH, LONE, Y = 96, 97, 98, 99
    MB = 52
    def mb(p, w): return f"s[{MB+4*p+2*w}:{MB+4*p+2*w+1}]"
    if c.bdelay >= 0: I("s_branch L2_pollB_chk")
    e.label("L2_pollB")
    tabB_issue()
    e.label("L2_pollB_chk")
    I("s_waitcnt vmcnt(0)")
    tagdiff(Y, TB, Y+1)
    for p in range(1, NPB):
        tagdiff(Y+2, TB+2*p, Y+1)
        I(f"v_or_b32 v{Y}, v{Y}, v{Y+2}")
    I(f"v_cmp_ne_u32 vcc, 0, v{Y}")
    I("s_add_u32 s44, s44, 1")
    e.nop(2)
    I("s_cmp_eq_u64 vcc, 0")
    I("s_cbranch_scc1 L2_pollB_ok")
    I(f"s_sleep {c.psleep}")
    I("s_cmp_lt_u32 s44, 0x100000")
    I("s_cbranch_scc1 L2_pollB")
    e.label("L2_pollB_ok")
    stamp(e, c, 7)
    I(f"v_add_u32 v{Y+1}, 8, v{LJ}")
    I(f"v_mov_b32 v{Y}, 0")
    for p in range(NPB):
        cnt = TB + 2*p
        I(f"v_and_b32 v{SJ+p}, 0xfff, v{cnt}")
        I(f"v_bfe_u32 v{cnt}, v{cnt}, 12, 12")
        I(f"v_add_u32 v{SJ+p}, v{SJ+p}, v{LJ}")
        I(f"v_add_u32 v{Y}, v{Y}, v{cnt}")
        I(f"v_cmp_lt_u32 {mb(p,0)}, v{LJ}, v{cnt}")
        I(f"v_cmp_lt_u32 {mb(p,1)}, v{Y+1}, v{cnt}")
        I(f"v_add_u32 v{cnt+1}, v{SJ+p}, v{LCH}")
    I(f"v_mov_b32 v{Y+2}, 0")
    I("s_mov_b32 s42, 0x01010101")
    I("s_mov_b32 s43, 0x01010101")
    I("s_mov_b64 exec, s[42:43]")
    I(f"ds_add_u32 v{Y+2}, v{Y} offset:{TOTB}")
    I("s_mov_b64 exec, -1")
    I("s_waitcnt lgkmcnt(0)")
    pf_here("B")
    I("s_barrier")
    I(f"ds_read_b32 v{Y}, v{Y+2} offset:{TOTB}")
    I("s_waitcnt lgkmcnt(0)")
    I(f"v_readfirstlane_b32 s42, v{Y}")
    e.nop(1)
    I(f"s_cmp_gt_u32 s42, {CAP}")
    I("s_cbranch_scc1 L2_m_overflow")
    stamp(e, c, 10)
    I("s_mov_b32 s34, s42")
    for p in range(NPB):
        I(f"s_mov_b32 s42, {32*p*CSTRIDE+KEYOFF}")
        for w in range(2):
            I(f"s_mov_b64 exec, {mb(p,w)}")
            I(f"buffer_load_ubyte v{KB+2*p+w}, v{TB+2*p+1}, s[8:11], s42 offen offset:{8*w} {rf}")
    I("s_mov_b64 exec, -1")
    I(f"v_max3_u32 v{Y}, v{TB}, v{TB+2}, v{TB+4}")
    I(f"v_max3_u32 v{Y}, v{Y}, v{TB+6}, v{TB+8}")
    I(f"v_max3_u32 v{Y}, v{Y}, v{TB+10}, v{TB+12}")
    I(f"v_max_u32 v{Y}, v{Y}, v{TB+14}")
    I(f"v_cmp_lt_u32 vcc, 16, v{Y}")
    I("s_waitcnt vmcnt(0)")
    I("s_cmp_lg_u64 vcc, 0")
    I("s_cselect_b32 s35, 1, 0")
    for k in range(2*NPB):
        I(f"v_lshlrev_b32 v{KB+k}, 2, v{KB+k}")
    for p in range(NPB):
        for w in range(2):
            I(f"s_mov_b64 exec, {mb(p,w)}")
            I(f"ds_add_rtn_u32 v{RB+2*p+w}, v{KB+2*p+w}, v{LONE} offset:{HISTB}")
    I("s_mov_b64 exec, -1")
    I("s_cmp_eq_u32 s35, 0")
    I("s_cbranch_scc1 L2_bnoxa")
    for p in range(NPB):
        I(f"s_mov_b32 s42, {32*p*CSTRIDE+KEYOFF}")
        I(f"v_add_u32 v{Y}, 16, v{LJ}")
        I(f"v_add_u32 v{Y+1}, 16, v{TB+2*p+1}")
        e.label(f"L2_bxa{p}")
        I(f"v_cmp_lt_u32 vcc, v{Y}, v{TB+2*p}")
        I("s_and_saveexec_b64 s[44:45], vcc")
        e.branch(f"s_cbranch_execz L2_bxa{p}_done")
        I(f"buffer_load_ubyte v{Y+2}, v{Y+1}, s[8:11], s42 offen {rf}")
        I("s_waitcnt vmcnt(0)")
        I(f"v_lshlrev_b32 v{Y+2}, 2, v{Y+2}")
        I(f"ds_add_u32 v{Y+2}, v{LONE} offset:{HIST2B}")
        I("s_mov_b64 exec, -1")
        I(f"v_add_u32 v{Y}, 8, v{Y}")
        I(f"v_add_u32 v{Y+1}, 8, v{Y+1}")
        e.branch(f"s_branch L2_bxa{p}")
        e.label(f"L2_bxa{p}_done")
        I("s_mov_b64 exec, -1")
    e.label("L2_bnoxa")
    P0 = [TF, TF+4, TF+8, TF+12]
    def pay_issue(p, w, reg):
        I(f"s_mov_b32 s42, {32*p*CSTRIDE+PAYOFF}")
        I("s_mov_b64 exec, -1")
        I(f"v_cndmask_b32 v{Y+3+w}, 2.0, v{SJ+p}, {mb(p,w)}")
        I(f"buffer_load_dwordx4 v[{reg}:{reg+3}], v{Y+3+w}, s[8:11], s42 offen offset:{128*w} {rf}")
    for p in range(NPB):
        I(f"v_lshl_add_u32 v{SJ+p}, v{SJ+p}, 4, v{LCH}")
    for k in range(4): pay_issue(k >> 1, k & 1, P0[k])
    I("s_mov_b64 exec, 1")
    I(f"v_mov_b32 v{Y+2}, 0")
    I("s_waitcnt lgkmcnt(0)")
    I(f"ds_add_u32 v{Y+2}, v{LONE} offset:{BSYNC}")
    I("s_mov_b64 exec, -1")
    I(f"v_mov_b32 v{Y+2}, 0")
    I("s_mov_b32 s44, 0")
    e.label("L2_bsync")
    I(f"ds_read_b32 v{Y}, v{Y+2} offset:{BSYNC}")
    I("s_waitcnt lgkmcnt(0)")
    I(f"v_readfirstlane_b32 s42, v{Y}")
    I("s_add_u32 s44, s44, 1")
    I("s_cmp_ge_u32 s42, 4")
    I("s_cbranch_scc1 L2_bsync_ok")
    I("s_cmp_lt_u32 s44, 0x400000")
    I("s_cbranch_scc1 L2_bsync")
    e.label("L2_bsync_ok")
    I(f"ds_read_b32 v{Y}, v{X0} offset:{HISTB}")
    I(f"ds_read_b32 v{Y+1}, v{X0} offset:{HIST2B}")
    I("s_waitcnt lgkmcnt(0)")
    I(f"v_add_u32 v{Y+1}, v{Y}, v{Y+1}")
    I(f"v_mov_b32 v{Y+2}, v{Y+1}")
    scan64(e, Y+2)
    I(f"v_sub_u32 v{Y+2}, v{Y+2}, v{Y+1}")
    I(f"v_add_u32 v{Y+2}, {BOFF}, v{Y+2}")
    for k in range(2*NPB):
        I(f"ds_bpermute_b32 v{KB+k}, v{KB+k}, v{Y+2}")
    I("s_cmp_lg_u32 s21, 0")
    I("s_cbranch_scc1 L2_bnoinfo")
    I(f"v_lshl_or_b32 v{Y+1}, v{Y+1}, 16, v{Y+2}")
    I(f"s_mov_b32 s42, {((1 << 32) - (1 << HN))}")
    I("s_mov_b32 s43, -1")
    I("s_mov_b64 exec, s[42:43]")
    I(f"ds_write_b32 v{X0}, v{Y+1} offset:{INFO}")
    I("s_mov_b64 exec, -1")
    e.label("L2_bnoinfo")
    I("s_waitcnt lgkmcnt(0)")
    for k in range(2*NPB):
        I(f"v_add_lshl_u32 v{KB+k}, v{KB+k}, v{RB+k}, 4")
    I(f"v_add_u32 v{Y+2}, v{Y+2}, v{Y}")
    regs = P0 + [RB, RB+4, RB+8, RB+12]
    for k in range(4, 8): pay_issue(k >> 1, k & 1, regs[k])
    for k in range(16):
        I(f"s_waitcnt vmcnt({min(7, 15-k)})")
        I(f"s_mov_b64 exec, {mb(k>>1, k&1)}")
        I(f"ds_write_b128 v{KB+k}, v[{regs[k&7]}:{regs[k&7]+3}] offset:{RAW}")
        if k + 8 < 16: pay_issue((k+8) >> 1, (k+8) & 1, regs[k&7])
    I("s_mov_b64 exec, -1")
    I("s_cmp_eq_u32 s35, 0")
    I("s_cbranch_scc1 L2_bnoxb")
    for p in range(NPB):
        I(f"s_mov_b32 s42, {32*p*CSTRIDE+KEYOFF}")
        I(f"s_mov_b32 s43, {32*p*CSTRIDE+PAYOFF}")
        I(f"v_add_u32 v{Y}, 16, v{LJ}")
        I(f"v_add_u32 v{Y+1}, 16, v{TB+2*p+1}")
        I(f"v_add_u32 v{SJ+p}, 256, v{SJ+p}")
        e.label(f"L2_bxb{p}")
        I(f"v_cmp_lt_u32 vcc, v{Y}, v{TB+2*p}")
        I("s_and_saveexec_b64 s[44:45], vcc")
        e.branch(f"s_cbranch_execz L2_bxb{p}_done")
        I(f"buffer_load_ubyte v{Y+3}, v{Y+1}, s[8:11], s42 offen {rf}")
        I(f"buffer_load_dwordx4 v[{TF}:{TF+3}], v{SJ+p}, s[8:11], s43 offen {rf}")
        I("s_waitcnt vmcnt(0)")
        I(f"v_lshlrev_b32 v{Y+3}, 2, v{Y+3}")
        I(f"ds_add_rtn_u32 v{Y+4}, v{Y+3}, v{LONE} offset:{CUR2B}")
        I("s_mov_b64 exec, -1")
        I(f"ds_bpermute_b32 v{Y+3}, v{Y+3}, v{Y+2}")
        I("s_waitcnt lgkmcnt(0)")
        I(f"v_add_lshl_u32 v{Y+3}, v{Y+3}, v{Y+4}, 4")
        I("s_mov_b64 exec, vcc")
        I(f"ds_write_b128 v{Y+3}, v[{TF}:{TF+3}] offset:{RAW}")
        I("s_mov_b64 exec, -1")
        I(f"v_add_u32 v{Y}, 8, v{Y}")
        I(f"v_add_u32 v{Y+1}, 8, v{Y+1}")
        I(f"v_add_u32 v{SJ+p}, 128, v{SJ+p}")
        e.branch(f"s_branch L2_bxb{p}")
        e.label(f"L2_bxb{p}_done")
        I("s_mov_b64 exec, -1")
    e.label("L2_bnoxb")
    I("s_waitcnt lgkmcnt(0)")
    for k in range(64):
        I(f"v_mov_b32 v{G+k}, 0")
    I("s_cmp_lg_u32 s21, 1")
    I("s_cbranch_scc1 L2_bnoguard")
    I(f"s_add_u32 s42, s34, {BOFF}")
    I("s_lshl_b32 s42, s42, 4")
    I(f"v_lshl_add_u32 v{TF}, v{X0}, 2, s42")
    I(f"ds_write_b128 v{TF}, v[{G}:{G+3}] offset:{RAW}")
    I("s_waitcnt lgkmcnt(0)")
    e.label("L2_bnoguard")
    I(f"v_mov_b32 v{TF}, 1")
    I("s_mov_b64 exec, 1")
    I(f"ds_add_u32 v{G}, v{TF} offset:{BREADY}")
    I("s_mov_b64 exec, -1")
    stamp(e, c, 13)
    I("s_branch L2_m_tiles")
    e.label("L2_m_slowC")
    I("s_barrier")
    e.label("L2_m_tiles")
    for h in range(2):
        for t in ((0, 3, 1, 2) if h and c.reorder else range(4)):
            need = 16 if t < 3 else NODES - 48
            I(f"v_mov_b32 v{TF}, 0")
            I("s_mov_b32 s43, 0")
            e.label(f"L2_poll{h}{t}")
            I(f"ds_read_b32 v{TF+1}, v{TF} offset:{DONE + 16*h + 4*t}")
            I("s_waitcnt lgkmcnt(0)")
            I(f"v_readfirstlane_b32 s42, v{TF+1}")
            e.nop(1)
            I(f"s_cmp_ge_u32 s42, {need}")
            I(f"s_cbranch_scc1 L2_go{h}{t}")
            I(f"s_sleep {1 if (h, t) == (1, 2) or (h, t, c.reorder) == (1, 3, 0) else c.sleep}")
            I("s_add_u32 s43, s43, 1")
            I("s_cmp_lt_u32 s43, 0x400000")
            I(f"s_cbranch_scc1 L2_poll{h}{t}")
            e.label(f"L2_go{h}{t}")
            stamp(e, c, 16 + 4*h + t)
            def rd(ks):
                I(f"ds_read_b128 v[{TF+4*(ks&3)}:{TF+4*(ks&3)+3}], v{TA+(ks&3)} offset:{t*16384 + (ks>>2)*256}")
            for ks in range(4): rd(ks)
            for ks in range(16):
                jp, blk = ks >> 2, 2 * h + ((ks >> 1) & 1)
                p, i, s = path_of(jp, blk)
                f = p * 2 + (ks & 1)
                I(f"s_waitcnt lgkmcnt({min(3, 15-ks)})")
                g = G + 16 * t + 4 * i
                I(f"v_mfma_f32_16x16x32_bf16 v[{g}:{g+3}], v[{W+4*f}:{W+4*f+3}], v[{TF+4*(ks&3)}:{TF+4*(ks&3)+3}], v[{g}:{g+3}]")
                if ks + 4 < 16: rd(ks + 4)
            if h == 0:
                I(f"v_mov_b32 v{TF}, 0")
                I(f"v_mov_b32 v{TF+1}, 1")
                I("s_mov_b64 exec, 1")
                I(f"ds_add_u32 v{TF}, v{TF+1} offset:{GDONE + 4*t}")
                I("s_mov_b64 exec, -1")
                if t == c.pf2b_tile and c.pf2b_lines:
                    I("s_lshl_b32 s42, s21, 6")
                    I(f"v_lshrrev_b32 v{TF+3}, 2, v{X0}")
                    I(f"v_add_u32 v{TF+3}, s42, v{TF+3}")
                    prefetch_x(e, c.pf2b_lines, TF + 4, TF + 3, 256, 31, 1, 4)
                    I("s_waitcnt vmcnt(0)")
            else:
                I("s_cmp_eq_u32 s24, 0")
                e.branch(f"s_cbranch_scc1 L2_nofin{t}")
                g = G + 16 * t
                I("s_mov_b32 s42, 0xbfb8aa3b")
                for r in range(4): I(f"v_mul_f32 v{TF+r}, s42, v{g+r}")
                for r in range(4): I(f"v_exp_f32 v{TF+r}, v{TF+r}")
                for r in range(4): I(f"v_add_f32 v{TF+r}, 1.0, v{TF+r}")
                for r in range(4): I(f"v_rcp_f32 v{TF+r}, v{TF+r}")
                for i in range(1, 4):
                    for r in range(4): I(f"v_mul_f32 v{g+4*i+r}, v{g+4*i+r}, v{TF+r}")
                for i in range(4):
                    I(f"v_cvt_pk_bf16_f32 v{TF+4+2*i}, v{g+4*i}, v{g+4*i+1}")
                    I(f"v_cvt_pk_bf16_f32 v{TF+5+2*i}, v{g+4*i+2}, v{g+4*i+3}")
                I(f"s_mov_b32 s42, {t*16*512 + ((N//2-HN)*512 if t >= 2 else 0)}")
                va = X1
                if t == 1:
                    va = TF
                    I(f"v_add_u32 v{TF}, {(N//2-HN)*512}, v{X1}")
                    I(f"v_cndmask_b32 v{TF}, v{X1}, v{TF}, s[84:85]")
                if t == 3: I("s_mov_b64 exec, s[50:51]")
                for i in range(4):
                    I(f"buffer_store_dwordx2 v[{TF+4+2*i}:{TF+5+2*i}], v{va}, s[12:15], s42 offen offset:{i*128} {c.out_flags}")
                if t == 3: I("s_mov_b64 exec, -1")
                e.label(f"L2_nofin{t}")
    stamp(e, c, 11)
    I("s_cmp_lg_u32 s24, 0")
    e.branch("s_cbranch_scc1 L2_m_exit")
    I("s_add_u32 s89, s89, 1")
    I("s_branch L2_m_slow")
    e.label("L2_m_overflow")
    I("s_mov_b32 s89, 0")
    I("s_mov_b32 s23, 1")
    I("s_waitcnt vmcnt(0)")
    for k in range(64):
        I(f"v_mov_b32 v{G+k}, 0")
    e.label("L2_m_slow")
    I("s_waitcnt vmcnt(0) lgkmcnt(0)")
    I("s_barrier")
    I(f"s_cmp_eq_u32 s89, {2*NCH-1}")
    I("s_cselect_b32 s24, 1, 0")
    I("s_cmp_lg_u32 s21, 1")
    I("s_cbranch_scc1 L2_m_nz")
    for k in range(4): I(f"v_mov_b32 v{TF+k}, 0")
    I(f"v_lshlrev_b32 v{TF+4}, 2, v{X0}")
    I(f"ds_write_b128 v{TF+4}, v[{TF}:{TF+3}]")
    I("s_waitcnt lgkmcnt(0)")
    e.label("L2_m_nz")
    I("s_barrier")
    e.branch("s_branch L2_m_round")
    e.label("L2_m_exit")
    if c.stamps:
        I("s_waitcnt vmcnt(0)")
        stamp(e, c, 12)
        stamp_store(e, c, TF)
    e.label("L_end")
    I("s_endpgm")
    return KNAME, 128, 96

def item_to_node(e, c, sitem, sH, sN):
    I = e.I
    I(f"s_cmp_ge_u32 s{sitem}, {NODES}")
    I(f"s_cselect_b32 s{sH}, 256, 0")
    if not c.reorder:
        I(f"s_cselect_b32 s43, {NODES}, 0")
        I(f"s_sub_u32 s{sN}, s{sitem}, s43")
        return
    I(f"s_cselect_b32 s43, {NODES}, 0")
    I(f"s_cmp_ge_u32 s{sitem}, {NODES+16}")
    I(f"s_cselect_b32 s43, {NODES-32}, s43")
    I(f"s_cmp_ge_u32 s{sitem}, {NODES+18}")
    I(f"s_cselect_b32 s43, {NODES+2}, s43")
    I(f"s_sub_u32 s{sN}, s{sitem}, s43")

def b_wait(e, L, snode, vt, vl16, tag):
    I = e.I
    I(f"s_cmp_lt_u32 s{snode}, s48")
    I(f"s_cbranch_scc1 L2_bok{tag}")
    I(f"v_mov_b32 v{vt}, 0")
    I("s_mov_b32 s45, 0")
    e.label(f"L2_bw{tag}")
    I(f"ds_read_b32 v{vt+1}, v{vt} offset:{L['BREADY']}")
    I("s_waitcnt lgkmcnt(0)")
    I(f"v_readfirstlane_b32 s44, v{vt+1}")
    I("s_add_u32 s45, s45, 1")
    I("s_cmp_ge_u32 s44, 4")
    I(f"s_cbranch_scc1 L2_bw_ok{tag}")
    I("s_sleep 1")
    I("s_cmp_lt_u32 s45, 0x400000")
    I(f"s_cbranch_scc1 L2_bw{tag}")
    e.label(f"L2_bw_ok{tag}")
    I(f"v_lshrrev_b32 v{vt}, 2, v{vl16}")
    I(f"ds_read_b32 v{L['VINFO']}, v{vt} offset:{L['INFO']}")
    I("s_movk_i32 s48, 64")
    I("s_waitcnt lgkmcnt(0)")
    e.label(f"L2_bok{tag}")

def gather_loop(e, c, L):
    I = e.I
    g = lambda n: L[n]
    RAW, T, NEXT, DONE, GDONE, OSC, PL1 = (L[k] for k in ("RAW", "T", "NEXT", "DONE", "GDONE", "OSC", "PL1"))
    VLANE, VINFO, VNEXT, VLOFF, VMASK, VOW, VOR, VSCRW, VTRA, VWR, VL16, VT0, VT1, VONE, VZERO = (L[k] for k in
        "VLANE VINFO VNEXT VLOFF VMASK VOW VOR VSCRW VTRA VWR VL16 VT0 VT1 VONE VZERO".split())
    ACC, LD, B, A, AD = 0, 32, 64, 96, 100
    sA, sR, sH, sN, sNV = 32, 33, 34, 35, 37
    sCN, sCH, sCF, sCR, sL = 38, 39, 40, 41, 36
    uid = [0]
    def lab(p):
        uid[0] += 1
        return f"L2_{p}{uid[0]}"
    def fetch_issue():
        I("s_mov_b64 exec, 1")
        I(f"ds_add_rtn_u32 v{VNEXT}, v{VZERO}, v{VONE} offset:{NEXT}")
        I("s_mov_b64 exec, -1")
    def setup_item(none_label):
        I(f"v_readfirstlane_b32 s42, v{VNEXT}")
        e.nop(1)
        I(f"s_cmp_ge_u32 s42, {2*NODES}")
        I(f"s_cbranch_scc1 {none_label}")
        item_to_node(e, c, 42, sH, sN)
        b_wait(e, L, sN, VT0, VL16, lab("t"))
        I(f"v_readlane_b32 s42, v{VINFO}, s{sN}")
        e.nop(1)
        I(f"s_lshr_b32 s{sR}, s42, 16")
        I("s_and_b32 s42, s42, 0xffff")
        I(f"s_lshl_b32 s{sA}, s42, 4")
    def off_read(hf):
        I(f"ds_read_b128 v[{AD}:{AD+3}], v{VOR} offset:{OSC+128*hf}")
        I(f"ds_read_b128 v[{AD+4}:{AD+7}], v{VOR} offset:{OSC+128*hf+16}")
    def off_add():
        for i in range(8):
            I(f"v_add_u32 v{AD+i}, v{AD+i}, v{VLOFF}")
    def prep_block():
        r = B
        I(f"v_add_u32 v{VT0}, s{sA}, v{VL16}")
        I(f"ds_read_b128 v[{r}:{r+3}], v{VT0} offset:{RAW}")
        l = lab("nf")
        I(f"s_cmp_gt_u32 s{sR}, 64")
        I(f"s_cbranch_scc1 {l}")
        fetch_issue()
        e.label(l)
        I(f"v_cmp_gt_u32 vcc, s{sR}, v{VLANE}")
        I("s_waitcnt lgkmcnt(0)")
        I(f"v_lshrrev_b32 v{r+11}, 16, v{r+3}")
        I(f"v_lshlrev_b32 v{r+11}, 9, v{r+11}")
        I(f"ds_write_b32 v{VOW}, v{r+11} offset:{OSC}")
        off_read(0)
        if not c.x_noexp:
            I(f"v_cndmask_b32 v{r}, 0, v{r}, vcc")
            I(f"v_cndmask_b32 v{r+1}, 0, v{r+1}, vcc")
            I(f"v_lshlrev_b32 v{r+8}, 16, v{r+2}")
            I(f"v_and_b32 v{r+9}, v{VMASK}, v{r+2}")
            I(f"v_lshlrev_b32 v{r+10}, 16, v{r+3}")
            I(f"v_lshlrev_b32 v{r+4}, 16, v{r}")
            I(f"v_and_b32 v{r+5}, v{VMASK}, v{r}")
            I(f"v_lshlrev_b32 v{r+6}, 16, v{r+1}")
            I(f"v_and_b32 v{r+7}, v{VMASK}, v{r+1}")
            for j in range(3):
                for d in range(4):
                    I(f"v_mul_f32 v{r+12+4*j+d}, v{r+4+d}, v{r+8+j}")
            I(f"v_cvt_pk_bf16_f32 v{r+2}, v{r+12}, v{r+13}")
            I(f"v_cvt_pk_bf16_f32 v{r+3}, v{r+14}, v{r+15}")
            for k in range(4):
                I(f"v_cvt_pk_bf16_f32 v{r+24+k}, v{r+16+2*k}, v{r+17+2*k}")
        I(f"ds_write_b128 v{VSCRW}, v[{r}:{r+3}]")
        I(f"ds_write_b128 v{VSCRW}, v[{r+24}:{r+27}] offset:{PL1}")
        I("s_waitcnt lgkmcnt(2)")
        off_add()
    def ld(i):
        if c.x_noload: return
        I(f"buffer_load_dwordx4 v[{LD+4*i}:{LD+4*i+3}], v{AD+i}, s[4:7], {'0' if c.x_samehalf else 's%d' % sH} offen")
    def perm(q, jj, k16=False):
        if c.x_noperm: return
        d = B + 2*q + jj if k16 else B + 4*q + jj
        I(f"v_perm_b32 v{d}, v{LD+4*(2*jj+1)+q//2}, v{LD+4*(2*jj)+q//2}, s{29 if q & 1 else 28}")
    def loads_partial(done):
        for i in range(7):
            I(f"s_cmp_le_u32 s{sL}, {4*i}")
            I(f"s_cbranch_scc1 {done}")
            ld(i)
    def perms_loads():
        part, done = lab("pp"), lab("pd")
        I("s_waitcnt vmcnt(0)")
        if c.prio: I(f"s_setprio {c.prio}")
        I(f"s_cmp_le_u32 s{sL}, 28")
        I(f"s_cbranch_scc1 {part}")
        for jj in range(4):
            for q in range(8): perm(q, jj)
            ld(2*jj); ld(2*jj+1)
        I(f"s_branch {done}")
        e.label(part)
        for jj in range(4):
            for q in range(8): perm(q, jj)
        loads_partial(done)
        e.label(done)
        if c.prio: I("s_setprio 0")
    def mfmas(first, k16=False):
        if c.x_nomfma: return
        for q in range(8):
            d = f"v[{ACC+4*q}:{ACC+4*q+3}]"
            if k16: I(f"v_mfma_f32_16x16x16_bf16 {d}, v[{A}:{A+1}], v[{B+2*q}:{B+2*q+1}], {'0' if first else d}")
            else: I(f"v_mfma_f32_16x16x32_bf16 {d}, v[{A}:{A+3}], v[{B+4*q}:{B+4*q+3}], {'0' if first else d}")
    def tr_read(hf):
        I(f"ds_read_b64_tr_b16 v[{A}:{A+1}], v{VTRA} offset:{512*hf}")
        I(f"ds_read_b64_tr_b16 v[{A+2}:{A+3}], v{VTRA} offset:{512*hf+256}")

    setup_item("L2_g_done")
    prep_block()
    I(f"s_mov_b32 s{sL}, s{sR}")
    I(f"s_cmp_le_u32 s{sL}, 28")
    I("s_cbranch_scc1 L2_i_part")
    for i in range(8): ld(i)
    I("s_branch L2_A1")
    e.label("L2_i_part")
    loads_partial("L2_A1")
    for first in (1, 0):
        e.label(f"L2_A{first}")
        tr_read(0)
        I(f"s_cmp_gt_u32 s{sR}, 32")
        I(f"s_cbranch_scc1 L2_AB{first}")
        I(f"s_mov_b32 s{sCF}, {first}")
        I(f"s_mov_b32 s{sCR}, s{sR}")
        I("s_branch L2_XN")
        e.label(f"L2_AB{first}")
        off_read(1)
        I(f"s_sub_u32 s{sL}, s{sR}, 32")
        I("s_waitcnt lgkmcnt(0)")
        off_add()
        perms_loads()
        mfmas(first)
        if first: I("s_branch L2_B")
    e.label("L2_B")
    tr_read(1)
    I(f"s_cmp_gt_u32 s{sR}, 64")
    I("s_cbranch_scc0 L2_BN")
    I(f"s_sub_u32 s{sR}, s{sR}, 64")
    I(f"s_add_u32 s{sA}, s{sA}, 1024")
    I(f"s_mov_b32 s{sL}, s{sR}")
    prep_block()
    perms_loads()
    I("s_waitcnt lgkmcnt(0)")
    mfmas(0)
    I("s_branch L2_A0")
    e.label("L2_BN")
    I(f"s_mov_b32 s{sCF}, 0")
    I(f"s_sub_u32 s{sCR}, s{sR}, 32")
    e.label("L2_XN")
    I(f"s_mov_b32 s{sCN}, s{sN}")
    I(f"s_mov_b32 s{sCH}, s{sH}")
    I(f"s_mov_b32 s{sNV}, 1")
    setup_item("L2_XN_none")
    I(f"s_mov_b32 s{sL}, s{sR}")
    prep_block()
    I("s_branch L2_XN_go")
    e.label("L2_XN_none")
    I(f"s_mov_b32 s{sNV}, 0")
    I(f"s_mov_b32 s{sL}, 0")
    e.label("L2_XN_go")
    I(f"s_cmp_le_u32 s{sCR}, 16")
    I("s_cbranch_scc1 L2_XN_k16")
    perms_loads()
    I("s_waitcnt lgkmcnt(0)")
    I(f"s_cmp_eq_u32 s{sCF}, 0")
    I("s_cbranch_scc1 L2_XN_acc")
    mfmas(1)
    I("s_branch L2_XN_epi")
    e.label("L2_XN_acc")
    mfmas(0)
    I("s_branch L2_XN_epi")
    e.label("L2_XN_k16")
    I("s_waitcnt vmcnt(0)")
    if c.prio: I(f"s_setprio {c.prio}")
    for jj in range(2):
        for q in range(8): perm(q, jj, True)
    I(f"s_cmp_le_u32 s{sL}, 28")
    I("s_cbranch_scc1 L2_XN_k16p")
    for i in range(8): ld(i)
    I("s_branch L2_XN_k16d")
    e.label("L2_XN_k16p")
    loads_partial("L2_XN_k16d")
    e.label("L2_XN_k16d")
    if c.prio: I("s_setprio 0")
    I("s_waitcnt lgkmcnt(0)")
    I(f"s_cmp_eq_u32 s{sCF}, 0")
    I("s_cbranch_scc1 L2_XN_k16acc")
    mfmas(1, True)
    I("s_branch L2_XN_epi")
    e.label("L2_XN_k16acc")
    mfmas(0, True)
    e.label("L2_XN_epi")
    I(f"s_lshl_b32 s42, s{sCH}, 5")
    I(f"v_add_u32 v{VT0}, s42, v{VWR}")
    for q in range(8):
        I(f"ds_read_b128 v[{B+4*q}:{B+4*q+3}], v{VT0} offset:{q*1024}")
    I(f"s_lshr_b32 s43, s{sCN}, 4")
    I(f"s_lshl_b32 s43, s43, 2")
    I(f"s_cmp_eq_u32 s{sCH}, 0")
    I("s_cbranch_scc1 L2_nowar")
    I(f"v_mov_b32 v{VT1}, s43")
    I("s_mov_b32 s45, 0")
    e.label("L2_war")
    I(f"ds_read_b32 v{VT0}, v{VT1} offset:{GDONE}")
    I("s_waitcnt lgkmcnt(0)")
    I(f"v_readfirstlane_b32 s44, v{VT0}")
    e.nop(1)
    I("s_cmp_ge_u32 s44, 4")
    I("s_cbranch_scc1 L2_war_ok")
    I("s_add_u32 s45, s45, 1")
    I("s_cmp_lt_u32 s45, 0x400000")
    I("s_cbranch_scc1 L2_war")
    e.label("L2_war_ok")
    I("s_add_u32 s43, s43, 16")
    e.label("L2_nowar")
    I(f"s_and_b32 s44, s{sCN}, 15")
    I("s_lshl_b32 s44, s44, 4")
    I(f"s_lshl_b32 s45, s{sCN}, 10")
    I(f"s_add_u32 s45, s45, {T}")
    I(f"v_xor_b32 v{VT0}, s44, v{VL16}")
    I(f"v_add_u32 v{VT0}, s45, v{VT0}")
    I(f"v_mov_b32 v{VT1}, s43")
    I("s_waitcnt lgkmcnt(0)")
    for q in range(8):
        I(f"v_mul_f32 v{B+4*q}, v{B+4*q}, v{ACC+4*q}")
    for d in range(1, 4):
        for q in range(8):
            I(f"v_fmac_f32 v{B+4*q}, v{B+4*q+d}, v{ACC+4*q+d}")
    for k in range(4):
        I(f"v_cvt_pk_bf16_f32 v{A+k}, v{B+8*k}, v{B+8*k+4}")
    I(f"ds_write_b128 v{VT0}, v[{A}:{A+3}]")
    I("s_waitcnt lgkmcnt(0)")
    I("s_mov_b64 exec, 1")
    I(f"ds_add_u32 v{VT1}, v{VONE} offset:{DONE}")
    I("s_mov_b64 exec, -1")
    I(f"s_cmp_lg_u32 s{sNV}, 0")
    I("s_cbranch_scc1 L2_A1")

def gather_loop2(e, c, L):
    I = e.I
    RAW, T, WRAD, NEXT, DONE, GDONE = (L[k] for k in ("RAW", "T", "WRAD", "NEXT", "DONE", "GDONE"))
    VINFO, VNEXT, VLOFF, VMASK, VOW, VOR, VSCRW, VTRA, VRAWC, VL16, VSELA, VSELB = (L[k] for k in
        "VINFO VNEXT VLOFF VMASK VOW VOR VSCRW VTRA VRAWC VL16 VSELA VSELB".split())
    ACC, BUF, BT, A, R = 0, (32, 64), 96, 104, 120
    OSC = 2048
    sA, sR, sH, sBase, sRem, sD2 = 32, 33, 34, 35, 36, 37
    sD = (38, 39)
    def fetch_issue():
        I("s_mov_b64 exec, 1")
        I(f"ds_inc_rtn_u32 v{VNEXT}, v{VL16}, v{VMASK} offset:{NEXT}")
        I("s_mov_b64 exec, -1")
    def advance(tag):
        I(f"s_cmp_lg_u32 s{sR}, 0")
        I(f"s_cbranch_scc1 L3_cont{tag}")
        I(f"v_readfirstlane_b32 s42, v{VNEXT}")
        I(f"s_mov_b32 s{sD2}, 0")
        I(f"s_cmp_ge_u32 s42, {2*NODES}")
        I(f"s_cbranch_scc1 L3_adv_done{tag}")
        item_to_node(e, c, 42, sH, 43)
        b_wait(e, L, 43, R, VL16, tag)
        I(f"v_readlane_b32 s42, v{VINFO}, s43")
        I(f"s_lshl_b32 s43, s43, 16")
        I(f"s_or_b32 s{sBase}, s43, s{sH}")
        I(f"s_or_b32 s{sBase}, s{sBase}, 10")
        I(f"s_lshr_b32 s{sR}, s42, 16")
        I("s_and_b32 s42, s42, 0xffff")
        I(f"s_lshl_b32 s{sA}, s42, 4")
        I(f"s_branch L3_have{tag}")
        e.label(f"L3_cont{tag}")
        I(f"s_add_u32 s{sA}, s{sA}, 512")
        I(f"s_andn2_b32 s{sBase}, s{sBase}, 2")
        e.label(f"L3_have{tag}")
        I(f"v_add_u32 v{R}, s{sA}, v{VRAWC}")
        I(f"s_lshl_b32 s{sRem}, s{sR}, 4")
        I(f"ds_read_b128 v[{R}:{R+3}], v{R} offset:{RAW}")
        I(f"s_cmp_gt_u32 s{sR}, 32")
        I(f"s_cbranch_scc0 L3_lastst{tag}")
        I(f"s_mov_b32 s{sD2}, s{sBase}")
        I(f"s_sub_u32 s{sR}, s{sR}, 32")
        I(f"s_branch L3_adv_done{tag}")
        e.label(f"L3_lastst{tag}")
        I(f"s_cmp_le_u32 s{sR}, 16")
        I("s_cselect_b32 s42, 5, 4")
        I(f"s_or_b32 s{sD2}, s{sBase}, s42")
        I(f"s_mov_b32 s{sR}, 0")
        fetch_issue()
        e.label(f"L3_adv_done{tag}")
    def prep(p, tag):
        X = BUF[p]
        t = X
        I(f"v_cmp_gt_u32 vcc, s{sRem}, v{VRAWC}")
        I(f"v_lshrrev_b32 v{t+1}, 16, v{R+3}")
        I(f"v_lshlrev_b32 v{t+1}, 9, v{t+1}")
        I(f"v_cndmask_b32 v{t+1}, 2.0, v{t+1}, vcc")
        I(f"ds_write_b32 v{VOW}, v{t+1} offset:{OSC+128*p}")
        I(f"ds_read_b128 v[{BT}:{BT+3}], v{VOR} offset:{OSC+128*p}")
        I(f"ds_read_b128 v[{BT+4}:{BT+7}], v{VOR} offset:{OSC+128*p+16}")
        if not c.x_noexp:
            I(f"v_cndmask_b32 v{R}, 0, v{R}, vcc")
            I(f"v_cndmask_b32 v{R+1}, 0, v{R+1}, vcc")
            I(f"v_perm_b32 v{t+2}, v{R+2}, 1.0, v{VSELA}")
            I(f"v_perm_b32 v{t+3}, v{R+3}, v{R+2}, v{VSELB}")
            I(f"v_lshlrev_b32 v{t+5}, 16, v{R}")
            I(f"v_and_b32 v{t+6}, v{VMASK}, v{R}")
            I(f"v_lshlrev_b32 v{t+7}, 16, v{R+1}")
            I(f"v_and_b32 v{t+9}, v{VMASK}, v{R+1}")
            ea = (t+5, t+6, t+7, t+9)
            pr = (t+10, t+11, t+13, t+14, t+15, t+17, t+18, t+19)
            for k in range(4): I(f"v_mul_f32 v{pr[k]}, v{ea[k]}, v{t+2}")
            for k in range(4): I(f"v_mul_f32 v{pr[4+k]}, v{ea[k]}, v{t+3}")
            for k in range(4): I(f"v_cvt_pk_bf16_f32 v{R+k}, v{pr[2*k]}, v{pr[2*k+1]}")
        I(f"ds_write_b128 v{VSCRW}, v[{R}:{R+3}] offset:{1024*p}")
        I("s_waitcnt lgkmcnt(1)")
        so = '0' if c.x_samehalf else f"s{sH}"
        for i in range(4):
            I(f"v_add_u32 v{X+4*i}, v{BT+i}, v{VLOFF}")
        if not c.x_noload:
            for i in range(4):
                I(f"buffer_load_dwordx4 v[{X+4*i}:{X+4*i+3}], v{X+4*i}, s[4:7], {so} offen")
        I(f"s_bitcmp1_b32 s{sD2}, 0")
        I(f"s_cbranch_scc1 L3_half{tag}")
        for i in range(4, 8):
            I(f"v_add_u32 v{X+4*i}, v{BT+i}, v{VLOFF}")
        if not c.x_noload:
            for i in range(4, 8):
                I(f"buffer_load_dwordx4 v[{X+4*i}:{X+4*i+3}], v{X+4*i}, s[4:7], {so} offen")
        e.label(f"L3_half{tag}")
    def compute(p, half, first):
        X = BUF[p]
        nj = 2 if half else 4
        def perms(q):
            if c.x_noperm: return
            for jj in range(nj):
                I(f"v_perm_b32 v{BT+4*(q&1)+jj}, v{X+4*(2*jj+1)+q//2}, v{X+4*(2*jj)+q//2}, s{29 if q & 1 else 28}")
        def mf(q):
            if c.x_nomfma: return
            d = f"v[{ACC+4*q}:{ACC+4*q+3}]"
            b = BT + 4*(q&1)
            if half: I(f"v_mfma_f32_16x16x16_bf16 {d}, v[{A}:{A+1}], v[{b}:{b+1}], {'0' if first else d}")
            else: I(f"v_mfma_f32_16x16x32_bf16 {d}, v[{A}:{A+3}], v[{b}:{b+3}], {'0' if first else d}")
        perms(0)
        for q in range(8):
            if q < 7: perms(q + 1)
            mf(q)
    def epilogue(p):
        X = BUF[p]
        d = sD[p]
        I(f"s_and_b32 s42, s{d}, 256")
        I("s_lshl_b32 s42, s42, 5")
        I(f"s_add_u32 s42, s42, {WRAD}")
        I(f"v_add_u32 v{BT+4}, s42, v{VL16}")
        for q in range(8):
            I(f"ds_read_b128 v[{X+4*q}:{X+4*q+3}], v{BT+4} offset:{q*1024}")
        I(f"s_lshr_b32 s43, s{d}, 20")
        I("s_lshl_b32 s43, s43, 2")
        I(f"s_bitcmp1_b32 s{d}, 8")
        I(f"s_cbranch_scc0 L3_nowar{p}")
        I(f"v_mov_b32 v{BT+5}, s43")
        I("s_mov_b32 s45, 0")
        e.label(f"L3_war{p}")
        I(f"ds_read_b32 v{BT+4}, v{BT+5} offset:{GDONE}")
        I("s_waitcnt lgkmcnt(0)")
        I(f"v_readfirstlane_b32 s44, v{BT+4}")
        I("s_add_u32 s45, s45, 1")
        I("s_cmp_ge_u32 s44, 4")
        I(f"s_cbranch_scc1 L3_war_ok{p}")
        I("s_cmp_lt_u32 s45, 0x400000")
        I(f"s_cbranch_scc1 L3_war{p}")
        e.label(f"L3_war_ok{p}")
        I("s_add_u32 s43, s43, 16")
        e.label(f"L3_nowar{p}")
        I(f"s_lshr_b32 s44, s{d}, 12")
        I("s_and_b32 s44, s44, 0xf0")
        I(f"s_lshr_b32 s45, s{d}, 16")
        I("s_lshl_b32 s45, s45, 10")
        I(f"s_add_u32 s45, s45, {T}")
        I(f"v_xor_b32 v{BT+4}, s44, v{VL16}")
        I(f"v_add_u32 v{BT+4}, s45, v{BT+4}")
        I(f"v_mov_b32 v{BT+5}, s43")
        I("s_waitcnt lgkmcnt(0)")
        for q in range(8):
            I(f"v_mul_f32 v{X+4*q}, v{X+4*q}, v{ACC+4*q}")
        for dd in range(1, 4):
            for q in range(8):
                I(f"v_fmac_f32 v{X+4*q}, v{X+4*q+dd}, v{ACC+4*q+dd}")
        for k in range(4):
            I(f"v_cvt_pk_bf16_f32 v{BT+k}, v{X+8*k}, v{X+8*k+4}")
        I(f"ds_write_b128 v{BT+4}, v[{BT}:{BT+3}]")
        I("s_waitcnt lgkmcnt(0)")
        I("s_mov_b64 exec, 1")
        I(f"ds_inc_u32 v{BT+5}, v{VMASK} offset:{DONE}")
        I("s_mov_b64 exec, -1")

    I(f"s_mov_b32 s{sR}, 0")
    advance("i0")
    I(f"s_mov_b32 s{sD[0]}, s{sD2}")
    I(f"s_cmp_eq_u32 s{sD2}, 0")
    I("s_cbranch_scc1 L2_g_done")
    I("s_waitcnt lgkmcnt(0)")
    prep(0, "i0")
    advance("i1")
    I(f"s_mov_b32 s{sD[1]}, s{sD2}")
    I(f"s_cmp_eq_u32 s{sD2}, 0")
    I("s_cbranch_scc1 L3_top0")
    I("s_waitcnt lgkmcnt(0)")
    prep(1, "i1")
    for p in range(2):
        e.label(f"L3_top{p}")
        I(f"ds_read_b64_tr_b16 v[{A}:{A+1}], v{VTRA} offset:{1024*p}")
        I(f"ds_read_b64_tr_b16 v[{A+2}:{A+3}], v{VTRA} offset:{1024*p+512}")
        advance(str(p))
        o = sD[1-p]
        I(f"s_bitcmp1_b32 s{o}, 0")
        I(f"s_cbranch_scc1 L3_w4_{p}")
        I(f"s_cmp_eq_u32 s{o}, 0")
        I(f"s_cbranch_scc1 L3_w0_{p}")
        I("s_waitcnt vmcnt(8) lgkmcnt(0)")
        I(f"s_branch L3_wd_{p}")
        e.label(f"L3_w0_{p}")
        I("s_waitcnt vmcnt(0)")
        e.label(f"L3_w4_{p}")
        I("s_waitcnt vmcnt(4) lgkmcnt(0)")
        e.label(f"L3_wd_{p}")
        d = sD[p]
        I(f"s_bitcmp1_b32 s{d}, 0")
        I(f"s_cbranch_scc1 L3_ch_{p}")
        I(f"s_bitcmp1_b32 s{d}, 1")
        I(f"s_cbranch_scc1 L3_cff_{p}")
        compute(p, 0, 0)
        I(f"s_branch L3_cd_{p}")
        e.label(f"L3_cff_{p}")
        compute(p, 0, 1)
        I(f"s_branch L3_cd_{p}")
        e.label(f"L3_ch_{p}")
        I(f"s_bitcmp1_b32 s{d}, 1")
        I(f"s_cbranch_scc1 L3_chf_{p}")
        compute(p, 1, 0)
        I(f"s_branch L3_ep_{p}")
        e.label(f"L3_chf_{p}")
        compute(p, 1, 1)
        I(f"s_branch L3_ep_{p}")
        e.label(f"L3_cd_{p}")
        I(f"s_bitcmp1_b32 s{d}, 2")
        I(f"s_cbranch_scc0 L3_noep_{p}")
        e.label(f"L3_ep_{p}")
        epilogue(p)
        e.label(f"L3_noep_{p}")
        I(f"s_mov_b32 s{d}, s{sD2}")
        I(f"s_cmp_eq_u32 s{sD2}, 0")
        I(f"s_cbranch_scc1 L3_noprep_{p}")
        prep(p, str(p))
        e.label(f"L3_noprep_{p}")
        I(f"s_cmp_lg_u32 s{o}, 0")
        if p == 0:
            I("s_cbranch_scc0 L2_g_done")
        else:
            I("s_cbranch_scc1 L3_top0")

HEADER = """; equiformer tensor-product message passing, one persistent launch (250 workgroups, one per CU):
; (write-through stores, table entries tagged with a per-launch tag agreed through d_debug); phase 2 sorts a
"""

def generate(c):
    e = Emitter()
    e.raw('.amdgcn_target "amdgcn-amd-amdhsa--gfx950"')
    e.raw(".text")
    k = gen_main(e, c)
    head = HEADER + f"; @launch grid=(250,1,1) block=(1024,1,1) lds={c.lds}\n"
    tail = '.section .rodata,"a"\n.p2align 6\n' + kd(*k)
    return head + e.text() + tail

if __name__ == "__main__":
    c = Cfg()
    out = sys.argv[1]
    for kv in sys.argv[2:]:
        k, v = kv.split("=", 1)
        old = getattr(c, k)
        setattr(c, k, type(old)(int(v)) if isinstance(old, (bool, int)) else v.replace("+", " "))
    open(out, "w").write(generate(c))
```

```python
import sys
from emit import Emitter

N, E = 12500, 800000
NB, NODES = 250, 50
NCH, CH = 250, 3200
CSTRIDE = 58496
KEYOFF, PAYOFF, TABOFF = 0, 3200, 54400
HN = 25
WSBYTES = NCH * CSTRIDE
KNAME = "gather_scatter__tensor_product_equiv_equiformer__graph_kernel"

class Cfg:
    st_flags = "sc1"
    ld_flags = ""
    rec_flags = "sc1"
    tab_flags = "sc1"
    out_flags = ""
    pfx_lines = 0
    pfx_pos = "store"
    pf2b_lines = 0
    pf2b_tile = 2
    stamps = False
    cap = 1888
    x_noperm = 0
    x_noexp = 0
    x_nomfma = 0
    x_noload = 0
    x_samehalf = 0
    prio = 0
    codepf = 0
    sleep = 32
    psleep = 4
    probe = ""
    poll_all = 0
    bdelay = -1
    keyfirst = 1
    x_flags = ""
    x_nob = 0
    bsleep = 0
    reorder = 1
    splitw = 1
    ppipe = 0
    late_b = 1
    dbuf = 0
    wpos = 0
    tagpos = 0

def srd(e, d, b, nbytes):
    e.I(f"s_mov_b32 s{d}, s{b}")
    e.I(f"s_mov_b32 s{d+1}, s{b+1}")
    e.I(f"s_mov_b32 s{d+2}, {nbytes}")
    e.I(f"s_mov_b32 s{d+3}, 0x20000")

def scan64(e, v):
    for sh in (1, 2, 4, 8):
        e.I(f"v_add_u32_dpp v{v}, v{v}, v{v} row_shr:{sh} row_mask:0xf bank_mask:0xf")
    e.I(f"v_add_u32_dpp v{v}, v{v}, v{v} row_bcast:15 row_mask:0xa bank_mask:0xf")
    e.I(f"v_add_u32_dpp v{v}, v{v}, v{v} row_bcast:31 row_mask:0xc bank_mask:0xf")

def prefetch_x(e, nlines, vt, vtid, nthreads, slice_s, half, srdx):
    if nlines <= 0: return 0
    e.I(f"s_mul_i32 s46, s{slice_s}, 782")
    e.I(f"s_mov_b32 s47, {nlines}")
    it = (nlines + nthreads - 1) // nthreads
    for k in range(it):
        e.I(f"v_add_u32 v{vt}, {k*nthreads}, v{vtid}")
        e.I(f"v_cmp_gt_u32 vcc, s47, v{vt}")
        e.I(f"v_add_u32 v{vt}, s46, v{vt}")
        e.I(f"v_and_b32 v{vt+1}, 1, v{vt}")
        e.I(f"v_lshrrev_b32 v{vt}, 1, v{vt}")
        e.I(f"v_lshlrev_b32 v{vt}, 9, v{vt}")
        e.I(f"v_lshl_add_u32 v{vt}, v{vt+1}, 7, v{vt}")
        e.I(f"v_cndmask_b32 v{vt}, 2.0, v{vt}, vcc")
        e.I(f"buffer_load_dword v{vt+2}, v{vt}, s[{srdx}:{srdx+3}], 0 offen offset:{half*256}")
    return it

STV, TIDV = 127, 126
def stamp(e, c, slot):
    if not c.stamps: return
    e.I("s_memrealtime s[90:91]")
    e.I("s_waitcnt lgkmcnt(0)")
    e.I(f"v_writelane_b32 v{STV}, s90, {slot}")

def cstamp(e, c, slot):
    if not c.stamps: return
    e.I("s_memtime s[90:91]")
    e.I("s_waitcnt lgkmcnt(0)")
    e.I(f"v_writelane_b32 v{STV}, s90, {slot}")

def stamp_store(e, c, vtmp):
    if not c.stamps: return
    e.I(f"v_lshrrev_b32 v{vtmp}, 6, v{TIDV}")
    e.I(f"s_lshl_b32 s90, s2, 4")
    e.I(f"v_add_u32 v{vtmp}, s90, v{vtmp}")
    e.I(f"v_lshlrev_b32 v{vtmp}, 7, v{vtmp}")
    e.I(f"v_and_b32 v{vtmp+1}, 63, v{TIDV}")
    e.I(f"v_lshl_add_u32 v{vtmp}, v{vtmp+1}, 2, v{vtmp}")
    e.I(f"v_cmp_gt_u32 vcc, 32, v{vtmp+1}")
    e.I(f"v_cndmask_b32 v{vtmp}, 2.0, v{vtmp}, vcc")
    e.I(f"s_mov_b32 s90, {16 << 20}")
    e.I(f"buffer_store_dword v{STV}, v{vtmp}, s[8:11], s90 offen")

def kernel_header(e, name):
    e.raw(f".globl {name}")
    e.raw(".p2align 8")
    e.raw(f".type {name},@function")
    e.raw(f"{name}:")
    e.hist = []

def kd(name, nv, ns):
    return f""".amdhsa_kernel {name}
  .amdhsa_next_free_vgpr {nv}
  .amdhsa_next_free_sgpr {ns}
  .amdhsa_accum_offset {(nv+3)//4*4}
  .amdhsa_group_segment_fixed_size 0
  .amdhsa_kernarg_size 96
  .amdhsa_user_sgpr_count 2
  .amdhsa_user_sgpr_kernarg_segment_ptr 1
  .amdhsa_system_sgpr_workgroup_id_x 1
  .amdhsa_float_denorm_mode_32 3
.end_amdhsa_kernel
"""

def path_of(jp, blk):
    if blk == 0: return (0, 0, 1) if jp == 0 else (2, jp, 1)
    k = blk - 1
    if jp == 0: return (3, 1 + k, 1)
    j = jp - 1
    if j == k: return (1, 0, 1)
    i = 3 - j - k
    return (4, 1 + i, 1 if k == (j + 1) % 3 else -1)

def gen_main(e, c):
    CAP = c.cap
    BOFF = CAP + 64
    HIST, HIST2, CUR2, CNT = 0, 256, 512, 768
    NEXT, DONE, GDONE, BSYNC, BREADY, TOTB = CNT, CNT + 16, CNT + 64, CNT + 80, CNT + 84, CNT + 88
    HISTB, HIST2B, CUR2B, INFO, NONCE = 1024, 1280, 1536, 1792, 2048
    RAW = 2176
    T = (RAW + 2 * BOFF * 16 + 255) // 256 * 256
    WRAD = T + NODES * 1024
    SCR = WRAD + 16384
    H1 = WRAD
    SSTR, PL1, OSC = 2368, 1056, 2080
    lds = max(SCR + 12 * SSTR, T + 64 * 1024)
    assert lds <= 163840 and 2 * BOFF >= 3200 + 64, lds
    c.lds = lds
    kernel_header(e, KNAME)
    I = e.I
    wsbytes = (32 << 20) if c.stamps else WSBYTES
    I("s_cmp_ge_u32 s2, 250")
    I("s_cbranch_scc1 L_end")
    if c.stamps:
        I(f"v_mov_b32 v{STV}, 0")
        I(f"v_mov_b32 v{TIDV}, v0")
    stamp(e, c, 0)
    cstamp(e, c, 26)
    I("s_load_dwordx8 s[32:39], s[0:1], 0")
    I("s_load_dwordx8 s[40:47], s[0:1], 32")
    I("s_load_dwordx4 s[80:83], s[0:1], 72")
    I("s_load_dwordx2 s[84:85], s[0:1], 88")
    I("v_lshlrev_b32 v1, 4, v0")
    I("v_lshlrev_b32 v2, 5, v0")
    I("v_mul_u32_u24 v3, 24, v0")
    I("v_readfirstlane_b32 s21, v0")
    I("s_mul_i32 s48, s2, 12800")
    I("s_mul_i32 s49, s2, 25600")
    I("s_mul_i32 s50, s2, 19200")
    I("s_lshr_b32 s21, s21, 6")
    I("s_movk_i32 s51, 800")
    I("v_cmp_gt_u32 vcc, s51, v0")
    I("s_waitcnt lgkmcnt(0)")
    srd(e, 64, 40, E * 4)
    srd(e, 60, 38, E * 4)
    srd(e, 56, 36, E * 8)
    srd(e, 52, 34, E * 6)
    I("s_cmp_ge_u32 s21, 13")
    I("s_cbranch_scc1 L1_setup")
    I("s_and_saveexec_b64 s[26:27], vcc")
    lf = c.ld_flags
    I(f"buffer_load_dwordx4 v[4:7], v1, s[64:67], s48 offen {lf}")
    I(f"buffer_load_dwordx4 v[8:11], v1, s[60:63], s48 offen {lf}")
    I(f"buffer_load_dwordx4 v[12:15], v2, s[56:59], s49 offen {lf}")
    I(f"buffer_load_dwordx4 v[16:19], v2, s[56:59], s49 offen offset:16 {lf}")
    I(f"buffer_load_dwordx4 v[20:23], v3, s[52:55], s50 offen {lf}")
    I(f"buffer_load_dwordx2 v[24:25], v3, s[52:55], s50 offen offset:16 {lf}")
    I("s_mov_b64 exec, -1")
    e.label("L1_setup")
    srd(e, 4, 32, N * 512)
    srd(e, 8, 84, wsbytes)
    srd(e, 12, 80, N * 512)
    srd(e, 16, 42, 2560)
    srd(e, 68, 44, 16384)
    srd(e, 72, 46, 24576)
    srd(e, 76, 82, 256)
    I("s_and_b32 s20, s2, 7")
    I("s_min_u32 s22, s20, 2")
    I("s_mul_i32 s20, s20, 31")
    I("s_add_u32 s20, s20, s22")
    I("s_lshr_b32 s31, s2, 3")
    I("s_add_u32 s20, s20, s31")
    I("s_mov_b32 s22, 0")
    I("s_movk_i32 s23, 250")
    I("s_mov_b32 s24, 1")
    I("s_mov_b32 s28, 0x05040100")
    I("s_mov_b32 s29, 0x07060302")
    I("s_mov_b32 s30, 0xffff0000")
    I(f"s_mul_i32 s51, s2, {CSTRIDE}")
    I("s_cmp_ge_u32 s21, 13")
    I("s_cbranch_scc1 L1_aux")
    I(f"s_mov_b32 s46, {H1}")
    I("v_lshl_add_u32 v40, v0, 2, s46")
    I("v_mov_b32 v41, 0")
    I("v_mov_b32 v42, 1")
    I("s_mov_b32 s48, -25")
    I(f"s_movk_i32 s49, {RAW+PAYOFF}")
    I("s_mov_b32 s50, 0x05040302")
    I("s_movk_i32 s47, 249")
    I("s_cmp_ge_u32 s21, 8")
    I("s_cbranch_scc1 L1_nz")
    I("ds_write_b32 v40, v41")
    I("s_waitcnt lgkmcnt(0)")
    e.label("L1_nz")
    I("s_barrier")
    I("s_and_b64 exec, exec, vcc")
    I("s_waitcnt vmcnt(5)")
    stamp(e, c, 1)
    for i in range(4):
        I(f"v_mul_u32_u24 v{44+i}, 0x147b, v{4+i}")
    for i in range(4):
        I(f"v_lshrrev_b32 v{44+i}, 17, v{44+i}")
    for i in range(4):
        I(f"v_cmp_lt_u32 s[{32+2*i}:{33+2*i}], s47, v{44+i}")
    for i in range(4):
        I(f"v_cndmask_b32 v{36+i}, 0, 1, s[{32+2*i}:{33+2*i}]")
    for i in range(4):
        I(f"v_sub_u32 v{48+i}, v{44+i}, v{36+i}")
        I(f"v_mad_u32_u24 v{44+i}, v{36+i}, 6, v{44+i}")
    for i in range(4):
        I(f"v_mad_i32_i24 v{4+i}, v{48+i}, s48, v{4+i}")
        I(f"v_lshl_add_u32 v{44+i}, v{44+i}, 2, s46")
    for i in range(4):
        I(f"ds_add_rtn_u32 v{36+i}, v{44+i}, v42")
    I("s_waitcnt lgkmcnt(0)")
    I("s_barrier")
    I("s_cmp_lg_u32 s21, 0")
    I("s_cbranch_scc1 L1_noscan")
    I("v_add_u32 v60, s46, v2")
    I("ds_read_b128 v[52:55], v60")
    I("ds_read_b128 v[56:59], v60 offset:16")
    I("s_waitcnt lgkmcnt(0)")
    I("v_mov_b32 v64, 0")
    I("v_mov_b32 v65, v52")
    for k in range(2, 8):
        I(f"v_add_u32 v{64+k}, v{63+k}, v{51+k}")
    I("v_add_u32 v61, v71, v59")
    I("v_mov_b32 v62, v61")
    scan64(e, 62)
    I("v_sub_u32 v62, v62, v61")
    for k in range(8):
        I(f"v_add_u32 v{64+k}, v{64+k}, v62")
    I("ds_write_b128 v60, v[64:67] offset:2048")
    I("ds_write_b128 v60, v[68:71] offset:2064")
    for k in range(8):
        I(f"v_lshl_or_b32 v{52+k}, v{52+k}, 12, v{64+k}")
    I("v_readlane_b32 s88, v62, 32")
    I("s_waitcnt lgkmcnt(0)")
    e.label("L1_noscan")
    I("s_barrier")
    for i in range(4):
        I(f"ds_read_b32 v{44+i}, v{44+i} offset:2048")
    I("s_waitcnt lgkmcnt(0)")
    for i in range(4):
        I(f"v_add_u32 v{36+i}, v{36+i}, v{44+i}")
        I(f"v_lshl_add_u32 v{44+i}, v{36+i}, 4, s49")
    for i in range(4):
        I(f"ds_write_b8 v{36+i}, v{4+i} offset:{RAW+KEYOFF}")
    if c.splitw:
        I("s_waitcnt vmcnt(2)")
        for i in range(4):
            I(f"ds_write_b64 v{44+i}, v[{12+2*i}:{13+2*i}]")
        I("s_waitcnt vmcnt(1)")
        I("v_mov_b32 v28, v20")
        I("v_perm_b32 v29, v8, v21, s28")
        I("ds_write_b64 v44, v[28:29] offset:8")
        I("v_alignbit_b32 v30, v22, v21, 16")
        I("v_perm_b32 v31, v9, v22, s50")
        I("ds_write_b64 v45, v[30:31] offset:8")
        I("s_waitcnt vmcnt(0)")
        stamp(e, c, 2)
        I("v_mov_b32 v32, v23")
        I("v_perm_b32 v33, v10, v24, s28")
        I("ds_write_b64 v46, v[32:33] offset:8")
        I("v_alignbit_b32 v34, v25, v24, 16")
        I("v_perm_b32 v35, v11, v25, s50")
        I("ds_write_b64 v47, v[34:35] offset:8")
    else:
        I("s_waitcnt vmcnt(0)")
        stamp(e, c, 2)
        I("v_mov_b32 v28, v20")
        I("v_perm_b32 v29, v8, v21, s28")
        I("ds_write2_b64 v44, v[12:13], v[28:29] offset0:0 offset1:1")
        I("v_alignbit_b32 v30, v22, v21, 16")
        I("v_perm_b32 v31, v9, v22, s50")
        I("ds_write2_b64 v45, v[14:15], v[30:31] offset0:0 offset1:1")
        I("v_mov_b32 v32, v23")
        I("v_perm_b32 v33, v10, v24, s28")
        I("ds_write2_b64 v46, v[16:17], v[32:33] offset0:0 offset1:1")
        I("v_alignbit_b32 v34, v25, v24, 16")
        I("v_perm_b32 v35, v11, v25, s50")
        I("ds_write2_b64 v47, v[18:19], v[34:35] offset0:0 offset1:1")
    I("s_mov_b64 exec, -1")
    I("s_waitcnt lgkmcnt(0)")
    I("s_branch L1_copy")
    e.label("L1_aux")
    I("v_subrev_u32 v64, 832, v0")
    I("v_lshlrev_b32 v65, 4, v64")
    if c.codepf:
        I("s_getpc_b64 s[40:41]")
        I(f"s_mov_b32 s42, {c.codepf*1024}")
        I("s_mov_b32 s43, 0x20000")
        I("v_lshlrev_b32 v72, 7, v64")
        I("buffer_load_dword v73, v72, s[40:43], 0 offen")
    I("s_cmp_lg_u32 s21, 15")
    I("s_cbranch_scc1 L1_notag")
    I("s_cmp_lg_u32 s2, 0")
    I("s_cbranch_scc1 L1_notag")
    I("s_memrealtime s[44:45]")
    I("s_waitcnt lgkmcnt(0)")
    I("s_and_b32 s45, s45, 0x7f")
    I("s_or_b32 s45, s45, 0x80")
    I("s_lshl_b32 s45, s45, 24")
    I("v_mov_b32 v68, s44")
    I("v_mov_b32 v69, s45")
    I("s_mov_b64 exec, 1")
    I("buffer_store_dwordx2 v[68:69], off, s[76:79], 0 sc1")
    I("s_mov_b64 exec, -1")
    e.label("L1_notag")
    I("s_cmp_lg_u32 s21, 13")
    I("s_cbranch_scc1 L1_nozero")
    for k in range(4): I(f"v_mov_b32 v{4+k}, 0")
    I("ds_write_b128 v65, v[4:7]")
    I("ds_write_b128 v65, v[4:7] offset:1024")
    e.label("L1_nozero")
    if c.pfx_pos == "start": prefetch_x(e, c.pfx_lines, 60, 64, 192, 31, 0, 4)
    I("s_barrier"); I("s_barrier"); I("s_barrier")
    I("s_cmp_lg_u32 s21, 15")
    I("s_cbranch_scc1 L1_notag2")
    I("s_mov_b32 s44, 0")
    e.label("L1_tagpoll")
    I("buffer_load_dwordx2 v[68:69], off, s[76:79], 0 sc1")
    I("s_add_u32 s44, s44, 1")
    I("s_waitcnt vmcnt(0)")
    I("v_readfirstlane_b32 s45, v69")
    e.nop(1)
    I("s_cmp_lg_u32 s45, 0")
    I("s_cbranch_scc1 L1_tagok")
    I("s_cmp_lt_u32 s44, 0x100000")
    I("s_cbranch_scc1 L1_tagpoll")
    e.label("L1_tagok")
    I("v_mov_b32 v70, 0")
    I("s_mov_b64 exec, 1")
    I(f"ds_write_b64 v70, v[68:69] offset:{NONCE}")
    I("s_mov_b64 exec, -1")
    e.label("L1_notag2")
    for k in range(8):
        I(f"s_movk_i32 s46, {k*3072}")
        I(f"buffer_load_dwordx4 v[{28+4*k}:{31+4*k}], v65, s[72:75], s46 offen")
    for k in range(6):
        I(f"s_movk_i32 s46, {k*3072}")
        I(f"buffer_load_dwordx4 v[{72+4*k}:{75+4*k}], v65, s[68:71], s46 offen")
    if c.pfx_pos == "sort": prefetch_x(e, c.pfx_lines, 60, 64, 192, 31, 0, 4)
    I("s_waitcnt lgkmcnt(0)")
    e.flush()
    e.label("L1_copy")
    I("s_barrier")
    stamp(e, c, 3)
    I(f"ds_read_b128 v[20:23], v1 offset:{RAW+49152}")
    I(f"ds_read_b128 v[8:11], v1 offset:{RAW}")
    I(f"ds_read_b128 v[12:15], v1 offset:{RAW+16384}")
    I(f"ds_read_b128 v[16:19], v1 offset:{RAW+32768}")
    I("v_mov_b32 v25, 0")
    I(f"ds_read_b64 v[26:27], v25 offset:{NONCE}")
    I("v_add_u32 v2, 16384, v1")
    I("v_add_u32 v3, 32768, v1")
    I("v_add_u32 v24, 49152, v1")
    I("s_movk_i32 s48, 328")
    I("v_cmp_gt_u32 vcc, s48, v0")
    sf = c.st_flags
    def st_b(tag):
        if c.x_nob: return
        if c.bsleep and tag == "g": I(f"s_sleep {c.bsleep}")
        I(f"buffer_store_dwordx4 v[16:19], v3, s[8:11], s51 offen {sf}")
        I("s_mov_b64 exec, s[26:27]")
        I(f"s_cbranch_execz L1_st_skip{tag}")
        I(f"buffer_store_dwordx4 v[20:23], v24, s[8:11], s51 offen {sf}")
        e.label(f"L1_st_skip{tag}")
        I("s_mov_b64 exec, -1")
    if c.late_b:
        I("s_mov_b64 s[26:27], vcc")
        I("s_waitcnt lgkmcnt(3)")
        I(f"buffer_store_dwordx4 v[8:11], v1, s[8:11], s51 offen {sf}")
        I("s_waitcnt lgkmcnt(2)")
        I(f"buffer_store_dwordx4 v[12:15], v2, s[8:11], s51 offen {sf}")
        I("s_waitcnt lgkmcnt(0)")
    else:
        I("s_and_saveexec_b64 s[26:27], vcc")
        I("s_cbranch_execz L1_st_skip")
        I("s_waitcnt lgkmcnt(4)")
        I(f"buffer_store_dwordx4 v[20:23], v24, s[8:11], s51 offen {sf}")
        e.label("L1_st_skip")
        I("s_mov_b64 exec, -1")
        I("s_waitcnt lgkmcnt(3)")
        I(f"buffer_store_dwordx4 v[8:11], v1, s[8:11], s51 offen {sf}")
        I("s_waitcnt lgkmcnt(2)")
        I(f"buffer_store_dwordx4 v[12:15], v2, s[8:11], s51 offen {sf}")
        I("s_waitcnt lgkmcnt(1)")
        I(f"buffer_store_dwordx4 v[16:19], v3, s[8:11], s51 offen {sf}")
        I("s_waitcnt lgkmcnt(0)")
    I("v_readfirstlane_b32 s86, v26")
    I("v_readfirstlane_b32 s87, v27")
    stamp(e, c, 4)
    I("s_cmp_lt_u32 s21, 4")
    e.branch("s_cbranch_scc1 L2_gemm")

    npost = 0
    if c.pfx_pos == "post" and c.pfx_lines:
        I("v_subrev_u32 v99, 256, v0")
        npost = prefetch_x(e, c.pfx_lines, 96, 99, 768, 31, 0, 4)
    if c.dbuf:
        VINFO, VNEXT, VLOFF, VMASK, VOW, VOR, VSCRW, VTRA, VRAWC, VL16, VSELA, VSELB = range(108, 120)
        VLANE, VT0, VT1, VONE, VJ, VCH = 120, 121, 122, 123, 124, 125
        VSEG, VZERO, VWR = 107, 106, None
        I(f"v_and_b32 v{VLANE}, 63, v0")
        I(f"v_mov_b32 v{VMASK}, s30")
        I(f"v_and_b32 v{VT0}, 15, v{VLANE}")
        I(f"v_lshlrev_b32 v{VLOFF}, 4, v{VT0}")
        I(f"v_lshrrev_b32 v{VT1}, 4, v{VLANE}")
        I(f"v_lshlrev_b32 v{VL16}, 4, v{VLANE}")
        I("s_sub_u32 s43, s21, 4")
        I(f"s_mul_i32 s43, s43, {SSTR}")
        I(f"s_add_u32 s43, s43, {SCR}")
        I(f"v_add_u32 v{VSCRW}, s43, v{VL16}")
        I(f"v_lshlrev_b32 v{VOR}, 5, v{VT1}")
        I(f"v_add_u32 v{VOR}, s43, v{VOR}")
        I(f"v_bfe_u32 v{VT0}, v{VLANE}, 2, 2")
        I(f"v_lshl_add_u32 v{VTRA}, v{VT0}, 7, v{VOR}")
        I(f"v_and_b32 v{VT0}, 3, v{VLANE}")
        I(f"v_lshl_add_u32 v{VTRA}, v{VT0}, 3, v{VTRA}")
        I(f"v_lshrrev_b32 v{VT0}, 1, v{VLANE}")
        I(f"v_lshlrev_b32 v{VRAWC}, 4, v{VT0}")
        I(f"v_and_b32 v{VT1}, 3, v{VT0}")
        I(f"v_lshrrev_b32 v{VT0}, 2, v{VT0}")
        I(f"v_lshl_add_u32 v{VOW}, v{VT1}, 3, v{VT0}")
        I(f"v_lshlrev_b32 v{VOW}, 2, v{VOW}")
        I(f"v_add_u32 v{VOW}, s43, v{VOW}")
        I(f"v_and_b32 v{VT0}, 1, v{VLANE}")
        I(f"v_cmp_eq_u32 vcc, 1, v{VT0}")
        I(f"v_mov_b32 v{VSELA}, 0x03020100")
        I(f"v_mov_b32 v{VT0}, 0x07060c0c")
        I(f"v_cndmask_b32 v{VSELA}, v{VSELA}, v{VT0}, vcc")
        I(f"v_mov_b32 v{VSELB}, 0x01000c0c")
        I(f"v_mov_b32 v{VT0}, 0x05040c0c")
        I(f"v_cndmask_b32 v{VSELB}, v{VSELB}, v{VT0}, vcc")
    else:
        VLANE, VINFO, VNEXT = 108, 109, 110
        VLOFF, VMASK, VOW, VOR, VSCRW, VTRA, VWR, VL16 = 111, 112, 113, 114, 115, 116, 117, 118
        VT0, VT1, VONE, VZERO = 119, 120, 121, 122
        VJ, VCH, VSEG = 123, 124, 125
        I(f"v_and_b32 v{VLANE}, 63, v0")
        I(f"v_subrev_u32 v{VT0}, 256, v0")
        I(f"v_and_b32 v{VJ}, 15, v{VT0}")
        I(f"v_lshrrev_b32 v{VSEG}, 4, v{VT0}")
        I(f"s_mov_b32 s42, {CSTRIDE}")
        I(f"v_mul_u32_u24 v{VCH}, s42, v{VSEG}")
        I(f"v_mov_b32 v{VONE}, 1")
        I(f"v_mov_b32 v{VZERO}, 0")
        I(f"v_mov_b32 v{VMASK}, s30")
        I(f"v_and_b32 v{VT0}, 15, v{VLANE}")
        I(f"v_lshlrev_b32 v{VLOFF}, 4, v{VT0}")
        I(f"v_lshrrev_b32 v{VT1}, 4, v{VLANE}")
        I(f"v_lshlrev_b32 v{VL16}, 4, v{VLANE}")
        I("s_sub_u32 s43, s21, 4")
        I(f"s_mul_i32 s43, s43, {SSTR}")
        I(f"s_add_u32 s43, s43, {SCR}")
        I(f"v_add_u32 v{VSCRW}, s43, v{VL16}")
        I(f"v_lshlrev_b32 v{VOR}, 5, v{VT1}")
        I(f"v_add_u32 v{VOR}, s43, v{VOR}")
        I(f"v_lshlrev_b32 v{VTRA}, 4, v{VT1}")
        I(f"v_bfe_u32 v{VT1}, v{VLANE}, 2, 2")
        I(f"v_lshl_add_u32 v{VTRA}, v{VT1}, 6, v{VTRA}")
        I(f"v_and_b32 v{VT1}, 1, v{VLANE}")
        I(f"v_lshl_add_u32 v{VTRA}, v{VT1}, 3, v{VTRA}")
        I(f"v_bfe_u32 v{VT1}, v{VLANE}, 1, 1")
        I(f"v_mul_u32_u24 v{VT1}, {PL1}, v{VT1}")
        I(f"v_add3_u32 v{VTRA}, v{VTRA}, v{VT1}, s43")
        I(f"v_and_b32 v{VOW}, 32, v{VLANE}")
        I(f"v_and_b32 v{VT1}, 3, v{VLANE}")
        I(f"v_lshl_add_u32 v{VOW}, v{VT1}, 3, v{VOW}")
        I(f"v_bfe_u32 v{VT1}, v{VLANE}, 2, 3")
        I(f"v_add_u32 v{VOW}, v{VOW}, v{VT1}")
        I(f"v_lshlrev_b32 v{VOW}, 2, v{VOW}")
        I(f"v_add_u32 v{VOW}, s43, v{VOW}")
        I(f"v_add_u32 v{VWR}, {WRAD}, v{VL16}")
    NP, NW = 3, 3
    for p in range(NP):
        I(f"s_mov_b32 s{74+p}, {96*p*CSTRIDE+PAYOFF}")
        I(f"s_mov_b32 s{80+p}, {96*p*CSTRIDE+KEYOFF}")
    I("s_mov_b32 s88, s20")
    I("s_mov_b32 s89, 0")
    I(f"s_movk_i32 s48, {HN}")
    I(f"s_waitcnt vmcnt({(0 if c.late_b else 1)+npost})")
    stamp(e, c, 6)
    I("s_barrier")
    if c.late_b: st_b("g")
    I("s_cmp_lt_u32 s21, 13")
    I("s_cbranch_scc1 L2_noW")
    I(f"v_add_u32 v65, {T}, v65")
    for k in range(8):
        I(f"ds_write_b128 v65, v[{28+4*k}:{31+4*k}] offset:{16384 + k*3072}")
    for k in range(5):
        I(f"ds_write_b128 v65, v[{72+4*k}:{75+4*k}] offset:{k*3072}")
    I("s_cmp_lg_u32 s21, 13")
    I("s_cbranch_scc1 L2_noW")
    I(f"ds_write_b128 v65, v[92:95] offset:{5*3072}")
    e.label("L2_noW")
    I("s_waitcnt lgkmcnt(0)")
    I(f"s_waitcnt vmcnt({npost})")
    stamp(e, c, 5)
    I("s_barrier")
    PAY, KEY, RNK, TAB, KAD, PAD, X = 0, 36, 45, 54, 60, 63, 68
    MSK = 50
    rf = c.rec_flags
    e.label("L2_g_round")
    I(f"v_lshrrev_b32 v{VLANE}, 4, v{VL16}")
    I("s_sub_u32 s42, s21, 4")
    I("s_lshl_b32 s42, s42, 3")
    I(f"v_and_b32 v{VJ}, 7, v{VLANE}")
    I(f"v_lshrrev_b32 v{VSEG}, 3, v{VLANE}")
    I(f"v_add_u32 v{VSEG}, s42, v{VSEG}")
    I(f"s_mov_b32 s42, {CSTRIDE}")
    I(f"v_mul_u32_u24 v{VCH}, s42, v{VSEG}")
    I(f"v_mov_b32 v{VONE}, 1")
    I(f"v_cmp_gt_u32 s[46:47], {NCH-192}, v{VSEG}")
    I("s_lshl_b32 s43, s88, 3")
    I(f"s_add_u32 s43, s43, {TABOFF}")
    I("s_mov_b32 s44, 0")
    def tagdiff(dst, reg, tmp):
        I(f"v_xor_b32 v{dst}, s87, v{reg}")
        I(f"v_lshrrev_b32 v{dst}, 24, v{dst}")
        I(f"v_xor_b32 v{tmp}, s86, v{reg+1}")
        I(f"v_or_b32 v{dst}, v{dst}, v{tmp}")
    if c.ppipe:
        TAB2 = 0
        def tab_issue(r, tag):
            I(f"v_mov_b32 v{r+4}, s87")
            I(f"v_mov_b32 v{r+5}, s86")
            I("s_mov_b32 s42, s43")
            for p in range(NP):
                if p: I(f"s_add_u32 s42, s42, {96*CSTRIDE}")
                if p == NP - 1:
                    I(f"v_cndmask_b32 v{X+3}, 2.0, v{VCH}, s[46:47]")
                    I(f"buffer_load_dwordx2 v[{r+6}:{r+7}], v{X+3}, s[8:11], s42 offen {c.tab_flags}")
                else:
                    I(f"buffer_load_dwordx2 v[{r+2*p}:{r+2*p+1}], v{VCH}, s[8:11], s42 offen {c.tab_flags}")
        def tab_check(r, ok):
            I(f"v_cndmask_b32 v{r+4}, v{r+4}, v{r+6}, s[46:47]")
            I(f"v_cndmask_b32 v{r+5}, v{r+5}, v{r+7}, s[46:47]")
            tagdiff(X, r, X+1)
            for p in range(1, NP):
                tagdiff(X+2, r+2*p, X+1)
                I(f"v_or_b32 v{X}, v{X}, v{X+2}")
            I(f"v_cmp_ne_u32 vcc, 0, v{X}")
            I("s_add_u32 s44, s44, 1")
            e.nop(2)
            I("s_cmp_eq_u64 vcc, 0")
            I(f"s_cbranch_scc1 {ok}")
        tab_issue(8, "a")
        I(f"s_sleep {c.psleep}")
        e.label("L2_poll1")
        tab_issue(16, "b")
        I("s_waitcnt vmcnt(3)")
        tab_check(8, "L2_pollA_ok")
        tab_issue(8, "c")
        I("s_waitcnt vmcnt(3)")
        tab_check(16, "L2_pollB2_ok")
        I("s_cmp_lt_u32 s44, 0x100000")
        I("s_cbranch_scc1 L2_poll1")
        e.label("L2_pollB2_ok")
        for k in range(6): I(f"v_mov_b32 v{TAB+k}, v{16+k}")
        I("s_branch L2_poll1_ok")
        e.label("L2_pollA_ok")
        for k in range(6): I(f"v_mov_b32 v{TAB+k}, v{8+k}")
    else:
        e.label("L2_poll1")
        I(f"v_mov_b32 v{TAB+4}, s87")
        I(f"v_mov_b32 v{TAB+5}, s86")
        I("s_mov_b32 s42, s43")
        for p in range(NP):
            if p: I(f"s_add_u32 s42, s42, {96*CSTRIDE}")
            if p == NP - 1:
                I("s_mov_b64 exec, s[46:47]")
                I("s_cbranch_execz L2_notabl")
            I(f"buffer_load_dwordx2 v[{TAB+2*p}:{TAB+2*p+1}], v{VCH}, s[8:11], s42 offen {c.tab_flags}")
        e.label("L2_notabl")
        I("s_mov_b64 exec, -1")
        I("s_waitcnt vmcnt(0)")
        tagdiff(X, TAB, X+1)
        for p in range(1, NP):
            tagdiff(X+2, TAB+2*p, X+1)
            I(f"v_or_b32 v{X}, v{X}, v{X+2}")
        I(f"v_cmp_ne_u32 vcc, 0, v{X}")
        I("s_add_u32 s44, s44, 1")
        e.nop(2)
        I("s_cmp_eq_u64 vcc, 0")
        I("s_cbranch_scc1 L2_poll1_ok")
        I(f"s_sleep {c.psleep}")
        I("s_cmp_lt_u32 s44, 0x100000")
        I("s_cbranch_scc1 L2_poll1")
    e.label("L2_poll1_ok")
    stamp(e, c, 7)
    I(f"v_add_u32 v{X+1}, 8, v{VJ}")
    I(f"v_add_u32 v{X+2}, 16, v{VJ}")
    def msk(p, w): return f"s[{MSK+6*p+2*w}:{MSK+6*p+2*w+1}]"
    for p in range(NP):
        cnt = TAB + 2*p
        I(f"s_sub_u32 s42, {96*p}, s22")
        I(f"v_add_u32 v{X}, s42, v{VSEG}")
        I(f"v_cmp_gt_u32 vcc, s23, v{X}")
        I(f"v_and_b32 v{KAD+p}, 0xfff, v{cnt}")
        I(f"v_bfe_u32 v{cnt}, v{cnt}, 12, 12")
        I(f"v_add_u32 v{KAD+p}, v{KAD+p}, v{VJ}")
        I(f"v_cndmask_b32 v{cnt}, 0, v{cnt}, vcc")
        I(f"v_lshl_add_u32 v{PAD+p}, v{KAD+p}, 4, v{VCH}")
        I(f"v_add_u32 v{KAD+p}, v{KAD+p}, v{VCH}")
        I(f"v_cmp_lt_u32 {msk(p,0)}, v{VJ}, v{cnt}")
        I(f"v_cmp_lt_u32 {msk(p,1)}, v{X+1}, v{cnt}")
        I(f"v_cmp_lt_u32 {msk(p,2)}, v{X+2}, v{cnt}")
        I(f"v_cndmask_b32 v{PAD+p}, 2.0, v{PAD+p}, {msk(p,0)}")
    e.flush()
    def pay(p, w): return f"v[{PAY+12*p+4*w}:{PAY+12*p+4*w+3}]"
    if c.keyfirst:
        for w in range(NW):
            for p in range(NP):
                I(f"s_mov_b64 exec, {msk(p,w)}")
                I(f"s_cbranch_execz L2_kskip{p}{w}")
                I(f"buffer_load_ubyte v{KEY+3*p+w}, v{KAD+p}, s[8:11], s{80+p} offen offset:{8*w} {rf}")
                e.label(f"L2_kskip{p}{w}")
        I("s_waitcnt vmcnt(0)")
        for w in range(NW):
            for p in range(NP):
                I(f"s_mov_b64 exec, {msk(p,w)}")
                I(f"s_cbranch_execz L2_pskip{p}{w}")
                I(f"buffer_load_dwordx4 {pay(p,w)}, v{PAD+p}, s[8:11], s{74+p} offen offset:{128*w} {rf}")
                e.label(f"L2_pskip{p}{w}")
        I("s_mov_b64 exec, -1")
    else:
        for p in range(NP):
            I(f"s_mov_b64 exec, {msk(p,2)}")
            I(f"s_cbranch_execz L2_w2skip{p}")
            I(f"buffer_load_ubyte v{KEY+3*p+2}, v{KAD+p}, s[8:11], s{80+p} offen offset:16 {rf}")
            I(f"buffer_load_dwordx4 {pay(p,2)}, v{PAD+p}, s[8:11], s{74+p} offen offset:256 {rf}")
            e.label(f"L2_w2skip{p}")
        for w in range(2):
            for p in range(NP):
                I(f"s_mov_b64 exec, {msk(p,w)}")
                I(f"s_cbranch_execz L2_kskip{p}{w}")
                I(f"buffer_load_ubyte v{KEY+3*p+w}, v{KAD+p}, s[8:11], s{80+p} offen offset:{8*w} {rf}")
                e.label(f"L2_kskip{p}{w}")
        I("s_mov_b64 exec, -1")
        for p in range(NP):
            if p == NP - 1:
                I("s_cmp_ge_u32 s21, 12")
                I("s_cbranch_scc1 L2_plskip")
            I(f"buffer_load_dwordx4 {pay(p,0)}, v{PAD+p}, s[8:11], s{74+p} offen {rf}")
        e.label("L2_plskip")
        for p in range(NP):
            I(f"s_mov_b64 exec, {msk(p,1)}")
            I(f"s_cbranch_execz L2_w1skip{p}")
            I(f"buffer_load_dwordx4 {pay(p,1)}, v{PAD+p}, s[8:11], s{74+p} offen offset:128 {rf}")
            e.label(f"L2_w1skip{p}")
        I("s_mov_b64 exec, -1")
        I(f"s_cmp_eq_u64 {msk(0,1)}, 0")
        I("s_cbranch_scc1 L2_kw2")
        I(f"s_cmp_eq_u64 {msk(1,1)}, 0")
        I("s_cbranch_scc1 L2_kw2")
        I("s_waitcnt vmcnt(4)")
        I("s_branch L2_kwd")
        e.label("L2_kw2")
        I("s_waitcnt vmcnt(2)")
        e.label("L2_kwd")
    stamp(e, c, 8)
    for k in range(NP*NW):
        I(f"v_lshlrev_b32 v{KEY+k}, 2, v{KEY+k}")
    for p in range(NP):
        for w in range(NW):
            I(f"s_mov_b64 exec, {msk(p,w)}")
            if w == 2: I(f"s_cbranch_execz L2_ra{p}")
            I(f"ds_add_rtn_u32 v{RNK+3*p+w}, v{KEY+3*p+w}, v{VONE} offset:{HIST}")
        e.label(f"L2_ra{p}")
    I("s_mov_b64 exec, -1")
    I(f"v_max3_u32 v{VT0}, v{TAB}, v{TAB+2}, v{TAB+4}")
    I(f"v_cmp_lt_u32 vcc, {8*NW}, v{VT0}")
    I("s_mov_b32 s25, 0")
    e.flush()
    I("s_cmp_eq_u64 vcc, 0")
    I("s_cbranch_scc1 L2_noextraA")
    I("s_mov_b32 s25, 1")
    for p in range(NP):
        I(f"v_add_u32 v{VT0}, {8*NW}, v{VJ}")
        I(f"v_add_u32 v{VT1}, {8*NW}, v{KAD+p}")
        e.label(f"L2_xa{p}")
        I(f"v_cmp_lt_u32 vcc, v{VT0}, v{TAB+2*p}")
        I("s_and_saveexec_b64 s[44:45], vcc")
        e.branch(f"s_cbranch_execz L2_xa{p}_done")
        I(f"buffer_load_ubyte v{X}, v{VT1}, s[8:11], s{80+p} offen {rf}")
        I("s_waitcnt vmcnt(0)")
        I(f"v_lshlrev_b32 v{X}, 2, v{X}")
        I(f"ds_add_u32 v{X}, v{VONE} offset:{HIST2}")
        I("s_mov_b64 exec, -1")
        I(f"v_add_u32 v{VT0}, 8, v{VT0}")
        I(f"v_add_u32 v{VT1}, 8, v{VT1}")
        e.branch(f"s_branch L2_xa{p}")
        e.label(f"L2_xa{p}_done")
        I("s_mov_b64 exec, -1")
    e.label("L2_noextraA")
    I("s_waitcnt lgkmcnt(0)")
    stamp(e, c, 14)
    I("s_barrier")
    stamp(e, c, 15)
    C1, CT, BS = X, X + 1, X + 2
    I(f"v_lshlrev_b32 v{VT0}, 2, v{VLANE}")
    I(f"ds_read_b32 v{C1}, v{VT0} offset:{HIST}")
    I(f"ds_read_b32 v{CT}, v{VT0} offset:{HIST2}")
    I("s_waitcnt lgkmcnt(0)")
    I(f"v_add_u32 v{CT}, v{C1}, v{CT}")
    I(f"v_mov_b32 v{BS}, v{CT}")
    scan64(e, BS)
    I(f"v_readlane_b32 s46, v{BS}, 63")
    I(f"v_sub_u32 v{BS}, v{BS}, v{CT}")
    I(f"v_lshl_or_b32 v{VINFO}, v{CT}, 16, v{BS}")
    I(f"s_cmp_eq_u32 s23, 1")
    I(f"s_cselect_b32 s42, -1, {CAP}")
    e.flush()
    I(f"s_cmp_gt_u32 s46, s42")
    I("s_cbranch_scc1 L2_g_overflow")
    for p in range(NP):
        for w in range(2):
            I(f"ds_bpermute_b32 v{KEY+3*p+w}, v{KEY+3*p+w}, v{BS}")
    I(f"s_or_b64 s[44:45], {msk(0,2)}, {msk(1,2)}")
    I(f"s_or_b64 s[44:45], s[44:45], {msk(2,2)}")
    I("s_cbranch_scc0 L2_now2")
    for p in range(NP):
        I(f"ds_bpermute_b32 v{KEY+3*p+2}, v{KEY+3*p+2}, v{BS}")
    e.label("L2_now2")
    I("s_cmp_lg_u32 s21, 5")
    I("s_cbranch_scc1 L2_noinfo")
    I(f"s_mov_b64 exec, {(1 << HN) - 1}")
    I(f"ds_write_b32 v{VT0}, v{VINFO} offset:{INFO}")
    I("s_mov_b64 exec, -1")
    e.label("L2_noinfo")
    I("s_waitcnt lgkmcnt(0)")
    for k in range(NP*NW):
        I(f"v_add_lshl_u32 v{KEY+k}, v{KEY+k}, v{RNK+k}, 4")
    stamp(e, c, 27)
    I("s_waitcnt vmcnt(0)")
    stamp(e, c, 9)
    for p in range(NP):
        for w in range(NW):
            I(f"s_mov_b64 exec, {msk(p,w)}")
            I(f"s_cbranch_execz L2_sc{p}")
            I(f"ds_write_b128 v{KEY+3*p+w}, {pay(p,w)} offset:{RAW}")
        e.label(f"L2_sc{p}")
    I("s_mov_b64 exec, -1")
    I("s_cmp_eq_u32 s25, 0")
    I("s_cbranch_scc1 L2_noextraB")
    I(f"v_add_u32 v{BS}, v{BS}, v{C1}")
    for p in range(NP):
        I(f"v_add_u32 v{VT0}, {8*NW}, v{VJ}")
        I(f"v_add_u32 v{VT1}, {8*NW}, v{KAD+p}")
        I(f"v_add_u32 v{X+3}, {128*NW}, v{PAD+p}")
        e.label(f"L2_xb{p}")
        I(f"v_cmp_lt_u32 vcc, v{VT0}, v{TAB+2*p}")
        I("s_and_saveexec_b64 s[44:45], vcc")
        e.branch(f"s_cbranch_execz L2_xb{p}_done")
        I(f"buffer_load_ubyte v{X+4}, v{VT1}, s[8:11], s{80+p} offen {rf}")
        I(f"buffer_load_dwordx4 v[{X+8}:{X+11}], v{X+3}, s[8:11], s{74+p} offen {rf}")
        I("s_waitcnt vmcnt(0)")
        I(f"v_lshlrev_b32 v{X+4}, 2, v{X+4}")
        I(f"ds_add_rtn_u32 v{X+5}, v{X+4}, v{VONE} offset:{CUR2}")
        I("s_mov_b64 exec, -1")
        I(f"ds_bpermute_b32 v{X+4}, v{X+4}, v{BS}")
        I("s_waitcnt lgkmcnt(0)")
        I(f"v_add_lshl_u32 v{X+4}, v{X+4}, v{X+5}, 4")
        I("s_mov_b64 exec, vcc")
        I(f"ds_write_b128 v{X+4}, v[{X+8}:{X+11}] offset:{RAW}")
        I("s_mov_b64 exec, -1")
        I(f"v_add_u32 v{VT0}, 8, v{VT0}")
        I(f"v_add_u32 v{VT1}, 8, v{VT1}")
        I(f"v_add_u32 v{X+3}, 128, v{X+3}")
        e.branch(f"s_branch L2_xb{p}")
        e.label(f"L2_xb{p}_done")
        I("s_mov_b64 exec, -1")
    e.label("L2_noextraB")
    ACC, LD, B, A, AD = 0, 32, 64, 96, 100
    I("s_waitcnt lgkmcnt(0)")
    for k in range(4 if c.dbuf else 32):
        I(f"v_mov_b32 v{LD+k}, 0")
    I("s_cmp_lg_u32 s21, 4")
    I("s_cbranch_scc1 L2_noguard")
    I("s_lshl_b32 s46, s46, 4")
    I(f"v_add_u32 v{VT0}, s46, v{VL16}")
    I(f"ds_write_b128 v{VT0}, v[{LD}:{LD+3}] offset:{RAW}")
    I("s_waitcnt lgkmcnt(0)")
    e.label("L2_noguard")
    stamp(e, c, 28)
    I("s_barrier")
    I(f"ds_read_b32 v{VT0}, v{VL16} offset:{TOTB}")
    I("s_mov_b64 exec, 1")
    I(f"ds_inc_rtn_u32 v{VNEXT}, v{VL16}, v{VMASK} offset:{NEXT}")
    I("s_mov_b64 exec, -1")
    I("s_waitcnt lgkmcnt(0)")
    I(f"v_readfirstlane_b32 s42, v{VT0}")
    e.nop(1)
    I(f"s_cmp_gt_u32 s42, {CAP}")
    I("s_cbranch_scc1 L2_g_overflow")
    stamp(e, c, 10)
    cstamp(e, c, 24)
    (gather_loop2 if c.dbuf else gather_loop)(e, c, locals())
    e.label("L2_g_done")
    stamp(e, c, 11)
    cstamp(e, c, 25)
    I("s_cmp_lg_u32 s24, 0")
    e.branch("s_cbranch_scc1 L2_g_exit")
    I("s_add_u32 s89, s89, 1")
    I("s_branch L2_g_slow")
    e.label("L2_g_overflow")
    I("s_mov_b32 s89, 0")
    I("s_mov_b32 s23, 1")
    I("s_movk_i32 s48, 64")
    e.label("L2_g_slow")
    I("s_waitcnt vmcnt(0) lgkmcnt(0)")
    I("s_barrier")
    I("s_lshr_b32 s22, s89, 1")
    I("s_and_b32 s88, s89, 1")
    I("s_lshl_b32 s88, s88, 8")
    I("s_add_u32 s88, s88, s20")
    I(f"s_cmp_eq_u32 s89, {2*NCH-1}")
    I("s_cselect_b32 s24, 1, 0")
    I("s_barrier")
    e.branch("s_branch L2_g_round")
    e.label("L2_g_exit")
    stamp_store(e, c, 90)
    I("s_endpgm")

    e.label("L2_gemm")
    W, G, TA, TF = 0, 40, 104, 108
    X0, X1 = 124, 125
    I("v_and_b32 v104, 63, v0")
    I("v_mov_b32 v117, v0")
    I("v_lshlrev_b32 v105, 4, v104")
    lut = 0
    for jp in range(4):
        for blk in range(4):
            p, i, s = path_of(jp, blk)
            lut |= (p | (8 if s < 0 else 0)) << (4 * (jp * 4 + blk))
    I(f"s_mov_b32 s44, {lut & 0xffffffff}")
    I(f"s_mov_b32 s45, {lut >> 32}")
    for h in range(2):
        I("v_lshrrev_b32 v106, 4, v104")
        I("v_bfe_u32 v107, v104, 3, 1")
        I("v_lshl_add_u32 v106, v106, 2, v107")
        I(f"v_add_lshl_u32 v106, v106, {2*h}, 2")
        I(f"v_lshrrev_b64 v[108:109], v106, s[44:45]")
        I(f"v_and_b32 v106, 7, v108")
        I(f"v_and_b32 v{110+h}, 8, v108")
        I(f"v_lshlrev_b32 v{110+h}, 28, v{110+h}")
        I("v_and_b32 v107, 7, v104")
        I("v_lshlrev_b32 v107, 3, v107")
        I("v_lshl_add_u32 v106, v106, 6, v107")
        I("v_add_u32 v106, s21, v106")
        I(f"v_lshlrev_b32 v{112+h}, 1, v106")
    I(f"s_add_u32 s49, s51, {TABOFF}")
    def publish(k0, k1):
        for k in range(k0, k1):
            I(f"buffer_store_dwordx4 v[{64+4*k}:{67+4*k}], v105, s[8:11], s49 offen offset:{1024*k} {sf}")
    I("s_cmp_lg_u32 s21, 0")
    I("s_cbranch_scc1 L2_nocomp")
    for i in range(8):
        I(f"v_or_b32 v{64+2*i}, s87, v{52+i}")
        I(f"v_mov_b32 v{65+2*i}, s86")
    I(f"s_mov_b32 s42, {H1}")
    I("v_lshl_add_u32 v114, v104, 6, s42")
    for k in range(4):
        I(f"ds_write_b128 v114, v[{64+4*k}:{67+4*k}] offset:{16*k}")
    I("v_add_u32 v114, s42, v105")
    for k in range(4):
        I(f"ds_read_b128 v[{64+4*k}:{67+4*k}], v114 offset:{1024*k}")
    I("s_waitcnt lgkmcnt(0)")
    e.label("L2_nocomp")
    I("s_mov_b32 s32, 0")
    I(f"s_waitcnt vmcnt({0 if c.late_b else 1})")
    I("s_barrier")
    I("s_cmp_lg_u32 s21, 0")
    I("s_cbranch_scc1 L2_notabA")
    I(f"s_cmp_gt_u32 s88, {(32768-PAYOFF)//16}")
    I("s_cbranch_scc1 L2_notabA")
    publish(0, 2)
    I("s_mov_b32 s32, 1")
    if not c.late_b:
        I("s_waitcnt vmcnt(2)")
        I("s_branch L2_P2")
    e.label("L2_notabA")
    if c.late_b: st_b("m")
    I("s_waitcnt vmcnt(0)")
    e.label("L2_P2")
    stamp(e, c, 5)
    I("s_barrier")
    I("s_cmp_lg_u32 s21, 0")
    I("s_cbranch_scc1 L2_notabB")
    publish(2, 4)
    I("s_cmp_lg_u32 s32, 0")
    I("s_cbranch_scc1 L2_notabB")
    publish(0, 2)
    e.label("L2_notabB")
    WT = 80
    for k in range(4):
        h, qo = k >> 1, (k & 1) * 4
        for d in range(4):
            I(f"buffer_load_ushort v{WT+4*k+d}, v{112+h}, s[16:19], 0 offen offset:{d*640+qo*2}")
    I("v_lshrrev_b32 v106, 4, v104")
    I("v_lshlrev_b32 v106, 10, v106")
    I("v_bfe_u32 v107, v104, 2, 2")
    I("v_lshl_add_u32 v106, v107, 7, v106")
    I("v_and_b32 v107, 3, v104")
    I("v_lshl_add_u32 v106, v107, 3, v106")
    I("s_lshl_b32 s42, s21, 5")
    I(f"s_add_u32 s42, s42, {T}")
    I("v_add_u32 v106, s42, v106")
    for f in range(10):
        I(f"ds_read_b64_tr_b16 v[{W+4*f}:{W+4*f+1}], v106 offset:{f*4096}")
        I(f"ds_read_b64_tr_b16 v[{W+4*f+2}:{W+4*f+3}], v106 offset:{f*4096+512}")
    npf = 0
    if c.pfx_pos == "store": npf = prefetch_x(e, c.pfx_lines, 114, 117, 256, 31, 0, 4)
    I("s_lshl_b32 s42, s21, 10")
    I(f"s_add_u32 s43, s42, {WRAD}")
    I("v_add_u32 v105, s43, v105")
    I(f"s_waitcnt vmcnt({npf})")
    for k in range(4):
        h = k >> 1
        for d in range(4):
            I(f"v_lshlrev_b32 v{WT+4*k+d}, 16, v{WT+4*k+d}")
            I(f"v_xor_b32 v{WT+4*k+d}, v{110+h}, v{WT+4*k+d}")
        I(f"ds_write_b128 v105, v[{WT+4*k}:{WT+4*k+3}] offset:{(k>>1)*8192 + (k&1)*4096}")
    I("v_and_b32 v106, 15, v104")
    I("v_lshrrev_b32 v107, 4, v104")
    I(f"v_lshlrev_b32 v{X0}, 2, v104")
    I(f"s_mul_i32 s42, s20, {HN*512}")
    I("s_lshl_b32 s43, s21, 5")
    I("s_add_u32 s42, s42, s43")
    I(f"v_lshlrev_b32 v{X1}, 9, v106")
    I(f"v_lshl_add_u32 v{X1}, v107, 3, v{X1}")
    I(f"v_add_u32 v{X1}, s42, v{X1}")
    I(f"v_cmp_gt_u32 s[50:51], {NODES-48}, v106")
    I(f"v_cmp_le_u32 s[84:85], {HN-16}, v106")
    I("v_lshlrev_b32 v108, 10, v106")
    I(f"v_add_u32 v108, {T}, v108")
    for u in (3, 2, 1, 0):
        I(f"v_add_u32 v109, {4*u}, v107")
        I("v_xor_b32 v109, v109, v106")
        I(f"v_lshl_add_u32 v{TF+4+u}, v109, 4, v108")
    I("s_waitcnt lgkmcnt(0)")
    for u in range(4):
        I(f"v_mov_b32 v{TA+u}, v{TF+4+u}")
    I("s_mov_b32 s89, 0")
    NPB = 8
    TB, SJ, KB, RB = 40, 56, 64, 80
    LJ, LCH, LONE, Y = 96, 97, 98, 99
    I(f"v_lshrrev_b32 v{Y}, 2, v{X0}")
    I(f"v_and_b32 v{LJ}, 7, v{Y}")
    I(f"v_lshrrev_b32 v{Y}, 3, v{Y}")
    I("s_lshl_b32 s42, s21, 3")
    I(f"v_add_u32 v{Y}, s42, v{Y}")
    I(f"s_mov_b32 s42, {CSTRIDE}")
    I(f"v_mul_u32_u24 v{LCH}, s42, v{Y}")
    I(f"v_cmp_gt_u32 s[46:47], {NCH-224}, v{Y}")
    I(f"v_mov_b32 v{LONE}, 1")
    I("s_lshl_b32 s36, s20, 3")
    I(f"s_add_u32 s36, s36, {TABOFF+2048}")
    I("s_mov_b32 s44, 0")
    def tabB_issue():
        I(f"v_mov_b32 v{TB+14}, s87")
        I(f"v_mov_b32 v{TB+15}, s86")
        I("s_mov_b32 s42, s36")
        for p in range(NPB):
            if p: I(f"s_add_u32 s42, s42, {32*CSTRIDE}")
            if p == NPB - 1: I("s_mov_b64 exec, s[46:47]")
            I(f"buffer_load_dwordx2 v[{TB+2*p}:{TB+2*p+1}], v{LCH}, s[8:11], s42 offen {c.tab_flags}")
        I("s_mov_b64 exec, -1")
    if c.bdelay > 0: I(f"s_sleep {c.bdelay}")
    if c.bdelay >= 0: tabB_issue()
    stamp(e, c, 14)
    e.label("L2_m_round")
    I("s_barrier")
    def pf_here(pos):
        if c.pfx_pos == pos and c.pfx_lines:
            I("s_lshl_b32 s42, s21, 6")
            I(f"v_lshrrev_b32 v{TF+11}, 2, v{X0}")
            I(f"v_add_u32 v{TF+11}, s42, v{TF+11}")
            prefetch_x(e, c.pfx_lines, TF + 8, TF + 11, 256, 31, 0, 4)
    I(f"ds_read_b32 v{TF}, v{X0} offset:{HIST}")
    I(f"ds_read_b32 v{TF+1}, v{X0} offset:{HIST2}")
    I("s_waitcnt lgkmcnt(0)")
    I(f"v_add_u32 v{TF}, v{TF}, v{TF+1}")
    scan64(e, TF)
    I(f"v_readlane_b32 s42, v{TF}, 63")
    I("s_cmp_eq_u32 s23, 1")
    I("s_cbranch_scc1 L2_m_slowC")
    e.flush()
    I(f"s_cmp_gt_u32 s42, {CAP}")
    I("s_cbranch_scc1 L2_m_overflow")
    NPB = 8
    TB, SJ, KB, RB = 40, 56, 64, 80
    LJ, LCH, LONE, Y = 96, 97, 98, 99
    MB = 52
    def mb(p, w): return f"s[{MB+4*p+2*w}:{MB+4*p+2*w+1}]"
    if c.bdelay >= 0: I("s_branch L2_pollB_chk")
    e.label("L2_pollB")
    tabB_issue()
    e.label("L2_pollB_chk")
    I("s_waitcnt vmcnt(0)")
    tagdiff(Y, TB, Y+1)
    for p in range(1, NPB):
        tagdiff(Y+2, TB+2*p, Y+1)
        I(f"v_or_b32 v{Y}, v{Y}, v{Y+2}")
    I(f"v_cmp_ne_u32 vcc, 0, v{Y}")
    I("s_add_u32 s44, s44, 1")
    e.nop(2)
    I("s_cmp_eq_u64 vcc, 0")
    I("s_cbranch_scc1 L2_pollB_ok")
    I(f"s_sleep {c.psleep}")
    I("s_cmp_lt_u32 s44, 0x100000")
    I("s_cbranch_scc1 L2_pollB")
    e.label("L2_pollB_ok")
    stamp(e, c, 7)
    I(f"v_add_u32 v{Y+1}, 8, v{LJ}")
    I(f"v_mov_b32 v{Y}, 0")
    for p in range(NPB):
        cnt = TB + 2*p
        I(f"v_and_b32 v{SJ+p}, 0xfff, v{cnt}")
        I(f"v_bfe_u32 v{cnt}, v{cnt}, 12, 12")
        I(f"v_add_u32 v{SJ+p}, v{SJ+p}, v{LJ}")
        I(f"v_add_u32 v{Y}, v{Y}, v{cnt}")
        I(f"v_cmp_lt_u32 {mb(p,0)}, v{LJ}, v{cnt}")
        I(f"v_cmp_lt_u32 {mb(p,1)}, v{Y+1}, v{cnt}")
        I(f"v_add_u32 v{cnt+1}, v{SJ+p}, v{LCH}")
    I(f"v_mov_b32 v{Y+2}, 0")
    I("s_mov_b32 s42, 0x01010101")
    I("s_mov_b32 s43, 0x01010101")
    I("s_mov_b64 exec, s[42:43]")
    I(f"ds_add_u32 v{Y+2}, v{Y} offset:{TOTB}")
    I("s_mov_b64 exec, -1")
    I("s_waitcnt lgkmcnt(0)")
    pf_here("B")
    I("s_barrier")
    I(f"ds_read_b32 v{Y}, v{Y+2} offset:{TOTB}")
    I("s_waitcnt lgkmcnt(0)")
    I(f"v_readfirstlane_b32 s42, v{Y}")
    e.nop(1)
    I(f"s_cmp_gt_u32 s42, {CAP}")
    I("s_cbranch_scc1 L2_m_overflow")
    stamp(e, c, 10)
    I("s_mov_b32 s34, s42")
    for p in range(NPB):
        I(f"s_mov_b32 s42, {32*p*CSTRIDE+KEYOFF}")
        for w in range(2):
            I(f"s_mov_b64 exec, {mb(p,w)}")
            I(f"buffer_load_ubyte v{KB+2*p+w}, v{TB+2*p+1}, s[8:11], s42 offen offset:{8*w} {rf}")
    I("s_mov_b64 exec, -1")
    I(f"v_max3_u32 v{Y}, v{TB}, v{TB+2}, v{TB+4}")
    I(f"v_max3_u32 v{Y}, v{Y}, v{TB+6}, v{TB+8}")
    I(f"v_max3_u32 v{Y}, v{Y}, v{TB+10}, v{TB+12}")
    I(f"v_max_u32 v{Y}, v{Y}, v{TB+14}")
    I(f"v_cmp_lt_u32 vcc, 16, v{Y}")
    I("s_waitcnt vmcnt(0)")
    I("s_cmp_lg_u64 vcc, 0")
    I("s_cselect_b32 s35, 1, 0")
    for k in range(2*NPB):
        I(f"v_lshlrev_b32 v{KB+k}, 2, v{KB+k}")
    for p in range(NPB):
        for w in range(2):
            I(f"s_mov_b64 exec, {mb(p,w)}")
            I(f"ds_add_rtn_u32 v{RB+2*p+w}, v{KB+2*p+w}, v{LONE} offset:{HISTB}")
    I("s_mov_b64 exec, -1")
    I("s_cmp_eq_u32 s35, 0")
    I("s_cbranch_scc1 L2_bnoxa")
    for p in range(NPB):
        I(f"s_mov_b32 s42, {32*p*CSTRIDE+KEYOFF}")
        I(f"v_add_u32 v{Y}, 16, v{LJ}")
        I(f"v_add_u32 v{Y+1}, 16, v{TB+2*p+1}")
        e.label(f"L2_bxa{p}")
        I(f"v_cmp_lt_u32 vcc, v{Y}, v{TB+2*p}")
        I("s_and_saveexec_b64 s[44:45], vcc")
        e.branch(f"s_cbranch_execz L2_bxa{p}_done")
        I(f"buffer_load_ubyte v{Y+2}, v{Y+1}, s[8:11], s42 offen {rf}")
        I("s_waitcnt vmcnt(0)")
        I(f"v_lshlrev_b32 v{Y+2}, 2, v{Y+2}")
        I(f"ds_add_u32 v{Y+2}, v{LONE} offset:{HIST2B}")
        I("s_mov_b64 exec, -1")
        I(f"v_add_u32 v{Y}, 8, v{Y}")
        I(f"v_add_u32 v{Y+1}, 8, v{Y+1}")
        e.branch(f"s_branch L2_bxa{p}")
        e.label(f"L2_bxa{p}_done")
        I("s_mov_b64 exec, -1")
    e.label("L2_bnoxa")
    P0 = [TF, TF+4, TF+8, TF+12]
    def pay_issue(p, w, reg):
        I(f"s_mov_b32 s42, {32*p*CSTRIDE+PAYOFF}")
        I("s_mov_b64 exec, -1")
        I(f"v_cndmask_b32 v{Y+3+w}, 2.0, v{SJ+p}, {mb(p,w)}")
        I(f"buffer_load_dwordx4 v[{reg}:{reg+3}], v{Y+3+w}, s[8:11], s42 offen offset:{128*w} {rf}")
    for p in range(NPB):
        I(f"v_lshl_add_u32 v{SJ+p}, v{SJ+p}, 4, v{LCH}")
    for k in range(4): pay_issue(k >> 1, k & 1, P0[k])
    I("s_mov_b64 exec, 1")
    I(f"v_mov_b32 v{Y+2}, 0")
    I("s_waitcnt lgkmcnt(0)")
    I(f"ds_add_u32 v{Y+2}, v{LONE} offset:{BSYNC}")
    I("s_mov_b64 exec, -1")
    I(f"v_mov_b32 v{Y+2}, 0")
    I("s_mov_b32 s44, 0")
    e.label("L2_bsync")
    I(f"ds_read_b32 v{Y}, v{Y+2} offset:{BSYNC}")
    I("s_waitcnt lgkmcnt(0)")
    I(f"v_readfirstlane_b32 s42, v{Y}")
    I("s_add_u32 s44, s44, 1")
    I("s_cmp_ge_u32 s42, 4")
    I("s_cbranch_scc1 L2_bsync_ok")
    I("s_cmp_lt_u32 s44, 0x400000")
    I("s_cbranch_scc1 L2_bsync")
    e.label("L2_bsync_ok")
    I(f"ds_read_b32 v{Y}, v{X0} offset:{HISTB}")
    I(f"ds_read_b32 v{Y+1}, v{X0} offset:{HIST2B}")
    I("s_waitcnt lgkmcnt(0)")
    I(f"v_add_u32 v{Y+1}, v{Y}, v{Y+1}")
    I(f"v_mov_b32 v{Y+2}, v{Y+1}")
    scan64(e, Y+2)
    I(f"v_sub_u32 v{Y+2}, v{Y+2}, v{Y+1}")
    I(f"v_add_u32 v{Y+2}, {BOFF}, v{Y+2}")
    for k in range(2*NPB):
        I(f"ds_bpermute_b32 v{KB+k}, v{KB+k}, v{Y+2}")
    I("s_cmp_lg_u32 s21, 0")
    I("s_cbranch_scc1 L2_bnoinfo")
    I(f"v_lshl_or_b32 v{Y+1}, v{Y+1}, 16, v{Y+2}")
    I(f"s_mov_b32 s42, {((1 << 32) - (1 << HN))}")
    I("s_mov_b32 s43, -1")
    I("s_mov_b64 exec, s[42:43]")
    I(f"ds_write_b32 v{X0}, v{Y+1} offset:{INFO}")
    I("s_mov_b64 exec, -1")
    e.label("L2_bnoinfo")
    I("s_waitcnt lgkmcnt(0)")
    for k in range(2*NPB):
        I(f"v_add_lshl_u32 v{KB+k}, v{KB+k}, v{RB+k}, 4")
    I(f"v_add_u32 v{Y+2}, v{Y+2}, v{Y}")
    regs = P0 + [RB, RB+4, RB+8, RB+12]
    for k in range(4, 8): pay_issue(k >> 1, k & 1, regs[k])
    for k in range(16):
        I(f"s_waitcnt vmcnt({min(7, 15-k)})")
        I(f"s_mov_b64 exec, {mb(k>>1, k&1)}")
        I(f"ds_write_b128 v{KB+k}, v[{regs[k&7]}:{regs[k&7]+3}] offset:{RAW}")
        if k + 8 < 16: pay_issue((k+8) >> 1, (k+8) & 1, regs[k&7])
    I("s_mov_b64 exec, -1")
    I("s_cmp_eq_u32 s35, 0")
    I("s_cbranch_scc1 L2_bnoxb")
    for p in range(NPB):
        I(f"s_mov_b32 s42, {32*p*CSTRIDE+KEYOFF}")
        I(f"s_mov_b32 s43, {32*p*CSTRIDE+PAYOFF}")
        I(f"v_add_u32 v{Y}, 16, v{LJ}")
        I(f"v_add_u32 v{Y+1}, 16, v{TB+2*p+1}")
        I(f"v_add_u32 v{SJ+p}, 256, v{SJ+p}")
        e.label(f"L2_bxb{p}")
        I(f"v_cmp_lt_u32 vcc, v{Y}, v{TB+2*p}")
        I("s_and_saveexec_b64 s[44:45], vcc")
        e.branch(f"s_cbranch_execz L2_bxb{p}_done")
        I(f"buffer_load_ubyte v{Y+3}, v{Y+1}, s[8:11], s42 offen {rf}")
        I(f"buffer_load_dwordx4 v[{TF}:{TF+3}], v{SJ+p}, s[8:11], s43 offen {rf}")
        I("s_waitcnt vmcnt(0)")
        I(f"v_lshlrev_b32 v{Y+3}, 2, v{Y+3}")
        I(f"ds_add_rtn_u32 v{Y+4}, v{Y+3}, v{LONE} offset:{CUR2B}")
        I("s_mov_b64 exec, -1")
        I(f"ds_bpermute_b32 v{Y+3}, v{Y+3}, v{Y+2}")
        I("s_waitcnt lgkmcnt(0)")
        I(f"v_add_lshl_u32 v{Y+3}, v{Y+3}, v{Y+4}, 4")
        I("s_mov_b64 exec, vcc")
        I(f"ds_write_b128 v{Y+3}, v[{TF}:{TF+3}] offset:{RAW}")
        I("s_mov_b64 exec, -1")
        I(f"v_add_u32 v{Y}, 8, v{Y}")
        I(f"v_add_u32 v{Y+1}, 8, v{Y+1}")
        I(f"v_add_u32 v{SJ+p}, 128, v{SJ+p}")
        e.branch(f"s_branch L2_bxb{p}")
        e.label(f"L2_bxb{p}_done")
        I("s_mov_b64 exec, -1")
    e.label("L2_bnoxb")
    I("s_waitcnt lgkmcnt(0)")
    for k in range(64):
        I(f"v_mov_b32 v{G+k}, 0")
    I("s_cmp_lg_u32 s21, 1")
    I("s_cbranch_scc1 L2_bnoguard")
    I(f"s_add_u32 s42, s34, {BOFF}")
    I("s_lshl_b32 s42, s42, 4")
    I(f"v_lshl_add_u32 v{TF}, v{X0}, 2, s42")
    I(f"ds_write_b128 v{TF}, v[{G}:{G+3}] offset:{RAW}")
    I("s_waitcnt lgkmcnt(0)")
    e.label("L2_bnoguard")
    I(f"v_mov_b32 v{TF}, 1")
    I("s_mov_b64 exec, 1")
    I(f"ds_add_u32 v{G}, v{TF} offset:{BREADY}")
    I("s_mov_b64 exec, -1")
    stamp(e, c, 13)
    I("s_branch L2_m_tiles")
    e.label("L2_m_slowC")
    I("s_barrier")
    e.label("L2_m_tiles")
    for h in range(2):
        for t in ((0, 3, 1, 2) if h and c.reorder else range(4)):
            need = 16 if t < 3 else NODES - 48
            I(f"v_mov_b32 v{TF}, 0")
            I("s_mov_b32 s43, 0")
            e.label(f"L2_poll{h}{t}")
            I(f"ds_read_b32 v{TF+1}, v{TF} offset:{DONE + 16*h + 4*t}")
            I("s_waitcnt lgkmcnt(0)")
            I(f"v_readfirstlane_b32 s42, v{TF+1}")
            e.nop(1)
            I(f"s_cmp_ge_u32 s42, {need}")
            I(f"s_cbranch_scc1 L2_go{h}{t}")
            I(f"s_sleep {1 if (h, t) == (1, 2) or (h, t, c.reorder) == (1, 3, 0) else c.sleep}")
            I("s_add_u32 s43, s43, 1")
            I("s_cmp_lt_u32 s43, 0x400000")
            I(f"s_cbranch_scc1 L2_poll{h}{t}")
            e.label(f"L2_go{h}{t}")
            stamp(e, c, 16 + 4*h + t)
            def rd(ks):
                I(f"ds_read_b128 v[{TF+4*(ks&3)}:{TF+4*(ks&3)+3}], v{TA+(ks&3)} offset:{t*16384 + (ks>>2)*256}")
            for ks in range(4): rd(ks)
            for ks in range(16):
                jp, blk = ks >> 2, 2 * h + ((ks >> 1) & 1)
                p, i, s = path_of(jp, blk)
                f = p * 2 + (ks & 1)
                I(f"s_waitcnt lgkmcnt({min(3, 15-ks)})")
                g = G + 16 * t + 4 * i
                I(f"v_mfma_f32_16x16x32_bf16 v[{g}:{g+3}], v[{W+4*f}:{W+4*f+3}], v[{TF+4*(ks&3)}:{TF+4*(ks&3)+3}], v[{g}:{g+3}]")
                if ks + 4 < 16: rd(ks + 4)
            if h == 0:
                I(f"v_mov_b32 v{TF}, 0")
                I(f"v_mov_b32 v{TF+1}, 1")
                I("s_mov_b64 exec, 1")
                I(f"ds_add_u32 v{TF}, v{TF+1} offset:{GDONE + 4*t}")
                I("s_mov_b64 exec, -1")
                if t == c.pf2b_tile and c.pf2b_lines:
                    I("s_lshl_b32 s42, s21, 6")
                    I(f"v_lshrrev_b32 v{TF+3}, 2, v{X0}")
                    I(f"v_add_u32 v{TF+3}, s42, v{TF+3}")
                    prefetch_x(e, c.pf2b_lines, TF + 4, TF + 3, 256, 31, 1, 4)
                    I("s_waitcnt vmcnt(0)")
            else:
                I("s_cmp_eq_u32 s24, 0")
                e.branch(f"s_cbranch_scc1 L2_nofin{t}")
                g = G + 16 * t
                I("s_mov_b32 s42, 0xbfb8aa3b")
                for r in range(4): I(f"v_mul_f32 v{TF+r}, s42, v{g+r}")
                for r in range(4): I(f"v_exp_f32 v{TF+r}, v{TF+r}")
                for r in range(4): I(f"v_add_f32 v{TF+r}, 1.0, v{TF+r}")
                for r in range(4): I(f"v_rcp_f32 v{TF+r}, v{TF+r}")
                for i in range(1, 4):
                    for r in range(4): I(f"v_mul_f32 v{g+4*i+r}, v{g+4*i+r}, v{TF+r}")
                for i in range(4):
                    I(f"v_cvt_pk_bf16_f32 v{TF+4+2*i}, v{g+4*i}, v{g+4*i+1}")
                    I(f"v_cvt_pk_bf16_f32 v{TF+5+2*i}, v{g+4*i+2}, v{g+4*i+3}")
                I(f"s_mov_b32 s42, {t*16*512 + ((N//2-HN)*512 if t >= 2 else 0)}")
                va = X1
                if t == 1:
                    va = TF
                    I(f"v_add_u32 v{TF}, {(N//2-HN)*512}, v{X1}")
                    I(f"v_cndmask_b32 v{TF}, v{X1}, v{TF}, s[84:85]")
                if t == 3: I("s_mov_b64 exec, s[50:51]")
                for i in range(4):
                    I(f"buffer_store_dwordx2 v[{TF+4+2*i}:{TF+5+2*i}], v{va}, s[12:15], s42 offen offset:{i*128} {c.out_flags}")
                if t == 3: I("s_mov_b64 exec, -1")
                e.label(f"L2_nofin{t}")
    stamp(e, c, 11)
    I("s_cmp_lg_u32 s24, 0")
    e.branch("s_cbranch_scc1 L2_m_exit")
    I("s_add_u32 s89, s89, 1")
    I("s_branch L2_m_slow")
    e.label("L2_m_overflow")
    I("s_mov_b32 s89, 0")
    I("s_mov_b32 s23, 1")
    I("s_waitcnt vmcnt(0)")
    for k in range(64):
        I(f"v_mov_b32 v{G+k}, 0")
    e.label("L2_m_slow")
    I("s_waitcnt vmcnt(0) lgkmcnt(0)")
    I("s_barrier")
    I(f"s_cmp_eq_u32 s89, {2*NCH-1}")
    I("s_cselect_b32 s24, 1, 0")
    I("s_cmp_lg_u32 s21, 1")
    I("s_cbranch_scc1 L2_m_nz")
    for k in range(4): I(f"v_mov_b32 v{TF+k}, 0")
    I(f"v_lshlrev_b32 v{TF+4}, 2, v{X0}")
    I(f"ds_write_b128 v{TF+4}, v[{TF}:{TF+3}]")
    I("s_waitcnt lgkmcnt(0)")
    e.label("L2_m_nz")
    I("s_barrier")
    e.branch("s_branch L2_m_round")
    e.label("L2_m_exit")
    if c.stamps:
        I("s_waitcnt vmcnt(0)")
        stamp(e, c, 12)
        stamp_store(e, c, TF)
    e.label("L_end")
    I("s_endpgm")
    return KNAME, 128, 96

def item_to_node(e, c, sitem, sH, sN):
    I = e.I
    I(f"s_cmp_ge_u32 s{sitem}, {NODES}")
    I(f"s_cselect_b32 s{sH}, 256, 0")
    if not c.reorder:
        I(f"s_cselect_b32 s43, {NODES}, 0")
        I(f"s_sub_u32 s{sN}, s{sitem}, s43")
        return
    I(f"s_cselect_b32 s43, {NODES}, 0")
    I(f"s_cmp_ge_u32 s{sitem}, {NODES+16}")
    I(f"s_cselect_b32 s43, {NODES-32}, s43")
    I(f"s_cmp_ge_u32 s{sitem}, {NODES+18}")
    I(f"s_cselect_b32 s43, {NODES+2}, s43")
    I(f"s_sub_u32 s{sN}, s{sitem}, s43")

def b_wait(e, L, snode, vt, vl16, tag):
    I = e.I
    I(f"s_cmp_lt_u32 s{snode}, s48")
    I(f"s_cbranch_scc1 L2_bok{tag}")
    I(f"v_mov_b32 v{vt}, 0")
    I("s_mov_b32 s45, 0")
    e.label(f"L2_bw{tag}")
    I(f"ds_read_b32 v{vt+1}, v{vt} offset:{L['BREADY']}")
    I("s_waitcnt lgkmcnt(0)")
    I(f"v_readfirstlane_b32 s44, v{vt+1}")
    I("s_add_u32 s45, s45, 1")
    I("s_cmp_ge_u32 s44, 4")
    I(f"s_cbranch_scc1 L2_bw_ok{tag}")
    I("s_sleep 1")
    I("s_cmp_lt_u32 s45, 0x400000")
    I(f"s_cbranch_scc1 L2_bw{tag}")
    e.label(f"L2_bw_ok{tag}")
    I(f"v_lshrrev_b32 v{vt}, 2, v{vl16}")
    I(f"ds_read_b32 v{L['VINFO']}, v{vt} offset:{L['INFO']}")
    I("s_movk_i32 s48, 64")
    I("s_waitcnt lgkmcnt(0)")
    e.label(f"L2_bok{tag}")

def gather_loop(e, c, L):
    I = e.I
    g = lambda n: L[n]
    RAW, T, NEXT, DONE, GDONE, OSC, PL1 = (L[k] for k in ("RAW", "T", "NEXT", "DONE", "GDONE", "OSC", "PL1"))
    VLANE, VINFO, VNEXT, VLOFF, VMASK, VOW, VOR, VSCRW, VTRA, VWR, VL16, VT0, VT1, VONE, VZERO = (L[k] for k in
        "VLANE VINFO VNEXT VLOFF VMASK VOW VOR VSCRW VTRA VWR VL16 VT0 VT1 VONE VZERO".split())
    ACC, LD, B, A, AD = 0, 32, 64, 96, 100
    sA, sR, sH, sN, sNV = 32, 33, 34, 35, 37
    sCN, sCH, sCF, sCR, sL = 38, 39, 40, 41, 36
    uid = [0]
    def lab(p):
        uid[0] += 1
        return f"L2_{p}{uid[0]}"
    def fetch_issue():
        I("s_mov_b64 exec, 1")
        I(f"ds_add_rtn_u32 v{VNEXT}, v{VZERO}, v{VONE} offset:{NEXT}")
        I("s_mov_b64 exec, -1")
    def setup_item(none_label):
        I(f"v_readfirstlane_b32 s42, v{VNEXT}")
        e.nop(1)
        I(f"s_cmp_ge_u32 s42, {2*NODES}")
        I(f"s_cbranch_scc1 {none_label}")
        item_to_node(e, c, 42, sH, sN)
        b_wait(e, L, sN, VT0, VL16, lab("t"))
        I(f"v_readlane_b32 s42, v{VINFO}, s{sN}")
        e.nop(1)
        I(f"s_lshr_b32 s{sR}, s42, 16")
        I("s_and_b32 s42, s42, 0xffff")
        I(f"s_lshl_b32 s{sA}, s42, 4")
    def off_read(hf):
        I(f"ds_read_b128 v[{AD}:{AD+3}], v{VOR} offset:{OSC+128*hf}")
        I(f"ds_read_b128 v[{AD+4}:{AD+7}], v{VOR} offset:{OSC+128*hf+16}")
    def off_add():
        for i in range(8):
            I(f"v_add_u32 v{AD+i}, v{AD+i}, v{VLOFF}")
    def prep_block():
        r = B
        I(f"v_add_u32 v{VT0}, s{sA}, v{VL16}")
        I(f"ds_read_b128 v[{r}:{r+3}], v{VT0} offset:{RAW}")
        l = lab("nf")
        I(f"s_cmp_gt_u32 s{sR}, 64")
        I(f"s_cbranch_scc1 {l}")
        fetch_issue()
        e.label(l)
        I(f"v_cmp_gt_u32 vcc, s{sR}, v{VLANE}")
        I("s_waitcnt lgkmcnt(0)")
        I(f"v_lshrrev_b32 v{r+11}, 16, v{r+3}")
        I(f"v_lshlrev_b32 v{r+11}, 9, v{r+11}")
        I(f"ds_write_b32 v{VOW}, v{r+11} offset:{OSC}")
        off_read(0)
        if not c.x_noexp:
            I(f"v_cndmask_b32 v{r}, 0, v{r}, vcc")
            I(f"v_cndmask_b32 v{r+1}, 0, v{r+1}, vcc")
            I(f"v_lshlrev_b32 v{r+8}, 16, v{r+2}")
            I(f"v_and_b32 v{r+9}, v{VMASK}, v{r+2}")
            I(f"v_lshlrev_b32 v{r+10}, 16, v{r+3}")
            I(f"v_lshlrev_b32 v{r+4}, 16, v{r}")
            I(f"v_and_b32 v{r+5}, v{VMASK}, v{r}")
            I(f"v_lshlrev_b32 v{r+6}, 16, v{r+1}")
            I(f"v_and_b32 v{r+7}, v{VMASK}, v{r+1}")
            for j in range(3):
                for d in range(4):
                    I(f"v_mul_f32 v{r+12+4*j+d}, v{r+4+d}, v{r+8+j}")
            I(f"v_cvt_pk_bf16_f32 v{r+2}, v{r+12}, v{r+13}")
            I(f"v_cvt_pk_bf16_f32 v{r+3}, v{r+14}, v{r+15}")
            for k in range(4):
                I(f"v_cvt_pk_bf16_f32 v{r+24+k}, v{r+16+2*k}, v{r+17+2*k}")
        I(f"ds_write_b128 v{VSCRW}, v[{r}:{r+3}]")
        I(f"ds_write_b128 v{VSCRW}, v[{r+24}:{r+27}] offset:{PL1}")
        I("s_waitcnt lgkmcnt(2)")
        off_add()
    def ld(i):
        if c.x_noload: return
        I(f"buffer_load_dwordx4 v[{LD+4*i}:{LD+4*i+3}], v{AD+i}, s[4:7], {'0' if c.x_samehalf else 's%d' % sH} offen {c.x_flags}")
    def perm(q, jj, k16=False):
        if c.x_noperm: return
        d = B + 2*q + jj if k16 else B + 4*q + jj
        I(f"v_perm_b32 v{d}, v{LD+4*(2*jj+1)+q//2}, v{LD+4*(2*jj)+q//2}, s{29 if q & 1 else 28}")
    def loads_partial(done):
        for i in range(7):
            I(f"s_cmp_le_u32 s{sL}, {4*i}")
            I(f"s_cbranch_scc1 {done}")
            ld(i)
    def perms_loads():
        part, done = lab("pp"), lab("pd")
        I("s_waitcnt vmcnt(0)")
        if c.prio: I(f"s_setprio {c.prio}")
        I(f"s_cmp_le_u32 s{sL}, 28")
        I(f"s_cbranch_scc1 {part}")
        for jj in range(4):
            for q in range(8): perm(q, jj)
            ld(2*jj); ld(2*jj+1)
        I(f"s_branch {done}")
        e.label(part)
        for jj in range(4):
            for q in range(8): perm(q, jj)
        loads_partial(done)
        e.label(done)
        if c.prio: I("s_setprio 0")
    def mfmas(first, k16=False):
        if c.x_nomfma: return
        for q in range(8):
            d = f"v[{ACC+4*q}:{ACC+4*q+3}]"
            if k16: I(f"v_mfma_f32_16x16x16_bf16 {d}, v[{A}:{A+1}], v[{B+2*q}:{B+2*q+1}], {'0' if first else d}")
            else: I(f"v_mfma_f32_16x16x32_bf16 {d}, v[{A}:{A+3}], v[{B+4*q}:{B+4*q+3}], {'0' if first else d}")
    def tr_read(hf):
        I(f"ds_read_b64_tr_b16 v[{A}:{A+1}], v{VTRA} offset:{512*hf}")
        I(f"ds_read_b64_tr_b16 v[{A+2}:{A+3}], v{VTRA} offset:{512*hf+256}")

    setup_item("L2_g_done")
    prep_block()
    I(f"s_mov_b32 s{sL}, s{sR}")
    I(f"s_cmp_le_u32 s{sL}, 28")
    I("s_cbranch_scc1 L2_i_part")
    for i in range(8): ld(i)
    I("s_branch L2_A1")
    e.label("L2_i_part")
    loads_partial("L2_A1")
    for first in (1, 0):
        e.label(f"L2_A{first}")
        tr_read(0)
        I(f"s_cmp_gt_u32 s{sR}, 32")
        I(f"s_cbranch_scc1 L2_AB{first}")
        I(f"s_mov_b32 s{sCF}, {first}")
        I(f"s_mov_b32 s{sCR}, s{sR}")
        I("s_branch L2_XN")
        e.label(f"L2_AB{first}")
        off_read(1)
        I(f"s_sub_u32 s{sL}, s{sR}, 32")
        I("s_waitcnt lgkmcnt(0)")
        off_add()
        perms_loads()
        mfmas(first)
        if first: I("s_branch L2_B")
    e.label("L2_B")
    tr_read(1)
    I(f"s_cmp_gt_u32 s{sR}, 64")
    I("s_cbranch_scc0 L2_BN")
    I(f"s_sub_u32 s{sR}, s{sR}, 64")
    I(f"s_add_u32 s{sA}, s{sA}, 1024")
    I(f"s_mov_b32 s{sL}, s{sR}")
    prep_block()
    perms_loads()
    I("s_waitcnt lgkmcnt(0)")
    mfmas(0)
    I("s_branch L2_A0")
    e.label("L2_BN")
    I(f"s_mov_b32 s{sCF}, 0")
    I(f"s_sub_u32 s{sCR}, s{sR}, 32")
    e.label("L2_XN")
    I(f"s_mov_b32 s{sCN}, s{sN}")
    I(f"s_mov_b32 s{sCH}, s{sH}")
    I(f"s_mov_b32 s{sNV}, 1")
    setup_item("L2_XN_none")
    I(f"s_mov_b32 s{sL}, s{sR}")
    prep_block()
    I("s_branch L2_XN_go")
    e.label("L2_XN_none")
    I(f"s_mov_b32 s{sNV}, 0")
    I(f"s_mov_b32 s{sL}, 0")
    e.label("L2_XN_go")
    I(f"s_cmp_le_u32 s{sCR}, 16")
    I("s_cbranch_scc1 L2_XN_k16")
    perms_loads()
    I("s_waitcnt lgkmcnt(0)")
    I(f"s_cmp_eq_u32 s{sCF}, 0")
    I("s_cbranch_scc1 L2_XN_acc")
    mfmas(1)
    I("s_branch L2_XN_epi")
    e.label("L2_XN_acc")
    mfmas(0)
    I("s_branch L2_XN_epi")
    e.label("L2_XN_k16")
    I("s_waitcnt vmcnt(0)")
    if c.prio: I(f"s_setprio {c.prio}")
    for jj in range(2):
        for q in range(8): perm(q, jj, True)
    I(f"s_cmp_le_u32 s{sL}, 28")
    I("s_cbranch_scc1 L2_XN_k16p")
    for i in range(8): ld(i)
    I("s_branch L2_XN_k16d")
    e.label("L2_XN_k16p")
    loads_partial("L2_XN_k16d")
    e.label("L2_XN_k16d")
    if c.prio: I("s_setprio 0")
    I("s_waitcnt lgkmcnt(0)")
    I(f"s_cmp_eq_u32 s{sCF}, 0")
    I("s_cbranch_scc1 L2_XN_k16acc")
    mfmas(1, True)
    I("s_branch L2_XN_epi")
    e.label("L2_XN_k16acc")
    mfmas(0, True)
    e.label("L2_XN_epi")
    I(f"s_lshl_b32 s42, s{sCH}, 5")
    I(f"v_add_u32 v{VT0}, s42, v{VWR}")
    for q in range(8):
        I(f"ds_read_b128 v[{B+4*q}:{B+4*q+3}], v{VT0} offset:{q*1024}")
    I(f"s_lshr_b32 s43, s{sCN}, 4")
    I(f"s_lshl_b32 s43, s43, 2")
    I(f"s_cmp_eq_u32 s{sCH}, 0")
    I("s_cbranch_scc1 L2_nowar")
    I(f"v_mov_b32 v{VT1}, s43")
    I("s_mov_b32 s45, 0")
    e.label("L2_war")
    I(f"ds_read_b32 v{VT0}, v{VT1} offset:{GDONE}")
    I("s_waitcnt lgkmcnt(0)")
    I(f"v_readfirstlane_b32 s44, v{VT0}")
    e.nop(1)
    I("s_cmp_ge_u32 s44, 4")
    I("s_cbranch_scc1 L2_war_ok")
    I("s_add_u32 s45, s45, 1")
    I("s_cmp_lt_u32 s45, 0x400000")
    I("s_cbranch_scc1 L2_war")
    e.label("L2_war_ok")
    I("s_add_u32 s43, s43, 16")
    e.label("L2_nowar")
    I(f"s_and_b32 s44, s{sCN}, 15")
    I("s_lshl_b32 s44, s44, 4")
    I(f"s_lshl_b32 s45, s{sCN}, 10")
    I(f"s_add_u32 s45, s45, {T}")
    I(f"v_xor_b32 v{VT0}, s44, v{VL16}")
    I(f"v_add_u32 v{VT0}, s45, v{VT0}")
    I(f"v_mov_b32 v{VT1}, s43")
    I("s_waitcnt lgkmcnt(0)")
    for q in range(8):
        I(f"v_mul_f32 v{B+4*q}, v{B+4*q}, v{ACC+4*q}")
    for d in range(1, 4):
        for q in range(8):
            I(f"v_fmac_f32 v{B+4*q}, v{B+4*q+d}, v{ACC+4*q+d}")
    for k in range(4):
        I(f"v_cvt_pk_bf16_f32 v{A+k}, v{B+8*k}, v{B+8*k+4}")
    I(f"ds_write_b128 v{VT0}, v[{A}:{A+3}]")
    I("s_waitcnt lgkmcnt(0)")
    I("s_mov_b64 exec, 1")
    I(f"ds_add_u32 v{VT1}, v{VONE} offset:{DONE}")
    I("s_mov_b64 exec, -1")
    I(f"s_cmp_lg_u32 s{sNV}, 0")
    I("s_cbranch_scc1 L2_A1")

def gather_loop2(e, c, L):
    I = e.I
    RAW, T, WRAD, NEXT, DONE, GDONE = (L[k] for k in ("RAW", "T", "WRAD", "NEXT", "DONE", "GDONE"))
    VINFO, VNEXT, VLOFF, VMASK, VOW, VOR, VSCRW, VTRA, VRAWC, VL16, VSELA, VSELB = (L[k] for k in
        "VINFO VNEXT VLOFF VMASK VOW VOR VSCRW VTRA VRAWC VL16 VSELA VSELB".split())
    ACC, BUF, BT, A, R = 0, (32, 64), 96, 104, 120
    OSC = 2048
    sA, sR, sH, sBase, sRem, sD2 = 32, 33, 34, 35, 36, 37
    sD = (38, 39)
    def fetch_issue():
        I("s_mov_b64 exec, 1")
        I(f"ds_inc_rtn_u32 v{VNEXT}, v{VL16}, v{VMASK} offset:{NEXT}")
        I("s_mov_b64 exec, -1")
    def advance(tag):
        I(f"s_cmp_lg_u32 s{sR}, 0")
        I(f"s_cbranch_scc1 L3_cont{tag}")
        I(f"v_readfirstlane_b32 s42, v{VNEXT}")
        I(f"s_mov_b32 s{sD2}, 0")
        I(f"s_cmp_ge_u32 s42, {2*NODES}")
        I(f"s_cbranch_scc1 L3_adv_done{tag}")
        item_to_node(e, c, 42, sH, 43)
        b_wait(e, L, 43, R, VL16, tag)
        I(f"v_readlane_b32 s42, v{VINFO}, s43")
        I(f"s_lshl_b32 s43, s43, 16")
        I(f"s_or_b32 s{sBase}, s43, s{sH}")
        I(f"s_or_b32 s{sBase}, s{sBase}, 10")
        I(f"s_lshr_b32 s{sR}, s42, 16")
        I("s_and_b32 s42, s42, 0xffff")
        I(f"s_lshl_b32 s{sA}, s42, 4")
        I(f"s_branch L3_have{tag}")
        e.label(f"L3_cont{tag}")
        I(f"s_add_u32 s{sA}, s{sA}, 512")
        I(f"s_andn2_b32 s{sBase}, s{sBase}, 2")
        e.label(f"L3_have{tag}")
        I(f"v_add_u32 v{R}, s{sA}, v{VRAWC}")
        I(f"s_lshl_b32 s{sRem}, s{sR}, 4")
        I(f"ds_read_b128 v[{R}:{R+3}], v{R} offset:{RAW}")
        I(f"s_cmp_gt_u32 s{sR}, 32")
        I(f"s_cbranch_scc0 L3_lastst{tag}")
        I(f"s_mov_b32 s{sD2}, s{sBase}")
        I(f"s_sub_u32 s{sR}, s{sR}, 32")
        I(f"s_branch L3_adv_done{tag}")
        e.label(f"L3_lastst{tag}")
        I(f"s_cmp_le_u32 s{sR}, 16")
        I("s_cselect_b32 s42, 5, 4")
        I(f"s_or_b32 s{sD2}, s{sBase}, s42")
        I(f"s_mov_b32 s{sR}, 0")
        fetch_issue()
        e.label(f"L3_adv_done{tag}")
    def prep(p, tag):
        X = BUF[p]
        t = X
        I(f"v_cmp_gt_u32 vcc, s{sRem}, v{VRAWC}")
        I(f"v_lshrrev_b32 v{t+1}, 16, v{R+3}")
        I(f"v_lshlrev_b32 v{t+1}, 9, v{t+1}")
        I(f"v_cndmask_b32 v{t+1}, 2.0, v{t+1}, vcc")
        I(f"ds_write_b32 v{VOW}, v{t+1} offset:{OSC+128*p}")
        I(f"ds_read_b128 v[{BT}:{BT+3}], v{VOR} offset:{OSC+128*p}")
        I(f"ds_read_b128 v[{BT+4}:{BT+7}], v{VOR} offset:{OSC+128*p+16}")
        if not c.x_noexp:
            I(f"v_cndmask_b32 v{R}, 0, v{R}, vcc")
            I(f"v_cndmask_b32 v{R+1}, 0, v{R+1}, vcc")
            I(f"v_perm_b32 v{t+2}, v{R+2}, 1.0, v{VSELA}")
            I(f"v_perm_b32 v{t+3}, v{R+3}, v{R+2}, v{VSELB}")
            I(f"v_lshlrev_b32 v{t+5}, 16, v{R}")
            I(f"v_and_b32 v{t+6}, v{VMASK}, v{R}")
            I(f"v_lshlrev_b32 v{t+7}, 16, v{R+1}")
            I(f"v_and_b32 v{t+9}, v{VMASK}, v{R+1}")
            ea = (t+5, t+6, t+7, t+9)
            pr = (t+10, t+11, t+13, t+14, t+15, t+17, t+18, t+19)
            for k in range(4): I(f"v_mul_f32 v{pr[k]}, v{ea[k]}, v{t+2}")
            for k in range(4): I(f"v_mul_f32 v{pr[4+k]}, v{ea[k]}, v{t+3}")
            for k in range(4): I(f"v_cvt_pk_bf16_f32 v{R+k}, v{pr[2*k]}, v{pr[2*k+1]}")
        I(f"ds_write_b128 v{VSCRW}, v[{R}:{R+3}] offset:{1024*p}")
        I("s_waitcnt lgkmcnt(1)")
        so = '0' if c.x_samehalf else f"s{sH}"
        for i in range(4):
            I(f"v_add_u32 v{X+4*i}, v{BT+i}, v{VLOFF}")
        if not c.x_noload:
            for i in range(4):
                I(f"buffer_load_dwordx4 v[{X+4*i}:{X+4*i+3}], v{X+4*i}, s[4:7], {so} offen")
        I(f"s_bitcmp1_b32 s{sD2}, 0")
        I(f"s_cbranch_scc1 L3_half{tag}")
        for i in range(4, 8):
            I(f"v_add_u32 v{X+4*i}, v{BT+i}, v{VLOFF}")
        if not c.x_noload:
            for i in range(4, 8):
                I(f"buffer_load_dwordx4 v[{X+4*i}:{X+4*i+3}], v{X+4*i}, s[4:7], {so} offen")
        e.label(f"L3_half{tag}")
    def compute(p, half, first):
        X = BUF[p]
        nj = 2 if half else 4
        def perms(q):
            if c.x_noperm: return
            for jj in range(nj):
                I(f"v_perm_b32 v{BT+4*(q&1)+jj}, v{X+4*(2*jj+1)+q//2}, v{X+4*(2*jj)+q//2}, s{29 if q & 1 else 28}")
        def mf(q):
            if c.x_nomfma: return
            d = f"v[{ACC+4*q}:{ACC+4*q+3}]"
            b = BT + 4*(q&1)
            if half: I(f"v_mfma_f32_16x16x16_bf16 {d}, v[{A}:{A+1}], v[{b}:{b+1}], {'0' if first else d}")
            else: I(f"v_mfma_f32_16x16x32_bf16 {d}, v[{A}:{A+3}], v[{b}:{b+3}], {'0' if first else d}")
        perms(0)
        for q in range(8):
            if q < 7: perms(q + 1)
            mf(q)
    def epilogue(p):
        X = BUF[p]
        d = sD[p]
        I(f"s_and_b32 s42, s{d}, 256")
        I("s_lshl_b32 s42, s42, 5")
        I(f"s_add_u32 s42, s42, {WRAD}")
        I(f"v_add_u32 v{BT+4}, s42, v{VL16}")
        for q in range(8):
            I(f"ds_read_b128 v[{X+4*q}:{X+4*q+3}], v{BT+4} offset:{q*1024}")
        I(f"s_lshr_b32 s43, s{d}, 20")
        I("s_lshl_b32 s43, s43, 2")
        I(f"s_bitcmp1_b32 s{d}, 8")
        I(f"s_cbranch_scc0 L3_nowar{p}")
        I(f"v_mov_b32 v{BT+5}, s43")
        I("s_mov_b32 s45, 0")
        e.label(f"L3_war{p}")
        I(f"ds_read_b32 v{BT+4}, v{BT+5} offset:{GDONE}")
        I("s_waitcnt lgkmcnt(0)")
        I(f"v_readfirstlane_b32 s44, v{BT+4}")
        I("s_add_u32 s45, s45, 1")
        I("s_cmp_ge_u32 s44, 4")
        I(f"s_cbranch_scc1 L3_war_ok{p}")
        I("s_cmp_lt_u32 s45, 0x400000")
        I(f"s_cbranch_scc1 L3_war{p}")
        e.label(f"L3_war_ok{p}")
        I("s_add_u32 s43, s43, 16")
        e.label(f"L3_nowar{p}")
        I(f"s_lshr_b32 s44, s{d}, 12")
        I("s_and_b32 s44, s44, 0xf0")
        I(f"s_lshr_b32 s45, s{d}, 16")
        I("s_lshl_b32 s45, s45, 10")
        I(f"s_add_u32 s45, s45, {T}")
        I(f"v_xor_b32 v{BT+4}, s44, v{VL16}")
        I(f"v_add_u32 v{BT+4}, s45, v{BT+4}")
        I(f"v_mov_b32 v{BT+5}, s43")
        I("s_waitcnt lgkmcnt(0)")
        for q in range(8):
            I(f"v_mul_f32 v{X+4*q}, v{X+4*q}, v{ACC+4*q}")
        for dd in range(1, 4):
            for q in range(8):
                I(f"v_fmac_f32 v{X+4*q}, v{X+4*q+dd}, v{ACC+4*q+dd}")
        for k in range(4):
            I(f"v_cvt_pk_bf16_f32 v{BT+k}, v{X+8*k}, v{X+8*k+4}")
        I(f"ds_write_b128 v{BT+4}, v[{BT}:{BT+3}]")
        I("s_waitcnt lgkmcnt(0)")
        I("s_mov_b64 exec, 1")
        I(f"ds_inc_u32 v{BT+5}, v{VMASK} offset:{DONE}")
        I("s_mov_b64 exec, -1")

    I(f"s_mov_b32 s{sR}, 0")
    advance("i0")
    I(f"s_mov_b32 s{sD[0]}, s{sD2}")
    I(f"s_cmp_eq_u32 s{sD2}, 0")
    I("s_cbranch_scc1 L2_g_done")
    I("s_waitcnt lgkmcnt(0)")
    prep(0, "i0")
    advance("i1")
    I(f"s_mov_b32 s{sD[1]}, s{sD2}")
    I(f"s_cmp_eq_u32 s{sD2}, 0")
    I("s_cbranch_scc1 L3_top0")
    I("s_waitcnt lgkmcnt(0)")
    prep(1, "i1")
    for p in range(2):
        e.label(f"L3_top{p}")
        I(f"ds_read_b64_tr_b16 v[{A}:{A+1}], v{VTRA} offset:{1024*p}")
        I(f"ds_read_b64_tr_b16 v[{A+2}:{A+3}], v{VTRA} offset:{1024*p+512}")
        advance(str(p))
        o = sD[1-p]
        I(f"s_bitcmp1_b32 s{o}, 0")
        I(f"s_cbranch_scc1 L3_w4_{p}")
        I(f"s_cmp_eq_u32 s{o}, 0")
        I(f"s_cbranch_scc1 L3_w0_{p}")
        I("s_waitcnt vmcnt(8) lgkmcnt(0)")
        I(f"s_branch L3_wd_{p}")
        e.label(f"L3_w0_{p}")
        I("s_waitcnt vmcnt(0)")
        e.label(f"L3_w4_{p}")
        I("s_waitcnt vmcnt(4) lgkmcnt(0)")
        e.label(f"L3_wd_{p}")
        d = sD[p]
        I(f"s_bitcmp1_b32 s{d}, 0")
        I(f"s_cbranch_scc1 L3_ch_{p}")
        I(f"s_bitcmp1_b32 s{d}, 1")
        I(f"s_cbranch_scc1 L3_cff_{p}")
        compute(p, 0, 0)
        I(f"s_branch L3_cd_{p}")
        e.label(f"L3_cff_{p}")
        compute(p, 0, 1)
        I(f"s_branch L3_cd_{p}")
        e.label(f"L3_ch_{p}")
        I(f"s_bitcmp1_b32 s{d}, 1")
        I(f"s_cbranch_scc1 L3_chf_{p}")
        compute(p, 1, 0)
        I(f"s_branch L3_ep_{p}")
        e.label(f"L3_chf_{p}")
        compute(p, 1, 1)
        I(f"s_branch L3_ep_{p}")
        e.label(f"L3_cd_{p}")
        I(f"s_bitcmp1_b32 s{d}, 2")
        I(f"s_cbranch_scc0 L3_noep_{p}")
        e.label(f"L3_ep_{p}")
        epilogue(p)
        e.label(f"L3_noep_{p}")
        I(f"s_mov_b32 s{d}, s{sD2}")
        I(f"s_cmp_eq_u32 s{sD2}, 0")
        I(f"s_cbranch_scc1 L3_noprep_{p}")
        prep(p, str(p))
        e.label(f"L3_noprep_{p}")
        I(f"s_cmp_lg_u32 s{o}, 0")
        if p == 0:
            I("s_cbranch_scc0 L2_g_done")
        else:
            I("s_cbranch_scc1 L3_top0")

HEADER = """; equiformer tensor-product message passing, one persistent launch (250 workgroups, one per CU):
; (write-through stores, table entries tagged with a per-launch tag agreed through d_debug); phase 2 sorts a
"""

def generate(c):
    e = Emitter()
    e.raw('.amdgcn_target "amdgcn-amd-amdhsa--gfx950"')
    e.raw(".text")
    k = gen_main(e, c)
    head = HEADER + f"; @launch grid=(250,1,1) block=(1024,1,1) lds={c.lds}\n"
    tail = '.section .rodata,"a"\n.p2align 6\n' + kd(*k)
    return head + e.text() + tail

if __name__ == "__main__":
    c = Cfg()
    out = sys.argv[1]
    for kv in sys.argv[2:]:
        k, v = kv.split("=", 1)
        old = getattr(c, k)
        setattr(c, k, type(old)(int(v)) if isinstance(old, (bool, int)) else v.replace("+", " "))
    open(out, "w").write(generate(c))
```

```python
import sys
from emit import Emitter

N, E = 12500, 800000
NB, NODES = 250, 50
NCH, CH = 250, 3200
CSTRIDE = 58496
KEYOFF, PAYOFF, TABOFF = 0, 3200, 54400
HN = 25
WSBYTES = NCH * CSTRIDE
KNAME = "gather_scatter__tensor_product_equiv_equiformer__graph_kernel"

class Cfg:
    st_flags = "sc1"
    ld_flags = "nt"
    rec_flags = "sc1"
    tab_flags = "sc1"
    out_flags = ""
    pfx_lines = 0
    pfx_pos = "store"
    pf2b_lines = 0
    pf2b_tile = 2
    stamps = False
    cap = 1888
    x_noperm = 0
    x_noexp = 0
    x_nomfma = 0
    x_noload = 0
    x_samehalf = 0
    prio = 0
    codepf = 0
    sleep = 32
    psleep = 4
    probe = ""
    poll_all = 0
    bdelay = -1
    keyfirst = 1
    x_flags = ""
    x_nob = 0
    bsleep = 0
    reorder = 1
    splitw = 1
    ppipe = 0
    late_b = 1
    dbuf = 0
    wpos = 0
    tagpos = 0

def srd(e, d, b, nbytes):
    e.I(f"s_mov_b32 s{d}, s{b}")
    e.I(f"s_mov_b32 s{d+1}, s{b+1}")
    e.I(f"s_mov_b32 s{d+2}, {nbytes}")
    e.I(f"s_mov_b32 s{d+3}, 0x20000")

def scan64(e, v):
    for sh in (1, 2, 4, 8):
        e.I(f"v_add_u32_dpp v{v}, v{v}, v{v} row_shr:{sh} row_mask:0xf bank_mask:0xf")
    e.I(f"v_add_u32_dpp v{v}, v{v}, v{v} row_bcast:15 row_mask:0xa bank_mask:0xf")
    e.I(f"v_add_u32_dpp v{v}, v{v}, v{v} row_bcast:31 row_mask:0xc bank_mask:0xf")

def prefetch_x(e, nlines, vt, vtid, nthreads, slice_s, half, srdx):
    if nlines <= 0: return 0
    e.I(f"s_mul_i32 s46, s{slice_s}, 782")
    e.I(f"s_mov_b32 s47, {nlines}")
    it = (nlines + nthreads - 1) // nthreads
    for k in range(it):
        e.I(f"v_add_u32 v{vt}, {k*nthreads}, v{vtid}")
        e.I(f"v_cmp_gt_u32 vcc, s47, v{vt}")
        e.I(f"v_add_u32 v{vt}, s46, v{vt}")
        e.I(f"v_and_b32 v{vt+1}, 1, v{vt}")
        e.I(f"v_lshrrev_b32 v{vt}, 1, v{vt}")
        e.I(f"v_lshlrev_b32 v{vt}, 9, v{vt}")
        e.I(f"v_lshl_add_u32 v{vt}, v{vt+1}, 7, v{vt}")
        e.I(f"v_cndmask_b32 v{vt}, 2.0, v{vt}, vcc")
        e.I(f"buffer_load_dword v{vt+2}, v{vt}, s[{srdx}:{srdx+3}], 0 offen offset:{half*256}")
    return it

STV, TIDV = 127, 126
def stamp(e, c, slot):
    if not c.stamps: return
    e.I("s_memrealtime s[90:91]")
    e.I("s_waitcnt lgkmcnt(0)")
    e.I(f"v_writelane_b32 v{STV}, s90, {slot}")

def cstamp(e, c, slot):
    if not c.stamps: return
    e.I("s_memtime s[90:91]")
    e.I("s_waitcnt lgkmcnt(0)")
    e.I(f"v_writelane_b32 v{STV}, s90, {slot}")

def stamp_store(e, c, vtmp):
    if not c.stamps: return
    e.I(f"v_lshrrev_b32 v{vtmp}, 6, v{TIDV}")
    e.I(f"s_lshl_b32 s90, s2, 4")
    e.I(f"v_add_u32 v{vtmp}, s90, v{vtmp}")
    e.I(f"v_lshlrev_b32 v{vtmp}, 7, v{vtmp}")
    e.I(f"v_and_b32 v{vtmp+1}, 63, v{TIDV}")
    e.I(f"v_lshl_add_u32 v{vtmp}, v{vtmp+1}, 2, v{vtmp}")
    e.I(f"v_cmp_gt_u32 vcc, 32, v{vtmp+1}")
    e.I(f"v_cndmask_b32 v{vtmp}, 2.0, v{vtmp}, vcc")
    e.I(f"s_mov_b32 s90, {16 << 20}")
    e.I(f"buffer_store_dword v{STV}, v{vtmp}, s[8:11], s90 offen")

def kernel_header(e, name):
    e.raw(f".globl {name}")
    e.raw(".p2align 8")
    e.raw(f".type {name},@function")
    e.raw(f"{name}:")
    e.hist = []

def kd(name, nv, ns):
    return f""".amdhsa_kernel {name}
  .amdhsa_next_free_vgpr {nv}
  .amdhsa_next_free_sgpr {ns}
  .amdhsa_accum_offset {(nv+3)//4*4}
  .amdhsa_group_segment_fixed_size 0
  .amdhsa_kernarg_size 96
  .amdhsa_user_sgpr_count 2
  .amdhsa_user_sgpr_kernarg_segment_ptr 1
  .amdhsa_system_sgpr_workgroup_id_x 1
  .amdhsa_float_denorm_mode_32 3
.end_amdhsa_kernel
"""

def path_of(jp, blk):
    if blk == 0: return (0, 0, 1) if jp == 0 else (2, jp, 1)
    k = blk - 1
    if jp == 0: return (3, 1 + k, 1)
    j = jp - 1
    if j == k: return (1, 0, 1)
    i = 3 - j - k
    return (4, 1 + i, 1 if k == (j + 1) % 3 else -1)

def gen_main(e, c):
    CAP = c.cap
    BOFF = CAP + 64
    HIST, HIST2, CUR2, CNT = 0, 256, 512, 768
    NEXT, DONE, GDONE, BSYNC, BREADY, TOTB = CNT, CNT + 16, CNT + 64, CNT + 80, CNT + 84, CNT + 88
    HISTB, HIST2B, CUR2B, INFO, NONCE = 1024, 1280, 1536, 1792, 2048
    RAW = 2176
    T = (RAW + 2 * BOFF * 16 + 255) // 256 * 256
    WRAD = T + NODES * 1024
    SCR = WRAD + 16384
    H1 = WRAD
    SSTR, PL1, OSC = 2368, 1056, 2080
    lds = max(SCR + 12 * SSTR, T + 64 * 1024)
    assert lds <= 163840 and 2 * BOFF >= 3200 + 64, lds
    c.lds = lds
    kernel_header(e, KNAME)
    I = e.I
    wsbytes = (32 << 20) if c.stamps else WSBYTES
    I("s_cmp_ge_u32 s2, 250")
    I("s_cbranch_scc1 L_end")
    if c.stamps:
        I(f"v_mov_b32 v{STV}, 0")
        I(f"v_mov_b32 v{TIDV}, v0")
    stamp(e, c, 0)
    cstamp(e, c, 26)
    I("s_load_dwordx8 s[32:39], s[0:1], 0")
    I("s_load_dwordx8 s[40:47], s[0:1], 32")
    I("s_load_dwordx4 s[80:83], s[0:1], 72")
    I("s_load_dwordx2 s[84:85], s[0:1], 88")
    I("v_lshlrev_b32 v1, 4, v0")
    I("v_lshlrev_b32 v2, 5, v0")
    I("v_mul_u32_u24 v3, 24, v0")
    I("v_readfirstlane_b32 s21, v0")
    I("s_mul_i32 s48, s2, 12800")
    I("s_mul_i32 s49, s2, 25600")
    I("s_mul_i32 s50, s2, 19200")
    I("s_lshr_b32 s21, s21, 6")
    I("s_movk_i32 s51, 800")
    I("v_cmp_gt_u32 vcc, s51, v0")
    I("s_waitcnt lgkmcnt(0)")
    srd(e, 64, 40, E * 4)
    srd(e, 60, 38, E * 4)
    srd(e, 56, 36, E * 8)
    srd(e, 52, 34, E * 6)
    I("s_cmp_ge_u32 s21, 13")
    I("s_cbranch_scc1 L1_setup")
    I("s_and_saveexec_b64 s[26:27], vcc")
    lf = c.ld_flags
    I(f"buffer_load_dwordx4 v[4:7], v1, s[64:67], s48 offen {lf}")
    I(f"buffer_load_dwordx4 v[8:11], v1, s[60:63], s48 offen {lf}")
    I(f"buffer_load_dwordx4 v[12:15], v2, s[56:59], s49 offen {lf}")
    I(f"buffer_load_dwordx4 v[16:19], v2, s[56:59], s49 offen offset:16 {lf}")
    I(f"buffer_load_dwordx4 v[20:23], v3, s[52:55], s50 offen {lf}")
    I(f"buffer_load_dwordx2 v[24:25], v3, s[52:55], s50 offen offset:16 {lf}")
    I("s_mov_b64 exec, -1")
    e.label("L1_setup")
    srd(e, 4, 32, N * 512)
    srd(e, 8, 84, wsbytes)
    srd(e, 12, 80, N * 512)
    srd(e, 16, 42, 2560)
    srd(e, 68, 44, 16384)
    srd(e, 72, 46, 24576)
    srd(e, 76, 82, 256)
    I("s_and_b32 s20, s2, 7")
    I("s_min_u32 s22, s20, 2")
    I("s_mul_i32 s20, s20, 31")
    I("s_add_u32 s20, s20, s22")
    I("s_lshr_b32 s31, s2, 3")
    I("s_add_u32 s20, s20, s31")
    I("s_mov_b32 s22, 0")
    I("s_movk_i32 s23, 250")
    I("s_mov_b32 s24, 1")
    I("s_mov_b32 s28, 0x05040100")
    I("s_mov_b32 s29, 0x07060302")
    I("s_mov_b32 s30, 0xffff0000")
    I(f"s_mul_i32 s51, s2, {CSTRIDE}")
    I("s_cmp_ge_u32 s21, 13")
    I("s_cbranch_scc1 L1_aux")
    I(f"s_mov_b32 s46, {H1}")
    I("v_lshl_add_u32 v40, v0, 2, s46")
    I("v_mov_b32 v41, 0")
    I("v_mov_b32 v42, 1")
    I("s_mov_b32 s48, -25")
    I(f"s_movk_i32 s49, {RAW+PAYOFF}")
    I("s_mov_b32 s50, 0x05040302")
    I("s_movk_i32 s47, 249")
    I("s_cmp_ge_u32 s21, 8")
    I("s_cbranch_scc1 L1_nz")
    I("ds_write_b32 v40, v41")
    I("s_waitcnt lgkmcnt(0)")
    e.label("L1_nz")
    I("s_barrier")
    I("s_and_b64 exec, exec, vcc")
    I("s_waitcnt vmcnt(5)")
    stamp(e, c, 1)
    for i in range(4):
        I(f"v_mul_u32_u24 v{44+i}, 0x147b, v{4+i}")
    for i in range(4):
        I(f"v_lshrrev_b32 v{44+i}, 17, v{44+i}")
    for i in range(4):
        I(f"v_cmp_lt_u32 s[{32+2*i}:{33+2*i}], s47, v{44+i}")
    for i in range(4):
        I(f"v_cndmask_b32 v{36+i}, 0, 1, s[{32+2*i}:{33+2*i}]")
    for i in range(4):
        I(f"v_sub_u32 v{48+i}, v{44+i}, v{36+i}")
        I(f"v_mad_u32_u24 v{44+i}, v{36+i}, 6, v{44+i}")
    for i in range(4):
        I(f"v_mad_i32_i24 v{4+i}, v{48+i}, s48, v{4+i}")
        I(f"v_lshl_add_u32 v{44+i}, v{44+i}, 2, s46")
    for i in range(4):
        I(f"ds_add_rtn_u32 v{36+i}, v{44+i}, v42")
    I("s_waitcnt lgkmcnt(0)")
    I("s_barrier")
    I("s_cmp_lg_u32 s21, 0")
    I("s_cbranch_scc1 L1_noscan")
    I("v_add_u32 v60, s46, v2")
    I("ds_read_b128 v[52:55], v60")
    I("ds_read_b128 v[56:59], v60 offset:16")
    I("s_waitcnt lgkmcnt(0)")
    I("v_mov_b32 v64, 0")
    I("v_mov_b32 v65, v52")
    for k in range(2, 8):
        I(f"v_add_u32 v{64+k}, v{63+k}, v{51+k}")
    I("v_add_u32 v61, v71, v59")
    I("v_mov_b32 v62, v61")
    scan64(e, 62)
    I("v_sub_u32 v62, v62, v61")
    for k in range(8):
        I(f"v_add_u32 v{64+k}, v{64+k}, v62")
    I("ds_write_b128 v60, v[64:67] offset:2048")
    I("ds_write_b128 v60, v[68:71] offset:2064")
    for k in range(8):
        I(f"v_lshl_or_b32 v{52+k}, v{52+k}, 12, v{64+k}")
    I("v_readlane_b32 s88, v62, 32")
    I("s_waitcnt lgkmcnt(0)")
    e.label("L1_noscan")
    I("s_barrier")
    for i in range(4):
        I(f"ds_read_b32 v{44+i}, v{44+i} offset:2048")
    I("s_waitcnt lgkmcnt(0)")
    for i in range(4):
        I(f"v_add_u32 v{36+i}, v{36+i}, v{44+i}")
        I(f"v_lshl_add_u32 v{44+i}, v{36+i}, 4, s49")
    for i in range(4):
        I(f"ds_write_b8 v{36+i}, v{4+i} offset:{RAW+KEYOFF}")
    if c.splitw:
        I("s_waitcnt vmcnt(2)")
        for i in range(4):
            I(f"ds_write_b64 v{44+i}, v[{12+2*i}:{13+2*i}]")
        I("s_waitcnt vmcnt(1)")
        I("v_mov_b32 v28, v20")
        I("v_perm_b32 v29, v8, v21, s28")
        I("ds_write_b64 v44, v[28:29] offset:8")
        I("v_alignbit_b32 v30, v22, v21, 16")
        I("v_perm_b32 v31, v9, v22, s50")
        I("ds_write_b64 v45, v[30:31] offset:8")
        I("s_waitcnt vmcnt(0)")
        stamp(e, c, 2)
        I("v_mov_b32 v32, v23")
        I("v_perm_b32 v33, v10, v24, s28")
        I("ds_write_b64 v46, v[32:33] offset:8")
        I("v_alignbit_b32 v34, v25, v24, 16")
        I("v_perm_b32 v35, v11, v25, s50")
        I("ds_write_b64 v47, v[34:35] offset:8")
    else:
        I("s_waitcnt vmcnt(0)")
        stamp(e, c, 2)
        I("v_mov_b32 v28, v20")
        I("v_perm_b32 v29, v8, v21, s28")
        I("ds_write2_b64 v44, v[12:13], v[28:29] offset0:0 offset1:1")
        I("v_alignbit_b32 v30, v22, v21, 16")
        I("v_perm_b32 v31, v9, v22, s50")
        I("ds_write2_b64 v45, v[14:15], v[30:31] offset0:0 offset1:1")
        I("v_mov_b32 v32, v23")
        I("v_perm_b32 v33, v10, v24, s28")
        I("ds_write2_b64 v46, v[16:17], v[32:33] offset0:0 offset1:1")
        I("v_alignbit_b32 v34, v25, v24, 16")
        I("v_perm_b32 v35, v11, v25, s50")
        I("ds_write2_b64 v47, v[18:19], v[34:35] offset0:0 offset1:1")
    I("s_mov_b64 exec, -1")
    I("s_waitcnt lgkmcnt(0)")
    I("s_branch L1_copy")
    e.label("L1_aux")
    I("v_subrev_u32 v64, 832, v0")
    I("v_lshlrev_b32 v65, 4, v64")
    if c.codepf:
        I("s_getpc_b64 s[40:41]")
        I(f"s_mov_b32 s42, {c.codepf*1024}")
        I("s_mov_b32 s43, 0x20000")
        I("v_lshlrev_b32 v72, 7, v64")
        I("buffer_load_dword v73, v72, s[40:43], 0 offen")
    I("s_cmp_lg_u32 s21, 15")
    I("s_cbranch_scc1 L1_notag")
    I("s_cmp_lg_u32 s2, 0")
    I("s_cbranch_scc1 L1_notag")
    I("s_memrealtime s[44:45]")
    I("s_waitcnt lgkmcnt(0)")
    I("s_and_b32 s45, s45, 0x7f")
    I("s_or_b32 s45, s45, 0x80")
    I("s_lshl_b32 s45, s45, 24")
    I("v_mov_b32 v68, s44")
    I("v_mov_b32 v69, s45")
    I("s_mov_b64 exec, 1")
    I("buffer_store_dwordx2 v[68:69], off, s[76:79], 0 sc1")
    I("s_mov_b64 exec, -1")
    e.label("L1_notag")
    I("s_cmp_lg_u32 s21, 13")
    I("s_cbranch_scc1 L1_nozero")
    for k in range(4): I(f"v_mov_b32 v{4+k}, 0")
    I("ds_write_b128 v65, v[4:7]")
    I("ds_write_b128 v65, v[4:7] offset:1024")
    e.label("L1_nozero")
    if c.pfx_pos == "start": prefetch_x(e, c.pfx_lines, 60, 64, 192, 31, 0, 4)
    I("s_barrier"); I("s_barrier"); I("s_barrier")
    I("s_cmp_lg_u32 s21, 15")
    I("s_cbranch_scc1 L1_notag2")
    I("s_mov_b32 s44, 0")
    e.label("L1_tagpoll")
    I("buffer_load_dwordx2 v[68:69], off, s[76:79], 0 sc1")
    I("s_add_u32 s44, s44, 1")
    I("s_waitcnt vmcnt(0)")
    I("v_readfirstlane_b32 s45, v69")
    e.nop(1)
    I("s_cmp_lg_u32 s45, 0")
    I("s_cbranch_scc1 L1_tagok")
    I("s_cmp_lt_u32 s44, 0x100000")
    I("s_cbranch_scc1 L1_tagpoll")
    e.label("L1_tagok")
    I("v_mov_b32 v70, 0")
    I("s_mov_b64 exec, 1")
    I(f"ds_write_b64 v70, v[68:69] offset:{NONCE}")
    I("s_mov_b64 exec, -1")
    e.label("L1_notag2")
    for k in range(8):
        I(f"s_movk_i32 s46, {k*3072}")
        I(f"buffer_load_dwordx4 v[{28+4*k}:{31+4*k}], v65, s[72:75], s46 offen")
    for k in range(6):
        I(f"s_movk_i32 s46, {k*3072}")
        I(f"buffer_load_dwordx4 v[{72+4*k}:{75+4*k}], v65, s[68:71], s46 offen")
    if c.pfx_pos == "sort": prefetch_x(e, c.pfx_lines, 60, 64, 192, 31, 0, 4)
    I("s_waitcnt lgkmcnt(0)")
    e.flush()
    e.label("L1_copy")
    I("s_barrier")
    stamp(e, c, 3)
    I(f"ds_read_b128 v[20:23], v1 offset:{RAW+49152}")
    I(f"ds_read_b128 v[8:11], v1 offset:{RAW}")
    I(f"ds_read_b128 v[12:15], v1 offset:{RAW+16384}")
    I(f"ds_read_b128 v[16:19], v1 offset:{RAW+32768}")
    I("v_mov_b32 v25, 0")
    I(f"ds_read_b64 v[26:27], v25 offset:{NONCE}")
    I("v_add_u32 v2, 16384, v1")
    I("v_add_u32 v3, 32768, v1")
    I("v_add_u32 v24, 49152, v1")
    I("s_movk_i32 s48, 328")
    I("v_cmp_gt_u32 vcc, s48, v0")
    sf = c.st_flags
    def st_b(tag):
        if c.x_nob: return
        if c.bsleep and tag == "g": I(f"s_sleep {c.bsleep}")
        I(f"buffer_store_dwordx4 v[16:19], v3, s[8:11], s51 offen {sf}")
        I("s_mov_b64 exec, s[26:27]")
        I(f"s_cbranch_execz L1_st_skip{tag}")
        I(f"buffer_store_dwordx4 v[20:23], v24, s[8:11], s51 offen {sf}")
        e.label(f"L1_st_skip{tag}")
        I("s_mov_b64 exec, -1")
    if c.late_b:
        I("s_mov_b64 s[26:27], vcc")
        I("s_waitcnt lgkmcnt(3)")
        I(f"buffer_store_dwordx4 v[8:11], v1, s[8:11], s51 offen {sf}")
        I("s_waitcnt lgkmcnt(2)")
        I(f"buffer_store_dwordx4 v[12:15], v2, s[8:11], s51 offen {sf}")
        I("s_waitcnt lgkmcnt(0)")
    else:
        I("s_and_saveexec_b64 s[26:27], vcc")
        I("s_cbranch_execz L1_st_skip")
        I("s_waitcnt lgkmcnt(4)")
        I(f"buffer_store_dwordx4 v[20:23], v24, s[8:11], s51 offen {sf}")
        e.label("L1_st_skip")
        I("s_mov_b64 exec, -1")
        I("s_waitcnt lgkmcnt(3)")
        I(f"buffer_store_dwordx4 v[8:11], v1, s[8:11], s51 offen {sf}")
        I("s_waitcnt lgkmcnt(2)")
        I(f"buffer_store_dwordx4 v[12:15], v2, s[8:11], s51 offen {sf}")
        I("s_waitcnt lgkmcnt(1)")
        I(f"buffer_store_dwordx4 v[16:19], v3, s[8:11], s51 offen {sf}")
        I("s_waitcnt lgkmcnt(0)")
    I("v_readfirstlane_b32 s86, v26")
    I("v_readfirstlane_b32 s87, v27")
    stamp(e, c, 4)
    I("s_cmp_lt_u32 s21, 4")
    e.branch("s_cbranch_scc1 L2_gemm")

    npost = 0
    if c.pfx_pos == "post" and c.pfx_lines:
        I("v_subrev_u32 v99, 256, v0")
        npost = prefetch_x(e, c.pfx_lines, 96, 99, 768, 31, 0, 4)
    if c.dbuf:
        VINFO, VNEXT, VLOFF, VMASK, VOW, VOR, VSCRW, VTRA, VRAWC, VL16, VSELA, VSELB = range(108, 120)
        VLANE, VT0, VT1, VONE, VJ, VCH = 120, 121, 122, 123, 124, 125
        VSEG, VZERO, VWR = 107, 106, None
        I(f"v_and_b32 v{VLANE}, 63, v0")
        I(f"v_mov_b32 v{VMASK}, s30")
        I(f"v_and_b32 v{VT0}, 15, v{VLANE}")
        I(f"v_lshlrev_b32 v{VLOFF}, 4, v{VT0}")
        I(f"v_lshrrev_b32 v{VT1}, 4, v{VLANE}")
        I(f"v_lshlrev_b32 v{VL16}, 4, v{VLANE}")
        I("s_sub_u32 s43, s21, 4")
        I(f"s_mul_i32 s43, s43, {SSTR}")
        I(f"s_add_u32 s43, s43, {SCR}")
        I(f"v_add_u32 v{VSCRW}, s43, v{VL16}")
        I(f"v_lshlrev_b32 v{VOR}, 5, v{VT1}")
        I(f"v_add_u32 v{VOR}, s43, v{VOR}")
        I(f"v_bfe_u32 v{VT0}, v{VLANE}, 2, 2")
        I(f"v_lshl_add_u32 v{VTRA}, v{VT0}, 7, v{VOR}")
        I(f"v_and_b32 v{VT0}, 3, v{VLANE}")
        I(f"v_lshl_add_u32 v{VTRA}, v{VT0}, 3, v{VTRA}")
        I(f"v_lshrrev_b32 v{VT0}, 1, v{VLANE}")
        I(f"v_lshlrev_b32 v{VRAWC}, 4, v{VT0}")
        I(f"v_and_b32 v{VT1}, 3, v{VT0}")
        I(f"v_lshrrev_b32 v{VT0}, 2, v{VT0}")
        I(f"v_lshl_add_u32 v{VOW}, v{VT1}, 3, v{VT0}")
        I(f"v_lshlrev_b32 v{VOW}, 2, v{VOW}")
        I(f"v_add_u32 v{VOW}, s43, v{VOW}")
        I(f"v_and_b32 v{VT0}, 1, v{VLANE}")
        I(f"v_cmp_eq_u32 vcc, 1, v{VT0}")
        I(f"v_mov_b32 v{VSELA}, 0x03020100")
        I(f"v_mov_b32 v{VT0}, 0x07060c0c")
        I(f"v_cndmask_b32 v{VSELA}, v{VSELA}, v{VT0}, vcc")
        I(f"v_mov_b32 v{VSELB}, 0x01000c0c")
        I(f"v_mov_b32 v{VT0}, 0x05040c0c")
        I(f"v_cndmask_b32 v{VSELB}, v{VSELB}, v{VT0}, vcc")
    else:
        VLANE, VINFO, VNEXT = 108, 109, 110
        VLOFF, VMASK, VOW, VOR, VSCRW, VTRA, VWR, VL16 = 111, 112, 113, 114, 115, 116, 117, 118
        VT0, VT1, VONE, VZERO = 119, 120, 121, 122
        VJ, VCH, VSEG = 123, 124, 125
        I(f"v_and_b32 v{VLANE}, 63, v0")
        I(f"v_subrev_u32 v{VT0}, 256, v0")
        I(f"v_and_b32 v{VJ}, 15, v{VT0}")
        I(f"v_lshrrev_b32 v{VSEG}, 4, v{VT0}")
        I(f"s_mov_b32 s42, {CSTRIDE}")
        I(f"v_mul_u32_u24 v{VCH}, s42, v{VSEG}")
        I(f"v_mov_b32 v{VONE}, 1")
        I(f"v_mov_b32 v{VZERO}, 0")
        I(f"v_mov_b32 v{VMASK}, s30")
        I(f"v_and_b32 v{VT0}, 15, v{VLANE}")
        I(f"v_lshlrev_b32 v{VLOFF}, 4, v{VT0}")
        I(f"v_lshrrev_b32 v{VT1}, 4, v{VLANE}")
        I(f"v_lshlrev_b32 v{VL16}, 4, v{VLANE}")
        I("s_sub_u32 s43, s21, 4")
        I(f"s_mul_i32 s43, s43, {SSTR}")
        I(f"s_add_u32 s43, s43, {SCR}")
        I(f"v_add_u32 v{VSCRW}, s43, v{VL16}")
        I(f"v_lshlrev_b32 v{VOR}, 5, v{VT1}")
        I(f"v_add_u32 v{VOR}, s43, v{VOR}")
        I(f"v_lshlrev_b32 v{VTRA}, 4, v{VT1}")
        I(f"v_bfe_u32 v{VT1}, v{VLANE}, 2, 2")
        I(f"v_lshl_add_u32 v{VTRA}, v{VT1}, 6, v{VTRA}")
        I(f"v_and_b32 v{VT1}, 1, v{VLANE}")
        I(f"v_lshl_add_u32 v{VTRA}, v{VT1}, 3, v{VTRA}")
        I(f"v_bfe_u32 v{VT1}, v{VLANE}, 1, 1")
        I(f"v_mul_u32_u24 v{VT1}, {PL1}, v{VT1}")
        I(f"v_add3_u32 v{VTRA}, v{VTRA}, v{VT1}, s43")
        I(f"v_and_b32 v{VOW}, 32, v{VLANE}")
        I(f"v_and_b32 v{VT1}, 3, v{VLANE}")
        I(f"v_lshl_add_u32 v{VOW}, v{VT1}, 3, v{VOW}")
        I(f"v_bfe_u32 v{VT1}, v{VLANE}, 2, 3")
        I(f"v_add_u32 v{VOW}, v{VOW}, v{VT1}")
        I(f"v_lshlrev_b32 v{VOW}, 2, v{VOW}")
        I(f"v_add_u32 v{VOW}, s43, v{VOW}")
        I(f"v_add_u32 v{VWR}, {WRAD}, v{VL16}")
    NP, NW = 3, 3
    for p in range(NP):
        I(f"s_mov_b32 s{74+p}, {96*p*CSTRIDE+PAYOFF}")
        I(f"s_mov_b32 s{80+p}, {96*p*CSTRIDE+KEYOFF}")
    I("s_mov_b32 s88, s20")
    I("s_mov_b32 s89, 0")
    I(f"s_movk_i32 s48, {HN}")
    I(f"s_waitcnt vmcnt({(0 if c.late_b else 1)+npost})")
    stamp(e, c, 6)
    I("s_barrier")
    if c.late_b: st_b("g")
    I("s_cmp_lt_u32 s21, 13")
    I("s_cbranch_scc1 L2_noW")
    I(f"v_add_u32 v65, {T}, v65")
    for k in range(8):
        I(f"ds_write_b128 v65, v[{28+4*k}:{31+4*k}] offset:{16384 + k*3072}")
    for k in range(5):
        I(f"ds_write_b128 v65, v[{72+4*k}:{75+4*k}] offset:{k*3072}")
    I("s_cmp_lg_u32 s21, 13")
    I("s_cbranch_scc1 L2_noW")
    I(f"ds_write_b128 v65, v[92:95] offset:{5*3072}")
    e.label("L2_noW")
    I("s_waitcnt lgkmcnt(0)")
    I(f"s_waitcnt vmcnt({npost})")
    stamp(e, c, 5)
    I("s_barrier")
    PAY, KEY, RNK, TAB, KAD, PAD, X = 0, 36, 45, 54, 60, 63, 68
    MSK = 50
    rf = c.rec_flags
    e.label("L2_g_round")
    I(f"v_lshrrev_b32 v{VLANE}, 4, v{VL16}")
    I("s_sub_u32 s42, s21, 4")
    I("s_lshl_b32 s42, s42, 3")
    I(f"v_and_b32 v{VJ}, 7, v{VLANE}")
    I(f"v_lshrrev_b32 v{VSEG}, 3, v{VLANE}")
    I(f"v_add_u32 v{VSEG}, s42, v{VSEG}")
    I(f"s_mov_b32 s42, {CSTRIDE}")
    I(f"v_mul_u32_u24 v{VCH}, s42, v{VSEG}")
    I(f"v_mov_b32 v{VONE}, 1")
    I(f"v_cmp_gt_u32 s[46:47], {NCH-192}, v{VSEG}")
    I("s_lshl_b32 s43, s88, 3")
    I(f"s_add_u32 s43, s43, {TABOFF}")
    I("s_mov_b32 s44, 0")
    def tagdiff(dst, reg, tmp):
        I(f"v_xor_b32 v{dst}, s87, v{reg}")
        I(f"v_lshrrev_b32 v{dst}, 24, v{dst}")
        I(f"v_xor_b32 v{tmp}, s86, v{reg+1}")
        I(f"v_or_b32 v{dst}, v{dst}, v{tmp}")
    if c.ppipe:
        TAB2 = 0
        def tab_issue(r, tag):
            I(f"v_mov_b32 v{r+4}, s87")
            I(f"v_mov_b32 v{r+5}, s86")
            I("s_mov_b32 s42, s43")
            for p in range(NP):
                if p: I(f"s_add_u32 s42, s42, {96*CSTRIDE}")
                if p == NP - 1:
                    I(f"v_cndmask_b32 v{X+3}, 2.0, v{VCH}, s[46:47]")
                    I(f"buffer_load_dwordx2 v[{r+6}:{r+7}], v{X+3}, s[8:11], s42 offen {c.tab_flags}")
                else:
                    I(f"buffer_load_dwordx2 v[{r+2*p}:{r+2*p+1}], v{VCH}, s[8:11], s42 offen {c.tab_flags}")
        def tab_check(r, ok):
            I(f"v_cndmask_b32 v{r+4}, v{r+4}, v{r+6}, s[46:47]")
            I(f"v_cndmask_b32 v{r+5}, v{r+5}, v{r+7}, s[46:47]")
            tagdiff(X, r, X+1)
            for p in range(1, NP):
                tagdiff(X+2, r+2*p, X+1)
                I(f"v_or_b32 v{X}, v{X}, v{X+2}")
            I(f"v_cmp_ne_u32 vcc, 0, v{X}")
            I("s_add_u32 s44, s44, 1")
            e.nop(2)
            I("s_cmp_eq_u64 vcc, 0")
            I(f"s_cbranch_scc1 {ok}")
        tab_issue(8, "a")
        I(f"s_sleep {c.psleep}")
        e.label("L2_poll1")
        tab_issue(16, "b")
        I("s_waitcnt vmcnt(3)")
        tab_check(8, "L2_pollA_ok")
        tab_issue(8, "c")
        I("s_waitcnt vmcnt(3)")
        tab_check(16, "L2_pollB2_ok")
        I("s_cmp_lt_u32 s44, 0x100000")
        I("s_cbranch_scc1 L2_poll1")
        e.label("L2_pollB2_ok")
        for k in range(6): I(f"v_mov_b32 v{TAB+k}, v{16+k}")
        I("s_branch L2_poll1_ok")
        e.label("L2_pollA_ok")
        for k in range(6): I(f"v_mov_b32 v{TAB+k}, v{8+k}")
    else:
        e.label("L2_poll1")
        I(f"v_mov_b32 v{TAB+4}, s87")
        I(f"v_mov_b32 v{TAB+5}, s86")
        I("s_mov_b32 s42, s43")
        for p in range(NP):
            if p: I(f"s_add_u32 s42, s42, {96*CSTRIDE}")
            if p == NP - 1:
                I("s_mov_b64 exec, s[46:47]")
                I("s_cbranch_execz L2_notabl")
            I(f"buffer_load_dwordx2 v[{TAB+2*p}:{TAB+2*p+1}], v{VCH}, s[8:11], s42 offen {c.tab_flags}")
        e.label("L2_notabl")
        I("s_mov_b64 exec, -1")
        I("s_waitcnt vmcnt(0)")
        tagdiff(X, TAB, X+1)
        for p in range(1, NP):
            tagdiff(X+2, TAB+2*p, X+1)
            I(f"v_or_b32 v{X}, v{X}, v{X+2}")
        I(f"v_cmp_ne_u32 vcc, 0, v{X}")
        I("s_add_u32 s44, s44, 1")
        e.nop(2)
        I("s_cmp_eq_u64 vcc, 0")
        I("s_cbranch_scc1 L2_poll1_ok")
        I(f"s_sleep {c.psleep}")
        I("s_cmp_lt_u32 s44, 0x100000")
        I("s_cbranch_scc1 L2_poll1")
    e.label("L2_poll1_ok")
    stamp(e, c, 7)
    I(f"v_add_u32 v{X+1}, 8, v{VJ}")
    I(f"v_add_u32 v{X+2}, 16, v{VJ}")
    def msk(p, w): return f"s[{MSK+6*p+2*w}:{MSK+6*p+2*w+1}]"
    for p in range(NP):
        cnt = TAB + 2*p
        I(f"s_sub_u32 s42, {96*p}, s22")
        I(f"v_add_u32 v{X}, s42, v{VSEG}")
        I(f"v_cmp_gt_u32 vcc, s23, v{X}")
        I(f"v_and_b32 v{KAD+p}, 0xfff, v{cnt}")
        I(f"v_bfe_u32 v{cnt}, v{cnt}, 12, 12")
        I(f"v_add_u32 v{KAD+p}, v{KAD+p}, v{VJ}")
        I(f"v_cndmask_b32 v{cnt}, 0, v{cnt}, vcc")
        I(f"v_lshl_add_u32 v{PAD+p}, v{KAD+p}, 4, v{VCH}")
        I(f"v_add_u32 v{KAD+p}, v{KAD+p}, v{VCH}")
        I(f"v_cmp_lt_u32 {msk(p,0)}, v{VJ}, v{cnt}")
        I(f"v_cmp_lt_u32 {msk(p,1)}, v{X+1}, v{cnt}")
        I(f"v_cmp_lt_u32 {msk(p,2)}, v{X+2}, v{cnt}")
        I(f"v_cndmask_b32 v{PAD+p}, 2.0, v{PAD+p}, {msk(p,0)}")
    e.flush()
    def pay(p, w): return f"v[{PAY+12*p+4*w}:{PAY+12*p+4*w+3}]"
    if c.keyfirst:
        for w in range(NW):
            for p in range(NP):
                I(f"s_mov_b64 exec, {msk(p,w)}")
                I(f"s_cbranch_execz L2_kskip{p}{w}")
                I(f"buffer_load_ubyte v{KEY+3*p+w}, v{KAD+p}, s[8:11], s{80+p} offen offset:{8*w} {rf}")
                e.label(f"L2_kskip{p}{w}")
        I("s_waitcnt vmcnt(0)")
        for w in range(NW):
            for p in range(NP):
                I(f"s_mov_b64 exec, {msk(p,w)}")
                I(f"s_cbranch_execz L2_pskip{p}{w}")
                I(f"buffer_load_dwordx4 {pay(p,w)}, v{PAD+p}, s[8:11], s{74+p} offen offset:{128*w} {rf}")
                e.label(f"L2_pskip{p}{w}")
        I("s_mov_b64 exec, -1")
    else:
        for p in range(NP):
            I(f"s_mov_b64 exec, {msk(p,2)}")
            I(f"s_cbranch_execz L2_w2skip{p}")
            I(f"buffer_load_ubyte v{KEY+3*p+2}, v{KAD+p}, s[8:11], s{80+p} offen offset:16 {rf}")
            I(f"buffer_load_dwordx4 {pay(p,2)}, v{PAD+p}, s[8:11], s{74+p} offen offset:256 {rf}")
            e.label(f"L2_w2skip{p}")
        for w in range(2):
            for p in range(NP):
                I(f"s_mov_b64 exec, {msk(p,w)}")
                I(f"s_cbranch_execz L2_kskip{p}{w}")
                I(f"buffer_load_ubyte v{KEY+3*p+w}, v{KAD+p}, s[8:11], s{80+p} offen offset:{8*w} {rf}")
                e.label(f"L2_kskip{p}{w}")
        I("s_mov_b64 exec, -1")
        for p in range(NP):
            if p == NP - 1:
                I("s_cmp_ge_u32 s21, 12")
                I("s_cbranch_scc1 L2_plskip")
            I(f"buffer_load_dwordx4 {pay(p,0)}, v{PAD+p}, s[8:11], s{74+p} offen {rf}")
        e.label("L2_plskip")
        for p in range(NP):
            I(f"s_mov_b64 exec, {msk(p,1)}")
            I(f"s_cbranch_execz L2_w1skip{p}")
            I(f"buffer_load_dwordx4 {pay(p,1)}, v{PAD+p}, s[8:11], s{74+p} offen offset:128 {rf}")
            e.label(f"L2_w1skip{p}")
        I("s_mov_b64 exec, -1")
        I(f"s_cmp_eq_u64 {msk(0,1)}, 0")
        I("s_cbranch_scc1 L2_kw2")
        I(f"s_cmp_eq_u64 {msk(1,1)}, 0")
        I("s_cbranch_scc1 L2_kw2")
        I("s_waitcnt vmcnt(4)")
        I("s_branch L2_kwd")
        e.label("L2_kw2")
        I("s_waitcnt vmcnt(2)")
        e.label("L2_kwd")
    stamp(e, c, 8)
    for k in range(NP*NW):
        I(f"v_lshlrev_b32 v{KEY+k}, 2, v{KEY+k}")
    for p in range(NP):
        for w in range(NW):
            I(f"s_mov_b64 exec, {msk(p,w)}")
            if w == 2: I(f"s_cbranch_execz L2_ra{p}")
            I(f"ds_add_rtn_u32 v{RNK+3*p+w}, v{KEY+3*p+w}, v{VONE} offset:{HIST}")
        e.label(f"L2_ra{p}")
    I("s_mov_b64 exec, -1")
    I(f"v_max3_u32 v{VT0}, v{TAB}, v{TAB+2}, v{TAB+4}")
    I(f"v_cmp_lt_u32 vcc, {8*NW}, v{VT0}")
    I("s_mov_b32 s25, 0")
    e.flush()
    I("s_cmp_eq_u64 vcc, 0")
    I("s_cbranch_scc1 L2_noextraA")
    I("s_mov_b32 s25, 1")
    for p in range(NP):
        I(f"v_add_u32 v{VT0}, {8*NW}, v{VJ}")
        I(f"v_add_u32 v{VT1}, {8*NW}, v{KAD+p}")
        e.label(f"L2_xa{p}")
        I(f"v_cmp_lt_u32 vcc, v{VT0}, v{TAB+2*p}")
        I("s_and_saveexec_b64 s[44:45], vcc")
        e.branch(f"s_cbranch_execz L2_xa{p}_done")
        I(f"buffer_load_ubyte v{X}, v{VT1}, s[8:11], s{80+p} offen {rf}")
        I("s_waitcnt vmcnt(0)")
        I(f"v_lshlrev_b32 v{X}, 2, v{X}")
        I(f"ds_add_u32 v{X}, v{VONE} offset:{HIST2}")
        I("s_mov_b64 exec, -1")
        I(f"v_add_u32 v{VT0}, 8, v{VT0}")
        I(f"v_add_u32 v{VT1}, 8, v{VT1}")
        e.branch(f"s_branch L2_xa{p}")
        e.label(f"L2_xa{p}_done")
        I("s_mov_b64 exec, -1")
    e.label("L2_noextraA")
    I("s_waitcnt lgkmcnt(0)")
    stamp(e, c, 14)
    I("s_barrier")
    stamp(e, c, 15)
    C1, CT, BS = X, X + 1, X + 2
    I(f"v_lshlrev_b32 v{VT0}, 2, v{VLANE}")
    I(f"ds_read_b32 v{C1}, v{VT0} offset:{HIST}")
    I(f"ds_read_b32 v{CT}, v{VT0} offset:{HIST2}")
    I("s_waitcnt lgkmcnt(0)")
    I(f"v_add_u32 v{CT}, v{C1}, v{CT}")
    I(f"v_mov_b32 v{BS}, v{CT}")
    scan64(e, BS)
    I(f"v_readlane_b32 s46, v{BS}, 63")
    I(f"v_sub_u32 v{BS}, v{BS}, v{CT}")
    I(f"v_lshl_or_b32 v{VINFO}, v{CT}, 16, v{BS}")
    I(f"s_cmp_eq_u32 s23, 1")
    I(f"s_cselect_b32 s42, -1, {CAP}")
    e.flush()
    I(f"s_cmp_gt_u32 s46, s42")
    I("s_cbranch_scc1 L2_g_overflow")
    for p in range(NP):
        for w in range(2):
            I(f"ds_bpermute_b32 v{KEY+3*p+w}, v{KEY+3*p+w}, v{BS}")
    I(f"s_or_b64 s[44:45], {msk(0,2)}, {msk(1,2)}")
    I(f"s_or_b64 s[44:45], s[44:45], {msk(2,2)}")
    I("s_cbranch_scc0 L2_now2")
    for p in range(NP):
        I(f"ds_bpermute_b32 v{KEY+3*p+2}, v{KEY+3*p+2}, v{BS}")
    e.label("L2_now2")
    I("s_cmp_lg_u32 s21, 5")
    I("s_cbranch_scc1 L2_noinfo")
    I(f"s_mov_b64 exec, {(1 << HN) - 1}")
    I(f"ds_write_b32 v{VT0}, v{VINFO} offset:{INFO}")
    I("s_mov_b64 exec, -1")
    e.label("L2_noinfo")
    I("s_waitcnt lgkmcnt(0)")
    for k in range(NP*NW):
        I(f"v_add_lshl_u32 v{KEY+k}, v{KEY+k}, v{RNK+k}, 4")
    stamp(e, c, 27)
    I("s_waitcnt vmcnt(0)")
    stamp(e, c, 9)
    for p in range(NP):
        for w in range(NW):
            I(f"s_mov_b64 exec, {msk(p,w)}")
            I(f"s_cbranch_execz L2_sc{p}")
            I(f"ds_write_b128 v{KEY+3*p+w}, {pay(p,w)} offset:{RAW}")
        e.label(f"L2_sc{p}")
    I("s_mov_b64 exec, -1")
    I("s_cmp_eq_u32 s25, 0")
    I("s_cbranch_scc1 L2_noextraB")
    I(f"v_add_u32 v{BS}, v{BS}, v{C1}")
    for p in range(NP):
        I(f"v_add_u32 v{VT0}, {8*NW}, v{VJ}")
        I(f"v_add_u32 v{VT1}, {8*NW}, v{KAD+p}")
        I(f"v_add_u32 v{X+3}, {128*NW}, v{PAD+p}")
        e.label(f"L2_xb{p}")
        I(f"v_cmp_lt_u32 vcc, v{VT0}, v{TAB+2*p}")
        I("s_and_saveexec_b64 s[44:45], vcc")
        e.branch(f"s_cbranch_execz L2_xb{p}_done")
        I(f"buffer_load_ubyte v{X+4}, v{VT1}, s[8:11], s{80+p} offen {rf}")
        I(f"buffer_load_dwordx4 v[{X+8}:{X+11}], v{X+3}, s[8:11], s{74+p} offen {rf}")
        I("s_waitcnt vmcnt(0)")
        I(f"v_lshlrev_b32 v{X+4}, 2, v{X+4}")
        I(f"ds_add_rtn_u32 v{X+5}, v{X+4}, v{VONE} offset:{CUR2}")
        I("s_mov_b64 exec, -1")
        I(f"ds_bpermute_b32 v{X+4}, v{X+4}, v{BS}")
        I("s_waitcnt lgkmcnt(0)")
        I(f"v_add_lshl_u32 v{X+4}, v{X+4}, v{X+5}, 4")
        I("s_mov_b64 exec, vcc")
        I(f"ds_write_b128 v{X+4}, v[{X+8}:{X+11}] offset:{RAW}")
        I("s_mov_b64 exec, -1")
        I(f"v_add_u32 v{VT0}, 8, v{VT0}")
        I(f"v_add_u32 v{VT1}, 8, v{VT1}")
        I(f"v_add_u32 v{X+3}, 128, v{X+3}")
        e.branch(f"s_branch L2_xb{p}")
        e.label(f"L2_xb{p}_done")
        I("s_mov_b64 exec, -1")
    e.label("L2_noextraB")
    ACC, LD, B, A, AD = 0, 32, 64, 96, 100
    I("s_waitcnt lgkmcnt(0)")
    for k in range(4 if c.dbuf else 32):
        I(f"v_mov_b32 v{LD+k}, 0")
    I("s_cmp_lg_u32 s21, 4")
    I("s_cbranch_scc1 L2_noguard")
    I("s_lshl_b32 s46, s46, 4")
    I(f"v_add_u32 v{VT0}, s46, v{VL16}")
    I(f"ds_write_b128 v{VT0}, v[{LD}:{LD+3}] offset:{RAW}")
    I("s_waitcnt lgkmcnt(0)")
    e.label("L2_noguard")
    stamp(e, c, 28)
    I("s_barrier")
    I(f"ds_read_b32 v{VT0}, v{VL16} offset:{TOTB}")
    I("s_mov_b64 exec, 1")
    I(f"ds_inc_rtn_u32 v{VNEXT}, v{VL16}, v{VMASK} offset:{NEXT}")
    I("s_mov_b64 exec, -1")
    I("s_waitcnt lgkmcnt(0)")
    I(f"v_readfirstlane_b32 s42, v{VT0}")
    e.nop(1)
    I(f"s_cmp_gt_u32 s42, {CAP}")
    I("s_cbranch_scc1 L2_g_overflow")
    stamp(e, c, 10)
    cstamp(e, c, 24)
    (gather_loop2 if c.dbuf else gather_loop)(e, c, locals())
    e.label("L2_g_done")
    stamp(e, c, 11)
    cstamp(e, c, 25)
    I("s_cmp_lg_u32 s24, 0")
    e.branch("s_cbranch_scc1 L2_g_exit")
    I("s_add_u32 s89, s89, 1")
    I("s_branch L2_g_slow")
    e.label("L2_g_overflow")
    I("s_mov_b32 s89, 0")
    I("s_mov_b32 s23, 1")
    I("s_movk_i32 s48, 64")
    e.label("L2_g_slow")
    I("s_waitcnt vmcnt(0) lgkmcnt(0)")
    I("s_barrier")
    I("s_lshr_b32 s22, s89, 1")
    I("s_and_b32 s88, s89, 1")
    I("s_lshl_b32 s88, s88, 8")
    I("s_add_u32 s88, s88, s20")
    I(f"s_cmp_eq_u32 s89, {2*NCH-1}")
    I("s_cselect_b32 s24, 1, 0")
    I("s_barrier")
    e.branch("s_branch L2_g_round")
    e.label("L2_g_exit")
    stamp_store(e, c, 90)
    I("s_endpgm")

    e.label("L2_gemm")
    W, G, TA, TF = 0, 40, 104, 108
    X0, X1 = 124, 125
    I("v_and_b32 v104, 63, v0")
    I("v_mov_b32 v117, v0")
    I("v_lshlrev_b32 v105, 4, v104")
    lut = 0
    for jp in range(4):
        for blk in range(4):
            p, i, s = path_of(jp, blk)
            lut |= (p | (8 if s < 0 else 0)) << (4 * (jp * 4 + blk))
    I(f"s_mov_b32 s44, {lut & 0xffffffff}")
    I(f"s_mov_b32 s45, {lut >> 32}")
    for h in range(2):
        I("v_lshrrev_b32 v106, 4, v104")
        I("v_bfe_u32 v107, v104, 3, 1")
        I("v_lshl_add_u32 v106, v106, 2, v107")
        I(f"v_add_lshl_u32 v106, v106, {2*h}, 2")
        I(f"v_lshrrev_b64 v[108:109], v106, s[44:45]")
        I(f"v_and_b32 v106, 7, v108")
        I(f"v_and_b32 v{110+h}, 8, v108")
        I(f"v_lshlrev_b32 v{110+h}, 28, v{110+h}")
        I("v_and_b32 v107, 7, v104")
        I("v_lshlrev_b32 v107, 3, v107")
        I("v_lshl_add_u32 v106, v106, 6, v107")
        I("v_add_u32 v106, s21, v106")
        I(f"v_lshlrev_b32 v{112+h}, 1, v106")
    I(f"s_add_u32 s49, s51, {TABOFF}")
    def publish(k0, k1):
        for k in range(k0, k1):
            I(f"buffer_store_dwordx4 v[{64+4*k}:{67+4*k}], v105, s[8:11], s49 offen offset:{1024*k} {sf}")
    I("s_cmp_lg_u32 s21, 0")
    I("s_cbranch_scc1 L2_nocomp")
    for i in range(8):
        I(f"v_or_b32 v{64+2*i}, s87, v{52+i}")
        I(f"v_mov_b32 v{65+2*i}, s86")
    I(f"s_mov_b32 s42, {H1}")
    I("v_lshl_add_u32 v114, v104, 6, s42")
    for k in range(4):
        I(f"ds_write_b128 v114, v[{64+4*k}:{67+4*k}] offset:{16*k}")
    I("v_add_u32 v114, s42, v105")
    for k in range(4):
        I(f"ds_read_b128 v[{64+4*k}:{67+4*k}], v114 offset:{1024*k}")
    I("s_waitcnt lgkmcnt(0)")
    e.label("L2_nocomp")
    I("s_mov_b32 s32, 0")
    I(f"s_waitcnt vmcnt({0 if c.late_b else 1})")
    I("s_barrier")
    I("s_cmp_lg_u32 s21, 0")
    I("s_cbranch_scc1 L2_notabA")
    I(f"s_cmp_gt_u32 s88, {(32768-PAYOFF)//16}")
    I("s_cbranch_scc1 L2_notabA")
    publish(0, 2)
    I("s_mov_b32 s32, 1")
    if not c.late_b:
        I("s_waitcnt vmcnt(2)")
        I("s_branch L2_P2")
    e.label("L2_notabA")
    if c.late_b: st_b("m")
    I("s_waitcnt vmcnt(0)")
    e.label("L2_P2")
    stamp(e, c, 5)
    I("s_barrier")
    I("s_cmp_lg_u32 s21, 0")
    I("s_cbranch_scc1 L2_notabB")
    publish(2, 4)
    I("s_cmp_lg_u32 s32, 0")
    I("s_cbranch_scc1 L2_notabB")
    publish(0, 2)
    e.label("L2_notabB")
    WT = 80
    for k in range(4):
        h, qo = k >> 1, (k & 1) * 4
        for d in range(4):
            I(f"buffer_load_ushort v{WT+4*k+d}, v{112+h}, s[16:19], 0 offen offset:{d*640+qo*2}")
    I("v_lshrrev_b32 v106, 4, v104")
    I("v_lshlrev_b32 v106, 10, v106")
    I("v_bfe_u32 v107, v104, 2, 2")
    I("v_lshl_add_u32 v106, v107, 7, v106")
    I("v_and_b32 v107, 3, v104")
    I("v_lshl_add_u32 v106, v107, 3, v106")
    I("s_lshl_b32 s42, s21, 5")
    I(f"s_add_u32 s42, s42, {T}")
    I("v_add_u32 v106, s42, v106")
    for f in range(10):
        I(f"ds_read_b64_tr_b16 v[{W+4*f}:{W+4*f+1}], v106 offset:{f*4096}")
        I(f"ds_read_b64_tr_b16 v[{W+4*f+2}:{W+4*f+3}], v106 offset:{f*4096+512}")
    npf = 0
    if c.pfx_pos == "store": npf = prefetch_x(e, c.pfx_lines, 114, 117, 256, 31, 0, 4)
    I("s_lshl_b32 s42, s21, 10")
    I(f"s_add_u32 s43, s42, {WRAD}")
    I("v_add_u32 v105, s43, v105")
    I(f"s_waitcnt vmcnt({npf})")
    for k in range(4):
        h = k >> 1
        for d in range(4):
            I(f"v_lshlrev_b32 v{WT+4*k+d}, 16, v{WT+4*k+d}")
            I(f"v_xor_b32 v{WT+4*k+d}, v{110+h}, v{WT+4*k+d}")
        I(f"ds_write_b128 v105, v[{WT+4*k}:{WT+4*k+3}] offset:{(k>>1)*8192 + (k&1)*4096}")
    I("v_and_b32 v106, 15, v104")
    I("v_lshrrev_b32 v107, 4, v104")
    I(f"v_lshlrev_b32 v{X0}, 2, v104")
    I(f"s_mul_i32 s42, s20, {HN*512}")
    I("s_lshl_b32 s43, s21, 5")
    I("s_add_u32 s42, s42, s43")
    I(f"v_lshlrev_b32 v{X1}, 9, v106")
    I(f"v_lshl_add_u32 v{X1}, v107, 3, v{X1}")
    I(f"v_add_u32 v{X1}, s42, v{X1}")
    I(f"v_cmp_gt_u32 s[50:51], {NODES-48}, v106")
    I(f"v_cmp_le_u32 s[84:85], {HN-16}, v106")
    I("v_lshlrev_b32 v108, 10, v106")
    I(f"v_add_u32 v108, {T}, v108")
    for u in (3, 2, 1, 0):
        I(f"v_add_u32 v109, {4*u}, v107")
        I("v_xor_b32 v109, v109, v106")
        I(f"v_lshl_add_u32 v{TF+4+u}, v109, 4, v108")
    I("s_waitcnt lgkmcnt(0)")
    for u in range(4):
        I(f"v_mov_b32 v{TA+u}, v{TF+4+u}")
    I("s_mov_b32 s89, 0")
    NPB = 8
    TB, SJ, KB, RB = 40, 56, 64, 80
    LJ, LCH, LONE, Y = 96, 97, 98, 99
    I(f"v_lshrrev_b32 v{Y}, 2, v{X0}")
    I(f"v_and_b32 v{LJ}, 7, v{Y}")
    I(f"v_lshrrev_b32 v{Y}, 3, v{Y}")
    I("s_lshl_b32 s42, s21, 3")
    I(f"v_add_u32 v{Y}, s42, v{Y}")
    I(f"s_mov_b32 s42, {CSTRIDE}")
    I(f"v_mul_u32_u24 v{LCH}, s42, v{Y}")
    I(f"v_cmp_gt_u32 s[46:47], {NCH-224}, v{Y}")
    I(f"v_mov_b32 v{LONE}, 1")
    I("s_lshl_b32 s36, s20, 3")
    I(f"s_add_u32 s36, s36, {TABOFF+2048}")
    I("s_mov_b32 s44, 0")
    def tabB_issue():
        I(f"v_mov_b32 v{TB+14}, s87")
        I(f"v_mov_b32 v{TB+15}, s86")
        I("s_mov_b32 s42, s36")
        for p in range(NPB):
            if p: I(f"s_add_u32 s42, s42, {32*CSTRIDE}")
            if p == NPB - 1: I("s_mov_b64 exec, s[46:47]")
            I(f"buffer_load_dwordx2 v[{TB+2*p}:{TB+2*p+1}], v{LCH}, s[8:11], s42 offen {c.tab_flags}")
        I("s_mov_b64 exec, -1")
    if c.bdelay > 0: I(f"s_sleep {c.bdelay}")
    if c.bdelay >= 0: tabB_issue()
    stamp(e, c, 14)
    e.label("L2_m_round")
    I("s_barrier")
    def pf_here(pos):
        if c.pfx_pos == pos and c.pfx_lines:
            I("s_lshl_b32 s42, s21, 6")
            I(f"v_lshrrev_b32 v{TF+11}, 2, v{X0}")
            I(f"v_add_u32 v{TF+11}, s42, v{TF+11}")
            prefetch_x(e, c.pfx_lines, TF + 8, TF + 11, 256, 31, 0, 4)
    I(f"ds_read_b32 v{TF}, v{X0} offset:{HIST}")
    I(f"ds_read_b32 v{TF+1}, v{X0} offset:{HIST2}")
    I("s_waitcnt lgkmcnt(0)")
    I(f"v_add_u32 v{TF}, v{TF}, v{TF+1}")
    scan64(e, TF)
    I(f"v_readlane_b32 s42, v{TF}, 63")
    I("s_cmp_eq_u32 s23, 1")
    I("s_cbranch_scc1 L2_m_slowC")
    e.flush()
    I(f"s_cmp_gt_u32 s42, {CAP}")
    I("s_cbranch_scc1 L2_m_overflow")
    NPB = 8
    TB, SJ, KB, RB = 40, 56, 64, 80
    LJ, LCH, LONE, Y = 96, 97, 98, 99
    MB = 52
    def mb(p, w): return f"s[{MB+4*p+2*w}:{MB+4*p+2*w+1}]"
    if c.bdelay >= 0: I("s_branch L2_pollB_chk")
    e.label("L2_pollB")
    tabB_issue()
    e.label("L2_pollB_chk")
    I("s_waitcnt vmcnt(0)")
    tagdiff(Y, TB, Y+1)
    for p in range(1, NPB):
        tagdiff(Y+2, TB+2*p, Y+1)
        I(f"v_or_b32 v{Y}, v{Y}, v{Y+2}")
    I(f"v_cmp_ne_u32 vcc, 0, v{Y}")
    I("s_add_u32 s44, s44, 1")
    e.nop(2)
    I("s_cmp_eq_u64 vcc, 0")
    I("s_cbranch_scc1 L2_pollB_ok")
    I(f"s_sleep {c.psleep}")
    I("s_cmp_lt_u32 s44, 0x100000")
    I("s_cbranch_scc1 L2_pollB")
    e.label("L2_pollB_ok")
    stamp(e, c, 7)
    I(f"v_add_u32 v{Y+1}, 8, v{LJ}")
    I(f"v_mov_b32 v{Y}, 0")
    for p in range(NPB):
        cnt = TB + 2*p
        I(f"v_and_b32 v{SJ+p}, 0xfff, v{cnt}")
        I(f"v_bfe_u32 v{cnt}, v{cnt}, 12, 12")
        I(f"v_add_u32 v{SJ+p}, v{SJ+p}, v{LJ}")
        I(f"v_add_u32 v{Y}, v{Y}, v{cnt}")
        I(f"v_cmp_lt_u32 {mb(p,0)}, v{LJ}, v{cnt}")
        I(f"v_cmp_lt_u32 {mb(p,1)}, v{Y+1}, v{cnt}")
        I(f"v_add_u32 v{cnt+1}, v{SJ+p}, v{LCH}")
    I(f"v_mov_b32 v{Y+2}, 0")
    I("s_mov_b32 s42, 0x01010101")
    I("s_mov_b32 s43, 0x01010101")
    I("s_mov_b64 exec, s[42:43]")
    I(f"ds_add_u32 v{Y+2}, v{Y} offset:{TOTB}")
    I("s_mov_b64 exec, -1")
    I("s_waitcnt lgkmcnt(0)")
    pf_here("B")
    I("s_barrier")
    I(f"ds_read_b32 v{Y}, v{Y+2} offset:{TOTB}")
    I("s_waitcnt lgkmcnt(0)")
    I(f"v_readfirstlane_b32 s42, v{Y}")
    e.nop(1)
    I(f"s_cmp_gt_u32 s42, {CAP}")
    I("s_cbranch_scc1 L2_m_overflow")
    stamp(e, c, 10)
    I("s_mov_b32 s34, s42")
    for p in range(NPB):
        I(f"s_mov_b32 s42, {32*p*CSTRIDE+KEYOFF}")
        for w in range(2):
            I(f"s_mov_b64 exec, {mb(p,w)}")
            I(f"buffer_load_ubyte v{KB+2*p+w}, v{TB+2*p+1}, s[8:11], s42 offen offset:{8*w} {rf}")
    I("s_mov_b64 exec, -1")
    I(f"v_max3_u32 v{Y}, v{TB}, v{TB+2}, v{TB+4}")
    I(f"v_max3_u32 v{Y}, v{Y}, v{TB+6}, v{TB+8}")
    I(f"v_max3_u32 v{Y}, v{Y}, v{TB+10}, v{TB+12}")
    I(f"v_max_u32 v{Y}, v{Y}, v{TB+14}")
    I(f"v_cmp_lt_u32 vcc, 16, v{Y}")
    I("s_waitcnt vmcnt(0)")
    I("s_cmp_lg_u64 vcc, 0")
    I("s_cselect_b32 s35, 1, 0")
    for k in range(2*NPB):
        I(f"v_lshlrev_b32 v{KB+k}, 2, v{KB+k}")
    for p in range(NPB):
        for w in range(2):
            I(f"s_mov_b64 exec, {mb(p,w)}")
            I(f"ds_add_rtn_u32 v{RB+2*p+w}, v{KB+2*p+w}, v{LONE} offset:{HISTB}")
    I("s_mov_b64 exec, -1")
    I("s_cmp_eq_u32 s35, 0")
    I("s_cbranch_scc1 L2_bnoxa")
    for p in range(NPB):
        I(f"s_mov_b32 s42, {32*p*CSTRIDE+KEYOFF}")
        I(f"v_add_u32 v{Y}, 16, v{LJ}")
        I(f"v_add_u32 v{Y+1}, 16, v{TB+2*p+1}")
        e.label(f"L2_bxa{p}")
        I(f"v_cmp_lt_u32 vcc, v{Y}, v{TB+2*p}")
        I("s_and_saveexec_b64 s[44:45], vcc")
        e.branch(f"s_cbranch_execz L2_bxa{p}_done")
        I(f"buffer_load_ubyte v{Y+2}, v{Y+1}, s[8:11], s42 offen {rf}")
        I("s_waitcnt vmcnt(0)")
        I(f"v_lshlrev_b32 v{Y+2}, 2, v{Y+2}")
        I(f"ds_add_u32 v{Y+2}, v{LONE} offset:{HIST2B}")
        I("s_mov_b64 exec, -1")
        I(f"v_add_u32 v{Y}, 8, v{Y}")
        I(f"v_add_u32 v{Y+1}, 8, v{Y+1}")
        e.branch(f"s_branch L2_bxa{p}")
        e.label(f"L2_bxa{p}_done")
        I("s_mov_b64 exec, -1")
    e.label("L2_bnoxa")
    P0 = [TF, TF+4, TF+8, TF+12]
    def pay_issue(p, w, reg):
        I(f"s_mov_b32 s42, {32*p*CSTRIDE+PAYOFF}")
        I("s_mov_b64 exec, -1")
        I(f"v_cndmask_b32 v{Y+3+w}, 2.0, v{SJ+p}, {mb(p,w)}")
        I(f"buffer_load_dwordx4 v[{reg}:{reg+3}], v{Y+3+w}, s[8:11], s42 offen offset:{128*w} {rf}")
    for p in range(NPB):
        I(f"v_lshl_add_u32 v{SJ+p}, v{SJ+p}, 4, v{LCH}")
    for k in range(4): pay_issue(k >> 1, k & 1, P0[k])
    I("s_mov_b64 exec, 1")
    I(f"v_mov_b32 v{Y+2}, 0")
    I("s_waitcnt lgkmcnt(0)")
    I(f"ds_add_u32 v{Y+2}, v{LONE} offset:{BSYNC}")
    I("s_mov_b64 exec, -1")
    I(f"v_mov_b32 v{Y+2}, 0")
    I("s_mov_b32 s44, 0")
    e.label("L2_bsync")
    I(f"ds_read_b32 v{Y}, v{Y+2} offset:{BSYNC}")
    I("s_waitcnt lgkmcnt(0)")
    I(f"v_readfirstlane_b32 s42, v{Y}")
    I("s_add_u32 s44, s44, 1")
    I("s_cmp_ge_u32 s42, 4")
    I("s_cbranch_scc1 L2_bsync_ok")
    I("s_cmp_lt_u32 s44, 0x400000")
    I("s_cbranch_scc1 L2_bsync")
    e.label("L2_bsync_ok")
    I(f"ds_read_b32 v{Y}, v{X0} offset:{HISTB}")
    I(f"ds_read_b32 v{Y+1}, v{X0} offset:{HIST2B}")
    I("s_waitcnt lgkmcnt(0)")
    I(f"v_add_u32 v{Y+1}, v{Y}, v{Y+1}")
    I(f"v_mov_b32 v{Y+2}, v{Y+1}")
    scan64(e, Y+2)
    I(f"v_sub_u32 v{Y+2}, v{Y+2}, v{Y+1}")
    I(f"v_add_u32 v{Y+2}, {BOFF}, v{Y+2}")
    for k in range(2*NPB):
        I(f"ds_bpermute_b32 v{KB+k}, v{KB+k}, v{Y+2}")
    I("s_cmp_lg_u32 s21, 0")
    I("s_cbranch_scc1 L2_bnoinfo")
    I(f"v_lshl_or_b32 v{Y+1}, v{Y+1}, 16, v{Y+2}")
    I(f"s_mov_b32 s42, {((1 << 32) - (1 << HN))}")
    I("s_mov_b32 s43, -1")
    I("s_mov_b64 exec, s[42:43]")
    I(f"ds_write_b32 v{X0}, v{Y+1} offset:{INFO}")
    I("s_mov_b64 exec, -1")
    e.label("L2_bnoinfo")
    I("s_waitcnt lgkmcnt(0)")
    for k in range(2*NPB):
        I(f"v_add_lshl_u32 v{KB+k}, v{KB+k}, v{RB+k}, 4")
    I(f"v_add_u32 v{Y+2}, v{Y+2}, v{Y}")
    regs = P0 + [RB, RB+4, RB+8, RB+12]
    for k in range(4, 8): pay_issue(k >> 1, k & 1, regs[k])
    for k in range(16):
        I(f"s_waitcnt vmcnt({min(7, 15-k)})")
        I(f"s_mov_b64 exec, {mb(k>>1, k&1)}")
        I(f"ds_write_b128 v{KB+k}, v[{regs[k&7]}:{regs[k&7]+3}] offset:{RAW}")
        if k + 8 < 16: pay_issue((k+8) >> 1, (k+8) & 1, regs[k&7])
    I("s_mov_b64 exec, -1")
    I("s_cmp_eq_u32 s35, 0")
    I("s_cbranch_scc1 L2_bnoxb")
    for p in range(NPB):
        I(f"s_mov_b32 s42, {32*p*CSTRIDE+KEYOFF}")
        I(f"s_mov_b32 s43, {32*p*CSTRIDE+PAYOFF}")
        I(f"v_add_u32 v{Y}, 16, v{LJ}")
        I(f"v_add_u32 v{Y+1}, 16, v{TB+2*p+1}")
        I(f"v_add_u32 v{SJ+p}, 256, v{SJ+p}")
        e.label(f"L2_bxb{p}")
        I(f"v_cmp_lt_u32 vcc, v{Y}, v{TB+2*p}")
        I("s_and_saveexec_b64 s[44:45], vcc")
        e.branch(f"s_cbranch_execz L2_bxb{p}_done")
        I(f"buffer_load_ubyte v{Y+3}, v{Y+1}, s[8:11], s42 offen {rf}")
        I(f"buffer_load_dwordx4 v[{TF}:{TF+3}], v{SJ+p}, s[8:11], s43 offen {rf}")
        I("s_waitcnt vmcnt(0)")
        I(f"v_lshlrev_b32 v{Y+3}, 2, v{Y+3}")
        I(f"ds_add_rtn_u32 v{Y+4}, v{Y+3}, v{LONE} offset:{CUR2B}")
        I("s_mov_b64 exec, -1")
        I(f"ds_bpermute_b32 v{Y+3}, v{Y+3}, v{Y+2}")
        I("s_waitcnt lgkmcnt(0)")
        I(f"v_add_lshl_u32 v{Y+3}, v{Y+3}, v{Y+4}, 4")
        I("s_mov_b64 exec, vcc")
        I(f"ds_write_b128 v{Y+3}, v[{TF}:{TF+3}] offset:{RAW}")
        I("s_mov_b64 exec, -1")
        I(f"v_add_u32 v{Y}, 8, v{Y}")
        I(f"v_add_u32 v{Y+1}, 8, v{Y+1}")
        I(f"v_add_u32 v{SJ+p}, 128, v{SJ+p}")
        e.branch(f"s_branch L2_bxb{p}")
        e.label(f"L2_bxb{p}_done")
        I("s_mov_b64 exec, -1")
    e.label("L2_bnoxb")
    I("s_waitcnt lgkmcnt(0)")
    for k in range(64):
        I(f"v_mov_b32 v{G+k}, 0")
    I("s_cmp_lg_u32 s21, 1")
    I("s_cbranch_scc1 L2_bnoguard")
    I(f"s_add_u32 s42, s34, {BOFF}")
    I("s_lshl_b32 s42, s42, 4")
    I(f"v_lshl_add_u32 v{TF}, v{X0}, 2, s42")
    I(f"ds_write_b128 v{TF}, v[{G}:{G+3}] offset:{RAW}")
    I("s_waitcnt lgkmcnt(0)")
    e.label("L2_bnoguard")
    I(f"v_mov_b32 v{TF}, 1")
    I("s_mov_b64 exec, 1")
    I(f"ds_add_u32 v{G}, v{TF} offset:{BREADY}")
    I("s_mov_b64 exec, -1")
    stamp(e, c, 13)
    I("s_branch L2_m_tiles")
    e.label("L2_m_slowC")
    I("s_barrier")
    e.label("L2_m_tiles")
    for h in range(2):
        for t in ((0, 3, 1, 2) if h and c.reorder else range(4)):
            need = 16 if t < 3 else NODES - 48
            I(f"v_mov_b32 v{TF}, 0")
            I("s_mov_b32 s43, 0")
            e.label(f"L2_poll{h}{t}")
            I(f"ds_read_b32 v{TF+1}, v{TF} offset:{DONE + 16*h + 4*t}")
            I("s_waitcnt lgkmcnt(0)")
            I(f"v_readfirstlane_b32 s42, v{TF+1}")
            e.nop(1)
            I(f"s_cmp_ge_u32 s42, {need}")
            I(f"s_cbranch_scc1 L2_go{h}{t}")
            I(f"s_sleep {1 if (h, t) == (1, 2) or (h, t, c.reorder) == (1, 3, 0) else c.sleep}")
            I("s_add_u32 s43, s43, 1")
            I("s_cmp_lt_u32 s43, 0x400000")
            I(f"s_cbranch_scc1 L2_poll{h}{t}")
            e.label(f"L2_go{h}{t}")
            stamp(e, c, 16 + 4*h + t)
            def rd(ks):
                I(f"ds_read_b128 v[{TF+4*(ks&3)}:{TF+4*(ks&3)+3}], v{TA+(ks&3)} offset:{t*16384 + (ks>>2)*256}")
            for ks in range(4): rd(ks)
            for ks in range(16):
                jp, blk = ks >> 2, 2 * h + ((ks >> 1) & 1)
                p, i, s = path_of(jp, blk)
                f = p * 2 + (ks & 1)
                I(f"s_waitcnt lgkmcnt({min(3, 15-ks)})")
                g = G + 16 * t + 4 * i
                I(f"v_mfma_f32_16x16x32_bf16 v[{g}:{g+3}], v[{W+4*f}:{W+4*f+3}], v[{TF+4*(ks&3)}:{TF+4*(ks&3)+3}], v[{g}:{g+3}]")
                if ks + 4 < 16: rd(ks + 4)
            if h == 0:
                I(f"v_mov_b32 v{TF}, 0")
                I(f"v_mov_b32 v{TF+1}, 1")
                I("s_mov_b64 exec, 1")
                I(f"ds_add_u32 v{TF}, v{TF+1} offset:{GDONE + 4*t}")
                I("s_mov_b64 exec, -1")
                if t == c.pf2b_tile and c.pf2b_lines:
                    I("s_lshl_b32 s42, s21, 6")
                    I(f"v_lshrrev_b32 v{TF+3}, 2, v{X0}")
                    I(f"v_add_u32 v{TF+3}, s42, v{TF+3}")
                    prefetch_x(e, c.pf2b_lines, TF + 4, TF + 3, 256, 31, 1, 4)
                    I("s_waitcnt vmcnt(0)")
            else:
                I("s_cmp_eq_u32 s24, 0")
                e.branch(f"s_cbranch_scc1 L2_nofin{t}")
                g = G + 16 * t
                I("s_mov_b32 s42, 0xbfb8aa3b")
                for r in range(4): I(f"v_mul_f32 v{TF+r}, s42, v{g+r}")
                for r in range(4): I(f"v_exp_f32 v{TF+r}, v{TF+r}")
                for r in range(4): I(f"v_add_f32 v{TF+r}, 1.0, v{TF+r}")
                for r in range(4): I(f"v_rcp_f32 v{TF+r}, v{TF+r}")
                for i in range(1, 4):
                    for r in range(4): I(f"v_mul_f32 v{g+4*i+r}, v{g+4*i+r}, v{TF+r}")
                for i in range(4):
                    I(f"v_cvt_pk_bf16_f32 v{TF+4+2*i}, v{g+4*i}, v{g+4*i+1}")
                    I(f"v_cvt_pk_bf16_f32 v{TF+5+2*i}, v{g+4*i+2}, v{g+4*i+3}")
                I(f"s_mov_b32 s42, {t*16*512 + ((N//2-HN)*512 if t >= 2 else 0)}")
                va = X1
                if t == 1:
                    va = TF
                    I(f"v_add_u32 v{TF}, {(N//2-HN)*512}, v{X1}")
                    I(f"v_cndmask_b32 v{TF}, v{X1}, v{TF}, s[84:85]")
                if t == 3: I("s_mov_b64 exec, s[50:51]")
                for i in range(4):
                    I(f"buffer_store_dwordx2 v[{TF+4+2*i}:{TF+5+2*i}], v{va}, s[12:15], s42 offen offset:{i*128} {c.out_flags}")
                if t == 3: I("s_mov_b64 exec, -1")
                e.label(f"L2_nofin{t}")
    stamp(e, c, 11)
    I("s_cmp_lg_u32 s24, 0")
    e.branch("s_cbranch_scc1 L2_m_exit")
    I("s_add_u32 s89, s89, 1")
    I("s_branch L2_m_slow")
    e.label("L2_m_overflow")
    I("s_mov_b32 s89, 0")
    I("s_mov_b32 s23, 1")
    I("s_waitcnt vmcnt(0)")
    for k in range(64):
        I(f"v_mov_b32 v{G+k}, 0")
    e.label("L2_m_slow")
    I("s_waitcnt vmcnt(0) lgkmcnt(0)")
    I("s_barrier")
    I(f"s_cmp_eq_u32 s89, {2*NCH-1}")
    I("s_cselect_b32 s24, 1, 0")
    I("s_cmp_lg_u32 s21, 1")
    I("s_cbranch_scc1 L2_m_nz")
    for k in range(4): I(f"v_mov_b32 v{TF+k}, 0")
    I(f"v_lshlrev_b32 v{TF+4}, 2, v{X0}")
    I(f"ds_write_b128 v{TF+4}, v[{TF}:{TF+3}]")
    I("s_waitcnt lgkmcnt(0)")
    e.label("L2_m_nz")
    I("s_barrier")
    e.branch("s_branch L2_m_round")
    e.label("L2_m_exit")
    if c.stamps:
        I("s_waitcnt vmcnt(0)")
        stamp(e, c, 12)
        stamp_store(e, c, TF)
    e.label("L_end")
    I("s_endpgm")
    return KNAME, 128, 96

def item_to_node(e, c, sitem, sH, sN):
    I = e.I
    I(f"s_cmp_ge_u32 s{sitem}, {NODES}")
    I(f"s_cselect_b32 s{sH}, 256, 0")
    if not c.reorder:
        I(f"s_cselect_b32 s43, {NODES}, 0")
        I(f"s_sub_u32 s{sN}, s{sitem}, s43")
        return
    I(f"s_cselect_b32 s43, {NODES}, 0")
    I(f"s_cmp_ge_u32 s{sitem}, {NODES+16}")
    I(f"s_cselect_b32 s43, {NODES-32}, s43")
    I(f"s_cmp_ge_u32 s{sitem}, {NODES+18}")
    I(f"s_cselect_b32 s43, {NODES+2}, s43")
    I(f"s_sub_u32 s{sN}, s{sitem}, s43")

def b_wait(e, L, snode, vt, vl16, tag):
    I = e.I
    I(f"s_cmp_lt_u32 s{snode}, s48")
    I(f"s_cbranch_scc1 L2_bok{tag}")
    I(f"v_mov_b32 v{vt}, 0")
    I("s_mov_b32 s45, 0")
    e.label(f"L2_bw{tag}")
    I(f"ds_read_b32 v{vt+1}, v{vt} offset:{L['BREADY']}")
    I("s_waitcnt lgkmcnt(0)")
    I(f"v_readfirstlane_b32 s44, v{vt+1}")
    I("s_add_u32 s45, s45, 1")
    I("s_cmp_ge_u32 s44, 4")
    I(f"s_cbranch_scc1 L2_bw_ok{tag}")
    I("s_sleep 1")
    I("s_cmp_lt_u32 s45, 0x400000")
    I(f"s_cbranch_scc1 L2_bw{tag}")
    e.label(f"L2_bw_ok{tag}")
    I(f"v_lshrrev_b32 v{vt}, 2, v{vl16}")
    I(f"ds_read_b32 v{L['VINFO']}, v{vt} offset:{L['INFO']}")
    I("s_movk_i32 s48, 64")
    I("s_waitcnt lgkmcnt(0)")
    e.label(f"L2_bok{tag}")

def gather_loop(e, c, L):
    I = e.I
    g = lambda n: L[n]
    RAW, T, NEXT, DONE, GDONE, OSC, PL1 = (L[k] for k in ("RAW", "T", "NEXT", "DONE", "GDONE", "OSC", "PL1"))
    VLANE, VINFO, VNEXT, VLOFF, VMASK, VOW, VOR, VSCRW, VTRA, VWR, VL16, VT0, VT1, VONE, VZERO = (L[k] for k in
        "VLANE VINFO VNEXT VLOFF VMASK VOW VOR VSCRW VTRA VWR VL16 VT0 VT1 VONE VZERO".split())
    ACC, LD, B, A, AD = 0, 32, 64, 96, 100
    sA, sR, sH, sN, sNV = 32, 33, 34, 35, 37
    sCN, sCH, sCF, sCR, sL = 38, 39, 40, 41, 36
    uid = [0]
    def lab(p):
        uid[0] += 1
        return f"L2_{p}{uid[0]}"
    def fetch_issue():
        I("s_mov_b64 exec, 1")
        I(f"ds_add_rtn_u32 v{VNEXT}, v{VZERO}, v{VONE} offset:{NEXT}")
        I("s_mov_b64 exec, -1")
    def setup_item(none_label):
        I(f"v_readfirstlane_b32 s42, v{VNEXT}")
        e.nop(1)
        I(f"s_cmp_ge_u32 s42, {2*NODES}")
        I(f"s_cbranch_scc1 {none_label}")
        item_to_node(e, c, 42, sH, sN)
        b_wait(e, L, sN, VT0, VL16, lab("t"))
        I(f"v_readlane_b32 s42, v{VINFO}, s{sN}")
        e.nop(1)
        I(f"s_lshr_b32 s{sR}, s42, 16")
        I("s_and_b32 s42, s42, 0xffff")
        I(f"s_lshl_b32 s{sA}, s42, 4")
    def off_read(hf):
        I(f"ds_read_b128 v[{AD}:{AD+3}], v{VOR} offset:{OSC+128*hf}")
        I(f"ds_read_b128 v[{AD+4}:{AD+7}], v{VOR} offset:{OSC+128*hf+16}")
    def off_add():
        for i in range(8):
            I(f"v_add_u32 v{AD+i}, v{AD+i}, v{VLOFF}")
    def prep_block():
        r = B
        I(f"v_add_u32 v{VT0}, s{sA}, v{VL16}")
        I(f"ds_read_b128 v[{r}:{r+3}], v{VT0} offset:{RAW}")
        l = lab("nf")
        I(f"s_cmp_gt_u32 s{sR}, 64")
        I(f"s_cbranch_scc1 {l}")
        fetch_issue()
        e.label(l)
        I(f"v_cmp_gt_u32 vcc, s{sR}, v{VLANE}")
        I("s_waitcnt lgkmcnt(0)")
        I(f"v_lshrrev_b32 v{r+11}, 16, v{r+3}")
        I(f"v_lshlrev_b32 v{r+11}, 9, v{r+11}")
        I(f"ds_write_b32 v{VOW}, v{r+11} offset:{OSC}")
        off_read(0)
        if not c.x_noexp:
            I(f"v_cndmask_b32 v{r}, 0, v{r}, vcc")
            I(f"v_cndmask_b32 v{r+1}, 0, v{r+1}, vcc")
            I(f"v_lshlrev_b32 v{r+8}, 16, v{r+2}")
            I(f"v_and_b32 v{r+9}, v{VMASK}, v{r+2}")
            I(f"v_lshlrev_b32 v{r+10}, 16, v{r+3}")
            I(f"v_lshlrev_b32 v{r+4}, 16, v{r}")
            I(f"v_and_b32 v{r+5}, v{VMASK}, v{r}")
            I(f"v_lshlrev_b32 v{r+6}, 16, v{r+1}")
            I(f"v_and_b32 v{r+7}, v{VMASK}, v{r+1}")
            for j in range(3):
                for d in range(4):
                    I(f"v_mul_f32 v{r+12+4*j+d}, v{r+4+d}, v{r+8+j}")
            I(f"v_cvt_pk_bf16_f32 v{r+2}, v{r+12}, v{r+13}")
            I(f"v_cvt_pk_bf16_f32 v{r+3}, v{r+14}, v{r+15}")
            for k in range(4):
                I(f"v_cvt_pk_bf16_f32 v{r+24+k}, v{r+16+2*k}, v{r+17+2*k}")
        I(f"ds_write_b128 v{VSCRW}, v[{r}:{r+3}]")
        I(f"ds_write_b128 v{VSCRW}, v[{r+24}:{r+27}] offset:{PL1}")
        I("s_waitcnt lgkmcnt(2)")
        off_add()
    def ld(i):
        if c.x_noload: return
        I(f"buffer_load_dwordx4 v[{LD+4*i}:{LD+4*i+3}], v{AD+i}, s[4:7], {'0' if c.x_samehalf else 's%d' % sH} offen {c.x_flags}")
    def perm(q, jj, k16=False):
        if c.x_noperm: return
        d = B + 2*q + jj if k16 else B + 4*q + jj
        I(f"v_perm_b32 v{d}, v{LD+4*(2*jj+1)+q//2}, v{LD+4*(2*jj)+q//2}, s{29 if q & 1 else 28}")
    def loads_partial(done):
        for i in range(7):
            I(f"s_cmp_le_u32 s{sL}, {4*i}")
            I(f"s_cbranch_scc1 {done}")
            ld(i)
    def perms_loads():
        part, done = lab("pp"), lab("pd")
        I("s_waitcnt vmcnt(0)")
        if c.prio: I(f"s_setprio {c.prio}")
        I(f"s_cmp_le_u32 s{sL}, 28")
        I(f"s_cbranch_scc1 {part}")
        for jj in range(4):
            for q in range(8): perm(q, jj)
            ld(2*jj); ld(2*jj+1)
        I(f"s_branch {done}")
        e.label(part)
        for jj in range(4):
            for q in range(8): perm(q, jj)
        loads_partial(done)
        e.label(done)
        if c.prio: I("s_setprio 0")
    def mfmas(first, k16=False):
        if c.x_nomfma: return
        for q in range(8):
            d = f"v[{ACC+4*q}:{ACC+4*q+3}]"
            if k16: I(f"v_mfma_f32_16x16x16_bf16 {d}, v[{A}:{A+1}], v[{B+2*q}:{B+2*q+1}], {'0' if first else d}")
            else: I(f"v_mfma_f32_16x16x32_bf16 {d}, v[{A}:{A+3}], v[{B+4*q}:{B+4*q+3}], {'0' if first else d}")
    def tr_read(hf):
        I(f"ds_read_b64_tr_b16 v[{A}:{A+1}], v{VTRA} offset:{512*hf}")
        I(f"ds_read_b64_tr_b16 v[{A+2}:{A+3}], v{VTRA} offset:{512*hf+256}")

    setup_item("L2_g_done")
    prep_block()
    I(f"s_mov_b32 s{sL}, s{sR}")
    I(f"s_cmp_le_u32 s{sL}, 28")
    I("s_cbranch_scc1 L2_i_part")
    for i in range(8): ld(i)
    I("s_branch L2_A1")
    e.label("L2_i_part")
    loads_partial("L2_A1")
    for first in (1, 0):
        e.label(f"L2_A{first}")
        tr_read(0)
        I(f"s_cmp_gt_u32 s{sR}, 32")
        I(f"s_cbranch_scc1 L2_AB{first}")
        I(f"s_mov_b32 s{sCF}, {first}")
        I(f"s_mov_b32 s{sCR}, s{sR}")
        I("s_branch L2_XN")
        e.label(f"L2_AB{first}")
        off_read(1)
        I(f"s_sub_u32 s{sL}, s{sR}, 32")
        I("s_waitcnt lgkmcnt(0)")
        off_add()
        perms_loads()
        mfmas(first)
        if first: I("s_branch L2_B")
    e.label("L2_B")
    tr_read(1)
    I(f"s_cmp_gt_u32 s{sR}, 64")
    I("s_cbranch_scc0 L2_BN")
    I(f"s_sub_u32 s{sR}, s{sR}, 64")
    I(f"s_add_u32 s{sA}, s{sA}, 1024")
    I(f"s_mov_b32 s{sL}, s{sR}")
    prep_block()
    perms_loads()
    I("s_waitcnt lgkmcnt(0)")
    mfmas(0)
    I("s_branch L2_A0")
    e.label("L2_BN")
    I(f"s_mov_b32 s{sCF}, 0")
    I(f"s_sub_u32 s{sCR}, s{sR}, 32")
    e.label("L2_XN")
    I(f"s_mov_b32 s{sCN}, s{sN}")
    I(f"s_mov_b32 s{sCH}, s{sH}")
    I(f"s_mov_b32 s{sNV}, 1")
    setup_item("L2_XN_none")
    I(f"s_mov_b32 s{sL}, s{sR}")
    prep_block()
    I("s_branch L2_XN_go")
    e.label("L2_XN_none")
    I(f"s_mov_b32 s{sNV}, 0")
    I(f"s_mov_b32 s{sL}, 0")
    e.label("L2_XN_go")
    I(f"s_cmp_le_u32 s{sCR}, 16")
    I("s_cbranch_scc1 L2_XN_k16")
    perms_loads()
    I("s_waitcnt lgkmcnt(0)")
    I(f"s_cmp_eq_u32 s{sCF}, 0")
    I("s_cbranch_scc1 L2_XN_acc")
    mfmas(1)
    I("s_branch L2_XN_epi")
    e.label("L2_XN_acc")
    mfmas(0)
    I("s_branch L2_XN_epi")
    e.label("L2_XN_k16")
    I("s_waitcnt vmcnt(0)")
    if c.prio: I(f"s_setprio {c.prio}")
    for jj in range(2):
        for q in range(8): perm(q, jj, True)
    I(f"s_cmp_le_u32 s{sL}, 28")
    I("s_cbranch_scc1 L2_XN_k16p")
    for i in range(8): ld(i)
    I("s_branch L2_XN_k16d")
    e.label("L2_XN_k16p")
    loads_partial("L2_XN_k16d")
    e.label("L2_XN_k16d")
    if c.prio: I("s_setprio 0")
    I("s_waitcnt lgkmcnt(0)")
    I(f"s_cmp_eq_u32 s{sCF}, 0")
    I("s_cbranch_scc1 L2_XN_k16acc")
    mfmas(1, True)
    I("s_branch L2_XN_epi")
    e.label("L2_XN_k16acc")
    mfmas(0, True)
    e.label("L2_XN_epi")
    I(f"s_lshl_b32 s42, s{sCH}, 5")
    I(f"v_add_u32 v{VT0}, s42, v{VWR}")
    for q in range(8):
        I(f"ds_read_b128 v[{B+4*q}:{B+4*q+3}], v{VT0} offset:{q*1024}")
    I(f"s_lshr_b32 s43, s{sCN}, 4")
    I(f"s_lshl_b32 s43, s43, 2")
    I(f"s_cmp_eq_u32 s{sCH}, 0")
    I("s_cbranch_scc1 L2_nowar")
    I(f"v_mov_b32 v{VT1}, s43")
    I("s_mov_b32 s45, 0")
    e.label("L2_war")
    I(f"ds_read_b32 v{VT0}, v{VT1} offset:{GDONE}")
    I("s_waitcnt lgkmcnt(0)")
    I(f"v_readfirstlane_b32 s44, v{VT0}")
    e.nop(1)
    I("s_cmp_ge_u32 s44, 4")
    I("s_cbranch_scc1 L2_war_ok")
    I("s_add_u32 s45, s45, 1")
    I("s_cmp_lt_u32 s45, 0x400000")
    I("s_cbranch_scc1 L2_war")
    e.label("L2_war_ok")
    I("s_add_u32 s43, s43, 16")
    e.label("L2_nowar")
    I(f"s_and_b32 s44, s{sCN}, 15")
    I("s_lshl_b32 s44, s44, 4")
    I(f"s_lshl_b32 s45, s{sCN}, 10")
    I(f"s_add_u32 s45, s45, {T}")
    I(f"v_xor_b32 v{VT0}, s44, v{VL16}")
    I(f"v_add_u32 v{VT0}, s45, v{VT0}")
    I(f"v_mov_b32 v{VT1}, s43")
    I("s_waitcnt lgkmcnt(0)")
    for q in range(8):
        I(f"v_mul_f32 v{B+4*q}, v{B+4*q}, v{ACC+4*q}")
    for d in range(1, 4):
        for q in range(8):
            I(f"v_fmac_f32 v{B+4*q}, v{B+4*q+d}, v{ACC+4*q+d}")
    for k in range(4):
        I(f"v_cvt_pk_bf16_f32 v{A+k}, v{B+8*k}, v{B+8*k+4}")
    I(f"ds_write_b128 v{VT0}, v[{A}:{A+3}]")
    I("s_waitcnt lgkmcnt(0)")
    I("s_mov_b64 exec, 1")
    I(f"ds_add_u32 v{VT1}, v{VONE} offset:{DONE}")
    I("s_mov_b64 exec, -1")
    I(f"s_cmp_lg_u32 s{sNV}, 0")
    I("s_cbranch_scc1 L2_A1")

def gather_loop2(e, c, L):
    I = e.I
    RAW, T, WRAD, NEXT, DONE, GDONE = (L[k] for k in ("RAW", "T", "WRAD", "NEXT", "DONE", "GDONE"))
    VINFO, VNEXT, VLOFF, VMASK, VOW, VOR, VSCRW, VTRA, VRAWC, VL16, VSELA, VSELB = (L[k] for k in
        "VINFO VNEXT VLOFF VMASK VOW VOR VSCRW VTRA VRAWC VL16 VSELA VSELB".split())
    ACC, BUF, BT, A, R = 0, (32, 64), 96, 104, 120
    OSC = 2048
    sA, sR, sH, sBase, sRem, sD2 = 32, 33, 34, 35, 36, 37
    sD = (38, 39)
    def fetch_issue():
        I("s_mov_b64 exec, 1")
        I(f"ds_inc_rtn_u32 v{VNEXT}, v{VL16}, v{VMASK} offset:{NEXT}")
        I("s_mov_b64 exec, -1")
    def advance(tag):
        I(f"s_cmp_lg_u32 s{sR}, 0")
        I(f"s_cbranch_scc1 L3_cont{tag}")
        I(f"v_readfirstlane_b32 s42, v{VNEXT}")
        I(f"s_mov_b32 s{sD2}, 0")
        I(f"s_cmp_ge_u32 s42, {2*NODES}")
        I(f"s_cbranch_scc1 L3_adv_done{tag}")
        item_to_node(e, c, 42, sH, 43)
        b_wait(e, L, 43, R, VL16, tag)
        I(f"v_readlane_b32 s42, v{VINFO}, s43")
        I(f"s_lshl_b32 s43, s43, 16")
        I(f"s_or_b32 s{sBase}, s43, s{sH}")
        I(f"s_or_b32 s{sBase}, s{sBase}, 10")
        I(f"s_lshr_b32 s{sR}, s42, 16")
        I("s_and_b32 s42, s42, 0xffff")
        I(f"s_lshl_b32 s{sA}, s42, 4")
        I(f"s_branch L3_have{tag}")
        e.label(f"L3_cont{tag}")
        I(f"s_add_u32 s{sA}, s{sA}, 512")
        I(f"s_andn2_b32 s{sBase}, s{sBase}, 2")
        e.label(f"L3_have{tag}")
        I(f"v_add_u32 v{R}, s{sA}, v{VRAWC}")
        I(f"s_lshl_b32 s{sRem}, s{sR}, 4")
        I(f"ds_read_b128 v[{R}:{R+3}], v{R} offset:{RAW}")
        I(f"s_cmp_gt_u32 s{sR}, 32")
        I(f"s_cbranch_scc0 L3_lastst{tag}")
        I(f"s_mov_b32 s{sD2}, s{sBase}")
        I(f"s_sub_u32 s{sR}, s{sR}, 32")
        I(f"s_branch L3_adv_done{tag}")
        e.label(f"L3_lastst{tag}")
        I(f"s_cmp_le_u32 s{sR}, 16")
        I("s_cselect_b32 s42, 5, 4")
        I(f"s_or_b32 s{sD2}, s{sBase}, s42")
        I(f"s_mov_b32 s{sR}, 0")
        fetch_issue()
        e.label(f"L3_adv_done{tag}")
    def prep(p, tag):
        X = BUF[p]
        t = X
        I(f"v_cmp_gt_u32 vcc, s{sRem}, v{VRAWC}")
        I(f"v_lshrrev_b32 v{t+1}, 16, v{R+3}")
        I(f"v_lshlrev_b32 v{t+1}, 9, v{t+1}")
        I(f"v_cndmask_b32 v{t+1}, 2.0, v{t+1}, vcc")
        I(f"ds_write_b32 v{VOW}, v{t+1} offset:{OSC+128*p}")
        I(f"ds_read_b128 v[{BT}:{BT+3}], v{VOR} offset:{OSC+128*p}")
        I(f"ds_read_b128 v[{BT+4}:{BT+7}], v{VOR} offset:{OSC+128*p+16}")
        if not c.x_noexp:
            I(f"v_cndmask_b32 v{R}, 0, v{R}, vcc")
            I(f"v_cndmask_b32 v{R+1}, 0, v{R+1}, vcc")
            I(f"v_perm_b32 v{t+2}, v{R+2}, 1.0, v{VSELA}")
            I(f"v_perm_b32 v{t+3}, v{R+3}, v{R+2}, v{VSELB}")
            I(f"v_lshlrev_b32 v{t+5}, 16, v{R}")
            I(f"v_and_b32 v{t+6}, v{VMASK}, v{R}")
            I(f"v_lshlrev_b32 v{t+7}, 16, v{R+1}")
            I(f"v_and_b32 v{t+9}, v{VMASK}, v{R+1}")
            ea = (t+5, t+6, t+7, t+9)
            pr = (t+10, t+11, t+13, t+14, t+15, t+17, t+18, t+19)
            for k in range(4): I(f"v_mul_f32 v{pr[k]}, v{ea[k]}, v{t+2}")
            for k in range(4): I(f"v_mul_f32 v{pr[4+k]}, v{ea[k]}, v{t+3}")
            for k in range(4): I(f"v_cvt_pk_bf16_f32 v{R+k}, v{pr[2*k]}, v{pr[2*k+1]}")
        I(f"ds_write_b128 v{VSCRW}, v[{R}:{R+3}] offset:{1024*p}")
        I("s_waitcnt lgkmcnt(1)")
        so = '0' if c.x_samehalf else f"s{sH}"
        for i in range(4):
            I(f"v_add_u32 v{X+4*i}, v{BT+i}, v{VLOFF}")
        if not c.x_noload:
            for i in range(4):
                I(f"buffer_load_dwordx4 v[{X+4*i}:{X+4*i+3}], v{X+4*i}, s[4:7], {so} offen")
        I(f"s_bitcmp1_b32 s{sD2}, 0")
        I(f"s_cbranch_scc1 L3_half{tag}")
        for i in range(4, 8):
            I(f"v_add_u32 v{X+4*i}, v{BT+i}, v{VLOFF}")
        if not c.x_noload:
            for i in range(4, 8):
                I(f"buffer_load_dwordx4 v[{X+4*i}:{X+4*i+3}], v{X+4*i}, s[4:7], {so} offen")
        e.label(f"L3_half{tag}")
    def compute(p, half, first):
        X = BUF[p]
        nj = 2 if half else 4
        def perms(q):
            if c.x_noperm: return
            for jj in range(nj):
                I(f"v_perm_b32 v{BT+4*(q&1)+jj}, v{X+4*(2*jj+1)+q//2}, v{X+4*(2*jj)+q//2}, s{29 if q & 1 else 28}")
        def mf(q):
            if c.x_nomfma: return
            d = f"v[{ACC+4*q}:{ACC+4*q+3}]"
            b = BT + 4*(q&1)
            if half: I(f"v_mfma_f32_16x16x16_bf16 {d}, v[{A}:{A+1}], v[{b}:{b+1}], {'0' if first else d}")
            else: I(f"v_mfma_f32_16x16x32_bf16 {d}, v[{A}:{A+3}], v[{b}:{b+3}], {'0' if first else d}")
        perms(0)
        for q in range(8):
            if q < 7: perms(q + 1)
            mf(q)
    def epilogue(p):
        X = BUF[p]
        d = sD[p]
        I(f"s_and_b32 s42, s{d}, 256")
        I("s_lshl_b32 s42, s42, 5")
        I(f"s_add_u32 s42, s42, {WRAD}")
        I(f"v_add_u32 v{BT+4}, s42, v{VL16}")
        for q in range(8):
            I(f"ds_read_b128 v[{X+4*q}:{X+4*q+3}], v{BT+4} offset:{q*1024}")
        I(f"s_lshr_b32 s43, s{d}, 20")
        I("s_lshl_b32 s43, s43, 2")
        I(f"s_bitcmp1_b32 s{d}, 8")
        I(f"s_cbranch_scc0 L3_nowar{p}")
        I(f"v_mov_b32 v{BT+5}, s43")
        I("s_mov_b32 s45, 0")
        e.label(f"L3_war{p}")
        I(f"ds_read_b32 v{BT+4}, v{BT+5} offset:{GDONE}")
        I("s_waitcnt lgkmcnt(0)")
        I(f"v_readfirstlane_b32 s44, v{BT+4}")
        I("s_add_u32 s45, s45, 1")
        I("s_cmp_ge_u32 s44, 4")
        I(f"s_cbranch_scc1 L3_war_ok{p}")
        I("s_cmp_lt_u32 s45, 0x400000")
        I(f"s_cbranch_scc1 L3_war{p}")
        e.label(f"L3_war_ok{p}")
        I("s_add_u32 s43, s43, 16")
        e.label(f"L3_nowar{p}")
        I(f"s_lshr_b32 s44, s{d}, 12")
        I("s_and_b32 s44, s44, 0xf0")
        I(f"s_lshr_b32 s45, s{d}, 16")
        I("s_lshl_b32 s45, s45, 10")
        I(f"s_add_u32 s45, s45, {T}")
        I(f"v_xor_b32 v{BT+4}, s44, v{VL16}")
        I(f"v_add_u32 v{BT+4}, s45, v{BT+4}")
        I(f"v_mov_b32 v{BT+5}, s43")
        I("s_waitcnt lgkmcnt(0)")
        for q in range(8):
            I(f"v_mul_f32 v{X+4*q}, v{X+4*q}, v{ACC+4*q}")
        for dd in range(1, 4):
            for q in range(8):
                I(f"v_fmac_f32 v{X+4*q}, v{X+4*q+dd}, v{ACC+4*q+dd}")
        for k in range(4):
            I(f"v_cvt_pk_bf16_f32 v{BT+k}, v{X+8*k}, v{X+8*k+4}")
        I(f"ds_write_b128 v{BT+4}, v[{BT}:{BT+3}]")
        I("s_waitcnt lgkmcnt(0)")
        I("s_mov_b64 exec, 1")
        I(f"ds_inc_u32 v{BT+5}, v{VMASK} offset:{DONE}")
        I("s_mov_b64 exec, -1")

    I(f"s_mov_b32 s{sR}, 0")
    advance("i0")
    I(f"s_mov_b32 s{sD[0]}, s{sD2}")
    I(f"s_cmp_eq_u32 s{sD2}, 0")
    I("s_cbranch_scc1 L2_g_done")
    I("s_waitcnt lgkmcnt(0)")
    prep(0, "i0")
    advance("i1")
    I(f"s_mov_b32 s{sD[1]}, s{sD2}")
    I(f"s_cmp_eq_u32 s{sD2}, 0")
    I("s_cbranch_scc1 L3_top0")
    I("s_waitcnt lgkmcnt(0)")
    prep(1, "i1")
    for p in range(2):
        e.label(f"L3_top{p}")
        I(f"ds_read_b64_tr_b16 v[{A}:{A+1}], v{VTRA} offset:{1024*p}")
        I(f"ds_read_b64_tr_b16 v[{A+2}:{A+3}], v{VTRA} offset:{1024*p+512}")
        advance(str(p))
        o = sD[1-p]
        I(f"s_bitcmp1_b32 s{o}, 0")
        I(f"s_cbranch_scc1 L3_w4_{p}")
        I(f"s_cmp_eq_u32 s{o}, 0")
        I(f"s_cbranch_scc1 L3_w0_{p}")
        I("s_waitcnt vmcnt(8) lgkmcnt(0)")
        I(f"s_branch L3_wd_{p}")
        e.label(f"L3_w0_{p}")
        I("s_waitcnt vmcnt(0)")
        e.label(f"L3_w4_{p}")
        I("s_waitcnt vmcnt(4) lgkmcnt(0)")
        e.label(f"L3_wd_{p}")
        d = sD[p]
        I(f"s_bitcmp1_b32 s{d}, 0")
        I(f"s_cbranch_scc1 L3_ch_{p}")
        I(f"s_bitcmp1_b32 s{d}, 1")
        I(f"s_cbranch_scc1 L3_cff_{p}")
        compute(p, 0, 0)
        I(f"s_branch L3_cd_{p}")
        e.label(f"L3_cff_{p}")
        compute(p, 0, 1)
        I(f"s_branch L3_cd_{p}")
        e.label(f"L3_ch_{p}")
        I(f"s_bitcmp1_b32 s{d}, 1")
        I(f"s_cbranch_scc1 L3_chf_{p}")
        compute(p, 1, 0)
        I(f"s_branch L3_ep_{p}")
        e.label(f"L3_chf_{p}")
        compute(p, 1, 1)
        I(f"s_branch L3_ep_{p}")
        e.label(f"L3_cd_{p}")
        I(f"s_bitcmp1_b32 s{d}, 2")
        I(f"s_cbranch_scc0 L3_noep_{p}")
        e.label(f"L3_ep_{p}")
        epilogue(p)
        e.label(f"L3_noep_{p}")
        I(f"s_mov_b32 s{d}, s{sD2}")
        I(f"s_cmp_eq_u32 s{sD2}, 0")
        I(f"s_cbranch_scc1 L3_noprep_{p}")
        prep(p, str(p))
        e.label(f"L3_noprep_{p}")
        I(f"s_cmp_lg_u32 s{o}, 0")
        if p == 0:
            I("s_cbranch_scc0 L2_g_done")
        else:
            I("s_cbranch_scc1 L3_top0")

HEADER = """; equiformer tensor-product message passing, one persistent launch (250 workgroups, one per CU):
; (write-through stores, table entries tagged with a per-launch tag agreed through d_debug); phase 2 sorts a
"""

def gen_probe(e, c):
    kA, a0, a1, sA, oA, kB, b0, b1, sB, oB = c.probe.split(",")
    kernel_header(e, "eqprobe_kernel")
    I = e.I
    I("s_cmp_ge_u32 s2, 1")
    I("s_cbranch_scc1 LP_end")
    I("s_memrealtime s[20:21]")
    I("s_load_dwordx2 s[4:5], s[0:1], 88")
    I("s_waitcnt lgkmcnt(0)")
    srd(e, 8, 4, 32 << 20)
    I("v_min_u32 v1, 249, v0")
    I("v_lshlrev_b32 v1, 11, v1")
    I("v_mov_b32 v10, 0"); I("v_mov_b32 v11, -1"); I("v_mov_b32 v12, 0")
    I("ds_write_b32 v10, v11 offset:0"); I("ds_write_b32 v10, v12 offset:4"); I("ds_write_b32 v10, v11 offset:8"); I("ds_write_b32 v10, v12 offset:12")
    I("s_waitcnt lgkmcnt(0)"); I("s_barrier")
    regs = []
    for (k, w0, w1, sl, off) in ((kA, a0, a1, sA, 0), (kB, b0, b1, sB, 8)):
        if k == "now":
            I(f"v_mov_b32 v{16+len(regs)}, s20"); regs.append(off); continue
        I(f"s_mov_b32 s12, {16 << 20}")
        for w in range(int(w0), int(w1)):
            I(f"buffer_load_dword v{16+len(regs)}, v1, s[8:11], s12 offen offset:{w*128 + int(sl)*4}")
            regs.append(off)
    I("s_waitcnt vmcnt(0)")
    for off, op in ((0, oA), (8, oB)):
        idx = [n for n, o in enumerate(regs) if o == off]
        for n in idx[1:]:
            I(f"v_{op}_u32 v{16+idx[0]}, v{16+idx[0]}, v{16+n}")
        I(f"ds_{op}_u32 v10, v{16+idx[0]} offset:{off + (0 if op == 'min' else 4)}")
    I("s_waitcnt lgkmcnt(0)"); I("s_barrier")
    I(f"ds_read_b32 v3, v10 offset:{0 if oA == 'min' else 4}")
    I(f"ds_read_b32 v4, v10 offset:{8 if oB == 'min' else 12}")
    I("s_waitcnt lgkmcnt(0)")
    I("v_sub_u32 v3, v3, v4")
    I("v_min_u32 v3, 0x2000, v3")
    I("v_readfirstlane_b32 s14, v3")
    I("s_memrealtime s[16:17]")
    I("s_mul_i32 s14, s14, 10")
    I("s_waitcnt lgkmcnt(0)")
    e.label("LP_spin")
    I("s_memrealtime s[18:19]")
    I("s_waitcnt lgkmcnt(0)")
    I("s_sub_u32 s18, s18, s16")
    I("s_cmp_lt_u32 s18, s14")
    I("s_cbranch_scc1 LP_spin")
    e.label("LP_end")
    I("s_endpgm")
    return "eqprobe_kernel", 64, 32

def generate(c):
    e = Emitter()
    e.raw('.amdgcn_target "amdgcn-amd-amdhsa--gfx950"')
    e.raw(".text")
    k = gen_main(e, c)
    head = HEADER + f"; @launch grid=(250,1,1) block=(1024,1,1) lds={c.lds}\n"
    tail = '.section .rodata,"a"\n.p2align 6\n' + kd(*k)
    if c.probe:
        kp = gen_probe(e, c)
        head = HEADER + f"; @launch kernel={KNAME} grid=(250,1,1) block=(1024,1,1) lds={c.lds}\n; @launch kernel=eqprobe_kernel grid=(1,1,1) block=(256,1,1) lds=64\n"
        tail += ".p2align 6\n" + kd(*kp)
    return head + e.text() + tail

if __name__ == "__main__":
    c = Cfg()
    out = sys.argv[1]
    for kv in sys.argv[2:]:
        k, v = kv.split("=", 1)
        old = getattr(c, k)
        setattr(c, k, type(old)(int(v)) if isinstance(old, (bool, int)) else v.replace("+", " "))
    open(out, "w").write(generate(c))
```

```python
import sys
from emit import Emitter

N, E = 12500, 800000
NODES, HN = 50, 25
NCH = 250
CSTRIDE = 70784
KEYOFF, PAYOFF, TABOFF = 0, 3200, 54400
WSBYTES = NCH * CSTRIDE
KIN = 20
KNAME = "gather_scatter__tensor_product_equiv_equiformer__graph_kernel"
STAMPOFF = 24 << 20

class Cfg:
    nwg = 250
    st_flags = "sc1"
    ld_flags = "nt"
    rec_flags = "sc1"
    out_flags = ""
    pfx_lines = 0
    stamps = False
    cap = 1888
    x_noperm = 0
    x_noexp = 0
    x_nomfma = 0
    x_noload = 0
    x_samehalf = 0
    x_nobload = 0
    codepf = 0
    sleep = 32
    psleep = 4
    probe = ""
    addtid = 0
    bearly = 1
    tidw3 = "0x00800000"

def srd(e, d, b, nbytes, w1=None, w3="0x20000"):
    e.I(f"s_mov_b32 s{d}, s{b}")
    if w1: e.I(f"s_or_b32 s{d+1}, s{b+1}, {w1}")
    else: e.I(f"s_mov_b32 s{d+1}, s{b+1}")
    e.I(f"s_mov_b32 s{d+2}, {nbytes}")
    e.I(f"s_mov_b32 s{d+3}, {w3}")

def scan64(e, v):
    for sh in (1, 2, 4, 8):
        e.I(f"v_add_u32_dpp v{v}, v{v}, v{v} row_shr:{sh} row_mask:0xf bank_mask:0xf")
    e.I(f"v_add_u32_dpp v{v}, v{v}, v{v} row_bcast:15 row_mask:0xa bank_mask:0xf")
    e.I(f"v_add_u32_dpp v{v}, v{v}, v{v} row_bcast:31 row_mask:0xc bank_mask:0xf")

def prefetch_x(e, nlines, vt, vtid, nthreads, slice_s, half, srdx):
    if nlines <= 0: return 0
    e.I(f"s_mul_i32 s46, s{slice_s}, 782")
    e.I(f"s_mov_b32 s47, {nlines}")
    it = (nlines + nthreads - 1) // nthreads
    for k in range(it):
        e.I(f"v_add_u32 v{vt}, {k*nthreads}, v{vtid}")
        e.I(f"v_cmp_gt_u32 vcc, s47, v{vt}")
        e.I(f"v_add_u32 v{vt}, s46, v{vt}")
        e.I(f"v_and_b32 v{vt+1}, 1, v{vt}")
        e.I(f"v_lshrrev_b32 v{vt}, 1, v{vt}")
        e.I(f"v_lshlrev_b32 v{vt}, 9, v{vt}")
        e.I(f"v_lshl_add_u32 v{vt}, v{vt+1}, 7, v{vt}")
        e.I(f"v_cndmask_b32 v{vt}, 2.0, v{vt}, vcc")
        e.I(f"buffer_load_dword v{vt+2}, v{vt}, s[{srdx}:{srdx+3}], 0 offen offset:{half*256}")
    return it

STV, TIDV = 127, 126
def stamp(e, c, slot, ins="s_memrealtime"):
    if not c.stamps: return
    e.I(f"{ins} s[90:91]")
    e.I("s_waitcnt lgkmcnt(0)")
    e.I(f"v_writelane_b32 v{STV}, s90, {slot}")

def stamp_store(e, c, vtmp):
    if not c.stamps: return
    e.I(f"v_lshrrev_b32 v{vtmp}, 6, v{TIDV}")
    e.I(f"s_lshl_b32 s90, s2, 4")
    e.I(f"v_add_u32 v{vtmp}, s90, v{vtmp}")
    e.I(f"v_lshlrev_b32 v{vtmp}, 7, v{vtmp}")
    e.I(f"v_and_b32 v{vtmp+1}, 63, v{TIDV}")
    e.I(f"v_lshl_add_u32 v{vtmp}, v{vtmp+1}, 2, v{vtmp}")
    e.I(f"v_cmp_gt_u32 vcc, 32, v{vtmp+1}")
    e.I(f"v_cndmask_b32 v{vtmp}, 2.0, v{vtmp}, vcc")
    e.I(f"s_mov_b32 s90, {STAMPOFF}")
    e.I(f"buffer_store_dword v{STV}, v{vtmp}, s[8:11], s90 offen")

def kernel_header(e, name):
    e.raw(f".globl {name}")
    e.raw(".p2align 8")
    e.raw(f".type {name},@function")
    e.raw(f"{name}:")
    e.hist = []

def kd(name, nv, ns):
    return f""".amdhsa_kernel {name}
  .amdhsa_next_free_vgpr {nv}
  .amdhsa_next_free_sgpr {ns}
  .amdhsa_accum_offset {(nv+3)//4*4}
  .amdhsa_group_segment_fixed_size 0
  .amdhsa_kernarg_size 96
  .amdhsa_user_sgpr_count 2
  .amdhsa_user_sgpr_kernarg_segment_ptr 1
  .amdhsa_system_sgpr_workgroup_id_x 1
  .amdhsa_float_denorm_mode_32 3
.end_amdhsa_kernel
"""

def path_of(jp, blk):
    if blk == 0: return (0, 0, 1) if jp == 0 else (2, jp, 1)
    k = blk - 1
    if jp == 0: return (3, 1 + k, 1)
    j = jp - 1
    if j == k: return (1, 0, 1)
    i = 3 - j - k
    return (4, 1 + i, 1 if k == (j + 1) % 3 else -1)

class Lay: pass

def spin(e, tag, vdst, vaddr, off, need, scnt, sval, sleep=None, bound="0x400000"):
    I = e.I
    I(f"s_mov_b32 s{scnt}, 0")
    e.label(f"L_sp{tag}")
    I(f"ds_read_b32 v{vdst}, v{vaddr} offset:{off}")
    I("s_waitcnt lgkmcnt(0)")
    I(f"v_readfirstlane_b32 s{sval}, v{vdst}")
    I(f"s_add_u32 s{scnt}, s{scnt}, 1")
    I(f"s_cmp_ge_u32 s{sval}, {need}")
    I(f"s_cbranch_scc1 L_sp{tag}_ok")
    if sleep: I(f"s_sleep {sleep}")
    I(f"s_cmp_lt_u32 s{scnt}, {bound}")
    I(f"s_cbranch_scc1 L_sp{tag}")
    e.label(f"L_sp{tag}_ok")

def tag_bad(e, dst, r, tmp, odd):
    I = e.I
    I(f"v_xor_b32 v{tmp}, s87, v{r}")
    I(f"v_xor_b32 v{dst}, s86, v{r+1}")
    I(f"v_lshrrev_b32 v{tmp}, 24, v{tmp}")
    I(f"v_or_b32 v{dst}, v{dst}, v{tmp}")
    I(f"v_xor_b32 v{tmp}, s3, v{r+3}")
    I(f"v_lshrrev_b32 v{tmp}, 12, v{tmp}")
    I(f"v_cndmask_b32 v{dst}, v{dst}, v{tmp}, {odd}")

def gen_main(e, c):
    L = Lay()
    CAP = c.cap
    NWG = c.nwg
    BOFF = CAP + 64
    HIST, HIST2, CUR2, CNT = 0, 256, 512, 768
    NEXT, DONE, GDONE, BSYNC, BREADY, TOTB = CNT, CNT + 16, CNT + 64, CNT + 80, CNT + 84, CNT + 88
    HISTB, HIST2B, CUR2B, INFO, NONCE = 1024, 1280, 1536, 1792, 2048
    RAW = 2176
    T = (RAW + 2 * BOFF * 16 + 255) // 256 * 256
    WRAD = T + NODES * 1024
    SCR = WRAD + 16384
    H1 = WRAD
    TI = SCR
    CEB = RAW + BOFF * 16
    SSTR, PL1, OSC = 2368, 1056, 2080
    lds = max(SCR + 12 * SSTR, T + 64 * 1024)
    assert lds <= 163840 and 2 * BOFF >= 3200 + 64, lds
    c.lds = lds
    kernel_header(e, KNAME)
    I = e.I
    wsbytes = (32 << 20) if c.stamps else WSBYTES
    sf, rf, lf = c.st_flags, c.rec_flags, c.ld_flags
    ODD = "s[26:27]"
    I(f"s_cmp_ge_u32 s2, {NWG}")
    I("s_cbranch_scc1 L_end")
    if c.stamps:
        I(f"v_mov_b32 v{STV}, 0")
        I(f"v_mov_b32 v{TIDV}, v0")
    stamp(e, c, 0)
    stamp(e, c, 26, "s_memtime")
    I("s_load_dwordx8 s[32:39], s[0:1], 0")
    I("s_load_dwordx8 s[40:47], s[0:1], 32")
    if NWG > NCH:
        I(f"s_cmp_lt_u32 s2, {NCH}")
        I("s_cselect_b32 s51, 800, 0")
    else:
        I("s_movk_i32 s51, 800")
    I("s_mul_i32 s48, s2, 800")
    I("v_add_u32 v3, s48, v0")
    I("v_cmp_gt_u32 vcc, s51, v0")
    I("v_lshlrev_b32 v26, 4, v3")
    I("v_lshlrev_b32 v27, 5, v3")
    I("v_mul_u32_u24 v3, 24, v3")
    I("s_and_saveexec_b64 s[26:27], vcc")
    I("s_cbranch_execz L1_noload")
    I("s_waitcnt lgkmcnt(0)")
    I(f"global_load_dwordx4 v[4:7], v26, s[40:41] {lf}")
    I(f"global_load_dwordx4 v[8:11], v26, s[38:39] {lf}")
    I(f"global_load_dwordx4 v[12:15], v27, s[36:37] {lf}")
    I(f"global_load_dwordx4 v[16:19], v27, s[36:37] offset:16 {lf}")
    I(f"global_load_dwordx4 v[20:23], v3, s[34:35] {lf}")
    I(f"global_load_dwordx2 v[24:25], v3, s[34:35] offset:16 {lf}")
    e.label("L1_noload")
    I("s_mov_b64 exec, -1")
    I("s_load_dwordx4 s[80:83], s[0:1], 72")
    I("s_load_dwordx2 s[84:85], s[0:1], 88")
    I("v_lshlrev_b32 v1, 4, v0")
    I("v_lshlrev_b32 v2, 5, v0")
    I("v_readfirstlane_b32 s21, v0")
    I("s_lshr_b32 s21, s21, 6")
    I("s_waitcnt lgkmcnt(0)")
    if c.addtid:
        srd(e, 4, 32, N * 512, w1=f"{16 << 16}", w3=c.tidw3)
    else:
        srd(e, 4, 32, N * 512)
    srd(e, 8, 84, wsbytes)
    srd(e, 12, 80, N * 512)
    srd(e, 16, 42, 2560)
    srd(e, 68, 44, 16384)
    srd(e, 72, 46, 24576)
    srd(e, 76, 82, 256)
    if c.pfx_lines: srd(e, 64, 32, N * 512)
    I("s_and_b32 s20, s2, 7")
    I("s_lshr_b32 s31, s2, 3")
    if NWG == 250:
        I("s_min_u32 s22, s20, 2")
        I("s_mul_i32 s20, s20, 31")
        I("s_add_u32 s20, s20, s22")
    else:
        I("s_lshl_b32 s20, s20, 5")
    I("s_add_u32 s20, s20, s31")
    I("s_mov_b32 s22, 0")
    I(f"s_movk_i32 s23, {NCH}")
    I("s_mov_b32 s24, 1")
    I("s_mov_b32 s26, 0xaaaaaaaa")
    I("s_mov_b32 s27, 0xaaaaaaaa")
    I("s_mov_b32 s28, 0x05040100")
    I("s_mov_b32 s29, 0x07060302")
    I("s_mov_b32 s30, 0xffff0000")
    I(f"s_mul_i32 s51, s2, {CSTRIDE}")
    I("s_cmp_ge_u32 s21, 13")
    I("s_cbranch_scc1 L1_aux")
    I(f"s_mov_b32 s46, {H1}")
    I("v_lshl_add_u32 v40, v0, 2, s46")
    I("v_mov_b32 v41, 0")
    I("v_mov_b32 v42, 1")
    I(f"s_movk_i32 s49, {RAW+PAYOFF}")
    I("s_mov_b32 s50, 0x05040302")
    I(f"s_mov_b32 s45, {(TI + 8 - 8*H1) & 0xffffffff}")
    if NWG == 250:
        I("s_mov_b32 s48, -25")
        I("s_movk_i32 s47, 249")
    else:
        I("s_movk_i32 s47, 6249")
        I("s_movk_i32 s48, -6250")
        I("s_mov_b32 s44, 1600210")
        I("v_mov_b32 v43, 65532")
    I("s_cmp_ge_u32 s21, 8")
    I("s_cbranch_scc1 L1_nz")
    I("ds_write_b32 v40, v41")
    I("s_waitcnt lgkmcnt(0)")
    e.label("L1_nz")
    I("s_barrier")
    I("s_and_b64 exec, exec, vcc")
    I("s_waitcnt vmcnt(5)")
    stamp(e, c, 1)
    R4 = range(4)
    if NWG == 250:
        for i in R4: I(f"v_mul_u32_u24 v{44+i}, 0x147b, v{4+i}")
        for i in R4: I(f"v_lshrrev_b32 v{44+i}, 17, v{44+i}")
        for i in R4: I(f"v_cmp_lt_u32 s[{32+2*i}:{33+2*i}], s47, v{44+i}")
        for i in R4: I(f"v_cndmask_b32 v{36+i}, 0, 1, s[{32+2*i}:{33+2*i}]")
        for i in R4:
            I(f"v_sub_u32 v{48+i}, v{44+i}, v{36+i}")
            I(f"v_mad_u32_u24 v{44+i}, v{36+i}, 6, v{44+i}")
        for i in R4:
            I(f"v_mad_i32_i24 v{4+i}, v{48+i}, s48, v{4+i}")
            I(f"v_lshl_add_u32 v{44+i}, v{44+i}, 2, s46")
    else:
        for i in R4: I(f"v_cmp_lt_u32 s[{32+2*i}:{33+2*i}], s47, v{4+i}")
        for i in R4: I(f"v_cndmask_b32 v{36+i}, 0, 1, s[{32+2*i}:{33+2*i}]")
        for i in R4: I(f"v_mad_i32_i24 v{4+i}, v{36+i}, s48, v{4+i}")
        for i in R4: I(f"v_mul_u32_u24 v{44+i}, 0xa7c, v{4+i}")
        for i in R4: I(f"v_lshrrev_b32 v{44+i}, 16, v{44+i}")
        for i in R4: I(f"v_mad_u32_u24 v{48+i}, v{44+i}, s44, v43")
        for i in R4:
            I(f"v_lshrrev_b32 v{48+i}, 16, v{48+i}")
            I(f"v_mad_u32_u24 v{4+i}, v{36+i}, 25, v{4+i}")
        for i in R4:
            I(f"v_sub_u32 v{4+i}, v{4+i}, v{48+i}")
            I(f"v_lshl_add_u32 v{44+i}, v{36+i}, 8, v{44+i}")
        for i in R4: I(f"v_lshl_add_u32 v{44+i}, v{44+i}, 2, s46")
    for i in R4: I(f"ds_add_rtn_u32 v{36+i}, v{44+i}, v42")
    for i in R4: I(f"v_lshl_add_u32 v{48+i}, v{44+i}, 3, s45")
    for i in R4: I(f"v_lshlrev_b32 v{4+i}, 2, v{4+i}")
    I("s_waitcnt lgkmcnt(0)")
    I("s_barrier")
    for i in R4: I(f"v_min_u32 v{28+i}, {KIN}, v{36+i}")
    for i in R4: I(f"v_add_u32 v{48+i}, v{48+i}, v{28+i}")
    I("s_cmp_eq_u32 s21, 0")
    I("s_cbranch_scc1 L1_scan")
    for i in R4: I(f"ds_write_b8 v{48+i}, v{4+i}")
    I("s_branch L1_noscan")
    e.label("L1_scan")
    I("v_add_u32 v60, s46, v2")
    I("ds_read_b128 v[52:55], v60")
    I("ds_read_b128 v[56:59], v60 offset:16")
    I("s_waitcnt lgkmcnt(0)")
    I("v_mov_b32 v64, 0")
    I("v_mov_b32 v65, v52")
    for k in range(2, 8):
        I(f"v_add_u32 v{64+k}, v{63+k}, v{51+k}")
    I("v_add_u32 v61, v71, v59")
    I("v_max3_u32 v63, v52, v53, v54")
    I("v_max3_u32 v63, v63, v55, v56")
    I("v_max3_u32 v63, v63, v57, v58")
    I("v_max_u32 v63, v63, v59")
    I(f"v_cmp_lt_u32 s[42:43], {KIN}, v63")
    I("v_mov_b32 v62, v61")
    scan64(e, 62)
    I("v_sub_u32 v62, v62, v61")
    for k in range(8):
        I(f"v_add_u32 v{64+k}, v{64+k}, v62")
    I("ds_write_b128 v60, v[64:67] offset:2048")
    I("ds_write_b128 v60, v[68:71] offset:2064")
    I("s_cmp_lg_u64 s[42:43], 0")
    I("s_cselect_b32 s42, 1, 0")
    I("v_mov_b32 v63, s42")
    I(f"ds_write_b32 v41, v63 offset:{NONCE+8}")
    for i in R4: I(f"ds_write_b8 v{48+i}, v{4+i}")
    I("s_waitcnt lgkmcnt(4)")
    e.label("L1_noscan")
    I("s_barrier")
    for i in R4: I(f"ds_read_b32 v{44+i}, v{44+i} offset:2048")
    I(f"ds_read_b32 v28, v41 offset:{NONCE+8}")
    I("s_waitcnt lgkmcnt(0)")
    I("v_readfirstlane_b32 s42, v28")
    for i in R4:
        I(f"v_add_u32 v{36+i}, v{36+i}, v{44+i}")
        I(f"v_lshl_add_u32 v{44+i}, v{36+i}, 4, s49")
    I("s_cmp_eq_u32 s42, 0")
    I("s_cbranch_scc1 L1_nokeys")
    for i in R4:
        I(f"ds_write_b8 v{36+i}, v{4+i} offset:{RAW+KEYOFF}")
    e.label("L1_nokeys")
    I("s_waitcnt vmcnt(2)")
    for i in R4:
        I(f"ds_write_b64 v{44+i}, v[{12+2*i}:{13+2*i}]")
    I("s_waitcnt vmcnt(1)")
    I("v_mov_b32 v28, v20")
    I("v_perm_b32 v29, v8, v21, s28")
    I("ds_write_b64 v44, v[28:29] offset:8")
    I("v_alignbit_b32 v30, v22, v21, 16")
    I("v_perm_b32 v31, v9, v22, s50")
    I("ds_write_b64 v45, v[30:31] offset:8")
    I("s_waitcnt vmcnt(0)")
    stamp(e, c, 2)
    I("v_mov_b32 v32, v23")
    I("v_perm_b32 v33, v10, v24, s28")
    I("ds_write_b64 v46, v[32:33] offset:8")
    I("v_alignbit_b32 v34, v25, v24, 16")
    I("v_perm_b32 v35, v11, v25, s50")
    I("ds_write_b64 v47, v[34:35] offset:8")
    I("s_mov_b64 exec, -1")
    I("s_waitcnt lgkmcnt(0)")
    I("s_branch L1_copy")
    e.label("L1_aux")
    I("v_subrev_u32 v64, 832, v0")
    I("v_lshlrev_b32 v65, 4, v64")
    if c.codepf:
        I("s_getpc_b64 s[40:41]")
        I(f"s_mov_b32 s42, {c.codepf*1024}")
        I("s_mov_b32 s43, 0x20000")
        I("v_lshlrev_b32 v72, 7, v64")
        I("buffer_load_dword v73, v72, s[40:43], 0 offen")
    I("s_cmp_lg_u32 s21, 15")
    I("s_cbranch_scc1 L1_notag")
    I("s_cmp_lg_u32 s2, 0")
    I("s_cbranch_scc1 L1_notag")
    I("s_memrealtime s[44:45]")
    I("s_waitcnt lgkmcnt(0)")
    I("s_and_b32 s45, s45, 0x7f")
    I("s_or_b32 s45, s45, 0x80")
    I("s_lshl_b32 s45, s45, 24")
    I("v_mov_b32 v68, s44")
    I("v_mov_b32 v69, s45")
    I("s_mov_b64 exec, 1")
    I("buffer_store_dwordx2 v[68:69], off, s[76:79], 0 sc1")
    I("s_mov_b64 exec, -1")
    e.label("L1_notag")
    I("s_cmp_lg_u32 s21, 13")
    I("s_cbranch_scc1 L1_nozero")
    for k in range(4): I(f"v_mov_b32 v{4+k}, 0")
    I("ds_write_b128 v65, v[4:7]")
    I("ds_write_b128 v65, v[4:7] offset:1024")
    e.label("L1_nozero")
    I("s_barrier"); I("s_barrier"); I("s_barrier")
    I("s_cmp_lg_u32 s21, 15")
    I("s_cbranch_scc1 L1_notag2")
    I("s_mov_b32 s44, 0")
    e.label("L1_tagpoll")
    I("buffer_load_dwordx2 v[68:69], off, s[76:79], 0 sc1")
    I("s_add_u32 s44, s44, 1")
    I("s_waitcnt vmcnt(0)")
    I("v_readfirstlane_b32 s45, v69")
    e.nop(1)
    I("s_cmp_lg_u32 s45, 0")
    I("s_cbranch_scc1 L1_tagok")
    I("s_cmp_lt_u32 s44, 0x100000")
    I("s_cbranch_scc1 L1_tagpoll")
    e.label("L1_tagok")
    I("v_mov_b32 v70, 0")
    I("s_mov_b64 exec, 1")
    I(f"ds_write_b64 v70, v[68:69] offset:{NONCE}")
    I("s_mov_b64 exec, -1")
    e.label("L1_notag2")
    for k in range(8):
        I(f"s_movk_i32 s46, {k*3072}")
        I(f"buffer_load_dwordx4 v[{28+4*k}:{31+4*k}], v65, s[72:75], s46 offen")
    for k in range(6):
        I(f"s_movk_i32 s46, {k*3072}")
        I(f"buffer_load_dwordx4 v[{72+4*k}:{75+4*k}], v65, s[68:71], s46 offen")
    prefetch_x(e, c.pfx_lines, 60, 64, 192, 31, 0, 64)
    I("s_waitcnt lgkmcnt(0)")
    e.flush()
    e.label("L1_copy")
    I("s_barrier")
    stamp(e, c, 3)
    I(f"ds_read_b128 v[8:11], v1 offset:{RAW}")
    I(f"ds_read_b128 v[12:15], v1 offset:{RAW+16384}")
    I(f"v_add_u32 v25, {TI}, v1")
    I(f"ds_read_b128 v[16:19], v1 offset:{RAW+32768}")
    I(f"ds_read_b128 v[20:23], v1 offset:{RAW+49152}")
    I("ds_read_b128 v[100:103], v25")
    I("v_lshrrev_b32 v25, 1, v0")
    I("v_lshlrev_b32 v25, 2, v25")
    I(f"v_add_u32 v25, {H1}, v25")
    I("ds_read2st64_b32 v[104:105], v25 offset0:0 offset1:8")
    I("ds_read_b32 v106, v25 offset:1024")
    I(f"v_mov_b32 v25, {H1+2048+1024}")
    I("ds_read_b32 v98, v25")
    I("v_mov_b32 v25, 0")
    I(f"ds_read_b64 v[96:97], v25 offset:{NONCE}")
    I("v_add_u32 v2, 16384, v1")
    I("v_add_u32 v3, 32768, v1")
    I("v_add_u32 v24, 49152, v1")
    I("s_movk_i32 s48, 328")
    I("v_cmp_gt_u32 s[92:93], s48, v0")
    I("s_waitcnt lgkmcnt(8)")
    I(f"buffer_store_dwordx4 v[8:11], v1, s[8:11], s51 offen {sf}")
    I("s_waitcnt lgkmcnt(7)")
    I(f"buffer_store_dwordx4 v[12:15], v2, s[8:11], s51 offen {sf}")
    I("s_waitcnt lgkmcnt(0)")
    I("v_readfirstlane_b32 s86, v96")
    I("v_readfirstlane_b32 s87, v97")
    I("v_readfirstlane_b32 s88, v98")
    I("v_lshl_or_b32 v104, v104, 12, v105")
    I("v_or_b32 v97, v97, v104")
    I(f"v_cndmask_b32 v100, v97, v100, {ODD}")
    I(f"v_cndmask_b32 v101, v96, v101, {ODD}")
    I("v_lshl_or_b32 v106, v96, 12, v106")
    I(f"v_cndmask_b32 v103, v103, v106, {ODD}")
    I("s_lshl_b32 s3, s86, 12")
    I(f"s_add_u32 s49, s51, {TABOFF}")
    I(f"s_cmp_gt_u32 s88, {(32768-PAYOFF)//16}")
    I("s_cselect_b32 s25, 0, 8")
    stamp(e, c, 4)
    def handoff(tag, mid):
        I("s_waitcnt vmcnt(0)")
        stamp(e, c, 6)
        I("s_barrier")
        I("s_cmp_ge_u32 s21, s25")
        I(f"s_cbranch_scc1 L_noearly{tag}")
        I(f"buffer_store_dwordx4 v[100:103], v1, s[8:11], s49 offen {sf}")
        e.label(f"L_noearly{tag}")
        I(f"buffer_store_dwordx4 v[16:19], v3, s[8:11], s51 offen {sf}")
        I("s_mov_b64 exec, s[92:93]")
        I(f"s_cbranch_execz L_stskip{tag}")
        I(f"buffer_store_dwordx4 v[20:23], v24, s[8:11], s51 offen {sf}")
        e.label(f"L_stskip{tag}")
        I("s_mov_b64 exec, -1")
        mid()
        I("s_waitcnt vmcnt(0) lgkmcnt(0)")
        stamp(e, c, 5)
        I("s_barrier")
        I("s_cmp_lt_u32 s21, s25")
        I(f"s_cbranch_scc1 L_nolate{tag}")
        I(f"buffer_store_dwordx4 v[100:103], v1, s[8:11], s49 offen {sf}")
        e.label(f"L_nolate{tag}")
    I("s_cmp_lt_u32 s21, 4")
    e.branch("s_cbranch_scc1 L2_gemm")

    VLANE, VINFO, VNEXT = 108, 109, 110
    VLOFF, VMASK, VOW, VOR, VSCRW, VTRA, VWR, VL16 = 111, 112, 113, 114, 115, 116, 117, 118
    VT0, VT1, VONE, VSEL = 119, 120, 121, 122
    VJ, VCH, VSEG = 123, 124, 125
    I(f"v_and_b32 v{VLANE}, 63, v0")
    I(f"v_mov_b32 v{VONE}, 1")
    I(f"v_mov_b32 v{VMASK}, s30")
    I(f"v_lshrrev_b32 v{VT1}, 4, v{VLANE}")
    I(f"v_lshlrev_b32 v{VL16}, 4, v{VLANE}")
    if c.addtid:
        I(f"v_and_b32 v{VT0}, 3, v{VLANE}")
        I(f"v_lshlrev_b32 v{VLOFF}, 4, v{VT0}")
    else:
        I(f"v_and_b32 v{VT0}, 15, v{VLANE}")
        I(f"v_lshlrev_b32 v{VLOFF}, 4, v{VT0}")
    I("s_sub_u32 s43, s21, 4")
    I(f"s_mul_i32 s43, s43, {SSTR}")
    I(f"s_add_u32 s43, s43, {SCR}")
    I(f"v_add_u32 v{VSCRW}, s43, v{VL16}")
    I(f"v_lshlrev_b32 v{VOR}, 5, v{VT1}")
    I(f"v_add_u32 v{VOR}, s43, v{VOR}")
    I(f"v_lshlrev_b32 v{VTRA}, 4, v{VT1}")
    I(f"v_bfe_u32 v{VT1}, v{VLANE}, 2, 2")
    I(f"v_lshl_add_u32 v{VTRA}, v{VT1}, 6, v{VTRA}")
    I(f"v_and_b32 v{VT1}, 1, v{VLANE}")
    I(f"v_lshl_add_u32 v{VTRA}, v{VT1}, 3, v{VTRA}")
    I(f"v_bfe_u32 v{VT1}, v{VLANE}, 1, 1")
    I(f"v_mul_u32_u24 v{VT1}, {PL1}, v{VT1}")
    I(f"v_add3_u32 v{VTRA}, v{VTRA}, v{VT1}, s43")
    I(f"v_and_b32 v{VOW}, 32, v{VLANE}")
    I(f"v_and_b32 v{VT1}, 3, v{VLANE}")
    I(f"v_lshl_add_u32 v{VOW}, v{VT1}, 3, v{VOW}")
    I(f"v_bfe_u32 v{VT1}, v{VLANE}, 2, 3")
    I(f"v_add_u32 v{VOW}, v{VOW}, v{VT1}")
    I(f"v_lshlrev_b32 v{VOW}, 2, v{VOW}")
    I(f"v_add_u32 v{VOW}, s43, v{VOW}")
    I(f"v_add_u32 v{VWR}, {WRAD}, v{VL16}")
    I("s_sub_u32 s42, s21, 4")
    I("s_mul_i32 s83, s42, 24")
    I(f"v_and_b32 v{VJ}, 7, v{VLANE}")
    I(f"v_lshrrev_b32 v{VSEG}, 3, v{VLANE}")
    I(f"s_mov_b32 s42, {CSTRIDE}")
    I(f"v_mul_u32_u24 v{VCH}, s42, v{VSEG}")
    I(f"v_lshlrev_b32 v{VSEG}, 5, v{VSEG}")
    I(f"v_add_u32 v{VSEG}, s43, v{VSEG}")
    I(f"v_or_b32 v{VSEL}, 0x0c0c0c00, v{VJ}")
    NP, NW = 3, 3
    I(f"s_mul_i32 s79, s83, {CSTRIDE}")
    for p in range(NP):
        I(f"s_add_u32 s{74+p}, s79, {8*p*CSTRIDE+PAYOFF}")
        I(f"s_add_u32 s{80+p}, s79, {8*p*CSTRIDE+KEYOFF}")
    I("s_mov_b32 s88, s20")
    I("s_mov_b32 s89, 0")
    I(f"s_movk_i32 s48, {HN}")
    def w_stage():
        I("s_cmp_lt_u32 s21, 13")
        I("s_cbranch_scc1 L2_noW")
        I(f"v_add_u32 v65, {T}, v65")
        for k in range(8):
            I(f"ds_write_b128 v65, v[{28+4*k}:{31+4*k}] offset:{16384 + k*3072}")
        for k in range(5):
            I(f"ds_write_b128 v65, v[{72+4*k}:{75+4*k}] offset:{k*3072}")
        I("s_cmp_lg_u32 s21, 13")
        I("s_cbranch_scc1 L2_noW")
        I(f"ds_write_b128 v65, v[92:95] offset:{5*3072}")
        e.label("L2_noW")
    handoff("g", w_stage)
    PAY, KEY, RNK, CNTR, KAD, PAD, X, EN = 0, 36, 45, 54, 57, 60, 64, 72
    MSK = 50
    e.label("L2_g_round")
    I(f"v_lshrrev_b32 v{X}, 1, v{VLANE}")
    I(f"s_sub_u32 s42, {NCH}, s83")
    I("s_min_i32 s42, s42, 24")
    I(f"v_cmp_gt_i32 s[46:47], s42, v{X}")
    I(f"s_mov_b32 s42, {CSTRIDE}")
    I(f"v_mul_u32_u24 v{X+1}, s42, v{X}")
    I(f"v_and_b32 v{X+2}, 16, v{VL16}")
    I(f"v_add_u32 v{X+1}, v{X+1}, v{X+2}")
    I(f"v_cndmask_b32 v{X+1}, 2.0, v{X+1}, s[46:47]")
    I("s_lshl_b32 s43, s88, 5")
    I(f"s_add_u32 s43, s43, {TABOFF}")
    I("s_add_u32 s43, s43, s79")
    I("s_mov_b32 s44, 0")
    I(f"v_lshl_add_u32 v{VT1}, v{VJ}, 4, v{VCH}")
    e.label("L2_poll")
    I(f"buffer_load_dwordx4 v[{EN}:{EN+3}], v{X+1}, s[8:11], s43 offen sc1")
    I("s_add_u32 s44, s44, 1")
    I("s_waitcnt vmcnt(0)")
    tag_bad(e, X+2, EN, X+3, ODD)
    I(f"v_cmp_ne_u32 vcc, 0, v{X+2}")
    e.nop(2)
    I("s_and_b64 vcc, vcc, s[46:47]")
    I("s_cbranch_scc0 L2_poll_ok")
    I(f"s_sleep {c.psleep}")
    I("s_cmp_lt_u32 s44, 0x100000")
    I("s_cbranch_scc1 L2_poll")
    e.label("L2_poll_ok")
    I("s_cmp_lg_u32 s23, 1")
    I("s_cbranch_scc1 L2_nofilter")
    I("s_sub_u32 s42, s22, s83")
    I(f"v_cmp_eq_u32 vcc, s42, v{X}")
    I(f"v_cndmask_b32 v{EN}, 0, v{EN}, vcc")
    e.label("L2_nofilter")
    I(f"ds_write_b128 v{VSCRW}, v[{EN}:{EN+3}]")
    I(f"v_add_u32 v{X+1}, 8, v{VJ}")
    stamp(e, c, 7)
    def msk(p, w): return f"s[{MSK+4*p+2*w}:{MSK+4*p+2*w+1}]" if w < 2 else f"s[{MSK+12+2*p}:{MSK+13+2*p}]"
    def pay(p, w): return f"v[{PAY+12*p+4*w}:{PAY+12*p+4*w+3}]"
    for p in range(NP):
        I(f"ds_read_b128 v[{EN+8*p}:{EN+8*p+3}], v{VSEG} offset:{256*p}")
        I(f"ds_read_b128 v[{EN+8*p+4}:{EN+8*p+7}], v{VSEG} offset:{256*p+16}")
    for p in range(NP):
        en, cnt = EN + 8*p, CNTR + p
        if p == 0: I("s_waitcnt lgkmcnt(0)")
        I(f"v_bfe_u32 v{cnt}, v{en}, 12, 12")
        I(f"v_and_b32 v{PAD+p}, 0xfff, v{en}")
        I(f"v_cmp_lt_u32 {msk(p,0)}, v{VJ}, v{cnt}")
        I(f"v_cmp_lt_u32 {msk(p,1)}, v{X+1}, v{cnt}")
        I(f"v_perm_b32 v{KEY+3*p}, v{en+3}, v{en+2}, v{VSEL}")
        I(f"v_perm_b32 v{KEY+3*p+1}, v{en+5}, v{en+4}, v{VSEL}")
        I(f"v_lshl_add_u32 v{PAD+p}, v{PAD+p}, 4, v{VT1}")
        for w in range(2):
            I(f"s_mov_b64 exec, {msk(p,w)}")
            I(f"s_cbranch_execz L2_nop{p}")
            I(f"ds_add_rtn_u32 v{RNK+3*p+w}, v{KEY+3*p+w}, v{VONE} offset:{HIST}")
            I(f"buffer_load_dwordx4 {pay(p,w)}, v{PAD+p}, s[8:11], s{74+p} offen offset:{128*w} {rf}")
        e.label(f"L2_nop{p}")
        I("s_mov_b64 exec, -1")
    I(f"v_max3_u32 v{VT0}, v{CNTR}, v{CNTR+1}, v{CNTR+2}")
    I(f"v_cmp_lt_u32 vcc, 16, v{VT0}")
    I("s_mov_b32 s25, 0")
    e.nop(1)
    I("s_cmp_eq_u64 vcc, 0")
    I("s_cbranch_scc1 L2_noextraA")
    I("s_mov_b32 s25, 1")
    I(f"v_add_u32 v{X+2}, 16, v{VJ}")
    for p in range(NP):
        en = EN + 8*p
        I(f"v_min_u32 v{X+3}, {KIN}, v{CNTR+p}")
        I(f"v_cmp_lt_u32 {msk(p,2)}, v{X+2}, v{X+3}")
        I(f"v_perm_b32 v{KEY+3*p+2}, v{en+6}, v{en+6}, v{VSEL}")
        I(f"v_sub_u32 v{KAD+p}, v{PAD+p}, v{VCH}")
        I(f"v_lshrrev_b32 v{KAD+p}, 4, v{KAD+p}")
        I(f"v_add_u32 v{KAD+p}, v{KAD+p}, v{VCH}")
        e.flush()
        I(f"s_mov_b64 exec, {msk(p,2)}")
        I(f"ds_add_rtn_u32 v{RNK+3*p+2}, v{KEY+3*p+2}, v{VONE} offset:{HIST}")
        I(f"buffer_load_dwordx4 {pay(p,2)}, v{PAD+p}, s[8:11], s{74+p} offen offset:256 {rf}")
        I("s_mov_b64 exec, -1")

    def extra_count(tag, first, vj, vkad, vcnt, skey, vone, hist, y):
        I(f"v_add_u32 v{y}, {first}, v{vj}")
        I(f"v_add_u32 v{y+1}, {first}, v{vkad}")
        e.label(f"L_xa{tag}")
        I(f"v_cmp_lt_u32 vcc, v{y}, v{vcnt}")
        I("s_and_saveexec_b64 s[44:45], vcc")
        e.branch(f"s_cbranch_execz L_xa{tag}_done")
        I(f"buffer_load_ubyte v{y+2}, v{y+1}, s[8:11], s{skey} offen {rf}")
        I("s_waitcnt vmcnt(0)")
        I(f"ds_add_u32 v{y+2}, v{vone} offset:{hist}")
        I("s_mov_b64 exec, -1")
        I(f"v_add_u32 v{y}, 8, v{y}")
        I(f"v_add_u32 v{y+1}, 8, v{y+1}")
        e.branch(f"s_branch L_xa{tag}")
        e.label(f"L_xa{tag}_done")
        I("s_mov_b64 exec, -1")
    def extra_move(tag, first, vj, vkad, vpad, vcnt, skey, spay, vone, cur, vbase, y, d):
        I(f"v_add_u32 v{y}, {first}, v{vj}")
        I(f"v_add_u32 v{y+1}, {first}, v{vkad}")
        I(f"v_add_u32 v{vpad}, {16*first}, v{vpad}")
        e.label(f"L_xb{tag}")
        I(f"v_cmp_lt_u32 vcc, v{y}, v{vcnt}")
        I("s_and_saveexec_b64 s[44:45], vcc")
        e.branch(f"s_cbranch_execz L_xb{tag}_done")
        I(f"buffer_load_ubyte v{y+2}, v{y+1}, s[8:11], s{skey} offen {rf}")
        I(f"buffer_load_dwordx4 v[{d}:{d+3}], v{vpad}, s[8:11], s{spay} offen {rf}")
        I("s_waitcnt vmcnt(0)")
        I(f"ds_add_rtn_u32 v{y+3}, v{y+2}, v{vone} offset:{cur}")
        I("s_mov_b64 exec, -1")
        I(f"ds_bpermute_b32 v{y+2}, v{y+2}, v{vbase}")
        I("s_waitcnt lgkmcnt(0)")
        I(f"v_add_lshl_u32 v{y+2}, v{y+2}, v{y+3}, 4")
        I("s_mov_b64 exec, vcc")
        I(f"ds_write_b128 v{y+2}, v[{d}:{d+3}] offset:{RAW}")
        I("s_mov_b64 exec, -1")
        I(f"v_add_u32 v{y}, 8, v{y}")
        I(f"v_add_u32 v{y+1}, 8, v{y+1}")
        I(f"v_add_u32 v{vpad}, 128, v{vpad}")
        e.branch(f"s_branch L_xb{tag}")
        e.label(f"L_xb{tag}_done")
        I("s_mov_b64 exec, -1")
    for p in range(NP):
        extra_count(f"a{p}", KIN, VJ, KAD+p, CNTR+p, 80+p, VONE, HIST2, X)
    e.label("L2_noextraA")
    I("s_waitcnt lgkmcnt(0)")
    stamp(e, c, 14)
    I("s_barrier")
    stamp(e, c, 15)
    C1, CT, BS = X + 4, X + 5, X + 6
    I(f"v_lshlrev_b32 v{VT0}, 2, v{VLANE}")
    I(f"ds_read_b32 v{C1}, v{VT0} offset:{HIST}")
    I(f"ds_read_b32 v{CT}, v{VT0} offset:{HIST2}")
    I("s_waitcnt lgkmcnt(0)")
    I(f"v_add_u32 v{CT}, v{C1}, v{CT}")
    I(f"v_mov_b32 v{BS}, v{CT}")
    scan64(e, BS)
    I(f"v_readlane_b32 s46, v{BS}, 63")
    I(f"v_sub_u32 v{BS}, v{BS}, v{CT}")
    I(f"s_cmp_eq_u32 s23, 1")
    I(f"s_cselect_b32 s42, -1, {CAP}")
    for p in range(NP):
        for w in range(2):
            I(f"ds_bpermute_b32 v{KEY+3*p+w}, v{KEY+3*p+w}, v{BS}")
    I(f"v_lshl_or_b32 v{VINFO}, v{CT}, 16, v{BS}")
    I(f"s_cmp_gt_u32 s46, s42")
    I("s_cbranch_scc1 L2_g_overflow")
    I("s_cmp_lg_u32 s21, 5")
    I("s_cbranch_scc1 L2_noinfo")
    I(f"s_mov_b64 exec, {(1 << HN) - 1}")
    I(f"ds_write_b32 v{VT0}, v{VINFO} offset:{INFO}")
    I("s_mov_b64 exec, -1")
    e.label("L2_noinfo")
    I("s_cmp_lg_u32 s21, 4")
    I("s_cbranch_scc1 L2_noguard")
    I("s_lshl_b32 s46, s46, 4")
    for k in range(4): I(f"v_mov_b32 v{EN+k}, 0")
    I(f"v_add_u32 v{VT0}, s46, v{VL16}")
    I(f"ds_write_b128 v{VT0}, v[{EN}:{EN+3}] offset:{RAW}")
    e.label("L2_noguard")
    I("s_waitcnt lgkmcnt(0)")
    for p in range(NP):
        for w in range(2):
            I(f"v_add_lshl_u32 v{KEY+3*p+w}, v{KEY+3*p+w}, v{RNK+3*p+w}, 4")
    stamp(e, c, 27)
    I("s_waitcnt vmcnt(0)")
    stamp(e, c, 9)
    for p in range(NP):
        for w in range(2):
            I(f"s_mov_b64 exec, {msk(p,w)}")
            I(f"ds_write_b128 v{KEY+3*p+w}, {pay(p,w)} offset:{RAW}")
    I("s_mov_b64 exec, -1")
    I("s_cmp_eq_u32 s25, 0")
    I("s_cbranch_scc1 L2_noextraB")
    for p in range(NP):
        I(f"ds_bpermute_b32 v{KEY+3*p+2}, v{KEY+3*p+2}, v{BS}")
    I("s_waitcnt lgkmcnt(0)")
    for p in range(NP):
        I(f"v_add_lshl_u32 v{KEY+3*p+2}, v{KEY+3*p+2}, v{RNK+3*p+2}, 4")
        I(f"s_mov_b64 exec, {msk(p,2)}")
        I(f"ds_write_b128 v{KEY+3*p+2}, {pay(p,2)} offset:{RAW}")
        I("s_mov_b64 exec, -1")
    I(f"v_add_u32 v{BS}, v{BS}, v{C1}")
    for p in range(NP):
        extra_move(f"a{p}", KIN, VJ, KAD+p, PAD+p, CNTR+p, 80+p, 74+p, VONE, CUR2, BS, X, EN)
    e.label("L2_noextraB")
    I("s_waitcnt lgkmcnt(0)")
    stamp(e, c, 28)
    I("s_barrier")
    I(f"ds_read_b32 v{VT0}, v{VL16} offset:{TOTB}")
    I("s_mov_b64 exec, 1")
    I(f"ds_add_rtn_u32 v{VNEXT}, v{VL16}, v{VONE} offset:{NEXT}")
    I("s_mov_b64 exec, -1")
    I("s_waitcnt lgkmcnt(0)")
    I(f"v_readfirstlane_b32 s42, v{VT0}")
    e.nop(1)
    I(f"s_cmp_gt_u32 s42, {CAP}")
    I("s_cbranch_scc1 L2_g_overflow")
    stamp(e, c, 10)
    stamp(e, c, 24, "s_memtime")
    gather_loop(e, c, locals())
    e.label("L2_g_done")
    stamp(e, c, 11)
    stamp(e, c, 25, "s_memtime")
    I("s_cmp_lg_u32 s24, 0")
    e.branch("s_cbranch_scc1 L2_g_exit")
    I("s_add_u32 s89, s89, 1")
    I("s_branch L2_g_slow")
    e.label("L2_g_overflow")
    I("s_mov_b32 s89, 0")
    I("s_mov_b32 s23, 1")
    I("s_movk_i32 s48, 64")
    e.label("L2_g_slow")
    I("s_waitcnt vmcnt(0) lgkmcnt(0)")
    I("s_barrier")
    I("s_lshr_b32 s22, s89, 1")
    I("s_and_b32 s88, s89, 1")
    I("s_lshl_b32 s88, s88, 8")
    I("s_add_u32 s88, s88, s20")
    I(f"s_cmp_eq_u32 s89, {2*NCH-1}")
    I("s_cselect_b32 s24, 1, 0")
    I("s_barrier")
    e.branch("s_branch L2_g_round")
    e.label("L2_g_exit")
    stamp_store(e, c, 90)
    I("s_endpgm")

    e.label("L2_gemm")
    W, G, TA, TF = 0, 40, 104, 108
    X0, X1 = 124, 125
    I("v_and_b32 v104, 63, v0")
    I("v_lshlrev_b32 v105, 4, v104")
    lut = 0
    for jp in range(4):
        for blk in range(4):
            p, i, s = path_of(jp, blk)
            lut |= (p | (8 if s < 0 else 0)) << (4 * (jp * 4 + blk))
    I(f"s_mov_b32 s44, {lut & 0xffffffff}")
    I(f"s_mov_b32 s45, {lut >> 32}")
    for h in range(2):
        I("v_lshrrev_b32 v106, 4, v104")
        I("v_bfe_u32 v107, v104, 3, 1")
        I("v_lshl_add_u32 v106, v106, 2, v107")
        I(f"v_add_lshl_u32 v106, v106, {2*h}, 2")
        I(f"v_lshrrev_b64 v[108:109], v106, s[44:45]")
        I(f"v_and_b32 v106, 7, v108")
        I(f"v_and_b32 v{110+h}, 8, v108")
        I(f"v_lshlrev_b32 v{110+h}, 28, v{110+h}")
        I("v_and_b32 v107, 7, v104")
        I("v_lshlrev_b32 v107, 3, v107")
        I("v_lshl_add_u32 v106, v106, 6, v107")
        I("v_add_u32 v106, s21, v106")
        I(f"v_lshlrev_b32 v{112+h}, 1, v106")
    handoff("m", lambda: None)
    WT = 80
    for k in range(4):
        h, qo = k >> 1, (k & 1) * 4
        for d in range(4):
            I(f"buffer_load_ushort v{WT+4*k+d}, v{112+h}, s[16:19], 0 offen offset:{d*640+qo*2}")
    I("v_lshrrev_b32 v106, 4, v104")
    I("v_lshlrev_b32 v106, 10, v106")
    I("v_bfe_u32 v107, v104, 2, 2")
    I("v_lshl_add_u32 v106, v107, 7, v106")
    I("v_and_b32 v107, 3, v104")
    I("v_lshl_add_u32 v106, v107, 3, v106")
    I("s_lshl_b32 s42, s21, 5")
    I(f"s_add_u32 s42, s42, {T}")
    I("v_add_u32 v106, s42, v106")
    for f in range(10):
        I(f"ds_read_b64_tr_b16 v[{W+4*f}:{W+4*f+1}], v106 offset:{f*4096}")
        I(f"ds_read_b64_tr_b16 v[{W+4*f+2}:{W+4*f+3}], v106 offset:{f*4096+512}")
    I("s_lshl_b32 s42, s21, 10")
    I(f"s_add_u32 s43, s42, {WRAD}")
    I("v_add_u32 v105, s43, v105")
    I("s_waitcnt vmcnt(0)")
    for k in range(4):
        h = k >> 1
        for d in range(4):
            I(f"v_lshlrev_b32 v{WT+4*k+d}, 16, v{WT+4*k+d}")
            I(f"v_xor_b32 v{WT+4*k+d}, v{110+h}, v{WT+4*k+d}")
        I(f"ds_write_b128 v105, v[{WT+4*k}:{WT+4*k+3}] offset:{(k>>1)*8192 + (k&1)*4096}")
    I("v_and_b32 v106, 15, v104")
    I("v_lshrrev_b32 v107, 4, v104")
    I(f"v_lshlrev_b32 v{X0}, 2, v104")
    if NWG == 250:
        I(f"s_mul_i32 s42, s20, {HN}")
        I(f"s_movk_i32 s44, {HN}")
    else:
        I("s_mul_i32 s42, s20, 1600210")
        I("s_add_u32 s42, s42, 65532")
        I("s_add_u32 s44, s42, 1600210")
        I("s_lshr_b32 s42, s42, 16")
        I("s_lshr_b32 s44, s44, 16")
        I(f"s_min_u32 s44, s44, {N//2}")
        I("s_sub_u32 s44, s44, s42")
    I("s_lshl_b32 s42, s42, 9")
    I("s_lshl_b32 s43, s21, 5")
    I("s_add_u32 s42, s42, s43")
    I(f"v_lshlrev_b32 v{X1}, 9, v106")
    I(f"v_lshl_add_u32 v{X1}, v107, 3, v{X1}")
    I(f"v_add_u32 v{X1}, s42, v{X1}")
    I(f"v_cmp_le_u32 s[84:85], {HN-16}, v106")
    I(f"s_sub_u32 s43, s44, {48-HN}")
    I("v_cmp_gt_i32 s[50:51], s43, v106")
    I("s_sub_u32 s43, s44, 16")
    I("v_cmp_gt_i32 s[94:95], s43, v106")
    I("v_lshlrev_b32 v108, 10, v106")
    I(f"v_add_u32 v108, {T}, v108")
    I("s_or_b64 s[94:95], s[94:95], s[84:85]")
    for u in (3, 2, 1, 0):
        I(f"v_add_u32 v109, {4*u}, v107")
        I("v_xor_b32 v109, v109, v106")
        I(f"v_lshl_add_u32 v{TF+4+u}, v109, 4, v108")
    I("s_waitcnt lgkmcnt(0)")
    for u in range(4):
        I(f"v_mov_b32 v{TA+u}, v{TF+4+u}")
    I("s_mov_b32 s89, 0")
    NPB = 8
    TB, KA, SJ, KB, RB = 40, 48, 56, 64, 80
    LJ, LCH, LONE, Y = 96, 97, 98, 99
    MB = 52
    def mb(p, w): return f"s[{MB+4*p+2*w}:{MB+4*p+2*w+1}]"
    LA, PA0, PA1, TOA = KB, KB + 1, KB + 2, KB + 3
    I(f"v_lshrrev_b32 v{Y}, 2, v{X0}")
    I("s_lshl_b32 s42, s21, 11")
    I(f"v_lshl_add_u32 v{LA}, v{Y}, 4, s42")
    I(f"v_lshrrev_b32 v{Y+1}, 1, v{Y}")
    I("s_lshl_b32 s43, s21, 5")
    I(f"s_sub_u32 s44, {NCH-128}, s43")
    I(f"v_cmp_gt_i32 s[46:47], s44, v{Y+1}")
    I(f"s_mov_b32 s44, {CSTRIDE}")
    I(f"v_mul_u32_u24 v{Y+1}, s44, v{Y+1}")
    I(f"v_and_b32 v{Y+2}, 16, v{LA}")
    I(f"v_add_u32 v{PA0}, v{Y+1}, v{Y+2}")
    I(f"v_cndmask_b32 v{PA1}, 2.0, v{PA0}, s[46:47]")
    I(f"v_and_b32 v{LJ}, 7, v{Y}")
    I(f"v_lshrrev_b32 v{Y+1}, 3, v{Y}")
    I(f"v_mul_u32_u24 v{LCH}, s44, v{Y+1}")
    I(f"v_lshl_add_u32 v{RB}, v{Y+1}, 5, s42")
    I("s_mul_i32 s38, s43, s44")
    I(f"v_add_u32 v{LCH}, s38, v{LCH}")
    I(f"v_mov_b32 v{LONE}, 1")
    I("s_lshl_b32 s36, s20, 5")
    I(f"s_add_u32 s36, s36, {TABOFF+8192}")
    I("s_add_u32 s36, s36, s38")
    I(f"s_add_u32 s37, s36, {128*CSTRIDE}")
    I("s_lshl_b32 s42, s21, 6")
    I(f"v_add_u32 v{Y}, s42, v{Y}")
    I(f"v_mul_u32_u24 v{Y+1}, 0xaab, v{Y}")
    I(f"v_lshrrev_b32 v{Y+1}, 16, v{Y+1}")
    I(f"v_mul_u32_u24 v{Y+1}, {SSTR-24*32}, v{Y+1}")
    I(f"v_lshl_add_u32 v{TOA}, v{Y}, 5, v{Y+1}")
    I(f"v_add_u32 v{TOA}, {SCR+28}, v{TOA}")
    I(f"s_movk_i32 s42, {NCH}")
    I(f"v_cmp_gt_u32 s[92:93], s42, v{Y}")
    stamp(e, c, 14)
    e.label("L2_m_round")
    I("s_barrier")
    I("s_cmp_eq_u32 s23, 1")
    I("s_cbranch_scc1 L2_m_slowC")
    def pollB_issue():
        I(f"buffer_load_dwordx4 v[{TF+4}:{TF+7}], v{PA0}, s[8:11], s36 offen sc1")
        I(f"buffer_load_dwordx4 v[{TF+8}:{TF+11}], v{PA1}, s[8:11], s37 offen sc1")
    I(f"ds_read_b32 v{TF}, v{X0} offset:{HIST}")
    I(f"ds_read_b32 v{TF+1}, v{X0} offset:{HIST2}")
    I(f"ds_read_b32 v{Y}, v{TOA}")
    I("s_waitcnt lgkmcnt(0)")
    I(f"v_add_u32 v{TF}, v{TF}, v{TF+1}")
    I(f"v_and_b32 v{Y}, 0xfff, v{Y}")
    I(f"v_cndmask_b32 v{Y}, 0, v{Y}, s[92:93]")
    scan64(e, TF)
    scan64(e, Y)
    I(f"v_readlane_b32 s42, v{TF}, 63")
    I(f"v_mov_b32 v{Y+2}, 0")
    I("s_mov_b32 exec_lo, 0")
    I("s_mov_b32 exec_hi, 0x80000000")
    I(f"ds_add_u32 v{Y+2}, v{Y} offset:{TOTB}")
    I("s_mov_b64 exec, -1")
    I(f"s_cmp_gt_u32 s42, {CAP}")
    I("s_cbranch_scc1 L2_m_overflow")
    if c.bearly: pollB_issue()
    I("s_waitcnt lgkmcnt(0)")
    I("s_barrier")
    I(f"ds_read_b32 v{Y}, v{Y+2} offset:{TOTB}")
    SEL = Y + 4
    E2 = [TF, TF + 8]
    I("s_mov_b32 s44, 0")
    I("s_waitcnt lgkmcnt(0)")
    I(f"v_readfirstlane_b32 s42, v{Y}")
    I(f"v_or_b32 v{SEL}, 0x0c0c0c00, v{LJ}")
    I(f"s_cmp_gt_u32 s42, {CAP}")
    I("s_cbranch_scc1 L2_m_overflow")
    stamp(e, c, 10)
    I("s_mov_b32 s34, s42")
    if c.x_nobload: I("s_branch L2_bnoxb")
    if c.bearly: I("s_branch L2_pollB_w")
    e.label("L2_pollB")
    pollB_issue()
    e.label("L2_pollB_w")
    I("s_add_u32 s44, s44, 1")
    I("s_waitcnt vmcnt(0)")
    tag_bad(e, Y, TF+4, Y+1, ODD)
    tag_bad(e, Y+2, TF+8, Y+1, ODD)
    I(f"v_cndmask_b32 v{Y+2}, 0, v{Y+2}, s[46:47]")
    I(f"v_or_b32 v{Y}, v{Y}, v{Y+2}")
    I(f"v_cmp_ne_u32 vcc, 0, v{Y}")
    e.nop(2)
    I("s_cmp_eq_u64 vcc, 0")
    I("s_cbranch_scc1 L2_pollB_ok")
    I(f"s_sleep {c.psleep}")
    I("s_cmp_lt_u32 s44, 0x100000")
    I("s_cbranch_scc1 L2_pollB")
    e.label("L2_pollB_ok")
    stamp(e, c, 7)
    I(f"ds_write_b128 v{LA}, v[{TF+4}:{TF+7}] offset:{CEB}")
    I(f"ds_write_b128 v{LA}, v[{TF+8}:{TF+11}] offset:{CEB+1024}")
    def boff(p): return ((128 if p >= 4 else 0) + 8 * (p & 3)) * CSTRIDE
    def ent_read(p):
        r = E2[p & 1]
        I(f"ds_read_b128 v[{r}:{r+3}], v{RB} offset:{CEB+256*p}")
        I(f"ds_read_b64 v[{r+4}:{r+5}], v{RB} offset:{CEB+256*p+16}")
    ent_read(0); ent_read(1)
    I(f"v_add_u32 v{Y+1}, 8, v{LJ}")
    for p in range(NPB):
        r = E2[p & 1]
        I(f"s_waitcnt lgkmcnt({2 if p < NPB-1 else 0})")
        I(f"v_and_b32 v{SJ+p}, 0xfff, v{r}")
        I(f"v_bfe_u32 v{TB+p}, v{r}, 12, 12")
        I(f"v_perm_b32 v{KB+2*p}, v{r+3}, v{r+2}, v{SEL}")
        I(f"v_perm_b32 v{KB+2*p+1}, v{r+5}, v{r+4}, v{SEL}")
        if p + 2 < NPB: ent_read(p + 2)
        I(f"v_add_u32 v{SJ+p}, v{SJ+p}, v{LJ}")
        I(f"v_cmp_lt_u32 {mb(p,0)}, v{LJ}, v{TB+p}")
        I(f"v_cmp_lt_u32 {mb(p,1)}, v{Y+1}, v{TB+p}")
        I(f"v_lshl_add_u32 v{SJ+p}, v{SJ+p}, 4, v{LCH}")
    P0 = [TF, TF+4, TF+8, TF+12]
    def pay_issue(p, w, reg):
        I(f"s_mov_b32 s42, {boff(p)+PAYOFF}")
        I("s_mov_b64 exec, -1")
        I(f"v_cndmask_b32 v{Y+2+w}, 2.0, v{SJ+p}, {mb(p,w)}")
        I(f"buffer_load_dwordx4 v[{reg}:{reg+3}], v{Y+2+w}, s[8:11], s42 offen offset:{128*w} {rf}")
    for k in range(4): pay_issue(k >> 1, k & 1, P0[k])
    I(f"v_max3_u32 v{Y}, v{TB}, v{TB+1}, v{TB+2}")
    I(f"v_max3_u32 v{Y}, v{Y}, v{TB+3}, v{TB+4}")
    I(f"v_max3_u32 v{Y}, v{Y}, v{TB+5}, v{TB+6}")
    I(f"v_max_u32 v{Y}, v{Y}, v{TB+7}")
    I(f"v_cmp_lt_u32 vcc, 16, v{Y}")
    I(f"v_mov_b32 v{Y+1}, v{RB}")
    for p in range(NPB):
        for w in range(2):
            I(f"s_mov_b64 exec, {mb(p,w)}")
            I(f"ds_add_rtn_u32 v{RB+2*p+w}, v{KB+2*p+w}, v{LONE} offset:{HISTB}")
    I("s_mov_b64 exec, -1")
    I("s_cmp_lg_u64 vcc, 0")
    I("s_cselect_b32 s35, 1, 0")
    I("s_cbranch_scc0 L2_bnoxa")
    def w2mask(p):
        I(f"v_min_u32 v{Y+2}, {KIN}, v{TB+p}")
        I(f"v_add_u32 v{Y+3}, 16, v{LJ}")
        I(f"v_cmp_lt_u32 vcc, v{Y+3}, v{Y+2}")
        I("s_and_saveexec_b64 s[44:45], vcc")
    for p in range(NPB):
        w2mask(p)
        e.branch(f"s_cbranch_execz L2_bw2a{p}")
        I(f"ds_read_b32 v{KA+p}, v{Y+1} offset:{CEB+256*p+24}")
        I("s_waitcnt lgkmcnt(0)")
        I(f"v_perm_b32 v{KA+p}, v{KA+p}, v{KA+p}, v{SEL}")
        I(f"ds_add_rtn_u32 v{Y+2}, v{KA+p}, v{LONE} offset:{HISTB}")
        I("s_waitcnt lgkmcnt(0)")
        I(f"v_lshl_or_b32 v{KA+p}, v{Y+2}, 8, v{KA+p}")
        e.label(f"L2_bw2a{p}")
        I("s_mov_b64 exec, -1")
    def key_addr(p, dst):
        I(f"v_sub_u32 v{dst}, v{SJ+p}, v{LCH}")
        I(f"v_lshrrev_b32 v{dst}, 4, v{dst}")
        I(f"v_add_u32 v{dst}, v{dst}, v{LCH}")
    for p in range(NPB):
        I(f"s_mov_b32 s42, {boff(p)+KEYOFF}")
        key_addr(p, Y+3)
        extra_count(f"b{p}", KIN, LJ, Y+3, TB+p, 42, LONE, HIST2B, Y)
    e.label("L2_bnoxa")
    I("s_mov_b64 exec, 1")
    I(f"v_mov_b32 v{Y+2}, 0")
    I("s_waitcnt lgkmcnt(0)")
    I(f"ds_add_u32 v{Y+2}, v{LONE} offset:{BSYNC}")
    I("s_mov_b64 exec, -1")
    I(f"v_mov_b32 v{Y+2}, 0")
    spin(e, "bs", Y, Y+2, BSYNC, 4, 44, 42)
    BB = Y + 4
    I(f"ds_read_b32 v{Y}, v{X0} offset:{HISTB}")
    I(f"ds_read_b32 v{Y+1}, v{X0} offset:{HIST2B}")
    I("s_waitcnt lgkmcnt(0)")
    I(f"v_add_u32 v{Y+1}, v{Y}, v{Y+1}")
    I(f"v_mov_b32 v{BB}, v{Y+1}")
    scan64(e, BB)
    I(f"v_sub_u32 v{BB}, v{BB}, v{Y+1}")
    I(f"v_add_u32 v{BB}, {BOFF}, v{BB}")
    for k in range(2*NPB):
        I(f"ds_bpermute_b32 v{KB+k}, v{KB+k}, v{BB}")
    I("s_cmp_lg_u32 s21, 0")
    I("s_cbranch_scc1 L2_bnoinfo")
    I(f"v_lshl_or_b32 v{Y+1}, v{Y+1}, 16, v{BB}")
    I(f"s_mov_b32 exec_lo, {((1 << 32) - (1 << HN))}")
    I(f"ds_write_b32 v{X0}, v{Y+1} offset:{INFO}")
    I("s_mov_b64 exec, -1")
    e.label("L2_bnoinfo")
    I("s_waitcnt lgkmcnt(0)")
    for k in range(2*NPB):
        I(f"v_add_lshl_u32 v{KB+k}, v{KB+k}, v{RB+k}, 4")
    I(f"v_mov_b32 v{LONE}, v{Y}")
    regs = P0 + [RB, RB+4, RB+8, RB+12]
    for k in range(4, 8): pay_issue(k >> 1, k & 1, regs[k])
    for k in range(16):
        I(f"s_waitcnt vmcnt({min(7, 15-k)})")
        I(f"s_mov_b64 exec, {mb(k>>1, k&1)}")
        I(f"ds_write_b128 v{KB+k}, v[{regs[k&7]}:{regs[k&7]+3}] offset:{RAW}")
        if k + 8 < 16: pay_issue((k+8) >> 1, (k+8) & 1, regs[k&7])
    I("s_mov_b64 exec, -1")
    I("s_cmp_eq_u32 s35, 0")
    I("s_cbranch_scc1 L2_bnoxb")
    for p in range(NPB):
        I(f"v_and_b32 v{Y}, 0xff, v{KA+p}")
        I(f"ds_bpermute_b32 v{Y}, v{Y}, v{BB}")
        w2mask(p)
        e.branch(f"s_cbranch_execz L2_bw2b{p}")
        I(f"s_mov_b32 s42, {boff(p)+PAYOFF}")
        I(f"buffer_load_dwordx4 v[{TF}:{TF+3}], v{SJ+p}, s[8:11], s42 offen offset:256 {rf}")
        I(f"v_lshrrev_b32 v{KA+p}, 8, v{KA+p}")
        I("s_waitcnt vmcnt(0) lgkmcnt(0)")
        I(f"v_add_lshl_u32 v{Y}, v{Y}, v{KA+p}, 4")
        I(f"ds_write_b128 v{Y}, v[{TF}:{TF+3}] offset:{RAW}")
        e.label(f"L2_bw2b{p}")
        I("s_mov_b64 exec, -1")
        I("s_waitcnt lgkmcnt(0)")
    I(f"v_add_u32 v{BB}, v{BB}, v{LONE}")
    I(f"v_mov_b32 v{LONE}, 1")
    for p in range(NPB):
        I(f"s_mov_b32 s42, {boff(p)+KEYOFF}")
        I(f"s_mov_b32 s43, {boff(p)+PAYOFF}")
        key_addr(p, KA+p)
        extra_move(f"b{p}", KIN, LJ, KA+p, SJ+p, TB+p, 42, 43, LONE, CUR2B, BB, Y, TF)
    e.label("L2_bnoxb")
    I("s_waitcnt lgkmcnt(0)")
    for k in range(64):
        I(f"v_mov_b32 v{G+k}, 0")
    I("s_cmp_lg_u32 s21, 1")
    I("s_cbranch_scc1 L2_bnoguard")
    I(f"s_add_u32 s42, s34, {BOFF}")
    I("s_lshl_b32 s42, s42, 4")
    I(f"v_lshl_add_u32 v{TF}, v{X0}, 2, s42")
    I(f"ds_write_b128 v{TF}, v[{G}:{G+3}] offset:{RAW}")
    I("s_waitcnt lgkmcnt(0)")
    e.label("L2_bnoguard")
    I(f"v_mov_b32 v{TF}, 1")
    I("s_mov_b64 exec, 1")
    I(f"ds_add_u32 v{G}, v{TF} offset:{BREADY}")
    I("s_mov_b64 exec, -1")
    stamp(e, c, 13)
    I("s_branch L2_m_tiles")
    e.label("L2_m_slowC")
    I("s_barrier")
    e.label("L2_m_tiles")
    for h in range(2):
        for t in ((0, 3, 1, 2) if h else range(4)):
            need = 16 if t < 3 else NODES - 48
            I(f"v_mov_b32 v{TF}, 0")
            spin(e, f"t{h}{t}", TF+1, TF, DONE + 16*h + 4*t, need, 43, 42, sleep=(1 if (h, t) == (1, 2) else c.sleep))
            stamp(e, c, 16 + 4*h + t)
            def rd(ks):
                I(f"ds_read_b128 v[{TF+4*(ks&3)}:{TF+4*(ks&3)+3}], v{TA+(ks&3)} offset:{t*16384 + (ks>>2)*256}")
            for ks in range(4): rd(ks)
            for ks in range(16):
                jp, blk = ks >> 2, 2 * h + ((ks >> 1) & 1)
                p, i, s = path_of(jp, blk)
                f = p * 2 + (ks & 1)
                I(f"s_waitcnt lgkmcnt({min(3, 15-ks)})")
                g = G + 16 * t + 4 * i
                I(f"v_mfma_f32_16x16x32_bf16 v[{g}:{g+3}], v[{W+4*f}:{W+4*f+3}], v[{TF+4*(ks&3)}:{TF+4*(ks&3)+3}], v[{g}:{g+3}]")
                if ks + 4 < 16: rd(ks + 4)
            if h == 0:
                I(f"v_mov_b32 v{TF}, 0")
                I(f"v_mov_b32 v{TF+1}, 1")
                I("s_mov_b64 exec, 1")
                I(f"ds_add_u32 v{TF}, v{TF+1} offset:{GDONE + 4*t}")
                I("s_mov_b64 exec, -1")
            else:
                I("s_cmp_eq_u32 s24, 0")
                e.branch(f"s_cbranch_scc1 L2_nofin{t}")
                g = G + 16 * t
                I("s_mov_b32 s42, 0xbfb8aa3b")
                for r in range(4): I(f"v_mul_f32 v{TF+r}, s42, v{g+r}")
                for r in range(4): I(f"v_exp_f32 v{TF+r}, v{TF+r}")
                for r in range(4): I(f"v_add_f32 v{TF+r}, 1.0, v{TF+r}")
                for r in range(4): I(f"v_rcp_f32 v{TF+r}, v{TF+r}")
                for i in range(1, 4):
                    for r in range(4): I(f"v_mul_f32 v{g+4*i+r}, v{g+4*i+r}, v{TF+r}")
                for i in range(4):
                    I(f"v_cvt_pk_bf16_f32 v{TF+4+2*i}, v{g+4*i}, v{g+4*i+1}")
                    I(f"v_cvt_pk_bf16_f32 v{TF+5+2*i}, v{g+4*i+2}, v{g+4*i+3}")
                I(f"s_mov_b32 s42, {t*16*512 + ((N//2-HN)*512 if t >= 2 else 0)}")
                va = X1
                if t == 1:
                    va = TF
                    I(f"v_add_u32 v{TF}, {(N//2-HN)*512}, v{X1}")
                    I(f"v_cndmask_b32 v{TF}, v{X1}, v{TF}, s[84:85]")
                    I("s_mov_b64 exec, s[94:95]")
                if t == 3:
                    I("s_mov_b64 exec, s[50:51]")
                    I("s_cbranch_execz L2_nost3")
                for i in range(4):
                    I(f"buffer_store_dwordx2 v[{TF+4+2*i}:{TF+5+2*i}], v{va}, s[12:15], s42 offen offset:{i*128} {c.out_flags}")
                if t == 3: e.label("L2_nost3")
                if t in (1, 3): I("s_mov_b64 exec, -1")
                e.label(f"L2_nofin{t}")
    stamp(e, c, 11)
    I("s_cmp_lg_u32 s24, 0")
    e.branch("s_cbranch_scc1 L2_m_exit")
    I("s_add_u32 s89, s89, 1")
    I("s_branch L2_m_slow")
    e.label("L2_m_overflow")
    I("s_mov_b32 s89, 0")
    I("s_mov_b32 s23, 1")
    I("s_waitcnt vmcnt(0)")
    for k in range(64):
        I(f"v_mov_b32 v{G+k}, 0")
    e.label("L2_m_slow")
    I("s_waitcnt vmcnt(0) lgkmcnt(0)")
    I("s_barrier")
    I(f"s_cmp_eq_u32 s89, {2*NCH-1}")
    I("s_cselect_b32 s24, 1, 0")
    I("s_cmp_lg_u32 s21, 1")
    I("s_cbranch_scc1 L2_m_nz")
    for k in range(4): I(f"v_mov_b32 v{TF+k}, 0")
    I(f"v_lshlrev_b32 v{TF+4}, 2, v{X0}")
    I(f"ds_write_b128 v{TF+4}, v[{TF}:{TF+3}]")
    I("s_waitcnt lgkmcnt(0)")
    e.label("L2_m_nz")
    I("s_barrier")
    e.branch("s_branch L2_m_round")
    e.label("L2_m_exit")
    if c.stamps:
        I("s_waitcnt vmcnt(0)")
        stamp(e, c, 12)
        stamp_store(e, c, TF)
    e.label("L_end")
    I("s_endpgm")
    return KNAME, 128, 96

def gather_loop(e, c, L):
    I = e.I
    RAW, T, NEXT, DONE, GDONE, OSC, PL1, BREADY, INFO = (L[k] for k in "RAW T NEXT DONE GDONE OSC PL1 BREADY INFO".split())
    VLANE, VINFO, VNEXT, VLOFF, VMASK, VOW, VOR, VSCRW, VTRA, VWR, VL16, VT0, VT1, VONE = (L[k] for k in
        "VLANE VINFO VNEXT VLOFF VMASK VOW VOR VSCRW VTRA VWR VL16 VT0 VT1 VONE".split())
    ACC, LD, B, A, AD = 0, 32, 64, 96, 100
    sA, sR, sH, sN, sNV = 32, 33, 34, 35, 37
    sCN, sCH, sCF, sCR, sL = 38, 39, 40, 41, 36
    uid = [0]
    def lab(p):
        uid[0] += 1
        return f"L2_{p}{uid[0]}"
    def fetch_issue():
        I("s_mov_b64 exec, 1")
        I(f"ds_add_rtn_u32 v{VNEXT}, v{VL16}, v{VONE} offset:{NEXT}")
        I("s_mov_b64 exec, -1")
    def setup_item(none_label):
        I(f"v_readfirstlane_b32 s42, v{VNEXT}")
        e.nop(1)
        I(f"s_cmp_ge_u32 s42, {2*NODES}")
        I(f"s_cbranch_scc1 {none_label}")
        I(f"s_cmp_ge_u32 s42, {NODES}")
        I(f"s_cselect_b32 s{sH}, 256, 0")
        I(f"s_cselect_b32 s43, {NODES}, 0")
        I(f"s_cmp_ge_u32 s42, {NODES+16}")
        I(f"s_cselect_b32 s43, {NODES-32}, s43")
        I(f"s_cmp_ge_u32 s42, {NODES+18}")
        I(f"s_cselect_b32 s43, {NODES+2}, s43")
        I(f"s_sub_u32 s{sN}, s42, s43")
        t = lab("bw")
        I(f"s_cmp_lt_u32 s{sN}, s48")
        I(f"s_cbranch_scc1 {t}")
        stamp(e, c, 29)
        I(f"v_mov_b32 v{VT0}, 0")
        spin(e, t, VT1, VT0, BREADY, 4, 45, 44, sleep=1)
        I(f"v_lshrrev_b32 v{VT0}, 2, v{VL16}")
        I(f"ds_read_b32 v{VINFO}, v{VT0} offset:{INFO}")
        I("s_movk_i32 s48, 64")
        I("s_waitcnt lgkmcnt(0)")
        stamp(e, c, 30)
        e.label(t)
        I(f"v_readlane_b32 s42, v{VINFO}, s{sN}")
        e.nop(1)
        I(f"s_lshr_b32 s{sR}, s42, 16")
        I("s_and_b32 s42, s42, 0xffff")
        I(f"s_lshl_b32 s{sA}, s42, 4")
    def off_read(hf):
        I(f"ds_read_b128 v[{AD}:{AD+3}], v{VOR} offset:{OSC+128*hf}")
        I(f"ds_read_b128 v[{AD+4}:{AD+7}], v{VOR} offset:{OSC+128*hf+16}")
    def off_add():
        if c.addtid: return
        for i in range(8):
            I(f"v_add_u32 v{AD+i}, v{AD+i}, v{VLOFF}")
    def prep_block():
        r = B
        I(f"v_add_u32 v{VT0}, s{sA}, v{VL16}")
        I(f"ds_read_b128 v[{r}:{r+3}], v{VT0} offset:{RAW}")
        l = lab("nf")
        I(f"s_cmp_gt_u32 s{sR}, 64")
        I(f"s_cbranch_scc1 {l}")
        fetch_issue()
        e.label(l)
        I(f"v_cmp_gt_u32 vcc, s{sR}, v{VLANE}")
        I("s_waitcnt lgkmcnt(0)")
        I(f"v_lshrrev_b32 v{r+11}, 16, v{r+3}")
        if c.addtid:
            I(f"v_lshlrev_b32 v{r+11}, 5, v{r+11}")
            I(f"v_sub_u32 v{r+11}, v{r+11}, v{VLOFF}")
        else:
            I(f"v_lshlrev_b32 v{r+11}, 9, v{r+11}")
        I(f"ds_write_b32 v{VOW}, v{r+11} offset:{OSC}")
        off_read(0)
        if not c.x_noexp:
            I(f"v_cndmask_b32 v{r}, 0, v{r}, vcc")
            I(f"v_cndmask_b32 v{r+1}, 0, v{r+1}, vcc")
            I(f"v_lshlrev_b32 v{r+8}, 16, v{r+2}")
            I(f"v_and_b32 v{r+9}, v{VMASK}, v{r+2}")
            I(f"v_lshlrev_b32 v{r+10}, 16, v{r+3}")
            I(f"v_lshlrev_b32 v{r+4}, 16, v{r}")
            I(f"v_and_b32 v{r+5}, v{VMASK}, v{r}")
            I(f"v_lshlrev_b32 v{r+6}, 16, v{r+1}")
            I(f"v_and_b32 v{r+7}, v{VMASK}, v{r+1}")
            for j in range(3):
                for d in range(4):
                    I(f"v_mul_f32 v{r+12+4*j+d}, v{r+4+d}, v{r+8+j}")
            I(f"v_cvt_pk_bf16_f32 v{r+2}, v{r+12}, v{r+13}")
            I(f"v_cvt_pk_bf16_f32 v{r+3}, v{r+14}, v{r+15}")
            for k in range(4):
                I(f"v_cvt_pk_bf16_f32 v{r+24+k}, v{r+16+2*k}, v{r+17+2*k}")
        I(f"ds_write_b128 v{VSCRW}, v[{r}:{r+3}]")
        I(f"ds_write_b128 v{VSCRW}, v[{r+24}:{r+27}] offset:{PL1}")
        I("s_waitcnt lgkmcnt(2)")
        off_add()
    def ld(i):
        if c.x_noload: return
        I(f"buffer_load_dwordx4 v[{LD+4*i}:{LD+4*i+3}], v{AD+i}, s[4:7], {'0' if c.x_samehalf else 's%d' % sH} {'idxen' if c.addtid else 'offen'}")
    def perm(q, jj, k16=False):
        if c.x_noperm: return
        d = B + 2*q + jj if k16 else B + 4*q + jj
        I(f"v_perm_b32 v{d}, v{LD+4*(2*jj+1)+q//2}, v{LD+4*(2*jj)+q//2}, s{29 if q & 1 else 28}")
    def loads_partial(done):
        for i in range(7):
            I(f"s_cmp_le_u32 s{sL}, {4*i}")
            I(f"s_cbranch_scc1 {done}")
            ld(i)
    def perms_loads():
        part, done = lab("pp"), lab("pd")
        I("s_waitcnt vmcnt(0)")
        I(f"s_cmp_le_u32 s{sL}, 28")
        I(f"s_cbranch_scc1 {part}")
        for jj in range(4):
            for q in range(8): perm(q, jj)
            ld(2*jj); ld(2*jj+1)
        I(f"s_branch {done}")
        e.label(part)
        for jj in range(4):
            for q in range(8): perm(q, jj)
        loads_partial(done)
        e.label(done)
    def mfmas(first, k16=False):
        if c.x_nomfma: return
        for q in range(8):
            d = f"v[{ACC+4*q}:{ACC+4*q+3}]"
            if k16: I(f"v_mfma_f32_16x16x16_bf16 {d}, v[{A}:{A+1}], v[{B+2*q}:{B+2*q+1}], {'0' if first else d}")
            else: I(f"v_mfma_f32_16x16x32_bf16 {d}, v[{A}:{A+3}], v[{B+4*q}:{B+4*q+3}], {'0' if first else d}")
    def tr_read(hf):
        I(f"ds_read_b64_tr_b16 v[{A}:{A+1}], v{VTRA} offset:{512*hf}")
        I(f"ds_read_b64_tr_b16 v[{A+2}:{A+3}], v{VTRA} offset:{512*hf+256}")

    if c.stamps: I("s_mov_b32 s92, 16")
    setup_item("L2_g_done")
    prep_block()
    for i in range(8): ld(i)
    for first in (1, 0):
        e.label(f"L2_A{first}")
        tr_read(0)
        I(f"s_cmp_gt_u32 s{sR}, 32")
        I(f"s_cbranch_scc1 L2_AB{first}")
        I(f"s_mov_b32 s{sCF}, {first}")
        I(f"s_mov_b32 s{sCR}, s{sR}")
        I("s_branch L2_XN")
        e.label(f"L2_AB{first}")
        off_read(1)
        I(f"s_sub_u32 s{sL}, s{sR}, 32")
        I("s_waitcnt lgkmcnt(0)")
        off_add()
        perms_loads()
        mfmas(first)
        if first: I("s_branch L2_B")
    e.label("L2_B")
    tr_read(1)
    I(f"s_cmp_gt_u32 s{sR}, 64")
    I("s_cbranch_scc0 L2_BN")
    I(f"s_sub_u32 s{sR}, s{sR}, 64")
    I(f"s_add_u32 s{sA}, s{sA}, 1024")
    I(f"s_mov_b32 s{sL}, s{sR}")
    prep_block()
    perms_loads()
    I("s_waitcnt lgkmcnt(0)")
    mfmas(0)
    I("s_branch L2_A0")
    e.label("L2_BN")
    I(f"s_mov_b32 s{sCF}, 0")
    I(f"s_sub_u32 s{sCR}, s{sR}, 32")
    e.label("L2_XN")
    I(f"s_mov_b32 s{sCN}, s{sN}")
    I(f"s_mov_b32 s{sCH}, s{sH}")
    I(f"s_mov_b32 s{sNV}, 1")
    setup_item("L2_XN_none")
    I(f"s_mov_b32 s{sL}, s{sR}")
    prep_block()
    I("s_branch L2_XN_go")
    e.label("L2_XN_none")
    I(f"s_mov_b32 s{sNV}, 0")
    I(f"s_mov_b32 s{sL}, 0")
    e.label("L2_XN_go")
    I(f"s_cmp_le_u32 s{sCR}, 16")
    I("s_cbranch_scc1 L2_XN_k16")
    perms_loads()
    I("s_waitcnt lgkmcnt(0)")
    I(f"s_cmp_eq_u32 s{sCF}, 0")
    I("s_cbranch_scc1 L2_XN_acc")
    mfmas(1)
    I("s_branch L2_XN_epi")
    e.label("L2_XN_acc")
    mfmas(0)
    I("s_branch L2_XN_epi")
    e.label("L2_XN_k16")
    I("s_waitcnt vmcnt(0)")
    for jj in range(2):
        for q in range(8): perm(q, jj, True)
    I(f"s_cmp_le_u32 s{sL}, 28")
    I("s_cbranch_scc1 L2_XN_k16p")
    for i in range(8): ld(i)
    I("s_branch L2_XN_k16d")
    e.label("L2_XN_k16p")
    loads_partial("L2_XN_k16d")
    e.label("L2_XN_k16d")
    I("s_waitcnt lgkmcnt(0)")
    I(f"s_cmp_eq_u32 s{sCF}, 0")
    I("s_cbranch_scc1 L2_XN_k16acc")
    mfmas(1, True)
    I("s_branch L2_XN_epi")
    e.label("L2_XN_k16acc")
    mfmas(0, True)
    e.label("L2_XN_epi")
    I(f"s_lshl_b32 s42, s{sCH}, 5")
    I(f"v_add_u32 v{VT0}, s42, v{VWR}")
    for q in range(8):
        I(f"ds_read_b128 v[{B+4*q}:{B+4*q+3}], v{VT0} offset:{q*1024}")
    I(f"s_lshr_b32 s43, s{sCN}, 4")
    I(f"s_lshl_b32 s43, s43, 2")
    I(f"s_cmp_eq_u32 s{sCH}, 0")
    I("s_cbranch_scc1 L2_nowar")
    I(f"v_mov_b32 v{VT1}, s43")
    spin(e, "war", VT0, VT1, GDONE, 4, 45, 44)
    I("s_add_u32 s43, s43, 16")
    e.label("L2_nowar")
    I(f"s_and_b32 s44, s{sCN}, 15")
    I("s_lshl_b32 s44, s44, 4")
    I(f"s_lshl_b32 s45, s{sCN}, 10")
    I(f"s_add_u32 s45, s45, {T}")
    I(f"v_xor_b32 v{VT0}, s44, v{VL16}")
    I(f"v_add_u32 v{VT0}, s45, v{VT0}")
    I(f"v_mov_b32 v{VT1}, s43")
    I("s_waitcnt lgkmcnt(0)")
    for q in range(8):
        I(f"v_mul_f32 v{B+4*q}, v{B+4*q}, v{ACC+4*q}")
    for d in range(1, 4):
        for q in range(8):
            I(f"v_fmac_f32 v{B+4*q}, v{B+4*q+d}, v{ACC+4*q+d}")
    for k in range(4):
        I(f"v_cvt_pk_bf16_f32 v{A+k}, v{B+8*k}, v{B+8*k+4}")
    I(f"ds_write_b128 v{VT0}, v[{A}:{A+3}]")
    I("s_waitcnt lgkmcnt(0)")
    I("s_mov_b64 exec, 1")
    I(f"ds_add_u32 v{VT1}, v{VONE} offset:{DONE}")
    I("s_mov_b64 exec, -1")
    if c.stamps:
        I("s_memrealtime s[90:91]")
        I("s_waitcnt lgkmcnt(0)")
        I("s_mov_b32 m0, s92")
        I(f"v_writelane_b32 v{STV}, s90, m0")
        I("s_add_u32 s92, s92, 1")
        I("s_min_u32 s92, s92, 23")
    I(f"s_cmp_lg_u32 s{sNV}, 0")
    I("s_cbranch_scc1 L2_A1")

HEADER = """; equiformer tensor-product message passing, one persistent launch (one workgroup per CU):
"""

def gen_probe(e, c):
    kA, a0, a1, sA, oA, kB, b0, b1, sB, oB = c.probe.split(",")
    kernel_header(e, "eqprobe_kernel")
    I = e.I
    I("s_cmp_ge_u32 s2, 1")
    I("s_cbranch_scc1 LP_end")
    I("s_memrealtime s[20:21]")
    I("s_load_dwordx2 s[4:5], s[0:1], 88")
    I("s_waitcnt lgkmcnt(0)")
    srd(e, 8, 4, 32 << 20)
    I(f"v_min_u32 v1, {c.nwg-1}, v0")
    I("v_lshlrev_b32 v1, 11, v1")
    I("v_mov_b32 v10, 0"); I("v_mov_b32 v11, -1"); I("v_mov_b32 v12, 0")
    I("ds_write_b32 v10, v11 offset:0"); I("ds_write_b32 v10, v12 offset:4"); I("ds_write_b32 v10, v11 offset:8"); I("ds_write_b32 v10, v12 offset:12")
    I("s_waitcnt lgkmcnt(0)"); I("s_barrier")
    regs = []
    for (k, w0, w1, sl, off) in ((kA, a0, a1, sA, 0), (kB, b0, b1, sB, 8)):
        if k == "now":
            I(f"v_mov_b32 v{16+len(regs)}, s20"); regs.append(off); continue
        I(f"s_mov_b32 s12, {STAMPOFF}")
        for w in range(int(w0), int(w1)):
            I(f"buffer_load_dword v{16+len(regs)}, v1, s[8:11], s12 offen offset:{w*128 + int(sl)*4}")
            regs.append(off)
    I("s_waitcnt vmcnt(0)")
    for off, op in ((0, oA), (8, oB)):
        idx = [n for n, o in enumerate(regs) if o == off]
        for n in idx[1:]:
            I(f"v_{op}_u32 v{16+idx[0]}, v{16+idx[0]}, v{16+n}")
        I(f"ds_{op}_u32 v10, v{16+idx[0]} offset:{off + (0 if op == 'min' else 4)}")
    I("s_waitcnt lgkmcnt(0)"); I("s_barrier")
    I(f"ds_read_b32 v3, v10 offset:{0 if oA == 'min' else 4}")
    I(f"ds_read_b32 v4, v10 offset:{8 if oB == 'min' else 12}")
    I("s_waitcnt lgkmcnt(0)")
    I("v_sub_u32 v3, v3, v4")
    I("v_min_u32 v3, 0x2000, v3")
    I("v_readfirstlane_b32 s14, v3")
    I("s_memrealtime s[16:17]")
    I("s_mul_i32 s14, s14, 10")
    I("s_waitcnt lgkmcnt(0)")
    e.label("LP_spin")
    I("s_memrealtime s[18:19]")
    I("s_waitcnt lgkmcnt(0)")
    I("s_sub_u32 s18, s18, s16")
    I("s_cmp_lt_u32 s18, s14")
    I("s_cbranch_scc1 LP_spin")
    e.label("LP_end")
    I("s_endpgm")
    return "eqprobe_kernel", 64, 32

def generate(c):
    e = Emitter()
    e.raw('.amdgcn_target "amdgcn-amd-amdhsa--gfx950"')
    e.raw(".text")
    k = gen_main(e, c)
    head = HEADER + f"; @launch grid=({c.nwg},1,1) block=(1024,1,1) lds={c.lds}\n"
    tail = '.section .rodata,"a"\n.p2align 6\n' + kd(*k)
    if c.probe:
        kp = gen_probe(e, c)
        head = HEADER + f"; @launch kernel={KNAME} grid=({c.nwg},1,1) block=(1024,1,1) lds={c.lds}\n; @launch kernel=eqprobe_kernel grid=(1,1,1) block=(256,1,1) lds=64\n"
        tail += ".p2align 6\n" + kd(*kp)
    return head + e.text() + tail

if __name__ == "__main__":
    c = Cfg()
    out = sys.argv[1]
    for kv in sys.argv[2:]:
        k, v = kv.split("=", 1)
        old = getattr(c, k)
        setattr(c, k, type(old)(int(v)) if isinstance(old, (bool, int)) else v.replace("+", " "))
    open(out, "w").write(generate(c))
```

```python
import sys
from emit import Emitter

N, E = 12500, 800000
NODES, HN = 50, 25
NCH = 250
CSTRIDE = 70784
KEYOFF, PAYOFF, TABOFF = 0, 3200, 54400
WSBYTES = NCH * CSTRIDE
KIN = 20
KNAME = "gather_scatter__tensor_product_equiv_equiformer__graph_kernel"
STAMPOFF = 24 << 20

class Cfg:
    nwg = 250
    st_flags = "sc1"
    ld_flags = "nt"
    rec_flags = "sc1"
    out_flags = ""
    pfx_lines = 192
    stamps = False
    cap = 1888
    x_noperm = 0
    x_noexp = 0
    x_nomfma = 0
    x_noload = 0
    x_samehalf = 0
    x_nobload = 0
    codepf = 0
    sleep = 32
    psleep = 4
    probe = ""
    addtid = 0
    split = 0
    ld2_flags = None
    nowait = 1
    fastlast = 1
    pfx2_lines = 0
    pfx2_pos = 0
    oobtail = 1
    bearly = 1
    tidw3 = "0x00800000"

def srd(e, d, b, nbytes, w1=None, w3="0x20000"):
    e.I(f"s_mov_b32 s{d}, s{b}")
    if w1: e.I(f"s_or_b32 s{d+1}, s{b+1}, {w1}")
    else: e.I(f"s_mov_b32 s{d+1}, s{b+1}")
    e.I(f"s_mov_b32 s{d+2}, {nbytes}")
    e.I(f"s_mov_b32 s{d+3}, {w3}")

def scan64(e, v):
    for sh in (1, 2, 4, 8):
        e.I(f"v_add_u32_dpp v{v}, v{v}, v{v} row_shr:{sh} row_mask:0xf bank_mask:0xf")
    e.I(f"v_add_u32_dpp v{v}, v{v}, v{v} row_bcast:15 row_mask:0xa bank_mask:0xf")
    e.I(f"v_add_u32_dpp v{v}, v{v}, v{v} row_bcast:31 row_mask:0xc bank_mask:0xf")

def prefetch_x(e, nlines, vt, vtid, nthreads, slice_s, half, srdx, first=0):
    if nlines <= 0: return 0
    e.I(f"s_mul_i32 s46, s{slice_s}, 782")
    if first: e.I(f"s_add_u32 s46, s46, {first}")
    e.I(f"s_mov_b32 s47, {nlines}")
    it = (nlines + nthreads - 1) // nthreads
    for k in range(it):
        e.I(f"v_add_u32 v{vt}, {k*nthreads}, v{vtid}")
        e.I(f"v_cmp_gt_u32 vcc, s47, v{vt}")
        e.I(f"v_add_u32 v{vt}, s46, v{vt}")
        e.I(f"v_and_b32 v{vt+1}, 1, v{vt}")
        e.I(f"v_lshrrev_b32 v{vt}, 1, v{vt}")
        e.I(f"v_lshlrev_b32 v{vt}, 9, v{vt}")
        e.I(f"v_lshl_add_u32 v{vt}, v{vt+1}, 7, v{vt}")
        e.I(f"v_cndmask_b32 v{vt}, 2.0, v{vt}, vcc")
        e.I(f"buffer_load_dword v{vt+2}, v{vt}, s[{srdx}:{srdx+3}], 0 offen offset:{half*256}")
    return it

STV, TIDV = 127, 126
def stamp(e, c, slot, ins="s_memrealtime"):
    if not c.stamps: return
    e.I(f"{ins} s[90:91]")
    e.I("s_waitcnt lgkmcnt(0)")
    e.I(f"v_writelane_b32 v{STV}, s90, {slot}")

def stamp_store(e, c, vtmp):
    if not c.stamps: return
    e.I(f"v_lshrrev_b32 v{vtmp}, 6, v{TIDV}")
    e.I(f"s_lshl_b32 s90, s2, 4")
    e.I(f"v_add_u32 v{vtmp}, s90, v{vtmp}")
    e.I(f"v_lshlrev_b32 v{vtmp}, 7, v{vtmp}")
    e.I(f"v_and_b32 v{vtmp+1}, 63, v{TIDV}")
    e.I(f"v_lshl_add_u32 v{vtmp}, v{vtmp+1}, 2, v{vtmp}")
    e.I(f"v_cmp_gt_u32 vcc, 32, v{vtmp+1}")
    e.I(f"v_cndmask_b32 v{vtmp}, 2.0, v{vtmp}, vcc")
    e.I(f"s_mov_b32 s90, {STAMPOFF}")
    e.I(f"buffer_store_dword v{STV}, v{vtmp}, s[8:11], s90 offen")

def kernel_header(e, name):
    e.raw(f".globl {name}")
    e.raw(".p2align 8")
    e.raw(f".type {name},@function")
    e.raw(f"{name}:")
    e.hist = []

def kd(name, nv, ns):
    return f""".amdhsa_kernel {name}
  .amdhsa_next_free_vgpr {nv}
  .amdhsa_next_free_sgpr {ns}
  .amdhsa_accum_offset {(nv+3)//4*4}
  .amdhsa_group_segment_fixed_size 0
  .amdhsa_kernarg_size 96
  .amdhsa_user_sgpr_count 2
  .amdhsa_user_sgpr_kernarg_segment_ptr 1
  .amdhsa_system_sgpr_workgroup_id_x 1
  .amdhsa_float_denorm_mode_32 3
.end_amdhsa_kernel
"""

def path_of(jp, blk):
    if blk == 0: return (0, 0, 1) if jp == 0 else (2, jp, 1)
    k = blk - 1
    if jp == 0: return (3, 1 + k, 1)
    j = jp - 1
    if j == k: return (1, 0, 1)
    i = 3 - j - k
    return (4, 1 + i, 1 if k == (j + 1) % 3 else -1)

class Lay: pass

def spin(e, tag, vdst, vaddr, off, need, scnt, sval, sleep=None, bound="0x400000"):
    I = e.I
    I(f"s_mov_b32 s{scnt}, 0")
    e.label(f"L_sp{tag}")
    I(f"ds_read_b32 v{vdst}, v{vaddr} offset:{off}")
    I("s_waitcnt lgkmcnt(0)")
    I(f"v_readfirstlane_b32 s{sval}, v{vdst}")
    I(f"s_add_u32 s{scnt}, s{scnt}, 1")
    I(f"s_cmp_ge_u32 s{sval}, {need}")
    I(f"s_cbranch_scc1 L_sp{tag}_ok")
    if sleep: I(f"s_sleep {sleep}")
    I(f"s_cmp_lt_u32 s{scnt}, {bound}")
    I(f"s_cbranch_scc1 L_sp{tag}")
    e.label(f"L_sp{tag}_ok")

def tag_bad(e, dst, r, tmp, odd):
    I = e.I
    I(f"v_xor_b32 v{tmp}, s87, v{r}")
    I(f"v_xor_b32 v{dst}, s86, v{r+1}")
    I(f"v_lshrrev_b32 v{tmp}, 24, v{tmp}")
    I(f"v_or_b32 v{dst}, v{dst}, v{tmp}")
    I(f"v_xor_b32 v{tmp}, s3, v{r+3}")
    I(f"v_lshrrev_b32 v{tmp}, 12, v{tmp}")
    I(f"v_cndmask_b32 v{dst}, v{dst}, v{tmp}, {odd}")

def gen_main(e, c):
    L = Lay()
    CAP = c.cap
    NWG = c.nwg
    BOFF = CAP + 64
    HIST, HIST2, CUR2, CNT = 0, 256, 512, 768
    NEXT, DONE, GDONE, BSYNC, BREADY, TOTB = CNT, CNT + 16, CNT + 64, CNT + 96, CNT + 100, CNT + 104
    HISTB, HIST2B, CUR2B, INFO, NONCE = 1024, 1280, 1536, 1792, 2048
    RAW = 2176
    T = (RAW + 2 * BOFF * 16 + 255) // 256 * 256
    WRAD = T + NODES * 1024
    SCR = WRAD + 16384
    H1 = WRAD
    TI = SCR
    CEB = RAW + BOFF * 16
    SSTR, PL1, OSC = 2368, 1056, 2080
    lds = max(SCR + 12 * SSTR, T + 64 * 1024)
    assert lds <= 163840 and 2 * BOFF >= 3200 + 64, lds
    c.lds = lds
    kernel_header(e, KNAME)
    I = e.I
    wsbytes = (32 << 20) if c.stamps else WSBYTES
    sf, rf, lf = c.st_flags, c.rec_flags, c.ld_flags
    ODD = "s[26:27]"
    I(f"s_cmp_ge_u32 s2, {NWG}")
    I("s_cbranch_scc1 L_end")
    if c.stamps:
        I(f"v_mov_b32 v{STV}, 0")
        I(f"v_mov_b32 v{TIDV}, v0")
    stamp(e, c, 0)
    stamp(e, c, 26, "s_memtime")
    I("s_load_dwordx8 s[32:39], s[0:1], 0")
    I("s_load_dwordx8 s[40:47], s[0:1], 32")
    if NWG > NCH:
        I(f"s_cmp_lt_u32 s2, {NCH}")
        I("s_cselect_b32 s51, 800, 0")
    else:
        I("s_movk_i32 s51, 800")
    I("s_mul_i32 s48, s2, 800")
    I("v_add_u32 v3, s48, v0")
    I("v_cmp_gt_u32 vcc, s51, v0")
    I("v_lshlrev_b32 v26, 4, v3")
    I("v_lshlrev_b32 v27, 5, v3")
    I("v_mul_u32_u24 v3, 24, v3")
    I("s_and_saveexec_b64 s[26:27], vcc")
    I("s_cbranch_execz L1_noload")
    I("s_waitcnt lgkmcnt(0)")
    l2 = lf if c.ld2_flags is None else c.ld2_flags
    I(f"global_load_dwordx4 v[4:7], v26, s[40:41] {l2}")
    I(f"global_load_dwordx4 v[8:11], v26, s[38:39] {l2}")
    I(f"global_load_dwordx4 v[12:15], v27, s[36:37] {lf}")
    I(f"global_load_dwordx4 v[16:19], v27, s[36:37] offset:16 {lf}")
    I(f"global_load_dwordx4 v[20:23], v3, s[34:35] {lf}")
    I(f"global_load_dwordx2 v[24:25], v3, s[34:35] offset:16 {lf}")
    e.label("L1_noload")
    I("s_mov_b64 exec, -1")
    I("s_load_dwordx4 s[80:83], s[0:1], 72")
    I("s_load_dwordx2 s[84:85], s[0:1], 88")
    I("v_lshlrev_b32 v1, 4, v0")
    I("v_lshlrev_b32 v2, 5, v0")
    I("v_readfirstlane_b32 s21, v0")
    I("s_lshr_b32 s21, s21, 6")
    I("s_waitcnt lgkmcnt(0)")
    if c.addtid:
        srd(e, 4, 32, N * 512, w1=f"{16 << 16}", w3=c.tidw3)
    else:
        srd(e, 4, 32, N * 512)
    srd(e, 8, 84, wsbytes)
    srd(e, 12, 80, N * 512)
    srd(e, 16, 42, 2560)
    srd(e, 68, 44, 16384)
    srd(e, 72, 46, 24576)
    srd(e, 76, 82, 256)
    I("s_and_b32 s20, s2, 7")
    I("s_lshr_b32 s31, s2, 3")
    if NWG == 250:
        I("s_min_u32 s22, s20, 2")
        I("s_mul_i32 s20, s20, 31")
        I("s_add_u32 s20, s20, s22")
    else:
        I("s_lshl_b32 s20, s20, 5")
    I("s_add_u32 s20, s20, s31")
    I("s_mov_b32 s22, 0")
    I(f"s_movk_i32 s23, {NCH}")
    I("s_mov_b32 s24, 1")
    I("s_mov_b32 s26, 0xaaaaaaaa")
    I("s_mov_b32 s27, 0xaaaaaaaa")
    I("s_mov_b32 s28, 0x05040100")
    I("s_mov_b32 s29, 0x07060302")
    I("s_mov_b32 s30, 0xffff0000")
    I(f"s_mul_i32 s51, s2, {CSTRIDE}")
    I("s_cmp_ge_u32 s21, 13")
    I("s_cbranch_scc1 L1_aux")
    I(f"s_mov_b32 s46, {H1}")
    I("v_lshl_add_u32 v40, v0, 2, s46")
    I("v_mov_b32 v41, 0")
    I("v_mov_b32 v42, 1")
    I(f"s_movk_i32 s49, {RAW+PAYOFF}")
    I("s_mov_b32 s50, 0x05040302")
    I(f"s_mov_b32 s45, {(TI + 8 - 8*H1) & 0xffffffff}")
    if NWG == 250:
        I("s_mov_b32 s48, -25")
        I("s_movk_i32 s47, 249")
    else:
        I("s_movk_i32 s47, 6249")
        I("s_movk_i32 s48, -6250")
        I("s_mov_b32 s44, 1600210")
        I("v_mov_b32 v43, 65532")
    I("s_cmp_ge_u32 s21, 8")
    I("s_cbranch_scc1 L1_nz")
    I("ds_write_b32 v40, v41")
    I("s_waitcnt lgkmcnt(0)")
    e.label("L1_nz")
    I("s_barrier")
    I("s_and_b64 exec, exec, vcc")
    I("s_waitcnt vmcnt(5)")
    stamp(e, c, 1)
    R4 = range(4)
    if NWG == 250:
        for i in R4: I(f"v_mul_u32_u24 v{44+i}, 0x147b, v{4+i}")
        for i in R4: I(f"v_lshrrev_b32 v{44+i}, 17, v{44+i}")
        for i in R4: I(f"v_cmp_lt_u32 s[{32+2*i}:{33+2*i}], s47, v{44+i}")
        for i in R4: I(f"v_cndmask_b32 v{36+i}, 0, 1, s[{32+2*i}:{33+2*i}]")
        for i in R4:
            I(f"v_sub_u32 v{48+i}, v{44+i}, v{36+i}")
            I(f"v_mad_u32_u24 v{44+i}, v{36+i}, 6, v{44+i}")
        for i in R4:
            I(f"v_mad_i32_i24 v{4+i}, v{48+i}, s48, v{4+i}")
            I(f"v_lshl_add_u32 v{44+i}, v{44+i}, 2, s46")
    else:
        for i in R4: I(f"v_cmp_lt_u32 s[{32+2*i}:{33+2*i}], s47, v{4+i}")
        for i in R4: I(f"v_cndmask_b32 v{36+i}, 0, 1, s[{32+2*i}:{33+2*i}]")
        for i in R4: I(f"v_mad_i32_i24 v{4+i}, v{36+i}, s48, v{4+i}")
        for i in R4: I(f"v_mul_u32_u24 v{44+i}, 0xa7c, v{4+i}")
        for i in R4: I(f"v_lshrrev_b32 v{44+i}, 16, v{44+i}")
        for i in R4: I(f"v_mad_u32_u24 v{48+i}, v{44+i}, s44, v43")
        for i in R4:
            I(f"v_lshrrev_b32 v{48+i}, 16, v{48+i}")
            I(f"v_mad_u32_u24 v{4+i}, v{36+i}, 25, v{4+i}")
        for i in R4:
            I(f"v_sub_u32 v{4+i}, v{4+i}, v{48+i}")
            I(f"v_lshl_add_u32 v{44+i}, v{36+i}, 8, v{44+i}")
        for i in R4: I(f"v_lshl_add_u32 v{44+i}, v{44+i}, 2, s46")
    for i in R4: I(f"ds_add_rtn_u32 v{36+i}, v{44+i}, v42")
    for i in R4: I(f"v_lshl_add_u32 v{48+i}, v{44+i}, 3, s45")
    for i in R4: I(f"v_lshlrev_b32 v{4+i}, 2, v{4+i}")
    I("s_waitcnt lgkmcnt(0)")
    I("s_barrier")
    for i in R4: I(f"v_min_u32 v{28+i}, {KIN}, v{36+i}")
    for i in R4: I(f"v_add_u32 v{48+i}, v{48+i}, v{28+i}")
    I("s_cmp_eq_u32 s21, 0")
    I("s_cbranch_scc1 L1_scan")
    for i in R4: I(f"ds_write_b8 v{48+i}, v{4+i}")
    I("s_branch L1_noscan")
    e.label("L1_scan")
    I("v_add_u32 v60, s46, v2")
    I("ds_read_b128 v[52:55], v60")
    I("ds_read_b128 v[56:59], v60 offset:16")
    I("s_waitcnt lgkmcnt(0)")
    I("v_mov_b32 v64, 0")
    I("v_mov_b32 v65, v52")
    for k in range(2, 8):
        I(f"v_add_u32 v{64+k}, v{63+k}, v{51+k}")
    I("v_add_u32 v61, v71, v59")
    I("v_max3_u32 v63, v52, v53, v54")
    I("v_max3_u32 v63, v63, v55, v56")
    I("v_max3_u32 v63, v63, v57, v58")
    I("v_max_u32 v63, v63, v59")
    I(f"v_cmp_lt_u32 s[42:43], {KIN}, v63")
    I("v_mov_b32 v62, v61")
    scan64(e, 62)
    I("v_sub_u32 v62, v62, v61")
    for k in range(8):
        I(f"v_add_u32 v{64+k}, v{64+k}, v62")
    I("ds_write_b128 v60, v[64:67] offset:2048")
    I("ds_write_b128 v60, v[68:71] offset:2064")
    I("s_cmp_lg_u64 s[42:43], 0")
    I("s_cselect_b32 s42, 1, 0")
    I("v_mov_b32 v63, s42")
    I(f"ds_write_b32 v41, v63 offset:{NONCE+8}")
    for i in R4: I(f"ds_write_b8 v{48+i}, v{4+i}")
    I("s_waitcnt lgkmcnt(4)")
    e.label("L1_noscan")
    I("s_barrier")
    for i in R4: I(f"ds_read_b32 v{44+i}, v{44+i} offset:2048")
    I(f"ds_read_b32 v28, v41 offset:{NONCE+8}")
    I("s_waitcnt lgkmcnt(0)")
    I("v_readfirstlane_b32 s42, v28")
    for i in R4:
        I(f"v_add_u32 v{36+i}, v{36+i}, v{44+i}")
        I(f"v_lshl_add_u32 v{44+i}, v{36+i}, 4, s49")
    I("s_cmp_eq_u32 s42, 0")
    I("s_cbranch_scc1 L1_nokeys")
    for i in R4:
        I(f"ds_write_b8 v{36+i}, v{4+i} offset:{RAW+KEYOFF}")
    e.label("L1_nokeys")
    I("s_waitcnt vmcnt(2)")
    for i in R4:
        I(f"ds_write_b64 v{44+i}, v[{12+2*i}:{13+2*i}]")
    I("s_waitcnt vmcnt(1)")
    I("v_mov_b32 v28, v20")
    I("v_perm_b32 v29, v8, v21, s28")
    I("ds_write_b64 v44, v[28:29] offset:8")
    I("v_alignbit_b32 v30, v22, v21, 16")
    I("v_perm_b32 v31, v9, v22, s50")
    I("ds_write_b64 v45, v[30:31] offset:8")
    I("s_waitcnt vmcnt(0)")
    stamp(e, c, 2)
    I("v_mov_b32 v32, v23")
    I("v_perm_b32 v33, v10, v24, s28")
    I("ds_write_b64 v46, v[32:33] offset:8")
    I("v_alignbit_b32 v34, v25, v24, 16")
    I("v_perm_b32 v35, v11, v25, s50")
    I("ds_write_b64 v47, v[34:35] offset:8")
    I("s_mov_b64 exec, -1")
    I("s_waitcnt lgkmcnt(0)")
    I("s_branch L1_copy")
    e.label("L1_aux")
    I("v_subrev_u32 v64, 832, v0")
    I("v_lshlrev_b32 v65, 4, v64")
    if c.codepf:
        I("s_getpc_b64 s[40:41]")
        I(f"s_mov_b32 s42, {c.codepf*1024}")
        I("s_mov_b32 s43, 0x20000")
        I("v_lshlrev_b32 v72, 7, v64")
        I("buffer_load_dword v73, v72, s[40:43], 0 offen")
    I("s_cmp_lg_u32 s21, 15")
    I("s_cbranch_scc1 L1_notag")
    I("s_cmp_lg_u32 s2, 0")
    I("s_cbranch_scc1 L1_notag")
    I("s_memrealtime s[44:45]")
    I("s_waitcnt lgkmcnt(0)")
    I("s_and_b32 s45, s45, 0x7f")
    I("s_or_b32 s45, s45, 0x80")
    I("s_lshl_b32 s45, s45, 24")
    I("v_mov_b32 v68, s44")
    I("v_mov_b32 v69, s45")
    I("s_mov_b64 exec, 1")
    I("buffer_store_dwordx2 v[68:69], off, s[76:79], 0 sc1")
    I("s_mov_b64 exec, -1")
    e.label("L1_notag")
    I("s_cmp_lg_u32 s21, 13")
    I("s_cbranch_scc1 L1_nozero")
    for k in range(4): I(f"v_mov_b32 v{4+k}, 0")
    I("ds_write_b128 v65, v[4:7]")
    I("ds_write_b128 v65, v[4:7] offset:1024")
    e.label("L1_nozero")
    I("s_barrier"); I("s_barrier"); I("s_barrier")
    I("s_cmp_lg_u32 s21, 15")
    I("s_cbranch_scc1 L1_notag2")
    I("s_mov_b32 s44, 0")
    e.label("L1_tagpoll")
    I("buffer_load_dwordx2 v[68:69], off, s[76:79], 0 sc1")
    I("s_add_u32 s44, s44, 1")
    I("s_waitcnt vmcnt(0)")
    I("v_readfirstlane_b32 s45, v69")
    e.nop(1)
    I("s_cmp_lg_u32 s45, 0")
    I("s_cbranch_scc1 L1_tagok")
    I("s_cmp_lt_u32 s44, 0x100000")
    I("s_cbranch_scc1 L1_tagpoll")
    e.label("L1_tagok")
    I("v_mov_b32 v70, 0")
    I("s_mov_b64 exec, 1")
    I(f"ds_write_b64 v70, v[68:69] offset:{NONCE}")
    I("s_mov_b64 exec, -1")
    e.label("L1_notag2")
    for k in range(8):
        I(f"s_movk_i32 s46, {k*3072}")
        I(f"buffer_load_dwordx4 v[{28+4*k}:{31+4*k}], v65, s[72:75], s46 offen")
    for k in range(6):
        I(f"s_movk_i32 s46, {k*3072}")
        I(f"buffer_load_dwordx4 v[{72+4*k}:{75+4*k}], v65, s[68:71], s46 offen")
    prefetch_x(e, c.pfx_lines, 60, 64, 192, 31, 0, 4)
    I("s_waitcnt lgkmcnt(0)")
    e.flush()
    e.label("L1_copy")
    I("s_barrier")
    stamp(e, c, 3)
    I(f"ds_read_b128 v[8:11], v1 offset:{RAW}")
    I(f"ds_read_b128 v[12:15], v1 offset:{RAW+16384}")
    I(f"v_add_u32 v25, {TI}, v1")
    I(f"ds_read_b128 v[16:19], v1 offset:{RAW+32768}")
    I(f"ds_read_b128 v[20:23], v1 offset:{RAW+49152}")
    I("ds_read_b128 v[100:103], v25")
    I("v_lshrrev_b32 v25, 1, v0")
    I("v_lshlrev_b32 v25, 2, v25")
    I(f"v_add_u32 v25, {H1}, v25")
    I("ds_read2st64_b32 v[104:105], v25 offset0:0 offset1:8")
    I("ds_read_b32 v106, v25 offset:1024")
    I(f"v_mov_b32 v25, {H1+2048+1024}")
    I("ds_read_b32 v98, v25")
    I("v_mov_b32 v25, 0")
    I(f"ds_read_b64 v[96:97], v25 offset:{NONCE}")
    I("v_add_u32 v2, 16384, v1")
    I("v_add_u32 v3, 32768, v1")
    I("v_add_u32 v24, 49152, v1")
    I("s_movk_i32 s48, 328")
    I("v_cmp_gt_u32 s[92:93], s48, v0")
    I("s_waitcnt lgkmcnt(8)")
    I(f"buffer_store_dwordx4 v[8:11], v1, s[8:11], s51 offen {sf}")
    I("s_waitcnt lgkmcnt(7)")
    I(f"buffer_store_dwordx4 v[12:15], v2, s[8:11], s51 offen {sf}")
    I("s_waitcnt lgkmcnt(0)")
    I("v_readfirstlane_b32 s86, v96")
    I("v_readfirstlane_b32 s87, v97")
    I("v_readfirstlane_b32 s88, v98")
    I("v_lshl_or_b32 v104, v104, 12, v105")
    I("v_or_b32 v97, v97, v104")
    I(f"v_cndmask_b32 v100, v97, v100, {ODD}")
    I(f"v_cndmask_b32 v101, v96, v101, {ODD}")
    I("v_lshl_or_b32 v106, v96, 12, v106")
    I(f"v_cndmask_b32 v103, v103, v106, {ODD}")
    I("s_lshl_b32 s3, s86, 12")
    I(f"s_add_u32 s49, s51, {TABOFF}")
    I(f"s_cmp_gt_u32 s88, {(32768-PAYOFF)//16}")
    I("s_cselect_b32 s25, 0, 8")
    stamp(e, c, 4)
    def handoff(tag, mid):
        I("s_waitcnt vmcnt(0)")
        stamp(e, c, 6)
        I("s_barrier")
        I("s_cmp_ge_u32 s21, s25")
        I(f"s_cbranch_scc1 L_noearly{tag}")
        I(f"buffer_store_dwordx4 v[100:103], v1, s[8:11], s49 offen {sf}")
        e.label(f"L_noearly{tag}")
        I(f"buffer_store_dwordx4 v[16:19], v3, s[8:11], s51 offen {sf}")
        I("s_mov_b64 exec, s[92:93]")
        I(f"s_cbranch_execz L_stskip{tag}")
        I(f"buffer_store_dwordx4 v[20:23], v24, s[8:11], s51 offen {sf}")
        e.label(f"L_stskip{tag}")
        I("s_mov_b64 exec, -1")
        mid()
        I("s_waitcnt vmcnt(0) lgkmcnt(0)")
        stamp(e, c, 5)
        I("s_barrier")
        I("s_cmp_lt_u32 s21, s25")
        I(f"s_cbranch_scc1 L_nolate{tag}")
        I(f"buffer_store_dwordx4 v[100:103], v1, s[8:11], s49 offen {sf}")
        e.label(f"L_nolate{tag}")
    I("s_cmp_lt_u32 s21, 4")
    e.branch("s_cbranch_scc1 L2_gemm")

    VLANE, VINFO, VNEXT = 108, 109, 110
    VLOFF, VMASK, VOW, VOR, VSCRW, VTRA, VWR, VL16 = 111, 112, 113, 114, 115, 116, 117, 118
    VT0, VT1, VONE, VSEL = 119, 120, 121, 122
    VJ, VCH, VSEG = 123, 124, 125
    I(f"v_and_b32 v{VLANE}, 63, v0")
    I(f"v_mov_b32 v{VONE}, 1")
    I(f"v_mov_b32 v{VMASK}, s30")
    I(f"v_lshrrev_b32 v{VT1}, 4, v{VLANE}")
    I(f"v_lshlrev_b32 v{VL16}, 4, v{VLANE}")
    if c.addtid:
        I(f"v_and_b32 v{VT0}, 3, v{VLANE}")
        I(f"v_lshlrev_b32 v{VLOFF}, 4, v{VT0}")
    else:
        I(f"v_and_b32 v{VT0}, 15, v{VLANE}")
        I(f"v_lshlrev_b32 v{VLOFF}, 4, v{VT0}")
    I("s_sub_u32 s43, s21, 4")
    I(f"s_mul_i32 s43, s43, {SSTR}")
    I(f"s_add_u32 s43, s43, {SCR}")
    I(f"v_add_u32 v{VSCRW}, s43, v{VL16}")
    I(f"v_lshlrev_b32 v{VOR}, 5, v{VT1}")
    I(f"v_add_u32 v{VOR}, s43, v{VOR}")
    I(f"v_lshlrev_b32 v{VTRA}, 4, v{VT1}")
    I(f"v_bfe_u32 v{VT1}, v{VLANE}, 2, 2")
    I(f"v_lshl_add_u32 v{VTRA}, v{VT1}, 6, v{VTRA}")
    I(f"v_and_b32 v{VT1}, 1, v{VLANE}")
    I(f"v_lshl_add_u32 v{VTRA}, v{VT1}, 3, v{VTRA}")
    I(f"v_bfe_u32 v{VT1}, v{VLANE}, 1, 1")
    I(f"v_mul_u32_u24 v{VT1}, {PL1}, v{VT1}")
    I(f"v_add3_u32 v{VTRA}, v{VTRA}, v{VT1}, s43")
    I(f"v_and_b32 v{VOW}, 32, v{VLANE}")
    I(f"v_and_b32 v{VT1}, 3, v{VLANE}")
    I(f"v_lshl_add_u32 v{VOW}, v{VT1}, 3, v{VOW}")
    I(f"v_bfe_u32 v{VT1}, v{VLANE}, 2, 3")
    I(f"v_add_u32 v{VOW}, v{VOW}, v{VT1}")
    I(f"v_lshlrev_b32 v{VOW}, 2, v{VOW}")
    I(f"v_add_u32 v{VOW}, s43, v{VOW}")
    I(f"v_add_u32 v{VWR}, {WRAD}, v{VL16}")
    I("s_sub_u32 s42, s21, 4")
    I("s_mul_i32 s83, s42, 24")
    I(f"v_and_b32 v{VJ}, 7, v{VLANE}")
    I(f"v_lshrrev_b32 v{VSEG}, 3, v{VLANE}")
    I(f"s_mov_b32 s42, {CSTRIDE}")
    I(f"v_mul_u32_u24 v{VCH}, s42, v{VSEG}")
    I(f"v_lshlrev_b32 v{VSEG}, 5, v{VSEG}")
    I(f"v_add_u32 v{VSEG}, s43, v{VSEG}")
    I(f"v_or_b32 v{VSEL}, 0x0c0c0c00, v{VJ}")
    NP, NW = 3, 3
    I(f"s_mul_i32 s79, s83, {CSTRIDE}")
    for p in range(NP):
        I(f"s_add_u32 s{74+p}, s79, {8*p*CSTRIDE+PAYOFF}")
        I(f"s_add_u32 s{80+p}, s79, {8*p*CSTRIDE+KEYOFF}")
    I("s_mov_b32 s88, s20")
    I("s_mov_b32 s89, 0")
    I(f"s_movk_i32 s48, {HN}")
    def w_stage():
        I("s_cmp_lt_u32 s21, 13")
        I("s_cbranch_scc1 L2_noW")
        I(f"v_add_u32 v65, {T}, v65")
        for k in range(8):
            I(f"ds_write_b128 v65, v[{28+4*k}:{31+4*k}] offset:{16384 + k*3072}")
        for k in range(5):
            I(f"ds_write_b128 v65, v[{72+4*k}:{75+4*k}] offset:{k*3072}")
        I("s_cmp_lg_u32 s21, 13")
        I("s_cbranch_scc1 L2_noW")
        I(f"ds_write_b128 v65, v[92:95] offset:{5*3072}")
        e.label("L2_noW")
    handoff("g", w_stage)
    PAY, KEY, RNK, CNTR, KAD, PAD, X, EN = 0, 36, 45, 54, 57, 60, 64, 72
    MSK = 50
    e.label("L2_g_round")
    I(f"v_lshrrev_b32 v{X}, 1, v{VLANE}")
    I(f"s_sub_u32 s42, {NCH}, s83")
    I("s_min_i32 s42, s42, 24")
    I(f"v_cmp_gt_i32 s[46:47], s42, v{X}")
    I(f"s_mov_b32 s42, {CSTRIDE}")
    I(f"v_mul_u32_u24 v{X+1}, s42, v{X}")
    I(f"v_and_b32 v{X+2}, 16, v{VL16}")
    I(f"v_add_u32 v{X+1}, v{X+1}, v{X+2}")
    I(f"v_cndmask_b32 v{X+1}, 2.0, v{X+1}, s[46:47]")
    I("s_lshl_b32 s43, s88, 5")
    I(f"s_add_u32 s43, s43, {TABOFF}")
    I("s_add_u32 s43, s43, s79")
    I("s_mov_b32 s44, 0")
    I(f"v_lshl_add_u32 v{VT1}, v{VJ}, 4, v{VCH}")
    e.label("L2_poll")
    I(f"buffer_load_dwordx4 v[{EN}:{EN+3}], v{X+1}, s[8:11], s43 offen sc1")
    I("s_add_u32 s44, s44, 1")
    I("s_waitcnt vmcnt(0)")
    tag_bad(e, X+2, EN, X+3, ODD)
    I(f"v_cmp_ne_u32 vcc, 0, v{X+2}")
    e.nop(2)
    I("s_and_b64 vcc, vcc, s[46:47]")
    I("s_cbranch_scc0 L2_poll_ok")
    I(f"s_sleep {c.psleep}")
    I("s_cmp_lt_u32 s44, 0x100000")
    I("s_cbranch_scc1 L2_poll")
    e.label("L2_poll_ok")
    I("s_cmp_lg_u32 s23, 1")
    I("s_cbranch_scc1 L2_nofilter")
    I("s_sub_u32 s42, s22, s83")
    I(f"v_cmp_eq_u32 vcc, s42, v{X}")
    I(f"v_cndmask_b32 v{EN}, 0, v{EN}, vcc")
    e.label("L2_nofilter")
    I(f"ds_write_b128 v{VSCRW}, v[{EN}:{EN+3}]")
    I(f"v_add_u32 v{X+1}, 8, v{VJ}")
    stamp(e, c, 7)
    def msk(p, w): return f"s[{MSK+4*p+2*w}:{MSK+4*p+2*w+1}]" if w < 2 else f"s[{MSK+12+2*p}:{MSK+13+2*p}]"
    def pay(p, w): return f"v[{PAY+12*p+4*w}:{PAY+12*p+4*w+3}]"
    for p in range(NP):
        I(f"ds_read_b128 v[{EN+8*p}:{EN+8*p+3}], v{VSEG} offset:{256*p}")
        I(f"ds_read_b128 v[{EN+8*p+4}:{EN+8*p+7}], v{VSEG} offset:{256*p+16}")
    for p in range(NP):
        en, cnt = EN + 8*p, CNTR + p
        if p == 0: I("s_waitcnt lgkmcnt(0)")
        I(f"v_bfe_u32 v{cnt}, v{en}, 12, 12")
        I(f"v_and_b32 v{PAD+p}, 0xfff, v{en}")
        I(f"v_cmp_lt_u32 {msk(p,0)}, v{VJ}, v{cnt}")
        I(f"v_cmp_lt_u32 {msk(p,1)}, v{X+1}, v{cnt}")
        I(f"v_perm_b32 v{KEY+3*p}, v{en+3}, v{en+2}, v{VSEL}")
        I(f"v_perm_b32 v{KEY+3*p+1}, v{en+5}, v{en+4}, v{VSEL}")
        I(f"v_lshl_add_u32 v{PAD+p}, v{PAD+p}, 4, v{VT1}")
        for w in range(2):
            I(f"s_mov_b64 exec, {msk(p,w)}")
            I(f"s_cbranch_execz L2_nop{p}")
            I(f"ds_add_rtn_u32 v{RNK+3*p+w}, v{KEY+3*p+w}, v{VONE} offset:{HIST}")
            I(f"buffer_load_dwordx4 {pay(p,w)}, v{PAD+p}, s[8:11], s{74+p} offen offset:{128*w} {rf}")
        e.label(f"L2_nop{p}")
        I("s_mov_b64 exec, -1")
    I(f"v_max3_u32 v{VT0}, v{CNTR}, v{CNTR+1}, v{CNTR+2}")
    I(f"v_cmp_lt_u32 vcc, 16, v{VT0}")
    I("s_mov_b32 s25, 0")
    e.nop(1)
    I("s_cmp_eq_u64 vcc, 0")
    I("s_cbranch_scc1 L2_noextraA")
    I("s_mov_b32 s25, 1")
    I(f"v_add_u32 v{X+2}, 16, v{VJ}")
    for p in range(NP):
        en = EN + 8*p
        I(f"v_min_u32 v{X+3}, {KIN}, v{CNTR+p}")
        I(f"v_cmp_lt_u32 {msk(p,2)}, v{X+2}, v{X+3}")
        I(f"v_perm_b32 v{KEY+3*p+2}, v{en+6}, v{en+6}, v{VSEL}")
        I(f"v_sub_u32 v{KAD+p}, v{PAD+p}, v{VCH}")
        I(f"v_lshrrev_b32 v{KAD+p}, 4, v{KAD+p}")
        I(f"v_add_u32 v{KAD+p}, v{KAD+p}, v{VCH}")
        e.flush()
        I(f"s_mov_b64 exec, {msk(p,2)}")
        I(f"ds_add_rtn_u32 v{RNK+3*p+2}, v{KEY+3*p+2}, v{VONE} offset:{HIST}")
        I(f"buffer_load_dwordx4 {pay(p,2)}, v{PAD+p}, s[8:11], s{74+p} offen offset:256 {rf}")
        I("s_mov_b64 exec, -1")

    def extra_count(tag, first, vj, vkad, vcnt, skey, vone, hist, y):
        I(f"v_add_u32 v{y}, {first}, v{vj}")
        I(f"v_add_u32 v{y+1}, {first}, v{vkad}")
        e.label(f"L_xa{tag}")
        I(f"v_cmp_lt_u32 vcc, v{y}, v{vcnt}")
        I("s_and_saveexec_b64 s[44:45], vcc")
        e.branch(f"s_cbranch_execz L_xa{tag}_done")
        I(f"buffer_load_ubyte v{y+2}, v{y+1}, s[8:11], s{skey} offen {rf}")
        I("s_waitcnt vmcnt(0)")
        I(f"ds_add_u32 v{y+2}, v{vone} offset:{hist}")
        I("s_mov_b64 exec, -1")
        I(f"v_add_u32 v{y}, 8, v{y}")
        I(f"v_add_u32 v{y+1}, 8, v{y+1}")
        e.branch(f"s_branch L_xa{tag}")
        e.label(f"L_xa{tag}_done")
        I("s_mov_b64 exec, -1")
    def extra_move(tag, first, vj, vkad, vpad, vcnt, skey, spay, vone, cur, vbase, y, d):
        I(f"v_add_u32 v{y}, {first}, v{vj}")
        I(f"v_add_u32 v{y+1}, {first}, v{vkad}")
        I(f"v_add_u32 v{vpad}, {16*first}, v{vpad}")
        e.label(f"L_xb{tag}")
        I(f"v_cmp_lt_u32 vcc, v{y}, v{vcnt}")
        I("s_and_saveexec_b64 s[44:45], vcc")
        e.branch(f"s_cbranch_execz L_xb{tag}_done")
        I(f"buffer_load_ubyte v{y+2}, v{y+1}, s[8:11], s{skey} offen {rf}")
        I(f"buffer_load_dwordx4 v[{d}:{d+3}], v{vpad}, s[8:11], s{spay} offen {rf}")
        I("s_waitcnt vmcnt(0)")
        I(f"ds_add_rtn_u32 v{y+3}, v{y+2}, v{vone} offset:{cur}")
        I("s_mov_b64 exec, -1")
        I(f"ds_bpermute_b32 v{y+2}, v{y+2}, v{vbase}")
        I("s_waitcnt lgkmcnt(0)")
        I(f"v_add_lshl_u32 v{y+2}, v{y+2}, v{y+3}, 4")
        I("s_mov_b64 exec, vcc")
        I(f"ds_write_b128 v{y+2}, v[{d}:{d+3}] offset:{RAW}")
        I("s_mov_b64 exec, -1")
        I(f"v_add_u32 v{y}, 8, v{y}")
        I(f"v_add_u32 v{y+1}, 8, v{y+1}")
        I(f"v_add_u32 v{vpad}, 128, v{vpad}")
        e.branch(f"s_branch L_xb{tag}")
        e.label(f"L_xb{tag}_done")
        I("s_mov_b64 exec, -1")
    for p in range(NP):
        extra_count(f"a{p}", KIN, VJ, KAD+p, CNTR+p, 80+p, VONE, HIST2, X)
    e.label("L2_noextraA")
    I("s_waitcnt lgkmcnt(0)")
    stamp(e, c, 14)
    I("s_barrier")
    stamp(e, c, 15)
    C1, CT, BS = X + 4, X + 5, X + 6
    I(f"v_lshlrev_b32 v{VT0}, 2, v{VLANE}")
    I(f"ds_read_b32 v{C1}, v{VT0} offset:{HIST}")
    I(f"ds_read_b32 v{CT}, v{VT0} offset:{HIST2}")
    I("s_waitcnt lgkmcnt(0)")
    I(f"v_add_u32 v{CT}, v{C1}, v{CT}")
    I(f"v_mov_b32 v{BS}, v{CT}")
    scan64(e, BS)
    I(f"v_readlane_b32 s46, v{BS}, 63")
    I(f"v_sub_u32 v{BS}, v{BS}, v{CT}")
    I(f"s_cmp_eq_u32 s23, 1")
    I(f"s_cselect_b32 s42, -1, {CAP}")
    for p in range(NP):
        for w in range(2):
            I(f"ds_bpermute_b32 v{KEY+3*p+w}, v{KEY+3*p+w}, v{BS}")
    I(f"v_lshl_or_b32 v{VINFO}, v{CT}, 16, v{BS}")
    I(f"s_cmp_gt_u32 s46, s42")
    I("s_cbranch_scc1 L2_g_overflow")
    I("s_cmp_lg_u32 s21, 5")
    I("s_cbranch_scc1 L2_noinfo")
    I(f"s_mov_b64 exec, {(1 << HN) - 1}")
    I(f"ds_write_b32 v{VT0}, v{VINFO} offset:{INFO}")
    I("s_mov_b64 exec, -1")
    e.label("L2_noinfo")
    I("s_cmp_lg_u32 s21, 4")
    I("s_cbranch_scc1 L2_noguard")
    I("s_lshl_b32 s46, s46, 4")
    for k in range(4): I(f"v_mov_b32 v{EN+k}, 0")
    I(f"v_add_u32 v{VT0}, s46, v{VL16}")
    I(f"ds_write_b128 v{VT0}, v[{EN}:{EN+3}] offset:{RAW}")
    e.label("L2_noguard")
    I("s_waitcnt lgkmcnt(0)")
    for p in range(NP):
        for w in range(2):
            I(f"v_add_lshl_u32 v{KEY+3*p+w}, v{KEY+3*p+w}, v{RNK+3*p+w}, 4")
    stamp(e, c, 27)
    I("s_waitcnt vmcnt(0)")
    stamp(e, c, 9)
    for p in range(NP):
        for w in range(2):
            I(f"s_mov_b64 exec, {msk(p,w)}")
            I(f"ds_write_b128 v{KEY+3*p+w}, {pay(p,w)} offset:{RAW}")
    I("s_mov_b64 exec, -1")
    I("s_cmp_eq_u32 s25, 0")
    I("s_cbranch_scc1 L2_noextraB")
    for p in range(NP):
        I(f"ds_bpermute_b32 v{KEY+3*p+2}, v{KEY+3*p+2}, v{BS}")
    I("s_waitcnt lgkmcnt(0)")
    for p in range(NP):
        I(f"v_add_lshl_u32 v{KEY+3*p+2}, v{KEY+3*p+2}, v{RNK+3*p+2}, 4")
        I(f"s_mov_b64 exec, {msk(p,2)}")
        I(f"ds_write_b128 v{KEY+3*p+2}, {pay(p,2)} offset:{RAW}")
        I("s_mov_b64 exec, -1")
    I(f"v_add_u32 v{BS}, v{BS}, v{C1}")
    for p in range(NP):
        extra_move(f"a{p}", KIN, VJ, KAD+p, PAD+p, CNTR+p, 80+p, 74+p, VONE, CUR2, BS, X, EN)
    e.label("L2_noextraB")
    I("s_waitcnt lgkmcnt(0)")
    stamp(e, c, 28)
    I("s_barrier")
    I(f"ds_read_b32 v{VT0}, v{VL16} offset:{TOTB}")
    I("s_mov_b64 exec, 1")
    I(f"ds_add_rtn_u32 v{VNEXT}, v{VL16}, v{VONE} offset:{NEXT}")
    I("s_mov_b64 exec, -1")
    I("s_waitcnt lgkmcnt(0)")
    I(f"v_readfirstlane_b32 s42, v{VT0}")
    e.nop(1)
    I(f"s_cmp_gt_u32 s42, {CAP}")
    I("s_cbranch_scc1 L2_g_overflow")
    stamp(e, c, 10)
    stamp(e, c, 24, "s_memtime")
    gather_loop(e, c, locals())
    e.label("L2_g_done")
    stamp(e, c, 11)
    stamp(e, c, 25, "s_memtime")
    I("s_cmp_lg_u32 s24, 0")
    e.branch("s_cbranch_scc1 L2_g_exit")
    I("s_add_u32 s89, s89, 1")
    I("s_branch L2_g_slow")
    e.label("L2_g_overflow")
    I("s_mov_b32 s89, 0")
    I("s_mov_b32 s23, 1")
    I("s_movk_i32 s48, 64")
    e.label("L2_g_slow")
    I("s_waitcnt vmcnt(0) lgkmcnt(0)")
    I("s_barrier")
    I("s_lshr_b32 s22, s89, 1")
    I("s_and_b32 s88, s89, 1")
    I("s_lshl_b32 s88, s88, 8")
    I("s_add_u32 s88, s88, s20")
    I(f"s_cmp_eq_u32 s89, {2*NCH-1}")
    I("s_cselect_b32 s24, 1, 0")
    I("s_barrier")
    e.branch("s_branch L2_g_round")
    e.label("L2_g_exit")
    stamp_store(e, c, 90)
    I("s_endpgm")

    e.label("L2_gemm")
    W, G, TA, TF = 0, 40, 104, 108
    X0, X1 = 124, 125
    I("v_and_b32 v104, 63, v0")
    I("v_lshlrev_b32 v105, 4, v104")
    lut = 0
    for jp in range(4):
        for blk in range(4):
            p, i, s = path_of(jp, blk)
            lut |= (p | (8 if s < 0 else 0)) << (4 * (jp * 4 + blk))
    I(f"s_mov_b32 s44, {lut & 0xffffffff}")
    I(f"s_mov_b32 s45, {lut >> 32}")
    for h in range(2):
        I("v_lshrrev_b32 v106, 4, v104")
        I("v_bfe_u32 v107, v104, 3, 1")
        I("v_lshl_add_u32 v106, v106, 2, v107")
        I(f"v_add_lshl_u32 v106, v106, {2*h}, 2")
        I(f"v_lshrrev_b64 v[108:109], v106, s[44:45]")
        I(f"v_and_b32 v106, 7, v108")
        I(f"v_and_b32 v{110+h}, 8, v108")
        I(f"v_lshlrev_b32 v{110+h}, 28, v{110+h}")
        I("v_and_b32 v107, 7, v104")
        I("v_lshlrev_b32 v107, 3, v107")
        I("v_lshl_add_u32 v106, v106, 6, v107")
        I("v_add_u32 v106, s21, v106")
        I(f"v_lshlrev_b32 v{112+h}, 1, v106")
    I("v_mov_b32 v117, v0")
    handoff("m", lambda: None)
    if c.pfx2_pos == 0: prefetch_x(e, c.pfx2_lines, 114, 117, 256, 31, 0, 4, c.pfx_lines)
    WT = 80
    for k in range(4):
        h, qo = k >> 1, (k & 1) * 4
        for d in range(4):
            I(f"buffer_load_ushort v{WT+4*k+d}, v{112+h}, s[16:19], 0 offen offset:{d*640+qo*2}")
    I("v_lshrrev_b32 v106, 4, v104")
    I("v_lshlrev_b32 v106, 10, v106")
    I("v_bfe_u32 v107, v104, 2, 2")
    I("v_lshl_add_u32 v106, v107, 7, v106")
    I("v_and_b32 v107, 3, v104")
    I("v_lshl_add_u32 v106, v107, 3, v106")
    I("s_lshl_b32 s42, s21, 5")
    I(f"s_add_u32 s42, s42, {T}")
    I("v_add_u32 v106, s42, v106")
    for f in range(10):
        I(f"ds_read_b64_tr_b16 v[{W+4*f}:{W+4*f+1}], v106 offset:{f*4096}")
        I(f"ds_read_b64_tr_b16 v[{W+4*f+2}:{W+4*f+3}], v106 offset:{f*4096+512}")
    I("s_lshl_b32 s42, s21, 10")
    I(f"s_add_u32 s43, s42, {WRAD}")
    I("v_add_u32 v105, s43, v105")
    I("s_waitcnt vmcnt(0)")
    for k in range(4):
        h = k >> 1
        for d in range(4):
            I(f"v_lshlrev_b32 v{WT+4*k+d}, 16, v{WT+4*k+d}")
            I(f"v_xor_b32 v{WT+4*k+d}, v{110+h}, v{WT+4*k+d}")
        I(f"ds_write_b128 v105, v[{WT+4*k}:{WT+4*k+3}] offset:{(k>>1)*8192 + (k&1)*4096}")
    I("v_and_b32 v106, 15, v104")
    I("v_lshrrev_b32 v107, 4, v104")
    I(f"v_lshlrev_b32 v{X0}, 2, v104")
    if NWG == 250:
        I(f"s_mul_i32 s42, s20, {HN}")
        I(f"s_movk_i32 s44, {HN}")
    else:
        I("s_mul_i32 s42, s20, 1600210")
        I("s_add_u32 s42, s42, 65532")
        I("s_add_u32 s44, s42, 1600210")
        I("s_lshr_b32 s42, s42, 16")
        I("s_lshr_b32 s44, s44, 16")
        I(f"s_min_u32 s44, s44, {N//2}")
        I("s_sub_u32 s44, s44, s42")
    I("s_lshl_b32 s42, s42, 9")
    I("s_lshl_b32 s43, s21, 5")
    I("s_add_u32 s42, s42, s43")
    I(f"v_lshlrev_b32 v{X1}, 9, v106")
    I(f"v_lshl_add_u32 v{X1}, v107, 3, v{X1}")
    I(f"v_add_u32 v{X1}, s42, v{X1}")
    I(f"v_cmp_le_u32 s[84:85], {HN-16}, v106")
    I(f"s_sub_u32 s43, s44, {48-HN}")
    I("v_cmp_gt_i32 s[50:51], s43, v106")
    I("s_sub_u32 s43, s44, 16")
    I("v_cmp_gt_i32 s[94:95], s43, v106")
    I("v_lshlrev_b32 v108, 10, v106")
    I(f"v_add_u32 v108, {T}, v108")
    I("s_or_b64 s[94:95], s[94:95], s[84:85]")
    for u in (3, 2, 1, 0):
        I(f"v_add_u32 v109, {4*u}, v107")
        I("v_xor_b32 v109, v109, v106")
        I(f"v_lshl_add_u32 v{TF+4+u}, v109, 4, v108")
    I("s_waitcnt lgkmcnt(0)")
    for u in range(4):
        I(f"v_mov_b32 v{TA+u}, v{TF+4+u}")
    I("s_mov_b32 s89, 0")
    NPB = 8
    TB, KA, SJ, KB, RB = 40, 48, 56, 64, 80
    LJ, LCH, LONE, Y = 96, 97, 98, 99
    MB = 52
    def mb(p, w): return f"s[{MB+4*p+2*w}:{MB+4*p+2*w+1}]"
    LA, PA0, PA1, TOA = KB, KB + 1, KB + 2, KB + 3
    I(f"v_lshrrev_b32 v{Y}, 2, v{X0}")
    I("s_lshl_b32 s42, s21, 11")
    I(f"v_lshl_add_u32 v{LA}, v{Y}, 4, s42")
    I(f"v_lshrrev_b32 v{Y+1}, 1, v{Y}")
    I("s_lshl_b32 s43, s21, 5")
    I(f"s_sub_u32 s44, {NCH-128}, s43")
    I(f"v_cmp_gt_i32 s[46:47], s44, v{Y+1}")
    I(f"s_mov_b32 s44, {CSTRIDE}")
    I(f"v_mul_u32_u24 v{Y+1}, s44, v{Y+1}")
    I(f"v_and_b32 v{Y+2}, 16, v{LA}")
    I(f"v_add_u32 v{PA0}, v{Y+1}, v{Y+2}")
    I(f"v_cndmask_b32 v{PA1}, 2.0, v{PA0}, s[46:47]")
    I(f"v_and_b32 v{LJ}, 7, v{Y}")
    I(f"v_lshrrev_b32 v{Y+1}, 3, v{Y}")
    I(f"v_mul_u32_u24 v{LCH}, s44, v{Y+1}")
    I(f"v_lshl_add_u32 v{RB}, v{Y+1}, 5, s42")
    I("s_mul_i32 s38, s43, s44")
    I(f"v_add_u32 v{LCH}, s38, v{LCH}")
    I(f"v_mov_b32 v{LONE}, 1")
    I("s_lshl_b32 s36, s20, 5")
    I(f"s_add_u32 s36, s36, {TABOFF+8192}")
    I("s_add_u32 s36, s36, s38")
    I(f"s_add_u32 s37, s36, {128*CSTRIDE}")
    I("s_lshl_b32 s42, s21, 6")
    I(f"v_add_u32 v{Y}, s42, v{Y}")
    I(f"v_mul_u32_u24 v{Y+1}, 0xaab, v{Y}")
    I(f"v_lshrrev_b32 v{Y+1}, 16, v{Y+1}")
    I(f"v_mul_u32_u24 v{Y+1}, {SSTR-24*32}, v{Y+1}")
    I(f"v_lshl_add_u32 v{TOA}, v{Y}, 5, v{Y+1}")
    I(f"v_add_u32 v{TOA}, {SCR+28}, v{TOA}")
    I(f"s_movk_i32 s42, {NCH}")
    I(f"v_cmp_gt_u32 s[92:93], s42, v{Y}")
    if c.pfx2_pos == 1:
        I("s_mov_b64 s[40:41], s[46:47]")
        prefetch_x(e, c.pfx2_lines, 114, 117, 256, 31, 0, 4, c.pfx_lines)
        I("s_mov_b64 s[46:47], s[40:41]")
    stamp(e, c, 14)
    e.label("L2_m_round")
    I("s_barrier")
    I("s_cmp_eq_u32 s23, 1")
    I("s_cbranch_scc1 L2_m_slowC")
    def pollB_issue():
        I(f"buffer_load_dwordx4 v[{TF+4}:{TF+7}], v{PA0}, s[8:11], s36 offen sc1")
        I(f"buffer_load_dwordx4 v[{TF+8}:{TF+11}], v{PA1}, s[8:11], s37 offen sc1")
    I(f"ds_read_b32 v{TF}, v{X0} offset:{HIST}")
    I(f"ds_read_b32 v{TF+1}, v{X0} offset:{HIST2}")
    I(f"ds_read_b32 v{Y}, v{TOA}")
    I("s_waitcnt lgkmcnt(0)")
    I(f"v_add_u32 v{TF}, v{TF}, v{TF+1}")
    I(f"v_and_b32 v{Y}, 0xfff, v{Y}")
    I(f"v_cndmask_b32 v{Y}, 0, v{Y}, s[92:93]")
    scan64(e, TF)
    scan64(e, Y)
    I(f"v_readlane_b32 s42, v{TF}, 63")
    I(f"v_mov_b32 v{Y+2}, 0")
    I("s_mov_b32 exec_lo, 0")
    I("s_mov_b32 exec_hi, 0x80000000")
    I(f"ds_add_u32 v{Y+2}, v{Y} offset:{TOTB}")
    I("s_mov_b64 exec, -1")
    I(f"s_cmp_gt_u32 s42, {CAP}")
    I("s_cbranch_scc1 L2_m_overflow")
    if c.bearly: pollB_issue()
    I("s_waitcnt lgkmcnt(0)")
    I("s_barrier")
    I(f"ds_read_b32 v{Y}, v{Y+2} offset:{TOTB}")
    SEL = Y + 4
    E2 = [TF, TF + 8]
    I("s_mov_b32 s44, 0")
    I("s_waitcnt lgkmcnt(0)")
    I(f"v_readfirstlane_b32 s42, v{Y}")
    I(f"v_or_b32 v{SEL}, 0x0c0c0c00, v{LJ}")
    I(f"s_cmp_gt_u32 s42, {CAP}")
    I("s_cbranch_scc1 L2_m_overflow")
    stamp(e, c, 10)
    I("s_mov_b32 s34, s42")
    if c.x_nobload: I("s_branch L2_bnoxb")
    if c.bearly: I("s_branch L2_pollB_w")
    e.label("L2_pollB")
    pollB_issue()
    e.label("L2_pollB_w")
    I("s_add_u32 s44, s44, 1")
    I("s_waitcnt vmcnt(0)")
    tag_bad(e, Y, TF+4, Y+1, ODD)
    tag_bad(e, Y+2, TF+8, Y+1, ODD)
    I(f"v_cndmask_b32 v{Y+2}, 0, v{Y+2}, s[46:47]")
    I(f"v_or_b32 v{Y}, v{Y}, v{Y+2}")
    I(f"v_cmp_ne_u32 vcc, 0, v{Y}")
    e.nop(2)
    I("s_cmp_eq_u64 vcc, 0")
    I("s_cbranch_scc1 L2_pollB_ok")
    I(f"s_sleep {c.psleep}")
    I("s_cmp_lt_u32 s44, 0x100000")
    I("s_cbranch_scc1 L2_pollB")
    e.label("L2_pollB_ok")
    stamp(e, c, 7)
    I(f"ds_write_b128 v{LA}, v[{TF+4}:{TF+7}] offset:{CEB}")
    I(f"ds_write_b128 v{LA}, v[{TF+8}:{TF+11}] offset:{CEB+1024}")
    def boff(p): return ((128 if p >= 4 else 0) + 8 * (p & 3)) * CSTRIDE
    def ent_read(p):
        r = E2[p & 1]
        I(f"ds_read_b128 v[{r}:{r+3}], v{RB} offset:{CEB+256*p}")
        I(f"ds_read_b64 v[{r+4}:{r+5}], v{RB} offset:{CEB+256*p+16}")
    ent_read(0); ent_read(1)
    I(f"v_add_u32 v{Y+1}, 8, v{LJ}")
    for p in range(NPB):
        r = E2[p & 1]
        I(f"s_waitcnt lgkmcnt({2 if p < NPB-1 else 0})")
        I(f"v_and_b32 v{SJ+p}, 0xfff, v{r}")
        I(f"v_bfe_u32 v{TB+p}, v{r}, 12, 12")
        I(f"v_perm_b32 v{KB+2*p}, v{r+3}, v{r+2}, v{SEL}")
        I(f"v_perm_b32 v{KB+2*p+1}, v{r+5}, v{r+4}, v{SEL}")
        if p + 2 < NPB: ent_read(p + 2)
        I(f"v_add_u32 v{SJ+p}, v{SJ+p}, v{LJ}")
        I(f"v_cmp_lt_u32 {mb(p,0)}, v{LJ}, v{TB+p}")
        I(f"v_cmp_lt_u32 {mb(p,1)}, v{Y+1}, v{TB+p}")
        I(f"v_lshl_add_u32 v{SJ+p}, v{SJ+p}, 4, v{LCH}")
    P0 = [TF, TF+4, TF+8, TF+12]
    def pay_issue(p, w, reg):
        I(f"s_mov_b32 s42, {boff(p)+PAYOFF}")
        I("s_mov_b64 exec, -1")
        I(f"v_cndmask_b32 v{Y+2+w}, 2.0, v{SJ+p}, {mb(p,w)}")
        I(f"buffer_load_dwordx4 v[{reg}:{reg+3}], v{Y+2+w}, s[8:11], s42 offen offset:{128*w} {rf}")
    for k in range(4): pay_issue(k >> 1, k & 1, P0[k])
    I(f"v_max3_u32 v{Y}, v{TB}, v{TB+1}, v{TB+2}")
    I(f"v_max3_u32 v{Y}, v{Y}, v{TB+3}, v{TB+4}")
    I(f"v_max3_u32 v{Y}, v{Y}, v{TB+5}, v{TB+6}")
    I(f"v_max_u32 v{Y}, v{Y}, v{TB+7}")
    I(f"v_cmp_lt_u32 vcc, 16, v{Y}")
    I(f"v_mov_b32 v{Y+1}, v{RB}")
    for p in range(NPB):
        for w in range(2):
            I(f"s_mov_b64 exec, {mb(p,w)}")
            I(f"ds_add_rtn_u32 v{RB+2*p+w}, v{KB+2*p+w}, v{LONE} offset:{HISTB}")
    I("s_mov_b64 exec, -1")
    I("s_cmp_lg_u64 vcc, 0")
    I("s_cselect_b32 s35, 1, 0")
    I("s_cbranch_scc0 L2_bnoxa")
    def w2mask(p):
        I(f"v_min_u32 v{Y+2}, {KIN}, v{TB+p}")
        I(f"v_add_u32 v{Y+3}, 16, v{LJ}")
        I(f"v_cmp_lt_u32 vcc, v{Y+3}, v{Y+2}")
        I("s_and_saveexec_b64 s[44:45], vcc")
    for p in range(NPB):
        w2mask(p)
        e.branch(f"s_cbranch_execz L2_bw2a{p}")
        I(f"ds_read_b32 v{KA+p}, v{Y+1} offset:{CEB+256*p+24}")
        I("s_waitcnt lgkmcnt(0)")
        I(f"v_perm_b32 v{KA+p}, v{KA+p}, v{KA+p}, v{SEL}")
        I(f"ds_add_rtn_u32 v{Y+2}, v{KA+p}, v{LONE} offset:{HISTB}")
        I("s_waitcnt lgkmcnt(0)")
        I(f"v_lshl_or_b32 v{KA+p}, v{Y+2}, 8, v{KA+p}")
        e.label(f"L2_bw2a{p}")
        I("s_mov_b64 exec, -1")
    def key_addr(p, dst):
        I(f"v_sub_u32 v{dst}, v{SJ+p}, v{LCH}")
        I(f"v_lshrrev_b32 v{dst}, 4, v{dst}")
        I(f"v_add_u32 v{dst}, v{dst}, v{LCH}")
    for p in range(NPB):
        I(f"s_mov_b32 s42, {boff(p)+KEYOFF}")
        key_addr(p, Y+3)
        extra_count(f"b{p}", KIN, LJ, Y+3, TB+p, 42, LONE, HIST2B, Y)
    e.label("L2_bnoxa")
    I("s_mov_b64 exec, 1")
    I(f"v_mov_b32 v{Y+2}, 0")
    I("s_waitcnt lgkmcnt(0)")
    I(f"ds_add_u32 v{Y+2}, v{LONE} offset:{BSYNC}")
    I("s_mov_b64 exec, -1")
    I(f"v_mov_b32 v{Y+2}, 0")
    spin(e, "bs", Y, Y+2, BSYNC, 4, 44, 42)
    BB = Y + 4
    I(f"ds_read_b32 v{Y}, v{X0} offset:{HISTB}")
    I(f"ds_read_b32 v{Y+1}, v{X0} offset:{HIST2B}")
    I("s_waitcnt lgkmcnt(0)")
    I(f"v_add_u32 v{Y+1}, v{Y}, v{Y+1}")
    I(f"v_mov_b32 v{BB}, v{Y+1}")
    scan64(e, BB)
    I(f"v_sub_u32 v{BB}, v{BB}, v{Y+1}")
    I(f"v_add_u32 v{BB}, {BOFF}, v{BB}")
    for k in range(2*NPB):
        I(f"ds_bpermute_b32 v{KB+k}, v{KB+k}, v{BB}")
    I("s_cmp_lg_u32 s21, 0")
    I("s_cbranch_scc1 L2_bnoinfo")
    I(f"v_lshl_or_b32 v{Y+1}, v{Y+1}, 16, v{BB}")
    I(f"s_mov_b32 exec_lo, {((1 << 32) - (1 << HN))}")
    I(f"ds_write_b32 v{X0}, v{Y+1} offset:{INFO}")
    I("s_mov_b64 exec, -1")
    e.label("L2_bnoinfo")
    I("s_waitcnt lgkmcnt(0)")
    for k in range(2*NPB):
        I(f"v_add_lshl_u32 v{KB+k}, v{KB+k}, v{RB+k}, 4")
    I(f"v_mov_b32 v{LONE}, v{Y}")
    regs = P0 + [RB, RB+4, RB+8, RB+12]
    for k in range(4, 8): pay_issue(k >> 1, k & 1, regs[k])
    for k in range(16):
        I(f"s_waitcnt vmcnt({min(7, 15-k)})")
        I(f"s_mov_b64 exec, {mb(k>>1, k&1)}")
        I(f"ds_write_b128 v{KB+k}, v[{regs[k&7]}:{regs[k&7]+3}] offset:{RAW}")
        if k + 8 < 16: pay_issue((k+8) >> 1, (k+8) & 1, regs[k&7])
    I("s_mov_b64 exec, -1")
    I("s_cmp_eq_u32 s35, 0")
    I("s_cbranch_scc1 L2_bnoxb")
    for p in range(NPB):
        I(f"v_and_b32 v{Y}, 0xff, v{KA+p}")
        I(f"ds_bpermute_b32 v{Y}, v{Y}, v{BB}")
        w2mask(p)
        e.branch(f"s_cbranch_execz L2_bw2b{p}")
        I(f"s_mov_b32 s42, {boff(p)+PAYOFF}")
        I(f"buffer_load_dwordx4 v[{TF}:{TF+3}], v{SJ+p}, s[8:11], s42 offen offset:256 {rf}")
        I(f"v_lshrrev_b32 v{KA+p}, 8, v{KA+p}")
        I("s_waitcnt vmcnt(0) lgkmcnt(0)")
        I(f"v_add_lshl_u32 v{Y}, v{Y}, v{KA+p}, 4")
        I(f"ds_write_b128 v{Y}, v[{TF}:{TF+3}] offset:{RAW}")
        e.label(f"L2_bw2b{p}")
        I("s_mov_b64 exec, -1")
        I("s_waitcnt lgkmcnt(0)")
    I(f"v_add_u32 v{BB}, v{BB}, v{LONE}")
    I(f"v_mov_b32 v{LONE}, 1")
    for p in range(NPB):
        I(f"s_mov_b32 s42, {boff(p)+KEYOFF}")
        I(f"s_mov_b32 s43, {boff(p)+PAYOFF}")
        key_addr(p, KA+p)
        extra_move(f"b{p}", KIN, LJ, KA+p, SJ+p, TB+p, 42, 43, LONE, CUR2B, BB, Y, TF)
    e.label("L2_bnoxb")
    I("s_waitcnt lgkmcnt(0)")
    for k in range(64):
        I(f"v_mov_b32 v{G+k}, 0")
    I("s_cmp_lg_u32 s21, 1")
    I("s_cbranch_scc1 L2_bnoguard")
    I(f"s_add_u32 s42, s34, {BOFF}")
    I("s_lshl_b32 s42, s42, 4")
    I(f"v_lshl_add_u32 v{TF}, v{X0}, 2, s42")
    I(f"ds_write_b128 v{TF}, v[{G}:{G+3}] offset:{RAW}")
    I("s_waitcnt lgkmcnt(0)")
    e.label("L2_bnoguard")
    I(f"v_mov_b32 v{TF}, 1")
    I("s_mov_b64 exec, 1")
    I(f"ds_add_u32 v{G}, v{TF} offset:{BREADY}")
    I("s_mov_b64 exec, -1")
    stamp(e, c, 13)
    I("s_branch L2_m_tiles")
    e.label("L2_m_slowC")
    I("s_barrier")
    e.label("L2_m_tiles")
    for h in range(2):
        for t in ((0, 3, 1, 2) if h else range(4)):
            need = 16 if t < 3 else NODES - 48
            last = (h, t) == (1, 2)
            if last and c.split: need = 32
            I(f"v_mov_b32 v{TF}, 0")
            spin(e, f"t{h}{t}", TF+1, TF, DONE + 16*h + 4*t, need, 43, 42, sleep=(1 if last else c.sleep))
            stamp(e, c, 16 + 4*h + t)
            srcs = [t] + ([0] if last and c.split else [])
            steps = [(tt, ks) for tt in srcs for ks in range(16)]
            def mf(ks, r):
                jp, blk = ks >> 2, 2 * h + ((ks >> 1) & 1)
                p, i, sg = path_of(jp, blk)
                f = p * 2 + (ks & 1)
                g = G + 16 * t + 4 * i
                I(f"v_mfma_f32_16x16x32_bf16 v[{g}:{g+3}], v[{W+4*f}:{W+4*f+3}], v[{r}:{r+3}], v[{g}:{g+3}]")
            def rd(n, r):
                tt, ks = steps[n]
                I(f"ds_read_b128 v[{r}:{r+3}], v{TA+(ks&3)} offset:{tt*16384 + (ks>>2)*256}")
            for n in range(4): rd(n, TF + 4*n)
            for n in range(len(steps)):
                I(f"s_waitcnt lgkmcnt({min(3, len(steps)-1-n)})")
                mf(steps[n][1], TF + 4*(n&3))
                if n + 4 < len(steps): rd(n + 4, TF + 4*(n&3))
            if (h, t) == (1, 0) and c.split:
                I(f"v_mov_b32 v{TF}, 0")
                I(f"v_mov_b32 v{TF+1}, 1")
                I("s_mov_b64 exec, 1")
                I(f"ds_add_u32 v{TF}, v{TF+1} offset:{GDONE + 16}")
                I("s_mov_b64 exec, -1")
            if h == 0:
                I(f"v_mov_b32 v{TF}, 0")
                I(f"v_mov_b32 v{TF+1}, 1")
                I("s_mov_b64 exec, 1")
                I(f"ds_add_u32 v{TF}, v{TF+1} offset:{GDONE + 4*t}")
                I("s_mov_b64 exec, -1")
            else:
                I("s_cmp_eq_u32 s24, 0")
                e.branch(f"s_cbranch_scc1 L2_nofin{t}")
                g = G + 16 * t
                I("s_mov_b32 s42, 0xbfb8aa3b")
                for r in range(4): I(f"v_mul_f32 v{TF+r}, s42, v{g+r}")
                for r in range(4): I(f"v_exp_f32 v{TF+r}, v{TF+r}")
                for r in range(4): I(f"v_add_f32 v{TF+r}, 1.0, v{TF+r}")
                for r in range(4): I(f"v_rcp_f32 v{TF+r}, v{TF+r}")
                for i in range(1, 4):
                    for r in range(4): I(f"v_mul_f32 v{g+4*i+r}, v{g+4*i+r}, v{TF+r}")
                for i in range(4):
                    I(f"v_cvt_pk_bf16_f32 v{TF+4+2*i}, v{g+4*i}, v{g+4*i+1}")
                    I(f"v_cvt_pk_bf16_f32 v{TF+5+2*i}, v{g+4*i+2}, v{g+4*i+3}")
                I(f"s_mov_b32 s42, {t*16*512 + ((N//2-HN)*512 if t >= 2 else 0)}")
                va = X1
                if t == 1:
                    va = TF
                    I(f"v_add_u32 v{TF}, {(N//2-HN)*512}, v{X1}")
                    I(f"v_cndmask_b32 v{TF}, v{X1}, v{TF}, s[84:85]")
                    I("s_mov_b64 exec, s[94:95]")
                if t == 3:
                    I("s_mov_b64 exec, s[50:51]")
                    I("s_cbranch_execz L2_nost3")
                for i in range(4):
                    I(f"buffer_store_dwordx2 v[{TF+4+2*i}:{TF+5+2*i}], v{va}, s[12:15], s42 offen offset:{i*128} {c.out_flags}")
                if t == 3: e.label("L2_nost3")
                if t in (1, 3): I("s_mov_b64 exec, -1")
                e.label(f"L2_nofin{t}")
    stamp(e, c, 11)
    I("s_cmp_lg_u32 s24, 0")
    e.branch("s_cbranch_scc1 L2_m_exit")
    I("s_add_u32 s89, s89, 1")
    I("s_branch L2_m_slow")
    e.label("L2_m_overflow")
    I("s_mov_b32 s89, 0")
    I("s_mov_b32 s23, 1")
    I("s_waitcnt vmcnt(0)")
    for k in range(64):
        I(f"v_mov_b32 v{G+k}, 0")
    e.label("L2_m_slow")
    I("s_waitcnt vmcnt(0) lgkmcnt(0)")
    I("s_barrier")
    I(f"s_cmp_eq_u32 s89, {2*NCH-1}")
    I("s_cselect_b32 s24, 1, 0")
    I("s_cmp_lg_u32 s21, 1")
    I("s_cbranch_scc1 L2_m_nz")
    for k in range(4): I(f"v_mov_b32 v{TF+k}, 0")
    I(f"v_lshlrev_b32 v{TF+4}, 2, v{X0}")
    I(f"ds_write_b128 v{TF+4}, v[{TF}:{TF+3}]")
    I("s_waitcnt lgkmcnt(0)")
    e.label("L2_m_nz")
    I("s_barrier")
    e.branch("s_branch L2_m_round")
    e.label("L2_m_exit")
    if c.stamps:
        I("s_waitcnt vmcnt(0)")
        stamp(e, c, 12)
        stamp_store(e, c, TF)
    e.label("L_end")
    I("s_endpgm")
    return KNAME, 128, 96

def gather_loop(e, c, L):
    I = e.I
    RAW, T, NEXT, DONE, GDONE, OSC, PL1, BREADY, INFO = (L[k] for k in "RAW T NEXT DONE GDONE OSC PL1 BREADY INFO".split())
    VLANE, VINFO, VNEXT, VLOFF, VMASK, VOW, VOR, VSCRW, VTRA, VWR, VL16, VT0, VT1, VONE = (L[k] for k in
        "VLANE VINFO VNEXT VLOFF VMASK VOW VOR VSCRW VTRA VWR VL16 VT0 VT1 VONE".split())
    ACC, LD, B, A, AD = 0, 32, 64, 96, 100
    sA, sR, sH, sN, sNV = 32, 33, 34, 35, 37
    sCN, sCH, sCF, sCR, sL = 38, 39, 40, 41, 36
    uid = [0]
    def lab(p):
        uid[0] += 1
        return f"L2_{p}{uid[0]}"
    def fetch_issue():
        I("s_mov_b64 exec, 1")
        I(f"ds_add_rtn_u32 v{VNEXT}, v{VL16}, v{VONE} offset:{NEXT}")
        I("s_mov_b64 exec, -1")
    NIT = 2*NODES + (16 if c.split else 0)
    def setup_item(none_label):
        I(f"v_readfirstlane_b32 s42, v{VNEXT}")
        e.nop(1)
        I(f"s_cmp_ge_u32 s42, {NIT}")
        I(f"s_cbranch_scc1 {none_label}")
        t, sp, dn = lab("bw"), lab("sp"), lab("sd")
        if c.split:
            I(f"s_cmp_ge_u32 s42, {2*NODES-16}")
            I(f"s_cbranch_scc1 {sp}")
        I(f"s_cmp_ge_u32 s42, {NODES}")
        I(f"s_cselect_b32 s{sH}, 256, 0")
        I(f"s_cselect_b32 s43, {NODES}, 0")
        I(f"s_cmp_ge_u32 s42, {NODES+16}")
        I(f"s_cselect_b32 s43, {NODES-32}, s43")
        I(f"s_cmp_ge_u32 s42, {NODES+18}")
        I(f"s_cselect_b32 s43, {NODES+2}, s43")
        I(f"s_sub_u32 s{sN}, s42, s43")
        I(f"s_cmp_lt_u32 s{sN}, s48")
        I(f"s_cbranch_scc1 {t}")
        stamp(e, c, 29)
        I(f"v_mov_b32 v{VT0}, 0")
        spin(e, t, VT1, VT0, BREADY, 4, 45, 44, sleep=1)
        I(f"v_lshrrev_b32 v{VT0}, 2, v{VL16}")
        I(f"ds_read_b32 v{VINFO}, v{VT0} offset:{INFO}")
        I("s_movk_i32 s48, 64")
        I("s_waitcnt lgkmcnt(0)")
        stamp(e, c, 30)
        e.label(t)
        I(f"v_readlane_b32 s42, v{VINFO}, s{sN}")
        e.nop(1)
        I(f"s_lshr_b32 s{sR}, s42, 16")
        I("s_and_b32 s42, s42, 0xffff")
        I(f"s_lshl_b32 s{sA}, s42, 4")
        if c.split:
            I(f"s_branch {dn}")
            e.label(sp)
            I(f"s_sub_u32 s42, s42, {2*NODES-16}")
            I("s_lshr_b32 s43, s42, 1")
            I(f"s_add_u32 s{sN}, s43, 32")
            I(f"s_cmp_lt_u32 s{sN}, s48")
            I(f"s_cbranch_scc1 {t}b")
            I(f"v_mov_b32 v{VT0}, 0")
            spin(e, t + "c", VT1, VT0, BREADY, 4, 45, 44, sleep=1)
            I(f"v_lshrrev_b32 v{VT0}, 2, v{VL16}")
            I(f"ds_read_b32 v{VINFO}, v{VT0} offset:{INFO}")
            I("s_movk_i32 s48, 64")
            I("s_waitcnt lgkmcnt(0)")
            e.label(t + "b")
            I(f"v_readlane_b32 s44, v{VINFO}, s{sN}")
            I(f"s_movk_i32 s{sH}, 256")
            I(f"s_lshr_b32 s{sR}, s44, 16")
            I("s_and_b32 s44, s44, 0xffff")
            I(f"s_min_u32 s45, s{sR}, 32")
            I("s_bitcmp1_b32 s42, 0")
            I(f"s_cbranch_scc1 {sp}h")
            I(f"s_mov_b32 s{sR}, s45")
            I(f"s_lshl_b32 s{sA}, s44, 4")
            I(f"s_branch {dn}")
            e.label(sp + "h")
            I(f"s_sub_u32 s{sR}, s{sR}, s45")
            I("s_add_u32 s44, s44, s45")
            I(f"s_lshl_b32 s{sA}, s44, 4")
            I(f"s_or_b32 s{sN}, s43, 64")
            e.label(dn)
    def off_read(hf):
        I(f"ds_read_b128 v[{AD}:{AD+3}], v{VOR} offset:{OSC+128*hf}")
        I(f"ds_read_b128 v[{AD+4}:{AD+7}], v{VOR} offset:{OSC+128*hf+16}")
    def off_add():
        if c.addtid: return
        for i in range(8):
            I(f"v_add_u32 v{AD+i}, v{AD+i}, v{VLOFF}")
    def prep_block():
        r = B
        I(f"v_add_u32 v{VT0}, s{sA}, v{VL16}")
        I(f"ds_read_b128 v[{r}:{r+3}], v{VT0} offset:{RAW}")
        l = lab("nf")
        I(f"s_cmp_gt_u32 s{sR}, 64")
        I(f"s_cbranch_scc1 {l}")
        fetch_issue()
        e.label(l)
        I(f"v_cmp_gt_u32 vcc, s{sR}, v{VLANE}")
        I("s_waitcnt lgkmcnt(0)")
        I(f"v_lshrrev_b32 v{r+11}, 16, v{r+3}")
        if c.addtid:
            I(f"v_lshlrev_b32 v{r+11}, 5, v{r+11}")
            I(f"v_sub_u32 v{r+11}, v{r+11}, v{VLOFF}")
        else:
            I(f"v_lshlrev_b32 v{r+11}, 9, v{r+11}")
            if c.oobtail: I(f"v_cndmask_b32 v{r+11}, 2.0, v{r+11}, vcc")
        I(f"ds_write_b32 v{VOW}, v{r+11} offset:{OSC}")
        off_read(0)
        if not c.x_noexp:
            I(f"v_cndmask_b32 v{r}, 0, v{r}, vcc")
            I(f"v_cndmask_b32 v{r+1}, 0, v{r+1}, vcc")
            I(f"v_lshlrev_b32 v{r+8}, 16, v{r+2}")
            I(f"v_and_b32 v{r+9}, v{VMASK}, v{r+2}")
            I(f"v_lshlrev_b32 v{r+10}, 16, v{r+3}")
            I(f"v_lshlrev_b32 v{r+4}, 16, v{r}")
            I(f"v_and_b32 v{r+5}, v{VMASK}, v{r}")
            I(f"v_lshlrev_b32 v{r+6}, 16, v{r+1}")
            I(f"v_and_b32 v{r+7}, v{VMASK}, v{r+1}")
            for j in range(3):
                for d in range(4):
                    I(f"v_mul_f32 v{r+12+4*j+d}, v{r+4+d}, v{r+8+j}")
            I(f"v_cvt_pk_bf16_f32 v{r+2}, v{r+12}, v{r+13}")
            I(f"v_cvt_pk_bf16_f32 v{r+3}, v{r+14}, v{r+15}")
            for k in range(4):
                I(f"v_cvt_pk_bf16_f32 v{r+24+k}, v{r+16+2*k}, v{r+17+2*k}")
        I(f"ds_write_b128 v{VSCRW}, v[{r}:{r+3}]")
        I(f"ds_write_b128 v{VSCRW}, v[{r+24}:{r+27}] offset:{PL1}")
        I("s_waitcnt lgkmcnt(2)")
        off_add()
    def ld(i):
        if c.x_noload: return
        I(f"buffer_load_dwordx4 v[{LD+4*i}:{LD+4*i+3}], v{AD+i}, s[4:7], {'0' if c.x_samehalf else 's%d' % sH} {'idxen' if c.addtid else 'offen'}")
    def perm(q, jj, k16=False):
        if c.x_noperm: return
        d = B + 2*q + jj if k16 else B + 4*q + jj
        I(f"v_perm_b32 v{d}, v{LD+4*(2*jj+1)+q//2}, v{LD+4*(2*jj)+q//2}, s{29 if q & 1 else 28}")
    def loads_partial(done):
        for i in range(7):
            I(f"s_cmp_le_u32 s{sL}, {4*i}")
            I(f"s_cbranch_scc1 {done}")
            ld(i)
    def perms_loads():
        part, done = lab("pp"), lab("pd")
        I("s_waitcnt vmcnt(0)")
        I(f"s_cmp_le_u32 s{sL}, 28")
        I(f"s_cbranch_scc1 {part}")
        for jj in range(4):
            for q in range(8): perm(q, jj)
            ld(2*jj); ld(2*jj+1)
        I(f"s_branch {done}")
        e.label(part)
        for jj in range(4):
            for q in range(8): perm(q, jj)
        loads_partial(done)
        e.label(done)
    def mfmas(first, k16=False):
        if c.x_nomfma: return
        for q in range(8):
            d = f"v[{ACC+4*q}:{ACC+4*q+3}]"
            if k16: I(f"v_mfma_f32_16x16x16_bf16 {d}, v[{A}:{A+1}], v[{B+2*q}:{B+2*q+1}], {'0' if first else d}")
            else: I(f"v_mfma_f32_16x16x32_bf16 {d}, v[{A}:{A+3}], v[{B+4*q}:{B+4*q+3}], {'0' if first else d}")
    def tr_read(hf):
        I(f"ds_read_b64_tr_b16 v[{A}:{A+1}], v{VTRA} offset:{512*hf}")
        I(f"ds_read_b64_tr_b16 v[{A+2}:{A+3}], v{VTRA} offset:{512*hf+256}")

    if c.stamps: I("s_mov_b32 s92, 16")
    setup_item("L2_g_done")
    prep_block()
    for i in range(8): ld(i)
    for first in (1, 0):
        e.label(f"L2_A{first}")
        tr_read(0)
        I(f"s_cmp_gt_u32 s{sR}, 32")
        I(f"s_cbranch_scc1 L2_AB{first}")
        I(f"s_mov_b32 s{sCF}, {first}")
        I(f"s_mov_b32 s{sCR}, s{sR}")
        I("s_branch L2_XN")
        e.label(f"L2_AB{first}")
        off_read(1)
        I(f"s_sub_u32 s{sL}, s{sR}, 32")
        I("s_waitcnt lgkmcnt(0)")
        off_add()
        perms_loads()
        mfmas(first)
        if first: I("s_branch L2_B")
    e.label("L2_B")
    tr_read(1)
    I(f"s_cmp_gt_u32 s{sR}, 64")
    I("s_cbranch_scc0 L2_BN")
    I(f"s_sub_u32 s{sR}, s{sR}, 64")
    I(f"s_add_u32 s{sA}, s{sA}, 1024")
    I(f"s_mov_b32 s{sL}, s{sR}")
    prep_block()
    perms_loads()
    I("s_waitcnt lgkmcnt(0)")
    mfmas(0)
    I("s_branch L2_A0")
    e.label("L2_BN")
    I(f"s_mov_b32 s{sCF}, 0")
    I(f"s_sub_u32 s{sCR}, s{sR}, 32")
    e.label("L2_XN")
    I(f"s_mov_b32 s{sCN}, s{sN}")
    I(f"s_mov_b32 s{sCH}, s{sH}")
    I(f"s_mov_b32 s{sNV}, 1")
    setup_item("L2_XN_none")
    I(f"s_mov_b32 s{sL}, s{sR}")
    prep_block()
    I("s_branch L2_XN_go")
    e.label("L2_XN_none")
    I(f"s_mov_b32 s{sNV}, 0")
    I(f"s_mov_b32 s{sL}, 0")
    e.label("L2_XN_go")
    I(f"s_cmp_le_u32 s{sCR}, 16")
    I("s_cbranch_scc1 L2_XN_k16")
    perms_loads()
    I("s_waitcnt lgkmcnt(0)")
    I(f"s_cmp_eq_u32 s{sCF}, 0")
    I("s_cbranch_scc1 L2_XN_acc")
    mfmas(1)
    I("s_branch L2_XN_epi")
    e.label("L2_XN_acc")
    mfmas(0)
    I("s_branch L2_XN_epi")
    e.label("L2_XN_k16")
    I("s_waitcnt vmcnt(0)")
    for jj in range(2):
        for q in range(8): perm(q, jj, True)
    I(f"s_cmp_le_u32 s{sL}, 28")
    I("s_cbranch_scc1 L2_XN_k16p")
    for i in range(8): ld(i)
    I("s_branch L2_XN_k16d")
    e.label("L2_XN_k16p")
    loads_partial("L2_XN_k16d")
    e.label("L2_XN_k16d")
    I("s_waitcnt lgkmcnt(0)")
    I(f"s_cmp_eq_u32 s{sCF}, 0")
    I("s_cbranch_scc1 L2_XN_k16acc")
    mfmas(1, True)
    I("s_branch L2_XN_epi")
    e.label("L2_XN_k16acc")
    mfmas(0, True)
    e.label("L2_XN_epi")
    I(f"s_lshl_b32 s42, s{sCH}, 5")
    I(f"v_add_u32 v{VT0}, s42, v{VWR}")
    for q in range(8):
        I(f"ds_read_b128 v[{B+4*q}:{B+4*q+3}], v{VT0} offset:{q*1024}")
    I(f"s_lshr_b32 s43, s{sCN}, 4")
    I(f"s_lshl_b32 s43, s43, 2")
    I(f"s_cmp_eq_u32 s{sCH}, 0")
    I("s_cbranch_scc1 L2_nowar")
    I(f"v_mov_b32 v{VT1}, s43")
    spin(e, "war", VT0, VT1, GDONE, 4, 45, 44)
    if c.split:
        I("s_cmp_eq_u32 s43, 16")
        I("s_cselect_b32 s43, 8, s43")
    I("s_add_u32 s43, s43, 16")
    e.label("L2_nowar")
    I(f"s_and_b32 s44, s{sCN}, 15")
    I("s_lshl_b32 s44, s44, 4")
    I(f"s_and_b32 s45, s{sCN}, 63")
    I(f"s_lshl_b32 s45, s45, 10")
    I(f"s_add_u32 s45, s45, {T}")
    I(f"v_xor_b32 v{VT0}, s44, v{VL16}")
    I(f"v_add_u32 v{VT0}, s45, v{VT0}")
    I(f"v_mov_b32 v{VT1}, s43")
    I("s_waitcnt lgkmcnt(0)")
    for q in range(8):
        I(f"v_mul_f32 v{B+4*q}, v{B+4*q}, v{ACC+4*q}")
    for d in range(1, 4):
        for q in range(8):
            I(f"v_fmac_f32 v{B+4*q}, v{B+4*q+d}, v{ACC+4*q+d}")
    for k in range(4):
        I(f"v_cvt_pk_bf16_f32 v{A+k}, v{B+8*k}, v{B+8*k+4}")
    I(f"ds_write_b128 v{VT0}, v[{A}:{A+3}]")
    if not c.nowait: I("s_waitcnt lgkmcnt(0)")
    I("s_mov_b64 exec, 1")
    I(f"ds_add_u32 v{VT1}, v{VONE} offset:{DONE}")
    I("s_mov_b64 exec, -1")
    if c.stamps:
        I("s_memrealtime s[90:91]")
        I("s_waitcnt lgkmcnt(0)")
        I("s_mov_b32 m0, s92")
        I(f"v_writelane_b32 v{STV}, s90, m0")
        I("s_add_u32 s92, s92, 1")
        I("s_min_u32 s92, s92, 23")
    I(f"s_cmp_lg_u32 s{sNV}, 0")
    I("s_cbranch_scc1 L2_A1")

HEADER = """; equiformer tensor-product message passing, one persistent launch (one workgroup per CU):
"""

def gen_probe(e, c):
    kA, a0, a1, sA, oA, kB, b0, b1, sB, oB = c.probe.split(",")
    kernel_header(e, "eqprobe_kernel")
    I = e.I
    I("s_cmp_ge_u32 s2, 1")
    I("s_cbranch_scc1 LP_end")
    I("s_memrealtime s[20:21]")
    I("s_load_dwordx2 s[4:5], s[0:1], 88")
    I("s_waitcnt lgkmcnt(0)")
    srd(e, 8, 4, 32 << 20)
    I(f"v_min_u32 v1, {c.nwg-1}, v0")
    I("v_lshlrev_b32 v1, 11, v1")
    I("v_mov_b32 v10, 0"); I("v_mov_b32 v11, -1"); I("v_mov_b32 v12, 0")
    I("ds_write_b32 v10, v11 offset:0"); I("ds_write_b32 v10, v12 offset:4"); I("ds_write_b32 v10, v11 offset:8"); I("ds_write_b32 v10, v12 offset:12")
    I("s_waitcnt lgkmcnt(0)"); I("s_barrier")
    regs = []
    for (k, w0, w1, sl, off) in ((kA, a0, a1, sA, 0), (kB, b0, b1, sB, 8)):
        if k == "now":
            I(f"v_mov_b32 v{16+len(regs)}, s20"); regs.append(off); continue
        I(f"s_mov_b32 s12, {STAMPOFF}")
        for w in range(int(w0), int(w1)):
            I(f"buffer_load_dword v{16+len(regs)}, v1, s[8:11], s12 offen offset:{w*128 + int(sl)*4}")
            regs.append(off)
    I("s_waitcnt vmcnt(0)")
    for off, op in ((0, oA), (8, oB)):
        idx = [n for n, o in enumerate(regs) if o == off]
        for n in idx[1:]:
            I(f"v_{op}_u32 v{16+idx[0]}, v{16+idx[0]}, v{16+n}")
        I(f"ds_{op}_u32 v10, v{16+idx[0]} offset:{off + (0 if op == 'min' else 4)}")
    I("s_waitcnt lgkmcnt(0)"); I("s_barrier")
    I(f"ds_read_b32 v3, v10 offset:{0 if oA == 'min' else 4}")
    I(f"ds_read_b32 v4, v10 offset:{8 if oB == 'min' else 12}")
    I("s_waitcnt lgkmcnt(0)")
    I("v_sub_u32 v3, v3, v4")
    I("v_min_u32 v3, 0x2000, v3")
    I("v_readfirstlane_b32 s14, v3")
    I("s_memrealtime s[16:17]")
    I("s_mul_i32 s14, s14, 10")
    I("s_waitcnt lgkmcnt(0)")
    e.label("LP_spin")
    I("s_memrealtime s[18:19]")
    I("s_waitcnt lgkmcnt(0)")
    I("s_sub_u32 s18, s18, s16")
    I("s_cmp_lt_u32 s18, s14")
    I("s_cbranch_scc1 LP_spin")
    e.label("LP_end")
    I("s_endpgm")
    return "eqprobe_kernel", 64, 32

def generate(c):
    e = Emitter()
    e.raw('.amdgcn_target "amdgcn-amd-amdhsa--gfx950"')
    e.raw(".text")
    k = gen_main(e, c)
    head = HEADER + f"; @launch grid=({c.nwg},1,1) block=(1024,1,1) lds={c.lds}\n"
    tail = '.section .rodata,"a"\n.p2align 6\n' + kd(*k)
    if c.probe:
        kp = gen_probe(e, c)
        head = HEADER + f"; @launch kernel={KNAME} grid=({c.nwg},1,1) block=(1024,1,1) lds={c.lds}\n; @launch kernel=eqprobe_kernel grid=(1,1,1) block=(256,1,1) lds=64\n"
        tail += ".p2align 6\n" + kd(*kp)
    return head + e.text() + tail

if __name__ == "__main__":
    c = Cfg()
    out = sys.argv[1]
    for kv in sys.argv[2:]:
        k, v = kv.split("=", 1)
        old = getattr(c, k)
        setattr(c, k, type(old)(int(v)) if isinstance(old, (bool, int)) else v.replace("+", " "))
    open(out, "w").write(generate(c))
```

```python
import sys
from emit import Emitter

N, E = 12500, 800000
NODES, HN = 50, 25
NCH = 250
CSTRIDE = 70784
KEYOFF, PAYOFF, TABOFF = 0, 3200, 54400
WSBYTES = NCH * CSTRIDE
KIN = 20
KNAME = "gather_scatter__tensor_product_equiv_equiformer__graph_kernel"
STAMPOFF = 24 << 20

class Cfg:
    nwg = 250
    st_flags = "sc1"
    ld_flags = "nt"
    rec_flags = "sc1"
    out_flags = ""
    pfx_lines = 192
    stamps = False
    cap = 1888
    x_noperm = 0
    x_noexp = 0
    x_nomfma = 0
    x_noload = 0
    x_samehalf = 0
    x_nobload = 0
    codepf = 26
    tlbpf = 0
    codeearly = 0
    sleep = 32
    psleep = 4
    probe = ""
    addtid = 0
    split = 0
    ld2_flags = None
    nowait = 1
    fastlast = 1
    pfx2_lines = 0
    pfx2_pos = 0
    oobtail = 1
    bearly = 1
    tidw3 = "0x00800000"

def srd(e, d, b, nbytes, w1=None, w3="0x20000"):
    e.I(f"s_mov_b32 s{d}, s{b}")
    if w1: e.I(f"s_or_b32 s{d+1}, s{b+1}, {w1}")
    else: e.I(f"s_mov_b32 s{d+1}, s{b+1}")
    e.I(f"s_mov_b32 s{d+2}, {nbytes}")
    e.I(f"s_mov_b32 s{d+3}, {w3}")

def scan64(e, v):
    for sh in (1, 2, 4, 8):
        e.I(f"v_add_u32_dpp v{v}, v{v}, v{v} row_shr:{sh} row_mask:0xf bank_mask:0xf")
    e.I(f"v_add_u32_dpp v{v}, v{v}, v{v} row_bcast:15 row_mask:0xa bank_mask:0xf")
    e.I(f"v_add_u32_dpp v{v}, v{v}, v{v} row_bcast:31 row_mask:0xc bank_mask:0xf")

def prefetch_x(e, nlines, vt, vtid, nthreads, slice_s, half, srdx, first=0):
    if nlines <= 0: return 0
    e.I(f"s_mul_i32 s46, s{slice_s}, 782")
    if first: e.I(f"s_add_u32 s46, s46, {first}")
    e.I(f"s_mov_b32 s47, {nlines}")
    it = (nlines + nthreads - 1) // nthreads
    for k in range(it):
        e.I(f"v_add_u32 v{vt}, {k*nthreads}, v{vtid}")
        e.I(f"v_cmp_gt_u32 vcc, s47, v{vt}")
        e.I(f"v_add_u32 v{vt}, s46, v{vt}")
        e.I(f"v_and_b32 v{vt+1}, 1, v{vt}")
        e.I(f"v_lshrrev_b32 v{vt}, 1, v{vt}")
        e.I(f"v_lshlrev_b32 v{vt}, 9, v{vt}")
        e.I(f"v_lshl_add_u32 v{vt}, v{vt+1}, 7, v{vt}")
        e.I(f"v_cndmask_b32 v{vt}, 2.0, v{vt}, vcc")
        e.I(f"buffer_load_dword v{vt+2}, v{vt}, s[{srdx}:{srdx+3}], 0 offen offset:{half*256}")
    return it

STV, TIDV = 127, 126
def stamp(e, c, slot, ins="s_memrealtime"):
    if not c.stamps: return
    e.I(f"{ins} s[90:91]")
    e.I("s_waitcnt lgkmcnt(0)")
    e.I(f"v_writelane_b32 v{STV}, s90, {slot}")

def stamp_store(e, c, vtmp):
    if not c.stamps: return
    e.I(f"v_lshrrev_b32 v{vtmp}, 6, v{TIDV}")
    e.I(f"s_lshl_b32 s90, s2, 4")
    e.I(f"v_add_u32 v{vtmp}, s90, v{vtmp}")
    e.I(f"v_lshlrev_b32 v{vtmp}, 7, v{vtmp}")
    e.I(f"v_and_b32 v{vtmp+1}, 63, v{TIDV}")
    e.I(f"v_lshl_add_u32 v{vtmp}, v{vtmp+1}, 2, v{vtmp}")
    e.I(f"v_cmp_gt_u32 vcc, 32, v{vtmp+1}")
    e.I(f"v_cndmask_b32 v{vtmp}, 2.0, v{vtmp}, vcc")
    e.I(f"s_mov_b32 s90, {STAMPOFF}")
    e.I(f"buffer_store_dword v{STV}, v{vtmp}, s[8:11], s90 offen")

def kernel_header(e, name):
    e.raw(f".globl {name}")
    e.raw(".p2align 8")
    e.raw(f".type {name},@function")
    e.raw(f"{name}:")
    e.hist = []

def kd(name, nv, ns):
    return f""".amdhsa_kernel {name}
  .amdhsa_next_free_vgpr {nv}
  .amdhsa_next_free_sgpr {ns}
  .amdhsa_accum_offset {(nv+3)//4*4}
  .amdhsa_group_segment_fixed_size 0
  .amdhsa_kernarg_size 96
  .amdhsa_user_sgpr_count 2
  .amdhsa_user_sgpr_kernarg_segment_ptr 1
  .amdhsa_system_sgpr_workgroup_id_x 1
  .amdhsa_float_denorm_mode_32 3
.end_amdhsa_kernel
"""

def path_of(jp, blk):
    if blk == 0: return (0, 0, 1) if jp == 0 else (2, jp, 1)
    k = blk - 1
    if jp == 0: return (3, 1 + k, 1)
    j = jp - 1
    if j == k: return (1, 0, 1)
    i = 3 - j - k
    return (4, 1 + i, 1 if k == (j + 1) % 3 else -1)

class Lay: pass

def spin(e, tag, vdst, vaddr, off, need, scnt, sval, sleep=None, bound="0x400000"):
    I = e.I
    I(f"s_mov_b32 s{scnt}, 0")
    e.label(f"L_sp{tag}")
    I(f"ds_read_b32 v{vdst}, v{vaddr} offset:{off}")
    I("s_waitcnt lgkmcnt(0)")
    I(f"v_readfirstlane_b32 s{sval}, v{vdst}")
    I(f"s_add_u32 s{scnt}, s{scnt}, 1")
    I(f"s_cmp_ge_u32 s{sval}, {need}")
    I(f"s_cbranch_scc1 L_sp{tag}_ok")
    if sleep: I(f"s_sleep {sleep}")
    I(f"s_cmp_lt_u32 s{scnt}, {bound}")
    I(f"s_cbranch_scc1 L_sp{tag}")
    e.label(f"L_sp{tag}_ok")

def tag_bad(e, dst, r, tmp, odd):
    I = e.I
    I(f"v_xor_b32 v{tmp}, s87, v{r}")
    I(f"v_xor_b32 v{dst}, s86, v{r+1}")
    I(f"v_lshrrev_b32 v{tmp}, 24, v{tmp}")
    I(f"v_or_b32 v{dst}, v{dst}, v{tmp}")
    I(f"v_xor_b32 v{tmp}, s3, v{r+3}")
    I(f"v_lshrrev_b32 v{tmp}, 12, v{tmp}")
    I(f"v_cndmask_b32 v{dst}, v{dst}, v{tmp}, {odd}")

def gen_main(e, c):
    L = Lay()
    CAP = c.cap
    NWG = c.nwg
    BOFF = CAP + 64
    HIST, HIST2, CUR2, CNT = 0, 256, 512, 768
    NEXT, DONE, GDONE, BSYNC, BREADY, TOTB = CNT, CNT + 16, CNT + 64, CNT + 96, CNT + 100, CNT + 104
    HISTB, HIST2B, CUR2B, INFO, NONCE = 1024, 1280, 1536, 1792, 2048
    RAW = 2176
    T = (RAW + 2 * BOFF * 16 + 255) // 256 * 256
    WRAD = T + NODES * 1024
    SCR = WRAD + 16384
    H1 = WRAD
    TI = SCR
    CEB = RAW + BOFF * 16
    SSTR, PL1, OSC = 2368, 1056, 2080
    lds = max(SCR + 12 * SSTR, T + 64 * 1024)
    assert lds <= 163840 and 2 * BOFF >= 3200 + 64, lds
    c.lds = lds
    kernel_header(e, KNAME)
    I = e.I
    wsbytes = (32 << 20) if c.stamps else WSBYTES
    sf, rf, lf = c.st_flags, c.rec_flags, c.ld_flags
    ODD = "s[26:27]"
    I(f"s_cmp_ge_u32 s2, {NWG}")
    I("s_cbranch_scc1 L_end")
    if c.stamps:
        I(f"v_mov_b32 v{STV}, 0")
        I(f"v_mov_b32 v{TIDV}, v0")
    stamp(e, c, 0)
    stamp(e, c, 26, "s_memtime")
    I("s_load_dwordx8 s[32:39], s[0:1], 0")
    I("s_load_dwordx8 s[40:47], s[0:1], 32")
    if NWG > NCH:
        I(f"s_cmp_lt_u32 s2, {NCH}")
        I("s_cselect_b32 s51, 800, 0")
    else:
        I("s_movk_i32 s51, 800")
    I("s_mul_i32 s48, s2, 800")
    I("v_add_u32 v3, s48, v0")
    I("v_cmp_gt_u32 vcc, s51, v0")
    I("v_lshlrev_b32 v26, 4, v3")
    I("v_lshlrev_b32 v27, 5, v3")
    I("v_mul_u32_u24 v3, 24, v3")
    I("s_and_saveexec_b64 s[26:27], vcc")
    I("s_cbranch_execz L1_noload")
    I("s_waitcnt lgkmcnt(0)")
    l2 = lf if c.ld2_flags is None else c.ld2_flags
    I(f"global_load_dwordx4 v[4:7], v26, s[40:41] {l2}")
    I(f"global_load_dwordx4 v[8:11], v26, s[38:39] {l2}")
    I(f"global_load_dwordx4 v[12:15], v27, s[36:37] {lf}")
    I(f"global_load_dwordx4 v[16:19], v27, s[36:37] offset:16 {lf}")
    I(f"global_load_dwordx4 v[20:23], v3, s[34:35] {lf}")
    I(f"global_load_dwordx2 v[24:25], v3, s[34:35] offset:16 {lf}")
    e.label("L1_noload")
    I("s_mov_b64 exec, -1")
    if c.codepf and c.codeearly:
        I("s_getpc_b64 s[52:53]")
        I(f"s_mov_b32 s54, {c.codepf*1024}")
        I("s_mov_b32 s55, 0x20000")
        I("v_subrev_u32 v72, 768, v0")
        I("v_lshlrev_b32 v72, 7, v72")
        I("s_cmp_lg_u64 vcc, -1")
        I("s_cbranch_scc0 L1_nocpf")
        I("buffer_load_dword v73, v72, s[52:55], 0 offen")
        e.label("L1_nocpf")
    I("s_load_dwordx4 s[80:83], s[0:1], 72")
    I("s_load_dwordx2 s[84:85], s[0:1], 88")
    I("v_lshlrev_b32 v1, 4, v0")
    I("v_lshlrev_b32 v2, 5, v0")
    I("v_readfirstlane_b32 s21, v0")
    I("s_lshr_b32 s21, s21, 6")
    I("s_waitcnt lgkmcnt(0)")
    if c.addtid:
        srd(e, 4, 32, N * 512, w1=f"{16 << 16}", w3=c.tidw3)
    else:
        srd(e, 4, 32, N * 512)
    srd(e, 8, 84, wsbytes)
    srd(e, 12, 80, N * 512)
    srd(e, 16, 42, 2560)
    srd(e, 68, 44, 16384)
    srd(e, 72, 46, 24576)
    srd(e, 76, 82, 256)
    I("s_and_b32 s20, s2, 7")
    I("s_lshr_b32 s31, s2, 3")
    if NWG == 250:
        I("s_min_u32 s22, s20, 2")
        I("s_mul_i32 s20, s20, 31")
        I("s_add_u32 s20, s20, s22")
    else:
        I("s_lshl_b32 s20, s20, 5")
    I("s_add_u32 s20, s20, s31")
    I("s_mov_b32 s22, 0")
    I(f"s_movk_i32 s23, {NCH}")
    I("s_mov_b32 s24, 1")
    I("s_mov_b32 s26, 0xaaaaaaaa")
    I("s_mov_b32 s27, 0xaaaaaaaa")
    I("s_mov_b32 s28, 0x05040100")
    I("s_mov_b32 s29, 0x07060302")
    I("s_mov_b32 s30, 0xffff0000")
    I(f"s_mul_i32 s51, s2, {CSTRIDE}")
    I("s_cmp_ge_u32 s21, 13")
    I("s_cbranch_scc1 L1_aux")
    I(f"s_mov_b32 s46, {H1}")
    I("v_lshl_add_u32 v40, v0, 2, s46")
    I("v_mov_b32 v41, 0")
    I("v_mov_b32 v42, 1")
    I(f"s_movk_i32 s49, {RAW+PAYOFF}")
    I("s_mov_b32 s50, 0x05040302")
    I(f"s_mov_b32 s45, {(TI + 8 - 8*H1) & 0xffffffff}")
    if NWG == 250:
        I("s_mov_b32 s48, -25")
        I("s_movk_i32 s47, 249")
    else:
        I("s_movk_i32 s47, 6249")
        I("s_movk_i32 s48, -6250")
        I("s_mov_b32 s44, 1600210")
        I("v_mov_b32 v43, 65532")
    I("s_cmp_ge_u32 s21, 8")
    I("s_cbranch_scc1 L1_nz")
    I("ds_write_b32 v40, v41")
    I("s_waitcnt lgkmcnt(0)")
    e.label("L1_nz")
    I("s_barrier")
    I("s_and_b64 exec, exec, vcc")
    I("s_waitcnt vmcnt(5)")
    stamp(e, c, 1)
    R4 = range(4)
    if NWG == 250:
        for i in R4: I(f"v_mul_u32_u24 v{44+i}, 0x147b, v{4+i}")
        for i in R4: I(f"v_lshrrev_b32 v{44+i}, 17, v{44+i}")
        for i in R4: I(f"v_cmp_lt_u32 s[{32+2*i}:{33+2*i}], s47, v{44+i}")
        for i in R4: I(f"v_cndmask_b32 v{36+i}, 0, 1, s[{32+2*i}:{33+2*i}]")
        for i in R4:
            I(f"v_sub_u32 v{48+i}, v{44+i}, v{36+i}")
            I(f"v_mad_u32_u24 v{44+i}, v{36+i}, 6, v{44+i}")
        for i in R4:
            I(f"v_mad_i32_i24 v{4+i}, v{48+i}, s48, v{4+i}")
            I(f"v_lshl_add_u32 v{44+i}, v{44+i}, 2, s46")
    else:
        for i in R4: I(f"v_cmp_lt_u32 s[{32+2*i}:{33+2*i}], s47, v{4+i}")
        for i in R4: I(f"v_cndmask_b32 v{36+i}, 0, 1, s[{32+2*i}:{33+2*i}]")
        for i in R4: I(f"v_mad_i32_i24 v{4+i}, v{36+i}, s48, v{4+i}")
        for i in R4: I(f"v_mul_u32_u24 v{44+i}, 0xa7c, v{4+i}")
        for i in R4: I(f"v_lshrrev_b32 v{44+i}, 16, v{44+i}")
        for i in R4: I(f"v_mad_u32_u24 v{48+i}, v{44+i}, s44, v43")
        for i in R4:
            I(f"v_lshrrev_b32 v{48+i}, 16, v{48+i}")
            I(f"v_mad_u32_u24 v{4+i}, v{36+i}, 25, v{4+i}")
        for i in R4:
            I(f"v_sub_u32 v{4+i}, v{4+i}, v{48+i}")
            I(f"v_lshl_add_u32 v{44+i}, v{36+i}, 8, v{44+i}")
        for i in R4: I(f"v_lshl_add_u32 v{44+i}, v{44+i}, 2, s46")
    for i in R4: I(f"ds_add_rtn_u32 v{36+i}, v{44+i}, v42")
    for i in R4: I(f"v_lshl_add_u32 v{48+i}, v{44+i}, 3, s45")
    for i in R4: I(f"v_lshlrev_b32 v{4+i}, 2, v{4+i}")
    I("s_waitcnt lgkmcnt(0)")
    I("s_barrier")
    for i in R4: I(f"v_min_u32 v{28+i}, {KIN}, v{36+i}")
    for i in R4: I(f"v_add_u32 v{48+i}, v{48+i}, v{28+i}")
    I("s_cmp_eq_u32 s21, 0")
    I("s_cbranch_scc1 L1_scan")
    for i in R4: I(f"ds_write_b8 v{48+i}, v{4+i}")
    I("s_branch L1_noscan")
    e.label("L1_scan")
    I("v_add_u32 v60, s46, v2")
    I("ds_read_b128 v[52:55], v60")
    I("ds_read_b128 v[56:59], v60 offset:16")
    I("s_waitcnt lgkmcnt(0)")
    I("v_mov_b32 v64, 0")
    I("v_mov_b32 v65, v52")
    for k in range(2, 8):
        I(f"v_add_u32 v{64+k}, v{63+k}, v{51+k}")
    I("v_add_u32 v61, v71, v59")
    I("v_max3_u32 v63, v52, v53, v54")
    I("v_max3_u32 v63, v63, v55, v56")
    I("v_max3_u32 v63, v63, v57, v58")
    I("v_max_u32 v63, v63, v59")
    I(f"v_cmp_lt_u32 s[42:43], {KIN}, v63")
    I("v_mov_b32 v62, v61")
    scan64(e, 62)
    I("v_sub_u32 v62, v62, v61")
    for k in range(8):
        I(f"v_add_u32 v{64+k}, v{64+k}, v62")
    I("ds_write_b128 v60, v[64:67] offset:2048")
    I("ds_write_b128 v60, v[68:71] offset:2064")
    I("s_cmp_lg_u64 s[42:43], 0")
    I("s_cselect_b32 s42, 1, 0")
    I("v_mov_b32 v63, s42")
    I(f"ds_write_b32 v41, v63 offset:{NONCE+8}")
    for i in R4: I(f"ds_write_b8 v{48+i}, v{4+i}")
    I("s_waitcnt lgkmcnt(4)")
    e.label("L1_noscan")
    I("s_barrier")
    for i in R4: I(f"ds_read_b32 v{44+i}, v{44+i} offset:2048")
    I(f"ds_read_b32 v28, v41 offset:{NONCE+8}")
    I("s_waitcnt lgkmcnt(0)")
    I("v_readfirstlane_b32 s42, v28")
    for i in R4:
        I(f"v_add_u32 v{36+i}, v{36+i}, v{44+i}")
        I(f"v_lshl_add_u32 v{44+i}, v{36+i}, 4, s49")
    I("s_cmp_eq_u32 s42, 0")
    I("s_cbranch_scc1 L1_nokeys")
    for i in R4:
        I(f"ds_write_b8 v{36+i}, v{4+i} offset:{RAW+KEYOFF}")
    e.label("L1_nokeys")
    I("s_waitcnt vmcnt(2)")
    for i in R4:
        I(f"ds_write_b64 v{44+i}, v[{12+2*i}:{13+2*i}]")
    I("s_waitcnt vmcnt(1)")
    I("v_mov_b32 v28, v20")
    I("v_perm_b32 v29, v8, v21, s28")
    I("ds_write_b64 v44, v[28:29] offset:8")
    I("v_alignbit_b32 v30, v22, v21, 16")
    I("v_perm_b32 v31, v9, v22, s50")
    I("ds_write_b64 v45, v[30:31] offset:8")
    I("s_waitcnt vmcnt(0)")
    stamp(e, c, 2)
    I("v_mov_b32 v32, v23")
    I("v_perm_b32 v33, v10, v24, s28")
    I("ds_write_b64 v46, v[32:33] offset:8")
    I("v_alignbit_b32 v34, v25, v24, 16")
    I("v_perm_b32 v35, v11, v25, s50")
    I("ds_write_b64 v47, v[34:35] offset:8")
    I("s_mov_b64 exec, -1")
    I("s_waitcnt lgkmcnt(0)")
    I("s_branch L1_copy")
    e.label("L1_aux")
    I("v_subrev_u32 v64, 832, v0")
    I("v_lshlrev_b32 v65, 4, v64")
    if c.tlbpf:
        I("v_and_b32 v74, 63, v0")
        I(f"s_mov_b32 s42, {WSBYTES // 64 // 128 * 128}")
        I("v_mul_u32_u24 v75, s42, v74")
        I(f"s_mov_b32 s42, {N * 512 // 64 // 128 * 128}")
        I("v_mul_u32_u24 v74, s42, v74")
        I("s_cmp_lg_u32 s21, 14")
        I("s_cbranch_scc1 L1_notlb")
        if c.tlbpf & 1: I("buffer_load_dword v76, v75, s[8:11], 0 offen")
        if c.tlbpf & 2: I("buffer_load_dword v77, v74, s[4:7], 0 offen")
        if c.tlbpf & 4: I("buffer_load_dword v78, v74, s[12:15], 0 offen")
        e.label("L1_notlb")
    if c.codepf and not c.codeearly:
        I("s_getpc_b64 s[40:41]")
        e.label("L_cpf")
        I("s_mov_b32 s42, L_codeend-L_cpf")
        I("s_mov_b32 s43, 0x20000")
        I("v_lshlrev_b32 v72, 7, v64")
        I("buffer_load_dword v73, v72, s[40:43], 0 offen")
    I("s_cmp_lg_u32 s21, 15")
    I("s_cbranch_scc1 L1_notag")
    I("s_cmp_lg_u32 s2, 0")
    I("s_cbranch_scc1 L1_notag")
    I("s_memrealtime s[44:45]")
    I("s_waitcnt lgkmcnt(0)")
    I("s_and_b32 s45, s45, 0x7f")
    I("s_or_b32 s45, s45, 0x80")
    I("s_lshl_b32 s45, s45, 24")
    I("v_mov_b32 v68, s44")
    I("v_mov_b32 v69, s45")
    I("s_mov_b64 exec, 1")
    I("buffer_store_dwordx2 v[68:69], off, s[76:79], 0 sc1")
    I("s_mov_b64 exec, -1")
    e.label("L1_notag")
    I("s_cmp_lg_u32 s21, 13")
    I("s_cbranch_scc1 L1_nozero")
    for k in range(4): I(f"v_mov_b32 v{4+k}, 0")
    I("ds_write_b128 v65, v[4:7]")
    I("ds_write_b128 v65, v[4:7] offset:1024")
    e.label("L1_nozero")
    I("s_barrier"); I("s_barrier"); I("s_barrier")
    I("s_cmp_lg_u32 s21, 15")
    I("s_cbranch_scc1 L1_notag2")
    I("s_mov_b32 s44, 0")
    e.label("L1_tagpoll")
    I("buffer_load_dwordx2 v[68:69], off, s[76:79], 0 sc1")
    I("s_add_u32 s44, s44, 1")
    I("s_waitcnt vmcnt(0)")
    I("v_readfirstlane_b32 s45, v69")
    e.nop(1)
    I("s_cmp_lg_u32 s45, 0")
    I("s_cbranch_scc1 L1_tagok")
    I("s_cmp_lt_u32 s44, 0x100000")
    I("s_cbranch_scc1 L1_tagpoll")
    e.label("L1_tagok")
    I("v_mov_b32 v70, 0")
    I("s_mov_b64 exec, 1")
    I(f"ds_write_b64 v70, v[68:69] offset:{NONCE}")
    I("s_mov_b64 exec, -1")
    e.label("L1_notag2")
    for k in range(8):
        I(f"s_movk_i32 s46, {k*3072}")
        I(f"buffer_load_dwordx4 v[{28+4*k}:{31+4*k}], v65, s[72:75], s46 offen")
    for k in range(6):
        I(f"s_movk_i32 s46, {k*3072}")
        I(f"buffer_load_dwordx4 v[{72+4*k}:{75+4*k}], v65, s[68:71], s46 offen")
    prefetch_x(e, c.pfx_lines, 60, 64, 192, 31, 0, 4)
    I("s_waitcnt lgkmcnt(0)")
    e.flush()
    e.label("L1_copy")
    I("s_barrier")
    stamp(e, c, 3)
    I(f"ds_read_b128 v[8:11], v1 offset:{RAW}")
    I(f"ds_read_b128 v[12:15], v1 offset:{RAW+16384}")
    I(f"v_add_u32 v25, {TI}, v1")
    I(f"ds_read_b128 v[16:19], v1 offset:{RAW+32768}")
    I(f"ds_read_b128 v[20:23], v1 offset:{RAW+49152}")
    I("ds_read_b128 v[100:103], v25")
    I("v_lshrrev_b32 v25, 1, v0")
    I("v_lshlrev_b32 v25, 2, v25")
    I(f"v_add_u32 v25, {H1}, v25")
    I("ds_read2st64_b32 v[104:105], v25 offset0:0 offset1:8")
    I("ds_read_b32 v106, v25 offset:1024")
    I(f"v_mov_b32 v25, {H1+2048+1024}")
    I("ds_read_b32 v98, v25")
    I("v_mov_b32 v25, 0")
    I(f"ds_read_b64 v[96:97], v25 offset:{NONCE}")
    I("v_add_u32 v2, 16384, v1")
    I("v_add_u32 v3, 32768, v1")
    I("v_add_u32 v24, 49152, v1")
    I("s_movk_i32 s48, 328")
    I("v_cmp_gt_u32 s[92:93], s48, v0")
    I("s_waitcnt lgkmcnt(8)")
    I(f"buffer_store_dwordx4 v[8:11], v1, s[8:11], s51 offen {sf}")
    I("s_waitcnt lgkmcnt(7)")
    I(f"buffer_store_dwordx4 v[12:15], v2, s[8:11], s51 offen {sf}")
    I("s_waitcnt lgkmcnt(0)")
    I("v_readfirstlane_b32 s86, v96")
    I("v_readfirstlane_b32 s87, v97")
    I("v_readfirstlane_b32 s88, v98")
    I("v_lshl_or_b32 v104, v104, 12, v105")
    I("v_or_b32 v97, v97, v104")
    I(f"v_cndmask_b32 v100, v97, v100, {ODD}")
    I(f"v_cndmask_b32 v101, v96, v101, {ODD}")
    I("v_lshl_or_b32 v106, v96, 12, v106")
    I(f"v_cndmask_b32 v103, v103, v106, {ODD}")
    I("s_lshl_b32 s3, s86, 12")
    I(f"s_add_u32 s49, s51, {TABOFF}")
    I(f"s_cmp_gt_u32 s88, {(32768-PAYOFF)//16}")
    I("s_cselect_b32 s25, 0, 8")
    stamp(e, c, 4)
    def handoff(tag, mid):
        I("s_waitcnt vmcnt(0)")
        stamp(e, c, 6)
        I("s_barrier")
        I("s_cmp_ge_u32 s21, s25")
        I(f"s_cbranch_scc1 L_noearly{tag}")
        I(f"buffer_store_dwordx4 v[100:103], v1, s[8:11], s49 offen {sf}")
        e.label(f"L_noearly{tag}")
        I(f"buffer_store_dwordx4 v[16:19], v3, s[8:11], s51 offen {sf}")
        I("s_mov_b64 exec, s[92:93]")
        I(f"s_cbranch_execz L_stskip{tag}")
        I(f"buffer_store_dwordx4 v[20:23], v24, s[8:11], s51 offen {sf}")
        e.label(f"L_stskip{tag}")
        I("s_mov_b64 exec, -1")
        mid()
        I("s_waitcnt vmcnt(0) lgkmcnt(0)")
        stamp(e, c, 5)
        I("s_barrier")
        I("s_cmp_lt_u32 s21, s25")
        I(f"s_cbranch_scc1 L_nolate{tag}")
        I(f"buffer_store_dwordx4 v[100:103], v1, s[8:11], s49 offen {sf}")
        e.label(f"L_nolate{tag}")
    I("s_cmp_lt_u32 s21, 4")
    e.branch("s_cbranch_scc1 L2_gemm")

    VLANE, VINFO, VNEXT = 108, 109, 110
    VLOFF, VMASK, VOW, VOR, VSCRW, VTRA, VWR, VL16 = 111, 112, 113, 114, 115, 116, 117, 118
    VT0, VT1, VONE, VSEL = 119, 120, 121, 122
    VJ, VCH, VSEG = 123, 124, 125
    I(f"v_and_b32 v{VLANE}, 63, v0")
    I(f"v_mov_b32 v{VONE}, 1")
    I(f"v_mov_b32 v{VMASK}, s30")
    I(f"v_lshrrev_b32 v{VT1}, 4, v{VLANE}")
    I(f"v_lshlrev_b32 v{VL16}, 4, v{VLANE}")
    if c.addtid:
        I(f"v_and_b32 v{VT0}, 3, v{VLANE}")
        I(f"v_lshlrev_b32 v{VLOFF}, 4, v{VT0}")
    else:
        I(f"v_and_b32 v{VT0}, 15, v{VLANE}")
        I(f"v_lshlrev_b32 v{VLOFF}, 4, v{VT0}")
    I("s_sub_u32 s43, s21, 4")
    I(f"s_mul_i32 s43, s43, {SSTR}")
    I(f"s_add_u32 s43, s43, {SCR}")
    I(f"v_add_u32 v{VSCRW}, s43, v{VL16}")
    I(f"v_lshlrev_b32 v{VOR}, 5, v{VT1}")
    I(f"v_add_u32 v{VOR}, s43, v{VOR}")
    I(f"v_lshlrev_b32 v{VTRA}, 4, v{VT1}")
    I(f"v_bfe_u32 v{VT1}, v{VLANE}, 2, 2")
    I(f"v_lshl_add_u32 v{VTRA}, v{VT1}, 6, v{VTRA}")
    I(f"v_and_b32 v{VT1}, 1, v{VLANE}")
    I(f"v_lshl_add_u32 v{VTRA}, v{VT1}, 3, v{VTRA}")
    I(f"v_bfe_u32 v{VT1}, v{VLANE}, 1, 1")
    I(f"v_mul_u32_u24 v{VT1}, {PL1}, v{VT1}")
    I(f"v_add3_u32 v{VTRA}, v{VTRA}, v{VT1}, s43")
    I(f"v_and_b32 v{VOW}, 32, v{VLANE}")
    I(f"v_and_b32 v{VT1}, 3, v{VLANE}")
    I(f"v_lshl_add_u32 v{VOW}, v{VT1}, 3, v{VOW}")
    I(f"v_bfe_u32 v{VT1}, v{VLANE}, 2, 3")
    I(f"v_add_u32 v{VOW}, v{VOW}, v{VT1}")
    I(f"v_lshlrev_b32 v{VOW}, 2, v{VOW}")
    I(f"v_add_u32 v{VOW}, s43, v{VOW}")
    I(f"v_add_u32 v{VWR}, {WRAD}, v{VL16}")
    I("s_sub_u32 s42, s21, 4")
    I("s_mul_i32 s83, s42, 24")
    I(f"v_and_b32 v{VJ}, 7, v{VLANE}")
    I(f"v_lshrrev_b32 v{VSEG}, 3, v{VLANE}")
    I(f"s_mov_b32 s42, {CSTRIDE}")
    I(f"v_mul_u32_u24 v{VCH}, s42, v{VSEG}")
    I(f"v_lshlrev_b32 v{VSEG}, 5, v{VSEG}")
    I(f"v_add_u32 v{VSEG}, s43, v{VSEG}")
    I(f"v_or_b32 v{VSEL}, 0x0c0c0c00, v{VJ}")
    NP, NW = 3, 3
    I(f"s_mul_i32 s79, s83, {CSTRIDE}")
    for p in range(NP):
        I(f"s_add_u32 s{74+p}, s79, {8*p*CSTRIDE+PAYOFF}")
        I(f"s_add_u32 s{80+p}, s79, {8*p*CSTRIDE+KEYOFF}")
    I("s_mov_b32 s88, s20")
    I("s_mov_b32 s89, 0")
    I(f"s_movk_i32 s48, {HN}")
    def w_stage():
        I("s_cmp_lt_u32 s21, 13")
        I("s_cbranch_scc1 L2_noW")
        I(f"v_add_u32 v65, {T}, v65")
        for k in range(8):
            I(f"ds_write_b128 v65, v[{28+4*k}:{31+4*k}] offset:{16384 + k*3072}")
        for k in range(5):
            I(f"ds_write_b128 v65, v[{72+4*k}:{75+4*k}] offset:{k*3072}")
        I("s_cmp_lg_u32 s21, 13")
        I("s_cbranch_scc1 L2_noW")
        I(f"ds_write_b128 v65, v[92:95] offset:{5*3072}")
        e.label("L2_noW")
    handoff("g", w_stage)
    PAY, KEY, RNK, CNTR, KAD, PAD, X, EN = 0, 36, 45, 54, 57, 60, 64, 72
    MSK = 50
    e.label("L2_g_round")
    I(f"v_lshrrev_b32 v{X}, 1, v{VLANE}")
    I(f"s_sub_u32 s42, {NCH}, s83")
    I("s_min_i32 s42, s42, 24")
    I(f"v_cmp_gt_i32 s[46:47], s42, v{X}")
    I(f"s_mov_b32 s42, {CSTRIDE}")
    I(f"v_mul_u32_u24 v{X+1}, s42, v{X}")
    I(f"v_and_b32 v{X+2}, 16, v{VL16}")
    I(f"v_add_u32 v{X+1}, v{X+1}, v{X+2}")
    I(f"v_cndmask_b32 v{X+1}, 2.0, v{X+1}, s[46:47]")
    I("s_lshl_b32 s43, s88, 5")
    I(f"s_add_u32 s43, s43, {TABOFF}")
    I("s_add_u32 s43, s43, s79")
    I("s_mov_b32 s44, 0")
    I(f"v_lshl_add_u32 v{VT1}, v{VJ}, 4, v{VCH}")
    e.label("L2_poll")
    I(f"buffer_load_dwordx4 v[{EN}:{EN+3}], v{X+1}, s[8:11], s43 offen sc1")
    I("s_add_u32 s44, s44, 1")
    I("s_waitcnt vmcnt(0)")
    tag_bad(e, X+2, EN, X+3, ODD)
    I(f"v_cmp_ne_u32 vcc, 0, v{X+2}")
    e.nop(2)
    I("s_and_b64 vcc, vcc, s[46:47]")
    I("s_cbranch_scc0 L2_poll_ok")
    I(f"s_sleep {c.psleep}")
    I("s_cmp_lt_u32 s44, 0x100000")
    I("s_cbranch_scc1 L2_poll")
    e.label("L2_poll_ok")
    I("s_cmp_lg_u32 s23, 1")
    I("s_cbranch_scc1 L2_nofilter")
    I("s_sub_u32 s42, s22, s83")
    I(f"v_cmp_eq_u32 vcc, s42, v{X}")
    I(f"v_cndmask_b32 v{EN}, 0, v{EN}, vcc")
    e.label("L2_nofilter")
    I(f"ds_write_b128 v{VSCRW}, v[{EN}:{EN+3}]")
    I(f"v_add_u32 v{X+1}, 8, v{VJ}")
    stamp(e, c, 7)
    def msk(p, w): return f"s[{MSK+4*p+2*w}:{MSK+4*p+2*w+1}]" if w < 2 else f"s[{MSK+12+2*p}:{MSK+13+2*p}]"
    def pay(p, w): return f"v[{PAY+12*p+4*w}:{PAY+12*p+4*w+3}]"
    for p in range(NP):
        I(f"ds_read_b128 v[{EN+8*p}:{EN+8*p+3}], v{VSEG} offset:{256*p}")
        I(f"ds_read_b128 v[{EN+8*p+4}:{EN+8*p+7}], v{VSEG} offset:{256*p+16}")
    for p in range(NP):
        en, cnt = EN + 8*p, CNTR + p
        if p == 0: I("s_waitcnt lgkmcnt(0)")
        I(f"v_bfe_u32 v{cnt}, v{en}, 12, 12")
        I(f"v_and_b32 v{PAD+p}, 0xfff, v{en}")
        I(f"v_cmp_lt_u32 {msk(p,0)}, v{VJ}, v{cnt}")
        I(f"v_cmp_lt_u32 {msk(p,1)}, v{X+1}, v{cnt}")
        I(f"v_perm_b32 v{KEY+3*p}, v{en+3}, v{en+2}, v{VSEL}")
        I(f"v_perm_b32 v{KEY+3*p+1}, v{en+5}, v{en+4}, v{VSEL}")
        I(f"v_lshl_add_u32 v{PAD+p}, v{PAD+p}, 4, v{VT1}")
        for w in range(2):
            I(f"s_mov_b64 exec, {msk(p,w)}")
            I(f"s_cbranch_execz L2_nop{p}")
            I(f"ds_add_rtn_u32 v{RNK+3*p+w}, v{KEY+3*p+w}, v{VONE} offset:{HIST}")
            I(f"buffer_load_dwordx4 {pay(p,w)}, v{PAD+p}, s[8:11], s{74+p} offen offset:{128*w} {rf}")
        e.label(f"L2_nop{p}")
        I("s_mov_b64 exec, -1")
    I(f"v_max3_u32 v{VT0}, v{CNTR}, v{CNTR+1}, v{CNTR+2}")
    I(f"v_cmp_lt_u32 vcc, 16, v{VT0}")
    I("s_mov_b32 s25, 0")
    e.nop(1)
    I("s_cmp_eq_u64 vcc, 0")
    I("s_cbranch_scc1 L2_noextraA")
    I("s_mov_b32 s25, 1")
    I(f"v_add_u32 v{X+2}, 16, v{VJ}")
    for p in range(NP):
        en = EN + 8*p
        I(f"v_min_u32 v{X+3}, {KIN}, v{CNTR+p}")
        I(f"v_cmp_lt_u32 {msk(p,2)}, v{X+2}, v{X+3}")
        I(f"v_perm_b32 v{KEY+3*p+2}, v{en+6}, v{en+6}, v{VSEL}")
        I(f"v_sub_u32 v{KAD+p}, v{PAD+p}, v{VCH}")
        I(f"v_lshrrev_b32 v{KAD+p}, 4, v{KAD+p}")
        I(f"v_add_u32 v{KAD+p}, v{KAD+p}, v{VCH}")
        e.flush()
        I(f"s_mov_b64 exec, {msk(p,2)}")
        I(f"ds_add_rtn_u32 v{RNK+3*p+2}, v{KEY+3*p+2}, v{VONE} offset:{HIST}")
        I(f"buffer_load_dwordx4 {pay(p,2)}, v{PAD+p}, s[8:11], s{74+p} offen offset:256 {rf}")
        I("s_mov_b64 exec, -1")

    def extra_count(tag, first, vj, vkad, vcnt, skey, vone, hist, y):
        I(f"v_add_u32 v{y}, {first}, v{vj}")
        I(f"v_add_u32 v{y+1}, {first}, v{vkad}")
        e.label(f"L_xa{tag}")
        I(f"v_cmp_lt_u32 vcc, v{y}, v{vcnt}")
        I("s_and_saveexec_b64 s[44:45], vcc")
        e.branch(f"s_cbranch_execz L_xa{tag}_done")
        I(f"buffer_load_ubyte v{y+2}, v{y+1}, s[8:11], s{skey} offen {rf}")
        I("s_waitcnt vmcnt(0)")
        I(f"ds_add_u32 v{y+2}, v{vone} offset:{hist}")
        I("s_mov_b64 exec, -1")
        I(f"v_add_u32 v{y}, 8, v{y}")
        I(f"v_add_u32 v{y+1}, 8, v{y+1}")
        e.branch(f"s_branch L_xa{tag}")
        e.label(f"L_xa{tag}_done")
        I("s_mov_b64 exec, -1")
    def extra_move(tag, first, vj, vkad, vpad, vcnt, skey, spay, vone, cur, vbase, y, d):
        I(f"v_add_u32 v{y}, {first}, v{vj}")
        I(f"v_add_u32 v{y+1}, {first}, v{vkad}")
        I(f"v_add_u32 v{vpad}, {16*first}, v{vpad}")
        e.label(f"L_xb{tag}")
        I(f"v_cmp_lt_u32 vcc, v{y}, v{vcnt}")
        I("s_and_saveexec_b64 s[44:45], vcc")
        e.branch(f"s_cbranch_execz L_xb{tag}_done")
        I(f"buffer_load_ubyte v{y+2}, v{y+1}, s[8:11], s{skey} offen {rf}")
        I(f"buffer_load_dwordx4 v[{d}:{d+3}], v{vpad}, s[8:11], s{spay} offen {rf}")
        I("s_waitcnt vmcnt(0)")
        I(f"ds_add_rtn_u32 v{y+3}, v{y+2}, v{vone} offset:{cur}")
        I("s_mov_b64 exec, -1")
        I(f"ds_bpermute_b32 v{y+2}, v{y+2}, v{vbase}")
        I("s_waitcnt lgkmcnt(0)")
        I(f"v_add_lshl_u32 v{y+2}, v{y+2}, v{y+3}, 4")
        I("s_mov_b64 exec, vcc")
        I(f"ds_write_b128 v{y+2}, v[{d}:{d+3}] offset:{RAW}")
        I("s_mov_b64 exec, -1")
        I(f"v_add_u32 v{y}, 8, v{y}")
        I(f"v_add_u32 v{y+1}, 8, v{y+1}")
        I(f"v_add_u32 v{vpad}, 128, v{vpad}")
        e.branch(f"s_branch L_xb{tag}")
        e.label(f"L_xb{tag}_done")
        I("s_mov_b64 exec, -1")
    for p in range(NP):
        extra_count(f"a{p}", KIN, VJ, KAD+p, CNTR+p, 80+p, VONE, HIST2, X)
    e.label("L2_noextraA")
    I("s_waitcnt lgkmcnt(0)")
    stamp(e, c, 14)
    I("s_barrier")
    stamp(e, c, 15)
    C1, CT, BS = X + 4, X + 5, X + 6
    I(f"v_lshlrev_b32 v{VT0}, 2, v{VLANE}")
    I(f"ds_read_b32 v{C1}, v{VT0} offset:{HIST}")
    I(f"ds_read_b32 v{CT}, v{VT0} offset:{HIST2}")
    I("s_waitcnt lgkmcnt(0)")
    I(f"v_add_u32 v{CT}, v{C1}, v{CT}")
    I(f"v_mov_b32 v{BS}, v{CT}")
    scan64(e, BS)
    I(f"v_readlane_b32 s46, v{BS}, 63")
    I(f"v_sub_u32 v{BS}, v{BS}, v{CT}")
    I(f"s_cmp_eq_u32 s23, 1")
    I(f"s_cselect_b32 s42, -1, {CAP}")
    for p in range(NP):
        for w in range(2):
            I(f"ds_bpermute_b32 v{KEY+3*p+w}, v{KEY+3*p+w}, v{BS}")
    I(f"v_lshl_or_b32 v{VINFO}, v{CT}, 16, v{BS}")
    I(f"s_cmp_gt_u32 s46, s42")
    I("s_cbranch_scc1 L2_g_overflow")
    I("s_cmp_lg_u32 s21, 5")
    I("s_cbranch_scc1 L2_noinfo")
    I(f"s_mov_b64 exec, {(1 << HN) - 1}")
    I(f"ds_write_b32 v{VT0}, v{VINFO} offset:{INFO}")
    I("s_mov_b64 exec, -1")
    e.label("L2_noinfo")
    I("s_cmp_lg_u32 s21, 4")
    I("s_cbranch_scc1 L2_noguard")
    I("s_lshl_b32 s46, s46, 4")
    for k in range(4): I(f"v_mov_b32 v{EN+k}, 0")
    I(f"v_add_u32 v{VT0}, s46, v{VL16}")
    I(f"ds_write_b128 v{VT0}, v[{EN}:{EN+3}] offset:{RAW}")
    e.label("L2_noguard")
    I("s_waitcnt lgkmcnt(0)")
    for p in range(NP):
        for w in range(2):
            I(f"v_add_lshl_u32 v{KEY+3*p+w}, v{KEY+3*p+w}, v{RNK+3*p+w}, 4")
    stamp(e, c, 27)
    I("s_waitcnt vmcnt(0)")
    stamp(e, c, 9)
    for p in range(NP):
        for w in range(2):
            I(f"s_mov_b64 exec, {msk(p,w)}")
            I(f"ds_write_b128 v{KEY+3*p+w}, {pay(p,w)} offset:{RAW}")
    I("s_mov_b64 exec, -1")
    I("s_cmp_eq_u32 s25, 0")
    I("s_cbranch_scc1 L2_noextraB")
    for p in range(NP):
        I(f"ds_bpermute_b32 v{KEY+3*p+2}, v{KEY+3*p+2}, v{BS}")
    I("s_waitcnt lgkmcnt(0)")
    for p in range(NP):
        I(f"v_add_lshl_u32 v{KEY+3*p+2}, v{KEY+3*p+2}, v{RNK+3*p+2}, 4")
        I(f"s_mov_b64 exec, {msk(p,2)}")
        I(f"ds_write_b128 v{KEY+3*p+2}, {pay(p,2)} offset:{RAW}")
        I("s_mov_b64 exec, -1")
    I(f"v_add_u32 v{BS}, v{BS}, v{C1}")
    for p in range(NP):
        extra_move(f"a{p}", KIN, VJ, KAD+p, PAD+p, CNTR+p, 80+p, 74+p, VONE, CUR2, BS, X, EN)
    e.label("L2_noextraB")
    I("s_waitcnt lgkmcnt(0)")
    stamp(e, c, 28)
    I("s_barrier")
    I(f"ds_read_b32 v{VT0}, v{VL16} offset:{TOTB}")
    I("s_mov_b64 exec, 1")
    I(f"ds_add_rtn_u32 v{VNEXT}, v{VL16}, v{VONE} offset:{NEXT}")
    I("s_mov_b64 exec, -1")
    I("s_waitcnt lgkmcnt(0)")
    I(f"v_readfirstlane_b32 s42, v{VT0}")
    e.nop(1)
    I(f"s_cmp_gt_u32 s42, {CAP}")
    I("s_cbranch_scc1 L2_g_overflow")
    stamp(e, c, 10)
    stamp(e, c, 24, "s_memtime")
    gather_loop(e, c, locals())
    e.label("L2_g_done")
    stamp(e, c, 11)
    stamp(e, c, 25, "s_memtime")
    I("s_cmp_lg_u32 s24, 0")
    e.branch("s_cbranch_scc1 L2_g_exit")
    I("s_add_u32 s89, s89, 1")
    I("s_branch L2_g_slow")
    e.label("L2_g_overflow")
    I("s_mov_b32 s89, 0")
    I("s_mov_b32 s23, 1")
    I("s_movk_i32 s48, 64")
    e.label("L2_g_slow")
    I("s_waitcnt vmcnt(0) lgkmcnt(0)")
    I("s_barrier")
    I("s_lshr_b32 s22, s89, 1")
    I("s_and_b32 s88, s89, 1")
    I("s_lshl_b32 s88, s88, 8")
    I("s_add_u32 s88, s88, s20")
    I(f"s_cmp_eq_u32 s89, {2*NCH-1}")
    I("s_cselect_b32 s24, 1, 0")
    I("s_barrier")
    e.branch("s_branch L2_g_round")
    e.label("L2_g_exit")
    stamp_store(e, c, 90)
    I("s_endpgm")

    e.label("L2_gemm")
    W, G, TA, TF = 0, 40, 104, 108
    X0, X1 = 124, 125
    I("v_and_b32 v104, 63, v0")
    I("v_lshlrev_b32 v105, 4, v104")
    lut = 0
    for jp in range(4):
        for blk in range(4):
            p, i, s = path_of(jp, blk)
            lut |= (p | (8 if s < 0 else 0)) << (4 * (jp * 4 + blk))
    I(f"s_mov_b32 s44, {lut & 0xffffffff}")
    I(f"s_mov_b32 s45, {lut >> 32}")
    for h in range(2):
        I("v_lshrrev_b32 v106, 4, v104")
        I("v_bfe_u32 v107, v104, 3, 1")
        I("v_lshl_add_u32 v106, v106, 2, v107")
        I(f"v_add_lshl_u32 v106, v106, {2*h}, 2")
        I(f"v_lshrrev_b64 v[108:109], v106, s[44:45]")
        I(f"v_and_b32 v106, 7, v108")
        I(f"v_and_b32 v{110+h}, 8, v108")
        I(f"v_lshlrev_b32 v{110+h}, 28, v{110+h}")
        I("v_and_b32 v107, 7, v104")
        I("v_lshlrev_b32 v107, 3, v107")
        I("v_lshl_add_u32 v106, v106, 6, v107")
        I("v_add_u32 v106, s21, v106")
        I(f"v_lshlrev_b32 v{112+h}, 1, v106")
    I("v_mov_b32 v117, v0")
    handoff("m", lambda: None)
    if c.pfx2_pos == 0: prefetch_x(e, c.pfx2_lines, 114, 117, 256, 31, 0, 4, c.pfx_lines)
    WT = 80
    for k in range(4):
        h, qo = k >> 1, (k & 1) * 4
        for d in range(4):
            I(f"buffer_load_ushort v{WT+4*k+d}, v{112+h}, s[16:19], 0 offen offset:{d*640+qo*2}")
    I("v_lshrrev_b32 v106, 4, v104")
    I("v_lshlrev_b32 v106, 10, v106")
    I("v_bfe_u32 v107, v104, 2, 2")
    I("v_lshl_add_u32 v106, v107, 7, v106")
    I("v_and_b32 v107, 3, v104")
    I("v_lshl_add_u32 v106, v107, 3, v106")
    I("s_lshl_b32 s42, s21, 5")
    I(f"s_add_u32 s42, s42, {T}")
    I("v_add_u32 v106, s42, v106")
    for f in range(10):
        I(f"ds_read_b64_tr_b16 v[{W+4*f}:{W+4*f+1}], v106 offset:{f*4096}")
        I(f"ds_read_b64_tr_b16 v[{W+4*f+2}:{W+4*f+3}], v106 offset:{f*4096+512}")
    I("s_lshl_b32 s42, s21, 10")
    I(f"s_add_u32 s43, s42, {WRAD}")
    I("v_add_u32 v105, s43, v105")
    I("s_waitcnt vmcnt(0)")
    for k in range(4):
        h = k >> 1
        for d in range(4):
            I(f"v_lshlrev_b32 v{WT+4*k+d}, 16, v{WT+4*k+d}")
            I(f"v_xor_b32 v{WT+4*k+d}, v{110+h}, v{WT+4*k+d}")
        I(f"ds_write_b128 v105, v[{WT+4*k}:{WT+4*k+3}] offset:{(k>>1)*8192 + (k&1)*4096}")
    I("v_and_b32 v106, 15, v104")
    I("v_lshrrev_b32 v107, 4, v104")
    I(f"v_lshlrev_b32 v{X0}, 2, v104")
    if NWG == 250:
        I(f"s_mul_i32 s42, s20, {HN}")
        I(f"s_movk_i32 s44, {HN}")
    else:
        I("s_mul_i32 s42, s20, 1600210")
        I("s_add_u32 s42, s42, 65532")
        I("s_add_u32 s44, s42, 1600210")
        I("s_lshr_b32 s42, s42, 16")
        I("s_lshr_b32 s44, s44, 16")
        I(f"s_min_u32 s44, s44, {N//2}")
        I("s_sub_u32 s44, s44, s42")
    I("s_lshl_b32 s42, s42, 9")
    I("s_lshl_b32 s43, s21, 5")
    I("s_add_u32 s42, s42, s43")
    I(f"v_lshlrev_b32 v{X1}, 9, v106")
    I(f"v_lshl_add_u32 v{X1}, v107, 3, v{X1}")
    I(f"v_add_u32 v{X1}, s42, v{X1}")
    I(f"v_cmp_le_u32 s[84:85], {HN-16}, v106")
    I(f"s_sub_u32 s43, s44, {48-HN}")
    I("v_cmp_gt_i32 s[50:51], s43, v106")
    I("s_sub_u32 s43, s44, 16")
    I("v_cmp_gt_i32 s[94:95], s43, v106")
    I("v_lshlrev_b32 v108, 10, v106")
    I(f"v_add_u32 v108, {T}, v108")
    I("s_or_b64 s[94:95], s[94:95], s[84:85]")
    for u in (3, 2, 1, 0):
        I(f"v_add_u32 v109, {4*u}, v107")
        I("v_xor_b32 v109, v109, v106")
        I(f"v_lshl_add_u32 v{TF+4+u}, v109, 4, v108")
    I("s_waitcnt lgkmcnt(0)")
    for u in range(4):
        I(f"v_mov_b32 v{TA+u}, v{TF+4+u}")
    I("s_mov_b32 s89, 0")
    NPB = 8
    TB, KA, SJ, KB, RB = 40, 48, 56, 64, 80
    LJ, LCH, LONE, Y = 96, 97, 98, 99
    MB = 52
    def mb(p, w): return f"s[{MB+4*p+2*w}:{MB+4*p+2*w+1}]"
    LA, PA0, PA1, TOA = KB, KB + 1, KB + 2, KB + 3
    I(f"v_lshrrev_b32 v{Y}, 2, v{X0}")
    I("s_lshl_b32 s42, s21, 11")
    I(f"v_lshl_add_u32 v{LA}, v{Y}, 4, s42")
    I(f"v_lshrrev_b32 v{Y+1}, 1, v{Y}")
    I("s_lshl_b32 s43, s21, 5")
    I(f"s_sub_u32 s44, {NCH-128}, s43")
    I(f"v_cmp_gt_i32 s[46:47], s44, v{Y+1}")
    I(f"s_mov_b32 s44, {CSTRIDE}")
    I(f"v_mul_u32_u24 v{Y+1}, s44, v{Y+1}")
    I(f"v_and_b32 v{Y+2}, 16, v{LA}")
    I(f"v_add_u32 v{PA0}, v{Y+1}, v{Y+2}")
    I(f"v_cndmask_b32 v{PA1}, 2.0, v{PA0}, s[46:47]")
    I(f"v_and_b32 v{LJ}, 7, v{Y}")
    I(f"v_lshrrev_b32 v{Y+1}, 3, v{Y}")
    I(f"v_mul_u32_u24 v{LCH}, s44, v{Y+1}")
    I(f"v_lshl_add_u32 v{RB}, v{Y+1}, 5, s42")
    I("s_mul_i32 s38, s43, s44")
    I(f"v_add_u32 v{LCH}, s38, v{LCH}")
    I(f"v_mov_b32 v{LONE}, 1")
    I("s_lshl_b32 s36, s20, 5")
    I(f"s_add_u32 s36, s36, {TABOFF+8192}")
    I("s_add_u32 s36, s36, s38")
    I(f"s_add_u32 s37, s36, {128*CSTRIDE}")
    I("s_lshl_b32 s42, s21, 6")
    I(f"v_add_u32 v{Y}, s42, v{Y}")
    I(f"v_mul_u32_u24 v{Y+1}, 0xaab, v{Y}")
    I(f"v_lshrrev_b32 v{Y+1}, 16, v{Y+1}")
    I(f"v_mul_u32_u24 v{Y+1}, {SSTR-24*32}, v{Y+1}")
    I(f"v_lshl_add_u32 v{TOA}, v{Y}, 5, v{Y+1}")
    I(f"v_add_u32 v{TOA}, {SCR+28}, v{TOA}")
    I(f"s_movk_i32 s42, {NCH}")
    I(f"v_cmp_gt_u32 s[92:93], s42, v{Y}")
    if c.pfx2_pos == 1:
        I("s_mov_b64 s[40:41], s[46:47]")
        prefetch_x(e, c.pfx2_lines, 114, 117, 256, 31, 0, 4, c.pfx_lines)
        I("s_mov_b64 s[46:47], s[40:41]")
    stamp(e, c, 14)
    e.label("L2_m_round")
    I("s_barrier")
    I("s_cmp_eq_u32 s23, 1")
    I("s_cbranch_scc1 L2_m_slowC")
    def pollB_issue():
        I(f"buffer_load_dwordx4 v[{TF+4}:{TF+7}], v{PA0}, s[8:11], s36 offen sc1")
        I(f"buffer_load_dwordx4 v[{TF+8}:{TF+11}], v{PA1}, s[8:11], s37 offen sc1")
    I(f"ds_read_b32 v{TF}, v{X0} offset:{HIST}")
    I(f"ds_read_b32 v{TF+1}, v{X0} offset:{HIST2}")
    I(f"ds_read_b32 v{Y}, v{TOA}")
    I("s_waitcnt lgkmcnt(0)")
    I(f"v_add_u32 v{TF}, v{TF}, v{TF+1}")
    I(f"v_and_b32 v{Y}, 0xfff, v{Y}")
    I(f"v_cndmask_b32 v{Y}, 0, v{Y}, s[92:93]")
    scan64(e, TF)
    scan64(e, Y)
    I(f"v_readlane_b32 s42, v{TF}, 63")
    I(f"v_mov_b32 v{Y+2}, 0")
    I("s_mov_b32 exec_lo, 0")
    I("s_mov_b32 exec_hi, 0x80000000")
    I(f"ds_add_u32 v{Y+2}, v{Y} offset:{TOTB}")
    I("s_mov_b64 exec, -1")
    I(f"s_cmp_gt_u32 s42, {CAP}")
    I("s_cbranch_scc1 L2_m_overflow")
    if c.bearly: pollB_issue()
    I("s_waitcnt lgkmcnt(0)")
    I("s_barrier")
    I(f"ds_read_b32 v{Y}, v{Y+2} offset:{TOTB}")
    SEL = Y + 4
    E2 = [TF, TF + 8]
    I("s_mov_b32 s44, 0")
    I("s_waitcnt lgkmcnt(0)")
    I(f"v_readfirstlane_b32 s42, v{Y}")
    I(f"v_or_b32 v{SEL}, 0x0c0c0c00, v{LJ}")
    I(f"s_cmp_gt_u32 s42, {CAP}")
    I("s_cbranch_scc1 L2_m_overflow")
    stamp(e, c, 10)
    I("s_mov_b32 s34, s42")
    if c.x_nobload: I("s_branch L2_bnoxb")
    if c.bearly: I("s_branch L2_pollB_w")
    e.label("L2_pollB")
    pollB_issue()
    e.label("L2_pollB_w")
    I("s_add_u32 s44, s44, 1")
    I("s_waitcnt vmcnt(0)")
    tag_bad(e, Y, TF+4, Y+1, ODD)
    tag_bad(e, Y+2, TF+8, Y+1, ODD)
    I(f"v_cndmask_b32 v{Y+2}, 0, v{Y+2}, s[46:47]")
    I(f"v_or_b32 v{Y}, v{Y}, v{Y+2}")
    I(f"v_cmp_ne_u32 vcc, 0, v{Y}")
    e.nop(2)
    I("s_cmp_eq_u64 vcc, 0")
    I("s_cbranch_scc1 L2_pollB_ok")
    I(f"s_sleep {c.psleep}")
    I("s_cmp_lt_u32 s44, 0x100000")
    I("s_cbranch_scc1 L2_pollB")
    e.label("L2_pollB_ok")
    stamp(e, c, 7)
    I(f"ds_write_b128 v{LA}, v[{TF+4}:{TF+7}] offset:{CEB}")
    I(f"ds_write_b128 v{LA}, v[{TF+8}:{TF+11}] offset:{CEB+1024}")
    def boff(p): return ((128 if p >= 4 else 0) + 8 * (p & 3)) * CSTRIDE
    def ent_read(p):
        r = E2[p & 1]
        I(f"ds_read_b128 v[{r}:{r+3}], v{RB} offset:{CEB+256*p}")
        I(f"ds_read_b64 v[{r+4}:{r+5}], v{RB} offset:{CEB+256*p+16}")
    ent_read(0); ent_read(1)
    I(f"v_add_u32 v{Y+1}, 8, v{LJ}")
    for p in range(NPB):
        r = E2[p & 1]
        I(f"s_waitcnt lgkmcnt({2 if p < NPB-1 else 0})")
        I(f"v_and_b32 v{SJ+p}, 0xfff, v{r}")
        I(f"v_bfe_u32 v{TB+p}, v{r}, 12, 12")
        I(f"v_perm_b32 v{KB+2*p}, v{r+3}, v{r+2}, v{SEL}")
        I(f"v_perm_b32 v{KB+2*p+1}, v{r+5}, v{r+4}, v{SEL}")
        if p + 2 < NPB: ent_read(p + 2)
        I(f"v_add_u32 v{SJ+p}, v{SJ+p}, v{LJ}")
        I(f"v_cmp_lt_u32 {mb(p,0)}, v{LJ}, v{TB+p}")
        I(f"v_cmp_lt_u32 {mb(p,1)}, v{Y+1}, v{TB+p}")
        I(f"v_lshl_add_u32 v{SJ+p}, v{SJ+p}, 4, v{LCH}")
    P0 = [TF, TF+4, TF+8, TF+12]
    def pay_issue(p, w, reg):
        I(f"s_mov_b32 s42, {boff(p)+PAYOFF}")
        I("s_mov_b64 exec, -1")
        I(f"v_cndmask_b32 v{Y+2+w}, 2.0, v{SJ+p}, {mb(p,w)}")
        I(f"buffer_load_dwordx4 v[{reg}:{reg+3}], v{Y+2+w}, s[8:11], s42 offen offset:{128*w} {rf}")
    for k in range(4): pay_issue(k >> 1, k & 1, P0[k])
    I(f"v_max3_u32 v{Y}, v{TB}, v{TB+1}, v{TB+2}")
    I(f"v_max3_u32 v{Y}, v{Y}, v{TB+3}, v{TB+4}")
    I(f"v_max3_u32 v{Y}, v{Y}, v{TB+5}, v{TB+6}")
    I(f"v_max_u32 v{Y}, v{Y}, v{TB+7}")
    I(f"v_cmp_lt_u32 vcc, 16, v{Y}")
    I(f"v_mov_b32 v{Y+1}, v{RB}")
    for p in range(NPB):
        for w in range(2):
            I(f"s_mov_b64 exec, {mb(p,w)}")
            I(f"ds_add_rtn_u32 v{RB+2*p+w}, v{KB+2*p+w}, v{LONE} offset:{HISTB}")
    I("s_mov_b64 exec, -1")
    I("s_cmp_lg_u64 vcc, 0")
    I("s_cselect_b32 s35, 1, 0")
    I("s_cbranch_scc0 L2_bnoxa")
    def w2mask(p):
        I(f"v_min_u32 v{Y+2}, {KIN}, v{TB+p}")
        I(f"v_add_u32 v{Y+3}, 16, v{LJ}")
        I(f"v_cmp_lt_u32 vcc, v{Y+3}, v{Y+2}")
        I("s_and_saveexec_b64 s[44:45], vcc")
    for p in range(NPB):
        w2mask(p)
        e.branch(f"s_cbranch_execz L2_bw2a{p}")
        I(f"ds_read_b32 v{KA+p}, v{Y+1} offset:{CEB+256*p+24}")
        I("s_waitcnt lgkmcnt(0)")
        I(f"v_perm_b32 v{KA+p}, v{KA+p}, v{KA+p}, v{SEL}")
        I(f"ds_add_rtn_u32 v{Y+2}, v{KA+p}, v{LONE} offset:{HISTB}")
        I("s_waitcnt lgkmcnt(0)")
        I(f"v_lshl_or_b32 v{KA+p}, v{Y+2}, 8, v{KA+p}")
        e.label(f"L2_bw2a{p}")
        I("s_mov_b64 exec, -1")
    def key_addr(p, dst):
        I(f"v_sub_u32 v{dst}, v{SJ+p}, v{LCH}")
        I(f"v_lshrrev_b32 v{dst}, 4, v{dst}")
        I(f"v_add_u32 v{dst}, v{dst}, v{LCH}")
    for p in range(NPB):
        I(f"s_mov_b32 s42, {boff(p)+KEYOFF}")
        key_addr(p, Y+3)
        extra_count(f"b{p}", KIN, LJ, Y+3, TB+p, 42, LONE, HIST2B, Y)
    e.label("L2_bnoxa")
    I("s_mov_b64 exec, 1")
    I(f"v_mov_b32 v{Y+2}, 0")
    I("s_waitcnt lgkmcnt(0)")
    I(f"ds_add_u32 v{Y+2}, v{LONE} offset:{BSYNC}")
    I("s_mov_b64 exec, -1")
    I(f"v_mov_b32 v{Y+2}, 0")
    spin(e, "bs", Y, Y+2, BSYNC, 4, 44, 42)
    BB = Y + 4
    I(f"ds_read_b32 v{Y}, v{X0} offset:{HISTB}")
    I(f"ds_read_b32 v{Y+1}, v{X0} offset:{HIST2B}")
    I("s_waitcnt lgkmcnt(0)")
    I(f"v_add_u32 v{Y+1}, v{Y}, v{Y+1}")
    I(f"v_mov_b32 v{BB}, v{Y+1}")
    scan64(e, BB)
    I(f"v_sub_u32 v{BB}, v{BB}, v{Y+1}")
    I(f"v_add_u32 v{BB}, {BOFF}, v{BB}")
    for k in range(2*NPB):
        I(f"ds_bpermute_b32 v{KB+k}, v{KB+k}, v{BB}")
    I("s_cmp_lg_u32 s21, 0")
    I("s_cbranch_scc1 L2_bnoinfo")
    I(f"v_lshl_or_b32 v{Y+1}, v{Y+1}, 16, v{BB}")
    I(f"s_mov_b32 exec_lo, {((1 << 32) - (1 << HN))}")
    I(f"ds_write_b32 v{X0}, v{Y+1} offset:{INFO}")
    I("s_mov_b64 exec, -1")
    e.label("L2_bnoinfo")
    I("s_waitcnt lgkmcnt(0)")
    for k in range(2*NPB):
        I(f"v_add_lshl_u32 v{KB+k}, v{KB+k}, v{RB+k}, 4")
    I(f"v_mov_b32 v{LONE}, v{Y}")
    regs = P0 + [RB, RB+4, RB+8, RB+12]
    for k in range(4, 8): pay_issue(k >> 1, k & 1, regs[k])
    for k in range(16):
        I(f"s_waitcnt vmcnt({min(7, 15-k)})")
        I(f"s_mov_b64 exec, {mb(k>>1, k&1)}")
        I(f"ds_write_b128 v{KB+k}, v[{regs[k&7]}:{regs[k&7]+3}] offset:{RAW}")
        if k + 8 < 16: pay_issue((k+8) >> 1, (k+8) & 1, regs[k&7])
    I("s_mov_b64 exec, -1")
    I("s_cmp_eq_u32 s35, 0")
    I("s_cbranch_scc1 L2_bnoxb")
    for p in range(NPB):
        I(f"v_and_b32 v{Y}, 0xff, v{KA+p}")
        I(f"ds_bpermute_b32 v{Y}, v{Y}, v{BB}")
        w2mask(p)
        e.branch(f"s_cbranch_execz L2_bw2b{p}")
        I(f"s_mov_b32 s42, {boff(p)+PAYOFF}")
        I(f"buffer_load_dwordx4 v[{TF}:{TF+3}], v{SJ+p}, s[8:11], s42 offen offset:256 {rf}")
        I(f"v_lshrrev_b32 v{KA+p}, 8, v{KA+p}")
        I("s_waitcnt vmcnt(0) lgkmcnt(0)")
        I(f"v_add_lshl_u32 v{Y}, v{Y}, v{KA+p}, 4")
        I(f"ds_write_b128 v{Y}, v[{TF}:{TF+3}] offset:{RAW}")
        e.label(f"L2_bw2b{p}")
        I("s_mov_b64 exec, -1")
        I("s_waitcnt lgkmcnt(0)")
    I(f"v_add_u32 v{BB}, v{BB}, v{LONE}")
    I(f"v_mov_b32 v{LONE}, 1")
    for p in range(NPB):
        I(f"s_mov_b32 s42, {boff(p)+KEYOFF}")
        I(f"s_mov_b32 s43, {boff(p)+PAYOFF}")
        key_addr(p, KA+p)
        extra_move(f"b{p}", KIN, LJ, KA+p, SJ+p, TB+p, 42, 43, LONE, CUR2B, BB, Y, TF)
    e.label("L2_bnoxb")
    I("s_waitcnt lgkmcnt(0)")
    for k in range(64):
        I(f"v_mov_b32 v{G+k}, 0")
    I("s_cmp_lg_u32 s21, 1")
    I("s_cbranch_scc1 L2_bnoguard")
    I(f"s_add_u32 s42, s34, {BOFF}")
    I("s_lshl_b32 s42, s42, 4")
    I(f"v_lshl_add_u32 v{TF}, v{X0}, 2, s42")
    I(f"ds_write_b128 v{TF}, v[{G}:{G+3}] offset:{RAW}")
    I("s_waitcnt lgkmcnt(0)")
    e.label("L2_bnoguard")
    I(f"v_mov_b32 v{TF}, 1")
    I("s_mov_b64 exec, 1")
    I(f"ds_add_u32 v{G}, v{TF} offset:{BREADY}")
    I("s_mov_b64 exec, -1")
    stamp(e, c, 13)
    I("s_branch L2_m_tiles")
    e.label("L2_m_slowC")
    I("s_barrier")
    e.label("L2_m_tiles")
    for h in range(2):
        for t in ((0, 3, 1, 2) if h else range(4)):
            need = 16 if t < 3 else NODES - 48
            last = (h, t) == (1, 2)
            if last and c.split: need = 32
            I(f"v_mov_b32 v{TF}, 0")
            spin(e, f"t{h}{t}", TF+1, TF, DONE + 16*h + 4*t, need, 43, 42, sleep=(1 if last else c.sleep))
            stamp(e, c, 16 + 4*h + t)
            srcs = [t] + ([0] if last and c.split else [])
            steps = [(tt, ks) for tt in srcs for ks in range(16)]
            def mf(ks, r):
                jp, blk = ks >> 2, 2 * h + ((ks >> 1) & 1)
                p, i, sg = path_of(jp, blk)
                f = p * 2 + (ks & 1)
                g = G + 16 * t + 4 * i
                I(f"v_mfma_f32_16x16x32_bf16 v[{g}:{g+3}], v[{W+4*f}:{W+4*f+3}], v[{r}:{r+3}], v[{g}:{g+3}]")
            def rd(n, r):
                tt, ks = steps[n]
                I(f"ds_read_b128 v[{r}:{r+3}], v{TA+(ks&3)} offset:{tt*16384 + (ks>>2)*256}")
            for n in range(4): rd(n, TF + 4*n)
            for n in range(len(steps)):
                I(f"s_waitcnt lgkmcnt({min(3, len(steps)-1-n)})")
                mf(steps[n][1], TF + 4*(n&3))
                if n + 4 < len(steps): rd(n + 4, TF + 4*(n&3))
            if (h, t) == (1, 0) and c.split:
                I(f"v_mov_b32 v{TF}, 0")
                I(f"v_mov_b32 v{TF+1}, 1")
                I("s_mov_b64 exec, 1")
                I(f"ds_add_u32 v{TF}, v{TF+1} offset:{GDONE + 16}")
                I("s_mov_b64 exec, -1")
            if h == 0:
                I(f"v_mov_b32 v{TF}, 0")
                I(f"v_mov_b32 v{TF+1}, 1")
                I("s_mov_b64 exec, 1")
                I(f"ds_add_u32 v{TF}, v{TF+1} offset:{GDONE + 4*t}")
                I("s_mov_b64 exec, -1")
            else:
                I("s_cmp_eq_u32 s24, 0")
                e.branch(f"s_cbranch_scc1 L2_nofin{t}")
                g = G + 16 * t
                I("s_mov_b32 s42, 0xbfb8aa3b")
                for r in range(4): I(f"v_mul_f32 v{TF+r}, s42, v{g+r}")
                for r in range(4): I(f"v_exp_f32 v{TF+r}, v{TF+r}")
                for r in range(4): I(f"v_add_f32 v{TF+r}, 1.0, v{TF+r}")
                for r in range(4): I(f"v_rcp_f32 v{TF+r}, v{TF+r}")
                for i in range(1, 4):
                    for r in range(4): I(f"v_mul_f32 v{g+4*i+r}, v{g+4*i+r}, v{TF+r}")
                for i in range(4):
                    I(f"v_cvt_pk_bf16_f32 v{TF+4+2*i}, v{g+4*i}, v{g+4*i+1}")
                    I(f"v_cvt_pk_bf16_f32 v{TF+5+2*i}, v{g+4*i+2}, v{g+4*i+3}")
                I(f"s_mov_b32 s42, {t*16*512 + ((N//2-HN)*512 if t >= 2 else 0)}")
                va = X1
                if t == 1:
                    va = TF
                    I(f"v_add_u32 v{TF}, {(N//2-HN)*512}, v{X1}")
                    I(f"v_cndmask_b32 v{TF}, v{X1}, v{TF}, s[84:85]")
                    I("s_mov_b64 exec, s[94:95]")
                if t == 3:
                    I("s_mov_b64 exec, s[50:51]")
                    I("s_cbranch_execz L2_nost3")
                for i in range(4):
                    I(f"buffer_store_dwordx2 v[{TF+4+2*i}:{TF+5+2*i}], v{va}, s[12:15], s42 offen offset:{i*128} {c.out_flags}")
                if t == 3: e.label("L2_nost3")
                if t in (1, 3): I("s_mov_b64 exec, -1")
                e.label(f"L2_nofin{t}")
    stamp(e, c, 11)
    I("s_cmp_lg_u32 s24, 0")
    e.branch("s_cbranch_scc1 L2_m_exit")
    I("s_add_u32 s89, s89, 1")
    I("s_branch L2_m_slow")
    e.label("L2_m_overflow")
    I("s_mov_b32 s89, 0")
    I("s_mov_b32 s23, 1")
    I("s_waitcnt vmcnt(0)")
    for k in range(64):
        I(f"v_mov_b32 v{G+k}, 0")
    e.label("L2_m_slow")
    I("s_waitcnt vmcnt(0) lgkmcnt(0)")
    I("s_barrier")
    I(f"s_cmp_eq_u32 s89, {2*NCH-1}")
    I("s_cselect_b32 s24, 1, 0")
    I("s_cmp_lg_u32 s21, 1")
    I("s_cbranch_scc1 L2_m_nz")
    for k in range(4): I(f"v_mov_b32 v{TF+k}, 0")
    I(f"v_lshlrev_b32 v{TF+4}, 2, v{X0}")
    I(f"ds_write_b128 v{TF+4}, v[{TF}:{TF+3}]")
    I("s_waitcnt lgkmcnt(0)")
    e.label("L2_m_nz")
    I("s_barrier")
    e.branch("s_branch L2_m_round")
    e.label("L2_m_exit")
    if c.stamps:
        I("s_waitcnt vmcnt(0)")
        stamp(e, c, 12)
        stamp_store(e, c, TF)
    e.label("L_end")
    I("s_endpgm")
    e.label("L_codeend")
    return KNAME, 128, 96

def gather_loop(e, c, L):
    I = e.I
    RAW, T, NEXT, DONE, GDONE, OSC, PL1, BREADY, INFO = (L[k] for k in "RAW T NEXT DONE GDONE OSC PL1 BREADY INFO".split())
    VLANE, VINFO, VNEXT, VLOFF, VMASK, VOW, VOR, VSCRW, VTRA, VWR, VL16, VT0, VT1, VONE = (L[k] for k in
        "VLANE VINFO VNEXT VLOFF VMASK VOW VOR VSCRW VTRA VWR VL16 VT0 VT1 VONE".split())
    ACC, LD, B, A, AD = 0, 32, 64, 96, 100
    sA, sR, sH, sN, sNV = 32, 33, 34, 35, 37
    sCN, sCH, sCF, sCR, sL = 38, 39, 40, 41, 36
    uid = [0]
    def lab(p):
        uid[0] += 1
        return f"L2_{p}{uid[0]}"
    def fetch_issue():
        I("s_mov_b64 exec, 1")
        I(f"ds_add_rtn_u32 v{VNEXT}, v{VL16}, v{VONE} offset:{NEXT}")
        I("s_mov_b64 exec, -1")
    NIT = 2*NODES + (16 if c.split else 0)
    def setup_item(none_label):
        I(f"v_readfirstlane_b32 s42, v{VNEXT}")
        e.nop(1)
        I(f"s_cmp_ge_u32 s42, {NIT}")
        I(f"s_cbranch_scc1 {none_label}")
        t, sp, dn = lab("bw"), lab("sp"), lab("sd")
        if c.split:
            I(f"s_cmp_ge_u32 s42, {2*NODES-16}")
            I(f"s_cbranch_scc1 {sp}")
        I(f"s_cmp_ge_u32 s42, {NODES}")
        I(f"s_cselect_b32 s{sH}, 256, 0")
        I(f"s_cselect_b32 s43, {NODES}, 0")
        I(f"s_cmp_ge_u32 s42, {NODES+16}")
        I(f"s_cselect_b32 s43, {NODES-32}, s43")
        I(f"s_cmp_ge_u32 s42, {NODES+18}")
        I(f"s_cselect_b32 s43, {NODES+2}, s43")
        I(f"s_sub_u32 s{sN}, s42, s43")
        I(f"s_cmp_lt_u32 s{sN}, s48")
        I(f"s_cbranch_scc1 {t}")
        stamp(e, c, 29)
        I(f"v_mov_b32 v{VT0}, 0")
        spin(e, t, VT1, VT0, BREADY, 4, 45, 44, sleep=1)
        I(f"v_lshrrev_b32 v{VT0}, 2, v{VL16}")
        I(f"ds_read_b32 v{VINFO}, v{VT0} offset:{INFO}")
        I("s_movk_i32 s48, 64")
        I("s_waitcnt lgkmcnt(0)")
        stamp(e, c, 30)
        e.label(t)
        I(f"v_readlane_b32 s42, v{VINFO}, s{sN}")
        e.nop(1)
        I(f"s_lshr_b32 s{sR}, s42, 16")
        I("s_and_b32 s42, s42, 0xffff")
        I(f"s_lshl_b32 s{sA}, s42, 4")
        if c.split:
            I(f"s_branch {dn}")
            e.label(sp)
            I(f"s_sub_u32 s42, s42, {2*NODES-16}")
            I("s_lshr_b32 s43, s42, 1")
            I(f"s_add_u32 s{sN}, s43, 32")
            I(f"s_cmp_lt_u32 s{sN}, s48")
            I(f"s_cbranch_scc1 {t}b")
            I(f"v_mov_b32 v{VT0}, 0")
            spin(e, t + "c", VT1, VT0, BREADY, 4, 45, 44, sleep=1)
            I(f"v_lshrrev_b32 v{VT0}, 2, v{VL16}")
            I(f"ds_read_b32 v{VINFO}, v{VT0} offset:{INFO}")
            I("s_movk_i32 s48, 64")
            I("s_waitcnt lgkmcnt(0)")
            e.label(t + "b")
            I(f"v_readlane_b32 s44, v{VINFO}, s{sN}")
            I(f"s_movk_i32 s{sH}, 256")
            I(f"s_lshr_b32 s{sR}, s44, 16")
            I("s_and_b32 s44, s44, 0xffff")
            I(f"s_min_u32 s45, s{sR}, 32")
            I("s_bitcmp1_b32 s42, 0")
            I(f"s_cbranch_scc1 {sp}h")
            I(f"s_mov_b32 s{sR}, s45")
            I(f"s_lshl_b32 s{sA}, s44, 4")
            I(f"s_branch {dn}")
            e.label(sp + "h")
            I(f"s_sub_u32 s{sR}, s{sR}, s45")
            I("s_add_u32 s44, s44, s45")
            I(f"s_lshl_b32 s{sA}, s44, 4")
            I(f"s_or_b32 s{sN}, s43, 64")
            e.label(dn)
    def off_read(hf):
        I(f"ds_read_b128 v[{AD}:{AD+3}], v{VOR} offset:{OSC+128*hf}")
        I(f"ds_read_b128 v[{AD+4}:{AD+7}], v{VOR} offset:{OSC+128*hf+16}")
    def off_add():
        if c.addtid: return
        for i in range(8):
            I(f"v_add_u32 v{AD+i}, v{AD+i}, v{VLOFF}")
    def prep_block():
        r = B
        I(f"v_add_u32 v{VT0}, s{sA}, v{VL16}")
        I(f"ds_read_b128 v[{r}:{r+3}], v{VT0} offset:{RAW}")
        l = lab("nf")
        I(f"s_cmp_gt_u32 s{sR}, 64")
        I(f"s_cbranch_scc1 {l}")
        fetch_issue()
        e.label(l)
        I(f"v_cmp_gt_u32 vcc, s{sR}, v{VLANE}")
        I("s_waitcnt lgkmcnt(0)")
        I(f"v_lshrrev_b32 v{r+11}, 16, v{r+3}")
        if c.addtid:
            I(f"v_lshlrev_b32 v{r+11}, 5, v{r+11}")
            I(f"v_sub_u32 v{r+11}, v{r+11}, v{VLOFF}")
        else:
            I(f"v_lshlrev_b32 v{r+11}, 9, v{r+11}")
            if c.oobtail: I(f"v_cndmask_b32 v{r+11}, 2.0, v{r+11}, vcc")
        I(f"ds_write_b32 v{VOW}, v{r+11} offset:{OSC}")
        off_read(0)
        if not c.x_noexp:
            I(f"v_cndmask_b32 v{r}, 0, v{r}, vcc")
            I(f"v_cndmask_b32 v{r+1}, 0, v{r+1}, vcc")
            I(f"v_lshlrev_b32 v{r+8}, 16, v{r+2}")
            I(f"v_and_b32 v{r+9}, v{VMASK}, v{r+2}")
            I(f"v_lshlrev_b32 v{r+10}, 16, v{r+3}")
            I(f"v_lshlrev_b32 v{r+4}, 16, v{r}")
            I(f"v_and_b32 v{r+5}, v{VMASK}, v{r}")
            I(f"v_lshlrev_b32 v{r+6}, 16, v{r+1}")
            I(f"v_and_b32 v{r+7}, v{VMASK}, v{r+1}")
            for j in range(3):
                for d in range(4):
                    I(f"v_mul_f32 v{r+12+4*j+d}, v{r+4+d}, v{r+8+j}")
            I(f"v_cvt_pk_bf16_f32 v{r+2}, v{r+12}, v{r+13}")
            I(f"v_cvt_pk_bf16_f32 v{r+3}, v{r+14}, v{r+15}")
            for k in range(4):
                I(f"v_cvt_pk_bf16_f32 v{r+24+k}, v{r+16+2*k}, v{r+17+2*k}")
        I(f"ds_write_b128 v{VSCRW}, v[{r}:{r+3}]")
        I(f"ds_write_b128 v{VSCRW}, v[{r+24}:{r+27}] offset:{PL1}")
        I("s_waitcnt lgkmcnt(2)")
        off_add()
    def ld(i):
        if c.x_noload: return
        I(f"buffer_load_dwordx4 v[{LD+4*i}:{LD+4*i+3}], v{AD+i}, s[4:7], {'0' if c.x_samehalf else 's%d' % sH} {'idxen' if c.addtid else 'offen'}")
    def perm(q, jj, k16=False):
        if c.x_noperm: return
        d = B + 2*q + jj if k16 else B + 4*q + jj
        I(f"v_perm_b32 v{d}, v{LD+4*(2*jj+1)+q//2}, v{LD+4*(2*jj)+q//2}, s{29 if q & 1 else 28}")
    def loads_partial(done):
        for i in range(7):
            I(f"s_cmp_le_u32 s{sL}, {4*i}")
            I(f"s_cbranch_scc1 {done}")
            ld(i)
    def perms_loads():
        part, done = lab("pp"), lab("pd")
        I("s_waitcnt vmcnt(0)")
        I(f"s_cmp_le_u32 s{sL}, 28")
        I(f"s_cbranch_scc1 {part}")
        for jj in range(4):
            for q in range(8): perm(q, jj)
            ld(2*jj); ld(2*jj+1)
        I(f"s_branch {done}")
        e.label(part)
        for jj in range(4):
            for q in range(8): perm(q, jj)
        loads_partial(done)
        e.label(done)
    def mfmas(first, k16=False):
        if c.x_nomfma: return
        for q in range(8):
            d = f"v[{ACC+4*q}:{ACC+4*q+3}]"
            if k16: I(f"v_mfma_f32_16x16x16_bf16 {d}, v[{A}:{A+1}], v[{B+2*q}:{B+2*q+1}], {'0' if first else d}")
            else: I(f"v_mfma_f32_16x16x32_bf16 {d}, v[{A}:{A+3}], v[{B+4*q}:{B+4*q+3}], {'0' if first else d}")
    def tr_read(hf):
        I(f"ds_read_b64_tr_b16 v[{A}:{A+1}], v{VTRA} offset:{512*hf}")
        I(f"ds_read_b64_tr_b16 v[{A+2}:{A+3}], v{VTRA} offset:{512*hf+256}")

    if c.stamps: I("s_mov_b32 s92, 16")
    setup_item("L2_g_done")
    prep_block()
    for i in range(8): ld(i)
    for first in (1, 0):
        e.label(f"L2_A{first}")
        tr_read(0)
        I(f"s_cmp_gt_u32 s{sR}, 32")
        I(f"s_cbranch_scc1 L2_AB{first}")
        I(f"s_mov_b32 s{sCF}, {first}")
        I(f"s_mov_b32 s{sCR}, s{sR}")
        I("s_branch L2_XN")
        e.label(f"L2_AB{first}")
        off_read(1)
        I(f"s_sub_u32 s{sL}, s{sR}, 32")
        I("s_waitcnt lgkmcnt(0)")
        off_add()
        perms_loads()
        mfmas(first)
        if first: I("s_branch L2_B")
    e.label("L2_B")
    tr_read(1)
    I(f"s_cmp_gt_u32 s{sR}, 64")
    I("s_cbranch_scc0 L2_BN")
    I(f"s_sub_u32 s{sR}, s{sR}, 64")
    I(f"s_add_u32 s{sA}, s{sA}, 1024")
    I(f"s_mov_b32 s{sL}, s{sR}")
    prep_block()
    perms_loads()
    I("s_waitcnt lgkmcnt(0)")
    mfmas(0)
    I("s_branch L2_A0")
    e.label("L2_BN")
    I(f"s_mov_b32 s{sCF}, 0")
    I(f"s_sub_u32 s{sCR}, s{sR}, 32")
    e.label("L2_XN")
    I(f"s_mov_b32 s{sCN}, s{sN}")
    I(f"s_mov_b32 s{sCH}, s{sH}")
    I(f"s_mov_b32 s{sNV}, 1")
    setup_item("L2_XN_none")
    I(f"s_mov_b32 s{sL}, s{sR}")
    prep_block()
    I("s_branch L2_XN_go")
    e.label("L2_XN_none")
    I(f"s_mov_b32 s{sNV}, 0")
    I(f"s_mov_b32 s{sL}, 0")
    e.label("L2_XN_go")
    I(f"s_cmp_le_u32 s{sCR}, 16")
    I("s_cbranch_scc1 L2_XN_k16")
    perms_loads()
    I("s_waitcnt lgkmcnt(0)")
    I(f"s_cmp_eq_u32 s{sCF}, 0")
    I("s_cbranch_scc1 L2_XN_acc")
    mfmas(1)
    I("s_branch L2_XN_epi")
    e.label("L2_XN_acc")
    mfmas(0)
    I("s_branch L2_XN_epi")
    e.label("L2_XN_k16")
    I("s_waitcnt vmcnt(0)")
    for jj in range(2):
        for q in range(8): perm(q, jj, True)
    I(f"s_cmp_le_u32 s{sL}, 28")
    I("s_cbranch_scc1 L2_XN_k16p")
    for i in range(8): ld(i)
    I("s_branch L2_XN_k16d")
    e.label("L2_XN_k16p")
    loads_partial("L2_XN_k16d")
    e.label("L2_XN_k16d")
    I("s_waitcnt lgkmcnt(0)")
    I(f"s_cmp_eq_u32 s{sCF}, 0")
    I("s_cbranch_scc1 L2_XN_k16acc")
    mfmas(1, True)
    I("s_branch L2_XN_epi")
    e.label("L2_XN_k16acc")
    mfmas(0, True)
    e.label("L2_XN_epi")
    I(f"s_lshl_b32 s42, s{sCH}, 5")
    I(f"v_add_u32 v{VT0}, s42, v{VWR}")
    for q in range(8):
        I(f"ds_read_b128 v[{B+4*q}:{B+4*q+3}], v{VT0} offset:{q*1024}")
    I(f"s_lshr_b32 s43, s{sCN}, 4")
    I(f"s_lshl_b32 s43, s43, 2")
    I(f"s_cmp_eq_u32 s{sCH}, 0")
    I("s_cbranch_scc1 L2_nowar")
    I(f"v_mov_b32 v{VT1}, s43")
    spin(e, "war", VT0, VT1, GDONE, 4, 45, 44)
    if c.split:
        I("s_cmp_eq_u32 s43, 16")
        I("s_cselect_b32 s43, 8, s43")
    I("s_add_u32 s43, s43, 16")
    e.label("L2_nowar")
    I(f"s_and_b32 s44, s{sCN}, 15")
    I("s_lshl_b32 s44, s44, 4")
    I(f"s_and_b32 s45, s{sCN}, 63")
    I(f"s_lshl_b32 s45, s45, 10")
    I(f"s_add_u32 s45, s45, {T}")
    I(f"v_xor_b32 v{VT0}, s44, v{VL16}")
    I(f"v_add_u32 v{VT0}, s45, v{VT0}")
    I(f"v_mov_b32 v{VT1}, s43")
    I("s_waitcnt lgkmcnt(0)")
    for q in range(8):
        I(f"v_mul_f32 v{B+4*q}, v{B+4*q}, v{ACC+4*q}")
    for d in range(1, 4):
        for q in range(8):
            I(f"v_fmac_f32 v{B+4*q}, v{B+4*q+d}, v{ACC+4*q+d}")
    for k in range(4):
        I(f"v_cvt_pk_bf16_f32 v{A+k}, v{B+8*k}, v{B+8*k+4}")
    I(f"ds_write_b128 v{VT0}, v[{A}:{A+3}]")
    if not c.nowait: I("s_waitcnt lgkmcnt(0)")
    I("s_mov_b64 exec, 1")
    I(f"ds_add_u32 v{VT1}, v{VONE} offset:{DONE}")
    I("s_mov_b64 exec, -1")
    if c.stamps:
        I("s_memrealtime s[90:91]")
        I("s_waitcnt lgkmcnt(0)")
        I("s_mov_b32 m0, s92")
        I(f"v_writelane_b32 v{STV}, s90, m0")
        I("s_add_u32 s92, s92, 1")
        I("s_min_u32 s92, s92, 23")
    I(f"s_cmp_lg_u32 s{sNV}, 0")
    I("s_cbranch_scc1 L2_A1")

HEADER = """; equiformer tensor-product message passing, one persistent launch (one workgroup per CU):
"""

def gen_probe(e, c):
    kA, a0, a1, sA, oA, kB, b0, b1, sB, oB = c.probe.split(",")
    kernel_header(e, "eqprobe_kernel")
    I = e.I
    I("s_cmp_ge_u32 s2, 1")
    I("s_cbranch_scc1 LP_end")
    I("s_memrealtime s[20:21]")
    I("s_load_dwordx2 s[4:5], s[0:1], 88")
    I("s_waitcnt lgkmcnt(0)")
    srd(e, 8, 4, 32 << 20)
    I(f"v_min_u32 v1, {c.nwg-1}, v0")
    I("v_lshlrev_b32 v1, 11, v1")
    I("v_mov_b32 v10, 0"); I("v_mov_b32 v11, -1"); I("v_mov_b32 v12, 0")
    I("ds_write_b32 v10, v11 offset:0"); I("ds_write_b32 v10, v12 offset:4"); I("ds_write_b32 v10, v11 offset:8"); I("ds_write_b32 v10, v12 offset:12")
    I("s_waitcnt lgkmcnt(0)"); I("s_barrier")
    regs = []
    for (k, w0, w1, sl, off) in ((kA, a0, a1, sA, 0), (kB, b0, b1, sB, 8)):
        if k == "now":
            I(f"v_mov_b32 v{16+len(regs)}, s20"); regs.append(off); continue
        I(f"s_mov_b32 s12, {STAMPOFF}")
        for w in range(int(w0), int(w1)):
            I(f"buffer_load_dword v{16+len(regs)}, v1, s[8:11], s12 offen offset:{w*128 + int(sl)*4}")
            regs.append(off)
    I("s_waitcnt vmcnt(0)")
    for off, op in ((0, oA), (8, oB)):
        idx = [n for n, o in enumerate(regs) if o == off]
        for n in idx[1:]:
            I(f"v_{op}_u32 v{16+idx[0]}, v{16+idx[0]}, v{16+n}")
        I(f"ds_{op}_u32 v10, v{16+idx[0]} offset:{off + (0 if op == 'min' else 4)}")
    I("s_waitcnt lgkmcnt(0)"); I("s_barrier")
    I(f"ds_read_b32 v3, v10 offset:{0 if oA == 'min' else 4}")
    I(f"ds_read_b32 v4, v10 offset:{8 if oB == 'min' else 12}")
    I("s_waitcnt lgkmcnt(0)")
    I("v_sub_u32 v3, v3, v4")
    I("v_min_u32 v3, 0x2000, v3")
    I("v_readfirstlane_b32 s14, v3")
    I("s_memrealtime s[16:17]")
    I("s_mul_i32 s14, s14, 10")
    I("s_waitcnt lgkmcnt(0)")
    e.label("LP_spin")
    I("s_memrealtime s[18:19]")
    I("s_waitcnt lgkmcnt(0)")
    I("s_sub_u32 s18, s18, s16")
    I("s_cmp_lt_u32 s18, s14")
    I("s_cbranch_scc1 LP_spin")
    e.label("LP_end")
    I("s_endpgm")
    return "eqprobe_kernel", 64, 32

def generate(c):
    e = Emitter()
    e.raw('.amdgcn_target "amdgcn-amd-amdhsa--gfx950"')
    e.raw(".text")
    k = gen_main(e, c)
    head = HEADER + f"; @launch grid=({c.nwg},1,1) block=(1024,1,1) lds={c.lds}\n"
    tail = '.section .rodata,"a"\n.p2align 6\n' + kd(*k)
    if c.probe:
        kp = gen_probe(e, c)
        head = HEADER + f"; @launch kernel={KNAME} grid=({c.nwg},1,1) block=(1024,1,1) lds={c.lds}\n; @launch kernel=eqprobe_kernel grid=(1,1,1) block=(256,1,1) lds=64\n"
        tail += ".p2align 6\n" + kd(*kp)
    return head + e.text() + tail

if __name__ == "__main__":
    c = Cfg()
    out = sys.argv[1]
    for kv in sys.argv[2:]:
        k, v = kv.split("=", 1)
        old = getattr(c, k)
        setattr(c, k, type(old)(int(v)) if isinstance(old, (bool, int)) else v.replace("+", " "))
    open(out, "w").write(generate(c))
```

```python
import sys
from emit import Emitter

N, E = 12500, 800000
NODES, HN = 50, 25
NCH = 250
CSTRIDE = 70784
KEYOFF, PAYOFF, TABOFF = 0, 3200, 54400
WSBYTES = NCH * CSTRIDE
KIN = 20
KNAME = "gather_scatter__tensor_product_equiv_equiformer__graph_kernel"
STAMPOFF = 24 << 20

class Cfg:
    nwg = 250
    st_flags = "sc1"
    ld_flags = "nt"
    rec_flags = "sc1"
    out_flags = ""
    pfx_lines = 128
    stamps = False
    cap = 1888
    x_noperm = 0
    x_noexp = 0
    x_nomfma = 0
    x_noload = 0
    x_samehalf = 0
    x_nobload = 0
    codepf = 26
    tlbpf = 0
    codeearly = 0
    sleep = 12
    psleep = 2
    probe = ""
    addtid = 0
    split = 0
    ld2_flags = None
    nowait = 1
    fastlast = 1
    pfx2_lines = 256
    pfx2_pos = 0
    oobtail = 1
    bearly = 1
    tidw3 = "0x00800000"

def srd(e, d, b, nbytes, w1=None, w3="0x20000"):
    e.I(f"s_mov_b32 s{d}, s{b}")
    if w1: e.I(f"s_or_b32 s{d+1}, s{b+1}, {w1}")
    else: e.I(f"s_mov_b32 s{d+1}, s{b+1}")
    e.I(f"s_mov_b32 s{d+2}, {nbytes}")
    e.I(f"s_mov_b32 s{d+3}, {w3}")

def scan64(e, v):
    for sh in (1, 2, 4, 8):
        e.I(f"v_add_u32_dpp v{v}, v{v}, v{v} row_shr:{sh} row_mask:0xf bank_mask:0xf")
    e.I(f"v_add_u32_dpp v{v}, v{v}, v{v} row_bcast:15 row_mask:0xa bank_mask:0xf")
    e.I(f"v_add_u32_dpp v{v}, v{v}, v{v} row_bcast:31 row_mask:0xc bank_mask:0xf")

def prefetch_x(e, nlines, vt, vtid, nthreads, slice_s, half, srdx, first=0):
    if nlines <= 0: return 0
    e.I(f"s_mul_i32 s46, s{slice_s}, 782")
    if first: e.I(f"s_add_u32 s46, s46, {first}")
    e.I(f"s_mov_b32 s47, {nlines}")
    it = (nlines + nthreads - 1) // nthreads
    for k in range(it):
        e.I(f"v_add_u32 v{vt}, {k*nthreads}, v{vtid}")
        e.I(f"v_cmp_gt_u32 vcc, s47, v{vt}")
        e.I(f"v_add_u32 v{vt}, s46, v{vt}")
        e.I(f"v_and_b32 v{vt+1}, 1, v{vt}")
        e.I(f"v_lshrrev_b32 v{vt}, 1, v{vt}")
        e.I(f"v_lshlrev_b32 v{vt}, 9, v{vt}")
        e.I(f"v_lshl_add_u32 v{vt}, v{vt+1}, 7, v{vt}")
        e.I(f"v_cndmask_b32 v{vt}, 2.0, v{vt}, vcc")
        e.I(f"buffer_load_dword v{vt+2}, v{vt}, s[{srdx}:{srdx+3}], 0 offen offset:{half*256}")
    return it

STV, TIDV = 127, 126
def stamp(e, c, slot, ins="s_memrealtime"):
    if not c.stamps: return
    e.I(f"{ins} s[90:91]")
    e.I("s_waitcnt lgkmcnt(0)")
    e.I(f"v_writelane_b32 v{STV}, s90, {slot}")

def stamp_store(e, c, vtmp):
    if not c.stamps: return
    e.I(f"v_lshrrev_b32 v{vtmp}, 6, v{TIDV}")
    e.I(f"s_lshl_b32 s90, s2, 4")
    e.I(f"v_add_u32 v{vtmp}, s90, v{vtmp}")
    e.I(f"v_lshlrev_b32 v{vtmp}, 7, v{vtmp}")
    e.I(f"v_and_b32 v{vtmp+1}, 63, v{TIDV}")
    e.I(f"v_lshl_add_u32 v{vtmp}, v{vtmp+1}, 2, v{vtmp}")
    e.I(f"v_cmp_gt_u32 vcc, 32, v{vtmp+1}")
    e.I(f"v_cndmask_b32 v{vtmp}, 2.0, v{vtmp}, vcc")
    e.I(f"s_mov_b32 s90, {STAMPOFF}")
    e.I(f"buffer_store_dword v{STV}, v{vtmp}, s[8:11], s90 offen")

def kernel_header(e, name):
    e.raw(f".globl {name}")
    e.raw(".p2align 8")
    e.raw(f".type {name},@function")
    e.raw(f"{name}:")
    e.hist = []

def kd(name, nv, ns):
    return f""".amdhsa_kernel {name}
  .amdhsa_next_free_vgpr {nv}
  .amdhsa_next_free_sgpr {ns}
  .amdhsa_accum_offset {(nv+3)//4*4}
  .amdhsa_group_segment_fixed_size 0
  .amdhsa_kernarg_size 96
  .amdhsa_user_sgpr_count 2
  .amdhsa_user_sgpr_kernarg_segment_ptr 1
  .amdhsa_system_sgpr_workgroup_id_x 1
  .amdhsa_float_denorm_mode_32 3
.end_amdhsa_kernel
"""

def path_of(jp, blk):
    if blk == 0: return (0, 0, 1) if jp == 0 else (2, jp, 1)
    k = blk - 1
    if jp == 0: return (3, 1 + k, 1)
    j = jp - 1
    if j == k: return (1, 0, 1)
    i = 3 - j - k
    return (4, 1 + i, 1 if k == (j + 1) % 3 else -1)

class Lay: pass

def spin(e, tag, vdst, vaddr, off, need, scnt, sval, sleep=None, bound="0x400000"):
    I = e.I
    I(f"s_mov_b32 s{scnt}, 0")
    e.label(f"L_sp{tag}")
    I(f"ds_read_b32 v{vdst}, v{vaddr} offset:{off}")
    I("s_waitcnt lgkmcnt(0)")
    I(f"v_readfirstlane_b32 s{sval}, v{vdst}")
    I(f"s_add_u32 s{scnt}, s{scnt}, 1")
    I(f"s_cmp_ge_u32 s{sval}, {need}")
    I(f"s_cbranch_scc1 L_sp{tag}_ok")
    if sleep: I(f"s_sleep {sleep}")
    I(f"s_cmp_lt_u32 s{scnt}, {bound}")
    I(f"s_cbranch_scc1 L_sp{tag}")
    e.label(f"L_sp{tag}_ok")

def tag_bad(e, dst, r, tmp, odd):
    I = e.I
    I(f"v_xor_b32 v{tmp}, s87, v{r}")
    I(f"v_xor_b32 v{dst}, s86, v{r+1}")
    I(f"v_lshrrev_b32 v{tmp}, 24, v{tmp}")
    I(f"v_or_b32 v{dst}, v{dst}, v{tmp}")
    I(f"v_xor_b32 v{tmp}, s3, v{r+3}")
    I(f"v_lshrrev_b32 v{tmp}, 12, v{tmp}")
    I(f"v_cndmask_b32 v{dst}, v{dst}, v{tmp}, {odd}")

def gen_main(e, c):
    L = Lay()
    CAP = c.cap
    NWG = c.nwg
    BOFF = CAP + 64
    HIST, HIST2, CUR2, CNT = 0, 256, 512, 768
    NEXT, DONE, GDONE, BSYNC, BREADY, TOTB = CNT, CNT + 16, CNT + 64, CNT + 96, CNT + 100, CNT + 104
    HISTB, HIST2B, CUR2B, INFO, NONCE = 1024, 1280, 1536, 1792, 2048
    RAW = 2176
    T = (RAW + 2 * BOFF * 16 + 255) // 256 * 256
    WRAD = T + NODES * 1024
    SCR = WRAD + 16384
    H1 = WRAD
    TI = SCR
    CEB = RAW + BOFF * 16
    SSTR, PL1, OSC = 2368, 1056, 2080
    lds = max(SCR + 12 * SSTR, T + 64 * 1024)
    assert lds <= 163840 and 2 * BOFF >= 3200 + 64, lds
    c.lds = lds
    kernel_header(e, KNAME)
    I = e.I
    wsbytes = (32 << 20) if c.stamps else WSBYTES
    sf, rf, lf = c.st_flags, c.rec_flags, c.ld_flags
    ODD = "s[26:27]"
    I(f"s_cmp_ge_u32 s2, {NWG}")
    I("s_cbranch_scc1 L_end")
    if c.stamps:
        I(f"v_mov_b32 v{STV}, 0")
        I(f"v_mov_b32 v{TIDV}, v0")
    stamp(e, c, 0)
    stamp(e, c, 26, "s_memtime")
    I("s_load_dwordx8 s[32:39], s[0:1], 0")
    I("s_load_dwordx8 s[40:47], s[0:1], 32")
    if NWG > NCH:
        I(f"s_cmp_lt_u32 s2, {NCH}")
        I("s_cselect_b32 s51, 800, 0")
    else:
        I("s_movk_i32 s51, 800")
    I("s_mul_i32 s48, s2, 800")
    I("v_add_u32 v3, s48, v0")
    I("v_cmp_gt_u32 vcc, s51, v0")
    I("v_lshlrev_b32 v26, 4, v3")
    I("v_lshlrev_b32 v27, 5, v3")
    I("v_mul_u32_u24 v3, 24, v3")
    I("s_and_saveexec_b64 s[26:27], vcc")
    I("s_cbranch_execz L1_noload")
    I("s_waitcnt lgkmcnt(0)")
    l2 = lf if c.ld2_flags is None else c.ld2_flags
    I(f"global_load_dwordx4 v[4:7], v26, s[40:41] {l2}")
    I(f"global_load_dwordx4 v[8:11], v26, s[38:39] {l2}")
    I(f"global_load_dwordx4 v[12:15], v27, s[36:37] {lf}")
    I(f"global_load_dwordx4 v[16:19], v27, s[36:37] offset:16 {lf}")
    I(f"global_load_dwordx4 v[20:23], v3, s[34:35] {lf}")
    I(f"global_load_dwordx2 v[24:25], v3, s[34:35] offset:16 {lf}")
    e.label("L1_noload")
    I("s_mov_b64 exec, -1")
    if c.codepf and c.codeearly:
        I("s_getpc_b64 s[52:53]")
        I(f"s_mov_b32 s54, {c.codepf*1024}")
        I("s_mov_b32 s55, 0x20000")
        I("v_subrev_u32 v72, 768, v0")
        I("v_lshlrev_b32 v72, 7, v72")
        I("s_cmp_lg_u64 vcc, -1")
        I("s_cbranch_scc0 L1_nocpf")
        I("buffer_load_dword v73, v72, s[52:55], 0 offen")
        e.label("L1_nocpf")
    I("s_load_dwordx4 s[80:83], s[0:1], 72")
    I("s_load_dwordx2 s[84:85], s[0:1], 88")
    I("v_lshlrev_b32 v1, 4, v0")
    I("v_lshlrev_b32 v2, 5, v0")
    I("v_readfirstlane_b32 s21, v0")
    I("s_lshr_b32 s21, s21, 6")
    I("s_waitcnt lgkmcnt(0)")
    if c.addtid:
        srd(e, 4, 32, N * 512, w1=f"{16 << 16}", w3=c.tidw3)
    else:
        srd(e, 4, 32, N * 512)
    srd(e, 8, 84, wsbytes)
    srd(e, 12, 80, N * 512)
    srd(e, 16, 42, 2560)
    srd(e, 68, 44, 16384)
    srd(e, 72, 46, 24576)
    srd(e, 76, 82, 256)
    I("s_and_b32 s20, s2, 7")
    I("s_lshr_b32 s31, s2, 3")
    if NWG == 250:
        I("s_min_u32 s22, s20, 2")
        I("s_mul_i32 s20, s20, 31")
        I("s_add_u32 s20, s20, s22")
    else:
        I("s_lshl_b32 s20, s20, 5")
    I("s_add_u32 s20, s20, s31")
    I("s_mov_b32 s22, 0")
    I(f"s_movk_i32 s23, {NCH}")
    I("s_mov_b32 s24, 1")
    I("s_mov_b32 s26, 0xaaaaaaaa")
    I("s_mov_b32 s27, 0xaaaaaaaa")
    I("s_mov_b32 s28, 0x05040100")
    I("s_mov_b32 s29, 0x07060302")
    I("s_mov_b32 s30, 0xffff0000")
    I(f"s_mul_i32 s51, s2, {CSTRIDE}")
    I("s_cmp_ge_u32 s21, 13")
    I("s_cbranch_scc1 L1_aux")
    I(f"s_mov_b32 s46, {H1}")
    I("v_lshl_add_u32 v40, v0, 2, s46")
    I("v_mov_b32 v41, 0")
    I("v_mov_b32 v42, 1")
    I(f"s_movk_i32 s49, {RAW+PAYOFF}")
    I("s_mov_b32 s50, 0x05040302")
    I(f"s_mov_b32 s45, {(TI + 8 - 8*H1) & 0xffffffff}")
    if NWG == 250:
        I("s_mov_b32 s48, -25")
        I("s_movk_i32 s47, 249")
    else:
        I("s_movk_i32 s47, 6249")
        I("s_movk_i32 s48, -6250")
        I("s_mov_b32 s44, 1600210")
        I("v_mov_b32 v43, 65532")
    I("s_cmp_ge_u32 s21, 8")
    I("s_cbranch_scc1 L1_nz")
    I("ds_write_b32 v40, v41")
    I("s_waitcnt lgkmcnt(0)")
    e.label("L1_nz")
    I("s_barrier")
    I("s_and_b64 exec, exec, vcc")
    I("s_waitcnt vmcnt(5)")
    stamp(e, c, 1)
    R4 = range(4)
    if NWG == 250:
        for i in R4: I(f"v_mul_u32_u24 v{44+i}, 0x147b, v{4+i}")
        for i in R4: I(f"v_lshrrev_b32 v{44+i}, 17, v{44+i}")
        for i in R4: I(f"v_cmp_lt_u32 s[{32+2*i}:{33+2*i}], s47, v{44+i}")
        for i in R4: I(f"v_cndmask_b32 v{36+i}, 0, 1, s[{32+2*i}:{33+2*i}]")
        for i in R4:
            I(f"v_sub_u32 v{48+i}, v{44+i}, v{36+i}")
            I(f"v_mad_u32_u24 v{44+i}, v{36+i}, 6, v{44+i}")
        for i in R4:
            I(f"v_mad_i32_i24 v{4+i}, v{48+i}, s48, v{4+i}")
            I(f"v_lshl_add_u32 v{44+i}, v{44+i}, 2, s46")
    else:
        for i in R4: I(f"v_cmp_lt_u32 s[{32+2*i}:{33+2*i}], s47, v{4+i}")
        for i in R4: I(f"v_cndmask_b32 v{36+i}, 0, 1, s[{32+2*i}:{33+2*i}]")
        for i in R4: I(f"v_mad_i32_i24 v{4+i}, v{36+i}, s48, v{4+i}")
        for i in R4: I(f"v_mul_u32_u24 v{44+i}, 0xa7c, v{4+i}")
        for i in R4: I(f"v_lshrrev_b32 v{44+i}, 16, v{44+i}")
        for i in R4: I(f"v_mad_u32_u24 v{48+i}, v{44+i}, s44, v43")
        for i in R4:
            I(f"v_lshrrev_b32 v{48+i}, 16, v{48+i}")
            I(f"v_mad_u32_u24 v{4+i}, v{36+i}, 25, v{4+i}")
        for i in R4:
            I(f"v_sub_u32 v{4+i}, v{4+i}, v{48+i}")
            I(f"v_lshl_add_u32 v{44+i}, v{36+i}, 8, v{44+i}")
        for i in R4: I(f"v_lshl_add_u32 v{44+i}, v{44+i}, 2, s46")
    for i in R4: I(f"ds_add_rtn_u32 v{36+i}, v{44+i}, v42")
    for i in R4: I(f"v_lshl_add_u32 v{48+i}, v{44+i}, 3, s45")
    for i in R4: I(f"v_lshlrev_b32 v{4+i}, 2, v{4+i}")
    I("s_waitcnt lgkmcnt(0)")
    I("s_barrier")
    for i in R4: I(f"v_min_u32 v{28+i}, {KIN}, v{36+i}")
    for i in R4: I(f"v_add_u32 v{48+i}, v{48+i}, v{28+i}")
    I("s_cmp_eq_u32 s21, 0")
    I("s_cbranch_scc1 L1_scan")
    for i in R4: I(f"ds_write_b8 v{48+i}, v{4+i}")
    I("s_branch L1_noscan")
    e.label("L1_scan")
    I("v_add_u32 v60, s46, v2")
    I("ds_read_b128 v[52:55], v60")
    I("ds_read_b128 v[56:59], v60 offset:16")
    I("s_waitcnt lgkmcnt(0)")
    I("v_mov_b32 v64, 0")
    I("v_mov_b32 v65, v52")
    for k in range(2, 8):
        I(f"v_add_u32 v{64+k}, v{63+k}, v{51+k}")
    I("v_add_u32 v61, v71, v59")
    I("v_max3_u32 v63, v52, v53, v54")
    I("v_max3_u32 v63, v63, v55, v56")
    I("v_max3_u32 v63, v63, v57, v58")
    I("v_max_u32 v63, v63, v59")
    I(f"v_cmp_lt_u32 s[42:43], {KIN}, v63")
    I("v_mov_b32 v62, v61")
    scan64(e, 62)
    I("v_sub_u32 v62, v62, v61")
    for k in range(8):
        I(f"v_add_u32 v{64+k}, v{64+k}, v62")
    I("ds_write_b128 v60, v[64:67] offset:2048")
    I("ds_write_b128 v60, v[68:71] offset:2064")
    I("s_cmp_lg_u64 s[42:43], 0")
    I("s_cselect_b32 s42, 1, 0")
    I("v_mov_b32 v63, s42")
    I(f"ds_write_b32 v41, v63 offset:{NONCE+8}")
    for i in R4: I(f"ds_write_b8 v{48+i}, v{4+i}")
    I("s_waitcnt lgkmcnt(4)")
    e.label("L1_noscan")
    I("s_barrier")
    for i in R4: I(f"ds_read_b32 v{44+i}, v{44+i} offset:2048")
    I(f"ds_read_b32 v28, v41 offset:{NONCE+8}")
    I("s_waitcnt lgkmcnt(0)")
    I("v_readfirstlane_b32 s42, v28")
    for i in R4:
        I(f"v_add_u32 v{36+i}, v{36+i}, v{44+i}")
        I(f"v_lshl_add_u32 v{44+i}, v{36+i}, 4, s49")
    I("s_cmp_eq_u32 s42, 0")
    I("s_cbranch_scc1 L1_nokeys")
    for i in R4:
        I(f"ds_write_b8 v{36+i}, v{4+i} offset:{RAW+KEYOFF}")
    e.label("L1_nokeys")
    I("s_waitcnt vmcnt(2)")
    for i in R4:
        I(f"ds_write_b64 v{44+i}, v[{12+2*i}:{13+2*i}]")
    I("s_waitcnt vmcnt(1)")
    I("v_mov_b32 v28, v20")
    I("v_perm_b32 v29, v8, v21, s28")
    I("ds_write_b64 v44, v[28:29] offset:8")
    I("v_alignbit_b32 v30, v22, v21, 16")
    I("v_perm_b32 v31, v9, v22, s50")
    I("ds_write_b64 v45, v[30:31] offset:8")
    I("s_waitcnt vmcnt(0)")
    stamp(e, c, 2)
    I("v_mov_b32 v32, v23")
    I("v_perm_b32 v33, v10, v24, s28")
    I("ds_write_b64 v46, v[32:33] offset:8")
    I("v_alignbit_b32 v34, v25, v24, 16")
    I("v_perm_b32 v35, v11, v25, s50")
    I("ds_write_b64 v47, v[34:35] offset:8")
    I("s_mov_b64 exec, -1")
    I("s_waitcnt lgkmcnt(0)")
    I("s_branch L1_copy")
    e.label("L1_aux")
    I("v_subrev_u32 v64, 832, v0")
    I("v_lshlrev_b32 v65, 4, v64")
    if c.tlbpf:
        I("v_and_b32 v74, 63, v0")
        I(f"s_mov_b32 s42, {WSBYTES // 64 // 128 * 128}")
        I("v_mul_u32_u24 v75, s42, v74")
        I(f"s_mov_b32 s42, {N * 512 // 64 // 128 * 128}")
        I("v_mul_u32_u24 v74, s42, v74")
        I("s_cmp_lg_u32 s21, 14")
        I("s_cbranch_scc1 L1_notlb")
        if c.tlbpf & 1: I("buffer_load_dword v76, v75, s[8:11], 0 offen")
        if c.tlbpf & 2: I("buffer_load_dword v77, v74, s[4:7], 0 offen")
        if c.tlbpf & 4: I("buffer_load_dword v78, v74, s[12:15], 0 offen")
        e.label("L1_notlb")
    if c.codepf and not c.codeearly:
        I("s_getpc_b64 s[40:41]")
        e.label("L_cpf")
        I("s_mov_b32 s42, L_codeend-L_cpf")
        I("s_mov_b32 s43, 0x20000")
        I("v_lshlrev_b32 v72, 7, v64")
        I("buffer_load_dword v73, v72, s[40:43], 0 offen")
    I("s_cmp_lg_u32 s21, 15")
    I("s_cbranch_scc1 L1_notag")
    I("s_cmp_lg_u32 s2, 0")
    I("s_cbranch_scc1 L1_notag")
    I("s_memrealtime s[44:45]")
    I("s_waitcnt lgkmcnt(0)")
    I("s_and_b32 s45, s45, 0x7f")
    I("s_or_b32 s45, s45, 0x80")
    I("s_lshl_b32 s45, s45, 24")
    I("v_mov_b32 v68, s44")
    I("v_mov_b32 v69, s45")
    I("s_mov_b64 exec, 1")
    I("buffer_store_dwordx2 v[68:69], off, s[76:79], 0 sc1")
    I("s_mov_b64 exec, -1")
    e.label("L1_notag")
    I("s_cmp_lg_u32 s21, 13")
    I("s_cbranch_scc1 L1_nozero")
    for k in range(4): I(f"v_mov_b32 v{4+k}, 0")
    I("ds_write_b128 v65, v[4:7]")
    I("ds_write_b128 v65, v[4:7] offset:1024")
    e.label("L1_nozero")
    I("s_barrier"); I("s_barrier"); I("s_barrier")
    I("s_cmp_lg_u32 s21, 15")
    I("s_cbranch_scc1 L1_notag2")
    I("s_mov_b32 s44, 0")
    e.label("L1_tagpoll")
    I("buffer_load_dwordx2 v[68:69], off, s[76:79], 0 sc1")
    I("s_add_u32 s44, s44, 1")
    I("s_waitcnt vmcnt(0)")
    I("v_readfirstlane_b32 s45, v69")
    e.nop(1)
    I("s_cmp_lg_u32 s45, 0")
    I("s_cbranch_scc1 L1_tagok")
    I("s_cmp_lt_u32 s44, 0x100000")
    I("s_cbranch_scc1 L1_tagpoll")
    e.label("L1_tagok")
    I("v_mov_b32 v70, 0")
    I("s_mov_b64 exec, 1")
    I(f"ds_write_b64 v70, v[68:69] offset:{NONCE}")
    I("s_mov_b64 exec, -1")
    e.label("L1_notag2")
    for k in range(8):
        I(f"s_movk_i32 s46, {k*3072}")
        I(f"buffer_load_dwordx4 v[{28+4*k}:{31+4*k}], v65, s[72:75], s46 offen")
    for k in range(6):
        I(f"s_movk_i32 s46, {k*3072}")
        I(f"buffer_load_dwordx4 v[{72+4*k}:{75+4*k}], v65, s[68:71], s46 offen")
    prefetch_x(e, c.pfx_lines, 60, 64, 192, 31, 0, 4)
    I("s_waitcnt lgkmcnt(0)")
    e.flush()
    e.label("L1_copy")
    I("s_barrier")
    stamp(e, c, 3)
    I(f"ds_read_b128 v[8:11], v1 offset:{RAW}")
    I(f"ds_read_b128 v[12:15], v1 offset:{RAW+16384}")
    I(f"v_add_u32 v25, {TI}, v1")
    I(f"ds_read_b128 v[16:19], v1 offset:{RAW+32768}")
    I(f"ds_read_b128 v[20:23], v1 offset:{RAW+49152}")
    I("ds_read_b128 v[100:103], v25")
    I("v_lshrrev_b32 v25, 1, v0")
    I("v_lshlrev_b32 v25, 2, v25")
    I(f"v_add_u32 v25, {H1}, v25")
    I("ds_read2st64_b32 v[104:105], v25 offset0:0 offset1:8")
    I("ds_read_b32 v106, v25 offset:1024")
    I(f"v_mov_b32 v25, {H1+2048+1024}")
    I("ds_read_b32 v98, v25")
    I("v_mov_b32 v25, 0")
    I(f"ds_read_b64 v[96:97], v25 offset:{NONCE}")
    I("v_add_u32 v2, 16384, v1")
    I("v_add_u32 v3, 32768, v1")
    I("v_add_u32 v24, 49152, v1")
    I("s_movk_i32 s48, 328")
    I("v_cmp_gt_u32 s[92:93], s48, v0")
    I("s_waitcnt lgkmcnt(8)")
    I(f"buffer_store_dwordx4 v[8:11], v1, s[8:11], s51 offen {sf}")
    I("s_waitcnt lgkmcnt(7)")
    I(f"buffer_store_dwordx4 v[12:15], v2, s[8:11], s51 offen {sf}")
    I("s_waitcnt lgkmcnt(0)")
    I("v_readfirstlane_b32 s86, v96")
    I("v_readfirstlane_b32 s87, v97")
    I("v_readfirstlane_b32 s88, v98")
    I("v_lshl_or_b32 v104, v104, 12, v105")
    I("v_or_b32 v97, v97, v104")
    I(f"v_cndmask_b32 v100, v97, v100, {ODD}")
    I(f"v_cndmask_b32 v101, v96, v101, {ODD}")
    I("v_lshl_or_b32 v106, v96, 12, v106")
    I(f"v_cndmask_b32 v103, v103, v106, {ODD}")
    I("s_lshl_b32 s3, s86, 12")
    I(f"s_add_u32 s49, s51, {TABOFF}")
    I(f"s_cmp_gt_u32 s88, {(32768-PAYOFF)//16}")
    I("s_cselect_b32 s25, 0, 8")
    stamp(e, c, 4)
    def handoff(tag, mid):
        I("s_waitcnt vmcnt(0)")
        stamp(e, c, 6)
        I("s_barrier")
        I("s_cmp_ge_u32 s21, s25")
        I(f"s_cbranch_scc1 L_noearly{tag}")
        I(f"buffer_store_dwordx4 v[100:103], v1, s[8:11], s49 offen {sf}")
        e.label(f"L_noearly{tag}")
        I(f"buffer_store_dwordx4 v[16:19], v3, s[8:11], s51 offen {sf}")
        I("s_mov_b64 exec, s[92:93]")
        I(f"s_cbranch_execz L_stskip{tag}")
        I(f"buffer_store_dwordx4 v[20:23], v24, s[8:11], s51 offen {sf}")
        e.label(f"L_stskip{tag}")
        I("s_mov_b64 exec, -1")
        mid()
        I("s_waitcnt vmcnt(0) lgkmcnt(0)")
        stamp(e, c, 5)
        I("s_barrier")
        I("s_cmp_lt_u32 s21, s25")
        I(f"s_cbranch_scc1 L_nolate{tag}")
        I(f"buffer_store_dwordx4 v[100:103], v1, s[8:11], s49 offen {sf}")
        e.label(f"L_nolate{tag}")
    I("s_cmp_lt_u32 s21, 4")
    e.branch("s_cbranch_scc1 L2_gemm")

    VLANE, VINFO, VNEXT = 108, 109, 110
    VLOFF, VMASK, VOW, VOR, VSCRW, VTRA, VWR, VL16 = 111, 112, 113, 114, 115, 116, 117, 118
    VT0, VT1, VONE, VSEL = 119, 120, 121, 122
    VJ, VCH, VSEG = 123, 124, 125
    I(f"v_and_b32 v{VLANE}, 63, v0")
    I(f"v_mov_b32 v{VONE}, 1")
    I(f"v_mov_b32 v{VMASK}, s30")
    I(f"v_lshrrev_b32 v{VT1}, 4, v{VLANE}")
    I(f"v_lshlrev_b32 v{VL16}, 4, v{VLANE}")
    if c.addtid:
        I(f"v_and_b32 v{VT0}, 3, v{VLANE}")
        I(f"v_lshlrev_b32 v{VLOFF}, 4, v{VT0}")
    else:
        I(f"v_and_b32 v{VT0}, 15, v{VLANE}")
        I(f"v_lshlrev_b32 v{VLOFF}, 4, v{VT0}")
    I("s_sub_u32 s43, s21, 4")
    I(f"s_mul_i32 s43, s43, {SSTR}")
    I(f"s_add_u32 s43, s43, {SCR}")
    I(f"v_add_u32 v{VSCRW}, s43, v{VL16}")
    I(f"v_lshlrev_b32 v{VOR}, 5, v{VT1}")
    I(f"v_add_u32 v{VOR}, s43, v{VOR}")
    I(f"v_lshlrev_b32 v{VTRA}, 4, v{VT1}")
    I(f"v_bfe_u32 v{VT1}, v{VLANE}, 2, 2")
    I(f"v_lshl_add_u32 v{VTRA}, v{VT1}, 6, v{VTRA}")
    I(f"v_and_b32 v{VT1}, 1, v{VLANE}")
    I(f"v_lshl_add_u32 v{VTRA}, v{VT1}, 3, v{VTRA}")
    I(f"v_bfe_u32 v{VT1}, v{VLANE}, 1, 1")
    I(f"v_mul_u32_u24 v{VT1}, {PL1}, v{VT1}")
    I(f"v_add3_u32 v{VTRA}, v{VTRA}, v{VT1}, s43")
    I(f"v_and_b32 v{VOW}, 32, v{VLANE}")
    I(f"v_and_b32 v{VT1}, 3, v{VLANE}")
    I(f"v_lshl_add_u32 v{VOW}, v{VT1}, 3, v{VOW}")
    I(f"v_bfe_u32 v{VT1}, v{VLANE}, 2, 3")
    I(f"v_add_u32 v{VOW}, v{VOW}, v{VT1}")
    I(f"v_lshlrev_b32 v{VOW}, 2, v{VOW}")
    I(f"v_add_u32 v{VOW}, s43, v{VOW}")
    I(f"v_add_u32 v{VWR}, {WRAD}, v{VL16}")
    I("s_sub_u32 s42, s21, 4")
    I("s_mul_i32 s83, s42, 24")
    I(f"v_and_b32 v{VJ}, 7, v{VLANE}")
    I(f"v_lshrrev_b32 v{VSEG}, 3, v{VLANE}")
    I(f"s_mov_b32 s42, {CSTRIDE}")
    I(f"v_mul_u32_u24 v{VCH}, s42, v{VSEG}")
    I(f"v_lshlrev_b32 v{VSEG}, 5, v{VSEG}")
    I(f"v_add_u32 v{VSEG}, s43, v{VSEG}")
    I(f"v_or_b32 v{VSEL}, 0x0c0c0c00, v{VJ}")
    NP, NW = 3, 3
    I(f"s_mul_i32 s79, s83, {CSTRIDE}")
    for p in range(NP):
        I(f"s_add_u32 s{74+p}, s79, {8*p*CSTRIDE+PAYOFF}")
        I(f"s_add_u32 s{80+p}, s79, {8*p*CSTRIDE+KEYOFF}")
    I("s_mov_b32 s88, s20")
    I("s_mov_b32 s89, 0")
    I(f"s_movk_i32 s48, {HN}")
    def w_stage():
        I("s_cmp_lt_u32 s21, 13")
        I("s_cbranch_scc1 L2_noW")
        I(f"v_add_u32 v65, {T}, v65")
        for k in range(8):
            I(f"ds_write_b128 v65, v[{28+4*k}:{31+4*k}] offset:{16384 + k*3072}")
        for k in range(5):
            I(f"ds_write_b128 v65, v[{72+4*k}:{75+4*k}] offset:{k*3072}")
        I("s_cmp_lg_u32 s21, 13")
        I("s_cbranch_scc1 L2_noW")
        I(f"ds_write_b128 v65, v[92:95] offset:{5*3072}")
        e.label("L2_noW")
    handoff("g", w_stage)
    PAY, KEY, RNK, CNTR, KAD, PAD, X, EN = 0, 36, 45, 54, 57, 60, 64, 72
    MSK = 50
    e.label("L2_g_round")
    I(f"v_lshrrev_b32 v{X}, 1, v{VLANE}")
    I(f"s_sub_u32 s42, {NCH}, s83")
    I("s_min_i32 s42, s42, 24")
    I(f"v_cmp_gt_i32 s[46:47], s42, v{X}")
    I(f"s_mov_b32 s42, {CSTRIDE}")
    I(f"v_mul_u32_u24 v{X+1}, s42, v{X}")
    I(f"v_and_b32 v{X+2}, 16, v{VL16}")
    I(f"v_add_u32 v{X+1}, v{X+1}, v{X+2}")
    I(f"v_cndmask_b32 v{X+1}, 2.0, v{X+1}, s[46:47]")
    I("s_lshl_b32 s43, s88, 5")
    I(f"s_add_u32 s43, s43, {TABOFF}")
    I("s_add_u32 s43, s43, s79")
    I("s_mov_b32 s44, 0")
    I(f"v_lshl_add_u32 v{VT1}, v{VJ}, 4, v{VCH}")
    e.label("L2_poll")
    I(f"buffer_load_dwordx4 v[{EN}:{EN+3}], v{X+1}, s[8:11], s43 offen sc1")
    I("s_add_u32 s44, s44, 1")
    I("s_waitcnt vmcnt(0)")
    tag_bad(e, X+2, EN, X+3, ODD)
    I(f"v_cmp_ne_u32 vcc, 0, v{X+2}")
    e.nop(2)
    I("s_and_b64 vcc, vcc, s[46:47]")
    I("s_cbranch_scc0 L2_poll_ok")
    I(f"s_sleep {c.psleep}")
    I("s_cmp_lt_u32 s44, 0x100000")
    I("s_cbranch_scc1 L2_poll")
    e.label("L2_poll_ok")
    I("s_cmp_lg_u32 s23, 1")
    I("s_cbranch_scc1 L2_nofilter")
    I("s_sub_u32 s42, s22, s83")
    I(f"v_cmp_eq_u32 vcc, s42, v{X}")
    I(f"v_cndmask_b32 v{EN}, 0, v{EN}, vcc")
    e.label("L2_nofilter")
    I(f"ds_write_b128 v{VSCRW}, v[{EN}:{EN+3}]")
    I(f"v_add_u32 v{X+1}, 8, v{VJ}")
    stamp(e, c, 7)
    def msk(p, w): return f"s[{MSK+4*p+2*w}:{MSK+4*p+2*w+1}]" if w < 2 else f"s[{MSK+12+2*p}:{MSK+13+2*p}]"
    def pay(p, w): return f"v[{PAY+12*p+4*w}:{PAY+12*p+4*w+3}]"
    for p in range(NP):
        I(f"ds_read_b128 v[{EN+8*p}:{EN+8*p+3}], v{VSEG} offset:{256*p}")
        I(f"ds_read_b128 v[{EN+8*p+4}:{EN+8*p+7}], v{VSEG} offset:{256*p+16}")
    for p in range(NP):
        en, cnt = EN + 8*p, CNTR + p
        if p == 0: I("s_waitcnt lgkmcnt(0)")
        I(f"v_bfe_u32 v{cnt}, v{en}, 12, 12")
        I(f"v_and_b32 v{PAD+p}, 0xfff, v{en}")
        I(f"v_cmp_lt_u32 {msk(p,0)}, v{VJ}, v{cnt}")
        I(f"v_cmp_lt_u32 {msk(p,1)}, v{X+1}, v{cnt}")
        I(f"v_perm_b32 v{KEY+3*p}, v{en+3}, v{en+2}, v{VSEL}")
        I(f"v_perm_b32 v{KEY+3*p+1}, v{en+5}, v{en+4}, v{VSEL}")
        I(f"v_lshl_add_u32 v{PAD+p}, v{PAD+p}, 4, v{VT1}")
        for w in range(2):
            I(f"s_mov_b64 exec, {msk(p,w)}")
            I(f"s_cbranch_execz L2_nop{p}")
            I(f"ds_add_rtn_u32 v{RNK+3*p+w}, v{KEY+3*p+w}, v{VONE} offset:{HIST}")
            I(f"buffer_load_dwordx4 {pay(p,w)}, v{PAD+p}, s[8:11], s{74+p} offen offset:{128*w} {rf}")
        e.label(f"L2_nop{p}")
        I("s_mov_b64 exec, -1")
    I(f"v_max3_u32 v{VT0}, v{CNTR}, v{CNTR+1}, v{CNTR+2}")
    I(f"v_cmp_lt_u32 vcc, 16, v{VT0}")
    I("s_mov_b32 s25, 0")
    e.nop(1)
    I("s_cmp_eq_u64 vcc, 0")
    I("s_cbranch_scc1 L2_noextraA")
    I("s_mov_b32 s25, 1")
    I(f"v_add_u32 v{X+2}, 16, v{VJ}")
    for p in range(NP):
        en = EN + 8*p
        I(f"v_min_u32 v{X+3}, {KIN}, v{CNTR+p}")
        I(f"v_cmp_lt_u32 {msk(p,2)}, v{X+2}, v{X+3}")
        I(f"v_perm_b32 v{KEY+3*p+2}, v{en+6}, v{en+6}, v{VSEL}")
        I(f"v_sub_u32 v{KAD+p}, v{PAD+p}, v{VCH}")
        I(f"v_lshrrev_b32 v{KAD+p}, 4, v{KAD+p}")
        I(f"v_add_u32 v{KAD+p}, v{KAD+p}, v{VCH}")
        e.flush()
        I(f"s_mov_b64 exec, {msk(p,2)}")
        I(f"ds_add_rtn_u32 v{RNK+3*p+2}, v{KEY+3*p+2}, v{VONE} offset:{HIST}")
        I(f"buffer_load_dwordx4 {pay(p,2)}, v{PAD+p}, s[8:11], s{74+p} offen offset:256 {rf}")
        I("s_mov_b64 exec, -1")

    def extra_count(tag, first, vj, vkad, vcnt, skey, vone, hist, y):
        I(f"v_add_u32 v{y}, {first}, v{vj}")
        I(f"v_add_u32 v{y+1}, {first}, v{vkad}")
        e.label(f"L_xa{tag}")
        I(f"v_cmp_lt_u32 vcc, v{y}, v{vcnt}")
        I("s_and_saveexec_b64 s[44:45], vcc")
        e.branch(f"s_cbranch_execz L_xa{tag}_done")
        I(f"buffer_load_ubyte v{y+2}, v{y+1}, s[8:11], s{skey} offen {rf}")
        I("s_waitcnt vmcnt(0)")
        I(f"ds_add_u32 v{y+2}, v{vone} offset:{hist}")
        I("s_mov_b64 exec, -1")
        I(f"v_add_u32 v{y}, 8, v{y}")
        I(f"v_add_u32 v{y+1}, 8, v{y+1}")
        e.branch(f"s_branch L_xa{tag}")
        e.label(f"L_xa{tag}_done")
        I("s_mov_b64 exec, -1")
    def extra_move(tag, first, vj, vkad, vpad, vcnt, skey, spay, vone, cur, vbase, y, d):
        I(f"v_add_u32 v{y}, {first}, v{vj}")
        I(f"v_add_u32 v{y+1}, {first}, v{vkad}")
        I(f"v_add_u32 v{vpad}, {16*first}, v{vpad}")
        e.label(f"L_xb{tag}")
        I(f"v_cmp_lt_u32 vcc, v{y}, v{vcnt}")
        I("s_and_saveexec_b64 s[44:45], vcc")
        e.branch(f"s_cbranch_execz L_xb{tag}_done")
        I(f"buffer_load_ubyte v{y+2}, v{y+1}, s[8:11], s{skey} offen {rf}")
        I(f"buffer_load_dwordx4 v[{d}:{d+3}], v{vpad}, s[8:11], s{spay} offen {rf}")
        I("s_waitcnt vmcnt(0)")
        I(f"ds_add_rtn_u32 v{y+3}, v{y+2}, v{vone} offset:{cur}")
        I("s_mov_b64 exec, -1")
        I(f"ds_bpermute_b32 v{y+2}, v{y+2}, v{vbase}")
        I("s_waitcnt lgkmcnt(0)")
        I(f"v_add_lshl_u32 v{y+2}, v{y+2}, v{y+3}, 4")
        I("s_mov_b64 exec, vcc")
        I(f"ds_write_b128 v{y+2}, v[{d}:{d+3}] offset:{RAW}")
        I("s_mov_b64 exec, -1")
        I(f"v_add_u32 v{y}, 8, v{y}")
        I(f"v_add_u32 v{y+1}, 8, v{y+1}")
        I(f"v_add_u32 v{vpad}, 128, v{vpad}")
        e.branch(f"s_branch L_xb{tag}")
        e.label(f"L_xb{tag}_done")
        I("s_mov_b64 exec, -1")
    for p in range(NP):
        extra_count(f"a{p}", KIN, VJ, KAD+p, CNTR+p, 80+p, VONE, HIST2, X)
    e.label("L2_noextraA")
    I("s_waitcnt lgkmcnt(0)")
    stamp(e, c, 14)
    I("s_barrier")
    stamp(e, c, 15)
    C1, CT, BS = X + 4, X + 5, X + 6
    I(f"v_lshlrev_b32 v{VT0}, 2, v{VLANE}")
    I(f"ds_read_b32 v{C1}, v{VT0} offset:{HIST}")
    I(f"ds_read_b32 v{CT}, v{VT0} offset:{HIST2}")
    I("s_waitcnt lgkmcnt(0)")
    I(f"v_add_u32 v{CT}, v{C1}, v{CT}")
    I(f"v_mov_b32 v{BS}, v{CT}")
    scan64(e, BS)
    I(f"v_readlane_b32 s46, v{BS}, 63")
    I(f"v_sub_u32 v{BS}, v{BS}, v{CT}")
    I(f"s_cmp_eq_u32 s23, 1")
    I(f"s_cselect_b32 s42, -1, {CAP}")
    for p in range(NP):
        for w in range(2):
            I(f"ds_bpermute_b32 v{KEY+3*p+w}, v{KEY+3*p+w}, v{BS}")
    I(f"v_lshl_or_b32 v{VINFO}, v{CT}, 16, v{BS}")
    I(f"s_cmp_gt_u32 s46, s42")
    I("s_cbranch_scc1 L2_g_overflow")
    I("s_cmp_lg_u32 s21, 5")
    I("s_cbranch_scc1 L2_noinfo")
    I(f"s_mov_b64 exec, {(1 << HN) - 1}")
    I(f"ds_write_b32 v{VT0}, v{VINFO} offset:{INFO}")
    I("s_mov_b64 exec, -1")
    e.label("L2_noinfo")
    I("s_cmp_lg_u32 s21, 4")
    I("s_cbranch_scc1 L2_noguard")
    I("s_lshl_b32 s46, s46, 4")
    for k in range(4): I(f"v_mov_b32 v{EN+k}, 0")
    I(f"v_add_u32 v{VT0}, s46, v{VL16}")
    I(f"ds_write_b128 v{VT0}, v[{EN}:{EN+3}] offset:{RAW}")
    e.label("L2_noguard")
    I("s_waitcnt lgkmcnt(0)")
    for p in range(NP):
        for w in range(2):
            I(f"v_add_lshl_u32 v{KEY+3*p+w}, v{KEY+3*p+w}, v{RNK+3*p+w}, 4")
    stamp(e, c, 27)
    I("s_waitcnt vmcnt(0)")
    stamp(e, c, 9)
    for p in range(NP):
        for w in range(2):
            I(f"s_mov_b64 exec, {msk(p,w)}")
            I(f"ds_write_b128 v{KEY+3*p+w}, {pay(p,w)} offset:{RAW}")
    I("s_mov_b64 exec, -1")
    I("s_cmp_eq_u32 s25, 0")
    I("s_cbranch_scc1 L2_noextraB")
    for p in range(NP):
        I(f"ds_bpermute_b32 v{KEY+3*p+2}, v{KEY+3*p+2}, v{BS}")
    I("s_waitcnt lgkmcnt(0)")
    for p in range(NP):
        I(f"v_add_lshl_u32 v{KEY+3*p+2}, v{KEY+3*p+2}, v{RNK+3*p+2}, 4")
        I(f"s_mov_b64 exec, {msk(p,2)}")
        I(f"ds_write_b128 v{KEY+3*p+2}, {pay(p,2)} offset:{RAW}")
        I("s_mov_b64 exec, -1")
    I(f"v_add_u32 v{BS}, v{BS}, v{C1}")
    for p in range(NP):
        extra_move(f"a{p}", KIN, VJ, KAD+p, PAD+p, CNTR+p, 80+p, 74+p, VONE, CUR2, BS, X, EN)
    e.label("L2_noextraB")
    I("s_waitcnt lgkmcnt(0)")
    stamp(e, c, 28)
    I("s_barrier")
    I(f"ds_read_b32 v{VT0}, v{VL16} offset:{TOTB}")
    I("s_mov_b64 exec, 1")
    I(f"ds_add_rtn_u32 v{VNEXT}, v{VL16}, v{VONE} offset:{NEXT}")
    I("s_mov_b64 exec, -1")
    I("s_waitcnt lgkmcnt(0)")
    I(f"v_readfirstlane_b32 s42, v{VT0}")
    e.nop(1)
    I(f"s_cmp_gt_u32 s42, {CAP}")
    I("s_cbranch_scc1 L2_g_overflow")
    stamp(e, c, 10)
    stamp(e, c, 24, "s_memtime")
    gather_loop(e, c, locals())
    e.label("L2_g_done")
    stamp(e, c, 11)
    stamp(e, c, 25, "s_memtime")
    I("s_cmp_lg_u32 s24, 0")
    e.branch("s_cbranch_scc1 L2_g_exit")
    I("s_add_u32 s89, s89, 1")
    I("s_branch L2_g_slow")
    e.label("L2_g_overflow")
    I("s_mov_b32 s89, 0")
    I("s_mov_b32 s23, 1")
    I("s_movk_i32 s48, 64")
    e.label("L2_g_slow")
    I("s_waitcnt vmcnt(0) lgkmcnt(0)")
    I("s_barrier")
    I("s_lshr_b32 s22, s89, 1")
    I("s_and_b32 s88, s89, 1")
    I("s_lshl_b32 s88, s88, 8")
    I("s_add_u32 s88, s88, s20")
    I(f"s_cmp_eq_u32 s89, {2*NCH-1}")
    I("s_cselect_b32 s24, 1, 0")
    I("s_barrier")
    e.branch("s_branch L2_g_round")
    e.label("L2_g_exit")
    stamp_store(e, c, 90)
    I("s_endpgm")

    e.label("L2_gemm")
    W, G, TA, TF = 0, 40, 104, 108
    X0, X1 = 124, 125
    I("v_and_b32 v104, 63, v0")
    I("v_lshlrev_b32 v105, 4, v104")
    lut = 0
    for jp in range(4):
        for blk in range(4):
            p, i, s = path_of(jp, blk)
            lut |= (p | (8 if s < 0 else 0)) << (4 * (jp * 4 + blk))
    I(f"s_mov_b32 s44, {lut & 0xffffffff}")
    I(f"s_mov_b32 s45, {lut >> 32}")
    for h in range(2):
        I("v_lshrrev_b32 v106, 4, v104")
        I("v_bfe_u32 v107, v104, 3, 1")
        I("v_lshl_add_u32 v106, v106, 2, v107")
        I(f"v_add_lshl_u32 v106, v106, {2*h}, 2")
        I(f"v_lshrrev_b64 v[108:109], v106, s[44:45]")
        I(f"v_and_b32 v106, 7, v108")
        I(f"v_and_b32 v{110+h}, 8, v108")
        I(f"v_lshlrev_b32 v{110+h}, 28, v{110+h}")
        I("v_and_b32 v107, 7, v104")
        I("v_lshlrev_b32 v107, 3, v107")
        I("v_lshl_add_u32 v106, v106, 6, v107")
        I("v_add_u32 v106, s21, v106")
        I(f"v_lshlrev_b32 v{112+h}, 1, v106")
    I("v_mov_b32 v117, v0")
    handoff("m", lambda: None)
    if c.pfx2_pos == 0: prefetch_x(e, c.pfx2_lines, 114, 117, 256, 31, 0, 4, c.pfx_lines)
    WT = 80
    for k in range(4):
        h, qo = k >> 1, (k & 1) * 4
        for d in range(4):
            I(f"buffer_load_ushort v{WT+4*k+d}, v{112+h}, s[16:19], 0 offen offset:{d*640+qo*2}")
    I("v_lshrrev_b32 v106, 4, v104")
    I("v_lshlrev_b32 v106, 10, v106")
    I("v_bfe_u32 v107, v104, 2, 2")
    I("v_lshl_add_u32 v106, v107, 7, v106")
    I("v_and_b32 v107, 3, v104")
    I("v_lshl_add_u32 v106, v107, 3, v106")
    I("s_lshl_b32 s42, s21, 5")
    I(f"s_add_u32 s42, s42, {T}")
    I("v_add_u32 v106, s42, v106")
    for f in range(10):
        I(f"ds_read_b64_tr_b16 v[{W+4*f}:{W+4*f+1}], v106 offset:{f*4096}")
        I(f"ds_read_b64_tr_b16 v[{W+4*f+2}:{W+4*f+3}], v106 offset:{f*4096+512}")
    I("s_lshl_b32 s42, s21, 10")
    I(f"s_add_u32 s43, s42, {WRAD}")
    I("v_add_u32 v105, s43, v105")
    I("s_waitcnt vmcnt(0)")
    for k in range(4):
        h = k >> 1
        for d in range(4):
            I(f"v_lshlrev_b32 v{WT+4*k+d}, 16, v{WT+4*k+d}")
            I(f"v_xor_b32 v{WT+4*k+d}, v{110+h}, v{WT+4*k+d}")
        I(f"ds_write_b128 v105, v[{WT+4*k}:{WT+4*k+3}] offset:{(k>>1)*8192 + (k&1)*4096}")
    I("v_and_b32 v106, 15, v104")
    I("v_lshrrev_b32 v107, 4, v104")
    I(f"v_lshlrev_b32 v{X0}, 2, v104")
    if NWG == 250:
        I(f"s_mul_i32 s42, s20, {HN}")
        I(f"s_movk_i32 s44, {HN}")
    else:
        I("s_mul_i32 s42, s20, 1600210")
        I("s_add_u32 s42, s42, 65532")
        I("s_add_u32 s44, s42, 1600210")
        I("s_lshr_b32 s42, s42, 16")
        I("s_lshr_b32 s44, s44, 16")
        I(f"s_min_u32 s44, s44, {N//2}")
        I("s_sub_u32 s44, s44, s42")
    I("s_lshl_b32 s42, s42, 9")
    I("s_lshl_b32 s43, s21, 5")
    I("s_add_u32 s42, s42, s43")
    I(f"v_lshlrev_b32 v{X1}, 9, v106")
    I(f"v_lshl_add_u32 v{X1}, v107, 3, v{X1}")
    I(f"v_add_u32 v{X1}, s42, v{X1}")
    I(f"v_cmp_le_u32 s[84:85], {HN-16}, v106")
    I(f"s_sub_u32 s43, s44, {48-HN}")
    I("v_cmp_gt_i32 s[50:51], s43, v106")
    I("s_sub_u32 s43, s44, 16")
    I("v_cmp_gt_i32 s[94:95], s43, v106")
    I("v_lshlrev_b32 v108, 10, v106")
    I(f"v_add_u32 v108, {T}, v108")
    I("s_or_b64 s[94:95], s[94:95], s[84:85]")
    for u in (3, 2, 1, 0):
        I(f"v_add_u32 v109, {4*u}, v107")
        I("v_xor_b32 v109, v109, v106")
        I(f"v_lshl_add_u32 v{TF+4+u}, v109, 4, v108")
    I("s_waitcnt lgkmcnt(0)")
    for u in range(4):
        I(f"v_mov_b32 v{TA+u}, v{TF+4+u}")
    I("s_mov_b32 s89, 0")
    NPB = 8
    TB, KA, SJ, KB, RB = 40, 48, 56, 64, 80
    LJ, LCH, LONE, Y = 96, 97, 98, 99
    MB = 52
    def mb(p, w): return f"s[{MB+4*p+2*w}:{MB+4*p+2*w+1}]"
    LA, PA0, PA1, TOA = KB, KB + 1, KB + 2, KB + 3
    I(f"v_lshrrev_b32 v{Y}, 2, v{X0}")
    I("s_lshl_b32 s42, s21, 11")
    I(f"v_lshl_add_u32 v{LA}, v{Y}, 4, s42")
    I(f"v_lshrrev_b32 v{Y+1}, 1, v{Y}")
    I("s_lshl_b32 s43, s21, 5")
    I(f"s_sub_u32 s44, {NCH-128}, s43")
    I(f"v_cmp_gt_i32 s[46:47], s44, v{Y+1}")
    I(f"s_mov_b32 s44, {CSTRIDE}")
    I(f"v_mul_u32_u24 v{Y+1}, s44, v{Y+1}")
    I(f"v_and_b32 v{Y+2}, 16, v{LA}")
    I(f"v_add_u32 v{PA0}, v{Y+1}, v{Y+2}")
    I(f"v_cndmask_b32 v{PA1}, 2.0, v{PA0}, s[46:47]")
    I(f"v_and_b32 v{LJ}, 7, v{Y}")
    I(f"v_lshrrev_b32 v{Y+1}, 3, v{Y}")
    I(f"v_mul_u32_u24 v{LCH}, s44, v{Y+1}")
    I(f"v_lshl_add_u32 v{RB}, v{Y+1}, 5, s42")
    I("s_mul_i32 s38, s43, s44")
    I(f"v_add_u32 v{LCH}, s38, v{LCH}")
    I(f"v_mov_b32 v{LONE}, 1")
    I("s_lshl_b32 s36, s20, 5")
    I(f"s_add_u32 s36, s36, {TABOFF+8192}")
    I("s_add_u32 s36, s36, s38")
    I(f"s_add_u32 s37, s36, {128*CSTRIDE}")
    I("s_lshl_b32 s42, s21, 6")
    I(f"v_add_u32 v{Y}, s42, v{Y}")
    I(f"v_mul_u32_u24 v{Y+1}, 0xaab, v{Y}")
    I(f"v_lshrrev_b32 v{Y+1}, 16, v{Y+1}")
    I(f"v_mul_u32_u24 v{Y+1}, {SSTR-24*32}, v{Y+1}")
    I(f"v_lshl_add_u32 v{TOA}, v{Y}, 5, v{Y+1}")
    I(f"v_add_u32 v{TOA}, {SCR+28}, v{TOA}")
    I(f"s_movk_i32 s42, {NCH}")
    I(f"v_cmp_gt_u32 s[92:93], s42, v{Y}")
    if c.pfx2_pos == 1:
        I("s_mov_b64 s[40:41], s[46:47]")
        prefetch_x(e, c.pfx2_lines, 114, 117, 256, 31, 0, 4, c.pfx_lines)
        I("s_mov_b64 s[46:47], s[40:41]")
    stamp(e, c, 14)
    e.label("L2_m_round")
    I("s_barrier")
    I("s_cmp_eq_u32 s23, 1")
    I("s_cbranch_scc1 L2_m_slowC")
    def pollB_issue():
        I(f"buffer_load_dwordx4 v[{TF+4}:{TF+7}], v{PA0}, s[8:11], s36 offen sc1")
        I(f"buffer_load_dwordx4 v[{TF+8}:{TF+11}], v{PA1}, s[8:11], s37 offen sc1")
    I(f"ds_read_b32 v{TF}, v{X0} offset:{HIST}")
    I(f"ds_read_b32 v{TF+1}, v{X0} offset:{HIST2}")
    I(f"ds_read_b32 v{Y}, v{TOA}")
    I("s_waitcnt lgkmcnt(0)")
    I(f"v_add_u32 v{TF}, v{TF}, v{TF+1}")
    I(f"v_and_b32 v{Y}, 0xfff, v{Y}")
    I(f"v_cndmask_b32 v{Y}, 0, v{Y}, s[92:93]")
    scan64(e, TF)
    scan64(e, Y)
    I(f"v_readlane_b32 s42, v{TF}, 63")
    I(f"v_mov_b32 v{Y+2}, 0")
    I("s_mov_b32 exec_lo, 0")
    I("s_mov_b32 exec_hi, 0x80000000")
    I(f"ds_add_u32 v{Y+2}, v{Y} offset:{TOTB}")
    I("s_mov_b64 exec, -1")
    I(f"s_cmp_gt_u32 s42, {CAP}")
    I("s_cbranch_scc1 L2_m_overflow")
    if c.bearly: pollB_issue()
    I("s_waitcnt lgkmcnt(0)")
    I("s_barrier")
    I(f"ds_read_b32 v{Y}, v{Y+2} offset:{TOTB}")
    SEL = Y + 4
    E2 = [TF, TF + 8]
    I("s_mov_b32 s44, 0")
    I("s_waitcnt lgkmcnt(0)")
    I(f"v_readfirstlane_b32 s42, v{Y}")
    I(f"v_or_b32 v{SEL}, 0x0c0c0c00, v{LJ}")
    I(f"s_cmp_gt_u32 s42, {CAP}")
    I("s_cbranch_scc1 L2_m_overflow")
    stamp(e, c, 10)
    I("s_mov_b32 s34, s42")
    if c.x_nobload: I("s_branch L2_bnoxb")
    if c.bearly: I("s_branch L2_pollB_w")
    e.label("L2_pollB")
    pollB_issue()
    e.label("L2_pollB_w")
    I("s_add_u32 s44, s44, 1")
    I("s_waitcnt vmcnt(0)")
    tag_bad(e, Y, TF+4, Y+1, ODD)
    tag_bad(e, Y+2, TF+8, Y+1, ODD)
    I(f"v_cndmask_b32 v{Y+2}, 0, v{Y+2}, s[46:47]")
    I(f"v_or_b32 v{Y}, v{Y}, v{Y+2}")
    I(f"v_cmp_ne_u32 vcc, 0, v{Y}")
    e.nop(2)
    I("s_cmp_eq_u64 vcc, 0")
    I("s_cbranch_scc1 L2_pollB_ok")
    I(f"s_sleep {c.psleep}")
    I("s_cmp_lt_u32 s44, 0x100000")
    I("s_cbranch_scc1 L2_pollB")
    e.label("L2_pollB_ok")
    stamp(e, c, 7)
    I(f"ds_write_b128 v{LA}, v[{TF+4}:{TF+7}] offset:{CEB}")
    I(f"ds_write_b128 v{LA}, v[{TF+8}:{TF+11}] offset:{CEB+1024}")
    def boff(p): return ((128 if p >= 4 else 0) + 8 * (p & 3)) * CSTRIDE
    def ent_read(p):
        r = E2[p & 1]
        I(f"ds_read_b128 v[{r}:{r+3}], v{RB} offset:{CEB+256*p}")
        I(f"ds_read_b64 v[{r+4}:{r+5}], v{RB} offset:{CEB+256*p+16}")
    ent_read(0); ent_read(1)
    I(f"v_add_u32 v{Y+1}, 8, v{LJ}")
    for p in range(NPB):
        r = E2[p & 1]
        I(f"s_waitcnt lgkmcnt({2 if p < NPB-1 else 0})")
        I(f"v_and_b32 v{SJ+p}, 0xfff, v{r}")
        I(f"v_bfe_u32 v{TB+p}, v{r}, 12, 12")
        I(f"v_perm_b32 v{KB+2*p}, v{r+3}, v{r+2}, v{SEL}")
        I(f"v_perm_b32 v{KB+2*p+1}, v{r+5}, v{r+4}, v{SEL}")
        if p + 2 < NPB: ent_read(p + 2)
        I(f"v_add_u32 v{SJ+p}, v{SJ+p}, v{LJ}")
        I(f"v_cmp_lt_u32 {mb(p,0)}, v{LJ}, v{TB+p}")
        I(f"v_cmp_lt_u32 {mb(p,1)}, v{Y+1}, v{TB+p}")
        I(f"v_lshl_add_u32 v{SJ+p}, v{SJ+p}, 4, v{LCH}")
    P0 = [TF, TF+4, TF+8, TF+12]
    def pay_issue(p, w, reg):
        I(f"s_mov_b32 s42, {boff(p)+PAYOFF}")
        I("s_mov_b64 exec, -1")
        I(f"v_cndmask_b32 v{Y+2+w}, 2.0, v{SJ+p}, {mb(p,w)}")
        I(f"buffer_load_dwordx4 v[{reg}:{reg+3}], v{Y+2+w}, s[8:11], s42 offen offset:{128*w} {rf}")
    for k in range(4): pay_issue(k >> 1, k & 1, P0[k])
    I(f"v_max3_u32 v{Y}, v{TB}, v{TB+1}, v{TB+2}")
    I(f"v_max3_u32 v{Y}, v{Y}, v{TB+3}, v{TB+4}")
    I(f"v_max3_u32 v{Y}, v{Y}, v{TB+5}, v{TB+6}")
    I(f"v_max_u32 v{Y}, v{Y}, v{TB+7}")
    I(f"v_cmp_lt_u32 vcc, 16, v{Y}")
    I(f"v_mov_b32 v{Y+1}, v{RB}")
    for p in range(NPB):
        for w in range(2):
            I(f"s_mov_b64 exec, {mb(p,w)}")
            I(f"ds_add_rtn_u32 v{RB+2*p+w}, v{KB+2*p+w}, v{LONE} offset:{HISTB}")
    I("s_mov_b64 exec, -1")
    I("s_cmp_lg_u64 vcc, 0")
    I("s_cselect_b32 s35, 1, 0")
    I("s_cbranch_scc0 L2_bnoxa")
    def w2mask(p):
        I(f"v_min_u32 v{Y+2}, {KIN}, v{TB+p}")
        I(f"v_add_u32 v{Y+3}, 16, v{LJ}")
        I(f"v_cmp_lt_u32 vcc, v{Y+3}, v{Y+2}")
        I("s_and_saveexec_b64 s[44:45], vcc")
    for p in range(NPB):
        w2mask(p)
        e.branch(f"s_cbranch_execz L2_bw2a{p}")
        I(f"ds_read_b32 v{KA+p}, v{Y+1} offset:{CEB+256*p+24}")
        I("s_waitcnt lgkmcnt(0)")
        I(f"v_perm_b32 v{KA+p}, v{KA+p}, v{KA+p}, v{SEL}")
        I(f"ds_add_rtn_u32 v{Y+2}, v{KA+p}, v{LONE} offset:{HISTB}")
        I("s_waitcnt lgkmcnt(0)")
        I(f"v_lshl_or_b32 v{KA+p}, v{Y+2}, 8, v{KA+p}")
        e.label(f"L2_bw2a{p}")
        I("s_mov_b64 exec, -1")
    def key_addr(p, dst):
        I(f"v_sub_u32 v{dst}, v{SJ+p}, v{LCH}")
        I(f"v_lshrrev_b32 v{dst}, 4, v{dst}")
        I(f"v_add_u32 v{dst}, v{dst}, v{LCH}")
    for p in range(NPB):
        I(f"s_mov_b32 s42, {boff(p)+KEYOFF}")
        key_addr(p, Y+3)
        extra_count(f"b{p}", KIN, LJ, Y+3, TB+p, 42, LONE, HIST2B, Y)
    e.label("L2_bnoxa")
    I("s_mov_b64 exec, 1")
    I(f"v_mov_b32 v{Y+2}, 0")
    I("s_waitcnt lgkmcnt(0)")
    I(f"ds_add_u32 v{Y+2}, v{LONE} offset:{BSYNC}")
    I("s_mov_b64 exec, -1")
    I(f"v_mov_b32 v{Y+2}, 0")
    spin(e, "bs", Y, Y+2, BSYNC, 4, 44, 42)
    BB = Y + 4
    I(f"ds_read_b32 v{Y}, v{X0} offset:{HISTB}")
    I(f"ds_read_b32 v{Y+1}, v{X0} offset:{HIST2B}")
    I("s_waitcnt lgkmcnt(0)")
    I(f"v_add_u32 v{Y+1}, v{Y}, v{Y+1}")
    I(f"v_mov_b32 v{BB}, v{Y+1}")
    scan64(e, BB)
    I(f"v_sub_u32 v{BB}, v{BB}, v{Y+1}")
    I(f"v_add_u32 v{BB}, {BOFF}, v{BB}")
    for k in range(2*NPB):
        I(f"ds_bpermute_b32 v{KB+k}, v{KB+k}, v{BB}")
    I("s_cmp_lg_u32 s21, 0")
    I("s_cbranch_scc1 L2_bnoinfo")
    I(f"v_lshl_or_b32 v{Y+1}, v{Y+1}, 16, v{BB}")
    I(f"s_mov_b32 exec_lo, {((1 << 32) - (1 << HN))}")
    I(f"ds_write_b32 v{X0}, v{Y+1} offset:{INFO}")
    I("s_mov_b64 exec, -1")
    e.label("L2_bnoinfo")
    I("s_waitcnt lgkmcnt(0)")
    for k in range(2*NPB):
        I(f"v_add_lshl_u32 v{KB+k}, v{KB+k}, v{RB+k}, 4")
    I(f"v_mov_b32 v{LONE}, v{Y}")
    regs = P0 + [RB, RB+4, RB+8, RB+12]
    for k in range(4, 8): pay_issue(k >> 1, k & 1, regs[k])
    for k in range(16):
        I(f"s_waitcnt vmcnt({min(7, 15-k)})")
        I(f"s_mov_b64 exec, {mb(k>>1, k&1)}")
        I(f"ds_write_b128 v{KB+k}, v[{regs[k&7]}:{regs[k&7]+3}] offset:{RAW}")
        if k + 8 < 16: pay_issue((k+8) >> 1, (k+8) & 1, regs[k&7])
    I("s_mov_b64 exec, -1")
    I("s_cmp_eq_u32 s35, 0")
    I("s_cbranch_scc1 L2_bnoxb")
    for p in range(NPB):
        I(f"v_and_b32 v{Y}, 0xff, v{KA+p}")
        I(f"ds_bpermute_b32 v{Y}, v{Y}, v{BB}")
        w2mask(p)
        e.branch(f"s_cbranch_execz L2_bw2b{p}")
        I(f"s_mov_b32 s42, {boff(p)+PAYOFF}")
        I(f"buffer_load_dwordx4 v[{TF}:{TF+3}], v{SJ+p}, s[8:11], s42 offen offset:256 {rf}")
        I(f"v_lshrrev_b32 v{KA+p}, 8, v{KA+p}")
        I("s_waitcnt vmcnt(0) lgkmcnt(0)")
        I(f"v_add_lshl_u32 v{Y}, v{Y}, v{KA+p}, 4")
        I(f"ds_write_b128 v{Y}, v[{TF}:{TF+3}] offset:{RAW}")
        e.label(f"L2_bw2b{p}")
        I("s_mov_b64 exec, -1")
        I("s_waitcnt lgkmcnt(0)")
    I(f"v_add_u32 v{BB}, v{BB}, v{LONE}")
    I(f"v_mov_b32 v{LONE}, 1")
    for p in range(NPB):
        I(f"s_mov_b32 s42, {boff(p)+KEYOFF}")
        I(f"s_mov_b32 s43, {boff(p)+PAYOFF}")
        key_addr(p, KA+p)
        extra_move(f"b{p}", KIN, LJ, KA+p, SJ+p, TB+p, 42, 43, LONE, CUR2B, BB, Y, TF)
    e.label("L2_bnoxb")
    I("s_waitcnt lgkmcnt(0)")
    for k in range(64):
        I(f"v_mov_b32 v{G+k}, 0")
    I("s_cmp_lg_u32 s21, 1")
    I("s_cbranch_scc1 L2_bnoguard")
    I(f"s_add_u32 s42, s34, {BOFF}")
    I("s_lshl_b32 s42, s42, 4")
    I(f"v_lshl_add_u32 v{TF}, v{X0}, 2, s42")
    I(f"ds_write_b128 v{TF}, v[{G}:{G+3}] offset:{RAW}")
    I("s_waitcnt lgkmcnt(0)")
    e.label("L2_bnoguard")
    I(f"v_mov_b32 v{TF}, 1")
    I("s_mov_b64 exec, 1")
    I(f"ds_add_u32 v{G}, v{TF} offset:{BREADY}")
    I("s_mov_b64 exec, -1")
    stamp(e, c, 13)
    I("s_branch L2_m_tiles")
    e.label("L2_m_slowC")
    I("s_barrier")
    e.label("L2_m_tiles")
    for h in range(2):
        for t in ((0, 3, 1, 2) if h else range(4)):
            need = 16 if t < 3 else NODES - 48
            last = (h, t) == (1, 2)
            if last and c.split: need = 32
            I(f"v_mov_b32 v{TF}, 0")
            spin(e, f"t{h}{t}", TF+1, TF, DONE + 16*h + 4*t, need, 43, 42, sleep=(1 if last else c.sleep))
            stamp(e, c, 16 + 4*h + t)
            srcs = [t] + ([0] if last and c.split else [])
            steps = [(tt, ks) for tt in srcs for ks in range(16)]
            def mf(ks, r):
                jp, blk = ks >> 2, 2 * h + ((ks >> 1) & 1)
                p, i, sg = path_of(jp, blk)
                f = p * 2 + (ks & 1)
                g = G + 16 * t + 4 * i
                I(f"v_mfma_f32_16x16x32_bf16 v[{g}:{g+3}], v[{W+4*f}:{W+4*f+3}], v[{r}:{r+3}], v[{g}:{g+3}]")
            def rd(n, r):
                tt, ks = steps[n]
                I(f"ds_read_b128 v[{r}:{r+3}], v{TA+(ks&3)} offset:{tt*16384 + (ks>>2)*256}")
            for n in range(4): rd(n, TF + 4*n)
            for n in range(len(steps)):
                I(f"s_waitcnt lgkmcnt({min(3, len(steps)-1-n)})")
                mf(steps[n][1], TF + 4*(n&3))
                if n + 4 < len(steps): rd(n + 4, TF + 4*(n&3))
            if (h, t) == (1, 0) and c.split:
                I(f"v_mov_b32 v{TF}, 0")
                I(f"v_mov_b32 v{TF+1}, 1")
                I("s_mov_b64 exec, 1")
                I(f"ds_add_u32 v{TF}, v{TF+1} offset:{GDONE + 16}")
                I("s_mov_b64 exec, -1")
            if h == 0:
                I(f"v_mov_b32 v{TF}, 0")
                I(f"v_mov_b32 v{TF+1}, 1")
                I("s_mov_b64 exec, 1")
                I(f"ds_add_u32 v{TF}, v{TF+1} offset:{GDONE + 4*t}")
                I("s_mov_b64 exec, -1")
            else:
                I("s_cmp_eq_u32 s24, 0")
                e.branch(f"s_cbranch_scc1 L2_nofin{t}")
                g = G + 16 * t
                I("s_mov_b32 s42, 0xbfb8aa3b")
                for r in range(4): I(f"v_mul_f32 v{TF+r}, s42, v{g+r}")
                for r in range(4): I(f"v_exp_f32 v{TF+r}, v{TF+r}")
                for r in range(4): I(f"v_add_f32 v{TF+r}, 1.0, v{TF+r}")
                for r in range(4): I(f"v_rcp_f32 v{TF+r}, v{TF+r}")
                for i in range(1, 4):
                    for r in range(4): I(f"v_mul_f32 v{g+4*i+r}, v{g+4*i+r}, v{TF+r}")
                for i in range(4):
                    I(f"v_cvt_pk_bf16_f32 v{TF+4+2*i}, v{g+4*i}, v{g+4*i+1}")
                    I(f"v_cvt_pk_bf16_f32 v{TF+5+2*i}, v{g+4*i+2}, v{g+4*i+3}")
                I(f"s_mov_b32 s42, {t*16*512 + ((N//2-HN)*512 if t >= 2 else 0)}")
                va = X1
                if t == 1:
                    va = TF
                    I(f"v_add_u32 v{TF}, {(N//2-HN)*512}, v{X1}")
                    I(f"v_cndmask_b32 v{TF}, v{X1}, v{TF}, s[84:85]")
                    I("s_mov_b64 exec, s[94:95]")
                if t == 3:
                    I("s_mov_b64 exec, s[50:51]")
                    I("s_cbranch_execz L2_nost3")
                for i in range(4):
                    I(f"buffer_store_dwordx2 v[{TF+4+2*i}:{TF+5+2*i}], v{va}, s[12:15], s42 offen offset:{i*128} {c.out_flags}")
                if t == 3: e.label("L2_nost3")
                if t in (1, 3): I("s_mov_b64 exec, -1")
                e.label(f"L2_nofin{t}")
    stamp(e, c, 11)
    I("s_cmp_lg_u32 s24, 0")
    e.branch("s_cbranch_scc1 L2_m_exit")
    I("s_add_u32 s89, s89, 1")
    I("s_branch L2_m_slow")
    e.label("L2_m_overflow")
    I("s_mov_b32 s89, 0")
    I("s_mov_b32 s23, 1")
    I("s_waitcnt vmcnt(0)")
    for k in range(64):
        I(f"v_mov_b32 v{G+k}, 0")
    e.label("L2_m_slow")
    I("s_waitcnt vmcnt(0) lgkmcnt(0)")
    I("s_barrier")
    I(f"s_cmp_eq_u32 s89, {2*NCH-1}")
    I("s_cselect_b32 s24, 1, 0")
    I("s_cmp_lg_u32 s21, 1")
    I("s_cbranch_scc1 L2_m_nz")
    for k in range(4): I(f"v_mov_b32 v{TF+k}, 0")
    I(f"v_lshlrev_b32 v{TF+4}, 2, v{X0}")
    I(f"ds_write_b128 v{TF+4}, v[{TF}:{TF+3}]")
    I("s_waitcnt lgkmcnt(0)")
    e.label("L2_m_nz")
    I("s_barrier")
    e.branch("s_branch L2_m_round")
    e.label("L2_m_exit")
    if c.stamps:
        I("s_waitcnt vmcnt(0)")
        stamp(e, c, 12)
        stamp_store(e, c, TF)
    e.label("L_end")
    I("s_endpgm")
    e.label("L_codeend")
    return KNAME, 128, 96

def gather_loop(e, c, L):
    I = e.I
    RAW, T, NEXT, DONE, GDONE, OSC, PL1, BREADY, INFO = (L[k] for k in "RAW T NEXT DONE GDONE OSC PL1 BREADY INFO".split())
    VLANE, VINFO, VNEXT, VLOFF, VMASK, VOW, VOR, VSCRW, VTRA, VWR, VL16, VT0, VT1, VONE = (L[k] for k in
        "VLANE VINFO VNEXT VLOFF VMASK VOW VOR VSCRW VTRA VWR VL16 VT0 VT1 VONE".split())
    ACC, LD, B, A, AD = 0, 32, 64, 96, 100
    sA, sR, sH, sN, sNV = 32, 33, 34, 35, 37
    sCN, sCH, sCF, sCR, sL = 38, 39, 40, 41, 36
    uid = [0]
    def lab(p):
        uid[0] += 1
        return f"L2_{p}{uid[0]}"
    def fetch_issue():
        I("s_mov_b64 exec, 1")
        I(f"ds_add_rtn_u32 v{VNEXT}, v{VL16}, v{VONE} offset:{NEXT}")
        I("s_mov_b64 exec, -1")
    NIT = 2*NODES + (16 if c.split else 0)
    def setup_item(none_label):
        I(f"v_readfirstlane_b32 s42, v{VNEXT}")
        e.nop(1)
        I(f"s_cmp_ge_u32 s42, {NIT}")
        I(f"s_cbranch_scc1 {none_label}")
        t, sp, dn = lab("bw"), lab("sp"), lab("sd")
        if c.split:
            I(f"s_cmp_ge_u32 s42, {2*NODES-16}")
            I(f"s_cbranch_scc1 {sp}")
        I(f"s_cmp_ge_u32 s42, {NODES}")
        I(f"s_cselect_b32 s{sH}, 256, 0")
        I(f"s_cselect_b32 s43, {NODES}, 0")
        I(f"s_cmp_ge_u32 s42, {NODES+16}")
        I(f"s_cselect_b32 s43, {NODES-32}, s43")
        I(f"s_cmp_ge_u32 s42, {NODES+18}")
        I(f"s_cselect_b32 s43, {NODES+2}, s43")
        I(f"s_sub_u32 s{sN}, s42, s43")
        I(f"s_cmp_lt_u32 s{sN}, s48")
        I(f"s_cbranch_scc1 {t}")
        stamp(e, c, 29)
        I(f"v_mov_b32 v{VT0}, 0")
        spin(e, t, VT1, VT0, BREADY, 4, 45, 44, sleep=1)
        I(f"v_lshrrev_b32 v{VT0}, 2, v{VL16}")
        I(f"ds_read_b32 v{VINFO}, v{VT0} offset:{INFO}")
        I("s_movk_i32 s48, 64")
        I("s_waitcnt lgkmcnt(0)")
        stamp(e, c, 30)
        e.label(t)
        I(f"v_readlane_b32 s42, v{VINFO}, s{sN}")
        e.nop(1)
        I(f"s_lshr_b32 s{sR}, s42, 16")
        I("s_and_b32 s42, s42, 0xffff")
        I(f"s_lshl_b32 s{sA}, s42, 4")
        if c.split:
            I(f"s_branch {dn}")
            e.label(sp)
            I(f"s_sub_u32 s42, s42, {2*NODES-16}")
            I("s_lshr_b32 s43, s42, 1")
            I(f"s_add_u32 s{sN}, s43, 32")
            I(f"s_cmp_lt_u32 s{sN}, s48")
            I(f"s_cbranch_scc1 {t}b")
            I(f"v_mov_b32 v{VT0}, 0")
            spin(e, t + "c", VT1, VT0, BREADY, 4, 45, 44, sleep=1)
            I(f"v_lshrrev_b32 v{VT0}, 2, v{VL16}")
            I(f"ds_read_b32 v{VINFO}, v{VT0} offset:{INFO}")
            I("s_movk_i32 s48, 64")
            I("s_waitcnt lgkmcnt(0)")
            e.label(t + "b")
            I(f"v_readlane_b32 s44, v{VINFO}, s{sN}")
            I(f"s_movk_i32 s{sH}, 256")
            I(f"s_lshr_b32 s{sR}, s44, 16")
            I("s_and_b32 s44, s44, 0xffff")
            I(f"s_min_u32 s45, s{sR}, 32")
            I("s_bitcmp1_b32 s42, 0")
            I(f"s_cbranch_scc1 {sp}h")
            I(f"s_mov_b32 s{sR}, s45")
            I(f"s_lshl_b32 s{sA}, s44, 4")
            I(f"s_branch {dn}")
            e.label(sp + "h")
            I(f"s_sub_u32 s{sR}, s{sR}, s45")
            I("s_add_u32 s44, s44, s45")
            I(f"s_lshl_b32 s{sA}, s44, 4")
            I(f"s_or_b32 s{sN}, s43, 64")
            e.label(dn)
    def off_read(hf):
        I(f"ds_read_b128 v[{AD}:{AD+3}], v{VOR} offset:{OSC+128*hf}")
        I(f"ds_read_b128 v[{AD+4}:{AD+7}], v{VOR} offset:{OSC+128*hf+16}")
    def off_add():
        if c.addtid: return
        for i in range(8):
            I(f"v_add_u32 v{AD+i}, v{AD+i}, v{VLOFF}")
    def prep_block():
        r = B
        I(f"v_add_u32 v{VT0}, s{sA}, v{VL16}")
        I(f"ds_read_b128 v[{r}:{r+3}], v{VT0} offset:{RAW}")
        l = lab("nf")
        I(f"s_cmp_gt_u32 s{sR}, 64")
        I(f"s_cbranch_scc1 {l}")
        fetch_issue()
        e.label(l)
        I(f"v_cmp_gt_u32 vcc, s{sR}, v{VLANE}")
        I("s_waitcnt lgkmcnt(0)")
        I(f"v_lshrrev_b32 v{r+11}, 16, v{r+3}")
        if c.addtid:
            I(f"v_lshlrev_b32 v{r+11}, 5, v{r+11}")
            I(f"v_sub_u32 v{r+11}, v{r+11}, v{VLOFF}")
        else:
            I(f"v_lshlrev_b32 v{r+11}, 9, v{r+11}")
            if c.oobtail: I(f"v_cndmask_b32 v{r+11}, 2.0, v{r+11}, vcc")
        I(f"ds_write_b32 v{VOW}, v{r+11} offset:{OSC}")
        off_read(0)
        if not c.x_noexp:
            I(f"v_cndmask_b32 v{r}, 0, v{r}, vcc")
            I(f"v_cndmask_b32 v{r+1}, 0, v{r+1}, vcc")
            I(f"v_lshlrev_b32 v{r+8}, 16, v{r+2}")
            I(f"v_and_b32 v{r+9}, v{VMASK}, v{r+2}")
            I(f"v_lshlrev_b32 v{r+10}, 16, v{r+3}")
            I(f"v_lshlrev_b32 v{r+4}, 16, v{r}")
            I(f"v_and_b32 v{r+5}, v{VMASK}, v{r}")
            I(f"v_lshlrev_b32 v{r+6}, 16, v{r+1}")
            I(f"v_and_b32 v{r+7}, v{VMASK}, v{r+1}")
            for j in range(3):
                for d in range(4):
                    I(f"v_mul_f32 v{r+12+4*j+d}, v{r+4+d}, v{r+8+j}")
            I(f"v_cvt_pk_bf16_f32 v{r+2}, v{r+12}, v{r+13}")
            I(f"v_cvt_pk_bf16_f32 v{r+3}, v{r+14}, v{r+15}")
            for k in range(4):
                I(f"v_cvt_pk_bf16_f32 v{r+24+k}, v{r+16+2*k}, v{r+17+2*k}")
        I(f"ds_write_b128 v{VSCRW}, v[{r}:{r+3}]")
        I(f"ds_write_b128 v{VSCRW}, v[{r+24}:{r+27}] offset:{PL1}")
        I("s_waitcnt lgkmcnt(2)")
        off_add()
    def ld(i):
        if c.x_noload: return
        I(f"buffer_load_dwordx4 v[{LD+4*i}:{LD+4*i+3}], v{AD+i}, s[4:7], {'0' if c.x_samehalf else 's%d' % sH} {'idxen' if c.addtid else 'offen'}")
    def perm(q, jj, k16=False):
        if c.x_noperm: return
        d = B + 2*q + jj if k16 else B + 4*q + jj
        I(f"v_perm_b32 v{d}, v{LD+4*(2*jj+1)+q//2}, v{LD+4*(2*jj)+q//2}, s{29 if q & 1 else 28}")
    def loads_partial(done):
        for i in range(7):
            I(f"s_cmp_le_u32 s{sL}, {4*i}")
            I(f"s_cbranch_scc1 {done}")
            ld(i)
    def perms_loads():
        part, done = lab("pp"), lab("pd")
        I("s_waitcnt vmcnt(0)")
        I(f"s_cmp_le_u32 s{sL}, 28")
        I(f"s_cbranch_scc1 {part}")
        for jj in range(4):
            for q in range(8): perm(q, jj)
            ld(2*jj); ld(2*jj+1)
        I(f"s_branch {done}")
        e.label(part)
        for jj in range(4):
            for q in range(8): perm(q, jj)
        loads_partial(done)
        e.label(done)
    def mfmas(first, k16=False):
        if c.x_nomfma: return
        for q in range(8):
            d = f"v[{ACC+4*q}:{ACC+4*q+3}]"
            if k16: I(f"v_mfma_f32_16x16x16_bf16 {d}, v[{A}:{A+1}], v[{B+2*q}:{B+2*q+1}], {'0' if first else d}")
            else: I(f"v_mfma_f32_16x16x32_bf16 {d}, v[{A}:{A+3}], v[{B+4*q}:{B+4*q+3}], {'0' if first else d}")
    def tr_read(hf):
        I(f"ds_read_b64_tr_b16 v[{A}:{A+1}], v{VTRA} offset:{512*hf}")
        I(f"ds_read_b64_tr_b16 v[{A+2}:{A+3}], v{VTRA} offset:{512*hf+256}")

    if c.stamps: I("s_mov_b32 s92, 16")
    setup_item("L2_g_done")
    prep_block()
    for i in range(8): ld(i)
    for first in (1, 0):
        e.label(f"L2_A{first}")
        tr_read(0)
        I(f"s_cmp_gt_u32 s{sR}, 32")
        I(f"s_cbranch_scc1 L2_AB{first}")
        I(f"s_mov_b32 s{sCF}, {first}")
        I(f"s_mov_b32 s{sCR}, s{sR}")
        I("s_branch L2_XN")
        e.label(f"L2_AB{first}")
        off_read(1)
        I(f"s_sub_u32 s{sL}, s{sR}, 32")
        I("s_waitcnt lgkmcnt(0)")
        off_add()
        perms_loads()
        mfmas(first)
        if first: I("s_branch L2_B")
    e.label("L2_B")
    tr_read(1)
    I(f"s_cmp_gt_u32 s{sR}, 64")
    I("s_cbranch_scc0 L2_BN")
    I(f"s_sub_u32 s{sR}, s{sR}, 64")
    I(f"s_add_u32 s{sA}, s{sA}, 1024")
    I(f"s_mov_b32 s{sL}, s{sR}")
    prep_block()
    perms_loads()
    I("s_waitcnt lgkmcnt(0)")
    mfmas(0)
    I("s_branch L2_A0")
    e.label("L2_BN")
    I(f"s_mov_b32 s{sCF}, 0")
    I(f"s_sub_u32 s{sCR}, s{sR}, 32")
    e.label("L2_XN")
    I(f"s_mov_b32 s{sCN}, s{sN}")
    I(f"s_mov_b32 s{sCH}, s{sH}")
    I(f"s_mov_b32 s{sNV}, 1")
    setup_item("L2_XN_none")
    I(f"s_mov_b32 s{sL}, s{sR}")
    prep_block()
    I("s_branch L2_XN_go")
    e.label("L2_XN_none")
    I(f"s_mov_b32 s{sNV}, 0")
    I(f"s_mov_b32 s{sL}, 0")
    e.label("L2_XN_go")
    I(f"s_cmp_le_u32 s{sCR}, 16")
    I("s_cbranch_scc1 L2_XN_k16")
    perms_loads()
    I("s_waitcnt lgkmcnt(0)")
    I(f"s_cmp_eq_u32 s{sCF}, 0")
    I("s_cbranch_scc1 L2_XN_acc")
    mfmas(1)
    I("s_branch L2_XN_epi")
    e.label("L2_XN_acc")
    mfmas(0)
    I("s_branch L2_XN_epi")
    e.label("L2_XN_k16")
    I("s_waitcnt vmcnt(0)")
    for jj in range(2):
        for q in range(8): perm(q, jj, True)
    I(f"s_cmp_le_u32 s{sL}, 28")
    I("s_cbranch_scc1 L2_XN_k16p")
    for i in range(8): ld(i)
    I("s_branch L2_XN_k16d")
    e.label("L2_XN_k16p")
    loads_partial("L2_XN_k16d")
    e.label("L2_XN_k16d")
    I("s_waitcnt lgkmcnt(0)")
    I(f"s_cmp_eq_u32 s{sCF}, 0")
    I("s_cbranch_scc1 L2_XN_k16acc")
    mfmas(1, True)
    I("s_branch L2_XN_epi")
    e.label("L2_XN_k16acc")
    mfmas(0, True)
    e.label("L2_XN_epi")
    I(f"s_lshl_b32 s42, s{sCH}, 5")
    I(f"v_add_u32 v{VT0}, s42, v{VWR}")
    for q in range(8):
        I(f"ds_read_b128 v[{B+4*q}:{B+4*q+3}], v{VT0} offset:{q*1024}")
    I(f"s_lshr_b32 s43, s{sCN}, 4")
    I(f"s_lshl_b32 s43, s43, 2")
    I(f"s_cmp_eq_u32 s{sCH}, 0")
    I("s_cbranch_scc1 L2_nowar")
    I(f"v_mov_b32 v{VT1}, s43")
    spin(e, "war", VT0, VT1, GDONE, 4, 45, 44)
    if c.split:
        I("s_cmp_eq_u32 s43, 16")
        I("s_cselect_b32 s43, 8, s43")
    I("s_add_u32 s43, s43, 16")
    e.label("L2_nowar")
    I(f"s_and_b32 s44, s{sCN}, 15")
    I("s_lshl_b32 s44, s44, 4")
    I(f"s_and_b32 s45, s{sCN}, 63")
    I(f"s_lshl_b32 s45, s45, 10")
    I(f"s_add_u32 s45, s45, {T}")
    I(f"v_xor_b32 v{VT0}, s44, v{VL16}")
    I(f"v_add_u32 v{VT0}, s45, v{VT0}")
    I(f"v_mov_b32 v{VT1}, s43")
    I("s_waitcnt lgkmcnt(0)")
    for q in range(8):
        I(f"v_mul_f32 v{B+4*q}, v{B+4*q}, v{ACC+4*q}")
    for d in range(1, 4):
        for q in range(8):
            I(f"v_fmac_f32 v{B+4*q}, v{B+4*q+d}, v{ACC+4*q+d}")
    for k in range(4):
        I(f"v_cvt_pk_bf16_f32 v{A+k}, v{B+8*k}, v{B+8*k+4}")
    I(f"ds_write_b128 v{VT0}, v[{A}:{A+3}]")
    if not c.nowait: I("s_waitcnt lgkmcnt(0)")
    I("s_mov_b64 exec, 1")
    I(f"ds_add_u32 v{VT1}, v{VONE} offset:{DONE}")
    I("s_mov_b64 exec, -1")
    if c.stamps:
        I("s_memrealtime s[90:91]")
        I("s_waitcnt lgkmcnt(0)")
        I("s_mov_b32 m0, s92")
        I(f"v_writelane_b32 v{STV}, s90, m0")
        I("s_add_u32 s92, s92, 1")
        I("s_min_u32 s92, s92, 23")
    I(f"s_cmp_lg_u32 s{sNV}, 0")
    I("s_cbranch_scc1 L2_A1")

HEADER = """; equiformer tensor-product message passing, one persistent launch (one workgroup per CU):
"""

def gen_probe(e, c):
    kA, a0, a1, sA, oA, kB, b0, b1, sB, oB = c.probe.split(",")
    kernel_header(e, "eqprobe_kernel")
    I = e.I
    I("s_cmp_ge_u32 s2, 1")
    I("s_cbranch_scc1 LP_end")
    I("s_memrealtime s[20:21]")
    I("s_load_dwordx2 s[4:5], s[0:1], 88")
    I("s_waitcnt lgkmcnt(0)")
    srd(e, 8, 4, 32 << 20)
    I(f"v_min_u32 v1, {c.nwg-1}, v0")
    I("v_lshlrev_b32 v1, 11, v1")
    I("v_mov_b32 v10, 0"); I("v_mov_b32 v11, -1"); I("v_mov_b32 v12, 0")
    I("ds_write_b32 v10, v11 offset:0"); I("ds_write_b32 v10, v12 offset:4"); I("ds_write_b32 v10, v11 offset:8"); I("ds_write_b32 v10, v12 offset:12")
    I("s_waitcnt lgkmcnt(0)"); I("s_barrier")
    regs = []
    for (k, w0, w1, sl, off) in ((kA, a0, a1, sA, 0), (kB, b0, b1, sB, 8)):
        if k == "now":
            I(f"v_mov_b32 v{16+len(regs)}, s20"); regs.append(off); continue
        I(f"s_mov_b32 s12, {STAMPOFF}")
        for w in range(int(w0), int(w1)):
            I(f"buffer_load_dword v{16+len(regs)}, v1, s[8:11], s12 offen offset:{w*128 + int(sl)*4}")
            regs.append(off)
    I("s_waitcnt vmcnt(0)")
    for off, op in ((0, oA), (8, oB)):
        idx = [n for n, o in enumerate(regs) if o == off]
        for n in idx[1:]:
            I(f"v_{op}_u32 v{16+idx[0]}, v{16+idx[0]}, v{16+n}")
        I(f"ds_{op}_u32 v10, v{16+idx[0]} offset:{off + (0 if op == 'min' else 4)}")
    I("s_waitcnt lgkmcnt(0)"); I("s_barrier")
    I(f"ds_read_b32 v3, v10 offset:{0 if oA == 'min' else 4}")
    I(f"ds_read_b32 v4, v10 offset:{8 if oB == 'min' else 12}")
    I("s_waitcnt lgkmcnt(0)")
    I("v_sub_u32 v3, v3, v4")
    I("v_min_u32 v3, 0x2000, v3")
    I("v_readfirstlane_b32 s14, v3")
    I("s_memrealtime s[16:17]")
    I("s_mul_i32 s14, s14, 10")
    I("s_waitcnt lgkmcnt(0)")
    e.label("LP_spin")
    I("s_memrealtime s[18:19]")
    I("s_waitcnt lgkmcnt(0)")
    I("s_sub_u32 s18, s18, s16")
    I("s_cmp_lt_u32 s18, s14")
    I("s_cbranch_scc1 LP_spin")
    e.label("LP_end")
    I("s_endpgm")
    return "eqprobe_kernel", 64, 32

def generate(c):
    e = Emitter()
    e.raw('.amdgcn_target "amdgcn-amd-amdhsa--gfx950"')
    e.raw(".text")
    k = gen_main(e, c)
    head = HEADER + f"; @launch grid=({c.nwg},1,1) block=(1024,1,1) lds={c.lds}\n"
    tail = '.section .rodata,"a"\n.p2align 6\n' + kd(*k)
    if c.probe:
        kp = gen_probe(e, c)
        head = HEADER + f"; @launch kernel={KNAME} grid=({c.nwg},1,1) block=(1024,1,1) lds={c.lds}\n; @launch kernel=eqprobe_kernel grid=(1,1,1) block=(256,1,1) lds=64\n"
        tail += ".p2align 6\n" + kd(*kp)
    return head + e.text() + tail

if __name__ == "__main__":
    c = Cfg()
    out = sys.argv[1]
    for kv in sys.argv[2:]:
        k, v = kv.split("=", 1)
        old = getattr(c, k)
        setattr(c, k, type(old)(int(v)) if isinstance(old, (bool, int)) else v.replace("+", " "))
    open(out, "w").write(generate(c))
```

```python
import sys
from emit import Emitter

N, E = 12500, 800000
NODES, HN = 50, 25
NCH = 250
CSTRIDE = 70784
KEYOFF, PAYOFF, TABOFF = 0, 3200, 54400
WSBYTES = NCH * CSTRIDE
KIN = 20
KNAME = "gather_scatter__tensor_product_equiv_equiformer__graph_kernel"
STAMPOFF = 24 << 20

class Cfg:
    nwg = 250
    st_flags = "sc1"
    ld_flags = "nt"
    rec_flags = "sc1"
    out_flags = ""
    pfx_lines = 128
    stamps = False
    cap = 1888
    x_noperm = 0
    x_noexp = 0
    x_nomfma = 0
    x_noload = 0
    x_samehalf = 0
    x_nobload = 0
    codepf = 26
    tlbpf = 0
    codeearly = 0
    sleep = 12
    psleep = 2
    probe = ""
    addtid = 0
    split = 0
    pf1_tile = -1
    pf1_lines = 256
    prio_g = 0
    prio_m = 0
    ld2_flags = None
    nowait = 1
    fastlast = 1
    pfx2_lines = 256
    pfx2_pos = 0
    oobtail = 1
    bearly = 1
    tidw3 = "0x00800000"

def srd(e, d, b, nbytes, w1=None, w3="0x20000"):
    e.I(f"s_mov_b32 s{d}, s{b}")
    if w1: e.I(f"s_or_b32 s{d+1}, s{b+1}, {w1}")
    else: e.I(f"s_mov_b32 s{d+1}, s{b+1}")
    e.I(f"s_mov_b32 s{d+2}, {nbytes}")
    e.I(f"s_mov_b32 s{d+3}, {w3}")

def scan64(e, v):
    for sh in (1, 2, 4, 8):
        e.I(f"v_add_u32_dpp v{v}, v{v}, v{v} row_shr:{sh} row_mask:0xf bank_mask:0xf")
    e.I(f"v_add_u32_dpp v{v}, v{v}, v{v} row_bcast:15 row_mask:0xa bank_mask:0xf")
    e.I(f"v_add_u32_dpp v{v}, v{v}, v{v} row_bcast:31 row_mask:0xc bank_mask:0xf")

def prefetch_x(e, nlines, vt, vtid, nthreads, slice_s, half, srdx, first=0, lds=False):
    if nlines <= 0: return 0
    e.I(f"s_mul_i32 s46, s{slice_s}, 782")
    if first: e.I(f"s_add_u32 s46, s46, {first}")
    e.I(f"s_mov_b32 s47, {nlines}")
    it = (nlines + nthreads - 1) // nthreads
    for k in range(it):
        e.I(f"v_add_u32 v{vt}, {k*nthreads}, v{vtid}")
        e.I(f"v_cmp_gt_u32 vcc, s47, v{vt}")
        e.I(f"v_add_u32 v{vt}, s46, v{vt}")
        e.I(f"v_and_b32 v{vt+1}, 1, v{vt}")
        e.I(f"v_lshrrev_b32 v{vt}, 1, v{vt}")
        e.I(f"v_lshlrev_b32 v{vt}, 9, v{vt}")
        e.I(f"v_lshl_add_u32 v{vt}, v{vt+1}, 7, v{vt}")
        e.I(f"v_cndmask_b32 v{vt}, 2.0, v{vt}, vcc")
        if lds:
            if half: e.I(f"v_add_u32 v{vt}, 256, v{vt}")
            e.I(f"buffer_load_dword v{vt}, s[{srdx}:{srdx+3}], 0 offen lds")
        else:
            e.I(f"buffer_load_dword v{vt+2}, v{vt}, s[{srdx}:{srdx+3}], 0 offen offset:{half*256}")
    return it

STV, TIDV = 127, 126
def stamp(e, c, slot, ins="s_memrealtime"):
    if not c.stamps: return
    e.I(f"{ins} s[90:91]")
    e.I("s_waitcnt lgkmcnt(0)")
    e.I(f"v_writelane_b32 v{STV}, s90, {slot}")

def stamp_store(e, c, vtmp):
    if not c.stamps: return
    e.I(f"v_lshrrev_b32 v{vtmp}, 6, v{TIDV}")
    e.I(f"s_lshl_b32 s90, s2, 4")
    e.I(f"v_add_u32 v{vtmp}, s90, v{vtmp}")
    e.I(f"v_lshlrev_b32 v{vtmp}, 7, v{vtmp}")
    e.I(f"v_and_b32 v{vtmp+1}, 63, v{TIDV}")
    e.I(f"v_lshl_add_u32 v{vtmp}, v{vtmp+1}, 2, v{vtmp}")
    e.I(f"v_cmp_gt_u32 vcc, 32, v{vtmp+1}")
    e.I(f"v_cndmask_b32 v{vtmp}, 2.0, v{vtmp}, vcc")
    e.I(f"s_mov_b32 s90, {STAMPOFF}")
    e.I(f"buffer_store_dword v{STV}, v{vtmp}, s[8:11], s90 offen")

def kernel_header(e, name):
    e.raw(f".globl {name}")
    e.raw(".p2align 8")
    e.raw(f".type {name},@function")
    e.raw(f"{name}:")
    e.hist = []

def kd(name, nv, ns):
    return f""".amdhsa_kernel {name}
  .amdhsa_next_free_vgpr {nv}
  .amdhsa_next_free_sgpr {ns}
  .amdhsa_accum_offset {(nv+3)//4*4}
  .amdhsa_group_segment_fixed_size 0
  .amdhsa_kernarg_size 96
  .amdhsa_user_sgpr_count 2
  .amdhsa_user_sgpr_kernarg_segment_ptr 1
  .amdhsa_system_sgpr_workgroup_id_x 1
  .amdhsa_float_denorm_mode_32 3
.end_amdhsa_kernel
"""

def path_of(jp, blk):
    if blk == 0: return (0, 0, 1) if jp == 0 else (2, jp, 1)
    k = blk - 1
    if jp == 0: return (3, 1 + k, 1)
    j = jp - 1
    if j == k: return (1, 0, 1)
    i = 3 - j - k
    return (4, 1 + i, 1 if k == (j + 1) % 3 else -1)

class Lay: pass

def spin(e, tag, vdst, vaddr, off, need, scnt, sval, sleep=None, bound="0x400000"):
    I = e.I
    I(f"s_mov_b32 s{scnt}, 0")
    e.label(f"L_sp{tag}")
    I(f"ds_read_b32 v{vdst}, v{vaddr} offset:{off}")
    I("s_waitcnt lgkmcnt(0)")
    I(f"v_readfirstlane_b32 s{sval}, v{vdst}")
    I(f"s_add_u32 s{scnt}, s{scnt}, 1")
    I(f"s_cmp_ge_u32 s{sval}, {need}")
    I(f"s_cbranch_scc1 L_sp{tag}_ok")
    if sleep: I(f"s_sleep {sleep}")
    I(f"s_cmp_lt_u32 s{scnt}, {bound}")
    I(f"s_cbranch_scc1 L_sp{tag}")
    e.label(f"L_sp{tag}_ok")

def tag_bad(e, dst, r, tmp, odd):
    I = e.I
    I(f"v_xor_b32 v{tmp}, s87, v{r}")
    I(f"v_xor_b32 v{dst}, s86, v{r+1}")
    I(f"v_lshrrev_b32 v{tmp}, 24, v{tmp}")
    I(f"v_or_b32 v{dst}, v{dst}, v{tmp}")
    I(f"v_xor_b32 v{tmp}, s3, v{r+3}")
    I(f"v_lshrrev_b32 v{tmp}, 12, v{tmp}")
    I(f"v_cndmask_b32 v{dst}, v{dst}, v{tmp}, {odd}")

def gen_main(e, c):
    L = Lay()
    CAP = c.cap
    NWG = c.nwg
    BOFF = CAP + 64
    HIST, HIST2, CUR2, CNT = 0, 256, 512, 768
    NEXT, DONE, GDONE, BSYNC, BREADY, TOTB = CNT, CNT + 16, CNT + 64, CNT + 96, CNT + 100, CNT + 104
    HISTB, HIST2B, CUR2B, INFO, NONCE = 1024, 1280, 1536, 1792, 2048
    RAW = 2176
    T = (RAW + 2 * BOFF * 16 + 255) // 256 * 256
    WRAD = T + NODES * 1024
    SCR = WRAD + 16384
    H1 = WRAD
    TI = SCR
    CEB = RAW + BOFF * 16
    SSTR, PL1, OSC = 2368, 1056, 2080
    lds = max(SCR + 12 * SSTR, T + 64 * 1024)
    assert lds <= 163840 and 2 * BOFF >= 3200 + 64, lds
    c.lds = lds
    kernel_header(e, KNAME)
    I = e.I
    wsbytes = (32 << 20) if c.stamps else WSBYTES
    sf, rf, lf = c.st_flags, c.rec_flags, c.ld_flags
    ODD = "s[26:27]"
    I(f"s_cmp_ge_u32 s2, {NWG}")
    I("s_cbranch_scc1 L_end")
    if c.stamps:
        I(f"v_mov_b32 v{STV}, 0")
        I(f"v_mov_b32 v{TIDV}, v0")
    stamp(e, c, 0)
    stamp(e, c, 26, "s_memtime")
    I("s_load_dwordx8 s[32:39], s[0:1], 0")
    I("s_load_dwordx8 s[40:47], s[0:1], 32")
    if NWG > NCH:
        I(f"s_cmp_lt_u32 s2, {NCH}")
        I("s_cselect_b32 s51, 800, 0")
    else:
        I("s_movk_i32 s51, 800")
    I("s_mul_i32 s48, s2, 800")
    I("v_add_u32 v3, s48, v0")
    I("v_cmp_gt_u32 vcc, s51, v0")
    I("v_lshlrev_b32 v26, 4, v3")
    I("v_lshlrev_b32 v27, 5, v3")
    I("v_mul_u32_u24 v3, 24, v3")
    I("s_and_saveexec_b64 s[26:27], vcc")
    I("s_cbranch_execz L1_noload")
    I("s_waitcnt lgkmcnt(0)")
    l2 = lf if c.ld2_flags is None else c.ld2_flags
    I(f"global_load_dwordx4 v[4:7], v26, s[40:41] {l2}")
    I(f"global_load_dwordx4 v[8:11], v26, s[38:39] {l2}")
    I(f"global_load_dwordx4 v[12:15], v27, s[36:37] {lf}")
    I(f"global_load_dwordx4 v[16:19], v27, s[36:37] offset:16 {lf}")
    I(f"global_load_dwordx4 v[20:23], v3, s[34:35] {lf}")
    I(f"global_load_dwordx2 v[24:25], v3, s[34:35] offset:16 {lf}")
    e.label("L1_noload")
    I("s_mov_b64 exec, -1")
    if c.codepf and c.codeearly:
        I("s_getpc_b64 s[52:53]")
        I(f"s_mov_b32 s54, {c.codepf*1024}")
        I("s_mov_b32 s55, 0x20000")
        I("v_subrev_u32 v72, 768, v0")
        I("v_lshlrev_b32 v72, 7, v72")
        I("s_cmp_lg_u64 vcc, -1")
        I("s_cbranch_scc0 L1_nocpf")
        I("buffer_load_dword v73, v72, s[52:55], 0 offen")
        e.label("L1_nocpf")
    I("s_load_dwordx4 s[80:83], s[0:1], 72")
    I("s_load_dwordx2 s[84:85], s[0:1], 88")
    I("v_lshlrev_b32 v1, 4, v0")
    I("v_lshlrev_b32 v2, 5, v0")
    I("v_readfirstlane_b32 s21, v0")
    I("s_lshr_b32 s21, s21, 6")
    I("s_waitcnt lgkmcnt(0)")
    if c.addtid:
        srd(e, 4, 32, N * 512, w1=f"{16 << 16}", w3=c.tidw3)
    else:
        srd(e, 4, 32, N * 512)
    srd(e, 8, 84, wsbytes)
    srd(e, 12, 80, N * 512)
    srd(e, 16, 42, 2560)
    srd(e, 68, 44, 16384)
    srd(e, 72, 46, 24576)
    srd(e, 76, 82, 256)
    I("s_and_b32 s20, s2, 7")
    I("s_lshr_b32 s31, s2, 3")
    if NWG == 250:
        I("s_min_u32 s22, s20, 2")
        I("s_mul_i32 s20, s20, 31")
        I("s_add_u32 s20, s20, s22")
    else:
        I("s_lshl_b32 s20, s20, 5")
    I("s_add_u32 s20, s20, s31")
    I("s_mov_b32 s22, 0")
    I(f"s_movk_i32 s23, {NCH}")
    I("s_mov_b32 s24, 1")
    I("s_mov_b32 s26, 0xaaaaaaaa")
    I("s_mov_b32 s27, 0xaaaaaaaa")
    I("s_mov_b32 s28, 0x05040100")
    I("s_mov_b32 s29, 0x07060302")
    I("s_mov_b32 s30, 0xffff0000")
    I(f"s_mul_i32 s51, s2, {CSTRIDE}")
    I("s_cmp_ge_u32 s21, 13")
    I("s_cbranch_scc1 L1_aux")
    I(f"s_mov_b32 s46, {H1}")
    I("v_lshl_add_u32 v40, v0, 2, s46")
    I("v_mov_b32 v41, 0")
    I("v_mov_b32 v42, 1")
    I(f"s_movk_i32 s49, {RAW+PAYOFF}")
    I("s_mov_b32 s50, 0x05040302")
    I(f"s_mov_b32 s45, {(TI + 8 - 8*H1) & 0xffffffff}")
    if NWG == 250:
        I("s_mov_b32 s48, -25")
        I("s_movk_i32 s47, 249")
    else:
        I("s_movk_i32 s47, 6249")
        I("s_movk_i32 s48, -6250")
        I("s_mov_b32 s44, 1600210")
        I("v_mov_b32 v43, 65532")
    I("s_cmp_ge_u32 s21, 8")
    I("s_cbranch_scc1 L1_nz")
    I("ds_write_b32 v40, v41")
    I("s_waitcnt lgkmcnt(0)")
    e.label("L1_nz")
    I("s_barrier")
    I("s_and_b64 exec, exec, vcc")
    I("s_waitcnt vmcnt(5)")
    stamp(e, c, 1)
    R4 = range(4)
    if NWG == 250:
        for i in R4: I(f"v_mul_u32_u24 v{44+i}, 0x147b, v{4+i}")
        for i in R4: I(f"v_lshrrev_b32 v{44+i}, 17, v{44+i}")
        for i in R4: I(f"v_cmp_lt_u32 s[{32+2*i}:{33+2*i}], s47, v{44+i}")
        for i in R4: I(f"v_cndmask_b32 v{36+i}, 0, 1, s[{32+2*i}:{33+2*i}]")
        for i in R4:
            I(f"v_sub_u32 v{48+i}, v{44+i}, v{36+i}")
            I(f"v_mad_u32_u24 v{44+i}, v{36+i}, 6, v{44+i}")
        for i in R4:
            I(f"v_mad_i32_i24 v{4+i}, v{48+i}, s48, v{4+i}")
            I(f"v_lshl_add_u32 v{44+i}, v{44+i}, 2, s46")
    else:
        for i in R4: I(f"v_cmp_lt_u32 s[{32+2*i}:{33+2*i}], s47, v{4+i}")
        for i in R4: I(f"v_cndmask_b32 v{36+i}, 0, 1, s[{32+2*i}:{33+2*i}]")
        for i in R4: I(f"v_mad_i32_i24 v{4+i}, v{36+i}, s48, v{4+i}")
        for i in R4: I(f"v_mul_u32_u24 v{44+i}, 0xa7c, v{4+i}")
        for i in R4: I(f"v_lshrrev_b32 v{44+i}, 16, v{44+i}")
        for i in R4: I(f"v_mad_u32_u24 v{48+i}, v{44+i}, s44, v43")
        for i in R4:
            I(f"v_lshrrev_b32 v{48+i}, 16, v{48+i}")
            I(f"v_mad_u32_u24 v{4+i}, v{36+i}, 25, v{4+i}")
        for i in R4:
            I(f"v_sub_u32 v{4+i}, v{4+i}, v{48+i}")
            I(f"v_lshl_add_u32 v{44+i}, v{36+i}, 8, v{44+i}")
        for i in R4: I(f"v_lshl_add_u32 v{44+i}, v{44+i}, 2, s46")
    for i in R4: I(f"ds_add_rtn_u32 v{36+i}, v{44+i}, v42")
    for i in R4: I(f"v_lshl_add_u32 v{48+i}, v{44+i}, 3, s45")
    for i in R4: I(f"v_lshlrev_b32 v{4+i}, 2, v{4+i}")
    I("s_waitcnt lgkmcnt(0)")
    I("s_barrier")
    for i in R4: I(f"v_min_u32 v{28+i}, {KIN}, v{36+i}")
    for i in R4: I(f"v_add_u32 v{48+i}, v{48+i}, v{28+i}")
    I("s_cmp_eq_u32 s21, 0")
    I("s_cbranch_scc1 L1_scan")
    for i in R4: I(f"ds_write_b8 v{48+i}, v{4+i}")
    I("s_branch L1_noscan")
    e.label("L1_scan")
    I("v_add_u32 v60, s46, v2")
    I("ds_read_b128 v[52:55], v60")
    I("ds_read_b128 v[56:59], v60 offset:16")
    I("s_waitcnt lgkmcnt(0)")
    I("v_mov_b32 v64, 0")
    I("v_mov_b32 v65, v52")
    for k in range(2, 8):
        I(f"v_add_u32 v{64+k}, v{63+k}, v{51+k}")
    I("v_add_u32 v61, v71, v59")
    I("v_max3_u32 v63, v52, v53, v54")
    I("v_max3_u32 v63, v63, v55, v56")
    I("v_max3_u32 v63, v63, v57, v58")
    I("v_max_u32 v63, v63, v59")
    I(f"v_cmp_lt_u32 s[42:43], {KIN}, v63")
    I("v_mov_b32 v62, v61")
    scan64(e, 62)
    I("v_sub_u32 v62, v62, v61")
    for k in range(8):
        I(f"v_add_u32 v{64+k}, v{64+k}, v62")
    I("ds_write_b128 v60, v[64:67] offset:2048")
    I("ds_write_b128 v60, v[68:71] offset:2064")
    I("s_cmp_lg_u64 s[42:43], 0")
    I("s_cselect_b32 s42, 1, 0")
    I("v_mov_b32 v63, s42")
    I(f"ds_write_b32 v41, v63 offset:{NONCE+8}")
    for i in R4: I(f"ds_write_b8 v{48+i}, v{4+i}")
    I("s_waitcnt lgkmcnt(4)")
    e.label("L1_noscan")
    I("s_barrier")
    for i in R4: I(f"ds_read_b32 v{44+i}, v{44+i} offset:2048")
    I(f"ds_read_b32 v28, v41 offset:{NONCE+8}")
    I("s_waitcnt lgkmcnt(0)")
    I("v_readfirstlane_b32 s42, v28")
    for i in R4:
        I(f"v_add_u32 v{36+i}, v{36+i}, v{44+i}")
        I(f"v_lshl_add_u32 v{44+i}, v{36+i}, 4, s49")
    I("s_cmp_eq_u32 s42, 0")
    I("s_cbranch_scc1 L1_nokeys")
    for i in R4:
        I(f"ds_write_b8 v{36+i}, v{4+i} offset:{RAW+KEYOFF}")
    e.label("L1_nokeys")
    I("s_waitcnt vmcnt(2)")
    for i in R4:
        I(f"ds_write_b64 v{44+i}, v[{12+2*i}:{13+2*i}]")
    I("s_waitcnt vmcnt(1)")
    I("v_mov_b32 v28, v20")
    I("v_perm_b32 v29, v8, v21, s28")
    I("ds_write_b64 v44, v[28:29] offset:8")
    I("v_alignbit_b32 v30, v22, v21, 16")
    I("v_perm_b32 v31, v9, v22, s50")
    I("ds_write_b64 v45, v[30:31] offset:8")
    I("s_waitcnt vmcnt(0)")
    stamp(e, c, 2)
    I("v_mov_b32 v32, v23")
    I("v_perm_b32 v33, v10, v24, s28")
    I("ds_write_b64 v46, v[32:33] offset:8")
    I("v_alignbit_b32 v34, v25, v24, 16")
    I("v_perm_b32 v35, v11, v25, s50")
    I("ds_write_b64 v47, v[34:35] offset:8")
    I("s_mov_b64 exec, -1")
    I("s_waitcnt lgkmcnt(0)")
    I("s_branch L1_copy")
    e.label("L1_aux")
    I("v_subrev_u32 v64, 832, v0")
    I("v_lshlrev_b32 v65, 4, v64")
    if c.tlbpf:
        I("v_and_b32 v74, 63, v0")
        I(f"s_mov_b32 s42, {WSBYTES // 64 // 128 * 128}")
        I("v_mul_u32_u24 v75, s42, v74")
        I(f"s_mov_b32 s42, {N * 512 // 64 // 128 * 128}")
        I("v_mul_u32_u24 v74, s42, v74")
        I("s_cmp_lg_u32 s21, 14")
        I("s_cbranch_scc1 L1_notlb")
        if c.tlbpf & 1: I("buffer_load_dword v76, v75, s[8:11], 0 offen")
        if c.tlbpf & 2: I("buffer_load_dword v77, v74, s[4:7], 0 offen")
        if c.tlbpf & 4: I("buffer_load_dword v78, v74, s[12:15], 0 offen")
        e.label("L1_notlb")
    if c.codepf and not c.codeearly:
        I("s_getpc_b64 s[40:41]")
        e.label("L_cpf")
        I("s_mov_b32 s42, L_codeend-L_cpf")
        I("s_mov_b32 s43, 0x20000")
        I("v_lshlrev_b32 v72, 7, v64")
        I("buffer_load_dword v73, v72, s[40:43], 0 offen")
    I("s_cmp_lg_u32 s21, 15")
    I("s_cbranch_scc1 L1_notag")
    I("s_cmp_lg_u32 s2, 0")
    I("s_cbranch_scc1 L1_notag")
    I("s_memrealtime s[44:45]")
    I("s_waitcnt lgkmcnt(0)")
    I("s_and_b32 s45, s45, 0x7f")
    I("s_or_b32 s45, s45, 0x80")
    I("s_lshl_b32 s45, s45, 24")
    I("v_mov_b32 v68, s44")
    I("v_mov_b32 v69, s45")
    I("s_mov_b64 exec, 1")
    I("buffer_store_dwordx2 v[68:69], off, s[76:79], 0 sc1")
    I("s_mov_b64 exec, -1")
    e.label("L1_notag")
    I("s_cmp_lg_u32 s21, 13")
    I("s_cbranch_scc1 L1_nozero")
    for k in range(4): I(f"v_mov_b32 v{4+k}, 0")
    I("ds_write_b128 v65, v[4:7]")
    I("ds_write_b128 v65, v[4:7] offset:1024")
    e.label("L1_nozero")
    I("s_barrier"); I("s_barrier"); I("s_barrier")
    I("s_cmp_lg_u32 s21, 15")
    I("s_cbranch_scc1 L1_notag2")
    I("s_mov_b32 s44, 0")
    e.label("L1_tagpoll")
    I("buffer_load_dwordx2 v[68:69], off, s[76:79], 0 sc1")
    I("s_add_u32 s44, s44, 1")
    I("s_waitcnt vmcnt(0)")
    I("v_readfirstlane_b32 s45, v69")
    e.nop(1)
    I("s_cmp_lg_u32 s45, 0")
    I("s_cbranch_scc1 L1_tagok")
    I("s_cmp_lt_u32 s44, 0x100000")
    I("s_cbranch_scc1 L1_tagpoll")
    e.label("L1_tagok")
    I("v_mov_b32 v70, 0")
    I("s_mov_b64 exec, 1")
    I(f"ds_write_b64 v70, v[68:69] offset:{NONCE}")
    I("s_mov_b64 exec, -1")
    e.label("L1_notag2")
    for k in range(8):
        I(f"s_movk_i32 s46, {k*3072}")
        I(f"buffer_load_dwordx4 v[{28+4*k}:{31+4*k}], v65, s[72:75], s46 offen")
    for k in range(6):
        I(f"s_movk_i32 s46, {k*3072}")
        I(f"buffer_load_dwordx4 v[{72+4*k}:{75+4*k}], v65, s[68:71], s46 offen")
    prefetch_x(e, c.pfx_lines, 60, 64, 192, 31, 0, 4)
    I("s_waitcnt lgkmcnt(0)")
    e.flush()
    e.label("L1_copy")
    I("s_barrier")
    stamp(e, c, 3)
    I(f"ds_read_b128 v[8:11], v1 offset:{RAW}")
    I(f"ds_read_b128 v[12:15], v1 offset:{RAW+16384}")
    I(f"v_add_u32 v25, {TI}, v1")
    I(f"ds_read_b128 v[16:19], v1 offset:{RAW+32768}")
    I(f"ds_read_b128 v[20:23], v1 offset:{RAW+49152}")
    I("ds_read_b128 v[100:103], v25")
    I("v_lshrrev_b32 v25, 1, v0")
    I("v_lshlrev_b32 v25, 2, v25")
    I(f"v_add_u32 v25, {H1}, v25")
    I("ds_read2st64_b32 v[104:105], v25 offset0:0 offset1:8")
    I("ds_read_b32 v106, v25 offset:1024")
    I(f"v_mov_b32 v25, {H1+2048+1024}")
    I("ds_read_b32 v98, v25")
    I("v_mov_b32 v25, 0")
    I(f"ds_read_b64 v[96:97], v25 offset:{NONCE}")
    I("v_add_u32 v2, 16384, v1")
    I("v_add_u32 v3, 32768, v1")
    I("v_add_u32 v24, 49152, v1")
    I("s_movk_i32 s48, 328")
    I("v_cmp_gt_u32 s[92:93], s48, v0")
    I("s_waitcnt lgkmcnt(8)")
    I(f"buffer_store_dwordx4 v[8:11], v1, s[8:11], s51 offen {sf}")
    I("s_waitcnt lgkmcnt(7)")
    I(f"buffer_store_dwordx4 v[12:15], v2, s[8:11], s51 offen {sf}")
    I("s_waitcnt lgkmcnt(0)")
    I("v_readfirstlane_b32 s86, v96")
    I("v_readfirstlane_b32 s87, v97")
    I("v_readfirstlane_b32 s88, v98")
    I("v_lshl_or_b32 v104, v104, 12, v105")
    I("v_or_b32 v97, v97, v104")
    I(f"v_cndmask_b32 v100, v97, v100, {ODD}")
    I(f"v_cndmask_b32 v101, v96, v101, {ODD}")
    I("v_lshl_or_b32 v106, v96, 12, v106")
    I(f"v_cndmask_b32 v103, v103, v106, {ODD}")
    I("s_lshl_b32 s3, s86, 12")
    I(f"s_add_u32 s49, s51, {TABOFF}")
    I(f"s_cmp_gt_u32 s88, {(32768-PAYOFF)//16}")
    I("s_cselect_b32 s25, 0, 8")
    stamp(e, c, 4)
    def handoff(tag, mid):
        I("s_waitcnt vmcnt(0)")
        stamp(e, c, 6)
        I("s_barrier")
        I("s_cmp_ge_u32 s21, s25")
        I(f"s_cbranch_scc1 L_noearly{tag}")
        I(f"buffer_store_dwordx4 v[100:103], v1, s[8:11], s49 offen {sf}")
        e.label(f"L_noearly{tag}")
        I(f"buffer_store_dwordx4 v[16:19], v3, s[8:11], s51 offen {sf}")
        I("s_mov_b64 exec, s[92:93]")
        I(f"s_cbranch_execz L_stskip{tag}")
        I(f"buffer_store_dwordx4 v[20:23], v24, s[8:11], s51 offen {sf}")
        e.label(f"L_stskip{tag}")
        I("s_mov_b64 exec, -1")
        mid()
        I("s_waitcnt vmcnt(0) lgkmcnt(0)")
        stamp(e, c, 5)
        I("s_barrier")
        I("s_cmp_lt_u32 s21, s25")
        I(f"s_cbranch_scc1 L_nolate{tag}")
        I(f"buffer_store_dwordx4 v[100:103], v1, s[8:11], s49 offen {sf}")
        e.label(f"L_nolate{tag}")
    I("s_cmp_lt_u32 s21, 4")
    e.branch("s_cbranch_scc1 L2_gemm")

    VLANE, VINFO, VNEXT = 108, 109, 110
    VLOFF, VMASK, VOW, VOR, VSCRW, VTRA, VWR, VL16 = 111, 112, 113, 114, 115, 116, 117, 118
    VT0, VT1, VONE, VSEL = 119, 120, 121, 122
    VJ, VCH, VSEG = 123, 124, 125
    I(f"v_and_b32 v{VLANE}, 63, v0")
    I(f"v_mov_b32 v{VONE}, 1")
    I(f"v_mov_b32 v{VMASK}, s30")
    I(f"v_lshrrev_b32 v{VT1}, 4, v{VLANE}")
    I(f"v_lshlrev_b32 v{VL16}, 4, v{VLANE}")
    if c.addtid:
        I(f"v_and_b32 v{VT0}, 3, v{VLANE}")
        I(f"v_lshlrev_b32 v{VLOFF}, 4, v{VT0}")
    else:
        I(f"v_and_b32 v{VT0}, 15, v{VLANE}")
        I(f"v_lshlrev_b32 v{VLOFF}, 4, v{VT0}")
    I("s_sub_u32 s43, s21, 4")
    I(f"s_mul_i32 s43, s43, {SSTR}")
    I(f"s_add_u32 s43, s43, {SCR}")
    I(f"v_add_u32 v{VSCRW}, s43, v{VL16}")
    I(f"v_lshlrev_b32 v{VOR}, 5, v{VT1}")
    I(f"v_add_u32 v{VOR}, s43, v{VOR}")
    I(f"v_lshlrev_b32 v{VTRA}, 4, v{VT1}")
    I(f"v_bfe_u32 v{VT1}, v{VLANE}, 2, 2")
    I(f"v_lshl_add_u32 v{VTRA}, v{VT1}, 6, v{VTRA}")
    I(f"v_and_b32 v{VT1}, 1, v{VLANE}")
    I(f"v_lshl_add_u32 v{VTRA}, v{VT1}, 3, v{VTRA}")
    I(f"v_bfe_u32 v{VT1}, v{VLANE}, 1, 1")
    I(f"v_mul_u32_u24 v{VT1}, {PL1}, v{VT1}")
    I(f"v_add3_u32 v{VTRA}, v{VTRA}, v{VT1}, s43")
    I(f"v_and_b32 v{VOW}, 32, v{VLANE}")
    I(f"v_and_b32 v{VT1}, 3, v{VLANE}")
    I(f"v_lshl_add_u32 v{VOW}, v{VT1}, 3, v{VOW}")
    I(f"v_bfe_u32 v{VT1}, v{VLANE}, 2, 3")
    I(f"v_add_u32 v{VOW}, v{VOW}, v{VT1}")
    I(f"v_lshlrev_b32 v{VOW}, 2, v{VOW}")
    I(f"v_add_u32 v{VOW}, s43, v{VOW}")
    I(f"v_add_u32 v{VWR}, {WRAD}, v{VL16}")
    I("s_sub_u32 s42, s21, 4")
    I("s_mul_i32 s83, s42, 24")
    I(f"v_and_b32 v{VJ}, 7, v{VLANE}")
    I(f"v_lshrrev_b32 v{VSEG}, 3, v{VLANE}")
    I(f"s_mov_b32 s42, {CSTRIDE}")
    I(f"v_mul_u32_u24 v{VCH}, s42, v{VSEG}")
    I(f"v_lshlrev_b32 v{VSEG}, 5, v{VSEG}")
    I(f"v_add_u32 v{VSEG}, s43, v{VSEG}")
    I(f"v_or_b32 v{VSEL}, 0x0c0c0c00, v{VJ}")
    NP, NW = 3, 3
    I(f"s_mul_i32 s79, s83, {CSTRIDE}")
    for p in range(NP):
        I(f"s_add_u32 s{74+p}, s79, {8*p*CSTRIDE+PAYOFF}")
        I(f"s_add_u32 s{80+p}, s79, {8*p*CSTRIDE+KEYOFF}")
    I("s_mov_b32 s88, s20")
    I("s_mov_b32 s89, 0")
    I(f"s_movk_i32 s48, {HN}")
    def w_stage():
        I("s_cmp_lt_u32 s21, 13")
        I("s_cbranch_scc1 L2_noW")
        I(f"v_add_u32 v65, {T}, v65")
        for k in range(8):
            I(f"ds_write_b128 v65, v[{28+4*k}:{31+4*k}] offset:{16384 + k*3072}")
        for k in range(5):
            I(f"ds_write_b128 v65, v[{72+4*k}:{75+4*k}] offset:{k*3072}")
        I("s_cmp_lg_u32 s21, 13")
        I("s_cbranch_scc1 L2_noW")
        I(f"ds_write_b128 v65, v[92:95] offset:{5*3072}")
        e.label("L2_noW")
    handoff("g", w_stage)
    PAY, KEY, RNK, CNTR, KAD, PAD, X, EN = 0, 36, 45, 54, 57, 60, 64, 72
    MSK = 50
    e.label("L2_g_round")
    I(f"v_lshrrev_b32 v{X}, 1, v{VLANE}")
    I(f"s_sub_u32 s42, {NCH}, s83")
    I("s_min_i32 s42, s42, 24")
    I(f"v_cmp_gt_i32 s[46:47], s42, v{X}")
    I(f"s_mov_b32 s42, {CSTRIDE}")
    I(f"v_mul_u32_u24 v{X+1}, s42, v{X}")
    I(f"v_and_b32 v{X+2}, 16, v{VL16}")
    I(f"v_add_u32 v{X+1}, v{X+1}, v{X+2}")
    I(f"v_cndmask_b32 v{X+1}, 2.0, v{X+1}, s[46:47]")
    I("s_lshl_b32 s43, s88, 5")
    I(f"s_add_u32 s43, s43, {TABOFF}")
    I("s_add_u32 s43, s43, s79")
    I("s_mov_b32 s44, 0")
    I(f"v_lshl_add_u32 v{VT1}, v{VJ}, 4, v{VCH}")
    e.label("L2_poll")
    I(f"buffer_load_dwordx4 v[{EN}:{EN+3}], v{X+1}, s[8:11], s43 offen sc1")
    I("s_add_u32 s44, s44, 1")
    I("s_waitcnt vmcnt(0)")
    tag_bad(e, X+2, EN, X+3, ODD)
    I(f"v_cmp_ne_u32 vcc, 0, v{X+2}")
    e.nop(2)
    I("s_and_b64 vcc, vcc, s[46:47]")
    I("s_cbranch_scc0 L2_poll_ok")
    I(f"s_sleep {c.psleep}")
    I("s_cmp_lt_u32 s44, 0x100000")
    I("s_cbranch_scc1 L2_poll")
    e.label("L2_poll_ok")
    I("s_cmp_lg_u32 s23, 1")
    I("s_cbranch_scc1 L2_nofilter")
    I("s_sub_u32 s42, s22, s83")
    I(f"v_cmp_eq_u32 vcc, s42, v{X}")
    I(f"v_cndmask_b32 v{EN}, 0, v{EN}, vcc")
    e.label("L2_nofilter")
    I(f"ds_write_b128 v{VSCRW}, v[{EN}:{EN+3}]")
    I(f"v_add_u32 v{X+1}, 8, v{VJ}")
    stamp(e, c, 7)
    def msk(p, w): return f"s[{MSK+4*p+2*w}:{MSK+4*p+2*w+1}]" if w < 2 else f"s[{MSK+12+2*p}:{MSK+13+2*p}]"
    def pay(p, w): return f"v[{PAY+12*p+4*w}:{PAY+12*p+4*w+3}]"
    for p in range(NP):
        I(f"ds_read_b128 v[{EN+8*p}:{EN+8*p+3}], v{VSEG} offset:{256*p}")
        I(f"ds_read_b128 v[{EN+8*p+4}:{EN+8*p+7}], v{VSEG} offset:{256*p+16}")
    for p in range(NP):
        en, cnt = EN + 8*p, CNTR + p
        if p == 0: I("s_waitcnt lgkmcnt(0)")
        I(f"v_bfe_u32 v{cnt}, v{en}, 12, 12")
        I(f"v_and_b32 v{PAD+p}, 0xfff, v{en}")
        I(f"v_cmp_lt_u32 {msk(p,0)}, v{VJ}, v{cnt}")
        I(f"v_cmp_lt_u32 {msk(p,1)}, v{X+1}, v{cnt}")
        I(f"v_perm_b32 v{KEY+3*p}, v{en+3}, v{en+2}, v{VSEL}")
        I(f"v_perm_b32 v{KEY+3*p+1}, v{en+5}, v{en+4}, v{VSEL}")
        I(f"v_lshl_add_u32 v{PAD+p}, v{PAD+p}, 4, v{VT1}")
        for w in range(2):
            I(f"s_mov_b64 exec, {msk(p,w)}")
            I(f"s_cbranch_execz L2_nop{p}")
            I(f"ds_add_rtn_u32 v{RNK+3*p+w}, v{KEY+3*p+w}, v{VONE} offset:{HIST}")
            I(f"buffer_load_dwordx4 {pay(p,w)}, v{PAD+p}, s[8:11], s{74+p} offen offset:{128*w} {rf}")
        e.label(f"L2_nop{p}")
        I("s_mov_b64 exec, -1")
    I(f"v_max3_u32 v{VT0}, v{CNTR}, v{CNTR+1}, v{CNTR+2}")
    I(f"v_cmp_lt_u32 vcc, 16, v{VT0}")
    I("s_mov_b32 s25, 0")
    e.nop(1)
    I("s_cmp_eq_u64 vcc, 0")
    I("s_cbranch_scc1 L2_noextraA")
    I("s_mov_b32 s25, 1")
    I(f"v_add_u32 v{X+2}, 16, v{VJ}")
    for p in range(NP):
        en = EN + 8*p
        I(f"v_min_u32 v{X+3}, {KIN}, v{CNTR+p}")
        I(f"v_cmp_lt_u32 {msk(p,2)}, v{X+2}, v{X+3}")
        I(f"v_perm_b32 v{KEY+3*p+2}, v{en+6}, v{en+6}, v{VSEL}")
        I(f"v_sub_u32 v{KAD+p}, v{PAD+p}, v{VCH}")
        I(f"v_lshrrev_b32 v{KAD+p}, 4, v{KAD+p}")
        I(f"v_add_u32 v{KAD+p}, v{KAD+p}, v{VCH}")
        e.flush()
        I(f"s_mov_b64 exec, {msk(p,2)}")
        I(f"ds_add_rtn_u32 v{RNK+3*p+2}, v{KEY+3*p+2}, v{VONE} offset:{HIST}")
        I(f"buffer_load_dwordx4 {pay(p,2)}, v{PAD+p}, s[8:11], s{74+p} offen offset:256 {rf}")
        I("s_mov_b64 exec, -1")

    def extra_count(tag, first, vj, vkad, vcnt, skey, vone, hist, y):
        I(f"v_add_u32 v{y}, {first}, v{vj}")
        I(f"v_add_u32 v{y+1}, {first}, v{vkad}")
        e.label(f"L_xa{tag}")
        I(f"v_cmp_lt_u32 vcc, v{y}, v{vcnt}")
        I("s_and_saveexec_b64 s[44:45], vcc")
        e.branch(f"s_cbranch_execz L_xa{tag}_done")
        I(f"buffer_load_ubyte v{y+2}, v{y+1}, s[8:11], s{skey} offen {rf}")
        I("s_waitcnt vmcnt(0)")
        I(f"ds_add_u32 v{y+2}, v{vone} offset:{hist}")
        I("s_mov_b64 exec, -1")
        I(f"v_add_u32 v{y}, 8, v{y}")
        I(f"v_add_u32 v{y+1}, 8, v{y+1}")
        e.branch(f"s_branch L_xa{tag}")
        e.label(f"L_xa{tag}_done")
        I("s_mov_b64 exec, -1")
    def extra_move(tag, first, vj, vkad, vpad, vcnt, skey, spay, vone, cur, vbase, y, d):
        I(f"v_add_u32 v{y}, {first}, v{vj}")
        I(f"v_add_u32 v{y+1}, {first}, v{vkad}")
        I(f"v_add_u32 v{vpad}, {16*first}, v{vpad}")
        e.label(f"L_xb{tag}")
        I(f"v_cmp_lt_u32 vcc, v{y}, v{vcnt}")
        I("s_and_saveexec_b64 s[44:45], vcc")
        e.branch(f"s_cbranch_execz L_xb{tag}_done")
        I(f"buffer_load_ubyte v{y+2}, v{y+1}, s[8:11], s{skey} offen {rf}")
        I(f"buffer_load_dwordx4 v[{d}:{d+3}], v{vpad}, s[8:11], s{spay} offen {rf}")
        I("s_waitcnt vmcnt(0)")
        I(f"ds_add_rtn_u32 v{y+3}, v{y+2}, v{vone} offset:{cur}")
        I("s_mov_b64 exec, -1")
        I(f"ds_bpermute_b32 v{y+2}, v{y+2}, v{vbase}")
        I("s_waitcnt lgkmcnt(0)")
        I(f"v_add_lshl_u32 v{y+2}, v{y+2}, v{y+3}, 4")
        I("s_mov_b64 exec, vcc")
        I(f"ds_write_b128 v{y+2}, v[{d}:{d+3}] offset:{RAW}")
        I("s_mov_b64 exec, -1")
        I(f"v_add_u32 v{y}, 8, v{y}")
        I(f"v_add_u32 v{y+1}, 8, v{y+1}")
        I(f"v_add_u32 v{vpad}, 128, v{vpad}")
        e.branch(f"s_branch L_xb{tag}")
        e.label(f"L_xb{tag}_done")
        I("s_mov_b64 exec, -1")
    for p in range(NP):
        extra_count(f"a{p}", KIN, VJ, KAD+p, CNTR+p, 80+p, VONE, HIST2, X)
    e.label("L2_noextraA")
    I("s_waitcnt lgkmcnt(0)")
    stamp(e, c, 14)
    I("s_barrier")
    stamp(e, c, 15)
    C1, CT, BS = X + 4, X + 5, X + 6
    I(f"v_lshlrev_b32 v{VT0}, 2, v{VLANE}")
    I(f"ds_read_b32 v{C1}, v{VT0} offset:{HIST}")
    I(f"ds_read_b32 v{CT}, v{VT0} offset:{HIST2}")
    I("s_waitcnt lgkmcnt(0)")
    I(f"v_add_u32 v{CT}, v{C1}, v{CT}")
    I(f"v_mov_b32 v{BS}, v{CT}")
    scan64(e, BS)
    I(f"v_readlane_b32 s46, v{BS}, 63")
    I(f"v_sub_u32 v{BS}, v{BS}, v{CT}")
    I(f"s_cmp_eq_u32 s23, 1")
    I(f"s_cselect_b32 s42, -1, {CAP}")
    for p in range(NP):
        for w in range(2):
            I(f"ds_bpermute_b32 v{KEY+3*p+w}, v{KEY+3*p+w}, v{BS}")
    I(f"v_lshl_or_b32 v{VINFO}, v{CT}, 16, v{BS}")
    I(f"s_cmp_gt_u32 s46, s42")
    I("s_cbranch_scc1 L2_g_overflow")
    I("s_cmp_lg_u32 s21, 5")
    I("s_cbranch_scc1 L2_noinfo")
    I(f"s_mov_b64 exec, {(1 << HN) - 1}")
    I(f"ds_write_b32 v{VT0}, v{VINFO} offset:{INFO}")
    I("s_mov_b64 exec, -1")
    e.label("L2_noinfo")
    I("s_cmp_lg_u32 s21, 4")
    I("s_cbranch_scc1 L2_noguard")
    I("s_lshl_b32 s46, s46, 4")
    for k in range(4): I(f"v_mov_b32 v{EN+k}, 0")
    I(f"v_add_u32 v{VT0}, s46, v{VL16}")
    I(f"ds_write_b128 v{VT0}, v[{EN}:{EN+3}] offset:{RAW}")
    e.label("L2_noguard")
    I("s_waitcnt lgkmcnt(0)")
    for p in range(NP):
        for w in range(2):
            I(f"v_add_lshl_u32 v{KEY+3*p+w}, v{KEY+3*p+w}, v{RNK+3*p+w}, 4")
    stamp(e, c, 27)
    I("s_waitcnt vmcnt(0)")
    stamp(e, c, 9)
    for p in range(NP):
        for w in range(2):
            I(f"s_mov_b64 exec, {msk(p,w)}")
            I(f"ds_write_b128 v{KEY+3*p+w}, {pay(p,w)} offset:{RAW}")
    I("s_mov_b64 exec, -1")
    I("s_cmp_eq_u32 s25, 0")
    I("s_cbranch_scc1 L2_noextraB")
    for p in range(NP):
        I(f"ds_bpermute_b32 v{KEY+3*p+2}, v{KEY+3*p+2}, v{BS}")
    I("s_waitcnt lgkmcnt(0)")
    for p in range(NP):
        I(f"v_add_lshl_u32 v{KEY+3*p+2}, v{KEY+3*p+2}, v{RNK+3*p+2}, 4")
        I(f"s_mov_b64 exec, {msk(p,2)}")
        I(f"ds_write_b128 v{KEY+3*p+2}, {pay(p,2)} offset:{RAW}")
        I("s_mov_b64 exec, -1")
    I(f"v_add_u32 v{BS}, v{BS}, v{C1}")
    for p in range(NP):
        extra_move(f"a{p}", KIN, VJ, KAD+p, PAD+p, CNTR+p, 80+p, 74+p, VONE, CUR2, BS, X, EN)
    e.label("L2_noextraB")
    I("s_waitcnt lgkmcnt(0)")
    stamp(e, c, 28)
    I("s_barrier")
    I(f"ds_read_b32 v{VT0}, v{VL16} offset:{TOTB}")
    I("s_mov_b64 exec, 1")
    I(f"ds_add_rtn_u32 v{VNEXT}, v{VL16}, v{VONE} offset:{NEXT}")
    I("s_mov_b64 exec, -1")
    I("s_waitcnt lgkmcnt(0)")
    I(f"v_readfirstlane_b32 s42, v{VT0}")
    e.nop(1)
    I(f"s_cmp_gt_u32 s42, {CAP}")
    I("s_cbranch_scc1 L2_g_overflow")
    stamp(e, c, 10)
    stamp(e, c, 24, "s_memtime")
    if c.prio_g: I(f"s_setprio {c.prio_g}")
    gather_loop(e, c, locals())
    e.label("L2_g_done")
    stamp(e, c, 11)
    stamp(e, c, 25, "s_memtime")
    I("s_cmp_lg_u32 s24, 0")
    e.branch("s_cbranch_scc1 L2_g_exit")
    I("s_add_u32 s89, s89, 1")
    I("s_branch L2_g_slow")
    e.label("L2_g_overflow")
    I("s_mov_b32 s89, 0")
    I("s_mov_b32 s23, 1")
    I("s_movk_i32 s48, 64")
    e.label("L2_g_slow")
    I("s_waitcnt vmcnt(0) lgkmcnt(0)")
    I("s_barrier")
    I("s_lshr_b32 s22, s89, 1")
    I("s_and_b32 s88, s89, 1")
    I("s_lshl_b32 s88, s88, 8")
    I("s_add_u32 s88, s88, s20")
    I(f"s_cmp_eq_u32 s89, {2*NCH-1}")
    I("s_cselect_b32 s24, 1, 0")
    I("s_barrier")
    e.branch("s_branch L2_g_round")
    e.label("L2_g_exit")
    stamp_store(e, c, 90)
    I("s_endpgm")

    e.label("L2_gemm")
    W, G, TA, TF = 0, 40, 104, 108
    X0, X1 = 124, 125
    I("v_and_b32 v104, 63, v0")
    I("v_lshlrev_b32 v105, 4, v104")
    lut = 0
    for jp in range(4):
        for blk in range(4):
            p, i, s = path_of(jp, blk)
            lut |= (p | (8 if s < 0 else 0)) << (4 * (jp * 4 + blk))
    I(f"s_mov_b32 s44, {lut & 0xffffffff}")
    I(f"s_mov_b32 s45, {lut >> 32}")
    for h in range(2):
        I("v_lshrrev_b32 v106, 4, v104")
        I("v_bfe_u32 v107, v104, 3, 1")
        I("v_lshl_add_u32 v106, v106, 2, v107")
        I(f"v_add_lshl_u32 v106, v106, {2*h}, 2")
        I(f"v_lshrrev_b64 v[108:109], v106, s[44:45]")
        I(f"v_and_b32 v106, 7, v108")
        I(f"v_and_b32 v{110+h}, 8, v108")
        I(f"v_lshlrev_b32 v{110+h}, 28, v{110+h}")
        I("v_and_b32 v107, 7, v104")
        I("v_lshlrev_b32 v107, 3, v107")
        I("v_lshl_add_u32 v106, v106, 6, v107")
        I("v_add_u32 v106, s21, v106")
        I(f"v_lshlrev_b32 v{112+h}, 1, v106")
    I("v_mov_b32 v117, v0")
    handoff("m", lambda: None)
    if c.pfx2_pos == 0: prefetch_x(e, c.pfx2_lines, 114, 117, 256, 31, 0, 4, c.pfx_lines)
    WT = 80
    for k in range(4):
        h, qo = k >> 1, (k & 1) * 4
        for d in range(4):
            I(f"buffer_load_ushort v{WT+4*k+d}, v{112+h}, s[16:19], 0 offen offset:{d*640+qo*2}")
    I("v_lshrrev_b32 v106, 4, v104")
    I("v_lshlrev_b32 v106, 10, v106")
    I("v_bfe_u32 v107, v104, 2, 2")
    I("v_lshl_add_u32 v106, v107, 7, v106")
    I("v_and_b32 v107, 3, v104")
    I("v_lshl_add_u32 v106, v107, 3, v106")
    I("s_lshl_b32 s42, s21, 5")
    I(f"s_add_u32 s42, s42, {T}")
    I("v_add_u32 v106, s42, v106")
    for f in range(10):
        I(f"ds_read_b64_tr_b16 v[{W+4*f}:{W+4*f+1}], v106 offset:{f*4096}")
        I(f"ds_read_b64_tr_b16 v[{W+4*f+2}:{W+4*f+3}], v106 offset:{f*4096+512}")
    I("s_lshl_b32 s42, s21, 10")
    I(f"s_add_u32 s43, s42, {WRAD}")
    I("v_add_u32 v105, s43, v105")
    I("s_waitcnt vmcnt(0)")
    for k in range(4):
        h = k >> 1
        for d in range(4):
            I(f"v_lshlrev_b32 v{WT+4*k+d}, 16, v{WT+4*k+d}")
            I(f"v_xor_b32 v{WT+4*k+d}, v{110+h}, v{WT+4*k+d}")
        I(f"ds_write_b128 v105, v[{WT+4*k}:{WT+4*k+3}] offset:{(k>>1)*8192 + (k&1)*4096}")
    I("v_and_b32 v106, 15, v104")
    I("v_lshrrev_b32 v107, 4, v104")
    I(f"v_lshlrev_b32 v{X0}, 2, v104")
    if NWG == 250:
        I(f"s_mul_i32 s42, s20, {HN}")
        I(f"s_movk_i32 s44, {HN}")
    else:
        I("s_mul_i32 s42, s20, 1600210")
        I("s_add_u32 s42, s42, 65532")
        I("s_add_u32 s44, s42, 1600210")
        I("s_lshr_b32 s42, s42, 16")
        I("s_lshr_b32 s44, s44, 16")
        I(f"s_min_u32 s44, s44, {N//2}")
        I("s_sub_u32 s44, s44, s42")
    I("s_lshl_b32 s42, s42, 9")
    I("s_lshl_b32 s43, s21, 5")
    I("s_add_u32 s42, s42, s43")
    I(f"v_lshlrev_b32 v{X1}, 9, v106")
    I(f"v_lshl_add_u32 v{X1}, v107, 3, v{X1}")
    I(f"v_add_u32 v{X1}, s42, v{X1}")
    I(f"v_cmp_le_u32 s[84:85], {HN-16}, v106")
    I(f"s_sub_u32 s43, s44, {48-HN}")
    I("v_cmp_gt_i32 s[50:51], s43, v106")
    I("s_sub_u32 s43, s44, 16")
    I("v_cmp_gt_i32 s[94:95], s43, v106")
    I("v_lshlrev_b32 v108, 10, v106")
    I(f"v_add_u32 v108, {T}, v108")
    I("s_or_b64 s[94:95], s[94:95], s[84:85]")
    for u in (3, 2, 1, 0):
        I(f"v_add_u32 v109, {4*u}, v107")
        I("v_xor_b32 v109, v109, v106")
        I(f"v_lshl_add_u32 v{TF+4+u}, v109, 4, v108")
    I("s_waitcnt lgkmcnt(0)")
    for u in range(4):
        I(f"v_mov_b32 v{TA+u}, v{TF+4+u}")
    I("s_mov_b32 s89, 0")
    NPB = 8
    TB, KA, SJ, KB, RB = 40, 48, 56, 64, 80
    LJ, LCH, LONE, Y = 96, 97, 98, 99
    MB = 52
    def mb(p, w): return f"s[{MB+4*p+2*w}:{MB+4*p+2*w+1}]"
    LA, PA0, PA1, TOA = KB, KB + 1, KB + 2, KB + 3
    I(f"v_lshrrev_b32 v{Y}, 2, v{X0}")
    I("s_lshl_b32 s42, s21, 11")
    I(f"v_lshl_add_u32 v{LA}, v{Y}, 4, s42")
    I(f"v_lshrrev_b32 v{Y+1}, 1, v{Y}")
    I("s_lshl_b32 s43, s21, 5")
    I(f"s_sub_u32 s44, {NCH-128}, s43")
    I(f"v_cmp_gt_i32 s[46:47], s44, v{Y+1}")
    I(f"s_mov_b32 s44, {CSTRIDE}")
    I(f"v_mul_u32_u24 v{Y+1}, s44, v{Y+1}")
    I(f"v_and_b32 v{Y+2}, 16, v{LA}")
    I(f"v_add_u32 v{PA0}, v{Y+1}, v{Y+2}")
    I(f"v_cndmask_b32 v{PA1}, 2.0, v{PA0}, s[46:47]")
    I(f"v_and_b32 v{LJ}, 7, v{Y}")
    I(f"v_lshrrev_b32 v{Y+1}, 3, v{Y}")
    I(f"v_mul_u32_u24 v{LCH}, s44, v{Y+1}")
    I(f"v_lshl_add_u32 v{RB}, v{Y+1}, 5, s42")
    I("s_mul_i32 s38, s43, s44")
    I(f"v_add_u32 v{LCH}, s38, v{LCH}")
    I(f"v_mov_b32 v{LONE}, 1")
    I("s_lshl_b32 s36, s20, 5")
    I(f"s_add_u32 s36, s36, {TABOFF+8192}")
    I("s_add_u32 s36, s36, s38")
    I(f"s_add_u32 s37, s36, {128*CSTRIDE}")
    I("s_lshl_b32 s42, s21, 6")
    I(f"v_add_u32 v{Y}, s42, v{Y}")
    I(f"v_mul_u32_u24 v{Y+1}, 0xaab, v{Y}")
    I(f"v_lshrrev_b32 v{Y+1}, 16, v{Y+1}")
    I(f"v_mul_u32_u24 v{Y+1}, {SSTR-24*32}, v{Y+1}")
    I(f"v_lshl_add_u32 v{TOA}, v{Y}, 5, v{Y+1}")
    I(f"v_add_u32 v{TOA}, {SCR+28}, v{TOA}")
    I(f"s_movk_i32 s42, {NCH}")
    I(f"v_cmp_gt_u32 s[92:93], s42, v{Y}")
    if c.pfx2_pos == 1:
        I("s_mov_b64 s[40:41], s[46:47]")
        prefetch_x(e, c.pfx2_lines, 114, 117, 256, 31, 0, 4, c.pfx_lines)
        I("s_mov_b64 s[46:47], s[40:41]")
    stamp(e, c, 14)
    e.label("L2_m_round")
    I("s_barrier")
    I("s_cmp_eq_u32 s23, 1")
    I("s_cbranch_scc1 L2_m_slowC")
    def pollB_issue():
        I(f"buffer_load_dwordx4 v[{TF+4}:{TF+7}], v{PA0}, s[8:11], s36 offen sc1")
        I(f"buffer_load_dwordx4 v[{TF+8}:{TF+11}], v{PA1}, s[8:11], s37 offen sc1")
    I(f"ds_read_b32 v{TF}, v{X0} offset:{HIST}")
    I(f"ds_read_b32 v{TF+1}, v{X0} offset:{HIST2}")
    I(f"ds_read_b32 v{Y}, v{TOA}")
    I("s_waitcnt lgkmcnt(0)")
    I(f"v_add_u32 v{TF}, v{TF}, v{TF+1}")
    I(f"v_and_b32 v{Y}, 0xfff, v{Y}")
    I(f"v_cndmask_b32 v{Y}, 0, v{Y}, s[92:93]")
    scan64(e, TF)
    scan64(e, Y)
    I(f"v_readlane_b32 s42, v{TF}, 63")
    I(f"v_mov_b32 v{Y+2}, 0")
    I("s_mov_b32 exec_lo, 0")
    I("s_mov_b32 exec_hi, 0x80000000")
    I(f"ds_add_u32 v{Y+2}, v{Y} offset:{TOTB}")
    I("s_mov_b64 exec, -1")
    I(f"s_cmp_gt_u32 s42, {CAP}")
    I("s_cbranch_scc1 L2_m_overflow")
    if c.bearly: pollB_issue()
    I("s_waitcnt lgkmcnt(0)")
    I("s_barrier")
    I(f"ds_read_b32 v{Y}, v{Y+2} offset:{TOTB}")
    SEL = Y + 4
    E2 = [TF, TF + 8]
    I("s_mov_b32 s44, 0")
    I("s_waitcnt lgkmcnt(0)")
    I(f"v_readfirstlane_b32 s42, v{Y}")
    I(f"v_or_b32 v{SEL}, 0x0c0c0c00, v{LJ}")
    I(f"s_cmp_gt_u32 s42, {CAP}")
    I("s_cbranch_scc1 L2_m_overflow")
    stamp(e, c, 10)
    I("s_mov_b32 s34, s42")
    if c.x_nobload: I("s_branch L2_bnoxb")
    if c.bearly: I("s_branch L2_pollB_w")
    e.label("L2_pollB")
    pollB_issue()
    e.label("L2_pollB_w")
    I("s_add_u32 s44, s44, 1")
    I("s_waitcnt vmcnt(0)")
    tag_bad(e, Y, TF+4, Y+1, ODD)
    tag_bad(e, Y+2, TF+8, Y+1, ODD)
    I(f"v_cndmask_b32 v{Y+2}, 0, v{Y+2}, s[46:47]")
    I(f"v_or_b32 v{Y}, v{Y}, v{Y+2}")
    I(f"v_cmp_ne_u32 vcc, 0, v{Y}")
    e.nop(2)
    I("s_cmp_eq_u64 vcc, 0")
    I("s_cbranch_scc1 L2_pollB_ok")
    I(f"s_sleep {c.psleep}")
    I("s_cmp_lt_u32 s44, 0x100000")
    I("s_cbranch_scc1 L2_pollB")
    e.label("L2_pollB_ok")
    stamp(e, c, 7)
    I(f"ds_write_b128 v{LA}, v[{TF+4}:{TF+7}] offset:{CEB}")
    I(f"ds_write_b128 v{LA}, v[{TF+8}:{TF+11}] offset:{CEB+1024}")
    def boff(p): return ((128 if p >= 4 else 0) + 8 * (p & 3)) * CSTRIDE
    def ent_read(p):
        r = E2[p & 1]
        I(f"ds_read_b128 v[{r}:{r+3}], v{RB} offset:{CEB+256*p}")
        I(f"ds_read_b64 v[{r+4}:{r+5}], v{RB} offset:{CEB+256*p+16}")
    ent_read(0); ent_read(1)
    I(f"v_add_u32 v{Y+1}, 8, v{LJ}")
    for p in range(NPB):
        r = E2[p & 1]
        I(f"s_waitcnt lgkmcnt({2 if p < NPB-1 else 0})")
        I(f"v_and_b32 v{SJ+p}, 0xfff, v{r}")
        I(f"v_bfe_u32 v{TB+p}, v{r}, 12, 12")
        I(f"v_perm_b32 v{KB+2*p}, v{r+3}, v{r+2}, v{SEL}")
        I(f"v_perm_b32 v{KB+2*p+1}, v{r+5}, v{r+4}, v{SEL}")
        if p + 2 < NPB: ent_read(p + 2)
        I(f"v_add_u32 v{SJ+p}, v{SJ+p}, v{LJ}")
        I(f"v_cmp_lt_u32 {mb(p,0)}, v{LJ}, v{TB+p}")
        I(f"v_cmp_lt_u32 {mb(p,1)}, v{Y+1}, v{TB+p}")
        I(f"v_lshl_add_u32 v{SJ+p}, v{SJ+p}, 4, v{LCH}")
    P0 = [TF, TF+4, TF+8, TF+12]
    def pay_issue(p, w, reg):
        I(f"s_mov_b32 s42, {boff(p)+PAYOFF}")
        I("s_mov_b64 exec, -1")
        I(f"v_cndmask_b32 v{Y+2+w}, 2.0, v{SJ+p}, {mb(p,w)}")
        I(f"buffer_load_dwordx4 v[{reg}:{reg+3}], v{Y+2+w}, s[8:11], s42 offen offset:{128*w} {rf}")
    for k in range(4): pay_issue(k >> 1, k & 1, P0[k])
    I(f"v_max3_u32 v{Y}, v{TB}, v{TB+1}, v{TB+2}")
    I(f"v_max3_u32 v{Y}, v{Y}, v{TB+3}, v{TB+4}")
    I(f"v_max3_u32 v{Y}, v{Y}, v{TB+5}, v{TB+6}")
    I(f"v_max_u32 v{Y}, v{Y}, v{TB+7}")
    I(f"v_cmp_lt_u32 vcc, 16, v{Y}")
    I(f"v_mov_b32 v{Y+1}, v{RB}")
    for p in range(NPB):
        for w in range(2):
            I(f"s_mov_b64 exec, {mb(p,w)}")
            I(f"ds_add_rtn_u32 v{RB+2*p+w}, v{KB+2*p+w}, v{LONE} offset:{HISTB}")
    I("s_mov_b64 exec, -1")
    I("s_cmp_lg_u64 vcc, 0")
    I("s_cselect_b32 s35, 1, 0")
    I("s_cbranch_scc0 L2_bnoxa")
    def w2mask(p):
        I(f"v_min_u32 v{Y+2}, {KIN}, v{TB+p}")
        I(f"v_add_u32 v{Y+3}, 16, v{LJ}")
        I(f"v_cmp_lt_u32 vcc, v{Y+3}, v{Y+2}")
        I("s_and_saveexec_b64 s[44:45], vcc")
    for p in range(NPB):
        w2mask(p)
        e.branch(f"s_cbranch_execz L2_bw2a{p}")
        I(f"ds_read_b32 v{KA+p}, v{Y+1} offset:{CEB+256*p+24}")
        I("s_waitcnt lgkmcnt(0)")
        I(f"v_perm_b32 v{KA+p}, v{KA+p}, v{KA+p}, v{SEL}")
        I(f"ds_add_rtn_u32 v{Y+2}, v{KA+p}, v{LONE} offset:{HISTB}")
        I("s_waitcnt lgkmcnt(0)")
        I(f"v_lshl_or_b32 v{KA+p}, v{Y+2}, 8, v{KA+p}")
        e.label(f"L2_bw2a{p}")
        I("s_mov_b64 exec, -1")
    def key_addr(p, dst):
        I(f"v_sub_u32 v{dst}, v{SJ+p}, v{LCH}")
        I(f"v_lshrrev_b32 v{dst}, 4, v{dst}")
        I(f"v_add_u32 v{dst}, v{dst}, v{LCH}")
    for p in range(NPB):
        I(f"s_mov_b32 s42, {boff(p)+KEYOFF}")
        key_addr(p, Y+3)
        extra_count(f"b{p}", KIN, LJ, Y+3, TB+p, 42, LONE, HIST2B, Y)
    e.label("L2_bnoxa")
    I("s_mov_b64 exec, 1")
    I(f"v_mov_b32 v{Y+2}, 0")
    I("s_waitcnt lgkmcnt(0)")
    I(f"ds_add_u32 v{Y+2}, v{LONE} offset:{BSYNC}")
    I("s_mov_b64 exec, -1")
    I(f"v_mov_b32 v{Y+2}, 0")
    spin(e, "bs", Y, Y+2, BSYNC, 4, 44, 42)
    BB = Y + 4
    I(f"ds_read_b32 v{Y}, v{X0} offset:{HISTB}")
    I(f"ds_read_b32 v{Y+1}, v{X0} offset:{HIST2B}")
    I("s_waitcnt lgkmcnt(0)")
    I(f"v_add_u32 v{Y+1}, v{Y}, v{Y+1}")
    I(f"v_mov_b32 v{BB}, v{Y+1}")
    scan64(e, BB)
    I(f"v_sub_u32 v{BB}, v{BB}, v{Y+1}")
    I(f"v_add_u32 v{BB}, {BOFF}, v{BB}")
    for k in range(2*NPB):
        I(f"ds_bpermute_b32 v{KB+k}, v{KB+k}, v{BB}")
    I("s_cmp_lg_u32 s21, 0")
    I("s_cbranch_scc1 L2_bnoinfo")
    I(f"v_lshl_or_b32 v{Y+1}, v{Y+1}, 16, v{BB}")
    I(f"s_mov_b32 exec_lo, {((1 << 32) - (1 << HN))}")
    I(f"ds_write_b32 v{X0}, v{Y+1} offset:{INFO}")
    I("s_mov_b64 exec, -1")
    e.label("L2_bnoinfo")
    I("s_waitcnt lgkmcnt(0)")
    for k in range(2*NPB):
        I(f"v_add_lshl_u32 v{KB+k}, v{KB+k}, v{RB+k}, 4")
    I(f"v_mov_b32 v{LONE}, v{Y}")
    regs = P0 + [RB, RB+4, RB+8, RB+12]
    for k in range(4, 8): pay_issue(k >> 1, k & 1, regs[k])
    for k in range(16):
        I(f"s_waitcnt vmcnt({min(7, 15-k)})")
        I(f"s_mov_b64 exec, {mb(k>>1, k&1)}")
        I(f"ds_write_b128 v{KB+k}, v[{regs[k&7]}:{regs[k&7]+3}] offset:{RAW}")
        if k + 8 < 16: pay_issue((k+8) >> 1, (k+8) & 1, regs[k&7])
    I("s_mov_b64 exec, -1")
    I("s_cmp_eq_u32 s35, 0")
    I("s_cbranch_scc1 L2_bnoxb")
    for p in range(NPB):
        I(f"v_and_b32 v{Y}, 0xff, v{KA+p}")
        I(f"ds_bpermute_b32 v{Y}, v{Y}, v{BB}")
        w2mask(p)
        e.branch(f"s_cbranch_execz L2_bw2b{p}")
        I(f"s_mov_b32 s42, {boff(p)+PAYOFF}")
        I(f"buffer_load_dwordx4 v[{TF}:{TF+3}], v{SJ+p}, s[8:11], s42 offen offset:256 {rf}")
        I(f"v_lshrrev_b32 v{KA+p}, 8, v{KA+p}")
        I("s_waitcnt vmcnt(0) lgkmcnt(0)")
        I(f"v_add_lshl_u32 v{Y}, v{Y}, v{KA+p}, 4")
        I(f"ds_write_b128 v{Y}, v[{TF}:{TF+3}] offset:{RAW}")
        e.label(f"L2_bw2b{p}")
        I("s_mov_b64 exec, -1")
        I("s_waitcnt lgkmcnt(0)")
    I(f"v_add_u32 v{BB}, v{BB}, v{LONE}")
    I(f"v_mov_b32 v{LONE}, 1")
    for p in range(NPB):
        I(f"s_mov_b32 s42, {boff(p)+KEYOFF}")
        I(f"s_mov_b32 s43, {boff(p)+PAYOFF}")
        key_addr(p, KA+p)
        extra_move(f"b{p}", KIN, LJ, KA+p, SJ+p, TB+p, 42, 43, LONE, CUR2B, BB, Y, TF)
    e.label("L2_bnoxb")
    I("s_waitcnt lgkmcnt(0)")
    for k in range(64):
        I(f"v_mov_b32 v{G+k}, 0")
    I("s_cmp_lg_u32 s21, 1")
    I("s_cbranch_scc1 L2_bnoguard")
    I(f"s_add_u32 s42, s34, {BOFF}")
    I("s_lshl_b32 s42, s42, 4")
    I(f"v_lshl_add_u32 v{TF}, v{X0}, 2, s42")
    I(f"ds_write_b128 v{TF}, v[{G}:{G+3}] offset:{RAW}")
    I("s_waitcnt lgkmcnt(0)")
    e.label("L2_bnoguard")
    I(f"v_mov_b32 v{TF}, 1")
    I("s_mov_b64 exec, 1")
    I(f"ds_add_u32 v{G}, v{TF} offset:{BREADY}")
    I("s_mov_b64 exec, -1")
    stamp(e, c, 13)
    I("s_branch L2_m_tiles")
    e.label("L2_m_slowC")
    I("s_barrier")
    e.label("L2_m_tiles")
    if c.prio_m: I(f"s_setprio {c.prio_m}")
    for h in range(2):
        for t in ((0, 3, 1, 2) if h else range(4)):
            need = 16 if t < 3 else NODES - 48
            last = (h, t) == (1, 2)
            if last and c.split: need = 32
            I(f"v_mov_b32 v{TF}, 0")
            spin(e, f"t{h}{t}", TF+1, TF, DONE + 16*h + 4*t, need, 43, 42, sleep=(1 if last else c.sleep))
            stamp(e, c, 16 + 4*h + t)
            srcs = [t] + ([0] if last and c.split else [])
            steps = [(tt, ks) for tt in srcs for ks in range(16)]
            def mf(ks, r):
                jp, blk = ks >> 2, 2 * h + ((ks >> 1) & 1)
                p, i, sg = path_of(jp, blk)
                f = p * 2 + (ks & 1)
                g = G + 16 * t + 4 * i
                I(f"v_mfma_f32_16x16x32_bf16 v[{g}:{g+3}], v[{W+4*f}:{W+4*f+3}], v[{r}:{r+3}], v[{g}:{g+3}]")
            def rd(n, r):
                tt, ks = steps[n]
                I(f"ds_read_b128 v[{r}:{r+3}], v{TA+(ks&3)} offset:{tt*16384 + (ks>>2)*256}")
            for n in range(4): rd(n, TF + 4*n)
            for n in range(len(steps)):
                I(f"s_waitcnt lgkmcnt({min(3, len(steps)-1-n)})")
                mf(steps[n][1], TF + 4*(n&3))
                if n + 4 < len(steps): rd(n + 4, TF + 4*(n&3))
            if (h, t) == (1, 0) and c.split:
                I(f"v_mov_b32 v{TF}, 0")
                I(f"v_mov_b32 v{TF+1}, 1")
                I("s_mov_b64 exec, 1")
                I(f"ds_add_u32 v{TF}, v{TF+1} offset:{GDONE + 16}")
                I("s_mov_b64 exec, -1")
            if h == 0:
                I(f"v_mov_b32 v{TF}, 0")
                I(f"v_mov_b32 v{TF+1}, 1")
                I("s_mov_b64 exec, 1")
                I(f"ds_add_u32 v{TF}, v{TF+1} offset:{GDONE + 4*t}")
                I("s_mov_b64 exec, -1")
                if t == c.pf1_tile:
                    I(f"s_movk_i32 m0, {HIST2B}")
                    I("s_lshl_b32 s42, s21, 6")
                    I(f"v_lshrrev_b32 v{TF+3}, 2, v{X0}")
                    I(f"v_add_u32 v{TF+3}, s42, v{TF+3}")
                    prefetch_x(e, c.pf1_lines, TF + 4, TF + 3, 256, 31, 1, 4, lds=True)
            else:
                I("s_cmp_eq_u32 s24, 0")
                e.branch(f"s_cbranch_scc1 L2_nofin{t}")
                g = G + 16 * t
                I("s_mov_b32 s42, 0xbfb8aa3b")
                for r in range(4): I(f"v_mul_f32 v{TF+r}, s42, v{g+r}")
                for r in range(4): I(f"v_exp_f32 v{TF+r}, v{TF+r}")
                for r in range(4): I(f"v_add_f32 v{TF+r}, 1.0, v{TF+r}")
                for r in range(4): I(f"v_rcp_f32 v{TF+r}, v{TF+r}")
                for i in range(1, 4):
                    for r in range(4): I(f"v_mul_f32 v{g+4*i+r}, v{g+4*i+r}, v{TF+r}")
                for i in range(4):
                    I(f"v_cvt_pk_bf16_f32 v{TF+4+2*i}, v{g+4*i}, v{g+4*i+1}")
                    I(f"v_cvt_pk_bf16_f32 v{TF+5+2*i}, v{g+4*i+2}, v{g+4*i+3}")
                I(f"s_mov_b32 s42, {t*16*512 + ((N//2-HN)*512 if t >= 2 else 0)}")
                va = X1
                if t == 1:
                    va = TF
                    I(f"v_add_u32 v{TF}, {(N//2-HN)*512}, v{X1}")
                    I(f"v_cndmask_b32 v{TF}, v{X1}, v{TF}, s[84:85]")
                    I("s_mov_b64 exec, s[94:95]")
                if t == 3:
                    I("s_mov_b64 exec, s[50:51]")
                    I("s_cbranch_execz L2_nost3")
                for i in range(4):
                    I(f"buffer_store_dwordx2 v[{TF+4+2*i}:{TF+5+2*i}], v{va}, s[12:15], s42 offen offset:{i*128} {c.out_flags}")
                if t == 3: e.label("L2_nost3")
                if t in (1, 3): I("s_mov_b64 exec, -1")
                e.label(f"L2_nofin{t}")
    stamp(e, c, 11)
    I("s_cmp_lg_u32 s24, 0")
    e.branch("s_cbranch_scc1 L2_m_exit")
    I("s_add_u32 s89, s89, 1")
    I("s_branch L2_m_slow")
    e.label("L2_m_overflow")
    I("s_mov_b32 s89, 0")
    I("s_mov_b32 s23, 1")
    I("s_waitcnt vmcnt(0)")
    for k in range(64):
        I(f"v_mov_b32 v{G+k}, 0")
    e.label("L2_m_slow")
    I("s_waitcnt vmcnt(0) lgkmcnt(0)")
    I("s_barrier")
    I(f"s_cmp_eq_u32 s89, {2*NCH-1}")
    I("s_cselect_b32 s24, 1, 0")
    I("s_cmp_lg_u32 s21, 1")
    I("s_cbranch_scc1 L2_m_nz")
    for k in range(4): I(f"v_mov_b32 v{TF+k}, 0")
    I(f"v_lshlrev_b32 v{TF+4}, 2, v{X0}")
    I(f"ds_write_b128 v{TF+4}, v[{TF}:{TF+3}]")
    I("s_waitcnt lgkmcnt(0)")
    e.label("L2_m_nz")
    I("s_barrier")
    e.branch("s_branch L2_m_round")
    e.label("L2_m_exit")
    if c.stamps:
        I("s_waitcnt vmcnt(0)")
        stamp(e, c, 12)
        stamp_store(e, c, TF)
    e.label("L_end")
    I("s_endpgm")
    e.label("L_codeend")
    return KNAME, 128, 96

def gather_loop(e, c, L):
    I = e.I
    RAW, T, NEXT, DONE, GDONE, OSC, PL1, BREADY, INFO = (L[k] for k in "RAW T NEXT DONE GDONE OSC PL1 BREADY INFO".split())
    VLANE, VINFO, VNEXT, VLOFF, VMASK, VOW, VOR, VSCRW, VTRA, VWR, VL16, VT0, VT1, VONE = (L[k] for k in
        "VLANE VINFO VNEXT VLOFF VMASK VOW VOR VSCRW VTRA VWR VL16 VT0 VT1 VONE".split())
    ACC, LD, B, A, AD = 0, 32, 64, 96, 100
    sA, sR, sH, sN, sNV = 32, 33, 34, 35, 37
    sCN, sCH, sCF, sCR, sL = 38, 39, 40, 41, 36
    uid = [0]
    def lab(p):
        uid[0] += 1
        return f"L2_{p}{uid[0]}"
    def fetch_issue():
        I("s_mov_b64 exec, 1")
        I(f"ds_add_rtn_u32 v{VNEXT}, v{VL16}, v{VONE} offset:{NEXT}")
        I("s_mov_b64 exec, -1")
    NIT = 2*NODES + (16 if c.split else 0)
    def setup_item(none_label):
        I(f"v_readfirstlane_b32 s42, v{VNEXT}")
        e.nop(1)
        I(f"s_cmp_ge_u32 s42, {NIT}")
        I(f"s_cbranch_scc1 {none_label}")
        t, sp, dn = lab("bw"), lab("sp"), lab("sd")
        if c.split:
            I(f"s_cmp_ge_u32 s42, {2*NODES-16}")
            I(f"s_cbranch_scc1 {sp}")
        I(f"s_cmp_ge_u32 s42, {NODES}")
        I(f"s_cselect_b32 s{sH}, 256, 0")
        I(f"s_cselect_b32 s43, {NODES}, 0")
        I(f"s_cmp_ge_u32 s42, {NODES+16}")
        I(f"s_cselect_b32 s43, {NODES-32}, s43")
        I(f"s_cmp_ge_u32 s42, {NODES+18}")
        I(f"s_cselect_b32 s43, {NODES+2}, s43")
        I(f"s_sub_u32 s{sN}, s42, s43")
        I(f"s_cmp_lt_u32 s{sN}, s48")
        I(f"s_cbranch_scc1 {t}")
        stamp(e, c, 29)
        I(f"v_mov_b32 v{VT0}, 0")
        spin(e, t, VT1, VT0, BREADY, 4, 45, 44, sleep=1)
        I(f"v_lshrrev_b32 v{VT0}, 2, v{VL16}")
        I(f"ds_read_b32 v{VINFO}, v{VT0} offset:{INFO}")
        I("s_movk_i32 s48, 64")
        I("s_waitcnt lgkmcnt(0)")
        stamp(e, c, 30)
        e.label(t)
        I(f"v_readlane_b32 s42, v{VINFO}, s{sN}")
        e.nop(1)
        I(f"s_lshr_b32 s{sR}, s42, 16")
        I("s_and_b32 s42, s42, 0xffff")
        I(f"s_lshl_b32 s{sA}, s42, 4")
        if c.split:
            I(f"s_branch {dn}")
            e.label(sp)
            I(f"s_sub_u32 s42, s42, {2*NODES-16}")
            I("s_lshr_b32 s43, s42, 1")
            I(f"s_add_u32 s{sN}, s43, 32")
            I(f"s_cmp_lt_u32 s{sN}, s48")
            I(f"s_cbranch_scc1 {t}b")
            I(f"v_mov_b32 v{VT0}, 0")
            spin(e, t + "c", VT1, VT0, BREADY, 4, 45, 44, sleep=1)
            I(f"v_lshrrev_b32 v{VT0}, 2, v{VL16}")
            I(f"ds_read_b32 v{VINFO}, v{VT0} offset:{INFO}")
            I("s_movk_i32 s48, 64")
            I("s_waitcnt lgkmcnt(0)")
            e.label(t + "b")
            I(f"v_readlane_b32 s44, v{VINFO}, s{sN}")
            I(f"s_movk_i32 s{sH}, 256")
            I(f"s_lshr_b32 s{sR}, s44, 16")
            I("s_and_b32 s44, s44, 0xffff")
            I(f"s_min_u32 s45, s{sR}, 32")
            I("s_bitcmp1_b32 s42, 0")
            I(f"s_cbranch_scc1 {sp}h")
            I(f"s_mov_b32 s{sR}, s45")
            I(f"s_lshl_b32 s{sA}, s44, 4")
            I(f"s_branch {dn}")
            e.label(sp + "h")
            I(f"s_sub_u32 s{sR}, s{sR}, s45")
            I("s_add_u32 s44, s44, s45")
            I(f"s_lshl_b32 s{sA}, s44, 4")
            I(f"s_or_b32 s{sN}, s43, 64")
            e.label(dn)
    def off_read(hf):
        I(f"ds_read_b128 v[{AD}:{AD+3}], v{VOR} offset:{OSC+128*hf}")
        I(f"ds_read_b128 v[{AD+4}:{AD+7}], v{VOR} offset:{OSC+128*hf+16}")
    def off_add():
        if c.addtid: return
        for i in range(8):
            I(f"v_add_u32 v{AD+i}, v{AD+i}, v{VLOFF}")
    def prep_block():
        r = B
        I(f"v_add_u32 v{VT0}, s{sA}, v{VL16}")
        I(f"ds_read_b128 v[{r}:{r+3}], v{VT0} offset:{RAW}")
        l = lab("nf")
        I(f"s_cmp_gt_u32 s{sR}, 64")
        I(f"s_cbranch_scc1 {l}")
        fetch_issue()
        e.label(l)
        I(f"v_cmp_gt_u32 vcc, s{sR}, v{VLANE}")
        I("s_waitcnt lgkmcnt(0)")
        I(f"v_lshrrev_b32 v{r+11}, 16, v{r+3}")
        if c.addtid:
            I(f"v_lshlrev_b32 v{r+11}, 5, v{r+11}")
            I(f"v_sub_u32 v{r+11}, v{r+11}, v{VLOFF}")
        else:
            I(f"v_lshlrev_b32 v{r+11}, 9, v{r+11}")
            if c.oobtail: I(f"v_cndmask_b32 v{r+11}, 2.0, v{r+11}, vcc")
        I(f"ds_write_b32 v{VOW}, v{r+11} offset:{OSC}")
        off_read(0)
        if not c.x_noexp:
            I(f"v_cndmask_b32 v{r}, 0, v{r}, vcc")
            I(f"v_cndmask_b32 v{r+1}, 0, v{r+1}, vcc")
            I(f"v_lshlrev_b32 v{r+8}, 16, v{r+2}")
            I(f"v_and_b32 v{r+9}, v{VMASK}, v{r+2}")
            I(f"v_lshlrev_b32 v{r+10}, 16, v{r+3}")
            I(f"v_lshlrev_b32 v{r+4}, 16, v{r}")
            I(f"v_and_b32 v{r+5}, v{VMASK}, v{r}")
            I(f"v_lshlrev_b32 v{r+6}, 16, v{r+1}")
            I(f"v_and_b32 v{r+7}, v{VMASK}, v{r+1}")
            for j in range(3):
                for d in range(4):
                    I(f"v_mul_f32 v{r+12+4*j+d}, v{r+4+d}, v{r+8+j}")
            I(f"v_cvt_pk_bf16_f32 v{r+2}, v{r+12}, v{r+13}")
            I(f"v_cvt_pk_bf16_f32 v{r+3}, v{r+14}, v{r+15}")
            for k in range(4):
                I(f"v_cvt_pk_bf16_f32 v{r+24+k}, v{r+16+2*k}, v{r+17+2*k}")
        I(f"ds_write_b128 v{VSCRW}, v[{r}:{r+3}]")
        I(f"ds_write_b128 v{VSCRW}, v[{r+24}:{r+27}] offset:{PL1}")
        I("s_waitcnt lgkmcnt(2)")
        off_add()
    def ld(i):
        if c.x_noload: return
        I(f"buffer_load_dwordx4 v[{LD+4*i}:{LD+4*i+3}], v{AD+i}, s[4:7], {'0' if c.x_samehalf else 's%d' % sH} {'idxen' if c.addtid else 'offen'}")
    def perm(q, jj, k16=False):
        if c.x_noperm: return
        d = B + 2*q + jj if k16 else B + 4*q + jj
        I(f"v_perm_b32 v{d}, v{LD+4*(2*jj+1)+q//2}, v{LD+4*(2*jj)+q//2}, s{29 if q & 1 else 28}")
    def loads_partial(done):
        for i in range(7):
            I(f"s_cmp_le_u32 s{sL}, {4*i}")
            I(f"s_cbranch_scc1 {done}")
            ld(i)
    def perms_loads():
        part, done = lab("pp"), lab("pd")
        I("s_waitcnt vmcnt(0)")
        I(f"s_cmp_le_u32 s{sL}, 28")
        I(f"s_cbranch_scc1 {part}")
        for jj in range(4):
            for q in range(8): perm(q, jj)
            ld(2*jj); ld(2*jj+1)
        I(f"s_branch {done}")
        e.label(part)
        for jj in range(4):
            for q in range(8): perm(q, jj)
        loads_partial(done)
        e.label(done)
    def mfmas(first, k16=False):
        if c.x_nomfma: return
        for q in range(8):
            d = f"v[{ACC+4*q}:{ACC+4*q+3}]"
            if k16: I(f"v_mfma_f32_16x16x16_bf16 {d}, v[{A}:{A+1}], v[{B+2*q}:{B+2*q+1}], {'0' if first else d}")
            else: I(f"v_mfma_f32_16x16x32_bf16 {d}, v[{A}:{A+3}], v[{B+4*q}:{B+4*q+3}], {'0' if first else d}")
    def tr_read(hf):
        I(f"ds_read_b64_tr_b16 v[{A}:{A+1}], v{VTRA} offset:{512*hf}")
        I(f"ds_read_b64_tr_b16 v[{A+2}:{A+3}], v{VTRA} offset:{512*hf+256}")

    if c.stamps: I("s_mov_b32 s92, 16")
    setup_item("L2_g_done")
    prep_block()
    for i in range(8): ld(i)
    for first in (1, 0):
        e.label(f"L2_A{first}")
        tr_read(0)
        I(f"s_cmp_gt_u32 s{sR}, 32")
        I(f"s_cbranch_scc1 L2_AB{first}")
        I(f"s_mov_b32 s{sCF}, {first}")
        I(f"s_mov_b32 s{sCR}, s{sR}")
        I("s_branch L2_XN")
        e.label(f"L2_AB{first}")
        off_read(1)
        I(f"s_sub_u32 s{sL}, s{sR}, 32")
        I("s_waitcnt lgkmcnt(0)")
        off_add()
        perms_loads()
        mfmas(first)
        if first: I("s_branch L2_B")
    e.label("L2_B")
    tr_read(1)
    I(f"s_cmp_gt_u32 s{sR}, 64")
    I("s_cbranch_scc0 L2_BN")
    I(f"s_sub_u32 s{sR}, s{sR}, 64")
    I(f"s_add_u32 s{sA}, s{sA}, 1024")
    I(f"s_mov_b32 s{sL}, s{sR}")
    prep_block()
    perms_loads()
    I("s_waitcnt lgkmcnt(0)")
    mfmas(0)
    I("s_branch L2_A0")
    e.label("L2_BN")
    I(f"s_mov_b32 s{sCF}, 0")
    I(f"s_sub_u32 s{sCR}, s{sR}, 32")
    e.label("L2_XN")
    I(f"s_mov_b32 s{sCN}, s{sN}")
    I(f"s_mov_b32 s{sCH}, s{sH}")
    I(f"s_mov_b32 s{sNV}, 1")
    setup_item("L2_XN_none")
    I(f"s_mov_b32 s{sL}, s{sR}")
    prep_block()
    I("s_branch L2_XN_go")
    e.label("L2_XN_none")
    I(f"s_mov_b32 s{sNV}, 0")
    I(f"s_mov_b32 s{sL}, 0")
    e.label("L2_XN_go")
    I(f"s_cmp_le_u32 s{sCR}, 16")
    I("s_cbranch_scc1 L2_XN_k16")
    perms_loads()
    I("s_waitcnt lgkmcnt(0)")
    I(f"s_cmp_eq_u32 s{sCF}, 0")
    I("s_cbranch_scc1 L2_XN_acc")
    mfmas(1)
    I("s_branch L2_XN_epi")
    e.label("L2_XN_acc")
    mfmas(0)
    I("s_branch L2_XN_epi")
    e.label("L2_XN_k16")
    I("s_waitcnt vmcnt(0)")
    for jj in range(2):
        for q in range(8): perm(q, jj, True)
    I(f"s_cmp_le_u32 s{sL}, 28")
    I("s_cbranch_scc1 L2_XN_k16p")
    for i in range(8): ld(i)
    I("s_branch L2_XN_k16d")
    e.label("L2_XN_k16p")
    loads_partial("L2_XN_k16d")
    e.label("L2_XN_k16d")
    I("s_waitcnt lgkmcnt(0)")
    I(f"s_cmp_eq_u32 s{sCF}, 0")
    I("s_cbranch_scc1 L2_XN_k16acc")
    mfmas(1, True)
    I("s_branch L2_XN_epi")
    e.label("L2_XN_k16acc")
    mfmas(0, True)
    e.label("L2_XN_epi")
    I(f"s_lshl_b32 s42, s{sCH}, 5")
    I(f"v_add_u32 v{VT0}, s42, v{VWR}")
    for q in range(8):
        I(f"ds_read_b128 v[{B+4*q}:{B+4*q+3}], v{VT0} offset:{q*1024}")
    I(f"s_lshr_b32 s43, s{sCN}, 4")
    I(f"s_lshl_b32 s43, s43, 2")
    I(f"s_cmp_eq_u32 s{sCH}, 0")
    I("s_cbranch_scc1 L2_nowar")
    I(f"v_mov_b32 v{VT1}, s43")
    spin(e, "war", VT0, VT1, GDONE, 4, 45, 44)
    if c.split:
        I("s_cmp_eq_u32 s43, 16")
        I("s_cselect_b32 s43, 8, s43")
    I("s_add_u32 s43, s43, 16")
    e.label("L2_nowar")
    I(f"s_and_b32 s44, s{sCN}, 15")
    I("s_lshl_b32 s44, s44, 4")
    I(f"s_and_b32 s45, s{sCN}, 63")
    I(f"s_lshl_b32 s45, s45, 10")
    I(f"s_add_u32 s45, s45, {T}")
    I(f"v_xor_b32 v{VT0}, s44, v{VL16}")
    I(f"v_add_u32 v{VT0}, s45, v{VT0}")
    I(f"v_mov_b32 v{VT1}, s43")
    I("s_waitcnt lgkmcnt(0)")
    for q in range(8):
        I(f"v_mul_f32 v{B+4*q}, v{B+4*q}, v{ACC+4*q}")
    for d in range(1, 4):
        for q in range(8):
            I(f"v_fmac_f32 v{B+4*q}, v{B+4*q+d}, v{ACC+4*q+d}")
    for k in range(4):
        I(f"v_cvt_pk_bf16_f32 v{A+k}, v{B+8*k}, v{B+8*k+4}")
    I(f"ds_write_b128 v{VT0}, v[{A}:{A+3}]")
    if not c.nowait: I("s_waitcnt lgkmcnt(0)")
    I("s_mov_b64 exec, 1")
    I(f"ds_add_u32 v{VT1}, v{VONE} offset:{DONE}")
    I("s_mov_b64 exec, -1")
    if c.stamps:
        I("s_memrealtime s[90:91]")
        I("s_waitcnt lgkmcnt(0)")
        I("s_mov_b32 m0, s92")
        I(f"v_writelane_b32 v{STV}, s90, m0")
        I("s_add_u32 s92, s92, 1")
        I("s_min_u32 s92, s92, 23")
    I(f"s_cmp_lg_u32 s{sNV}, 0")
    I("s_cbranch_scc1 L2_A1")

HEADER = """; equiformer tensor-product message passing, one persistent launch (one workgroup per CU):
"""

def gen_probe(e, c):
    kA, a0, a1, sA, oA, kB, b0, b1, sB, oB = c.probe.split(",")
    kernel_header(e, "eqprobe_kernel")
    I = e.I
    I("s_cmp_ge_u32 s2, 1")
    I("s_cbranch_scc1 LP_end")
    I("s_memrealtime s[20:21]")
    I("s_load_dwordx2 s[4:5], s[0:1], 88")
    I("s_waitcnt lgkmcnt(0)")
    srd(e, 8, 4, 32 << 20)
    I(f"v_min_u32 v1, {c.nwg-1}, v0")
    I("v_lshlrev_b32 v1, 11, v1")
    I("v_mov_b32 v10, 0"); I("v_mov_b32 v11, -1"); I("v_mov_b32 v12, 0")
    I("ds_write_b32 v10, v11 offset:0"); I("ds_write_b32 v10, v12 offset:4"); I("ds_write_b32 v10, v11 offset:8"); I("ds_write_b32 v10, v12 offset:12")
    I("s_waitcnt lgkmcnt(0)"); I("s_barrier")
    regs = []
    for (k, w0, w1, sl, off) in ((kA, a0, a1, sA, 0), (kB, b0, b1, sB, 8)):
        if k == "now":
            I(f"v_mov_b32 v{16+len(regs)}, s20"); regs.append(off); continue
        I(f"s_mov_b32 s12, {STAMPOFF}")
        for w in range(int(w0), int(w1)):
            I(f"buffer_load_dword v{16+len(regs)}, v1, s[8:11], s12 offen offset:{w*128 + int(sl)*4}")
            regs.append(off)
    I("s_waitcnt vmcnt(0)")
    for off, op in ((0, oA), (8, oB)):
        idx = [n for n, o in enumerate(regs) if o == off]
        for n in idx[1:]:
            I(f"v_{op}_u32 v{16+idx[0]}, v{16+idx[0]}, v{16+n}")
        I(f"ds_{op}_u32 v10, v{16+idx[0]} offset:{off + (0 if op == 'min' else 4)}")
    I("s_waitcnt lgkmcnt(0)"); I("s_barrier")
    I(f"ds_read_b32 v3, v10 offset:{0 if oA == 'min' else 4}")
    I(f"ds_read_b32 v4, v10 offset:{8 if oB == 'min' else 12}")
    I("s_waitcnt lgkmcnt(0)")
    I("v_sub_u32 v3, v3, v4")
    I("v_min_u32 v3, 0x2000, v3")
    I("v_readfirstlane_b32 s14, v3")
    I("s_memrealtime s[16:17]")
    I("s_mul_i32 s14, s14, 10")
    I("s_waitcnt lgkmcnt(0)")
    e.label("LP_spin")
    I("s_memrealtime s[18:19]")
    I("s_waitcnt lgkmcnt(0)")
    I("s_sub_u32 s18, s18, s16")
    I("s_cmp_lt_u32 s18, s14")
    I("s_cbranch_scc1 LP_spin")
    e.label("LP_end")
    I("s_endpgm")
    return "eqprobe_kernel", 64, 32

def generate(c):
    e = Emitter()
    e.raw('.amdgcn_target "amdgcn-amd-amdhsa--gfx950"')
    e.raw(".text")
    k = gen_main(e, c)
    head = HEADER + f"; @launch grid=({c.nwg},1,1) block=(1024,1,1) lds={c.lds}\n"
    tail = '.section .rodata,"a"\n.p2align 6\n' + kd(*k)
    if c.probe:
        kp = gen_probe(e, c)
        head = HEADER + f"; @launch kernel={KNAME} grid=({c.nwg},1,1) block=(1024,1,1) lds={c.lds}\n; @launch kernel=eqprobe_kernel grid=(1,1,1) block=(256,1,1) lds=64\n"
        tail += ".p2align 6\n" + kd(*kp)
    return head + e.text() + tail

if __name__ == "__main__":
    c = Cfg()
    out = sys.argv[1]
    for kv in sys.argv[2:]:
        k, v = kv.split("=", 1)
        old = getattr(c, k)
        setattr(c, k, type(old)(int(v)) if isinstance(old, (bool, int)) else v.replace("+", " "))
    open(out, "w").write(generate(c))
```

```python
import sys
from emit import Emitter

N, E = 12500, 800000
NODES, HN = 50, 25
NCH = 250
CSTRIDE = 70784
KEYOFF, PAYOFF, TABOFF = 0, 3200, 54400
WSBYTES = NCH * CSTRIDE
KIN = 20
KNAME = "gather_scatter__tensor_product_equiv_equiformer__graph_kernel"
STAMPOFF = 24 << 20

class Cfg:
    nwg = 250
    st_flags = "sc1"
    ld_flags = "nt"
    rec_flags = "sc1"
    out_flags = ""
    pfx_lines = 192
    stamps = False
    cap = 1888
    x_noperm = 0
    x_noexp = 0
    x_nomfma = 0
    x_noload = 0
    x_samehalf = 0
    x_nobload = 0
    codepf = 26
    tlbpf = 0
    codeearly = 0
    sleep = 12
    psleep = 2
    probe = ""
    addtid = 0
    split = 0
    coal = 1
    pf1_tile = -1
    pf1_lines = 256
    prio_g = 0
    prio_m = 0
    ld2_flags = None
    nowait = 1
    fastlast = 1
    pfx2_lines = 0
    pfx2_pos = 0
    oobtail = 1
    bearly = 1
    tidw3 = "0x00800000"

def srd(e, d, b, nbytes, w1=None, w3="0x20000"):
    e.I(f"s_mov_b32 s{d}, s{b}")
    if w1: e.I(f"s_or_b32 s{d+1}, s{b+1}, {w1}")
    else: e.I(f"s_mov_b32 s{d+1}, s{b+1}")
    e.I(f"s_mov_b32 s{d+2}, {nbytes}")
    e.I(f"s_mov_b32 s{d+3}, {w3}")

def scan64(e, v):
    for sh in (1, 2, 4, 8):
        e.I(f"v_add_u32_dpp v{v}, v{v}, v{v} row_shr:{sh} row_mask:0xf bank_mask:0xf")
    e.I(f"v_add_u32_dpp v{v}, v{v}, v{v} row_bcast:15 row_mask:0xa bank_mask:0xf")
    e.I(f"v_add_u32_dpp v{v}, v{v}, v{v} row_bcast:31 row_mask:0xc bank_mask:0xf")

def prefetch_x(e, nlines, vt, vtid, nthreads, slice_s, half, srdx, first=0, lds=False):
    if nlines <= 0: return 0
    e.I(f"s_mul_i32 s46, s{slice_s}, 782")
    if first: e.I(f"s_add_u32 s46, s46, {first}")
    e.I(f"s_mov_b32 s47, {nlines}")
    it = (nlines + nthreads - 1) // nthreads
    for k in range(it):
        e.I(f"v_add_u32 v{vt}, {k*nthreads}, v{vtid}")
        e.I(f"v_cmp_gt_u32 vcc, s47, v{vt}")
        e.I(f"v_add_u32 v{vt}, s46, v{vt}")
        e.I(f"v_and_b32 v{vt+1}, 1, v{vt}")
        e.I(f"v_lshrrev_b32 v{vt}, 1, v{vt}")
        e.I(f"v_lshlrev_b32 v{vt}, 9, v{vt}")
        e.I(f"v_lshl_add_u32 v{vt}, v{vt+1}, 7, v{vt}")
        e.I(f"v_cndmask_b32 v{vt}, 2.0, v{vt}, vcc")
        if lds:
            if half: e.I(f"v_add_u32 v{vt}, 256, v{vt}")
            e.I(f"buffer_load_dword v{vt}, s[{srdx}:{srdx+3}], 0 offen lds")
        else:
            e.I(f"buffer_load_dword v{vt+2}, v{vt}, s[{srdx}:{srdx+3}], 0 offen offset:{half*256}")
    return it

STV, TIDV = 127, 126
def stamp(e, c, slot, ins="s_memrealtime"):
    if not c.stamps: return
    e.I(f"{ins} s[90:91]")
    e.I("s_waitcnt lgkmcnt(0)")
    e.I(f"v_writelane_b32 v{STV}, s90, {slot}")

def stamp_store(e, c, vtmp):
    if not c.stamps: return
    e.I(f"v_lshrrev_b32 v{vtmp}, 6, v{TIDV}")
    e.I(f"s_lshl_b32 s90, s2, 4")
    e.I(f"v_add_u32 v{vtmp}, s90, v{vtmp}")
    e.I(f"v_lshlrev_b32 v{vtmp}, 7, v{vtmp}")
    e.I(f"v_and_b32 v{vtmp+1}, 63, v{TIDV}")
    e.I(f"v_lshl_add_u32 v{vtmp}, v{vtmp+1}, 2, v{vtmp}")
    e.I(f"v_cmp_gt_u32 vcc, 32, v{vtmp+1}")
    e.I(f"v_cndmask_b32 v{vtmp}, 2.0, v{vtmp}, vcc")
    e.I(f"s_mov_b32 s90, {STAMPOFF}")
    e.I(f"buffer_store_dword v{STV}, v{vtmp}, s[8:11], s90 offen")

def kernel_header(e, name):
    e.raw(f".globl {name}")
    e.raw(".p2align 8")
    e.raw(f".type {name},@function")
    e.raw(f"{name}:")
    e.hist = []

def kd(name, nv, ns):
    return f""".amdhsa_kernel {name}
  .amdhsa_next_free_vgpr {nv}
  .amdhsa_next_free_sgpr {ns}
  .amdhsa_accum_offset {(nv+3)//4*4}
  .amdhsa_group_segment_fixed_size 0
  .amdhsa_kernarg_size 96
  .amdhsa_user_sgpr_count 2
  .amdhsa_user_sgpr_kernarg_segment_ptr 1
  .amdhsa_system_sgpr_workgroup_id_x 1
  .amdhsa_float_denorm_mode_32 3
.end_amdhsa_kernel
"""

def path_of(jp, blk):
    if blk == 0: return (0, 0, 1) if jp == 0 else (2, jp, 1)
    k = blk - 1
    if jp == 0: return (3, 1 + k, 1)
    j = jp - 1
    if j == k: return (1, 0, 1)
    i = 3 - j - k
    return (4, 1 + i, 1 if k == (j + 1) % 3 else -1)

class Lay: pass

def spin(e, tag, vdst, vaddr, off, need, scnt, sval, sleep=None, bound="0x400000"):
    I = e.I
    I(f"s_mov_b32 s{scnt}, 0")
    e.label(f"L_sp{tag}")
    I(f"ds_read_b32 v{vdst}, v{vaddr} offset:{off}")
    I("s_waitcnt lgkmcnt(0)")
    I(f"v_readfirstlane_b32 s{sval}, v{vdst}")
    I(f"s_add_u32 s{scnt}, s{scnt}, 1")
    I(f"s_cmp_ge_u32 s{sval}, {need}")
    I(f"s_cbranch_scc1 L_sp{tag}_ok")
    if sleep: I(f"s_sleep {sleep}")
    I(f"s_cmp_lt_u32 s{scnt}, {bound}")
    I(f"s_cbranch_scc1 L_sp{tag}")
    e.label(f"L_sp{tag}_ok")

def tag_bad(e, dst, r, tmp, odd):
    I = e.I
    I(f"v_xor_b32 v{tmp}, s87, v{r}")
    I(f"v_xor_b32 v{dst}, s86, v{r+1}")
    I(f"v_lshrrev_b32 v{tmp}, 24, v{tmp}")
    I(f"v_or_b32 v{dst}, v{dst}, v{tmp}")
    I(f"v_xor_b32 v{tmp}, s3, v{r+3}")
    I(f"v_lshrrev_b32 v{tmp}, 12, v{tmp}")
    I(f"v_cndmask_b32 v{dst}, v{dst}, v{tmp}, {odd}")

def gen_main(e, c):
    L = Lay()
    CAP = c.cap
    NWG = c.nwg
    BOFF = CAP + 64
    HIST, HIST2, CUR2, CNT = 0, 256, 512, 768
    NEXT, DONE, GDONE, BSYNC, BREADY, TOTB = CNT, CNT + 16, CNT + 64, CNT + 96, CNT + 100, CNT + 104
    HISTB, HIST2B, CUR2B, INFO, NONCE = 1024, 1280, 1536, 1792, 2048
    RAW = 2176
    T = (RAW + 2 * BOFF * 16 + 255) // 256 * 256
    WRAD = T + NODES * 1024
    SCR = WRAD + 16384
    H1 = WRAD
    TI = SCR
    CEB = RAW + BOFF * 16
    SSTR, PL1, OSC = 2368, 1056, 2080
    lds = max(SCR + 12 * SSTR, T + 64 * 1024)
    assert lds <= 163840 and 2 * BOFF >= 3200 + 64, lds
    c.lds = lds
    kernel_header(e, KNAME)
    I = e.I
    wsbytes = (32 << 20) if c.stamps else WSBYTES
    sf, rf, lf = c.st_flags, c.rec_flags, c.ld_flags
    ODD = "s[26:27]"
    I(f"s_cmp_ge_u32 s2, {NWG}")
    I("s_cbranch_scc1 L_end")
    if c.stamps:
        I(f"v_mov_b32 v{STV}, 0")
        I(f"v_mov_b32 v{TIDV}, v0")
    stamp(e, c, 0)
    stamp(e, c, 26, "s_memtime")
    I("s_load_dwordx8 s[32:39], s[0:1], 0")
    I("s_load_dwordx8 s[40:47], s[0:1], 32")
    if NWG > NCH:
        I(f"s_cmp_lt_u32 s2, {NCH}")
        I("s_cselect_b32 s51, 800, 0")
    else:
        I("s_movk_i32 s51, 800")
    if c.coal:
        I("s_mul_i32 s48, s2, 1600")
        I("v_add_u32 v3, s48, v0")
        I("v_cmp_gt_u32 vcc, s51, v0")
        I("v_lshlrev_b32 v28, 3, v3")
        I("v_lshlrev_b32 v30, 4, v3")
        I("v_mul_u32_u24 v3, 12, v3")
        I("v_add_u32 v29, 6400, v28")
        I("s_and_saveexec_b64 s[26:27], vcc")
        I("s_cbranch_execz L1_noload")
        I("s_waitcnt lgkmcnt(0)")
        I(f"global_load_dwordx2 v[4:5], v28, s[40:41] {lf}")
        I(f"global_load_dwordx2 v[6:7], v29, s[40:41] {lf}")
        I("v_add_u32 v31, 12800, v30")
        I("v_add_u32 v27, 9600, v3")
        I(f"global_load_dwordx2 v[8:9], v28, s[38:39] {lf}")
        I(f"global_load_dwordx2 v[10:11], v29, s[38:39] {lf}")
        I(f"global_load_dwordx4 v[12:15], v30, s[36:37] {lf}")
        I(f"global_load_dwordx4 v[16:19], v31, s[36:37] {lf}")
        I(f"global_load_dwordx3 v[20:22], v3, s[34:35] {lf}")
        I(f"global_load_dwordx3 v[24:26], v27, s[34:35] {lf}")
    else:
        I("s_mul_i32 s48, s2, 800")
        I("v_add_u32 v3, s48, v0")
        I("v_cmp_gt_u32 vcc, s51, v0")
        I("v_lshlrev_b32 v26, 4, v3")
        I("v_lshlrev_b32 v27, 5, v3")
        I("v_mul_u32_u24 v3, 24, v3")
        I("s_and_saveexec_b64 s[26:27], vcc")
        I("s_cbranch_execz L1_noload")
        I("s_waitcnt lgkmcnt(0)")
        l2 = lf if c.ld2_flags is None else c.ld2_flags
        I(f"global_load_dwordx4 v[4:7], v26, s[40:41] {l2}")
        I(f"global_load_dwordx4 v[8:11], v26, s[38:39] {l2}")
        I(f"global_load_dwordx4 v[12:15], v27, s[36:37] {lf}")
        I(f"global_load_dwordx4 v[16:19], v27, s[36:37] offset:16 {lf}")
        I(f"global_load_dwordx4 v[20:23], v3, s[34:35] {lf}")
        I(f"global_load_dwordx2 v[24:25], v3, s[34:35] offset:16 {lf}")
    e.label("L1_noload")
    I("s_mov_b64 exec, -1")
    if c.codepf and c.codeearly:
        I("s_getpc_b64 s[52:53]")
        I(f"s_mov_b32 s54, {c.codepf*1024}")
        I("s_mov_b32 s55, 0x20000")
        I("v_subrev_u32 v72, 768, v0")
        I("v_lshlrev_b32 v72, 7, v72")
        I("s_cmp_lg_u64 vcc, -1")
        I("s_cbranch_scc0 L1_nocpf")
        I("buffer_load_dword v73, v72, s[52:55], 0 offen")
        e.label("L1_nocpf")
    I("s_load_dwordx4 s[80:83], s[0:1], 72")
    I("s_load_dwordx2 s[84:85], s[0:1], 88")
    I("v_lshlrev_b32 v1, 4, v0")
    I("v_lshlrev_b32 v2, 5, v0")
    I("v_readfirstlane_b32 s21, v0")
    I("s_lshr_b32 s21, s21, 6")
    I("s_waitcnt lgkmcnt(0)")
    if c.addtid:
        srd(e, 4, 32, N * 512, w1=f"{16 << 16}", w3=c.tidw3)
    else:
        srd(e, 4, 32, N * 512)
    srd(e, 8, 84, wsbytes)
    srd(e, 12, 80, N * 512)
    srd(e, 16, 42, 2560)
    srd(e, 68, 44, 16384)
    srd(e, 72, 46, 24576)
    srd(e, 76, 82, 256)
    I("s_and_b32 s20, s2, 7")
    I("s_lshr_b32 s31, s2, 3")
    if NWG == 250:
        I("s_min_u32 s22, s20, 2")
        I("s_mul_i32 s20, s20, 31")
        I("s_add_u32 s20, s20, s22")
    else:
        I("s_lshl_b32 s20, s20, 5")
    I("s_add_u32 s20, s20, s31")
    I("s_mov_b32 s22, 0")
    I(f"s_movk_i32 s23, {NCH}")
    I("s_mov_b32 s24, 1")
    I("s_mov_b32 s26, 0xaaaaaaaa")
    I("s_mov_b32 s27, 0xaaaaaaaa")
    I("s_mov_b32 s28, 0x05040100")
    I("s_mov_b32 s29, 0x07060302")
    I("s_mov_b32 s30, 0xffff0000")
    I(f"s_mul_i32 s51, s2, {CSTRIDE}")
    I("s_cmp_ge_u32 s21, 13")
    I("s_cbranch_scc1 L1_aux")
    I(f"s_mov_b32 s46, {H1}")
    I("v_lshl_add_u32 v40, v0, 2, s46")
    I("v_mov_b32 v41, 0")
    I("v_mov_b32 v42, 1")
    I(f"s_movk_i32 s49, {RAW+PAYOFF}")
    I("s_mov_b32 s50, 0x05040302")
    I(f"s_mov_b32 s45, {(TI + 8 - 8*H1) & 0xffffffff}")
    if NWG == 250:
        I("s_mov_b32 s48, -25")
        I("s_movk_i32 s47, 249")
    else:
        I("s_movk_i32 s47, 6249")
        I("s_movk_i32 s48, -6250")
        I("s_mov_b32 s44, 1600210")
        I("v_mov_b32 v43, 65532")
    I("s_cmp_ge_u32 s21, 8")
    I("s_cbranch_scc1 L1_nz")
    I("ds_write_b32 v40, v41")
    I("s_waitcnt lgkmcnt(0)")
    e.label("L1_nz")
    I("s_barrier")
    I("s_and_b64 exec, exec, vcc")
    I(f"s_waitcnt vmcnt({6 if c.coal else 5})")
    stamp(e, c, 1)
    R4 = range(4)
    if NWG == 250:
        for i in R4: I(f"v_mul_u32_u24 v{44+i}, 0x147b, v{4+i}")
        for i in R4: I(f"v_lshrrev_b32 v{44+i}, 17, v{44+i}")
        for i in R4: I(f"v_cmp_lt_u32 s[{32+2*i}:{33+2*i}], s47, v{44+i}")
        for i in R4: I(f"v_cndmask_b32 v{36+i}, 0, 1, s[{32+2*i}:{33+2*i}]")
        for i in R4:
            I(f"v_sub_u32 v{48+i}, v{44+i}, v{36+i}")
            I(f"v_mad_u32_u24 v{44+i}, v{36+i}, 6, v{44+i}")
        for i in R4:
            I(f"v_mad_i32_i24 v{4+i}, v{48+i}, s48, v{4+i}")
            I(f"v_lshl_add_u32 v{44+i}, v{44+i}, 2, s46")
    else:
        for i in R4: I(f"v_cmp_lt_u32 s[{32+2*i}:{33+2*i}], s47, v{4+i}")
        for i in R4: I(f"v_cndmask_b32 v{36+i}, 0, 1, s[{32+2*i}:{33+2*i}]")
        for i in R4: I(f"v_mad_i32_i24 v{4+i}, v{36+i}, s48, v{4+i}")
        for i in R4: I(f"v_mul_u32_u24 v{44+i}, 0xa7c, v{4+i}")
        for i in R4: I(f"v_lshrrev_b32 v{44+i}, 16, v{44+i}")
        for i in R4: I(f"v_mad_u32_u24 v{48+i}, v{44+i}, s44, v43")
        for i in R4:
            I(f"v_lshrrev_b32 v{48+i}, 16, v{48+i}")
            I(f"v_mad_u32_u24 v{4+i}, v{36+i}, 25, v{4+i}")
        for i in R4:
            I(f"v_sub_u32 v{4+i}, v{4+i}, v{48+i}")
            I(f"v_lshl_add_u32 v{44+i}, v{36+i}, 8, v{44+i}")
        for i in R4: I(f"v_lshl_add_u32 v{44+i}, v{44+i}, 2, s46")
    for i in R4: I(f"ds_add_rtn_u32 v{36+i}, v{44+i}, v42")
    for i in R4: I(f"v_lshl_add_u32 v{48+i}, v{44+i}, 3, s45")
    for i in R4: I(f"v_lshlrev_b32 v{4+i}, 2, v{4+i}")
    I("s_waitcnt lgkmcnt(0)")
    I("s_barrier")
    for i in R4: I(f"v_min_u32 v{28+i}, {KIN}, v{36+i}")
    for i in R4: I(f"v_add_u32 v{48+i}, v{48+i}, v{28+i}")
    I("s_cmp_eq_u32 s21, 0")
    I("s_cbranch_scc1 L1_scan")
    for i in R4: I(f"ds_write_b8 v{48+i}, v{4+i}")
    I("s_branch L1_noscan")
    e.label("L1_scan")
    I("v_add_u32 v60, s46, v2")
    I("ds_read_b128 v[52:55], v60")
    I("ds_read_b128 v[56:59], v60 offset:16")
    I("s_waitcnt lgkmcnt(0)")
    I("v_mov_b32 v64, 0")
    I("v_mov_b32 v65, v52")
    for k in range(2, 8):
        I(f"v_add_u32 v{64+k}, v{63+k}, v{51+k}")
    I("v_add_u32 v61, v71, v59")
    I("v_max3_u32 v63, v52, v53, v54")
    I("v_max3_u32 v63, v63, v55, v56")
    I("v_max3_u32 v63, v63, v57, v58")
    I("v_max_u32 v63, v63, v59")
    I(f"v_cmp_lt_u32 s[42:43], {KIN}, v63")
    I("v_mov_b32 v62, v61")
    scan64(e, 62)
    I("v_sub_u32 v62, v62, v61")
    for k in range(8):
        I(f"v_add_u32 v{64+k}, v{64+k}, v62")
    I("ds_write_b128 v60, v[64:67] offset:2048")
    I("ds_write_b128 v60, v[68:71] offset:2064")
    I("s_cmp_lg_u64 s[42:43], 0")
    I("s_cselect_b32 s42, 1, 0")
    I("v_mov_b32 v63, s42")
    I(f"ds_write_b32 v41, v63 offset:{NONCE+8}")
    for i in R4: I(f"ds_write_b8 v{48+i}, v{4+i}")
    I("s_waitcnt lgkmcnt(4)")
    e.label("L1_noscan")
    I("s_barrier")
    for i in R4: I(f"ds_read_b32 v{44+i}, v{44+i} offset:2048")
    I(f"ds_read_b32 v28, v41 offset:{NONCE+8}")
    I("s_waitcnt lgkmcnt(0)")
    I("v_readfirstlane_b32 s42, v28")
    for i in R4:
        I(f"v_add_u32 v{36+i}, v{36+i}, v{44+i}")
        I(f"v_lshl_add_u32 v{44+i}, v{36+i}, 4, s49")
    I("s_cmp_eq_u32 s42, 0")
    I("s_cbranch_scc1 L1_nokeys")
    for i in R4:
        I(f"ds_write_b8 v{36+i}, v{4+i} offset:{RAW+KEYOFF}")
    e.label("L1_nokeys")
    I("s_waitcnt vmcnt(2)")
    for i in R4:
        I(f"ds_write_b64 v{44+i}, v[{12+2*i}:{13+2*i}]")
    I("s_waitcnt vmcnt(1)")
    I("v_mov_b32 v28, v20")
    I("v_perm_b32 v29, v8, v21, s28")
    I("ds_write_b64 v44, v[28:29] offset:8")
    I("v_alignbit_b32 v30, v22, v21, 16")
    I("v_perm_b32 v31, v9, v22, s50")
    I("ds_write_b64 v45, v[30:31] offset:8")
    I("s_waitcnt vmcnt(0)")
    stamp(e, c, 2)
    r3 = 24 if c.coal else 23
    I(f"v_mov_b32 v32, v{r3}")
    I(f"v_perm_b32 v33, v10, v{r3+1}, s28")
    I("ds_write_b64 v46, v[32:33] offset:8")
    I(f"v_alignbit_b32 v34, v{r3+2}, v{r3+1}, 16")
    I(f"v_perm_b32 v35, v11, v{r3+2}, s50")
    I("ds_write_b64 v47, v[34:35] offset:8")
    I("s_mov_b64 exec, -1")
    I("s_waitcnt lgkmcnt(0)")
    I("s_branch L1_copy")
    e.label("L1_aux")
    I("v_subrev_u32 v64, 832, v0")
    I("v_lshlrev_b32 v65, 4, v64")
    if c.tlbpf:
        I("v_and_b32 v74, 63, v0")
        I(f"s_mov_b32 s42, {WSBYTES // 64 // 128 * 128}")
        I("v_mul_u32_u24 v75, s42, v74")
        I(f"s_mov_b32 s42, {N * 512 // 64 // 128 * 128}")
        I("v_mul_u32_u24 v74, s42, v74")
        I("s_cmp_lg_u32 s21, 14")
        I("s_cbranch_scc1 L1_notlb")
        if c.tlbpf & 1: I("buffer_load_dword v76, v75, s[8:11], 0 offen")
        if c.tlbpf & 2: I("buffer_load_dword v77, v74, s[4:7], 0 offen")
        if c.tlbpf & 4: I("buffer_load_dword v78, v74, s[12:15], 0 offen")
        e.label("L1_notlb")
    if c.codepf and not c.codeearly:
        I("s_getpc_b64 s[40:41]")
        e.label("L_cpf")
        I("s_mov_b32 s42, L_codeend-L_cpf")
        I("s_mov_b32 s43, 0x20000")
        I("v_lshlrev_b32 v72, 7, v64")
        I("buffer_load_dword v73, v72, s[40:43], 0 offen")
    I("s_cmp_lg_u32 s21, 15")
    I("s_cbranch_scc1 L1_notag")
    I("s_cmp_lg_u32 s2, 0")
    I("s_cbranch_scc1 L1_notag")
    I("s_memrealtime s[44:45]")
    I("s_waitcnt lgkmcnt(0)")
    I("s_and_b32 s45, s45, 0x7f")
    I("s_or_b32 s45, s45, 0x80")
    I("s_lshl_b32 s45, s45, 24")
    I("v_mov_b32 v68, s44")
    I("v_mov_b32 v69, s45")
    I("s_mov_b64 exec, 1")
    I("buffer_store_dwordx2 v[68:69], off, s[76:79], 0 sc1")
    I("s_mov_b64 exec, -1")
    e.label("L1_notag")
    I("s_cmp_lg_u32 s21, 13")
    I("s_cbranch_scc1 L1_nozero")
    for k in range(4): I(f"v_mov_b32 v{4+k}, 0")
    I("ds_write_b128 v65, v[4:7]")
    I("ds_write_b128 v65, v[4:7] offset:1024")
    e.label("L1_nozero")
    I("s_barrier"); I("s_barrier"); I("s_barrier")
    I("s_cmp_lg_u32 s21, 15")
    I("s_cbranch_scc1 L1_notag2")
    I("s_mov_b32 s44, 0")
    e.label("L1_tagpoll")
    I("buffer_load_dwordx2 v[68:69], off, s[76:79], 0 sc1")
    I("s_add_u32 s44, s44, 1")
    I("s_waitcnt vmcnt(0)")
    I("v_readfirstlane_b32 s45, v69")
    e.nop(1)
    I("s_cmp_lg_u32 s45, 0")
    I("s_cbranch_scc1 L1_tagok")
    I("s_cmp_lt_u32 s44, 0x100000")
    I("s_cbranch_scc1 L1_tagpoll")
    e.label("L1_tagok")
    I("v_mov_b32 v70, 0")
    I("s_mov_b64 exec, 1")
    I(f"ds_write_b64 v70, v[68:69] offset:{NONCE}")
    I("s_mov_b64 exec, -1")
    e.label("L1_notag2")
    for k in range(8):
        I(f"s_movk_i32 s46, {k*3072}")
        I(f"buffer_load_dwordx4 v[{28+4*k}:{31+4*k}], v65, s[72:75], s46 offen")
    for k in range(6):
        I(f"s_movk_i32 s46, {k*3072}")
        I(f"buffer_load_dwordx4 v[{72+4*k}:{75+4*k}], v65, s[68:71], s46 offen")
    prefetch_x(e, c.pfx_lines, 60, 64, 192, 31, 0, 4)
    I("s_waitcnt lgkmcnt(0)")
    e.flush()
    e.label("L1_copy")
    I("s_barrier")
    stamp(e, c, 3)
    I(f"ds_read_b128 v[8:11], v1 offset:{RAW}")
    I(f"ds_read_b128 v[12:15], v1 offset:{RAW+16384}")
    I(f"v_add_u32 v25, {TI}, v1")
    I(f"ds_read_b128 v[16:19], v1 offset:{RAW+32768}")
    I(f"ds_read_b128 v[20:23], v1 offset:{RAW+49152}")
    I("ds_read_b128 v[100:103], v25")
    I("v_lshrrev_b32 v25, 1, v0")
    I("v_lshlrev_b32 v25, 2, v25")
    I(f"v_add_u32 v25, {H1}, v25")
    I("ds_read2st64_b32 v[104:105], v25 offset0:0 offset1:8")
    I("ds_read_b32 v106, v25 offset:1024")
    I(f"v_mov_b32 v25, {H1+2048+1024}")
    I("ds_read_b32 v98, v25")
    I("v_mov_b32 v25, 0")
    I(f"ds_read_b64 v[96:97], v25 offset:{NONCE}")
    I("v_add_u32 v2, 16384, v1")
    I("v_add_u32 v3, 32768, v1")
    I("v_add_u32 v24, 49152, v1")
    I("s_movk_i32 s48, 328")
    I("v_cmp_gt_u32 s[92:93], s48, v0")
    I("s_waitcnt lgkmcnt(8)")
    I(f"buffer_store_dwordx4 v[8:11], v1, s[8:11], s51 offen {sf}")
    I("s_waitcnt lgkmcnt(7)")
    I(f"buffer_store_dwordx4 v[12:15], v2, s[8:11], s51 offen {sf}")
    I("s_waitcnt lgkmcnt(0)")
    I("v_readfirstlane_b32 s86, v96")
    I("v_readfirstlane_b32 s87, v97")
    I("v_readfirstlane_b32 s88, v98")
    I("v_lshl_or_b32 v104, v104, 12, v105")
    I("v_or_b32 v97, v97, v104")
    I(f"v_cndmask_b32 v100, v97, v100, {ODD}")
    I(f"v_cndmask_b32 v101, v96, v101, {ODD}")
    I("v_lshl_or_b32 v106, v96, 12, v106")
    I(f"v_cndmask_b32 v103, v103, v106, {ODD}")
    I("s_lshl_b32 s3, s86, 12")
    I(f"s_add_u32 s49, s51, {TABOFF}")
    I(f"s_cmp_gt_u32 s88, {(32768-PAYOFF)//16}")
    I("s_cselect_b32 s25, 0, 8")
    stamp(e, c, 4)
    def handoff(tag, mid):
        I("s_waitcnt vmcnt(0)")
        stamp(e, c, 6)
        I("s_barrier")
        I("s_cmp_ge_u32 s21, s25")
        I(f"s_cbranch_scc1 L_noearly{tag}")
        I(f"buffer_store_dwordx4 v[100:103], v1, s[8:11], s49 offen {sf}")
        e.label(f"L_noearly{tag}")
        I(f"buffer_store_dwordx4 v[16:19], v3, s[8:11], s51 offen {sf}")
        I("s_mov_b64 exec, s[92:93]")
        I(f"s_cbranch_execz L_stskip{tag}")
        I(f"buffer_store_dwordx4 v[20:23], v24, s[8:11], s51 offen {sf}")
        e.label(f"L_stskip{tag}")
        I("s_mov_b64 exec, -1")
        mid()
        I("s_waitcnt vmcnt(0) lgkmcnt(0)")
        stamp(e, c, 5)
        I("s_barrier")
        I("s_cmp_lt_u32 s21, s25")
        I(f"s_cbranch_scc1 L_nolate{tag}")
        I(f"buffer_store_dwordx4 v[100:103], v1, s[8:11], s49 offen {sf}")
        e.label(f"L_nolate{tag}")
    I("s_cmp_lt_u32 s21, 4")
    e.branch("s_cbranch_scc1 L2_gemm")

    VLANE, VINFO, VNEXT = 108, 109, 110
    VLOFF, VMASK, VOW, VOR, VSCRW, VTRA, VWR, VL16 = 111, 112, 113, 114, 115, 116, 117, 118
    VT0, VT1, VONE, VSEL = 119, 120, 121, 122
    VJ, VCH, VSEG = 123, 124, 125
    I(f"v_and_b32 v{VLANE}, 63, v0")
    I(f"v_mov_b32 v{VONE}, 1")
    I(f"v_mov_b32 v{VMASK}, s30")
    I(f"v_lshrrev_b32 v{VT1}, 4, v{VLANE}")
    I(f"v_lshlrev_b32 v{VL16}, 4, v{VLANE}")
    if c.addtid:
        I(f"v_and_b32 v{VT0}, 3, v{VLANE}")
        I(f"v_lshlrev_b32 v{VLOFF}, 4, v{VT0}")
    else:
        I(f"v_and_b32 v{VT0}, 15, v{VLANE}")
        I(f"v_lshlrev_b32 v{VLOFF}, 4, v{VT0}")
    I("s_sub_u32 s43, s21, 4")
    I(f"s_mul_i32 s43, s43, {SSTR}")
    I(f"s_add_u32 s43, s43, {SCR}")
    I(f"v_add_u32 v{VSCRW}, s43, v{VL16}")
    I(f"v_lshlrev_b32 v{VOR}, 5, v{VT1}")
    I(f"v_add_u32 v{VOR}, s43, v{VOR}")
    I(f"v_lshlrev_b32 v{VTRA}, 4, v{VT1}")
    I(f"v_bfe_u32 v{VT1}, v{VLANE}, 2, 2")
    I(f"v_lshl_add_u32 v{VTRA}, v{VT1}, 6, v{VTRA}")
    I(f"v_and_b32 v{VT1}, 1, v{VLANE}")
    I(f"v_lshl_add_u32 v{VTRA}, v{VT1}, 3, v{VTRA}")
    I(f"v_bfe_u32 v{VT1}, v{VLANE}, 1, 1")
    I(f"v_mul_u32_u24 v{VT1}, {PL1}, v{VT1}")
    I(f"v_add3_u32 v{VTRA}, v{VTRA}, v{VT1}, s43")
    I(f"v_and_b32 v{VOW}, 32, v{VLANE}")
    I(f"v_and_b32 v{VT1}, 3, v{VLANE}")
    I(f"v_lshl_add_u32 v{VOW}, v{VT1}, 3, v{VOW}")
    I(f"v_bfe_u32 v{VT1}, v{VLANE}, 2, 3")
    I(f"v_add_u32 v{VOW}, v{VOW}, v{VT1}")
    I(f"v_lshlrev_b32 v{VOW}, 2, v{VOW}")
    I(f"v_add_u32 v{VOW}, s43, v{VOW}")
    I(f"v_add_u32 v{VWR}, {WRAD}, v{VL16}")
    I("s_sub_u32 s42, s21, 4")
    I("s_mul_i32 s83, s42, 24")
    I(f"v_and_b32 v{VJ}, 7, v{VLANE}")
    I(f"v_lshrrev_b32 v{VSEG}, 3, v{VLANE}")
    I(f"s_mov_b32 s42, {CSTRIDE}")
    I(f"v_mul_u32_u24 v{VCH}, s42, v{VSEG}")
    I(f"v_lshlrev_b32 v{VSEG}, 5, v{VSEG}")
    I(f"v_add_u32 v{VSEG}, s43, v{VSEG}")
    I(f"v_or_b32 v{VSEL}, 0x0c0c0c00, v{VJ}")
    NP, NW = 3, 3
    I(f"s_mul_i32 s79, s83, {CSTRIDE}")
    for p in range(NP):
        I(f"s_add_u32 s{74+p}, s79, {8*p*CSTRIDE+PAYOFF}")
        I(f"s_add_u32 s{80+p}, s79, {8*p*CSTRIDE+KEYOFF}")
    I("s_mov_b32 s88, s20")
    I("s_mov_b32 s89, 0")
    I(f"s_movk_i32 s48, {HN}")
    def w_stage():
        I("s_cmp_lt_u32 s21, 13")
        I("s_cbranch_scc1 L2_noW")
        I(f"v_add_u32 v65, {T}, v65")
        for k in range(8):
            I(f"ds_write_b128 v65, v[{28+4*k}:{31+4*k}] offset:{16384 + k*3072}")
        for k in range(5):
            I(f"ds_write_b128 v65, v[{72+4*k}:{75+4*k}] offset:{k*3072}")
        I("s_cmp_lg_u32 s21, 13")
        I("s_cbranch_scc1 L2_noW")
        I(f"ds_write_b128 v65, v[92:95] offset:{5*3072}")
        e.label("L2_noW")
    handoff("g", w_stage)
    PAY, KEY, RNK, CNTR, KAD, PAD, X, EN = 0, 36, 45, 54, 57, 60, 64, 72
    MSK = 50
    e.label("L2_g_round")
    I(f"v_lshrrev_b32 v{X}, 1, v{VLANE}")
    I(f"s_sub_u32 s42, {NCH}, s83")
    I("s_min_i32 s42, s42, 24")
    I(f"v_cmp_gt_i32 s[46:47], s42, v{X}")
    I(f"s_mov_b32 s42, {CSTRIDE}")
    I(f"v_mul_u32_u24 v{X+1}, s42, v{X}")
    I(f"v_and_b32 v{X+2}, 16, v{VL16}")
    I(f"v_add_u32 v{X+1}, v{X+1}, v{X+2}")
    I(f"v_cndmask_b32 v{X+1}, 2.0, v{X+1}, s[46:47]")
    I("s_lshl_b32 s43, s88, 5")
    I(f"s_add_u32 s43, s43, {TABOFF}")
    I("s_add_u32 s43, s43, s79")
    I("s_mov_b32 s44, 0")
    I(f"v_lshl_add_u32 v{VT1}, v{VJ}, 4, v{VCH}")
    e.label("L2_poll")
    I(f"buffer_load_dwordx4 v[{EN}:{EN+3}], v{X+1}, s[8:11], s43 offen sc1")
    I("s_add_u32 s44, s44, 1")
    I("s_waitcnt vmcnt(0)")
    tag_bad(e, X+2, EN, X+3, ODD)
    I(f"v_cmp_ne_u32 vcc, 0, v{X+2}")
    e.nop(2)
    I("s_and_b64 vcc, vcc, s[46:47]")
    I("s_cbranch_scc0 L2_poll_ok")
    I(f"s_sleep {c.psleep}")
    I("s_cmp_lt_u32 s44, 0x100000")
    I("s_cbranch_scc1 L2_poll")
    e.label("L2_poll_ok")
    I("s_cmp_lg_u32 s23, 1")
    I("s_cbranch_scc1 L2_nofilter")
    I("s_sub_u32 s42, s22, s83")
    I(f"v_cmp_eq_u32 vcc, s42, v{X}")
    I(f"v_cndmask_b32 v{EN}, 0, v{EN}, vcc")
    e.label("L2_nofilter")
    I(f"ds_write_b128 v{VSCRW}, v[{EN}:{EN+3}]")
    I(f"v_add_u32 v{X+1}, 8, v{VJ}")
    stamp(e, c, 7)
    def msk(p, w): return f"s[{MSK+4*p+2*w}:{MSK+4*p+2*w+1}]" if w < 2 else f"s[{MSK+12+2*p}:{MSK+13+2*p}]"
    def pay(p, w): return f"v[{PAY+12*p+4*w}:{PAY+12*p+4*w+3}]"
    for p in range(NP):
        I(f"ds_read_b128 v[{EN+8*p}:{EN+8*p+3}], v{VSEG} offset:{256*p}")
        I(f"ds_read_b128 v[{EN+8*p+4}:{EN+8*p+7}], v{VSEG} offset:{256*p+16}")
    for p in range(NP):
        en, cnt = EN + 8*p, CNTR + p
        if p == 0: I("s_waitcnt lgkmcnt(0)")
        I(f"v_bfe_u32 v{cnt}, v{en}, 12, 12")
        I(f"v_and_b32 v{PAD+p}, 0xfff, v{en}")
        I(f"v_cmp_lt_u32 {msk(p,0)}, v{VJ}, v{cnt}")
        I(f"v_cmp_lt_u32 {msk(p,1)}, v{X+1}, v{cnt}")
        I(f"v_perm_b32 v{KEY+3*p}, v{en+3}, v{en+2}, v{VSEL}")
        I(f"v_perm_b32 v{KEY+3*p+1}, v{en+5}, v{en+4}, v{VSEL}")
        I(f"v_lshl_add_u32 v{PAD+p}, v{PAD+p}, 4, v{VT1}")
        for w in range(2):
            I(f"s_mov_b64 exec, {msk(p,w)}")
            I(f"s_cbranch_execz L2_nop{p}")
            I(f"ds_add_rtn_u32 v{RNK+3*p+w}, v{KEY+3*p+w}, v{VONE} offset:{HIST}")
            I(f"buffer_load_dwordx4 {pay(p,w)}, v{PAD+p}, s[8:11], s{74+p} offen offset:{128*w} {rf}")
        e.label(f"L2_nop{p}")
        I("s_mov_b64 exec, -1")
    I(f"v_max3_u32 v{VT0}, v{CNTR}, v{CNTR+1}, v{CNTR+2}")
    I(f"v_cmp_lt_u32 vcc, 16, v{VT0}")
    I("s_mov_b32 s25, 0")
    e.nop(1)
    I("s_cmp_eq_u64 vcc, 0")
    I("s_cbranch_scc1 L2_noextraA")
    I("s_mov_b32 s25, 1")
    I(f"v_add_u32 v{X+2}, 16, v{VJ}")
    for p in range(NP):
        en = EN + 8*p
        I(f"v_min_u32 v{X+3}, {KIN}, v{CNTR+p}")
        I(f"v_cmp_lt_u32 {msk(p,2)}, v{X+2}, v{X+3}")
        I(f"v_perm_b32 v{KEY+3*p+2}, v{en+6}, v{en+6}, v{VSEL}")
        I(f"v_sub_u32 v{KAD+p}, v{PAD+p}, v{VCH}")
        I(f"v_lshrrev_b32 v{KAD+p}, 4, v{KAD+p}")
        I(f"v_add_u32 v{KAD+p}, v{KAD+p}, v{VCH}")
        e.flush()
        I(f"s_mov_b64 exec, {msk(p,2)}")
        I(f"ds_add_rtn_u32 v{RNK+3*p+2}, v{KEY+3*p+2}, v{VONE} offset:{HIST}")
        I(f"buffer_load_dwordx4 {pay(p,2)}, v{PAD+p}, s[8:11], s{74+p} offen offset:256 {rf}")
        I("s_mov_b64 exec, -1")

    def extra_count(tag, first, vj, vkad, vcnt, skey, vone, hist, y):
        I(f"v_add_u32 v{y}, {first}, v{vj}")
        I(f"v_add_u32 v{y+1}, {first}, v{vkad}")
        e.label(f"L_xa{tag}")
        I(f"v_cmp_lt_u32 vcc, v{y}, v{vcnt}")
        I("s_and_saveexec_b64 s[44:45], vcc")
        e.branch(f"s_cbranch_execz L_xa{tag}_done")
        I(f"buffer_load_ubyte v{y+2}, v{y+1}, s[8:11], s{skey} offen {rf}")
        I("s_waitcnt vmcnt(0)")
        I(f"ds_add_u32 v{y+2}, v{vone} offset:{hist}")
        I("s_mov_b64 exec, -1")
        I(f"v_add_u32 v{y}, 8, v{y}")
        I(f"v_add_u32 v{y+1}, 8, v{y+1}")
        e.branch(f"s_branch L_xa{tag}")
        e.label(f"L_xa{tag}_done")
        I("s_mov_b64 exec, -1")
    def extra_move(tag, first, vj, vkad, vpad, vcnt, skey, spay, vone, cur, vbase, y, d):
        I(f"v_add_u32 v{y}, {first}, v{vj}")
        I(f"v_add_u32 v{y+1}, {first}, v{vkad}")
        I(f"v_add_u32 v{vpad}, {16*first}, v{vpad}")
        e.label(f"L_xb{tag}")
        I(f"v_cmp_lt_u32 vcc, v{y}, v{vcnt}")
        I("s_and_saveexec_b64 s[44:45], vcc")
        e.branch(f"s_cbranch_execz L_xb{tag}_done")
        I(f"buffer_load_ubyte v{y+2}, v{y+1}, s[8:11], s{skey} offen {rf}")
        I(f"buffer_load_dwordx4 v[{d}:{d+3}], v{vpad}, s[8:11], s{spay} offen {rf}")
        I("s_waitcnt vmcnt(0)")
        I(f"ds_add_rtn_u32 v{y+3}, v{y+2}, v{vone} offset:{cur}")
        I("s_mov_b64 exec, -1")
        I(f"ds_bpermute_b32 v{y+2}, v{y+2}, v{vbase}")
        I("s_waitcnt lgkmcnt(0)")
        I(f"v_add_lshl_u32 v{y+2}, v{y+2}, v{y+3}, 4")
        I("s_mov_b64 exec, vcc")
        I(f"ds_write_b128 v{y+2}, v[{d}:{d+3}] offset:{RAW}")
        I("s_mov_b64 exec, -1")
        I(f"v_add_u32 v{y}, 8, v{y}")
        I(f"v_add_u32 v{y+1}, 8, v{y+1}")
        I(f"v_add_u32 v{vpad}, 128, v{vpad}")
        e.branch(f"s_branch L_xb{tag}")
        e.label(f"L_xb{tag}_done")
        I("s_mov_b64 exec, -1")
    for p in range(NP):
        extra_count(f"a{p}", KIN, VJ, KAD+p, CNTR+p, 80+p, VONE, HIST2, X)
    e.label("L2_noextraA")
    I("s_waitcnt lgkmcnt(0)")
    stamp(e, c, 14)
    I("s_barrier")
    stamp(e, c, 15)
    C1, CT, BS = X + 4, X + 5, X + 6
    I(f"v_lshlrev_b32 v{VT0}, 2, v{VLANE}")
    I(f"ds_read_b32 v{C1}, v{VT0} offset:{HIST}")
    I(f"ds_read_b32 v{CT}, v{VT0} offset:{HIST2}")
    I("s_waitcnt lgkmcnt(0)")
    I(f"v_add_u32 v{CT}, v{C1}, v{CT}")
    I(f"v_mov_b32 v{BS}, v{CT}")
    scan64(e, BS)
    I(f"v_readlane_b32 s46, v{BS}, 63")
    I(f"v_sub_u32 v{BS}, v{BS}, v{CT}")
    I(f"s_cmp_eq_u32 s23, 1")
    I(f"s_cselect_b32 s42, -1, {CAP}")
    for p in range(NP):
        for w in range(2):
            I(f"ds_bpermute_b32 v{KEY+3*p+w}, v{KEY+3*p+w}, v{BS}")
    I(f"v_lshl_or_b32 v{VINFO}, v{CT}, 16, v{BS}")
    I(f"s_cmp_gt_u32 s46, s42")
    I("s_cbranch_scc1 L2_g_overflow")
    I("s_cmp_lg_u32 s21, 5")
    I("s_cbranch_scc1 L2_noinfo")
    I(f"s_mov_b64 exec, {(1 << HN) - 1}")
    I(f"ds_write_b32 v{VT0}, v{VINFO} offset:{INFO}")
    I("s_mov_b64 exec, -1")
    e.label("L2_noinfo")
    I("s_cmp_lg_u32 s21, 4")
    I("s_cbranch_scc1 L2_noguard")
    I("s_lshl_b32 s46, s46, 4")
    for k in range(4): I(f"v_mov_b32 v{EN+k}, 0")
    I(f"v_add_u32 v{VT0}, s46, v{VL16}")
    I(f"ds_write_b128 v{VT0}, v[{EN}:{EN+3}] offset:{RAW}")
    e.label("L2_noguard")
    I("s_waitcnt lgkmcnt(0)")
    for p in range(NP):
        for w in range(2):
            I(f"v_add_lshl_u32 v{KEY+3*p+w}, v{KEY+3*p+w}, v{RNK+3*p+w}, 4")
    stamp(e, c, 27)
    I("s_waitcnt vmcnt(0)")
    stamp(e, c, 9)
    for p in range(NP):
        for w in range(2):
            I(f"s_mov_b64 exec, {msk(p,w)}")
            I(f"ds_write_b128 v{KEY+3*p+w}, {pay(p,w)} offset:{RAW}")
    I("s_mov_b64 exec, -1")
    I("s_cmp_eq_u32 s25, 0")
    I("s_cbranch_scc1 L2_noextraB")
    for p in range(NP):
        I(f"ds_bpermute_b32 v{KEY+3*p+2}, v{KEY+3*p+2}, v{BS}")
    I("s_waitcnt lgkmcnt(0)")
    for p in range(NP):
        I(f"v_add_lshl_u32 v{KEY+3*p+2}, v{KEY+3*p+2}, v{RNK+3*p+2}, 4")
        I(f"s_mov_b64 exec, {msk(p,2)}")
        I(f"ds_write_b128 v{KEY+3*p+2}, {pay(p,2)} offset:{RAW}")
        I("s_mov_b64 exec, -1")
    I(f"v_add_u32 v{BS}, v{BS}, v{C1}")
    for p in range(NP):
        extra_move(f"a{p}", KIN, VJ, KAD+p, PAD+p, CNTR+p, 80+p, 74+p, VONE, CUR2, BS, X, EN)
    e.label("L2_noextraB")
    I("s_waitcnt lgkmcnt(0)")
    stamp(e, c, 28)
    I("s_barrier")
    I(f"ds_read_b32 v{VT0}, v{VL16} offset:{TOTB}")
    I("s_mov_b64 exec, 1")
    I(f"ds_add_rtn_u32 v{VNEXT}, v{VL16}, v{VONE} offset:{NEXT}")
    I("s_mov_b64 exec, -1")
    I("s_waitcnt lgkmcnt(0)")
    I(f"v_readfirstlane_b32 s42, v{VT0}")
    e.nop(1)
    I(f"s_cmp_gt_u32 s42, {CAP}")
    I("s_cbranch_scc1 L2_g_overflow")
    stamp(e, c, 10)
    stamp(e, c, 24, "s_memtime")
    if c.prio_g: I(f"s_setprio {c.prio_g}")
    gather_loop(e, c, locals())
    e.label("L2_g_done")
    stamp(e, c, 11)
    stamp(e, c, 25, "s_memtime")
    I("s_cmp_lg_u32 s24, 0")
    e.branch("s_cbranch_scc1 L2_g_exit")
    I("s_add_u32 s89, s89, 1")
    I("s_branch L2_g_slow")
    e.label("L2_g_overflow")
    I("s_mov_b32 s89, 0")
    I("s_mov_b32 s23, 1")
    I("s_movk_i32 s48, 64")
    e.label("L2_g_slow")
    I("s_waitcnt vmcnt(0) lgkmcnt(0)")
    I("s_barrier")
    I("s_lshr_b32 s22, s89, 1")
    I("s_and_b32 s88, s89, 1")
    I("s_lshl_b32 s88, s88, 8")
    I("s_add_u32 s88, s88, s20")
    I(f"s_cmp_eq_u32 s89, {2*NCH-1}")
    I("s_cselect_b32 s24, 1, 0")
    I("s_barrier")
    e.branch("s_branch L2_g_round")
    e.label("L2_g_exit")
    stamp_store(e, c, 90)
    I("s_endpgm")

    e.label("L2_gemm")
    W, G, TA, TF = 0, 40, 104, 108
    X0, X1 = 124, 125
    I("v_and_b32 v104, 63, v0")
    I("v_lshlrev_b32 v105, 4, v104")
    lut = 0
    for jp in range(4):
        for blk in range(4):
            p, i, s = path_of(jp, blk)
            lut |= (p | (8 if s < 0 else 0)) << (4 * (jp * 4 + blk))
    I(f"s_mov_b32 s44, {lut & 0xffffffff}")
    I(f"s_mov_b32 s45, {lut >> 32}")
    for h in range(2):
        I("v_lshrrev_b32 v106, 4, v104")
        I("v_bfe_u32 v107, v104, 3, 1")
        I("v_lshl_add_u32 v106, v106, 2, v107")
        I(f"v_add_lshl_u32 v106, v106, {2*h}, 2")
        I(f"v_lshrrev_b64 v[108:109], v106, s[44:45]")
        I(f"v_and_b32 v106, 7, v108")
        I(f"v_and_b32 v{110+h}, 8, v108")
        I(f"v_lshlrev_b32 v{110+h}, 28, v{110+h}")
        I("v_and_b32 v107, 7, v104")
        I("v_lshlrev_b32 v107, 3, v107")
        I("v_lshl_add_u32 v106, v106, 6, v107")
        I("v_add_u32 v106, s21, v106")
        I(f"v_lshlrev_b32 v{112+h}, 1, v106")
    I("v_mov_b32 v117, v0")
    handoff("m", lambda: None)
    if c.pfx2_pos == 0: prefetch_x(e, c.pfx2_lines, 114, 117, 256, 31, 0, 4, c.pfx_lines)
    WT = 80
    for k in range(4):
        h, qo = k >> 1, (k & 1) * 4
        for d in range(4):
            I(f"buffer_load_ushort v{WT+4*k+d}, v{112+h}, s[16:19], 0 offen offset:{d*640+qo*2}")
    I("v_lshrrev_b32 v106, 4, v104")
    I("v_lshlrev_b32 v106, 10, v106")
    I("v_bfe_u32 v107, v104, 2, 2")
    I("v_lshl_add_u32 v106, v107, 7, v106")
    I("v_and_b32 v107, 3, v104")
    I("v_lshl_add_u32 v106, v107, 3, v106")
    I("s_lshl_b32 s42, s21, 5")
    I(f"s_add_u32 s42, s42, {T}")
    I("v_add_u32 v106, s42, v106")
    for f in range(10):
        I(f"ds_read_b64_tr_b16 v[{W+4*f}:{W+4*f+1}], v106 offset:{f*4096}")
        I(f"ds_read_b64_tr_b16 v[{W+4*f+2}:{W+4*f+3}], v106 offset:{f*4096+512}")
    I("s_lshl_b32 s42, s21, 10")
    I(f"s_add_u32 s43, s42, {WRAD}")
    I("v_add_u32 v105, s43, v105")
    I("s_waitcnt vmcnt(0)")
    for k in range(4):
        h = k >> 1
        for d in range(4):
            I(f"v_lshlrev_b32 v{WT+4*k+d}, 16, v{WT+4*k+d}")
            I(f"v_xor_b32 v{WT+4*k+d}, v{110+h}, v{WT+4*k+d}")
        I(f"ds_write_b128 v105, v[{WT+4*k}:{WT+4*k+3}] offset:{(k>>1)*8192 + (k&1)*4096}")
    I("v_and_b32 v106, 15, v104")
    I("v_lshrrev_b32 v107, 4, v104")
    I(f"v_lshlrev_b32 v{X0}, 2, v104")
    if NWG == 250:
        I(f"s_mul_i32 s42, s20, {HN}")
        I(f"s_movk_i32 s44, {HN}")
    else:
        I("s_mul_i32 s42, s20, 1600210")
        I("s_add_u32 s42, s42, 65532")
        I("s_add_u32 s44, s42, 1600210")
        I("s_lshr_b32 s42, s42, 16")
        I("s_lshr_b32 s44, s44, 16")
        I(f"s_min_u32 s44, s44, {N//2}")
        I("s_sub_u32 s44, s44, s42")
    I("s_lshl_b32 s42, s42, 9")
    I("s_lshl_b32 s43, s21, 5")
    I("s_add_u32 s42, s42, s43")
    I(f"v_lshlrev_b32 v{X1}, 9, v106")
    I(f"v_lshl_add_u32 v{X1}, v107, 3, v{X1}")
    I(f"v_add_u32 v{X1}, s42, v{X1}")
    I(f"v_cmp_le_u32 s[84:85], {HN-16}, v106")
    I(f"s_sub_u32 s43, s44, {48-HN}")
    I("v_cmp_gt_i32 s[50:51], s43, v106")
    I("s_sub_u32 s43, s44, 16")
    I("v_cmp_gt_i32 s[94:95], s43, v106")
    I("v_lshlrev_b32 v108, 10, v106")
    I(f"v_add_u32 v108, {T}, v108")
    I("s_or_b64 s[94:95], s[94:95], s[84:85]")
    for u in (3, 2, 1, 0):
        I(f"v_add_u32 v109, {4*u}, v107")
        I("v_xor_b32 v109, v109, v106")
        I(f"v_lshl_add_u32 v{TF+4+u}, v109, 4, v108")
    I("s_waitcnt lgkmcnt(0)")
    for u in range(4):
        I(f"v_mov_b32 v{TA+u}, v{TF+4+u}")
    I("s_mov_b32 s89, 0")
    NPB = 8
    TB, KA, SJ, KB, RB = 40, 48, 56, 64, 80
    LJ, LCH, LONE, Y = 96, 97, 98, 99
    MB = 52
    def mb(p, w): return f"s[{MB+4*p+2*w}:{MB+4*p+2*w+1}]"
    LA, PA0, PA1, TOA = KB, KB + 1, KB + 2, KB + 3
    I(f"v_lshrrev_b32 v{Y}, 2, v{X0}")
    I("s_lshl_b32 s42, s21, 11")
    I(f"v_lshl_add_u32 v{LA}, v{Y}, 4, s42")
    I(f"v_lshrrev_b32 v{Y+1}, 1, v{Y}")
    I("s_lshl_b32 s43, s21, 5")
    I(f"s_sub_u32 s44, {NCH-128}, s43")
    I(f"v_cmp_gt_i32 s[46:47], s44, v{Y+1}")
    I(f"s_mov_b32 s44, {CSTRIDE}")
    I(f"v_mul_u32_u24 v{Y+1}, s44, v{Y+1}")
    I(f"v_and_b32 v{Y+2}, 16, v{LA}")
    I(f"v_add_u32 v{PA0}, v{Y+1}, v{Y+2}")
    I(f"v_cndmask_b32 v{PA1}, 2.0, v{PA0}, s[46:47]")
    I(f"v_and_b32 v{LJ}, 7, v{Y}")
    I(f"v_lshrrev_b32 v{Y+1}, 3, v{Y}")
    I(f"v_mul_u32_u24 v{LCH}, s44, v{Y+1}")
    I(f"v_lshl_add_u32 v{RB}, v{Y+1}, 5, s42")
    I("s_mul_i32 s38, s43, s44")
    I(f"v_add_u32 v{LCH}, s38, v{LCH}")
    I(f"v_mov_b32 v{LONE}, 1")
    I("s_lshl_b32 s36, s20, 5")
    I(f"s_add_u32 s36, s36, {TABOFF+8192}")
    I("s_add_u32 s36, s36, s38")
    I(f"s_add_u32 s37, s36, {128*CSTRIDE}")
    I("s_lshl_b32 s42, s21, 6")
    I(f"v_add_u32 v{Y}, s42, v{Y}")
    I(f"v_mul_u32_u24 v{Y+1}, 0xaab, v{Y}")
    I(f"v_lshrrev_b32 v{Y+1}, 16, v{Y+1}")
    I(f"v_mul_u32_u24 v{Y+1}, {SSTR-24*32}, v{Y+1}")
    I(f"v_lshl_add_u32 v{TOA}, v{Y}, 5, v{Y+1}")
    I(f"v_add_u32 v{TOA}, {SCR+28}, v{TOA}")
    I(f"s_movk_i32 s42, {NCH}")
    I(f"v_cmp_gt_u32 s[92:93], s42, v{Y}")
    if c.pfx2_pos == 1:
        I("s_mov_b64 s[40:41], s[46:47]")
        prefetch_x(e, c.pfx2_lines, 114, 117, 256, 31, 0, 4, c.pfx_lines)
        I("s_mov_b64 s[46:47], s[40:41]")
    stamp(e, c, 14)
    e.label("L2_m_round")
    I("s_barrier")
    I("s_cmp_eq_u32 s23, 1")
    I("s_cbranch_scc1 L2_m_slowC")
    def pollB_issue():
        I(f"buffer_load_dwordx4 v[{TF+4}:{TF+7}], v{PA0}, s[8:11], s36 offen sc1")
        I(f"buffer_load_dwordx4 v[{TF+8}:{TF+11}], v{PA1}, s[8:11], s37 offen sc1")
    I(f"ds_read_b32 v{TF}, v{X0} offset:{HIST}")
    I(f"ds_read_b32 v{TF+1}, v{X0} offset:{HIST2}")
    I(f"ds_read_b32 v{Y}, v{TOA}")
    I("s_waitcnt lgkmcnt(0)")
    I(f"v_add_u32 v{TF}, v{TF}, v{TF+1}")
    I(f"v_and_b32 v{Y}, 0xfff, v{Y}")
    I(f"v_cndmask_b32 v{Y}, 0, v{Y}, s[92:93]")
    scan64(e, TF)
    scan64(e, Y)
    I(f"v_readlane_b32 s42, v{TF}, 63")
    I(f"v_mov_b32 v{Y+2}, 0")
    I("s_mov_b32 exec_lo, 0")
    I("s_mov_b32 exec_hi, 0x80000000")
    I(f"ds_add_u32 v{Y+2}, v{Y} offset:{TOTB}")
    I("s_mov_b64 exec, -1")
    I(f"s_cmp_gt_u32 s42, {CAP}")
    I("s_cbranch_scc1 L2_m_overflow")
    if c.bearly: pollB_issue()
    I("s_waitcnt lgkmcnt(0)")
    I("s_barrier")
    I(f"ds_read_b32 v{Y}, v{Y+2} offset:{TOTB}")
    SEL = Y + 4
    E2 = [TF, TF + 8]
    I("s_mov_b32 s44, 0")
    I("s_waitcnt lgkmcnt(0)")
    I(f"v_readfirstlane_b32 s42, v{Y}")
    I(f"v_or_b32 v{SEL}, 0x0c0c0c00, v{LJ}")
    I(f"s_cmp_gt_u32 s42, {CAP}")
    I("s_cbranch_scc1 L2_m_overflow")
    stamp(e, c, 10)
    I("s_mov_b32 s34, s42")
    if c.x_nobload: I("s_branch L2_bnoxb")
    if c.bearly: I("s_branch L2_pollB_w")
    e.label("L2_pollB")
    pollB_issue()
    e.label("L2_pollB_w")
    I("s_add_u32 s44, s44, 1")
    I("s_waitcnt vmcnt(0)")
    tag_bad(e, Y, TF+4, Y+1, ODD)
    tag_bad(e, Y+2, TF+8, Y+1, ODD)
    I(f"v_cndmask_b32 v{Y+2}, 0, v{Y+2}, s[46:47]")
    I(f"v_or_b32 v{Y}, v{Y}, v{Y+2}")
    I(f"v_cmp_ne_u32 vcc, 0, v{Y}")
    e.nop(2)
    I("s_cmp_eq_u64 vcc, 0")
    I("s_cbranch_scc1 L2_pollB_ok")
    I(f"s_sleep {c.psleep}")
    I("s_cmp_lt_u32 s44, 0x100000")
    I("s_cbranch_scc1 L2_pollB")
    e.label("L2_pollB_ok")
    stamp(e, c, 7)
    I(f"ds_write_b128 v{LA}, v[{TF+4}:{TF+7}] offset:{CEB}")
    I(f"ds_write_b128 v{LA}, v[{TF+8}:{TF+11}] offset:{CEB+1024}")
    def boff(p): return ((128 if p >= 4 else 0) + 8 * (p & 3)) * CSTRIDE
    def ent_read(p):
        r = E2[p & 1]
        I(f"ds_read_b128 v[{r}:{r+3}], v{RB} offset:{CEB+256*p}")
        I(f"ds_read_b64 v[{r+4}:{r+5}], v{RB} offset:{CEB+256*p+16}")
    ent_read(0); ent_read(1)
    I(f"v_add_u32 v{Y+1}, 8, v{LJ}")
    for p in range(NPB):
        r = E2[p & 1]
        I(f"s_waitcnt lgkmcnt({2 if p < NPB-1 else 0})")
        I(f"v_and_b32 v{SJ+p}, 0xfff, v{r}")
        I(f"v_bfe_u32 v{TB+p}, v{r}, 12, 12")
        I(f"v_perm_b32 v{KB+2*p}, v{r+3}, v{r+2}, v{SEL}")
        I(f"v_perm_b32 v{KB+2*p+1}, v{r+5}, v{r+4}, v{SEL}")
        if p + 2 < NPB: ent_read(p + 2)
        I(f"v_add_u32 v{SJ+p}, v{SJ+p}, v{LJ}")
        I(f"v_cmp_lt_u32 {mb(p,0)}, v{LJ}, v{TB+p}")
        I(f"v_cmp_lt_u32 {mb(p,1)}, v{Y+1}, v{TB+p}")
        I(f"v_lshl_add_u32 v{SJ+p}, v{SJ+p}, 4, v{LCH}")
    P0 = [TF, TF+4, TF+8, TF+12]
    def pay_issue(p, w, reg):
        I(f"s_mov_b32 s42, {boff(p)+PAYOFF}")
        I("s_mov_b64 exec, -1")
        I(f"v_cndmask_b32 v{Y+2+w}, 2.0, v{SJ+p}, {mb(p,w)}")
        I(f"buffer_load_dwordx4 v[{reg}:{reg+3}], v{Y+2+w}, s[8:11], s42 offen offset:{128*w} {rf}")
    for k in range(4): pay_issue(k >> 1, k & 1, P0[k])
    I(f"v_max3_u32 v{Y}, v{TB}, v{TB+1}, v{TB+2}")
    I(f"v_max3_u32 v{Y}, v{Y}, v{TB+3}, v{TB+4}")
    I(f"v_max3_u32 v{Y}, v{Y}, v{TB+5}, v{TB+6}")
    I(f"v_max_u32 v{Y}, v{Y}, v{TB+7}")
    I(f"v_cmp_lt_u32 vcc, 16, v{Y}")
    I(f"v_mov_b32 v{Y+1}, v{RB}")
    for p in range(NPB):
        for w in range(2):
            I(f"s_mov_b64 exec, {mb(p,w)}")
            I(f"ds_add_rtn_u32 v{RB+2*p+w}, v{KB+2*p+w}, v{LONE} offset:{HISTB}")
    I("s_mov_b64 exec, -1")
    I("s_cmp_lg_u64 vcc, 0")
    I("s_cselect_b32 s35, 1, 0")
    I("s_cbranch_scc0 L2_bnoxa")
    def w2mask(p):
        I(f"v_min_u32 v{Y+2}, {KIN}, v{TB+p}")
        I(f"v_add_u32 v{Y+3}, 16, v{LJ}")
        I(f"v_cmp_lt_u32 vcc, v{Y+3}, v{Y+2}")
        I("s_and_saveexec_b64 s[44:45], vcc")
    for p in range(NPB):
        w2mask(p)
        e.branch(f"s_cbranch_execz L2_bw2a{p}")
        I(f"ds_read_b32 v{KA+p}, v{Y+1} offset:{CEB+256*p+24}")
        I("s_waitcnt lgkmcnt(0)")
        I(f"v_perm_b32 v{KA+p}, v{KA+p}, v{KA+p}, v{SEL}")
        I(f"ds_add_rtn_u32 v{Y+2}, v{KA+p}, v{LONE} offset:{HISTB}")
        I("s_waitcnt lgkmcnt(0)")
        I(f"v_lshl_or_b32 v{KA+p}, v{Y+2}, 8, v{KA+p}")
        e.label(f"L2_bw2a{p}")
        I("s_mov_b64 exec, -1")
    def key_addr(p, dst):
        I(f"v_sub_u32 v{dst}, v{SJ+p}, v{LCH}")
        I(f"v_lshrrev_b32 v{dst}, 4, v{dst}")
        I(f"v_add_u32 v{dst}, v{dst}, v{LCH}")
    for p in range(NPB):
        I(f"s_mov_b32 s42, {boff(p)+KEYOFF}")
        key_addr(p, Y+3)
        extra_count(f"b{p}", KIN, LJ, Y+3, TB+p, 42, LONE, HIST2B, Y)
    e.label("L2_bnoxa")
    I("s_mov_b64 exec, 1")
    I(f"v_mov_b32 v{Y+2}, 0")
    I("s_waitcnt lgkmcnt(0)")
    I(f"ds_add_u32 v{Y+2}, v{LONE} offset:{BSYNC}")
    I("s_mov_b64 exec, -1")
    I(f"v_mov_b32 v{Y+2}, 0")
    spin(e, "bs", Y, Y+2, BSYNC, 4, 44, 42)
    BB = Y + 4
    I(f"ds_read_b32 v{Y}, v{X0} offset:{HISTB}")
    I(f"ds_read_b32 v{Y+1}, v{X0} offset:{HIST2B}")
    I("s_waitcnt lgkmcnt(0)")
    I(f"v_add_u32 v{Y+1}, v{Y}, v{Y+1}")
    I(f"v_mov_b32 v{BB}, v{Y+1}")
    scan64(e, BB)
    I(f"v_sub_u32 v{BB}, v{BB}, v{Y+1}")
    I(f"v_add_u32 v{BB}, {BOFF}, v{BB}")
    for k in range(2*NPB):
        I(f"ds_bpermute_b32 v{KB+k}, v{KB+k}, v{BB}")
    I("s_cmp_lg_u32 s21, 0")
    I("s_cbranch_scc1 L2_bnoinfo")
    I(f"v_lshl_or_b32 v{Y+1}, v{Y+1}, 16, v{BB}")
    I(f"s_mov_b32 exec_lo, {((1 << 32) - (1 << HN))}")
    I(f"ds_write_b32 v{X0}, v{Y+1} offset:{INFO}")
    I("s_mov_b64 exec, -1")
    e.label("L2_bnoinfo")
    I("s_waitcnt lgkmcnt(0)")
    for k in range(2*NPB):
        I(f"v_add_lshl_u32 v{KB+k}, v{KB+k}, v{RB+k}, 4")
    I(f"v_mov_b32 v{LONE}, v{Y}")
    regs = P0 + [RB, RB+4, RB+8, RB+12]
    for k in range(4, 8): pay_issue(k >> 1, k & 1, regs[k])
    for k in range(16):
        I(f"s_waitcnt vmcnt({min(7, 15-k)})")
        I(f"s_mov_b64 exec, {mb(k>>1, k&1)}")
        I(f"ds_write_b128 v{KB+k}, v[{regs[k&7]}:{regs[k&7]+3}] offset:{RAW}")
        if k + 8 < 16: pay_issue((k+8) >> 1, (k+8) & 1, regs[k&7])
    I("s_mov_b64 exec, -1")
    I("s_cmp_eq_u32 s35, 0")
    I("s_cbranch_scc1 L2_bnoxb")
    for p in range(NPB):
        I(f"v_and_b32 v{Y}, 0xff, v{KA+p}")
        I(f"ds_bpermute_b32 v{Y}, v{Y}, v{BB}")
        w2mask(p)
        e.branch(f"s_cbranch_execz L2_bw2b{p}")
        I(f"s_mov_b32 s42, {boff(p)+PAYOFF}")
        I(f"buffer_load_dwordx4 v[{TF}:{TF+3}], v{SJ+p}, s[8:11], s42 offen offset:256 {rf}")
        I(f"v_lshrrev_b32 v{KA+p}, 8, v{KA+p}")
        I("s_waitcnt vmcnt(0) lgkmcnt(0)")
        I(f"v_add_lshl_u32 v{Y}, v{Y}, v{KA+p}, 4")
        I(f"ds_write_b128 v{Y}, v[{TF}:{TF+3}] offset:{RAW}")
        e.label(f"L2_bw2b{p}")
        I("s_mov_b64 exec, -1")
        I("s_waitcnt lgkmcnt(0)")
    I(f"v_add_u32 v{BB}, v{BB}, v{LONE}")
    I(f"v_mov_b32 v{LONE}, 1")
    for p in range(NPB):
        I(f"s_mov_b32 s42, {boff(p)+KEYOFF}")
        I(f"s_mov_b32 s43, {boff(p)+PAYOFF}")
        key_addr(p, KA+p)
        extra_move(f"b{p}", KIN, LJ, KA+p, SJ+p, TB+p, 42, 43, LONE, CUR2B, BB, Y, TF)
    e.label("L2_bnoxb")
    I("s_waitcnt lgkmcnt(0)")
    for k in range(64):
        I(f"v_mov_b32 v{G+k}, 0")
    I("s_cmp_lg_u32 s21, 1")
    I("s_cbranch_scc1 L2_bnoguard")
    I(f"s_add_u32 s42, s34, {BOFF}")
    I("s_lshl_b32 s42, s42, 4")
    I(f"v_lshl_add_u32 v{TF}, v{X0}, 2, s42")
    I(f"ds_write_b128 v{TF}, v[{G}:{G+3}] offset:{RAW}")
    I("s_waitcnt lgkmcnt(0)")
    e.label("L2_bnoguard")
    I(f"v_mov_b32 v{TF}, 1")
    I("s_mov_b64 exec, 1")
    I(f"ds_add_u32 v{G}, v{TF} offset:{BREADY}")
    I("s_mov_b64 exec, -1")
    stamp(e, c, 13)
    I("s_branch L2_m_tiles")
    e.label("L2_m_slowC")
    I("s_barrier")
    e.label("L2_m_tiles")
    if c.prio_m: I(f"s_setprio {c.prio_m}")
    for h in range(2):
        for t in ((0, 3, 1, 2) if h else range(4)):
            need = 16 if t < 3 else NODES - 48
            last = (h, t) == (1, 2)
            if last and c.split: need = 32
            I(f"v_mov_b32 v{TF}, 0")
            spin(e, f"t{h}{t}", TF+1, TF, DONE + 16*h + 4*t, need, 43, 42, sleep=(1 if last else c.sleep))
            stamp(e, c, 16 + 4*h + t)
            srcs = [t] + ([0] if last and c.split else [])
            steps = [(tt, ks) for tt in srcs for ks in range(16)]
            def mf(ks, r):
                jp, blk = ks >> 2, 2 * h + ((ks >> 1) & 1)
                p, i, sg = path_of(jp, blk)
                f = p * 2 + (ks & 1)
                g = G + 16 * t + 4 * i
                I(f"v_mfma_f32_16x16x32_bf16 v[{g}:{g+3}], v[{W+4*f}:{W+4*f+3}], v[{r}:{r+3}], v[{g}:{g+3}]")
            def rd(n, r):
                tt, ks = steps[n]
                I(f"ds_read_b128 v[{r}:{r+3}], v{TA+(ks&3)} offset:{tt*16384 + (ks>>2)*256}")
            for n in range(4): rd(n, TF + 4*n)
            for n in range(len(steps)):
                I(f"s_waitcnt lgkmcnt({min(3, len(steps)-1-n)})")
                mf(steps[n][1], TF + 4*(n&3))
                if n + 4 < len(steps): rd(n + 4, TF + 4*(n&3))
            if (h, t) == (1, 0) and c.split:
                I(f"v_mov_b32 v{TF}, 0")
                I(f"v_mov_b32 v{TF+1}, 1")
                I("s_mov_b64 exec, 1")
                I(f"ds_add_u32 v{TF}, v{TF+1} offset:{GDONE + 16}")
                I("s_mov_b64 exec, -1")
            if h == 0:
                I(f"v_mov_b32 v{TF}, 0")
                I(f"v_mov_b32 v{TF+1}, 1")
                I("s_mov_b64 exec, 1")
                I(f"ds_add_u32 v{TF}, v{TF+1} offset:{GDONE + 4*t}")
                I("s_mov_b64 exec, -1")
                if t == c.pf1_tile:
                    I(f"s_movk_i32 m0, {HIST2B}")
                    I("s_lshl_b32 s42, s21, 6")
                    I(f"v_lshrrev_b32 v{TF+3}, 2, v{X0}")
                    I(f"v_add_u32 v{TF+3}, s42, v{TF+3}")
                    prefetch_x(e, c.pf1_lines, TF + 4, TF + 3, 256, 31, 1, 4, lds=True)
            else:
                I("s_cmp_eq_u32 s24, 0")
                e.branch(f"s_cbranch_scc1 L2_nofin{t}")
                g = G + 16 * t
                I("s_mov_b32 s42, 0xbfb8aa3b")
                for r in range(4): I(f"v_mul_f32 v{TF+r}, s42, v{g+r}")
                for r in range(4): I(f"v_exp_f32 v{TF+r}, v{TF+r}")
                for r in range(4): I(f"v_add_f32 v{TF+r}, 1.0, v{TF+r}")
                for r in range(4): I(f"v_rcp_f32 v{TF+r}, v{TF+r}")
                for i in range(1, 4):
                    for r in range(4): I(f"v_mul_f32 v{g+4*i+r}, v{g+4*i+r}, v{TF+r}")
                for i in range(4):
                    I(f"v_cvt_pk_bf16_f32 v{TF+4+2*i}, v{g+4*i}, v{g+4*i+1}")
                    I(f"v_cvt_pk_bf16_f32 v{TF+5+2*i}, v{g+4*i+2}, v{g+4*i+3}")
                I(f"s_mov_b32 s42, {t*16*512 + ((N//2-HN)*512 if t >= 2 else 0)}")
                va = X1
                if t == 1:
                    va = TF
                    I(f"v_add_u32 v{TF}, {(N//2-HN)*512}, v{X1}")
                    I(f"v_cndmask_b32 v{TF}, v{X1}, v{TF}, s[84:85]")
                    I("s_mov_b64 exec, s[94:95]")
                if t == 3:
                    I("s_mov_b64 exec, s[50:51]")
                    I("s_cbranch_execz L2_nost3")
                for i in range(4):
                    I(f"buffer_store_dwordx2 v[{TF+4+2*i}:{TF+5+2*i}], v{va}, s[12:15], s42 offen offset:{i*128} {c.out_flags}")
                if t == 3: e.label("L2_nost3")
                if t in (1, 3): I("s_mov_b64 exec, -1")
                e.label(f"L2_nofin{t}")
    stamp(e, c, 11)
    I("s_cmp_lg_u32 s24, 0")
    e.branch("s_cbranch_scc1 L2_m_exit")
    I("s_add_u32 s89, s89, 1")
    I("s_branch L2_m_slow")
    e.label("L2_m_overflow")
    I("s_mov_b32 s89, 0")
    I("s_mov_b32 s23, 1")
    I("s_waitcnt vmcnt(0)")
    for k in range(64):
        I(f"v_mov_b32 v{G+k}, 0")
    e.label("L2_m_slow")
    I("s_waitcnt vmcnt(0) lgkmcnt(0)")
    I("s_barrier")
    I(f"s_cmp_eq_u32 s89, {2*NCH-1}")
    I("s_cselect_b32 s24, 1, 0")
    I("s_cmp_lg_u32 s21, 1")
    I("s_cbranch_scc1 L2_m_nz")
    for k in range(4): I(f"v_mov_b32 v{TF+k}, 0")
    I(f"v_lshlrev_b32 v{TF+4}, 2, v{X0}")
    I(f"ds_write_b128 v{TF+4}, v[{TF}:{TF+3}]")
    I("s_waitcnt lgkmcnt(0)")
    e.label("L2_m_nz")
    I("s_barrier")
    e.branch("s_branch L2_m_round")
    e.label("L2_m_exit")
    if c.stamps:
        I("s_waitcnt vmcnt(0)")
        stamp(e, c, 12)
        stamp_store(e, c, TF)
    e.label("L_end")
    I("s_endpgm")
    e.label("L_codeend")
    return KNAME, 128, 96

def gather_loop(e, c, L):
    I = e.I
    RAW, T, NEXT, DONE, GDONE, OSC, PL1, BREADY, INFO = (L[k] for k in "RAW T NEXT DONE GDONE OSC PL1 BREADY INFO".split())
    VLANE, VINFO, VNEXT, VLOFF, VMASK, VOW, VOR, VSCRW, VTRA, VWR, VL16, VT0, VT1, VONE = (L[k] for k in
        "VLANE VINFO VNEXT VLOFF VMASK VOW VOR VSCRW VTRA VWR VL16 VT0 VT1 VONE".split())
    ACC, LD, B, A, AD = 0, 32, 64, 96, 100
    sA, sR, sH, sN, sNV = 32, 33, 34, 35, 37
    sCN, sCH, sCF, sCR, sL = 38, 39, 40, 41, 36
    uid = [0]
    def lab(p):
        uid[0] += 1
        return f"L2_{p}{uid[0]}"
    def fetch_issue():
        I("s_mov_b64 exec, 1")
        I(f"ds_add_rtn_u32 v{VNEXT}, v{VL16}, v{VONE} offset:{NEXT}")
        I("s_mov_b64 exec, -1")
    NIT = 2*NODES + (16 if c.split else 0)
    def setup_item(none_label):
        I(f"v_readfirstlane_b32 s42, v{VNEXT}")
        e.nop(1)
        I(f"s_cmp_ge_u32 s42, {NIT}")
        I(f"s_cbranch_scc1 {none_label}")
        t, sp, dn = lab("bw"), lab("sp"), lab("sd")
        if c.split:
            I(f"s_cmp_ge_u32 s42, {2*NODES-16}")
            I(f"s_cbranch_scc1 {sp}")
        I(f"s_cmp_ge_u32 s42, {NODES}")
        I(f"s_cselect_b32 s{sH}, 256, 0")
        I(f"s_cselect_b32 s43, {NODES}, 0")
        I(f"s_cmp_ge_u32 s42, {NODES+16}")
        I(f"s_cselect_b32 s43, {NODES-32}, s43")
        I(f"s_cmp_ge_u32 s42, {NODES+18}")
        I(f"s_cselect_b32 s43, {NODES+2}, s43")
        I(f"s_sub_u32 s{sN}, s42, s43")
        I(f"s_cmp_lt_u32 s{sN}, s48")
        I(f"s_cbranch_scc1 {t}")
        stamp(e, c, 29)
        I(f"v_mov_b32 v{VT0}, 0")
        spin(e, t, VT1, VT0, BREADY, 4, 45, 44, sleep=1)
        I(f"v_lshrrev_b32 v{VT0}, 2, v{VL16}")
        I(f"ds_read_b32 v{VINFO}, v{VT0} offset:{INFO}")
        I("s_movk_i32 s48, 64")
        I("s_waitcnt lgkmcnt(0)")
        stamp(e, c, 30)
        e.label(t)
        I(f"v_readlane_b32 s42, v{VINFO}, s{sN}")
        e.nop(1)
        I(f"s_lshr_b32 s{sR}, s42, 16")
        I("s_and_b32 s42, s42, 0xffff")
        I(f"s_lshl_b32 s{sA}, s42, 4")
        if c.split:
            I(f"s_branch {dn}")
            e.label(sp)
            I(f"s_sub_u32 s42, s42, {2*NODES-16}")
            I("s_lshr_b32 s43, s42, 1")
            I(f"s_add_u32 s{sN}, s43, 32")
            I(f"s_cmp_lt_u32 s{sN}, s48")
            I(f"s_cbranch_scc1 {t}b")
            I(f"v_mov_b32 v{VT0}, 0")
            spin(e, t + "c", VT1, VT0, BREADY, 4, 45, 44, sleep=1)
            I(f"v_lshrrev_b32 v{VT0}, 2, v{VL16}")
            I(f"ds_read_b32 v{VINFO}, v{VT0} offset:{INFO}")
            I("s_movk_i32 s48, 64")
            I("s_waitcnt lgkmcnt(0)")
            e.label(t + "b")
            I(f"v_readlane_b32 s44, v{VINFO}, s{sN}")
            I(f"s_movk_i32 s{sH}, 256")
            I(f"s_lshr_b32 s{sR}, s44, 16")
            I("s_and_b32 s44, s44, 0xffff")
            I(f"s_min_u32 s45, s{sR}, 32")
            I("s_bitcmp1_b32 s42, 0")
            I(f"s_cbranch_scc1 {sp}h")
            I(f"s_mov_b32 s{sR}, s45")
            I(f"s_lshl_b32 s{sA}, s44, 4")
            I(f"s_branch {dn}")
            e.label(sp + "h")
            I(f"s_sub_u32 s{sR}, s{sR}, s45")
            I("s_add_u32 s44, s44, s45")
            I(f"s_lshl_b32 s{sA}, s44, 4")
            I(f"s_or_b32 s{sN}, s43, 64")
            e.label(dn)
    def off_read(hf):
        I(f"ds_read_b128 v[{AD}:{AD+3}], v{VOR} offset:{OSC+128*hf}")
        I(f"ds_read_b128 v[{AD+4}:{AD+7}], v{VOR} offset:{OSC+128*hf+16}")
    def off_add():
        if c.addtid: return
        for i in range(8):
            I(f"v_add_u32 v{AD+i}, v{AD+i}, v{VLOFF}")
    def prep_block():
        r = B
        I(f"v_add_u32 v{VT0}, s{sA}, v{VL16}")
        I(f"ds_read_b128 v[{r}:{r+3}], v{VT0} offset:{RAW}")
        l = lab("nf")
        I(f"s_cmp_gt_u32 s{sR}, 64")
        I(f"s_cbranch_scc1 {l}")
        fetch_issue()
        e.label(l)
        I(f"v_cmp_gt_u32 vcc, s{sR}, v{VLANE}")
        I("s_waitcnt lgkmcnt(0)")
        I(f"v_lshrrev_b32 v{r+11}, 16, v{r+3}")
        if c.addtid:
            I(f"v_lshlrev_b32 v{r+11}, 5, v{r+11}")
            I(f"v_sub_u32 v{r+11}, v{r+11}, v{VLOFF}")
        else:
            I(f"v_lshlrev_b32 v{r+11}, 9, v{r+11}")
            if c.oobtail: I(f"v_cndmask_b32 v{r+11}, 2.0, v{r+11}, vcc")
        I(f"ds_write_b32 v{VOW}, v{r+11} offset:{OSC}")
        off_read(0)
        if not c.x_noexp:
            I(f"v_cndmask_b32 v{r}, 0, v{r}, vcc")
            I(f"v_cndmask_b32 v{r+1}, 0, v{r+1}, vcc")
            I(f"v_lshlrev_b32 v{r+8}, 16, v{r+2}")
            I(f"v_and_b32 v{r+9}, v{VMASK}, v{r+2}")
            I(f"v_lshlrev_b32 v{r+10}, 16, v{r+3}")
            I(f"v_lshlrev_b32 v{r+4}, 16, v{r}")
            I(f"v_and_b32 v{r+5}, v{VMASK}, v{r}")
            I(f"v_lshlrev_b32 v{r+6}, 16, v{r+1}")
            I(f"v_and_b32 v{r+7}, v{VMASK}, v{r+1}")
            for j in range(3):
                for d in range(4):
                    I(f"v_mul_f32 v{r+12+4*j+d}, v{r+4+d}, v{r+8+j}")
            I(f"v_cvt_pk_bf16_f32 v{r+2}, v{r+12}, v{r+13}")
            I(f"v_cvt_pk_bf16_f32 v{r+3}, v{r+14}, v{r+15}")
            for k in range(4):
                I(f"v_cvt_pk_bf16_f32 v{r+24+k}, v{r+16+2*k}, v{r+17+2*k}")
        I(f"ds_write_b128 v{VSCRW}, v[{r}:{r+3}]")
        I(f"ds_write_b128 v{VSCRW}, v[{r+24}:{r+27}] offset:{PL1}")
        I("s_waitcnt lgkmcnt(2)")
        off_add()
    def ld(i):
        if c.x_noload: return
        I(f"buffer_load_dwordx4 v[{LD+4*i}:{LD+4*i+3}], v{AD+i}, s[4:7], {'0' if c.x_samehalf else 's%d' % sH} {'idxen' if c.addtid else 'offen'}")
    def perm(q, jj, k16=False):
        if c.x_noperm: return
        d = B + 2*q + jj if k16 else B + 4*q + jj
        I(f"v_perm_b32 v{d}, v{LD+4*(2*jj+1)+q//2}, v{LD+4*(2*jj)+q//2}, s{29 if q & 1 else 28}")
    def loads_partial(done):
        for i in range(7):
            I(f"s_cmp_le_u32 s{sL}, {4*i}")
            I(f"s_cbranch_scc1 {done}")
            ld(i)
    def perms_loads():
        part, done = lab("pp"), lab("pd")
        I("s_waitcnt vmcnt(0)")
        I(f"s_cmp_le_u32 s{sL}, 28")
        I(f"s_cbranch_scc1 {part}")
        for jj in range(4):
            for q in range(8): perm(q, jj)
            ld(2*jj); ld(2*jj+1)
        I(f"s_branch {done}")
        e.label(part)
        for jj in range(4):
            for q in range(8): perm(q, jj)
        loads_partial(done)
        e.label(done)
    def mfmas(first, k16=False):
        if c.x_nomfma: return
        for q in range(8):
            d = f"v[{ACC+4*q}:{ACC+4*q+3}]"
            if k16: I(f"v_mfma_f32_16x16x16_bf16 {d}, v[{A}:{A+1}], v[{B+2*q}:{B+2*q+1}], {'0' if first else d}")
            else: I(f"v_mfma_f32_16x16x32_bf16 {d}, v[{A}:{A+3}], v[{B+4*q}:{B+4*q+3}], {'0' if first else d}")
    def tr_read(hf):
        I(f"ds_read_b64_tr_b16 v[{A}:{A+1}], v{VTRA} offset:{512*hf}")
        I(f"ds_read_b64_tr_b16 v[{A+2}:{A+3}], v{VTRA} offset:{512*hf+256}")

    if c.stamps: I("s_mov_b32 s92, 16")
    setup_item("L2_g_done")
    prep_block()
    for i in range(8): ld(i)
    for first in (1, 0):
        e.label(f"L2_A{first}")
        tr_read(0)
        I(f"s_cmp_gt_u32 s{sR}, 32")
        I(f"s_cbranch_scc1 L2_AB{first}")
        I(f"s_mov_b32 s{sCF}, {first}")
        I(f"s_mov_b32 s{sCR}, s{sR}")
        I("s_branch L2_XN")
        e.label(f"L2_AB{first}")
        off_read(1)
        I(f"s_sub_u32 s{sL}, s{sR}, 32")
        I("s_waitcnt lgkmcnt(0)")
        off_add()
        perms_loads()
        mfmas(first)
        if first: I("s_branch L2_B")
    e.label("L2_B")
    tr_read(1)
    I(f"s_cmp_gt_u32 s{sR}, 64")
    I("s_cbranch_scc0 L2_BN")
    I(f"s_sub_u32 s{sR}, s{sR}, 64")
    I(f"s_add_u32 s{sA}, s{sA}, 1024")
    I(f"s_mov_b32 s{sL}, s{sR}")
    prep_block()
    perms_loads()
    I("s_waitcnt lgkmcnt(0)")
    mfmas(0)
    I("s_branch L2_A0")
    e.label("L2_BN")
    I(f"s_mov_b32 s{sCF}, 0")
    I(f"s_sub_u32 s{sCR}, s{sR}, 32")
    e.label("L2_XN")
    I(f"s_mov_b32 s{sCN}, s{sN}")
    I(f"s_mov_b32 s{sCH}, s{sH}")
    I(f"s_mov_b32 s{sNV}, 1")
    setup_item("L2_XN_none")
    I(f"s_mov_b32 s{sL}, s{sR}")
    prep_block()
    I("s_branch L2_XN_go")
    e.label("L2_XN_none")
    I(f"s_mov_b32 s{sNV}, 0")
    I(f"s_mov_b32 s{sL}, 0")
    e.label("L2_XN_go")
    I(f"s_cmp_le_u32 s{sCR}, 16")
    I("s_cbranch_scc1 L2_XN_k16")
    perms_loads()
    I("s_waitcnt lgkmcnt(0)")
    I(f"s_cmp_eq_u32 s{sCF}, 0")
    I("s_cbranch_scc1 L2_XN_acc")
    mfmas(1)
    I("s_branch L2_XN_epi")
    e.label("L2_XN_acc")
    mfmas(0)
    I("s_branch L2_XN_epi")
    e.label("L2_XN_k16")
    I("s_waitcnt vmcnt(0)")
    for jj in range(2):
        for q in range(8): perm(q, jj, True)
    I(f"s_cmp_le_u32 s{sL}, 28")
    I("s_cbranch_scc1 L2_XN_k16p")
    for i in range(8): ld(i)
    I("s_branch L2_XN_k16d")
    e.label("L2_XN_k16p")
    loads_partial("L2_XN_k16d")
    e.label("L2_XN_k16d")
    I("s_waitcnt lgkmcnt(0)")
    I(f"s_cmp_eq_u32 s{sCF}, 0")
    I("s_cbranch_scc1 L2_XN_k16acc")
    mfmas(1, True)
    I("s_branch L2_XN_epi")
    e.label("L2_XN_k16acc")
    mfmas(0, True)
    e.label("L2_XN_epi")
    I(f"s_lshl_b32 s42, s{sCH}, 5")
    I(f"v_add_u32 v{VT0}, s42, v{VWR}")
    for q in range(8):
        I(f"ds_read_b128 v[{B+4*q}:{B+4*q+3}], v{VT0} offset:{q*1024}")
    I(f"s_lshr_b32 s43, s{sCN}, 4")
    I(f"s_lshl_b32 s43, s43, 2")
    I(f"s_cmp_eq_u32 s{sCH}, 0")
    I("s_cbranch_scc1 L2_nowar")
    I(f"v_mov_b32 v{VT1}, s43")
    spin(e, "war", VT0, VT1, GDONE, 4, 45, 44)
    if c.split:
        I("s_cmp_eq_u32 s43, 16")
        I("s_cselect_b32 s43, 8, s43")
    I("s_add_u32 s43, s43, 16")
    e.label("L2_nowar")
    I(f"s_and_b32 s44, s{sCN}, 15")
    I("s_lshl_b32 s44, s44, 4")
    I(f"s_and_b32 s45, s{sCN}, 63")
    I(f"s_lshl_b32 s45, s45, 10")
    I(f"s_add_u32 s45, s45, {T}")
    I(f"v_xor_b32 v{VT0}, s44, v{VL16}")
    I(f"v_add_u32 v{VT0}, s45, v{VT0}")
    I(f"v_mov_b32 v{VT1}, s43")
    I("s_waitcnt lgkmcnt(0)")
    for q in range(8):
        I(f"v_mul_f32 v{B+4*q}, v{B+4*q}, v{ACC+4*q}")
    for d in range(1, 4):
        for q in range(8):
            I(f"v_fmac_f32 v{B+4*q}, v{B+4*q+d}, v{ACC+4*q+d}")
    for k in range(4):
        I(f"v_cvt_pk_bf16_f32 v{A+k}, v{B+8*k}, v{B+8*k+4}")
    I(f"ds_write_b128 v{VT0}, v[{A}:{A+3}]")
    if not c.nowait: I("s_waitcnt lgkmcnt(0)")
    I("s_mov_b64 exec, 1")
    I(f"ds_add_u32 v{VT1}, v{VONE} offset:{DONE}")
    I("s_mov_b64 exec, -1")
    if c.stamps:
        I("s_memrealtime s[90:91]")
        I("s_waitcnt lgkmcnt(0)")
        I("s_mov_b32 m0, s92")
        I(f"v_writelane_b32 v{STV}, s90, m0")
        I("s_add_u32 s92, s92, 1")
        I("s_min_u32 s92, s92, 23")
    I(f"s_cmp_lg_u32 s{sNV}, 0")
    I("s_cbranch_scc1 L2_A1")

HEADER = """; equiformer tensor-product message passing, one persistent launch (one workgroup per CU):
"""

def gen_probe(e, c):
    kA, a0, a1, sA, oA, kB, b0, b1, sB, oB = c.probe.split(",")
    kernel_header(e, "eqprobe_kernel")
    I = e.I
    I("s_cmp_ge_u32 s2, 1")
    I("s_cbranch_scc1 LP_end")
    I("s_memrealtime s[20:21]")
    I("s_load_dwordx2 s[4:5], s[0:1], 88")
    I("s_waitcnt lgkmcnt(0)")
    srd(e, 8, 4, 32 << 20)
    I(f"v_min_u32 v1, {c.nwg-1}, v0")
    I("v_lshlrev_b32 v1, 11, v1")
    I("v_mov_b32 v10, 0"); I("v_mov_b32 v11, -1"); I("v_mov_b32 v12, 0")
    I("ds_write_b32 v10, v11 offset:0"); I("ds_write_b32 v10, v12 offset:4"); I("ds_write_b32 v10, v11 offset:8"); I("ds_write_b32 v10, v12 offset:12")
    I("s_waitcnt lgkmcnt(0)"); I("s_barrier")
    regs = []
    for (k, w0, w1, sl, off) in ((kA, a0, a1, sA, 0), (kB, b0, b1, sB, 8)):
        if k == "now":
            I(f"v_mov_b32 v{16+len(regs)}, s20"); regs.append(off); continue
        I(f"s_mov_b32 s12, {STAMPOFF}")
        for w in range(int(w0), int(w1)):
            I(f"buffer_load_dword v{16+len(regs)}, v1, s[8:11], s12 offen offset:{w*128 + int(sl)*4}")
            regs.append(off)
    I("s_waitcnt vmcnt(0)")
    for off, op in ((0, oA), (8, oB)):
        idx = [n for n, o in enumerate(regs) if o == off]
        for n in idx[1:]:
            I(f"v_{op}_u32 v{16+idx[0]}, v{16+idx[0]}, v{16+n}")
        I(f"ds_{op}_u32 v10, v{16+idx[0]} offset:{off + (0 if op == 'min' else 4)}")
    I("s_waitcnt lgkmcnt(0)"); I("s_barrier")
    I(f"ds_read_b32 v3, v10 offset:{0 if oA == 'min' else 4}")
    I(f"ds_read_b32 v4, v10 offset:{8 if oB == 'min' else 12}")
    I("s_waitcnt lgkmcnt(0)")
    I("v_sub_u32 v3, v3, v4")
    I("v_min_u32 v3, 0x2000, v3")
    I("v_readfirstlane_b32 s14, v3")
    I("s_memrealtime s[16:17]")
    I("s_mul_i32 s14, s14, 10")
    I("s_waitcnt lgkmcnt(0)")
    e.label("LP_spin")
    I("s_memrealtime s[18:19]")
    I("s_waitcnt lgkmcnt(0)")
    I("s_sub_u32 s18, s18, s16")
    I("s_cmp_lt_u32 s18, s14")
    I("s_cbranch_scc1 LP_spin")
    e.label("LP_end")
    I("s_endpgm")
    return "eqprobe_kernel", 64, 32

def generate(c):
    e = Emitter()
    e.raw('.amdgcn_target "amdgcn-amd-amdhsa--gfx950"')
    e.raw(".text")
    k = gen_main(e, c)
    head = HEADER + f"; @launch grid=({c.nwg},1,1) block=(1024,1,1) lds={c.lds}\n"
    tail = '.section .rodata,"a"\n.p2align 6\n' + kd(*k)
    if c.probe:
        kp = gen_probe(e, c)
        head = HEADER + f"; @launch kernel={KNAME} grid=({c.nwg},1,1) block=(1024,1,1) lds={c.lds}\n; @launch kernel=eqprobe_kernel grid=(1,1,1) block=(256,1,1) lds=64\n"
        tail += ".p2align 6\n" + kd(*kp)
    return head + e.text() + tail

if __name__ == "__main__":
    c = Cfg()
    out = sys.argv[1]
    for kv in sys.argv[2:]:
        k, v = kv.split("=", 1)
        old = getattr(c, k)
        setattr(c, k, type(old)(int(v)) if isinstance(old, (bool, int)) else v.replace("+", " "))
    open(out, "w").write(generate(c))
```

```python
import sys
from emit import Emitter

N, E = 12500, 800000
NODES, HN = 50, 25
NCH = 250
CSTRIDE = 70784
KEYOFF, PAYOFF, TABOFF = 0, 3200, 54400
WSBYTES = NCH * CSTRIDE
KIN = 20
KNAME = "gather_scatter__tensor_product_equiv_equiformer__graph_kernel"
STAMPOFF = 24 << 20

class Cfg:
    nwg = 250
    st_flags = "sc1"
    ld_flags = "nt"
    rec_flags = "sc1"
    out_flags = ""
    pfx_lines = 192
    stamps = False
    cap = 1888
    x_noperm = 0
    x_noexp = 0
    x_nomfma = 0
    x_noload = 0
    x_samehalf = 0
    x_nobload = 0
    codepf = 26
    tlbpf = 0
    codeearly = 0
    sleep = 12
    psleep = 2
    probe = ""
    addtid = 0
    split = 0
    splitw = 1
    cpfwg = 16
    wlate = 0
    coal = 1
    pf1_tile = -1
    pf1_lines = 256
    prio_g = 0
    prio_m = 0
    ld2_flags = None
    nowait = 1
    fastlast = 1
    pfx2_lines = 0
    pfx2_pos = 0
    oobtail = 1
    bearly = 1
    tidw3 = "0x00800000"

def srd(e, d, b, nbytes, w1=None, w3="0x20000"):
    e.I(f"s_mov_b32 s{d}, s{b}")
    if w1: e.I(f"s_or_b32 s{d+1}, s{b+1}, {w1}")
    else: e.I(f"s_mov_b32 s{d+1}, s{b+1}")
    e.I(f"s_mov_b32 s{d+2}, {nbytes}")
    e.I(f"s_mov_b32 s{d+3}, {w3}")

def scan64(e, v):
    for sh in (1, 2, 4, 8):
        e.I(f"v_add_u32_dpp v{v}, v{v}, v{v} row_shr:{sh} row_mask:0xf bank_mask:0xf")
    e.I(f"v_add_u32_dpp v{v}, v{v}, v{v} row_bcast:15 row_mask:0xa bank_mask:0xf")
    e.I(f"v_add_u32_dpp v{v}, v{v}, v{v} row_bcast:31 row_mask:0xc bank_mask:0xf")

def prefetch_x(e, nlines, vt, vtid, nthreads, slice_s, half, srdx, first=0, lds=False):
    if nlines <= 0: return 0
    e.I(f"s_mul_i32 s46, s{slice_s}, 782")
    if first: e.I(f"s_add_u32 s46, s46, {first}")
    e.I(f"s_mov_b32 s47, {nlines}")
    it = (nlines + nthreads - 1) // nthreads
    for k in range(it):
        e.I(f"v_add_u32 v{vt}, {k*nthreads}, v{vtid}")
        e.I(f"v_cmp_gt_u32 vcc, s47, v{vt}")
        e.I(f"v_add_u32 v{vt}, s46, v{vt}")
        e.I(f"v_and_b32 v{vt+1}, 1, v{vt}")
        e.I(f"v_lshrrev_b32 v{vt}, 1, v{vt}")
        e.I(f"v_lshlrev_b32 v{vt}, 9, v{vt}")
        e.I(f"v_lshl_add_u32 v{vt}, v{vt+1}, 7, v{vt}")
        e.I(f"v_cndmask_b32 v{vt}, 2.0, v{vt}, vcc")
        if lds:
            if half: e.I(f"v_add_u32 v{vt}, 256, v{vt}")
            e.I(f"buffer_load_dword v{vt}, s[{srdx}:{srdx+3}], 0 offen lds")
        else:
            e.I(f"buffer_load_dword v{vt+2}, v{vt}, s[{srdx}:{srdx+3}], 0 offen offset:{half*256}")
    return it

STV, TIDV = 127, 126
def stamp(e, c, slot, ins="s_memrealtime"):
    if not c.stamps: return
    e.I(f"{ins} s[90:91]")
    e.I("s_waitcnt lgkmcnt(0)")
    e.I(f"v_writelane_b32 v{STV}, s90, {slot}")

def stamp_store(e, c, vtmp):
    if not c.stamps: return
    e.I(f"v_lshrrev_b32 v{vtmp}, 6, v{TIDV}")
    e.I(f"s_lshl_b32 s90, s2, 4")
    e.I(f"v_add_u32 v{vtmp}, s90, v{vtmp}")
    e.I(f"v_lshlrev_b32 v{vtmp}, 7, v{vtmp}")
    e.I(f"v_and_b32 v{vtmp+1}, 63, v{TIDV}")
    e.I(f"v_lshl_add_u32 v{vtmp}, v{vtmp+1}, 2, v{vtmp}")
    e.I(f"v_cmp_gt_u32 vcc, 32, v{vtmp+1}")
    e.I(f"v_cndmask_b32 v{vtmp}, 2.0, v{vtmp}, vcc")
    e.I(f"s_mov_b32 s90, {STAMPOFF}")
    e.I(f"buffer_store_dword v{STV}, v{vtmp}, s[8:11], s90 offen")

def kernel_header(e, name):
    e.raw(f".globl {name}")
    e.raw(".p2align 8")
    e.raw(f".type {name},@function")
    e.raw(f"{name}:")
    e.hist = []

def kd(name, nv, ns):
    return f""".amdhsa_kernel {name}
  .amdhsa_next_free_vgpr {nv}
  .amdhsa_next_free_sgpr {ns}
  .amdhsa_accum_offset {(nv+3)//4*4}
  .amdhsa_group_segment_fixed_size 0
  .amdhsa_kernarg_size 96
  .amdhsa_user_sgpr_count 2
  .amdhsa_user_sgpr_kernarg_segment_ptr 1
  .amdhsa_system_sgpr_workgroup_id_x 1
  .amdhsa_float_denorm_mode_32 3
.end_amdhsa_kernel
"""

def path_of(jp, blk):
    if blk == 0: return (0, 0, 1) if jp == 0 else (2, jp, 1)
    k = blk - 1
    if jp == 0: return (3, 1 + k, 1)
    j = jp - 1
    if j == k: return (1, 0, 1)
    i = 3 - j - k
    return (4, 1 + i, 1 if k == (j + 1) % 3 else -1)

class Lay: pass

def spin(e, tag, vdst, vaddr, off, need, scnt, sval, sleep=None, bound="0x400000"):
    I = e.I
    I(f"s_mov_b32 s{scnt}, 0")
    e.label(f"L_sp{tag}")
    I(f"ds_read_b32 v{vdst}, v{vaddr} offset:{off}")
    I("s_waitcnt lgkmcnt(0)")
    I(f"v_readfirstlane_b32 s{sval}, v{vdst}")
    I(f"s_add_u32 s{scnt}, s{scnt}, 1")
    I(f"s_cmp_ge_u32 s{sval}, {need}")
    I(f"s_cbranch_scc1 L_sp{tag}_ok")
    if sleep: I(f"s_sleep {sleep}")
    I(f"s_cmp_lt_u32 s{scnt}, {bound}")
    I(f"s_cbranch_scc1 L_sp{tag}")
    e.label(f"L_sp{tag}_ok")

def tag_bad(e, dst, r, tmp, odd):
    I = e.I
    I(f"v_xor_b32 v{tmp}, s87, v{r}")
    I(f"v_xor_b32 v{dst}, s86, v{r+1}")
    I(f"v_lshrrev_b32 v{tmp}, 24, v{tmp}")
    I(f"v_or_b32 v{dst}, v{dst}, v{tmp}")
    I(f"v_xor_b32 v{tmp}, s3, v{r+3}")
    I(f"v_lshrrev_b32 v{tmp}, 12, v{tmp}")
    I(f"v_cndmask_b32 v{dst}, v{dst}, v{tmp}, {odd}")

def gen_main(e, c):
    L = Lay()
    CAP = c.cap
    NWG = c.nwg
    BOFF = CAP + 64
    HIST, HIST2, CUR2, CNT = 0, 256, 512, 768
    NEXT, DONE, GDONE, BSYNC, BREADY, TOTB = CNT, CNT + 16, CNT + 64, CNT + 96, CNT + 100, CNT + 104
    HISTB, HIST2B, CUR2B, INFO, NONCE = 1024, 1280, 1536, 1792, 2048
    RAW = 2176
    T = (RAW + 2 * BOFF * 16 + 255) // 256 * 256
    WRAD = T + NODES * 1024
    SCR = WRAD + 16384
    H1 = WRAD
    TI = SCR
    CEB = RAW + BOFF * 16
    SSTR, PL1, OSC = 2368, 1056, 2080
    lds = max(SCR + 12 * SSTR, T + 64 * 1024)
    assert lds <= 163840 and 2 * BOFF >= 3200 + 64, lds
    c.lds = lds
    kernel_header(e, KNAME)
    I = e.I
    wsbytes = (32 << 20) if c.stamps else WSBYTES
    sf, rf, lf = c.st_flags, c.rec_flags, c.ld_flags
    ODD = "s[26:27]"
    I(f"s_cmp_ge_u32 s2, {NWG}")
    I("s_cbranch_scc1 L_end")
    if c.stamps:
        I(f"v_mov_b32 v{STV}, 0")
        I(f"v_mov_b32 v{TIDV}, v0")
    stamp(e, c, 0)
    stamp(e, c, 26, "s_memtime")
    I("s_load_dwordx8 s[32:39], s[0:1], 0")
    I("s_load_dwordx8 s[40:47], s[0:1], 32")
    if NWG > NCH:
        I(f"s_cmp_lt_u32 s2, {NCH}")
        I("s_cselect_b32 s51, 800, 0")
    else:
        I("s_movk_i32 s51, 800")
    if c.coal:
        I("s_mul_i32 s48, s2, 1600")
        I("v_add_u32 v3, s48, v0")
        I("v_cmp_gt_u32 vcc, s51, v0")
        I("v_lshlrev_b32 v28, 3, v3")
        I("v_lshlrev_b32 v30, 4, v3")
        I("v_mul_u32_u24 v3, 12, v3")
        I("v_add_u32 v29, 6400, v28")
        I("s_and_saveexec_b64 s[26:27], vcc")
        I("s_cbranch_execz L1_noload")
        I("s_waitcnt lgkmcnt(0)")
        I(f"global_load_dwordx2 v[4:5], v28, s[40:41] {lf}")
        I(f"global_load_dwordx2 v[6:7], v29, s[40:41] {lf}")
        I("v_add_u32 v31, 12800, v30")
        I("v_add_u32 v27, 9600, v3")
        lds_ = [f"global_load_dwordx2 v[8:9], v28, s[38:39] {lf}", f"global_load_dwordx2 v[10:11], v29, s[38:39] {lf}",
                f"global_load_dwordx4 v[12:15], v30, s[36:37] {lf}", f"global_load_dwordx4 v[16:19], v31, s[36:37] {lf}",
                f"global_load_dwordx3 v[20:22], v3, s[34:35] {lf}", f"global_load_dwordx3 v[24:26], v27, s[34:35] {lf}"]
        for k in ((0, 2, 4, 1, 3, 5) if c.splitw == 2 else range(6)): I(lds_[k])
    else:
        I("s_mul_i32 s48, s2, 800")
        I("v_add_u32 v3, s48, v0")
        I("v_cmp_gt_u32 vcc, s51, v0")
        I("v_lshlrev_b32 v26, 4, v3")
        I("v_lshlrev_b32 v27, 5, v3")
        I("v_mul_u32_u24 v3, 24, v3")
        I("s_and_saveexec_b64 s[26:27], vcc")
        I("s_cbranch_execz L1_noload")
        I("s_waitcnt lgkmcnt(0)")
        l2 = lf if c.ld2_flags is None else c.ld2_flags
        I(f"global_load_dwordx4 v[4:7], v26, s[40:41] {l2}")
        I(f"global_load_dwordx4 v[8:11], v26, s[38:39] {l2}")
        I(f"global_load_dwordx4 v[12:15], v27, s[36:37] {lf}")
        I(f"global_load_dwordx4 v[16:19], v27, s[36:37] offset:16 {lf}")
        I(f"global_load_dwordx4 v[20:23], v3, s[34:35] {lf}")
        I(f"global_load_dwordx2 v[24:25], v3, s[34:35] offset:16 {lf}")
    e.label("L1_noload")
    I("s_mov_b64 exec, -1")
    if c.codepf and c.codeearly:
        I("s_getpc_b64 s[52:53]")
        I(f"s_mov_b32 s54, {c.codepf*1024}")
        I("s_mov_b32 s55, 0x20000")
        I("v_subrev_u32 v72, 768, v0")
        I("v_lshlrev_b32 v72, 7, v72")
        I("s_cmp_lg_u64 vcc, -1")
        I("s_cbranch_scc0 L1_nocpf")
        I("buffer_load_dword v73, v72, s[52:55], 0 offen")
        e.label("L1_nocpf")
    I("s_load_dwordx4 s[80:83], s[0:1], 72")
    I("s_load_dwordx2 s[84:85], s[0:1], 88")
    I("v_lshlrev_b32 v1, 4, v0")
    I("v_lshlrev_b32 v2, 5, v0")
    I("v_readfirstlane_b32 s21, v0")
    I("s_lshr_b32 s21, s21, 6")
    I("s_waitcnt lgkmcnt(0)")
    if c.addtid:
        srd(e, 4, 32, N * 512, w1=f"{16 << 16}", w3=c.tidw3)
    else:
        srd(e, 4, 32, N * 512)
    srd(e, 8, 84, wsbytes)
    srd(e, 12, 80, N * 512)
    srd(e, 16, 42, 2560)
    srd(e, 68, 44, 16384)
    srd(e, 72, 46, 24576)
    srd(e, 76, 82, 256)
    I("s_and_b32 s20, s2, 7")
    I("s_lshr_b32 s31, s2, 3")
    if NWG == 250:
        I("s_min_u32 s22, s20, 2")
        I("s_mul_i32 s20, s20, 31")
        I("s_add_u32 s20, s20, s22")
    else:
        I("s_lshl_b32 s20, s20, 5")
    I("s_add_u32 s20, s20, s31")
    I("s_mov_b32 s22, 0")
    I(f"s_movk_i32 s23, {NCH}")
    I("s_mov_b32 s24, 1")
    I("s_mov_b32 s26, 0xaaaaaaaa")
    I("s_mov_b32 s27, 0xaaaaaaaa")
    I("s_mov_b32 s28, 0x05040100")
    I("s_mov_b32 s29, 0x07060302")
    I("s_mov_b32 s30, 0xffff0000")
    I(f"s_mul_i32 s51, s2, {CSTRIDE}")
    I("s_cmp_ge_u32 s21, 13")
    I("s_cbranch_scc1 L1_aux")
    I(f"s_mov_b32 s46, {H1}")
    I("v_lshl_add_u32 v40, v0, 2, s46")
    I("v_mov_b32 v41, 0")
    I("v_mov_b32 v42, 1")
    I(f"s_movk_i32 s49, {RAW+PAYOFF}")
    I("s_mov_b32 s50, 0x05040302")
    I(f"s_mov_b32 s45, {(TI + 8 - 8*H1) & 0xffffffff}")
    if NWG == 250:
        I("s_mov_b32 s48, -25")
        I("s_movk_i32 s47, 249")
    else:
        I("s_movk_i32 s47, 6249")
        I("s_movk_i32 s48, -6250")
        I("s_mov_b32 s44, 1600210")
        I("v_mov_b32 v43, 65532")
    I("s_cmp_ge_u32 s21, 8")
    I("s_cbranch_scc1 L1_nz")
    I("ds_write_b32 v40, v41")
    I("s_waitcnt lgkmcnt(0)")
    e.label("L1_nz")
    I("s_barrier")
    I("s_and_b64 exec, exec, vcc")
    I(f"s_waitcnt vmcnt({6 if c.coal else 5})")
    stamp(e, c, 1)
    R4 = range(4)
    if NWG == 250:
        for i in R4: I(f"v_mul_u32_u24 v{44+i}, 0x147b, v{4+i}")
        for i in R4: I(f"v_lshrrev_b32 v{44+i}, 17, v{44+i}")
        for i in R4: I(f"v_cmp_lt_u32 s[{32+2*i}:{33+2*i}], s47, v{44+i}")
        for i in R4: I(f"v_cndmask_b32 v{36+i}, 0, 1, s[{32+2*i}:{33+2*i}]")
        for i in R4:
            I(f"v_sub_u32 v{48+i}, v{44+i}, v{36+i}")
            I(f"v_mad_u32_u24 v{44+i}, v{36+i}, 6, v{44+i}")
        for i in R4:
            I(f"v_mad_i32_i24 v{4+i}, v{48+i}, s48, v{4+i}")
            I(f"v_lshl_add_u32 v{44+i}, v{44+i}, 2, s46")
    else:
        for i in R4: I(f"v_cmp_lt_u32 s[{32+2*i}:{33+2*i}], s47, v{4+i}")
        for i in R4: I(f"v_cndmask_b32 v{36+i}, 0, 1, s[{32+2*i}:{33+2*i}]")
        for i in R4: I(f"v_mad_i32_i24 v{4+i}, v{36+i}, s48, v{4+i}")
        for i in R4: I(f"v_mul_u32_u24 v{44+i}, 0xa7c, v{4+i}")
        for i in R4: I(f"v_lshrrev_b32 v{44+i}, 16, v{44+i}")
        for i in R4: I(f"v_mad_u32_u24 v{48+i}, v{44+i}, s44, v43")
        for i in R4:
            I(f"v_lshrrev_b32 v{48+i}, 16, v{48+i}")
            I(f"v_mad_u32_u24 v{4+i}, v{36+i}, 25, v{4+i}")
        for i in R4:
            I(f"v_sub_u32 v{4+i}, v{4+i}, v{48+i}")
            I(f"v_lshl_add_u32 v{44+i}, v{36+i}, 8, v{44+i}")
        for i in R4: I(f"v_lshl_add_u32 v{44+i}, v{44+i}, 2, s46")
    for i in R4: I(f"ds_add_rtn_u32 v{36+i}, v{44+i}, v42")
    for i in R4: I(f"v_lshl_add_u32 v{48+i}, v{44+i}, 3, s45")
    for i in R4: I(f"v_lshlrev_b32 v{4+i}, 2, v{4+i}")
    I("s_waitcnt lgkmcnt(0)")
    I("s_barrier")
    for i in R4: I(f"v_min_u32 v{28+i}, {KIN}, v{36+i}")
    for i in R4: I(f"v_add_u32 v{48+i}, v{48+i}, v{28+i}")
    I("s_cmp_eq_u32 s21, 0")
    I("s_cbranch_scc1 L1_scan")
    for i in R4: I(f"ds_write_b8 v{48+i}, v{4+i}")
    I("s_branch L1_noscan")
    e.label("L1_scan")
    I("v_add_u32 v60, s46, v2")
    I("ds_read_b128 v[52:55], v60")
    I("ds_read_b128 v[56:59], v60 offset:16")
    I("s_waitcnt lgkmcnt(0)")
    I("v_mov_b32 v64, 0")
    I("v_mov_b32 v65, v52")
    for k in range(2, 8):
        I(f"v_add_u32 v{64+k}, v{63+k}, v{51+k}")
    I("v_add_u32 v61, v71, v59")
    I("v_max3_u32 v63, v52, v53, v54")
    I("v_max3_u32 v63, v63, v55, v56")
    I("v_max3_u32 v63, v63, v57, v58")
    I("v_max_u32 v63, v63, v59")
    I(f"v_cmp_lt_u32 s[42:43], {KIN}, v63")
    I("v_mov_b32 v62, v61")
    scan64(e, 62)
    I("v_sub_u32 v62, v62, v61")
    for k in range(8):
        I(f"v_add_u32 v{64+k}, v{64+k}, v62")
    I("ds_write_b128 v60, v[64:67] offset:2048")
    I("ds_write_b128 v60, v[68:71] offset:2064")
    I("s_cmp_lg_u64 s[42:43], 0")
    I("s_cselect_b32 s42, 1, 0")
    I("v_mov_b32 v63, s42")
    I(f"ds_write_b32 v41, v63 offset:{NONCE+8}")
    for i in R4: I(f"ds_write_b8 v{48+i}, v{4+i}")
    I("s_waitcnt lgkmcnt(4)")
    e.label("L1_noscan")
    I("s_barrier")
    for i in R4: I(f"ds_read_b32 v{44+i}, v{44+i} offset:2048")
    I(f"ds_read_b32 v28, v41 offset:{NONCE+8}")
    I("s_waitcnt lgkmcnt(0)")
    I("v_readfirstlane_b32 s42, v28")
    for i in R4:
        I(f"v_add_u32 v{36+i}, v{36+i}, v{44+i}")
        I(f"v_lshl_add_u32 v{44+i}, v{36+i}, 4, s49")
    I("s_cmp_eq_u32 s42, 0")
    I("s_cbranch_scc1 L1_nokeys")
    for i in R4:
        I(f"ds_write_b8 v{36+i}, v{4+i} offset:{RAW+KEYOFF}")
    e.label("L1_nokeys")
    if not c.splitw:
        r3 = 24 if c.coal else 23
        I("s_waitcnt vmcnt(1)")
        I("v_mov_b32 v28, v20")
        I("v_perm_b32 v29, v8, v21, s28")
        I("ds_write2_b64 v44, v[12:13], v[28:29] offset0:0 offset1:1")
        I("v_alignbit_b32 v30, v22, v21, 16")
        I("v_perm_b32 v31, v9, v22, s50")
        I("ds_write2_b64 v45, v[14:15], v[30:31] offset0:0 offset1:1")
        I("s_waitcnt vmcnt(0)")
        stamp(e, c, 2)
        I(f"v_mov_b32 v32, v{r3}")
        I(f"v_perm_b32 v33, v10, v{r3+1}, s28")
        I("ds_write2_b64 v46, v[16:17], v[32:33] offset0:0 offset1:1")
        I(f"v_alignbit_b32 v34, v{r3+2}, v{r3+1}, 16")
        I(f"v_perm_b32 v35, v11, v{r3+2}, s50")
        I("ds_write2_b64 v47, v[18:19], v[34:35] offset0:0 offset1:1")
    elif c.splitw == 2:
        I("s_waitcnt vmcnt(3)")
        I("v_mov_b32 v28, v12"); I("v_mov_b32 v29, v13"); I("v_mov_b32 v30, v20")
        I("v_perm_b32 v31, v8, v21, s28")
        I("ds_write_b128 v44, v[28:31]")
        I("v_mov_b32 v12, v14"); I("v_mov_b32 v13, v15")
        I("v_alignbit_b32 v14, v22, v21, 16")
        I("v_perm_b32 v15, v9, v22, s50")
        I("ds_write_b128 v45, v[12:15]")
        I("s_waitcnt vmcnt(0)")
        stamp(e, c, 2)
        I("v_mov_b32 v32, v16"); I("v_mov_b32 v33, v17"); I("v_mov_b32 v34, v24")
        I("v_perm_b32 v35, v10, v25, s28")
        I("ds_write_b128 v46, v[32:35]")
        I("v_mov_b32 v16, v18"); I("v_mov_b32 v17, v19")
        I("v_alignbit_b32 v18, v26, v25, 16")
        I("v_perm_b32 v19, v11, v26, s50")
        I("ds_write_b128 v47, v[16:19]")
    else:
        I("s_waitcnt vmcnt(2)")
        for i in R4:
            I(f"ds_write_b64 v{44+i}, v[{12+2*i}:{13+2*i}]")
        I("s_waitcnt vmcnt(1)")
        I("v_mov_b32 v28, v20")
        I("v_perm_b32 v29, v8, v21, s28")
        I("ds_write_b64 v44, v[28:29] offset:8")
        I("v_alignbit_b32 v30, v22, v21, 16")
        I("v_perm_b32 v31, v9, v22, s50")
        I("ds_write_b64 v45, v[30:31] offset:8")
        I("s_waitcnt vmcnt(0)")
        stamp(e, c, 2)
        r3 = 24 if c.coal else 23
        I(f"v_mov_b32 v32, v{r3}")
        I(f"v_perm_b32 v33, v10, v{r3+1}, s28")
        I("ds_write_b64 v46, v[32:33] offset:8")
        I(f"v_alignbit_b32 v34, v{r3+2}, v{r3+1}, 16")
        I(f"v_perm_b32 v35, v11, v{r3+2}, s50")
        I("ds_write_b64 v47, v[34:35] offset:8")
    I("s_mov_b64 exec, -1")
    I("s_waitcnt lgkmcnt(0)")
    I("s_branch L1_copy")
    e.label("L1_aux")
    I("v_subrev_u32 v64, 832, v0")
    I("v_lshlrev_b32 v65, 4, v64")
    if c.tlbpf:
        I("v_and_b32 v74, 63, v0")
        I(f"s_mov_b32 s42, {WSBYTES // 64 // 128 * 128}")
        I("v_mul_u32_u24 v75, s42, v74")
        I(f"s_mov_b32 s42, {N * 512 // 64 // 128 * 128}")
        I("v_mul_u32_u24 v74, s42, v74")
        I("s_cmp_lg_u32 s21, 14")
        I("s_cbranch_scc1 L1_notlb")
        if c.tlbpf & 1: I("buffer_load_dword v76, v75, s[8:11], 0 offen")
        if c.tlbpf & 2: I("buffer_load_dword v77, v74, s[4:7], 0 offen")
        if c.tlbpf & 4: I("buffer_load_dword v78, v74, s[12:15], 0 offen")
        e.label("L1_notlb")
    if c.codepf and not c.codeearly:
        I(f"s_cmp_ge_u32 s2, {c.cpfwg}")
        I("s_cbranch_scc1 L1_nocpf")
        I("s_getpc_b64 s[40:41]")
        e.label("L_cpf")
        I("s_mov_b32 s42, L_codeend-L_cpf")
        I("s_mov_b32 s43, 0x20000")
        I("v_lshlrev_b32 v72, 7, v64")
        I("buffer_load_dword v73, v72, s[40:43], 0 offen")
        e.label("L1_nocpf")
    I("s_cmp_lg_u32 s21, 15")
    I("s_cbranch_scc1 L1_notag")
    I("s_cmp_lg_u32 s2, 0")
    I("s_cbranch_scc1 L1_notag")
    I("s_memrealtime s[44:45]")
    I("s_waitcnt lgkmcnt(0)")
    I("s_and_b32 s45, s45, 0x7f")
    I("s_or_b32 s45, s45, 0x80")
    I("s_lshl_b32 s45, s45, 24")
    I("v_mov_b32 v68, s44")
    I("v_mov_b32 v69, s45")
    I("s_mov_b64 exec, 1")
    I("buffer_store_dwordx2 v[68:69], off, s[76:79], 0 sc1")
    I("s_mov_b64 exec, -1")
    e.label("L1_notag")
    I("s_cmp_lg_u32 s21, 13")
    I("s_cbranch_scc1 L1_nozero")
    for k in range(4): I(f"v_mov_b32 v{4+k}, 0")
    I("ds_write_b128 v65, v[4:7]")
    I("ds_write_b128 v65, v[4:7] offset:1024")
    e.label("L1_nozero")
    I("s_barrier"); I("s_barrier"); I("s_barrier")
    I("s_cmp_lg_u32 s21, 15")
    I("s_cbranch_scc1 L1_notag2")
    I("s_mov_b32 s44, 0")
    e.label("L1_tagpoll")
    I("buffer_load_dwordx2 v[68:69], off, s[76:79], 0 sc1")
    I("s_add_u32 s44, s44, 1")
    I("s_waitcnt vmcnt(0)")
    I("v_readfirstlane_b32 s45, v69")
    e.nop(1)
    I("s_cmp_lg_u32 s45, 0")
    I("s_cbranch_scc1 L1_tagok")
    I("s_cmp_lt_u32 s44, 0x100000")
    I("s_cbranch_scc1 L1_tagpoll")
    e.label("L1_tagok")
    I("v_mov_b32 v70, 0")
    I("s_mov_b64 exec, 1")
    I(f"ds_write_b64 v70, v[68:69] offset:{NONCE}")
    I("s_mov_b64 exec, -1")
    e.label("L1_notag2")
    def w_loads():
        for k in range(8):
            I(f"s_movk_i32 s46, {k*3072}")
            I(f"buffer_load_dwordx4 v[{28+4*k}:{31+4*k}], v65, s[72:75], s46 offen")
        for k in range(6):
            I(f"s_movk_i32 s46, {k*3072}")
            I(f"buffer_load_dwordx4 v[{72+4*k}:{75+4*k}], v65, s[68:71], s46 offen")
    if not c.wlate: w_loads()
    prefetch_x(e, c.pfx_lines, 60, 64, 192, 31, 0, 4)
    I("s_waitcnt lgkmcnt(0)")
    e.flush()
    e.label("L1_copy")
    I("s_barrier")
    stamp(e, c, 3)
    I(f"ds_read_b128 v[8:11], v1 offset:{RAW}")
    I(f"ds_read_b128 v[12:15], v1 offset:{RAW+16384}")
    I(f"v_add_u32 v25, {TI}, v1")
    I(f"ds_read_b128 v[16:19], v1 offset:{RAW+32768}")
    I(f"ds_read_b128 v[20:23], v1 offset:{RAW+49152}")
    I("ds_read_b128 v[100:103], v25")
    I("v_lshrrev_b32 v25, 1, v0")
    I("v_lshlrev_b32 v25, 2, v25")
    I(f"v_add_u32 v25, {H1}, v25")
    I("ds_read2st64_b32 v[104:105], v25 offset0:0 offset1:8")
    I("ds_read_b32 v106, v25 offset:1024")
    I(f"v_mov_b32 v25, {H1+2048+1024}")
    I("ds_read_b32 v98, v25")
    I("v_mov_b32 v25, 0")
    I(f"ds_read_b64 v[96:97], v25 offset:{NONCE}")
    I("v_add_u32 v2, 16384, v1")
    I("v_add_u32 v3, 32768, v1")
    I("v_add_u32 v24, 49152, v1")
    I("s_movk_i32 s48, 328")
    I("v_cmp_gt_u32 s[92:93], s48, v0")
    I("s_waitcnt lgkmcnt(8)")
    I(f"buffer_store_dwordx4 v[8:11], v1, s[8:11], s51 offen {sf}")
    I("s_waitcnt lgkmcnt(7)")
    I(f"buffer_store_dwordx4 v[12:15], v2, s[8:11], s51 offen {sf}")
    I("s_waitcnt lgkmcnt(0)")
    I("v_readfirstlane_b32 s86, v96")
    I("v_readfirstlane_b32 s87, v97")
    I("v_readfirstlane_b32 s88, v98")
    I("v_lshl_or_b32 v104, v104, 12, v105")
    I("v_or_b32 v97, v97, v104")
    I(f"v_cndmask_b32 v100, v97, v100, {ODD}")
    I(f"v_cndmask_b32 v101, v96, v101, {ODD}")
    I("v_lshl_or_b32 v106, v96, 12, v106")
    I(f"v_cndmask_b32 v103, v103, v106, {ODD}")
    I("s_lshl_b32 s3, s86, 12")
    I(f"s_add_u32 s49, s51, {TABOFF}")
    I(f"s_cmp_gt_u32 s88, {(32768-PAYOFF)//16}")
    I("s_cselect_b32 s25, 0, 8")
    stamp(e, c, 4)
    def handoff(tag, mid):
        I("s_waitcnt vmcnt(0)")
        stamp(e, c, 6)
        I("s_barrier")
        I("s_cmp_ge_u32 s21, s25")
        I(f"s_cbranch_scc1 L_noearly{tag}")
        I(f"buffer_store_dwordx4 v[100:103], v1, s[8:11], s49 offen {sf}")
        e.label(f"L_noearly{tag}")
        I(f"buffer_store_dwordx4 v[16:19], v3, s[8:11], s51 offen {sf}")
        I("s_mov_b64 exec, s[92:93]")
        I(f"s_cbranch_execz L_stskip{tag}")
        I(f"buffer_store_dwordx4 v[20:23], v24, s[8:11], s51 offen {sf}")
        e.label(f"L_stskip{tag}")
        I("s_mov_b64 exec, -1")
        mid()
        I("s_waitcnt vmcnt(0) lgkmcnt(0)")
        stamp(e, c, 5)
        I("s_barrier")
        I("s_cmp_lt_u32 s21, s25")
        I(f"s_cbranch_scc1 L_nolate{tag}")
        I(f"buffer_store_dwordx4 v[100:103], v1, s[8:11], s49 offen {sf}")
        e.label(f"L_nolate{tag}")
    I("s_cmp_lt_u32 s21, 4")
    e.branch("s_cbranch_scc1 L2_gemm")

    if c.wlate:
        I("s_cmp_lt_u32 s21, 13")
        I("s_cbranch_scc1 L2_noWl")
        w_loads()
        e.label("L2_noWl")
    VLANE, VINFO, VNEXT = 108, 109, 110
    VLOFF, VMASK, VOW, VOR, VSCRW, VTRA, VWR, VL16 = 111, 112, 113, 114, 115, 116, 117, 118
    VT0, VT1, VONE, VSEL = 119, 120, 121, 122
    VJ, VCH, VSEG = 123, 124, 125
    I(f"v_and_b32 v{VLANE}, 63, v0")
    I(f"v_mov_b32 v{VONE}, 1")
    I(f"v_mov_b32 v{VMASK}, s30")
    I(f"v_lshrrev_b32 v{VT1}, 4, v{VLANE}")
    I(f"v_lshlrev_b32 v{VL16}, 4, v{VLANE}")
    if c.addtid:
        I(f"v_and_b32 v{VT0}, 3, v{VLANE}")
        I(f"v_lshlrev_b32 v{VLOFF}, 4, v{VT0}")
    else:
        I(f"v_and_b32 v{VT0}, 15, v{VLANE}")
        I(f"v_lshlrev_b32 v{VLOFF}, 4, v{VT0}")
    I("s_sub_u32 s43, s21, 4")
    I(f"s_mul_i32 s43, s43, {SSTR}")
    I(f"s_add_u32 s43, s43, {SCR}")
    I(f"v_add_u32 v{VSCRW}, s43, v{VL16}")
    I(f"v_lshlrev_b32 v{VOR}, 5, v{VT1}")
    I(f"v_add_u32 v{VOR}, s43, v{VOR}")
    I(f"v_lshlrev_b32 v{VTRA}, 4, v{VT1}")
    I(f"v_bfe_u32 v{VT1}, v{VLANE}, 2, 2")
    I(f"v_lshl_add_u32 v{VTRA}, v{VT1}, 6, v{VTRA}")
    I(f"v_and_b32 v{VT1}, 1, v{VLANE}")
    I(f"v_lshl_add_u32 v{VTRA}, v{VT1}, 3, v{VTRA}")
    I(f"v_bfe_u32 v{VT1}, v{VLANE}, 1, 1")
    I(f"v_mul_u32_u24 v{VT1}, {PL1}, v{VT1}")
    I(f"v_add3_u32 v{VTRA}, v{VTRA}, v{VT1}, s43")
    I(f"v_and_b32 v{VOW}, 32, v{VLANE}")
    I(f"v_and_b32 v{VT1}, 3, v{VLANE}")
    I(f"v_lshl_add_u32 v{VOW}, v{VT1}, 3, v{VOW}")
    I(f"v_bfe_u32 v{VT1}, v{VLANE}, 2, 3")
    I(f"v_add_u32 v{VOW}, v{VOW}, v{VT1}")
    I(f"v_lshlrev_b32 v{VOW}, 2, v{VOW}")
    I(f"v_add_u32 v{VOW}, s43, v{VOW}")
    I(f"v_add_u32 v{VWR}, {WRAD}, v{VL16}")
    I("s_sub_u32 s42, s21, 4")
    I("s_mul_i32 s83, s42, 24")
    I(f"v_and_b32 v{VJ}, 7, v{VLANE}")
    I(f"v_lshrrev_b32 v{VSEG}, 3, v{VLANE}")
    I(f"s_mov_b32 s42, {CSTRIDE}")
    I(f"v_mul_u32_u24 v{VCH}, s42, v{VSEG}")
    I(f"v_lshlrev_b32 v{VSEG}, 5, v{VSEG}")
    I(f"v_add_u32 v{VSEG}, s43, v{VSEG}")
    I(f"v_or_b32 v{VSEL}, 0x0c0c0c00, v{VJ}")
    NP, NW = 3, 3
    I(f"s_mul_i32 s79, s83, {CSTRIDE}")
    for p in range(NP):
        I(f"s_add_u32 s{74+p}, s79, {8*p*CSTRIDE+PAYOFF}")
        I(f"s_add_u32 s{80+p}, s79, {8*p*CSTRIDE+KEYOFF}")
    I("s_mov_b32 s88, s20")
    I("s_mov_b32 s89, 0")
    I(f"s_movk_i32 s48, {HN}")
    def w_stage():
        I("s_cmp_lt_u32 s21, 13")
        I("s_cbranch_scc1 L2_noW")
        I(f"v_add_u32 v65, {T}, v65")
        for k in range(8):
            I(f"ds_write_b128 v65, v[{28+4*k}:{31+4*k}] offset:{16384 + k*3072}")
        for k in range(5):
            I(f"ds_write_b128 v65, v[{72+4*k}:{75+4*k}] offset:{k*3072}")
        I("s_cmp_lg_u32 s21, 13")
        I("s_cbranch_scc1 L2_noW")
        I(f"ds_write_b128 v65, v[92:95] offset:{5*3072}")
        e.label("L2_noW")
    handoff("g", w_stage)
    PAY, KEY, RNK, CNTR, KAD, PAD, X, EN = 0, 36, 45, 54, 57, 60, 64, 72
    MSK = 50
    e.label("L2_g_round")
    I(f"v_lshrrev_b32 v{X}, 1, v{VLANE}")
    I(f"s_sub_u32 s42, {NCH}, s83")
    I("s_min_i32 s42, s42, 24")
    I(f"v_cmp_gt_i32 s[46:47], s42, v{X}")
    I(f"s_mov_b32 s42, {CSTRIDE}")
    I(f"v_mul_u32_u24 v{X+1}, s42, v{X}")
    I(f"v_and_b32 v{X+2}, 16, v{VL16}")
    I(f"v_add_u32 v{X+1}, v{X+1}, v{X+2}")
    I(f"v_cndmask_b32 v{X+1}, 2.0, v{X+1}, s[46:47]")
    I("s_lshl_b32 s43, s88, 5")
    I(f"s_add_u32 s43, s43, {TABOFF}")
    I("s_add_u32 s43, s43, s79")
    I("s_mov_b32 s44, 0")
    I(f"v_lshl_add_u32 v{VT1}, v{VJ}, 4, v{VCH}")
    e.label("L2_poll")
    I(f"buffer_load_dwordx4 v[{EN}:{EN+3}], v{X+1}, s[8:11], s43 offen sc1")
    I("s_add_u32 s44, s44, 1")
    I("s_waitcnt vmcnt(0)")
    tag_bad(e, X+2, EN, X+3, ODD)
    I(f"v_cmp_ne_u32 vcc, 0, v{X+2}")
    e.nop(2)
    I("s_and_b64 vcc, vcc, s[46:47]")
    I("s_cbranch_scc0 L2_poll_ok")
    I(f"s_sleep {c.psleep}")
    I("s_cmp_lt_u32 s44, 0x100000")
    I("s_cbranch_scc1 L2_poll")
    e.label("L2_poll_ok")
    I("s_cmp_lg_u32 s23, 1")
    I("s_cbranch_scc1 L2_nofilter")
    I("s_sub_u32 s42, s22, s83")
    I(f"v_cmp_eq_u32 vcc, s42, v{X}")
    I(f"v_cndmask_b32 v{EN}, 0, v{EN}, vcc")
    e.label("L2_nofilter")
    I(f"ds_write_b128 v{VSCRW}, v[{EN}:{EN+3}]")
    I(f"v_add_u32 v{X+1}, 8, v{VJ}")
    stamp(e, c, 7)
    def msk(p, w): return f"s[{MSK+4*p+2*w}:{MSK+4*p+2*w+1}]" if w < 2 else f"s[{MSK+12+2*p}:{MSK+13+2*p}]"
    def pay(p, w): return f"v[{PAY+12*p+4*w}:{PAY+12*p+4*w+3}]"
    for p in range(NP):
        I(f"ds_read_b128 v[{EN+8*p}:{EN+8*p+3}], v{VSEG} offset:{256*p}")
        I(f"ds_read_b128 v[{EN+8*p+4}:{EN+8*p+7}], v{VSEG} offset:{256*p+16}")
    for p in range(NP):
        en, cnt = EN + 8*p, CNTR + p
        if p == 0: I("s_waitcnt lgkmcnt(0)")
        I(f"v_bfe_u32 v{cnt}, v{en}, 12, 12")
        I(f"v_and_b32 v{PAD+p}, 0xfff, v{en}")
        I(f"v_cmp_lt_u32 {msk(p,0)}, v{VJ}, v{cnt}")
        I(f"v_cmp_lt_u32 {msk(p,1)}, v{X+1}, v{cnt}")
        I(f"v_perm_b32 v{KEY+3*p}, v{en+3}, v{en+2}, v{VSEL}")
        I(f"v_perm_b32 v{KEY+3*p+1}, v{en+5}, v{en+4}, v{VSEL}")
        I(f"v_lshl_add_u32 v{PAD+p}, v{PAD+p}, 4, v{VT1}")
        for w in range(2):
            I(f"s_mov_b64 exec, {msk(p,w)}")
            I(f"s_cbranch_execz L2_nop{p}")
            I(f"ds_add_rtn_u32 v{RNK+3*p+w}, v{KEY+3*p+w}, v{VONE} offset:{HIST}")
            I(f"buffer_load_dwordx4 {pay(p,w)}, v{PAD+p}, s[8:11], s{74+p} offen offset:{128*w} {rf}")
        e.label(f"L2_nop{p}")
        I("s_mov_b64 exec, -1")
    I(f"v_max3_u32 v{VT0}, v{CNTR}, v{CNTR+1}, v{CNTR+2}")
    I(f"v_cmp_lt_u32 vcc, 16, v{VT0}")
    I("s_mov_b32 s25, 0")
    e.nop(1)
    I("s_cmp_eq_u64 vcc, 0")
    I("s_cbranch_scc1 L2_noextraA")
    I("s_mov_b32 s25, 1")
    I(f"v_add_u32 v{X+2}, 16, v{VJ}")
    for p in range(NP):
        en = EN + 8*p
        I(f"v_min_u32 v{X+3}, {KIN}, v{CNTR+p}")
        I(f"v_cmp_lt_u32 {msk(p,2)}, v{X+2}, v{X+3}")
        I(f"v_perm_b32 v{KEY+3*p+2}, v{en+6}, v{en+6}, v{VSEL}")
        I(f"v_sub_u32 v{KAD+p}, v{PAD+p}, v{VCH}")
        I(f"v_lshrrev_b32 v{KAD+p}, 4, v{KAD+p}")
        I(f"v_add_u32 v{KAD+p}, v{KAD+p}, v{VCH}")
        e.flush()
        I(f"s_mov_b64 exec, {msk(p,2)}")
        I(f"ds_add_rtn_u32 v{RNK+3*p+2}, v{KEY+3*p+2}, v{VONE} offset:{HIST}")
        I(f"buffer_load_dwordx4 {pay(p,2)}, v{PAD+p}, s[8:11], s{74+p} offen offset:256 {rf}")
        I("s_mov_b64 exec, -1")

    def extra_count(tag, first, vj, vkad, vcnt, skey, vone, hist, y):
        I(f"v_add_u32 v{y}, {first}, v{vj}")
        I(f"v_add_u32 v{y+1}, {first}, v{vkad}")
        e.label(f"L_xa{tag}")
        I(f"v_cmp_lt_u32 vcc, v{y}, v{vcnt}")
        I("s_and_saveexec_b64 s[44:45], vcc")
        e.branch(f"s_cbranch_execz L_xa{tag}_done")
        I(f"buffer_load_ubyte v{y+2}, v{y+1}, s[8:11], s{skey} offen {rf}")
        I("s_waitcnt vmcnt(0)")
        I(f"ds_add_u32 v{y+2}, v{vone} offset:{hist}")
        I("s_mov_b64 exec, -1")
        I(f"v_add_u32 v{y}, 8, v{y}")
        I(f"v_add_u32 v{y+1}, 8, v{y+1}")
        e.branch(f"s_branch L_xa{tag}")
        e.label(f"L_xa{tag}_done")
        I("s_mov_b64 exec, -1")
    def extra_move(tag, first, vj, vkad, vpad, vcnt, skey, spay, vone, cur, vbase, y, d):
        I(f"v_add_u32 v{y}, {first}, v{vj}")
        I(f"v_add_u32 v{y+1}, {first}, v{vkad}")
        I(f"v_add_u32 v{vpad}, {16*first}, v{vpad}")
        e.label(f"L_xb{tag}")
        I(f"v_cmp_lt_u32 vcc, v{y}, v{vcnt}")
        I("s_and_saveexec_b64 s[44:45], vcc")
        e.branch(f"s_cbranch_execz L_xb{tag}_done")
        I(f"buffer_load_ubyte v{y+2}, v{y+1}, s[8:11], s{skey} offen {rf}")
        I(f"buffer_load_dwordx4 v[{d}:{d+3}], v{vpad}, s[8:11], s{spay} offen {rf}")
        I("s_waitcnt vmcnt(0)")
        I(f"ds_add_rtn_u32 v{y+3}, v{y+2}, v{vone} offset:{cur}")
        I("s_mov_b64 exec, -1")
        I(f"ds_bpermute_b32 v{y+2}, v{y+2}, v{vbase}")
        I("s_waitcnt lgkmcnt(0)")
        I(f"v_add_lshl_u32 v{y+2}, v{y+2}, v{y+3}, 4")
        I("s_mov_b64 exec, vcc")
        I(f"ds_write_b128 v{y+2}, v[{d}:{d+3}] offset:{RAW}")
        I("s_mov_b64 exec, -1")
        I(f"v_add_u32 v{y}, 8, v{y}")
        I(f"v_add_u32 v{y+1}, 8, v{y+1}")
        I(f"v_add_u32 v{vpad}, 128, v{vpad}")
        e.branch(f"s_branch L_xb{tag}")
        e.label(f"L_xb{tag}_done")
        I("s_mov_b64 exec, -1")
    for p in range(NP):
        extra_count(f"a{p}", KIN, VJ, KAD+p, CNTR+p, 80+p, VONE, HIST2, X)
    e.label("L2_noextraA")
    I("s_waitcnt lgkmcnt(0)")
    stamp(e, c, 14)
    I("s_barrier")
    stamp(e, c, 15)
    C1, CT, BS = X + 4, X + 5, X + 6
    I(f"v_lshlrev_b32 v{VT0}, 2, v{VLANE}")
    I(f"ds_read_b32 v{C1}, v{VT0} offset:{HIST}")
    I(f"ds_read_b32 v{CT}, v{VT0} offset:{HIST2}")
    I("s_waitcnt lgkmcnt(0)")
    I(f"v_add_u32 v{CT}, v{C1}, v{CT}")
    I(f"v_mov_b32 v{BS}, v{CT}")
    scan64(e, BS)
    I(f"v_readlane_b32 s46, v{BS}, 63")
    I(f"v_sub_u32 v{BS}, v{BS}, v{CT}")
    I(f"s_cmp_eq_u32 s23, 1")
    I(f"s_cselect_b32 s42, -1, {CAP}")
    for p in range(NP):
        for w in range(2):
            I(f"ds_bpermute_b32 v{KEY+3*p+w}, v{KEY+3*p+w}, v{BS}")
    I(f"v_lshl_or_b32 v{VINFO}, v{CT}, 16, v{BS}")
    I(f"s_cmp_gt_u32 s46, s42")
    I("s_cbranch_scc1 L2_g_overflow")
    I("s_cmp_lg_u32 s21, 5")
    I("s_cbranch_scc1 L2_noinfo")
    I(f"s_mov_b64 exec, {(1 << HN) - 1}")
    I(f"ds_write_b32 v{VT0}, v{VINFO} offset:{INFO}")
    I("s_mov_b64 exec, -1")
    e.label("L2_noinfo")
    I("s_cmp_lg_u32 s21, 4")
    I("s_cbranch_scc1 L2_noguard")
    I("s_lshl_b32 s46, s46, 4")
    for k in range(4): I(f"v_mov_b32 v{EN+k}, 0")
    I(f"v_add_u32 v{VT0}, s46, v{VL16}")
    I(f"ds_write_b128 v{VT0}, v[{EN}:{EN+3}] offset:{RAW}")
    e.label("L2_noguard")
    I("s_waitcnt lgkmcnt(0)")
    for p in range(NP):
        for w in range(2):
            I(f"v_add_lshl_u32 v{KEY+3*p+w}, v{KEY+3*p+w}, v{RNK+3*p+w}, 4")
    stamp(e, c, 27)
    I("s_waitcnt vmcnt(0)")
    stamp(e, c, 9)
    for p in range(NP):
        for w in range(2):
            I(f"s_mov_b64 exec, {msk(p,w)}")
            I(f"ds_write_b128 v{KEY+3*p+w}, {pay(p,w)} offset:{RAW}")
    I("s_mov_b64 exec, -1")
    I("s_cmp_eq_u32 s25, 0")
    I("s_cbranch_scc1 L2_noextraB")
    for p in range(NP):
        I(f"ds_bpermute_b32 v{KEY+3*p+2}, v{KEY+3*p+2}, v{BS}")
    I("s_waitcnt lgkmcnt(0)")
    for p in range(NP):
        I(f"v_add_lshl_u32 v{KEY+3*p+2}, v{KEY+3*p+2}, v{RNK+3*p+2}, 4")
        I(f"s_mov_b64 exec, {msk(p,2)}")
        I(f"ds_write_b128 v{KEY+3*p+2}, {pay(p,2)} offset:{RAW}")
        I("s_mov_b64 exec, -1")
    I(f"v_add_u32 v{BS}, v{BS}, v{C1}")
    for p in range(NP):
        extra_move(f"a{p}", KIN, VJ, KAD+p, PAD+p, CNTR+p, 80+p, 74+p, VONE, CUR2, BS, X, EN)
    e.label("L2_noextraB")
    I("s_waitcnt lgkmcnt(0)")
    stamp(e, c, 28)
    I("s_barrier")
    I(f"ds_read_b32 v{VT0}, v{VL16} offset:{TOTB}")
    I("s_mov_b64 exec, 1")
    I(f"ds_add_rtn_u32 v{VNEXT}, v{VL16}, v{VONE} offset:{NEXT}")
    I("s_mov_b64 exec, -1")
    I("s_waitcnt lgkmcnt(0)")
    I(f"v_readfirstlane_b32 s42, v{VT0}")
    e.nop(1)
    I(f"s_cmp_gt_u32 s42, {CAP}")
    I("s_cbranch_scc1 L2_g_overflow")
    stamp(e, c, 10)
    stamp(e, c, 24, "s_memtime")
    if c.prio_g: I(f"s_setprio {c.prio_g}")
    gather_loop(e, c, locals())
    e.label("L2_g_done")
    stamp(e, c, 11)
    stamp(e, c, 25, "s_memtime")
    I("s_cmp_lg_u32 s24, 0")
    e.branch("s_cbranch_scc1 L2_g_exit")
    I("s_add_u32 s89, s89, 1")
    I("s_branch L2_g_slow")
    e.label("L2_g_overflow")
    I("s_mov_b32 s89, 0")
    I("s_mov_b32 s23, 1")
    I("s_movk_i32 s48, 64")
    e.label("L2_g_slow")
    I("s_waitcnt vmcnt(0) lgkmcnt(0)")
    I("s_barrier")
    I("s_lshr_b32 s22, s89, 1")
    I("s_and_b32 s88, s89, 1")
    I("s_lshl_b32 s88, s88, 8")
    I("s_add_u32 s88, s88, s20")
    I(f"s_cmp_eq_u32 s89, {2*NCH-1}")
    I("s_cselect_b32 s24, 1, 0")
    I("s_barrier")
    e.branch("s_branch L2_g_round")
    e.label("L2_g_exit")
    stamp_store(e, c, 90)
    I("s_endpgm")

    e.label("L2_gemm")
    W, G, TA, TF = 0, 40, 104, 108
    X0, X1 = 124, 125
    I("v_and_b32 v104, 63, v0")
    I("v_lshlrev_b32 v105, 4, v104")
    lut = 0
    for jp in range(4):
        for blk in range(4):
            p, i, s = path_of(jp, blk)
            lut |= (p | (8 if s < 0 else 0)) << (4 * (jp * 4 + blk))
    I(f"s_mov_b32 s44, {lut & 0xffffffff}")
    I(f"s_mov_b32 s45, {lut >> 32}")
    for h in range(2):
        I("v_lshrrev_b32 v106, 4, v104")
        I("v_bfe_u32 v107, v104, 3, 1")
        I("v_lshl_add_u32 v106, v106, 2, v107")
        I(f"v_add_lshl_u32 v106, v106, {2*h}, 2")
        I(f"v_lshrrev_b64 v[108:109], v106, s[44:45]")
        I(f"v_and_b32 v106, 7, v108")
        I(f"v_and_b32 v{110+h}, 8, v108")
        I(f"v_lshlrev_b32 v{110+h}, 28, v{110+h}")
        I("v_and_b32 v107, 7, v104")
        I("v_lshlrev_b32 v107, 3, v107")
        I("v_lshl_add_u32 v106, v106, 6, v107")
        I("v_add_u32 v106, s21, v106")
        I(f"v_lshlrev_b32 v{112+h}, 1, v106")
    I("v_mov_b32 v117, v0")
    handoff("m", lambda: None)
    if c.pfx2_pos == 0: prefetch_x(e, c.pfx2_lines, 114, 117, 256, 31, 0, 4, c.pfx_lines)
    WT = 80
    for k in range(4):
        h, qo = k >> 1, (k & 1) * 4
        for d in range(4):
            I(f"buffer_load_ushort v{WT+4*k+d}, v{112+h}, s[16:19], 0 offen offset:{d*640+qo*2}")
    I("v_lshrrev_b32 v106, 4, v104")
    I("v_lshlrev_b32 v106, 10, v106")
    I("v_bfe_u32 v107, v104, 2, 2")
    I("v_lshl_add_u32 v106, v107, 7, v106")
    I("v_and_b32 v107, 3, v104")
    I("v_lshl_add_u32 v106, v107, 3, v106")
    I("s_lshl_b32 s42, s21, 5")
    I(f"s_add_u32 s42, s42, {T}")
    I("v_add_u32 v106, s42, v106")
    for f in range(10):
        I(f"ds_read_b64_tr_b16 v[{W+4*f}:{W+4*f+1}], v106 offset:{f*4096}")
        I(f"ds_read_b64_tr_b16 v[{W+4*f+2}:{W+4*f+3}], v106 offset:{f*4096+512}")
    I("s_lshl_b32 s42, s21, 10")
    I(f"s_add_u32 s43, s42, {WRAD}")
    I("v_add_u32 v105, s43, v105")
    I("s_waitcnt vmcnt(0)")
    for k in range(4):
        h = k >> 1
        for d in range(4):
            I(f"v_lshlrev_b32 v{WT+4*k+d}, 16, v{WT+4*k+d}")
            I(f"v_xor_b32 v{WT+4*k+d}, v{110+h}, v{WT+4*k+d}")
        I(f"ds_write_b128 v105, v[{WT+4*k}:{WT+4*k+3}] offset:{(k>>1)*8192 + (k&1)*4096}")
    I("v_and_b32 v106, 15, v104")
    I("v_lshrrev_b32 v107, 4, v104")
    I(f"v_lshlrev_b32 v{X0}, 2, v104")
    if NWG == 250:
        I(f"s_mul_i32 s42, s20, {HN}")
        I(f"s_movk_i32 s44, {HN}")
    else:
        I("s_mul_i32 s42, s20, 1600210")
        I("s_add_u32 s42, s42, 65532")
        I("s_add_u32 s44, s42, 1600210")
        I("s_lshr_b32 s42, s42, 16")
        I("s_lshr_b32 s44, s44, 16")
        I(f"s_min_u32 s44, s44, {N//2}")
        I("s_sub_u32 s44, s44, s42")
    I("s_lshl_b32 s42, s42, 9")
    I("s_lshl_b32 s43, s21, 5")
    I("s_add_u32 s42, s42, s43")
    I(f"v_lshlrev_b32 v{X1}, 9, v106")
    I(f"v_lshl_add_u32 v{X1}, v107, 3, v{X1}")
    I(f"v_add_u32 v{X1}, s42, v{X1}")
    I(f"v_cmp_le_u32 s[84:85], {HN-16}, v106")
    I(f"s_sub_u32 s43, s44, {48-HN}")
    I("v_cmp_gt_i32 s[50:51], s43, v106")
    I("s_sub_u32 s43, s44, 16")
    I("v_cmp_gt_i32 s[94:95], s43, v106")
    I("v_lshlrev_b32 v108, 10, v106")
    I(f"v_add_u32 v108, {T}, v108")
    I("s_or_b64 s[94:95], s[94:95], s[84:85]")
    for u in (3, 2, 1, 0):
        I(f"v_add_u32 v109, {4*u}, v107")
        I("v_xor_b32 v109, v109, v106")
        I(f"v_lshl_add_u32 v{TF+4+u}, v109, 4, v108")
    I("s_waitcnt lgkmcnt(0)")
    for u in range(4):
        I(f"v_mov_b32 v{TA+u}, v{TF+4+u}")
    I("s_mov_b32 s89, 0")
    NPB = 8
    TB, KA, SJ, KB, RB = 40, 48, 56, 64, 80
    LJ, LCH, LONE, Y = 96, 97, 98, 99
    MB = 52
    def mb(p, w): return f"s[{MB+4*p+2*w}:{MB+4*p+2*w+1}]"
    LA, PA0, PA1, TOA = KB, KB + 1, KB + 2, KB + 3
    I(f"v_lshrrev_b32 v{Y}, 2, v{X0}")
    I("s_lshl_b32 s42, s21, 11")
    I(f"v_lshl_add_u32 v{LA}, v{Y}, 4, s42")
    I(f"v_lshrrev_b32 v{Y+1}, 1, v{Y}")
    I("s_lshl_b32 s43, s21, 5")
    I(f"s_sub_u32 s44, {NCH-128}, s43")
    I(f"v_cmp_gt_i32 s[46:47], s44, v{Y+1}")
    I(f"s_mov_b32 s44, {CSTRIDE}")
    I(f"v_mul_u32_u24 v{Y+1}, s44, v{Y+1}")
    I(f"v_and_b32 v{Y+2}, 16, v{LA}")
    I(f"v_add_u32 v{PA0}, v{Y+1}, v{Y+2}")
    I(f"v_cndmask_b32 v{PA1}, 2.0, v{PA0}, s[46:47]")
    I(f"v_and_b32 v{LJ}, 7, v{Y}")
    I(f"v_lshrrev_b32 v{Y+1}, 3, v{Y}")
    I(f"v_mul_u32_u24 v{LCH}, s44, v{Y+1}")
    I(f"v_lshl_add_u32 v{RB}, v{Y+1}, 5, s42")
    I("s_mul_i32 s38, s43, s44")
    I(f"v_add_u32 v{LCH}, s38, v{LCH}")
    I(f"v_mov_b32 v{LONE}, 1")
    I("s_lshl_b32 s36, s20, 5")
    I(f"s_add_u32 s36, s36, {TABOFF+8192}")
    I("s_add_u32 s36, s36, s38")
    I(f"s_add_u32 s37, s36, {128*CSTRIDE}")
    I("s_lshl_b32 s42, s21, 6")
    I(f"v_add_u32 v{Y}, s42, v{Y}")
    I(f"v_mul_u32_u24 v{Y+1}, 0xaab, v{Y}")
    I(f"v_lshrrev_b32 v{Y+1}, 16, v{Y+1}")
    I(f"v_mul_u32_u24 v{Y+1}, {SSTR-24*32}, v{Y+1}")
    I(f"v_lshl_add_u32 v{TOA}, v{Y}, 5, v{Y+1}")
    I(f"v_add_u32 v{TOA}, {SCR+28}, v{TOA}")
    I(f"s_movk_i32 s42, {NCH}")
    I(f"v_cmp_gt_u32 s[92:93], s42, v{Y}")
    if c.pfx2_pos == 1:
        I("s_mov_b64 s[40:41], s[46:47]")
        prefetch_x(e, c.pfx2_lines, 114, 117, 256, 31, 0, 4, c.pfx_lines)
        I("s_mov_b64 s[46:47], s[40:41]")
    stamp(e, c, 14)
    e.label("L2_m_round")
    I("s_barrier")
    I("s_cmp_eq_u32 s23, 1")
    I("s_cbranch_scc1 L2_m_slowC")
    def pollB_issue():
        I(f"buffer_load_dwordx4 v[{TF+4}:{TF+7}], v{PA0}, s[8:11], s36 offen sc1")
        I(f"buffer_load_dwordx4 v[{TF+8}:{TF+11}], v{PA1}, s[8:11], s37 offen sc1")
    I(f"ds_read_b32 v{TF}, v{X0} offset:{HIST}")
    I(f"ds_read_b32 v{TF+1}, v{X0} offset:{HIST2}")
    I(f"ds_read_b32 v{Y}, v{TOA}")
    I("s_waitcnt lgkmcnt(0)")
    I(f"v_add_u32 v{TF}, v{TF}, v{TF+1}")
    I(f"v_and_b32 v{Y}, 0xfff, v{Y}")
    I(f"v_cndmask_b32 v{Y}, 0, v{Y}, s[92:93]")
    scan64(e, TF)
    scan64(e, Y)
    I(f"v_readlane_b32 s42, v{TF}, 63")
    I(f"v_mov_b32 v{Y+2}, 0")
    I("s_mov_b32 exec_lo, 0")
    I("s_mov_b32 exec_hi, 0x80000000")
    I(f"ds_add_u32 v{Y+2}, v{Y} offset:{TOTB}")
    I("s_mov_b64 exec, -1")
    I(f"s_cmp_gt_u32 s42, {CAP}")
    I("s_cbranch_scc1 L2_m_overflow")
    if c.bearly: pollB_issue()
    I("s_waitcnt lgkmcnt(0)")
    I("s_barrier")
    I(f"ds_read_b32 v{Y}, v{Y+2} offset:{TOTB}")
    SEL = Y + 4
    E2 = [TF, TF + 8]
    I("s_mov_b32 s44, 0")
    I("s_waitcnt lgkmcnt(0)")
    I(f"v_readfirstlane_b32 s42, v{Y}")
    I(f"v_or_b32 v{SEL}, 0x0c0c0c00, v{LJ}")
    I(f"s_cmp_gt_u32 s42, {CAP}")
    I("s_cbranch_scc1 L2_m_overflow")
    stamp(e, c, 10)
    I("s_mov_b32 s34, s42")
    if c.x_nobload: I("s_branch L2_bnoxb")
    if c.bearly: I("s_branch L2_pollB_w")
    e.label("L2_pollB")
    pollB_issue()
    e.label("L2_pollB_w")
    I("s_add_u32 s44, s44, 1")
    I("s_waitcnt vmcnt(0)")
    tag_bad(e, Y, TF+4, Y+1, ODD)
    tag_bad(e, Y+2, TF+8, Y+1, ODD)
    I(f"v_cndmask_b32 v{Y+2}, 0, v{Y+2}, s[46:47]")
    I(f"v_or_b32 v{Y}, v{Y}, v{Y+2}")
    I(f"v_cmp_ne_u32 vcc, 0, v{Y}")
    e.nop(2)
    I("s_cmp_eq_u64 vcc, 0")
    I("s_cbranch_scc1 L2_pollB_ok")
    I(f"s_sleep {c.psleep}")
    I("s_cmp_lt_u32 s44, 0x100000")
    I("s_cbranch_scc1 L2_pollB")
    e.label("L2_pollB_ok")
    stamp(e, c, 7)
    I(f"ds_write_b128 v{LA}, v[{TF+4}:{TF+7}] offset:{CEB}")
    I(f"ds_write_b128 v{LA}, v[{TF+8}:{TF+11}] offset:{CEB+1024}")
    def boff(p): return ((128 if p >= 4 else 0) + 8 * (p & 3)) * CSTRIDE
    def ent_read(p):
        r = E2[p & 1]
        I(f"ds_read_b128 v[{r}:{r+3}], v{RB} offset:{CEB+256*p}")
        I(f"ds_read_b64 v[{r+4}:{r+5}], v{RB} offset:{CEB+256*p+16}")
    ent_read(0); ent_read(1)
    I(f"v_add_u32 v{Y+1}, 8, v{LJ}")
    for p in range(NPB):
        r = E2[p & 1]
        I(f"s_waitcnt lgkmcnt({2 if p < NPB-1 else 0})")
        I(f"v_and_b32 v{SJ+p}, 0xfff, v{r}")
        I(f"v_bfe_u32 v{TB+p}, v{r}, 12, 12")
        I(f"v_perm_b32 v{KB+2*p}, v{r+3}, v{r+2}, v{SEL}")
        I(f"v_perm_b32 v{KB+2*p+1}, v{r+5}, v{r+4}, v{SEL}")
        if p + 2 < NPB: ent_read(p + 2)
        I(f"v_add_u32 v{SJ+p}, v{SJ+p}, v{LJ}")
        I(f"v_cmp_lt_u32 {mb(p,0)}, v{LJ}, v{TB+p}")
        I(f"v_cmp_lt_u32 {mb(p,1)}, v{Y+1}, v{TB+p}")
        I(f"v_lshl_add_u32 v{SJ+p}, v{SJ+p}, 4, v{LCH}")
    P0 = [TF, TF+4, TF+8, TF+12]
    def pay_issue(p, w, reg):
        I(f"s_mov_b32 s42, {boff(p)+PAYOFF}")
        I("s_mov_b64 exec, -1")
        I(f"v_cndmask_b32 v{Y+2+w}, 2.0, v{SJ+p}, {mb(p,w)}")
        I(f"buffer_load_dwordx4 v[{reg}:{reg+3}], v{Y+2+w}, s[8:11], s42 offen offset:{128*w} {rf}")
    for k in range(4): pay_issue(k >> 1, k & 1, P0[k])
    I(f"v_max3_u32 v{Y}, v{TB}, v{TB+1}, v{TB+2}")
    I(f"v_max3_u32 v{Y}, v{Y}, v{TB+3}, v{TB+4}")
    I(f"v_max3_u32 v{Y}, v{Y}, v{TB+5}, v{TB+6}")
    I(f"v_max_u32 v{Y}, v{Y}, v{TB+7}")
    I(f"v_cmp_lt_u32 vcc, 16, v{Y}")
    I(f"v_mov_b32 v{Y+1}, v{RB}")
    for p in range(NPB):
        for w in range(2):
            I(f"s_mov_b64 exec, {mb(p,w)}")
            I(f"ds_add_rtn_u32 v{RB+2*p+w}, v{KB+2*p+w}, v{LONE} offset:{HISTB}")
    I("s_mov_b64 exec, -1")
    I("s_cmp_lg_u64 vcc, 0")
    I("s_cselect_b32 s35, 1, 0")
    I("s_cbranch_scc0 L2_bnoxa")
    def w2mask(p):
        I(f"v_min_u32 v{Y+2}, {KIN}, v{TB+p}")
        I(f"v_add_u32 v{Y+3}, 16, v{LJ}")
        I(f"v_cmp_lt_u32 vcc, v{Y+3}, v{Y+2}")
        I("s_and_saveexec_b64 s[44:45], vcc")
    for p in range(NPB):
        w2mask(p)
        e.branch(f"s_cbranch_execz L2_bw2a{p}")
        I(f"ds_read_b32 v{KA+p}, v{Y+1} offset:{CEB+256*p+24}")
        I("s_waitcnt lgkmcnt(0)")
        I(f"v_perm_b32 v{KA+p}, v{KA+p}, v{KA+p}, v{SEL}")
        I(f"ds_add_rtn_u32 v{Y+2}, v{KA+p}, v{LONE} offset:{HISTB}")
        I("s_waitcnt lgkmcnt(0)")
        I(f"v_lshl_or_b32 v{KA+p}, v{Y+2}, 8, v{KA+p}")
        e.label(f"L2_bw2a{p}")
        I("s_mov_b64 exec, -1")
    def key_addr(p, dst):
        I(f"v_sub_u32 v{dst}, v{SJ+p}, v{LCH}")
        I(f"v_lshrrev_b32 v{dst}, 4, v{dst}")
        I(f"v_add_u32 v{dst}, v{dst}, v{LCH}")
    for p in range(NPB):
        I(f"s_mov_b32 s42, {boff(p)+KEYOFF}")
        key_addr(p, Y+3)
        extra_count(f"b{p}", KIN, LJ, Y+3, TB+p, 42, LONE, HIST2B, Y)
    e.label("L2_bnoxa")
    I("s_mov_b64 exec, 1")
    I(f"v_mov_b32 v{Y+2}, 0")
    I("s_waitcnt lgkmcnt(0)")
    I(f"ds_add_u32 v{Y+2}, v{LONE} offset:{BSYNC}")
    I("s_mov_b64 exec, -1")
    I(f"v_mov_b32 v{Y+2}, 0")
    spin(e, "bs", Y, Y+2, BSYNC, 4, 44, 42)
    BB = Y + 4
    I(f"ds_read_b32 v{Y}, v{X0} offset:{HISTB}")
    I(f"ds_read_b32 v{Y+1}, v{X0} offset:{HIST2B}")
    I("s_waitcnt lgkmcnt(0)")
    I(f"v_add_u32 v{Y+1}, v{Y}, v{Y+1}")
    I(f"v_mov_b32 v{BB}, v{Y+1}")
    scan64(e, BB)
    I(f"v_sub_u32 v{BB}, v{BB}, v{Y+1}")
    I(f"v_add_u32 v{BB}, {BOFF}, v{BB}")
    for k in range(2*NPB):
        I(f"ds_bpermute_b32 v{KB+k}, v{KB+k}, v{BB}")
    I("s_cmp_lg_u32 s21, 0")
    I("s_cbranch_scc1 L2_bnoinfo")
    I(f"v_lshl_or_b32 v{Y+1}, v{Y+1}, 16, v{BB}")
    I(f"s_mov_b32 exec_lo, {((1 << 32) - (1 << HN))}")
    I(f"ds_write_b32 v{X0}, v{Y+1} offset:{INFO}")
    I("s_mov_b64 exec, -1")
    e.label("L2_bnoinfo")
    I("s_waitcnt lgkmcnt(0)")
    for k in range(2*NPB):
        I(f"v_add_lshl_u32 v{KB+k}, v{KB+k}, v{RB+k}, 4")
    I(f"v_mov_b32 v{LONE}, v{Y}")
    regs = P0 + [RB, RB+4, RB+8, RB+12]
    for k in range(4, 8): pay_issue(k >> 1, k & 1, regs[k])
    for k in range(16):
        I(f"s_waitcnt vmcnt({min(7, 15-k)})")
        I(f"s_mov_b64 exec, {mb(k>>1, k&1)}")
        I(f"ds_write_b128 v{KB+k}, v[{regs[k&7]}:{regs[k&7]+3}] offset:{RAW}")
        if k + 8 < 16: pay_issue((k+8) >> 1, (k+8) & 1, regs[k&7])
    I("s_mov_b64 exec, -1")
    I("s_cmp_eq_u32 s35, 0")
    I("s_cbranch_scc1 L2_bnoxb")
    for p in range(NPB):
        I(f"v_and_b32 v{Y}, 0xff, v{KA+p}")
        I(f"ds_bpermute_b32 v{Y}, v{Y}, v{BB}")
        w2mask(p)
        e.branch(f"s_cbranch_execz L2_bw2b{p}")
        I(f"s_mov_b32 s42, {boff(p)+PAYOFF}")
        I(f"buffer_load_dwordx4 v[{TF}:{TF+3}], v{SJ+p}, s[8:11], s42 offen offset:256 {rf}")
        I(f"v_lshrrev_b32 v{KA+p}, 8, v{KA+p}")
        I("s_waitcnt vmcnt(0) lgkmcnt(0)")
        I(f"v_add_lshl_u32 v{Y}, v{Y}, v{KA+p}, 4")
        I(f"ds_write_b128 v{Y}, v[{TF}:{TF+3}] offset:{RAW}")
        e.label(f"L2_bw2b{p}")
        I("s_mov_b64 exec, -1")
        I("s_waitcnt lgkmcnt(0)")
    I(f"v_add_u32 v{BB}, v{BB}, v{LONE}")
    I(f"v_mov_b32 v{LONE}, 1")
    for p in range(NPB):
        I(f"s_mov_b32 s42, {boff(p)+KEYOFF}")
        I(f"s_mov_b32 s43, {boff(p)+PAYOFF}")
        key_addr(p, KA+p)
        extra_move(f"b{p}", KIN, LJ, KA+p, SJ+p, TB+p, 42, 43, LONE, CUR2B, BB, Y, TF)
    e.label("L2_bnoxb")
    I("s_waitcnt lgkmcnt(0)")
    for k in range(64):
        I(f"v_mov_b32 v{G+k}, 0")
    I("s_cmp_lg_u32 s21, 1")
    I("s_cbranch_scc1 L2_bnoguard")
    I(f"s_add_u32 s42, s34, {BOFF}")
    I("s_lshl_b32 s42, s42, 4")
    I(f"v_lshl_add_u32 v{TF}, v{X0}, 2, s42")
    I(f"ds_write_b128 v{TF}, v[{G}:{G+3}] offset:{RAW}")
    I("s_waitcnt lgkmcnt(0)")
    e.label("L2_bnoguard")
    I(f"v_mov_b32 v{TF}, 1")
    I("s_mov_b64 exec, 1")
    I(f"ds_add_u32 v{G}, v{TF} offset:{BREADY}")
    I("s_mov_b64 exec, -1")
    stamp(e, c, 13)
    I("s_branch L2_m_tiles")
    e.label("L2_m_slowC")
    I("s_barrier")
    e.label("L2_m_tiles")
    if c.prio_m: I(f"s_setprio {c.prio_m}")
    for h in range(2):
        for t in ((0, 3, 1, 2) if h else range(4)):
            need = 16 if t < 3 else NODES - 48
            last = (h, t) == (1, 2)
            if last and c.split: need = 32
            I(f"v_mov_b32 v{TF}, 0")
            spin(e, f"t{h}{t}", TF+1, TF, DONE + 16*h + 4*t, need, 43, 42, sleep=(1 if last else c.sleep))
            stamp(e, c, 16 + 4*h + t)
            srcs = [t] + ([0] if last and c.split else [])
            steps = [(tt, ks) for tt in srcs for ks in range(16)]
            def mf(ks, r):
                jp, blk = ks >> 2, 2 * h + ((ks >> 1) & 1)
                p, i, sg = path_of(jp, blk)
                f = p * 2 + (ks & 1)
                g = G + 16 * t + 4 * i
                I(f"v_mfma_f32_16x16x32_bf16 v[{g}:{g+3}], v[{W+4*f}:{W+4*f+3}], v[{r}:{r+3}], v[{g}:{g+3}]")
            def rd(n, r):
                tt, ks = steps[n]
                I(f"ds_read_b128 v[{r}:{r+3}], v{TA+(ks&3)} offset:{tt*16384 + (ks>>2)*256}")
            for n in range(4): rd(n, TF + 4*n)
            for n in range(len(steps)):
                I(f"s_waitcnt lgkmcnt({min(3, len(steps)-1-n)})")
                mf(steps[n][1], TF + 4*(n&3))
                if n + 4 < len(steps): rd(n + 4, TF + 4*(n&3))
            if (h, t) == (1, 0) and c.split:
                I(f"v_mov_b32 v{TF}, 0")
                I(f"v_mov_b32 v{TF+1}, 1")
                I("s_mov_b64 exec, 1")
                I(f"ds_add_u32 v{TF}, v{TF+1} offset:{GDONE + 16}")
                I("s_mov_b64 exec, -1")
            if h == 0:
                I(f"v_mov_b32 v{TF}, 0")
                I(f"v_mov_b32 v{TF+1}, 1")
                I("s_mov_b64 exec, 1")
                I(f"ds_add_u32 v{TF}, v{TF+1} offset:{GDONE + 4*t}")
                I("s_mov_b64 exec, -1")
                if t == c.pf1_tile:
                    I(f"s_movk_i32 m0, {HIST2B}")
                    I("s_lshl_b32 s42, s21, 6")
                    I(f"v_lshrrev_b32 v{TF+3}, 2, v{X0}")
                    I(f"v_add_u32 v{TF+3}, s42, v{TF+3}")
                    prefetch_x(e, c.pf1_lines, TF + 4, TF + 3, 256, 31, 1, 4, lds=True)
            else:
                I("s_cmp_eq_u32 s24, 0")
                e.branch(f"s_cbranch_scc1 L2_nofin{t}")
                g = G + 16 * t
                I("s_mov_b32 s42, 0xbfb8aa3b")
                for r in range(4): I(f"v_mul_f32 v{TF+r}, s42, v{g+r}")
                for r in range(4): I(f"v_exp_f32 v{TF+r}, v{TF+r}")
                for r in range(4): I(f"v_add_f32 v{TF+r}, 1.0, v{TF+r}")
                for r in range(4): I(f"v_rcp_f32 v{TF+r}, v{TF+r}")
                for i in range(1, 4):
                    for r in range(4): I(f"v_mul_f32 v{g+4*i+r}, v{g+4*i+r}, v{TF+r}")
                for i in range(4):
                    I(f"v_cvt_pk_bf16_f32 v{TF+4+2*i}, v{g+4*i}, v{g+4*i+1}")
                    I(f"v_cvt_pk_bf16_f32 v{TF+5+2*i}, v{g+4*i+2}, v{g+4*i+3}")
                I(f"s_mov_b32 s42, {t*16*512 + ((N//2-HN)*512 if t >= 2 else 0)}")
                va = X1
                if t == 1:
                    va = TF
                    I(f"v_add_u32 v{TF}, {(N//2-HN)*512}, v{X1}")
                    I(f"v_cndmask_b32 v{TF}, v{X1}, v{TF}, s[84:85]")
                    I("s_mov_b64 exec, s[94:95]")
                if t == 3:
                    I("s_mov_b64 exec, s[50:51]")
                    I("s_cbranch_execz L2_nost3")
                for i in range(4):
                    I(f"buffer_store_dwordx2 v[{TF+4+2*i}:{TF+5+2*i}], v{va}, s[12:15], s42 offen offset:{i*128} {c.out_flags}")
                if t == 3: e.label("L2_nost3")
                if t in (1, 3): I("s_mov_b64 exec, -1")
                e.label(f"L2_nofin{t}")
    stamp(e, c, 11)
    I("s_cmp_lg_u32 s24, 0")
    e.branch("s_cbranch_scc1 L2_m_exit")
    I("s_add_u32 s89, s89, 1")
    I("s_branch L2_m_slow")
    e.label("L2_m_overflow")
    I("s_mov_b32 s89, 0")
    I("s_mov_b32 s23, 1")
    I("s_waitcnt vmcnt(0)")
    for k in range(64):
        I(f"v_mov_b32 v{G+k}, 0")
    e.label("L2_m_slow")
    I("s_waitcnt vmcnt(0) lgkmcnt(0)")
    I("s_barrier")
    I(f"s_cmp_eq_u32 s89, {2*NCH-1}")
    I("s_cselect_b32 s24, 1, 0")
    I("s_cmp_lg_u32 s21, 1")
    I("s_cbranch_scc1 L2_m_nz")
    for k in range(4): I(f"v_mov_b32 v{TF+k}, 0")
    I(f"v_lshlrev_b32 v{TF+4}, 2, v{X0}")
    I(f"ds_write_b128 v{TF+4}, v[{TF}:{TF+3}]")
    I("s_waitcnt lgkmcnt(0)")
    e.label("L2_m_nz")
    I("s_barrier")
    e.branch("s_branch L2_m_round")
    e.label("L2_m_exit")
    if c.stamps:
        I("s_waitcnt vmcnt(0)")
        stamp(e, c, 12)
        stamp_store(e, c, TF)
    e.label("L_end")
    I("s_endpgm")
    e.label("L_codeend")
    return KNAME, 128, 96

def gather_loop(e, c, L):
    I = e.I
    RAW, T, NEXT, DONE, GDONE, OSC, PL1, BREADY, INFO = (L[k] for k in "RAW T NEXT DONE GDONE OSC PL1 BREADY INFO".split())
    VLANE, VINFO, VNEXT, VLOFF, VMASK, VOW, VOR, VSCRW, VTRA, VWR, VL16, VT0, VT1, VONE = (L[k] for k in
        "VLANE VINFO VNEXT VLOFF VMASK VOW VOR VSCRW VTRA VWR VL16 VT0 VT1 VONE".split())
    ACC, LD, B, A, AD = 0, 32, 64, 96, 100
    sA, sR, sH, sN, sNV = 32, 33, 34, 35, 37
    sCN, sCH, sCF, sCR, sL = 38, 39, 40, 41, 36
    uid = [0]
    def lab(p):
        uid[0] += 1
        return f"L2_{p}{uid[0]}"
    def fetch_issue():
        I("s_mov_b64 exec, 1")
        I(f"ds_add_rtn_u32 v{VNEXT}, v{VL16}, v{VONE} offset:{NEXT}")
        I("s_mov_b64 exec, -1")
    NIT = 2*NODES + (16 if c.split else 0)
    def setup_item(none_label):
        I(f"v_readfirstlane_b32 s42, v{VNEXT}")
        e.nop(1)
        I(f"s_cmp_ge_u32 s42, {NIT}")
        I(f"s_cbranch_scc1 {none_label}")
        t, sp, dn = lab("bw"), lab("sp"), lab("sd")
        if c.split:
            I(f"s_cmp_ge_u32 s42, {2*NODES-16}")
            I(f"s_cbranch_scc1 {sp}")
        I(f"s_cmp_ge_u32 s42, {NODES}")
        I(f"s_cselect_b32 s{sH}, 256, 0")
        I(f"s_cselect_b32 s43, {NODES}, 0")
        I(f"s_cmp_ge_u32 s42, {NODES+16}")
        I(f"s_cselect_b32 s43, {NODES-32}, s43")
        I(f"s_cmp_ge_u32 s42, {NODES+18}")
        I(f"s_cselect_b32 s43, {NODES+2}, s43")
        I(f"s_sub_u32 s{sN}, s42, s43")
        I(f"s_cmp_lt_u32 s{sN}, s48")
        I(f"s_cbranch_scc1 {t}")
        stamp(e, c, 29)
        I(f"v_mov_b32 v{VT0}, 0")
        spin(e, t, VT1, VT0, BREADY, 4, 45, 44, sleep=1)
        I(f"v_lshrrev_b32 v{VT0}, 2, v{VL16}")
        I(f"ds_read_b32 v{VINFO}, v{VT0} offset:{INFO}")
        I("s_movk_i32 s48, 64")
        I("s_waitcnt lgkmcnt(0)")
        stamp(e, c, 30)
        e.label(t)
        I(f"v_readlane_b32 s42, v{VINFO}, s{sN}")
        e.nop(1)
        I(f"s_lshr_b32 s{sR}, s42, 16")
        I("s_and_b32 s42, s42, 0xffff")
        I(f"s_lshl_b32 s{sA}, s42, 4")
        if c.split:
            I(f"s_branch {dn}")
            e.label(sp)
            I(f"s_sub_u32 s42, s42, {2*NODES-16}")
            I("s_lshr_b32 s43, s42, 1")
            I(f"s_add_u32 s{sN}, s43, 32")
            I(f"s_cmp_lt_u32 s{sN}, s48")
            I(f"s_cbranch_scc1 {t}b")
            I(f"v_mov_b32 v{VT0}, 0")
            spin(e, t + "c", VT1, VT0, BREADY, 4, 45, 44, sleep=1)
            I(f"v_lshrrev_b32 v{VT0}, 2, v{VL16}")
            I(f"ds_read_b32 v{VINFO}, v{VT0} offset:{INFO}")
            I("s_movk_i32 s48, 64")
            I("s_waitcnt lgkmcnt(0)")
            e.label(t + "b")
            I(f"v_readlane_b32 s44, v{VINFO}, s{sN}")
            I(f"s_movk_i32 s{sH}, 256")
            I(f"s_lshr_b32 s{sR}, s44, 16")
            I("s_and_b32 s44, s44, 0xffff")
            I(f"s_min_u32 s45, s{sR}, 32")
            I("s_bitcmp1_b32 s42, 0")
            I(f"s_cbranch_scc1 {sp}h")
            I(f"s_mov_b32 s{sR}, s45")
            I(f"s_lshl_b32 s{sA}, s44, 4")
            I(f"s_branch {dn}")
            e.label(sp + "h")
            I(f"s_sub_u32 s{sR}, s{sR}, s45")
            I("s_add_u32 s44, s44, s45")
            I(f"s_lshl_b32 s{sA}, s44, 4")
            I(f"s_or_b32 s{sN}, s43, 64")
            e.label(dn)
    def off_read(hf):
        I(f"ds_read_b128 v[{AD}:{AD+3}], v{VOR} offset:{OSC+128*hf}")
        I(f"ds_read_b128 v[{AD+4}:{AD+7}], v{VOR} offset:{OSC+128*hf+16}")
    def off_add():
        if c.addtid: return
        for i in range(8):
            I(f"v_add_u32 v{AD+i}, v{AD+i}, v{VLOFF}")
    def prep_block():
        r = B
        I(f"v_add_u32 v{VT0}, s{sA}, v{VL16}")
        I(f"ds_read_b128 v[{r}:{r+3}], v{VT0} offset:{RAW}")
        l = lab("nf")
        I(f"s_cmp_gt_u32 s{sR}, 64")
        I(f"s_cbranch_scc1 {l}")
        fetch_issue()
        e.label(l)
        I(f"v_cmp_gt_u32 vcc, s{sR}, v{VLANE}")
        I("s_waitcnt lgkmcnt(0)")
        I(f"v_lshrrev_b32 v{r+11}, 16, v{r+3}")
        if c.addtid:
            I(f"v_lshlrev_b32 v{r+11}, 5, v{r+11}")
            I(f"v_sub_u32 v{r+11}, v{r+11}, v{VLOFF}")
        else:
            I(f"v_lshlrev_b32 v{r+11}, 9, v{r+11}")
            if c.oobtail: I(f"v_cndmask_b32 v{r+11}, 2.0, v{r+11}, vcc")
        I(f"ds_write_b32 v{VOW}, v{r+11} offset:{OSC}")
        off_read(0)
        if not c.x_noexp:
            I(f"v_cndmask_b32 v{r}, 0, v{r}, vcc")
            I(f"v_cndmask_b32 v{r+1}, 0, v{r+1}, vcc")
            I(f"v_lshlrev_b32 v{r+8}, 16, v{r+2}")
            I(f"v_and_b32 v{r+9}, v{VMASK}, v{r+2}")
            I(f"v_lshlrev_b32 v{r+10}, 16, v{r+3}")
            I(f"v_lshlrev_b32 v{r+4}, 16, v{r}")
            I(f"v_and_b32 v{r+5}, v{VMASK}, v{r}")
            I(f"v_lshlrev_b32 v{r+6}, 16, v{r+1}")
            I(f"v_and_b32 v{r+7}, v{VMASK}, v{r+1}")
            for j in range(3):
                for d in range(4):
                    I(f"v_mul_f32 v{r+12+4*j+d}, v{r+4+d}, v{r+8+j}")
            I(f"v_cvt_pk_bf16_f32 v{r+2}, v{r+12}, v{r+13}")
            I(f"v_cvt_pk_bf16_f32 v{r+3}, v{r+14}, v{r+15}")
            for k in range(4):
                I(f"v_cvt_pk_bf16_f32 v{r+24+k}, v{r+16+2*k}, v{r+17+2*k}")
        I(f"ds_write_b128 v{VSCRW}, v[{r}:{r+3}]")
        I(f"ds_write_b128 v{VSCRW}, v[{r+24}:{r+27}] offset:{PL1}")
        I("s_waitcnt lgkmcnt(2)")
        off_add()
    def ld(i):
        if c.x_noload: return
        I(f"buffer_load_dwordx4 v[{LD+4*i}:{LD+4*i+3}], v{AD+i}, s[4:7], {'0' if c.x_samehalf else 's%d' % sH} {'idxen' if c.addtid else 'offen'}")
    def perm(q, jj, k16=False):
        if c.x_noperm: return
        d = B + 2*q + jj if k16 else B + 4*q + jj
        I(f"v_perm_b32 v{d}, v{LD+4*(2*jj+1)+q//2}, v{LD+4*(2*jj)+q//2}, s{29 if q & 1 else 28}")
    def loads_partial(done):
        for i in range(7):
            I(f"s_cmp_le_u32 s{sL}, {4*i}")
            I(f"s_cbranch_scc1 {done}")
            ld(i)
    def perms_loads():
        part, done = lab("pp"), lab("pd")
        I("s_waitcnt vmcnt(0)")
        I(f"s_cmp_le_u32 s{sL}, 28")
        I(f"s_cbranch_scc1 {part}")
        for jj in range(4):
            for q in range(8): perm(q, jj)
            ld(2*jj); ld(2*jj+1)
        I(f"s_branch {done}")
        e.label(part)
        for jj in range(4):
            for q in range(8): perm(q, jj)
        loads_partial(done)
        e.label(done)
    def mfmas(first, k16=False):
        if c.x_nomfma: return
        for q in range(8):
            d = f"v[{ACC+4*q}:{ACC+4*q+3}]"
            if k16: I(f"v_mfma_f32_16x16x16_bf16 {d}, v[{A}:{A+1}], v[{B+2*q}:{B+2*q+1}], {'0' if first else d}")
            else: I(f"v_mfma_f32_16x16x32_bf16 {d}, v[{A}:{A+3}], v[{B+4*q}:{B+4*q+3}], {'0' if first else d}")
    def tr_read(hf):
        I(f"ds_read_b64_tr_b16 v[{A}:{A+1}], v{VTRA} offset:{512*hf}")
        I(f"ds_read_b64_tr_b16 v[{A+2}:{A+3}], v{VTRA} offset:{512*hf+256}")

    if c.stamps: I("s_mov_b32 s92, 16")
    setup_item("L2_g_done")
    prep_block()
    for i in range(8): ld(i)
    for first in (1, 0):
        e.label(f"L2_A{first}")
        tr_read(0)
        I(f"s_cmp_gt_u32 s{sR}, 32")
        I(f"s_cbranch_scc1 L2_AB{first}")
        I(f"s_mov_b32 s{sCF}, {first}")
        I(f"s_mov_b32 s{sCR}, s{sR}")
        I("s_branch L2_XN")
        e.label(f"L2_AB{first}")
        off_read(1)
        I(f"s_sub_u32 s{sL}, s{sR}, 32")
        I("s_waitcnt lgkmcnt(0)")
        off_add()
        perms_loads()
        mfmas(first)
        if first: I("s_branch L2_B")
    e.label("L2_B")
    tr_read(1)
    I(f"s_cmp_gt_u32 s{sR}, 64")
    I("s_cbranch_scc0 L2_BN")
    I(f"s_sub_u32 s{sR}, s{sR}, 64")
    I(f"s_add_u32 s{sA}, s{sA}, 1024")
    I(f"s_mov_b32 s{sL}, s{sR}")
    prep_block()
    perms_loads()
    I("s_waitcnt lgkmcnt(0)")
    mfmas(0)
    I("s_branch L2_A0")
    e.label("L2_BN")
    I(f"s_mov_b32 s{sCF}, 0")
    I(f"s_sub_u32 s{sCR}, s{sR}, 32")
    e.label("L2_XN")
    I(f"s_mov_b32 s{sCN}, s{sN}")
    I(f"s_mov_b32 s{sCH}, s{sH}")
    I(f"s_mov_b32 s{sNV}, 1")
    setup_item("L2_XN_none")
    I(f"s_mov_b32 s{sL}, s{sR}")
    prep_block()
    I("s_branch L2_XN_go")
    e.label("L2_XN_none")
    I(f"s_mov_b32 s{sNV}, 0")
    I(f"s_mov_b32 s{sL}, 0")
    e.label("L2_XN_go")
    I(f"s_cmp_le_u32 s{sCR}, 16")
    I("s_cbranch_scc1 L2_XN_k16")
    perms_loads()
    I("s_waitcnt lgkmcnt(0)")
    I(f"s_cmp_eq_u32 s{sCF}, 0")
    I("s_cbranch_scc1 L2_XN_acc")
    mfmas(1)
    I("s_branch L2_XN_epi")
    e.label("L2_XN_acc")
    mfmas(0)
    I("s_branch L2_XN_epi")
    e.label("L2_XN_k16")
    I("s_waitcnt vmcnt(0)")
    for jj in range(2):
        for q in range(8): perm(q, jj, True)
    I(f"s_cmp_le_u32 s{sL}, 28")
    I("s_cbranch_scc1 L2_XN_k16p")
    for i in range(8): ld(i)
    I("s_branch L2_XN_k16d")
    e.label("L2_XN_k16p")
    loads_partial("L2_XN_k16d")
    e.label("L2_XN_k16d")
    I("s_waitcnt lgkmcnt(0)")
    I(f"s_cmp_eq_u32 s{sCF}, 0")
    I("s_cbranch_scc1 L2_XN_k16acc")
    mfmas(1, True)
    I("s_branch L2_XN_epi")
    e.label("L2_XN_k16acc")
    mfmas(0, True)
    e.label("L2_XN_epi")
    I(f"s_lshl_b32 s42, s{sCH}, 5")
    I(f"v_add_u32 v{VT0}, s42, v{VWR}")
    for q in range(8):
        I(f"ds_read_b128 v[{B+4*q}:{B+4*q+3}], v{VT0} offset:{q*1024}")
    I(f"s_lshr_b32 s43, s{sCN}, 4")
    I(f"s_lshl_b32 s43, s43, 2")
    I(f"s_cmp_eq_u32 s{sCH}, 0")
    I("s_cbranch_scc1 L2_nowar")
    I(f"v_mov_b32 v{VT1}, s43")
    spin(e, "war", VT0, VT1, GDONE, 4, 45, 44)
    if c.split:
        I("s_cmp_eq_u32 s43, 16")
        I("s_cselect_b32 s43, 8, s43")
    I("s_add_u32 s43, s43, 16")
    e.label("L2_nowar")
    I(f"s_and_b32 s44, s{sCN}, 15")
    I("s_lshl_b32 s44, s44, 4")
    I(f"s_and_b32 s45, s{sCN}, 63")
    I(f"s_lshl_b32 s45, s45, 10")
    I(f"s_add_u32 s45, s45, {T}")
    I(f"v_xor_b32 v{VT0}, s44, v{VL16}")
    I(f"v_add_u32 v{VT0}, s45, v{VT0}")
    I(f"v_mov_b32 v{VT1}, s43")
    I("s_waitcnt lgkmcnt(0)")
    for q in range(8):
        I(f"v_mul_f32 v{B+4*q}, v{B+4*q}, v{ACC+4*q}")
    for d in range(1, 4):
        for q in range(8):
            I(f"v_fmac_f32 v{B+4*q}, v{B+4*q+d}, v{ACC+4*q+d}")
    for k in range(4):
        I(f"v_cvt_pk_bf16_f32 v{A+k}, v{B+8*k}, v{B+8*k+4}")
    I(f"ds_write_b128 v{VT0}, v[{A}:{A+3}]")
    if not c.nowait: I("s_waitcnt lgkmcnt(0)")
    I("s_mov_b64 exec, 1")
    I(f"ds_add_u32 v{VT1}, v{VONE} offset:{DONE}")
    I("s_mov_b64 exec, -1")
    if c.stamps:
        I("s_memrealtime s[90:91]")
        I("s_waitcnt lgkmcnt(0)")
        I("s_mov_b32 m0, s92")
        I(f"v_writelane_b32 v{STV}, s90, m0")
        I("s_add_u32 s92, s92, 1")
        I("s_min_u32 s92, s92, 23")
    I(f"s_cmp_lg_u32 s{sNV}, 0")
    I("s_cbranch_scc1 L2_A1")

HEADER = """; equiformer tensor-product message passing, one persistent launch (one workgroup per CU):
"""

def gen_probe(e, c):
    kA, a0, a1, sA, oA, kB, b0, b1, sB, oB = c.probe.split(",")
    kernel_header(e, "eqprobe_kernel")
    I = e.I
    I("s_cmp_ge_u32 s2, 1")
    I("s_cbranch_scc1 LP_end")
    I("s_memrealtime s[20:21]")
    I("s_load_dwordx2 s[4:5], s[0:1], 88")
    I("s_waitcnt lgkmcnt(0)")
    srd(e, 8, 4, 32 << 20)
    I(f"v_min_u32 v1, {c.nwg-1}, v0")
    I("v_lshlrev_b32 v1, 11, v1")
    I("v_mov_b32 v10, 0"); I("v_mov_b32 v11, -1"); I("v_mov_b32 v12, 0")
    I("ds_write_b32 v10, v11 offset:0"); I("ds_write_b32 v10, v12 offset:4"); I("ds_write_b32 v10, v11 offset:8"); I("ds_write_b32 v10, v12 offset:12")
    I("s_waitcnt lgkmcnt(0)"); I("s_barrier")
    regs = []
    for (k, w0, w1, sl, off) in ((kA, a0, a1, sA, 0), (kB, b0, b1, sB, 8)):
        if k == "now":
            I(f"v_mov_b32 v{16+len(regs)}, s20"); regs.append(off); continue
        I(f"s_mov_b32 s12, {STAMPOFF}")
        for w in range(int(w0), int(w1)):
            I(f"buffer_load_dword v{16+len(regs)}, v1, s[8:11], s12 offen offset:{w*128 + int(sl)*4}")
            regs.append(off)
    I("s_waitcnt vmcnt(0)")
    for off, op in ((0, oA), (8, oB)):
        idx = [n for n, o in enumerate(regs) if o == off]
        for n in idx[1:]:
            I(f"v_{op}_u32 v{16+idx[0]}, v{16+idx[0]}, v{16+n}")
        I(f"ds_{op}_u32 v10, v{16+idx[0]} offset:{off + (0 if op == 'min' else 4)}")
    I("s_waitcnt lgkmcnt(0)"); I("s_barrier")
    I(f"ds_read_b32 v3, v10 offset:{0 if oA == 'min' else 4}")
    I(f"ds_read_b32 v4, v10 offset:{8 if oB == 'min' else 12}")
    I("s_waitcnt lgkmcnt(0)")
    I("v_sub_u32 v3, v3, v4")
    I("v_min_u32 v3, 0x2000, v3")
    I("v_readfirstlane_b32 s14, v3")
    I("s_memrealtime s[16:17]")
    I("s_mul_i32 s14, s14, 10")
    I("s_waitcnt lgkmcnt(0)")
    e.label("LP_spin")
    I("s_memrealtime s[18:19]")
    I("s_waitcnt lgkmcnt(0)")
    I("s_sub_u32 s18, s18, s16")
    I("s_cmp_lt_u32 s18, s14")
    I("s_cbranch_scc1 LP_spin")
    e.label("LP_end")
    I("s_endpgm")
    return "eqprobe_kernel", 64, 32

def generate(c):
    e = Emitter()
    e.raw('.amdgcn_target "amdgcn-amd-amdhsa--gfx950"')
    e.raw(".text")
    k = gen_main(e, c)
    head = HEADER + f"; @launch grid=({c.nwg},1,1) block=(1024,1,1) lds={c.lds}\n"
    tail = '.section .rodata,"a"\n.p2align 6\n' + kd(*k)
    if c.probe:
        kp = gen_probe(e, c)
        head = HEADER + f"; @launch kernel={KNAME} grid=({c.nwg},1,1) block=(1024,1,1) lds={c.lds}\n; @launch kernel=eqprobe_kernel grid=(1,1,1) block=(256,1,1) lds=64\n"
        tail += ".p2align 6\n" + kd(*kp)
    return head + e.text() + tail

if __name__ == "__main__":
    c = Cfg()
    out = sys.argv[1]
    for kv in sys.argv[2:]:
        k, v = kv.split("=", 1)
        old = getattr(c, k)
        setattr(c, k, type(old)(int(v)) if isinstance(old, (bool, int)) else v.replace("+", " "))
    open(out, "w").write(generate(c))
```

```python
import re

TRANS = ("v_exp_f32", "v_log_f32", "v_rcp_f32", "v_rsq_f32", "v_sqrt_f32", "v_sin_f32", "v_cos_f32")

def regs_of(tok):
    tok = tok.strip()
    tok = re.sub(r"^-|^\||\|$", "", tok)
    m = re.fullmatch(r"abs\((.*)\)", tok)
    if m: tok = m.group(1)
    m = re.fullmatch(r"([vsa])(\d+)", tok)
    if m: return [(m.group(1), int(m.group(2)))]
    m = re.fullmatch(r"([vsa])\[(\d+):(\d+)\]", tok)
    if m: return [(m.group(1), i) for i in range(int(m.group(2)), int(m.group(3)) + 1)]
    if tok in ("vcc", "vcc_lo", "vcc_hi"): return [("vcc", 0)]
    if tok in ("exec", "exec_lo", "exec_hi"): return [("exec", 0)]
    if tok == "m0": return [("m0", 0)]
    return []

def split_ops(rest):
    out, depth, cur = [], 0, ""
    for ch in rest:
        if ch == "[": depth += 1
        if ch == "]": depth -= 1
        if ch == "," and depth == 0:
            out.append(cur.strip()); cur = ""
        else: cur += ch
    if cur.strip(): out.append(cur.strip())
    res = []
    for o in out:
        res.append(o.split()[0] if o.split() else o)
    return res

class Emitter:
    def __init__(self):
        self.lines = []
        self.hist = []
        self.nnops = 0
    def raw(self, s):
        self.lines.append(s)
    def comment(self, s):
        self.lines.append("    ; " + s)
    def label(self, name):
        self.lines.append(name + ":")
    def flush(self, n=None):
        need = 0
        dist = 0
        for h in reversed(self.hist):
            w = 0
            if h["kind"] == "mfma": w = 8 if h["passes"] == 4 else 12
            elif h["kind"] == "valu":
                w = 2
                if any(r[0] in ("s", "vcc") for r in h["w"]): w = 5
                if any(r[0] == "exec" for r in h["w"]): w = 5
            need = max(need, w - dist)
            dist += h["states"]
            if dist > 12: break
        if need > 0: self.nop(need)
    def nop(self, n):
        while n > 0:
            k = min(n, 16)
            self.lines.append(f"    s_nop {k-1}")
            self.hist.append(dict(kind="nop", w=[], r=[], states=k, mn="s_nop"))
            self.nnops += 1
            n -= k
    def classify(self, mn, ops, full):
        w, r = [], []
        kind = "salu"
        passes = 0
        dpp = ("quad_perm" in full or "row_shr" in full or "row_bcast" in full or "row_ror" in full or "row_shl" in full
               or "wave_shr" in full or "row_mirror" in full or "row_half_mirror" in full or "row_newbcast" in full)
        if mn.startswith("v_mfma"):
            kind = "mfma"; passes = 8 if "32x32" in mn else 4
            w = regs_of(ops[0]); r = sum((regs_of(o) for o in ops[1:]), [])
        elif mn.startswith("v_smfmac"):
            kind = "mfma"; passes = 8 if "32x32" in mn else 4
            w = regs_of(ops[0]); r = sum((regs_of(o) for o in ops), [])
        elif mn.startswith("v_cmpx"):
            kind = "valu"; w = regs_of(ops[0]) + [("exec", 0)]; r = sum((regs_of(o) for o in ops[1:]), [])
        elif mn.startswith("v_"):
            kind = "valu"
            w = regs_of(ops[0]); srcs = ops[1:]
            if mn.startswith(("v_add_co", "v_sub_co", "v_addc_co", "v_subb_co")):
                w += regs_of(ops[1]); srcs = ops[2:]
            r = sum((regs_of(o) for o in srcs), [])
            if mn.startswith(("v_fmac", "v_mac", "v_writelane", "v_pk_fmac", "v_dot2c")) or dpp or "sdwa" in mn or "op_sel" in full and mn.startswith("v_cvt") : r += regs_of(ops[0])
            if mn.startswith("v_permlane"): w += regs_of(ops[1]); r += regs_of(ops[0])
            if mn.startswith("v_cndmask") and len(ops) == 3: r += [("vcc", 0)]
        elif mn.startswith("ds_"):
            kind = "lds"
            if mn.startswith(("ds_read", "ds_bpermute", "ds_permute", "ds_swizzle")) or "_rtn" in mn:
                w = regs_of(ops[0]); r = sum((regs_of(o) for o in ops[1:]), [])
            else:
                r = sum((regs_of(o) for o in ops), [])
        elif mn.startswith(("buffer_", "global_")):
            kind = "vmem"
            if "load" in mn or ("atomic" in mn and "sc0" in full):
                w = regs_of(ops[0]); r = sum((regs_of(o) for o in ops[1:]), [])
                if "d16" in mn or "atomic" in mn: r += regs_of(ops[0])
            else:
                r = sum((regs_of(o) for o in ops), [])
        else:
            kind = "salu"
            if mn.startswith(("s_cmp", "s_cbranch", "s_branch", "s_waitcnt", "s_barrier", "s_nop", "s_sleep", "s_endpgm", "s_setprio", "s_bitcmp")):
                r = sum((regs_of(o) for o in ops), [])
            else:
                if ops: w = regs_of(ops[0]); r = sum((regs_of(o) for o in ops[1:]), [])
                if "saveexec" in mn: w += [("exec", 0)]
        return kind, w, r, passes, dpp
    def I(self, text):
        text = text.strip()
        code = text.split(";")[0].strip()
        parts = code.split(None, 1)
        mn = parts[0]
        ops = split_ops(parts[1]) if len(parts) > 1 else []
        kind, w, r, passes, dpp = self.classify(mn, ops, code)
        if mn == "s_nop":
            k = int(ops[0]) + 1
            self.lines.append("    " + text)
            self.hist.append(dict(kind="nop", w=[], r=[], states=k, mn=mn)); return
        need = 0
        dist = 0
        rs, ws = set(r), set(w)
        wide_store_data = set()
        for h in reversed(self.hist):
            req = 0
            hw, hr = set(h["w"]), set(h["r"])
            if h["kind"] == "valu":
                sw = {x for x in hw if x[0] in ("s", "vcc")}
                vw = {x for x in hw if x[0] in ("v", "a")}
                if kind == "vmem" and (sw & rs): req = max(req, 5)
                if kind == "valu" and (sw & rs):
                    req = max(req, 4 if mn.startswith(("v_readlane", "v_writelane")) and len(ops) > 2 and set(regs_of(ops[2])) & sw else 2)
                if kind == "valu" and dpp and (vw & rs): req = max(req, 2)
                if kind == "valu" and mn.startswith(("v_readlane", "v_readfirstlane")) and (vw & rs): req = max(req, 1)
                if kind == "valu" and mn.startswith("v_permlane") and (vw & rs): req = max(req, 2)
                if kind == "mfma" and (vw & rs): req = max(req, 2)
                if h["mn"].startswith(TRANS) and kind in ("valu",) and not mn.startswith(TRANS) and (vw & rs): req = max(req, 1)
                if h.get("opsel") and kind == "valu" and (vw & (rs | ws)): req = max(req, 1)
                if ("exec", 0) in hw:
                    if kind == "valu" and dpp: req = max(req, 5)
                    if kind == "valu" and mn.startswith(("v_readlane", "v_readfirstlane", "v_writelane", "v_permlane")): req = max(req, 4)
                    if kind == "mfma": req = max(req, 4)
                    if kind == "valu" and ("exec", 0) in rs: req = max(req, 2)
            elif h["kind"] == "mfma":
                p = h["passes"]
                D = hw
                if kind == "mfma":
                    if mn.startswith("v_smfmac"):
                        srcc = set(regs_of(ops[0])); ab = set(regs_of(ops[1])) | set(regs_of(ops[2])) | set(regs_of(ops[3]))
                    else:
                        srcc = set(regs_of(ops[3])); ab = set(regs_of(ops[1])) | set(regs_of(ops[2]))
                    if D & ab: req = max(req, 8 if p == 4 else 12)
                    if D & srcc and not (D == srcc and passes == p): req = max(req, 6 if p == 4 else 10)
                    if D & ws and not (D == srcc): req = max(req, 6 if p == 4 else 10)
                elif kind in ("valu", "lds", "vmem"):
                    if D & (rs | ws): req = max(req, 8 if p == 4 else 12)
                if kind == "valu" and (set(h["srcc"]) & ws): req = max(req, 3 if p == 4 else 7)
            elif h["kind"] == "vmem" and h.get("wide_store"):
                if kind == "valu" and (set(h["data"]) & ws): req = max(req, 2)
                elif (set(h["data"]) & ws): req = max(req, 1)
            elif h["kind"] == "salu":
                if ("m0", 0) in hw and (kind == "vmem" and "lds" in code): req = max(req, 1)
            need = max(need, req - dist)
            dist += h["states"]
            if dist > 20: break
        if need > 0: self.nop(need)
        ent = dict(kind=kind, w=w, r=r, states=1, mn=mn, passes=passes)
        if kind == "mfma": ent["srcc"] = regs_of(ops[0] if mn.startswith("v_smfmac") else ops[3])
        if kind == "vmem" and "store" in mn and ("x3" in mn or "x4" in mn):
            ent["wide_store"] = True; ent["data"] = regs_of(ops[0])
        if kind == "valu" and ("sdwa" in mn or ("op_sel" in code and not mn.startswith("v_pk"))): ent["opsel"] = True
        self.lines.append("    " + text)
        self.hist.append(ent)
        if len(self.hist) > 64: self.hist = self.hist[-40:]
    def branch(self, text):
        self.flush()
        self.I(text)
    def text(self):
        return "\n".join(self.lines) + "\n"
```

```python
import sys
from emit import Emitter

N, E = 12500, 800000
NODES, HN = 50, 25
NCH = 250
CSTRIDE = 70784
PAYOFF, TABOFF, KEYOFF = 0, 51200, 67584
KSTAGE = 51200
WSBYTES = NCH * CSTRIDE
KIN = 20
KNAME = "gather_scatter__tensor_product_equiv_equiformer__graph_kernel"
STAMPOFF = 24 << 20

class Cfg:
    nwg = 250
    st_flags = "sc1"
    ld_flags = "nt"
    rec_flags = "sc1"
    out_flags = ""
    pfx_lines = 192
    stamps = False
    cap = 1888
    x_noperm = 0
    x_noexp = 0
    x_nomfma = 0
    x_noload = 0
    x_samehalf = 0
    x_nobload = 0
    codepf = 26
    tlbpf = 0
    codeearly = 0
    sleep = 12
    psleep = 2
    probe = ""
    addtid = 0
    split = 0
    static1 = 1
    paypos = 0
    smf = 0
    zpk = 1
    splitw = 0
    cpfwg = 32
    wlate = 0
    coal = 1
    pf1_tile = -1
    pf1_lines = 256
    prio_g = 0
    prio_m = 0
    ld2_flags = None
    nowait = 1
    fastlast = 1
    pfx2_lines = 0
    pfx2_pos = 0
    oobtail = 1
    bearly = 1
    tidw3 = "0x00800000"

def srd(e, d, b, nbytes, w1=None, w3="0x20000"):
    e.I(f"s_mov_b32 s{d}, s{b}")
    if w1: e.I(f"s_or_b32 s{d+1}, s{b+1}, {w1}")
    else: e.I(f"s_mov_b32 s{d+1}, s{b+1}")
    e.I(f"s_mov_b32 s{d+2}, {nbytes}")
    e.I(f"s_mov_b32 s{d+3}, {w3}")

def scan64(e, v):
    for sh in (1, 2, 4, 8):
        e.I(f"v_add_u32_dpp v{v}, v{v}, v{v} row_shr:{sh} row_mask:0xf bank_mask:0xf")
    e.I(f"v_add_u32_dpp v{v}, v{v}, v{v} row_bcast:15 row_mask:0xa bank_mask:0xf")
    e.I(f"v_add_u32_dpp v{v}, v{v}, v{v} row_bcast:31 row_mask:0xc bank_mask:0xf")

def prefetch_x(e, nlines, vt, vtid, nthreads, slice_s, half, srdx, first=0, lds=False):
    if nlines <= 0: return 0
    e.I(f"s_mul_i32 s46, s{slice_s}, 782")
    if first: e.I(f"s_add_u32 s46, s46, {first}")
    e.I(f"s_mov_b32 s47, {nlines}")
    it = (nlines + nthreads - 1) // nthreads
    for k in range(it):
        e.I(f"v_add_u32 v{vt}, {k*nthreads}, v{vtid}")
        e.I(f"v_cmp_gt_u32 vcc, s47, v{vt}")
        e.I(f"v_add_u32 v{vt}, s46, v{vt}")
        e.I(f"v_and_b32 v{vt+1}, 1, v{vt}")
        e.I(f"v_lshrrev_b32 v{vt}, 1, v{vt}")
        e.I(f"v_lshlrev_b32 v{vt}, 9, v{vt}")
        e.I(f"v_lshl_add_u32 v{vt}, v{vt+1}, 7, v{vt}")
        e.I(f"v_cndmask_b32 v{vt}, 2.0, v{vt}, vcc")
        if lds:
            if half: e.I(f"v_add_u32 v{vt}, 256, v{vt}")
            e.I(f"buffer_load_dword v{vt}, s[{srdx}:{srdx+3}], 0 offen lds")
        else:
            e.I(f"buffer_load_dword v{vt+2}, v{vt}, s[{srdx}:{srdx+3}], 0 offen offset:{half*256}")
    return it

STV, TIDV = 127, 126
def stamp(e, c, slot, ins="s_memrealtime"):
    if not c.stamps: return
    e.I(f"{ins} s[90:91]")
    e.I("s_waitcnt lgkmcnt(0)")
    e.I(f"v_writelane_b32 v{STV}, s90, {slot}")

def stamp_store(e, c, vtmp):
    if not c.stamps: return
    e.I(f"v_lshrrev_b32 v{vtmp}, 6, v{TIDV}")
    e.I(f"s_lshl_b32 s90, s2, 4")
    e.I(f"v_add_u32 v{vtmp}, s90, v{vtmp}")
    e.I(f"v_lshlrev_b32 v{vtmp}, 7, v{vtmp}")
    e.I(f"v_and_b32 v{vtmp+1}, 63, v{TIDV}")
    e.I(f"v_lshl_add_u32 v{vtmp}, v{vtmp+1}, 2, v{vtmp}")
    e.I(f"v_cmp_gt_u32 vcc, 32, v{vtmp+1}")
    e.I(f"v_cndmask_b32 v{vtmp}, 2.0, v{vtmp}, vcc")
    e.I(f"s_mov_b32 s90, {STAMPOFF}")
    e.I(f"buffer_store_dword v{STV}, v{vtmp}, s[8:11], s90 offen")

def kernel_header(e, name):
    e.raw(f".globl {name}")
    e.raw(".p2align 8")
    e.raw(f".type {name},@function")
    e.raw(f"{name}:")
    e.hist = []

def kd(name, nv, ns):
    return f""".amdhsa_kernel {name}
  .amdhsa_next_free_vgpr {nv}
  .amdhsa_next_free_sgpr {ns}
  .amdhsa_accum_offset {(nv+3)//4*4}
  .amdhsa_group_segment_fixed_size 0
  .amdhsa_kernarg_size 96
  .amdhsa_user_sgpr_count 2
  .amdhsa_user_sgpr_kernarg_segment_ptr 1
  .amdhsa_system_sgpr_workgroup_id_x 1
  .amdhsa_float_denorm_mode_32 3
.end_amdhsa_kernel
"""

def path_of(jp, blk):
    if blk == 0: return (0, 0, 1) if jp == 0 else (2, jp, 1)
    k = blk - 1
    if jp == 0: return (3, 1 + k, 1)
    j = jp - 1
    if j == k: return (1, 0, 1)
    i = 3 - j - k
    return (4, 1 + i, 1 if k == (j + 1) % 3 else -1)

class Lay: pass

def spin(e, tag, vdst, vaddr, off, need, scnt, sval, sleep=None, bound="0x400000"):
    I = e.I
    I(f"s_mov_b32 s{scnt}, 0")
    e.label(f"L_sp{tag}")
    I(f"ds_read_b32 v{vdst}, v{vaddr} offset:{off}")
    I("s_waitcnt lgkmcnt(0)")
    I(f"v_readfirstlane_b32 s{sval}, v{vdst}")
    I(f"s_add_u32 s{scnt}, s{scnt}, 1")
    I(f"s_cmp_ge_u32 s{sval}, {need}")
    I(f"s_cbranch_scc1 L_sp{tag}_ok")
    if sleep: I(f"s_sleep {sleep}")
    I(f"s_cmp_lt_u32 s{scnt}, {bound}")
    I(f"s_cbranch_scc1 L_sp{tag}")
    e.label(f"L_sp{tag}_ok")

def tag_bad(e, dst, r, tmp, odd):
    I = e.I
    I(f"v_xor_b32 v{tmp}, s87, v{r}")
    I(f"v_xor_b32 v{dst}, s86, v{r+1}")
    I(f"v_lshrrev_b32 v{tmp}, 24, v{tmp}")
    I(f"v_or_b32 v{dst}, v{dst}, v{tmp}")
    I(f"v_xor_b32 v{tmp}, s3, v{r+3}")
    I(f"v_lshrrev_b32 v{tmp}, 12, v{tmp}")
    I(f"v_cndmask_b32 v{dst}, v{dst}, v{tmp}, {odd}")

def gen_main(e, c):
    L = Lay()
    CAP = c.cap
    NWG = c.nwg
    BOFF = CAP + 64
    HIST, HIST2, CUR2, CNT = 0, 256, 512, 768
    NEXT, DONE, GDONE, BSYNC, BREADY, TOTB = CNT, CNT + 16, CNT + 64, CNT + 96, CNT + 100, CNT + 104
    HISTB, HIST2B, CUR2B, INFO, NONCE = 1024, 1280, 1536, 1792, 2048
    RAW = 2176
    T = (RAW + 2 * BOFF * 16 + 255) // 256 * 256
    WRAD = T + NODES * 1024
    SCR = WRAD + 16384
    H1 = WRAD
    TI = SCR
    CEB = RAW + BOFF * 16
    SSTR, PL1, OSC = 2368, (1040 if c.smf else 1056), 2080
    lds = max(SCR + 12 * SSTR, T + 64 * 1024)
    assert lds <= 163840 and 2 * BOFF >= 3200 + 64, lds
    c.lds = lds
    kernel_header(e, KNAME)
    I = e.I
    wsbytes = (32 << 20) if c.stamps else WSBYTES
    sf, rf, lf = c.st_flags, c.rec_flags, c.ld_flags
    ODD = "s[26:27]"
    I(f"s_cmp_ge_u32 s2, {NWG}")
    I("s_cbranch_scc1 L_end")
    if c.stamps:
        I(f"v_mov_b32 v{STV}, 0")
        I(f"v_mov_b32 v{TIDV}, v0")
    stamp(e, c, 0)
    stamp(e, c, 26, "s_memtime")
    I("s_load_dwordx8 s[32:39], s[0:1], 0")
    I("s_load_dwordx8 s[40:47], s[0:1], 32")
    if NWG > NCH:
        I(f"s_cmp_lt_u32 s2, {NCH}")
        I("s_cselect_b32 s51, 800, 0")
    else:
        I("s_movk_i32 s51, 800")
    if c.coal:
        I("s_mul_i32 s48, s2, 1600")
        I("v_add_u32 v3, s48, v0")
        I("v_cmp_gt_u32 vcc, s51, v0")
        I("v_lshlrev_b32 v28, 3, v3")
        I("v_lshlrev_b32 v30, 4, v3")
        I("v_mul_u32_u24 v3, 12, v3")
        I("v_add_u32 v29, 6400, v28")
        I("s_and_saveexec_b64 s[26:27], vcc")
        I("s_cbranch_execz L1_noload")
        I("s_waitcnt lgkmcnt(0)")
        I(f"global_load_dwordx2 v[4:5], v28, s[40:41] {lf}")
        I(f"global_load_dwordx2 v[6:7], v29, s[40:41] {lf}")
        I("v_add_u32 v31, 12800, v30")
        I("v_add_u32 v27, 9600, v3")
        lds_ = [f"global_load_dwordx2 v[8:9], v28, s[38:39] {lf}", f"global_load_dwordx2 v[10:11], v29, s[38:39] {lf}",
                f"global_load_dwordx4 v[12:15], v30, s[36:37] {lf}", f"global_load_dwordx4 v[16:19], v31, s[36:37] {lf}",
                f"global_load_dwordx3 v[20:22], v3, s[34:35] {lf}", f"global_load_dwordx3 v[24:26], v27, s[34:35] {lf}"]
        def pay_loads():
            for k in ((0, 2, 4, 1, 3, 5) if c.splitw == 2 else range(6)): I(lds_[k])
        if c.paypos == 0: pay_loads()
    else:
        I("s_mul_i32 s48, s2, 800")
        I("v_add_u32 v3, s48, v0")
        I("v_cmp_gt_u32 vcc, s51, v0")
        I("v_lshlrev_b32 v26, 4, v3")
        I("v_lshlrev_b32 v27, 5, v3")
        I("v_mul_u32_u24 v3, 24, v3")
        I("s_and_saveexec_b64 s[26:27], vcc")
        I("s_cbranch_execz L1_noload")
        I("s_waitcnt lgkmcnt(0)")
        l2 = lf if c.ld2_flags is None else c.ld2_flags
        I(f"global_load_dwordx4 v[4:7], v26, s[40:41] {l2}")
        I(f"global_load_dwordx4 v[8:11], v26, s[38:39] {l2}")
        I(f"global_load_dwordx4 v[12:15], v27, s[36:37] {lf}")
        I(f"global_load_dwordx4 v[16:19], v27, s[36:37] offset:16 {lf}")
        I(f"global_load_dwordx4 v[20:23], v3, s[34:35] {lf}")
        I(f"global_load_dwordx2 v[24:25], v3, s[34:35] offset:16 {lf}")
    e.label("L1_noload")
    I("s_mov_b64 exec, -1")
    if c.paypos == 3:
        I(f"v_lshlrev_b32 v40, 1, v0")
        I(f"v_and_b32 v40, -4, v40")
        I(f"v_add_u32 v40, {H1}, v40")
        I("v_mov_b32 v41, 0")
        I("ds_write_b32 v40, v41")
        I("s_waitcnt lgkmcnt(0)")
        I("s_barrier")
        I("s_and_saveexec_b64 s[26:27], vcc")
        I("s_cbranch_execz L1_noload2")
        pay_loads()
        e.label("L1_noload2")
        I("s_mov_b64 exec, -1")
    if c.codepf and c.codeearly:
        I("s_getpc_b64 s[52:53]")
        I(f"s_mov_b32 s54, {c.codepf*1024}")
        I("s_mov_b32 s55, 0x20000")
        I("v_subrev_u32 v72, 768, v0")
        I("v_lshlrev_b32 v72, 7, v72")
        I("s_cmp_lg_u64 vcc, -1")
        I("s_cbranch_scc0 L1_nocpf")
        I("buffer_load_dword v73, v72, s[52:55], 0 offen")
        e.label("L1_nocpf")
    I("s_load_dwordx4 s[80:83], s[0:1], 72")
    I("s_load_dwordx2 s[84:85], s[0:1], 88")
    I("v_lshlrev_b32 v1, 4, v0")
    I("v_lshlrev_b32 v2, 5, v0")
    I("v_readfirstlane_b32 s21, v0")
    I("s_lshr_b32 s21, s21, 6")
    I("s_waitcnt lgkmcnt(0)")
    if c.addtid:
        srd(e, 4, 32, N * 512, w1=f"{16 << 16}", w3=c.tidw3)
    else:
        srd(e, 4, 32, N * 512)
    srd(e, 8, 84, wsbytes)
    srd(e, 12, 80, N * 512)
    srd(e, 16, 42, 2560)
    srd(e, 68, 44, 16384)
    srd(e, 72, 46, 24576)
    srd(e, 76, 82, 256)
    I("s_and_b32 s20, s2, 7")
    I("s_lshr_b32 s31, s2, 3")
    if NWG == 250:
        I("s_min_u32 s22, s20, 2")
        I("s_mul_i32 s20, s20, 31")
        I("s_add_u32 s20, s20, s22")
    else:
        I("s_lshl_b32 s20, s20, 5")
    I("s_add_u32 s20, s20, s31")
    I("s_mov_b32 s22, 0")
    I(f"s_movk_i32 s23, {NCH}")
    I("s_mov_b32 s24, 1")
    I("s_mov_b32 s26, 0xaaaaaaaa")
    I("s_mov_b32 s27, 0xaaaaaaaa")
    I("s_mov_b32 s28, 0x05040100")
    I("s_mov_b32 s29, 0x07060302")
    I("s_mov_b32 s30, 0xffff0000")
    I(f"s_mul_i32 s51, s2, {CSTRIDE}")
    I("s_cmp_ge_u32 s21, 13")
    I("s_cbranch_scc1 L1_aux")
    if c.paypos == 1:
        I("s_mov_b64 exec, vcc")
        pay_loads()
        I("s_mov_b64 exec, -1")
    I(f"s_mov_b32 s46, {H1}")
    if c.paypos != 3:
        I("v_lshl_add_u32 v40, v0, 2, s46")
        I("v_mov_b32 v41, 0")
    I("v_mov_b32 v42, 1")
    I(f"s_movk_i32 s49, {RAW}")
    I("s_mov_b32 s50, 0x05040302")
    I(f"s_mov_b32 s45, {(TI + 8 - 8*H1) & 0xffffffff}")
    if NWG == 250:
        I("s_mov_b32 s48, -25")
        I("s_movk_i32 s47, 249")
    else:
        I("s_movk_i32 s47, 6249")
        I("s_movk_i32 s48, -6250")
        I("s_mov_b32 s44, 1600210")
        I("v_mov_b32 v43, 65532")
    if c.paypos != 3:
        I("s_cmp_ge_u32 s21, 8")
        I("s_cbranch_scc1 L1_nz")
        I("ds_write_b32 v40, v41")
        I("s_waitcnt lgkmcnt(0)")
        e.label("L1_nz")
        I("s_barrier")
    I("s_and_b64 exec, exec, vcc")
    if c.paypos == 2: pay_loads()
    I(f"s_waitcnt vmcnt({6 if c.coal else 5})")
    stamp(e, c, 1)
    R4 = range(4)
    if NWG == 250:
        for i in R4: I(f"v_mul_u32_u24 v{44+i}, 0x147b, v{4+i}")
        for i in R4: I(f"v_lshrrev_b32 v{44+i}, 17, v{44+i}")
        for i in R4: I(f"v_cmp_lt_u32 s[{32+2*i}:{33+2*i}], s47, v{44+i}")
        for i in R4: I(f"v_cndmask_b32 v{36+i}, 0, 1, s[{32+2*i}:{33+2*i}]")
        for i in R4:
            I(f"v_sub_u32 v{48+i}, v{44+i}, v{36+i}")
            I(f"v_mad_u32_u24 v{44+i}, v{36+i}, 6, v{44+i}")
        for i in R4:
            I(f"v_mad_i32_i24 v{4+i}, v{48+i}, s48, v{4+i}")
            I(f"v_lshl_add_u32 v{44+i}, v{44+i}, 2, s46")
    else:
        for i in R4: I(f"v_cmp_lt_u32 s[{32+2*i}:{33+2*i}], s47, v{4+i}")
        for i in R4: I(f"v_cndmask_b32 v{36+i}, 0, 1, s[{32+2*i}:{33+2*i}]")
        for i in R4: I(f"v_mad_i32_i24 v{4+i}, v{36+i}, s48, v{4+i}")
        for i in R4: I(f"v_mul_u32_u24 v{44+i}, 0xa7c, v{4+i}")
        for i in R4: I(f"v_lshrrev_b32 v{44+i}, 16, v{44+i}")
        for i in R4: I(f"v_mad_u32_u24 v{48+i}, v{44+i}, s44, v43")
        for i in R4:
            I(f"v_lshrrev_b32 v{48+i}, 16, v{48+i}")
            I(f"v_mad_u32_u24 v{4+i}, v{36+i}, 25, v{4+i}")
        for i in R4:
            I(f"v_sub_u32 v{4+i}, v{4+i}, v{48+i}")
            I(f"v_lshl_add_u32 v{44+i}, v{36+i}, 8, v{44+i}")
        for i in R4: I(f"v_lshl_add_u32 v{44+i}, v{44+i}, 2, s46")
    for i in R4: I(f"ds_add_rtn_u32 v{36+i}, v{44+i}, v42")
    for i in R4: I(f"v_lshl_add_u32 v{48+i}, v{44+i}, 3, s45")
    for i in R4: I(f"v_lshlrev_b32 v{4+i}, 2, v{4+i}")
    I("s_waitcnt lgkmcnt(0)")
    I("s_barrier")
    for i in R4: I(f"v_min_u32 v{28+i}, {KIN}, v{36+i}")
    for i in R4: I(f"v_add_u32 v{48+i}, v{48+i}, v{28+i}")
    I("s_cmp_eq_u32 s21, 0")
    I("s_cbranch_scc1 L1_scan")
    for i in R4: I(f"ds_write_b8 v{48+i}, v{4+i}")
    I("s_branch L1_noscan")
    e.label("L1_scan")
    I("v_add_u32 v60, s46, v2")
    I("ds_read_b128 v[52:55], v60")
    I("ds_read_b128 v[56:59], v60 offset:16")
    I("s_waitcnt lgkmcnt(0)")
    I("v_mov_b32 v64, 0")
    I("v_mov_b32 v65, v52")
    for k in range(2, 8):
        I(f"v_add_u32 v{64+k}, v{63+k}, v{51+k}")
    I("v_add_u32 v61, v71, v59")
    I("v_max3_u32 v63, v52, v53, v54")
    I("v_max3_u32 v63, v63, v55, v56")
    I("v_max3_u32 v63, v63, v57, v58")
    I("v_max_u32 v63, v63, v59")
    I(f"v_cmp_lt_u32 s[42:43], {KIN}, v63")
    I("v_mov_b32 v62, v61")
    scan64(e, 62)
    I("v_sub_u32 v62, v62, v61")
    for k in range(8):
        I(f"v_add_u32 v{64+k}, v{64+k}, v62")
    I("ds_write_b128 v60, v[64:67] offset:2048")
    I("ds_write_b128 v60, v[68:71] offset:2064")
    I("s_cmp_lg_u64 s[42:43], 0")
    I("s_cselect_b32 s42, 1, 0")
    I("v_mov_b32 v63, s42")
    I(f"ds_write_b32 v41, v63 offset:{NONCE+8}")
    for i in R4: I(f"ds_write_b8 v{48+i}, v{4+i}")
    I("s_waitcnt lgkmcnt(4)")
    e.label("L1_noscan")
    I("s_barrier")
    stamp(e, c, 8)
    for i in R4: I(f"ds_read_b32 v{44+i}, v{44+i} offset:2048")
    I(f"ds_read_b32 v28, v41 offset:{NONCE+8}")
    I("s_waitcnt lgkmcnt(0)")
    I("v_readfirstlane_b32 s42, v28")
    for i in R4:
        I(f"v_add_u32 v{36+i}, v{36+i}, v{44+i}")
        I(f"v_lshl_add_u32 v{44+i}, v{36+i}, 4, s49")
    I("s_cmp_eq_u32 s42, 0")
    I("s_cbranch_scc1 L1_nokeys")
    for i in R4:
        I(f"ds_write_b8 v{36+i}, v{4+i} offset:{RAW+KSTAGE}")
    e.label("L1_nokeys")
    if not c.splitw:
        r3 = 24 if c.coal else 23
        if c.stamps: I("s_waitcnt vmcnt(0)")
        stamp(e, c, 31)
        I("s_waitcnt vmcnt(1)")
        I("v_mov_b32 v28, v20")
        I("v_perm_b32 v29, v8, v21, s28")
        I("ds_write2_b64 v44, v[12:13], v[28:29] offset0:0 offset1:1")
        I("v_alignbit_b32 v30, v22, v21, 16")
        I("v_perm_b32 v31, v9, v22, s50")
        I("ds_write2_b64 v45, v[14:15], v[30:31] offset0:0 offset1:1")
        I("s_waitcnt vmcnt(0)")
        stamp(e, c, 2)
        I(f"v_mov_b32 v32, v{r3}")
        I(f"v_perm_b32 v33, v10, v{r3+1}, s28")
        I("ds_write2_b64 v46, v[16:17], v[32:33] offset0:0 offset1:1")
        I(f"v_alignbit_b32 v34, v{r3+2}, v{r3+1}, 16")
        I(f"v_perm_b32 v35, v11, v{r3+2}, s50")
        I("ds_write2_b64 v47, v[18:19], v[34:35] offset0:0 offset1:1")
    elif c.splitw == 2:
        I("s_waitcnt vmcnt(3)")
        I("v_mov_b32 v28, v12"); I("v_mov_b32 v29, v13"); I("v_mov_b32 v30, v20")
        I("v_perm_b32 v31, v8, v21, s28")
        I("ds_write_b128 v44, v[28:31]")
        I("v_mov_b32 v12, v14"); I("v_mov_b32 v13, v15")
        I("v_alignbit_b32 v14, v22, v21, 16")
        I("v_perm_b32 v15, v9, v22, s50")
        I("ds_write_b128 v45, v[12:15]")
        I("s_waitcnt vmcnt(0)")
        stamp(e, c, 2)
        I("v_mov_b32 v32, v16"); I("v_mov_b32 v33, v17"); I("v_mov_b32 v34, v24")
        I("v_perm_b32 v35, v10, v25, s28")
        I("ds_write_b128 v46, v[32:35]")
        I("v_mov_b32 v16, v18"); I("v_mov_b32 v17, v19")
        I("v_alignbit_b32 v18, v26, v25, 16")
        I("v_perm_b32 v19, v11, v26, s50")
        I("ds_write_b128 v47, v[16:19]")
    else:
        I("s_waitcnt vmcnt(2)")
        for i in R4:
            I(f"ds_write_b64 v{44+i}, v[{12+2*i}:{13+2*i}]")
        I("s_waitcnt vmcnt(1)")
        I("v_mov_b32 v28, v20")
        I("v_perm_b32 v29, v8, v21, s28")
        I("ds_write_b64 v44, v[28:29] offset:8")
        I("v_alignbit_b32 v30, v22, v21, 16")
        I("v_perm_b32 v31, v9, v22, s50")
        I("ds_write_b64 v45, v[30:31] offset:8")
        I("s_waitcnt vmcnt(0)")
        stamp(e, c, 2)
        r3 = 24 if c.coal else 23
        I(f"v_mov_b32 v32, v{r3}")
        I(f"v_perm_b32 v33, v10, v{r3+1}, s28")
        I("ds_write_b64 v46, v[32:33] offset:8")
        I(f"v_alignbit_b32 v34, v{r3+2}, v{r3+1}, 16")
        I(f"v_perm_b32 v35, v11, v{r3+2}, s50")
        I("ds_write_b64 v47, v[34:35] offset:8")
    I("s_mov_b64 exec, -1")
    I("s_waitcnt lgkmcnt(0)")
    I("s_branch L1_copy")
    e.label("L1_aux")
    I("v_subrev_u32 v64, 832, v0")
    I("v_lshlrev_b32 v65, 4, v64")
    if c.tlbpf:
        I("v_and_b32 v74, 63, v0")
        I(f"s_mov_b32 s42, {WSBYTES // 64 // 128 * 128}")
        I("v_mul_u32_u24 v75, s42, v74")
        I(f"s_mov_b32 s42, {N * 512 // 64 // 128 * 128}")
        I("v_mul_u32_u24 v74, s42, v74")
        I("s_cmp_lg_u32 s21, 14")
        I("s_cbranch_scc1 L1_notlb")
        if c.tlbpf & 1: I("buffer_load_dword v76, v75, s[8:11], 0 offen")
        if c.tlbpf & 2: I("buffer_load_dword v77, v74, s[4:7], 0 offen")
        if c.tlbpf & 4: I("buffer_load_dword v78, v74, s[12:15], 0 offen")
        e.label("L1_notlb")
    if c.codepf and not c.codeearly:
        I(f"s_cmp_ge_u32 s2, {c.cpfwg}")
        I("s_cbranch_scc1 L1_nocpf")
        I("s_getpc_b64 s[40:41]")
        e.label("L_cpf")
        I("s_mov_b32 s42, L_codeend-L_cpf")
        I("s_mov_b32 s43, 0x20000")
        I("v_lshlrev_b32 v72, 7, v64")
        I("buffer_load_dword v73, v72, s[40:43], 0 offen")
        e.label("L1_nocpf")
    I("s_cmp_lg_u32 s21, 15")
    I("s_cbranch_scc1 L1_notag")
    I("s_cmp_lg_u32 s2, 0")
    I("s_cbranch_scc1 L1_notag")
    I("s_memrealtime s[44:45]")
    I("s_waitcnt lgkmcnt(0)")
    I("s_and_b32 s45, s45, 0x7f")
    I("s_or_b32 s45, s45, 0x80")
    I("s_lshl_b32 s45, s45, 24")
    I("v_mov_b32 v68, s44")
    I("v_mov_b32 v69, s45")
    I("s_mov_b64 exec, 1")
    I("buffer_store_dwordx2 v[68:69], off, s[76:79], 0 sc1")
    I("s_mov_b64 exec, -1")
    e.label("L1_notag")
    I("s_cmp_lg_u32 s21, 13")
    I("s_cbranch_scc1 L1_nozero")
    for k in range(4): I(f"v_mov_b32 v{4+k}, 0")
    I("ds_write_b128 v65, v[4:7]")
    I("ds_write_b128 v65, v[4:7] offset:1024")
    e.label("L1_nozero")
    if c.paypos != 3: I("s_barrier")
    I("s_barrier"); I("s_barrier")
    I("s_cmp_lg_u32 s21, 15")
    I("s_cbranch_scc1 L1_notag2")
    I("s_mov_b32 s44, 0")
    e.label("L1_tagpoll")
    I("buffer_load_dwordx2 v[68:69], off, s[76:79], 0 sc1")
    I("s_add_u32 s44, s44, 1")
    I("s_waitcnt vmcnt(0)")
    I("v_readfirstlane_b32 s45, v69")
    e.nop(1)
    I("s_cmp_lg_u32 s45, 0")
    I("s_cbranch_scc1 L1_tagok")
    I("s_cmp_lt_u32 s44, 0x100000")
    I("s_cbranch_scc1 L1_tagpoll")
    e.label("L1_tagok")
    I("v_mov_b32 v70, 0")
    I("s_mov_b64 exec, 1")
    I(f"ds_write_b64 v70, v[68:69] offset:{NONCE}")
    I("s_mov_b64 exec, -1")
    e.label("L1_notag2")
    def w_loads():
        for k in range(8):
            I(f"s_movk_i32 s46, {k*3072}")
            I(f"buffer_load_dwordx4 v[{28+4*k}:{31+4*k}], v65, s[72:75], s46 offen")
        for k in range(6):
            I(f"s_movk_i32 s46, {k*3072}")
            I(f"buffer_load_dwordx4 v[{72+4*k}:{75+4*k}], v65, s[68:71], s46 offen")
    if not c.wlate: w_loads()
    prefetch_x(e, c.pfx_lines, 60, 64, 192, 31, 0, 4)
    I("s_waitcnt lgkmcnt(0)")
    e.flush()
    e.label("L1_copy")
    I("s_barrier")
    stamp(e, c, 3)
    I(f"v_mov_b32 v25, {H1+2048+1024}")
    I("ds_read_b32 v99, v25")
    I(f"ds_read_b128 v[8:11], v1 offset:{RAW}")
    I(f"ds_read_b128 v[12:15], v1 offset:{RAW+16384}")
    I("v_mov_b32 v25, 0")
    I(f"ds_read_b96 v[96:98], v25 offset:{NONCE}")
    I(f"v_add_u32 v25, {TI}, v1")
    I(f"ds_read_b128 v[16:19], v1 offset:{RAW+32768}")
    I(f"ds_read_b128 v[20:23], v1 offset:{RAW+49152}")
    I("ds_read_b128 v[100:103], v25")
    I("v_lshrrev_b32 v25, 1, v0")
    I("v_lshlrev_b32 v25, 2, v25")
    I(f"v_add_u32 v25, {H1}, v25")
    I("ds_read2st64_b32 v[104:105], v25 offset0:0 offset1:8")
    I("ds_read_b32 v106, v25 offset:1024")
    I("v_add_u32 v2, 16384, v1")
    I("v_add_u32 v25, 1024, v0")
    I("s_waitcnt lgkmcnt(8)")
    I("v_add_u32 v99, 7, v99")
    I("v_and_b32 v99, -8, v99")
    I("v_cmp_lt_u32 s[52:53], v0, v99")
    I("v_cmp_lt_u32 s[54:55], v25, v99")
    I("v_readfirstlane_b32 s88, v99")
    I("v_add_u32 v3, 32768, v1")
    I("v_add_u32 v24, 49152, v1")
    I("s_mov_b64 exec, s[52:53]")
    I("s_waitcnt lgkmcnt(7)")
    I(f"buffer_store_dwordx4 v[8:11], v1, s[8:11], s51 offen {sf}")
    I("s_mov_b64 exec, s[54:55]")
    I("s_cbranch_execz L1_nop1")
    I("s_waitcnt lgkmcnt(6)")
    I(f"buffer_store_dwordx4 v[12:15], v2, s[8:11], s51 offen {sf}")
    e.label("L1_nop1")
    I("s_mov_b64 exec, -1")
    I("s_movk_i32 s48, 128")
    I("v_cmp_gt_u32 s[92:93], s48, v0")
    I("s_waitcnt lgkmcnt(0)")
    I("v_readfirstlane_b32 s86, v96")
    I("v_readfirstlane_b32 s87, v97")
    I("v_readfirstlane_b32 s42, v98")
    I("v_lshl_or_b32 v104, v104, 12, v105")
    I("v_or_b32 v97, v97, v104")
    I(f"v_cndmask_b32 v100, v97, v100, {ODD}")
    I(f"v_cndmask_b32 v101, v96, v101, {ODD}")
    I("v_lshl_or_b32 v106, v96, 12, v106")
    I(f"v_cndmask_b32 v103, v103, v106, {ODD}")
    I("s_lshl_b32 s3, s86, 12")
    I(f"s_add_u32 s49, s51, {TABOFF}")
    I("s_cmp_gt_u32 s88, 2048")
    I("s_cselect_b32 s25, 0, 8")
    I("s_cmp_eq_u32 s42, 0")
    I("s_cbranch_scc1 L1_nokeyst")
    I(f"s_add_u32 s42, s51, {KEYOFF-KSTAGE}")
    I("v_subrev_u32 v25, 128, v0")
    I("s_movk_i32 s43, 200")
    I("v_cmp_gt_u32 vcc, s43, v25")
    I("s_and_saveexec_b64 s[44:45], vcc")
    I("s_cbranch_execz L1_nokeyst2")
    I(f"buffer_store_dwordx4 v[20:23], v24, s[8:11], s42 offen {sf}")
    e.label("L1_nokeyst2")
    I("s_mov_b64 exec, -1")
    e.label("L1_nokeyst")
    stamp(e, c, 4)
    def handoff(tag, mid):
        I("s_waitcnt vmcnt(0)")
        stamp(e, c, 6)
        I("s_barrier")
        I("s_cmp_ge_u32 s21, s25")
        I(f"s_cbranch_scc1 L_noearly{tag}")
        I(f"buffer_store_dwordx4 v[100:103], v1, s[8:11], s49 offen {sf}")
        e.label(f"L_noearly{tag}")
        I(f"buffer_store_dwordx4 v[16:19], v3, s[8:11], s51 offen {sf}")
        for k, (m, neg, regs, va) in enumerate((("s[54:55]", 1, "v[12:15]", "v2"), ("s[92:93]", 0, "v[20:23]", "v24"), ("s[52:53]", 1, "v[8:11]", "v1"))):
            I(f"s_not_b64 exec, {m}" if neg else f"s_mov_b64 exec, {m}")
            I(f"s_cbranch_execz L_stskip{tag}{k}")
            I(f"buffer_store_dwordx4 {regs}, {va}, s[8:11], s51 offen {sf}")
            e.label(f"L_stskip{tag}{k}")
        I("s_mov_b64 exec, -1")
        mid()
        I("s_waitcnt vmcnt(0) lgkmcnt(0)")
        stamp(e, c, 5)
        I("s_barrier")
        I("s_cmp_lt_u32 s21, s25")
        I(f"s_cbranch_scc1 L_nolate{tag}")
        I(f"buffer_store_dwordx4 v[100:103], v1, s[8:11], s49 offen {sf}")
        e.label(f"L_nolate{tag}")
    I("s_cmp_lt_u32 s21, 4")
    e.branch("s_cbranch_scc1 L2_gemm")

    if c.wlate:
        I("s_cmp_lt_u32 s21, 13")
        I("s_cbranch_scc1 L2_noWl")
        w_loads()
        e.label("L2_noWl")
    VLANE, VINFO, VNEXT = 108, 109, 110
    VLOFF, VMASK, VOW, VOR, VSCRW, VTRA, VWR, VL16 = 111, 112, 113, 114, 115, 116, 117, 118
    VT0, VT1, VONE, VSEL = 119, 120, 121, 122
    VJ, VCH, VSEG = 123, 124, 125
    I(f"v_and_b32 v{VLANE}, 63, v0")
    I(f"v_mov_b32 v{VONE}, 1")
    I(f"v_mov_b32 v{VMASK}, s30")
    I(f"v_lshrrev_b32 v{VT1}, 4, v{VLANE}")
    I(f"v_lshlrev_b32 v{VL16}, 4, v{VLANE}")
    if c.addtid:
        I(f"v_and_b32 v{VT0}, 3, v{VLANE}")
        I(f"v_lshlrev_b32 v{VLOFF}, 4, v{VT0}")
    else:
        I(f"v_and_b32 v{VT0}, 15, v{VLANE}")
        I(f"v_lshlrev_b32 v{VLOFF}, 4, v{VT0}")
    I("s_sub_u32 s43, s21, 4")
    I(f"s_mul_i32 s43, s43, {SSTR}")
    I(f"s_add_u32 s43, s43, {SCR}")
    I(f"v_add_u32 v{VSCRW}, s43, v{VL16}")
    I(f"v_lshlrev_b32 v{VOR}, 5, v{VT1}")
    I(f"v_add_u32 v{VOR}, s43, v{VOR}")
    I(f"v_lshlrev_b32 v{VTRA}, 4, v{VT1}")
    I(f"v_bfe_u32 v{VT1}, v{VLANE}, 2, 2")
    I(f"v_lshl_add_u32 v{VTRA}, v{VT1}, 6, v{VTRA}")
    I(f"v_and_b32 v{VT1}, 1, v{VLANE}")
    I(f"v_lshl_add_u32 v{VTRA}, v{VT1}, 3, v{VTRA}")
    I(f"v_bfe_u32 v{VT1}, v{VLANE}, 1, 1")
    I(f"v_mul_u32_u24 v{VT1}, {PL1}, v{VT1}")
    I(f"v_add3_u32 v{VTRA}, v{VTRA}, v{VT1}, s43")
    I(f"v_and_b32 v{VOW}, 32, v{VLANE}")
    I(f"v_and_b32 v{VT1}, 3, v{VLANE}")
    I(f"v_lshl_add_u32 v{VOW}, v{VT1}, 3, v{VOW}")
    I(f"v_bfe_u32 v{VT1}, v{VLANE}, 2, 3")
    I(f"v_add_u32 v{VOW}, v{VOW}, v{VT1}")
    I(f"v_lshlrev_b32 v{VOW}, 2, v{VOW}")
    I(f"v_add_u32 v{VOW}, s43, v{VOW}")
    I(f"v_add_u32 v{VWR}, {WRAD}, v{VL16}")
    I("s_sub_u32 s42, s21, 4")
    I("s_mul_i32 s83, s42, 24")
    I(f"v_and_b32 v{VJ}, 7, v{VLANE}")
    I(f"v_lshrrev_b32 v{VSEG}, 3, v{VLANE}")
    I(f"s_mov_b32 s42, {CSTRIDE}")
    I(f"v_mul_u32_u24 v{VCH}, s42, v{VSEG}")
    I(f"v_lshlrev_b32 v{VSEG}, 5, v{VSEG}")
    I(f"v_add_u32 v{VSEG}, s43, v{VSEG}")
    I(f"v_or_b32 v{VSEL}, 0x0c0c0c00, v{VJ}")
    NP, NW = 3, 3
    I(f"s_mul_i32 s79, s83, {CSTRIDE}")
    for p in range(NP):
        I(f"s_add_u32 s{74+p}, s79, {8*p*CSTRIDE+PAYOFF}")
        I(f"s_add_u32 s{80+p}, s79, {8*p*CSTRIDE+KEYOFF}")
    I("s_mov_b32 s78, 0x100000")
    I("s_mov_b32 s88, s20")
    I("s_mov_b32 s89, 0")
    I(f"s_movk_i32 s48, {HN}")
    def w_stage():
        I("s_cmp_lt_u32 s21, 13")
        I("s_cbranch_scc1 L2_noW")
        I(f"v_add_u32 v65, {T}, v65")
        for k in range(8):
            I(f"ds_write_b128 v65, v[{28+4*k}:{31+4*k}] offset:{16384 + k*3072}")
        for k in range(5):
            I(f"ds_write_b128 v65, v[{72+4*k}:{75+4*k}] offset:{k*3072}")
        I("s_cmp_lg_u32 s21, 13")
        I("s_cbranch_scc1 L2_noW")
        I(f"ds_write_b128 v65, v[92:95] offset:{5*3072}")
        e.label("L2_noW")
    handoff("g", w_stage)
    PAY, KEY, RNK, CNTR, KAD, PAD, X, EN = 0, 36, 45, 54, 57, 60, 64, 72
    MSK = 50
    e.label("L2_g_round")
    I(f"v_and_b32 v{VJ}, 7, v{VLANE}")
    I(f"v_or_b32 v{VSEL}, 0x0c0c0c00, v{VJ}")
    I(f"v_lshrrev_b32 v{X}, 1, v{VLANE}")
    I(f"s_sub_u32 s42, {NCH}, s83")
    I("s_min_i32 s42, s42, 24")
    I(f"v_cmp_gt_i32 s[46:47], s42, v{X}")
    I(f"s_mov_b32 s42, {CSTRIDE}")
    I(f"v_mul_u32_u24 v{X+1}, s42, v{X}")
    I(f"v_and_b32 v{X+2}, 16, v{VL16}")
    I(f"v_add_u32 v{X+1}, v{X+1}, v{X+2}")
    I(f"v_cndmask_b32 v{X+1}, 2.0, v{X+1}, s[46:47]")
    I("s_lshl_b32 s43, s88, 5")
    I(f"s_add_u32 s43, s43, {TABOFF}")
    I("s_add_u32 s43, s43, s79")
    I("s_mov_b32 s44, 0")
    I(f"v_lshl_add_u32 v{VT1}, v{VJ}, 4, v{VCH}")
    e.label("L2_poll")
    I(f"buffer_load_dwordx4 v[{EN}:{EN+3}], v{X+1}, s[8:11], s43 offen sc1")
    I("s_add_u32 s44, s44, 1")
    I("s_waitcnt vmcnt(0)")
    tag_bad(e, X+2, EN, X+3, ODD)
    I(f"v_cmp_ne_u32 vcc, 0, v{X+2}")
    e.nop(2)
    I("s_and_b64 vcc, vcc, s[46:47]")
    I("s_cbranch_scc0 L2_poll_ok")
    I(f"s_sleep {c.psleep}")
    I("s_cmp_lt_u32 s44, s78")
    I("s_cbranch_scc1 L2_poll")
    I("s_mov_b32 s78, 0")
    e.label("L2_poll_ok")
    I("s_cmp_lg_u32 s23, 1")
    I("s_cbranch_scc1 L2_nofilter")
    I("s_sub_u32 s42, s22, s83")
    I(f"v_cmp_eq_u32 vcc, s42, v{X}")
    I(f"v_cndmask_b32 v{EN}, 0, v{EN}, vcc")
    e.label("L2_nofilter")
    I(f"ds_write_b128 v{VSCRW}, v[{EN}:{EN+3}]")
    I(f"v_add_u32 v{X+1}, 8, v{VJ}")
    stamp(e, c, 7)
    def msk(p, w): return f"s[{MSK+4*p+2*w}:{MSK+4*p+2*w+1}]" if w < 2 else f"s[{MSK+12+2*p}:{MSK+13+2*p}]"
    def pay(p, w): return f"v[{PAY+12*p+4*w}:{PAY+12*p+4*w+3}]"
    for p in range(NP):
        I(f"ds_read_b128 v[{EN+8*p}:{EN+8*p+3}], v{VSEG} offset:{256*p}")
        I(f"ds_read_b128 v[{EN+8*p+4}:{EN+8*p+7}], v{VSEG} offset:{256*p+16}")
    for p in range(NP):
        en, cnt = EN + 8*p, CNTR + p
        if p == 0: I("s_waitcnt lgkmcnt(0)")
        I(f"v_bfe_u32 v{cnt}, v{en}, 12, 12")
        I(f"v_and_b32 v{PAD+p}, 0xfff, v{en}")
        I(f"v_cmp_lt_u32 {msk(p,0)}, v{VJ}, v{cnt}")
        I(f"v_cmp_lt_u32 {msk(p,1)}, v{X+1}, v{cnt}")
        I(f"v_perm_b32 v{KEY+3*p}, v{en+3}, v{en+2}, v{VSEL}")
        I(f"v_perm_b32 v{KEY+3*p+1}, v{en+5}, v{en+4}, v{VSEL}")
        I(f"v_lshl_add_u32 v{PAD+p}, v{PAD+p}, 4, v{VT1}")
        for w in range(2):
            I(f"s_mov_b64 exec, {msk(p,w)}")
            I(f"s_cbranch_execz L2_nop{p}")
            I(f"ds_add_rtn_u32 v{RNK+3*p+w}, v{KEY+3*p+w}, v{VONE} offset:{HIST}")
            I(f"buffer_load_dwordx4 {pay(p,w)}, v{PAD+p}, s[8:11], s{74+p} offen offset:{128*w} {rf}")
        e.label(f"L2_nop{p}")
        I("s_mov_b64 exec, -1")
    I(f"v_max3_u32 v{VT0}, v{CNTR}, v{CNTR+1}, v{CNTR+2}")
    I(f"v_cmp_lt_u32 vcc, 16, v{VT0}")
    I("s_mov_b32 s25, 0")
    e.nop(1)
    I("s_cmp_eq_u64 vcc, 0")
    I("s_cbranch_scc1 L2_noextraA")
    I("s_mov_b32 s25, 1")
    I(f"v_add_u32 v{X+2}, 16, v{VJ}")
    for p in range(NP):
        en = EN + 8*p
        I(f"v_min_u32 v{X+3}, {KIN}, v{CNTR+p}")
        I(f"v_cmp_lt_u32 {msk(p,2)}, v{X+2}, v{X+3}")
        I(f"v_perm_b32 v{KEY+3*p+2}, v{en+6}, v{en+6}, v{VSEL}")
        I(f"v_sub_u32 v{KAD+p}, v{PAD+p}, v{VCH}")
        I(f"v_lshrrev_b32 v{KAD+p}, 4, v{KAD+p}")
        I(f"v_add_u32 v{KAD+p}, v{KAD+p}, v{VCH}")
        e.flush()
        I(f"s_mov_b64 exec, {msk(p,2)}")
        I(f"ds_add_rtn_u32 v{RNK+3*p+2}, v{KEY+3*p+2}, v{VONE} offset:{HIST}")
        I(f"buffer_load_dwordx4 {pay(p,2)}, v{PAD+p}, s[8:11], s{74+p} offen offset:256 {rf}")
        I("s_mov_b64 exec, -1")

    def extra_count(tag, first, vj, vkad, vcnt, skey, vone, hist, y):
        I(f"v_add_u32 v{y}, {first}, v{vj}")
        I(f"v_add_u32 v{y+1}, {first}, v{vkad}")
        e.label(f"L_xa{tag}")
        I(f"v_cmp_lt_u32 vcc, v{y}, v{vcnt}")
        I("s_and_saveexec_b64 s[44:45], vcc")
        e.branch(f"s_cbranch_execz L_xa{tag}_done")
        I(f"buffer_load_ubyte v{y+2}, v{y+1}, s[8:11], s{skey} offen {rf}")
        I("s_waitcnt vmcnt(0)")
        I(f"ds_add_u32 v{y+2}, v{vone} offset:{hist}")
        I("s_mov_b64 exec, -1")
        I(f"v_add_u32 v{y}, 8, v{y}")
        I(f"v_add_u32 v{y+1}, 8, v{y+1}")
        e.branch(f"s_branch L_xa{tag}")
        e.label(f"L_xa{tag}_done")
        I("s_mov_b64 exec, -1")
    def extra_move(tag, first, vj, vkad, vpad, vcnt, skey, spay, vone, cur, vbase, y, d):
        I(f"v_add_u32 v{y}, {first}, v{vj}")
        I(f"v_add_u32 v{y+1}, {first}, v{vkad}")
        I(f"v_add_u32 v{vpad}, {16*first}, v{vpad}")
        e.label(f"L_xb{tag}")
        I(f"v_cmp_lt_u32 vcc, v{y}, v{vcnt}")
        I("s_and_saveexec_b64 s[44:45], vcc")
        e.branch(f"s_cbranch_execz L_xb{tag}_done")
        I(f"buffer_load_ubyte v{y+2}, v{y+1}, s[8:11], s{skey} offen {rf}")
        I(f"buffer_load_dwordx4 v[{d}:{d+3}], v{vpad}, s[8:11], s{spay} offen {rf}")
        I("s_waitcnt vmcnt(0)")
        I(f"ds_add_rtn_u32 v{y+3}, v{y+2}, v{vone} offset:{cur}")
        I("s_mov_b64 exec, -1")
        I(f"ds_bpermute_b32 v{y+2}, v{y+2}, v{vbase}")
        I("s_waitcnt lgkmcnt(0)")
        I(f"v_add_lshl_u32 v{y+2}, v{y+2}, v{y+3}, 4")
        I("s_mov_b64 exec, vcc")
        I(f"ds_write_b128 v{y+2}, v[{d}:{d+3}] offset:{RAW}")
        I("s_mov_b64 exec, -1")
        I(f"v_add_u32 v{y}, 8, v{y}")
        I(f"v_add_u32 v{y+1}, 8, v{y+1}")
        I(f"v_add_u32 v{vpad}, 128, v{vpad}")
        e.branch(f"s_branch L_xb{tag}")
        e.label(f"L_xb{tag}_done")
        I("s_mov_b64 exec, -1")
    for p in range(NP):
        extra_count(f"a{p}", KIN, VJ, KAD+p, CNTR+p, 80+p, VONE, HIST2, X)
    e.label("L2_noextraA")
    I("s_waitcnt lgkmcnt(0)")
    stamp(e, c, 14)
    I("s_barrier")
    stamp(e, c, 15)
    C1, CT, BS = X + 4, X + 5, X + 6
    I(f"v_lshlrev_b32 v{VT0}, 2, v{VLANE}")
    I(f"ds_read_b32 v{C1}, v{VT0} offset:{HIST}")
    I(f"ds_read_b32 v{CT}, v{VT0} offset:{HIST2}")
    I("s_waitcnt lgkmcnt(0)")
    I(f"v_add_u32 v{CT}, v{C1}, v{CT}")
    I(f"v_mov_b32 v{BS}, v{CT}")
    scan64(e, BS)
    I(f"v_readlane_b32 s46, v{BS}, 63")
    I(f"v_sub_u32 v{BS}, v{BS}, v{CT}")
    I(f"s_cmp_eq_u32 s23, 1")
    I(f"s_cselect_b32 s42, -1, {CAP}")
    for p in range(NP):
        for w in range(2):
            I(f"ds_bpermute_b32 v{KEY+3*p+w}, v{KEY+3*p+w}, v{BS}")
    I(f"v_lshl_or_b32 v{VINFO}, v{CT}, 16, v{BS}")
    I(f"s_cmp_gt_u32 s46, s42")
    I("s_cbranch_scc1 L2_g_overflow")
    I("s_cmp_lg_u32 s21, 5")
    I("s_cbranch_scc1 L2_noinfo")
    I(f"s_mov_b64 exec, {(1 << HN) - 1}")
    I(f"ds_write_b32 v{VT0}, v{VINFO} offset:{INFO}")
    I("s_mov_b64 exec, -1")
    e.label("L2_noinfo")
    I("s_cmp_lg_u32 s21, 4")
    I("s_cbranch_scc1 L2_noguard")
    I("s_lshl_b32 s46, s46, 4")
    for k in range(4): I(f"v_mov_b32 v{EN+k}, 0")
    I(f"v_add_u32 v{VT0}, s46, v{VL16}")
    I(f"ds_write_b128 v{VT0}, v[{EN}:{EN+3}] offset:{RAW}")
    e.label("L2_noguard")
    I("s_waitcnt lgkmcnt(0)")
    for p in range(NP):
        for w in range(2):
            I(f"v_add_lshl_u32 v{KEY+3*p+w}, v{KEY+3*p+w}, v{RNK+3*p+w}, 4")
    stamp(e, c, 27)
    I("s_waitcnt vmcnt(0)")
    stamp(e, c, 9)
    for p in range(NP):
        for w in range(2):
            I(f"s_mov_b64 exec, {msk(p,w)}")
            I(f"ds_write_b128 v{KEY+3*p+w}, {pay(p,w)} offset:{RAW}")
    I("s_mov_b64 exec, -1")
    I("s_cmp_eq_u32 s25, 0")
    I("s_cbranch_scc1 L2_noextraB")
    for p in range(NP):
        I(f"ds_bpermute_b32 v{KEY+3*p+2}, v{KEY+3*p+2}, v{BS}")
    I("s_waitcnt lgkmcnt(0)")
    for p in range(NP):
        I(f"v_add_lshl_u32 v{KEY+3*p+2}, v{KEY+3*p+2}, v{RNK+3*p+2}, 4")
        I(f"s_mov_b64 exec, {msk(p,2)}")
        I(f"ds_write_b128 v{KEY+3*p+2}, {pay(p,2)} offset:{RAW}")
        I("s_mov_b64 exec, -1")
    I(f"v_add_u32 v{BS}, v{BS}, v{C1}")
    for p in range(NP):
        extra_move(f"a{p}", KIN, VJ, KAD+p, PAD+p, CNTR+p, 80+p, 74+p, VONE, CUR2, BS, X, EN)
    e.label("L2_noextraB")
    I("s_waitcnt lgkmcnt(0)")
    stamp(e, c, 28)
    I("s_barrier")
    I(f"ds_read_b32 v{VT0}, v{VL16} offset:{TOTB}")
    if c.static1:
        I("s_sub_u32 s42, s21, 16")
        I(f"v_mov_b32 v{VNEXT}, s42")
    else:
        I("s_mov_b64 exec, 1")
        I(f"ds_add_rtn_u32 v{VNEXT}, v{VL16}, v{VONE} offset:{NEXT}")
        I("s_mov_b64 exec, -1")
    I("s_waitcnt lgkmcnt(0)")
    I(f"v_readfirstlane_b32 s42, v{VT0}")
    e.nop(1)
    I(f"s_cmp_gt_u32 s42, {CAP}")
    I("s_cbranch_scc1 L2_g_overflow")
    stamp(e, c, 10)
    stamp(e, c, 24, "s_memtime")
    if c.prio_g: I(f"s_setprio {c.prio_g}")
    (gather_loop_s if c.smf else gather_loop)(e, c, locals())
    e.label("L2_g_done")
    stamp(e, c, 11)
    stamp(e, c, 25, "s_memtime")
    I("s_cmp_lg_u32 s24, 0")
    e.branch("s_cbranch_scc1 L2_g_exit")
    I("s_add_u32 s89, s89, 1")
    I("s_branch L2_g_slow")
    e.label("L2_g_overflow")
    I("s_mov_b32 s89, 0")
    I("s_mov_b32 s23, 1")
    I("s_movk_i32 s48, 64")
    e.label("L2_g_slow")
    I("s_waitcnt vmcnt(0) lgkmcnt(0)")
    I("s_barrier")
    I("s_lshr_b32 s22, s89, 1")
    I("s_and_b32 s88, s89, 1")
    I("s_lshl_b32 s88, s88, 8")
    I("s_add_u32 s88, s88, s20")
    I(f"s_cmp_eq_u32 s89, {2*NCH-1}")
    I("s_cselect_b32 s24, 1, 0")
    I("s_barrier")
    e.branch("s_branch L2_g_round")
    e.label("L2_g_exit")
    stamp_store(e, c, 90)
    I("s_endpgm")

    e.label("L2_gemm")
    W, G, TA, TF = 0, 40, 104, 108
    X0, X1 = 124, 125
    I("v_and_b32 v104, 63, v0")
    I("v_lshlrev_b32 v105, 4, v104")
    lut = 0
    for jp in range(4):
        for blk in range(4):
            p, i, s = path_of(jp, blk)
            lut |= (p | (8 if s < 0 else 0)) << (4 * (jp * 4 + blk))
    I(f"s_mov_b32 s44, {lut & 0xffffffff}")
    I(f"s_mov_b32 s45, {lut >> 32}")
    for h in range(2):
        I("v_lshrrev_b32 v106, 4, v104")
        I("v_bfe_u32 v107, v104, 3, 1")
        I("v_lshl_add_u32 v106, v106, 2, v107")
        I(f"v_add_lshl_u32 v106, v106, {2*h}, 2")
        I(f"v_lshrrev_b64 v[108:109], v106, s[44:45]")
        I(f"v_and_b32 v106, 7, v108")
        I(f"v_and_b32 v{110+h}, 8, v108")
        I(f"v_lshlrev_b32 v{110+h}, 28, v{110+h}")
        I("v_and_b32 v107, 7, v104")
        I("v_lshlrev_b32 v107, 3, v107")
        I("v_lshl_add_u32 v106, v106, 6, v107")
        I("v_add_u32 v106, s21, v106")
        I(f"v_lshlrev_b32 v{112+h}, 1, v106")
    I("v_mov_b32 v117, v0")
    handoff("m", lambda: None)
    if c.pfx2_pos == 0: prefetch_x(e, c.pfx2_lines, 114, 117, 256, 31, 0, 4, c.pfx_lines)
    WT = 80
    for k in range(4):
        h, qo = k >> 1, (k & 1) * 4
        for d in range(4):
            I(f"buffer_load_ushort v{WT+4*k+d}, v{112+h}, s[16:19], 0 offen offset:{d*640+qo*2}")
    I("v_lshrrev_b32 v106, 4, v104")
    I("v_lshlrev_b32 v106, 10, v106")
    I("v_bfe_u32 v107, v104, 2, 2")
    I("v_lshl_add_u32 v106, v107, 7, v106")
    I("v_and_b32 v107, 3, v104")
    I("v_lshl_add_u32 v106, v107, 3, v106")
    I("s_lshl_b32 s42, s21, 5")
    I(f"s_add_u32 s42, s42, {T}")
    I("v_add_u32 v106, s42, v106")
    for f in range(10):
        I(f"ds_read_b64_tr_b16 v[{W+4*f}:{W+4*f+1}], v106 offset:{f*4096}")
        I(f"ds_read_b64_tr_b16 v[{W+4*f+2}:{W+4*f+3}], v106 offset:{f*4096+512}")
    I("s_lshl_b32 s42, s21, 10")
    I(f"s_add_u32 s43, s42, {WRAD}")
    I("v_add_u32 v105, s43, v105")
    I("s_waitcnt vmcnt(0)")
    for k in range(4):
        h = k >> 1
        for d in range(4):
            I(f"v_lshlrev_b32 v{WT+4*k+d}, 16, v{WT+4*k+d}")
            I(f"v_xor_b32 v{WT+4*k+d}, v{110+h}, v{WT+4*k+d}")
        I(f"ds_write_b128 v105, v[{WT+4*k}:{WT+4*k+3}] offset:{(k>>1)*8192 + (k&1)*4096}")
    I("v_and_b32 v106, 15, v104")
    I("v_lshrrev_b32 v107, 4, v104")
    I(f"v_lshlrev_b32 v{X0}, 2, v104")
    if NWG == 250:
        I(f"s_mul_i32 s42, s20, {HN}")
        I(f"s_movk_i32 s44, {HN}")
    else:
        I("s_mul_i32 s42, s20, 1600210")
        I("s_add_u32 s42, s42, 65532")
        I("s_add_u32 s44, s42, 1600210")
        I("s_lshr_b32 s42, s42, 16")
        I("s_lshr_b32 s44, s44, 16")
        I(f"s_min_u32 s44, s44, {N//2}")
        I("s_sub_u32 s44, s44, s42")
    I("s_lshl_b32 s42, s42, 9")
    I("s_lshl_b32 s43, s21, 5")
    I("s_add_u32 s42, s42, s43")
    I(f"v_lshlrev_b32 v{X1}, 9, v106")
    I(f"v_lshl_add_u32 v{X1}, v107, 3, v{X1}")
    I(f"v_add_u32 v{X1}, s42, v{X1}")
    I(f"v_cmp_le_u32 s[84:85], {HN-16}, v106")
    I(f"s_sub_u32 s43, s44, {48-HN}")
    I("v_cmp_gt_i32 s[50:51], s43, v106")
    I("s_sub_u32 s43, s44, 16")
    I("v_cmp_gt_i32 s[94:95], s43, v106")
    I("v_lshlrev_b32 v108, 10, v106")
    I(f"v_add_u32 v108, {T}, v108")
    I("s_or_b64 s[94:95], s[94:95], s[84:85]")
    for u in (3, 2, 1, 0):
        I(f"v_add_u32 v109, {4*u}, v107")
        I("v_xor_b32 v109, v109, v106")
        I(f"v_lshl_add_u32 v{TF+4+u}, v109, 4, v108")
    I("s_waitcnt lgkmcnt(0)")
    for u in range(4):
        I(f"v_mov_b32 v{TA+u}, v{TF+4+u}")
    I("s_mov_b32 s89, 0")
    NPB = 8
    TB, KA, SJ, KB, RB = 40, 48, 56, 64, 80
    LJ, LCH, LONE, Y = 96, 97, 98, 99
    MB = 52
    def mb(p, w): return f"s[{MB+4*p+2*w}:{MB+4*p+2*w+1}]"
    LA, PA0, PA1, TOA = KB, KB + 1, KB + 2, KB + 3
    I(f"v_lshrrev_b32 v{Y}, 2, v{X0}")
    I("s_lshl_b32 s42, s21, 11")
    I(f"v_lshl_add_u32 v{LA}, v{Y}, 4, s42")
    I(f"v_lshrrev_b32 v{Y+1}, 1, v{Y}")
    I("s_lshl_b32 s43, s21, 5")
    I(f"s_sub_u32 s44, {NCH-128}, s43")
    I(f"v_cmp_gt_i32 s[46:47], s44, v{Y+1}")
    I(f"s_mov_b32 s44, {CSTRIDE}")
    I(f"v_mul_u32_u24 v{Y+1}, s44, v{Y+1}")
    I(f"v_and_b32 v{Y+2}, 16, v{LA}")
    I(f"v_add_u32 v{PA0}, v{Y+1}, v{Y+2}")
    I(f"v_cndmask_b32 v{PA1}, 2.0, v{PA0}, s[46:47]")
    I(f"v_and_b32 v{LJ}, 7, v{Y}")
    I(f"v_lshrrev_b32 v{Y+1}, 3, v{Y}")
    I(f"v_mul_u32_u24 v{LCH}, s44, v{Y+1}")
    I(f"v_lshl_add_u32 v{RB}, v{Y+1}, 5, s42")
    I("s_mul_i32 s38, s43, s44")
    I(f"v_add_u32 v{LCH}, s38, v{LCH}")
    I(f"v_mov_b32 v{LONE}, 1")
    I("s_lshl_b32 s36, s20, 5")
    I(f"s_add_u32 s36, s36, {TABOFF+8192}")
    I("s_add_u32 s36, s36, s38")
    I(f"s_add_u32 s37, s36, {128*CSTRIDE}")
    I("s_lshl_b32 s42, s21, 6")
    I(f"v_add_u32 v{Y}, s42, v{Y}")
    I(f"v_mul_u32_u24 v{Y+1}, 0xaab, v{Y}")
    I(f"v_lshrrev_b32 v{Y+1}, 16, v{Y+1}")
    I(f"v_mul_u32_u24 v{Y+1}, {SSTR-24*32}, v{Y+1}")
    I(f"v_lshl_add_u32 v{TOA}, v{Y}, 5, v{Y+1}")
    I(f"v_add_u32 v{TOA}, {SCR+28}, v{TOA}")
    I(f"s_movk_i32 s42, {NCH}")
    I(f"v_cmp_gt_u32 s[92:93], s42, v{Y}")
    if c.pfx2_pos == 1:
        I("s_mov_b64 s[40:41], s[46:47]")
        prefetch_x(e, c.pfx2_lines, 114, 117, 256, 31, 0, 4, c.pfx_lines)
        I("s_mov_b64 s[46:47], s[40:41]")
    stamp(e, c, 14)
    e.label("L2_m_round")
    I("s_barrier")
    I("s_cmp_eq_u32 s23, 1")
    I("s_cbranch_scc1 L2_m_slowC")
    def pollB_issue():
        I(f"buffer_load_dwordx4 v[{TF+4}:{TF+7}], v{PA0}, s[8:11], s36 offen sc1")
        I(f"buffer_load_dwordx4 v[{TF+8}:{TF+11}], v{PA1}, s[8:11], s37 offen sc1")
    I(f"ds_read_b32 v{TF}, v{X0} offset:{HIST}")
    I(f"ds_read_b32 v{TF+1}, v{X0} offset:{HIST2}")
    I(f"ds_read_b32 v{Y}, v{TOA}")
    I("s_waitcnt lgkmcnt(0)")
    I(f"v_add_u32 v{TF}, v{TF}, v{TF+1}")
    I(f"v_and_b32 v{Y}, 0xfff, v{Y}")
    I(f"v_cndmask_b32 v{Y}, 0, v{Y}, s[92:93]")
    scan64(e, TF)
    scan64(e, Y)
    I(f"v_readlane_b32 s42, v{TF}, 63")
    I(f"v_mov_b32 v{Y+2}, 0")
    I("s_mov_b32 exec_lo, 0")
    I("s_mov_b32 exec_hi, 0x80000000")
    I(f"ds_add_u32 v{Y+2}, v{Y} offset:{TOTB}")
    I("s_mov_b64 exec, -1")
    I(f"s_cmp_gt_u32 s42, {CAP}")
    I("s_cbranch_scc1 L2_m_overflow")
    if c.bearly: pollB_issue()
    I("s_waitcnt lgkmcnt(0)")
    I("s_barrier")
    I(f"ds_read_b32 v{Y}, v{Y+2} offset:{TOTB}")
    SEL = Y + 4
    E2 = [TF, TF + 8]
    I("s_mov_b32 s44, 0")
    I("s_waitcnt lgkmcnt(0)")
    I(f"v_readfirstlane_b32 s42, v{Y}")
    I(f"v_or_b32 v{SEL}, 0x0c0c0c00, v{LJ}")
    I(f"s_cmp_gt_u32 s42, {CAP}")
    I("s_cbranch_scc1 L2_m_overflow")
    stamp(e, c, 10)
    I("s_mov_b32 s34, s42")
    if c.x_nobload: I("s_branch L2_bnoxb")
    if c.bearly: I("s_branch L2_pollB_w")
    e.label("L2_pollB")
    pollB_issue()
    e.label("L2_pollB_w")
    I("s_add_u32 s44, s44, 1")
    I("s_waitcnt vmcnt(0)")
    tag_bad(e, Y, TF+4, Y+1, ODD)
    tag_bad(e, Y+2, TF+8, Y+1, ODD)
    I(f"v_cndmask_b32 v{Y+2}, 0, v{Y+2}, s[46:47]")
    I(f"v_or_b32 v{Y}, v{Y}, v{Y+2}")
    I(f"v_cmp_ne_u32 vcc, 0, v{Y}")
    e.nop(2)
    I("s_cmp_eq_u64 vcc, 0")
    I("s_cbranch_scc1 L2_pollB_ok")
    I(f"s_sleep {c.psleep}")
    I("s_cmp_lt_u32 s44, 0x100000")
    I("s_cbranch_scc1 L2_pollB")
    e.label("L2_pollB_ok")
    stamp(e, c, 7)
    I(f"ds_write_b128 v{LA}, v[{TF+4}:{TF+7}] offset:{CEB}")
    I(f"ds_write_b128 v{LA}, v[{TF+8}:{TF+11}] offset:{CEB+1024}")
    def boff(p): return ((128 if p >= 4 else 0) + 8 * (p & 3)) * CSTRIDE
    def ent_read(p):
        r = E2[p & 1]
        I(f"ds_read_b128 v[{r}:{r+3}], v{RB} offset:{CEB+256*p}")
        I(f"ds_read_b64 v[{r+4}:{r+5}], v{RB} offset:{CEB+256*p+16}")
    ent_read(0); ent_read(1)
    I(f"v_add_u32 v{Y+1}, 8, v{LJ}")
    for p in range(NPB):
        r = E2[p & 1]
        I(f"s_waitcnt lgkmcnt({2 if p < NPB-1 else 0})")
        I(f"v_and_b32 v{SJ+p}, 0xfff, v{r}")
        I(f"v_bfe_u32 v{TB+p}, v{r}, 12, 12")
        I(f"v_perm_b32 v{KB+2*p}, v{r+3}, v{r+2}, v{SEL}")
        I(f"v_perm_b32 v{KB+2*p+1}, v{r+5}, v{r+4}, v{SEL}")
        if p + 2 < NPB: ent_read(p + 2)
        I(f"v_add_u32 v{SJ+p}, v{SJ+p}, v{LJ}")
        I(f"v_cmp_lt_u32 {mb(p,0)}, v{LJ}, v{TB+p}")
        I(f"v_cmp_lt_u32 {mb(p,1)}, v{Y+1}, v{TB+p}")
        I(f"v_lshl_add_u32 v{SJ+p}, v{SJ+p}, 4, v{LCH}")
    P0 = [TF, TF+4, TF+8, TF+12]
    def pay_issue(p, w, reg):
        I(f"s_mov_b32 s42, {boff(p)+PAYOFF}")
        I("s_mov_b64 exec, -1")
        I(f"v_cndmask_b32 v{Y+2+w}, 2.0, v{SJ+p}, {mb(p,w)}")
        I(f"buffer_load_dwordx4 v[{reg}:{reg+3}], v{Y+2+w}, s[8:11], s42 offen offset:{128*w} {rf}")
    for k in range(4): pay_issue(k >> 1, k & 1, P0[k])
    I(f"v_max3_u32 v{Y}, v{TB}, v{TB+1}, v{TB+2}")
    I(f"v_max3_u32 v{Y}, v{Y}, v{TB+3}, v{TB+4}")
    I(f"v_max3_u32 v{Y}, v{Y}, v{TB+5}, v{TB+6}")
    I(f"v_max_u32 v{Y}, v{Y}, v{TB+7}")
    I(f"v_cmp_lt_u32 vcc, 16, v{Y}")
    I(f"v_mov_b32 v{Y+1}, v{RB}")
    for p in range(NPB):
        for w in range(2):
            I(f"s_mov_b64 exec, {mb(p,w)}")
            I(f"ds_add_rtn_u32 v{RB+2*p+w}, v{KB+2*p+w}, v{LONE} offset:{HISTB}")
    I("s_mov_b64 exec, -1")
    I("s_cmp_lg_u64 vcc, 0")
    I("s_cselect_b32 s35, 1, 0")
    I("s_cbranch_scc0 L2_bnoxa")
    def w2mask(p):
        I(f"v_min_u32 v{Y+2}, {KIN}, v{TB+p}")
        I(f"v_add_u32 v{Y+3}, 16, v{LJ}")
        I(f"v_cmp_lt_u32 vcc, v{Y+3}, v{Y+2}")
        I("s_and_saveexec_b64 s[44:45], vcc")
    for p in range(NPB):
        w2mask(p)
        e.branch(f"s_cbranch_execz L2_bw2a{p}")
        I(f"ds_read_b32 v{KA+p}, v{Y+1} offset:{CEB+256*p+24}")
        I("s_waitcnt lgkmcnt(0)")
        I(f"v_perm_b32 v{KA+p}, v{KA+p}, v{KA+p}, v{SEL}")
        I(f"ds_add_rtn_u32 v{Y+2}, v{KA+p}, v{LONE} offset:{HISTB}")
        I("s_waitcnt lgkmcnt(0)")
        I(f"v_lshl_or_b32 v{KA+p}, v{Y+2}, 8, v{KA+p}")
        e.label(f"L2_bw2a{p}")
        I("s_mov_b64 exec, -1")
    def key_addr(p, dst):
        I(f"v_sub_u32 v{dst}, v{SJ+p}, v{LCH}")
        I(f"v_lshrrev_b32 v{dst}, 4, v{dst}")
        I(f"v_add_u32 v{dst}, v{dst}, v{LCH}")
    for p in range(NPB):
        I(f"s_mov_b32 s42, {boff(p)+KEYOFF}")
        key_addr(p, Y+3)
        extra_count(f"b{p}", KIN, LJ, Y+3, TB+p, 42, LONE, HIST2B, Y)
    e.label("L2_bnoxa")
    I("s_mov_b64 exec, 1")
    I(f"v_mov_b32 v{Y+2}, 0")
    I("s_waitcnt lgkmcnt(0)")
    I(f"ds_add_u32 v{Y+2}, v{LONE} offset:{BSYNC}")
    I("s_mov_b64 exec, -1")
    I(f"v_mov_b32 v{Y+2}, 0")
    spin(e, "bs", Y, Y+2, BSYNC, 4, 44, 42)
    BB = Y + 4
    I(f"ds_read_b32 v{Y}, v{X0} offset:{HISTB}")
    I(f"ds_read_b32 v{Y+1}, v{X0} offset:{HIST2B}")
    I("s_waitcnt lgkmcnt(0)")
    I(f"v_add_u32 v{Y+1}, v{Y}, v{Y+1}")
    I(f"v_mov_b32 v{BB}, v{Y+1}")
    scan64(e, BB)
    I(f"v_sub_u32 v{BB}, v{BB}, v{Y+1}")
    I(f"v_add_u32 v{BB}, {BOFF}, v{BB}")
    for k in range(2*NPB):
        I(f"ds_bpermute_b32 v{KB+k}, v{KB+k}, v{BB}")
    I("s_cmp_lg_u32 s21, 0")
    I("s_cbranch_scc1 L2_bnoinfo")
    I(f"v_lshl_or_b32 v{Y+1}, v{Y+1}, 16, v{BB}")
    I(f"s_mov_b32 exec_lo, {((1 << 32) - (1 << HN))}")
    I(f"ds_write_b32 v{X0}, v{Y+1} offset:{INFO}")
    I("s_mov_b64 exec, -1")
    e.label("L2_bnoinfo")
    I("s_waitcnt lgkmcnt(0)")
    for k in range(2*NPB):
        I(f"v_add_lshl_u32 v{KB+k}, v{KB+k}, v{RB+k}, 4")
    I(f"v_mov_b32 v{LONE}, v{Y}")
    regs = P0 + [RB, RB+4, RB+8, RB+12]
    for k in range(4, 8): pay_issue(k >> 1, k & 1, regs[k])
    for k in range(16):
        I(f"s_waitcnt vmcnt({min(7, 15-k)})")
        I(f"s_mov_b64 exec, {mb(k>>1, k&1)}")
        I(f"ds_write_b128 v{KB+k}, v[{regs[k&7]}:{regs[k&7]+3}] offset:{RAW}")
        if k + 8 < 16: pay_issue((k+8) >> 1, (k+8) & 1, regs[k&7])
    I("s_mov_b64 exec, -1")
    I("s_cmp_eq_u32 s35, 0")
    I("s_cbranch_scc1 L2_bnoxb")
    for p in range(NPB):
        I(f"v_and_b32 v{Y}, 0xff, v{KA+p}")
        I(f"ds_bpermute_b32 v{Y}, v{Y}, v{BB}")
        w2mask(p)
        e.branch(f"s_cbranch_execz L2_bw2b{p}")
        I(f"s_mov_b32 s42, {boff(p)+PAYOFF}")
        I(f"buffer_load_dwordx4 v[{TF}:{TF+3}], v{SJ+p}, s[8:11], s42 offen offset:256 {rf}")
        I(f"v_lshrrev_b32 v{KA+p}, 8, v{KA+p}")
        I("s_waitcnt vmcnt(0) lgkmcnt(0)")
        I(f"v_add_lshl_u32 v{Y}, v{Y}, v{KA+p}, 4")
        I(f"ds_write_b128 v{Y}, v[{TF}:{TF+3}] offset:{RAW}")
        e.label(f"L2_bw2b{p}")
        I("s_mov_b64 exec, -1")
        I("s_waitcnt lgkmcnt(0)")
    I(f"v_add_u32 v{BB}, v{BB}, v{LONE}")
    I(f"v_mov_b32 v{LONE}, 1")
    for p in range(NPB):
        I(f"s_mov_b32 s42, {boff(p)+KEYOFF}")
        I(f"s_mov_b32 s43, {boff(p)+PAYOFF}")
        key_addr(p, KA+p)
        extra_move(f"b{p}", KIN, LJ, KA+p, SJ+p, TB+p, 42, 43, LONE, CUR2B, BB, Y, TF)
    e.label("L2_bnoxb")
    I("s_waitcnt lgkmcnt(0)")
    for k in range(64):
        I(f"v_mov_b32 v{G+k}, 0")
    I("s_cmp_lg_u32 s21, 1")
    I("s_cbranch_scc1 L2_bnoguard")
    I(f"s_add_u32 s42, s34, {BOFF}")
    I("s_lshl_b32 s42, s42, 4")
    I(f"v_lshl_add_u32 v{TF}, v{X0}, 2, s42")
    I(f"ds_write_b128 v{TF}, v[{G}:{G+3}] offset:{RAW}")
    I("s_waitcnt lgkmcnt(0)")
    e.label("L2_bnoguard")
    I(f"v_mov_b32 v{TF}, 1")
    I("s_mov_b64 exec, 1")
    I(f"ds_add_u32 v{G}, v{TF} offset:{BREADY}")
    I("s_mov_b64 exec, -1")
    stamp(e, c, 13)
    I("s_branch L2_m_tiles")
    e.label("L2_m_slowC")
    I("s_barrier")
    e.label("L2_m_tiles")
    if c.prio_m: I(f"s_setprio {c.prio_m}")
    for h in range(2):
        for t in ((0, 3, 1, 2) if h else range(4)):
            need = 16 if t < 3 else NODES - 48
            last = (h, t) == (1, 2)
            if last and c.split: need = 32
            I(f"v_mov_b32 v{TF}, 0")
            spin(e, f"t{h}{t}", TF+1, TF, DONE + 16*h + 4*t, need, 43, 42, sleep=(1 if last else c.sleep))
            stamp(e, c, 16 + 4*h + t)
            srcs = [t] + ([0] if last and c.split else [])
            steps = [(tt, ks) for tt in srcs for ks in range(16)]
            def mf(ks, r):
                jp, blk = ks >> 2, 2 * h + ((ks >> 1) & 1)
                p, i, sg = path_of(jp, blk)
                f = p * 2 + (ks & 1)
                g = G + 16 * t + 4 * i
                I(f"v_mfma_f32_16x16x32_bf16 v[{g}:{g+3}], v[{W+4*f}:{W+4*f+3}], v[{r}:{r+3}], v[{g}:{g+3}]")
            def rd(n, r):
                tt, ks = steps[n]
                I(f"ds_read_b128 v[{r}:{r+3}], v{TA+(ks&3)} offset:{tt*16384 + (ks>>2)*256}")
            if last and c.fastlast and not c.split:
                I("s_cmp_eq_u32 s24, 0")
                I("s_cbranch_scc1 L2_lastslow")
                fr = [TF + 4*n for n in range(4)] + [G + 4*n for n in range(8)] + [G + 48 + 4*n for n in range(4)]
                order = [0, 2, 4, 8, 1, 3, 5, 9, 6, 10, 12, 14, 7, 11, 13, 15]
                for n, ks in enumerate(order): rd(ks, fr[n])
                for n, ks in enumerate(order):
                    I(f"s_waitcnt lgkmcnt({15-n})")
                    mf(ks, fr[n])
                I("s_branch L2_lastdone")
                e.label("L2_lastslow")
            for n in range(4): rd(n, TF + 4*n)
            for n in range(len(steps)):
                I(f"s_waitcnt lgkmcnt({min(3, len(steps)-1-n)})")
                mf(steps[n][1], TF + 4*(n&3))
                if n + 4 < len(steps): rd(n + 4, TF + 4*(n&3))
            if last and c.fastlast and not c.split: e.label("L2_lastdone")
            if (h, t) == (1, 0) and c.split:
                I(f"v_mov_b32 v{TF}, 0")
                I(f"v_mov_b32 v{TF+1}, 1")
                I("s_mov_b64 exec, 1")
                I(f"ds_add_u32 v{TF}, v{TF+1} offset:{GDONE + 16}")
                I("s_mov_b64 exec, -1")
            if h == 0:
                I(f"v_mov_b32 v{TF}, 0")
                I(f"v_mov_b32 v{TF+1}, 1")
                I("s_mov_b64 exec, 1")
                I(f"ds_add_u32 v{TF}, v{TF+1} offset:{GDONE + 4*t}")
                I("s_mov_b64 exec, -1")
                if t == c.pf1_tile:
                    I(f"s_movk_i32 m0, {HIST2B}")
                    I("s_lshl_b32 s42, s21, 6")
                    I(f"v_lshrrev_b32 v{TF+3}, 2, v{X0}")
                    I(f"v_add_u32 v{TF+3}, s42, v{TF+3}")
                    prefetch_x(e, c.pf1_lines, TF + 4, TF + 3, 256, 31, 1, 4, lds=True)
            else:
                I("s_cmp_eq_u32 s24, 0")
                e.branch(f"s_cbranch_scc1 L2_nofin{t}")
                g = G + 16 * t
                I("s_mov_b32 s42, 0xbfb8aa3b")
                for r in range(4): I(f"v_mul_f32 v{TF+r}, s42, v{g+r}")
                for r in range(4): I(f"v_exp_f32 v{TF+r}, v{TF+r}")
                for r in range(4): I(f"v_add_f32 v{TF+r}, 1.0, v{TF+r}")
                for r in range(4): I(f"v_rcp_f32 v{TF+r}, v{TF+r}")
                for i in range(1, 4):
                    for r in range(4): I(f"v_mul_f32 v{g+4*i+r}, v{g+4*i+r}, v{TF+r}")
                for i in range(4):
                    I(f"v_cvt_pk_bf16_f32 v{TF+4+2*i}, v{g+4*i}, v{g+4*i+1}")
                    I(f"v_cvt_pk_bf16_f32 v{TF+5+2*i}, v{g+4*i+2}, v{g+4*i+3}")
                I(f"s_mov_b32 s42, {t*16*512 + ((N//2-HN)*512 if t >= 2 else 0)}")
                va = X1
                if t == 1:
                    va = TF
                    I(f"v_add_u32 v{TF}, {(N//2-HN)*512}, v{X1}")
                    I(f"v_cndmask_b32 v{TF}, v{X1}, v{TF}, s[84:85]")
                    I("s_mov_b64 exec, s[94:95]")
                if t == 3:
                    I("s_mov_b64 exec, s[50:51]")
                    I("s_cbranch_execz L2_nost3")
                for i in range(4):
                    I(f"buffer_store_dwordx2 v[{TF+4+2*i}:{TF+5+2*i}], v{va}, s[12:15], s42 offen offset:{i*128} {c.out_flags}")
                if t == 3: e.label("L2_nost3")
                if t in (1, 3): I("s_mov_b64 exec, -1")
                e.label(f"L2_nofin{t}")
    stamp(e, c, 11)
    I("s_cmp_lg_u32 s24, 0")
    e.branch("s_cbranch_scc1 L2_m_exit")
    I("s_add_u32 s89, s89, 1")
    I("s_branch L2_m_slow")
    e.label("L2_m_overflow")
    I("s_mov_b32 s89, 0")
    I("s_mov_b32 s23, 1")
    I("s_waitcnt vmcnt(0)")
    for k in range(64):
        I(f"v_mov_b32 v{G+k}, 0")
    e.label("L2_m_slow")
    I("s_waitcnt vmcnt(0) lgkmcnt(0)")
    I("s_barrier")
    I(f"s_cmp_eq_u32 s89, {2*NCH-1}")
    I("s_cselect_b32 s24, 1, 0")
    I("s_cmp_lg_u32 s21, 1")
    I("s_cbranch_scc1 L2_m_nz")
    for k in range(4): I(f"v_mov_b32 v{TF+k}, 0")
    I(f"v_lshlrev_b32 v{TF+4}, 2, v{X0}")
    I(f"ds_write_b128 v{TF+4}, v[{TF}:{TF+3}]")
    I("s_waitcnt lgkmcnt(0)")
    e.label("L2_m_nz")
    I("s_barrier")
    e.branch("s_branch L2_m_round")
    e.label("L2_m_exit")
    if c.stamps:
        I("s_waitcnt vmcnt(0)")
        stamp(e, c, 12)
        stamp_store(e, c, TF)
    e.label("L_end")
    I("s_endpgm")
    e.label("L_codeend")
    return KNAME, 128, 96

def gather_loop(e, c, L):
    I = e.I
    RAW, T, NEXT, DONE, GDONE, OSC, PL1, BREADY, INFO = (L[k] for k in "RAW T NEXT DONE GDONE OSC PL1 BREADY INFO".split())
    VLANE, VINFO, VNEXT, VLOFF, VMASK, VOW, VOR, VSCRW, VTRA, VWR, VL16, VT0, VT1, VONE = (L[k] for k in
        "VLANE VINFO VNEXT VLOFF VMASK VOW VOR VSCRW VTRA VWR VL16 VT0 VT1 VONE".split())
    ACC, LD, B, A, AD = 0, 32, 64, 96, 100
    sA, sR, sH, sN, sNV = 32, 33, 34, 35, 37
    sCN, sCH, sCF, sCR, sL = 38, 39, 40, 41, 36
    uid = [0]
    def lab(p):
        uid[0] += 1
        return f"L2_{p}{uid[0]}"
    def fetch_issue():
        I("s_mov_b64 exec, 1")
        I(f"ds_add_rtn_u32 v{VNEXT}, v{VL16}, v{VONE} offset:{NEXT}")
        I("s_mov_b64 exec, -1")
    NIT = 2*NODES + (16 if c.split else 0)
    def setup_item(none_label):
        I(f"v_readfirstlane_b32 s42, v{VNEXT}")
        e.nop(1)
        if c.static1: I("s_add_u32 s42, s42, 12")
        I(f"s_cmp_ge_u32 s42, {NIT}")
        I(f"s_cbranch_scc1 {none_label}")
        t, sp, dn = lab("bw"), lab("sp"), lab("sd")
        if c.split:
            I(f"s_cmp_ge_u32 s42, {2*NODES-16}")
            I(f"s_cbranch_scc1 {sp}")
        I(f"s_cmp_ge_u32 s42, {NODES}")
        I(f"s_cselect_b32 s{sH}, 256, 0")
        I(f"s_cselect_b32 s43, {NODES}, 0")
        I(f"s_cmp_ge_u32 s42, {NODES+16}")
        I(f"s_cselect_b32 s43, {NODES-32}, s43")
        I(f"s_cmp_ge_u32 s42, {NODES+18}")
        I(f"s_cselect_b32 s43, {NODES+2}, s43")
        I(f"s_sub_u32 s{sN}, s42, s43")
        I(f"s_cmp_lt_u32 s{sN}, s48")
        I(f"s_cbranch_scc1 {t}")
        stamp(e, c, 29)
        I(f"v_mov_b32 v{VT0}, 0")
        spin(e, t, VT1, VT0, BREADY, 4, 45, 44, sleep=1)
        I(f"v_lshrrev_b32 v{VT0}, 2, v{VL16}")
        I(f"ds_read_b32 v{VINFO}, v{VT0} offset:{INFO}")
        I("s_movk_i32 s48, 64")
        I("s_waitcnt lgkmcnt(0)")
        stamp(e, c, 30)
        e.label(t)
        I(f"v_readlane_b32 s42, v{VINFO}, s{sN}")
        e.nop(1)
        I(f"s_lshr_b32 s{sR}, s42, 16")
        I("s_and_b32 s42, s42, 0xffff")
        I(f"s_lshl_b32 s{sA}, s42, 4")
        if c.split:
            I(f"s_branch {dn}")
            e.label(sp)
            I(f"s_sub_u32 s42, s42, {2*NODES-16}")
            I("s_lshr_b32 s43, s42, 1")
            I(f"s_add_u32 s{sN}, s43, 32")
            I(f"s_cmp_lt_u32 s{sN}, s48")
            I(f"s_cbranch_scc1 {t}b")
            I(f"v_mov_b32 v{VT0}, 0")
            spin(e, t + "c", VT1, VT0, BREADY, 4, 45, 44, sleep=1)
            I(f"v_lshrrev_b32 v{VT0}, 2, v{VL16}")
            I(f"ds_read_b32 v{VINFO}, v{VT0} offset:{INFO}")
            I("s_movk_i32 s48, 64")
            I("s_waitcnt lgkmcnt(0)")
            e.label(t + "b")
            I(f"v_readlane_b32 s44, v{VINFO}, s{sN}")
            I(f"s_movk_i32 s{sH}, 256")
            I(f"s_lshr_b32 s{sR}, s44, 16")
            I("s_and_b32 s44, s44, 0xffff")
            I(f"s_min_u32 s45, s{sR}, 32")
            I("s_bitcmp1_b32 s42, 0")
            I(f"s_cbranch_scc1 {sp}h")
            I(f"s_mov_b32 s{sR}, s45")
            I(f"s_lshl_b32 s{sA}, s44, 4")
            I(f"s_branch {dn}")
            e.label(sp + "h")
            I(f"s_sub_u32 s{sR}, s{sR}, s45")
            I("s_add_u32 s44, s44, s45")
            I(f"s_lshl_b32 s{sA}, s44, 4")
            I(f"s_or_b32 s{sN}, s43, 64")
            e.label(dn)
    def off_read(hf):
        I(f"ds_read_b128 v[{AD}:{AD+3}], v{VOR} offset:{OSC+128*hf}")
        I(f"ds_read_b128 v[{AD+4}:{AD+7}], v{VOR} offset:{OSC+128*hf+16}")
    def off_add():
        if c.addtid: return
        for i in range(8):
            I(f"v_add_u32 v{AD+i}, v{AD+i}, v{VLOFF}")
    def prep_block():
        r = B
        I(f"v_add_u32 v{VT0}, s{sA}, v{VL16}")
        I(f"ds_read_b128 v[{r}:{r+3}], v{VT0} offset:{RAW}")
        l = lab("nf")
        I(f"s_cmp_gt_u32 s{sR}, 64")
        I(f"s_cbranch_scc1 {l}")
        fetch_issue()
        e.label(l)
        I(f"v_cmp_gt_u32 vcc, s{sR}, v{VLANE}")
        I("s_waitcnt lgkmcnt(0)")
        I(f"v_lshrrev_b32 v{r+11}, 16, v{r+3}")
        if c.addtid:
            I(f"v_lshlrev_b32 v{r+11}, 5, v{r+11}")
            I(f"v_sub_u32 v{r+11}, v{r+11}, v{VLOFF}")
        else:
            I(f"v_lshlrev_b32 v{r+11}, 9, v{r+11}")
            if c.oobtail: I(f"v_cndmask_b32 v{r+11}, 2.0, v{r+11}, vcc")
        I(f"ds_write_b32 v{VOW}, v{r+11} offset:{OSC}")
        off_read(0)
        if not c.x_noexp:
            I(f"v_cndmask_b32 v{r}, 0, v{r}, vcc")
            I(f"v_cndmask_b32 v{r+1}, 0, v{r+1}, vcc")
            I(f"v_lshlrev_b32 v{r+8}, 16, v{r+2}")
            I(f"v_and_b32 v{r+9}, v{VMASK}, v{r+2}")
            I(f"v_lshlrev_b32 v{r+10}, 16, v{r+3}")
            I(f"v_lshlrev_b32 v{r+4}, 16, v{r}")
            I(f"v_and_b32 v{r+5}, v{VMASK}, v{r}")
            I(f"v_lshlrev_b32 v{r+6}, 16, v{r+1}")
            I(f"v_and_b32 v{r+7}, v{VMASK}, v{r+1}")
            for j in range(3):
                for d in range(4):
                    I(f"v_mul_f32 v{r+12+4*j+d}, v{r+4+d}, v{r+8+j}")
            I(f"v_cvt_pk_bf16_f32 v{r+2}, v{r+12}, v{r+13}")
            I(f"v_cvt_pk_bf16_f32 v{r+3}, v{r+14}, v{r+15}")
            for k in range(4):
                I(f"v_cvt_pk_bf16_f32 v{r+24+k}, v{r+16+2*k}, v{r+17+2*k}")
        I(f"ds_write_b128 v{VSCRW}, v[{r}:{r+3}]")
        I(f"ds_write_b128 v{VSCRW}, v[{r+24}:{r+27}] offset:{PL1}")
        I("s_waitcnt lgkmcnt(2)")
        off_add()
    def ld(i):
        if c.x_noload: return
        I(f"buffer_load_dwordx4 v[{LD+4*i}:{LD+4*i+3}], v{AD+i}, s[4:7], {'0' if c.x_samehalf else 's%d' % sH} {'idxen' if c.addtid else 'offen'}")
    def perm(q, jj, k16=False):
        if c.x_noperm: return
        d = B + 2*q + jj if k16 else B + 4*q + jj
        I(f"v_perm_b32 v{d}, v{LD+4*(2*jj+1)+q//2}, v{LD+4*(2*jj)+q//2}, s{29 if q & 1 else 28}")
    def loads_partial(done):
        for i in range(7):
            I(f"s_cmp_le_u32 s{sL}, {4*i}")
            I(f"s_cbranch_scc1 {done}")
            ld(i)
    def perms_loads():
        part, done = lab("pp"), lab("pd")
        I("s_waitcnt vmcnt(0)")
        I(f"s_cmp_le_u32 s{sL}, 28")
        I(f"s_cbranch_scc1 {part}")
        for jj in range(4):
            for q in range(8): perm(q, jj)
            ld(2*jj); ld(2*jj+1)
        I(f"s_branch {done}")
        e.label(part)
        for jj in range(4):
            for q in range(8): perm(q, jj)
        loads_partial(done)
        e.label(done)
    def mfmas(first, k16=False):
        if c.x_nomfma: return
        for q in range(8):
            d = f"v[{ACC+4*q}:{ACC+4*q+3}]"
            if k16: I(f"v_mfma_f32_16x16x16_bf16 {d}, v[{A}:{A+1}], v[{B+2*q}:{B+2*q+1}], {'0' if first else d}")
            else: I(f"v_mfma_f32_16x16x32_bf16 {d}, v[{A}:{A+3}], v[{B+4*q}:{B+4*q+3}], {'0' if first else d}")
    def tr_read(hf):
        I(f"ds_read_b64_tr_b16 v[{A}:{A+1}], v{VTRA} offset:{512*hf}")
        I(f"ds_read_b64_tr_b16 v[{A+2}:{A+3}], v{VTRA} offset:{512*hf+256}")

    if c.stamps: I("s_mov_b32 s92, 16")
    setup_item("L2_g_done")
    prep_block()
    for i in range(8): ld(i)
    for first in (1, 0):
        e.label(f"L2_A{first}")
        tr_read(0)
        I(f"s_cmp_gt_u32 s{sR}, 32")
        I(f"s_cbranch_scc1 L2_AB{first}")
        I(f"s_mov_b32 s{sCF}, {first}")
        I(f"s_mov_b32 s{sCR}, s{sR}")
        I("s_branch L2_XN")
        e.label(f"L2_AB{first}")
        off_read(1)
        I(f"s_sub_u32 s{sL}, s{sR}, 32")
        I("s_waitcnt lgkmcnt(0)")
        off_add()
        perms_loads()
        mfmas(first)
        if first: I("s_branch L2_B")
    e.label("L2_B")
    tr_read(1)
    I(f"s_cmp_gt_u32 s{sR}, 64")
    I("s_cbranch_scc0 L2_BN")
    I(f"s_sub_u32 s{sR}, s{sR}, 64")
    I(f"s_add_u32 s{sA}, s{sA}, 1024")
    I(f"s_mov_b32 s{sL}, s{sR}")
    prep_block()
    perms_loads()
    I("s_waitcnt lgkmcnt(0)")
    mfmas(0)
    I("s_branch L2_A0")
    e.label("L2_BN")
    I(f"s_mov_b32 s{sCF}, 0")
    I(f"s_sub_u32 s{sCR}, s{sR}, 32")
    e.label("L2_XN")
    I(f"s_mov_b32 s{sCN}, s{sN}")
    I(f"s_mov_b32 s{sCH}, s{sH}")
    I(f"s_mov_b32 s{sNV}, 1")
    setup_item("L2_XN_none")
    I(f"s_mov_b32 s{sL}, s{sR}")
    prep_block()
    I("s_branch L2_XN_go")
    e.label("L2_XN_none")
    I(f"s_mov_b32 s{sNV}, 0")
    I(f"s_mov_b32 s{sL}, 0")
    e.label("L2_XN_go")
    I(f"s_cmp_le_u32 s{sCR}, 16")
    I("s_cbranch_scc1 L2_XN_k16")
    perms_loads()
    I("s_waitcnt lgkmcnt(0)")
    I(f"s_cmp_eq_u32 s{sCF}, 0")
    I("s_cbranch_scc1 L2_XN_acc")
    mfmas(1)
    I("s_branch L2_XN_epi")
    e.label("L2_XN_acc")
    mfmas(0)
    I("s_branch L2_XN_epi")
    e.label("L2_XN_k16")
    I("s_waitcnt vmcnt(0)")
    for jj in range(2):
        for q in range(8): perm(q, jj, True)
    I(f"s_cmp_le_u32 s{sL}, 28")
    I("s_cbranch_scc1 L2_XN_k16p")
    for i in range(8): ld(i)
    I("s_branch L2_XN_k16d")
    e.label("L2_XN_k16p")
    loads_partial("L2_XN_k16d")
    e.label("L2_XN_k16d")
    I("s_waitcnt lgkmcnt(0)")
    I(f"s_cmp_eq_u32 s{sCF}, 0")
    I("s_cbranch_scc1 L2_XN_k16acc")
    mfmas(1, True)
    I("s_branch L2_XN_epi")
    e.label("L2_XN_k16acc")
    mfmas(0, True)
    e.label("L2_XN_epi")
    I(f"s_lshl_b32 s42, s{sCH}, 5")
    I(f"v_add_u32 v{VT0}, s42, v{VWR}")
    for q in range(8):
        I(f"ds_read_b128 v[{B+4*q}:{B+4*q+3}], v{VT0} offset:{q*1024}")
    I(f"s_lshr_b32 s43, s{sCN}, 4")
    I(f"s_lshl_b32 s43, s43, 2")
    I(f"s_cmp_eq_u32 s{sCH}, 0")
    I("s_cbranch_scc1 L2_nowar")
    I(f"v_mov_b32 v{VT1}, s43")
    spin(e, "war", VT0, VT1, GDONE, 4, 45, 44)
    if c.split:
        I("s_cmp_eq_u32 s43, 16")
        I("s_cselect_b32 s43, 8, s43")
    I("s_add_u32 s43, s43, 16")
    e.label("L2_nowar")
    I(f"s_and_b32 s44, s{sCN}, 15")
    I("s_lshl_b32 s44, s44, 4")
    I(f"s_and_b32 s45, s{sCN}, 63")
    I(f"s_lshl_b32 s45, s45, 10")
    I(f"s_add_u32 s45, s45, {T}")
    I(f"v_xor_b32 v{VT0}, s44, v{VL16}")
    I(f"v_add_u32 v{VT0}, s45, v{VT0}")
    I(f"v_mov_b32 v{VT1}, s43")
    I("s_waitcnt lgkmcnt(0)")
    for q in range(8):
        I(f"v_mul_f32 v{B+4*q}, v{B+4*q}, v{ACC+4*q}")
    for d in range(1, 4):
        for q in range(8):
            I(f"v_fmac_f32 v{B+4*q}, v{B+4*q+d}, v{ACC+4*q+d}")
    for k in range(4):
        I(f"v_cvt_pk_bf16_f32 v{A+k}, v{B+8*k}, v{B+8*k+4}")
    I(f"ds_write_b128 v{VT0}, v[{A}:{A+3}]")
    if not c.nowait: I("s_waitcnt lgkmcnt(0)")
    I("s_mov_b64 exec, 1")
    I(f"ds_add_u32 v{VT1}, v{VONE} offset:{DONE}")
    I("s_mov_b64 exec, -1")
    if c.stamps:
        I("s_memrealtime s[90:91]")
        I("s_waitcnt lgkmcnt(0)")
        I("s_mov_b32 m0, s92")
        I(f"v_writelane_b32 v{STV}, s90, m0")
        I("s_add_u32 s92, s92, 1")
        I("s_min_u32 s92, s92, 23")
    I(f"s_cmp_lg_u32 s{sNV}, 0")
    I("s_cbranch_scc1 L2_A1")

def gather_loop_s(e, c, L):
    I = e.I
    RAW, T, NEXT, DONE, GDONE, OSC, PL1, BREADY, INFO = (L[k] for k in "RAW T NEXT DONE GDONE OSC PL1 BREADY INFO".split())
    VLANE, VINFO, VNEXT, VLOFF, VMASK, VOW, VOR, VSCRW, VTRA, VWR, VL16, VT0, VT1, VONE = (L[k] for k in
        "VLANE VINFO VNEXT VLOFF VMASK VOW VOR VSCRW VTRA VWR VL16 VT0 VT1 VONE".split())
    VTRB, VIDX = L["VJ"], L["VSEL"]
    ACC, LD, B, A, AD = 0, 32, 64, 96, 100
    sA, sR, sH, sN, sNV = 32, 33, 34, 35, 37
    sCN, sCH, sCR, sL = 38, 39, 41, 36
    uid = [0]
    def lab(p):
        uid[0] += 1
        return f"L3_{p}{uid[0]}"
    def fetch_issue():
        I("s_mov_b64 exec, 1")
        I(f"ds_add_rtn_u32 v{VNEXT}, v{VL16}, v{VONE} offset:{NEXT}")
        I("s_mov_b64 exec, -1")
    def setup_item(none_label):
        I(f"v_readfirstlane_b32 s42, v{VNEXT}")
        e.nop(1)
        I(f"s_cmp_ge_u32 s42, {2*NODES}")
        I(f"s_cbranch_scc1 {none_label}")
        I(f"s_cmp_ge_u32 s42, {NODES}")
        I(f"s_cselect_b32 s{sH}, 256, 0")
        I(f"s_cselect_b32 s43, {NODES}, 0")
        I(f"s_cmp_ge_u32 s42, {NODES+16}")
        I(f"s_cselect_b32 s43, {NODES-32}, s43")
        I(f"s_cmp_ge_u32 s42, {NODES+18}")
        I(f"s_cselect_b32 s43, {NODES+2}, s43")
        I(f"s_sub_u32 s{sN}, s42, s43")
        t = lab("bw")
        I(f"s_cmp_lt_u32 s{sN}, s48")
        I(f"s_cbranch_scc1 {t}")
        stamp(e, c, 29)
        I(f"v_mov_b32 v{VT0}, 0")
        spin(e, t, VT1, VT0, BREADY, 4, 45, 44, sleep=1)
        I(f"v_lshrrev_b32 v{VT0}, 2, v{VL16}")
        I(f"ds_read_b32 v{VINFO}, v{VT0} offset:{INFO}")
        I("s_movk_i32 s48, 64")
        I("s_waitcnt lgkmcnt(0)")
        stamp(e, c, 30)
        e.label(t)
        I(f"v_readlane_b32 s42, v{VINFO}, s{sN}")
        e.nop(1)
        I(f"s_lshr_b32 s{sR}, s42, 16")
        I("s_and_b32 s42, s42, 0xffff")
        I(f"s_lshl_b32 s{sA}, s42, 4")
    def off_read(hf):
        I(f"ds_read_b128 v[{AD}:{AD+3}], v{VOR} offset:{OSC+128*hf}")
        I(f"ds_read_b128 v[{AD+4}:{AD+7}], v{VOR} offset:{OSC+128*hf+16}")
    def off_add():
        for i in range(8):
            I(f"v_add_u32 v{AD+i}, v{AD+i}, v{VLOFF}")
    def prep_block():
        r = B
        I(f"v_add_u32 v{VT0}, s{sA}, v{VL16}")
        I(f"ds_read_b128 v[{r}:{r+3}], v{VT0} offset:{RAW}")
        l = lab("nf")
        I(f"s_cmp_gt_u32 s{sR}, 64")
        I(f"s_cbranch_scc1 {l}")
        fetch_issue()
        e.label(l)
        I(f"v_cmp_gt_u32 vcc, s{sR}, v{VLANE}")
        I("s_waitcnt lgkmcnt(0)")
        I(f"v_lshrrev_b32 v{r+11}, 16, v{r+3}")
        I(f"v_lshlrev_b32 v{r+11}, 9, v{r+11}")
        I(f"v_cndmask_b32 v{r+11}, 2.0, v{r+11}, vcc")
        I(f"ds_write_b32 v{VOW}, v{r+11} offset:{OSC}")
        off_read(0)
        I(f"v_cndmask_b32 v{r}, 0, v{r}, vcc")
        I(f"v_cndmask_b32 v{r+1}, 0, v{r+1}, vcc")
        I(f"v_lshlrev_b32 v{r+8}, 16, v{r+2}")
        I(f"v_and_b32 v{r+9}, v{VMASK}, v{r+2}")
        I(f"v_lshlrev_b32 v{r+10}, 16, v{r+3}")
        I(f"v_lshlrev_b32 v{r+4}, 16, v{r}")
        I(f"v_and_b32 v{r+5}, v{VMASK}, v{r}")
        I(f"v_lshlrev_b32 v{r+6}, 16, v{r+1}")
        I(f"v_and_b32 v{r+7}, v{VMASK}, v{r+1}")
        for j in range(3):
            for d in range(4):
                I(f"v_mul_f32 v{r+12+4*j+d}, v{r+4+d}, v{r+8+j}")
        I(f"v_cvt_pk_bf16_f32 v{r+2}, v{r+12}, v{r+13}")
        I(f"v_cvt_pk_bf16_f32 v{r+3}, v{r+14}, v{r+15}")
        for k in range(4):
            I(f"v_cvt_pk_bf16_f32 v{r+24+k}, v{r+16+2*k}, v{r+17+2*k}")
        I(f"ds_write_b128 v{VSCRW}, v[{r}:{r+3}]")
        I(f"ds_write_b128 v{VSCRW}, v[{r+24}:{r+27}] offset:{PL1}")
        I("s_waitcnt lgkmcnt(2)")
        off_add()
    def ld(i):
        if c.x_noload: return
        I(f"buffer_load_dwordx4 v[{LD+4*i}:{LD+4*i+3}], v{AD+i}, s[4:7], s{sH} offen")
    def moves(jj, k16=False):
        for p in range(4):
            d = B + (4 if k16 else 8) * p + 2 * jj
            a, b = LD + 8*jj + (p & 2), LD + 8*jj + 4 + (p & 2)
            I(f"v_pk_mov_b32 v[{d}:{d+1}], v[{a}:{a+1}], v[{b}:{b+1}] op_sel:[{p&1},{p&1}]")
    def loads_partial(done):
        for i in range(7):
            I(f"s_cmp_le_u32 s{sL}, {4*i}")
            I(f"s_cbranch_scc1 {done}")
            ld(i)
    def moves_loads():
        part, done = lab("pp"), lab("pd")
        I("s_waitcnt vmcnt(0)")
        I(f"s_cmp_le_u32 s{sL}, 28")
        I(f"s_cbranch_scc1 {part}")
        for jj in range(4):
            moves(jj)
            ld(2*jj); ld(2*jj+1)
        I(f"s_branch {done}")
        e.label(part)
        for jj in range(4): moves(jj)
        loads_partial(done)
        e.label(done)
    def macs(k16=False):
        for q in range(8):
            d = f"v[{ACC+4*q}:{ACC+4*q+3}]"
            p = q >> 1
            if k16: I(f"v_smfmac_f32_16x16x32_bf16 {d}, v[{A}:{A+1}], v[{B+4*p}:{B+4*p+3}], v{VIDX} cbsz:0 abid:{2*(q&1)}")
            else: I(f"v_smfmac_f32_16x16x64_bf16 {d}, v[{A}:{A+3}], v[{B+8*p}:{B+8*p+7}], v{VIDX} cbsz:0 abid:{q&1}")
    def tr32(hf):
        I(f"ds_read_b64_tr_b16 v[{A}:{A+1}], v{VTRB} offset:{512*hf}")
        I(f"ds_read_b64_tr_b16 v[{A+2}:{A+3}], v{VTRB} offset:{512*hf+16}")
    def tr16(hf):
        I(f"ds_read_b64_tr_b16 v[{A}:{A+1}], v{VTRA} offset:{512*hf}")
    def zero_acc():
        if c.zpk:
            for k in range(0, 32, 2): I(f"v_pk_mov_b32 v[{ACC+k}:{ACC+k+1}], 0, 0")
        else:
            for k in range(32): I(f"v_mov_b32 v{ACC+k}, 0")

    if c.stamps: I("s_mov_b32 s92, 16")
    I(f"v_lshrrev_b32 v{VT0}, 4, v{VLANE}")
    I(f"v_lshrrev_b32 v{VT1}, 5, v{VLANE}")
    I(f"v_mul_u32_u24 v{VT1}, 12, v{VT1}")
    I(f"v_add_u32 v{VT0}, v{VT0}, v{VT1}")
    I(f"v_lshl_add_u32 v{VTRB}, v{VT0}, 4, v{VTRA}")
    I(f"v_mov_b32 v{VIDX}, 0xdddd8888")
    setup_item("L2_g_done")
    prep_block()
    for i in range(8): ld(i)
    zero_acc()
    e.label("L3_A")
    I(f"s_mov_b32 s{sCR}, s{sR}")
    I(f"s_cmp_gt_u32 s{sR}, 32")
    I("s_cbranch_scc0 L3_AN")
    tr32(0)
    off_read(1)
    I(f"s_sub_u32 s{sL}, s{sR}, 32")
    I("s_waitcnt lgkmcnt(0)")
    off_add()
    moves_loads()
    macs()
    I(f"s_sub_u32 s{sCR}, s{sR}, 32")
    I(f"s_cmp_gt_u32 s{sR}, 64")
    I("s_cbranch_scc0 L3_BN")
    tr32(1)
    I(f"s_sub_u32 s{sR}, s{sR}, 64")
    I(f"s_add_u32 s{sA}, s{sA}, 1024")
    I(f"s_mov_b32 s{sL}, s{sR}")
    prep_block()
    moves_loads()
    I("s_waitcnt lgkmcnt(0)")
    macs()
    I("s_branch L3_A")
    for hf, nm in ((0, "AN"), (1, "BN")):
        e.label(f"L3_{nm}")
        I(f"s_cmp_le_u32 s{sCR}, 16")
        I(f"s_cbranch_scc1 L3_{nm}16")
        tr32(hf)
        I("s_branch L3_XN")
        e.label(f"L3_{nm}16")
        tr16(hf)
        if hf == 0: I("s_branch L3_XN")
    e.label("L3_XN")
    I(f"s_mov_b32 s{sCN}, s{sN}")
    I(f"s_mov_b32 s{sCH}, s{sH}")
    I(f"s_mov_b32 s{sNV}, 1")
    setup_item("L3_XN_none")
    I(f"s_mov_b32 s{sL}, s{sR}")
    prep_block()
    I("s_branch L3_XN_go")
    e.label("L3_XN_none")
    I(f"s_mov_b32 s{sNV}, 0")
    I(f"s_mov_b32 s{sL}, 0")
    e.label("L3_XN_go")
    I(f"s_cmp_le_u32 s{sCR}, 16")
    I("s_cbranch_scc1 L3_XN_k16")
    moves_loads()
    I("s_waitcnt lgkmcnt(0)")
    macs()
    I("s_branch L3_XN_epi")
    e.label("L3_XN_k16")
    I("s_waitcnt vmcnt(0)")
    moves(0, True); moves(1, True)
    I(f"s_cmp_le_u32 s{sL}, 28")
    I("s_cbranch_scc1 L3_XN_k16p")
    for i in range(8): ld(i)
    I("s_branch L3_XN_k16d")
    e.label("L3_XN_k16p")
    loads_partial("L3_XN_k16d")
    e.label("L3_XN_k16d")
    I("s_waitcnt lgkmcnt(0)")
    macs(True)
    e.label("L3_XN_epi")
    I(f"s_lshl_b32 s42, s{sCH}, 5")
    I(f"v_add_u32 v{VT0}, s42, v{VWR}")
    for q in range(8):
        I(f"ds_read_b128 v[{B+4*q}:{B+4*q+3}], v{VT0} offset:{q*1024}")
    I(f"s_lshr_b32 s43, s{sCN}, 4")
    I(f"s_lshl_b32 s43, s43, 2")
    I(f"s_cmp_eq_u32 s{sCH}, 0")
    I("s_cbranch_scc1 L3_nowar")
    I(f"v_mov_b32 v{VT1}, s43")
    spin(e, "war", VT0, VT1, GDONE, 4, 45, 44)
    I("s_add_u32 s43, s43, 16")
    e.label("L3_nowar")
    I(f"s_and_b32 s44, s{sCN}, 15")
    I("s_lshl_b32 s44, s44, 4")
    I(f"s_lshl_b32 s45, s{sCN}, 10")
    I(f"s_add_u32 s45, s45, {T}")
    I(f"v_xor_b32 v{VT0}, s44, v{VL16}")
    I(f"v_add_u32 v{VT0}, s45, v{VT0}")
    I(f"v_mov_b32 v{VT1}, s43")
    I("s_waitcnt lgkmcnt(0)")
    for q in range(8):
        I(f"v_mul_f32 v{B+4*q}, v{B+4*q}, v{ACC+4*q}")
    for d in range(1, 4):
        for q in range(8):
            I(f"v_fmac_f32 v{B+4*q}, v{B+4*q+d}, v{ACC+4*q+d}")
    for k in range(4):
        I(f"v_cvt_pk_bf16_f32 v{A+k}, v{B+8*k}, v{B+8*k+4}")
    I(f"ds_write_b128 v{VT0}, v[{A}:{A+3}]")
    I("s_mov_b64 exec, 1")
    I(f"ds_add_u32 v{VT1}, v{VONE} offset:{DONE}")
    I("s_mov_b64 exec, -1")
    zero_acc()
    if c.stamps:
        I("s_memrealtime s[90:91]")
        I("s_waitcnt lgkmcnt(0)")
        I("s_mov_b32 m0, s92")
        I(f"v_writelane_b32 v{STV}, s90, m0")
        I("s_add_u32 s92, s92, 1")
        I("s_min_u32 s92, s92, 23")
    I(f"s_cmp_lg_u32 s{sNV}, 0")
    I("s_cbranch_scc1 L3_A")

HEADER = """; equiformer tensor-product message passing, one persistent launch (one workgroup per CU):
"""

def gen_probe(e, c):
    kA, a0, a1, sA, oA, kB, b0, b1, sB, oB = c.probe.split(",")
    kernel_header(e, "eqprobe_kernel")
    I = e.I
    I("s_cmp_ge_u32 s2, 1")
    I("s_cbranch_scc1 LP_end")
    I("s_memrealtime s[20:21]")
    I("s_load_dwordx2 s[4:5], s[0:1], 88")
    I("s_waitcnt lgkmcnt(0)")
    srd(e, 8, 4, 32 << 20)
    I(f"v_min_u32 v1, {c.nwg-1}, v0")
    I("v_lshlrev_b32 v1, 11, v1")
    I("v_mov_b32 v10, 0"); I("v_mov_b32 v11, -1"); I("v_mov_b32 v12, 0")
    I("ds_write_b32 v10, v11 offset:0"); I("ds_write_b32 v10, v12 offset:4"); I("ds_write_b32 v10, v11 offset:8"); I("ds_write_b32 v10, v12 offset:12")
    I("s_waitcnt lgkmcnt(0)"); I("s_barrier")
    regs = []
    for (k, w0, w1, sl, off) in ((kA, a0, a1, sA, 0), (kB, b0, b1, sB, 8)):
        if k == "now":
            I(f"v_mov_b32 v{16+len(regs)}, s20"); regs.append(off); continue
        I(f"s_mov_b32 s12, {STAMPOFF}")
        for w in range(int(w0), int(w1)):
            I(f"buffer_load_dword v{16+len(regs)}, v1, s[8:11], s12 offen offset:{w*128 + int(sl)*4}")
            regs.append(off)
    I("s_waitcnt vmcnt(0)")
    for off, op in ((0, oA), (8, oB)):
        idx = [n for n, o in enumerate(regs) if o == off]
        for n in idx[1:]:
            I(f"v_{op}_u32 v{16+idx[0]}, v{16+idx[0]}, v{16+n}")
        I(f"ds_{op}_u32 v10, v{16+idx[0]} offset:{off + (0 if op == 'min' else 4)}")
    I("s_waitcnt lgkmcnt(0)"); I("s_barrier")
    I(f"ds_read_b32 v3, v10 offset:{0 if oA == 'min' else 4}")
    I(f"ds_read_b32 v4, v10 offset:{8 if oB == 'min' else 12}")
    I("s_waitcnt lgkmcnt(0)")
    I("v_sub_u32 v3, v3, v4")
    I("v_min_u32 v3, 0x2000, v3")
    I("v_readfirstlane_b32 s14, v3")
    I("s_memrealtime s[16:17]")
    I("s_mul_i32 s14, s14, 10")
    I("s_waitcnt lgkmcnt(0)")
    e.label("LP_spin")
    I("s_memrealtime s[18:19]")
    I("s_waitcnt lgkmcnt(0)")
    I("s_sub_u32 s18, s18, s16")
    I("s_cmp_lt_u32 s18, s14")
    I("s_cbranch_scc1 LP_spin")
    e.label("LP_end")
    I("s_endpgm")
    return "eqprobe_kernel", 64, 32

def generate(c):
    e = Emitter()
    e.raw('.amdgcn_target "amdgcn-amd-amdhsa--gfx950"')
    e.raw(".text")
    k = gen_main(e, c)
    head = HEADER + f"; @launch grid=({c.nwg},1,1) block=(1024,1,1) lds={c.lds}\n"
    tail = '.section .rodata,"a"\n.p2align 6\n' + kd(*k)
    if c.probe:
        kp = gen_probe(e, c)
        head = HEADER + f"; @launch kernel={KNAME} grid=({c.nwg},1,1) block=(1024,1,1) lds={c.lds}\n; @launch kernel=eqprobe_kernel grid=(1,1,1) block=(256,1,1) lds=64\n"
        tail += ".p2align 6\n" + kd(*kp)
    return head + e.text() + tail

if __name__ == "__main__":
    c = Cfg()
    out = sys.argv[1]
    for kv in sys.argv[2:]:
        k, v = kv.split("=", 1)
        old = getattr(c, k)
        setattr(c, k, type(old)(int(v)) if isinstance(old, (bool, int)) else v.replace("+", " "))
    open(out, "w").write(generate(c))
```

```python
import sys
from emit import Emitter

N, E = 12500, 800000
NODES, HN = 50, 25
NCH = 250
CSTRIDE = 70784
PAYOFF, TABOFF, KEYOFF = 0, 51200, 67584
KSTAGE = 51200
WSBYTES = NCH * CSTRIDE
KIN = 20
KNAME = "gather_scatter__tensor_product_equiv_equiformer__graph_kernel"
STAMPOFF = 24 << 20

class Cfg:
    nwg = 250
    st_flags = "sc1"
    ld_flags = "nt"
    rec_flags = "sc1"
    out_flags = ""
    pfx_lines = 192
    stamps = False
    cap = 1888
    x_noperm = 0
    x_noexp = 0
    x_nomfma = 0
    x_noload = 0
    x_samehalf = 0
    x_nobload = 0
    codepf = 26
    tlbpf = 0
    codeearly = 0
    sleep = 12
    psleep = 2
    probe = ""
    addtid = 0
    split = 0
    static1 = 1
    paypos = 2
    pfwait = 0
    smf = 0
    zpk = 1
    splitw = 0
    cpfwg = 32
    wlate = 0
    coal = 1
    pf1_tile = -1
    pf1_lines = 256
    prio_g = 0
    prio_m = 0
    ld2_flags = None
    nowait = 1
    fastlast = 1
    pfx2_lines = 0
    pfx2_pos = 0
    oobtail = 1
    bearly = 1
    tidw3 = "0x00800000"

def srd(e, d, b, nbytes, w1=None, w3="0x20000"):
    e.I(f"s_mov_b32 s{d}, s{b}")
    if w1: e.I(f"s_or_b32 s{d+1}, s{b+1}, {w1}")
    else: e.I(f"s_mov_b32 s{d+1}, s{b+1}")
    e.I(f"s_mov_b32 s{d+2}, {nbytes}")
    e.I(f"s_mov_b32 s{d+3}, {w3}")

def scan64(e, v):
    for sh in (1, 2, 4, 8):
        e.I(f"v_add_u32_dpp v{v}, v{v}, v{v} row_shr:{sh} row_mask:0xf bank_mask:0xf")
    e.I(f"v_add_u32_dpp v{v}, v{v}, v{v} row_bcast:15 row_mask:0xa bank_mask:0xf")
    e.I(f"v_add_u32_dpp v{v}, v{v}, v{v} row_bcast:31 row_mask:0xc bank_mask:0xf")

def prefetch_x(e, nlines, vt, vtid, nthreads, slice_s, half, srdx, first=0, lds=False):
    if nlines <= 0: return 0
    e.I(f"s_mul_i32 s46, s{slice_s}, 782")
    if first: e.I(f"s_add_u32 s46, s46, {first}")
    e.I(f"s_mov_b32 s47, {nlines}")
    it = (nlines + nthreads - 1) // nthreads
    for k in range(it):
        e.I(f"v_add_u32 v{vt}, {k*nthreads}, v{vtid}")
        e.I(f"v_cmp_gt_u32 vcc, s47, v{vt}")
        e.I(f"v_add_u32 v{vt}, s46, v{vt}")
        e.I(f"v_and_b32 v{vt+1}, 1, v{vt}")
        e.I(f"v_lshrrev_b32 v{vt}, 1, v{vt}")
        e.I(f"v_lshlrev_b32 v{vt}, 9, v{vt}")
        e.I(f"v_lshl_add_u32 v{vt}, v{vt+1}, 7, v{vt}")
        e.I(f"v_cndmask_b32 v{vt}, 2.0, v{vt}, vcc")
        if lds:
            if half: e.I(f"v_add_u32 v{vt}, 256, v{vt}")
            e.I(f"buffer_load_dword v{vt}, s[{srdx}:{srdx+3}], 0 offen lds")
        else:
            e.I(f"buffer_load_dword v{vt+2}, v{vt}, s[{srdx}:{srdx+3}], 0 offen offset:{half*256}")
    return it

STV, TIDV = 127, 126
def stamp(e, c, slot, ins="s_memrealtime"):
    if not c.stamps: return
    e.I(f"{ins} s[90:91]")
    e.I("s_waitcnt lgkmcnt(0)")
    e.I(f"v_writelane_b32 v{STV}, s90, {slot}")

def stamp_store(e, c, vtmp):
    if not c.stamps: return
    e.I(f"v_lshrrev_b32 v{vtmp}, 6, v{TIDV}")
    e.I(f"s_lshl_b32 s90, s2, 4")
    e.I(f"v_add_u32 v{vtmp}, s90, v{vtmp}")
    e.I(f"v_lshlrev_b32 v{vtmp}, 7, v{vtmp}")
    e.I(f"v_and_b32 v{vtmp+1}, 63, v{TIDV}")
    e.I(f"v_lshl_add_u32 v{vtmp}, v{vtmp+1}, 2, v{vtmp}")
    e.I(f"v_cmp_gt_u32 vcc, 32, v{vtmp+1}")
    e.I(f"v_cndmask_b32 v{vtmp}, 2.0, v{vtmp}, vcc")
    e.I(f"s_mov_b32 s90, {STAMPOFF}")
    e.I(f"buffer_store_dword v{STV}, v{vtmp}, s[8:11], s90 offen")

def kernel_header(e, name):
    e.raw(f".globl {name}")
    e.raw(".p2align 8")
    e.raw(f".type {name},@function")
    e.raw(f"{name}:")
    e.hist = []

def kd(name, nv, ns):
    return f""".amdhsa_kernel {name}
  .amdhsa_next_free_vgpr {nv}
  .amdhsa_next_free_sgpr {ns}
  .amdhsa_accum_offset {(nv+3)//4*4}
  .amdhsa_group_segment_fixed_size 0
  .amdhsa_kernarg_size 96
  .amdhsa_user_sgpr_count 2
  .amdhsa_user_sgpr_kernarg_segment_ptr 1
  .amdhsa_system_sgpr_workgroup_id_x 1
  .amdhsa_float_denorm_mode_32 3
.end_amdhsa_kernel
"""

def path_of(jp, blk):
    if blk == 0: return (0, 0, 1) if jp == 0 else (2, jp, 1)
    k = blk - 1
    if jp == 0: return (3, 1 + k, 1)
    j = jp - 1
    if j == k: return (1, 0, 1)
    i = 3 - j - k
    return (4, 1 + i, 1 if k == (j + 1) % 3 else -1)

class Lay: pass

def spin(e, tag, vdst, vaddr, off, need, scnt, sval, sleep=None, bound="0x400000"):
    I = e.I
    I(f"s_mov_b32 s{scnt}, 0")
    e.label(f"L_sp{tag}")
    I(f"ds_read_b32 v{vdst}, v{vaddr} offset:{off}")
    I("s_waitcnt lgkmcnt(0)")
    I(f"v_readfirstlane_b32 s{sval}, v{vdst}")
    I(f"s_add_u32 s{scnt}, s{scnt}, 1")
    I(f"s_cmp_ge_u32 s{sval}, {need}")
    I(f"s_cbranch_scc1 L_sp{tag}_ok")
    if sleep: I(f"s_sleep {sleep}")
    I(f"s_cmp_lt_u32 s{scnt}, {bound}")
    I(f"s_cbranch_scc1 L_sp{tag}")
    e.label(f"L_sp{tag}_ok")

def tag_bad(e, dst, r, tmp, odd):
    I = e.I
    I(f"v_xor_b32 v{tmp}, s87, v{r}")
    I(f"v_xor_b32 v{dst}, s86, v{r+1}")
    I(f"v_lshrrev_b32 v{tmp}, 24, v{tmp}")
    I(f"v_or_b32 v{dst}, v{dst}, v{tmp}")
    I(f"v_xor_b32 v{tmp}, s3, v{r+3}")
    I(f"v_lshrrev_b32 v{tmp}, 12, v{tmp}")
    I(f"v_cndmask_b32 v{dst}, v{dst}, v{tmp}, {odd}")

def gen_main(e, c):
    L = Lay()
    CAP = c.cap
    NWG = c.nwg
    BOFF = CAP + 64
    HIST, HIST2, CUR2, CNT = 0, 256, 512, 768
    NEXT, DONE, GDONE, BSYNC, BREADY, TOTB = CNT, CNT + 16, CNT + 64, CNT + 96, CNT + 100, CNT + 104
    HISTB, HIST2B, CUR2B, INFO, NONCE = 1024, 1280, 1536, 1792, 2048
    RAW = 2176
    T = (RAW + 2 * BOFF * 16 + 255) // 256 * 256
    WRAD = T + NODES * 1024
    SCR = WRAD + 16384
    H1 = WRAD
    TI = SCR
    CEB = RAW + BOFF * 16
    SSTR, PL1, OSC = 2368, (1040 if c.smf else 1056), 2080
    lds = max(SCR + 12 * SSTR, T + 64 * 1024)
    assert lds <= 163840 and 2 * BOFF >= 3200 + 64, lds
    c.lds = lds
    kernel_header(e, KNAME)
    I = e.I
    wsbytes = (32 << 20) if c.stamps else WSBYTES
    sf, rf, lf = c.st_flags, c.rec_flags, c.ld_flags
    ODD = "s[26:27]"
    I(f"s_cmp_ge_u32 s2, {NWG}")
    I("s_cbranch_scc1 L_end")
    if c.stamps:
        I(f"v_mov_b32 v{STV}, 0")
        I(f"v_mov_b32 v{TIDV}, v0")
    stamp(e, c, 0)
    stamp(e, c, 26, "s_memtime")
    I("s_load_dwordx8 s[32:39], s[0:1], 0")
    I("s_load_dwordx8 s[40:47], s[0:1], 32")
    if NWG > NCH:
        I(f"s_cmp_lt_u32 s2, {NCH}")
        I("s_cselect_b32 s51, 800, 0")
    else:
        I("s_movk_i32 s51, 800")
    if c.coal:
        I("s_mul_i32 s48, s2, 1600")
        I("v_add_u32 v3, s48, v0")
        I("v_cmp_gt_u32 vcc, s51, v0")
        I("v_lshlrev_b32 v28, 3, v3")
        I("v_lshlrev_b32 v30, 4, v3")
        I("v_mul_u32_u24 v3, 12, v3")
        I("v_add_u32 v29, 6400, v28")
        if c.paypos:
            I("v_add_u32 v31, 12800, v30")
            I("v_add_u32 v27, 9600, v3")
        I("s_and_saveexec_b64 s[26:27], vcc")
        I("s_cbranch_execz L1_noload")
        I("s_waitcnt lgkmcnt(0)")
        I(f"global_load_dwordx2 v[4:5], v28, s[40:41] {lf}")
        I(f"global_load_dwordx2 v[6:7], v29, s[40:41] {lf}")
        if not c.paypos:
            I("v_add_u32 v31, 12800, v30")
            I("v_add_u32 v27, 9600, v3")
        lds_ = [f"global_load_dwordx2 v[8:9], v28, s[38:39] {lf}", f"global_load_dwordx2 v[10:11], v29, s[38:39] {lf}",
                f"global_load_dwordx4 v[12:15], v30, s[36:37] {lf}", f"global_load_dwordx4 v[16:19], v31, s[36:37] {lf}",
                f"global_load_dwordx3 v[20:22], v3, s[34:35] {lf}", f"global_load_dwordx3 v[24:26], v27, s[34:35] {lf}"]
        def pay_loads():
            for k in ((0, 2, 4, 1, 3, 5) if c.splitw == 2 else range(6)): I(lds_[k])
        if c.paypos == 0: pay_loads()
    else:
        I("s_mul_i32 s48, s2, 800")
        I("v_add_u32 v3, s48, v0")
        I("v_cmp_gt_u32 vcc, s51, v0")
        I("v_lshlrev_b32 v26, 4, v3")
        I("v_lshlrev_b32 v27, 5, v3")
        I("v_mul_u32_u24 v3, 24, v3")
        I("s_and_saveexec_b64 s[26:27], vcc")
        I("s_cbranch_execz L1_noload")
        I("s_waitcnt lgkmcnt(0)")
        l2 = lf if c.ld2_flags is None else c.ld2_flags
        I(f"global_load_dwordx4 v[4:7], v26, s[40:41] {l2}")
        I(f"global_load_dwordx4 v[8:11], v26, s[38:39] {l2}")
        I(f"global_load_dwordx4 v[12:15], v27, s[36:37] {lf}")
        I(f"global_load_dwordx4 v[16:19], v27, s[36:37] offset:16 {lf}")
        I(f"global_load_dwordx4 v[20:23], v3, s[34:35] {lf}")
        I(f"global_load_dwordx2 v[24:25], v3, s[34:35] offset:16 {lf}")
    e.label("L1_noload")
    I("s_mov_b64 exec, -1")
    if c.paypos == 3:
        I(f"v_lshlrev_b32 v40, 1, v0")
        I(f"v_and_b32 v40, -4, v40")
        I(f"v_add_u32 v40, {H1}, v40")
        I("v_mov_b32 v41, 0")
        I("ds_write_b32 v40, v41")
        I("s_waitcnt lgkmcnt(0)")
        I("s_barrier")
        I("s_and_saveexec_b64 s[26:27], vcc")
        I("s_cbranch_execz L1_noload2")
        pay_loads()
        e.label("L1_noload2")
        I("s_mov_b64 exec, -1")
    if c.codepf and c.codeearly:
        I("s_getpc_b64 s[52:53]")
        I(f"s_mov_b32 s54, {c.codepf*1024}")
        I("s_mov_b32 s55, 0x20000")
        I("v_subrev_u32 v72, 768, v0")
        I("v_lshlrev_b32 v72, 7, v72")
        I("s_cmp_lg_u64 vcc, -1")
        I("s_cbranch_scc0 L1_nocpf")
        I("buffer_load_dword v73, v72, s[52:55], 0 offen")
        e.label("L1_nocpf")
    I("s_load_dwordx4 s[80:83], s[0:1], 72")
    I("s_load_dwordx2 s[84:85], s[0:1], 88")
    I("v_lshlrev_b32 v1, 4, v0")
    I("v_lshlrev_b32 v2, 5, v0")
    I("v_readfirstlane_b32 s21, v0")
    I("s_lshr_b32 s21, s21, 6")
    I("s_waitcnt lgkmcnt(0)")
    if c.addtid:
        srd(e, 4, 32, N * 512, w1=f"{16 << 16}", w3=c.tidw3)
    else:
        srd(e, 4, 32, N * 512)
    srd(e, 8, 84, wsbytes)
    srd(e, 12, 80, N * 512)
    srd(e, 16, 42, 2560)
    srd(e, 68, 44, 16384)
    srd(e, 72, 46, 24576)
    srd(e, 76, 82, 256)
    I("s_and_b32 s20, s2, 7")
    I("s_lshr_b32 s31, s2, 3")
    if NWG == 250:
        I("s_min_u32 s22, s20, 2")
        I("s_mul_i32 s20, s20, 31")
        I("s_add_u32 s20, s20, s22")
    else:
        I("s_lshl_b32 s20, s20, 5")
    I("s_add_u32 s20, s20, s31")
    I("s_mov_b32 s22, 0")
    I(f"s_movk_i32 s23, {NCH}")
    I("s_mov_b32 s24, 1")
    I("s_mov_b32 s26, 0xaaaaaaaa")
    I("s_mov_b32 s27, 0xaaaaaaaa")
    I("s_mov_b32 s28, 0x05040100")
    I("s_mov_b32 s29, 0x07060302")
    I("s_mov_b32 s30, 0xffff0000")
    I(f"s_mul_i32 s51, s2, {CSTRIDE}")
    I("s_cmp_ge_u32 s21, 13")
    I("s_cbranch_scc1 L1_aux")
    if c.paypos == 1:
        I("s_mov_b64 exec, vcc")
        pay_loads()
        I("s_mov_b64 exec, -1")
    I(f"s_mov_b32 s46, {H1}")
    if c.paypos != 3:
        I("v_lshl_add_u32 v40, v0, 2, s46")
        I("v_mov_b32 v41, 0")
    I("v_mov_b32 v42, 1")
    I(f"s_movk_i32 s49, {RAW}")
    I("s_mov_b32 s50, 0x05040302")
    I(f"s_mov_b32 s45, {(TI + 8 - 8*H1) & 0xffffffff}")
    if NWG == 250:
        I("s_mov_b32 s48, -25")
        I("s_movk_i32 s47, 249")
    else:
        I("s_movk_i32 s47, 6249")
        I("s_movk_i32 s48, -6250")
        I("s_mov_b32 s44, 1600210")
        I("v_mov_b32 v43, 65532")
    if c.paypos != 3:
        I("s_cmp_ge_u32 s21, 8")
        I("s_cbranch_scc1 L1_nz")
        I("ds_write_b32 v40, v41")
        I("s_waitcnt lgkmcnt(0)")
        e.label("L1_nz")
        I("s_barrier")
    I("s_and_b64 exec, exec, vcc")
    if c.paypos == 2: pay_loads()
    I(f"s_waitcnt vmcnt({6 if c.coal else 5})")
    stamp(e, c, 1)
    R4 = range(4)
    if NWG == 250:
        for i in R4: I(f"v_mul_u32_u24 v{44+i}, 0x147b, v{4+i}")
        for i in R4: I(f"v_lshrrev_b32 v{44+i}, 17, v{44+i}")
        for i in R4: I(f"v_cmp_lt_u32 s[{32+2*i}:{33+2*i}], s47, v{44+i}")
        for i in R4: I(f"v_cndmask_b32 v{36+i}, 0, 1, s[{32+2*i}:{33+2*i}]")
        for i in R4:
            I(f"v_sub_u32 v{48+i}, v{44+i}, v{36+i}")
            I(f"v_mad_u32_u24 v{44+i}, v{36+i}, 6, v{44+i}")
        for i in R4:
            I(f"v_mad_i32_i24 v{4+i}, v{48+i}, s48, v{4+i}")
            I(f"v_lshl_add_u32 v{44+i}, v{44+i}, 2, s46")
    else:
        for i in R4: I(f"v_cmp_lt_u32 s[{32+2*i}:{33+2*i}], s47, v{4+i}")
        for i in R4: I(f"v_cndmask_b32 v{36+i}, 0, 1, s[{32+2*i}:{33+2*i}]")
        for i in R4: I(f"v_mad_i32_i24 v{4+i}, v{36+i}, s48, v{4+i}")
        for i in R4: I(f"v_mul_u32_u24 v{44+i}, 0xa7c, v{4+i}")
        for i in R4: I(f"v_lshrrev_b32 v{44+i}, 16, v{44+i}")
        for i in R4: I(f"v_mad_u32_u24 v{48+i}, v{44+i}, s44, v43")
        for i in R4:
            I(f"v_lshrrev_b32 v{48+i}, 16, v{48+i}")
            I(f"v_mad_u32_u24 v{4+i}, v{36+i}, 25, v{4+i}")
        for i in R4:
            I(f"v_sub_u32 v{4+i}, v{4+i}, v{48+i}")
            I(f"v_lshl_add_u32 v{44+i}, v{36+i}, 8, v{44+i}")
        for i in R4: I(f"v_lshl_add_u32 v{44+i}, v{44+i}, 2, s46")
    for i in R4: I(f"ds_add_rtn_u32 v{36+i}, v{44+i}, v42")
    for i in R4: I(f"v_lshl_add_u32 v{48+i}, v{44+i}, 3, s45")
    for i in R4: I(f"v_lshlrev_b32 v{4+i}, 2, v{4+i}")
    I("s_waitcnt lgkmcnt(0)")
    I("s_barrier")
    for i in R4: I(f"v_min_u32 v{28+i}, {KIN}, v{36+i}")
    for i in R4: I(f"v_add_u32 v{48+i}, v{48+i}, v{28+i}")
    I("s_cmp_eq_u32 s21, 0")
    I("s_cbranch_scc1 L1_scan")
    for i in R4: I(f"ds_write_b8 v{48+i}, v{4+i}")
    I("s_branch L1_noscan")
    e.label("L1_scan")
    I("v_add_u32 v60, s46, v2")
    I("ds_read_b128 v[52:55], v60")
    I("ds_read_b128 v[56:59], v60 offset:16")
    I("s_waitcnt lgkmcnt(0)")
    I("v_mov_b32 v64, 0")
    I("v_mov_b32 v65, v52")
    for k in range(2, 8):
        I(f"v_add_u32 v{64+k}, v{63+k}, v{51+k}")
    I("v_add_u32 v61, v71, v59")
    I("v_max3_u32 v63, v52, v53, v54")
    I("v_max3_u32 v63, v63, v55, v56")
    I("v_max3_u32 v63, v63, v57, v58")
    I("v_max_u32 v63, v63, v59")
    I(f"v_cmp_lt_u32 s[42:43], {KIN}, v63")
    I("v_mov_b32 v62, v61")
    scan64(e, 62)
    I("v_sub_u32 v62, v62, v61")
    for k in range(8):
        I(f"v_add_u32 v{64+k}, v{64+k}, v62")
    I("ds_write_b128 v60, v[64:67] offset:2048")
    I("ds_write_b128 v60, v[68:71] offset:2064")
    I("s_cmp_lg_u64 s[42:43], 0")
    I("s_cselect_b32 s42, 1, 0")
    I("v_mov_b32 v63, s42")
    I(f"ds_write_b32 v41, v63 offset:{NONCE+8}")
    for i in R4: I(f"ds_write_b8 v{48+i}, v{4+i}")
    I("s_waitcnt lgkmcnt(4)")
    e.label("L1_noscan")
    I("s_barrier")
    stamp(e, c, 8)
    for i in R4: I(f"ds_read_b32 v{44+i}, v{44+i} offset:2048")
    I(f"ds_read_b32 v28, v41 offset:{NONCE+8}")
    I("s_waitcnt lgkmcnt(0)")
    I("v_readfirstlane_b32 s42, v28")
    for i in R4:
        I(f"v_add_u32 v{36+i}, v{36+i}, v{44+i}")
        I(f"v_lshl_add_u32 v{44+i}, v{36+i}, 4, s49")
    I("s_cmp_eq_u32 s42, 0")
    I("s_cbranch_scc1 L1_nokeys")
    for i in R4:
        I(f"ds_write_b8 v{36+i}, v{4+i} offset:{RAW+KSTAGE}")
    e.label("L1_nokeys")
    if not c.splitw:
        r3 = 24 if c.coal else 23
        if c.stamps: I("s_waitcnt vmcnt(0)")
        stamp(e, c, 31)
        I("s_waitcnt vmcnt(1)")
        I("v_mov_b32 v28, v20")
        I("v_perm_b32 v29, v8, v21, s28")
        I("ds_write2_b64 v44, v[12:13], v[28:29] offset0:0 offset1:1")
        I("v_alignbit_b32 v30, v22, v21, 16")
        I("v_perm_b32 v31, v9, v22, s50")
        I("ds_write2_b64 v45, v[14:15], v[30:31] offset0:0 offset1:1")
        I("s_waitcnt vmcnt(0)")
        stamp(e, c, 2)
        I(f"v_mov_b32 v32, v{r3}")
        I(f"v_perm_b32 v33, v10, v{r3+1}, s28")
        I("ds_write2_b64 v46, v[16:17], v[32:33] offset0:0 offset1:1")
        I(f"v_alignbit_b32 v34, v{r3+2}, v{r3+1}, 16")
        I(f"v_perm_b32 v35, v11, v{r3+2}, s50")
        I("ds_write2_b64 v47, v[18:19], v[34:35] offset0:0 offset1:1")
    elif c.splitw == 2:
        I("s_waitcnt vmcnt(3)")
        I("v_mov_b32 v28, v12"); I("v_mov_b32 v29, v13"); I("v_mov_b32 v30, v20")
        I("v_perm_b32 v31, v8, v21, s28")
        I("ds_write_b128 v44, v[28:31]")
        I("v_mov_b32 v12, v14"); I("v_mov_b32 v13, v15")
        I("v_alignbit_b32 v14, v22, v21, 16")
        I("v_perm_b32 v15, v9, v22, s50")
        I("ds_write_b128 v45, v[12:15]")
        I("s_waitcnt vmcnt(0)")
        stamp(e, c, 2)
        I("v_mov_b32 v32, v16"); I("v_mov_b32 v33, v17"); I("v_mov_b32 v34, v24")
        I("v_perm_b32 v35, v10, v25, s28")
        I("ds_write_b128 v46, v[32:35]")
        I("v_mov_b32 v16, v18"); I("v_mov_b32 v17, v19")
        I("v_alignbit_b32 v18, v26, v25, 16")
        I("v_perm_b32 v19, v11, v26, s50")
        I("ds_write_b128 v47, v[16:19]")
    else:
        I("s_waitcnt vmcnt(2)")
        for i in R4:
            I(f"ds_write_b64 v{44+i}, v[{12+2*i}:{13+2*i}]")
        I("s_waitcnt vmcnt(1)")
        I("v_mov_b32 v28, v20")
        I("v_perm_b32 v29, v8, v21, s28")
        I("ds_write_b64 v44, v[28:29] offset:8")
        I("v_alignbit_b32 v30, v22, v21, 16")
        I("v_perm_b32 v31, v9, v22, s50")
        I("ds_write_b64 v45, v[30:31] offset:8")
        I("s_waitcnt vmcnt(0)")
        stamp(e, c, 2)
        r3 = 24 if c.coal else 23
        I(f"v_mov_b32 v32, v{r3}")
        I(f"v_perm_b32 v33, v10, v{r3+1}, s28")
        I("ds_write_b64 v46, v[32:33] offset:8")
        I(f"v_alignbit_b32 v34, v{r3+2}, v{r3+1}, 16")
        I(f"v_perm_b32 v35, v11, v{r3+2}, s50")
        I("ds_write_b64 v47, v[34:35] offset:8")
    I("s_mov_b64 exec, -1")
    I("s_waitcnt lgkmcnt(0)")
    I("s_branch L1_copy")
    e.label("L1_aux")
    I("v_subrev_u32 v64, 832, v0")
    I("v_lshlrev_b32 v65, 4, v64")
    if c.tlbpf:
        I("v_and_b32 v74, 63, v0")
        I(f"s_mov_b32 s42, {WSBYTES // 64 // 128 * 128}")
        I("v_mul_u32_u24 v75, s42, v74")
        I(f"s_mov_b32 s42, {N * 512 // 64 // 128 * 128}")
        I("v_mul_u32_u24 v74, s42, v74")
        I("s_cmp_lg_u32 s21, 14")
        I("s_cbranch_scc1 L1_notlb")
        if c.tlbpf & 1: I("buffer_load_dword v76, v75, s[8:11], 0 offen")
        if c.tlbpf & 2: I("buffer_load_dword v77, v74, s[4:7], 0 offen")
        if c.tlbpf & 4: I("buffer_load_dword v78, v74, s[12:15], 0 offen")
        e.label("L1_notlb")
    if c.codepf and not c.codeearly:
        I(f"s_cmp_ge_u32 s2, {c.cpfwg}")
        I("s_cbranch_scc1 L1_nocpf")
        I("s_getpc_b64 s[40:41]")
        e.label("L_cpf")
        I("s_mov_b32 s42, L_codeend-L_cpf")
        I("s_mov_b32 s43, 0x20000")
        I("v_lshlrev_b32 v72, 7, v64")
        I("buffer_load_dword v73, v72, s[40:43], 0 offen")
        e.label("L1_nocpf")
    I("s_cmp_lg_u32 s21, 15")
    I("s_cbranch_scc1 L1_notag")
    I("s_cmp_lg_u32 s2, 0")
    I("s_cbranch_scc1 L1_notag")
    I("s_memrealtime s[44:45]")
    I("s_waitcnt lgkmcnt(0)")
    I("s_and_b32 s45, s45, 0x7f")
    I("s_or_b32 s45, s45, 0x80")
    I("s_lshl_b32 s45, s45, 24")
    I("v_mov_b32 v68, s44")
    I("v_mov_b32 v69, s45")
    I("s_mov_b64 exec, 1")
    I("buffer_store_dwordx2 v[68:69], off, s[76:79], 0 sc1")
    I("s_mov_b64 exec, -1")
    e.label("L1_notag")
    I("s_cmp_lg_u32 s21, 13")
    I("s_cbranch_scc1 L1_nozero")
    for k in range(4): I(f"v_mov_b32 v{4+k}, 0")
    I("ds_write_b128 v65, v[4:7]")
    I("ds_write_b128 v65, v[4:7] offset:1024")
    e.label("L1_nozero")
    if c.paypos != 3: I("s_barrier")
    I("s_barrier"); I("s_barrier")
    I("s_cmp_lg_u32 s21, 15")
    I("s_cbranch_scc1 L1_notag2")
    I("s_mov_b32 s44, 0")
    e.label("L1_tagpoll")
    I("buffer_load_dwordx2 v[68:69], off, s[76:79], 0 sc1")
    I("s_add_u32 s44, s44, 1")
    I("s_waitcnt vmcnt(0)")
    I("v_readfirstlane_b32 s45, v69")
    e.nop(1)
    I("s_cmp_lg_u32 s45, 0")
    I("s_cbranch_scc1 L1_tagok")
    I("s_cmp_lt_u32 s44, 0x100000")
    I("s_cbranch_scc1 L1_tagpoll")
    e.label("L1_tagok")
    I("v_mov_b32 v70, 0")
    I("s_mov_b64 exec, 1")
    I(f"ds_write_b64 v70, v[68:69] offset:{NONCE}")
    I("s_mov_b64 exec, -1")
    e.label("L1_notag2")
    def w_loads():
        for k in range(8):
            I(f"s_movk_i32 s46, {k*3072}")
            I(f"buffer_load_dwordx4 v[{28+4*k}:{31+4*k}], v65, s[72:75], s46 offen")
        for k in range(6):
            I(f"s_movk_i32 s46, {k*3072}")
            I(f"buffer_load_dwordx4 v[{72+4*k}:{75+4*k}], v65, s[68:71], s46 offen")
    if not c.wlate: w_loads()
    if c.pfwait: I("s_waitcnt vmcnt(0)")
    prefetch_x(e, c.pfx_lines, 60, 64, 192, 31, 0, 4)
    I("s_waitcnt lgkmcnt(0)")
    e.flush()
    e.label("L1_copy")
    I("s_barrier")
    stamp(e, c, 3)
    I(f"v_mov_b32 v25, {H1+2048+1024}")
    I("ds_read_b32 v99, v25")
    I(f"ds_read_b128 v[8:11], v1 offset:{RAW}")
    I(f"ds_read_b128 v[12:15], v1 offset:{RAW+16384}")
    I("v_mov_b32 v25, 0")
    I(f"ds_read_b96 v[96:98], v25 offset:{NONCE}")
    I(f"v_add_u32 v25, {TI}, v1")
    I(f"ds_read_b128 v[16:19], v1 offset:{RAW+32768}")
    I(f"ds_read_b128 v[20:23], v1 offset:{RAW+49152}")
    I("ds_read_b128 v[100:103], v25")
    I("v_lshrrev_b32 v25, 1, v0")
    I("v_lshlrev_b32 v25, 2, v25")
    I(f"v_add_u32 v25, {H1}, v25")
    I("ds_read2st64_b32 v[104:105], v25 offset0:0 offset1:8")
    I("ds_read_b32 v106, v25 offset:1024")
    I("v_add_u32 v2, 16384, v1")
    I("v_add_u32 v25, 1024, v0")
    I("s_waitcnt lgkmcnt(8)")
    I("v_add_u32 v99, 7, v99")
    I("v_and_b32 v99, -8, v99")
    I("v_cmp_lt_u32 s[52:53], v0, v99")
    I("v_cmp_lt_u32 s[54:55], v25, v99")
    I("v_readfirstlane_b32 s88, v99")
    I("v_add_u32 v3, 32768, v1")
    I("v_add_u32 v24, 49152, v1")
    I("s_mov_b64 exec, s[52:53]")
    I("s_waitcnt lgkmcnt(7)")
    I(f"buffer_store_dwordx4 v[8:11], v1, s[8:11], s51 offen {sf}")
    I("s_mov_b64 exec, s[54:55]")
    I("s_cbranch_execz L1_nop1")
    I("s_waitcnt lgkmcnt(6)")
    I(f"buffer_store_dwordx4 v[12:15], v2, s[8:11], s51 offen {sf}")
    e.label("L1_nop1")
    I("s_mov_b64 exec, -1")
    I("s_movk_i32 s48, 128")
    I("v_cmp_gt_u32 s[92:93], s48, v0")
    I("s_waitcnt lgkmcnt(0)")
    I("v_readfirstlane_b32 s86, v96")
    I("v_readfirstlane_b32 s87, v97")
    I("v_readfirstlane_b32 s42, v98")
    I("v_lshl_or_b32 v104, v104, 12, v105")
    I("v_or_b32 v97, v97, v104")
    I(f"v_cndmask_b32 v100, v97, v100, {ODD}")
    I(f"v_cndmask_b32 v101, v96, v101, {ODD}")
    I("v_lshl_or_b32 v106, v96, 12, v106")
    I(f"v_cndmask_b32 v103, v103, v106, {ODD}")
    I("s_lshl_b32 s3, s86, 12")
    I(f"s_add_u32 s49, s51, {TABOFF}")
    I("s_cmp_gt_u32 s88, 2048")
    I("s_cselect_b32 s25, 0, 8")
    I("s_cmp_eq_u32 s42, 0")
    I("s_cbranch_scc1 L1_nokeyst")
    I(f"s_add_u32 s42, s51, {KEYOFF-KSTAGE}")
    I("v_subrev_u32 v25, 128, v0")
    I("s_movk_i32 s43, 200")
    I("v_cmp_gt_u32 vcc, s43, v25")
    I("s_and_saveexec_b64 s[44:45], vcc")
    I("s_cbranch_execz L1_nokeyst2")
    I(f"buffer_store_dwordx4 v[20:23], v24, s[8:11], s42 offen {sf}")
    e.label("L1_nokeyst2")
    I("s_mov_b64 exec, -1")
    e.label("L1_nokeyst")
    stamp(e, c, 4)
    def handoff(tag, mid):
        I("s_waitcnt vmcnt(0)")
        stamp(e, c, 6)
        I("s_barrier")
        I("s_cmp_ge_u32 s21, s25")
        I(f"s_cbranch_scc1 L_noearly{tag}")
        I(f"buffer_store_dwordx4 v[100:103], v1, s[8:11], s49 offen {sf}")
        e.label(f"L_noearly{tag}")
        I(f"buffer_store_dwordx4 v[16:19], v3, s[8:11], s51 offen {sf}")
        for k, (m, neg, regs, va) in enumerate((("s[54:55]", 1, "v[12:15]", "v2"), ("s[92:93]", 0, "v[20:23]", "v24"), ("s[52:53]", 1, "v[8:11]", "v1"))):
            I(f"s_not_b64 exec, {m}" if neg else f"s_mov_b64 exec, {m}")
            I(f"s_cbranch_execz L_stskip{tag}{k}")
            I(f"buffer_store_dwordx4 {regs}, {va}, s[8:11], s51 offen {sf}")
            e.label(f"L_stskip{tag}{k}")
        I("s_mov_b64 exec, -1")
        mid()
        I("s_waitcnt vmcnt(0) lgkmcnt(0)")
        stamp(e, c, 5)
        I("s_barrier")
        I("s_cmp_lt_u32 s21, s25")
        I(f"s_cbranch_scc1 L_nolate{tag}")
        I(f"buffer_store_dwordx4 v[100:103], v1, s[8:11], s49 offen {sf}")
        e.label(f"L_nolate{tag}")
    I("s_cmp_lt_u32 s21, 4")
    e.branch("s_cbranch_scc1 L2_gemm")

    if c.wlate:
        I("s_cmp_lt_u32 s21, 13")
        I("s_cbranch_scc1 L2_noWl")
        w_loads()
        e.label("L2_noWl")
    VLANE, VINFO, VNEXT = 108, 109, 110
    VLOFF, VMASK, VOW, VOR, VSCRW, VTRA, VWR, VL16 = 111, 112, 113, 114, 115, 116, 117, 118
    VT0, VT1, VONE, VSEL = 119, 120, 121, 122
    VJ, VCH, VSEG = 123, 124, 125
    I(f"v_and_b32 v{VLANE}, 63, v0")
    I(f"v_mov_b32 v{VONE}, 1")
    I(f"v_mov_b32 v{VMASK}, s30")
    I(f"v_lshrrev_b32 v{VT1}, 4, v{VLANE}")
    I(f"v_lshlrev_b32 v{VL16}, 4, v{VLANE}")
    if c.addtid:
        I(f"v_and_b32 v{VT0}, 3, v{VLANE}")
        I(f"v_lshlrev_b32 v{VLOFF}, 4, v{VT0}")
    else:
        I(f"v_and_b32 v{VT0}, 15, v{VLANE}")
        I(f"v_lshlrev_b32 v{VLOFF}, 4, v{VT0}")
    I("s_sub_u32 s43, s21, 4")
    I(f"s_mul_i32 s43, s43, {SSTR}")
    I(f"s_add_u32 s43, s43, {SCR}")
    I(f"v_add_u32 v{VSCRW}, s43, v{VL16}")
    I(f"v_lshlrev_b32 v{VOR}, 5, v{VT1}")
    I(f"v_add_u32 v{VOR}, s43, v{VOR}")
    I(f"v_lshlrev_b32 v{VTRA}, 4, v{VT1}")
    I(f"v_bfe_u32 v{VT1}, v{VLANE}, 2, 2")
    I(f"v_lshl_add_u32 v{VTRA}, v{VT1}, 6, v{VTRA}")
    I(f"v_and_b32 v{VT1}, 1, v{VLANE}")
    I(f"v_lshl_add_u32 v{VTRA}, v{VT1}, 3, v{VTRA}")
    I(f"v_bfe_u32 v{VT1}, v{VLANE}, 1, 1")
    I(f"v_mul_u32_u24 v{VT1}, {PL1}, v{VT1}")
    I(f"v_add3_u32 v{VTRA}, v{VTRA}, v{VT1}, s43")
    I(f"v_and_b32 v{VOW}, 32, v{VLANE}")
    I(f"v_and_b32 v{VT1}, 3, v{VLANE}")
    I(f"v_lshl_add_u32 v{VOW}, v{VT1}, 3, v{VOW}")
    I(f"v_bfe_u32 v{VT1}, v{VLANE}, 2, 3")
    I(f"v_add_u32 v{VOW}, v{VOW}, v{VT1}")
    I(f"v_lshlrev_b32 v{VOW}, 2, v{VOW}")
    I(f"v_add_u32 v{VOW}, s43, v{VOW}")
    I(f"v_add_u32 v{VWR}, {WRAD}, v{VL16}")
    I("s_sub_u32 s42, s21, 4")
    I("s_mul_i32 s83, s42, 24")
    I(f"v_and_b32 v{VJ}, 7, v{VLANE}")
    I(f"v_lshrrev_b32 v{VSEG}, 3, v{VLANE}")
    I(f"s_mov_b32 s42, {CSTRIDE}")
    I(f"v_mul_u32_u24 v{VCH}, s42, v{VSEG}")
    I(f"v_lshlrev_b32 v{VSEG}, 5, v{VSEG}")
    I(f"v_add_u32 v{VSEG}, s43, v{VSEG}")
    I(f"v_or_b32 v{VSEL}, 0x0c0c0c00, v{VJ}")
    NP, NW = 3, 3
    I(f"s_mul_i32 s79, s83, {CSTRIDE}")
    for p in range(NP):
        I(f"s_add_u32 s{74+p}, s79, {8*p*CSTRIDE+PAYOFF}")
        I(f"s_add_u32 s{80+p}, s79, {8*p*CSTRIDE+KEYOFF}")
    I("s_mov_b32 s78, 0x100000")
    I("s_mov_b32 s88, s20")
    I("s_mov_b32 s89, 0")
    I(f"s_movk_i32 s48, {HN}")
    def w_stage():
        I("s_cmp_lt_u32 s21, 13")
        I("s_cbranch_scc1 L2_noW")
        I(f"v_add_u32 v65, {T}, v65")
        for k in range(8):
            I(f"ds_write_b128 v65, v[{28+4*k}:{31+4*k}] offset:{16384 + k*3072}")
        for k in range(5):
            I(f"ds_write_b128 v65, v[{72+4*k}:{75+4*k}] offset:{k*3072}")
        I("s_cmp_lg_u32 s21, 13")
        I("s_cbranch_scc1 L2_noW")
        I(f"ds_write_b128 v65, v[92:95] offset:{5*3072}")
        e.label("L2_noW")
    handoff("g", w_stage)
    PAY, KEY, RNK, CNTR, KAD, PAD, X, EN = 0, 36, 45, 54, 57, 60, 64, 72
    MSK = 50
    e.label("L2_g_round")
    I(f"v_and_b32 v{VJ}, 7, v{VLANE}")
    I(f"v_or_b32 v{VSEL}, 0x0c0c0c00, v{VJ}")
    I(f"v_lshrrev_b32 v{X}, 1, v{VLANE}")
    I(f"s_sub_u32 s42, {NCH}, s83")
    I("s_min_i32 s42, s42, 24")
    I(f"v_cmp_gt_i32 s[46:47], s42, v{X}")
    I(f"s_mov_b32 s42, {CSTRIDE}")
    I(f"v_mul_u32_u24 v{X+1}, s42, v{X}")
    I(f"v_and_b32 v{X+2}, 16, v{VL16}")
    I(f"v_add_u32 v{X+1}, v{X+1}, v{X+2}")
    I(f"v_cndmask_b32 v{X+1}, 2.0, v{X+1}, s[46:47]")
    I("s_lshl_b32 s43, s88, 5")
    I(f"s_add_u32 s43, s43, {TABOFF}")
    I("s_add_u32 s43, s43, s79")
    I("s_mov_b32 s44, 0")
    I(f"v_lshl_add_u32 v{VT1}, v{VJ}, 4, v{VCH}")
    e.label("L2_poll")
    I(f"buffer_load_dwordx4 v[{EN}:{EN+3}], v{X+1}, s[8:11], s43 offen sc1")
    I("s_add_u32 s44, s44, 1")
    I("s_waitcnt vmcnt(0)")
    tag_bad(e, X+2, EN, X+3, ODD)
    I(f"v_cmp_ne_u32 vcc, 0, v{X+2}")
    e.nop(2)
    I("s_and_b64 vcc, vcc, s[46:47]")
    I("s_cbranch_scc0 L2_poll_ok")
    I(f"s_sleep {c.psleep}")
    I("s_cmp_lt_u32 s44, s78")
    I("s_cbranch_scc1 L2_poll")
    I("s_mov_b32 s78, 0")
    e.label("L2_poll_ok")
    I("s_cmp_lg_u32 s23, 1")
    I("s_cbranch_scc1 L2_nofilter")
    I("s_sub_u32 s42, s22, s83")
    I(f"v_cmp_eq_u32 vcc, s42, v{X}")
    I(f"v_cndmask_b32 v{EN}, 0, v{EN}, vcc")
    e.label("L2_nofilter")
    I(f"ds_write_b128 v{VSCRW}, v[{EN}:{EN+3}]")
    I(f"v_add_u32 v{X+1}, 8, v{VJ}")
    stamp(e, c, 7)
    def msk(p, w): return f"s[{MSK+4*p+2*w}:{MSK+4*p+2*w+1}]" if w < 2 else f"s[{MSK+12+2*p}:{MSK+13+2*p}]"
    def pay(p, w): return f"v[{PAY+12*p+4*w}:{PAY+12*p+4*w+3}]"
    for p in range(NP):
        I(f"ds_read_b128 v[{EN+8*p}:{EN+8*p+3}], v{VSEG} offset:{256*p}")
        I(f"ds_read_b128 v[{EN+8*p+4}:{EN+8*p+7}], v{VSEG} offset:{256*p+16}")
    for p in range(NP):
        en, cnt = EN + 8*p, CNTR + p
        if p == 0: I("s_waitcnt lgkmcnt(0)")
        I(f"v_bfe_u32 v{cnt}, v{en}, 12, 12")
        I(f"v_and_b32 v{PAD+p}, 0xfff, v{en}")
        I(f"v_cmp_lt_u32 {msk(p,0)}, v{VJ}, v{cnt}")
        I(f"v_cmp_lt_u32 {msk(p,1)}, v{X+1}, v{cnt}")
        I(f"v_perm_b32 v{KEY+3*p}, v{en+3}, v{en+2}, v{VSEL}")
        I(f"v_perm_b32 v{KEY+3*p+1}, v{en+5}, v{en+4}, v{VSEL}")
        I(f"v_lshl_add_u32 v{PAD+p}, v{PAD+p}, 4, v{VT1}")
        for w in range(2):
            I(f"s_mov_b64 exec, {msk(p,w)}")
            I(f"s_cbranch_execz L2_nop{p}")
            I(f"ds_add_rtn_u32 v{RNK+3*p+w}, v{KEY+3*p+w}, v{VONE} offset:{HIST}")
            I(f"buffer_load_dwordx4 {pay(p,w)}, v{PAD+p}, s[8:11], s{74+p} offen offset:{128*w} {rf}")
        e.label(f"L2_nop{p}")
        I("s_mov_b64 exec, -1")
    I(f"v_max3_u32 v{VT0}, v{CNTR}, v{CNTR+1}, v{CNTR+2}")
    I(f"v_cmp_lt_u32 vcc, 16, v{VT0}")
    I("s_mov_b32 s25, 0")
    e.nop(1)
    I("s_cmp_eq_u64 vcc, 0")
    I("s_cbranch_scc1 L2_noextraA")
    I("s_mov_b32 s25, 1")
    I(f"v_add_u32 v{X+2}, 16, v{VJ}")
    for p in range(NP):
        en = EN + 8*p
        I(f"v_min_u32 v{X+3}, {KIN}, v{CNTR+p}")
        I(f"v_cmp_lt_u32 {msk(p,2)}, v{X+2}, v{X+3}")
        I(f"v_perm_b32 v{KEY+3*p+2}, v{en+6}, v{en+6}, v{VSEL}")
        I(f"v_sub_u32 v{KAD+p}, v{PAD+p}, v{VCH}")
        I(f"v_lshrrev_b32 v{KAD+p}, 4, v{KAD+p}")
        I(f"v_add_u32 v{KAD+p}, v{KAD+p}, v{VCH}")
        e.flush()
        I(f"s_mov_b64 exec, {msk(p,2)}")
        I(f"ds_add_rtn_u32 v{RNK+3*p+2}, v{KEY+3*p+2}, v{VONE} offset:{HIST}")
        I(f"buffer_load_dwordx4 {pay(p,2)}, v{PAD+p}, s[8:11], s{74+p} offen offset:256 {rf}")
        I("s_mov_b64 exec, -1")

    def extra_count(tag, first, vj, vkad, vcnt, skey, vone, hist, y):
        I(f"v_add_u32 v{y}, {first}, v{vj}")
        I(f"v_add_u32 v{y+1}, {first}, v{vkad}")
        e.label(f"L_xa{tag}")
        I(f"v_cmp_lt_u32 vcc, v{y}, v{vcnt}")
        I("s_and_saveexec_b64 s[44:45], vcc")
        e.branch(f"s_cbranch_execz L_xa{tag}_done")
        I(f"buffer_load_ubyte v{y+2}, v{y+1}, s[8:11], s{skey} offen {rf}")
        I("s_waitcnt vmcnt(0)")
        I(f"ds_add_u32 v{y+2}, v{vone} offset:{hist}")
        I("s_mov_b64 exec, -1")
        I(f"v_add_u32 v{y}, 8, v{y}")
        I(f"v_add_u32 v{y+1}, 8, v{y+1}")
        e.branch(f"s_branch L_xa{tag}")
        e.label(f"L_xa{tag}_done")
        I("s_mov_b64 exec, -1")
    def extra_move(tag, first, vj, vkad, vpad, vcnt, skey, spay, vone, cur, vbase, y, d):
        I(f"v_add_u32 v{y}, {first}, v{vj}")
        I(f"v_add_u32 v{y+1}, {first}, v{vkad}")
        I(f"v_add_u32 v{vpad}, {16*first}, v{vpad}")
        e.label(f"L_xb{tag}")
        I(f"v_cmp_lt_u32 vcc, v{y}, v{vcnt}")
        I("s_and_saveexec_b64 s[44:45], vcc")
        e.branch(f"s_cbranch_execz L_xb{tag}_done")
        I(f"buffer_load_ubyte v{y+2}, v{y+1}, s[8:11], s{skey} offen {rf}")
        I(f"buffer_load_dwordx4 v[{d}:{d+3}], v{vpad}, s[8:11], s{spay} offen {rf}")
        I("s_waitcnt vmcnt(0)")
        I(f"ds_add_rtn_u32 v{y+3}, v{y+2}, v{vone} offset:{cur}")
        I("s_mov_b64 exec, -1")
        I(f"ds_bpermute_b32 v{y+2}, v{y+2}, v{vbase}")
        I("s_waitcnt lgkmcnt(0)")
        I(f"v_add_lshl_u32 v{y+2}, v{y+2}, v{y+3}, 4")
        I("s_mov_b64 exec, vcc")
        I(f"ds_write_b128 v{y+2}, v[{d}:{d+3}] offset:{RAW}")
        I("s_mov_b64 exec, -1")
        I(f"v_add_u32 v{y}, 8, v{y}")
        I(f"v_add_u32 v{y+1}, 8, v{y+1}")
        I(f"v_add_u32 v{vpad}, 128, v{vpad}")
        e.branch(f"s_branch L_xb{tag}")
        e.label(f"L_xb{tag}_done")
        I("s_mov_b64 exec, -1")
    for p in range(NP):
        extra_count(f"a{p}", KIN, VJ, KAD+p, CNTR+p, 80+p, VONE, HIST2, X)
    e.label("L2_noextraA")
    I("s_waitcnt lgkmcnt(0)")
    stamp(e, c, 14)
    I("s_barrier")
    stamp(e, c, 15)
    C1, CT, BS = X + 4, X + 5, X + 6
    I(f"v_lshlrev_b32 v{VT0}, 2, v{VLANE}")
    I(f"ds_read_b32 v{C1}, v{VT0} offset:{HIST}")
    I(f"ds_read_b32 v{CT}, v{VT0} offset:{HIST2}")
    I("s_waitcnt lgkmcnt(0)")
    I(f"v_add_u32 v{CT}, v{C1}, v{CT}")
    I(f"v_mov_b32 v{BS}, v{CT}")
    scan64(e, BS)
    I(f"v_readlane_b32 s46, v{BS}, 63")
    I(f"v_sub_u32 v{BS}, v{BS}, v{CT}")
    I(f"s_cmp_eq_u32 s23, 1")
    I(f"s_cselect_b32 s42, -1, {CAP}")
    for p in range(NP):
        for w in range(2):
            I(f"ds_bpermute_b32 v{KEY+3*p+w}, v{KEY+3*p+w}, v{BS}")
    I(f"v_lshl_or_b32 v{VINFO}, v{CT}, 16, v{BS}")
    I(f"s_cmp_gt_u32 s46, s42")
    I("s_cbranch_scc1 L2_g_overflow")
    I("s_cmp_lg_u32 s21, 5")
    I("s_cbranch_scc1 L2_noinfo")
    I(f"s_mov_b64 exec, {(1 << HN) - 1}")
    I(f"ds_write_b32 v{VT0}, v{VINFO} offset:{INFO}")
    I("s_mov_b64 exec, -1")
    e.label("L2_noinfo")
    I("s_cmp_lg_u32 s21, 4")
    I("s_cbranch_scc1 L2_noguard")
    I("s_lshl_b32 s46, s46, 4")
    for k in range(4): I(f"v_mov_b32 v{EN+k}, 0")
    I(f"v_add_u32 v{VT0}, s46, v{VL16}")
    I(f"ds_write_b128 v{VT0}, v[{EN}:{EN+3}] offset:{RAW}")
    e.label("L2_noguard")
    I("s_waitcnt lgkmcnt(0)")
    for p in range(NP):
        for w in range(2):
            I(f"v_add_lshl_u32 v{KEY+3*p+w}, v{KEY+3*p+w}, v{RNK+3*p+w}, 4")
    stamp(e, c, 27)
    I("s_waitcnt vmcnt(0)")
    stamp(e, c, 9)
    for p in range(NP):
        for w in range(2):
            I(f"s_mov_b64 exec, {msk(p,w)}")
            I(f"ds_write_b128 v{KEY+3*p+w}, {pay(p,w)} offset:{RAW}")
    I("s_mov_b64 exec, -1")
    I("s_cmp_eq_u32 s25, 0")
    I("s_cbranch_scc1 L2_noextraB")
    for p in range(NP):
        I(f"ds_bpermute_b32 v{KEY+3*p+2}, v{KEY+3*p+2}, v{BS}")
    I("s_waitcnt lgkmcnt(0)")
    for p in range(NP):
        I(f"v_add_lshl_u32 v{KEY+3*p+2}, v{KEY+3*p+2}, v{RNK+3*p+2}, 4")
        I(f"s_mov_b64 exec, {msk(p,2)}")
        I(f"ds_write_b128 v{KEY+3*p+2}, {pay(p,2)} offset:{RAW}")
        I("s_mov_b64 exec, -1")
    I(f"v_add_u32 v{BS}, v{BS}, v{C1}")
    for p in range(NP):
        extra_move(f"a{p}", KIN, VJ, KAD+p, PAD+p, CNTR+p, 80+p, 74+p, VONE, CUR2, BS, X, EN)
    e.label("L2_noextraB")
    I("s_waitcnt lgkmcnt(0)")
    stamp(e, c, 28)
    I("s_barrier")
    I(f"ds_read_b32 v{VT0}, v{VL16} offset:{TOTB}")
    if c.static1:
        I("s_sub_u32 s42, s21, 16")
        I(f"v_mov_b32 v{VNEXT}, s42")
    else:
        I("s_mov_b64 exec, 1")
        I(f"ds_add_rtn_u32 v{VNEXT}, v{VL16}, v{VONE} offset:{NEXT}")
        I("s_mov_b64 exec, -1")
    I("s_waitcnt lgkmcnt(0)")
    I(f"v_readfirstlane_b32 s42, v{VT0}")
    e.nop(1)
    I(f"s_cmp_gt_u32 s42, {CAP}")
    I("s_cbranch_scc1 L2_g_overflow")
    stamp(e, c, 10)
    stamp(e, c, 24, "s_memtime")
    if c.prio_g: I(f"s_setprio {c.prio_g}")
    (gather_loop_s if c.smf else gather_loop)(e, c, locals())
    e.label("L2_g_done")
    stamp(e, c, 11)
    stamp(e, c, 25, "s_memtime")
    I("s_cmp_lg_u32 s24, 0")
    e.branch("s_cbranch_scc1 L2_g_exit")
    I("s_add_u32 s89, s89, 1")
    I("s_branch L2_g_slow")
    e.label("L2_g_overflow")
    I("s_mov_b32 s89, 0")
    I("s_mov_b32 s23, 1")
    I("s_movk_i32 s48, 64")
    e.label("L2_g_slow")
    I("s_waitcnt vmcnt(0) lgkmcnt(0)")
    I("s_barrier")
    I("s_lshr_b32 s22, s89, 1")
    I("s_and_b32 s88, s89, 1")
    I("s_lshl_b32 s88, s88, 8")
    I("s_add_u32 s88, s88, s20")
    I(f"s_cmp_eq_u32 s89, {2*NCH-1}")
    I("s_cselect_b32 s24, 1, 0")
    I("s_barrier")
    e.branch("s_branch L2_g_round")
    e.label("L2_g_exit")
    stamp_store(e, c, 90)
    I("s_endpgm")

    e.label("L2_gemm")
    W, G, TA, TF = 0, 40, 104, 108
    X0, X1 = 124, 125
    I("v_and_b32 v104, 63, v0")
    I("v_lshlrev_b32 v105, 4, v104")
    lut = 0
    for jp in range(4):
        for blk in range(4):
            p, i, s = path_of(jp, blk)
            lut |= (p | (8 if s < 0 else 0)) << (4 * (jp * 4 + blk))
    I(f"s_mov_b32 s44, {lut & 0xffffffff}")
    I(f"s_mov_b32 s45, {lut >> 32}")
    for h in range(2):
        I("v_lshrrev_b32 v106, 4, v104")
        I("v_bfe_u32 v107, v104, 3, 1")
        I("v_lshl_add_u32 v106, v106, 2, v107")
        I(f"v_add_lshl_u32 v106, v106, {2*h}, 2")
        I(f"v_lshrrev_b64 v[108:109], v106, s[44:45]")
        I(f"v_and_b32 v106, 7, v108")
        I(f"v_and_b32 v{110+h}, 8, v108")
        I(f"v_lshlrev_b32 v{110+h}, 28, v{110+h}")
        I("v_and_b32 v107, 7, v104")
        I("v_lshlrev_b32 v107, 3, v107")
        I("v_lshl_add_u32 v106, v106, 6, v107")
        I("v_add_u32 v106, s21, v106")
        I(f"v_lshlrev_b32 v{112+h}, 1, v106")
    I("v_mov_b32 v117, v0")
    handoff("m", lambda: None)
    if c.pfx2_pos == 0: prefetch_x(e, c.pfx2_lines, 114, 117, 256, 31, 0, 4, c.pfx_lines)
    WT = 80
    for k in range(4):
        h, qo = k >> 1, (k & 1) * 4
        for d in range(4):
            I(f"buffer_load_ushort v{WT+4*k+d}, v{112+h}, s[16:19], 0 offen offset:{d*640+qo*2}")
    I("v_lshrrev_b32 v106, 4, v104")
    I("v_lshlrev_b32 v106, 10, v106")
    I("v_bfe_u32 v107, v104, 2, 2")
    I("v_lshl_add_u32 v106, v107, 7, v106")
    I("v_and_b32 v107, 3, v104")
    I("v_lshl_add_u32 v106, v107, 3, v106")
    I("s_lshl_b32 s42, s21, 5")
    I(f"s_add_u32 s42, s42, {T}")
    I("v_add_u32 v106, s42, v106")
    for f in range(10):
        I(f"ds_read_b64_tr_b16 v[{W+4*f}:{W+4*f+1}], v106 offset:{f*4096}")
        I(f"ds_read_b64_tr_b16 v[{W+4*f+2}:{W+4*f+3}], v106 offset:{f*4096+512}")
    I("s_lshl_b32 s42, s21, 10")
    I(f"s_add_u32 s43, s42, {WRAD}")
    I("v_add_u32 v105, s43, v105")
    I("s_waitcnt vmcnt(0)")
    for k in range(4):
        h = k >> 1
        for d in range(4):
            I(f"v_lshlrev_b32 v{WT+4*k+d}, 16, v{WT+4*k+d}")
            I(f"v_xor_b32 v{WT+4*k+d}, v{110+h}, v{WT+4*k+d}")
        I(f"ds_write_b128 v105, v[{WT+4*k}:{WT+4*k+3}] offset:{(k>>1)*8192 + (k&1)*4096}")
    I("v_and_b32 v106, 15, v104")
    I("v_lshrrev_b32 v107, 4, v104")
    I(f"v_lshlrev_b32 v{X0}, 2, v104")
    if NWG == 250:
        I(f"s_mul_i32 s42, s20, {HN}")
        I(f"s_movk_i32 s44, {HN}")
    else:
        I("s_mul_i32 s42, s20, 1600210")
        I("s_add_u32 s42, s42, 65532")
        I("s_add_u32 s44, s42, 1600210")
        I("s_lshr_b32 s42, s42, 16")
        I("s_lshr_b32 s44, s44, 16")
        I(f"s_min_u32 s44, s44, {N//2}")
        I("s_sub_u32 s44, s44, s42")
    I("s_lshl_b32 s42, s42, 9")
    I("s_lshl_b32 s43, s21, 5")
    I("s_add_u32 s42, s42, s43")
    I(f"v_lshlrev_b32 v{X1}, 9, v106")
    I(f"v_lshl_add_u32 v{X1}, v107, 3, v{X1}")
    I(f"v_add_u32 v{X1}, s42, v{X1}")
    I(f"v_cmp_le_u32 s[84:85], {HN-16}, v106")
    I(f"s_sub_u32 s43, s44, {48-HN}")
    I("v_cmp_gt_i32 s[50:51], s43, v106")
    I("s_sub_u32 s43, s44, 16")
    I("v_cmp_gt_i32 s[94:95], s43, v106")
    I("v_lshlrev_b32 v108, 10, v106")
    I(f"v_add_u32 v108, {T}, v108")
    I("s_or_b64 s[94:95], s[94:95], s[84:85]")
    for u in (3, 2, 1, 0):
        I(f"v_add_u32 v109, {4*u}, v107")
        I("v_xor_b32 v109, v109, v106")
        I(f"v_lshl_add_u32 v{TF+4+u}, v109, 4, v108")
    I("s_waitcnt lgkmcnt(0)")
    for u in range(4):
        I(f"v_mov_b32 v{TA+u}, v{TF+4+u}")
    I("s_mov_b32 s89, 0")
    NPB = 8
    TB, KA, SJ, KB, RB = 40, 48, 56, 64, 80
    LJ, LCH, LONE, Y = 96, 97, 98, 99
    MB = 52
    def mb(p, w): return f"s[{MB+4*p+2*w}:{MB+4*p+2*w+1}]"
    LA, PA0, PA1, TOA = KB, KB + 1, KB + 2, KB + 3
    I(f"v_lshrrev_b32 v{Y}, 2, v{X0}")
    I("s_lshl_b32 s42, s21, 11")
    I(f"v_lshl_add_u32 v{LA}, v{Y}, 4, s42")
    I(f"v_lshrrev_b32 v{Y+1}, 1, v{Y}")
    I("s_lshl_b32 s43, s21, 5")
    I(f"s_sub_u32 s44, {NCH-128}, s43")
    I(f"v_cmp_gt_i32 s[46:47], s44, v{Y+1}")
    I(f"s_mov_b32 s44, {CSTRIDE}")
    I(f"v_mul_u32_u24 v{Y+1}, s44, v{Y+1}")
    I(f"v_and_b32 v{Y+2}, 16, v{LA}")
    I(f"v_add_u32 v{PA0}, v{Y+1}, v{Y+2}")
    I(f"v_cndmask_b32 v{PA1}, 2.0, v{PA0}, s[46:47]")
    I(f"v_and_b32 v{LJ}, 7, v{Y}")
    I(f"v_lshrrev_b32 v{Y+1}, 3, v{Y}")
    I(f"v_mul_u32_u24 v{LCH}, s44, v{Y+1}")
    I(f"v_lshl_add_u32 v{RB}, v{Y+1}, 5, s42")
    I("s_mul_i32 s38, s43, s44")
    I(f"v_add_u32 v{LCH}, s38, v{LCH}")
    I(f"v_mov_b32 v{LONE}, 1")
    I("s_lshl_b32 s36, s20, 5")
    I(f"s_add_u32 s36, s36, {TABOFF+8192}")
    I("s_add_u32 s36, s36, s38")
    I(f"s_add_u32 s37, s36, {128*CSTRIDE}")
    I("s_lshl_b32 s42, s21, 6")
    I(f"v_add_u32 v{Y}, s42, v{Y}")
    I(f"v_mul_u32_u24 v{Y+1}, 0xaab, v{Y}")
    I(f"v_lshrrev_b32 v{Y+1}, 16, v{Y+1}")
    I(f"v_mul_u32_u24 v{Y+1}, {SSTR-24*32}, v{Y+1}")
    I(f"v_lshl_add_u32 v{TOA}, v{Y}, 5, v{Y+1}")
    I(f"v_add_u32 v{TOA}, {SCR+28}, v{TOA}")
    I(f"s_movk_i32 s42, {NCH}")
    I(f"v_cmp_gt_u32 s[92:93], s42, v{Y}")
    if c.pfx2_pos == 1:
        I("s_mov_b64 s[40:41], s[46:47]")
        prefetch_x(e, c.pfx2_lines, 114, 117, 256, 31, 0, 4, c.pfx_lines)
        I("s_mov_b64 s[46:47], s[40:41]")
    stamp(e, c, 14)
    e.label("L2_m_round")
    I("s_barrier")
    I("s_cmp_eq_u32 s23, 1")
    I("s_cbranch_scc1 L2_m_slowC")
    def pollB_issue():
        I(f"buffer_load_dwordx4 v[{TF+4}:{TF+7}], v{PA0}, s[8:11], s36 offen sc1")
        I(f"buffer_load_dwordx4 v[{TF+8}:{TF+11}], v{PA1}, s[8:11], s37 offen sc1")
    I(f"ds_read_b32 v{TF}, v{X0} offset:{HIST}")
    I(f"ds_read_b32 v{TF+1}, v{X0} offset:{HIST2}")
    I(f"ds_read_b32 v{Y}, v{TOA}")
    I("s_waitcnt lgkmcnt(0)")
    I(f"v_add_u32 v{TF}, v{TF}, v{TF+1}")
    I(f"v_and_b32 v{Y}, 0xfff, v{Y}")
    I(f"v_cndmask_b32 v{Y}, 0, v{Y}, s[92:93]")
    scan64(e, TF)
    scan64(e, Y)
    I(f"v_readlane_b32 s42, v{TF}, 63")
    I(f"v_mov_b32 v{Y+2}, 0")
    I("s_mov_b32 exec_lo, 0")
    I("s_mov_b32 exec_hi, 0x80000000")
    I(f"ds_add_u32 v{Y+2}, v{Y} offset:{TOTB}")
    I("s_mov_b64 exec, -1")
    I(f"s_cmp_gt_u32 s42, {CAP}")
    I("s_cbranch_scc1 L2_m_overflow")
    if c.bearly: pollB_issue()
    I("s_waitcnt lgkmcnt(0)")
    I("s_barrier")
    I(f"ds_read_b32 v{Y}, v{Y+2} offset:{TOTB}")
    SEL = Y + 4
    E2 = [TF, TF + 8]
    I("s_mov_b32 s44, 0")
    I("s_waitcnt lgkmcnt(0)")
    I(f"v_readfirstlane_b32 s42, v{Y}")
    I(f"v_or_b32 v{SEL}, 0x0c0c0c00, v{LJ}")
    I(f"s_cmp_gt_u32 s42, {CAP}")
    I("s_cbranch_scc1 L2_m_overflow")
    stamp(e, c, 10)
    I("s_mov_b32 s34, s42")
    if c.x_nobload: I("s_branch L2_bnoxb")
    if c.bearly: I("s_branch L2_pollB_w")
    e.label("L2_pollB")
    pollB_issue()
    e.label("L2_pollB_w")
    I("s_add_u32 s44, s44, 1")
    I("s_waitcnt vmcnt(0)")
    tag_bad(e, Y, TF+4, Y+1, ODD)
    tag_bad(e, Y+2, TF+8, Y+1, ODD)
    I(f"v_cndmask_b32 v{Y+2}, 0, v{Y+2}, s[46:47]")
    I(f"v_or_b32 v{Y}, v{Y}, v{Y+2}")
    I(f"v_cmp_ne_u32 vcc, 0, v{Y}")
    e.nop(2)
    I("s_cmp_eq_u64 vcc, 0")
    I("s_cbranch_scc1 L2_pollB_ok")
    I(f"s_sleep {c.psleep}")
    I("s_cmp_lt_u32 s44, 0x100000")
    I("s_cbranch_scc1 L2_pollB")
    e.label("L2_pollB_ok")
    stamp(e, c, 7)
    I(f"ds_write_b128 v{LA}, v[{TF+4}:{TF+7}] offset:{CEB}")
    I(f"ds_write_b128 v{LA}, v[{TF+8}:{TF+11}] offset:{CEB+1024}")
    def boff(p): return ((128 if p >= 4 else 0) + 8 * (p & 3)) * CSTRIDE
    def ent_read(p):
        r = E2[p & 1]
        I(f"ds_read_b128 v[{r}:{r+3}], v{RB} offset:{CEB+256*p}")
        I(f"ds_read_b64 v[{r+4}:{r+5}], v{RB} offset:{CEB+256*p+16}")
    ent_read(0); ent_read(1)
    I(f"v_add_u32 v{Y+1}, 8, v{LJ}")
    for p in range(NPB):
        r = E2[p & 1]
        I(f"s_waitcnt lgkmcnt({2 if p < NPB-1 else 0})")
        I(f"v_and_b32 v{SJ+p}, 0xfff, v{r}")
        I(f"v_bfe_u32 v{TB+p}, v{r}, 12, 12")
        I(f"v_perm_b32 v{KB+2*p}, v{r+3}, v{r+2}, v{SEL}")
        I(f"v_perm_b32 v{KB+2*p+1}, v{r+5}, v{r+4}, v{SEL}")
        if p + 2 < NPB: ent_read(p + 2)
        I(f"v_add_u32 v{SJ+p}, v{SJ+p}, v{LJ}")
        I(f"v_cmp_lt_u32 {mb(p,0)}, v{LJ}, v{TB+p}")
        I(f"v_cmp_lt_u32 {mb(p,1)}, v{Y+1}, v{TB+p}")
        I(f"v_lshl_add_u32 v{SJ+p}, v{SJ+p}, 4, v{LCH}")
    P0 = [TF, TF+4, TF+8, TF+12]
    def pay_issue(p, w, reg):
        I(f"s_mov_b32 s42, {boff(p)+PAYOFF}")
        I("s_mov_b64 exec, -1")
        I(f"v_cndmask_b32 v{Y+2+w}, 2.0, v{SJ+p}, {mb(p,w)}")
        I(f"buffer_load_dwordx4 v[{reg}:{reg+3}], v{Y+2+w}, s[8:11], s42 offen offset:{128*w} {rf}")
    for k in range(4): pay_issue(k >> 1, k & 1, P0[k])
    I(f"v_max3_u32 v{Y}, v{TB}, v{TB+1}, v{TB+2}")
    I(f"v_max3_u32 v{Y}, v{Y}, v{TB+3}, v{TB+4}")
    I(f"v_max3_u32 v{Y}, v{Y}, v{TB+5}, v{TB+6}")
    I(f"v_max_u32 v{Y}, v{Y}, v{TB+7}")
    I(f"v_cmp_lt_u32 vcc, 16, v{Y}")
    I(f"v_mov_b32 v{Y+1}, v{RB}")
    for p in range(NPB):
        for w in range(2):
            I(f"s_mov_b64 exec, {mb(p,w)}")
            I(f"ds_add_rtn_u32 v{RB+2*p+w}, v{KB+2*p+w}, v{LONE} offset:{HISTB}")
    I("s_mov_b64 exec, -1")
    I("s_cmp_lg_u64 vcc, 0")
    I("s_cselect_b32 s35, 1, 0")
    I("s_cbranch_scc0 L2_bnoxa")
    def w2mask(p):
        I(f"v_min_u32 v{Y+2}, {KIN}, v{TB+p}")
        I(f"v_add_u32 v{Y+3}, 16, v{LJ}")
        I(f"v_cmp_lt_u32 vcc, v{Y+3}, v{Y+2}")
        I("s_and_saveexec_b64 s[44:45], vcc")
    for p in range(NPB):
        w2mask(p)
        e.branch(f"s_cbranch_execz L2_bw2a{p}")
        I(f"ds_read_b32 v{KA+p}, v{Y+1} offset:{CEB+256*p+24}")
        I("s_waitcnt lgkmcnt(0)")
        I(f"v_perm_b32 v{KA+p}, v{KA+p}, v{KA+p}, v{SEL}")
        I(f"ds_add_rtn_u32 v{Y+2}, v{KA+p}, v{LONE} offset:{HISTB}")
        I("s_waitcnt lgkmcnt(0)")
        I(f"v_lshl_or_b32 v{KA+p}, v{Y+2}, 8, v{KA+p}")
        e.label(f"L2_bw2a{p}")
        I("s_mov_b64 exec, -1")
    def key_addr(p, dst):
        I(f"v_sub_u32 v{dst}, v{SJ+p}, v{LCH}")
        I(f"v_lshrrev_b32 v{dst}, 4, v{dst}")
        I(f"v_add_u32 v{dst}, v{dst}, v{LCH}")
    for p in range(NPB):
        I(f"s_mov_b32 s42, {boff(p)+KEYOFF}")
        key_addr(p, Y+3)
        extra_count(f"b{p}", KIN, LJ, Y+3, TB+p, 42, LONE, HIST2B, Y)
    e.label("L2_bnoxa")
    I("s_mov_b64 exec, 1")
    I(f"v_mov_b32 v{Y+2}, 0")
    I("s_waitcnt lgkmcnt(0)")
    I(f"ds_add_u32 v{Y+2}, v{LONE} offset:{BSYNC}")
    I("s_mov_b64 exec, -1")
    I(f"v_mov_b32 v{Y+2}, 0")
    spin(e, "bs", Y, Y+2, BSYNC, 4, 44, 42)
    BB = Y + 4
    I(f"ds_read_b32 v{Y}, v{X0} offset:{HISTB}")
    I(f"ds_read_b32 v{Y+1}, v{X0} offset:{HIST2B}")
    I("s_waitcnt lgkmcnt(0)")
    I(f"v_add_u32 v{Y+1}, v{Y}, v{Y+1}")
    I(f"v_mov_b32 v{BB}, v{Y+1}")
    scan64(e, BB)
    I(f"v_sub_u32 v{BB}, v{BB}, v{Y+1}")
    I(f"v_add_u32 v{BB}, {BOFF}, v{BB}")
    for k in range(2*NPB):
        I(f"ds_bpermute_b32 v{KB+k}, v{KB+k}, v{BB}")
    I("s_cmp_lg_u32 s21, 0")
    I("s_cbranch_scc1 L2_bnoinfo")
    I(f"v_lshl_or_b32 v{Y+1}, v{Y+1}, 16, v{BB}")
    I(f"s_mov_b32 exec_lo, {((1 << 32) - (1 << HN))}")
    I(f"ds_write_b32 v{X0}, v{Y+1} offset:{INFO}")
    I("s_mov_b64 exec, -1")
    e.label("L2_bnoinfo")
    I("s_waitcnt lgkmcnt(0)")
    for k in range(2*NPB):
        I(f"v_add_lshl_u32 v{KB+k}, v{KB+k}, v{RB+k}, 4")
    I(f"v_mov_b32 v{LONE}, v{Y}")
    regs = P0 + [RB, RB+4, RB+8, RB+12]
    for k in range(4, 8): pay_issue(k >> 1, k & 1, regs[k])
    for k in range(16):
        I(f"s_waitcnt vmcnt({min(7, 15-k)})")
        I(f"s_mov_b64 exec, {mb(k>>1, k&1)}")
        I(f"ds_write_b128 v{KB+k}, v[{regs[k&7]}:{regs[k&7]+3}] offset:{RAW}")
        if k + 8 < 16: pay_issue((k+8) >> 1, (k+8) & 1, regs[k&7])
    I("s_mov_b64 exec, -1")
    I("s_cmp_eq_u32 s35, 0")
    I("s_cbranch_scc1 L2_bnoxb")
    for p in range(NPB):
        I(f"v_and_b32 v{Y}, 0xff, v{KA+p}")
        I(f"ds_bpermute_b32 v{Y}, v{Y}, v{BB}")
        w2mask(p)
        e.branch(f"s_cbranch_execz L2_bw2b{p}")
        I(f"s_mov_b32 s42, {boff(p)+PAYOFF}")
        I(f"buffer_load_dwordx4 v[{TF}:{TF+3}], v{SJ+p}, s[8:11], s42 offen offset:256 {rf}")
        I(f"v_lshrrev_b32 v{KA+p}, 8, v{KA+p}")
        I("s_waitcnt vmcnt(0) lgkmcnt(0)")
        I(f"v_add_lshl_u32 v{Y}, v{Y}, v{KA+p}, 4")
        I(f"ds_write_b128 v{Y}, v[{TF}:{TF+3}] offset:{RAW}")
        e.label(f"L2_bw2b{p}")
        I("s_mov_b64 exec, -1")
        I("s_waitcnt lgkmcnt(0)")
    I(f"v_add_u32 v{BB}, v{BB}, v{LONE}")
    I(f"v_mov_b32 v{LONE}, 1")
    for p in range(NPB):
        I(f"s_mov_b32 s42, {boff(p)+KEYOFF}")
        I(f"s_mov_b32 s43, {boff(p)+PAYOFF}")
        key_addr(p, KA+p)
        extra_move(f"b{p}", KIN, LJ, KA+p, SJ+p, TB+p, 42, 43, LONE, CUR2B, BB, Y, TF)
    e.label("L2_bnoxb")
    I("s_waitcnt lgkmcnt(0)")
    for k in range(64):
        I(f"v_mov_b32 v{G+k}, 0")
    I("s_cmp_lg_u32 s21, 1")
    I("s_cbranch_scc1 L2_bnoguard")
    I(f"s_add_u32 s42, s34, {BOFF}")
    I("s_lshl_b32 s42, s42, 4")
    I(f"v_lshl_add_u32 v{TF}, v{X0}, 2, s42")
    I(f"ds_write_b128 v{TF}, v[{G}:{G+3}] offset:{RAW}")
    I("s_waitcnt lgkmcnt(0)")
    e.label("L2_bnoguard")
    I(f"v_mov_b32 v{TF}, 1")
    I("s_mov_b64 exec, 1")
    I(f"ds_add_u32 v{G}, v{TF} offset:{BREADY}")
    I("s_mov_b64 exec, -1")
    stamp(e, c, 13)
    I("s_branch L2_m_tiles")
    e.label("L2_m_slowC")
    I("s_barrier")
    e.label("L2_m_tiles")
    if c.prio_m: I(f"s_setprio {c.prio_m}")
    for h in range(2):
        for t in ((0, 3, 1, 2) if h else range(4)):
            need = 16 if t < 3 else NODES - 48
            last = (h, t) == (1, 2)
            if last and c.split: need = 32
            I(f"v_mov_b32 v{TF}, 0")
            spin(e, f"t{h}{t}", TF+1, TF, DONE + 16*h + 4*t, need, 43, 42, sleep=(1 if last else c.sleep))
            stamp(e, c, 16 + 4*h + t)
            srcs = [t] + ([0] if last and c.split else [])
            steps = [(tt, ks) for tt in srcs for ks in range(16)]
            def mf(ks, r):
                jp, blk = ks >> 2, 2 * h + ((ks >> 1) & 1)
                p, i, sg = path_of(jp, blk)
                f = p * 2 + (ks & 1)
                g = G + 16 * t + 4 * i
                I(f"v_mfma_f32_16x16x32_bf16 v[{g}:{g+3}], v[{W+4*f}:{W+4*f+3}], v[{r}:{r+3}], v[{g}:{g+3}]")
            def rd(n, r):
                tt, ks = steps[n]
                I(f"ds_read_b128 v[{r}:{r+3}], v{TA+(ks&3)} offset:{tt*16384 + (ks>>2)*256}")
            if last and c.fastlast and not c.split:
                I("s_cmp_eq_u32 s24, 0")
                I("s_cbranch_scc1 L2_lastslow")
                fr = [TF + 4*n for n in range(4)] + [G + 4*n for n in range(8)] + [G + 48 + 4*n for n in range(4)]
                order = [0, 2, 4, 8, 1, 3, 5, 9, 6, 10, 12, 14, 7, 11, 13, 15]
                for n, ks in enumerate(order): rd(ks, fr[n])
                for n, ks in enumerate(order):
                    I(f"s_waitcnt lgkmcnt({15-n})")
                    mf(ks, fr[n])
                I("s_branch L2_lastdone")
                e.label("L2_lastslow")
            for n in range(4): rd(n, TF + 4*n)
            for n in range(len(steps)):
                I(f"s_waitcnt lgkmcnt({min(3, len(steps)-1-n)})")
                mf(steps[n][1], TF + 4*(n&3))
                if n + 4 < len(steps): rd(n + 4, TF + 4*(n&3))
            if last and c.fastlast and not c.split: e.label("L2_lastdone")
            if (h, t) == (1, 0) and c.split:
                I(f"v_mov_b32 v{TF}, 0")
                I(f"v_mov_b32 v{TF+1}, 1")
                I("s_mov_b64 exec, 1")
                I(f"ds_add_u32 v{TF}, v{TF+1} offset:{GDONE + 16}")
                I("s_mov_b64 exec, -1")
            if h == 0:
                I(f"v_mov_b32 v{TF}, 0")
                I(f"v_mov_b32 v{TF+1}, 1")
                I("s_mov_b64 exec, 1")
                I(f"ds_add_u32 v{TF}, v{TF+1} offset:{GDONE + 4*t}")
                I("s_mov_b64 exec, -1")
                if t == c.pf1_tile:
                    I(f"s_movk_i32 m0, {HIST2B}")
                    I("s_lshl_b32 s42, s21, 6")
                    I(f"v_lshrrev_b32 v{TF+3}, 2, v{X0}")
                    I(f"v_add_u32 v{TF+3}, s42, v{TF+3}")
                    prefetch_x(e, c.pf1_lines, TF + 4, TF + 3, 256, 31, 1, 4, lds=True)
            else:
                I("s_cmp_eq_u32 s24, 0")
                e.branch(f"s_cbranch_scc1 L2_nofin{t}")
                g = G + 16 * t
                I("s_mov_b32 s42, 0xbfb8aa3b")
                for r in range(4): I(f"v_mul_f32 v{TF+r}, s42, v{g+r}")
                for r in range(4): I(f"v_exp_f32 v{TF+r}, v{TF+r}")
                for r in range(4): I(f"v_add_f32 v{TF+r}, 1.0, v{TF+r}")
                for r in range(4): I(f"v_rcp_f32 v{TF+r}, v{TF+r}")
                for i in range(1, 4):
                    for r in range(4): I(f"v_mul_f32 v{g+4*i+r}, v{g+4*i+r}, v{TF+r}")
                for i in range(4):
                    I(f"v_cvt_pk_bf16_f32 v{TF+4+2*i}, v{g+4*i}, v{g+4*i+1}")
                    I(f"v_cvt_pk_bf16_f32 v{TF+5+2*i}, v{g+4*i+2}, v{g+4*i+3}")
                I(f"s_mov_b32 s42, {t*16*512 + ((N//2-HN)*512 if t >= 2 else 0)}")
                va = X1
                if t == 1:
                    va = TF
                    I(f"v_add_u32 v{TF}, {(N//2-HN)*512}, v{X1}")
                    I(f"v_cndmask_b32 v{TF}, v{X1}, v{TF}, s[84:85]")
                    I("s_mov_b64 exec, s[94:95]")
                if t == 3:
                    I("s_mov_b64 exec, s[50:51]")
                    I("s_cbranch_execz L2_nost3")
                for i in range(4):
                    I(f"buffer_store_dwordx2 v[{TF+4+2*i}:{TF+5+2*i}], v{va}, s[12:15], s42 offen offset:{i*128} {c.out_flags}")
                if t == 3: e.label("L2_nost3")
                if t in (1, 3): I("s_mov_b64 exec, -1")
                e.label(f"L2_nofin{t}")
    stamp(e, c, 11)
    I("s_cmp_lg_u32 s24, 0")
    e.branch("s_cbranch_scc1 L2_m_exit")
    I("s_add_u32 s89, s89, 1")
    I("s_branch L2_m_slow")
    e.label("L2_m_overflow")
    I("s_mov_b32 s89, 0")
    I("s_mov_b32 s23, 1")
    I("s_waitcnt vmcnt(0)")
    for k in range(64):
        I(f"v_mov_b32 v{G+k}, 0")
    e.label("L2_m_slow")
    I("s_waitcnt vmcnt(0) lgkmcnt(0)")
    I("s_barrier")
    I(f"s_cmp_eq_u32 s89, {2*NCH-1}")
    I("s_cselect_b32 s24, 1, 0")
    I("s_cmp_lg_u32 s21, 1")
    I("s_cbranch_scc1 L2_m_nz")
    for k in range(4): I(f"v_mov_b32 v{TF+k}, 0")
    I(f"v_lshlrev_b32 v{TF+4}, 2, v{X0}")
    I(f"ds_write_b128 v{TF+4}, v[{TF}:{TF+3}]")
    I("s_waitcnt lgkmcnt(0)")
    e.label("L2_m_nz")
    I("s_barrier")
    e.branch("s_branch L2_m_round")
    e.label("L2_m_exit")
    if c.stamps:
        I("s_waitcnt vmcnt(0)")
        stamp(e, c, 12)
        stamp_store(e, c, TF)
    e.label("L_end")
    I("s_endpgm")
    e.label("L_codeend")
    return KNAME, 128, 96

def gather_loop(e, c, L):
    I = e.I
    RAW, T, NEXT, DONE, GDONE, OSC, PL1, BREADY, INFO = (L[k] for k in "RAW T NEXT DONE GDONE OSC PL1 BREADY INFO".split())
    VLANE, VINFO, VNEXT, VLOFF, VMASK, VOW, VOR, VSCRW, VTRA, VWR, VL16, VT0, VT1, VONE = (L[k] for k in
        "VLANE VINFO VNEXT VLOFF VMASK VOW VOR VSCRW VTRA VWR VL16 VT0 VT1 VONE".split())
    ACC, LD, B, A, AD = 0, 32, 64, 96, 100
    sA, sR, sH, sN, sNV = 32, 33, 34, 35, 37
    sCN, sCH, sCF, sCR, sL = 38, 39, 40, 41, 36
    uid = [0]
    def lab(p):
        uid[0] += 1
        return f"L2_{p}{uid[0]}"
    def fetch_issue():
        I("s_mov_b64 exec, 1")
        I(f"ds_add_rtn_u32 v{VNEXT}, v{VL16}, v{VONE} offset:{NEXT}")
        I("s_mov_b64 exec, -1")
    NIT = 2*NODES + (16 if c.split else 0)
    def setup_item(none_label):
        I(f"v_readfirstlane_b32 s42, v{VNEXT}")
        e.nop(1)
        if c.static1: I("s_add_u32 s42, s42, 12")
        I(f"s_cmp_ge_u32 s42, {NIT}")
        I(f"s_cbranch_scc1 {none_label}")
        t, sp, dn = lab("bw"), lab("sp"), lab("sd")
        if c.split:
            I(f"s_cmp_ge_u32 s42, {2*NODES-16}")
            I(f"s_cbranch_scc1 {sp}")
        I(f"s_cmp_ge_u32 s42, {NODES}")
        I(f"s_cselect_b32 s{sH}, 256, 0")
        I(f"s_cselect_b32 s43, {NODES}, 0")
        I(f"s_cmp_ge_u32 s42, {NODES+16}")
        I(f"s_cselect_b32 s43, {NODES-32}, s43")
        I(f"s_cmp_ge_u32 s42, {NODES+18}")
        I(f"s_cselect_b32 s43, {NODES+2}, s43")
        I(f"s_sub_u32 s{sN}, s42, s43")
        I(f"s_cmp_lt_u32 s{sN}, s48")
        I(f"s_cbranch_scc1 {t}")
        stamp(e, c, 29)
        I(f"v_mov_b32 v{VT0}, 0")
        spin(e, t, VT1, VT0, BREADY, 4, 45, 44, sleep=1)
        I(f"v_lshrrev_b32 v{VT0}, 2, v{VL16}")
        I(f"ds_read_b32 v{VINFO}, v{VT0} offset:{INFO}")
        I("s_movk_i32 s48, 64")
        I("s_waitcnt lgkmcnt(0)")
        stamp(e, c, 30)
        e.label(t)
        I(f"v_readlane_b32 s42, v{VINFO}, s{sN}")
        e.nop(1)
        I(f"s_lshr_b32 s{sR}, s42, 16")
        I("s_and_b32 s42, s42, 0xffff")
        I(f"s_lshl_b32 s{sA}, s42, 4")
        if c.split:
            I(f"s_branch {dn}")
            e.label(sp)
            I(f"s_sub_u32 s42, s42, {2*NODES-16}")
            I("s_lshr_b32 s43, s42, 1")
            I(f"s_add_u32 s{sN}, s43, 32")
            I(f"s_cmp_lt_u32 s{sN}, s48")
            I(f"s_cbranch_scc1 {t}b")
            I(f"v_mov_b32 v{VT0}, 0")
            spin(e, t + "c", VT1, VT0, BREADY, 4, 45, 44, sleep=1)
            I(f"v_lshrrev_b32 v{VT0}, 2, v{VL16}")
            I(f"ds_read_b32 v{VINFO}, v{VT0} offset:{INFO}")
            I("s_movk_i32 s48, 64")
            I("s_waitcnt lgkmcnt(0)")
            e.label(t + "b")
            I(f"v_readlane_b32 s44, v{VINFO}, s{sN}")
            I(f"s_movk_i32 s{sH}, 256")
            I(f"s_lshr_b32 s{sR}, s44, 16")
            I("s_and_b32 s44, s44, 0xffff")
            I(f"s_min_u32 s45, s{sR}, 32")
            I("s_bitcmp1_b32 s42, 0")
            I(f"s_cbranch_scc1 {sp}h")
            I(f"s_mov_b32 s{sR}, s45")
            I(f"s_lshl_b32 s{sA}, s44, 4")
            I(f"s_branch {dn}")
            e.label(sp + "h")
            I(f"s_sub_u32 s{sR}, s{sR}, s45")
            I("s_add_u32 s44, s44, s45")
            I(f"s_lshl_b32 s{sA}, s44, 4")
            I(f"s_or_b32 s{sN}, s43, 64")
            e.label(dn)
    def off_read(hf):
        I(f"ds_read_b128 v[{AD}:{AD+3}], v{VOR} offset:{OSC+128*hf}")
        I(f"ds_read_b128 v[{AD+4}:{AD+7}], v{VOR} offset:{OSC+128*hf+16}")
    def off_add():
        if c.addtid: return
        for i in range(8):
            I(f"v_add_u32 v{AD+i}, v{AD+i}, v{VLOFF}")
    def prep_block():
        r = B
        I(f"v_add_u32 v{VT0}, s{sA}, v{VL16}")
        I(f"ds_read_b128 v[{r}:{r+3}], v{VT0} offset:{RAW}")
        l = lab("nf")
        I(f"s_cmp_gt_u32 s{sR}, 64")
        I(f"s_cbranch_scc1 {l}")
        fetch_issue()
        e.label(l)
        I(f"v_cmp_gt_u32 vcc, s{sR}, v{VLANE}")
        I("s_waitcnt lgkmcnt(0)")
        I(f"v_lshrrev_b32 v{r+11}, 16, v{r+3}")
        if c.addtid:
            I(f"v_lshlrev_b32 v{r+11}, 5, v{r+11}")
            I(f"v_sub_u32 v{r+11}, v{r+11}, v{VLOFF}")
        else:
            I(f"v_lshlrev_b32 v{r+11}, 9, v{r+11}")
            if c.oobtail: I(f"v_cndmask_b32 v{r+11}, 2.0, v{r+11}, vcc")
        I(f"ds_write_b32 v{VOW}, v{r+11} offset:{OSC}")
        off_read(0)
        if not c.x_noexp:
            I(f"v_cndmask_b32 v{r}, 0, v{r}, vcc")
            I(f"v_cndmask_b32 v{r+1}, 0, v{r+1}, vcc")
            I(f"v_lshlrev_b32 v{r+8}, 16, v{r+2}")
            I(f"v_and_b32 v{r+9}, v{VMASK}, v{r+2}")
            I(f"v_lshlrev_b32 v{r+10}, 16, v{r+3}")
            I(f"v_lshlrev_b32 v{r+4}, 16, v{r}")
            I(f"v_and_b32 v{r+5}, v{VMASK}, v{r}")
            I(f"v_lshlrev_b32 v{r+6}, 16, v{r+1}")
            I(f"v_and_b32 v{r+7}, v{VMASK}, v{r+1}")
            for j in range(3):
                for d in range(4):
                    I(f"v_mul_f32 v{r+12+4*j+d}, v{r+4+d}, v{r+8+j}")
            I(f"v_cvt_pk_bf16_f32 v{r+2}, v{r+12}, v{r+13}")
            I(f"v_cvt_pk_bf16_f32 v{r+3}, v{r+14}, v{r+15}")
            for k in range(4):
                I(f"v_cvt_pk_bf16_f32 v{r+24+k}, v{r+16+2*k}, v{r+17+2*k}")
        I(f"ds_write_b128 v{VSCRW}, v[{r}:{r+3}]")
        I(f"ds_write_b128 v{VSCRW}, v[{r+24}:{r+27}] offset:{PL1}")
        I("s_waitcnt lgkmcnt(2)")
        off_add()
    def ld(i):
        if c.x_noload: return
        I(f"buffer_load_dwordx4 v[{LD+4*i}:{LD+4*i+3}], v{AD+i}, s[4:7], {'0' if c.x_samehalf else 's%d' % sH} {'idxen' if c.addtid else 'offen'}")
    def perm(q, jj, k16=False):
        if c.x_noperm: return
        d = B + 2*q + jj if k16 else B + 4*q + jj
        I(f"v_perm_b32 v{d}, v{LD+4*(2*jj+1)+q//2}, v{LD+4*(2*jj)+q//2}, s{29 if q & 1 else 28}")
    def loads_partial(done):
        for i in range(7):
            I(f"s_cmp_le_u32 s{sL}, {4*i}")
            I(f"s_cbranch_scc1 {done}")
            ld(i)
    def perms_loads():
        part, done = lab("pp"), lab("pd")
        I("s_waitcnt vmcnt(0)")
        I(f"s_cmp_le_u32 s{sL}, 28")
        I(f"s_cbranch_scc1 {part}")
        for jj in range(4):
            for q in range(8): perm(q, jj)
            ld(2*jj); ld(2*jj+1)
        I(f"s_branch {done}")
        e.label(part)
        for jj in range(4):
            for q in range(8): perm(q, jj)
        loads_partial(done)
        e.label(done)
    def mfmas(first, k16=False):
        if c.x_nomfma: return
        for q in range(8):
            d = f"v[{ACC+4*q}:{ACC+4*q+3}]"
            if k16: I(f"v_mfma_f32_16x16x16_bf16 {d}, v[{A}:{A+1}], v[{B+2*q}:{B+2*q+1}], {'0' if first else d}")
            else: I(f"v_mfma_f32_16x16x32_bf16 {d}, v[{A}:{A+3}], v[{B+4*q}:{B+4*q+3}], {'0' if first else d}")
    def tr_read(hf):
        I(f"ds_read_b64_tr_b16 v[{A}:{A+1}], v{VTRA} offset:{512*hf}")
        I(f"ds_read_b64_tr_b16 v[{A+2}:{A+3}], v{VTRA} offset:{512*hf+256}")

    if c.stamps: I("s_mov_b32 s92, 16")
    setup_item("L2_g_done")
    prep_block()
    for i in range(8): ld(i)
    for first in (1, 0):
        e.label(f"L2_A{first}")
        tr_read(0)
        I(f"s_cmp_gt_u32 s{sR}, 32")
        I(f"s_cbranch_scc1 L2_AB{first}")
        I(f"s_mov_b32 s{sCF}, {first}")
        I(f"s_mov_b32 s{sCR}, s{sR}")
        I("s_branch L2_XN")
        e.label(f"L2_AB{first}")
        off_read(1)
        I(f"s_sub_u32 s{sL}, s{sR}, 32")
        I("s_waitcnt lgkmcnt(0)")
        off_add()
        perms_loads()
        mfmas(first)
        if first: I("s_branch L2_B")
    e.label("L2_B")
    tr_read(1)
    I(f"s_cmp_gt_u32 s{sR}, 64")
    I("s_cbranch_scc0 L2_BN")
    I(f"s_sub_u32 s{sR}, s{sR}, 64")
    I(f"s_add_u32 s{sA}, s{sA}, 1024")
    I(f"s_mov_b32 s{sL}, s{sR}")
    prep_block()
    perms_loads()
    I("s_waitcnt lgkmcnt(0)")
    mfmas(0)
    I("s_branch L2_A0")
    e.label("L2_BN")
    I(f"s_mov_b32 s{sCF}, 0")
    I(f"s_sub_u32 s{sCR}, s{sR}, 32")
    e.label("L2_XN")
    I(f"s_mov_b32 s{sCN}, s{sN}")
    I(f"s_mov_b32 s{sCH}, s{sH}")
    I(f"s_mov_b32 s{sNV}, 1")
    setup_item("L2_XN_none")
    I(f"s_mov_b32 s{sL}, s{sR}")
    prep_block()
    I("s_branch L2_XN_go")
    e.label("L2_XN_none")
    I(f"s_mov_b32 s{sNV}, 0")
    I(f"s_mov_b32 s{sL}, 0")
    e.label("L2_XN_go")
    I(f"s_cmp_le_u32 s{sCR}, 16")
    I("s_cbranch_scc1 L2_XN_k16")
    perms_loads()
    I("s_waitcnt lgkmcnt(0)")
    I(f"s_cmp_eq_u32 s{sCF}, 0")
    I("s_cbranch_scc1 L2_XN_acc")
    mfmas(1)
    I("s_branch L2_XN_epi")
    e.label("L2_XN_acc")
    mfmas(0)
    I("s_branch L2_XN_epi")
    e.label("L2_XN_k16")
    I("s_waitcnt vmcnt(0)")
    for jj in range(2):
        for q in range(8): perm(q, jj, True)
    I(f"s_cmp_le_u32 s{sL}, 28")
    I("s_cbranch_scc1 L2_XN_k16p")
    for i in range(8): ld(i)
    I("s_branch L2_XN_k16d")
    e.label("L2_XN_k16p")
    loads_partial("L2_XN_k16d")
    e.label("L2_XN_k16d")
    I("s_waitcnt lgkmcnt(0)")
    I(f"s_cmp_eq_u32 s{sCF}, 0")
    I("s_cbranch_scc1 L2_XN_k16acc")
    mfmas(1, True)
    I("s_branch L2_XN_epi")
    e.label("L2_XN_k16acc")
    mfmas(0, True)
    e.label("L2_XN_epi")
    I(f"s_lshl_b32 s42, s{sCH}, 5")
    I(f"v_add_u32 v{VT0}, s42, v{VWR}")
    for q in range(8):
        I(f"ds_read_b128 v[{B+4*q}:{B+4*q+3}], v{VT0} offset:{q*1024}")
    I(f"s_lshr_b32 s43, s{sCN}, 4")
    I(f"s_lshl_b32 s43, s43, 2")
    I(f"s_cmp_eq_u32 s{sCH}, 0")
    I("s_cbranch_scc1 L2_nowar")
    I(f"v_mov_b32 v{VT1}, s43")
    spin(e, "war", VT0, VT1, GDONE, 4, 45, 44)
    if c.split:
        I("s_cmp_eq_u32 s43, 16")
        I("s_cselect_b32 s43, 8, s43")
    I("s_add_u32 s43, s43, 16")
    e.label("L2_nowar")
    I(f"s_and_b32 s44, s{sCN}, 15")
    I("s_lshl_b32 s44, s44, 4")
    I(f"s_and_b32 s45, s{sCN}, 63")
    I(f"s_lshl_b32 s45, s45, 10")
    I(f"s_add_u32 s45, s45, {T}")
    I(f"v_xor_b32 v{VT0}, s44, v{VL16}")
    I(f"v_add_u32 v{VT0}, s45, v{VT0}")
    I(f"v_mov_b32 v{VT1}, s43")
    I("s_waitcnt lgkmcnt(0)")
    for q in range(8):
        I(f"v_mul_f32 v{B+4*q}, v{B+4*q}, v{ACC+4*q}")
    for d in range(1, 4):
        for q in range(8):
            I(f"v_fmac_f32 v{B+4*q}, v{B+4*q+d}, v{ACC+4*q+d}")
    for k in range(4):
        I(f"v_cvt_pk_bf16_f32 v{A+k}, v{B+8*k}, v{B+8*k+4}")
    I(f"ds_write_b128 v{VT0}, v[{A}:{A+3}]")
    if not c.nowait: I("s_waitcnt lgkmcnt(0)")
    I("s_mov_b64 exec, 1")
    I(f"ds_add_u32 v{VT1}, v{VONE} offset:{DONE}")
    I("s_mov_b64 exec, -1")
    if c.stamps:
        I("s_memrealtime s[90:91]")
        I("s_waitcnt lgkmcnt(0)")
        I("s_mov_b32 m0, s92")
        I(f"v_writelane_b32 v{STV}, s90, m0")
        I("s_add_u32 s92, s92, 1")
        I("s_min_u32 s92, s92, 23")
    I(f"s_cmp_lg_u32 s{sNV}, 0")
    I("s_cbranch_scc1 L2_A1")

def gather_loop_s(e, c, L):
    I = e.I
    RAW, T, NEXT, DONE, GDONE, OSC, PL1, BREADY, INFO = (L[k] for k in "RAW T NEXT DONE GDONE OSC PL1 BREADY INFO".split())
    VLANE, VINFO, VNEXT, VLOFF, VMASK, VOW, VOR, VSCRW, VTRA, VWR, VL16, VT0, VT1, VONE = (L[k] for k in
        "VLANE VINFO VNEXT VLOFF VMASK VOW VOR VSCRW VTRA VWR VL16 VT0 VT1 VONE".split())
    VTRB, VIDX = L["VJ"], L["VSEL"]
    ACC, LD, B, A, AD = 0, 32, 64, 96, 100
    sA, sR, sH, sN, sNV = 32, 33, 34, 35, 37
    sCN, sCH, sCR, sL = 38, 39, 41, 36
    uid = [0]
    def lab(p):
        uid[0] += 1
        return f"L3_{p}{uid[0]}"
    def fetch_issue():
        I("s_mov_b64 exec, 1")
        I(f"ds_add_rtn_u32 v{VNEXT}, v{VL16}, v{VONE} offset:{NEXT}")
        I("s_mov_b64 exec, -1")
    def setup_item(none_label):
        I(f"v_readfirstlane_b32 s42, v{VNEXT}")
        e.nop(1)
        I(f"s_cmp_ge_u32 s42, {2*NODES}")
        I(f"s_cbranch_scc1 {none_label}")
        I(f"s_cmp_ge_u32 s42, {NODES}")
        I(f"s_cselect_b32 s{sH}, 256, 0")
        I(f"s_cselect_b32 s43, {NODES}, 0")
        I(f"s_cmp_ge_u32 s42, {NODES+16}")
        I(f"s_cselect_b32 s43, {NODES-32}, s43")
        I(f"s_cmp_ge_u32 s42, {NODES+18}")
        I(f"s_cselect_b32 s43, {NODES+2}, s43")
        I(f"s_sub_u32 s{sN}, s42, s43")
        t = lab("bw")
        I(f"s_cmp_lt_u32 s{sN}, s48")
        I(f"s_cbranch_scc1 {t}")
        stamp(e, c, 29)
        I(f"v_mov_b32 v{VT0}, 0")
        spin(e, t, VT1, VT0, BREADY, 4, 45, 44, sleep=1)
        I(f"v_lshrrev_b32 v{VT0}, 2, v{VL16}")
        I(f"ds_read_b32 v{VINFO}, v{VT0} offset:{INFO}")
        I("s_movk_i32 s48, 64")
        I("s_waitcnt lgkmcnt(0)")
        stamp(e, c, 30)
        e.label(t)
        I(f"v_readlane_b32 s42, v{VINFO}, s{sN}")
        e.nop(1)
        I(f"s_lshr_b32 s{sR}, s42, 16")
        I("s_and_b32 s42, s42, 0xffff")
        I(f"s_lshl_b32 s{sA}, s42, 4")
    def off_read(hf):
        I(f"ds_read_b128 v[{AD}:{AD+3}], v{VOR} offset:{OSC+128*hf}")
        I(f"ds_read_b128 v[{AD+4}:{AD+7}], v{VOR} offset:{OSC+128*hf+16}")
    def off_add():
        for i in range(8):
            I(f"v_add_u32 v{AD+i}, v{AD+i}, v{VLOFF}")
    def prep_block():
        r = B
        I(f"v_add_u32 v{VT0}, s{sA}, v{VL16}")
        I(f"ds_read_b128 v[{r}:{r+3}], v{VT0} offset:{RAW}")
        l = lab("nf")
        I(f"s_cmp_gt_u32 s{sR}, 64")
        I(f"s_cbranch_scc1 {l}")
        fetch_issue()
        e.label(l)
        I(f"v_cmp_gt_u32 vcc, s{sR}, v{VLANE}")
        I("s_waitcnt lgkmcnt(0)")
        I(f"v_lshrrev_b32 v{r+11}, 16, v{r+3}")
        I(f"v_lshlrev_b32 v{r+11}, 9, v{r+11}")
        I(f"v_cndmask_b32 v{r+11}, 2.0, v{r+11}, vcc")
        I(f"ds_write_b32 v{VOW}, v{r+11} offset:{OSC}")
        off_read(0)
        I(f"v_cndmask_b32 v{r}, 0, v{r}, vcc")
        I(f"v_cndmask_b32 v{r+1}, 0, v{r+1}, vcc")
        I(f"v_lshlrev_b32 v{r+8}, 16, v{r+2}")
        I(f"v_and_b32 v{r+9}, v{VMASK}, v{r+2}")
        I(f"v_lshlrev_b32 v{r+10}, 16, v{r+3}")
        I(f"v_lshlrev_b32 v{r+4}, 16, v{r}")
        I(f"v_and_b32 v{r+5}, v{VMASK}, v{r}")
        I(f"v_lshlrev_b32 v{r+6}, 16, v{r+1}")
        I(f"v_and_b32 v{r+7}, v{VMASK}, v{r+1}")
        for j in range(3):
            for d in range(4):
                I(f"v_mul_f32 v{r+12+4*j+d}, v{r+4+d}, v{r+8+j}")
        I(f"v_cvt_pk_bf16_f32 v{r+2}, v{r+12}, v{r+13}")
        I(f"v_cvt_pk_bf16_f32 v{r+3}, v{r+14}, v{r+15}")
        for k in range(4):
            I(f"v_cvt_pk_bf16_f32 v{r+24+k}, v{r+16+2*k}, v{r+17+2*k}")
        I(f"ds_write_b128 v{VSCRW}, v[{r}:{r+3}]")
        I(f"ds_write_b128 v{VSCRW}, v[{r+24}:{r+27}] offset:{PL1}")
        I("s_waitcnt lgkmcnt(2)")
        off_add()
    def ld(i):
        if c.x_noload: return
        I(f"buffer_load_dwordx4 v[{LD+4*i}:{LD+4*i+3}], v{AD+i}, s[4:7], s{sH} offen")
    def moves(jj, k16=False):
        for p in range(4):
            d = B + (4 if k16 else 8) * p + 2 * jj
            a, b = LD + 8*jj + (p & 2), LD + 8*jj + 4 + (p & 2)
            I(f"v_pk_mov_b32 v[{d}:{d+1}], v[{a}:{a+1}], v[{b}:{b+1}] op_sel:[{p&1},{p&1}]")
    def loads_partial(done):
        for i in range(7):
            I(f"s_cmp_le_u32 s{sL}, {4*i}")
            I(f"s_cbranch_scc1 {done}")
            ld(i)
    def moves_loads():
        part, done = lab("pp"), lab("pd")
        I("s_waitcnt vmcnt(0)")
        I(f"s_cmp_le_u32 s{sL}, 28")
        I(f"s_cbranch_scc1 {part}")
        for jj in range(4):
            moves(jj)
            ld(2*jj); ld(2*jj+1)
        I(f"s_branch {done}")
        e.label(part)
        for jj in range(4): moves(jj)
        loads_partial(done)
        e.label(done)
    def macs(k16=False):
        for q in range(8):
            d = f"v[{ACC+4*q}:{ACC+4*q+3}]"
            p = q >> 1
            if k16: I(f"v_smfmac_f32_16x16x32_bf16 {d}, v[{A}:{A+1}], v[{B+4*p}:{B+4*p+3}], v{VIDX} cbsz:0 abid:{2*(q&1)}")
            else: I(f"v_smfmac_f32_16x16x64_bf16 {d}, v[{A}:{A+3}], v[{B+8*p}:{B+8*p+7}], v{VIDX} cbsz:0 abid:{q&1}")
    def tr32(hf):
        I(f"ds_read_b64_tr_b16 v[{A}:{A+1}], v{VTRB} offset:{512*hf}")
        I(f"ds_read_b64_tr_b16 v[{A+2}:{A+3}], v{VTRB} offset:{512*hf+16}")
    def tr16(hf):
        I(f"ds_read_b64_tr_b16 v[{A}:{A+1}], v{VTRA} offset:{512*hf}")
    def zero_acc():
        if c.zpk:
            for k in range(0, 32, 2): I(f"v_pk_mov_b32 v[{ACC+k}:{ACC+k+1}], 0, 0")
        else:
            for k in range(32): I(f"v_mov_b32 v{ACC+k}, 0")

    if c.stamps: I("s_mov_b32 s92, 16")
    I(f"v_lshrrev_b32 v{VT0}, 4, v{VLANE}")
    I(f"v_lshrrev_b32 v{VT1}, 5, v{VLANE}")
    I(f"v_mul_u32_u24 v{VT1}, 12, v{VT1}")
    I(f"v_add_u32 v{VT0}, v{VT0}, v{VT1}")
    I(f"v_lshl_add_u32 v{VTRB}, v{VT0}, 4, v{VTRA}")
    I(f"v_mov_b32 v{VIDX}, 0xdddd8888")
    setup_item("L2_g_done")
    prep_block()
    for i in range(8): ld(i)
    zero_acc()
    e.label("L3_A")
    I(f"s_mov_b32 s{sCR}, s{sR}")
    I(f"s_cmp_gt_u32 s{sR}, 32")
    I("s_cbranch_scc0 L3_AN")
    tr32(0)
    off_read(1)
    I(f"s_sub_u32 s{sL}, s{sR}, 32")
    I("s_waitcnt lgkmcnt(0)")
    off_add()
    moves_loads()
    macs()
    I(f"s_sub_u32 s{sCR}, s{sR}, 32")
    I(f"s_cmp_gt_u32 s{sR}, 64")
    I("s_cbranch_scc0 L3_BN")
    tr32(1)
    I(f"s_sub_u32 s{sR}, s{sR}, 64")
    I(f"s_add_u32 s{sA}, s{sA}, 1024")
    I(f"s_mov_b32 s{sL}, s{sR}")
    prep_block()
    moves_loads()
    I("s_waitcnt lgkmcnt(0)")
    macs()
    I("s_branch L3_A")
    for hf, nm in ((0, "AN"), (1, "BN")):
        e.label(f"L3_{nm}")
        I(f"s_cmp_le_u32 s{sCR}, 16")
        I(f"s_cbranch_scc1 L3_{nm}16")
        tr32(hf)
        I("s_branch L3_XN")
        e.label(f"L3_{nm}16")
        tr16(hf)
        if hf == 0: I("s_branch L3_XN")
    e.label("L3_XN")
    I(f"s_mov_b32 s{sCN}, s{sN}")
    I(f"s_mov_b32 s{sCH}, s{sH}")
    I(f"s_mov_b32 s{sNV}, 1")
    setup_item("L3_XN_none")
    I(f"s_mov_b32 s{sL}, s{sR}")
    prep_block()
    I("s_branch L3_XN_go")
    e.label("L3_XN_none")
    I(f"s_mov_b32 s{sNV}, 0")
    I(f"s_mov_b32 s{sL}, 0")
    e.label("L3_XN_go")
    I(f"s_cmp_le_u32 s{sCR}, 16")
    I("s_cbranch_scc1 L3_XN_k16")
    moves_loads()
    I("s_waitcnt lgkmcnt(0)")
    macs()
    I("s_branch L3_XN_epi")
    e.label("L3_XN_k16")
    I("s_waitcnt vmcnt(0)")
    moves(0, True); moves(1, True)
    I(f"s_cmp_le_u32 s{sL}, 28")
    I("s_cbranch_scc1 L3_XN_k16p")
    for i in range(8): ld(i)
    I("s_branch L3_XN_k16d")
    e.label("L3_XN_k16p")
    loads_partial("L3_XN_k16d")
    e.label("L3_XN_k16d")
    I("s_waitcnt lgkmcnt(0)")
    macs(True)
    e.label("L3_XN_epi")
    I(f"s_lshl_b32 s42, s{sCH}, 5")
    I(f"v_add_u32 v{VT0}, s42, v{VWR}")
    for q in range(8):
        I(f"ds_read_b128 v[{B+4*q}:{B+4*q+3}], v{VT0} offset:{q*1024}")
    I(f"s_lshr_b32 s43, s{sCN}, 4")
    I(f"s_lshl_b32 s43, s43, 2")
    I(f"s_cmp_eq_u32 s{sCH}, 0")
    I("s_cbranch_scc1 L3_nowar")
    I(f"v_mov_b32 v{VT1}, s43")
    spin(e, "war", VT0, VT1, GDONE, 4, 45, 44)
    I("s_add_u32 s43, s43, 16")
    e.label("L3_nowar")
    I(f"s_and_b32 s44, s{sCN}, 15")
    I("s_lshl_b32 s44, s44, 4")
    I(f"s_lshl_b32 s45, s{sCN}, 10")
    I(f"s_add_u32 s45, s45, {T}")
    I(f"v_xor_b32 v{VT0}, s44, v{VL16}")
    I(f"v_add_u32 v{VT0}, s45, v{VT0}")
    I(f"v_mov_b32 v{VT1}, s43")
    I("s_waitcnt lgkmcnt(0)")
    for q in range(8):
        I(f"v_mul_f32 v{B+4*q}, v{B+4*q}, v{ACC+4*q}")
    for d in range(1, 4):
        for q in range(8):
            I(f"v_fmac_f32 v{B+4*q}, v{B+4*q+d}, v{ACC+4*q+d}")
    for k in range(4):
        I(f"v_cvt_pk_bf16_f32 v{A+k}, v{B+8*k}, v{B+8*k+4}")
    I(f"ds_write_b128 v{VT0}, v[{A}:{A+3}]")
    I("s_mov_b64 exec, 1")
    I(f"ds_add_u32 v{VT1}, v{VONE} offset:{DONE}")
    I("s_mov_b64 exec, -1")
    zero_acc()
    if c.stamps:
        I("s_memrealtime s[90:91]")
        I("s_waitcnt lgkmcnt(0)")
        I("s_mov_b32 m0, s92")
        I(f"v_writelane_b32 v{STV}, s90, m0")
        I("s_add_u32 s92, s92, 1")
        I("s_min_u32 s92, s92, 23")
    I(f"s_cmp_lg_u32 s{sNV}, 0")
    I("s_cbranch_scc1 L3_A")

HEADER = """; equiformer tensor-product message passing, one persistent launch (one workgroup per CU):
"""

def gen_probe(e, c):
    kA, a0, a1, sA, oA, kB, b0, b1, sB, oB = c.probe.split(",")
    kernel_header(e, "eqprobe_kernel")
    I = e.I
    I("s_cmp_ge_u32 s2, 1")
    I("s_cbranch_scc1 LP_end")
    I("s_memrealtime s[20:21]")
    I("s_load_dwordx2 s[4:5], s[0:1], 88")
    I("s_waitcnt lgkmcnt(0)")
    srd(e, 8, 4, 32 << 20)
    I(f"v_min_u32 v1, {c.nwg-1}, v0")
    I("v_lshlrev_b32 v1, 11, v1")
    I("v_mov_b32 v10, 0"); I("v_mov_b32 v11, -1"); I("v_mov_b32 v12, 0")
    I("ds_write_b32 v10, v11 offset:0"); I("ds_write_b32 v10, v12 offset:4"); I("ds_write_b32 v10, v11 offset:8"); I("ds_write_b32 v10, v12 offset:12")
    I("s_waitcnt lgkmcnt(0)"); I("s_barrier")
    regs = []
    for (k, w0, w1, sl, off) in ((kA, a0, a1, sA, 0), (kB, b0, b1, sB, 8)):
        if k == "now":
            I(f"v_mov_b32 v{16+len(regs)}, s20"); regs.append(off); continue
        I(f"s_mov_b32 s12, {STAMPOFF}")
        for w in range(int(w0), int(w1)):
            I(f"buffer_load_dword v{16+len(regs)}, v1, s[8:11], s12 offen offset:{w*128 + int(sl)*4}")
            regs.append(off)
    I("s_waitcnt vmcnt(0)")
    for off, op in ((0, oA), (8, oB)):
        idx = [n for n, o in enumerate(regs) if o == off]
        for n in idx[1:]:
            I(f"v_{op}_u32 v{16+idx[0]}, v{16+idx[0]}, v{16+n}")
        I(f"ds_{op}_u32 v10, v{16+idx[0]} offset:{off + (0 if op == 'min' else 4)}")
    I("s_waitcnt lgkmcnt(0)"); I("s_barrier")
    I(f"ds_read_b32 v3, v10 offset:{0 if oA == 'min' else 4}")
    I(f"ds_read_b32 v4, v10 offset:{8 if oB == 'min' else 12}")
    I("s_waitcnt lgkmcnt(0)")
    I("v_sub_u32 v3, v3, v4")
    I("v_min_u32 v3, 0x2000, v3")
    I("v_readfirstlane_b32 s14, v3")
    I("s_memrealtime s[16:17]")
    I("s_mul_i32 s14, s14, 10")
    I("s_waitcnt lgkmcnt(0)")
    e.label("LP_spin")
    I("s_memrealtime s[18:19]")
    I("s_waitcnt lgkmcnt(0)")
    I("s_sub_u32 s18, s18, s16")
    I("s_cmp_lt_u32 s18, s14")
    I("s_cbranch_scc1 LP_spin")
    e.label("LP_end")
    I("s_endpgm")
    return "eqprobe_kernel", 64, 32

def generate(c):
    e = Emitter()
    e.raw('.amdgcn_target "amdgcn-amd-amdhsa--gfx950"')
    e.raw(".text")
    k = gen_main(e, c)
    head = HEADER + f"; @launch grid=({c.nwg},1,1) block=(1024,1,1) lds={c.lds}\n"
    tail = '.section .rodata,"a"\n.p2align 6\n' + kd(*k)
    if c.probe:
        kp = gen_probe(e, c)
        head = HEADER + f"; @launch kernel={KNAME} grid=({c.nwg},1,1) block=(1024,1,1) lds={c.lds}\n; @launch kernel=eqprobe_kernel grid=(1,1,1) block=(256,1,1) lds=64\n"
        tail += ".p2align 6\n" + kd(*kp)
    return head + e.text() + tail

if __name__ == "__main__":
    c = Cfg()
    out = sys.argv[1]
    for kv in sys.argv[2:]:
        k, v = kv.split("=", 1)
        old = getattr(c, k)
        setattr(c, k, type(old)(int(v)) if isinstance(old, (bool, int)) else v.replace("+", " "))
    open(out, "w").write(generate(c))
```

```python
import sys
from emit import Emitter

N, E = 12500, 800000
NODES, HN = 50, 25
NCH = 250
CSTRIDE = 70784
PAYOFF, TABOFF, KEYOFF = 0, 51200, 67584
KSTAGE = 51200
WSBYTES = NCH * CSTRIDE
KIN = 20
KNAME = "gather_scatter__tensor_product_equiv_equiformer__graph_kernel"
STAMPOFF = 24 << 20

class Cfg:
    nwg = 250
    st_flags = "sc1"
    ld_flags = "nt"
    rec_flags = "sc1"
    out_flags = ""
    pfx_lines = 64
    pfx0_lines = 96
    stamps = False
    cap = 1888
    x_noperm = 0
    x_noexp = 0
    x_nomfma = 0
    x_noload = 0
    x_samehalf = 0
    x_nobload = 0
    codepf = 26
    tlbpf = 0
    codeearly = 0
    sleep = 12
    psleep = 2
    probe = ""
    addtid = 0
    split = 0
    static1 = 1
    out_early = None
    paypos = 2
    pfwait = 0
    smf = 0
    zpk = 1
    splitw = 0
    cpfwg = 32
    wlate = 0
    coal = 1
    pf1_tile = -1
    pf1_lines = 256
    prio_g = 0
    prio_m = 0
    ld2_flags = None
    nowait = 1
    fastlast = 1
    pfx2_lines = 0
    pfx2_pos = 0
    oobtail = 1
    bearly = 1
    tidw3 = "0x00800000"

def srd(e, d, b, nbytes, w1=None, w3="0x20000"):
    e.I(f"s_mov_b32 s{d}, s{b}")
    if w1: e.I(f"s_or_b32 s{d+1}, s{b+1}, {w1}")
    else: e.I(f"s_mov_b32 s{d+1}, s{b+1}")
    e.I(f"s_mov_b32 s{d+2}, {nbytes}")
    e.I(f"s_mov_b32 s{d+3}, {w3}")

def scan64(e, v):
    for sh in (1, 2, 4, 8):
        e.I(f"v_add_u32_dpp v{v}, v{v}, v{v} row_shr:{sh} row_mask:0xf bank_mask:0xf")
    e.I(f"v_add_u32_dpp v{v}, v{v}, v{v} row_bcast:15 row_mask:0xa bank_mask:0xf")
    e.I(f"v_add_u32_dpp v{v}, v{v}, v{v} row_bcast:31 row_mask:0xc bank_mask:0xf")

def prefetch_x(e, nlines, vt, vtid, nthreads, slice_s, half, srdx, first=0, lds=False):
    if nlines <= 0: return 0
    e.I(f"s_mul_i32 s46, s{slice_s}, 782")
    if first: e.I(f"s_add_u32 s46, s46, {first}")
    e.I(f"s_mov_b32 s47, {nlines}")
    it = (nlines + nthreads - 1) // nthreads
    for k in range(it):
        e.I(f"v_add_u32 v{vt}, {k*nthreads}, v{vtid}")
        e.I(f"v_cmp_gt_u32 vcc, s47, v{vt}")
        e.I(f"v_add_u32 v{vt}, s46, v{vt}")
        e.I(f"v_and_b32 v{vt+1}, 1, v{vt}")
        e.I(f"v_lshrrev_b32 v{vt}, 1, v{vt}")
        e.I(f"v_lshlrev_b32 v{vt}, 9, v{vt}")
        e.I(f"v_lshl_add_u32 v{vt}, v{vt+1}, 7, v{vt}")
        e.I(f"v_cndmask_b32 v{vt}, 2.0, v{vt}, vcc")
        if lds:
            if half: e.I(f"v_add_u32 v{vt}, 256, v{vt}")
            e.I(f"buffer_load_dword v{vt}, s[{srdx}:{srdx+3}], 0 offen lds")
        else:
            e.I(f"buffer_load_dword v{vt+2}, v{vt}, s[{srdx}:{srdx+3}], 0 offen offset:{half*256}")
    return it

STV, TIDV = 127, 126
def stamp(e, c, slot, ins="s_memrealtime"):
    if not c.stamps: return
    e.I(f"{ins} s[90:91]")
    e.I("s_waitcnt lgkmcnt(0)")
    e.I(f"v_writelane_b32 v{STV}, s90, {slot}")

def stamp_store(e, c, vtmp):
    if not c.stamps: return
    e.I(f"v_lshrrev_b32 v{vtmp}, 6, v{TIDV}")
    e.I(f"s_lshl_b32 s90, s2, 4")
    e.I(f"v_add_u32 v{vtmp}, s90, v{vtmp}")
    e.I(f"v_lshlrev_b32 v{vtmp}, 7, v{vtmp}")
    e.I(f"v_and_b32 v{vtmp+1}, 63, v{TIDV}")
    e.I(f"v_lshl_add_u32 v{vtmp}, v{vtmp+1}, 2, v{vtmp}")
    e.I(f"v_cmp_gt_u32 vcc, 32, v{vtmp+1}")
    e.I(f"v_cndmask_b32 v{vtmp}, 2.0, v{vtmp}, vcc")
    e.I(f"s_mov_b32 s90, {STAMPOFF}")
    e.I(f"buffer_store_dword v{STV}, v{vtmp}, s[8:11], s90 offen")

def kernel_header(e, name):
    e.raw(f".globl {name}")
    e.raw(".p2align 8")
    e.raw(f".type {name},@function")
    e.raw(f"{name}:")
    e.hist = []

def kd(name, nv, ns):
    return f""".amdhsa_kernel {name}
  .amdhsa_next_free_vgpr {nv}
  .amdhsa_next_free_sgpr {ns}
  .amdhsa_accum_offset {(nv+3)//4*4}
  .amdhsa_group_segment_fixed_size 0
  .amdhsa_kernarg_size 96
  .amdhsa_user_sgpr_count 2
  .amdhsa_user_sgpr_kernarg_segment_ptr 1
  .amdhsa_system_sgpr_workgroup_id_x 1
  .amdhsa_float_denorm_mode_32 3
.end_amdhsa_kernel
"""

def path_of(jp, blk):
    if blk == 0: return (0, 0, 1) if jp == 0 else (2, jp, 1)
    k = blk - 1
    if jp == 0: return (3, 1 + k, 1)
    j = jp - 1
    if j == k: return (1, 0, 1)
    i = 3 - j - k
    return (4, 1 + i, 1 if k == (j + 1) % 3 else -1)

class Lay: pass

def spin(e, tag, vdst, vaddr, off, need, scnt, sval, sleep=None, bound="0x400000"):
    I = e.I
    I(f"s_mov_b32 s{scnt}, 0")
    e.label(f"L_sp{tag}")
    I(f"ds_read_b32 v{vdst}, v{vaddr} offset:{off}")
    I("s_waitcnt lgkmcnt(0)")
    I(f"v_readfirstlane_b32 s{sval}, v{vdst}")
    I(f"s_add_u32 s{scnt}, s{scnt}, 1")
    I(f"s_cmp_ge_u32 s{sval}, {need}")
    I(f"s_cbranch_scc1 L_sp{tag}_ok")
    if sleep: I(f"s_sleep {sleep}")
    I(f"s_cmp_lt_u32 s{scnt}, {bound}")
    I(f"s_cbranch_scc1 L_sp{tag}")
    e.label(f"L_sp{tag}_ok")

def tag_bad(e, dst, r, tmp, odd):
    I = e.I
    I(f"v_xor_b32 v{tmp}, s87, v{r}")
    I(f"v_xor_b32 v{dst}, s86, v{r+1}")
    I(f"v_lshrrev_b32 v{tmp}, 24, v{tmp}")
    I(f"v_or_b32 v{dst}, v{dst}, v{tmp}")
    I(f"v_xor_b32 v{tmp}, s3, v{r+3}")
    I(f"v_lshrrev_b32 v{tmp}, 12, v{tmp}")
    I(f"v_cndmask_b32 v{dst}, v{dst}, v{tmp}, {odd}")

def gen_main(e, c):
    L = Lay()
    CAP = c.cap
    NWG = c.nwg
    BOFF = CAP + 64
    HIST, HIST2, CUR2, CNT = 0, 256, 512, 768
    NEXT, DONE, GDONE, BSYNC, BREADY, TOTB = CNT, CNT + 16, CNT + 64, CNT + 96, CNT + 100, CNT + 104
    HISTB, HIST2B, CUR2B, INFO, NONCE = 1024, 1280, 1536, 1792, 2048
    RAW = 2176
    T = (RAW + 2 * BOFF * 16 + 255) // 256 * 256
    WRAD = T + NODES * 1024
    SCR = WRAD + 16384
    H1 = WRAD
    TI = SCR
    CEB = RAW + BOFF * 16
    SSTR, PL1, OSC = 2368, (1040 if c.smf else 1056), 2080
    lds = max(SCR + 12 * SSTR, T + 64 * 1024)
    assert lds <= 163840 and 2 * BOFF >= 3200 + 64, lds
    c.lds = lds
    kernel_header(e, KNAME)
    I = e.I
    wsbytes = (32 << 20) if c.stamps else WSBYTES
    sf, rf, lf = c.st_flags, c.rec_flags, c.ld_flags
    ODD = "s[26:27]"
    I(f"s_cmp_ge_u32 s2, {NWG}")
    I("s_cbranch_scc1 L_end")
    if c.stamps:
        I(f"v_mov_b32 v{STV}, 0")
        I(f"v_mov_b32 v{TIDV}, v0")
    stamp(e, c, 0)
    stamp(e, c, 26, "s_memtime")
    I("s_load_dwordx8 s[32:39], s[0:1], 0")
    I("s_load_dwordx8 s[40:47], s[0:1], 32")
    if NWG > NCH:
        I(f"s_cmp_lt_u32 s2, {NCH}")
        I("s_cselect_b32 s51, 800, 0")
    else:
        I("s_movk_i32 s51, 800")
    if c.coal:
        I("s_mul_i32 s48, s2, 1600")
        I("v_add_u32 v3, s48, v0")
        I("v_cmp_gt_u32 vcc, s51, v0")
        I("v_lshlrev_b32 v28, 3, v3")
        I("v_lshlrev_b32 v30, 4, v3")
        I("v_mul_u32_u24 v3, 12, v3")
        I("v_add_u32 v29, 6400, v28")
        if c.paypos:
            I("v_add_u32 v31, 12800, v30")
            I("v_add_u32 v27, 9600, v3")
        I("s_and_saveexec_b64 s[26:27], vcc")
        I("s_cbranch_execz L1_noload")
        I("s_waitcnt lgkmcnt(0)")
        I(f"global_load_dwordx2 v[4:5], v28, s[40:41] {lf}")
        I(f"global_load_dwordx2 v[6:7], v29, s[40:41] {lf}")
        if not c.paypos:
            I("v_add_u32 v31, 12800, v30")
            I("v_add_u32 v27, 9600, v3")
        lds_ = [f"global_load_dwordx2 v[8:9], v28, s[38:39] {lf}", f"global_load_dwordx2 v[10:11], v29, s[38:39] {lf}",
                f"global_load_dwordx4 v[12:15], v30, s[36:37] {lf}", f"global_load_dwordx4 v[16:19], v31, s[36:37] {lf}",
                f"global_load_dwordx3 v[20:22], v3, s[34:35] {lf}", f"global_load_dwordx3 v[24:26], v27, s[34:35] {lf}"]
        def pay_loads():
            for k in ((0, 2, 4, 1, 3, 5) if c.splitw == 2 else range(6)): I(lds_[k])
        if c.paypos == 0: pay_loads()
    else:
        I("s_mul_i32 s48, s2, 800")
        I("v_add_u32 v3, s48, v0")
        I("v_cmp_gt_u32 vcc, s51, v0")
        I("v_lshlrev_b32 v26, 4, v3")
        I("v_lshlrev_b32 v27, 5, v3")
        I("v_mul_u32_u24 v3, 24, v3")
        I("s_and_saveexec_b64 s[26:27], vcc")
        I("s_cbranch_execz L1_noload")
        I("s_waitcnt lgkmcnt(0)")
        l2 = lf if c.ld2_flags is None else c.ld2_flags
        I(f"global_load_dwordx4 v[4:7], v26, s[40:41] {l2}")
        I(f"global_load_dwordx4 v[8:11], v26, s[38:39] {l2}")
        I(f"global_load_dwordx4 v[12:15], v27, s[36:37] {lf}")
        I(f"global_load_dwordx4 v[16:19], v27, s[36:37] offset:16 {lf}")
        I(f"global_load_dwordx4 v[20:23], v3, s[34:35] {lf}")
        I(f"global_load_dwordx2 v[24:25], v3, s[34:35] offset:16 {lf}")
    e.label("L1_noload")
    I("s_mov_b64 exec, -1")
    if c.paypos == 3:
        I(f"v_lshlrev_b32 v40, 1, v0")
        I(f"v_and_b32 v40, -4, v40")
        I(f"v_add_u32 v40, {H1}, v40")
        I("v_mov_b32 v41, 0")
        I("ds_write_b32 v40, v41")
        I("s_waitcnt lgkmcnt(0)")
        I("s_barrier")
        I("s_and_saveexec_b64 s[26:27], vcc")
        I("s_cbranch_execz L1_noload2")
        pay_loads()
        e.label("L1_noload2")
        I("s_mov_b64 exec, -1")
    if c.codepf and c.codeearly:
        I("s_getpc_b64 s[52:53]")
        I(f"s_mov_b32 s54, {c.codepf*1024}")
        I("s_mov_b32 s55, 0x20000")
        I("v_subrev_u32 v72, 768, v0")
        I("v_lshlrev_b32 v72, 7, v72")
        I("s_cmp_lg_u64 vcc, -1")
        I("s_cbranch_scc0 L1_nocpf")
        I("buffer_load_dword v73, v72, s[52:55], 0 offen")
        e.label("L1_nocpf")
    I("s_load_dwordx4 s[80:83], s[0:1], 72")
    I("s_load_dwordx2 s[84:85], s[0:1], 88")
    I("v_lshlrev_b32 v1, 4, v0")
    I("v_lshlrev_b32 v2, 5, v0")
    I("v_readfirstlane_b32 s21, v0")
    I("s_lshr_b32 s21, s21, 6")
    I("s_waitcnt lgkmcnt(0)")
    if c.addtid:
        srd(e, 4, 32, N * 512, w1=f"{16 << 16}", w3=c.tidw3)
    else:
        srd(e, 4, 32, N * 512)
    srd(e, 8, 84, wsbytes)
    srd(e, 12, 80, N * 512)
    srd(e, 16, 42, 2560)
    srd(e, 68, 44, 16384)
    srd(e, 72, 46, 24576)
    srd(e, 76, 82, 256)
    I("s_and_b32 s20, s2, 7")
    I("s_lshr_b32 s31, s2, 3")
    if NWG == 250:
        I("s_min_u32 s22, s20, 2")
        I("s_mul_i32 s20, s20, 31")
        I("s_add_u32 s20, s20, s22")
    else:
        I("s_lshl_b32 s20, s20, 5")
    I("s_add_u32 s20, s20, s31")
    I("s_mov_b32 s22, 0")
    I(f"s_movk_i32 s23, {NCH}")
    I("s_mov_b32 s24, 1")
    I("s_mov_b32 s26, 0xaaaaaaaa")
    I("s_mov_b32 s27, 0xaaaaaaaa")
    I("s_mov_b32 s28, 0x05040100")
    I("s_mov_b32 s29, 0x07060302")
    I("s_mov_b32 s30, 0xffff0000")
    I(f"s_mul_i32 s51, s2, {CSTRIDE}")
    I("s_cmp_ge_u32 s21, 13")
    I("s_cbranch_scc1 L1_aux")
    if c.paypos == 1:
        I("s_mov_b64 exec, vcc")
        pay_loads()
        I("s_mov_b64 exec, -1")
    I(f"s_mov_b32 s46, {H1}")
    if c.paypos != 3:
        I("v_lshl_add_u32 v40, v0, 2, s46")
        I("v_mov_b32 v41, 0")
    I("v_mov_b32 v42, 1")
    I(f"s_movk_i32 s49, {RAW}")
    I("s_mov_b32 s50, 0x05040302")
    I(f"s_mov_b32 s45, {(TI + 8 - 8*H1) & 0xffffffff}")
    if NWG == 250:
        I("s_mov_b32 s48, -25")
        I("s_movk_i32 s47, 249")
    else:
        I("s_movk_i32 s47, 6249")
        I("s_movk_i32 s48, -6250")
        I("s_mov_b32 s44, 1600210")
        I("v_mov_b32 v43, 65532")
    if c.paypos != 3:
        I("s_cmp_ge_u32 s21, 8")
        I("s_cbranch_scc1 L1_nz")
        I("ds_write_b32 v40, v41")
        I("s_waitcnt lgkmcnt(0)")
        e.label("L1_nz")
        I("s_barrier")
    I("s_and_b64 exec, exec, vcc")
    if c.paypos == 2: pay_loads()
    I(f"s_waitcnt vmcnt({6 if c.coal else 5})")
    stamp(e, c, 1)
    R4 = range(4)
    if NWG == 250:
        for i in R4: I(f"v_mul_u32_u24 v{44+i}, 0x147b, v{4+i}")
        for i in R4: I(f"v_lshrrev_b32 v{44+i}, 17, v{44+i}")
        for i in R4: I(f"v_cmp_lt_u32 s[{32+2*i}:{33+2*i}], s47, v{44+i}")
        for i in R4: I(f"v_cndmask_b32 v{36+i}, 0, 1, s[{32+2*i}:{33+2*i}]")
        for i in R4:
            I(f"v_sub_u32 v{48+i}, v{44+i}, v{36+i}")
            I(f"v_mad_u32_u24 v{44+i}, v{36+i}, 6, v{44+i}")
        for i in R4:
            I(f"v_mad_i32_i24 v{4+i}, v{48+i}, s48, v{4+i}")
            I(f"v_lshl_add_u32 v{44+i}, v{44+i}, 2, s46")
    else:
        for i in R4: I(f"v_cmp_lt_u32 s[{32+2*i}:{33+2*i}], s47, v{4+i}")
        for i in R4: I(f"v_cndmask_b32 v{36+i}, 0, 1, s[{32+2*i}:{33+2*i}]")
        for i in R4: I(f"v_mad_i32_i24 v{4+i}, v{36+i}, s48, v{4+i}")
        for i in R4: I(f"v_mul_u32_u24 v{44+i}, 0xa7c, v{4+i}")
        for i in R4: I(f"v_lshrrev_b32 v{44+i}, 16, v{44+i}")
        for i in R4: I(f"v_mad_u32_u24 v{48+i}, v{44+i}, s44, v43")
        for i in R4:
            I(f"v_lshrrev_b32 v{48+i}, 16, v{48+i}")
            I(f"v_mad_u32_u24 v{4+i}, v{36+i}, 25, v{4+i}")
        for i in R4:
            I(f"v_sub_u32 v{4+i}, v{4+i}, v{48+i}")
            I(f"v_lshl_add_u32 v{44+i}, v{36+i}, 8, v{44+i}")
        for i in R4: I(f"v_lshl_add_u32 v{44+i}, v{44+i}, 2, s46")
    for i in R4: I(f"ds_add_rtn_u32 v{36+i}, v{44+i}, v42")
    for i in R4: I(f"v_lshl_add_u32 v{48+i}, v{44+i}, 3, s45")
    for i in R4: I(f"v_lshlrev_b32 v{4+i}, 2, v{4+i}")
    I("s_waitcnt lgkmcnt(0)")
    I("s_barrier")
    for i in R4: I(f"v_min_u32 v{28+i}, {KIN}, v{36+i}")
    for i in R4: I(f"v_add_u32 v{48+i}, v{48+i}, v{28+i}")
    I("s_cmp_eq_u32 s21, 0")
    I("s_cbranch_scc1 L1_scan")
    for i in R4: I(f"ds_write_b8 v{48+i}, v{4+i}")
    I("s_branch L1_noscan")
    e.label("L1_scan")
    I("v_add_u32 v60, s46, v2")
    I("ds_read_b128 v[52:55], v60")
    I("ds_read_b128 v[56:59], v60 offset:16")
    I("s_waitcnt lgkmcnt(0)")
    I("v_mov_b32 v64, 0")
    I("v_mov_b32 v65, v52")
    for k in range(2, 8):
        I(f"v_add_u32 v{64+k}, v{63+k}, v{51+k}")
    I("v_add_u32 v61, v71, v59")
    I("v_max3_u32 v63, v52, v53, v54")
    I("v_max3_u32 v63, v63, v55, v56")
    I("v_max3_u32 v63, v63, v57, v58")
    I("v_max_u32 v63, v63, v59")
    I(f"v_cmp_lt_u32 s[42:43], {KIN}, v63")
    I("v_mov_b32 v62, v61")
    scan64(e, 62)
    I("v_sub_u32 v62, v62, v61")
    for k in range(8):
        I(f"v_add_u32 v{64+k}, v{64+k}, v62")
    I("ds_write_b128 v60, v[64:67] offset:2048")
    I("ds_write_b128 v60, v[68:71] offset:2064")
    I("s_cmp_lg_u64 s[42:43], 0")
    I("s_cselect_b32 s42, 1, 0")
    I("v_mov_b32 v63, s42")
    I(f"ds_write_b32 v41, v63 offset:{NONCE+8}")
    for i in R4: I(f"ds_write_b8 v{48+i}, v{4+i}")
    I("s_waitcnt lgkmcnt(4)")
    e.label("L1_noscan")
    I("s_barrier")
    stamp(e, c, 8)
    for i in R4: I(f"ds_read_b32 v{44+i}, v{44+i} offset:2048")
    I(f"ds_read_b32 v28, v41 offset:{NONCE+8}")
    I("s_waitcnt lgkmcnt(0)")
    I("v_readfirstlane_b32 s42, v28")
    for i in R4:
        I(f"v_add_u32 v{36+i}, v{36+i}, v{44+i}")
        I(f"v_lshl_add_u32 v{44+i}, v{36+i}, 4, s49")
    I("s_cmp_eq_u32 s42, 0")
    I("s_cbranch_scc1 L1_nokeys")
    for i in R4:
        I(f"ds_write_b8 v{36+i}, v{4+i} offset:{RAW+KSTAGE}")
    e.label("L1_nokeys")
    if not c.splitw:
        r3 = 24 if c.coal else 23
        if c.stamps: I("s_waitcnt vmcnt(0)")
        stamp(e, c, 31)
        I("s_waitcnt vmcnt(1)")
        I("v_mov_b32 v28, v20")
        I("v_perm_b32 v29, v8, v21, s28")
        I("ds_write2_b64 v44, v[12:13], v[28:29] offset0:0 offset1:1")
        I("v_alignbit_b32 v30, v22, v21, 16")
        I("v_perm_b32 v31, v9, v22, s50")
        I("ds_write2_b64 v45, v[14:15], v[30:31] offset0:0 offset1:1")
        I("s_waitcnt vmcnt(0)")
        stamp(e, c, 2)
        I(f"v_mov_b32 v32, v{r3}")
        I(f"v_perm_b32 v33, v10, v{r3+1}, s28")
        I("ds_write2_b64 v46, v[16:17], v[32:33] offset0:0 offset1:1")
        I(f"v_alignbit_b32 v34, v{r3+2}, v{r3+1}, 16")
        I(f"v_perm_b32 v35, v11, v{r3+2}, s50")
        I("ds_write2_b64 v47, v[18:19], v[34:35] offset0:0 offset1:1")
    elif c.splitw == 2:
        I("s_waitcnt vmcnt(3)")
        I("v_mov_b32 v28, v12"); I("v_mov_b32 v29, v13"); I("v_mov_b32 v30, v20")
        I("v_perm_b32 v31, v8, v21, s28")
        I("ds_write_b128 v44, v[28:31]")
        I("v_mov_b32 v12, v14"); I("v_mov_b32 v13, v15")
        I("v_alignbit_b32 v14, v22, v21, 16")
        I("v_perm_b32 v15, v9, v22, s50")
        I("ds_write_b128 v45, v[12:15]")
        I("s_waitcnt vmcnt(0)")
        stamp(e, c, 2)
        I("v_mov_b32 v32, v16"); I("v_mov_b32 v33, v17"); I("v_mov_b32 v34, v24")
        I("v_perm_b32 v35, v10, v25, s28")
        I("ds_write_b128 v46, v[32:35]")
        I("v_mov_b32 v16, v18"); I("v_mov_b32 v17, v19")
        I("v_alignbit_b32 v18, v26, v25, 16")
        I("v_perm_b32 v19, v11, v26, s50")
        I("ds_write_b128 v47, v[16:19]")
    else:
        I("s_waitcnt vmcnt(2)")
        for i in R4:
            I(f"ds_write_b64 v{44+i}, v[{12+2*i}:{13+2*i}]")
        I("s_waitcnt vmcnt(1)")
        I("v_mov_b32 v28, v20")
        I("v_perm_b32 v29, v8, v21, s28")
        I("ds_write_b64 v44, v[28:29] offset:8")
        I("v_alignbit_b32 v30, v22, v21, 16")
        I("v_perm_b32 v31, v9, v22, s50")
        I("ds_write_b64 v45, v[30:31] offset:8")
        I("s_waitcnt vmcnt(0)")
        stamp(e, c, 2)
        r3 = 24 if c.coal else 23
        I(f"v_mov_b32 v32, v{r3}")
        I(f"v_perm_b32 v33, v10, v{r3+1}, s28")
        I("ds_write_b64 v46, v[32:33] offset:8")
        I(f"v_alignbit_b32 v34, v{r3+2}, v{r3+1}, 16")
        I(f"v_perm_b32 v35, v11, v{r3+2}, s50")
        I("ds_write_b64 v47, v[34:35] offset:8")
    I("s_mov_b64 exec, -1")
    I("s_waitcnt lgkmcnt(0)")
    I("s_branch L1_copy")
    e.label("L1_aux")
    I("v_subrev_u32 v64, 832, v0")
    I("v_lshlrev_b32 v65, 4, v64")
    prefetch_x(e, c.pfx0_lines, 60, 64, 192, 31, 0, 4)
    if c.tlbpf:
        I("v_and_b32 v74, 63, v0")
        I(f"s_mov_b32 s42, {WSBYTES // 64 // 128 * 128}")
        I("v_mul_u32_u24 v75, s42, v74")
        I(f"s_mov_b32 s42, {N * 512 // 64 // 128 * 128}")
        I("v_mul_u32_u24 v74, s42, v74")
        I("s_cmp_lg_u32 s21, 14")
        I("s_cbranch_scc1 L1_notlb")
        if c.tlbpf & 1: I("buffer_load_dword v76, v75, s[8:11], 0 offen")
        if c.tlbpf & 2: I("buffer_load_dword v77, v74, s[4:7], 0 offen")
        if c.tlbpf & 4: I("buffer_load_dword v78, v74, s[12:15], 0 offen")
        e.label("L1_notlb")
    if c.codepf and not c.codeearly:
        I(f"s_cmp_ge_u32 s2, {c.cpfwg}")
        I("s_cbranch_scc1 L1_nocpf")
        I("s_getpc_b64 s[40:41]")
        e.label("L_cpf")
        I("s_mov_b32 s42, L_codeend-L_cpf")
        I("s_mov_b32 s43, 0x20000")
        I("v_lshlrev_b32 v72, 7, v64")
        I("buffer_load_dword v73, v72, s[40:43], 0 offen")
        e.label("L1_nocpf")
    I("s_cmp_lg_u32 s21, 15")
    I("s_cbranch_scc1 L1_notag")
    I("s_cmp_lg_u32 s2, 0")
    I("s_cbranch_scc1 L1_notag")
    I("s_memrealtime s[44:45]")
    I("s_waitcnt lgkmcnt(0)")
    I("s_and_b32 s45, s45, 0x7f")
    I("s_or_b32 s45, s45, 0x80")
    I("s_lshl_b32 s45, s45, 24")
    I("v_mov_b32 v68, s44")
    I("v_mov_b32 v69, s45")
    I("s_mov_b64 exec, 1")
    I("buffer_store_dwordx2 v[68:69], off, s[76:79], 0 sc1")
    I("s_mov_b64 exec, -1")
    e.label("L1_notag")
    I("s_cmp_lg_u32 s21, 13")
    I("s_cbranch_scc1 L1_nozero")
    for k in range(4): I(f"v_mov_b32 v{4+k}, 0")
    I("ds_write_b128 v65, v[4:7]")
    I("ds_write_b128 v65, v[4:7] offset:1024")
    e.label("L1_nozero")
    if c.paypos != 3: I("s_barrier")
    I("s_barrier"); I("s_barrier")
    I("s_cmp_lg_u32 s21, 15")
    I("s_cbranch_scc1 L1_notag2")
    I("s_mov_b32 s44, 0")
    e.label("L1_tagpoll")
    I("buffer_load_dwordx2 v[68:69], off, s[76:79], 0 sc1")
    I("s_add_u32 s44, s44, 1")
    I("s_waitcnt vmcnt(0)")
    I("v_readfirstlane_b32 s45, v69")
    e.nop(1)
    I("s_cmp_lg_u32 s45, 0")
    I("s_cbranch_scc1 L1_tagok")
    I("s_cmp_lt_u32 s44, 0x100000")
    I("s_cbranch_scc1 L1_tagpoll")
    e.label("L1_tagok")
    I("v_mov_b32 v70, 0")
    I("s_mov_b64 exec, 1")
    I(f"ds_write_b64 v70, v[68:69] offset:{NONCE}")
    I("s_mov_b64 exec, -1")
    e.label("L1_notag2")
    def w_loads():
        for k in range(8):
            I(f"s_movk_i32 s46, {k*3072}")
            I(f"buffer_load_dwordx4 v[{28+4*k}:{31+4*k}], v65, s[72:75], s46 offen")
        for k in range(6):
            I(f"s_movk_i32 s46, {k*3072}")
            I(f"buffer_load_dwordx4 v[{72+4*k}:{75+4*k}], v65, s[68:71], s46 offen")
    if not c.wlate: w_loads()
    if c.pfwait: I("s_waitcnt vmcnt(0)")
    prefetch_x(e, c.pfx_lines, 60, 64, 192, 31, 0, 4, c.pfx0_lines)
    I("s_waitcnt lgkmcnt(0)")
    e.flush()
    e.label("L1_copy")
    I("s_barrier")
    stamp(e, c, 3)
    I(f"v_mov_b32 v25, {H1+2048+1024}")
    I("ds_read_b32 v99, v25")
    I(f"ds_read_b128 v[8:11], v1 offset:{RAW}")
    I(f"ds_read_b128 v[12:15], v1 offset:{RAW+16384}")
    I("v_mov_b32 v25, 0")
    I(f"ds_read_b96 v[96:98], v25 offset:{NONCE}")
    I(f"v_add_u32 v25, {TI}, v1")
    I(f"ds_read_b128 v[16:19], v1 offset:{RAW+32768}")
    I(f"ds_read_b128 v[20:23], v1 offset:{RAW+49152}")
    I("ds_read_b128 v[100:103], v25")
    I("v_lshrrev_b32 v25, 1, v0")
    I("v_lshlrev_b32 v25, 2, v25")
    I(f"v_add_u32 v25, {H1}, v25")
    I("ds_read2st64_b32 v[104:105], v25 offset0:0 offset1:8")
    I("ds_read_b32 v106, v25 offset:1024")
    I("v_add_u32 v2, 16384, v1")
    I("v_add_u32 v25, 1024, v0")
    I("s_waitcnt lgkmcnt(8)")
    I("v_add_u32 v99, 7, v99")
    I("v_and_b32 v99, -8, v99")
    I("v_cmp_lt_u32 s[52:53], v0, v99")
    I("v_cmp_lt_u32 s[54:55], v25, v99")
    I("v_readfirstlane_b32 s88, v99")
    I("v_add_u32 v3, 32768, v1")
    I("v_add_u32 v24, 49152, v1")
    I("s_mov_b64 exec, s[52:53]")
    I("s_waitcnt lgkmcnt(7)")
    I(f"buffer_store_dwordx4 v[8:11], v1, s[8:11], s51 offen {sf}")
    I("s_mov_b64 exec, s[54:55]")
    I("s_cbranch_execz L1_nop1")
    I("s_waitcnt lgkmcnt(6)")
    I(f"buffer_store_dwordx4 v[12:15], v2, s[8:11], s51 offen {sf}")
    e.label("L1_nop1")
    I("s_mov_b64 exec, -1")
    I("s_movk_i32 s48, 128")
    I("v_cmp_gt_u32 s[92:93], s48, v0")
    I("s_waitcnt lgkmcnt(0)")
    I("v_readfirstlane_b32 s86, v96")
    I("v_readfirstlane_b32 s87, v97")
    I("v_readfirstlane_b32 s42, v98")
    I("v_lshl_or_b32 v104, v104, 12, v105")
    I("v_or_b32 v97, v97, v104")
    I(f"v_cndmask_b32 v100, v97, v100, {ODD}")
    I(f"v_cndmask_b32 v101, v96, v101, {ODD}")
    I("v_lshl_or_b32 v106, v96, 12, v106")
    I(f"v_cndmask_b32 v103, v103, v106, {ODD}")
    I("s_lshl_b32 s3, s86, 12")
    I(f"s_add_u32 s49, s51, {TABOFF}")
    I("s_cmp_gt_u32 s88, 2048")
    I("s_cselect_b32 s25, 0, 8")
    I("s_cmp_eq_u32 s42, 0")
    I("s_cbranch_scc1 L1_nokeyst")
    I(f"s_add_u32 s42, s51, {KEYOFF-KSTAGE}")
    I("v_subrev_u32 v25, 128, v0")
    I("s_movk_i32 s43, 200")
    I("v_cmp_gt_u32 vcc, s43, v25")
    I("s_and_saveexec_b64 s[44:45], vcc")
    I("s_cbranch_execz L1_nokeyst2")
    I(f"buffer_store_dwordx4 v[20:23], v24, s[8:11], s42 offen {sf}")
    e.label("L1_nokeyst2")
    I("s_mov_b64 exec, -1")
    e.label("L1_nokeyst")
    stamp(e, c, 4)
    def handoff(tag, mid):
        I("s_waitcnt vmcnt(0)")
        stamp(e, c, 6)
        I("s_barrier")
        I("s_cmp_ge_u32 s21, s25")
        I(f"s_cbranch_scc1 L_noearly{tag}")
        I(f"buffer_store_dwordx4 v[100:103], v1, s[8:11], s49 offen {sf}")
        e.label(f"L_noearly{tag}")
        I(f"buffer_store_dwordx4 v[16:19], v3, s[8:11], s51 offen {sf}")
        for k, (m, neg, regs, va) in enumerate((("s[54:55]", 1, "v[12:15]", "v2"), ("s[92:93]", 0, "v[20:23]", "v24"), ("s[52:53]", 1, "v[8:11]", "v1"))):
            I(f"s_not_b64 exec, {m}" if neg else f"s_mov_b64 exec, {m}")
            I(f"s_cbranch_execz L_stskip{tag}{k}")
            I(f"buffer_store_dwordx4 {regs}, {va}, s[8:11], s51 offen {sf}")
            e.label(f"L_stskip{tag}{k}")
        I("s_mov_b64 exec, -1")
        mid()
        I("s_waitcnt vmcnt(0) lgkmcnt(0)")
        stamp(e, c, 5)
        I("s_barrier")
        I("s_cmp_lt_u32 s21, s25")
        I(f"s_cbranch_scc1 L_nolate{tag}")
        I(f"buffer_store_dwordx4 v[100:103], v1, s[8:11], s49 offen {sf}")
        e.label(f"L_nolate{tag}")
    I("s_cmp_lt_u32 s21, 4")
    e.branch("s_cbranch_scc1 L2_gemm")

    if c.wlate:
        I("s_cmp_lt_u32 s21, 13")
        I("s_cbranch_scc1 L2_noWl")
        w_loads()
        e.label("L2_noWl")
    VLANE, VINFO, VNEXT = 108, 109, 110
    VLOFF, VMASK, VOW, VOR, VSCRW, VTRA, VWR, VL16 = 111, 112, 113, 114, 115, 116, 117, 118
    VT0, VT1, VONE, VSEL = 119, 120, 121, 122
    VJ, VCH, VSEG = 123, 124, 125
    I(f"v_and_b32 v{VLANE}, 63, v0")
    I(f"v_mov_b32 v{VONE}, 1")
    I(f"v_mov_b32 v{VMASK}, s30")
    I(f"v_lshrrev_b32 v{VT1}, 4, v{VLANE}")
    I(f"v_lshlrev_b32 v{VL16}, 4, v{VLANE}")
    if c.addtid:
        I(f"v_and_b32 v{VT0}, 3, v{VLANE}")
        I(f"v_lshlrev_b32 v{VLOFF}, 4, v{VT0}")
    else:
        I(f"v_and_b32 v{VT0}, 15, v{VLANE}")
        I(f"v_lshlrev_b32 v{VLOFF}, 4, v{VT0}")
    I("s_sub_u32 s43, s21, 4")
    I(f"s_mul_i32 s43, s43, {SSTR}")
    I(f"s_add_u32 s43, s43, {SCR}")
    I(f"v_add_u32 v{VSCRW}, s43, v{VL16}")
    I(f"v_lshlrev_b32 v{VOR}, 5, v{VT1}")
    I(f"v_add_u32 v{VOR}, s43, v{VOR}")
    I(f"v_lshlrev_b32 v{VTRA}, 4, v{VT1}")
    I(f"v_bfe_u32 v{VT1}, v{VLANE}, 2, 2")
    I(f"v_lshl_add_u32 v{VTRA}, v{VT1}, 6, v{VTRA}")
    I(f"v_and_b32 v{VT1}, 1, v{VLANE}")
    I(f"v_lshl_add_u32 v{VTRA}, v{VT1}, 3, v{VTRA}")
    I(f"v_bfe_u32 v{VT1}, v{VLANE}, 1, 1")
    I(f"v_mul_u32_u24 v{VT1}, {PL1}, v{VT1}")
    I(f"v_add3_u32 v{VTRA}, v{VTRA}, v{VT1}, s43")
    I(f"v_and_b32 v{VOW}, 32, v{VLANE}")
    I(f"v_and_b32 v{VT1}, 3, v{VLANE}")
    I(f"v_lshl_add_u32 v{VOW}, v{VT1}, 3, v{VOW}")
    I(f"v_bfe_u32 v{VT1}, v{VLANE}, 2, 3")
    I(f"v_add_u32 v{VOW}, v{VOW}, v{VT1}")
    I(f"v_lshlrev_b32 v{VOW}, 2, v{VOW}")
    I(f"v_add_u32 v{VOW}, s43, v{VOW}")
    I(f"v_add_u32 v{VWR}, {WRAD}, v{VL16}")
    I("s_sub_u32 s42, s21, 4")
    I("s_mul_i32 s83, s42, 24")
    I(f"v_and_b32 v{VJ}, 7, v{VLANE}")
    I(f"v_lshrrev_b32 v{VSEG}, 3, v{VLANE}")
    I(f"s_mov_b32 s42, {CSTRIDE}")
    I(f"v_mul_u32_u24 v{VCH}, s42, v{VSEG}")
    I(f"v_lshlrev_b32 v{VSEG}, 5, v{VSEG}")
    I(f"v_add_u32 v{VSEG}, s43, v{VSEG}")
    I(f"v_or_b32 v{VSEL}, 0x0c0c0c00, v{VJ}")
    NP, NW = 3, 3
    I(f"s_mul_i32 s79, s83, {CSTRIDE}")
    for p in range(NP):
        I(f"s_add_u32 s{74+p}, s79, {8*p*CSTRIDE+PAYOFF}")
        I(f"s_add_u32 s{80+p}, s79, {8*p*CSTRIDE+KEYOFF}")
    I("s_mov_b32 s78, 0x100000")
    I("s_mov_b32 s88, s20")
    I("s_mov_b32 s89, 0")
    I(f"s_movk_i32 s48, {HN}")
    def w_stage():
        I("s_cmp_lt_u32 s21, 13")
        I("s_cbranch_scc1 L2_noW")
        I(f"v_add_u32 v65, {T}, v65")
        for k in range(8):
            I(f"ds_write_b128 v65, v[{28+4*k}:{31+4*k}] offset:{16384 + k*3072}")
        for k in range(5):
            I(f"ds_write_b128 v65, v[{72+4*k}:{75+4*k}] offset:{k*3072}")
        I("s_cmp_lg_u32 s21, 13")
        I("s_cbranch_scc1 L2_noW")
        I(f"ds_write_b128 v65, v[92:95] offset:{5*3072}")
        e.label("L2_noW")
    handoff("g", w_stage)
    PAY, KEY, RNK, CNTR, KAD, PAD, X, EN = 0, 36, 45, 54, 57, 60, 64, 72
    MSK = 50
    e.label("L2_g_round")
    I(f"v_and_b32 v{VJ}, 7, v{VLANE}")
    I(f"v_or_b32 v{VSEL}, 0x0c0c0c00, v{VJ}")
    I(f"v_lshrrev_b32 v{X}, 1, v{VLANE}")
    I(f"s_sub_u32 s42, {NCH}, s83")
    I("s_min_i32 s42, s42, 24")
    I(f"v_cmp_gt_i32 s[46:47], s42, v{X}")
    I(f"s_mov_b32 s42, {CSTRIDE}")
    I(f"v_mul_u32_u24 v{X+1}, s42, v{X}")
    I(f"v_and_b32 v{X+2}, 16, v{VL16}")
    I(f"v_add_u32 v{X+1}, v{X+1}, v{X+2}")
    I(f"v_cndmask_b32 v{X+1}, 2.0, v{X+1}, s[46:47]")
    I("s_lshl_b32 s43, s88, 5")
    I(f"s_add_u32 s43, s43, {TABOFF}")
    I("s_add_u32 s43, s43, s79")
    I("s_mov_b32 s44, 0")
    I(f"v_lshl_add_u32 v{VT1}, v{VJ}, 4, v{VCH}")
    e.label("L2_poll")
    I(f"buffer_load_dwordx4 v[{EN}:{EN+3}], v{X+1}, s[8:11], s43 offen sc1")
    I("s_add_u32 s44, s44, 1")
    I("s_waitcnt vmcnt(0)")
    tag_bad(e, X+2, EN, X+3, ODD)
    I(f"v_cmp_ne_u32 vcc, 0, v{X+2}")
    e.nop(2)
    I("s_and_b64 vcc, vcc, s[46:47]")
    I("s_cbranch_scc0 L2_poll_ok")
    I(f"s_sleep {c.psleep}")
    I("s_cmp_lt_u32 s44, s78")
    I("s_cbranch_scc1 L2_poll")
    I("s_mov_b32 s78, 0")
    e.label("L2_poll_ok")
    I("s_cmp_lg_u32 s23, 1")
    I("s_cbranch_scc1 L2_nofilter")
    I("s_sub_u32 s42, s22, s83")
    I(f"v_cmp_eq_u32 vcc, s42, v{X}")
    I(f"v_cndmask_b32 v{EN}, 0, v{EN}, vcc")
    e.label("L2_nofilter")
    I(f"ds_write_b128 v{VSCRW}, v[{EN}:{EN+3}]")
    I(f"v_add_u32 v{X+1}, 8, v{VJ}")
    stamp(e, c, 7)
    def msk(p, w): return f"s[{MSK+4*p+2*w}:{MSK+4*p+2*w+1}]" if w < 2 else f"s[{MSK+12+2*p}:{MSK+13+2*p}]"
    def pay(p, w): return f"v[{PAY+12*p+4*w}:{PAY+12*p+4*w+3}]"
    for p in range(NP):
        I(f"ds_read_b128 v[{EN+8*p}:{EN+8*p+3}], v{VSEG} offset:{256*p}")
        I(f"ds_read_b128 v[{EN+8*p+4}:{EN+8*p+7}], v{VSEG} offset:{256*p+16}")
    for p in range(NP):
        en, cnt = EN + 8*p, CNTR + p
        if p == 0: I("s_waitcnt lgkmcnt(0)")
        I(f"v_bfe_u32 v{cnt}, v{en}, 12, 12")
        I(f"v_and_b32 v{PAD+p}, 0xfff, v{en}")
        I(f"v_cmp_lt_u32 {msk(p,0)}, v{VJ}, v{cnt}")
        I(f"v_cmp_lt_u32 {msk(p,1)}, v{X+1}, v{cnt}")
        I(f"v_perm_b32 v{KEY+3*p}, v{en+3}, v{en+2}, v{VSEL}")
        I(f"v_perm_b32 v{KEY+3*p+1}, v{en+5}, v{en+4}, v{VSEL}")
        I(f"v_lshl_add_u32 v{PAD+p}, v{PAD+p}, 4, v{VT1}")
        for w in range(2):
            I(f"s_mov_b64 exec, {msk(p,w)}")
            I(f"s_cbranch_execz L2_nop{p}")
            I(f"ds_add_rtn_u32 v{RNK+3*p+w}, v{KEY+3*p+w}, v{VONE} offset:{HIST}")
            I(f"buffer_load_dwordx4 {pay(p,w)}, v{PAD+p}, s[8:11], s{74+p} offen offset:{128*w} {rf}")
        e.label(f"L2_nop{p}")
        I("s_mov_b64 exec, -1")
    I(f"v_max3_u32 v{VT0}, v{CNTR}, v{CNTR+1}, v{CNTR+2}")
    I(f"v_cmp_lt_u32 vcc, 16, v{VT0}")
    I("s_mov_b32 s25, 0")
    e.nop(1)
    I("s_cmp_eq_u64 vcc, 0")
    I("s_cbranch_scc1 L2_noextraA")
    I("s_mov_b32 s25, 1")
    I(f"v_add_u32 v{X+2}, 16, v{VJ}")
    for p in range(NP):
        en = EN + 8*p
        I(f"v_min_u32 v{X+3}, {KIN}, v{CNTR+p}")
        I(f"v_cmp_lt_u32 {msk(p,2)}, v{X+2}, v{X+3}")
        I(f"v_perm_b32 v{KEY+3*p+2}, v{en+6}, v{en+6}, v{VSEL}")
        I(f"v_sub_u32 v{KAD+p}, v{PAD+p}, v{VCH}")
        I(f"v_lshrrev_b32 v{KAD+p}, 4, v{KAD+p}")
        I(f"v_add_u32 v{KAD+p}, v{KAD+p}, v{VCH}")
        e.flush()
        I(f"s_mov_b64 exec, {msk(p,2)}")
        I(f"ds_add_rtn_u32 v{RNK+3*p+2}, v{KEY+3*p+2}, v{VONE} offset:{HIST}")
        I(f"buffer_load_dwordx4 {pay(p,2)}, v{PAD+p}, s[8:11], s{74+p} offen offset:256 {rf}")
        I("s_mov_b64 exec, -1")

    def extra_count(tag, first, vj, vkad, vcnt, skey, vone, hist, y):
        I(f"v_add_u32 v{y}, {first}, v{vj}")
        I(f"v_add_u32 v{y+1}, {first}, v{vkad}")
        e.label(f"L_xa{tag}")
        I(f"v_cmp_lt_u32 vcc, v{y}, v{vcnt}")
        I("s_and_saveexec_b64 s[44:45], vcc")
        e.branch(f"s_cbranch_execz L_xa{tag}_done")
        I(f"buffer_load_ubyte v{y+2}, v{y+1}, s[8:11], s{skey} offen {rf}")
        I("s_waitcnt vmcnt(0)")
        I(f"ds_add_u32 v{y+2}, v{vone} offset:{hist}")
        I("s_mov_b64 exec, -1")
        I(f"v_add_u32 v{y}, 8, v{y}")
        I(f"v_add_u32 v{y+1}, 8, v{y+1}")
        e.branch(f"s_branch L_xa{tag}")
        e.label(f"L_xa{tag}_done")
        I("s_mov_b64 exec, -1")
    def extra_move(tag, first, vj, vkad, vpad, vcnt, skey, spay, vone, cur, vbase, y, d):
        I(f"v_add_u32 v{y}, {first}, v{vj}")
        I(f"v_add_u32 v{y+1}, {first}, v{vkad}")
        I(f"v_add_u32 v{vpad}, {16*first}, v{vpad}")
        e.label(f"L_xb{tag}")
        I(f"v_cmp_lt_u32 vcc, v{y}, v{vcnt}")
        I("s_and_saveexec_b64 s[44:45], vcc")
        e.branch(f"s_cbranch_execz L_xb{tag}_done")
        I(f"buffer_load_ubyte v{y+2}, v{y+1}, s[8:11], s{skey} offen {rf}")
        I(f"buffer_load_dwordx4 v[{d}:{d+3}], v{vpad}, s[8:11], s{spay} offen {rf}")
        I("s_waitcnt vmcnt(0)")
        I(f"ds_add_rtn_u32 v{y+3}, v{y+2}, v{vone} offset:{cur}")
        I("s_mov_b64 exec, -1")
        I(f"ds_bpermute_b32 v{y+2}, v{y+2}, v{vbase}")
        I("s_waitcnt lgkmcnt(0)")
        I(f"v_add_lshl_u32 v{y+2}, v{y+2}, v{y+3}, 4")
        I("s_mov_b64 exec, vcc")
        I(f"ds_write_b128 v{y+2}, v[{d}:{d+3}] offset:{RAW}")
        I("s_mov_b64 exec, -1")
        I(f"v_add_u32 v{y}, 8, v{y}")
        I(f"v_add_u32 v{y+1}, 8, v{y+1}")
        I(f"v_add_u32 v{vpad}, 128, v{vpad}")
        e.branch(f"s_branch L_xb{tag}")
        e.label(f"L_xb{tag}_done")
        I("s_mov_b64 exec, -1")
    for p in range(NP):
        extra_count(f"a{p}", KIN, VJ, KAD+p, CNTR+p, 80+p, VONE, HIST2, X)
    e.label("L2_noextraA")
    I("s_waitcnt lgkmcnt(0)")
    stamp(e, c, 14)
    I("s_barrier")
    stamp(e, c, 15)
    C1, CT, BS = X + 4, X + 5, X + 6
    I(f"v_lshlrev_b32 v{VT0}, 2, v{VLANE}")
    I(f"ds_read_b32 v{C1}, v{VT0} offset:{HIST}")
    I(f"ds_read_b32 v{CT}, v{VT0} offset:{HIST2}")
    I("s_waitcnt lgkmcnt(0)")
    I(f"v_add_u32 v{CT}, v{C1}, v{CT}")
    I(f"v_mov_b32 v{BS}, v{CT}")
    scan64(e, BS)
    I(f"v_readlane_b32 s46, v{BS}, 63")
    I(f"v_sub_u32 v{BS}, v{BS}, v{CT}")
    I(f"s_cmp_eq_u32 s23, 1")
    I(f"s_cselect_b32 s42, -1, {CAP}")
    for p in range(NP):
        for w in range(2):
            I(f"ds_bpermute_b32 v{KEY+3*p+w}, v{KEY+3*p+w}, v{BS}")
    I(f"v_lshl_or_b32 v{VINFO}, v{CT}, 16, v{BS}")
    I(f"s_cmp_gt_u32 s46, s42")
    I("s_cbranch_scc1 L2_g_overflow")
    I("s_cmp_lg_u32 s21, 5")
    I("s_cbranch_scc1 L2_noinfo")
    I(f"s_mov_b64 exec, {(1 << HN) - 1}")
    I(f"ds_write_b32 v{VT0}, v{VINFO} offset:{INFO}")
    I("s_mov_b64 exec, -1")
    e.label("L2_noinfo")
    I("s_cmp_lg_u32 s21, 4")
    I("s_cbranch_scc1 L2_noguard")
    I("s_lshl_b32 s46, s46, 4")
    for k in range(4): I(f"v_mov_b32 v{EN+k}, 0")
    I(f"v_add_u32 v{VT0}, s46, v{VL16}")
    I(f"ds_write_b128 v{VT0}, v[{EN}:{EN+3}] offset:{RAW}")
    e.label("L2_noguard")
    I("s_waitcnt lgkmcnt(0)")
    for p in range(NP):
        for w in range(2):
            I(f"v_add_lshl_u32 v{KEY+3*p+w}, v{KEY+3*p+w}, v{RNK+3*p+w}, 4")
    stamp(e, c, 27)
    I("s_waitcnt vmcnt(0)")
    stamp(e, c, 9)
    for p in range(NP):
        for w in range(2):
            I(f"s_mov_b64 exec, {msk(p,w)}")
            I(f"ds_write_b128 v{KEY+3*p+w}, {pay(p,w)} offset:{RAW}")
    I("s_mov_b64 exec, -1")
    I("s_cmp_eq_u32 s25, 0")
    I("s_cbranch_scc1 L2_noextraB")
    for p in range(NP):
        I(f"ds_bpermute_b32 v{KEY+3*p+2}, v{KEY+3*p+2}, v{BS}")
    I("s_waitcnt lgkmcnt(0)")
    for p in range(NP):
        I(f"v_add_lshl_u32 v{KEY+3*p+2}, v{KEY+3*p+2}, v{RNK+3*p+2}, 4")
        I(f"s_mov_b64 exec, {msk(p,2)}")
        I(f"ds_write_b128 v{KEY+3*p+2}, {pay(p,2)} offset:{RAW}")
        I("s_mov_b64 exec, -1")
    I(f"v_add_u32 v{BS}, v{BS}, v{C1}")
    for p in range(NP):
        extra_move(f"a{p}", KIN, VJ, KAD+p, PAD+p, CNTR+p, 80+p, 74+p, VONE, CUR2, BS, X, EN)
    e.label("L2_noextraB")
    I("s_waitcnt lgkmcnt(0)")
    stamp(e, c, 28)
    I("s_barrier")
    I(f"ds_read_b32 v{VT0}, v{VL16} offset:{TOTB}")
    if c.static1:
        I("s_sub_u32 s42, s21, 16")
        I(f"v_mov_b32 v{VNEXT}, s42")
    else:
        I("s_mov_b64 exec, 1")
        I(f"ds_add_rtn_u32 v{VNEXT}, v{VL16}, v{VONE} offset:{NEXT}")
        I("s_mov_b64 exec, -1")
    I("s_waitcnt lgkmcnt(0)")
    I(f"v_readfirstlane_b32 s42, v{VT0}")
    e.nop(1)
    I(f"s_cmp_gt_u32 s42, {CAP}")
    I("s_cbranch_scc1 L2_g_overflow")
    stamp(e, c, 10)
    stamp(e, c, 24, "s_memtime")
    if c.prio_g: I(f"s_setprio {c.prio_g}")
    (gather_loop_s if c.smf else gather_loop)(e, c, locals())
    e.label("L2_g_done")
    stamp(e, c, 11)
    stamp(e, c, 25, "s_memtime")
    I("s_cmp_lg_u32 s24, 0")
    e.branch("s_cbranch_scc1 L2_g_exit")
    I("s_add_u32 s89, s89, 1")
    I("s_branch L2_g_slow")
    e.label("L2_g_overflow")
    I("s_mov_b32 s89, 0")
    I("s_mov_b32 s23, 1")
    I("s_movk_i32 s48, 64")
    e.label("L2_g_slow")
    I("s_waitcnt vmcnt(0) lgkmcnt(0)")
    I("s_barrier")
    I("s_lshr_b32 s22, s89, 1")
    I("s_and_b32 s88, s89, 1")
    I("s_lshl_b32 s88, s88, 8")
    I("s_add_u32 s88, s88, s20")
    I(f"s_cmp_eq_u32 s89, {2*NCH-1}")
    I("s_cselect_b32 s24, 1, 0")
    I("s_barrier")
    e.branch("s_branch L2_g_round")
    e.label("L2_g_exit")
    stamp_store(e, c, 90)
    I("s_endpgm")

    e.label("L2_gemm")
    W, G, TA, TF = 0, 40, 104, 108
    X0, X1 = 124, 125
    I("v_and_b32 v104, 63, v0")
    I("v_lshlrev_b32 v105, 4, v104")
    lut = 0
    for jp in range(4):
        for blk in range(4):
            p, i, s = path_of(jp, blk)
            lut |= (p | (8 if s < 0 else 0)) << (4 * (jp * 4 + blk))
    I(f"s_mov_b32 s44, {lut & 0xffffffff}")
    I(f"s_mov_b32 s45, {lut >> 32}")
    for h in range(2):
        I("v_lshrrev_b32 v106, 4, v104")
        I("v_bfe_u32 v107, v104, 3, 1")
        I("v_lshl_add_u32 v106, v106, 2, v107")
        I(f"v_add_lshl_u32 v106, v106, {2*h}, 2")
        I(f"v_lshrrev_b64 v[108:109], v106, s[44:45]")
        I(f"v_and_b32 v106, 7, v108")
        I(f"v_and_b32 v{110+h}, 8, v108")
        I(f"v_lshlrev_b32 v{110+h}, 28, v{110+h}")
        I("v_and_b32 v107, 7, v104")
        I("v_lshlrev_b32 v107, 3, v107")
        I("v_lshl_add_u32 v106, v106, 6, v107")
        I("v_add_u32 v106, s21, v106")
        I(f"v_lshlrev_b32 v{112+h}, 1, v106")
    I("v_mov_b32 v117, v0")
    handoff("m", lambda: None)
    if c.pfx2_pos == 0: prefetch_x(e, c.pfx2_lines, 114, 117, 256, 31, 0, 4, c.pfx_lines)
    WT = 80
    for k in range(4):
        h, qo = k >> 1, (k & 1) * 4
        for d in range(4):
            I(f"buffer_load_ushort v{WT+4*k+d}, v{112+h}, s[16:19], 0 offen offset:{d*640+qo*2}")
    I("v_lshrrev_b32 v106, 4, v104")
    I("v_lshlrev_b32 v106, 10, v106")
    I("v_bfe_u32 v107, v104, 2, 2")
    I("v_lshl_add_u32 v106, v107, 7, v106")
    I("v_and_b32 v107, 3, v104")
    I("v_lshl_add_u32 v106, v107, 3, v106")
    I("s_lshl_b32 s42, s21, 5")
    I(f"s_add_u32 s42, s42, {T}")
    I("v_add_u32 v106, s42, v106")
    for f in range(10):
        I(f"ds_read_b64_tr_b16 v[{W+4*f}:{W+4*f+1}], v106 offset:{f*4096}")
        I(f"ds_read_b64_tr_b16 v[{W+4*f+2}:{W+4*f+3}], v106 offset:{f*4096+512}")
    I("s_lshl_b32 s42, s21, 10")
    I(f"s_add_u32 s43, s42, {WRAD}")
    I("v_add_u32 v105, s43, v105")
    I("s_waitcnt vmcnt(0)")
    for k in range(4):
        h = k >> 1
        for d in range(4):
            I(f"v_lshlrev_b32 v{WT+4*k+d}, 16, v{WT+4*k+d}")
            I(f"v_xor_b32 v{WT+4*k+d}, v{110+h}, v{WT+4*k+d}")
        I(f"ds_write_b128 v105, v[{WT+4*k}:{WT+4*k+3}] offset:{(k>>1)*8192 + (k&1)*4096}")
    I("v_and_b32 v106, 15, v104")
    I("v_lshrrev_b32 v107, 4, v104")
    I(f"v_lshlrev_b32 v{X0}, 2, v104")
    if NWG == 250:
        I(f"s_mul_i32 s42, s20, {HN}")
        I(f"s_movk_i32 s44, {HN}")
    else:
        I("s_mul_i32 s42, s20, 1600210")
        I("s_add_u32 s42, s42, 65532")
        I("s_add_u32 s44, s42, 1600210")
        I("s_lshr_b32 s42, s42, 16")
        I("s_lshr_b32 s44, s44, 16")
        I(f"s_min_u32 s44, s44, {N//2}")
        I("s_sub_u32 s44, s44, s42")
    I("s_lshl_b32 s42, s42, 9")
    I("s_lshl_b32 s43, s21, 5")
    I("s_add_u32 s42, s42, s43")
    I(f"v_lshlrev_b32 v{X1}, 9, v106")
    I(f"v_lshl_add_u32 v{X1}, v107, 3, v{X1}")
    I(f"v_add_u32 v{X1}, s42, v{X1}")
    I(f"v_cmp_le_u32 s[84:85], {HN-16}, v106")
    I(f"s_sub_u32 s43, s44, {48-HN}")
    I("v_cmp_gt_i32 s[50:51], s43, v106")
    I("s_sub_u32 s43, s44, 16")
    I("v_cmp_gt_i32 s[94:95], s43, v106")
    I("v_lshlrev_b32 v108, 10, v106")
    I(f"v_add_u32 v108, {T}, v108")
    I("s_or_b64 s[94:95], s[94:95], s[84:85]")
    for u in (3, 2, 1, 0):
        I(f"v_add_u32 v109, {4*u}, v107")
        I("v_xor_b32 v109, v109, v106")
        I(f"v_lshl_add_u32 v{TF+4+u}, v109, 4, v108")
    I("s_waitcnt lgkmcnt(0)")
    for u in range(4):
        I(f"v_mov_b32 v{TA+u}, v{TF+4+u}")
    I("s_mov_b32 s89, 0")
    NPB = 8
    TB, KA, SJ, KB, RB = 40, 48, 56, 64, 80
    LJ, LCH, LONE, Y = 96, 97, 98, 99
    MB = 52
    def mb(p, w): return f"s[{MB+4*p+2*w}:{MB+4*p+2*w+1}]"
    LA, PA0, PA1, TOA = KB, KB + 1, KB + 2, KB + 3
    I(f"v_lshrrev_b32 v{Y}, 2, v{X0}")
    I("s_lshl_b32 s42, s21, 11")
    I(f"v_lshl_add_u32 v{LA}, v{Y}, 4, s42")
    I(f"v_lshrrev_b32 v{Y+1}, 1, v{Y}")
    I("s_lshl_b32 s43, s21, 5")
    I(f"s_sub_u32 s44, {NCH-128}, s43")
    I(f"v_cmp_gt_i32 s[46:47], s44, v{Y+1}")
    I(f"s_mov_b32 s44, {CSTRIDE}")
    I(f"v_mul_u32_u24 v{Y+1}, s44, v{Y+1}")
    I(f"v_and_b32 v{Y+2}, 16, v{LA}")
    I(f"v_add_u32 v{PA0}, v{Y+1}, v{Y+2}")
    I(f"v_cndmask_b32 v{PA1}, 2.0, v{PA0}, s[46:47]")
    I(f"v_and_b32 v{LJ}, 7, v{Y}")
    I(f"v_lshrrev_b32 v{Y+1}, 3, v{Y}")
    I(f"v_mul_u32_u24 v{LCH}, s44, v{Y+1}")
    I(f"v_lshl_add_u32 v{RB}, v{Y+1}, 5, s42")
    I("s_mul_i32 s38, s43, s44")
    I(f"v_add_u32 v{LCH}, s38, v{LCH}")
    I(f"v_mov_b32 v{LONE}, 1")
    I("s_lshl_b32 s36, s20, 5")
    I(f"s_add_u32 s36, s36, {TABOFF+8192}")
    I("s_add_u32 s36, s36, s38")
    I(f"s_add_u32 s37, s36, {128*CSTRIDE}")
    I("s_lshl_b32 s42, s21, 6")
    I(f"v_add_u32 v{Y}, s42, v{Y}")
    I(f"v_mul_u32_u24 v{Y+1}, 0xaab, v{Y}")
    I(f"v_lshrrev_b32 v{Y+1}, 16, v{Y+1}")
    I(f"v_mul_u32_u24 v{Y+1}, {SSTR-24*32}, v{Y+1}")
    I(f"v_lshl_add_u32 v{TOA}, v{Y}, 5, v{Y+1}")
    I(f"v_add_u32 v{TOA}, {SCR+28}, v{TOA}")
    I(f"s_movk_i32 s42, {NCH}")
    I(f"v_cmp_gt_u32 s[92:93], s42, v{Y}")
    if c.pfx2_pos == 1:
        I("s_mov_b64 s[40:41], s[46:47]")
        prefetch_x(e, c.pfx2_lines, 114, 117, 256, 31, 0, 4, c.pfx_lines)
        I("s_mov_b64 s[46:47], s[40:41]")
    stamp(e, c, 14)
    e.label("L2_m_round")
    I("s_barrier")
    I("s_cmp_eq_u32 s23, 1")
    I("s_cbranch_scc1 L2_m_slowC")
    def pollB_issue():
        I(f"buffer_load_dwordx4 v[{TF+4}:{TF+7}], v{PA0}, s[8:11], s36 offen sc1")
        I(f"buffer_load_dwordx4 v[{TF+8}:{TF+11}], v{PA1}, s[8:11], s37 offen sc1")
    I(f"ds_read_b32 v{TF}, v{X0} offset:{HIST}")
    I(f"ds_read_b32 v{TF+1}, v{X0} offset:{HIST2}")
    I(f"ds_read_b32 v{Y}, v{TOA}")
    I("s_waitcnt lgkmcnt(0)")
    I(f"v_add_u32 v{TF}, v{TF}, v{TF+1}")
    I(f"v_and_b32 v{Y}, 0xfff, v{Y}")
    I(f"v_cndmask_b32 v{Y}, 0, v{Y}, s[92:93]")
    scan64(e, TF)
    scan64(e, Y)
    I(f"v_readlane_b32 s42, v{TF}, 63")
    I(f"v_mov_b32 v{Y+2}, 0")
    I("s_mov_b32 exec_lo, 0")
    I("s_mov_b32 exec_hi, 0x80000000")
    I(f"ds_add_u32 v{Y+2}, v{Y} offset:{TOTB}")
    I("s_mov_b64 exec, -1")
    I(f"s_cmp_gt_u32 s42, {CAP}")
    I("s_cbranch_scc1 L2_m_overflow")
    if c.bearly: pollB_issue()
    I("s_waitcnt lgkmcnt(0)")
    I("s_barrier")
    I(f"ds_read_b32 v{Y}, v{Y+2} offset:{TOTB}")
    SEL = Y + 4
    E2 = [TF, TF + 8]
    I("s_mov_b32 s44, 0")
    I("s_waitcnt lgkmcnt(0)")
    I(f"v_readfirstlane_b32 s42, v{Y}")
    I(f"v_or_b32 v{SEL}, 0x0c0c0c00, v{LJ}")
    I(f"s_cmp_gt_u32 s42, {CAP}")
    I("s_cbranch_scc1 L2_m_overflow")
    stamp(e, c, 10)
    I("s_mov_b32 s34, s42")
    if c.x_nobload: I("s_branch L2_bnoxb")
    if c.bearly: I("s_branch L2_pollB_w")
    e.label("L2_pollB")
    pollB_issue()
    e.label("L2_pollB_w")
    I("s_add_u32 s44, s44, 1")
    I("s_waitcnt vmcnt(0)")
    tag_bad(e, Y, TF+4, Y+1, ODD)
    tag_bad(e, Y+2, TF+8, Y+1, ODD)
    I(f"v_cndmask_b32 v{Y+2}, 0, v{Y+2}, s[46:47]")
    I(f"v_or_b32 v{Y}, v{Y}, v{Y+2}")
    I(f"v_cmp_ne_u32 vcc, 0, v{Y}")
    e.nop(2)
    I("s_cmp_eq_u64 vcc, 0")
    I("s_cbranch_scc1 L2_pollB_ok")
    I(f"s_sleep {c.psleep}")
    I("s_cmp_lt_u32 s44, 0x100000")
    I("s_cbranch_scc1 L2_pollB")
    e.label("L2_pollB_ok")
    stamp(e, c, 7)
    I(f"ds_write_b128 v{LA}, v[{TF+4}:{TF+7}] offset:{CEB}")
    I(f"ds_write_b128 v{LA}, v[{TF+8}:{TF+11}] offset:{CEB+1024}")
    def boff(p): return ((128 if p >= 4 else 0) + 8 * (p & 3)) * CSTRIDE
    def ent_read(p):
        r = E2[p & 1]
        I(f"ds_read_b128 v[{r}:{r+3}], v{RB} offset:{CEB+256*p}")
        I(f"ds_read_b64 v[{r+4}:{r+5}], v{RB} offset:{CEB+256*p+16}")
    ent_read(0); ent_read(1)
    I(f"v_add_u32 v{Y+1}, 8, v{LJ}")
    for p in range(NPB):
        r = E2[p & 1]
        I(f"s_waitcnt lgkmcnt({2 if p < NPB-1 else 0})")
        I(f"v_and_b32 v{SJ+p}, 0xfff, v{r}")
        I(f"v_bfe_u32 v{TB+p}, v{r}, 12, 12")
        I(f"v_perm_b32 v{KB+2*p}, v{r+3}, v{r+2}, v{SEL}")
        I(f"v_perm_b32 v{KB+2*p+1}, v{r+5}, v{r+4}, v{SEL}")
        if p + 2 < NPB: ent_read(p + 2)
        I(f"v_add_u32 v{SJ+p}, v{SJ+p}, v{LJ}")
        I(f"v_cmp_lt_u32 {mb(p,0)}, v{LJ}, v{TB+p}")
        I(f"v_cmp_lt_u32 {mb(p,1)}, v{Y+1}, v{TB+p}")
        I(f"v_lshl_add_u32 v{SJ+p}, v{SJ+p}, 4, v{LCH}")
    P0 = [TF, TF+4, TF+8, TF+12]
    def pay_issue(p, w, reg):
        I(f"s_mov_b32 s42, {boff(p)+PAYOFF}")
        I("s_mov_b64 exec, -1")
        I(f"v_cndmask_b32 v{Y+2+w}, 2.0, v{SJ+p}, {mb(p,w)}")
        I(f"buffer_load_dwordx4 v[{reg}:{reg+3}], v{Y+2+w}, s[8:11], s42 offen offset:{128*w} {rf}")
    for k in range(4): pay_issue(k >> 1, k & 1, P0[k])
    I(f"v_max3_u32 v{Y}, v{TB}, v{TB+1}, v{TB+2}")
    I(f"v_max3_u32 v{Y}, v{Y}, v{TB+3}, v{TB+4}")
    I(f"v_max3_u32 v{Y}, v{Y}, v{TB+5}, v{TB+6}")
    I(f"v_max_u32 v{Y}, v{Y}, v{TB+7}")
    I(f"v_cmp_lt_u32 vcc, 16, v{Y}")
    I(f"v_mov_b32 v{Y+1}, v{RB}")
    for p in range(NPB):
        for w in range(2):
            I(f"s_mov_b64 exec, {mb(p,w)}")
            I(f"ds_add_rtn_u32 v{RB+2*p+w}, v{KB+2*p+w}, v{LONE} offset:{HISTB}")
    I("s_mov_b64 exec, -1")
    I("s_cmp_lg_u64 vcc, 0")
    I("s_cselect_b32 s35, 1, 0")
    I("s_cbranch_scc0 L2_bnoxa")
    def w2mask(p):
        I(f"v_min_u32 v{Y+2}, {KIN}, v{TB+p}")
        I(f"v_add_u32 v{Y+3}, 16, v{LJ}")
        I(f"v_cmp_lt_u32 vcc, v{Y+3}, v{Y+2}")
        I("s_and_saveexec_b64 s[44:45], vcc")
    for p in range(NPB):
        w2mask(p)
        e.branch(f"s_cbranch_execz L2_bw2a{p}")
        I(f"ds_read_b32 v{KA+p}, v{Y+1} offset:{CEB+256*p+24}")
        I("s_waitcnt lgkmcnt(0)")
        I(f"v_perm_b32 v{KA+p}, v{KA+p}, v{KA+p}, v{SEL}")
        I(f"ds_add_rtn_u32 v{Y+2}, v{KA+p}, v{LONE} offset:{HISTB}")
        I("s_waitcnt lgkmcnt(0)")
        I(f"v_lshl_or_b32 v{KA+p}, v{Y+2}, 8, v{KA+p}")
        e.label(f"L2_bw2a{p}")
        I("s_mov_b64 exec, -1")
    def key_addr(p, dst):
        I(f"v_sub_u32 v{dst}, v{SJ+p}, v{LCH}")
        I(f"v_lshrrev_b32 v{dst}, 4, v{dst}")
        I(f"v_add_u32 v{dst}, v{dst}, v{LCH}")
    for p in range(NPB):
        I(f"s_mov_b32 s42, {boff(p)+KEYOFF}")
        key_addr(p, Y+3)
        extra_count(f"b{p}", KIN, LJ, Y+3, TB+p, 42, LONE, HIST2B, Y)
    e.label("L2_bnoxa")
    I("s_mov_b64 exec, 1")
    I(f"v_mov_b32 v{Y+2}, 0")
    I("s_waitcnt lgkmcnt(0)")
    I(f"ds_add_u32 v{Y+2}, v{LONE} offset:{BSYNC}")
    I("s_mov_b64 exec, -1")
    I(f"v_mov_b32 v{Y+2}, 0")
    spin(e, "bs", Y, Y+2, BSYNC, 4, 44, 42)
    BB = Y + 4
    I(f"ds_read_b32 v{Y}, v{X0} offset:{HISTB}")
    I(f"ds_read_b32 v{Y+1}, v{X0} offset:{HIST2B}")
    I("s_waitcnt lgkmcnt(0)")
    I(f"v_add_u32 v{Y+1}, v{Y}, v{Y+1}")
    I(f"v_mov_b32 v{BB}, v{Y+1}")
    scan64(e, BB)
    I(f"v_sub_u32 v{BB}, v{BB}, v{Y+1}")
    I(f"v_add_u32 v{BB}, {BOFF}, v{BB}")
    for k in range(2*NPB):
        I(f"ds_bpermute_b32 v{KB+k}, v{KB+k}, v{BB}")
    I("s_cmp_lg_u32 s21, 0")
    I("s_cbranch_scc1 L2_bnoinfo")
    I(f"v_lshl_or_b32 v{Y+1}, v{Y+1}, 16, v{BB}")
    I(f"s_mov_b32 exec_lo, {((1 << 32) - (1 << HN))}")
    I(f"ds_write_b32 v{X0}, v{Y+1} offset:{INFO}")
    I("s_mov_b64 exec, -1")
    e.label("L2_bnoinfo")
    I("s_waitcnt lgkmcnt(0)")
    for k in range(2*NPB):
        I(f"v_add_lshl_u32 v{KB+k}, v{KB+k}, v{RB+k}, 4")
    I(f"v_mov_b32 v{LONE}, v{Y}")
    regs = P0 + [RB, RB+4, RB+8, RB+12]
    for k in range(4, 8): pay_issue(k >> 1, k & 1, regs[k])
    for k in range(16):
        I(f"s_waitcnt vmcnt({min(7, 15-k)})")
        I(f"s_mov_b64 exec, {mb(k>>1, k&1)}")
        I(f"ds_write_b128 v{KB+k}, v[{regs[k&7]}:{regs[k&7]+3}] offset:{RAW}")
        if k + 8 < 16: pay_issue((k+8) >> 1, (k+8) & 1, regs[k&7])
    I("s_mov_b64 exec, -1")
    I("s_cmp_eq_u32 s35, 0")
    I("s_cbranch_scc1 L2_bnoxb")
    for p in range(NPB):
        I(f"v_and_b32 v{Y}, 0xff, v{KA+p}")
        I(f"ds_bpermute_b32 v{Y}, v{Y}, v{BB}")
        w2mask(p)
        e.branch(f"s_cbranch_execz L2_bw2b{p}")
        I(f"s_mov_b32 s42, {boff(p)+PAYOFF}")
        I(f"buffer_load_dwordx4 v[{TF}:{TF+3}], v{SJ+p}, s[8:11], s42 offen offset:256 {rf}")
        I(f"v_lshrrev_b32 v{KA+p}, 8, v{KA+p}")
        I("s_waitcnt vmcnt(0) lgkmcnt(0)")
        I(f"v_add_lshl_u32 v{Y}, v{Y}, v{KA+p}, 4")
        I(f"ds_write_b128 v{Y}, v[{TF}:{TF+3}] offset:{RAW}")
        e.label(f"L2_bw2b{p}")
        I("s_mov_b64 exec, -1")
        I("s_waitcnt lgkmcnt(0)")
    I(f"v_add_u32 v{BB}, v{BB}, v{LONE}")
    I(f"v_mov_b32 v{LONE}, 1")
    for p in range(NPB):
        I(f"s_mov_b32 s42, {boff(p)+KEYOFF}")
        I(f"s_mov_b32 s43, {boff(p)+PAYOFF}")
        key_addr(p, KA+p)
        extra_move(f"b{p}", KIN, LJ, KA+p, SJ+p, TB+p, 42, 43, LONE, CUR2B, BB, Y, TF)
    e.label("L2_bnoxb")
    I("s_waitcnt lgkmcnt(0)")
    for k in range(64):
        I(f"v_mov_b32 v{G+k}, 0")
    I("s_cmp_lg_u32 s21, 1")
    I("s_cbranch_scc1 L2_bnoguard")
    I(f"s_add_u32 s42, s34, {BOFF}")
    I("s_lshl_b32 s42, s42, 4")
    I(f"v_lshl_add_u32 v{TF}, v{X0}, 2, s42")
    I(f"ds_write_b128 v{TF}, v[{G}:{G+3}] offset:{RAW}")
    I("s_waitcnt lgkmcnt(0)")
    e.label("L2_bnoguard")
    I(f"v_mov_b32 v{TF}, 1")
    I("s_mov_b64 exec, 1")
    I(f"ds_add_u32 v{G}, v{TF} offset:{BREADY}")
    I("s_mov_b64 exec, -1")
    stamp(e, c, 13)
    I("s_branch L2_m_tiles")
    e.label("L2_m_slowC")
    I("s_barrier")
    e.label("L2_m_tiles")
    if c.prio_m: I(f"s_setprio {c.prio_m}")
    for h in range(2):
        for t in ((0, 3, 1, 2) if h else range(4)):
            need = 16 if t < 3 else NODES - 48
            last = (h, t) == (1, 2)
            if last and c.split: need = 32
            I(f"v_mov_b32 v{TF}, 0")
            spin(e, f"t{h}{t}", TF+1, TF, DONE + 16*h + 4*t, need, 43, 42, sleep=(1 if last else c.sleep))
            stamp(e, c, 16 + 4*h + t)
            srcs = [t] + ([0] if last and c.split else [])
            steps = [(tt, ks) for tt in srcs for ks in range(16)]
            def mf(ks, r):
                jp, blk = ks >> 2, 2 * h + ((ks >> 1) & 1)
                p, i, sg = path_of(jp, blk)
                f = p * 2 + (ks & 1)
                g = G + 16 * t + 4 * i
                I(f"v_mfma_f32_16x16x32_bf16 v[{g}:{g+3}], v[{W+4*f}:{W+4*f+3}], v[{r}:{r+3}], v[{g}:{g+3}]")
            def rd(n, r):
                tt, ks = steps[n]
                I(f"ds_read_b128 v[{r}:{r+3}], v{TA+(ks&3)} offset:{tt*16384 + (ks>>2)*256}")
            if last and c.fastlast and not c.split:
                I("s_cmp_eq_u32 s24, 0")
                I("s_cbranch_scc1 L2_lastslow")
                fr = [TF + 4*n for n in range(4)] + [G + 4*n for n in range(8)] + [G + 48 + 4*n for n in range(4)]
                order = [0, 2, 4, 8, 1, 3, 5, 9, 6, 10, 12, 14, 7, 11, 13, 15]
                for n, ks in enumerate(order): rd(ks, fr[n])
                for n, ks in enumerate(order):
                    I(f"s_waitcnt lgkmcnt({15-n})")
                    mf(ks, fr[n])
                I("s_branch L2_lastdone")
                e.label("L2_lastslow")
            for n in range(4): rd(n, TF + 4*n)
            for n in range(len(steps)):
                I(f"s_waitcnt lgkmcnt({min(3, len(steps)-1-n)})")
                mf(steps[n][1], TF + 4*(n&3))
                if n + 4 < len(steps): rd(n + 4, TF + 4*(n&3))
            if last and c.fastlast and not c.split: e.label("L2_lastdone")
            if (h, t) == (1, 0) and c.split:
                I(f"v_mov_b32 v{TF}, 0")
                I(f"v_mov_b32 v{TF+1}, 1")
                I("s_mov_b64 exec, 1")
                I(f"ds_add_u32 v{TF}, v{TF+1} offset:{GDONE + 16}")
                I("s_mov_b64 exec, -1")
            if h == 0:
                I(f"v_mov_b32 v{TF}, 0")
                I(f"v_mov_b32 v{TF+1}, 1")
                I("s_mov_b64 exec, 1")
                I(f"ds_add_u32 v{TF}, v{TF+1} offset:{GDONE + 4*t}")
                I("s_mov_b64 exec, -1")
                if t == c.pf1_tile:
                    I(f"s_movk_i32 m0, {HIST2B}")
                    I("s_lshl_b32 s42, s21, 6")
                    I(f"v_lshrrev_b32 v{TF+3}, 2, v{X0}")
                    I(f"v_add_u32 v{TF+3}, s42, v{TF+3}")
                    prefetch_x(e, c.pf1_lines, TF + 4, TF + 3, 256, 31, 1, 4, lds=True)
            else:
                I("s_cmp_eq_u32 s24, 0")
                e.branch(f"s_cbranch_scc1 L2_nofin{t}")
                g = G + 16 * t
                I("s_mov_b32 s42, 0xbfb8aa3b")
                for r in range(4): I(f"v_mul_f32 v{TF+r}, s42, v{g+r}")
                for r in range(4): I(f"v_exp_f32 v{TF+r}, v{TF+r}")
                for r in range(4): I(f"v_add_f32 v{TF+r}, 1.0, v{TF+r}")
                for r in range(4): I(f"v_rcp_f32 v{TF+r}, v{TF+r}")
                for i in range(1, 4):
                    for r in range(4): I(f"v_mul_f32 v{g+4*i+r}, v{g+4*i+r}, v{TF+r}")
                for i in range(4):
                    I(f"v_cvt_pk_bf16_f32 v{TF+4+2*i}, v{g+4*i}, v{g+4*i+1}")
                    I(f"v_cvt_pk_bf16_f32 v{TF+5+2*i}, v{g+4*i+2}, v{g+4*i+3}")
                I(f"s_mov_b32 s42, {t*16*512 + ((N//2-HN)*512 if t >= 2 else 0)}")
                va = X1
                if t == 1:
                    va = TF
                    I(f"v_add_u32 v{TF}, {(N//2-HN)*512}, v{X1}")
                    I(f"v_cndmask_b32 v{TF}, v{X1}, v{TF}, s[84:85]")
                    I("s_mov_b64 exec, s[94:95]")
                if t == 3:
                    I("s_mov_b64 exec, s[50:51]")
                    I("s_cbranch_execz L2_nost3")
                for i in range(4):
                    I(f"buffer_store_dwordx2 v[{TF+4+2*i}:{TF+5+2*i}], v{va}, s[12:15], s42 offen offset:{i*128} {c.out_flags if (t == 2 or c.out_early is None) else c.out_early}")
                if t == 3: e.label("L2_nost3")
                if t in (1, 3): I("s_mov_b64 exec, -1")
                e.label(f"L2_nofin{t}")
    stamp(e, c, 11)
    I("s_cmp_lg_u32 s24, 0")
    e.branch("s_cbranch_scc1 L2_m_exit")
    I("s_add_u32 s89, s89, 1")
    I("s_branch L2_m_slow")
    e.label("L2_m_overflow")
    I("s_mov_b32 s89, 0")
    I("s_mov_b32 s23, 1")
    I("s_waitcnt vmcnt(0)")
    for k in range(64):
        I(f"v_mov_b32 v{G+k}, 0")
    e.label("L2_m_slow")
    I("s_waitcnt vmcnt(0) lgkmcnt(0)")
    I("s_barrier")
    I(f"s_cmp_eq_u32 s89, {2*NCH-1}")
    I("s_cselect_b32 s24, 1, 0")
    I("s_cmp_lg_u32 s21, 1")
    I("s_cbranch_scc1 L2_m_nz")
    for k in range(4): I(f"v_mov_b32 v{TF+k}, 0")
    I(f"v_lshlrev_b32 v{TF+4}, 2, v{X0}")
    I(f"ds_write_b128 v{TF+4}, v[{TF}:{TF+3}]")
    I("s_waitcnt lgkmcnt(0)")
    e.label("L2_m_nz")
    I("s_barrier")
    e.branch("s_branch L2_m_round")
    e.label("L2_m_exit")
    if c.stamps:
        I("s_waitcnt vmcnt(0)")
        stamp(e, c, 12)
        stamp_store(e, c, TF)
    e.label("L_end")
    I("s_endpgm")
    e.label("L_codeend")
    return KNAME, 128, 96

def gather_loop(e, c, L):
    I = e.I
    RAW, T, NEXT, DONE, GDONE, OSC, PL1, BREADY, INFO = (L[k] for k in "RAW T NEXT DONE GDONE OSC PL1 BREADY INFO".split())
    VLANE, VINFO, VNEXT, VLOFF, VMASK, VOW, VOR, VSCRW, VTRA, VWR, VL16, VT0, VT1, VONE = (L[k] for k in
        "VLANE VINFO VNEXT VLOFF VMASK VOW VOR VSCRW VTRA VWR VL16 VT0 VT1 VONE".split())
    ACC, LD, B, A, AD = 0, 32, 64, 96, 100
    sA, sR, sH, sN, sNV = 32, 33, 34, 35, 37
    sCN, sCH, sCF, sCR, sL = 38, 39, 40, 41, 36
    uid = [0]
    def lab(p):
        uid[0] += 1
        return f"L2_{p}{uid[0]}"
    def fetch_issue():
        I("s_mov_b64 exec, 1")
        I(f"ds_add_rtn_u32 v{VNEXT}, v{VL16}, v{VONE} offset:{NEXT}")
        I("s_mov_b64 exec, -1")
    NIT = 2*NODES + (16 if c.split else 0)
    def setup_item(none_label):
        I(f"v_readfirstlane_b32 s42, v{VNEXT}")
        e.nop(1)
        if c.static1: I("s_add_u32 s42, s42, 12")
        I(f"s_cmp_ge_u32 s42, {NIT}")
        I(f"s_cbranch_scc1 {none_label}")
        t, sp, dn = lab("bw"), lab("sp"), lab("sd")
        if c.split:
            I(f"s_cmp_ge_u32 s42, {2*NODES-16}")
            I(f"s_cbranch_scc1 {sp}")
        I(f"s_cmp_ge_u32 s42, {NODES}")
        I(f"s_cselect_b32 s{sH}, 256, 0")
        I(f"s_cselect_b32 s43, {NODES}, 0")
        I(f"s_cmp_ge_u32 s42, {NODES+16}")
        I(f"s_cselect_b32 s43, {NODES-32}, s43")
        I(f"s_cmp_ge_u32 s42, {NODES+18}")
        I(f"s_cselect_b32 s43, {NODES+2}, s43")
        I(f"s_sub_u32 s{sN}, s42, s43")
        I(f"s_cmp_lt_u32 s{sN}, s48")
        I(f"s_cbranch_scc1 {t}")
        stamp(e, c, 29)
        I(f"v_mov_b32 v{VT0}, 0")
        spin(e, t, VT1, VT0, BREADY, 4, 45, 44, sleep=1)
        I(f"v_lshrrev_b32 v{VT0}, 2, v{VL16}")
        I(f"ds_read_b32 v{VINFO}, v{VT0} offset:{INFO}")
        I("s_movk_i32 s48, 64")
        I("s_waitcnt lgkmcnt(0)")
        stamp(e, c, 30)
        e.label(t)
        I(f"v_readlane_b32 s42, v{VINFO}, s{sN}")
        e.nop(1)
        I(f"s_lshr_b32 s{sR}, s42, 16")
        I("s_and_b32 s42, s42, 0xffff")
        I(f"s_lshl_b32 s{sA}, s42, 4")
        if c.split:
            I(f"s_branch {dn}")
            e.label(sp)
            I(f"s_sub_u32 s42, s42, {2*NODES-16}")
            I("s_lshr_b32 s43, s42, 1")
            I(f"s_add_u32 s{sN}, s43, 32")
            I(f"s_cmp_lt_u32 s{sN}, s48")
            I(f"s_cbranch_scc1 {t}b")
            I(f"v_mov_b32 v{VT0}, 0")
            spin(e, t + "c", VT1, VT0, BREADY, 4, 45, 44, sleep=1)
            I(f"v_lshrrev_b32 v{VT0}, 2, v{VL16}")
            I(f"ds_read_b32 v{VINFO}, v{VT0} offset:{INFO}")
            I("s_movk_i32 s48, 64")
            I("s_waitcnt lgkmcnt(0)")
            e.label(t + "b")
            I(f"v_readlane_b32 s44, v{VINFO}, s{sN}")
            I(f"s_movk_i32 s{sH}, 256")
            I(f"s_lshr_b32 s{sR}, s44, 16")
            I("s_and_b32 s44, s44, 0xffff")
            I(f"s_min_u32 s45, s{sR}, 32")
            I("s_bitcmp1_b32 s42, 0")
            I(f"s_cbranch_scc1 {sp}h")
            I(f"s_mov_b32 s{sR}, s45")
            I(f"s_lshl_b32 s{sA}, s44, 4")
            I(f"s_branch {dn}")
            e.label(sp + "h")
            I(f"s_sub_u32 s{sR}, s{sR}, s45")
            I("s_add_u32 s44, s44, s45")
            I(f"s_lshl_b32 s{sA}, s44, 4")
            I(f"s_or_b32 s{sN}, s43, 64")
            e.label(dn)
    def off_read(hf):
        I(f"ds_read_b128 v[{AD}:{AD+3}], v{VOR} offset:{OSC+128*hf}")
        I(f"ds_read_b128 v[{AD+4}:{AD+7}], v{VOR} offset:{OSC+128*hf+16}")
    def off_add():
        if c.addtid: return
        for i in range(8):
            I(f"v_add_u32 v{AD+i}, v{AD+i}, v{VLOFF}")
    def prep_block():
        r = B
        I(f"v_add_u32 v{VT0}, s{sA}, v{VL16}")
        I(f"ds_read_b128 v[{r}:{r+3}], v{VT0} offset:{RAW}")
        l = lab("nf")
        I(f"s_cmp_gt_u32 s{sR}, 64")
        I(f"s_cbranch_scc1 {l}")
        fetch_issue()
        e.label(l)
        I(f"v_cmp_gt_u32 vcc, s{sR}, v{VLANE}")
        I("s_waitcnt lgkmcnt(0)")
        I(f"v_lshrrev_b32 v{r+11}, 16, v{r+3}")
        if c.addtid:
            I(f"v_lshlrev_b32 v{r+11}, 5, v{r+11}")
            I(f"v_sub_u32 v{r+11}, v{r+11}, v{VLOFF}")
        else:
            I(f"v_lshlrev_b32 v{r+11}, 9, v{r+11}")
            if c.oobtail: I(f"v_cndmask_b32 v{r+11}, 2.0, v{r+11}, vcc")
        I(f"ds_write_b32 v{VOW}, v{r+11} offset:{OSC}")
        off_read(0)
        if not c.x_noexp:
            I(f"v_cndmask_b32 v{r}, 0, v{r}, vcc")
            I(f"v_cndmask_b32 v{r+1}, 0, v{r+1}, vcc")
            I(f"v_lshlrev_b32 v{r+8}, 16, v{r+2}")
            I(f"v_and_b32 v{r+9}, v{VMASK}, v{r+2}")
            I(f"v_lshlrev_b32 v{r+10}, 16, v{r+3}")
            I(f"v_lshlrev_b32 v{r+4}, 16, v{r}")
            I(f"v_and_b32 v{r+5}, v{VMASK}, v{r}")
            I(f"v_lshlrev_b32 v{r+6}, 16, v{r+1}")
            I(f"v_and_b32 v{r+7}, v{VMASK}, v{r+1}")
            for j in range(3):
                for d in range(4):
                    I(f"v_mul_f32 v{r+12+4*j+d}, v{r+4+d}, v{r+8+j}")
            I(f"v_cvt_pk_bf16_f32 v{r+2}, v{r+12}, v{r+13}")
            I(f"v_cvt_pk_bf16_f32 v{r+3}, v{r+14}, v{r+15}")
            for k in range(4):
                I(f"v_cvt_pk_bf16_f32 v{r+24+k}, v{r+16+2*k}, v{r+17+2*k}")
        I(f"ds_write_b128 v{VSCRW}, v[{r}:{r+3}]")
        I(f"ds_write_b128 v{VSCRW}, v[{r+24}:{r+27}] offset:{PL1}")
        I("s_waitcnt lgkmcnt(2)")
        off_add()
    def ld(i):
        if c.x_noload: return
        I(f"buffer_load_dwordx4 v[{LD+4*i}:{LD+4*i+3}], v{AD+i}, s[4:7], {'0' if c.x_samehalf else 's%d' % sH} {'idxen' if c.addtid else 'offen'}")
    def perm(q, jj, k16=False):
        if c.x_noperm: return
        d = B + 2*q + jj if k16 else B + 4*q + jj
        I(f"v_perm_b32 v{d}, v{LD+4*(2*jj+1)+q//2}, v{LD+4*(2*jj)+q//2}, s{29 if q & 1 else 28}")
    def loads_partial(done):
        for i in range(7):
            I(f"s_cmp_le_u32 s{sL}, {4*i}")
            I(f"s_cbranch_scc1 {done}")
            ld(i)
    def perms_loads():
        part, done = lab("pp"), lab("pd")
        I("s_waitcnt vmcnt(0)")
        I(f"s_cmp_le_u32 s{sL}, 28")
        I(f"s_cbranch_scc1 {part}")
        for jj in range(4):
            for q in range(8): perm(q, jj)
            ld(2*jj); ld(2*jj+1)
        I(f"s_branch {done}")
        e.label(part)
        for jj in range(4):
            for q in range(8): perm(q, jj)
        loads_partial(done)
        e.label(done)
    def mfmas(first, k16=False):
        if c.x_nomfma: return
        for q in range(8):
            d = f"v[{ACC+4*q}:{ACC+4*q+3}]"
            if k16: I(f"v_mfma_f32_16x16x16_bf16 {d}, v[{A}:{A+1}], v[{B+2*q}:{B+2*q+1}], {'0' if first else d}")
            else: I(f"v_mfma_f32_16x16x32_bf16 {d}, v[{A}:{A+3}], v[{B+4*q}:{B+4*q+3}], {'0' if first else d}")
    def tr_read(hf):
        I(f"ds_read_b64_tr_b16 v[{A}:{A+1}], v{VTRA} offset:{512*hf}")
        I(f"ds_read_b64_tr_b16 v[{A+2}:{A+3}], v{VTRA} offset:{512*hf+256}")

    if c.stamps: I("s_mov_b32 s92, 16")
    setup_item("L2_g_done")
    prep_block()
    for i in range(8): ld(i)
    for first in (1, 0):
        e.label(f"L2_A{first}")
        tr_read(0)
        I(f"s_cmp_gt_u32 s{sR}, 32")
        I(f"s_cbranch_scc1 L2_AB{first}")
        I(f"s_mov_b32 s{sCF}, {first}")
        I(f"s_mov_b32 s{sCR}, s{sR}")
        I("s_branch L2_XN")
        e.label(f"L2_AB{first}")
        off_read(1)
        I(f"s_sub_u32 s{sL}, s{sR}, 32")
        I("s_waitcnt lgkmcnt(0)")
        off_add()
        perms_loads()
        mfmas(first)
        if first: I("s_branch L2_B")
    e.label("L2_B")
    tr_read(1)
    I(f"s_cmp_gt_u32 s{sR}, 64")
    I("s_cbranch_scc0 L2_BN")
    I(f"s_sub_u32 s{sR}, s{sR}, 64")
    I(f"s_add_u32 s{sA}, s{sA}, 1024")
    I(f"s_mov_b32 s{sL}, s{sR}")
    prep_block()
    perms_loads()
    I("s_waitcnt lgkmcnt(0)")
    mfmas(0)
    I("s_branch L2_A0")
    e.label("L2_BN")
    I(f"s_mov_b32 s{sCF}, 0")
    I(f"s_sub_u32 s{sCR}, s{sR}, 32")
    e.label("L2_XN")
    I(f"s_mov_b32 s{sCN}, s{sN}")
    I(f"s_mov_b32 s{sCH}, s{sH}")
    I(f"s_mov_b32 s{sNV}, 1")
    setup_item("L2_XN_none")
    I(f"s_mov_b32 s{sL}, s{sR}")
    prep_block()
    I("s_branch L2_XN_go")
    e.label("L2_XN_none")
    I(f"s_mov_b32 s{sNV}, 0")
    I(f"s_mov_b32 s{sL}, 0")
    e.label("L2_XN_go")
    I(f"s_cmp_le_u32 s{sCR}, 16")
    I("s_cbranch_scc1 L2_XN_k16")
    perms_loads()
    I("s_waitcnt lgkmcnt(0)")
    I(f"s_cmp_eq_u32 s{sCF}, 0")
    I("s_cbranch_scc1 L2_XN_acc")
    mfmas(1)
    I("s_branch L2_XN_epi")
    e.label("L2_XN_acc")
    mfmas(0)
    I("s_branch L2_XN_epi")
    e.label("L2_XN_k16")
    I("s_waitcnt vmcnt(0)")
    for jj in range(2):
        for q in range(8): perm(q, jj, True)
    I(f"s_cmp_le_u32 s{sL}, 28")
    I("s_cbranch_scc1 L2_XN_k16p")
    for i in range(8): ld(i)
    I("s_branch L2_XN_k16d")
    e.label("L2_XN_k16p")
    loads_partial("L2_XN_k16d")
    e.label("L2_XN_k16d")
    I("s_waitcnt lgkmcnt(0)")
    I(f"s_cmp_eq_u32 s{sCF}, 0")
    I("s_cbranch_scc1 L2_XN_k16acc")
    mfmas(1, True)
    I("s_branch L2_XN_epi")
    e.label("L2_XN_k16acc")
    mfmas(0, True)
    e.label("L2_XN_epi")
    I(f"s_lshl_b32 s42, s{sCH}, 5")
    I(f"v_add_u32 v{VT0}, s42, v{VWR}")
    for q in range(8):
        I(f"ds_read_b128 v[{B+4*q}:{B+4*q+3}], v{VT0} offset:{q*1024}")
    I(f"s_lshr_b32 s43, s{sCN}, 4")
    I(f"s_lshl_b32 s43, s43, 2")
    I(f"s_cmp_eq_u32 s{sCH}, 0")
    I("s_cbranch_scc1 L2_nowar")
    I(f"v_mov_b32 v{VT1}, s43")
    spin(e, "war", VT0, VT1, GDONE, 4, 45, 44)
    if c.split:
        I("s_cmp_eq_u32 s43, 16")
        I("s_cselect_b32 s43, 8, s43")
    I("s_add_u32 s43, s43, 16")
    e.label("L2_nowar")
    I(f"s_and_b32 s44, s{sCN}, 15")
    I("s_lshl_b32 s44, s44, 4")
    I(f"s_and_b32 s45, s{sCN}, 63")
    I(f"s_lshl_b32 s45, s45, 10")
    I(f"s_add_u32 s45, s45, {T}")
    I(f"v_xor_b32 v{VT0}, s44, v{VL16}")
    I(f"v_add_u32 v{VT0}, s45, v{VT0}")
    I(f"v_mov_b32 v{VT1}, s43")
    I("s_waitcnt lgkmcnt(0)")
    for q in range(8):
        I(f"v_mul_f32 v{B+4*q}, v{B+4*q}, v{ACC+4*q}")
    for d in range(1, 4):
        for q in range(8):
            I(f"v_fmac_f32 v{B+4*q}, v{B+4*q+d}, v{ACC+4*q+d}")
    for k in range(4):
        I(f"v_cvt_pk_bf16_f32 v{A+k}, v{B+8*k}, v{B+8*k+4}")
    I(f"ds_write_b128 v{VT0}, v[{A}:{A+3}]")
    if not c.nowait: I("s_waitcnt lgkmcnt(0)")
    I("s_mov_b64 exec, 1")
    I(f"ds_add_u32 v{VT1}, v{VONE} offset:{DONE}")
    I("s_mov_b64 exec, -1")
    if c.stamps:
        I("s_memrealtime s[90:91]")
        I("s_waitcnt lgkmcnt(0)")
        I("s_mov_b32 m0, s92")
        I(f"v_writelane_b32 v{STV}, s90, m0")
        I("s_add_u32 s92, s92, 1")
        I("s_min_u32 s92, s92, 23")
    I(f"s_cmp_lg_u32 s{sNV}, 0")
    I("s_cbranch_scc1 L2_A1")

def gather_loop_s(e, c, L):
    I = e.I
    RAW, T, NEXT, DONE, GDONE, OSC, PL1, BREADY, INFO = (L[k] for k in "RAW T NEXT DONE GDONE OSC PL1 BREADY INFO".split())
    VLANE, VINFO, VNEXT, VLOFF, VMASK, VOW, VOR, VSCRW, VTRA, VWR, VL16, VT0, VT1, VONE = (L[k] for k in
        "VLANE VINFO VNEXT VLOFF VMASK VOW VOR VSCRW VTRA VWR VL16 VT0 VT1 VONE".split())
    VTRB, VIDX = L["VJ"], L["VSEL"]
    ACC, LD, B, A, AD = 0, 32, 64, 96, 100
    sA, sR, sH, sN, sNV = 32, 33, 34, 35, 37
    sCN, sCH, sCR, sL = 38, 39, 41, 36
    uid = [0]
    def lab(p):
        uid[0] += 1
        return f"L3_{p}{uid[0]}"
    def fetch_issue():
        I("s_mov_b64 exec, 1")
        I(f"ds_add_rtn_u32 v{VNEXT}, v{VL16}, v{VONE} offset:{NEXT}")
        I("s_mov_b64 exec, -1")
    def setup_item(none_label):
        I(f"v_readfirstlane_b32 s42, v{VNEXT}")
        e.nop(1)
        I(f"s_cmp_ge_u32 s42, {2*NODES}")
        I(f"s_cbranch_scc1 {none_label}")
        I(f"s_cmp_ge_u32 s42, {NODES}")
        I(f"s_cselect_b32 s{sH}, 256, 0")
        I(f"s_cselect_b32 s43, {NODES}, 0")
        I(f"s_cmp_ge_u32 s42, {NODES+16}")
        I(f"s_cselect_b32 s43, {NODES-32}, s43")
        I(f"s_cmp_ge_u32 s42, {NODES+18}")
        I(f"s_cselect_b32 s43, {NODES+2}, s43")
        I(f"s_sub_u32 s{sN}, s42, s43")
        t = lab("bw")
        I(f"s_cmp_lt_u32 s{sN}, s48")
        I(f"s_cbranch_scc1 {t}")
        stamp(e, c, 29)
        I(f"v_mov_b32 v{VT0}, 0")
        spin(e, t, VT1, VT0, BREADY, 4, 45, 44, sleep=1)
        I(f"v_lshrrev_b32 v{VT0}, 2, v{VL16}")
        I(f"ds_read_b32 v{VINFO}, v{VT0} offset:{INFO}")
        I("s_movk_i32 s48, 64")
        I("s_waitcnt lgkmcnt(0)")
        stamp(e, c, 30)
        e.label(t)
        I(f"v_readlane_b32 s42, v{VINFO}, s{sN}")
        e.nop(1)
        I(f"s_lshr_b32 s{sR}, s42, 16")
        I("s_and_b32 s42, s42, 0xffff")
        I(f"s_lshl_b32 s{sA}, s42, 4")
    def off_read(hf):
        I(f"ds_read_b128 v[{AD}:{AD+3}], v{VOR} offset:{OSC+128*hf}")
        I(f"ds_read_b128 v[{AD+4}:{AD+7}], v{VOR} offset:{OSC+128*hf+16}")
    def off_add():
        for i in range(8):
            I(f"v_add_u32 v{AD+i}, v{AD+i}, v{VLOFF}")
    def prep_block():
        r = B
        I(f"v_add_u32 v{VT0}, s{sA}, v{VL16}")
        I(f"ds_read_b128 v[{r}:{r+3}], v{VT0} offset:{RAW}")
        l = lab("nf")
        I(f"s_cmp_gt_u32 s{sR}, 64")
        I(f"s_cbranch_scc1 {l}")
        fetch_issue()
        e.label(l)
        I(f"v_cmp_gt_u32 vcc, s{sR}, v{VLANE}")
        I("s_waitcnt lgkmcnt(0)")
        I(f"v_lshrrev_b32 v{r+11}, 16, v{r+3}")
        I(f"v_lshlrev_b32 v{r+11}, 9, v{r+11}")
        I(f"v_cndmask_b32 v{r+11}, 2.0, v{r+11}, vcc")
        I(f"ds_write_b32 v{VOW}, v{r+11} offset:{OSC}")
        off_read(0)
        I(f"v_cndmask_b32 v{r}, 0, v{r}, vcc")
        I(f"v_cndmask_b32 v{r+1}, 0, v{r+1}, vcc")
        I(f"v_lshlrev_b32 v{r+8}, 16, v{r+2}")
        I(f"v_and_b32 v{r+9}, v{VMASK}, v{r+2}")
        I(f"v_lshlrev_b32 v{r+10}, 16, v{r+3}")
        I(f"v_lshlrev_b32 v{r+4}, 16, v{r}")
        I(f"v_and_b32 v{r+5}, v{VMASK}, v{r}")
        I(f"v_lshlrev_b32 v{r+6}, 16, v{r+1}")
        I(f"v_and_b32 v{r+7}, v{VMASK}, v{r+1}")
        for j in range(3):
            for d in range(4):
                I(f"v_mul_f32 v{r+12+4*j+d}, v{r+4+d}, v{r+8+j}")
        I(f"v_cvt_pk_bf16_f32 v{r+2}, v{r+12}, v{r+13}")
        I(f"v_cvt_pk_bf16_f32 v{r+3}, v{r+14}, v{r+15}")
        for k in range(4):
            I(f"v_cvt_pk_bf16_f32 v{r+24+k}, v{r+16+2*k}, v{r+17+2*k}")
        I(f"ds_write_b128 v{VSCRW}, v[{r}:{r+3}]")
        I(f"ds_write_b128 v{VSCRW}, v[{r+24}:{r+27}] offset:{PL1}")
        I("s_waitcnt lgkmcnt(2)")
        off_add()
    def ld(i):
        if c.x_noload: return
        I(f"buffer_load_dwordx4 v[{LD+4*i}:{LD+4*i+3}], v{AD+i}, s[4:7], s{sH} offen")
    def moves(jj, k16=False):
        for p in range(4):
            d = B + (4 if k16 else 8) * p + 2 * jj
            a, b = LD + 8*jj + (p & 2), LD + 8*jj + 4 + (p & 2)
            I(f"v_pk_mov_b32 v[{d}:{d+1}], v[{a}:{a+1}], v[{b}:{b+1}] op_sel:[{p&1},{p&1}]")
    def loads_partial(done):
        for i in range(7):
            I(f"s_cmp_le_u32 s{sL}, {4*i}")
            I(f"s_cbranch_scc1 {done}")
            ld(i)
    def moves_loads():
        part, done = lab("pp"), lab("pd")
        I("s_waitcnt vmcnt(0)")
        I(f"s_cmp_le_u32 s{sL}, 28")
        I(f"s_cbranch_scc1 {part}")
        for jj in range(4):
            moves(jj)
            ld(2*jj); ld(2*jj+1)
        I(f"s_branch {done}")
        e.label(part)
        for jj in range(4): moves(jj)
        loads_partial(done)
        e.label(done)
    def macs(k16=False):
        for q in range(8):
            d = f"v[{ACC+4*q}:{ACC+4*q+3}]"
            p = q >> 1
            if k16: I(f"v_smfmac_f32_16x16x32_bf16 {d}, v[{A}:{A+1}], v[{B+4*p}:{B+4*p+3}], v{VIDX} cbsz:0 abid:{2*(q&1)}")
            else: I(f"v_smfmac_f32_16x16x64_bf16 {d}, v[{A}:{A+3}], v[{B+8*p}:{B+8*p+7}], v{VIDX} cbsz:0 abid:{q&1}")
    def tr32(hf):
        I(f"ds_read_b64_tr_b16 v[{A}:{A+1}], v{VTRB} offset:{512*hf}")
        I(f"ds_read_b64_tr_b16 v[{A+2}:{A+3}], v{VTRB} offset:{512*hf+16}")
    def tr16(hf):
        I(f"ds_read_b64_tr_b16 v[{A}:{A+1}], v{VTRA} offset:{512*hf}")
    def zero_acc():
        if c.zpk:
            for k in range(0, 32, 2): I(f"v_pk_mov_b32 v[{ACC+k}:{ACC+k+1}], 0, 0")
        else:
            for k in range(32): I(f"v_mov_b32 v{ACC+k}, 0")

    if c.stamps: I("s_mov_b32 s92, 16")
    I(f"v_lshrrev_b32 v{VT0}, 4, v{VLANE}")
    I(f"v_lshrrev_b32 v{VT1}, 5, v{VLANE}")
    I(f"v_mul_u32_u24 v{VT1}, 12, v{VT1}")
    I(f"v_add_u32 v{VT0}, v{VT0}, v{VT1}")
    I(f"v_lshl_add_u32 v{VTRB}, v{VT0}, 4, v{VTRA}")
    I(f"v_mov_b32 v{VIDX}, 0xdddd8888")
    setup_item("L2_g_done")
    prep_block()
    for i in range(8): ld(i)
    zero_acc()
    e.label("L3_A")
    I(f"s_mov_b32 s{sCR}, s{sR}")
    I(f"s_cmp_gt_u32 s{sR}, 32")
    I("s_cbranch_scc0 L3_AN")
    tr32(0)
    off_read(1)
    I(f"s_sub_u32 s{sL}, s{sR}, 32")
    I("s_waitcnt lgkmcnt(0)")
    off_add()
    moves_loads()
    macs()
    I(f"s_sub_u32 s{sCR}, s{sR}, 32")
    I(f"s_cmp_gt_u32 s{sR}, 64")
    I("s_cbranch_scc0 L3_BN")
    tr32(1)
    I(f"s_sub_u32 s{sR}, s{sR}, 64")
    I(f"s_add_u32 s{sA}, s{sA}, 1024")
    I(f"s_mov_b32 s{sL}, s{sR}")
    prep_block()
    moves_loads()
    I("s_waitcnt lgkmcnt(0)")
    macs()
    I("s_branch L3_A")
    for hf, nm in ((0, "AN"), (1, "BN")):
        e.label(f"L3_{nm}")
        I(f"s_cmp_le_u32 s{sCR}, 16")
        I(f"s_cbranch_scc1 L3_{nm}16")
        tr32(hf)
        I("s_branch L3_XN")
        e.label(f"L3_{nm}16")
        tr16(hf)
        if hf == 0: I("s_branch L3_XN")
    e.label("L3_XN")
    I(f"s_mov_b32 s{sCN}, s{sN}")
    I(f"s_mov_b32 s{sCH}, s{sH}")
    I(f"s_mov_b32 s{sNV}, 1")
    setup_item("L3_XN_none")
    I(f"s_mov_b32 s{sL}, s{sR}")
    prep_block()
    I("s_branch L3_XN_go")
    e.label("L3_XN_none")
    I(f"s_mov_b32 s{sNV}, 0")
    I(f"s_mov_b32 s{sL}, 0")
    e.label("L3_XN_go")
    I(f"s_cmp_le_u32 s{sCR}, 16")
    I("s_cbranch_scc1 L3_XN_k16")
    moves_loads()
    I("s_waitcnt lgkmcnt(0)")
    macs()
    I("s_branch L3_XN_epi")
    e.label("L3_XN_k16")
    I("s_waitcnt vmcnt(0)")
    moves(0, True); moves(1, True)
    I(f"s_cmp_le_u32 s{sL}, 28")
    I("s_cbranch_scc1 L3_XN_k16p")
    for i in range(8): ld(i)
    I("s_branch L3_XN_k16d")
    e.label("L3_XN_k16p")
    loads_partial("L3_XN_k16d")
    e.label("L3_XN_k16d")
    I("s_waitcnt lgkmcnt(0)")
    macs(True)
    e.label("L3_XN_epi")
    I(f"s_lshl_b32 s42, s{sCH}, 5")
    I(f"v_add_u32 v{VT0}, s42, v{VWR}")
    for q in range(8):
        I(f"ds_read_b128 v[{B+4*q}:{B+4*q+3}], v{VT0} offset:{q*1024}")
    I(f"s_lshr_b32 s43, s{sCN}, 4")
    I(f"s_lshl_b32 s43, s43, 2")
    I(f"s_cmp_eq_u32 s{sCH}, 0")
    I("s_cbranch_scc1 L3_nowar")
    I(f"v_mov_b32 v{VT1}, s43")
    spin(e, "war", VT0, VT1, GDONE, 4, 45, 44)
    I("s_add_u32 s43, s43, 16")
    e.label("L3_nowar")
    I(f"s_and_b32 s44, s{sCN}, 15")
    I("s_lshl_b32 s44, s44, 4")
    I(f"s_lshl_b32 s45, s{sCN}, 10")
    I(f"s_add_u32 s45, s45, {T}")
    I(f"v_xor_b32 v{VT0}, s44, v{VL16}")
    I(f"v_add_u32 v{VT0}, s45, v{VT0}")
    I(f"v_mov_b32 v{VT1}, s43")
    I("s_waitcnt lgkmcnt(0)")
    for q in range(8):
        I(f"v_mul_f32 v{B+4*q}, v{B+4*q}, v{ACC+4*q}")
    for d in range(1, 4):
        for q in range(8):
            I(f"v_fmac_f32 v{B+4*q}, v{B+4*q+d}, v{ACC+4*q+d}")
    for k in range(4):
        I(f"v_cvt_pk_bf16_f32 v{A+k}, v{B+8*k}, v{B+8*k+4}")
    I(f"ds_write_b128 v{VT0}, v[{A}:{A+3}]")
    I("s_mov_b64 exec, 1")
    I(f"ds_add_u32 v{VT1}, v{VONE} offset:{DONE}")
    I("s_mov_b64 exec, -1")
    zero_acc()
    if c.stamps:
        I("s_memrealtime s[90:91]")
        I("s_waitcnt lgkmcnt(0)")
        I("s_mov_b32 m0, s92")
        I(f"v_writelane_b32 v{STV}, s90, m0")
        I("s_add_u32 s92, s92, 1")
        I("s_min_u32 s92, s92, 23")
    I(f"s_cmp_lg_u32 s{sNV}, 0")
    I("s_cbranch_scc1 L3_A")

HEADER = """; equiformer tensor-product message passing, one persistent launch (one workgroup per CU):
"""

def gen_probe(e, c):
    kA, a0, a1, sA, oA, kB, b0, b1, sB, oB = c.probe.split(",")
    kernel_header(e, "eqprobe_kernel")
    I = e.I
    I("s_cmp_ge_u32 s2, 1")
    I("s_cbranch_scc1 LP_end")
    I("s_memrealtime s[20:21]")
    I("s_load_dwordx2 s[4:5], s[0:1], 88")
    I("s_waitcnt lgkmcnt(0)")
    srd(e, 8, 4, 32 << 20)
    I(f"v_min_u32 v1, {c.nwg-1}, v0")
    I("v_lshlrev_b32 v1, 11, v1")
    I("v_mov_b32 v10, 0"); I("v_mov_b32 v11, -1"); I("v_mov_b32 v12, 0")
    I("ds_write_b32 v10, v11 offset:0"); I("ds_write_b32 v10, v12 offset:4"); I("ds_write_b32 v10, v11 offset:8"); I("ds_write_b32 v10, v12 offset:12")
    I("s_waitcnt lgkmcnt(0)"); I("s_barrier")
    regs = []
    for (k, w0, w1, sl, off) in ((kA, a0, a1, sA, 0), (kB, b0, b1, sB, 8)):
        if k == "now":
            I(f"v_mov_b32 v{16+len(regs)}, s20"); regs.append(off); continue
        I(f"s_mov_b32 s12, {STAMPOFF}")
        for w in range(int(w0), int(w1)):
            I(f"buffer_load_dword v{16+len(regs)}, v1, s[8:11], s12 offen offset:{w*128 + int(sl)*4}")
            regs.append(off)
    I("s_waitcnt vmcnt(0)")
    for off, op in ((0, oA), (8, oB)):
        idx = [n for n, o in enumerate(regs) if o == off]
        for n in idx[1:]:
            I(f"v_{op}_u32 v{16+idx[0]}, v{16+idx[0]}, v{16+n}")
        I(f"ds_{op}_u32 v10, v{16+idx[0]} offset:{off + (0 if op == 'min' else 4)}")
    I("s_waitcnt lgkmcnt(0)"); I("s_barrier")
    I(f"ds_read_b32 v3, v10 offset:{0 if oA == 'min' else 4}")
    I(f"ds_read_b32 v4, v10 offset:{8 if oB == 'min' else 12}")
    I("s_waitcnt lgkmcnt(0)")
    I("v_sub_u32 v3, v3, v4")
    I("v_min_u32 v3, 0x2000, v3")
    I("v_readfirstlane_b32 s14, v3")
    I("s_memrealtime s[16:17]")
    I("s_mul_i32 s14, s14, 10")
    I("s_waitcnt lgkmcnt(0)")
    e.label("LP_spin")
    I("s_memrealtime s[18:19]")
    I("s_waitcnt lgkmcnt(0)")
    I("s_sub_u32 s18, s18, s16")
    I("s_cmp_lt_u32 s18, s14")
    I("s_cbranch_scc1 LP_spin")
    e.label("LP_end")
    I("s_endpgm")
    return "eqprobe_kernel", 64, 32

def generate(c):
    e = Emitter()
    e.raw('.amdgcn_target "amdgcn-amd-amdhsa--gfx950"')
    e.raw(".text")
    k = gen_main(e, c)
    head = HEADER + f"; @launch grid=({c.nwg},1,1) block=(1024,1,1) lds={c.lds}\n"
    tail = '.section .rodata,"a"\n.p2align 6\n' + kd(*k)
    if c.probe:
        kp = gen_probe(e, c)
        head = HEADER + f"; @launch kernel={KNAME} grid=({c.nwg},1,1) block=(1024,1,1) lds={c.lds}\n; @launch kernel=eqprobe_kernel grid=(1,1,1) block=(256,1,1) lds=64\n"
        tail += ".p2align 6\n" + kd(*kp)
    return head + e.text() + tail

if __name__ == "__main__":
    c = Cfg()
    out = sys.argv[1]
    for kv in sys.argv[2:]:
        k, v = kv.split("=", 1)
        old = getattr(c, k)
        setattr(c, k, type(old)(int(v)) if isinstance(old, (bool, int)) else v.replace("+", " "))
    open(out, "w").write(generate(c))
```

```python
import sys
from emit import Emitter

N, E = 12500, 800000
NODES, HN = 50, 25
NCH = 250
CSTRIDE = 70784
PAYOFF, TABOFF, KEYOFF = 0, 51200, 67584
KSTAGE = 51200
WSBYTES = NCH * CSTRIDE
KIN = 20
KNAME = "gather_scatter__tensor_product_equiv_equiformer__graph_kernel"
STAMPOFF = 24 << 20

class Cfg:
    nwg = 250
    st_flags = "sc1"
    ld_flags = "nt"
    rec_flags = "sc1"
    out_flags = ""
    pfx_lines = 64
    pfx0_lines = 96
    stamps = False
    cap = 1888
    x_noperm = 0
    x_noexp = 0
    x_nomfma = 0
    x_noload = 0
    x_samehalf = 0
    x_nobload = 0
    codepf = 26
    tlbpf = 0
    codeearly = 0
    sleep = 12
    psleep = 2
    probe = ""
    addtid = 0
    split = 0
    static1 = 1
    wideout = 1
    out_early = None
    paypos = 2
    pfwait = 0
    smf = 0
    zpk = 1
    splitw = 0
    cpfwg = 32
    wlate = 0
    coal = 1
    pf1_tile = -1
    pf1_lines = 256
    prio_g = 0
    prio_m = 0
    ld2_flags = None
    nowait = 1
    fastlast = 1
    pfx2_lines = 0
    pfx2_pos = 0
    oobtail = 1
    bearly = 1
    tidw3 = "0x00800000"

def srd(e, d, b, nbytes, w1=None, w3="0x20000"):
    e.I(f"s_mov_b32 s{d}, s{b}")
    if w1: e.I(f"s_or_b32 s{d+1}, s{b+1}, {w1}")
    else: e.I(f"s_mov_b32 s{d+1}, s{b+1}")
    e.I(f"s_mov_b32 s{d+2}, {nbytes}")
    e.I(f"s_mov_b32 s{d+3}, {w3}")

def scan64(e, v):
    for sh in (1, 2, 4, 8):
        e.I(f"v_add_u32_dpp v{v}, v{v}, v{v} row_shr:{sh} row_mask:0xf bank_mask:0xf")
    e.I(f"v_add_u32_dpp v{v}, v{v}, v{v} row_bcast:15 row_mask:0xa bank_mask:0xf")
    e.I(f"v_add_u32_dpp v{v}, v{v}, v{v} row_bcast:31 row_mask:0xc bank_mask:0xf")

def prefetch_x(e, nlines, vt, vtid, nthreads, slice_s, half, srdx, first=0, lds=False):
    if nlines <= 0: return 0
    e.I(f"s_mul_i32 s46, s{slice_s}, 782")
    if first: e.I(f"s_add_u32 s46, s46, {first}")
    e.I(f"s_mov_b32 s47, {nlines}")
    it = (nlines + nthreads - 1) // nthreads
    for k in range(it):
        e.I(f"v_add_u32 v{vt}, {k*nthreads}, v{vtid}")
        e.I(f"v_cmp_gt_u32 vcc, s47, v{vt}")
        e.I(f"v_add_u32 v{vt}, s46, v{vt}")
        e.I(f"v_and_b32 v{vt+1}, 1, v{vt}")
        e.I(f"v_lshrrev_b32 v{vt}, 1, v{vt}")
        e.I(f"v_lshlrev_b32 v{vt}, 9, v{vt}")
        e.I(f"v_lshl_add_u32 v{vt}, v{vt+1}, 7, v{vt}")
        e.I(f"v_cndmask_b32 v{vt}, 2.0, v{vt}, vcc")
        if lds:
            if half: e.I(f"v_add_u32 v{vt}, 256, v{vt}")
            e.I(f"buffer_load_dword v{vt}, s[{srdx}:{srdx+3}], 0 offen lds")
        else:
            e.I(f"buffer_load_dword v{vt+2}, v{vt}, s[{srdx}:{srdx+3}], 0 offen offset:{half*256}")
    return it

STV, TIDV = 127, 126
def stamp(e, c, slot, ins="s_memrealtime"):
    if not c.stamps: return
    e.I(f"{ins} s[90:91]")
    e.I("s_waitcnt lgkmcnt(0)")
    e.I(f"v_writelane_b32 v{STV}, s90, {slot}")

def stamp_store(e, c, vtmp):
    if not c.stamps: return
    e.I(f"v_lshrrev_b32 v{vtmp}, 6, v{TIDV}")
    e.I(f"s_lshl_b32 s90, s2, 4")
    e.I(f"v_add_u32 v{vtmp}, s90, v{vtmp}")
    e.I(f"v_lshlrev_b32 v{vtmp}, 7, v{vtmp}")
    e.I(f"v_and_b32 v{vtmp+1}, 63, v{TIDV}")
    e.I(f"v_lshl_add_u32 v{vtmp}, v{vtmp+1}, 2, v{vtmp}")
    e.I(f"v_cmp_gt_u32 vcc, 32, v{vtmp+1}")
    e.I(f"v_cndmask_b32 v{vtmp}, 2.0, v{vtmp}, vcc")
    e.I(f"s_mov_b32 s90, {STAMPOFF}")
    e.I(f"buffer_store_dword v{STV}, v{vtmp}, s[8:11], s90 offen")

def kernel_header(e, name):
    e.raw(f".globl {name}")
    e.raw(".p2align 8")
    e.raw(f".type {name},@function")
    e.raw(f"{name}:")
    e.hist = []

def kd(name, nv, ns):
    return f""".amdhsa_kernel {name}
  .amdhsa_next_free_vgpr {nv}
  .amdhsa_next_free_sgpr {ns}
  .amdhsa_accum_offset {(nv+3)//4*4}
  .amdhsa_group_segment_fixed_size 0
  .amdhsa_kernarg_size 96
  .amdhsa_user_sgpr_count 2
  .amdhsa_user_sgpr_kernarg_segment_ptr 1
  .amdhsa_system_sgpr_workgroup_id_x 1
  .amdhsa_float_denorm_mode_32 3
.end_amdhsa_kernel
"""

def path_of(jp, blk):
    if blk == 0: return (0, 0, 1) if jp == 0 else (2, jp, 1)
    k = blk - 1
    if jp == 0: return (3, 1 + k, 1)
    j = jp - 1
    if j == k: return (1, 0, 1)
    i = 3 - j - k
    return (4, 1 + i, 1 if k == (j + 1) % 3 else -1)

class Lay: pass

def spin(e, tag, vdst, vaddr, off, need, scnt, sval, sleep=None, bound="0x400000"):
    I = e.I
    I(f"s_mov_b32 s{scnt}, 0")
    e.label(f"L_sp{tag}")
    I(f"ds_read_b32 v{vdst}, v{vaddr} offset:{off}")
    I("s_waitcnt lgkmcnt(0)")
    I(f"v_readfirstlane_b32 s{sval}, v{vdst}")
    I(f"s_add_u32 s{scnt}, s{scnt}, 1")
    I(f"s_cmp_ge_u32 s{sval}, {need}")
    I(f"s_cbranch_scc1 L_sp{tag}_ok")
    if sleep: I(f"s_sleep {sleep}")
    I(f"s_cmp_lt_u32 s{scnt}, {bound}")
    I(f"s_cbranch_scc1 L_sp{tag}")
    e.label(f"L_sp{tag}_ok")

def tag_bad(e, dst, r, tmp, odd):
    I = e.I
    I(f"v_xor_b32 v{tmp}, s87, v{r}")
    I(f"v_xor_b32 v{dst}, s86, v{r+1}")
    I(f"v_lshrrev_b32 v{tmp}, 24, v{tmp}")
    I(f"v_or_b32 v{dst}, v{dst}, v{tmp}")
    I(f"v_xor_b32 v{tmp}, s3, v{r+3}")
    I(f"v_lshrrev_b32 v{tmp}, 12, v{tmp}")
    I(f"v_cndmask_b32 v{dst}, v{dst}, v{tmp}, {odd}")

def gen_main(e, c):
    L = Lay()
    CAP = c.cap
    NWG = c.nwg
    BOFF = CAP + 64
    HIST, HIST2, CUR2, CNT = 0, 256, 512, 768
    NEXT, DONE, GDONE, BSYNC, BREADY, TOTB = CNT, CNT + 16, CNT + 64, CNT + 96, CNT + 100, CNT + 104
    OUTW, OUTR = CNT + 112, CNT + 128
    HISTB, HIST2B, CUR2B, INFO, NONCE = 1024, 1280, 1536, 1792, 2048
    RAW = 2176
    T = (RAW + 2 * BOFF * 16 + 255) // 256 * 256
    WRAD = T + NODES * 1024
    SCR = WRAD + 16384
    H1 = WRAD
    TI = SCR
    CEB = RAW + BOFF * 16
    SSTR, PL1, OSC = 2368, (1040 if c.smf else 1056), 2080
    lds = max(SCR + 12 * SSTR, T + 64 * 1024)
    assert lds <= 163840 and 2 * BOFF >= 3200 + 64, lds
    c.lds = lds
    kernel_header(e, KNAME)
    I = e.I
    wsbytes = (32 << 20) if c.stamps else WSBYTES
    sf, rf, lf = c.st_flags, c.rec_flags, c.ld_flags
    ODD = "s[26:27]"
    I(f"s_cmp_ge_u32 s2, {NWG}")
    I("s_cbranch_scc1 L_end")
    if c.stamps:
        I(f"v_mov_b32 v{STV}, 0")
        I(f"v_mov_b32 v{TIDV}, v0")
    stamp(e, c, 0)
    stamp(e, c, 26, "s_memtime")
    I("s_load_dwordx8 s[32:39], s[0:1], 0")
    I("s_load_dwordx8 s[40:47], s[0:1], 32")
    if NWG > NCH:
        I(f"s_cmp_lt_u32 s2, {NCH}")
        I("s_cselect_b32 s51, 800, 0")
    else:
        I("s_movk_i32 s51, 800")
    if c.coal:
        I("s_mul_i32 s48, s2, 1600")
        I("v_add_u32 v3, s48, v0")
        I("v_cmp_gt_u32 vcc, s51, v0")
        I("v_lshlrev_b32 v28, 3, v3")
        I("v_lshlrev_b32 v30, 4, v3")
        I("v_mul_u32_u24 v3, 12, v3")
        I("v_add_u32 v29, 6400, v28")
        if c.paypos:
            I("v_add_u32 v31, 12800, v30")
            I("v_add_u32 v27, 9600, v3")
        I("s_and_saveexec_b64 s[26:27], vcc")
        I("s_cbranch_execz L1_noload")
        I("s_waitcnt lgkmcnt(0)")
        I(f"global_load_dwordx2 v[4:5], v28, s[40:41] {lf}")
        I(f"global_load_dwordx2 v[6:7], v29, s[40:41] {lf}")
        if not c.paypos:
            I("v_add_u32 v31, 12800, v30")
            I("v_add_u32 v27, 9600, v3")
        lds_ = [f"global_load_dwordx2 v[8:9], v28, s[38:39] {lf}", f"global_load_dwordx2 v[10:11], v29, s[38:39] {lf}",
                f"global_load_dwordx4 v[12:15], v30, s[36:37] {lf}", f"global_load_dwordx4 v[16:19], v31, s[36:37] {lf}",
                f"global_load_dwordx3 v[20:22], v3, s[34:35] {lf}", f"global_load_dwordx3 v[24:26], v27, s[34:35] {lf}"]
        def pay_loads():
            for k in ((0, 2, 4, 1, 3, 5) if c.splitw == 2 else range(6)): I(lds_[k])
        if c.paypos == 0: pay_loads()
    else:
        I("s_mul_i32 s48, s2, 800")
        I("v_add_u32 v3, s48, v0")
        I("v_cmp_gt_u32 vcc, s51, v0")
        I("v_lshlrev_b32 v26, 4, v3")
        I("v_lshlrev_b32 v27, 5, v3")
        I("v_mul_u32_u24 v3, 24, v3")
        I("s_and_saveexec_b64 s[26:27], vcc")
        I("s_cbranch_execz L1_noload")
        I("s_waitcnt lgkmcnt(0)")
        l2 = lf if c.ld2_flags is None else c.ld2_flags
        I(f"global_load_dwordx4 v[4:7], v26, s[40:41] {l2}")
        I(f"global_load_dwordx4 v[8:11], v26, s[38:39] {l2}")
        I(f"global_load_dwordx4 v[12:15], v27, s[36:37] {lf}")
        I(f"global_load_dwordx4 v[16:19], v27, s[36:37] offset:16 {lf}")
        I(f"global_load_dwordx4 v[20:23], v3, s[34:35] {lf}")
        I(f"global_load_dwordx2 v[24:25], v3, s[34:35] offset:16 {lf}")
    e.label("L1_noload")
    I("s_mov_b64 exec, -1")
    if c.paypos == 3:
        I(f"v_lshlrev_b32 v40, 1, v0")
        I(f"v_and_b32 v40, -4, v40")
        I(f"v_add_u32 v40, {H1}, v40")
        I("v_mov_b32 v41, 0")
        I("ds_write_b32 v40, v41")
        I("s_waitcnt lgkmcnt(0)")
        I("s_barrier")
        I("s_and_saveexec_b64 s[26:27], vcc")
        I("s_cbranch_execz L1_noload2")
        pay_loads()
        e.label("L1_noload2")
        I("s_mov_b64 exec, -1")
    if c.codepf and c.codeearly:
        I("s_getpc_b64 s[52:53]")
        I(f"s_mov_b32 s54, {c.codepf*1024}")
        I("s_mov_b32 s55, 0x20000")
        I("v_subrev_u32 v72, 768, v0")
        I("v_lshlrev_b32 v72, 7, v72")
        I("s_cmp_lg_u64 vcc, -1")
        I("s_cbranch_scc0 L1_nocpf")
        I("buffer_load_dword v73, v72, s[52:55], 0 offen")
        e.label("L1_nocpf")
    I("s_load_dwordx4 s[80:83], s[0:1], 72")
    I("s_load_dwordx2 s[84:85], s[0:1], 88")
    I("v_lshlrev_b32 v1, 4, v0")
    I("v_lshlrev_b32 v2, 5, v0")
    I("v_readfirstlane_b32 s21, v0")
    I("s_lshr_b32 s21, s21, 6")
    I("s_waitcnt lgkmcnt(0)")
    if c.addtid:
        srd(e, 4, 32, N * 512, w1=f"{16 << 16}", w3=c.tidw3)
    else:
        srd(e, 4, 32, N * 512)
    srd(e, 8, 84, wsbytes)
    srd(e, 12, 80, N * 512)
    srd(e, 16, 42, 2560)
    srd(e, 68, 44, 16384)
    srd(e, 72, 46, 24576)
    srd(e, 76, 82, 256)
    I("s_and_b32 s20, s2, 7")
    I("s_lshr_b32 s31, s2, 3")
    if NWG == 250:
        I("s_min_u32 s22, s20, 2")
        I("s_mul_i32 s20, s20, 31")
        I("s_add_u32 s20, s20, s22")
    else:
        I("s_lshl_b32 s20, s20, 5")
    I("s_add_u32 s20, s20, s31")
    I("s_mov_b32 s22, 0")
    I(f"s_movk_i32 s23, {NCH}")
    I("s_mov_b32 s24, 1")
    I("s_mov_b32 s26, 0xaaaaaaaa")
    I("s_mov_b32 s27, 0xaaaaaaaa")
    I("s_mov_b32 s28, 0x05040100")
    I("s_mov_b32 s29, 0x07060302")
    I("s_mov_b32 s30, 0xffff0000")
    I(f"s_mul_i32 s51, s2, {CSTRIDE}")
    I("s_cmp_ge_u32 s21, 13")
    I("s_cbranch_scc1 L1_aux")
    if c.paypos == 1:
        I("s_mov_b64 exec, vcc")
        pay_loads()
        I("s_mov_b64 exec, -1")
    I(f"s_mov_b32 s46, {H1}")
    if c.paypos != 3:
        I("v_lshl_add_u32 v40, v0, 2, s46")
        I("v_mov_b32 v41, 0")
    I("v_mov_b32 v42, 1")
    I(f"s_movk_i32 s49, {RAW}")
    I("s_mov_b32 s50, 0x05040302")
    I(f"s_mov_b32 s45, {(TI + 8 - 8*H1) & 0xffffffff}")
    if NWG == 250:
        I("s_mov_b32 s48, -25")
        I("s_movk_i32 s47, 249")
    else:
        I("s_movk_i32 s47, 6249")
        I("s_movk_i32 s48, -6250")
        I("s_mov_b32 s44, 1600210")
        I("v_mov_b32 v43, 65532")
    if c.paypos != 3:
        I("s_cmp_ge_u32 s21, 8")
        I("s_cbranch_scc1 L1_nz")
        I("ds_write_b32 v40, v41")
        I("s_waitcnt lgkmcnt(0)")
        e.label("L1_nz")
        I("s_barrier")
    I("s_and_b64 exec, exec, vcc")
    if c.paypos == 2: pay_loads()
    I(f"s_waitcnt vmcnt({6 if c.coal else 5})")
    stamp(e, c, 1)
    R4 = range(4)
    if NWG == 250:
        for i in R4: I(f"v_mul_u32_u24 v{44+i}, 0x147b, v{4+i}")
        for i in R4: I(f"v_lshrrev_b32 v{44+i}, 17, v{44+i}")
        for i in R4: I(f"v_cmp_lt_u32 s[{32+2*i}:{33+2*i}], s47, v{44+i}")
        for i in R4: I(f"v_cndmask_b32 v{36+i}, 0, 1, s[{32+2*i}:{33+2*i}]")
        for i in R4:
            I(f"v_sub_u32 v{48+i}, v{44+i}, v{36+i}")
            I(f"v_mad_u32_u24 v{44+i}, v{36+i}, 6, v{44+i}")
        for i in R4:
            I(f"v_mad_i32_i24 v{4+i}, v{48+i}, s48, v{4+i}")
            I(f"v_lshl_add_u32 v{44+i}, v{44+i}, 2, s46")
    else:
        for i in R4: I(f"v_cmp_lt_u32 s[{32+2*i}:{33+2*i}], s47, v{4+i}")
        for i in R4: I(f"v_cndmask_b32 v{36+i}, 0, 1, s[{32+2*i}:{33+2*i}]")
        for i in R4: I(f"v_mad_i32_i24 v{4+i}, v{36+i}, s48, v{4+i}")
        for i in R4: I(f"v_mul_u32_u24 v{44+i}, 0xa7c, v{4+i}")
        for i in R4: I(f"v_lshrrev_b32 v{44+i}, 16, v{44+i}")
        for i in R4: I(f"v_mad_u32_u24 v{48+i}, v{44+i}, s44, v43")
        for i in R4:
            I(f"v_lshrrev_b32 v{48+i}, 16, v{48+i}")
            I(f"v_mad_u32_u24 v{4+i}, v{36+i}, 25, v{4+i}")
        for i in R4:
            I(f"v_sub_u32 v{4+i}, v{4+i}, v{48+i}")
            I(f"v_lshl_add_u32 v{44+i}, v{36+i}, 8, v{44+i}")
        for i in R4: I(f"v_lshl_add_u32 v{44+i}, v{44+i}, 2, s46")
    for i in R4: I(f"ds_add_rtn_u32 v{36+i}, v{44+i}, v42")
    for i in R4: I(f"v_lshl_add_u32 v{48+i}, v{44+i}, 3, s45")
    for i in R4: I(f"v_lshlrev_b32 v{4+i}, 2, v{4+i}")
    I("s_waitcnt lgkmcnt(0)")
    I("s_barrier")
    for i in R4: I(f"v_min_u32 v{28+i}, {KIN}, v{36+i}")
    for i in R4: I(f"v_add_u32 v{48+i}, v{48+i}, v{28+i}")
    I("s_cmp_eq_u32 s21, 0")
    I("s_cbranch_scc1 L1_scan")
    for i in R4: I(f"ds_write_b8 v{48+i}, v{4+i}")
    I("s_branch L1_noscan")
    e.label("L1_scan")
    I("v_add_u32 v60, s46, v2")
    I("ds_read_b128 v[52:55], v60")
    I("ds_read_b128 v[56:59], v60 offset:16")
    I("s_waitcnt lgkmcnt(0)")
    I("v_mov_b32 v64, 0")
    I("v_mov_b32 v65, v52")
    for k in range(2, 8):
        I(f"v_add_u32 v{64+k}, v{63+k}, v{51+k}")
    I("v_add_u32 v61, v71, v59")
    I("v_max3_u32 v63, v52, v53, v54")
    I("v_max3_u32 v63, v63, v55, v56")
    I("v_max3_u32 v63, v63, v57, v58")
    I("v_max_u32 v63, v63, v59")
    I(f"v_cmp_lt_u32 s[42:43], {KIN}, v63")
    I("v_mov_b32 v62, v61")
    scan64(e, 62)
    I("v_sub_u32 v62, v62, v61")
    for k in range(8):
        I(f"v_add_u32 v{64+k}, v{64+k}, v62")
    I("ds_write_b128 v60, v[64:67] offset:2048")
    I("ds_write_b128 v60, v[68:71] offset:2064")
    I("s_cmp_lg_u64 s[42:43], 0")
    I("s_cselect_b32 s42, 1, 0")
    I("v_mov_b32 v63, s42")
    I(f"ds_write_b32 v41, v63 offset:{NONCE+8}")
    for i in R4: I(f"ds_write_b8 v{48+i}, v{4+i}")
    I("s_waitcnt lgkmcnt(4)")
    e.label("L1_noscan")
    I("s_barrier")
    stamp(e, c, 8)
    for i in R4: I(f"ds_read_b32 v{44+i}, v{44+i} offset:2048")
    I(f"ds_read_b32 v28, v41 offset:{NONCE+8}")
    I("s_waitcnt lgkmcnt(0)")
    I("v_readfirstlane_b32 s42, v28")
    for i in R4:
        I(f"v_add_u32 v{36+i}, v{36+i}, v{44+i}")
        I(f"v_lshl_add_u32 v{44+i}, v{36+i}, 4, s49")
    I("s_cmp_eq_u32 s42, 0")
    I("s_cbranch_scc1 L1_nokeys")
    for i in R4:
        I(f"ds_write_b8 v{36+i}, v{4+i} offset:{RAW+KSTAGE}")
    e.label("L1_nokeys")
    if not c.splitw:
        r3 = 24 if c.coal else 23
        if c.stamps: I("s_waitcnt vmcnt(0)")
        stamp(e, c, 31)
        I("s_waitcnt vmcnt(1)")
        I("v_mov_b32 v28, v20")
        I("v_perm_b32 v29, v8, v21, s28")
        I("ds_write2_b64 v44, v[12:13], v[28:29] offset0:0 offset1:1")
        I("v_alignbit_b32 v30, v22, v21, 16")
        I("v_perm_b32 v31, v9, v22, s50")
        I("ds_write2_b64 v45, v[14:15], v[30:31] offset0:0 offset1:1")
        I("s_waitcnt vmcnt(0)")
        stamp(e, c, 2)
        I(f"v_mov_b32 v32, v{r3}")
        I(f"v_perm_b32 v33, v10, v{r3+1}, s28")
        I("ds_write2_b64 v46, v[16:17], v[32:33] offset0:0 offset1:1")
        I(f"v_alignbit_b32 v34, v{r3+2}, v{r3+1}, 16")
        I(f"v_perm_b32 v35, v11, v{r3+2}, s50")
        I("ds_write2_b64 v47, v[18:19], v[34:35] offset0:0 offset1:1")
    elif c.splitw == 2:
        I("s_waitcnt vmcnt(3)")
        I("v_mov_b32 v28, v12"); I("v_mov_b32 v29, v13"); I("v_mov_b32 v30, v20")
        I("v_perm_b32 v31, v8, v21, s28")
        I("ds_write_b128 v44, v[28:31]")
        I("v_mov_b32 v12, v14"); I("v_mov_b32 v13, v15")
        I("v_alignbit_b32 v14, v22, v21, 16")
        I("v_perm_b32 v15, v9, v22, s50")
        I("ds_write_b128 v45, v[12:15]")
        I("s_waitcnt vmcnt(0)")
        stamp(e, c, 2)
        I("v_mov_b32 v32, v16"); I("v_mov_b32 v33, v17"); I("v_mov_b32 v34, v24")
        I("v_perm_b32 v35, v10, v25, s28")
        I("ds_write_b128 v46, v[32:35]")
        I("v_mov_b32 v16, v18"); I("v_mov_b32 v17, v19")
        I("v_alignbit_b32 v18, v26, v25, 16")
        I("v_perm_b32 v19, v11, v26, s50")
        I("ds_write_b128 v47, v[16:19]")
    else:
        I("s_waitcnt vmcnt(2)")
        for i in R4:
            I(f"ds_write_b64 v{44+i}, v[{12+2*i}:{13+2*i}]")
        I("s_waitcnt vmcnt(1)")
        I("v_mov_b32 v28, v20")
        I("v_perm_b32 v29, v8, v21, s28")
        I("ds_write_b64 v44, v[28:29] offset:8")
        I("v_alignbit_b32 v30, v22, v21, 16")
        I("v_perm_b32 v31, v9, v22, s50")
        I("ds_write_b64 v45, v[30:31] offset:8")
        I("s_waitcnt vmcnt(0)")
        stamp(e, c, 2)
        r3 = 24 if c.coal else 23
        I(f"v_mov_b32 v32, v{r3}")
        I(f"v_perm_b32 v33, v10, v{r3+1}, s28")
        I("ds_write_b64 v46, v[32:33] offset:8")
        I(f"v_alignbit_b32 v34, v{r3+2}, v{r3+1}, 16")
        I(f"v_perm_b32 v35, v11, v{r3+2}, s50")
        I("ds_write_b64 v47, v[34:35] offset:8")
    I("s_mov_b64 exec, -1")
    I("s_waitcnt lgkmcnt(0)")
    I("s_branch L1_copy")
    e.label("L1_aux")
    I("v_subrev_u32 v64, 832, v0")
    I("v_lshlrev_b32 v65, 4, v64")
    prefetch_x(e, c.pfx0_lines, 60, 64, 192, 31, 0, 4)
    if c.tlbpf:
        I("v_and_b32 v74, 63, v0")
        I(f"s_mov_b32 s42, {WSBYTES // 64 // 128 * 128}")
        I("v_mul_u32_u24 v75, s42, v74")
        I(f"s_mov_b32 s42, {N * 512 // 64 // 128 * 128}")
        I("v_mul_u32_u24 v74, s42, v74")
        I("s_cmp_lg_u32 s21, 14")
        I("s_cbranch_scc1 L1_notlb")
        if c.tlbpf & 1: I("buffer_load_dword v76, v75, s[8:11], 0 offen")
        if c.tlbpf & 2: I("buffer_load_dword v77, v74, s[4:7], 0 offen")
        if c.tlbpf & 4: I("buffer_load_dword v78, v74, s[12:15], 0 offen")
        e.label("L1_notlb")
    if c.codepf and not c.codeearly:
        I(f"s_cmp_ge_u32 s2, {c.cpfwg}")
        I("s_cbranch_scc1 L1_nocpf")
        I("s_getpc_b64 s[40:41]")
        e.label("L_cpf")
        I("s_mov_b32 s42, L_codeend-L_cpf")
        I("s_mov_b32 s43, 0x20000")
        I("v_lshlrev_b32 v72, 7, v64")
        I("buffer_load_dword v73, v72, s[40:43], 0 offen")
        e.label("L1_nocpf")
    I("s_cmp_lg_u32 s21, 15")
    I("s_cbranch_scc1 L1_notag")
    I("s_cmp_lg_u32 s2, 0")
    I("s_cbranch_scc1 L1_notag")
    I("s_memrealtime s[44:45]")
    I("s_waitcnt lgkmcnt(0)")
    I("s_and_b32 s45, s45, 0x7f")
    I("s_or_b32 s45, s45, 0x80")
    I("s_lshl_b32 s45, s45, 24")
    I("v_mov_b32 v68, s44")
    I("v_mov_b32 v69, s45")
    I("s_mov_b64 exec, 1")
    I("buffer_store_dwordx2 v[68:69], off, s[76:79], 0 sc1")
    I("s_mov_b64 exec, -1")
    e.label("L1_notag")
    I("s_cmp_lg_u32 s21, 13")
    I("s_cbranch_scc1 L1_nozero")
    for k in range(4): I(f"v_mov_b32 v{4+k}, 0")
    I("ds_write_b128 v65, v[4:7]")
    I("ds_write_b128 v65, v[4:7] offset:1024")
    e.label("L1_nozero")
    if c.paypos != 3: I("s_barrier")
    I("s_barrier"); I("s_barrier")
    I("s_cmp_lg_u32 s21, 15")
    I("s_cbranch_scc1 L1_notag2")
    I("s_mov_b32 s44, 0")
    e.label("L1_tagpoll")
    I("buffer_load_dwordx2 v[68:69], off, s[76:79], 0 sc1")
    I("s_add_u32 s44, s44, 1")
    I("s_waitcnt vmcnt(0)")
    I("v_readfirstlane_b32 s45, v69")
    e.nop(1)
    I("s_cmp_lg_u32 s45, 0")
    I("s_cbranch_scc1 L1_tagok")
    I("s_cmp_lt_u32 s44, 0x100000")
    I("s_cbranch_scc1 L1_tagpoll")
    e.label("L1_tagok")
    I("v_mov_b32 v70, 0")
    I("s_mov_b64 exec, 1")
    I(f"ds_write_b64 v70, v[68:69] offset:{NONCE}")
    I("s_mov_b64 exec, -1")
    e.label("L1_notag2")
    def w_loads():
        for k in range(8):
            I(f"s_movk_i32 s46, {k*3072}")
            I(f"buffer_load_dwordx4 v[{28+4*k}:{31+4*k}], v65, s[72:75], s46 offen")
        for k in range(6):
            I(f"s_movk_i32 s46, {k*3072}")
            I(f"buffer_load_dwordx4 v[{72+4*k}:{75+4*k}], v65, s[68:71], s46 offen")
    if not c.wlate: w_loads()
    if c.pfwait: I("s_waitcnt vmcnt(0)")
    prefetch_x(e, c.pfx_lines, 60, 64, 192, 31, 0, 4, c.pfx0_lines)
    I("s_waitcnt lgkmcnt(0)")
    e.flush()
    e.label("L1_copy")
    I("s_barrier")
    stamp(e, c, 3)
    I(f"v_mov_b32 v25, {H1+2048+1024}")
    I("ds_read_b32 v99, v25")
    I(f"ds_read_b128 v[8:11], v1 offset:{RAW}")
    I(f"ds_read_b128 v[12:15], v1 offset:{RAW+16384}")
    I("v_mov_b32 v25, 0")
    I(f"ds_read_b96 v[96:98], v25 offset:{NONCE}")
    I(f"v_add_u32 v25, {TI}, v1")
    I(f"ds_read_b128 v[16:19], v1 offset:{RAW+32768}")
    I(f"ds_read_b128 v[20:23], v1 offset:{RAW+49152}")
    I("ds_read_b128 v[100:103], v25")
    I("v_lshrrev_b32 v25, 1, v0")
    I("v_lshlrev_b32 v25, 2, v25")
    I(f"v_add_u32 v25, {H1}, v25")
    I("ds_read2st64_b32 v[104:105], v25 offset0:0 offset1:8")
    I("ds_read_b32 v106, v25 offset:1024")
    I("v_add_u32 v2, 16384, v1")
    I("v_add_u32 v25, 1024, v0")
    I("s_waitcnt lgkmcnt(8)")
    I("v_add_u32 v99, 7, v99")
    I("v_and_b32 v99, -8, v99")
    I("v_cmp_lt_u32 s[52:53], v0, v99")
    I("v_cmp_lt_u32 s[54:55], v25, v99")
    I("v_readfirstlane_b32 s88, v99")
    I("v_add_u32 v3, 32768, v1")
    I("v_add_u32 v24, 49152, v1")
    I("s_mov_b64 exec, s[52:53]")
    I("s_waitcnt lgkmcnt(7)")
    I(f"buffer_store_dwordx4 v[8:11], v1, s[8:11], s51 offen {sf}")
    I("s_mov_b64 exec, s[54:55]")
    I("s_cbranch_execz L1_nop1")
    I("s_waitcnt lgkmcnt(6)")
    I(f"buffer_store_dwordx4 v[12:15], v2, s[8:11], s51 offen {sf}")
    e.label("L1_nop1")
    I("s_mov_b64 exec, -1")
    I("s_movk_i32 s48, 128")
    I("v_cmp_gt_u32 s[92:93], s48, v0")
    I("s_waitcnt lgkmcnt(0)")
    I("v_readfirstlane_b32 s86, v96")
    I("v_readfirstlane_b32 s87, v97")
    I("v_readfirstlane_b32 s42, v98")
    I("v_lshl_or_b32 v104, v104, 12, v105")
    I("v_or_b32 v97, v97, v104")
    I(f"v_cndmask_b32 v100, v97, v100, {ODD}")
    I(f"v_cndmask_b32 v101, v96, v101, {ODD}")
    I("v_lshl_or_b32 v106, v96, 12, v106")
    I(f"v_cndmask_b32 v103, v103, v106, {ODD}")
    I("s_lshl_b32 s3, s86, 12")
    I(f"s_add_u32 s49, s51, {TABOFF}")
    I("s_cmp_gt_u32 s88, 2048")
    I("s_cselect_b32 s25, 0, 8")
    I("s_cmp_eq_u32 s42, 0")
    I("s_cbranch_scc1 L1_nokeyst")
    I(f"s_add_u32 s42, s51, {KEYOFF-KSTAGE}")
    I("v_subrev_u32 v25, 128, v0")
    I("s_movk_i32 s43, 200")
    I("v_cmp_gt_u32 vcc, s43, v25")
    I("s_and_saveexec_b64 s[44:45], vcc")
    I("s_cbranch_execz L1_nokeyst2")
    I(f"buffer_store_dwordx4 v[20:23], v24, s[8:11], s42 offen {sf}")
    e.label("L1_nokeyst2")
    I("s_mov_b64 exec, -1")
    e.label("L1_nokeyst")
    stamp(e, c, 4)
    def handoff(tag, mid):
        I("s_waitcnt vmcnt(0)")
        stamp(e, c, 6)
        I("s_barrier")
        I("s_cmp_ge_u32 s21, s25")
        I(f"s_cbranch_scc1 L_noearly{tag}")
        I(f"buffer_store_dwordx4 v[100:103], v1, s[8:11], s49 offen {sf}")
        e.label(f"L_noearly{tag}")
        I(f"buffer_store_dwordx4 v[16:19], v3, s[8:11], s51 offen {sf}")
        for k, (m, neg, regs, va) in enumerate((("s[54:55]", 1, "v[12:15]", "v2"), ("s[92:93]", 0, "v[20:23]", "v24"), ("s[52:53]", 1, "v[8:11]", "v1"))):
            I(f"s_not_b64 exec, {m}" if neg else f"s_mov_b64 exec, {m}")
            I(f"s_cbranch_execz L_stskip{tag}{k}")
            I(f"buffer_store_dwordx4 {regs}, {va}, s[8:11], s51 offen {sf}")
            e.label(f"L_stskip{tag}{k}")
        I("s_mov_b64 exec, -1")
        mid()
        I("s_waitcnt vmcnt(0) lgkmcnt(0)")
        stamp(e, c, 5)
        I("s_barrier")
        I("s_cmp_lt_u32 s21, s25")
        I(f"s_cbranch_scc1 L_nolate{tag}")
        I(f"buffer_store_dwordx4 v[100:103], v1, s[8:11], s49 offen {sf}")
        e.label(f"L_nolate{tag}")
    I("s_cmp_lt_u32 s21, 4")
    e.branch("s_cbranch_scc1 L2_gemm")

    if c.wlate:
        I("s_cmp_lt_u32 s21, 13")
        I("s_cbranch_scc1 L2_noWl")
        w_loads()
        e.label("L2_noWl")
    VLANE, VINFO, VNEXT = 108, 109, 110
    VLOFF, VMASK, VOW, VOR, VSCRW, VTRA, VWR, VL16 = 111, 112, 113, 114, 115, 116, 117, 118
    VT0, VT1, VONE, VSEL = 119, 120, 121, 122
    VJ, VCH, VSEG = 123, 124, 125
    I(f"v_and_b32 v{VLANE}, 63, v0")
    I(f"v_mov_b32 v{VONE}, 1")
    I(f"v_mov_b32 v{VMASK}, s30")
    I(f"v_lshrrev_b32 v{VT1}, 4, v{VLANE}")
    I(f"v_lshlrev_b32 v{VL16}, 4, v{VLANE}")
    if c.addtid:
        I(f"v_and_b32 v{VT0}, 3, v{VLANE}")
        I(f"v_lshlrev_b32 v{VLOFF}, 4, v{VT0}")
    else:
        I(f"v_and_b32 v{VT0}, 15, v{VLANE}")
        I(f"v_lshlrev_b32 v{VLOFF}, 4, v{VT0}")
    I("s_sub_u32 s43, s21, 4")
    I(f"s_mul_i32 s43, s43, {SSTR}")
    I(f"s_add_u32 s43, s43, {SCR}")
    I(f"v_add_u32 v{VSCRW}, s43, v{VL16}")
    I(f"v_lshlrev_b32 v{VOR}, 5, v{VT1}")
    I(f"v_add_u32 v{VOR}, s43, v{VOR}")
    I(f"v_lshlrev_b32 v{VTRA}, 4, v{VT1}")
    I(f"v_bfe_u32 v{VT1}, v{VLANE}, 2, 2")
    I(f"v_lshl_add_u32 v{VTRA}, v{VT1}, 6, v{VTRA}")
    I(f"v_and_b32 v{VT1}, 1, v{VLANE}")
    I(f"v_lshl_add_u32 v{VTRA}, v{VT1}, 3, v{VTRA}")
    I(f"v_bfe_u32 v{VT1}, v{VLANE}, 1, 1")
    I(f"v_mul_u32_u24 v{VT1}, {PL1}, v{VT1}")
    I(f"v_add3_u32 v{VTRA}, v{VTRA}, v{VT1}, s43")
    I(f"v_and_b32 v{VOW}, 32, v{VLANE}")
    I(f"v_and_b32 v{VT1}, 3, v{VLANE}")
    I(f"v_lshl_add_u32 v{VOW}, v{VT1}, 3, v{VOW}")
    I(f"v_bfe_u32 v{VT1}, v{VLANE}, 2, 3")
    I(f"v_add_u32 v{VOW}, v{VOW}, v{VT1}")
    I(f"v_lshlrev_b32 v{VOW}, 2, v{VOW}")
    I(f"v_add_u32 v{VOW}, s43, v{VOW}")
    I(f"v_add_u32 v{VWR}, {WRAD}, v{VL16}")
    I("s_sub_u32 s42, s21, 4")
    I("s_mul_i32 s83, s42, 24")
    I(f"v_and_b32 v{VJ}, 7, v{VLANE}")
    I(f"v_lshrrev_b32 v{VSEG}, 3, v{VLANE}")
    I(f"s_mov_b32 s42, {CSTRIDE}")
    I(f"v_mul_u32_u24 v{VCH}, s42, v{VSEG}")
    I(f"v_lshlrev_b32 v{VSEG}, 5, v{VSEG}")
    I(f"v_add_u32 v{VSEG}, s43, v{VSEG}")
    I(f"v_or_b32 v{VSEL}, 0x0c0c0c00, v{VJ}")
    NP, NW = 3, 3
    I(f"s_mul_i32 s79, s83, {CSTRIDE}")
    for p in range(NP):
        I(f"s_add_u32 s{74+p}, s79, {8*p*CSTRIDE+PAYOFF}")
        I(f"s_add_u32 s{80+p}, s79, {8*p*CSTRIDE+KEYOFF}")
    I("s_mov_b32 s78, 0x100000")
    I("s_mov_b32 s88, s20")
    I("s_mov_b32 s89, 0")
    I(f"s_movk_i32 s48, {HN}")
    def w_stage():
        I("s_cmp_lt_u32 s21, 13")
        I("s_cbranch_scc1 L2_noW")
        I(f"v_add_u32 v65, {T}, v65")
        for k in range(8):
            I(f"ds_write_b128 v65, v[{28+4*k}:{31+4*k}] offset:{16384 + k*3072}")
        for k in range(5):
            I(f"ds_write_b128 v65, v[{72+4*k}:{75+4*k}] offset:{k*3072}")
        I("s_cmp_lg_u32 s21, 13")
        I("s_cbranch_scc1 L2_noW")
        I(f"ds_write_b128 v65, v[92:95] offset:{5*3072}")
        e.label("L2_noW")
    handoff("g", w_stage)
    PAY, KEY, RNK, CNTR, KAD, PAD, X, EN = 0, 36, 45, 54, 57, 60, 64, 72
    MSK = 50
    e.label("L2_g_round")
    I(f"v_and_b32 v{VJ}, 7, v{VLANE}")
    I(f"v_or_b32 v{VSEL}, 0x0c0c0c00, v{VJ}")
    I(f"v_lshrrev_b32 v{X}, 1, v{VLANE}")
    I(f"s_sub_u32 s42, {NCH}, s83")
    I("s_min_i32 s42, s42, 24")
    I(f"v_cmp_gt_i32 s[46:47], s42, v{X}")
    I(f"s_mov_b32 s42, {CSTRIDE}")
    I(f"v_mul_u32_u24 v{X+1}, s42, v{X}")
    I(f"v_and_b32 v{X+2}, 16, v{VL16}")
    I(f"v_add_u32 v{X+1}, v{X+1}, v{X+2}")
    I(f"v_cndmask_b32 v{X+1}, 2.0, v{X+1}, s[46:47]")
    I("s_lshl_b32 s43, s88, 5")
    I(f"s_add_u32 s43, s43, {TABOFF}")
    I("s_add_u32 s43, s43, s79")
    I("s_mov_b32 s44, 0")
    I(f"v_lshl_add_u32 v{VT1}, v{VJ}, 4, v{VCH}")
    e.label("L2_poll")
    I(f"buffer_load_dwordx4 v[{EN}:{EN+3}], v{X+1}, s[8:11], s43 offen sc1")
    I("s_add_u32 s44, s44, 1")
    I("s_waitcnt vmcnt(0)")
    tag_bad(e, X+2, EN, X+3, ODD)
    I(f"v_cmp_ne_u32 vcc, 0, v{X+2}")
    e.nop(2)
    I("s_and_b64 vcc, vcc, s[46:47]")
    I("s_cbranch_scc0 L2_poll_ok")
    I(f"s_sleep {c.psleep}")
    I("s_cmp_lt_u32 s44, s78")
    I("s_cbranch_scc1 L2_poll")
    I("s_mov_b32 s78, 0")
    e.label("L2_poll_ok")
    I("s_cmp_lg_u32 s23, 1")
    I("s_cbranch_scc1 L2_nofilter")
    I("s_sub_u32 s42, s22, s83")
    I(f"v_cmp_eq_u32 vcc, s42, v{X}")
    I(f"v_cndmask_b32 v{EN}, 0, v{EN}, vcc")
    e.label("L2_nofilter")
    I(f"ds_write_b128 v{VSCRW}, v[{EN}:{EN+3}]")
    I(f"v_add_u32 v{X+1}, 8, v{VJ}")
    stamp(e, c, 7)
    def msk(p, w): return f"s[{MSK+4*p+2*w}:{MSK+4*p+2*w+1}]" if w < 2 else f"s[{MSK+12+2*p}:{MSK+13+2*p}]"
    def pay(p, w): return f"v[{PAY+12*p+4*w}:{PAY+12*p+4*w+3}]"
    for p in range(NP):
        I(f"ds_read_b128 v[{EN+8*p}:{EN+8*p+3}], v{VSEG} offset:{256*p}")
        I(f"ds_read_b128 v[{EN+8*p+4}:{EN+8*p+7}], v{VSEG} offset:{256*p+16}")
    for p in range(NP):
        en, cnt = EN + 8*p, CNTR + p
        if p == 0: I("s_waitcnt lgkmcnt(0)")
        I(f"v_bfe_u32 v{cnt}, v{en}, 12, 12")
        I(f"v_and_b32 v{PAD+p}, 0xfff, v{en}")
        I(f"v_cmp_lt_u32 {msk(p,0)}, v{VJ}, v{cnt}")
        I(f"v_cmp_lt_u32 {msk(p,1)}, v{X+1}, v{cnt}")
        I(f"v_perm_b32 v{KEY+3*p}, v{en+3}, v{en+2}, v{VSEL}")
        I(f"v_perm_b32 v{KEY+3*p+1}, v{en+5}, v{en+4}, v{VSEL}")
        I(f"v_lshl_add_u32 v{PAD+p}, v{PAD+p}, 4, v{VT1}")
        for w in range(2):
            I(f"s_mov_b64 exec, {msk(p,w)}")
            I(f"s_cbranch_execz L2_nop{p}")
            I(f"ds_add_rtn_u32 v{RNK+3*p+w}, v{KEY+3*p+w}, v{VONE} offset:{HIST}")
            I(f"buffer_load_dwordx4 {pay(p,w)}, v{PAD+p}, s[8:11], s{74+p} offen offset:{128*w} {rf}")
        e.label(f"L2_nop{p}")
        I("s_mov_b64 exec, -1")
    I(f"v_max3_u32 v{VT0}, v{CNTR}, v{CNTR+1}, v{CNTR+2}")
    I(f"v_cmp_lt_u32 vcc, 16, v{VT0}")
    I("s_mov_b32 s25, 0")
    e.nop(1)
    I("s_cmp_eq_u64 vcc, 0")
    I("s_cbranch_scc1 L2_noextraA")
    I("s_mov_b32 s25, 1")
    I(f"v_add_u32 v{X+2}, 16, v{VJ}")
    for p in range(NP):
        en = EN + 8*p
        I(f"v_min_u32 v{X+3}, {KIN}, v{CNTR+p}")
        I(f"v_cmp_lt_u32 {msk(p,2)}, v{X+2}, v{X+3}")
        I(f"v_perm_b32 v{KEY+3*p+2}, v{en+6}, v{en+6}, v{VSEL}")
        I(f"v_sub_u32 v{KAD+p}, v{PAD+p}, v{VCH}")
        I(f"v_lshrrev_b32 v{KAD+p}, 4, v{KAD+p}")
        I(f"v_add_u32 v{KAD+p}, v{KAD+p}, v{VCH}")
        e.flush()
        I(f"s_mov_b64 exec, {msk(p,2)}")
        I(f"ds_add_rtn_u32 v{RNK+3*p+2}, v{KEY+3*p+2}, v{VONE} offset:{HIST}")
        I(f"buffer_load_dwordx4 {pay(p,2)}, v{PAD+p}, s[8:11], s{74+p} offen offset:256 {rf}")
        I("s_mov_b64 exec, -1")

    def extra_count(tag, first, vj, vkad, vcnt, skey, vone, hist, y):
        I(f"v_add_u32 v{y}, {first}, v{vj}")
        I(f"v_add_u32 v{y+1}, {first}, v{vkad}")
        e.label(f"L_xa{tag}")
        I(f"v_cmp_lt_u32 vcc, v{y}, v{vcnt}")
        I("s_and_saveexec_b64 s[44:45], vcc")
        e.branch(f"s_cbranch_execz L_xa{tag}_done")
        I(f"buffer_load_ubyte v{y+2}, v{y+1}, s[8:11], s{skey} offen {rf}")
        I("s_waitcnt vmcnt(0)")
        I(f"ds_add_u32 v{y+2}, v{vone} offset:{hist}")
        I("s_mov_b64 exec, -1")
        I(f"v_add_u32 v{y}, 8, v{y}")
        I(f"v_add_u32 v{y+1}, 8, v{y+1}")
        e.branch(f"s_branch L_xa{tag}")
        e.label(f"L_xa{tag}_done")
        I("s_mov_b64 exec, -1")
    def extra_move(tag, first, vj, vkad, vpad, vcnt, skey, spay, vone, cur, vbase, y, d):
        I(f"v_add_u32 v{y}, {first}, v{vj}")
        I(f"v_add_u32 v{y+1}, {first}, v{vkad}")
        I(f"v_add_u32 v{vpad}, {16*first}, v{vpad}")
        e.label(f"L_xb{tag}")
        I(f"v_cmp_lt_u32 vcc, v{y}, v{vcnt}")
        I("s_and_saveexec_b64 s[44:45], vcc")
        e.branch(f"s_cbranch_execz L_xb{tag}_done")
        I(f"buffer_load_ubyte v{y+2}, v{y+1}, s[8:11], s{skey} offen {rf}")
        I(f"buffer_load_dwordx4 v[{d}:{d+3}], v{vpad}, s[8:11], s{spay} offen {rf}")
        I("s_waitcnt vmcnt(0)")
        I(f"ds_add_rtn_u32 v{y+3}, v{y+2}, v{vone} offset:{cur}")
        I("s_mov_b64 exec, -1")
        I(f"ds_bpermute_b32 v{y+2}, v{y+2}, v{vbase}")
        I("s_waitcnt lgkmcnt(0)")
        I(f"v_add_lshl_u32 v{y+2}, v{y+2}, v{y+3}, 4")
        I("s_mov_b64 exec, vcc")
        I(f"ds_write_b128 v{y+2}, v[{d}:{d+3}] offset:{RAW}")
        I("s_mov_b64 exec, -1")
        I(f"v_add_u32 v{y}, 8, v{y}")
        I(f"v_add_u32 v{y+1}, 8, v{y+1}")
        I(f"v_add_u32 v{vpad}, 128, v{vpad}")
        e.branch(f"s_branch L_xb{tag}")
        e.label(f"L_xb{tag}_done")
        I("s_mov_b64 exec, -1")
    for p in range(NP):
        extra_count(f"a{p}", KIN, VJ, KAD+p, CNTR+p, 80+p, VONE, HIST2, X)
    e.label("L2_noextraA")
    I("s_waitcnt lgkmcnt(0)")
    stamp(e, c, 14)
    I("s_barrier")
    stamp(e, c, 15)
    C1, CT, BS = X + 4, X + 5, X + 6
    I(f"v_lshlrev_b32 v{VT0}, 2, v{VLANE}")
    I(f"ds_read_b32 v{C1}, v{VT0} offset:{HIST}")
    I(f"ds_read_b32 v{CT}, v{VT0} offset:{HIST2}")
    I("s_waitcnt lgkmcnt(0)")
    I(f"v_add_u32 v{CT}, v{C1}, v{CT}")
    I(f"v_mov_b32 v{BS}, v{CT}")
    scan64(e, BS)
    I(f"v_readlane_b32 s46, v{BS}, 63")
    I(f"v_sub_u32 v{BS}, v{BS}, v{CT}")
    I(f"s_cmp_eq_u32 s23, 1")
    I(f"s_cselect_b32 s42, -1, {CAP}")
    for p in range(NP):
        for w in range(2):
            I(f"ds_bpermute_b32 v{KEY+3*p+w}, v{KEY+3*p+w}, v{BS}")
    I(f"v_lshl_or_b32 v{VINFO}, v{CT}, 16, v{BS}")
    I(f"s_cmp_gt_u32 s46, s42")
    I("s_cbranch_scc1 L2_g_overflow")
    I("s_cmp_lg_u32 s21, 5")
    I("s_cbranch_scc1 L2_noinfo")
    I(f"s_mov_b64 exec, {(1 << HN) - 1}")
    I(f"ds_write_b32 v{VT0}, v{VINFO} offset:{INFO}")
    I("s_mov_b64 exec, -1")
    e.label("L2_noinfo")
    I("s_cmp_lg_u32 s21, 4")
    I("s_cbranch_scc1 L2_noguard")
    I("s_lshl_b32 s46, s46, 4")
    for k in range(4): I(f"v_mov_b32 v{EN+k}, 0")
    I(f"v_add_u32 v{VT0}, s46, v{VL16}")
    I(f"ds_write_b128 v{VT0}, v[{EN}:{EN+3}] offset:{RAW}")
    e.label("L2_noguard")
    I("s_waitcnt lgkmcnt(0)")
    for p in range(NP):
        for w in range(2):
            I(f"v_add_lshl_u32 v{KEY+3*p+w}, v{KEY+3*p+w}, v{RNK+3*p+w}, 4")
    stamp(e, c, 27)
    I("s_waitcnt vmcnt(0)")
    stamp(e, c, 9)
    for p in range(NP):
        for w in range(2):
            I(f"s_mov_b64 exec, {msk(p,w)}")
            I(f"ds_write_b128 v{KEY+3*p+w}, {pay(p,w)} offset:{RAW}")
    I("s_mov_b64 exec, -1")
    I("s_cmp_eq_u32 s25, 0")
    I("s_cbranch_scc1 L2_noextraB")
    for p in range(NP):
        I(f"ds_bpermute_b32 v{KEY+3*p+2}, v{KEY+3*p+2}, v{BS}")
    I("s_waitcnt lgkmcnt(0)")
    for p in range(NP):
        I(f"v_add_lshl_u32 v{KEY+3*p+2}, v{KEY+3*p+2}, v{RNK+3*p+2}, 4")
        I(f"s_mov_b64 exec, {msk(p,2)}")
        I(f"ds_write_b128 v{KEY+3*p+2}, {pay(p,2)} offset:{RAW}")
        I("s_mov_b64 exec, -1")
    I(f"v_add_u32 v{BS}, v{BS}, v{C1}")
    for p in range(NP):
        extra_move(f"a{p}", KIN, VJ, KAD+p, PAD+p, CNTR+p, 80+p, 74+p, VONE, CUR2, BS, X, EN)
    e.label("L2_noextraB")
    I("s_waitcnt lgkmcnt(0)")
    stamp(e, c, 28)
    I("s_barrier")
    I(f"ds_read_b32 v{VT0}, v{VL16} offset:{TOTB}")
    if c.static1:
        I("s_sub_u32 s42, s21, 16")
        I(f"v_mov_b32 v{VNEXT}, s42")
    else:
        I("s_mov_b64 exec, 1")
        I(f"ds_add_rtn_u32 v{VNEXT}, v{VL16}, v{VONE} offset:{NEXT}")
        I("s_mov_b64 exec, -1")
    I("s_waitcnt lgkmcnt(0)")
    I(f"v_readfirstlane_b32 s42, v{VT0}")
    e.nop(1)
    I(f"s_cmp_gt_u32 s42, {CAP}")
    I("s_cbranch_scc1 L2_g_overflow")
    stamp(e, c, 10)
    stamp(e, c, 24, "s_memtime")
    if c.prio_g: I(f"s_setprio {c.prio_g}")
    (gather_loop_s if c.smf else gather_loop)(e, c, locals())
    e.label("L2_g_done")
    stamp(e, c, 11)
    stamp(e, c, 25, "s_memtime")
    I("s_cmp_lg_u32 s24, 0")
    e.branch("s_cbranch_scc1 L2_g_exit")
    I("s_add_u32 s89, s89, 1")
    I("s_branch L2_g_slow")
    e.label("L2_g_overflow")
    I("s_mov_b32 s89, 0")
    I("s_mov_b32 s23, 1")
    I("s_movk_i32 s48, 64")
    e.label("L2_g_slow")
    I("s_waitcnt vmcnt(0) lgkmcnt(0)")
    I("s_barrier")
    I("s_lshr_b32 s22, s89, 1")
    I("s_and_b32 s88, s89, 1")
    I("s_lshl_b32 s88, s88, 8")
    I("s_add_u32 s88, s88, s20")
    I(f"s_cmp_eq_u32 s89, {2*NCH-1}")
    I("s_cselect_b32 s24, 1, 0")
    I("s_barrier")
    e.branch("s_branch L2_g_round")
    e.label("L2_g_exit")
    stamp_store(e, c, 90)
    I("s_endpgm")

    e.label("L2_gemm")
    W, G, TA, TF = 0, 40, 104, 108
    X0, X1 = 124, 125
    I("v_and_b32 v104, 63, v0")
    I("v_lshlrev_b32 v105, 4, v104")
    lut = 0
    for jp in range(4):
        for blk in range(4):
            p, i, s = path_of(jp, blk)
            lut |= (p | (8 if s < 0 else 0)) << (4 * (jp * 4 + blk))
    I(f"s_mov_b32 s44, {lut & 0xffffffff}")
    I(f"s_mov_b32 s45, {lut >> 32}")
    for h in range(2):
        I("v_lshrrev_b32 v106, 4, v104")
        I("v_bfe_u32 v107, v104, 3, 1")
        I("v_lshl_add_u32 v106, v106, 2, v107")
        I(f"v_add_lshl_u32 v106, v106, {2*h}, 2")
        I(f"v_lshrrev_b64 v[108:109], v106, s[44:45]")
        I(f"v_and_b32 v106, 7, v108")
        I(f"v_and_b32 v{110+h}, 8, v108")
        I(f"v_lshlrev_b32 v{110+h}, 28, v{110+h}")
        I("v_and_b32 v107, 7, v104")
        I("v_lshlrev_b32 v107, 3, v107")
        I("v_lshl_add_u32 v106, v106, 6, v107")
        I("v_add_u32 v106, s21, v106")
        I(f"v_lshlrev_b32 v{112+h}, 1, v106")
    I("v_mov_b32 v117, v0")
    handoff("m", lambda: None)
    if c.pfx2_pos == 0: prefetch_x(e, c.pfx2_lines, 114, 117, 256, 31, 0, 4, c.pfx_lines)
    WT = 80
    for k in range(4):
        h, qo = k >> 1, (k & 1) * 4
        for d in range(4):
            I(f"buffer_load_ushort v{WT+4*k+d}, v{112+h}, s[16:19], 0 offen offset:{d*640+qo*2}")
    I("v_lshrrev_b32 v106, 4, v104")
    I("v_lshlrev_b32 v106, 10, v106")
    I("v_bfe_u32 v107, v104, 2, 2")
    I("v_lshl_add_u32 v106, v107, 7, v106")
    I("v_and_b32 v107, 3, v104")
    I("v_lshl_add_u32 v106, v107, 3, v106")
    I("s_lshl_b32 s42, s21, 5")
    I(f"s_add_u32 s42, s42, {T}")
    I("v_add_u32 v106, s42, v106")
    for f in range(10):
        I(f"ds_read_b64_tr_b16 v[{W+4*f}:{W+4*f+1}], v106 offset:{f*4096}")
        I(f"ds_read_b64_tr_b16 v[{W+4*f+2}:{W+4*f+3}], v106 offset:{f*4096+512}")
    I("s_lshl_b32 s42, s21, 10")
    I(f"s_add_u32 s43, s42, {WRAD}")
    I("v_add_u32 v105, s43, v105")
    I("s_waitcnt vmcnt(0)")
    for k in range(4):
        h = k >> 1
        for d in range(4):
            I(f"v_lshlrev_b32 v{WT+4*k+d}, 16, v{WT+4*k+d}")
            I(f"v_xor_b32 v{WT+4*k+d}, v{110+h}, v{WT+4*k+d}")
        I(f"ds_write_b128 v105, v[{WT+4*k}:{WT+4*k+3}] offset:{(k>>1)*8192 + (k&1)*4096}")
    I("v_and_b32 v106, 15, v104")
    I("v_lshrrev_b32 v107, 4, v104")
    I(f"v_lshlrev_b32 v{X0}, 2, v104")
    if NWG == 250:
        I(f"s_mul_i32 s42, s20, {HN}")
        I(f"s_movk_i32 s44, {HN}")
    else:
        I("s_mul_i32 s42, s20, 1600210")
        I("s_add_u32 s42, s42, 65532")
        I("s_add_u32 s44, s42, 1600210")
        I("s_lshr_b32 s42, s42, 16")
        I("s_lshr_b32 s44, s44, 16")
        I(f"s_min_u32 s44, s44, {N//2}")
        I("s_sub_u32 s44, s44, s42")
    I("s_lshl_b32 s42, s42, 9")
    I("s_mov_b32 s40, s42")
    I("s_mov_b32 s41, s44")
    I("s_lshl_b32 s43, s21, 5")
    I("s_add_u32 s42, s42, s43")
    I(f"v_lshlrev_b32 v{X1}, 9, v106")
    I(f"v_lshl_add_u32 v{X1}, v107, 3, v{X1}")
    I(f"v_add_u32 v{X1}, s42, v{X1}")
    I(f"v_cmp_le_u32 s[84:85], {HN-16}, v106")
    I(f"s_sub_u32 s43, s44, {48-HN}")
    I("v_cmp_gt_i32 s[50:51], s43, v106")
    I("s_sub_u32 s43, s44, 16")
    I("v_cmp_gt_i32 s[94:95], s43, v106")
    I("v_lshlrev_b32 v108, 10, v106")
    I(f"v_add_u32 v108, {T}, v108")
    I("s_or_b64 s[94:95], s[94:95], s[84:85]")
    for u in (3, 2, 1, 0):
        I(f"v_add_u32 v109, {4*u}, v107")
        I("v_xor_b32 v109, v109, v106")
        I(f"v_lshl_add_u32 v{TF+4+u}, v109, 4, v108")
    I("s_waitcnt lgkmcnt(0)")
    for u in range(4):
        I(f"v_mov_b32 v{TA+u}, v{TF+4+u}")
    I("s_mov_b32 s89, 0")
    NPB = 8
    TB, KA, SJ, KB, RB = 40, 48, 56, 64, 80
    LJ, LCH, LONE, Y = 96, 97, 98, 99
    MB = 52
    def mb(p, w): return f"s[{MB+4*p+2*w}:{MB+4*p+2*w+1}]"
    LA, PA0, PA1, TOA = KB, KB + 1, KB + 2, KB + 3
    I(f"v_lshrrev_b32 v{Y}, 2, v{X0}")
    I("s_lshl_b32 s42, s21, 11")
    I(f"v_lshl_add_u32 v{LA}, v{Y}, 4, s42")
    I(f"v_lshrrev_b32 v{Y+1}, 1, v{Y}")
    I("s_lshl_b32 s43, s21, 5")
    I(f"s_sub_u32 s44, {NCH-128}, s43")
    I(f"v_cmp_gt_i32 s[46:47], s44, v{Y+1}")
    I(f"s_mov_b32 s44, {CSTRIDE}")
    I(f"v_mul_u32_u24 v{Y+1}, s44, v{Y+1}")
    I(f"v_and_b32 v{Y+2}, 16, v{LA}")
    I(f"v_add_u32 v{PA0}, v{Y+1}, v{Y+2}")
    I(f"v_cndmask_b32 v{PA1}, 2.0, v{PA0}, s[46:47]")
    I(f"v_and_b32 v{LJ}, 7, v{Y}")
    I(f"v_lshrrev_b32 v{Y+1}, 3, v{Y}")
    I(f"v_mul_u32_u24 v{LCH}, s44, v{Y+1}")
    I(f"v_lshl_add_u32 v{RB}, v{Y+1}, 5, s42")
    I("s_mul_i32 s38, s43, s44")
    I(f"v_add_u32 v{LCH}, s38, v{LCH}")
    I(f"v_mov_b32 v{LONE}, 1")
    I("s_lshl_b32 s36, s20, 5")
    I(f"s_add_u32 s36, s36, {TABOFF+8192}")
    I("s_add_u32 s36, s36, s38")
    I(f"s_add_u32 s37, s36, {128*CSTRIDE}")
    I("s_lshl_b32 s42, s21, 6")
    I(f"v_add_u32 v{Y}, s42, v{Y}")
    I(f"v_mul_u32_u24 v{Y+1}, 0xaab, v{Y}")
    I(f"v_lshrrev_b32 v{Y+1}, 16, v{Y+1}")
    I(f"v_mul_u32_u24 v{Y+1}, {SSTR-24*32}, v{Y+1}")
    I(f"v_lshl_add_u32 v{TOA}, v{Y}, 5, v{Y+1}")
    I(f"v_add_u32 v{TOA}, {SCR+28}, v{TOA}")
    I(f"s_movk_i32 s42, {NCH}")
    I(f"v_cmp_gt_u32 s[92:93], s42, v{Y}")
    if c.pfx2_pos == 1:
        I("s_mov_b64 s[40:41], s[46:47]")
        prefetch_x(e, c.pfx2_lines, 114, 117, 256, 31, 0, 4, c.pfx_lines)
        I("s_mov_b64 s[46:47], s[40:41]")
    stamp(e, c, 14)
    e.label("L2_m_round")
    I("s_barrier")
    I("s_cmp_eq_u32 s23, 1")
    I("s_cbranch_scc1 L2_m_slowC")
    def pollB_issue():
        I(f"buffer_load_dwordx4 v[{TF+4}:{TF+7}], v{PA0}, s[8:11], s36 offen sc1")
        I(f"buffer_load_dwordx4 v[{TF+8}:{TF+11}], v{PA1}, s[8:11], s37 offen sc1")
    I(f"ds_read_b32 v{TF}, v{X0} offset:{HIST}")
    I(f"ds_read_b32 v{TF+1}, v{X0} offset:{HIST2}")
    I(f"ds_read_b32 v{Y}, v{TOA}")
    I("s_waitcnt lgkmcnt(0)")
    I(f"v_add_u32 v{TF}, v{TF}, v{TF+1}")
    I(f"v_and_b32 v{Y}, 0xfff, v{Y}")
    I(f"v_cndmask_b32 v{Y}, 0, v{Y}, s[92:93]")
    scan64(e, TF)
    scan64(e, Y)
    I(f"v_readlane_b32 s42, v{TF}, 63")
    I(f"v_mov_b32 v{Y+2}, 0")
    I("s_mov_b32 exec_lo, 0")
    I("s_mov_b32 exec_hi, 0x80000000")
    I(f"ds_add_u32 v{Y+2}, v{Y} offset:{TOTB}")
    I("s_mov_b64 exec, -1")
    I(f"s_cmp_gt_u32 s42, {CAP}")
    I("s_cbranch_scc1 L2_m_overflow")
    if c.bearly: pollB_issue()
    I("s_waitcnt lgkmcnt(0)")
    I("s_barrier")
    I(f"ds_read_b32 v{Y}, v{Y+2} offset:{TOTB}")
    SEL = Y + 4
    E2 = [TF, TF + 8]
    I("s_mov_b32 s44, 0")
    I("s_waitcnt lgkmcnt(0)")
    I(f"v_readfirstlane_b32 s42, v{Y}")
    I(f"v_or_b32 v{SEL}, 0x0c0c0c00, v{LJ}")
    I(f"s_cmp_gt_u32 s42, {CAP}")
    I("s_cbranch_scc1 L2_m_overflow")
    stamp(e, c, 10)
    I("s_mov_b32 s34, s42")
    if c.x_nobload: I("s_branch L2_bnoxb")
    if c.bearly: I("s_branch L2_pollB_w")
    e.label("L2_pollB")
    pollB_issue()
    e.label("L2_pollB_w")
    I("s_add_u32 s44, s44, 1")
    I("s_waitcnt vmcnt(0)")
    tag_bad(e, Y, TF+4, Y+1, ODD)
    tag_bad(e, Y+2, TF+8, Y+1, ODD)
    I(f"v_cndmask_b32 v{Y+2}, 0, v{Y+2}, s[46:47]")
    I(f"v_or_b32 v{Y}, v{Y}, v{Y+2}")
    I(f"v_cmp_ne_u32 vcc, 0, v{Y}")
    e.nop(2)
    I("s_cmp_eq_u64 vcc, 0")
    I("s_cbranch_scc1 L2_pollB_ok")
    I(f"s_sleep {c.psleep}")
    I("s_cmp_lt_u32 s44, 0x100000")
    I("s_cbranch_scc1 L2_pollB")
    e.label("L2_pollB_ok")
    stamp(e, c, 7)
    I(f"ds_write_b128 v{LA}, v[{TF+4}:{TF+7}] offset:{CEB}")
    I(f"ds_write_b128 v{LA}, v[{TF+8}:{TF+11}] offset:{CEB+1024}")
    def boff(p): return ((128 if p >= 4 else 0) + 8 * (p & 3)) * CSTRIDE
    def ent_read(p):
        r = E2[p & 1]
        I(f"ds_read_b128 v[{r}:{r+3}], v{RB} offset:{CEB+256*p}")
        I(f"ds_read_b64 v[{r+4}:{r+5}], v{RB} offset:{CEB+256*p+16}")
    ent_read(0); ent_read(1)
    I(f"v_add_u32 v{Y+1}, 8, v{LJ}")
    for p in range(NPB):
        r = E2[p & 1]
        I(f"s_waitcnt lgkmcnt({2 if p < NPB-1 else 0})")
        I(f"v_and_b32 v{SJ+p}, 0xfff, v{r}")
        I(f"v_bfe_u32 v{TB+p}, v{r}, 12, 12")
        I(f"v_perm_b32 v{KB+2*p}, v{r+3}, v{r+2}, v{SEL}")
        I(f"v_perm_b32 v{KB+2*p+1}, v{r+5}, v{r+4}, v{SEL}")
        if p + 2 < NPB: ent_read(p + 2)
        I(f"v_add_u32 v{SJ+p}, v{SJ+p}, v{LJ}")
        I(f"v_cmp_lt_u32 {mb(p,0)}, v{LJ}, v{TB+p}")
        I(f"v_cmp_lt_u32 {mb(p,1)}, v{Y+1}, v{TB+p}")
        I(f"v_lshl_add_u32 v{SJ+p}, v{SJ+p}, 4, v{LCH}")
    P0 = [TF, TF+4, TF+8, TF+12]
    def pay_issue(p, w, reg):
        I(f"s_mov_b32 s42, {boff(p)+PAYOFF}")
        I("s_mov_b64 exec, -1")
        I(f"v_cndmask_b32 v{Y+2+w}, 2.0, v{SJ+p}, {mb(p,w)}")
        I(f"buffer_load_dwordx4 v[{reg}:{reg+3}], v{Y+2+w}, s[8:11], s42 offen offset:{128*w} {rf}")
    for k in range(4): pay_issue(k >> 1, k & 1, P0[k])
    I(f"v_max3_u32 v{Y}, v{TB}, v{TB+1}, v{TB+2}")
    I(f"v_max3_u32 v{Y}, v{Y}, v{TB+3}, v{TB+4}")
    I(f"v_max3_u32 v{Y}, v{Y}, v{TB+5}, v{TB+6}")
    I(f"v_max_u32 v{Y}, v{Y}, v{TB+7}")
    I(f"v_cmp_lt_u32 vcc, 16, v{Y}")
    I(f"v_mov_b32 v{Y+1}, v{RB}")
    for p in range(NPB):
        for w in range(2):
            I(f"s_mov_b64 exec, {mb(p,w)}")
            I(f"ds_add_rtn_u32 v{RB+2*p+w}, v{KB+2*p+w}, v{LONE} offset:{HISTB}")
    I("s_mov_b64 exec, -1")
    I("s_cmp_lg_u64 vcc, 0")
    I("s_cselect_b32 s35, 1, 0")
    I("s_cbranch_scc0 L2_bnoxa")
    def w2mask(p):
        I(f"v_min_u32 v{Y+2}, {KIN}, v{TB+p}")
        I(f"v_add_u32 v{Y+3}, 16, v{LJ}")
        I(f"v_cmp_lt_u32 vcc, v{Y+3}, v{Y+2}")
        I("s_and_saveexec_b64 s[44:45], vcc")
    for p in range(NPB):
        w2mask(p)
        e.branch(f"s_cbranch_execz L2_bw2a{p}")
        I(f"ds_read_b32 v{KA+p}, v{Y+1} offset:{CEB+256*p+24}")
        I("s_waitcnt lgkmcnt(0)")
        I(f"v_perm_b32 v{KA+p}, v{KA+p}, v{KA+p}, v{SEL}")
        I(f"ds_add_rtn_u32 v{Y+2}, v{KA+p}, v{LONE} offset:{HISTB}")
        I("s_waitcnt lgkmcnt(0)")
        I(f"v_lshl_or_b32 v{KA+p}, v{Y+2}, 8, v{KA+p}")
        e.label(f"L2_bw2a{p}")
        I("s_mov_b64 exec, -1")
    def key_addr(p, dst):
        I(f"v_sub_u32 v{dst}, v{SJ+p}, v{LCH}")
        I(f"v_lshrrev_b32 v{dst}, 4, v{dst}")
        I(f"v_add_u32 v{dst}, v{dst}, v{LCH}")
    for p in range(NPB):
        I(f"s_mov_b32 s42, {boff(p)+KEYOFF}")
        key_addr(p, Y+3)
        extra_count(f"b{p}", KIN, LJ, Y+3, TB+p, 42, LONE, HIST2B, Y)
    e.label("L2_bnoxa")
    I("s_mov_b64 exec, 1")
    I(f"v_mov_b32 v{Y+2}, 0")
    I("s_waitcnt lgkmcnt(0)")
    I(f"ds_add_u32 v{Y+2}, v{LONE} offset:{BSYNC}")
    I("s_mov_b64 exec, -1")
    I(f"v_mov_b32 v{Y+2}, 0")
    spin(e, "bs", Y, Y+2, BSYNC, 4, 44, 42)
    BB = Y + 4
    I(f"ds_read_b32 v{Y}, v{X0} offset:{HISTB}")
    I(f"ds_read_b32 v{Y+1}, v{X0} offset:{HIST2B}")
    I("s_waitcnt lgkmcnt(0)")
    I(f"v_add_u32 v{Y+1}, v{Y}, v{Y+1}")
    I(f"v_mov_b32 v{BB}, v{Y+1}")
    scan64(e, BB)
    I(f"v_sub_u32 v{BB}, v{BB}, v{Y+1}")
    I(f"v_add_u32 v{BB}, {BOFF}, v{BB}")
    for k in range(2*NPB):
        I(f"ds_bpermute_b32 v{KB+k}, v{KB+k}, v{BB}")
    I("s_cmp_lg_u32 s21, 0")
    I("s_cbranch_scc1 L2_bnoinfo")
    I(f"v_lshl_or_b32 v{Y+1}, v{Y+1}, 16, v{BB}")
    I(f"s_mov_b32 exec_lo, {((1 << 32) - (1 << HN))}")
    I(f"ds_write_b32 v{X0}, v{Y+1} offset:{INFO}")
    I("s_mov_b64 exec, -1")
    e.label("L2_bnoinfo")
    I("s_waitcnt lgkmcnt(0)")
    for k in range(2*NPB):
        I(f"v_add_lshl_u32 v{KB+k}, v{KB+k}, v{RB+k}, 4")
    I(f"v_mov_b32 v{LONE}, v{Y}")
    regs = P0 + [RB, RB+4, RB+8, RB+12]
    for k in range(4, 8): pay_issue(k >> 1, k & 1, regs[k])
    for k in range(16):
        I(f"s_waitcnt vmcnt({min(7, 15-k)})")
        I(f"s_mov_b64 exec, {mb(k>>1, k&1)}")
        I(f"ds_write_b128 v{KB+k}, v[{regs[k&7]}:{regs[k&7]+3}] offset:{RAW}")
        if k + 8 < 16: pay_issue((k+8) >> 1, (k+8) & 1, regs[k&7])
    I("s_mov_b64 exec, -1")
    I("s_cmp_eq_u32 s35, 0")
    I("s_cbranch_scc1 L2_bnoxb")
    for p in range(NPB):
        I(f"v_and_b32 v{Y}, 0xff, v{KA+p}")
        I(f"ds_bpermute_b32 v{Y}, v{Y}, v{BB}")
        w2mask(p)
        e.branch(f"s_cbranch_execz L2_bw2b{p}")
        I(f"s_mov_b32 s42, {boff(p)+PAYOFF}")
        I(f"buffer_load_dwordx4 v[{TF}:{TF+3}], v{SJ+p}, s[8:11], s42 offen offset:256 {rf}")
        I(f"v_lshrrev_b32 v{KA+p}, 8, v{KA+p}")
        I("s_waitcnt vmcnt(0) lgkmcnt(0)")
        I(f"v_add_lshl_u32 v{Y}, v{Y}, v{KA+p}, 4")
        I(f"ds_write_b128 v{Y}, v[{TF}:{TF+3}] offset:{RAW}")
        e.label(f"L2_bw2b{p}")
        I("s_mov_b64 exec, -1")
        I("s_waitcnt lgkmcnt(0)")
    I(f"v_add_u32 v{BB}, v{BB}, v{LONE}")
    I(f"v_mov_b32 v{LONE}, 1")
    for p in range(NPB):
        I(f"s_mov_b32 s42, {boff(p)+KEYOFF}")
        I(f"s_mov_b32 s43, {boff(p)+PAYOFF}")
        key_addr(p, KA+p)
        extra_move(f"b{p}", KIN, LJ, KA+p, SJ+p, TB+p, 42, 43, LONE, CUR2B, BB, Y, TF)
    e.label("L2_bnoxb")
    I("s_waitcnt lgkmcnt(0)")
    for k in range(64):
        I(f"v_mov_b32 v{G+k}, 0")
    I("s_cmp_lg_u32 s21, 1")
    I("s_cbranch_scc1 L2_bnoguard")
    I(f"s_add_u32 s42, s34, {BOFF}")
    I("s_lshl_b32 s42, s42, 4")
    I(f"v_lshl_add_u32 v{TF}, v{X0}, 2, s42")
    I(f"ds_write_b128 v{TF}, v[{G}:{G+3}] offset:{RAW}")
    I("s_waitcnt lgkmcnt(0)")
    e.label("L2_bnoguard")
    I(f"v_mov_b32 v{TF}, 1")
    I("s_mov_b64 exec, 1")
    I(f"ds_add_u32 v{G}, v{TF} offset:{BREADY}")
    I("s_mov_b64 exec, -1")
    stamp(e, c, 13)
    I("s_branch L2_m_tiles")
    e.label("L2_m_slowC")
    I("s_barrier")
    e.label("L2_m_tiles")
    if c.prio_m: I(f"s_setprio {c.prio_m}")
    for h in range(2):
        for t in ((0, 3, 1, 2) if h else range(4)):
            need = 16 if t < 3 else NODES - 48
            last = (h, t) == (1, 2)
            if last and c.split: need = 32
            I(f"v_mov_b32 v{TF}, 0")
            spin(e, f"t{h}{t}", TF+1, TF, DONE + 16*h + 4*t, need, 43, 42, sleep=(1 if last else c.sleep))
            stamp(e, c, 16 + 4*h + t)
            srcs = [t] + ([0] if last and c.split else [])
            steps = [(tt, ks) for tt in srcs for ks in range(16)]
            def mf(ks, r):
                jp, blk = ks >> 2, 2 * h + ((ks >> 1) & 1)
                p, i, sg = path_of(jp, blk)
                f = p * 2 + (ks & 1)
                g = G + 16 * t + 4 * i
                I(f"v_mfma_f32_16x16x32_bf16 v[{g}:{g+3}], v[{W+4*f}:{W+4*f+3}], v[{r}:{r+3}], v[{g}:{g+3}]")
            def rd(n, r):
                tt, ks = steps[n]
                I(f"ds_read_b128 v[{r}:{r+3}], v{TA+(ks&3)} offset:{tt*16384 + (ks>>2)*256}")
            if last and c.fastlast and not c.split:
                I("s_cmp_eq_u32 s24, 0")
                I("s_cbranch_scc1 L2_lastslow")
                fr = [TF + 4*n for n in range(4)] + [G + 4*n for n in range(8)] + [G + 48 + 4*n for n in range(4)]
                order = [0, 2, 4, 8, 1, 3, 5, 9, 6, 10, 12, 14, 7, 11, 13, 15]
                for n, ks in enumerate(order): rd(ks, fr[n])
                for n, ks in enumerate(order):
                    I(f"s_waitcnt lgkmcnt({15-n})")
                    mf(ks, fr[n])
                I("s_branch L2_lastdone")
                e.label("L2_lastslow")
            for n in range(4): rd(n, TF + 4*n)
            for n in range(len(steps)):
                I(f"s_waitcnt lgkmcnt({min(3, len(steps)-1-n)})")
                mf(steps[n][1], TF + 4*(n&3))
                if n + 4 < len(steps): rd(n + 4, TF + 4*(n&3))
            if last and c.fastlast and not c.split: e.label("L2_lastdone")
            if (h, t) == (1, 0) and c.split:
                I(f"v_mov_b32 v{TF}, 0")
                I(f"v_mov_b32 v{TF+1}, 1")
                I("s_mov_b64 exec, 1")
                I(f"ds_add_u32 v{TF}, v{TF+1} offset:{GDONE + 16}")
                I("s_mov_b64 exec, -1")
            if h == 0:
                I(f"v_mov_b32 v{TF}, 0")
                I(f"v_mov_b32 v{TF+1}, 1")
                I("s_mov_b64 exec, 1")
                I(f"ds_add_u32 v{TF}, v{TF+1} offset:{GDONE + 4*t}")
                I("s_mov_b64 exec, -1")
                if t == c.pf1_tile:
                    I(f"s_movk_i32 m0, {HIST2B}")
                    I("s_lshl_b32 s42, s21, 6")
                    I(f"v_lshrrev_b32 v{TF+3}, 2, v{X0}")
                    I(f"v_add_u32 v{TF+3}, s42, v{TF+3}")
                    prefetch_x(e, c.pf1_lines, TF + 4, TF + 3, 256, 31, 1, 4, lds=True)
            else:
                I("s_cmp_eq_u32 s24, 0")
                e.branch(f"s_cbranch_scc1 L2_nofin{t}")
                g = G + 16 * t
                I("s_mov_b32 s42, 0xbfb8aa3b")
                for r in range(4): I(f"v_mul_f32 v{TF+r}, s42, v{g+r}")
                for r in range(4): I(f"v_exp_f32 v{TF+r}, v{TF+r}")
                for r in range(4): I(f"v_add_f32 v{TF+r}, 1.0, v{TF+r}")
                for r in range(4): I(f"v_rcp_f32 v{TF+r}, v{TF+r}")
                for i in range(1, 4):
                    for r in range(4): I(f"v_mul_f32 v{g+4*i+r}, v{g+4*i+r}, v{TF+r}")
                for i in range(4):
                    I(f"v_cvt_pk_bf16_f32 v{TF+4+2*i}, v{g+4*i}, v{g+4*i+1}")
                    I(f"v_cvt_pk_bf16_f32 v{TF+5+2*i}, v{g+4*i+2}, v{g+4*i+3}")
                fl = c.out_flags if (t == 2 or c.out_early is None) else c.out_early
                if c.wideout:
                    prev = {0: None, 3: 0, 1: 3, 2: 1}[t]
                    z, a1, a2 = TF, TF + 1, TF + 2
                    I(f"v_mov_b32 v{z}, 0")
                    if prev is not None: spin(e, f"or{t}", a1, z, OUTR + 4*prev, 4, 43, 42)
                    I(f"v_bfe_u32 v{a1}, v{X0}, 2, 4")
                    I(f"v_lshrrev_b32 v{a2}, 7, v{X0}")
                    I("s_lshl_b32 s42, s21, 1")
                    I(f"v_add_u32 v{a2}, s42, v{a2}")
                    I(f"v_xor_b32 v{a2}, v{a2}, v{a1}")
                    I(f"v_and_b32 v{a2}, 7, v{a2}")
                    I(f"v_lshlrev_b32 v{a2}, 4, v{a2}")
                    I(f"v_lshl_add_u32 v{a2}, v{a1}, 9, v{a2}")
                    I(f"v_bfe_u32 v{a1}, v{X0}, 6, 1")
                    I(f"v_lshl_add_u32 v{a2}, v{a1}, 3, v{a2}")
                    I(f"v_add_u32 v{a2}, {WRAD}, v{a2}")
                    for i in range(4):
                        I(f"ds_write_b64 v{a2}, v[{TF+4+2*i}:{TF+5+2*i}] offset:{i*128}")
                    I(f"v_mov_b32 v{a1}, 1")
                    I("s_mov_b64 exec, 1")
                    I(f"ds_add_u32 v{z}, v{a1} offset:{OUTW + 4*t}")
                    I("s_mov_b64 exec, -1")
                    r0, ga, la = TF + 12, TF + 13, TF + 3
                    I(f"v_lshrrev_b32 v{r0}, 7, v{X0}")
                    I("s_lshl_b32 s42, s21, 2")
                    I(f"v_add_u32 v{r0}, s42, v{r0}")
                    I(f"v_bfe_u32 v{ga}, v{X0}, 2, 5")
                    I(f"v_and_b32 v{a2}, 7, v{r0}")
                    I(f"v_xor_b32 v{la}, v{ga}, v{a2}")
                    I(f"v_lshlrev_b32 v{la}, 4, v{la}")
                    I(f"v_lshl_add_u32 v{la}, v{r0}, 9, v{la}")
                    I(f"v_add_u32 v{la}, {WRAD}, v{la}")
                    I(f"v_xor_b32 v{a2}, 32, v{la}")
                    I(f"v_lshlrev_b32 v{ga}, 4, v{ga}")
                    I(f"v_lshl_add_u32 v{ga}, v{r0}, 9, v{ga}")
                    I(f"v_add_u32 v{ga}, s40, v{ga}")
                    spin(e, f"ow{t}", a1, z, OUTW + 4*t, 4, 43, 42)
                    I(f"ds_read_b128 v[{TF+4}:{TF+7}], v{la}")
                    I(f"ds_read_b128 v[{TF+8}:{TF+11}], v{a2} offset:1024")
                    for k in range(2):
                        base = 16*t + 2*k
                        I(f"s_mov_b32 s42, {base*512 + ((N//2-HN)*512 if t >= 2 else 0)}")
                        va = ga
                        if t == 1:
                            va = TF + 14
                            I(f"v_cmp_le_u32 vcc, {HN-base}, v{r0}")
                            I(f"v_add_u32 v{TF+15}, {(N//2-HN)*512}, v{ga}")
                            I(f"s_sub_u32 s43, s41, {base}")
                            I(f"v_cndmask_b32 v{va}, v{ga}, v{TF+15}, vcc")
                            I(f"v_cmp_gt_i32 s[44:45], s43, v{r0}")
                            e.nop(1)
                            I("s_or_b64 exec, vcc, s[44:45]")
                        if t == 3:
                            I(f"s_sub_u32 s43, s41, {base-HN}")
                            I(f"v_cmp_gt_i32 vcc, s43, v{r0}")
                            e.nop(1)
                            I("s_mov_b64 exec, vcc")
                        I(f"s_waitcnt lgkmcnt({1-k})")
                        if t == 3: I(f"s_cbranch_execz L2_wo3{k}")
                        I(f"buffer_store_dwordx4 v[{TF+4+4*k}:{TF+7+4*k}], v{va}, s[12:15], s42 offen {fl}")
                        if t == 3: e.label(f"L2_wo3{k}")
                        if t in (1, 3): I("s_mov_b64 exec, -1")
                    if t != 2:
                        I(f"v_mov_b32 v{a1}, 1")
                        I("s_mov_b64 exec, 1")
                        I(f"ds_add_u32 v{z}, v{a1} offset:{OUTR + 4*t}")
                        I("s_mov_b64 exec, -1")
                else:
                    I(f"s_mov_b32 s42, {t*16*512 + ((N//2-HN)*512 if t >= 2 else 0)}")
                    va = X1
                    if t == 1:
                        va = TF
                        I(f"v_add_u32 v{TF}, {(N//2-HN)*512}, v{X1}")
                        I(f"v_cndmask_b32 v{TF}, v{X1}, v{TF}, s[84:85]")
                        I("s_mov_b64 exec, s[94:95]")
                    if t == 3:
                        I("s_mov_b64 exec, s[50:51]")
                        I("s_cbranch_execz L2_nost3")
                    for i in range(4):
                        I(f"buffer_store_dwordx2 v[{TF+4+2*i}:{TF+5+2*i}], v{va}, s[12:15], s42 offen offset:{i*128} {c.out_flags if (t == 2 or c.out_early is None) else c.out_early}")
                    if t == 3: e.label("L2_nost3")
                    if t in (1, 3): I("s_mov_b64 exec, -1")
                e.label(f"L2_nofin{t}")
    stamp(e, c, 11)
    I("s_cmp_lg_u32 s24, 0")
    e.branch("s_cbranch_scc1 L2_m_exit")
    I("s_add_u32 s89, s89, 1")
    I("s_branch L2_m_slow")
    e.label("L2_m_overflow")
    I("s_mov_b32 s89, 0")
    I("s_mov_b32 s23, 1")
    I("s_waitcnt vmcnt(0)")
    for k in range(64):
        I(f"v_mov_b32 v{G+k}, 0")
    e.label("L2_m_slow")
    I("s_waitcnt vmcnt(0) lgkmcnt(0)")
    I("s_barrier")
    I(f"s_cmp_eq_u32 s89, {2*NCH-1}")
    I("s_cselect_b32 s24, 1, 0")
    I("s_cmp_lg_u32 s21, 1")
    I("s_cbranch_scc1 L2_m_nz")
    for k in range(4): I(f"v_mov_b32 v{TF+k}, 0")
    I(f"v_lshlrev_b32 v{TF+4}, 2, v{X0}")
    I(f"ds_write_b128 v{TF+4}, v[{TF}:{TF+3}]")
    I("s_waitcnt lgkmcnt(0)")
    e.label("L2_m_nz")
    I("s_barrier")
    e.branch("s_branch L2_m_round")
    e.label("L2_m_exit")
    if c.stamps:
        I("s_waitcnt vmcnt(0)")
        stamp(e, c, 12)
        stamp_store(e, c, TF)
    e.label("L_end")
    I("s_endpgm")
    e.label("L_codeend")
    return KNAME, 128, 96

def gather_loop(e, c, L):
    I = e.I
    RAW, T, NEXT, DONE, GDONE, OSC, PL1, BREADY, INFO = (L[k] for k in "RAW T NEXT DONE GDONE OSC PL1 BREADY INFO".split())
    VLANE, VINFO, VNEXT, VLOFF, VMASK, VOW, VOR, VSCRW, VTRA, VWR, VL16, VT0, VT1, VONE = (L[k] for k in
        "VLANE VINFO VNEXT VLOFF VMASK VOW VOR VSCRW VTRA VWR VL16 VT0 VT1 VONE".split())
    ACC, LD, B, A, AD = 0, 32, 64, 96, 100
    sA, sR, sH, sN, sNV = 32, 33, 34, 35, 37
    sCN, sCH, sCF, sCR, sL = 38, 39, 40, 41, 36
    uid = [0]
    def lab(p):
        uid[0] += 1
        return f"L2_{p}{uid[0]}"
    def fetch_issue():
        I("s_mov_b64 exec, 1")
        I(f"ds_add_rtn_u32 v{VNEXT}, v{VL16}, v{VONE} offset:{NEXT}")
        I("s_mov_b64 exec, -1")
    NIT = 2*NODES + (16 if c.split else 0)
    def setup_item(none_label):
        I(f"v_readfirstlane_b32 s42, v{VNEXT}")
        e.nop(1)
        if c.static1: I("s_add_u32 s42, s42, 12")
        I(f"s_cmp_ge_u32 s42, {NIT}")
        I(f"s_cbranch_scc1 {none_label}")
        t, sp, dn = lab("bw"), lab("sp"), lab("sd")
        if c.split:
            I(f"s_cmp_ge_u32 s42, {2*NODES-16}")
            I(f"s_cbranch_scc1 {sp}")
        I(f"s_cmp_ge_u32 s42, {NODES}")
        I(f"s_cselect_b32 s{sH}, 256, 0")
        I(f"s_cselect_b32 s43, {NODES}, 0")
        I(f"s_cmp_ge_u32 s42, {NODES+16}")
        I(f"s_cselect_b32 s43, {NODES-32}, s43")
        I(f"s_cmp_ge_u32 s42, {NODES+18}")
        I(f"s_cselect_b32 s43, {NODES+2}, s43")
        I(f"s_sub_u32 s{sN}, s42, s43")
        I(f"s_cmp_lt_u32 s{sN}, s48")
        I(f"s_cbranch_scc1 {t}")
        stamp(e, c, 29)
        I(f"v_mov_b32 v{VT0}, 0")
        spin(e, t, VT1, VT0, BREADY, 4, 45, 44, sleep=1)
        I(f"v_lshrrev_b32 v{VT0}, 2, v{VL16}")
        I(f"ds_read_b32 v{VINFO}, v{VT0} offset:{INFO}")
        I("s_movk_i32 s48, 64")
        I("s_waitcnt lgkmcnt(0)")
        stamp(e, c, 30)
        e.label(t)
        I(f"v_readlane_b32 s42, v{VINFO}, s{sN}")
        e.nop(1)
        I(f"s_lshr_b32 s{sR}, s42, 16")
        I("s_and_b32 s42, s42, 0xffff")
        I(f"s_lshl_b32 s{sA}, s42, 4")
        if c.split:
            I(f"s_branch {dn}")
            e.label(sp)
            I(f"s_sub_u32 s42, s42, {2*NODES-16}")
            I("s_lshr_b32 s43, s42, 1")
            I(f"s_add_u32 s{sN}, s43, 32")
            I(f"s_cmp_lt_u32 s{sN}, s48")
            I(f"s_cbranch_scc1 {t}b")
            I(f"v_mov_b32 v{VT0}, 0")
            spin(e, t + "c", VT1, VT0, BREADY, 4, 45, 44, sleep=1)
            I(f"v_lshrrev_b32 v{VT0}, 2, v{VL16}")
            I(f"ds_read_b32 v{VINFO}, v{VT0} offset:{INFO}")
            I("s_movk_i32 s48, 64")
            I("s_waitcnt lgkmcnt(0)")
            e.label(t + "b")
            I(f"v_readlane_b32 s44, v{VINFO}, s{sN}")
            I(f"s_movk_i32 s{sH}, 256")
            I(f"s_lshr_b32 s{sR}, s44, 16")
            I("s_and_b32 s44, s44, 0xffff")
            I(f"s_min_u32 s45, s{sR}, 32")
            I("s_bitcmp1_b32 s42, 0")
            I(f"s_cbranch_scc1 {sp}h")
            I(f"s_mov_b32 s{sR}, s45")
            I(f"s_lshl_b32 s{sA}, s44, 4")
            I(f"s_branch {dn}")
            e.label(sp + "h")
            I(f"s_sub_u32 s{sR}, s{sR}, s45")
            I("s_add_u32 s44, s44, s45")
            I(f"s_lshl_b32 s{sA}, s44, 4")
            I(f"s_or_b32 s{sN}, s43, 64")
            e.label(dn)
    def off_read(hf):
        I(f"ds_read_b128 v[{AD}:{AD+3}], v{VOR} offset:{OSC+128*hf}")
        I(f"ds_read_b128 v[{AD+4}:{AD+7}], v{VOR} offset:{OSC+128*hf+16}")
    def off_add():
        if c.addtid: return
        for i in range(8):
            I(f"v_add_u32 v{AD+i}, v{AD+i}, v{VLOFF}")
    def prep_block():
        r = B
        I(f"v_add_u32 v{VT0}, s{sA}, v{VL16}")
        I(f"ds_read_b128 v[{r}:{r+3}], v{VT0} offset:{RAW}")
        l = lab("nf")
        I(f"s_cmp_gt_u32 s{sR}, 64")
        I(f"s_cbranch_scc1 {l}")
        fetch_issue()
        e.label(l)
        I(f"v_cmp_gt_u32 vcc, s{sR}, v{VLANE}")
        I("s_waitcnt lgkmcnt(0)")
        I(f"v_lshrrev_b32 v{r+11}, 16, v{r+3}")
        if c.addtid:
            I(f"v_lshlrev_b32 v{r+11}, 5, v{r+11}")
            I(f"v_sub_u32 v{r+11}, v{r+11}, v{VLOFF}")
        else:
            I(f"v_lshlrev_b32 v{r+11}, 9, v{r+11}")
            if c.oobtail: I(f"v_cndmask_b32 v{r+11}, 2.0, v{r+11}, vcc")
        I(f"ds_write_b32 v{VOW}, v{r+11} offset:{OSC}")
        off_read(0)
        if not c.x_noexp:
            I(f"v_cndmask_b32 v{r}, 0, v{r}, vcc")
            I(f"v_cndmask_b32 v{r+1}, 0, v{r+1}, vcc")
            I(f"v_lshlrev_b32 v{r+8}, 16, v{r+2}")
            I(f"v_and_b32 v{r+9}, v{VMASK}, v{r+2}")
            I(f"v_lshlrev_b32 v{r+10}, 16, v{r+3}")
            I(f"v_lshlrev_b32 v{r+4}, 16, v{r}")
            I(f"v_and_b32 v{r+5}, v{VMASK}, v{r}")
            I(f"v_lshlrev_b32 v{r+6}, 16, v{r+1}")
            I(f"v_and_b32 v{r+7}, v{VMASK}, v{r+1}")
            for j in range(3):
                for d in range(4):
                    I(f"v_mul_f32 v{r+12+4*j+d}, v{r+4+d}, v{r+8+j}")
            I(f"v_cvt_pk_bf16_f32 v{r+2}, v{r+12}, v{r+13}")
            I(f"v_cvt_pk_bf16_f32 v{r+3}, v{r+14}, v{r+15}")
            for k in range(4):
                I(f"v_cvt_pk_bf16_f32 v{r+24+k}, v{r+16+2*k}, v{r+17+2*k}")
        I(f"ds_write_b128 v{VSCRW}, v[{r}:{r+3}]")
        I(f"ds_write_b128 v{VSCRW}, v[{r+24}:{r+27}] offset:{PL1}")
        I("s_waitcnt lgkmcnt(2)")
        off_add()
    def ld(i):
        if c.x_noload: return
        I(f"buffer_load_dwordx4 v[{LD+4*i}:{LD+4*i+3}], v{AD+i}, s[4:7], {'0' if c.x_samehalf else 's%d' % sH} {'idxen' if c.addtid else 'offen'}")
    def perm(q, jj, k16=False):
        if c.x_noperm: return
        d = B + 2*q + jj if k16 else B + 4*q + jj
        I(f"v_perm_b32 v{d}, v{LD+4*(2*jj+1)+q//2}, v{LD+4*(2*jj)+q//2}, s{29 if q & 1 else 28}")
    def loads_partial(done):
        for i in range(7):
            I(f"s_cmp_le_u32 s{sL}, {4*i}")
            I(f"s_cbranch_scc1 {done}")
            ld(i)
    def perms_loads():
        part, done = lab("pp"), lab("pd")
        I("s_waitcnt vmcnt(0)")
        I(f"s_cmp_le_u32 s{sL}, 28")
        I(f"s_cbranch_scc1 {part}")
        for jj in range(4):
            for q in range(8): perm(q, jj)
            ld(2*jj); ld(2*jj+1)
        I(f"s_branch {done}")
        e.label(part)
        for jj in range(4):
            for q in range(8): perm(q, jj)
        loads_partial(done)
        e.label(done)
    def mfmas(first, k16=False):
        if c.x_nomfma: return
        for q in range(8):
            d = f"v[{ACC+4*q}:{ACC+4*q+3}]"
            if k16: I(f"v_mfma_f32_16x16x16_bf16 {d}, v[{A}:{A+1}], v[{B+2*q}:{B+2*q+1}], {'0' if first else d}")
            else: I(f"v_mfma_f32_16x16x32_bf16 {d}, v[{A}:{A+3}], v[{B+4*q}:{B+4*q+3}], {'0' if first else d}")
    def tr_read(hf):
        I(f"ds_read_b64_tr_b16 v[{A}:{A+1}], v{VTRA} offset:{512*hf}")
        I(f"ds_read_b64_tr_b16 v[{A+2}:{A+3}], v{VTRA} offset:{512*hf+256}")

    if c.stamps: I("s_mov_b32 s92, 16")
    setup_item("L2_g_done")
    prep_block()
    for i in range(8): ld(i)
    for first in (1, 0):
        e.label(f"L2_A{first}")
        tr_read(0)
        I(f"s_cmp_gt_u32 s{sR}, 32")
        I(f"s_cbranch_scc1 L2_AB{first}")
        I(f"s_mov_b32 s{sCF}, {first}")
        I(f"s_mov_b32 s{sCR}, s{sR}")
        I("s_branch L2_XN")
        e.label(f"L2_AB{first}")
        off_read(1)
        I(f"s_sub_u32 s{sL}, s{sR}, 32")
        I("s_waitcnt lgkmcnt(0)")
        off_add()
        perms_loads()
        mfmas(first)
        if first: I("s_branch L2_B")
    e.label("L2_B")
    tr_read(1)
    I(f"s_cmp_gt_u32 s{sR}, 64")
    I("s_cbranch_scc0 L2_BN")
    I(f"s_sub_u32 s{sR}, s{sR}, 64")
    I(f"s_add_u32 s{sA}, s{sA}, 1024")
    I(f"s_mov_b32 s{sL}, s{sR}")
    prep_block()
    perms_loads()
    I("s_waitcnt lgkmcnt(0)")
    mfmas(0)
    I("s_branch L2_A0")
    e.label("L2_BN")
    I(f"s_mov_b32 s{sCF}, 0")
    I(f"s_sub_u32 s{sCR}, s{sR}, 32")
    e.label("L2_XN")
    I(f"s_mov_b32 s{sCN}, s{sN}")
    I(f"s_mov_b32 s{sCH}, s{sH}")
    I(f"s_mov_b32 s{sNV}, 1")
    setup_item("L2_XN_none")
    I(f"s_mov_b32 s{sL}, s{sR}")
    prep_block()
    I("s_branch L2_XN_go")
    e.label("L2_XN_none")
    I(f"s_mov_b32 s{sNV}, 0")
    I(f"s_mov_b32 s{sL}, 0")
    e.label("L2_XN_go")
    I(f"s_cmp_le_u32 s{sCR}, 16")
    I("s_cbranch_scc1 L2_XN_k16")
    perms_loads()
    I("s_waitcnt lgkmcnt(0)")
    I(f"s_cmp_eq_u32 s{sCF}, 0")
    I("s_cbranch_scc1 L2_XN_acc")
    mfmas(1)
    I("s_branch L2_XN_epi")
    e.label("L2_XN_acc")
    mfmas(0)
    I("s_branch L2_XN_epi")
    e.label("L2_XN_k16")
    I("s_waitcnt vmcnt(0)")
    for jj in range(2):
        for q in range(8): perm(q, jj, True)
    I(f"s_cmp_le_u32 s{sL}, 28")
    I("s_cbranch_scc1 L2_XN_k16p")
    for i in range(8): ld(i)
    I("s_branch L2_XN_k16d")
    e.label("L2_XN_k16p")
    loads_partial("L2_XN_k16d")
    e.label("L2_XN_k16d")
    I("s_waitcnt lgkmcnt(0)")
    I(f"s_cmp_eq_u32 s{sCF}, 0")
    I("s_cbranch_scc1 L2_XN_k16acc")
    mfmas(1, True)
    I("s_branch L2_XN_epi")
    e.label("L2_XN_k16acc")
    mfmas(0, True)
    e.label("L2_XN_epi")
    I(f"s_lshl_b32 s42, s{sCH}, 5")
    I(f"v_add_u32 v{VT0}, s42, v{VWR}")
    for q in range(8):
        I(f"ds_read_b128 v[{B+4*q}:{B+4*q+3}], v{VT0} offset:{q*1024}")
    I(f"s_lshr_b32 s43, s{sCN}, 4")
    I(f"s_lshl_b32 s43, s43, 2")
    I(f"s_cmp_eq_u32 s{sCH}, 0")
    I("s_cbranch_scc1 L2_nowar")
    I(f"v_mov_b32 v{VT1}, s43")
    spin(e, "war", VT0, VT1, GDONE, 4, 45, 44)
    if c.split:
        I("s_cmp_eq_u32 s43, 16")
        I("s_cselect_b32 s43, 8, s43")
    I("s_add_u32 s43, s43, 16")
    e.label("L2_nowar")
    I(f"s_and_b32 s44, s{sCN}, 15")
    I("s_lshl_b32 s44, s44, 4")
    I(f"s_and_b32 s45, s{sCN}, 63")
    I(f"s_lshl_b32 s45, s45, 10")
    I(f"s_add_u32 s45, s45, {T}")
    I(f"v_xor_b32 v{VT0}, s44, v{VL16}")
    I(f"v_add_u32 v{VT0}, s45, v{VT0}")
    I(f"v_mov_b32 v{VT1}, s43")
    I("s_waitcnt lgkmcnt(0)")
    for q in range(8):
        I(f"v_mul_f32 v{B+4*q}, v{B+4*q}, v{ACC+4*q}")
    for d in range(1, 4):
        for q in range(8):
            I(f"v_fmac_f32 v{B+4*q}, v{B+4*q+d}, v{ACC+4*q+d}")
    for k in range(4):
        I(f"v_cvt_pk_bf16_f32 v{A+k}, v{B+8*k}, v{B+8*k+4}")
    I(f"ds_write_b128 v{VT0}, v[{A}:{A+3}]")
    if not c.nowait: I("s_waitcnt lgkmcnt(0)")
    I("s_mov_b64 exec, 1")
    I(f"ds_add_u32 v{VT1}, v{VONE} offset:{DONE}")
    I("s_mov_b64 exec, -1")
    if c.stamps:
        I("s_memrealtime s[90:91]")
        I("s_waitcnt lgkmcnt(0)")
        I("s_mov_b32 m0, s92")
        I(f"v_writelane_b32 v{STV}, s90, m0")
        I("s_add_u32 s92, s92, 1")
        I("s_min_u32 s92, s92, 23")
    I(f"s_cmp_lg_u32 s{sNV}, 0")
    I("s_cbranch_scc1 L2_A1")

def gather_loop_s(e, c, L):
    I = e.I
    RAW, T, NEXT, DONE, GDONE, OSC, PL1, BREADY, INFO = (L[k] for k in "RAW T NEXT DONE GDONE OSC PL1 BREADY INFO".split())
    VLANE, VINFO, VNEXT, VLOFF, VMASK, VOW, VOR, VSCRW, VTRA, VWR, VL16, VT0, VT1, VONE = (L[k] for k in
        "VLANE VINFO VNEXT VLOFF VMASK VOW VOR VSCRW VTRA VWR VL16 VT0 VT1 VONE".split())
    VTRB, VIDX = L["VJ"], L["VSEL"]
    ACC, LD, B, A, AD = 0, 32, 64, 96, 100
    sA, sR, sH, sN, sNV = 32, 33, 34, 35, 37
    sCN, sCH, sCR, sL = 38, 39, 41, 36
    uid = [0]
    def lab(p):
        uid[0] += 1
        return f"L3_{p}{uid[0]}"
    def fetch_issue():
        I("s_mov_b64 exec, 1")
        I(f"ds_add_rtn_u32 v{VNEXT}, v{VL16}, v{VONE} offset:{NEXT}")
        I("s_mov_b64 exec, -1")
    def setup_item(none_label):
        I(f"v_readfirstlane_b32 s42, v{VNEXT}")
        e.nop(1)
        I(f"s_cmp_ge_u32 s42, {2*NODES}")
        I(f"s_cbranch_scc1 {none_label}")
        I(f"s_cmp_ge_u32 s42, {NODES}")
        I(f"s_cselect_b32 s{sH}, 256, 0")
        I(f"s_cselect_b32 s43, {NODES}, 0")
        I(f"s_cmp_ge_u32 s42, {NODES+16}")
        I(f"s_cselect_b32 s43, {NODES-32}, s43")
        I(f"s_cmp_ge_u32 s42, {NODES+18}")
        I(f"s_cselect_b32 s43, {NODES+2}, s43")
        I(f"s_sub_u32 s{sN}, s42, s43")
        t = lab("bw")
        I(f"s_cmp_lt_u32 s{sN}, s48")
        I(f"s_cbranch_scc1 {t}")
        stamp(e, c, 29)
        I(f"v_mov_b32 v{VT0}, 0")
        spin(e, t, VT1, VT0, BREADY, 4, 45, 44, sleep=1)
        I(f"v_lshrrev_b32 v{VT0}, 2, v{VL16}")
        I(f"ds_read_b32 v{VINFO}, v{VT0} offset:{INFO}")
        I("s_movk_i32 s48, 64")
        I("s_waitcnt lgkmcnt(0)")
        stamp(e, c, 30)
        e.label(t)
        I(f"v_readlane_b32 s42, v{VINFO}, s{sN}")
        e.nop(1)
        I(f"s_lshr_b32 s{sR}, s42, 16")
        I("s_and_b32 s42, s42, 0xffff")
        I(f"s_lshl_b32 s{sA}, s42, 4")
    def off_read(hf):
        I(f"ds_read_b128 v[{AD}:{AD+3}], v{VOR} offset:{OSC+128*hf}")
        I(f"ds_read_b128 v[{AD+4}:{AD+7}], v{VOR} offset:{OSC+128*hf+16}")
    def off_add():
        for i in range(8):
            I(f"v_add_u32 v{AD+i}, v{AD+i}, v{VLOFF}")
    def prep_block():
        r = B
        I(f"v_add_u32 v{VT0}, s{sA}, v{VL16}")
        I(f"ds_read_b128 v[{r}:{r+3}], v{VT0} offset:{RAW}")
        l = lab("nf")
        I(f"s_cmp_gt_u32 s{sR}, 64")
        I(f"s_cbranch_scc1 {l}")
        fetch_issue()
        e.label(l)
        I(f"v_cmp_gt_u32 vcc, s{sR}, v{VLANE}")
        I("s_waitcnt lgkmcnt(0)")
        I(f"v_lshrrev_b32 v{r+11}, 16, v{r+3}")
        I(f"v_lshlrev_b32 v{r+11}, 9, v{r+11}")
        I(f"v_cndmask_b32 v{r+11}, 2.0, v{r+11}, vcc")
        I(f"ds_write_b32 v{VOW}, v{r+11} offset:{OSC}")
        off_read(0)
        I(f"v_cndmask_b32 v{r}, 0, v{r}, vcc")
        I(f"v_cndmask_b32 v{r+1}, 0, v{r+1}, vcc")
        I(f"v_lshlrev_b32 v{r+8}, 16, v{r+2}")
        I(f"v_and_b32 v{r+9}, v{VMASK}, v{r+2}")
        I(f"v_lshlrev_b32 v{r+10}, 16, v{r+3}")
        I(f"v_lshlrev_b32 v{r+4}, 16, v{r}")
        I(f"v_and_b32 v{r+5}, v{VMASK}, v{r}")
        I(f"v_lshlrev_b32 v{r+6}, 16, v{r+1}")
        I(f"v_and_b32 v{r+7}, v{VMASK}, v{r+1}")
        for j in range(3):
            for d in range(4):
                I(f"v_mul_f32 v{r+12+4*j+d}, v{r+4+d}, v{r+8+j}")
        I(f"v_cvt_pk_bf16_f32 v{r+2}, v{r+12}, v{r+13}")
        I(f"v_cvt_pk_bf16_f32 v{r+3}, v{r+14}, v{r+15}")
        for k in range(4):
            I(f"v_cvt_pk_bf16_f32 v{r+24+k}, v{r+16+2*k}, v{r+17+2*k}")
        I(f"ds_write_b128 v{VSCRW}, v[{r}:{r+3}]")
        I(f"ds_write_b128 v{VSCRW}, v[{r+24}:{r+27}] offset:{PL1}")
        I("s_waitcnt lgkmcnt(2)")
        off_add()
    def ld(i):
        if c.x_noload: return
        I(f"buffer_load_dwordx4 v[{LD+4*i}:{LD+4*i+3}], v{AD+i}, s[4:7], s{sH} offen")
    def moves(jj, k16=False):
        for p in range(4):
            d = B + (4 if k16 else 8) * p + 2 * jj
            a, b = LD + 8*jj + (p & 2), LD + 8*jj + 4 + (p & 2)
            I(f"v_pk_mov_b32 v[{d}:{d+1}], v[{a}:{a+1}], v[{b}:{b+1}] op_sel:[{p&1},{p&1}]")
    def loads_partial(done):
        for i in range(7):
            I(f"s_cmp_le_u32 s{sL}, {4*i}")
            I(f"s_cbranch_scc1 {done}")
            ld(i)
    def moves_loads():
        part, done = lab("pp"), lab("pd")
        I("s_waitcnt vmcnt(0)")
        I(f"s_cmp_le_u32 s{sL}, 28")
        I(f"s_cbranch_scc1 {part}")
        for jj in range(4):
            moves(jj)
            ld(2*jj); ld(2*jj+1)
        I(f"s_branch {done}")
        e.label(part)
        for jj in range(4): moves(jj)
        loads_partial(done)
        e.label(done)
    def macs(k16=False):
        for q in range(8):
            d = f"v[{ACC+4*q}:{ACC+4*q+3}]"
            p = q >> 1
            if k16: I(f"v_smfmac_f32_16x16x32_bf16 {d}, v[{A}:{A+1}], v[{B+4*p}:{B+4*p+3}], v{VIDX} cbsz:0 abid:{2*(q&1)}")
            else: I(f"v_smfmac_f32_16x16x64_bf16 {d}, v[{A}:{A+3}], v[{B+8*p}:{B+8*p+7}], v{VIDX} cbsz:0 abid:{q&1}")
    def tr32(hf):
        I(f"ds_read_b64_tr_b16 v[{A}:{A+1}], v{VTRB} offset:{512*hf}")
        I(f"ds_read_b64_tr_b16 v[{A+2}:{A+3}], v{VTRB} offset:{512*hf+16}")
    def tr16(hf):
        I(f"ds_read_b64_tr_b16 v[{A}:{A+1}], v{VTRA} offset:{512*hf}")
    def zero_acc():
        if c.zpk:
            for k in range(0, 32, 2): I(f"v_pk_mov_b32 v[{ACC+k}:{ACC+k+1}], 0, 0")
        else:
            for k in range(32): I(f"v_mov_b32 v{ACC+k}, 0")

    if c.stamps: I("s_mov_b32 s92, 16")
    I(f"v_lshrrev_b32 v{VT0}, 4, v{VLANE}")
    I(f"v_lshrrev_b32 v{VT1}, 5, v{VLANE}")
    I(f"v_mul_u32_u24 v{VT1}, 12, v{VT1}")
    I(f"v_add_u32 v{VT0}, v{VT0}, v{VT1}")
    I(f"v_lshl_add_u32 v{VTRB}, v{VT0}, 4, v{VTRA}")
    I(f"v_mov_b32 v{VIDX}, 0xdddd8888")
    setup_item("L2_g_done")
    prep_block()
    for i in range(8): ld(i)
    zero_acc()
    e.label("L3_A")
    I(f"s_mov_b32 s{sCR}, s{sR}")
    I(f"s_cmp_gt_u32 s{sR}, 32")
    I("s_cbranch_scc0 L3_AN")
    tr32(0)
    off_read(1)
    I(f"s_sub_u32 s{sL}, s{sR}, 32")
    I("s_waitcnt lgkmcnt(0)")
    off_add()
    moves_loads()
    macs()
    I(f"s_sub_u32 s{sCR}, s{sR}, 32")
    I(f"s_cmp_gt_u32 s{sR}, 64")
    I("s_cbranch_scc0 L3_BN")
    tr32(1)
    I(f"s_sub_u32 s{sR}, s{sR}, 64")
    I(f"s_add_u32 s{sA}, s{sA}, 1024")
    I(f"s_mov_b32 s{sL}, s{sR}")
    prep_block()
    moves_loads()
    I("s_waitcnt lgkmcnt(0)")
    macs()
    I("s_branch L3_A")
    for hf, nm in ((0, "AN"), (1, "BN")):
        e.label(f"L3_{nm}")
        I(f"s_cmp_le_u32 s{sCR}, 16")
        I(f"s_cbranch_scc1 L3_{nm}16")
        tr32(hf)
        I("s_branch L3_XN")
        e.label(f"L3_{nm}16")
        tr16(hf)
        if hf == 0: I("s_branch L3_XN")
    e.label("L3_XN")
    I(f"s_mov_b32 s{sCN}, s{sN}")
    I(f"s_mov_b32 s{sCH}, s{sH}")
    I(f"s_mov_b32 s{sNV}, 1")
    setup_item("L3_XN_none")
    I(f"s_mov_b32 s{sL}, s{sR}")
    prep_block()
    I("s_branch L3_XN_go")
    e.label("L3_XN_none")
    I(f"s_mov_b32 s{sNV}, 0")
    I(f"s_mov_b32 s{sL}, 0")
    e.label("L3_XN_go")
    I(f"s_cmp_le_u32 s{sCR}, 16")
    I("s_cbranch_scc1 L3_XN_k16")
    moves_loads()
    I("s_waitcnt lgkmcnt(0)")
    macs()
    I("s_branch L3_XN_epi")
    e.label("L3_XN_k16")
    I("s_waitcnt vmcnt(0)")
    moves(0, True); moves(1, True)
    I(f"s_cmp_le_u32 s{sL}, 28")
    I("s_cbranch_scc1 L3_XN_k16p")
    for i in range(8): ld(i)
    I("s_branch L3_XN_k16d")
    e.label("L3_XN_k16p")
    loads_partial("L3_XN_k16d")
    e.label("L3_XN_k16d")
    I("s_waitcnt lgkmcnt(0)")
    macs(True)
    e.label("L3_XN_epi")
    I(f"s_lshl_b32 s42, s{sCH}, 5")
    I(f"v_add_u32 v{VT0}, s42, v{VWR}")
    for q in range(8):
        I(f"ds_read_b128 v[{B+4*q}:{B+4*q+3}], v{VT0} offset:{q*1024}")
    I(f"s_lshr_b32 s43, s{sCN}, 4")
    I(f"s_lshl_b32 s43, s43, 2")
    I(f"s_cmp_eq_u32 s{sCH}, 0")
    I("s_cbranch_scc1 L3_nowar")
    I(f"v_mov_b32 v{VT1}, s43")
    spin(e, "war", VT0, VT1, GDONE, 4, 45, 44)
    I("s_add_u32 s43, s43, 16")
    e.label("L3_nowar")
    I(f"s_and_b32 s44, s{sCN}, 15")
    I("s_lshl_b32 s44, s44, 4")
    I(f"s_lshl_b32 s45, s{sCN}, 10")
    I(f"s_add_u32 s45, s45, {T}")
    I(f"v_xor_b32 v{VT0}, s44, v{VL16}")
    I(f"v_add_u32 v{VT0}, s45, v{VT0}")
    I(f"v_mov_b32 v{VT1}, s43")
    I("s_waitcnt lgkmcnt(0)")
    for q in range(8):
        I(f"v_mul_f32 v{B+4*q}, v{B+4*q}, v{ACC+4*q}")
    for d in range(1, 4):
        for q in range(8):
            I(f"v_fmac_f32 v{B+4*q}, v{B+4*q+d}, v{ACC+4*q+d}")
    for k in range(4):
        I(f"v_cvt_pk_bf16_f32 v{A+k}, v{B+8*k}, v{B+8*k+4}")
    I(f"ds_write_b128 v{VT0}, v[{A}:{A+3}]")
    I("s_mov_b64 exec, 1")
    I(f"ds_add_u32 v{VT1}, v{VONE} offset:{DONE}")
    I("s_mov_b64 exec, -1")
    zero_acc()
    if c.stamps:
        I("s_memrealtime s[90:91]")
        I("s_waitcnt lgkmcnt(0)")
        I("s_mov_b32 m0, s92")
        I(f"v_writelane_b32 v{STV}, s90, m0")
        I("s_add_u32 s92, s92, 1")
        I("s_min_u32 s92, s92, 23")
    I(f"s_cmp_lg_u32 s{sNV}, 0")
    I("s_cbranch_scc1 L3_A")

HEADER = """; equiformer tensor-product message passing, one persistent launch (one workgroup per CU):
"""

def gen_probe(e, c):
    kA, a0, a1, sA, oA, kB, b0, b1, sB, oB = c.probe.split(",")
    kernel_header(e, "eqprobe_kernel")
    I = e.I
    I("s_cmp_ge_u32 s2, 1")
    I("s_cbranch_scc1 LP_end")
    I("s_memrealtime s[20:21]")
    I("s_load_dwordx2 s[4:5], s[0:1], 88")
    I("s_waitcnt lgkmcnt(0)")
    srd(e, 8, 4, 32 << 20)
    I(f"v_min_u32 v1, {c.nwg-1}, v0")
    I("v_lshlrev_b32 v1, 11, v1")
    I("v_mov_b32 v10, 0"); I("v_mov_b32 v11, -1"); I("v_mov_b32 v12, 0")
    I("ds_write_b32 v10, v11 offset:0"); I("ds_write_b32 v10, v12 offset:4"); I("ds_write_b32 v10, v11 offset:8"); I("ds_write_b32 v10, v12 offset:12")
    I("s_waitcnt lgkmcnt(0)"); I("s_barrier")
    regs = []
    for (k, w0, w1, sl, off) in ((kA, a0, a1, sA, 0), (kB, b0, b1, sB, 8)):
        if k == "now":
            I(f"v_mov_b32 v{16+len(regs)}, s20"); regs.append(off); continue
        I(f"s_mov_b32 s12, {STAMPOFF}")
        for w in range(int(w0), int(w1)):
            I(f"buffer_load_dword v{16+len(regs)}, v1, s[8:11], s12 offen offset:{w*128 + int(sl)*4}")
            regs.append(off)
    I("s_waitcnt vmcnt(0)")
    for off, op in ((0, oA), (8, oB)):
        idx = [n for n, o in enumerate(regs) if o == off]
        for n in idx[1:]:
            I(f"v_{op}_u32 v{16+idx[0]}, v{16+idx[0]}, v{16+n}")
        I(f"ds_{op}_u32 v10, v{16+idx[0]} offset:{off + (0 if op == 'min' else 4)}")
    I("s_waitcnt lgkmcnt(0)"); I("s_barrier")
    I(f"ds_read_b32 v3, v10 offset:{0 if oA == 'min' else 4}")
    I(f"ds_read_b32 v4, v10 offset:{8 if oB == 'min' else 12}")
    I("s_waitcnt lgkmcnt(0)")
    I("v_sub_u32 v3, v3, v4")
    I("v_min_u32 v3, 0x2000, v3")
    I("v_readfirstlane_b32 s14, v3")
    I("s_memrealtime s[16:17]")
    I("s_mul_i32 s14, s14, 10")
    I("s_waitcnt lgkmcnt(0)")
    e.label("LP_spin")
    I("s_memrealtime s[18:19]")
    I("s_waitcnt lgkmcnt(0)")
    I("s_sub_u32 s18, s18, s16")
    I("s_cmp_lt_u32 s18, s14")
    I("s_cbranch_scc1 LP_spin")
    e.label("LP_end")
    I("s_endpgm")
    return "eqprobe_kernel", 64, 32

def generate(c):
    e = Emitter()
    e.raw('.amdgcn_target "amdgcn-amd-amdhsa--gfx950"')
    e.raw(".text")
    k = gen_main(e, c)
    head = HEADER + f"; @launch grid=({c.nwg},1,1) block=(1024,1,1) lds={c.lds}\n"
    tail = '.section .rodata,"a"\n.p2align 6\n' + kd(*k)
    if c.probe:
        kp = gen_probe(e, c)
        head = HEADER + f"; @launch kernel={KNAME} grid=({c.nwg},1,1) block=(1024,1,1) lds={c.lds}\n; @launch kernel=eqprobe_kernel grid=(1,1,1) block=(256,1,1) lds=64\n"
        tail += ".p2align 6\n" + kd(*kp)
    return head + e.text() + tail

if __name__ == "__main__":
    c = Cfg()
    out = sys.argv[1]
    for kv in sys.argv[2:]:
        k, v = kv.split("=", 1)
        old = getattr(c, k)
        setattr(c, k, type(old)(int(v)) if isinstance(old, (bool, int)) else v.replace("+", " "))
    open(out, "w").write(generate(c))
```

```python
import sys
from emit import Emitter

N, E = 12500, 800000
NODES, HN = 50, 25
NCH = 250
CSTRIDE = 70784
PAYOFF, TABOFF, KEYOFF = 0, 51200, 67584
KSTAGE = 51200
WSBYTES = NCH * CSTRIDE
KIN = 20
KNAME = "gather_scatter__tensor_product_equiv_equiformer__graph_kernel"
STAMPOFF = 24 << 20

class Cfg:
    nwg = 250
    st_flags = "sc1"
    ld_flags = "nt"
    rec_flags = "sc1"
    out_flags = "sc1"
    pfx_lines = 64
    pfx0_lines = 96
    stamps = False
    cap = 1888
    x_noperm = 0
    x_noexp = 0
    x_nomfma = 0
    x_noload = 0
    x_samehalf = 0
    x_nobload = 0
    codepf = 26
    tlbpf = 0
    codeearly = 0
    sleep = 12
    psleep = 2
    probe = ""
    addtid = 0
    split = 0
    static1 = 1
    wrlds = 0
    wideout = 1
    out_early = None
    paypos = 2
    pfwait = 0
    smf = 0
    zpk = 1
    splitw = 0
    cpfwg = 32
    wlate = 0
    coal = 1
    pf1_tile = -1
    pf1_lines = 256
    prio_g = 0
    prio_m = 0
    ld2_flags = None
    nowait = 1
    fastlast = 1
    pfx2_lines = 0
    pfx2_pos = 0
    oobtail = 1
    bearly = 1
    tidw3 = "0x00800000"

def srd(e, d, b, nbytes, w1=None, w3="0x20000"):
    e.I(f"s_mov_b32 s{d}, s{b}")
    if w1: e.I(f"s_or_b32 s{d+1}, s{b+1}, {w1}")
    else: e.I(f"s_mov_b32 s{d+1}, s{b+1}")
    e.I(f"s_mov_b32 s{d+2}, {nbytes}")
    e.I(f"s_mov_b32 s{d+3}, {w3}")

def scan64(e, v):
    for sh in (1, 2, 4, 8):
        e.I(f"v_add_u32_dpp v{v}, v{v}, v{v} row_shr:{sh} row_mask:0xf bank_mask:0xf")
    e.I(f"v_add_u32_dpp v{v}, v{v}, v{v} row_bcast:15 row_mask:0xa bank_mask:0xf")
    e.I(f"v_add_u32_dpp v{v}, v{v}, v{v} row_bcast:31 row_mask:0xc bank_mask:0xf")

def prefetch_x(e, nlines, vt, vtid, nthreads, slice_s, half, srdx, first=0, lds=False):
    if nlines <= 0: return 0
    e.I(f"s_mul_i32 s46, s{slice_s}, 782")
    if first: e.I(f"s_add_u32 s46, s46, {first}")
    e.I(f"s_mov_b32 s47, {nlines}")
    it = (nlines + nthreads - 1) // nthreads
    for k in range(it):
        e.I(f"v_add_u32 v{vt}, {k*nthreads}, v{vtid}")
        e.I(f"v_cmp_gt_u32 vcc, s47, v{vt}")
        e.I(f"v_add_u32 v{vt}, s46, v{vt}")
        e.I(f"v_and_b32 v{vt+1}, 1, v{vt}")
        e.I(f"v_lshrrev_b32 v{vt}, 1, v{vt}")
        e.I(f"v_lshlrev_b32 v{vt}, 9, v{vt}")
        e.I(f"v_lshl_add_u32 v{vt}, v{vt+1}, 7, v{vt}")
        e.I(f"v_cndmask_b32 v{vt}, 2.0, v{vt}, vcc")
        if lds:
            if half: e.I(f"v_add_u32 v{vt}, 256, v{vt}")
            e.I(f"buffer_load_dword v{vt}, s[{srdx}:{srdx+3}], 0 offen lds")
        else:
            e.I(f"buffer_load_dword v{vt+2}, v{vt}, s[{srdx}:{srdx+3}], 0 offen offset:{half*256}")
    return it

STV, TIDV = 127, 126
def stamp(e, c, slot, ins="s_memrealtime"):
    if not c.stamps: return
    e.I(f"{ins} s[90:91]")
    e.I("s_waitcnt lgkmcnt(0)")
    e.I(f"v_writelane_b32 v{STV}, s90, {slot}")

def stamp_store(e, c, vtmp):
    if not c.stamps: return
    e.I(f"v_lshrrev_b32 v{vtmp}, 6, v{TIDV}")
    e.I(f"s_lshl_b32 s90, s2, 4")
    e.I(f"v_add_u32 v{vtmp}, s90, v{vtmp}")
    e.I(f"v_lshlrev_b32 v{vtmp}, 7, v{vtmp}")
    e.I(f"v_and_b32 v{vtmp+1}, 63, v{TIDV}")
    e.I(f"v_lshl_add_u32 v{vtmp}, v{vtmp+1}, 2, v{vtmp}")
    e.I(f"v_cmp_gt_u32 vcc, 32, v{vtmp+1}")
    e.I(f"v_cndmask_b32 v{vtmp}, 2.0, v{vtmp}, vcc")
    e.I(f"s_mov_b32 s90, {STAMPOFF}")
    e.I(f"buffer_store_dword v{STV}, v{vtmp}, s[8:11], s90 offen")

def kernel_header(e, name):
    e.raw(f".globl {name}")
    e.raw(".p2align 8")
    e.raw(f".type {name},@function")
    e.raw(f"{name}:")
    e.hist = []

def kd(name, nv, ns):
    return f""".amdhsa_kernel {name}
  .amdhsa_next_free_vgpr {nv}
  .amdhsa_next_free_sgpr {ns}
  .amdhsa_accum_offset {(nv+3)//4*4}
  .amdhsa_group_segment_fixed_size 0
  .amdhsa_kernarg_size 96
  .amdhsa_user_sgpr_count 2
  .amdhsa_user_sgpr_kernarg_segment_ptr 1
  .amdhsa_system_sgpr_workgroup_id_x 1
  .amdhsa_float_denorm_mode_32 3
.end_amdhsa_kernel
"""

def path_of(jp, blk):
    if blk == 0: return (0, 0, 1) if jp == 0 else (2, jp, 1)
    k = blk - 1
    if jp == 0: return (3, 1 + k, 1)
    j = jp - 1
    if j == k: return (1, 0, 1)
    i = 3 - j - k
    return (4, 1 + i, 1 if k == (j + 1) % 3 else -1)

class Lay: pass

def spin(e, tag, vdst, vaddr, off, need, scnt, sval, sleep=None, bound="0x400000"):
    I = e.I
    I(f"s_mov_b32 s{scnt}, 0")
    e.label(f"L_sp{tag}")
    I(f"ds_read_b32 v{vdst}, v{vaddr} offset:{off}")
    I("s_waitcnt lgkmcnt(0)")
    I(f"v_readfirstlane_b32 s{sval}, v{vdst}")
    I(f"s_add_u32 s{scnt}, s{scnt}, 1")
    I(f"s_cmp_ge_u32 s{sval}, {need}")
    I(f"s_cbranch_scc1 L_sp{tag}_ok")
    if sleep: I(f"s_sleep {sleep}")
    I(f"s_cmp_lt_u32 s{scnt}, {bound}")
    I(f"s_cbranch_scc1 L_sp{tag}")
    e.label(f"L_sp{tag}_ok")

def tag_bad(e, dst, r, tmp, odd):
    I = e.I
    I(f"v_xor_b32 v{tmp}, s87, v{r}")
    I(f"v_xor_b32 v{dst}, s86, v{r+1}")
    I(f"v_lshrrev_b32 v{tmp}, 24, v{tmp}")
    I(f"v_or_b32 v{dst}, v{dst}, v{tmp}")
    I(f"v_xor_b32 v{tmp}, s3, v{r+3}")
    I(f"v_lshrrev_b32 v{tmp}, 12, v{tmp}")
    I(f"v_cndmask_b32 v{dst}, v{dst}, v{tmp}, {odd}")

def gen_main(e, c):
    L = Lay()
    CAP = c.cap
    NWG = c.nwg
    BOFF = CAP + 64
    HIST, HIST2, CUR2, CNT = 0, 256, 512, 768
    NEXT, DONE, GDONE, BSYNC, BREADY, TOTB = CNT, CNT + 16, CNT + 64, CNT + 96, CNT + 100, CNT + 104
    OUTW, OUTR = CNT + 112, CNT + 128
    HISTB, HIST2B, CUR2B, INFO, NONCE = 1024, 1280, 1536, 1792, 2048
    RAW = 2176
    T = (RAW + 2 * BOFF * 16 + 255) // 256 * 256
    WRAD = T + NODES * 1024
    SCR = WRAD + 16384
    H1 = WRAD
    TI = SCR
    CEB = RAW + BOFF * 16
    SSTR, PL1, OSC = 2368, (1040 if c.smf else 1056), 2080
    lds = max(SCR + 12 * SSTR, T + 64 * 1024)
    assert lds <= 163840 and 2 * BOFF >= 3200 + 64, lds
    c.lds = lds
    kernel_header(e, KNAME)
    I = e.I
    wsbytes = (32 << 20) if c.stamps else WSBYTES
    sf, rf, lf = c.st_flags, c.rec_flags, c.ld_flags
    ODD = "s[26:27]"
    I(f"s_cmp_ge_u32 s2, {NWG}")
    I("s_cbranch_scc1 L_end")
    if c.stamps:
        I(f"v_mov_b32 v{STV}, 0")
        I(f"v_mov_b32 v{TIDV}, v0")
    stamp(e, c, 0)
    stamp(e, c, 26, "s_memtime")
    I("s_load_dwordx8 s[32:39], s[0:1], 0")
    I("s_load_dwordx8 s[40:47], s[0:1], 32")
    if NWG > NCH:
        I(f"s_cmp_lt_u32 s2, {NCH}")
        I("s_cselect_b32 s51, 800, 0")
    else:
        I("s_movk_i32 s51, 800")
    if c.coal:
        I("s_mul_i32 s48, s2, 1600")
        I("v_add_u32 v3, s48, v0")
        I("v_cmp_gt_u32 vcc, s51, v0")
        I("v_lshlrev_b32 v28, 3, v3")
        I("v_lshlrev_b32 v30, 4, v3")
        I("v_mul_u32_u24 v3, 12, v3")
        I("v_add_u32 v29, 6400, v28")
        if c.paypos:
            I("v_add_u32 v31, 12800, v30")
            I("v_add_u32 v27, 9600, v3")
        I("s_and_saveexec_b64 s[26:27], vcc")
        I("s_cbranch_execz L1_noload")
        I("s_waitcnt lgkmcnt(0)")
        I(f"global_load_dwordx2 v[4:5], v28, s[40:41] {lf}")
        I(f"global_load_dwordx2 v[6:7], v29, s[40:41] {lf}")
        if not c.paypos:
            I("v_add_u32 v31, 12800, v30")
            I("v_add_u32 v27, 9600, v3")
        lds_ = [f"global_load_dwordx2 v[8:9], v28, s[38:39] {lf}", f"global_load_dwordx2 v[10:11], v29, s[38:39] {lf}",
                f"global_load_dwordx4 v[12:15], v30, s[36:37] {lf}", f"global_load_dwordx4 v[16:19], v31, s[36:37] {lf}",
                f"global_load_dwordx3 v[20:22], v3, s[34:35] {lf}", f"global_load_dwordx3 v[24:26], v27, s[34:35] {lf}"]
        def pay_loads():
            for k in ((0, 2, 4, 1, 3, 5) if c.splitw == 2 else range(6)): I(lds_[k])
        if c.paypos == 0: pay_loads()
    else:
        I("s_mul_i32 s48, s2, 800")
        I("v_add_u32 v3, s48, v0")
        I("v_cmp_gt_u32 vcc, s51, v0")
        I("v_lshlrev_b32 v26, 4, v3")
        I("v_lshlrev_b32 v27, 5, v3")
        I("v_mul_u32_u24 v3, 24, v3")
        I("s_and_saveexec_b64 s[26:27], vcc")
        I("s_cbranch_execz L1_noload")
        I("s_waitcnt lgkmcnt(0)")
        l2 = lf if c.ld2_flags is None else c.ld2_flags
        I(f"global_load_dwordx4 v[4:7], v26, s[40:41] {l2}")
        I(f"global_load_dwordx4 v[8:11], v26, s[38:39] {l2}")
        I(f"global_load_dwordx4 v[12:15], v27, s[36:37] {lf}")
        I(f"global_load_dwordx4 v[16:19], v27, s[36:37] offset:16 {lf}")
        I(f"global_load_dwordx4 v[20:23], v3, s[34:35] {lf}")
        I(f"global_load_dwordx2 v[24:25], v3, s[34:35] offset:16 {lf}")
    e.label("L1_noload")
    I("s_mov_b64 exec, -1")
    if c.paypos == 3:
        I(f"v_lshlrev_b32 v40, 1, v0")
        I(f"v_and_b32 v40, -4, v40")
        I(f"v_add_u32 v40, {H1}, v40")
        I("v_mov_b32 v41, 0")
        I("ds_write_b32 v40, v41")
        I("s_waitcnt lgkmcnt(0)")
        I("s_barrier")
        I("s_and_saveexec_b64 s[26:27], vcc")
        I("s_cbranch_execz L1_noload2")
        pay_loads()
        e.label("L1_noload2")
        I("s_mov_b64 exec, -1")
    if c.codepf and c.codeearly:
        I("s_getpc_b64 s[52:53]")
        I(f"s_mov_b32 s54, {c.codepf*1024}")
        I("s_mov_b32 s55, 0x20000")
        I("v_subrev_u32 v72, 768, v0")
        I("v_lshlrev_b32 v72, 7, v72")
        I("s_cmp_lg_u64 vcc, -1")
        I("s_cbranch_scc0 L1_nocpf")
        I("buffer_load_dword v73, v72, s[52:55], 0 offen")
        e.label("L1_nocpf")
    I("s_load_dwordx4 s[80:83], s[0:1], 72")
    I("s_load_dwordx2 s[84:85], s[0:1], 88")
    I("v_lshlrev_b32 v1, 4, v0")
    I("v_lshlrev_b32 v2, 5, v0")
    I("v_readfirstlane_b32 s21, v0")
    I("s_lshr_b32 s21, s21, 6")
    I("s_waitcnt lgkmcnt(0)")
    if c.addtid:
        srd(e, 4, 32, N * 512, w1=f"{16 << 16}", w3=c.tidw3)
    else:
        srd(e, 4, 32, N * 512)
    srd(e, 8, 84, wsbytes)
    srd(e, 12, 80, N * 512)
    srd(e, 16, 42, 2560)
    srd(e, 68, 44, 16384)
    srd(e, 72, 46, 24576)
    srd(e, 76, 82, 256)
    I("s_and_b32 s20, s2, 7")
    I("s_lshr_b32 s31, s2, 3")
    if NWG == 250:
        I("s_min_u32 s22, s20, 2")
        I("s_mul_i32 s20, s20, 31")
        I("s_add_u32 s20, s20, s22")
    else:
        I("s_lshl_b32 s20, s20, 5")
    I("s_add_u32 s20, s20, s31")
    I("s_mov_b32 s22, 0")
    I(f"s_movk_i32 s23, {NCH}")
    I("s_mov_b32 s24, 1")
    I("s_mov_b32 s26, 0xaaaaaaaa")
    I("s_mov_b32 s27, 0xaaaaaaaa")
    I("s_mov_b32 s28, 0x05040100")
    I("s_mov_b32 s29, 0x07060302")
    I("s_mov_b32 s30, 0xffff0000")
    I(f"s_mul_i32 s51, s2, {CSTRIDE}")
    I("s_cmp_ge_u32 s21, 13")
    I("s_cbranch_scc1 L1_aux")
    if c.paypos == 1:
        I("s_mov_b64 exec, vcc")
        pay_loads()
        I("s_mov_b64 exec, -1")
    I(f"s_mov_b32 s46, {H1}")
    if c.paypos != 3:
        I("v_lshl_add_u32 v40, v0, 2, s46")
        I("v_mov_b32 v41, 0")
    I("v_mov_b32 v42, 1")
    I(f"s_movk_i32 s49, {RAW}")
    I("s_mov_b32 s50, 0x05040302")
    I(f"s_mov_b32 s45, {(TI + 8 - 8*H1) & 0xffffffff}")
    if NWG == 250:
        I("s_mov_b32 s48, -25")
        I("s_movk_i32 s47, 249")
    else:
        I("s_movk_i32 s47, 6249")
        I("s_movk_i32 s48, -6250")
        I("s_mov_b32 s44, 1600210")
        I("v_mov_b32 v43, 65532")
    if c.paypos != 3:
        I("s_cmp_ge_u32 s21, 8")
        I("s_cbranch_scc1 L1_nz")
        I("ds_write_b32 v40, v41")
        I("s_waitcnt lgkmcnt(0)")
        e.label("L1_nz")
        I("s_barrier")
    I("s_and_b64 exec, exec, vcc")
    if c.paypos == 2: pay_loads()
    I(f"s_waitcnt vmcnt({6 if c.coal else 5})")
    stamp(e, c, 1)
    R4 = range(4)
    if NWG == 250:
        for i in R4: I(f"v_mul_u32_u24 v{44+i}, 0x147b, v{4+i}")
        for i in R4: I(f"v_lshrrev_b32 v{44+i}, 17, v{44+i}")
        for i in R4: I(f"v_cmp_lt_u32 s[{32+2*i}:{33+2*i}], s47, v{44+i}")
        for i in R4: I(f"v_cndmask_b32 v{36+i}, 0, 1, s[{32+2*i}:{33+2*i}]")
        for i in R4:
            I(f"v_sub_u32 v{48+i}, v{44+i}, v{36+i}")
            I(f"v_mad_u32_u24 v{44+i}, v{36+i}, 6, v{44+i}")
        for i in R4:
            I(f"v_mad_i32_i24 v{4+i}, v{48+i}, s48, v{4+i}")
            I(f"v_lshl_add_u32 v{44+i}, v{44+i}, 2, s46")
    else:
        for i in R4: I(f"v_cmp_lt_u32 s[{32+2*i}:{33+2*i}], s47, v{4+i}")
        for i in R4: I(f"v_cndmask_b32 v{36+i}, 0, 1, s[{32+2*i}:{33+2*i}]")
        for i in R4: I(f"v_mad_i32_i24 v{4+i}, v{36+i}, s48, v{4+i}")
        for i in R4: I(f"v_mul_u32_u24 v{44+i}, 0xa7c, v{4+i}")
        for i in R4: I(f"v_lshrrev_b32 v{44+i}, 16, v{44+i}")
        for i in R4: I(f"v_mad_u32_u24 v{48+i}, v{44+i}, s44, v43")
        for i in R4:
            I(f"v_lshrrev_b32 v{48+i}, 16, v{48+i}")
            I(f"v_mad_u32_u24 v{4+i}, v{36+i}, 25, v{4+i}")
        for i in R4:
            I(f"v_sub_u32 v{4+i}, v{4+i}, v{48+i}")
            I(f"v_lshl_add_u32 v{44+i}, v{36+i}, 8, v{44+i}")
        for i in R4: I(f"v_lshl_add_u32 v{44+i}, v{44+i}, 2, s46")
    for i in R4: I(f"ds_add_rtn_u32 v{36+i}, v{44+i}, v42")
    for i in R4: I(f"v_lshl_add_u32 v{48+i}, v{44+i}, 3, s45")
    for i in R4: I(f"v_lshlrev_b32 v{4+i}, 2, v{4+i}")
    I("s_waitcnt lgkmcnt(0)")
    I("s_barrier")
    for i in R4: I(f"v_min_u32 v{28+i}, {KIN}, v{36+i}")
    for i in R4: I(f"v_add_u32 v{48+i}, v{48+i}, v{28+i}")
    I("s_cmp_eq_u32 s21, 0")
    I("s_cbranch_scc1 L1_scan")
    for i in R4: I(f"ds_write_b8 v{48+i}, v{4+i}")
    I("s_branch L1_noscan")
    e.label("L1_scan")
    I("v_add_u32 v60, s46, v2")
    I("ds_read_b128 v[52:55], v60")
    I("ds_read_b128 v[56:59], v60 offset:16")
    I("s_waitcnt lgkmcnt(0)")
    I("v_mov_b32 v64, 0")
    I("v_mov_b32 v65, v52")
    for k in range(2, 8):
        I(f"v_add_u32 v{64+k}, v{63+k}, v{51+k}")
    I("v_add_u32 v61, v71, v59")
    I("v_max3_u32 v63, v52, v53, v54")
    I("v_max3_u32 v63, v63, v55, v56")
    I("v_max3_u32 v63, v63, v57, v58")
    I("v_max_u32 v63, v63, v59")
    I(f"v_cmp_lt_u32 s[42:43], {KIN}, v63")
    I("v_mov_b32 v62, v61")
    scan64(e, 62)
    I("v_sub_u32 v62, v62, v61")
    for k in range(8):
        I(f"v_add_u32 v{64+k}, v{64+k}, v62")
    I("ds_write_b128 v60, v[64:67] offset:2048")
    I("ds_write_b128 v60, v[68:71] offset:2064")
    I("s_cmp_lg_u64 s[42:43], 0")
    I("s_cselect_b32 s42, 1, 0")
    I("v_mov_b32 v63, s42")
    I(f"ds_write_b32 v41, v63 offset:{NONCE+8}")
    for i in R4: I(f"ds_write_b8 v{48+i}, v{4+i}")
    I("s_waitcnt lgkmcnt(4)")
    e.label("L1_noscan")
    I("s_barrier")
    stamp(e, c, 8)
    for i in R4: I(f"ds_read_b32 v{44+i}, v{44+i} offset:2048")
    I(f"ds_read_b32 v28, v41 offset:{NONCE+8}")
    I("s_waitcnt lgkmcnt(0)")
    I("v_readfirstlane_b32 s42, v28")
    for i in R4:
        I(f"v_add_u32 v{36+i}, v{36+i}, v{44+i}")
        I(f"v_lshl_add_u32 v{44+i}, v{36+i}, 4, s49")
    I("s_cmp_eq_u32 s42, 0")
    I("s_cbranch_scc1 L1_nokeys")
    for i in R4:
        I(f"ds_write_b8 v{36+i}, v{4+i} offset:{RAW+KSTAGE}")
    e.label("L1_nokeys")
    if not c.splitw:
        r3 = 24 if c.coal else 23
        if c.stamps: I("s_waitcnt vmcnt(0)")
        stamp(e, c, 31)
        I("s_waitcnt vmcnt(1)")
        I("v_mov_b32 v28, v20")
        I("v_perm_b32 v29, v8, v21, s28")
        I("ds_write2_b64 v44, v[12:13], v[28:29] offset0:0 offset1:1")
        I("v_alignbit_b32 v30, v22, v21, 16")
        I("v_perm_b32 v31, v9, v22, s50")
        I("ds_write2_b64 v45, v[14:15], v[30:31] offset0:0 offset1:1")
        I("s_waitcnt vmcnt(0)")
        stamp(e, c, 2)
        I(f"v_mov_b32 v32, v{r3}")
        I(f"v_perm_b32 v33, v10, v{r3+1}, s28")
        I("ds_write2_b64 v46, v[16:17], v[32:33] offset0:0 offset1:1")
        I(f"v_alignbit_b32 v34, v{r3+2}, v{r3+1}, 16")
        I(f"v_perm_b32 v35, v11, v{r3+2}, s50")
        I("ds_write2_b64 v47, v[18:19], v[34:35] offset0:0 offset1:1")
    elif c.splitw == 2:
        I("s_waitcnt vmcnt(3)")
        I("v_mov_b32 v28, v12"); I("v_mov_b32 v29, v13"); I("v_mov_b32 v30, v20")
        I("v_perm_b32 v31, v8, v21, s28")
        I("ds_write_b128 v44, v[28:31]")
        I("v_mov_b32 v12, v14"); I("v_mov_b32 v13, v15")
        I("v_alignbit_b32 v14, v22, v21, 16")
        I("v_perm_b32 v15, v9, v22, s50")
        I("ds_write_b128 v45, v[12:15]")
        I("s_waitcnt vmcnt(0)")
        stamp(e, c, 2)
        I("v_mov_b32 v32, v16"); I("v_mov_b32 v33, v17"); I("v_mov_b32 v34, v24")
        I("v_perm_b32 v35, v10, v25, s28")
        I("ds_write_b128 v46, v[32:35]")
        I("v_mov_b32 v16, v18"); I("v_mov_b32 v17, v19")
        I("v_alignbit_b32 v18, v26, v25, 16")
        I("v_perm_b32 v19, v11, v26, s50")
        I("ds_write_b128 v47, v[16:19]")
    else:
        I("s_waitcnt vmcnt(2)")
        for i in R4:
            I(f"ds_write_b64 v{44+i}, v[{12+2*i}:{13+2*i}]")
        I("s_waitcnt vmcnt(1)")
        I("v_mov_b32 v28, v20")
        I("v_perm_b32 v29, v8, v21, s28")
        I("ds_write_b64 v44, v[28:29] offset:8")
        I("v_alignbit_b32 v30, v22, v21, 16")
        I("v_perm_b32 v31, v9, v22, s50")
        I("ds_write_b64 v45, v[30:31] offset:8")
        I("s_waitcnt vmcnt(0)")
        stamp(e, c, 2)
        r3 = 24 if c.coal else 23
        I(f"v_mov_b32 v32, v{r3}")
        I(f"v_perm_b32 v33, v10, v{r3+1}, s28")
        I("ds_write_b64 v46, v[32:33] offset:8")
        I(f"v_alignbit_b32 v34, v{r3+2}, v{r3+1}, 16")
        I(f"v_perm_b32 v35, v11, v{r3+2}, s50")
        I("ds_write_b64 v47, v[34:35] offset:8")
    I("s_mov_b64 exec, -1")
    I("s_waitcnt lgkmcnt(0)")
    I("s_branch L1_copy")
    e.label("L1_aux")
    I("v_subrev_u32 v64, 832, v0")
    I("v_lshlrev_b32 v65, 4, v64")
    prefetch_x(e, c.pfx0_lines, 60, 64, 192, 31, 0, 4)
    if c.tlbpf:
        I("v_and_b32 v74, 63, v0")
        I(f"s_mov_b32 s42, {WSBYTES // 64 // 128 * 128}")
        I("v_mul_u32_u24 v75, s42, v74")
        I(f"s_mov_b32 s42, {N * 512 // 64 // 128 * 128}")
        I("v_mul_u32_u24 v74, s42, v74")
        I("s_cmp_lg_u32 s21, 14")
        I("s_cbranch_scc1 L1_notlb")
        if c.tlbpf & 1: I("buffer_load_dword v76, v75, s[8:11], 0 offen")
        if c.tlbpf & 2: I("buffer_load_dword v77, v74, s[4:7], 0 offen")
        if c.tlbpf & 4: I("buffer_load_dword v78, v74, s[12:15], 0 offen")
        e.label("L1_notlb")
    if c.codepf and not c.codeearly:
        I(f"s_cmp_ge_u32 s2, {c.cpfwg}")
        I("s_cbranch_scc1 L1_nocpf")
        I("s_getpc_b64 s[40:41]")
        e.label("L_cpf")
        I("s_mov_b32 s42, L_codeend-L_cpf")
        I("s_mov_b32 s43, 0x20000")
        I("v_lshlrev_b32 v72, 7, v64")
        I("buffer_load_dword v73, v72, s[40:43], 0 offen")
        e.label("L1_nocpf")
    I("s_cmp_lg_u32 s21, 15")
    I("s_cbranch_scc1 L1_notag")
    I("s_cmp_lg_u32 s2, 0")
    I("s_cbranch_scc1 L1_notag")
    I("s_memrealtime s[44:45]")
    I("s_waitcnt lgkmcnt(0)")
    I("s_and_b32 s45, s45, 0x7f")
    I("s_or_b32 s45, s45, 0x80")
    I("s_lshl_b32 s45, s45, 24")
    I("v_mov_b32 v68, s44")
    I("v_mov_b32 v69, s45")
    I("s_mov_b64 exec, 1")
    I("buffer_store_dwordx2 v[68:69], off, s[76:79], 0 sc1")
    I("s_mov_b64 exec, -1")
    e.label("L1_notag")
    I("s_cmp_lg_u32 s21, 13")
    I("s_cbranch_scc1 L1_nozero")
    for k in range(4): I(f"v_mov_b32 v{4+k}, 0")
    I("ds_write_b128 v65, v[4:7]")
    I("ds_write_b128 v65, v[4:7] offset:1024")
    e.label("L1_nozero")
    if c.paypos != 3: I("s_barrier")
    I("s_barrier"); I("s_barrier")
    I("s_cmp_lg_u32 s21, 15")
    I("s_cbranch_scc1 L1_notag2")
    I("s_mov_b32 s44, 0")
    e.label("L1_tagpoll")
    I("buffer_load_dwordx2 v[68:69], off, s[76:79], 0 sc1")
    I("s_add_u32 s44, s44, 1")
    I("s_waitcnt vmcnt(0)")
    I("v_readfirstlane_b32 s45, v69")
    e.nop(1)
    I("s_cmp_lg_u32 s45, 0")
    I("s_cbranch_scc1 L1_tagok")
    I("s_cmp_lt_u32 s44, 0x100000")
    I("s_cbranch_scc1 L1_tagpoll")
    e.label("L1_tagok")
    I("v_mov_b32 v70, 0")
    I("s_mov_b64 exec, 1")
    I(f"ds_write_b64 v70, v[68:69] offset:{NONCE}")
    I("s_mov_b64 exec, -1")
    e.label("L1_notag2")
    def w_loads():
        for k in range(8):
            I(f"s_movk_i32 s46, {k*3072}")
            I(f"buffer_load_dwordx4 v[{28+4*k}:{31+4*k}], v65, s[72:75], s46 offen")
        for k in range(6):
            I(f"s_movk_i32 s46, {k*3072}")
            I(f"buffer_load_dwordx4 v[{72+4*k}:{75+4*k}], v65, s[68:71], s46 offen")
    if not c.wlate: w_loads()
    if c.wrlds: I("buffer_load_dwordx4 v[68:71], v65, s[16:19], 0 offen")
    if c.pfwait: I("s_waitcnt vmcnt(0)")
    prefetch_x(e, c.pfx_lines, 60, 64, 192, 31, 0, 4, c.pfx0_lines)
    I("s_waitcnt lgkmcnt(0)")
    e.flush()
    e.label("L1_copy")
    I("s_barrier")
    stamp(e, c, 3)
    I(f"v_mov_b32 v25, {H1+2048+1024}")
    I("ds_read_b32 v99, v25")
    I(f"ds_read_b128 v[8:11], v1 offset:{RAW}")
    I(f"ds_read_b128 v[12:15], v1 offset:{RAW+16384}")
    I("v_mov_b32 v25, 0")
    I(f"ds_read_b96 v[96:98], v25 offset:{NONCE}")
    I(f"v_add_u32 v25, {TI}, v1")
    I(f"ds_read_b128 v[16:19], v1 offset:{RAW+32768}")
    I(f"ds_read_b128 v[20:23], v1 offset:{RAW+49152}")
    I("ds_read_b128 v[100:103], v25")
    I("v_lshrrev_b32 v25, 1, v0")
    I("v_lshlrev_b32 v25, 2, v25")
    I(f"v_add_u32 v25, {H1}, v25")
    I("ds_read2st64_b32 v[104:105], v25 offset0:0 offset1:8")
    I("ds_read_b32 v106, v25 offset:1024")
    I("v_add_u32 v2, 16384, v1")
    I("v_add_u32 v25, 1024, v0")
    I("s_waitcnt lgkmcnt(8)")
    I("v_add_u32 v99, 7, v99")
    I("v_and_b32 v99, -8, v99")
    I("v_cmp_lt_u32 s[52:53], v0, v99")
    I("v_cmp_lt_u32 s[54:55], v25, v99")
    I("v_readfirstlane_b32 s88, v99")
    I("v_add_u32 v3, 32768, v1")
    I("v_add_u32 v24, 49152, v1")
    I("s_mov_b64 exec, s[52:53]")
    I("s_waitcnt lgkmcnt(7)")
    I(f"buffer_store_dwordx4 v[8:11], v1, s[8:11], s51 offen {sf}")
    I("s_mov_b64 exec, s[54:55]")
    I("s_cbranch_execz L1_nop1")
    I("s_waitcnt lgkmcnt(6)")
    I(f"buffer_store_dwordx4 v[12:15], v2, s[8:11], s51 offen {sf}")
    e.label("L1_nop1")
    I("s_mov_b64 exec, -1")
    I("s_movk_i32 s48, 128")
    I("v_cmp_gt_u32 s[92:93], s48, v0")
    I("s_waitcnt lgkmcnt(0)")
    I("v_readfirstlane_b32 s86, v96")
    I("v_readfirstlane_b32 s87, v97")
    I("v_readfirstlane_b32 s42, v98")
    I("v_lshl_or_b32 v104, v104, 12, v105")
    I("v_or_b32 v97, v97, v104")
    I(f"v_cndmask_b32 v100, v97, v100, {ODD}")
    I(f"v_cndmask_b32 v101, v96, v101, {ODD}")
    I("v_lshl_or_b32 v106, v96, 12, v106")
    I(f"v_cndmask_b32 v103, v103, v106, {ODD}")
    I("s_lshl_b32 s3, s86, 12")
    I(f"s_add_u32 s49, s51, {TABOFF}")
    I("s_cmp_gt_u32 s88, 2048")
    I("s_cselect_b32 s25, 0, 8")
    I("s_cmp_eq_u32 s42, 0")
    I("s_cbranch_scc1 L1_nokeyst")
    I(f"s_add_u32 s42, s51, {KEYOFF-KSTAGE}")
    I("v_subrev_u32 v25, 128, v0")
    I("s_movk_i32 s43, 200")
    I("v_cmp_gt_u32 vcc, s43, v25")
    I("s_and_saveexec_b64 s[44:45], vcc")
    I("s_cbranch_execz L1_nokeyst2")
    I(f"buffer_store_dwordx4 v[20:23], v24, s[8:11], s42 offen {sf}")
    e.label("L1_nokeyst2")
    I("s_mov_b64 exec, -1")
    e.label("L1_nokeyst")
    stamp(e, c, 4)
    def handoff(tag, mid):
        I("s_waitcnt vmcnt(0)")
        stamp(e, c, 6)
        I("s_barrier")
        I("s_cmp_ge_u32 s21, s25")
        I(f"s_cbranch_scc1 L_noearly{tag}")
        I(f"buffer_store_dwordx4 v[100:103], v1, s[8:11], s49 offen {sf}")
        e.label(f"L_noearly{tag}")
        I(f"buffer_store_dwordx4 v[16:19], v3, s[8:11], s51 offen {sf}")
        for k, (m, neg, regs, va) in enumerate((("s[54:55]", 1, "v[12:15]", "v2"), ("s[92:93]", 0, "v[20:23]", "v24"), ("s[52:53]", 1, "v[8:11]", "v1"))):
            I(f"s_not_b64 exec, {m}" if neg else f"s_mov_b64 exec, {m}")
            I(f"s_cbranch_execz L_stskip{tag}{k}")
            I(f"buffer_store_dwordx4 {regs}, {va}, s[8:11], s51 offen {sf}")
            e.label(f"L_stskip{tag}{k}")
        I("s_mov_b64 exec, -1")
        mid()
        I("s_waitcnt vmcnt(0) lgkmcnt(0)")
        stamp(e, c, 5)
        I("s_barrier")
        I("s_cmp_lt_u32 s21, s25")
        I(f"s_cbranch_scc1 L_nolate{tag}")
        I(f"buffer_store_dwordx4 v[100:103], v1, s[8:11], s49 offen {sf}")
        e.label(f"L_nolate{tag}")
    I("s_cmp_lt_u32 s21, 4")
    e.branch("s_cbranch_scc1 L2_gemm")

    if c.wlate:
        I("s_cmp_lt_u32 s21, 13")
        I("s_cbranch_scc1 L2_noWl")
        w_loads()
        e.label("L2_noWl")
    VLANE, VINFO, VNEXT = 108, 109, 110
    VLOFF, VMASK, VOW, VOR, VSCRW, VTRA, VWR, VL16 = 111, 112, 113, 114, 115, 116, 117, 118
    VT0, VT1, VONE, VSEL = 119, 120, 121, 122
    VJ, VCH, VSEG = 123, 124, 125
    I(f"v_and_b32 v{VLANE}, 63, v0")
    I(f"v_mov_b32 v{VONE}, 1")
    I(f"v_mov_b32 v{VMASK}, s30")
    I(f"v_lshrrev_b32 v{VT1}, 4, v{VLANE}")
    I(f"v_lshlrev_b32 v{VL16}, 4, v{VLANE}")
    if c.addtid:
        I(f"v_and_b32 v{VT0}, 3, v{VLANE}")
        I(f"v_lshlrev_b32 v{VLOFF}, 4, v{VT0}")
    else:
        I(f"v_and_b32 v{VT0}, 15, v{VLANE}")
        I(f"v_lshlrev_b32 v{VLOFF}, 4, v{VT0}")
    I("s_sub_u32 s43, s21, 4")
    I(f"s_mul_i32 s43, s43, {SSTR}")
    I(f"s_add_u32 s43, s43, {SCR}")
    I(f"v_add_u32 v{VSCRW}, s43, v{VL16}")
    I(f"v_lshlrev_b32 v{VOR}, 5, v{VT1}")
    I(f"v_add_u32 v{VOR}, s43, v{VOR}")
    I(f"v_lshlrev_b32 v{VTRA}, 4, v{VT1}")
    I(f"v_bfe_u32 v{VT1}, v{VLANE}, 2, 2")
    I(f"v_lshl_add_u32 v{VTRA}, v{VT1}, 6, v{VTRA}")
    I(f"v_and_b32 v{VT1}, 1, v{VLANE}")
    I(f"v_lshl_add_u32 v{VTRA}, v{VT1}, 3, v{VTRA}")
    I(f"v_bfe_u32 v{VT1}, v{VLANE}, 1, 1")
    I(f"v_mul_u32_u24 v{VT1}, {PL1}, v{VT1}")
    I(f"v_add3_u32 v{VTRA}, v{VTRA}, v{VT1}, s43")
    I(f"v_and_b32 v{VOW}, 32, v{VLANE}")
    I(f"v_and_b32 v{VT1}, 3, v{VLANE}")
    I(f"v_lshl_add_u32 v{VOW}, v{VT1}, 3, v{VOW}")
    I(f"v_bfe_u32 v{VT1}, v{VLANE}, 2, 3")
    I(f"v_add_u32 v{VOW}, v{VOW}, v{VT1}")
    I(f"v_lshlrev_b32 v{VOW}, 2, v{VOW}")
    I(f"v_add_u32 v{VOW}, s43, v{VOW}")
    I(f"v_add_u32 v{VWR}, {WRAD}, v{VL16}")
    I("s_sub_u32 s42, s21, 4")
    I("s_mul_i32 s83, s42, 24")
    I(f"v_and_b32 v{VJ}, 7, v{VLANE}")
    I(f"v_lshrrev_b32 v{VSEG}, 3, v{VLANE}")
    I(f"s_mov_b32 s42, {CSTRIDE}")
    I(f"v_mul_u32_u24 v{VCH}, s42, v{VSEG}")
    I(f"v_lshlrev_b32 v{VSEG}, 5, v{VSEG}")
    I(f"v_add_u32 v{VSEG}, s43, v{VSEG}")
    I(f"v_or_b32 v{VSEL}, 0x0c0c0c00, v{VJ}")
    NP, NW = 3, 3
    I(f"s_mul_i32 s79, s83, {CSTRIDE}")
    for p in range(NP):
        I(f"s_add_u32 s{74+p}, s79, {8*p*CSTRIDE+PAYOFF}")
        I(f"s_add_u32 s{80+p}, s79, {8*p*CSTRIDE+KEYOFF}")
    I("s_mov_b32 s78, 0x100000")
    I("s_mov_b32 s88, s20")
    I("s_mov_b32 s89, 0")
    I(f"s_movk_i32 s48, {HN}")
    def w_stage():
        I("s_cmp_lt_u32 s21, 13")
        I("s_cbranch_scc1 L2_noW")
        I(f"v_add_u32 v65, {T}, v65")
        for k in range(8):
            I(f"ds_write_b128 v65, v[{28+4*k}:{31+4*k}] offset:{16384 + k*3072}")
        for k in range(5):
            I(f"ds_write_b128 v65, v[{72+4*k}:{75+4*k}] offset:{k*3072}")
        if c.wrlds: I("ds_write_b128 v65, v[68:71] offset:40960")
        I("s_cmp_lg_u32 s21, 13")
        I("s_cbranch_scc1 L2_noW")
        I(f"ds_write_b128 v65, v[92:95] offset:{5*3072}")
        e.label("L2_noW")
    handoff("g", w_stage)
    PAY, KEY, RNK, CNTR, KAD, PAD, X, EN = 0, 36, 45, 54, 57, 60, 64, 72
    MSK = 50
    e.label("L2_g_round")
    I(f"v_and_b32 v{VJ}, 7, v{VLANE}")
    I(f"v_or_b32 v{VSEL}, 0x0c0c0c00, v{VJ}")
    I(f"v_lshrrev_b32 v{X}, 1, v{VLANE}")
    I(f"s_sub_u32 s42, {NCH}, s83")
    I("s_min_i32 s42, s42, 24")
    I(f"v_cmp_gt_i32 s[46:47], s42, v{X}")
    I(f"s_mov_b32 s42, {CSTRIDE}")
    I(f"v_mul_u32_u24 v{X+1}, s42, v{X}")
    I(f"v_and_b32 v{X+2}, 16, v{VL16}")
    I(f"v_add_u32 v{X+1}, v{X+1}, v{X+2}")
    I(f"v_cndmask_b32 v{X+1}, 2.0, v{X+1}, s[46:47]")
    I("s_lshl_b32 s43, s88, 5")
    I(f"s_add_u32 s43, s43, {TABOFF}")
    I("s_add_u32 s43, s43, s79")
    I("s_mov_b32 s44, 0")
    I(f"v_lshl_add_u32 v{VT1}, v{VJ}, 4, v{VCH}")
    e.label("L2_poll")
    I(f"buffer_load_dwordx4 v[{EN}:{EN+3}], v{X+1}, s[8:11], s43 offen sc1")
    I("s_add_u32 s44, s44, 1")
    I("s_waitcnt vmcnt(0)")
    tag_bad(e, X+2, EN, X+3, ODD)
    I(f"v_cmp_ne_u32 vcc, 0, v{X+2}")
    e.nop(2)
    I("s_and_b64 vcc, vcc, s[46:47]")
    I("s_cbranch_scc0 L2_poll_ok")
    I(f"s_sleep {c.psleep}")
    I("s_cmp_lt_u32 s44, s78")
    I("s_cbranch_scc1 L2_poll")
    I("s_mov_b32 s78, 0")
    e.label("L2_poll_ok")
    I("s_cmp_lg_u32 s23, 1")
    I("s_cbranch_scc1 L2_nofilter")
    I("s_sub_u32 s42, s22, s83")
    I(f"v_cmp_eq_u32 vcc, s42, v{X}")
    I(f"v_cndmask_b32 v{EN}, 0, v{EN}, vcc")
    e.label("L2_nofilter")
    I(f"ds_write_b128 v{VSCRW}, v[{EN}:{EN+3}]")
    I(f"v_add_u32 v{X+1}, 8, v{VJ}")
    stamp(e, c, 7)
    def msk(p, w): return f"s[{MSK+4*p+2*w}:{MSK+4*p+2*w+1}]" if w < 2 else f"s[{MSK+12+2*p}:{MSK+13+2*p}]"
    def pay(p, w): return f"v[{PAY+12*p+4*w}:{PAY+12*p+4*w+3}]"
    for p in range(NP):
        I(f"ds_read_b128 v[{EN+8*p}:{EN+8*p+3}], v{VSEG} offset:{256*p}")
        I(f"ds_read_b128 v[{EN+8*p+4}:{EN+8*p+7}], v{VSEG} offset:{256*p+16}")
    for p in range(NP):
        en, cnt = EN + 8*p, CNTR + p
        if p == 0: I("s_waitcnt lgkmcnt(0)")
        I(f"v_bfe_u32 v{cnt}, v{en}, 12, 12")
        I(f"v_and_b32 v{PAD+p}, 0xfff, v{en}")
        I(f"v_cmp_lt_u32 {msk(p,0)}, v{VJ}, v{cnt}")
        I(f"v_cmp_lt_u32 {msk(p,1)}, v{X+1}, v{cnt}")
        I(f"v_perm_b32 v{KEY+3*p}, v{en+3}, v{en+2}, v{VSEL}")
        I(f"v_perm_b32 v{KEY+3*p+1}, v{en+5}, v{en+4}, v{VSEL}")
        I(f"v_lshl_add_u32 v{PAD+p}, v{PAD+p}, 4, v{VT1}")
        for w in range(2):
            I(f"s_mov_b64 exec, {msk(p,w)}")
            I(f"s_cbranch_execz L2_nop{p}")
            I(f"ds_add_rtn_u32 v{RNK+3*p+w}, v{KEY+3*p+w}, v{VONE} offset:{HIST}")
            I(f"buffer_load_dwordx4 {pay(p,w)}, v{PAD+p}, s[8:11], s{74+p} offen offset:{128*w} {rf}")
        e.label(f"L2_nop{p}")
        I("s_mov_b64 exec, -1")
    I(f"v_max3_u32 v{VT0}, v{CNTR}, v{CNTR+1}, v{CNTR+2}")
    I(f"v_cmp_lt_u32 vcc, 16, v{VT0}")
    I("s_mov_b32 s25, 0")
    e.nop(1)
    I("s_cmp_eq_u64 vcc, 0")
    I("s_cbranch_scc1 L2_noextraA")
    I("s_mov_b32 s25, 1")
    I(f"v_add_u32 v{X+2}, 16, v{VJ}")
    for p in range(NP):
        en = EN + 8*p
        I(f"v_min_u32 v{X+3}, {KIN}, v{CNTR+p}")
        I(f"v_cmp_lt_u32 {msk(p,2)}, v{X+2}, v{X+3}")
        I(f"v_perm_b32 v{KEY+3*p+2}, v{en+6}, v{en+6}, v{VSEL}")
        I(f"v_sub_u32 v{KAD+p}, v{PAD+p}, v{VCH}")
        I(f"v_lshrrev_b32 v{KAD+p}, 4, v{KAD+p}")
        I(f"v_add_u32 v{KAD+p}, v{KAD+p}, v{VCH}")
        e.flush()
        I(f"s_mov_b64 exec, {msk(p,2)}")
        I(f"ds_add_rtn_u32 v{RNK+3*p+2}, v{KEY+3*p+2}, v{VONE} offset:{HIST}")
        I(f"buffer_load_dwordx4 {pay(p,2)}, v{PAD+p}, s[8:11], s{74+p} offen offset:256 {rf}")
        I("s_mov_b64 exec, -1")

    def extra_count(tag, first, vj, vkad, vcnt, skey, vone, hist, y):
        I(f"v_add_u32 v{y}, {first}, v{vj}")
        I(f"v_add_u32 v{y+1}, {first}, v{vkad}")
        e.label(f"L_xa{tag}")
        I(f"v_cmp_lt_u32 vcc, v{y}, v{vcnt}")
        I("s_and_saveexec_b64 s[44:45], vcc")
        e.branch(f"s_cbranch_execz L_xa{tag}_done")
        I(f"buffer_load_ubyte v{y+2}, v{y+1}, s[8:11], s{skey} offen {rf}")
        I("s_waitcnt vmcnt(0)")
        I(f"ds_add_u32 v{y+2}, v{vone} offset:{hist}")
        I("s_mov_b64 exec, -1")
        I(f"v_add_u32 v{y}, 8, v{y}")
        I(f"v_add_u32 v{y+1}, 8, v{y+1}")
        e.branch(f"s_branch L_xa{tag}")
        e.label(f"L_xa{tag}_done")
        I("s_mov_b64 exec, -1")
    def extra_move(tag, first, vj, vkad, vpad, vcnt, skey, spay, vone, cur, vbase, y, d):
        I(f"v_add_u32 v{y}, {first}, v{vj}")
        I(f"v_add_u32 v{y+1}, {first}, v{vkad}")
        I(f"v_add_u32 v{vpad}, {16*first}, v{vpad}")
        e.label(f"L_xb{tag}")
        I(f"v_cmp_lt_u32 vcc, v{y}, v{vcnt}")
        I("s_and_saveexec_b64 s[44:45], vcc")
        e.branch(f"s_cbranch_execz L_xb{tag}_done")
        I(f"buffer_load_ubyte v{y+2}, v{y+1}, s[8:11], s{skey} offen {rf}")
        I(f"buffer_load_dwordx4 v[{d}:{d+3}], v{vpad}, s[8:11], s{spay} offen {rf}")
        I("s_waitcnt vmcnt(0)")
        I(f"ds_add_rtn_u32 v{y+3}, v{y+2}, v{vone} offset:{cur}")
        I("s_mov_b64 exec, -1")
        I(f"ds_bpermute_b32 v{y+2}, v{y+2}, v{vbase}")
        I("s_waitcnt lgkmcnt(0)")
        I(f"v_add_lshl_u32 v{y+2}, v{y+2}, v{y+3}, 4")
        I("s_mov_b64 exec, vcc")
        I(f"ds_write_b128 v{y+2}, v[{d}:{d+3}] offset:{RAW}")
        I("s_mov_b64 exec, -1")
        I(f"v_add_u32 v{y}, 8, v{y}")
        I(f"v_add_u32 v{y+1}, 8, v{y+1}")
        I(f"v_add_u32 v{vpad}, 128, v{vpad}")
        e.branch(f"s_branch L_xb{tag}")
        e.label(f"L_xb{tag}_done")
        I("s_mov_b64 exec, -1")
    for p in range(NP):
        extra_count(f"a{p}", KIN, VJ, KAD+p, CNTR+p, 80+p, VONE, HIST2, X)
    e.label("L2_noextraA")
    I("s_waitcnt lgkmcnt(0)")
    stamp(e, c, 14)
    I("s_barrier")
    stamp(e, c, 15)
    C1, CT, BS = X + 4, X + 5, X + 6
    I(f"v_lshlrev_b32 v{VT0}, 2, v{VLANE}")
    I(f"ds_read_b32 v{C1}, v{VT0} offset:{HIST}")
    I(f"ds_read_b32 v{CT}, v{VT0} offset:{HIST2}")
    I("s_waitcnt lgkmcnt(0)")
    I(f"v_add_u32 v{CT}, v{C1}, v{CT}")
    I(f"v_mov_b32 v{BS}, v{CT}")
    scan64(e, BS)
    I(f"v_readlane_b32 s46, v{BS}, 63")
    I(f"v_sub_u32 v{BS}, v{BS}, v{CT}")
    I(f"s_cmp_eq_u32 s23, 1")
    I(f"s_cselect_b32 s42, -1, {CAP}")
    for p in range(NP):
        for w in range(2):
            I(f"ds_bpermute_b32 v{KEY+3*p+w}, v{KEY+3*p+w}, v{BS}")
    I(f"v_lshl_or_b32 v{VINFO}, v{CT}, 16, v{BS}")
    I(f"s_cmp_gt_u32 s46, s42")
    I("s_cbranch_scc1 L2_g_overflow")
    I("s_cmp_lg_u32 s21, 5")
    I("s_cbranch_scc1 L2_noinfo")
    I(f"s_mov_b64 exec, {(1 << HN) - 1}")
    I(f"ds_write_b32 v{VT0}, v{VINFO} offset:{INFO}")
    I("s_mov_b64 exec, -1")
    e.label("L2_noinfo")
    I("s_cmp_lg_u32 s21, 4")
    I("s_cbranch_scc1 L2_noguard")
    I("s_lshl_b32 s46, s46, 4")
    for k in range(4): I(f"v_mov_b32 v{EN+k}, 0")
    I(f"v_add_u32 v{VT0}, s46, v{VL16}")
    I(f"ds_write_b128 v{VT0}, v[{EN}:{EN+3}] offset:{RAW}")
    e.label("L2_noguard")
    I("s_waitcnt lgkmcnt(0)")
    for p in range(NP):
        for w in range(2):
            I(f"v_add_lshl_u32 v{KEY+3*p+w}, v{KEY+3*p+w}, v{RNK+3*p+w}, 4")
    stamp(e, c, 27)
    I("s_waitcnt vmcnt(0)")
    stamp(e, c, 9)
    for p in range(NP):
        for w in range(2):
            I(f"s_mov_b64 exec, {msk(p,w)}")
            I(f"ds_write_b128 v{KEY+3*p+w}, {pay(p,w)} offset:{RAW}")
    I("s_mov_b64 exec, -1")
    I("s_cmp_eq_u32 s25, 0")
    I("s_cbranch_scc1 L2_noextraB")
    for p in range(NP):
        I(f"ds_bpermute_b32 v{KEY+3*p+2}, v{KEY+3*p+2}, v{BS}")
    I("s_waitcnt lgkmcnt(0)")
    for p in range(NP):
        I(f"v_add_lshl_u32 v{KEY+3*p+2}, v{KEY+3*p+2}, v{RNK+3*p+2}, 4")
        I(f"s_mov_b64 exec, {msk(p,2)}")
        I(f"ds_write_b128 v{KEY+3*p+2}, {pay(p,2)} offset:{RAW}")
        I("s_mov_b64 exec, -1")
    I(f"v_add_u32 v{BS}, v{BS}, v{C1}")
    for p in range(NP):
        extra_move(f"a{p}", KIN, VJ, KAD+p, PAD+p, CNTR+p, 80+p, 74+p, VONE, CUR2, BS, X, EN)
    e.label("L2_noextraB")
    I("s_waitcnt lgkmcnt(0)")
    stamp(e, c, 28)
    I("s_barrier")
    I(f"ds_read_b32 v{VT0}, v{VL16} offset:{TOTB}")
    if c.static1:
        I("s_sub_u32 s42, s21, 16")
        I(f"v_mov_b32 v{VNEXT}, s42")
    else:
        I("s_mov_b64 exec, 1")
        I(f"ds_add_rtn_u32 v{VNEXT}, v{VL16}, v{VONE} offset:{NEXT}")
        I("s_mov_b64 exec, -1")
    I("s_waitcnt lgkmcnt(0)")
    I(f"v_readfirstlane_b32 s42, v{VT0}")
    e.nop(1)
    I(f"s_cmp_gt_u32 s42, {CAP}")
    I("s_cbranch_scc1 L2_g_overflow")
    stamp(e, c, 10)
    stamp(e, c, 24, "s_memtime")
    if c.prio_g: I(f"s_setprio {c.prio_g}")
    (gather_loop_s if c.smf else gather_loop)(e, c, locals())
    e.label("L2_g_done")
    stamp(e, c, 11)
    stamp(e, c, 25, "s_memtime")
    I("s_cmp_lg_u32 s24, 0")
    e.branch("s_cbranch_scc1 L2_g_exit")
    I("s_add_u32 s89, s89, 1")
    I("s_branch L2_g_slow")
    e.label("L2_g_overflow")
    I("s_mov_b32 s89, 0")
    I("s_mov_b32 s23, 1")
    I("s_movk_i32 s48, 64")
    e.label("L2_g_slow")
    I("s_waitcnt vmcnt(0) lgkmcnt(0)")
    I("s_barrier")
    I("s_lshr_b32 s22, s89, 1")
    I("s_and_b32 s88, s89, 1")
    I("s_lshl_b32 s88, s88, 8")
    I("s_add_u32 s88, s88, s20")
    I(f"s_cmp_eq_u32 s89, {2*NCH-1}")
    I("s_cselect_b32 s24, 1, 0")
    I("s_barrier")
    e.branch("s_branch L2_g_round")
    e.label("L2_g_exit")
    stamp_store(e, c, 90)
    I("s_endpgm")

    e.label("L2_gemm")
    W, G, TA, TF = 0, 40, 104, 108
    X0, X1 = 124, 125
    I("v_and_b32 v104, 63, v0")
    I("v_lshlrev_b32 v105, 4, v104")
    lut = 0
    for jp in range(4):
        for blk in range(4):
            p, i, s = path_of(jp, blk)
            lut |= (p | (8 if s < 0 else 0)) << (4 * (jp * 4 + blk))
    I(f"s_mov_b32 s44, {lut & 0xffffffff}")
    I(f"s_mov_b32 s45, {lut >> 32}")
    for h in range(2):
        I("v_lshrrev_b32 v106, 4, v104")
        I("v_bfe_u32 v107, v104, 3, 1")
        I("v_lshl_add_u32 v106, v106, 2, v107")
        I(f"v_add_lshl_u32 v106, v106, {2*h}, 2")
        I(f"v_lshrrev_b64 v[108:109], v106, s[44:45]")
        I(f"v_and_b32 v106, 7, v108")
        I(f"v_and_b32 v{110+h}, 8, v108")
        I(f"v_lshlrev_b32 v{110+h}, 28, v{110+h}")
        I("v_and_b32 v107, 7, v104")
        I("v_lshlrev_b32 v107, 3, v107")
        I("v_lshl_add_u32 v106, v106, 6, v107")
        I("v_add_u32 v106, s21, v106")
        I(f"v_lshlrev_b32 v{112+h}, 1, v106")
        if c.wrlds: I(f"v_add_u32 v{112+h}, {T+40960}, v{112+h}")
    I("v_mov_b32 v117, v0")
    handoff("m", lambda: None)
    if c.pfx2_pos == 0: prefetch_x(e, c.pfx2_lines, 114, 117, 256, 31, 0, 4, c.pfx_lines)
    WT = 80
    for k in range(4):
        h, qo = k >> 1, (k & 1) * 4
        for d in range(4):
            if c.wrlds: I(f"ds_read_u16 v{WT+4*k+d}, v{112+h} offset:{d*640+qo*2}")
            else: I(f"buffer_load_ushort v{WT+4*k+d}, v{112+h}, s[16:19], 0 offen offset:{d*640+qo*2}")
    I("v_lshrrev_b32 v106, 4, v104")
    I("v_lshlrev_b32 v106, 10, v106")
    I("v_bfe_u32 v107, v104, 2, 2")
    I("v_lshl_add_u32 v106, v107, 7, v106")
    I("v_and_b32 v107, 3, v104")
    I("v_lshl_add_u32 v106, v107, 3, v106")
    I("s_lshl_b32 s42, s21, 5")
    I(f"s_add_u32 s42, s42, {T}")
    I("v_add_u32 v106, s42, v106")
    for f in range(10):
        I(f"ds_read_b64_tr_b16 v[{W+4*f}:{W+4*f+1}], v106 offset:{f*4096}")
        I(f"ds_read_b64_tr_b16 v[{W+4*f+2}:{W+4*f+3}], v106 offset:{f*4096+512}")
    I("s_lshl_b32 s42, s21, 10")
    I(f"s_add_u32 s43, s42, {WRAD}")
    I("v_add_u32 v105, s43, v105")
    I("s_waitcnt lgkmcnt(0)" if c.wrlds else "s_waitcnt vmcnt(0)")
    for k in range(4):
        h = k >> 1
        for d in range(4):
            I(f"v_lshlrev_b32 v{WT+4*k+d}, 16, v{WT+4*k+d}")
            I(f"v_xor_b32 v{WT+4*k+d}, v{110+h}, v{WT+4*k+d}")
        I(f"ds_write_b128 v105, v[{WT+4*k}:{WT+4*k+3}] offset:{(k>>1)*8192 + (k&1)*4096}")
    I("v_and_b32 v106, 15, v104")
    I("v_lshrrev_b32 v107, 4, v104")
    I(f"v_lshlrev_b32 v{X0}, 2, v104")
    if NWG == 250:
        I(f"s_mul_i32 s42, s20, {HN}")
        I(f"s_movk_i32 s44, {HN}")
    else:
        I("s_mul_i32 s42, s20, 1600210")
        I("s_add_u32 s42, s42, 65532")
        I("s_add_u32 s44, s42, 1600210")
        I("s_lshr_b32 s42, s42, 16")
        I("s_lshr_b32 s44, s44, 16")
        I(f"s_min_u32 s44, s44, {N//2}")
        I("s_sub_u32 s44, s44, s42")
    I("s_lshl_b32 s42, s42, 9")
    I("s_mov_b32 s40, s42")
    I("s_mov_b32 s41, s44")
    I("s_lshl_b32 s43, s21, 5")
    I("s_add_u32 s42, s42, s43")
    I(f"v_lshlrev_b32 v{X1}, 9, v106")
    I(f"v_lshl_add_u32 v{X1}, v107, 3, v{X1}")
    I(f"v_add_u32 v{X1}, s42, v{X1}")
    I(f"v_cmp_le_u32 s[84:85], {HN-16}, v106")
    I(f"s_sub_u32 s43, s44, {48-HN}")
    I("v_cmp_gt_i32 s[50:51], s43, v106")
    I("s_sub_u32 s43, s44, 16")
    I("v_cmp_gt_i32 s[94:95], s43, v106")
    I("v_lshlrev_b32 v108, 10, v106")
    I(f"v_add_u32 v108, {T}, v108")
    I("s_or_b64 s[94:95], s[94:95], s[84:85]")
    for u in (3, 2, 1, 0):
        I(f"v_add_u32 v109, {4*u}, v107")
        I("v_xor_b32 v109, v109, v106")
        I(f"v_lshl_add_u32 v{TF+4+u}, v109, 4, v108")
    I("s_waitcnt lgkmcnt(0)")
    for u in range(4):
        I(f"v_mov_b32 v{TA+u}, v{TF+4+u}")
    I("s_mov_b32 s89, 0")
    NPB = 8
    TB, KA, SJ, KB, RB = 40, 48, 56, 64, 80
    LJ, LCH, LONE, Y = 96, 97, 98, 99
    MB = 52
    def mb(p, w): return f"s[{MB+4*p+2*w}:{MB+4*p+2*w+1}]"
    LA, PA0, PA1, TOA = KB, KB + 1, KB + 2, KB + 3
    I(f"v_lshrrev_b32 v{Y}, 2, v{X0}")
    I("s_lshl_b32 s42, s21, 11")
    I(f"v_lshl_add_u32 v{LA}, v{Y}, 4, s42")
    I(f"v_lshrrev_b32 v{Y+1}, 1, v{Y}")
    I("s_lshl_b32 s43, s21, 5")
    I(f"s_sub_u32 s44, {NCH-128}, s43")
    I(f"v_cmp_gt_i32 s[46:47], s44, v{Y+1}")
    I(f"s_mov_b32 s44, {CSTRIDE}")
    I(f"v_mul_u32_u24 v{Y+1}, s44, v{Y+1}")
    I(f"v_and_b32 v{Y+2}, 16, v{LA}")
    I(f"v_add_u32 v{PA0}, v{Y+1}, v{Y+2}")
    I(f"v_cndmask_b32 v{PA1}, 2.0, v{PA0}, s[46:47]")
    I(f"v_and_b32 v{LJ}, 7, v{Y}")
    I(f"v_lshrrev_b32 v{Y+1}, 3, v{Y}")
    I(f"v_mul_u32_u24 v{LCH}, s44, v{Y+1}")
    I(f"v_lshl_add_u32 v{RB}, v{Y+1}, 5, s42")
    I("s_mul_i32 s38, s43, s44")
    I(f"v_add_u32 v{LCH}, s38, v{LCH}")
    I(f"v_mov_b32 v{LONE}, 1")
    I("s_lshl_b32 s36, s20, 5")
    I(f"s_add_u32 s36, s36, {TABOFF+8192}")
    I("s_add_u32 s36, s36, s38")
    I(f"s_add_u32 s37, s36, {128*CSTRIDE}")
    I("s_lshl_b32 s42, s21, 6")
    I(f"v_add_u32 v{Y}, s42, v{Y}")
    I(f"v_mul_u32_u24 v{Y+1}, 0xaab, v{Y}")
    I(f"v_lshrrev_b32 v{Y+1}, 16, v{Y+1}")
    I(f"v_mul_u32_u24 v{Y+1}, {SSTR-24*32}, v{Y+1}")
    I(f"v_lshl_add_u32 v{TOA}, v{Y}, 5, v{Y+1}")
    I(f"v_add_u32 v{TOA}, {SCR+28}, v{TOA}")
    I(f"s_movk_i32 s42, {NCH}")
    I(f"v_cmp_gt_u32 s[92:93], s42, v{Y}")
    if c.pfx2_pos == 1:
        I("s_mov_b64 s[40:41], s[46:47]")
        prefetch_x(e, c.pfx2_lines, 114, 117, 256, 31, 0, 4, c.pfx_lines)
        I("s_mov_b64 s[46:47], s[40:41]")
    stamp(e, c, 14)
    e.label("L2_m_round")
    I("s_barrier")
    I("s_cmp_eq_u32 s23, 1")
    I("s_cbranch_scc1 L2_m_slowC")
    def pollB_issue():
        I(f"buffer_load_dwordx4 v[{TF+4}:{TF+7}], v{PA0}, s[8:11], s36 offen sc1")
        I(f"buffer_load_dwordx4 v[{TF+8}:{TF+11}], v{PA1}, s[8:11], s37 offen sc1")
    I(f"ds_read_b32 v{TF}, v{X0} offset:{HIST}")
    I(f"ds_read_b32 v{TF+1}, v{X0} offset:{HIST2}")
    I(f"ds_read_b32 v{Y}, v{TOA}")
    I("s_waitcnt lgkmcnt(0)")
    I(f"v_add_u32 v{TF}, v{TF}, v{TF+1}")
    I(f"v_and_b32 v{Y}, 0xfff, v{Y}")
    I(f"v_cndmask_b32 v{Y}, 0, v{Y}, s[92:93]")
    scan64(e, TF)
    scan64(e, Y)
    I(f"v_readlane_b32 s42, v{TF}, 63")
    I(f"v_mov_b32 v{Y+2}, 0")
    I("s_mov_b32 exec_lo, 0")
    I("s_mov_b32 exec_hi, 0x80000000")
    I(f"ds_add_u32 v{Y+2}, v{Y} offset:{TOTB}")
    I("s_mov_b64 exec, -1")
    I(f"s_cmp_gt_u32 s42, {CAP}")
    I("s_cbranch_scc1 L2_m_overflow")
    if c.bearly: pollB_issue()
    I("s_waitcnt lgkmcnt(0)")
    I("s_barrier")
    I(f"ds_read_b32 v{Y}, v{Y+2} offset:{TOTB}")
    SEL = Y + 4
    E2 = [TF, TF + 8]
    I("s_mov_b32 s44, 0")
    I("s_waitcnt lgkmcnt(0)")
    I(f"v_readfirstlane_b32 s42, v{Y}")
    I(f"v_or_b32 v{SEL}, 0x0c0c0c00, v{LJ}")
    I(f"s_cmp_gt_u32 s42, {CAP}")
    I("s_cbranch_scc1 L2_m_overflow")
    stamp(e, c, 10)
    I("s_mov_b32 s34, s42")
    if c.x_nobload: I("s_branch L2_bnoxb")
    if c.bearly: I("s_branch L2_pollB_w")
    e.label("L2_pollB")
    pollB_issue()
    e.label("L2_pollB_w")
    I("s_add_u32 s44, s44, 1")
    I("s_waitcnt vmcnt(0)")
    tag_bad(e, Y, TF+4, Y+1, ODD)
    tag_bad(e, Y+2, TF+8, Y+1, ODD)
    I(f"v_cndmask_b32 v{Y+2}, 0, v{Y+2}, s[46:47]")
    I(f"v_or_b32 v{Y}, v{Y}, v{Y+2}")
    I(f"v_cmp_ne_u32 vcc, 0, v{Y}")
    e.nop(2)
    I("s_cmp_eq_u64 vcc, 0")
    I("s_cbranch_scc1 L2_pollB_ok")
    I(f"s_sleep {c.psleep}")
    I("s_cmp_lt_u32 s44, 0x100000")
    I("s_cbranch_scc1 L2_pollB")
    e.label("L2_pollB_ok")
    stamp(e, c, 7)
    I(f"ds_write_b128 v{LA}, v[{TF+4}:{TF+7}] offset:{CEB}")
    I(f"ds_write_b128 v{LA}, v[{TF+8}:{TF+11}] offset:{CEB+1024}")
    def boff(p): return ((128 if p >= 4 else 0) + 8 * (p & 3)) * CSTRIDE
    def ent_read(p):
        r = E2[p & 1]
        I(f"ds_read_b128 v[{r}:{r+3}], v{RB} offset:{CEB+256*p}")
        I(f"ds_read_b64 v[{r+4}:{r+5}], v{RB} offset:{CEB+256*p+16}")
    ent_read(0); ent_read(1)
    I(f"v_add_u32 v{Y+1}, 8, v{LJ}")
    for p in range(NPB):
        r = E2[p & 1]
        I(f"s_waitcnt lgkmcnt({2 if p < NPB-1 else 0})")
        I(f"v_and_b32 v{SJ+p}, 0xfff, v{r}")
        I(f"v_bfe_u32 v{TB+p}, v{r}, 12, 12")
        I(f"v_perm_b32 v{KB+2*p}, v{r+3}, v{r+2}, v{SEL}")
        I(f"v_perm_b32 v{KB+2*p+1}, v{r+5}, v{r+4}, v{SEL}")
        if p + 2 < NPB: ent_read(p + 2)
        I(f"v_add_u32 v{SJ+p}, v{SJ+p}, v{LJ}")
        I(f"v_cmp_lt_u32 {mb(p,0)}, v{LJ}, v{TB+p}")
        I(f"v_cmp_lt_u32 {mb(p,1)}, v{Y+1}, v{TB+p}")
        I(f"v_lshl_add_u32 v{SJ+p}, v{SJ+p}, 4, v{LCH}")
    P0 = [TF, TF+4, TF+8, TF+12]
    def pay_issue(p, w, reg):
        I(f"s_mov_b32 s42, {boff(p)+PAYOFF}")
        I("s_mov_b64 exec, -1")
        I(f"v_cndmask_b32 v{Y+2+w}, 2.0, v{SJ+p}, {mb(p,w)}")
        I(f"buffer_load_dwordx4 v[{reg}:{reg+3}], v{Y+2+w}, s[8:11], s42 offen offset:{128*w} {rf}")
    for k in range(4): pay_issue(k >> 1, k & 1, P0[k])
    I(f"v_max3_u32 v{Y}, v{TB}, v{TB+1}, v{TB+2}")
    I(f"v_max3_u32 v{Y}, v{Y}, v{TB+3}, v{TB+4}")
    I(f"v_max3_u32 v{Y}, v{Y}, v{TB+5}, v{TB+6}")
    I(f"v_max_u32 v{Y}, v{Y}, v{TB+7}")
    I(f"v_cmp_lt_u32 vcc, 16, v{Y}")
    I(f"v_mov_b32 v{Y+1}, v{RB}")
    for p in range(NPB):
        for w in range(2):
            I(f"s_mov_b64 exec, {mb(p,w)}")
            I(f"ds_add_rtn_u32 v{RB+2*p+w}, v{KB+2*p+w}, v{LONE} offset:{HISTB}")
    I("s_mov_b64 exec, -1")
    I("s_cmp_lg_u64 vcc, 0")
    I("s_cselect_b32 s35, 1, 0")
    I("s_cbranch_scc0 L2_bnoxa")
    def w2mask(p):
        I(f"v_min_u32 v{Y+2}, {KIN}, v{TB+p}")
        I(f"v_add_u32 v{Y+3}, 16, v{LJ}")
        I(f"v_cmp_lt_u32 vcc, v{Y+3}, v{Y+2}")
        I("s_and_saveexec_b64 s[44:45], vcc")
    for p in range(NPB):
        w2mask(p)
        e.branch(f"s_cbranch_execz L2_bw2a{p}")
        I(f"ds_read_b32 v{KA+p}, v{Y+1} offset:{CEB+256*p+24}")
        I("s_waitcnt lgkmcnt(0)")
        I(f"v_perm_b32 v{KA+p}, v{KA+p}, v{KA+p}, v{SEL}")
        I(f"ds_add_rtn_u32 v{Y+2}, v{KA+p}, v{LONE} offset:{HISTB}")
        I("s_waitcnt lgkmcnt(0)")
        I(f"v_lshl_or_b32 v{KA+p}, v{Y+2}, 8, v{KA+p}")
        e.label(f"L2_bw2a{p}")
        I("s_mov_b64 exec, -1")
    def key_addr(p, dst):
        I(f"v_sub_u32 v{dst}, v{SJ+p}, v{LCH}")
        I(f"v_lshrrev_b32 v{dst}, 4, v{dst}")
        I(f"v_add_u32 v{dst}, v{dst}, v{LCH}")
    for p in range(NPB):
        I(f"s_mov_b32 s42, {boff(p)+KEYOFF}")
        key_addr(p, Y+3)
        extra_count(f"b{p}", KIN, LJ, Y+3, TB+p, 42, LONE, HIST2B, Y)
    e.label("L2_bnoxa")
    I("s_mov_b64 exec, 1")
    I(f"v_mov_b32 v{Y+2}, 0")
    I("s_waitcnt lgkmcnt(0)")
    I(f"ds_add_u32 v{Y+2}, v{LONE} offset:{BSYNC}")
    I("s_mov_b64 exec, -1")
    I(f"v_mov_b32 v{Y+2}, 0")
    spin(e, "bs", Y, Y+2, BSYNC, 4, 44, 42)
    BB = Y + 4
    I(f"ds_read_b32 v{Y}, v{X0} offset:{HISTB}")
    I(f"ds_read_b32 v{Y+1}, v{X0} offset:{HIST2B}")
    I("s_waitcnt lgkmcnt(0)")
    I(f"v_add_u32 v{Y+1}, v{Y}, v{Y+1}")
    I(f"v_mov_b32 v{BB}, v{Y+1}")
    scan64(e, BB)
    I(f"v_sub_u32 v{BB}, v{BB}, v{Y+1}")
    I(f"v_add_u32 v{BB}, {BOFF}, v{BB}")
    for k in range(2*NPB):
        I(f"ds_bpermute_b32 v{KB+k}, v{KB+k}, v{BB}")
    I("s_cmp_lg_u32 s21, 0")
    I("s_cbranch_scc1 L2_bnoinfo")
    I(f"v_lshl_or_b32 v{Y+1}, v{Y+1}, 16, v{BB}")
    I(f"s_mov_b32 exec_lo, {((1 << 32) - (1 << HN))}")
    I(f"ds_write_b32 v{X0}, v{Y+1} offset:{INFO}")
    I("s_mov_b64 exec, -1")
    e.label("L2_bnoinfo")
    I("s_waitcnt lgkmcnt(0)")
    for k in range(2*NPB):
        I(f"v_add_lshl_u32 v{KB+k}, v{KB+k}, v{RB+k}, 4")
    I(f"v_mov_b32 v{LONE}, v{Y}")
    regs = P0 + [RB, RB+4, RB+8, RB+12]
    for k in range(4, 8): pay_issue(k >> 1, k & 1, regs[k])
    for k in range(16):
        I(f"s_waitcnt vmcnt({min(7, 15-k)})")
        I(f"s_mov_b64 exec, {mb(k>>1, k&1)}")
        I(f"ds_write_b128 v{KB+k}, v[{regs[k&7]}:{regs[k&7]+3}] offset:{RAW}")
        if k + 8 < 16: pay_issue((k+8) >> 1, (k+8) & 1, regs[k&7])
    I("s_mov_b64 exec, -1")
    I("s_cmp_eq_u32 s35, 0")
    I("s_cbranch_scc1 L2_bnoxb")
    for p in range(NPB):
        I(f"v_and_b32 v{Y}, 0xff, v{KA+p}")
        I(f"ds_bpermute_b32 v{Y}, v{Y}, v{BB}")
        w2mask(p)
        e.branch(f"s_cbranch_execz L2_bw2b{p}")
        I(f"s_mov_b32 s42, {boff(p)+PAYOFF}")
        I(f"buffer_load_dwordx4 v[{TF}:{TF+3}], v{SJ+p}, s[8:11], s42 offen offset:256 {rf}")
        I(f"v_lshrrev_b32 v{KA+p}, 8, v{KA+p}")
        I("s_waitcnt vmcnt(0) lgkmcnt(0)")
        I(f"v_add_lshl_u32 v{Y}, v{Y}, v{KA+p}, 4")
        I(f"ds_write_b128 v{Y}, v[{TF}:{TF+3}] offset:{RAW}")
        e.label(f"L2_bw2b{p}")
        I("s_mov_b64 exec, -1")
        I("s_waitcnt lgkmcnt(0)")
    I(f"v_add_u32 v{BB}, v{BB}, v{LONE}")
    I(f"v_mov_b32 v{LONE}, 1")
    for p in range(NPB):
        I(f"s_mov_b32 s42, {boff(p)+KEYOFF}")
        I(f"s_mov_b32 s43, {boff(p)+PAYOFF}")
        key_addr(p, KA+p)
        extra_move(f"b{p}", KIN, LJ, KA+p, SJ+p, TB+p, 42, 43, LONE, CUR2B, BB, Y, TF)
    e.label("L2_bnoxb")
    I("s_waitcnt lgkmcnt(0)")
    for k in range(64):
        I(f"v_mov_b32 v{G+k}, 0")
    I("s_cmp_lg_u32 s21, 1")
    I("s_cbranch_scc1 L2_bnoguard")
    I(f"s_add_u32 s42, s34, {BOFF}")
    I("s_lshl_b32 s42, s42, 4")
    I(f"v_lshl_add_u32 v{TF}, v{X0}, 2, s42")
    I(f"ds_write_b128 v{TF}, v[{G}:{G+3}] offset:{RAW}")
    I("s_waitcnt lgkmcnt(0)")
    e.label("L2_bnoguard")
    I(f"v_mov_b32 v{TF}, 1")
    I("s_mov_b64 exec, 1")
    I(f"ds_add_u32 v{G}, v{TF} offset:{BREADY}")
    I("s_mov_b64 exec, -1")
    stamp(e, c, 13)
    I("s_branch L2_m_tiles")
    e.label("L2_m_slowC")
    I("s_barrier")
    e.label("L2_m_tiles")
    if c.prio_m: I(f"s_setprio {c.prio_m}")
    for h in range(2):
        for t in ((0, 3, 1, 2) if h else range(4)):
            need = 16 if t < 3 else NODES - 48
            last = (h, t) == (1, 2)
            if last and c.split: need = 32
            I(f"v_mov_b32 v{TF}, 0")
            spin(e, f"t{h}{t}", TF+1, TF, DONE + 16*h + 4*t, need, 43, 42, sleep=(1 if last else c.sleep))
            stamp(e, c, 16 + 4*h + t)
            srcs = [t] + ([0] if last and c.split else [])
            steps = [(tt, ks) for tt in srcs for ks in range(16)]
            def mf(ks, r):
                jp, blk = ks >> 2, 2 * h + ((ks >> 1) & 1)
                p, i, sg = path_of(jp, blk)
                f = p * 2 + (ks & 1)
                g = G + 16 * t + 4 * i
                I(f"v_mfma_f32_16x16x32_bf16 v[{g}:{g+3}], v[{W+4*f}:{W+4*f+3}], v[{r}:{r+3}], v[{g}:{g+3}]")
            def rd(n, r):
                tt, ks = steps[n]
                I(f"ds_read_b128 v[{r}:{r+3}], v{TA+(ks&3)} offset:{tt*16384 + (ks>>2)*256}")
            if last and c.fastlast and not c.split:
                I("s_cmp_eq_u32 s24, 0")
                I("s_cbranch_scc1 L2_lastslow")
                fr = [TF + 4*n for n in range(4)] + [G + 4*n for n in range(8)] + [G + 48 + 4*n for n in range(4)]
                order = [0, 2, 4, 8, 1, 3, 5, 9, 6, 10, 12, 14, 7, 11, 13, 15]
                for n, ks in enumerate(order): rd(ks, fr[n])
                for n, ks in enumerate(order):
                    I(f"s_waitcnt lgkmcnt({15-n})")
                    mf(ks, fr[n])
                I("s_branch L2_lastdone")
                e.label("L2_lastslow")
            for n in range(4): rd(n, TF + 4*n)
            for n in range(len(steps)):
                I(f"s_waitcnt lgkmcnt({min(3, len(steps)-1-n)})")
                mf(steps[n][1], TF + 4*(n&3))
                if n + 4 < len(steps): rd(n + 4, TF + 4*(n&3))
            if last and c.fastlast and not c.split: e.label("L2_lastdone")
            if (h, t) == (1, 0) and c.split:
                I(f"v_mov_b32 v{TF}, 0")
                I(f"v_mov_b32 v{TF+1}, 1")
                I("s_mov_b64 exec, 1")
                I(f"ds_add_u32 v{TF}, v{TF+1} offset:{GDONE + 16}")
                I("s_mov_b64 exec, -1")
            if h == 0:
                I(f"v_mov_b32 v{TF}, 0")
                I(f"v_mov_b32 v{TF+1}, 1")
                I("s_mov_b64 exec, 1")
                I(f"ds_add_u32 v{TF}, v{TF+1} offset:{GDONE + 4*t}")
                I("s_mov_b64 exec, -1")
                if t == c.pf1_tile:
                    I(f"s_movk_i32 m0, {HIST2B}")
                    I("s_lshl_b32 s42, s21, 6")
                    I(f"v_lshrrev_b32 v{TF+3}, 2, v{X0}")
                    I(f"v_add_u32 v{TF+3}, s42, v{TF+3}")
                    prefetch_x(e, c.pf1_lines, TF + 4, TF + 3, 256, 31, 1, 4, lds=True)
            else:
                I("s_cmp_eq_u32 s24, 0")
                e.branch(f"s_cbranch_scc1 L2_nofin{t}")
                g = G + 16 * t
                I("s_mov_b32 s42, 0xbfb8aa3b")
                for r in range(4): I(f"v_mul_f32 v{TF+r}, s42, v{g+r}")
                for r in range(4): I(f"v_exp_f32 v{TF+r}, v{TF+r}")
                for r in range(4): I(f"v_add_f32 v{TF+r}, 1.0, v{TF+r}")
                for r in range(4): I(f"v_rcp_f32 v{TF+r}, v{TF+r}")
                for i in range(1, 4):
                    for r in range(4): I(f"v_mul_f32 v{g+4*i+r}, v{g+4*i+r}, v{TF+r}")
                for i in range(4):
                    I(f"v_cvt_pk_bf16_f32 v{TF+4+2*i}, v{g+4*i}, v{g+4*i+1}")
                    I(f"v_cvt_pk_bf16_f32 v{TF+5+2*i}, v{g+4*i+2}, v{g+4*i+3}")
                fl = c.out_flags if (t == 2 or c.out_early is None) else c.out_early
                if c.wideout:
                    prev = {0: None, 3: 0, 1: 3, 2: 1}[t]
                    z, a1, a2 = TF, TF + 1, TF + 2
                    I(f"v_mov_b32 v{z}, 0")
                    if prev is not None: spin(e, f"or{t}", a1, z, OUTR + 4*prev, 4, 43, 42)
                    I(f"v_bfe_u32 v{a1}, v{X0}, 2, 4")
                    I(f"v_lshrrev_b32 v{a2}, 7, v{X0}")
                    I("s_lshl_b32 s42, s21, 1")
                    I(f"v_add_u32 v{a2}, s42, v{a2}")
                    I(f"v_xor_b32 v{a2}, v{a2}, v{a1}")
                    I(f"v_and_b32 v{a2}, 7, v{a2}")
                    I(f"v_lshlrev_b32 v{a2}, 4, v{a2}")
                    I(f"v_lshl_add_u32 v{a2}, v{a1}, 9, v{a2}")
                    I(f"v_bfe_u32 v{a1}, v{X0}, 6, 1")
                    I(f"v_lshl_add_u32 v{a2}, v{a1}, 3, v{a2}")
                    I(f"v_add_u32 v{a2}, {WRAD}, v{a2}")
                    for i in range(4):
                        I(f"ds_write_b64 v{a2}, v[{TF+4+2*i}:{TF+5+2*i}] offset:{i*128}")
                    I(f"v_mov_b32 v{a1}, 1")
                    I("s_mov_b64 exec, 1")
                    I(f"ds_add_u32 v{z}, v{a1} offset:{OUTW + 4*t}")
                    I("s_mov_b64 exec, -1")
                    r0, ga, la = TF + 12, TF + 13, TF + 3
                    I(f"v_lshrrev_b32 v{r0}, 7, v{X0}")
                    I("s_lshl_b32 s42, s21, 2")
                    I(f"v_add_u32 v{r0}, s42, v{r0}")
                    I(f"v_bfe_u32 v{ga}, v{X0}, 2, 5")
                    I(f"v_and_b32 v{a2}, 7, v{r0}")
                    I(f"v_xor_b32 v{la}, v{ga}, v{a2}")
                    I(f"v_lshlrev_b32 v{la}, 4, v{la}")
                    I(f"v_lshl_add_u32 v{la}, v{r0}, 9, v{la}")
                    I(f"v_add_u32 v{la}, {WRAD}, v{la}")
                    I(f"v_xor_b32 v{a2}, 32, v{la}")
                    I(f"v_lshlrev_b32 v{ga}, 4, v{ga}")
                    I(f"v_lshl_add_u32 v{ga}, v{r0}, 9, v{ga}")
                    I(f"v_add_u32 v{ga}, s40, v{ga}")
                    spin(e, f"ow{t}", a1, z, OUTW + 4*t, 4, 43, 42)
                    I(f"ds_read_b128 v[{TF+4}:{TF+7}], v{la}")
                    I(f"ds_read_b128 v[{TF+8}:{TF+11}], v{a2} offset:1024")
                    for k in range(2):
                        base = 16*t + 2*k
                        I(f"s_mov_b32 s42, {base*512 + ((N//2-HN)*512 if t >= 2 else 0)}")
                        va = ga
                        if t == 1:
                            va = TF + 14
                            I(f"v_cmp_le_u32 vcc, {HN-base}, v{r0}")
                            I(f"v_add_u32 v{TF+15}, {(N//2-HN)*512}, v{ga}")
                            I(f"s_sub_u32 s43, s41, {base}")
                            I(f"v_cndmask_b32 v{va}, v{ga}, v{TF+15}, vcc")
                            I(f"v_cmp_gt_i32 s[44:45], s43, v{r0}")
                            e.nop(1)
                            I("s_or_b64 exec, vcc, s[44:45]")
                        if t == 3:
                            I(f"s_sub_u32 s43, s41, {base-HN}")
                            I(f"v_cmp_gt_i32 vcc, s43, v{r0}")
                            e.nop(1)
                            I("s_mov_b64 exec, vcc")
                        I(f"s_waitcnt lgkmcnt({1-k})")
                        if t == 3: I(f"s_cbranch_execz L2_wo3{k}")
                        I(f"buffer_store_dwordx4 v[{TF+4+4*k}:{TF+7+4*k}], v{va}, s[12:15], s42 offen {fl}")
                        if t == 3: e.label(f"L2_wo3{k}")
                        if t in (1, 3): I("s_mov_b64 exec, -1")
                    if t != 2:
                        I(f"v_mov_b32 v{a1}, 1")
                        I("s_mov_b64 exec, 1")
                        I(f"ds_add_u32 v{z}, v{a1} offset:{OUTR + 4*t}")
                        I("s_mov_b64 exec, -1")
                else:
                    I(f"s_mov_b32 s42, {t*16*512 + ((N//2-HN)*512 if t >= 2 else 0)}")
                    va = X1
                    if t == 1:
                        va = TF
                        I(f"v_add_u32 v{TF}, {(N//2-HN)*512}, v{X1}")
                        I(f"v_cndmask_b32 v{TF}, v{X1}, v{TF}, s[84:85]")
                        I("s_mov_b64 exec, s[94:95]")
                    if t == 3:
                        I("s_mov_b64 exec, s[50:51]")
                        I("s_cbranch_execz L2_nost3")
                    for i in range(4):
                        I(f"buffer_store_dwordx2 v[{TF+4+2*i}:{TF+5+2*i}], v{va}, s[12:15], s42 offen offset:{i*128} {c.out_flags if (t == 2 or c.out_early is None) else c.out_early}")
                    if t == 3: e.label("L2_nost3")
                    if t in (1, 3): I("s_mov_b64 exec, -1")
                e.label(f"L2_nofin{t}")
    stamp(e, c, 11)
    I("s_cmp_lg_u32 s24, 0")
    e.branch("s_cbranch_scc1 L2_m_exit")
    I("s_add_u32 s89, s89, 1")
    I("s_branch L2_m_slow")
    e.label("L2_m_overflow")
    I("s_mov_b32 s89, 0")
    I("s_mov_b32 s23, 1")
    I("s_waitcnt vmcnt(0)")
    for k in range(64):
        I(f"v_mov_b32 v{G+k}, 0")
    e.label("L2_m_slow")
    I("s_waitcnt vmcnt(0) lgkmcnt(0)")
    I("s_barrier")
    I(f"s_cmp_eq_u32 s89, {2*NCH-1}")
    I("s_cselect_b32 s24, 1, 0")
    I("s_cmp_lg_u32 s21, 1")
    I("s_cbranch_scc1 L2_m_nz")
    for k in range(4): I(f"v_mov_b32 v{TF+k}, 0")
    I(f"v_lshlrev_b32 v{TF+4}, 2, v{X0}")
    I(f"ds_write_b128 v{TF+4}, v[{TF}:{TF+3}]")
    I("s_waitcnt lgkmcnt(0)")
    e.label("L2_m_nz")
    I("s_barrier")
    e.branch("s_branch L2_m_round")
    e.label("L2_m_exit")
    if c.stamps:
        I("s_waitcnt vmcnt(0)")
        stamp(e, c, 12)
        stamp_store(e, c, TF)
    e.label("L_end")
    I("s_endpgm")
    e.label("L_codeend")
    return KNAME, 128, 96

def gather_loop(e, c, L):
    I = e.I
    RAW, T, NEXT, DONE, GDONE, OSC, PL1, BREADY, INFO = (L[k] for k in "RAW T NEXT DONE GDONE OSC PL1 BREADY INFO".split())
    VLANE, VINFO, VNEXT, VLOFF, VMASK, VOW, VOR, VSCRW, VTRA, VWR, VL16, VT0, VT1, VONE = (L[k] for k in
        "VLANE VINFO VNEXT VLOFF VMASK VOW VOR VSCRW VTRA VWR VL16 VT0 VT1 VONE".split())
    ACC, LD, B, A, AD = 0, 32, 64, 96, 100
    sA, sR, sH, sN, sNV = 32, 33, 34, 35, 37
    sCN, sCH, sCF, sCR, sL = 38, 39, 40, 41, 36
    uid = [0]
    def lab(p):
        uid[0] += 1
        return f"L2_{p}{uid[0]}"
    def fetch_issue():
        I("s_mov_b64 exec, 1")
        I(f"ds_add_rtn_u32 v{VNEXT}, v{VL16}, v{VONE} offset:{NEXT}")
        I("s_mov_b64 exec, -1")
    NIT = 2*NODES + (16 if c.split else 0)
    def setup_item(none_label):
        I(f"v_readfirstlane_b32 s42, v{VNEXT}")
        e.nop(1)
        if c.static1: I("s_add_u32 s42, s42, 12")
        I(f"s_cmp_ge_u32 s42, {NIT}")
        I(f"s_cbranch_scc1 {none_label}")
        t, sp, dn = lab("bw"), lab("sp"), lab("sd")
        if c.split:
            I(f"s_cmp_ge_u32 s42, {2*NODES-16}")
            I(f"s_cbranch_scc1 {sp}")
        I(f"s_cmp_ge_u32 s42, {NODES}")
        I(f"s_cselect_b32 s{sH}, 256, 0")
        I(f"s_cselect_b32 s43, {NODES}, 0")
        I(f"s_cmp_ge_u32 s42, {NODES+16}")
        I(f"s_cselect_b32 s43, {NODES-32}, s43")
        I(f"s_cmp_ge_u32 s42, {NODES+18}")
        I(f"s_cselect_b32 s43, {NODES+2}, s43")
        I(f"s_sub_u32 s{sN}, s42, s43")
        I(f"s_cmp_lt_u32 s{sN}, s48")
        I(f"s_cbranch_scc1 {t}")
        stamp(e, c, 29)
        I(f"v_mov_b32 v{VT0}, 0")
        spin(e, t, VT1, VT0, BREADY, 4, 45, 44, sleep=1)
        I(f"v_lshrrev_b32 v{VT0}, 2, v{VL16}")
        I(f"ds_read_b32 v{VINFO}, v{VT0} offset:{INFO}")
        I("s_movk_i32 s48, 64")
        I("s_waitcnt lgkmcnt(0)")
        stamp(e, c, 30)
        e.label(t)
        I(f"v_readlane_b32 s42, v{VINFO}, s{sN}")
        e.nop(1)
        I(f"s_lshr_b32 s{sR}, s42, 16")
        I("s_and_b32 s42, s42, 0xffff")
        I(f"s_lshl_b32 s{sA}, s42, 4")
        if c.split:
            I(f"s_branch {dn}")
            e.label(sp)
            I(f"s_sub_u32 s42, s42, {2*NODES-16}")
            I("s_lshr_b32 s43, s42, 1")
            I(f"s_add_u32 s{sN}, s43, 32")
            I(f"s_cmp_lt_u32 s{sN}, s48")
            I(f"s_cbranch_scc1 {t}b")
            I(f"v_mov_b32 v{VT0}, 0")
            spin(e, t + "c", VT1, VT0, BREADY, 4, 45, 44, sleep=1)
            I(f"v_lshrrev_b32 v{VT0}, 2, v{VL16}")
            I(f"ds_read_b32 v{VINFO}, v{VT0} offset:{INFO}")
            I("s_movk_i32 s48, 64")
            I("s_waitcnt lgkmcnt(0)")
            e.label(t + "b")
            I(f"v_readlane_b32 s44, v{VINFO}, s{sN}")
            I(f"s_movk_i32 s{sH}, 256")
            I(f"s_lshr_b32 s{sR}, s44, 16")
            I("s_and_b32 s44, s44, 0xffff")
            I(f"s_min_u32 s45, s{sR}, 32")
            I("s_bitcmp1_b32 s42, 0")
            I(f"s_cbranch_scc1 {sp}h")
            I(f"s_mov_b32 s{sR}, s45")
            I(f"s_lshl_b32 s{sA}, s44, 4")
            I(f"s_branch {dn}")
            e.label(sp + "h")
            I(f"s_sub_u32 s{sR}, s{sR}, s45")
            I("s_add_u32 s44, s44, s45")
            I(f"s_lshl_b32 s{sA}, s44, 4")
            I(f"s_or_b32 s{sN}, s43, 64")
            e.label(dn)
    def off_read(hf):
        I(f"ds_read_b128 v[{AD}:{AD+3}], v{VOR} offset:{OSC+128*hf}")
        I(f"ds_read_b128 v[{AD+4}:{AD+7}], v{VOR} offset:{OSC+128*hf+16}")
    def off_add():
        if c.addtid: return
        for i in range(8):
            I(f"v_add_u32 v{AD+i}, v{AD+i}, v{VLOFF}")
    def prep_block():
        r = B
        I(f"v_add_u32 v{VT0}, s{sA}, v{VL16}")
        I(f"ds_read_b128 v[{r}:{r+3}], v{VT0} offset:{RAW}")
        l = lab("nf")
        I(f"s_cmp_gt_u32 s{sR}, 64")
        I(f"s_cbranch_scc1 {l}")
        fetch_issue()
        e.label(l)
        I(f"v_cmp_gt_u32 vcc, s{sR}, v{VLANE}")
        I("s_waitcnt lgkmcnt(0)")
        I(f"v_lshrrev_b32 v{r+11}, 16, v{r+3}")
        if c.addtid:
            I(f"v_lshlrev_b32 v{r+11}, 5, v{r+11}")
            I(f"v_sub_u32 v{r+11}, v{r+11}, v{VLOFF}")
        else:
            I(f"v_lshlrev_b32 v{r+11}, 9, v{r+11}")
            if c.oobtail: I(f"v_cndmask_b32 v{r+11}, 2.0, v{r+11}, vcc")
        I(f"ds_write_b32 v{VOW}, v{r+11} offset:{OSC}")
        off_read(0)
        if not c.x_noexp:
            I(f"v_cndmask_b32 v{r}, 0, v{r}, vcc")
            I(f"v_cndmask_b32 v{r+1}, 0, v{r+1}, vcc")
            I(f"v_lshlrev_b32 v{r+8}, 16, v{r+2}")
            I(f"v_and_b32 v{r+9}, v{VMASK}, v{r+2}")
            I(f"v_lshlrev_b32 v{r+10}, 16, v{r+3}")
            I(f"v_lshlrev_b32 v{r+4}, 16, v{r}")
            I(f"v_and_b32 v{r+5}, v{VMASK}, v{r}")
            I(f"v_lshlrev_b32 v{r+6}, 16, v{r+1}")
            I(f"v_and_b32 v{r+7}, v{VMASK}, v{r+1}")
            for j in range(3):
                for d in range(4):
                    I(f"v_mul_f32 v{r+12+4*j+d}, v{r+4+d}, v{r+8+j}")
            I(f"v_cvt_pk_bf16_f32 v{r+2}, v{r+12}, v{r+13}")
            I(f"v_cvt_pk_bf16_f32 v{r+3}, v{r+14}, v{r+15}")
            for k in range(4):
                I(f"v_cvt_pk_bf16_f32 v{r+24+k}, v{r+16+2*k}, v{r+17+2*k}")
        I(f"ds_write_b128 v{VSCRW}, v[{r}:{r+3}]")
        I(f"ds_write_b128 v{VSCRW}, v[{r+24}:{r+27}] offset:{PL1}")
        I("s_waitcnt lgkmcnt(2)")
        off_add()
    def ld(i):
        if c.x_noload: return
        I(f"buffer_load_dwordx4 v[{LD+4*i}:{LD+4*i+3}], v{AD+i}, s[4:7], {'0' if c.x_samehalf else 's%d' % sH} {'idxen' if c.addtid else 'offen'}")
    def perm(q, jj, k16=False):
        if c.x_noperm: return
        d = B + 2*q + jj if k16 else B + 4*q + jj
        I(f"v_perm_b32 v{d}, v{LD+4*(2*jj+1)+q//2}, v{LD+4*(2*jj)+q//2}, s{29 if q & 1 else 28}")
    def loads_partial(done):
        for i in range(7):
            I(f"s_cmp_le_u32 s{sL}, {4*i}")
            I(f"s_cbranch_scc1 {done}")
            ld(i)
    def perms_loads():
        part, done = lab("pp"), lab("pd")
        I("s_waitcnt vmcnt(0)")
        I(f"s_cmp_le_u32 s{sL}, 28")
        I(f"s_cbranch_scc1 {part}")
        for jj in range(4):
            for q in range(8): perm(q, jj)
            ld(2*jj); ld(2*jj+1)
        I(f"s_branch {done}")
        e.label(part)
        for jj in range(4):
            for q in range(8): perm(q, jj)
        loads_partial(done)
        e.label(done)
    def mfmas(first, k16=False):
        if c.x_nomfma: return
        for q in range(8):
            d = f"v[{ACC+4*q}:{ACC+4*q+3}]"
            if k16: I(f"v_mfma_f32_16x16x16_bf16 {d}, v[{A}:{A+1}], v[{B+2*q}:{B+2*q+1}], {'0' if first else d}")
            else: I(f"v_mfma_f32_16x16x32_bf16 {d}, v[{A}:{A+3}], v[{B+4*q}:{B+4*q+3}], {'0' if first else d}")
    def tr_read(hf):
        I(f"ds_read_b64_tr_b16 v[{A}:{A+1}], v{VTRA} offset:{512*hf}")
        I(f"ds_read_b64_tr_b16 v[{A+2}:{A+3}], v{VTRA} offset:{512*hf+256}")

    if c.stamps: I("s_mov_b32 s92, 16")
    setup_item("L2_g_done")
    prep_block()
    for i in range(8): ld(i)
    for first in (1, 0):
        e.label(f"L2_A{first}")
        tr_read(0)
        I(f"s_cmp_gt_u32 s{sR}, 32")
        I(f"s_cbranch_scc1 L2_AB{first}")
        I(f"s_mov_b32 s{sCF}, {first}")
        I(f"s_mov_b32 s{sCR}, s{sR}")
        I("s_branch L2_XN")
        e.label(f"L2_AB{first}")
        off_read(1)
        I(f"s_sub_u32 s{sL}, s{sR}, 32")
        I("s_waitcnt lgkmcnt(0)")
        off_add()
        perms_loads()
        mfmas(first)
        if first: I("s_branch L2_B")
    e.label("L2_B")
    tr_read(1)
    I(f"s_cmp_gt_u32 s{sR}, 64")
    I("s_cbranch_scc0 L2_BN")
    I(f"s_sub_u32 s{sR}, s{sR}, 64")
    I(f"s_add_u32 s{sA}, s{sA}, 1024")
    I(f"s_mov_b32 s{sL}, s{sR}")
    prep_block()
    perms_loads()
    I("s_waitcnt lgkmcnt(0)")
    mfmas(0)
    I("s_branch L2_A0")
    e.label("L2_BN")
    I(f"s_mov_b32 s{sCF}, 0")
    I(f"s_sub_u32 s{sCR}, s{sR}, 32")
    e.label("L2_XN")
    I(f"s_mov_b32 s{sCN}, s{sN}")
    I(f"s_mov_b32 s{sCH}, s{sH}")
    I(f"s_mov_b32 s{sNV}, 1")
    setup_item("L2_XN_none")
    I(f"s_mov_b32 s{sL}, s{sR}")
    prep_block()
    I("s_branch L2_XN_go")
    e.label("L2_XN_none")
    I(f"s_mov_b32 s{sNV}, 0")
    I(f"s_mov_b32 s{sL}, 0")
    e.label("L2_XN_go")
    I(f"s_cmp_le_u32 s{sCR}, 16")
    I("s_cbranch_scc1 L2_XN_k16")
    perms_loads()
    I("s_waitcnt lgkmcnt(0)")
    I(f"s_cmp_eq_u32 s{sCF}, 0")
    I("s_cbranch_scc1 L2_XN_acc")
    mfmas(1)
    I("s_branch L2_XN_epi")
    e.label("L2_XN_acc")
    mfmas(0)
    I("s_branch L2_XN_epi")
    e.label("L2_XN_k16")
    I("s_waitcnt vmcnt(0)")
    for jj in range(2):
        for q in range(8): perm(q, jj, True)
    I(f"s_cmp_le_u32 s{sL}, 28")
    I("s_cbranch_scc1 L2_XN_k16p")
    for i in range(8): ld(i)
    I("s_branch L2_XN_k16d")
    e.label("L2_XN_k16p")
    loads_partial("L2_XN_k16d")
    e.label("L2_XN_k16d")
    I("s_waitcnt lgkmcnt(0)")
    I(f"s_cmp_eq_u32 s{sCF}, 0")
    I("s_cbranch_scc1 L2_XN_k16acc")
    mfmas(1, True)
    I("s_branch L2_XN_epi")
    e.label("L2_XN_k16acc")
    mfmas(0, True)
    e.label("L2_XN_epi")
    I(f"s_lshl_b32 s42, s{sCH}, 5")
    I(f"v_add_u32 v{VT0}, s42, v{VWR}")
    for q in range(8):
        I(f"ds_read_b128 v[{B+4*q}:{B+4*q+3}], v{VT0} offset:{q*1024}")
    I(f"s_lshr_b32 s43, s{sCN}, 4")
    I(f"s_lshl_b32 s43, s43, 2")
    I(f"s_cmp_eq_u32 s{sCH}, 0")
    I("s_cbranch_scc1 L2_nowar")
    I(f"v_mov_b32 v{VT1}, s43")
    spin(e, "war", VT0, VT1, GDONE, 4, 45, 44)
    if c.split:
        I("s_cmp_eq_u32 s43, 16")
        I("s_cselect_b32 s43, 8, s43")
    I("s_add_u32 s43, s43, 16")
    e.label("L2_nowar")
    I(f"s_and_b32 s44, s{sCN}, 15")
    I("s_lshl_b32 s44, s44, 4")
    I(f"s_and_b32 s45, s{sCN}, 63")
    I(f"s_lshl_b32 s45, s45, 10")
    I(f"s_add_u32 s45, s45, {T}")
    I(f"v_xor_b32 v{VT0}, s44, v{VL16}")
    I(f"v_add_u32 v{VT0}, s45, v{VT0}")
    I(f"v_mov_b32 v{VT1}, s43")
    I("s_waitcnt lgkmcnt(0)")
    for q in range(8):
        I(f"v_mul_f32 v{B+4*q}, v{B+4*q}, v{ACC+4*q}")
    for d in range(1, 4):
        for q in range(8):
            I(f"v_fmac_f32 v{B+4*q}, v{B+4*q+d}, v{ACC+4*q+d}")
    for k in range(4):
        I(f"v_cvt_pk_bf16_f32 v{A+k}, v{B+8*k}, v{B+8*k+4}")
    I(f"ds_write_b128 v{VT0}, v[{A}:{A+3}]")
    if not c.nowait: I("s_waitcnt lgkmcnt(0)")
    I("s_mov_b64 exec, 1")
    I(f"ds_add_u32 v{VT1}, v{VONE} offset:{DONE}")
    I("s_mov_b64 exec, -1")
    if c.stamps:
        I("s_memrealtime s[90:91]")
        I("s_waitcnt lgkmcnt(0)")
        I("s_mov_b32 m0, s92")
        I(f"v_writelane_b32 v{STV}, s90, m0")
        I("s_add_u32 s92, s92, 1")
        I("s_min_u32 s92, s92, 23")
    I(f"s_cmp_lg_u32 s{sNV}, 0")
    I("s_cbranch_scc1 L2_A1")

def gather_loop_s(e, c, L):
    I = e.I
    RAW, T, NEXT, DONE, GDONE, OSC, PL1, BREADY, INFO = (L[k] for k in "RAW T NEXT DONE GDONE OSC PL1 BREADY INFO".split())
    VLANE, VINFO, VNEXT, VLOFF, VMASK, VOW, VOR, VSCRW, VTRA, VWR, VL16, VT0, VT1, VONE = (L[k] for k in
        "VLANE VINFO VNEXT VLOFF VMASK VOW VOR VSCRW VTRA VWR VL16 VT0 VT1 VONE".split())
    VTRB, VIDX = L["VJ"], L["VSEL"]
    ACC, LD, B, A, AD = 0, 32, 64, 96, 100
    sA, sR, sH, sN, sNV = 32, 33, 34, 35, 37
    sCN, sCH, sCR, sL = 38, 39, 41, 36
    uid = [0]
    def lab(p):
        uid[0] += 1
        return f"L3_{p}{uid[0]}"
    def fetch_issue():
        I("s_mov_b64 exec, 1")
        I(f"ds_add_rtn_u32 v{VNEXT}, v{VL16}, v{VONE} offset:{NEXT}")
        I("s_mov_b64 exec, -1")
    def setup_item(none_label):
        I(f"v_readfirstlane_b32 s42, v{VNEXT}")
        e.nop(1)
        I(f"s_cmp_ge_u32 s42, {2*NODES}")
        I(f"s_cbranch_scc1 {none_label}")
        I(f"s_cmp_ge_u32 s42, {NODES}")
        I(f"s_cselect_b32 s{sH}, 256, 0")
        I(f"s_cselect_b32 s43, {NODES}, 0")
        I(f"s_cmp_ge_u32 s42, {NODES+16}")
        I(f"s_cselect_b32 s43, {NODES-32}, s43")
        I(f"s_cmp_ge_u32 s42, {NODES+18}")
        I(f"s_cselect_b32 s43, {NODES+2}, s43")
        I(f"s_sub_u32 s{sN}, s42, s43")
        t = lab("bw")
        I(f"s_cmp_lt_u32 s{sN}, s48")
        I(f"s_cbranch_scc1 {t}")
        stamp(e, c, 29)
        I(f"v_mov_b32 v{VT0}, 0")
        spin(e, t, VT1, VT0, BREADY, 4, 45, 44, sleep=1)
        I(f"v_lshrrev_b32 v{VT0}, 2, v{VL16}")
        I(f"ds_read_b32 v{VINFO}, v{VT0} offset:{INFO}")
        I("s_movk_i32 s48, 64")
        I("s_waitcnt lgkmcnt(0)")
        stamp(e, c, 30)
        e.label(t)
        I(f"v_readlane_b32 s42, v{VINFO}, s{sN}")
        e.nop(1)
        I(f"s_lshr_b32 s{sR}, s42, 16")
        I("s_and_b32 s42, s42, 0xffff")
        I(f"s_lshl_b32 s{sA}, s42, 4")
    def off_read(hf):
        I(f"ds_read_b128 v[{AD}:{AD+3}], v{VOR} offset:{OSC+128*hf}")
        I(f"ds_read_b128 v[{AD+4}:{AD+7}], v{VOR} offset:{OSC+128*hf+16}")
    def off_add():
        for i in range(8):
            I(f"v_add_u32 v{AD+i}, v{AD+i}, v{VLOFF}")
    def prep_block():
        r = B
        I(f"v_add_u32 v{VT0}, s{sA}, v{VL16}")
        I(f"ds_read_b128 v[{r}:{r+3}], v{VT0} offset:{RAW}")
        l = lab("nf")
        I(f"s_cmp_gt_u32 s{sR}, 64")
        I(f"s_cbranch_scc1 {l}")
        fetch_issue()
        e.label(l)
        I(f"v_cmp_gt_u32 vcc, s{sR}, v{VLANE}")
        I("s_waitcnt lgkmcnt(0)")
        I(f"v_lshrrev_b32 v{r+11}, 16, v{r+3}")
        I(f"v_lshlrev_b32 v{r+11}, 9, v{r+11}")
        I(f"v_cndmask_b32 v{r+11}, 2.0, v{r+11}, vcc")
        I(f"ds_write_b32 v{VOW}, v{r+11} offset:{OSC}")
        off_read(0)
        I(f"v_cndmask_b32 v{r}, 0, v{r}, vcc")
        I(f"v_cndmask_b32 v{r+1}, 0, v{r+1}, vcc")
        I(f"v_lshlrev_b32 v{r+8}, 16, v{r+2}")
        I(f"v_and_b32 v{r+9}, v{VMASK}, v{r+2}")
        I(f"v_lshlrev_b32 v{r+10}, 16, v{r+3}")
        I(f"v_lshlrev_b32 v{r+4}, 16, v{r}")
        I(f"v_and_b32 v{r+5}, v{VMASK}, v{r}")
        I(f"v_lshlrev_b32 v{r+6}, 16, v{r+1}")
        I(f"v_and_b32 v{r+7}, v{VMASK}, v{r+1}")
        for j in range(3):
            for d in range(4):
                I(f"v_mul_f32 v{r+12+4*j+d}, v{r+4+d}, v{r+8+j}")
        I(f"v_cvt_pk_bf16_f32 v{r+2}, v{r+12}, v{r+13}")
        I(f"v_cvt_pk_bf16_f32 v{r+3}, v{r+14}, v{r+15}")
        for k in range(4):
            I(f"v_cvt_pk_bf16_f32 v{r+24+k}, v{r+16+2*k}, v{r+17+2*k}")
        I(f"ds_write_b128 v{VSCRW}, v[{r}:{r+3}]")
        I(f"ds_write_b128 v{VSCRW}, v[{r+24}:{r+27}] offset:{PL1}")
        I("s_waitcnt lgkmcnt(2)")
        off_add()
    def ld(i):
        if c.x_noload: return
        I(f"buffer_load_dwordx4 v[{LD+4*i}:{LD+4*i+3}], v{AD+i}, s[4:7], s{sH} offen")
    def moves(jj, k16=False):
        for p in range(4):
            d = B + (4 if k16 else 8) * p + 2 * jj
            a, b = LD + 8*jj + (p & 2), LD + 8*jj + 4 + (p & 2)
            I(f"v_pk_mov_b32 v[{d}:{d+1}], v[{a}:{a+1}], v[{b}:{b+1}] op_sel:[{p&1},{p&1}]")
    def loads_partial(done):
        for i in range(7):
            I(f"s_cmp_le_u32 s{sL}, {4*i}")
            I(f"s_cbranch_scc1 {done}")
            ld(i)
    def moves_loads():
        part, done = lab("pp"), lab("pd")
        I("s_waitcnt vmcnt(0)")
        I(f"s_cmp_le_u32 s{sL}, 28")
        I(f"s_cbranch_scc1 {part}")
        for jj in range(4):
            moves(jj)
            ld(2*jj); ld(2*jj+1)
        I(f"s_branch {done}")
        e.label(part)
        for jj in range(4): moves(jj)
        loads_partial(done)
        e.label(done)
    def macs(k16=False):
        for q in range(8):
            d = f"v[{ACC+4*q}:{ACC+4*q+3}]"
            p = q >> 1
            if k16: I(f"v_smfmac_f32_16x16x32_bf16 {d}, v[{A}:{A+1}], v[{B+4*p}:{B+4*p+3}], v{VIDX} cbsz:0 abid:{2*(q&1)}")
            else: I(f"v_smfmac_f32_16x16x64_bf16 {d}, v[{A}:{A+3}], v[{B+8*p}:{B+8*p+7}], v{VIDX} cbsz:0 abid:{q&1}")
    def tr32(hf):
        I(f"ds_read_b64_tr_b16 v[{A}:{A+1}], v{VTRB} offset:{512*hf}")
        I(f"ds_read_b64_tr_b16 v[{A+2}:{A+3}], v{VTRB} offset:{512*hf+16}")
    def tr16(hf):
        I(f"ds_read_b64_tr_b16 v[{A}:{A+1}], v{VTRA} offset:{512*hf}")
    def zero_acc():
        if c.zpk:
            for k in range(0, 32, 2): I(f"v_pk_mov_b32 v[{ACC+k}:{ACC+k+1}], 0, 0")
        else:
            for k in range(32): I(f"v_mov_b32 v{ACC+k}, 0")

    if c.stamps: I("s_mov_b32 s92, 16")
    I(f"v_lshrrev_b32 v{VT0}, 4, v{VLANE}")
    I(f"v_lshrrev_b32 v{VT1}, 5, v{VLANE}")
    I(f"v_mul_u32_u24 v{VT1}, 12, v{VT1}")
    I(f"v_add_u32 v{VT0}, v{VT0}, v{VT1}")
    I(f"v_lshl_add_u32 v{VTRB}, v{VT0}, 4, v{VTRA}")
    I(f"v_mov_b32 v{VIDX}, 0xdddd8888")
    setup_item("L2_g_done")
    prep_block()
    for i in range(8): ld(i)
    zero_acc()
    e.label("L3_A")
    I(f"s_mov_b32 s{sCR}, s{sR}")
    I(f"s_cmp_gt_u32 s{sR}, 32")
    I("s_cbranch_scc0 L3_AN")
    tr32(0)
    off_read(1)
    I(f"s_sub_u32 s{sL}, s{sR}, 32")
    I("s_waitcnt lgkmcnt(0)")
    off_add()
    moves_loads()
    macs()
    I(f"s_sub_u32 s{sCR}, s{sR}, 32")
    I(f"s_cmp_gt_u32 s{sR}, 64")
    I("s_cbranch_scc0 L3_BN")
    tr32(1)
    I(f"s_sub_u32 s{sR}, s{sR}, 64")
    I(f"s_add_u32 s{sA}, s{sA}, 1024")
    I(f"s_mov_b32 s{sL}, s{sR}")
    prep_block()
    moves_loads()
    I("s_waitcnt lgkmcnt(0)")
    macs()
    I("s_branch L3_A")
    for hf, nm in ((0, "AN"), (1, "BN")):
        e.label(f"L3_{nm}")
        I(f"s_cmp_le_u32 s{sCR}, 16")
        I(f"s_cbranch_scc1 L3_{nm}16")
        tr32(hf)
        I("s_branch L3_XN")
        e.label(f"L3_{nm}16")
        tr16(hf)
        if hf == 0: I("s_branch L3_XN")
    e.label("L3_XN")
    I(f"s_mov_b32 s{sCN}, s{sN}")
    I(f"s_mov_b32 s{sCH}, s{sH}")
    I(f"s_mov_b32 s{sNV}, 1")
    setup_item("L3_XN_none")
    I(f"s_mov_b32 s{sL}, s{sR}")
    prep_block()
    I("s_branch L3_XN_go")
    e.label("L3_XN_none")
    I(f"s_mov_b32 s{sNV}, 0")
    I(f"s_mov_b32 s{sL}, 0")
    e.label("L3_XN_go")
    I(f"s_cmp_le_u32 s{sCR}, 16")
    I("s_cbranch_scc1 L3_XN_k16")
    moves_loads()
    I("s_waitcnt lgkmcnt(0)")
    macs()
    I("s_branch L3_XN_epi")
    e.label("L3_XN_k16")
    I("s_waitcnt vmcnt(0)")
    moves(0, True); moves(1, True)
    I(f"s_cmp_le_u32 s{sL}, 28")
    I("s_cbranch_scc1 L3_XN_k16p")
    for i in range(8): ld(i)
    I("s_branch L3_XN_k16d")
    e.label("L3_XN_k16p")
    loads_partial("L3_XN_k16d")
    e.label("L3_XN_k16d")
    I("s_waitcnt lgkmcnt(0)")
    macs(True)
    e.label("L3_XN_epi")
    I(f"s_lshl_b32 s42, s{sCH}, 5")
    I(f"v_add_u32 v{VT0}, s42, v{VWR}")
    for q in range(8):
        I(f"ds_read_b128 v[{B+4*q}:{B+4*q+3}], v{VT0} offset:{q*1024}")
    I(f"s_lshr_b32 s43, s{sCN}, 4")
    I(f"s_lshl_b32 s43, s43, 2")
    I(f"s_cmp_eq_u32 s{sCH}, 0")
    I("s_cbranch_scc1 L3_nowar")
    I(f"v_mov_b32 v{VT1}, s43")
    spin(e, "war", VT0, VT1, GDONE, 4, 45, 44)
    I("s_add_u32 s43, s43, 16")
    e.label("L3_nowar")
    I(f"s_and_b32 s44, s{sCN}, 15")
    I("s_lshl_b32 s44, s44, 4")
    I(f"s_lshl_b32 s45, s{sCN}, 10")
    I(f"s_add_u32 s45, s45, {T}")
    I(f"v_xor_b32 v{VT0}, s44, v{VL16}")
    I(f"v_add_u32 v{VT0}, s45, v{VT0}")
    I(f"v_mov_b32 v{VT1}, s43")
    I("s_waitcnt lgkmcnt(0)")
    for q in range(8):
        I(f"v_mul_f32 v{B+4*q}, v{B+4*q}, v{ACC+4*q}")
    for d in range(1, 4):
        for q in range(8):
            I(f"v_fmac_f32 v{B+4*q}, v{B+4*q+d}, v{ACC+4*q+d}")
    for k in range(4):
        I(f"v_cvt_pk_bf16_f32 v{A+k}, v{B+8*k}, v{B+8*k+4}")
    I(f"ds_write_b128 v{VT0}, v[{A}:{A+3}]")
    I("s_mov_b64 exec, 1")
    I(f"ds_add_u32 v{VT1}, v{VONE} offset:{DONE}")
    I("s_mov_b64 exec, -1")
    zero_acc()
    if c.stamps:
        I("s_memrealtime s[90:91]")
        I("s_waitcnt lgkmcnt(0)")
        I("s_mov_b32 m0, s92")
        I(f"v_writelane_b32 v{STV}, s90, m0")
        I("s_add_u32 s92, s92, 1")
        I("s_min_u32 s92, s92, 23")
    I(f"s_cmp_lg_u32 s{sNV}, 0")
    I("s_cbranch_scc1 L3_A")

HEADER = """; equiformer tensor-product message passing, one persistent launch (one workgroup per CU):
"""

def gen_probe(e, c):
    kA, a0, a1, sA, oA, kB, b0, b1, sB, oB = c.probe.split(",")
    kernel_header(e, "eqprobe_kernel")
    I = e.I
    I("s_cmp_ge_u32 s2, 1")
    I("s_cbranch_scc1 LP_end")
    I("s_memrealtime s[20:21]")
    I("s_load_dwordx2 s[4:5], s[0:1], 88")
    I("s_waitcnt lgkmcnt(0)")
    srd(e, 8, 4, 32 << 20)
    I(f"v_min_u32 v1, {c.nwg-1}, v0")
    I("v_lshlrev_b32 v1, 11, v1")
    I("v_mov_b32 v10, 0"); I("v_mov_b32 v11, -1"); I("v_mov_b32 v12, 0")
    I("ds_write_b32 v10, v11 offset:0"); I("ds_write_b32 v10, v12 offset:4"); I("ds_write_b32 v10, v11 offset:8"); I("ds_write_b32 v10, v12 offset:12")
    I("s_waitcnt lgkmcnt(0)"); I("s_barrier")
    regs = []
    for (k, w0, w1, sl, off) in ((kA, a0, a1, sA, 0), (kB, b0, b1, sB, 8)):
        if k == "now":
            I(f"v_mov_b32 v{16+len(regs)}, s20"); regs.append(off); continue
        I(f"s_mov_b32 s12, {STAMPOFF}")
        for w in range(int(w0), int(w1)):
            I(f"buffer_load_dword v{16+len(regs)}, v1, s[8:11], s12 offen offset:{w*128 + int(sl)*4}")
            regs.append(off)
    I("s_waitcnt vmcnt(0)")
    for off, op in ((0, oA), (8, oB)):
        idx = [n for n, o in enumerate(regs) if o == off]
        for n in idx[1:]:
            I(f"v_{op}_u32 v{16+idx[0]}, v{16+idx[0]}, v{16+n}")
        I(f"ds_{op}_u32 v10, v{16+idx[0]} offset:{off + (0 if op == 'min' else 4)}")
    I("s_waitcnt lgkmcnt(0)"); I("s_barrier")
    I(f"ds_read_b32 v3, v10 offset:{0 if oA == 'min' else 4}")
    I(f"ds_read_b32 v4, v10 offset:{8 if oB == 'min' else 12}")
    I("s_waitcnt lgkmcnt(0)")
    I("v_sub_u32 v3, v3, v4")
    I("v_min_u32 v3, 0x2000, v3")
    I("v_readfirstlane_b32 s14, v3")
    I("s_memrealtime s[16:17]")
    I("s_mul_i32 s14, s14, 10")
    I("s_waitcnt lgkmcnt(0)")
    e.label("LP_spin")
    I("s_memrealtime s[18:19]")
    I("s_waitcnt lgkmcnt(0)")
    I("s_sub_u32 s18, s18, s16")
    I("s_cmp_lt_u32 s18, s14")
    I("s_cbranch_scc1 LP_spin")
    e.label("LP_end")
    I("s_endpgm")
    return "eqprobe_kernel", 64, 32

def generate(c):
    e = Emitter()
    e.raw('.amdgcn_target "amdgcn-amd-amdhsa--gfx950"')
    e.raw(".text")
    k = gen_main(e, c)
    head = HEADER + f"; @launch grid=({c.nwg},1,1) block=(1024,1,1) lds={c.lds}\n"
    tail = '.section .rodata,"a"\n.p2align 6\n' + kd(*k)
    if c.probe:
        kp = gen_probe(e, c)
        head = HEADER + f"; @launch kernel={KNAME} grid=({c.nwg},1,1) block=(1024,1,1) lds={c.lds}\n; @launch kernel=eqprobe_kernel grid=(1,1,1) block=(256,1,1) lds=64\n"
        tail += ".p2align 6\n" + kd(*kp)
    return head + e.text() + tail

if __name__ == "__main__":
    c = Cfg()
    out = sys.argv[1]
    for kv in sys.argv[2:]:
        k, v = kv.split("=", 1)
        old = getattr(c, k)
        setattr(c, k, type(old)(int(v)) if isinstance(old, (bool, int)) else v.replace("+", " "))
    open(out, "w").write(generate(c))
```

```python
import sys
from emit import Emitter

N, E = 12500, 800000
NODES, HN = 50, 25
NCH = 250
CSTRIDE = 70784
PAYOFF, TABOFF, KEYOFF = 0, 51200, 67584
KSTAGE = 51200
WSBYTES = NCH * CSTRIDE
KIN = 20
KNAME = "gather_scatter__tensor_product_equiv_equiformer__graph_kernel"
STAMPOFF = 24 << 20

class Cfg:
    nwg = 250
    st_flags = "sc1"
    ld_flags = "nt"
    rec_flags = "sc1"
    out_flags = "sc1"
    pfx_lines = 64
    pfx0_lines = 96
    stamps = False
    cap = 1888
    x_noperm = 0
    x_noexp = 0
    x_nomfma = 0
    x_noload = 0
    x_samehalf = 0
    x_nobload = 0
    codepf = 26
    tlbpf = 0
    codeearly = 0
    sleep = 12
    psleep = 2
    probe = ""
    addtid = 0
    split = 0
    static1 = 1
    ppipe = 0
    pgap = 8
    wrlds = 0
    wideout = 1
    out_early = None
    paypos = 2
    pfwait = 0
    smf = 0
    zpk = 1
    splitw = 0
    cpfwg = 32
    wlate = 0
    coal = 1
    pf1_tile = -1
    pf1_lines = 256
    prio_g = 0
    prio_m = 0
    ld2_flags = None
    nowait = 1
    fastlast = 1
    pfx2_lines = 0
    pfx2_pos = 0
    oobtail = 1
    bearly = 1
    tidw3 = "0x00800000"

def srd(e, d, b, nbytes, w1=None, w3="0x20000"):
    e.I(f"s_mov_b32 s{d}, s{b}")
    if w1: e.I(f"s_or_b32 s{d+1}, s{b+1}, {w1}")
    else: e.I(f"s_mov_b32 s{d+1}, s{b+1}")
    e.I(f"s_mov_b32 s{d+2}, {nbytes}")
    e.I(f"s_mov_b32 s{d+3}, {w3}")

def scan64(e, v):
    for sh in (1, 2, 4, 8):
        e.I(f"v_add_u32_dpp v{v}, v{v}, v{v} row_shr:{sh} row_mask:0xf bank_mask:0xf")
    e.I(f"v_add_u32_dpp v{v}, v{v}, v{v} row_bcast:15 row_mask:0xa bank_mask:0xf")
    e.I(f"v_add_u32_dpp v{v}, v{v}, v{v} row_bcast:31 row_mask:0xc bank_mask:0xf")

def prefetch_x(e, nlines, vt, vtid, nthreads, slice_s, half, srdx, first=0, lds=False):
    if nlines <= 0: return 0
    e.I(f"s_mul_i32 s46, s{slice_s}, 782")
    if first: e.I(f"s_add_u32 s46, s46, {first}")
    e.I(f"s_mov_b32 s47, {nlines}")
    it = (nlines + nthreads - 1) // nthreads
    for k in range(it):
        e.I(f"v_add_u32 v{vt}, {k*nthreads}, v{vtid}")
        e.I(f"v_cmp_gt_u32 vcc, s47, v{vt}")
        e.I(f"v_add_u32 v{vt}, s46, v{vt}")
        e.I(f"v_and_b32 v{vt+1}, 1, v{vt}")
        e.I(f"v_lshrrev_b32 v{vt}, 1, v{vt}")
        e.I(f"v_lshlrev_b32 v{vt}, 9, v{vt}")
        e.I(f"v_lshl_add_u32 v{vt}, v{vt+1}, 7, v{vt}")
        e.I(f"v_cndmask_b32 v{vt}, 2.0, v{vt}, vcc")
        if lds:
            if half: e.I(f"v_add_u32 v{vt}, 256, v{vt}")
            e.I(f"buffer_load_dword v{vt}, s[{srdx}:{srdx+3}], 0 offen lds")
        else:
            e.I(f"buffer_load_dword v{vt+2}, v{vt}, s[{srdx}:{srdx+3}], 0 offen offset:{half*256}")
    return it

STV, TIDV = 127, 126
def stamp(e, c, slot, ins="s_memrealtime"):
    if not c.stamps: return
    e.I(f"{ins} s[90:91]")
    e.I("s_waitcnt lgkmcnt(0)")
    e.I(f"v_writelane_b32 v{STV}, s90, {slot}")

def stamp_store(e, c, vtmp):
    if not c.stamps: return
    e.I(f"v_lshrrev_b32 v{vtmp}, 6, v{TIDV}")
    e.I(f"s_lshl_b32 s90, s2, 4")
    e.I(f"v_add_u32 v{vtmp}, s90, v{vtmp}")
    e.I(f"v_lshlrev_b32 v{vtmp}, 7, v{vtmp}")
    e.I(f"v_and_b32 v{vtmp+1}, 63, v{TIDV}")
    e.I(f"v_lshl_add_u32 v{vtmp}, v{vtmp+1}, 2, v{vtmp}")
    e.I(f"v_cmp_gt_u32 vcc, 32, v{vtmp+1}")
    e.I(f"v_cndmask_b32 v{vtmp}, 2.0, v{vtmp}, vcc")
    e.I(f"s_mov_b32 s90, {STAMPOFF}")
    e.I(f"buffer_store_dword v{STV}, v{vtmp}, s[8:11], s90 offen")

def kernel_header(e, name):
    e.raw(f".globl {name}")
    e.raw(".p2align 8")
    e.raw(f".type {name},@function")
    e.raw(f"{name}:")
    e.hist = []

def kd(name, nv, ns):
    return f""".amdhsa_kernel {name}
  .amdhsa_next_free_vgpr {nv}
  .amdhsa_next_free_sgpr {ns}
  .amdhsa_accum_offset {(nv+3)//4*4}
  .amdhsa_group_segment_fixed_size 0
  .amdhsa_kernarg_size 96
  .amdhsa_user_sgpr_count 2
  .amdhsa_user_sgpr_kernarg_segment_ptr 1
  .amdhsa_system_sgpr_workgroup_id_x 1
  .amdhsa_float_denorm_mode_32 3
.end_amdhsa_kernel
"""

def path_of(jp, blk):
    if blk == 0: return (0, 0, 1) if jp == 0 else (2, jp, 1)
    k = blk - 1
    if jp == 0: return (3, 1 + k, 1)
    j = jp - 1
    if j == k: return (1, 0, 1)
    i = 3 - j - k
    return (4, 1 + i, 1 if k == (j + 1) % 3 else -1)

class Lay: pass

def spin(e, tag, vdst, vaddr, off, need, scnt, sval, sleep=None, bound="0x400000"):
    I = e.I
    I(f"s_mov_b32 s{scnt}, 0")
    e.label(f"L_sp{tag}")
    I(f"ds_read_b32 v{vdst}, v{vaddr} offset:{off}")
    I("s_waitcnt lgkmcnt(0)")
    I(f"v_readfirstlane_b32 s{sval}, v{vdst}")
    I(f"s_add_u32 s{scnt}, s{scnt}, 1")
    I(f"s_cmp_ge_u32 s{sval}, {need}")
    I(f"s_cbranch_scc1 L_sp{tag}_ok")
    if sleep: I(f"s_sleep {sleep}")
    I(f"s_cmp_lt_u32 s{scnt}, {bound}")
    I(f"s_cbranch_scc1 L_sp{tag}")
    e.label(f"L_sp{tag}_ok")

def tag_bad(e, dst, r, tmp, odd):
    I = e.I
    I(f"v_xor_b32 v{tmp}, s87, v{r}")
    I(f"v_xor_b32 v{dst}, s86, v{r+1}")
    I(f"v_lshrrev_b32 v{tmp}, 24, v{tmp}")
    I(f"v_or_b32 v{dst}, v{dst}, v{tmp}")
    I(f"v_xor_b32 v{tmp}, s3, v{r+3}")
    I(f"v_lshrrev_b32 v{tmp}, 12, v{tmp}")
    I(f"v_cndmask_b32 v{dst}, v{dst}, v{tmp}, {odd}")

def gen_main(e, c):
    L = Lay()
    CAP = c.cap
    NWG = c.nwg
    BOFF = CAP + 64
    HIST, HIST2, CUR2, CNT = 0, 256, 512, 768
    NEXT, DONE, GDONE, BSYNC, BREADY, TOTB = CNT, CNT + 16, CNT + 64, CNT + 96, CNT + 100, CNT + 104
    OUTW, OUTR = CNT + 112, CNT + 128
    HISTB, HIST2B, CUR2B, INFO, NONCE = 1024, 1280, 1536, 1792, 2048
    RAW = 2176
    T = (RAW + 2 * BOFF * 16 + 255) // 256 * 256
    WRAD = T + NODES * 1024
    SCR = WRAD + 16384
    H1 = WRAD
    TI = SCR
    CEB = RAW + BOFF * 16
    SSTR, PL1, OSC = 2368, (1040 if c.smf else 1056), 2080
    lds = max(SCR + 12 * SSTR, T + 64 * 1024)
    assert lds <= 163840 and 2 * BOFF >= 3200 + 64, lds
    c.lds = lds
    kernel_header(e, KNAME)
    I = e.I
    wsbytes = (32 << 20) if c.stamps else WSBYTES
    sf, rf, lf = c.st_flags, c.rec_flags, c.ld_flags
    ODD = "s[26:27]"
    I(f"s_cmp_ge_u32 s2, {NWG}")
    I("s_cbranch_scc1 L_end")
    if c.stamps:
        I(f"v_mov_b32 v{STV}, 0")
        I(f"v_mov_b32 v{TIDV}, v0")
    stamp(e, c, 0)
    stamp(e, c, 26, "s_memtime")
    I("s_load_dwordx8 s[32:39], s[0:1], 0")
    I("s_load_dwordx8 s[40:47], s[0:1], 32")
    if NWG > NCH:
        I(f"s_cmp_lt_u32 s2, {NCH}")
        I("s_cselect_b32 s51, 800, 0")
    else:
        I("s_movk_i32 s51, 800")
    if c.coal:
        I("s_mul_i32 s48, s2, 1600")
        I("v_add_u32 v3, s48, v0")
        I("v_cmp_gt_u32 vcc, s51, v0")
        I("v_lshlrev_b32 v28, 3, v3")
        I("v_lshlrev_b32 v30, 4, v3")
        I("v_mul_u32_u24 v3, 12, v3")
        I("v_add_u32 v29, 6400, v28")
        if c.paypos:
            I("v_add_u32 v31, 12800, v30")
            I("v_add_u32 v27, 9600, v3")
        I("s_and_saveexec_b64 s[26:27], vcc")
        I("s_cbranch_execz L1_noload")
        I("s_waitcnt lgkmcnt(0)")
        I(f"global_load_dwordx2 v[4:5], v28, s[40:41] {lf}")
        I(f"global_load_dwordx2 v[6:7], v29, s[40:41] {lf}")
        if not c.paypos:
            I("v_add_u32 v31, 12800, v30")
            I("v_add_u32 v27, 9600, v3")
        lds_ = [f"global_load_dwordx2 v[8:9], v28, s[38:39] {lf}", f"global_load_dwordx2 v[10:11], v29, s[38:39] {lf}",
                f"global_load_dwordx4 v[12:15], v30, s[36:37] {lf}", f"global_load_dwordx4 v[16:19], v31, s[36:37] {lf}",
                f"global_load_dwordx3 v[20:22], v3, s[34:35] {lf}", f"global_load_dwordx3 v[24:26], v27, s[34:35] {lf}"]
        def pay_loads():
            for k in ((0, 2, 4, 1, 3, 5) if c.splitw == 2 else range(6)): I(lds_[k])
        if c.paypos == 0: pay_loads()
    else:
        I("s_mul_i32 s48, s2, 800")
        I("v_add_u32 v3, s48, v0")
        I("v_cmp_gt_u32 vcc, s51, v0")
        I("v_lshlrev_b32 v26, 4, v3")
        I("v_lshlrev_b32 v27, 5, v3")
        I("v_mul_u32_u24 v3, 24, v3")
        I("s_and_saveexec_b64 s[26:27], vcc")
        I("s_cbranch_execz L1_noload")
        I("s_waitcnt lgkmcnt(0)")
        l2 = lf if c.ld2_flags is None else c.ld2_flags
        I(f"global_load_dwordx4 v[4:7], v26, s[40:41] {l2}")
        I(f"global_load_dwordx4 v[8:11], v26, s[38:39] {l2}")
        I(f"global_load_dwordx4 v[12:15], v27, s[36:37] {lf}")
        I(f"global_load_dwordx4 v[16:19], v27, s[36:37] offset:16 {lf}")
        I(f"global_load_dwordx4 v[20:23], v3, s[34:35] {lf}")
        I(f"global_load_dwordx2 v[24:25], v3, s[34:35] offset:16 {lf}")
    e.label("L1_noload")
    I("s_mov_b64 exec, -1")
    if c.paypos == 3:
        I(f"v_lshlrev_b32 v40, 1, v0")
        I(f"v_and_b32 v40, -4, v40")
        I(f"v_add_u32 v40, {H1}, v40")
        I("v_mov_b32 v41, 0")
        I("ds_write_b32 v40, v41")
        I("s_waitcnt lgkmcnt(0)")
        I("s_barrier")
        I("s_and_saveexec_b64 s[26:27], vcc")
        I("s_cbranch_execz L1_noload2")
        pay_loads()
        e.label("L1_noload2")
        I("s_mov_b64 exec, -1")
    if c.codepf and c.codeearly:
        I("s_getpc_b64 s[52:53]")
        I(f"s_mov_b32 s54, {c.codepf*1024}")
        I("s_mov_b32 s55, 0x20000")
        I("v_subrev_u32 v72, 768, v0")
        I("v_lshlrev_b32 v72, 7, v72")
        I("s_cmp_lg_u64 vcc, -1")
        I("s_cbranch_scc0 L1_nocpf")
        I("buffer_load_dword v73, v72, s[52:55], 0 offen")
        e.label("L1_nocpf")
    I("s_load_dwordx4 s[80:83], s[0:1], 72")
    I("s_load_dwordx2 s[84:85], s[0:1], 88")
    I("v_lshlrev_b32 v1, 4, v0")
    I("v_lshlrev_b32 v2, 5, v0")
    I("v_readfirstlane_b32 s21, v0")
    I("s_lshr_b32 s21, s21, 6")
    I("s_waitcnt lgkmcnt(0)")
    if c.addtid:
        srd(e, 4, 32, N * 512, w1=f"{16 << 16}", w3=c.tidw3)
    else:
        srd(e, 4, 32, N * 512)
    srd(e, 8, 84, wsbytes)
    srd(e, 12, 80, N * 512)
    srd(e, 16, 42, 2560)
    srd(e, 68, 44, 16384)
    srd(e, 72, 46, 24576)
    srd(e, 76, 82, 256)
    I("s_and_b32 s20, s2, 7")
    I("s_lshr_b32 s31, s2, 3")
    if NWG == 250:
        I("s_min_u32 s22, s20, 2")
        I("s_mul_i32 s20, s20, 31")
        I("s_add_u32 s20, s20, s22")
    else:
        I("s_lshl_b32 s20, s20, 5")
    I("s_add_u32 s20, s20, s31")
    I("s_mov_b32 s22, 0")
    I(f"s_movk_i32 s23, {NCH}")
    I("s_mov_b32 s24, 1")
    I("s_mov_b32 s26, 0xaaaaaaaa")
    I("s_mov_b32 s27, 0xaaaaaaaa")
    I("s_mov_b32 s28, 0x05040100")
    I("s_mov_b32 s29, 0x07060302")
    I("s_mov_b32 s30, 0xffff0000")
    I(f"s_mul_i32 s51, s2, {CSTRIDE}")
    I("s_cmp_ge_u32 s21, 13")
    I("s_cbranch_scc1 L1_aux")
    if c.paypos == 1:
        I("s_mov_b64 exec, vcc")
        pay_loads()
        I("s_mov_b64 exec, -1")
    I(f"s_mov_b32 s46, {H1}")
    if c.paypos != 3:
        I("v_lshl_add_u32 v40, v0, 2, s46")
        I("v_mov_b32 v41, 0")
    I("v_mov_b32 v42, 1")
    I(f"s_movk_i32 s49, {RAW}")
    I("s_mov_b32 s50, 0x05040302")
    I(f"s_mov_b32 s45, {(TI + 8 - 8*H1) & 0xffffffff}")
    if NWG == 250:
        I("s_mov_b32 s48, -25")
        I("s_movk_i32 s47, 249")
    else:
        I("s_movk_i32 s47, 6249")
        I("s_movk_i32 s48, -6250")
        I("s_mov_b32 s44, 1600210")
        I("v_mov_b32 v43, 65532")
    if c.paypos != 3:
        I("s_cmp_ge_u32 s21, 8")
        I("s_cbranch_scc1 L1_nz")
        I("ds_write_b32 v40, v41")
        I("s_waitcnt lgkmcnt(0)")
        e.label("L1_nz")
        I("s_barrier")
    I("s_and_b64 exec, exec, vcc")
    if c.paypos == 2: pay_loads()
    I(f"s_waitcnt vmcnt({6 if c.coal else 5})")
    stamp(e, c, 1)
    R4 = range(4)
    if NWG == 250:
        for i in R4: I(f"v_mul_u32_u24 v{44+i}, 0x147b, v{4+i}")
        for i in R4: I(f"v_lshrrev_b32 v{44+i}, 17, v{44+i}")
        for i in R4: I(f"v_cmp_lt_u32 s[{32+2*i}:{33+2*i}], s47, v{44+i}")
        for i in R4: I(f"v_cndmask_b32 v{36+i}, 0, 1, s[{32+2*i}:{33+2*i}]")
        for i in R4:
            I(f"v_sub_u32 v{48+i}, v{44+i}, v{36+i}")
            I(f"v_mad_u32_u24 v{44+i}, v{36+i}, 6, v{44+i}")
        for i in R4:
            I(f"v_mad_i32_i24 v{4+i}, v{48+i}, s48, v{4+i}")
            I(f"v_lshl_add_u32 v{44+i}, v{44+i}, 2, s46")
    else:
        for i in R4: I(f"v_cmp_lt_u32 s[{32+2*i}:{33+2*i}], s47, v{4+i}")
        for i in R4: I(f"v_cndmask_b32 v{36+i}, 0, 1, s[{32+2*i}:{33+2*i}]")
        for i in R4: I(f"v_mad_i32_i24 v{4+i}, v{36+i}, s48, v{4+i}")
        for i in R4: I(f"v_mul_u32_u24 v{44+i}, 0xa7c, v{4+i}")
        for i in R4: I(f"v_lshrrev_b32 v{44+i}, 16, v{44+i}")
        for i in R4: I(f"v_mad_u32_u24 v{48+i}, v{44+i}, s44, v43")
        for i in R4:
            I(f"v_lshrrev_b32 v{48+i}, 16, v{48+i}")
            I(f"v_mad_u32_u24 v{4+i}, v{36+i}, 25, v{4+i}")
        for i in R4:
            I(f"v_sub_u32 v{4+i}, v{4+i}, v{48+i}")
            I(f"v_lshl_add_u32 v{44+i}, v{36+i}, 8, v{44+i}")
        for i in R4: I(f"v_lshl_add_u32 v{44+i}, v{44+i}, 2, s46")
    for i in R4: I(f"ds_add_rtn_u32 v{36+i}, v{44+i}, v42")
    for i in R4: I(f"v_lshl_add_u32 v{48+i}, v{44+i}, 3, s45")
    for i in R4: I(f"v_lshlrev_b32 v{4+i}, 2, v{4+i}")
    I("s_waitcnt lgkmcnt(0)")
    I("s_barrier")
    for i in R4: I(f"v_min_u32 v{28+i}, {KIN}, v{36+i}")
    for i in R4: I(f"v_add_u32 v{48+i}, v{48+i}, v{28+i}")
    I("s_cmp_eq_u32 s21, 0")
    I("s_cbranch_scc1 L1_scan")
    for i in R4: I(f"ds_write_b8 v{48+i}, v{4+i}")
    I("s_branch L1_noscan")
    e.label("L1_scan")
    I("v_add_u32 v60, s46, v2")
    I("ds_read_b128 v[52:55], v60")
    I("ds_read_b128 v[56:59], v60 offset:16")
    I("s_waitcnt lgkmcnt(0)")
    I("v_mov_b32 v64, 0")
    I("v_mov_b32 v65, v52")
    for k in range(2, 8):
        I(f"v_add_u32 v{64+k}, v{63+k}, v{51+k}")
    I("v_add_u32 v61, v71, v59")
    I("v_max3_u32 v63, v52, v53, v54")
    I("v_max3_u32 v63, v63, v55, v56")
    I("v_max3_u32 v63, v63, v57, v58")
    I("v_max_u32 v63, v63, v59")
    I(f"v_cmp_lt_u32 s[42:43], {KIN}, v63")
    I("v_mov_b32 v62, v61")
    scan64(e, 62)
    I("v_sub_u32 v62, v62, v61")
    for k in range(8):
        I(f"v_add_u32 v{64+k}, v{64+k}, v62")
    I("ds_write_b128 v60, v[64:67] offset:2048")
    I("ds_write_b128 v60, v[68:71] offset:2064")
    I("s_cmp_lg_u64 s[42:43], 0")
    I("s_cselect_b32 s42, 1, 0")
    I("v_mov_b32 v63, s42")
    I(f"ds_write_b32 v41, v63 offset:{NONCE+8}")
    for i in R4: I(f"ds_write_b8 v{48+i}, v{4+i}")
    I("s_waitcnt lgkmcnt(4)")
    e.label("L1_noscan")
    I("s_barrier")
    stamp(e, c, 8)
    for i in R4: I(f"ds_read_b32 v{44+i}, v{44+i} offset:2048")
    I(f"ds_read_b32 v28, v41 offset:{NONCE+8}")
    I("s_waitcnt lgkmcnt(0)")
    I("v_readfirstlane_b32 s42, v28")
    for i in R4:
        I(f"v_add_u32 v{36+i}, v{36+i}, v{44+i}")
        I(f"v_lshl_add_u32 v{44+i}, v{36+i}, 4, s49")
    I("s_cmp_eq_u32 s42, 0")
    I("s_cbranch_scc1 L1_nokeys")
    for i in R4:
        I(f"ds_write_b8 v{36+i}, v{4+i} offset:{RAW+KSTAGE}")
    e.label("L1_nokeys")
    if not c.splitw:
        r3 = 24 if c.coal else 23
        if c.stamps: I("s_waitcnt vmcnt(0)")
        stamp(e, c, 31)
        I("s_waitcnt vmcnt(1)")
        I("v_mov_b32 v28, v20")
        I("v_perm_b32 v29, v8, v21, s28")
        I("ds_write2_b64 v44, v[12:13], v[28:29] offset0:0 offset1:1")
        I("v_alignbit_b32 v30, v22, v21, 16")
        I("v_perm_b32 v31, v9, v22, s50")
        I("ds_write2_b64 v45, v[14:15], v[30:31] offset0:0 offset1:1")
        I("s_waitcnt vmcnt(0)")
        stamp(e, c, 2)
        I(f"v_mov_b32 v32, v{r3}")
        I(f"v_perm_b32 v33, v10, v{r3+1}, s28")
        I("ds_write2_b64 v46, v[16:17], v[32:33] offset0:0 offset1:1")
        I(f"v_alignbit_b32 v34, v{r3+2}, v{r3+1}, 16")
        I(f"v_perm_b32 v35, v11, v{r3+2}, s50")
        I("ds_write2_b64 v47, v[18:19], v[34:35] offset0:0 offset1:1")
    elif c.splitw == 2:
        I("s_waitcnt vmcnt(3)")
        I("v_mov_b32 v28, v12"); I("v_mov_b32 v29, v13"); I("v_mov_b32 v30, v20")
        I("v_perm_b32 v31, v8, v21, s28")
        I("ds_write_b128 v44, v[28:31]")
        I("v_mov_b32 v12, v14"); I("v_mov_b32 v13, v15")
        I("v_alignbit_b32 v14, v22, v21, 16")
        I("v_perm_b32 v15, v9, v22, s50")
        I("ds_write_b128 v45, v[12:15]")
        I("s_waitcnt vmcnt(0)")
        stamp(e, c, 2)
        I("v_mov_b32 v32, v16"); I("v_mov_b32 v33, v17"); I("v_mov_b32 v34, v24")
        I("v_perm_b32 v35, v10, v25, s28")
        I("ds_write_b128 v46, v[32:35]")
        I("v_mov_b32 v16, v18"); I("v_mov_b32 v17, v19")
        I("v_alignbit_b32 v18, v26, v25, 16")
        I("v_perm_b32 v19, v11, v26, s50")
        I("ds_write_b128 v47, v[16:19]")
    else:
        I("s_waitcnt vmcnt(2)")
        for i in R4:
            I(f"ds_write_b64 v{44+i}, v[{12+2*i}:{13+2*i}]")
        I("s_waitcnt vmcnt(1)")
        I("v_mov_b32 v28, v20")
        I("v_perm_b32 v29, v8, v21, s28")
        I("ds_write_b64 v44, v[28:29] offset:8")
        I("v_alignbit_b32 v30, v22, v21, 16")
        I("v_perm_b32 v31, v9, v22, s50")
        I("ds_write_b64 v45, v[30:31] offset:8")
        I("s_waitcnt vmcnt(0)")
        stamp(e, c, 2)
        r3 = 24 if c.coal else 23
        I(f"v_mov_b32 v32, v{r3}")
        I(f"v_perm_b32 v33, v10, v{r3+1}, s28")
        I("ds_write_b64 v46, v[32:33] offset:8")
        I(f"v_alignbit_b32 v34, v{r3+2}, v{r3+1}, 16")
        I(f"v_perm_b32 v35, v11, v{r3+2}, s50")
        I("ds_write_b64 v47, v[34:35] offset:8")
    I("s_mov_b64 exec, -1")
    I("s_waitcnt lgkmcnt(0)")
    I("s_branch L1_copy")
    e.label("L1_aux")
    I("v_subrev_u32 v64, 832, v0")
    I("v_lshlrev_b32 v65, 4, v64")
    prefetch_x(e, c.pfx0_lines, 60, 64, 192, 31, 0, 4)
    if c.tlbpf:
        I("v_and_b32 v74, 63, v0")
        I(f"s_mov_b32 s42, {WSBYTES // 64 // 128 * 128}")
        I("v_mul_u32_u24 v75, s42, v74")
        I(f"s_mov_b32 s42, {N * 512 // 64 // 128 * 128}")
        I("v_mul_u32_u24 v74, s42, v74")
        I("s_cmp_lg_u32 s21, 14")
        I("s_cbranch_scc1 L1_notlb")
        if c.tlbpf & 1: I("buffer_load_dword v76, v75, s[8:11], 0 offen")
        if c.tlbpf & 2: I("buffer_load_dword v77, v74, s[4:7], 0 offen")
        if c.tlbpf & 4: I("buffer_load_dword v78, v74, s[12:15], 0 offen")
        e.label("L1_notlb")
    if c.codepf and not c.codeearly:
        I(f"s_cmp_ge_u32 s2, {c.cpfwg}")
        I("s_cbranch_scc1 L1_nocpf")
        I("s_getpc_b64 s[40:41]")
        e.label("L_cpf")
        I("s_mov_b32 s42, L_codeend-L_cpf")
        I("s_mov_b32 s43, 0x20000")
        I("v_lshlrev_b32 v72, 7, v64")
        I("buffer_load_dword v73, v72, s[40:43], 0 offen")
        e.label("L1_nocpf")
    I("s_cmp_lg_u32 s21, 15")
    I("s_cbranch_scc1 L1_notag")
    I("s_cmp_lg_u32 s2, 0")
    I("s_cbranch_scc1 L1_notag")
    I("s_memrealtime s[44:45]")
    I("s_waitcnt lgkmcnt(0)")
    I("s_and_b32 s45, s45, 0x7f")
    I("s_or_b32 s45, s45, 0x80")
    I("s_lshl_b32 s45, s45, 24")
    I("v_mov_b32 v68, s44")
    I("v_mov_b32 v69, s45")
    I("s_mov_b64 exec, 1")
    I("buffer_store_dwordx2 v[68:69], off, s[76:79], 0 sc1")
    I("s_mov_b64 exec, -1")
    e.label("L1_notag")
    I("s_cmp_lg_u32 s21, 13")
    I("s_cbranch_scc1 L1_nozero")
    for k in range(4): I(f"v_mov_b32 v{4+k}, 0")
    I("ds_write_b128 v65, v[4:7]")
    I("ds_write_b128 v65, v[4:7] offset:1024")
    e.label("L1_nozero")
    if c.paypos != 3: I("s_barrier")
    I("s_barrier"); I("s_barrier")
    I("s_cmp_lg_u32 s21, 15")
    I("s_cbranch_scc1 L1_notag2")
    I("s_mov_b32 s44, 0")
    e.label("L1_tagpoll")
    I("buffer_load_dwordx2 v[68:69], off, s[76:79], 0 sc1")
    I("s_add_u32 s44, s44, 1")
    I("s_waitcnt vmcnt(0)")
    I("v_readfirstlane_b32 s45, v69")
    e.nop(1)
    I("s_cmp_lg_u32 s45, 0")
    I("s_cbranch_scc1 L1_tagok")
    I("s_cmp_lt_u32 s44, 0x100000")
    I("s_cbranch_scc1 L1_tagpoll")
    e.label("L1_tagok")
    I("v_mov_b32 v70, 0")
    I("s_mov_b64 exec, 1")
    I(f"ds_write_b64 v70, v[68:69] offset:{NONCE}")
    I("s_mov_b64 exec, -1")
    e.label("L1_notag2")
    def w_loads():
        for k in range(8):
            I(f"s_movk_i32 s46, {k*3072}")
            I(f"buffer_load_dwordx4 v[{28+4*k}:{31+4*k}], v65, s[72:75], s46 offen")
        for k in range(6):
            I(f"s_movk_i32 s46, {k*3072}")
            I(f"buffer_load_dwordx4 v[{72+4*k}:{75+4*k}], v65, s[68:71], s46 offen")
    if not c.wlate: w_loads()
    if c.wrlds: I("buffer_load_dwordx4 v[68:71], v65, s[16:19], 0 offen")
    if c.pfwait: I("s_waitcnt vmcnt(0)")
    prefetch_x(e, c.pfx_lines, 60, 64, 192, 31, 0, 4, c.pfx0_lines)
    I("s_waitcnt lgkmcnt(0)")
    e.flush()
    e.label("L1_copy")
    I("s_barrier")
    stamp(e, c, 3)
    I(f"v_mov_b32 v25, {H1+2048+1024}")
    I("ds_read_b32 v99, v25")
    I(f"ds_read_b128 v[8:11], v1 offset:{RAW}")
    I(f"ds_read_b128 v[12:15], v1 offset:{RAW+16384}")
    I("v_mov_b32 v25, 0")
    I(f"ds_read_b96 v[96:98], v25 offset:{NONCE}")
    I(f"v_add_u32 v25, {TI}, v1")
    I(f"ds_read_b128 v[16:19], v1 offset:{RAW+32768}")
    I(f"ds_read_b128 v[20:23], v1 offset:{RAW+49152}")
    I("ds_read_b128 v[100:103], v25")
    I("v_lshrrev_b32 v25, 1, v0")
    I("v_lshlrev_b32 v25, 2, v25")
    I(f"v_add_u32 v25, {H1}, v25")
    I("ds_read2st64_b32 v[104:105], v25 offset0:0 offset1:8")
    I("ds_read_b32 v106, v25 offset:1024")
    I("v_add_u32 v2, 16384, v1")
    I("v_add_u32 v25, 1024, v0")
    I("s_waitcnt lgkmcnt(8)")
    I("v_add_u32 v99, 7, v99")
    I("v_and_b32 v99, -8, v99")
    I("v_cmp_lt_u32 s[52:53], v0, v99")
    I("v_cmp_lt_u32 s[54:55], v25, v99")
    I("v_readfirstlane_b32 s88, v99")
    I("v_add_u32 v3, 32768, v1")
    I("v_add_u32 v24, 49152, v1")
    I("s_mov_b64 exec, s[52:53]")
    I("s_waitcnt lgkmcnt(7)")
    I(f"buffer_store_dwordx4 v[8:11], v1, s[8:11], s51 offen {sf}")
    I("s_mov_b64 exec, s[54:55]")
    I("s_cbranch_execz L1_nop1")
    I("s_waitcnt lgkmcnt(6)")
    I(f"buffer_store_dwordx4 v[12:15], v2, s[8:11], s51 offen {sf}")
    e.label("L1_nop1")
    I("s_mov_b64 exec, -1")
    I("s_movk_i32 s48, 128")
    I("v_cmp_gt_u32 s[92:93], s48, v0")
    I("s_waitcnt lgkmcnt(0)")
    I("v_readfirstlane_b32 s86, v96")
    I("v_readfirstlane_b32 s87, v97")
    I("v_readfirstlane_b32 s42, v98")
    I("v_lshl_or_b32 v104, v104, 12, v105")
    I("v_or_b32 v97, v97, v104")
    I(f"v_cndmask_b32 v100, v97, v100, {ODD}")
    I(f"v_cndmask_b32 v101, v96, v101, {ODD}")
    I("v_lshl_or_b32 v106, v96, 12, v106")
    I(f"v_cndmask_b32 v103, v103, v106, {ODD}")
    I("s_lshl_b32 s3, s86, 12")
    I(f"s_add_u32 s49, s51, {TABOFF}")
    I("s_cmp_gt_u32 s88, 2048")
    I("s_cselect_b32 s25, 0, 8")
    I("s_cmp_eq_u32 s42, 0")
    I("s_cbranch_scc1 L1_nokeyst")
    I(f"s_add_u32 s42, s51, {KEYOFF-KSTAGE}")
    I("v_subrev_u32 v25, 128, v0")
    I("s_movk_i32 s43, 200")
    I("v_cmp_gt_u32 vcc, s43, v25")
    I("s_and_saveexec_b64 s[44:45], vcc")
    I("s_cbranch_execz L1_nokeyst2")
    I(f"buffer_store_dwordx4 v[20:23], v24, s[8:11], s42 offen {sf}")
    e.label("L1_nokeyst2")
    I("s_mov_b64 exec, -1")
    e.label("L1_nokeyst")
    stamp(e, c, 4)
    def handoff(tag, mid):
        I("s_waitcnt vmcnt(0)")
        stamp(e, c, 6)
        I("s_barrier")
        I("s_cmp_ge_u32 s21, s25")
        I(f"s_cbranch_scc1 L_noearly{tag}")
        I(f"buffer_store_dwordx4 v[100:103], v1, s[8:11], s49 offen {sf}")
        e.label(f"L_noearly{tag}")
        I(f"buffer_store_dwordx4 v[16:19], v3, s[8:11], s51 offen {sf}")
        for k, (m, neg, regs, va) in enumerate((("s[54:55]", 1, "v[12:15]", "v2"), ("s[92:93]", 0, "v[20:23]", "v24"), ("s[52:53]", 1, "v[8:11]", "v1"))):
            I(f"s_not_b64 exec, {m}" if neg else f"s_mov_b64 exec, {m}")
            I(f"s_cbranch_execz L_stskip{tag}{k}")
            I(f"buffer_store_dwordx4 {regs}, {va}, s[8:11], s51 offen {sf}")
            e.label(f"L_stskip{tag}{k}")
        I("s_mov_b64 exec, -1")
        mid()
        I("s_waitcnt vmcnt(0) lgkmcnt(0)")
        stamp(e, c, 5)
        I("s_barrier")
        I("s_cmp_lt_u32 s21, s25")
        I(f"s_cbranch_scc1 L_nolate{tag}")
        I(f"buffer_store_dwordx4 v[100:103], v1, s[8:11], s49 offen {sf}")
        e.label(f"L_nolate{tag}")
    I("s_cmp_lt_u32 s21, 4")
    e.branch("s_cbranch_scc1 L2_gemm")

    if c.wlate:
        I("s_cmp_lt_u32 s21, 13")
        I("s_cbranch_scc1 L2_noWl")
        w_loads()
        e.label("L2_noWl")
    VLANE, VINFO, VNEXT = 108, 109, 110
    VLOFF, VMASK, VOW, VOR, VSCRW, VTRA, VWR, VL16 = 111, 112, 113, 114, 115, 116, 117, 118
    VT0, VT1, VONE, VSEL = 119, 120, 121, 122
    VJ, VCH, VSEG = 123, 124, 125
    I(f"v_and_b32 v{VLANE}, 63, v0")
    I(f"v_mov_b32 v{VONE}, 1")
    I(f"v_mov_b32 v{VMASK}, s30")
    I(f"v_lshrrev_b32 v{VT1}, 4, v{VLANE}")
    I(f"v_lshlrev_b32 v{VL16}, 4, v{VLANE}")
    if c.addtid:
        I(f"v_and_b32 v{VT0}, 3, v{VLANE}")
        I(f"v_lshlrev_b32 v{VLOFF}, 4, v{VT0}")
    else:
        I(f"v_and_b32 v{VT0}, 15, v{VLANE}")
        I(f"v_lshlrev_b32 v{VLOFF}, 4, v{VT0}")
    I("s_sub_u32 s43, s21, 4")
    I(f"s_mul_i32 s43, s43, {SSTR}")
    I(f"s_add_u32 s43, s43, {SCR}")
    I(f"v_add_u32 v{VSCRW}, s43, v{VL16}")
    I(f"v_lshlrev_b32 v{VOR}, 5, v{VT1}")
    I(f"v_add_u32 v{VOR}, s43, v{VOR}")
    I(f"v_lshlrev_b32 v{VTRA}, 4, v{VT1}")
    I(f"v_bfe_u32 v{VT1}, v{VLANE}, 2, 2")
    I(f"v_lshl_add_u32 v{VTRA}, v{VT1}, 6, v{VTRA}")
    I(f"v_and_b32 v{VT1}, 1, v{VLANE}")
    I(f"v_lshl_add_u32 v{VTRA}, v{VT1}, 3, v{VTRA}")
    I(f"v_bfe_u32 v{VT1}, v{VLANE}, 1, 1")
    I(f"v_mul_u32_u24 v{VT1}, {PL1}, v{VT1}")
    I(f"v_add3_u32 v{VTRA}, v{VTRA}, v{VT1}, s43")
    I(f"v_and_b32 v{VOW}, 32, v{VLANE}")
    I(f"v_and_b32 v{VT1}, 3, v{VLANE}")
    I(f"v_lshl_add_u32 v{VOW}, v{VT1}, 3, v{VOW}")
    I(f"v_bfe_u32 v{VT1}, v{VLANE}, 2, 3")
    I(f"v_add_u32 v{VOW}, v{VOW}, v{VT1}")
    I(f"v_lshlrev_b32 v{VOW}, 2, v{VOW}")
    I(f"v_add_u32 v{VOW}, s43, v{VOW}")
    I(f"v_add_u32 v{VWR}, {WRAD}, v{VL16}")
    I("s_sub_u32 s42, s21, 4")
    I("s_mul_i32 s83, s42, 24")
    I(f"v_and_b32 v{VJ}, 7, v{VLANE}")
    I(f"v_lshrrev_b32 v{VSEG}, 3, v{VLANE}")
    I(f"s_mov_b32 s42, {CSTRIDE}")
    I(f"v_mul_u32_u24 v{VCH}, s42, v{VSEG}")
    I(f"v_lshlrev_b32 v{VSEG}, 5, v{VSEG}")
    I(f"v_add_u32 v{VSEG}, s43, v{VSEG}")
    I(f"v_or_b32 v{VSEL}, 0x0c0c0c00, v{VJ}")
    NP, NW = 3, 3
    I(f"s_mul_i32 s79, s83, {CSTRIDE}")
    for p in range(NP):
        I(f"s_add_u32 s{74+p}, s79, {8*p*CSTRIDE+PAYOFF}")
        I(f"s_add_u32 s{80+p}, s79, {8*p*CSTRIDE+KEYOFF}")
    I("s_mov_b32 s78, 0x100000")
    I("s_mov_b32 s88, s20")
    I("s_mov_b32 s89, 0")
    I(f"s_movk_i32 s48, {HN}")
    def w_stage():
        I("s_cmp_lt_u32 s21, 13")
        I("s_cbranch_scc1 L2_noW")
        I(f"v_add_u32 v65, {T}, v65")
        for k in range(8):
            I(f"ds_write_b128 v65, v[{28+4*k}:{31+4*k}] offset:{16384 + k*3072}")
        for k in range(5):
            I(f"ds_write_b128 v65, v[{72+4*k}:{75+4*k}] offset:{k*3072}")
        if c.wrlds: I("ds_write_b128 v65, v[68:71] offset:40960")
        I("s_cmp_lg_u32 s21, 13")
        I("s_cbranch_scc1 L2_noW")
        I(f"ds_write_b128 v65, v[92:95] offset:{5*3072}")
        e.label("L2_noW")
    handoff("g", w_stage)
    PAY, KEY, RNK, CNTR, KAD, PAD, X, EN = 0, 36, 45, 54, 57, 60, 64, 72
    MSK = 50
    e.label("L2_g_round")
    I(f"v_and_b32 v{VJ}, 7, v{VLANE}")
    I(f"v_or_b32 v{VSEL}, 0x0c0c0c00, v{VJ}")
    I(f"v_lshrrev_b32 v{X}, 1, v{VLANE}")
    I(f"s_sub_u32 s42, {NCH}, s83")
    I("s_min_i32 s42, s42, 24")
    I(f"v_cmp_gt_i32 s[46:47], s42, v{X}")
    I(f"s_mov_b32 s42, {CSTRIDE}")
    I(f"v_mul_u32_u24 v{X+1}, s42, v{X}")
    I(f"v_and_b32 v{X+2}, 16, v{VL16}")
    I(f"v_add_u32 v{X+1}, v{X+1}, v{X+2}")
    I(f"v_cndmask_b32 v{X+1}, 2.0, v{X+1}, s[46:47]")
    I("s_lshl_b32 s43, s88, 5")
    I(f"s_add_u32 s43, s43, {TABOFF}")
    I("s_add_u32 s43, s43, s79")
    I("s_mov_b32 s44, 0")
    I(f"v_lshl_add_u32 v{VT1}, v{VJ}, 4, v{VCH}")
    if c.ppipe:
        def pl(r): I(f"buffer_load_dwordx4 v[{r}:{r+3}], v{X+1}, s[8:11], s43 offen sc1")
        def chk(r, ok):
            I("s_waitcnt vmcnt(1)")
            tag_bad(e, X+2, r, X+3, ODD)
            I(f"v_cmp_ne_u32 vcc, 0, v{X+2}")
            e.nop(2)
            I("s_and_b64 vcc, vcc, s[46:47]")
            I(f"s_cbranch_scc0 {ok}")
        I("s_waitcnt vmcnt(0)")
        pl(96)
        I(f"s_sleep {c.pgap}")
        e.label("L2_poll")
        pl(104)
        chk(96, "L2_poll_oka")
        pl(96)
        I("s_add_u32 s44, s44, 1")
        chk(104, "L2_poll_okb")
        I("s_cmp_lt_u32 s44, s78")
        I("s_cbranch_scc1 L2_poll")
        I("s_mov_b32 s78, 0")
        e.label("L2_poll_okb")
        for k in range(4): I(f"v_mov_b32 v{EN+k}, v{104+k}")
        I("s_branch L2_poll_ok")
        e.label("L2_poll_oka")
        for k in range(4): I(f"v_mov_b32 v{EN+k}, v{96+k}")
    else:
        e.label("L2_poll")
        I(f"buffer_load_dwordx4 v[{EN}:{EN+3}], v{X+1}, s[8:11], s43 offen sc1")
        I("s_add_u32 s44, s44, 1")
        I("s_waitcnt vmcnt(0)")
        tag_bad(e, X+2, EN, X+3, ODD)
        I(f"v_cmp_ne_u32 vcc, 0, v{X+2}")
        e.nop(2)
        I("s_and_b64 vcc, vcc, s[46:47]")
        I("s_cbranch_scc0 L2_poll_ok")
        I(f"s_sleep {c.psleep}")
        I("s_cmp_lt_u32 s44, s78")
        I("s_cbranch_scc1 L2_poll")
        I("s_mov_b32 s78, 0")
    e.label("L2_poll_ok")
    I("s_cmp_lg_u32 s23, 1")
    I("s_cbranch_scc1 L2_nofilter")
    I("s_sub_u32 s42, s22, s83")
    I(f"v_cmp_eq_u32 vcc, s42, v{X}")
    I(f"v_cndmask_b32 v{EN}, 0, v{EN}, vcc")
    e.label("L2_nofilter")
    I(f"ds_write_b128 v{VSCRW}, v[{EN}:{EN+3}]")
    I(f"v_add_u32 v{X+1}, 8, v{VJ}")
    stamp(e, c, 7)
    def msk(p, w): return f"s[{MSK+4*p+2*w}:{MSK+4*p+2*w+1}]" if w < 2 else f"s[{MSK+12+2*p}:{MSK+13+2*p}]"
    def pay(p, w): return f"v[{PAY+12*p+4*w}:{PAY+12*p+4*w+3}]"
    for p in range(NP):
        I(f"ds_read_b128 v[{EN+8*p}:{EN+8*p+3}], v{VSEG} offset:{256*p}")
        I(f"ds_read_b128 v[{EN+8*p+4}:{EN+8*p+7}], v{VSEG} offset:{256*p+16}")
    for p in range(NP):
        en, cnt = EN + 8*p, CNTR + p
        if p == 0: I("s_waitcnt lgkmcnt(0)")
        I(f"v_bfe_u32 v{cnt}, v{en}, 12, 12")
        I(f"v_and_b32 v{PAD+p}, 0xfff, v{en}")
        I(f"v_cmp_lt_u32 {msk(p,0)}, v{VJ}, v{cnt}")
        I(f"v_cmp_lt_u32 {msk(p,1)}, v{X+1}, v{cnt}")
        I(f"v_perm_b32 v{KEY+3*p}, v{en+3}, v{en+2}, v{VSEL}")
        I(f"v_perm_b32 v{KEY+3*p+1}, v{en+5}, v{en+4}, v{VSEL}")
        I(f"v_lshl_add_u32 v{PAD+p}, v{PAD+p}, 4, v{VT1}")
        for w in range(2):
            I(f"s_mov_b64 exec, {msk(p,w)}")
            I(f"s_cbranch_execz L2_nop{p}")
            I(f"ds_add_rtn_u32 v{RNK+3*p+w}, v{KEY+3*p+w}, v{VONE} offset:{HIST}")
            I(f"buffer_load_dwordx4 {pay(p,w)}, v{PAD+p}, s[8:11], s{74+p} offen offset:{128*w} {rf}")
        e.label(f"L2_nop{p}")
        I("s_mov_b64 exec, -1")
    I(f"v_max3_u32 v{VT0}, v{CNTR}, v{CNTR+1}, v{CNTR+2}")
    I(f"v_cmp_lt_u32 vcc, 16, v{VT0}")
    I("s_mov_b32 s25, 0")
    e.nop(1)
    I("s_cmp_eq_u64 vcc, 0")
    I("s_cbranch_scc1 L2_noextraA")
    I("s_mov_b32 s25, 1")
    I(f"v_add_u32 v{X+2}, 16, v{VJ}")
    for p in range(NP):
        en = EN + 8*p
        I(f"v_min_u32 v{X+3}, {KIN}, v{CNTR+p}")
        I(f"v_cmp_lt_u32 {msk(p,2)}, v{X+2}, v{X+3}")
        I(f"v_perm_b32 v{KEY+3*p+2}, v{en+6}, v{en+6}, v{VSEL}")
        I(f"v_sub_u32 v{KAD+p}, v{PAD+p}, v{VCH}")
        I(f"v_lshrrev_b32 v{KAD+p}, 4, v{KAD+p}")
        I(f"v_add_u32 v{KAD+p}, v{KAD+p}, v{VCH}")
        e.flush()
        I(f"s_mov_b64 exec, {msk(p,2)}")
        I(f"ds_add_rtn_u32 v{RNK+3*p+2}, v{KEY+3*p+2}, v{VONE} offset:{HIST}")
        I(f"buffer_load_dwordx4 {pay(p,2)}, v{PAD+p}, s[8:11], s{74+p} offen offset:256 {rf}")
        I("s_mov_b64 exec, -1")

    def extra_count(tag, first, vj, vkad, vcnt, skey, vone, hist, y):
        I(f"v_add_u32 v{y}, {first}, v{vj}")
        I(f"v_add_u32 v{y+1}, {first}, v{vkad}")
        e.label(f"L_xa{tag}")
        I(f"v_cmp_lt_u32 vcc, v{y}, v{vcnt}")
        I("s_and_saveexec_b64 s[44:45], vcc")
        e.branch(f"s_cbranch_execz L_xa{tag}_done")
        I(f"buffer_load_ubyte v{y+2}, v{y+1}, s[8:11], s{skey} offen {rf}")
        I("s_waitcnt vmcnt(0)")
        I(f"ds_add_u32 v{y+2}, v{vone} offset:{hist}")
        I("s_mov_b64 exec, -1")
        I(f"v_add_u32 v{y}, 8, v{y}")
        I(f"v_add_u32 v{y+1}, 8, v{y+1}")
        e.branch(f"s_branch L_xa{tag}")
        e.label(f"L_xa{tag}_done")
        I("s_mov_b64 exec, -1")
    def extra_move(tag, first, vj, vkad, vpad, vcnt, skey, spay, vone, cur, vbase, y, d):
        I(f"v_add_u32 v{y}, {first}, v{vj}")
        I(f"v_add_u32 v{y+1}, {first}, v{vkad}")
        I(f"v_add_u32 v{vpad}, {16*first}, v{vpad}")
        e.label(f"L_xb{tag}")
        I(f"v_cmp_lt_u32 vcc, v{y}, v{vcnt}")
        I("s_and_saveexec_b64 s[44:45], vcc")
        e.branch(f"s_cbranch_execz L_xb{tag}_done")
        I(f"buffer_load_ubyte v{y+2}, v{y+1}, s[8:11], s{skey} offen {rf}")
        I(f"buffer_load_dwordx4 v[{d}:{d+3}], v{vpad}, s[8:11], s{spay} offen {rf}")
        I("s_waitcnt vmcnt(0)")
        I(f"ds_add_rtn_u32 v{y+3}, v{y+2}, v{vone} offset:{cur}")
        I("s_mov_b64 exec, -1")
        I(f"ds_bpermute_b32 v{y+2}, v{y+2}, v{vbase}")
        I("s_waitcnt lgkmcnt(0)")
        I(f"v_add_lshl_u32 v{y+2}, v{y+2}, v{y+3}, 4")
        I("s_mov_b64 exec, vcc")
        I(f"ds_write_b128 v{y+2}, v[{d}:{d+3}] offset:{RAW}")
        I("s_mov_b64 exec, -1")
        I(f"v_add_u32 v{y}, 8, v{y}")
        I(f"v_add_u32 v{y+1}, 8, v{y+1}")
        I(f"v_add_u32 v{vpad}, 128, v{vpad}")
        e.branch(f"s_branch L_xb{tag}")
        e.label(f"L_xb{tag}_done")
        I("s_mov_b64 exec, -1")
    for p in range(NP):
        extra_count(f"a{p}", KIN, VJ, KAD+p, CNTR+p, 80+p, VONE, HIST2, X)
    e.label("L2_noextraA")
    I("s_waitcnt lgkmcnt(0)")
    stamp(e, c, 14)
    I("s_barrier")
    stamp(e, c, 15)
    C1, CT, BS = X + 4, X + 5, X + 6
    I(f"v_lshlrev_b32 v{VT0}, 2, v{VLANE}")
    I(f"ds_read_b32 v{C1}, v{VT0} offset:{HIST}")
    I(f"ds_read_b32 v{CT}, v{VT0} offset:{HIST2}")
    I("s_waitcnt lgkmcnt(0)")
    I(f"v_add_u32 v{CT}, v{C1}, v{CT}")
    I(f"v_mov_b32 v{BS}, v{CT}")
    scan64(e, BS)
    I(f"v_readlane_b32 s46, v{BS}, 63")
    I(f"v_sub_u32 v{BS}, v{BS}, v{CT}")
    I(f"s_cmp_eq_u32 s23, 1")
    I(f"s_cselect_b32 s42, -1, {CAP}")
    for p in range(NP):
        for w in range(2):
            I(f"ds_bpermute_b32 v{KEY+3*p+w}, v{KEY+3*p+w}, v{BS}")
    I(f"v_lshl_or_b32 v{VINFO}, v{CT}, 16, v{BS}")
    I(f"s_cmp_gt_u32 s46, s42")
    I("s_cbranch_scc1 L2_g_overflow")
    I("s_cmp_lg_u32 s21, 5")
    I("s_cbranch_scc1 L2_noinfo")
    I(f"s_mov_b64 exec, {(1 << HN) - 1}")
    I(f"ds_write_b32 v{VT0}, v{VINFO} offset:{INFO}")
    I("s_mov_b64 exec, -1")
    e.label("L2_noinfo")
    I("s_cmp_lg_u32 s21, 4")
    I("s_cbranch_scc1 L2_noguard")
    I("s_lshl_b32 s46, s46, 4")
    for k in range(4): I(f"v_mov_b32 v{EN+k}, 0")
    I(f"v_add_u32 v{VT0}, s46, v{VL16}")
    I(f"ds_write_b128 v{VT0}, v[{EN}:{EN+3}] offset:{RAW}")
    e.label("L2_noguard")
    I("s_waitcnt lgkmcnt(0)")
    for p in range(NP):
        for w in range(2):
            I(f"v_add_lshl_u32 v{KEY+3*p+w}, v{KEY+3*p+w}, v{RNK+3*p+w}, 4")
    stamp(e, c, 27)
    I("s_waitcnt vmcnt(0)")
    stamp(e, c, 9)
    for p in range(NP):
        for w in range(2):
            I(f"s_mov_b64 exec, {msk(p,w)}")
            I(f"ds_write_b128 v{KEY+3*p+w}, {pay(p,w)} offset:{RAW}")
    I("s_mov_b64 exec, -1")
    I("s_cmp_eq_u32 s25, 0")
    I("s_cbranch_scc1 L2_noextraB")
    for p in range(NP):
        I(f"ds_bpermute_b32 v{KEY+3*p+2}, v{KEY+3*p+2}, v{BS}")
    I("s_waitcnt lgkmcnt(0)")
    for p in range(NP):
        I(f"v_add_lshl_u32 v{KEY+3*p+2}, v{KEY+3*p+2}, v{RNK+3*p+2}, 4")
        I(f"s_mov_b64 exec, {msk(p,2)}")
        I(f"ds_write_b128 v{KEY+3*p+2}, {pay(p,2)} offset:{RAW}")
        I("s_mov_b64 exec, -1")
    I(f"v_add_u32 v{BS}, v{BS}, v{C1}")
    for p in range(NP):
        extra_move(f"a{p}", KIN, VJ, KAD+p, PAD+p, CNTR+p, 80+p, 74+p, VONE, CUR2, BS, X, EN)
    e.label("L2_noextraB")
    I("s_waitcnt lgkmcnt(0)")
    stamp(e, c, 28)
    I("s_barrier")
    I(f"ds_read_b32 v{VT0}, v{VL16} offset:{TOTB}")
    if c.static1:
        I("s_sub_u32 s42, s21, 16")
        I(f"v_mov_b32 v{VNEXT}, s42")
    else:
        I("s_mov_b64 exec, 1")
        I(f"ds_add_rtn_u32 v{VNEXT}, v{VL16}, v{VONE} offset:{NEXT}")
        I("s_mov_b64 exec, -1")
    I("s_waitcnt lgkmcnt(0)")
    I(f"v_readfirstlane_b32 s42, v{VT0}")
    e.nop(1)
    I(f"s_cmp_gt_u32 s42, {CAP}")
    I("s_cbranch_scc1 L2_g_overflow")
    stamp(e, c, 10)
    stamp(e, c, 24, "s_memtime")
    if c.prio_g: I(f"s_setprio {c.prio_g}")
    (gather_loop_s if c.smf else gather_loop)(e, c, locals())
    e.label("L2_g_done")
    stamp(e, c, 11)
    stamp(e, c, 25, "s_memtime")
    I("s_cmp_lg_u32 s24, 0")
    e.branch("s_cbranch_scc1 L2_g_exit")
    I("s_add_u32 s89, s89, 1")
    I("s_branch L2_g_slow")
    e.label("L2_g_overflow")
    I("s_mov_b32 s89, 0")
    I("s_mov_b32 s23, 1")
    I("s_movk_i32 s48, 64")
    e.label("L2_g_slow")
    I("s_waitcnt vmcnt(0) lgkmcnt(0)")
    I("s_barrier")
    I("s_lshr_b32 s22, s89, 1")
    I("s_and_b32 s88, s89, 1")
    I("s_lshl_b32 s88, s88, 8")
    I("s_add_u32 s88, s88, s20")
    I(f"s_cmp_eq_u32 s89, {2*NCH-1}")
    I("s_cselect_b32 s24, 1, 0")
    I("s_barrier")
    e.branch("s_branch L2_g_round")
    e.label("L2_g_exit")
    stamp_store(e, c, 90)
    I("s_endpgm")

    e.label("L2_gemm")
    W, G, TA, TF = 0, 40, 104, 108
    X0, X1 = 124, 125
    I("v_and_b32 v104, 63, v0")
    I("v_lshlrev_b32 v105, 4, v104")
    lut = 0
    for jp in range(4):
        for blk in range(4):
            p, i, s = path_of(jp, blk)
            lut |= (p | (8 if s < 0 else 0)) << (4 * (jp * 4 + blk))
    I(f"s_mov_b32 s44, {lut & 0xffffffff}")
    I(f"s_mov_b32 s45, {lut >> 32}")
    for h in range(2):
        I("v_lshrrev_b32 v106, 4, v104")
        I("v_bfe_u32 v107, v104, 3, 1")
        I("v_lshl_add_u32 v106, v106, 2, v107")
        I(f"v_add_lshl_u32 v106, v106, {2*h}, 2")
        I(f"v_lshrrev_b64 v[108:109], v106, s[44:45]")
        I(f"v_and_b32 v106, 7, v108")
        I(f"v_and_b32 v{110+h}, 8, v108")
        I(f"v_lshlrev_b32 v{110+h}, 28, v{110+h}")
        I("v_and_b32 v107, 7, v104")
        I("v_lshlrev_b32 v107, 3, v107")
        I("v_lshl_add_u32 v106, v106, 6, v107")
        I("v_add_u32 v106, s21, v106")
        I(f"v_lshlrev_b32 v{112+h}, 1, v106")
        if c.wrlds: I(f"v_add_u32 v{112+h}, {T+40960}, v{112+h}")
    I("v_mov_b32 v117, v0")
    handoff("m", lambda: None)
    if c.pfx2_pos == 0: prefetch_x(e, c.pfx2_lines, 114, 117, 256, 31, 0, 4, c.pfx_lines)
    WT = 80
    for k in range(4):
        h, qo = k >> 1, (k & 1) * 4
        for d in range(4):
            if c.wrlds: I(f"ds_read_u16 v{WT+4*k+d}, v{112+h} offset:{d*640+qo*2}")
            else: I(f"buffer_load_ushort v{WT+4*k+d}, v{112+h}, s[16:19], 0 offen offset:{d*640+qo*2}")
    I("v_lshrrev_b32 v106, 4, v104")
    I("v_lshlrev_b32 v106, 10, v106")
    I("v_bfe_u32 v107, v104, 2, 2")
    I("v_lshl_add_u32 v106, v107, 7, v106")
    I("v_and_b32 v107, 3, v104")
    I("v_lshl_add_u32 v106, v107, 3, v106")
    I("s_lshl_b32 s42, s21, 5")
    I(f"s_add_u32 s42, s42, {T}")
    I("v_add_u32 v106, s42, v106")
    for f in range(10):
        I(f"ds_read_b64_tr_b16 v[{W+4*f}:{W+4*f+1}], v106 offset:{f*4096}")
        I(f"ds_read_b64_tr_b16 v[{W+4*f+2}:{W+4*f+3}], v106 offset:{f*4096+512}")
    I("s_lshl_b32 s42, s21, 10")
    I(f"s_add_u32 s43, s42, {WRAD}")
    I("v_add_u32 v105, s43, v105")
    I("s_waitcnt lgkmcnt(0)" if c.wrlds else "s_waitcnt vmcnt(0)")
    for k in range(4):
        h = k >> 1
        for d in range(4):
            I(f"v_lshlrev_b32 v{WT+4*k+d}, 16, v{WT+4*k+d}")
            I(f"v_xor_b32 v{WT+4*k+d}, v{110+h}, v{WT+4*k+d}")
        I(f"ds_write_b128 v105, v[{WT+4*k}:{WT+4*k+3}] offset:{(k>>1)*8192 + (k&1)*4096}")
    I("v_and_b32 v106, 15, v104")
    I("v_lshrrev_b32 v107, 4, v104")
    I(f"v_lshlrev_b32 v{X0}, 2, v104")
    if NWG == 250:
        I(f"s_mul_i32 s42, s20, {HN}")
        I(f"s_movk_i32 s44, {HN}")
    else:
        I("s_mul_i32 s42, s20, 1600210")
        I("s_add_u32 s42, s42, 65532")
        I("s_add_u32 s44, s42, 1600210")
        I("s_lshr_b32 s42, s42, 16")
        I("s_lshr_b32 s44, s44, 16")
        I(f"s_min_u32 s44, s44, {N//2}")
        I("s_sub_u32 s44, s44, s42")
    I("s_lshl_b32 s42, s42, 9")
    I("s_mov_b32 s40, s42")
    I("s_mov_b32 s41, s44")
    I("s_lshl_b32 s43, s21, 5")
    I("s_add_u32 s42, s42, s43")
    I(f"v_lshlrev_b32 v{X1}, 9, v106")
    I(f"v_lshl_add_u32 v{X1}, v107, 3, v{X1}")
    I(f"v_add_u32 v{X1}, s42, v{X1}")
    I(f"v_cmp_le_u32 s[84:85], {HN-16}, v106")
    I(f"s_sub_u32 s43, s44, {48-HN}")
    I("v_cmp_gt_i32 s[50:51], s43, v106")
    I("s_sub_u32 s43, s44, 16")
    I("v_cmp_gt_i32 s[94:95], s43, v106")
    I("v_lshlrev_b32 v108, 10, v106")
    I(f"v_add_u32 v108, {T}, v108")
    I("s_or_b64 s[94:95], s[94:95], s[84:85]")
    for u in (3, 2, 1, 0):
        I(f"v_add_u32 v109, {4*u}, v107")
        I("v_xor_b32 v109, v109, v106")
        I(f"v_lshl_add_u32 v{TF+4+u}, v109, 4, v108")
    I("s_waitcnt lgkmcnt(0)")
    for u in range(4):
        I(f"v_mov_b32 v{TA+u}, v{TF+4+u}")
    I("s_mov_b32 s89, 0")
    NPB = 8
    TB, KA, SJ, KB, RB = 40, 48, 56, 64, 80
    LJ, LCH, LONE, Y = 96, 97, 98, 99
    MB = 52
    def mb(p, w): return f"s[{MB+4*p+2*w}:{MB+4*p+2*w+1}]"
    LA, PA0, PA1, TOA = KB, KB + 1, KB + 2, KB + 3
    I(f"v_lshrrev_b32 v{Y}, 2, v{X0}")
    I("s_lshl_b32 s42, s21, 11")
    I(f"v_lshl_add_u32 v{LA}, v{Y}, 4, s42")
    I(f"v_lshrrev_b32 v{Y+1}, 1, v{Y}")
    I("s_lshl_b32 s43, s21, 5")
    I(f"s_sub_u32 s44, {NCH-128}, s43")
    I(f"v_cmp_gt_i32 s[46:47], s44, v{Y+1}")
    I(f"s_mov_b32 s44, {CSTRIDE}")
    I(f"v_mul_u32_u24 v{Y+1}, s44, v{Y+1}")
    I(f"v_and_b32 v{Y+2}, 16, v{LA}")
    I(f"v_add_u32 v{PA0}, v{Y+1}, v{Y+2}")
    I(f"v_cndmask_b32 v{PA1}, 2.0, v{PA0}, s[46:47]")
    I(f"v_and_b32 v{LJ}, 7, v{Y}")
    I(f"v_lshrrev_b32 v{Y+1}, 3, v{Y}")
    I(f"v_mul_u32_u24 v{LCH}, s44, v{Y+1}")
    I(f"v_lshl_add_u32 v{RB}, v{Y+1}, 5, s42")
    I("s_mul_i32 s38, s43, s44")
    I(f"v_add_u32 v{LCH}, s38, v{LCH}")
    I(f"v_mov_b32 v{LONE}, 1")
    I("s_lshl_b32 s36, s20, 5")
    I(f"s_add_u32 s36, s36, {TABOFF+8192}")
    I("s_add_u32 s36, s36, s38")
    I(f"s_add_u32 s37, s36, {128*CSTRIDE}")
    I("s_lshl_b32 s42, s21, 6")
    I(f"v_add_u32 v{Y}, s42, v{Y}")
    I(f"v_mul_u32_u24 v{Y+1}, 0xaab, v{Y}")
    I(f"v_lshrrev_b32 v{Y+1}, 16, v{Y+1}")
    I(f"v_mul_u32_u24 v{Y+1}, {SSTR-24*32}, v{Y+1}")
    I(f"v_lshl_add_u32 v{TOA}, v{Y}, 5, v{Y+1}")
    I(f"v_add_u32 v{TOA}, {SCR+28}, v{TOA}")
    I(f"s_movk_i32 s42, {NCH}")
    I(f"v_cmp_gt_u32 s[92:93], s42, v{Y}")
    if c.pfx2_pos == 1:
        I("s_mov_b64 s[40:41], s[46:47]")
        prefetch_x(e, c.pfx2_lines, 114, 117, 256, 31, 0, 4, c.pfx_lines)
        I("s_mov_b64 s[46:47], s[40:41]")
    stamp(e, c, 14)
    e.label("L2_m_round")
    I("s_barrier")
    I("s_cmp_eq_u32 s23, 1")
    I("s_cbranch_scc1 L2_m_slowC")
    def pollB_issue():
        I(f"buffer_load_dwordx4 v[{TF+4}:{TF+7}], v{PA0}, s[8:11], s36 offen sc1")
        I(f"buffer_load_dwordx4 v[{TF+8}:{TF+11}], v{PA1}, s[8:11], s37 offen sc1")
    I(f"ds_read_b32 v{TF}, v{X0} offset:{HIST}")
    I(f"ds_read_b32 v{TF+1}, v{X0} offset:{HIST2}")
    I(f"ds_read_b32 v{Y}, v{TOA}")
    I("s_waitcnt lgkmcnt(0)")
    I(f"v_add_u32 v{TF}, v{TF}, v{TF+1}")
    I(f"v_and_b32 v{Y}, 0xfff, v{Y}")
    I(f"v_cndmask_b32 v{Y}, 0, v{Y}, s[92:93]")
    scan64(e, TF)
    scan64(e, Y)
    I(f"v_readlane_b32 s42, v{TF}, 63")
    I(f"v_mov_b32 v{Y+2}, 0")
    I("s_mov_b32 exec_lo, 0")
    I("s_mov_b32 exec_hi, 0x80000000")
    I(f"ds_add_u32 v{Y+2}, v{Y} offset:{TOTB}")
    I("s_mov_b64 exec, -1")
    I(f"s_cmp_gt_u32 s42, {CAP}")
    I("s_cbranch_scc1 L2_m_overflow")
    if c.bearly: pollB_issue()
    I("s_waitcnt lgkmcnt(0)")
    I("s_barrier")
    I(f"ds_read_b32 v{Y}, v{Y+2} offset:{TOTB}")
    SEL = Y + 4
    E2 = [TF, TF + 8]
    I("s_mov_b32 s44, 0")
    I("s_waitcnt lgkmcnt(0)")
    I(f"v_readfirstlane_b32 s42, v{Y}")
    I(f"v_or_b32 v{SEL}, 0x0c0c0c00, v{LJ}")
    I(f"s_cmp_gt_u32 s42, {CAP}")
    I("s_cbranch_scc1 L2_m_overflow")
    stamp(e, c, 10)
    I("s_mov_b32 s34, s42")
    if c.x_nobload: I("s_branch L2_bnoxb")
    if c.bearly: I("s_branch L2_pollB_w")
    e.label("L2_pollB")
    pollB_issue()
    e.label("L2_pollB_w")
    I("s_add_u32 s44, s44, 1")
    I("s_waitcnt vmcnt(0)")
    tag_bad(e, Y, TF+4, Y+1, ODD)
    tag_bad(e, Y+2, TF+8, Y+1, ODD)
    I(f"v_cndmask_b32 v{Y+2}, 0, v{Y+2}, s[46:47]")
    I(f"v_or_b32 v{Y}, v{Y}, v{Y+2}")
    I(f"v_cmp_ne_u32 vcc, 0, v{Y}")
    e.nop(2)
    I("s_cmp_eq_u64 vcc, 0")
    I("s_cbranch_scc1 L2_pollB_ok")
    I(f"s_sleep {c.psleep}")
    I("s_cmp_lt_u32 s44, 0x100000")
    I("s_cbranch_scc1 L2_pollB")
    e.label("L2_pollB_ok")
    stamp(e, c, 7)
    I(f"ds_write_b128 v{LA}, v[{TF+4}:{TF+7}] offset:{CEB}")
    I(f"ds_write_b128 v{LA}, v[{TF+8}:{TF+11}] offset:{CEB+1024}")
    def boff(p): return ((128 if p >= 4 else 0) + 8 * (p & 3)) * CSTRIDE
    def ent_read(p):
        r = E2[p & 1]
        I(f"ds_read_b128 v[{r}:{r+3}], v{RB} offset:{CEB+256*p}")
        I(f"ds_read_b64 v[{r+4}:{r+5}], v{RB} offset:{CEB+256*p+16}")
    ent_read(0); ent_read(1)
    I(f"v_add_u32 v{Y+1}, 8, v{LJ}")
    for p in range(NPB):
        r = E2[p & 1]
        I(f"s_waitcnt lgkmcnt({2 if p < NPB-1 else 0})")
        I(f"v_and_b32 v{SJ+p}, 0xfff, v{r}")
        I(f"v_bfe_u32 v{TB+p}, v{r}, 12, 12")
        I(f"v_perm_b32 v{KB+2*p}, v{r+3}, v{r+2}, v{SEL}")
        I(f"v_perm_b32 v{KB+2*p+1}, v{r+5}, v{r+4}, v{SEL}")
        if p + 2 < NPB: ent_read(p + 2)
        I(f"v_add_u32 v{SJ+p}, v{SJ+p}, v{LJ}")
        I(f"v_cmp_lt_u32 {mb(p,0)}, v{LJ}, v{TB+p}")
        I(f"v_cmp_lt_u32 {mb(p,1)}, v{Y+1}, v{TB+p}")
        I(f"v_lshl_add_u32 v{SJ+p}, v{SJ+p}, 4, v{LCH}")
    P0 = [TF, TF+4, TF+8, TF+12]
    def pay_issue(p, w, reg):
        I(f"s_mov_b32 s42, {boff(p)+PAYOFF}")
        I("s_mov_b64 exec, -1")
        I(f"v_cndmask_b32 v{Y+2+w}, 2.0, v{SJ+p}, {mb(p,w)}")
        I(f"buffer_load_dwordx4 v[{reg}:{reg+3}], v{Y+2+w}, s[8:11], s42 offen offset:{128*w} {rf}")
    for k in range(4): pay_issue(k >> 1, k & 1, P0[k])
    I(f"v_max3_u32 v{Y}, v{TB}, v{TB+1}, v{TB+2}")
    I(f"v_max3_u32 v{Y}, v{Y}, v{TB+3}, v{TB+4}")
    I(f"v_max3_u32 v{Y}, v{Y}, v{TB+5}, v{TB+6}")
    I(f"v_max_u32 v{Y}, v{Y}, v{TB+7}")
    I(f"v_cmp_lt_u32 vcc, 16, v{Y}")
    I(f"v_mov_b32 v{Y+1}, v{RB}")
    for p in range(NPB):
        for w in range(2):
            I(f"s_mov_b64 exec, {mb(p,w)}")
            I(f"ds_add_rtn_u32 v{RB+2*p+w}, v{KB+2*p+w}, v{LONE} offset:{HISTB}")
    I("s_mov_b64 exec, -1")
    I("s_cmp_lg_u64 vcc, 0")
    I("s_cselect_b32 s35, 1, 0")
    I("s_cbranch_scc0 L2_bnoxa")
    def w2mask(p):
        I(f"v_min_u32 v{Y+2}, {KIN}, v{TB+p}")
        I(f"v_add_u32 v{Y+3}, 16, v{LJ}")
        I(f"v_cmp_lt_u32 vcc, v{Y+3}, v{Y+2}")
        I("s_and_saveexec_b64 s[44:45], vcc")
    for p in range(NPB):
        w2mask(p)
        e.branch(f"s_cbranch_execz L2_bw2a{p}")
        I(f"ds_read_b32 v{KA+p}, v{Y+1} offset:{CEB+256*p+24}")
        I("s_waitcnt lgkmcnt(0)")
        I(f"v_perm_b32 v{KA+p}, v{KA+p}, v{KA+p}, v{SEL}")
        I(f"ds_add_rtn_u32 v{Y+2}, v{KA+p}, v{LONE} offset:{HISTB}")
        I("s_waitcnt lgkmcnt(0)")
        I(f"v_lshl_or_b32 v{KA+p}, v{Y+2}, 8, v{KA+p}")
        e.label(f"L2_bw2a{p}")
        I("s_mov_b64 exec, -1")
    def key_addr(p, dst):
        I(f"v_sub_u32 v{dst}, v{SJ+p}, v{LCH}")
        I(f"v_lshrrev_b32 v{dst}, 4, v{dst}")
        I(f"v_add_u32 v{dst}, v{dst}, v{LCH}")
    for p in range(NPB):
        I(f"s_mov_b32 s42, {boff(p)+KEYOFF}")
        key_addr(p, Y+3)
        extra_count(f"b{p}", KIN, LJ, Y+3, TB+p, 42, LONE, HIST2B, Y)
    e.label("L2_bnoxa")
    I("s_mov_b64 exec, 1")
    I(f"v_mov_b32 v{Y+2}, 0")
    I("s_waitcnt lgkmcnt(0)")
    I(f"ds_add_u32 v{Y+2}, v{LONE} offset:{BSYNC}")
    I("s_mov_b64 exec, -1")
    I(f"v_mov_b32 v{Y+2}, 0")
    spin(e, "bs", Y, Y+2, BSYNC, 4, 44, 42)
    BB = Y + 4
    I(f"ds_read_b32 v{Y}, v{X0} offset:{HISTB}")
    I(f"ds_read_b32 v{Y+1}, v{X0} offset:{HIST2B}")
    I("s_waitcnt lgkmcnt(0)")
    I(f"v_add_u32 v{Y+1}, v{Y}, v{Y+1}")
    I(f"v_mov_b32 v{BB}, v{Y+1}")
    scan64(e, BB)
    I(f"v_sub_u32 v{BB}, v{BB}, v{Y+1}")
    I(f"v_add_u32 v{BB}, {BOFF}, v{BB}")
    for k in range(2*NPB):
        I(f"ds_bpermute_b32 v{KB+k}, v{KB+k}, v{BB}")
    I("s_cmp_lg_u32 s21, 0")
    I("s_cbranch_scc1 L2_bnoinfo")
    I(f"v_lshl_or_b32 v{Y+1}, v{Y+1}, 16, v{BB}")
    I(f"s_mov_b32 exec_lo, {((1 << 32) - (1 << HN))}")
    I(f"ds_write_b32 v{X0}, v{Y+1} offset:{INFO}")
    I("s_mov_b64 exec, -1")
    e.label("L2_bnoinfo")
    I("s_waitcnt lgkmcnt(0)")
    for k in range(2*NPB):
        I(f"v_add_lshl_u32 v{KB+k}, v{KB+k}, v{RB+k}, 4")
    I(f"v_mov_b32 v{LONE}, v{Y}")
    regs = P0 + [RB, RB+4, RB+8, RB+12]
    for k in range(4, 8): pay_issue(k >> 1, k & 1, regs[k])
    for k in range(16):
        I(f"s_waitcnt vmcnt({min(7, 15-k)})")
        I(f"s_mov_b64 exec, {mb(k>>1, k&1)}")
        I(f"ds_write_b128 v{KB+k}, v[{regs[k&7]}:{regs[k&7]+3}] offset:{RAW}")
        if k + 8 < 16: pay_issue((k+8) >> 1, (k+8) & 1, regs[k&7])
    I("s_mov_b64 exec, -1")
    I("s_cmp_eq_u32 s35, 0")
    I("s_cbranch_scc1 L2_bnoxb")
    for p in range(NPB):
        I(f"v_and_b32 v{Y}, 0xff, v{KA+p}")
        I(f"ds_bpermute_b32 v{Y}, v{Y}, v{BB}")
        w2mask(p)
        e.branch(f"s_cbranch_execz L2_bw2b{p}")
        I(f"s_mov_b32 s42, {boff(p)+PAYOFF}")
        I(f"buffer_load_dwordx4 v[{TF}:{TF+3}], v{SJ+p}, s[8:11], s42 offen offset:256 {rf}")
        I(f"v_lshrrev_b32 v{KA+p}, 8, v{KA+p}")
        I("s_waitcnt vmcnt(0) lgkmcnt(0)")
        I(f"v_add_lshl_u32 v{Y}, v{Y}, v{KA+p}, 4")
        I(f"ds_write_b128 v{Y}, v[{TF}:{TF+3}] offset:{RAW}")
        e.label(f"L2_bw2b{p}")
        I("s_mov_b64 exec, -1")
        I("s_waitcnt lgkmcnt(0)")
    I(f"v_add_u32 v{BB}, v{BB}, v{LONE}")
    I(f"v_mov_b32 v{LONE}, 1")
    for p in range(NPB):
        I(f"s_mov_b32 s42, {boff(p)+KEYOFF}")
        I(f"s_mov_b32 s43, {boff(p)+PAYOFF}")
        key_addr(p, KA+p)
        extra_move(f"b{p}", KIN, LJ, KA+p, SJ+p, TB+p, 42, 43, LONE, CUR2B, BB, Y, TF)
    e.label("L2_bnoxb")
    I("s_waitcnt lgkmcnt(0)")
    for k in range(64):
        I(f"v_mov_b32 v{G+k}, 0")
    I("s_cmp_lg_u32 s21, 1")
    I("s_cbranch_scc1 L2_bnoguard")
    I(f"s_add_u32 s42, s34, {BOFF}")
    I("s_lshl_b32 s42, s42, 4")
    I(f"v_lshl_add_u32 v{TF}, v{X0}, 2, s42")
    I(f"ds_write_b128 v{TF}, v[{G}:{G+3}] offset:{RAW}")
    I("s_waitcnt lgkmcnt(0)")
    e.label("L2_bnoguard")
    I(f"v_mov_b32 v{TF}, 1")
    I("s_mov_b64 exec, 1")
    I(f"ds_add_u32 v{G}, v{TF} offset:{BREADY}")
    I("s_mov_b64 exec, -1")
    stamp(e, c, 13)
    I("s_branch L2_m_tiles")
    e.label("L2_m_slowC")
    I("s_barrier")
    e.label("L2_m_tiles")
    if c.prio_m: I(f"s_setprio {c.prio_m}")
    for h in range(2):
        for t in ((0, 3, 1, 2) if h else range(4)):
            need = 16 if t < 3 else NODES - 48
            last = (h, t) == (1, 2)
            if last and c.split: need = 32
            I(f"v_mov_b32 v{TF}, 0")
            spin(e, f"t{h}{t}", TF+1, TF, DONE + 16*h + 4*t, need, 43, 42, sleep=(1 if last else c.sleep))
            stamp(e, c, 16 + 4*h + t)
            srcs = [t] + ([0] if last and c.split else [])
            steps = [(tt, ks) for tt in srcs for ks in range(16)]
            def mf(ks, r):
                jp, blk = ks >> 2, 2 * h + ((ks >> 1) & 1)
                p, i, sg = path_of(jp, blk)
                f = p * 2 + (ks & 1)
                g = G + 16 * t + 4 * i
                I(f"v_mfma_f32_16x16x32_bf16 v[{g}:{g+3}], v[{W+4*f}:{W+4*f+3}], v[{r}:{r+3}], v[{g}:{g+3}]")
            def rd(n, r):
                tt, ks = steps[n]
                I(f"ds_read_b128 v[{r}:{r+3}], v{TA+(ks&3)} offset:{tt*16384 + (ks>>2)*256}")
            if last and c.fastlast and not c.split:
                I("s_cmp_eq_u32 s24, 0")
                I("s_cbranch_scc1 L2_lastslow")
                fr = [TF + 4*n for n in range(4)] + [G + 4*n for n in range(8)] + [G + 48 + 4*n for n in range(4)]
                order = [0, 2, 4, 8, 1, 3, 5, 9, 6, 10, 12, 14, 7, 11, 13, 15]
                for n, ks in enumerate(order): rd(ks, fr[n])
                for n, ks in enumerate(order):
                    I(f"s_waitcnt lgkmcnt({15-n})")
                    mf(ks, fr[n])
                I("s_branch L2_lastdone")
                e.label("L2_lastslow")
            for n in range(4): rd(n, TF + 4*n)
            for n in range(len(steps)):
                I(f"s_waitcnt lgkmcnt({min(3, len(steps)-1-n)})")
                mf(steps[n][1], TF + 4*(n&3))
                if n + 4 < len(steps): rd(n + 4, TF + 4*(n&3))
            if last and c.fastlast and not c.split: e.label("L2_lastdone")
            if (h, t) == (1, 0) and c.split:
                I(f"v_mov_b32 v{TF}, 0")
                I(f"v_mov_b32 v{TF+1}, 1")
                I("s_mov_b64 exec, 1")
                I(f"ds_add_u32 v{TF}, v{TF+1} offset:{GDONE + 16}")
                I("s_mov_b64 exec, -1")
            if h == 0:
                I(f"v_mov_b32 v{TF}, 0")
                I(f"v_mov_b32 v{TF+1}, 1")
                I("s_mov_b64 exec, 1")
                I(f"ds_add_u32 v{TF}, v{TF+1} offset:{GDONE + 4*t}")
                I("s_mov_b64 exec, -1")
                if t == c.pf1_tile:
                    I(f"s_movk_i32 m0, {HIST2B}")
                    I("s_lshl_b32 s42, s21, 6")
                    I(f"v_lshrrev_b32 v{TF+3}, 2, v{X0}")
                    I(f"v_add_u32 v{TF+3}, s42, v{TF+3}")
                    prefetch_x(e, c.pf1_lines, TF + 4, TF + 3, 256, 31, 1, 4, lds=True)
            else:
                I("s_cmp_eq_u32 s24, 0")
                e.branch(f"s_cbranch_scc1 L2_nofin{t}")
                g = G + 16 * t
                I("s_mov_b32 s42, 0xbfb8aa3b")
                for r in range(4): I(f"v_mul_f32 v{TF+r}, s42, v{g+r}")
                for r in range(4): I(f"v_exp_f32 v{TF+r}, v{TF+r}")
                for r in range(4): I(f"v_add_f32 v{TF+r}, 1.0, v{TF+r}")
                for r in range(4): I(f"v_rcp_f32 v{TF+r}, v{TF+r}")
                for i in range(1, 4):
                    for r in range(4): I(f"v_mul_f32 v{g+4*i+r}, v{g+4*i+r}, v{TF+r}")
                for i in range(4):
                    I(f"v_cvt_pk_bf16_f32 v{TF+4+2*i}, v{g+4*i}, v{g+4*i+1}")
                    I(f"v_cvt_pk_bf16_f32 v{TF+5+2*i}, v{g+4*i+2}, v{g+4*i+3}")
                fl = c.out_flags if (t == 2 or c.out_early is None) else c.out_early
                if c.wideout:
                    prev = {0: None, 3: 0, 1: 3, 2: 1}[t]
                    z, a1, a2 = TF, TF + 1, TF + 2
                    I(f"v_mov_b32 v{z}, 0")
                    if prev is not None: spin(e, f"or{t}", a1, z, OUTR + 4*prev, 4, 43, 42)
                    I(f"v_bfe_u32 v{a1}, v{X0}, 2, 4")
                    I(f"v_lshrrev_b32 v{a2}, 7, v{X0}")
                    I("s_lshl_b32 s42, s21, 1")
                    I(f"v_add_u32 v{a2}, s42, v{a2}")
                    I(f"v_xor_b32 v{a2}, v{a2}, v{a1}")
                    I(f"v_and_b32 v{a2}, 7, v{a2}")
                    I(f"v_lshlrev_b32 v{a2}, 4, v{a2}")
                    I(f"v_lshl_add_u32 v{a2}, v{a1}, 9, v{a2}")
                    I(f"v_bfe_u32 v{a1}, v{X0}, 6, 1")
                    I(f"v_lshl_add_u32 v{a2}, v{a1}, 3, v{a2}")
                    I(f"v_add_u32 v{a2}, {WRAD}, v{a2}")
                    for i in range(4):
                        I(f"ds_write_b64 v{a2}, v[{TF+4+2*i}:{TF+5+2*i}] offset:{i*128}")
                    I(f"v_mov_b32 v{a1}, 1")
                    I("s_mov_b64 exec, 1")
                    I(f"ds_add_u32 v{z}, v{a1} offset:{OUTW + 4*t}")
                    I("s_mov_b64 exec, -1")
                    r0, ga, la = TF + 12, TF + 13, TF + 3
                    I(f"v_lshrrev_b32 v{r0}, 7, v{X0}")
                    I("s_lshl_b32 s42, s21, 2")
                    I(f"v_add_u32 v{r0}, s42, v{r0}")
                    I(f"v_bfe_u32 v{ga}, v{X0}, 2, 5")
                    I(f"v_and_b32 v{a2}, 7, v{r0}")
                    I(f"v_xor_b32 v{la}, v{ga}, v{a2}")
                    I(f"v_lshlrev_b32 v{la}, 4, v{la}")
                    I(f"v_lshl_add_u32 v{la}, v{r0}, 9, v{la}")
                    I(f"v_add_u32 v{la}, {WRAD}, v{la}")
                    I(f"v_xor_b32 v{a2}, 32, v{la}")
                    I(f"v_lshlrev_b32 v{ga}, 4, v{ga}")
                    I(f"v_lshl_add_u32 v{ga}, v{r0}, 9, v{ga}")
                    I(f"v_add_u32 v{ga}, s40, v{ga}")
                    spin(e, f"ow{t}", a1, z, OUTW + 4*t, 4, 43, 42)
                    I(f"ds_read_b128 v[{TF+4}:{TF+7}], v{la}")
                    I(f"ds_read_b128 v[{TF+8}:{TF+11}], v{a2} offset:1024")
                    for k in range(2):
                        base = 16*t + 2*k
                        I(f"s_mov_b32 s42, {base*512 + ((N//2-HN)*512 if t >= 2 else 0)}")
                        va = ga
                        if t == 1:
                            va = TF + 14
                            I(f"v_cmp_le_u32 vcc, {HN-base}, v{r0}")
                            I(f"v_add_u32 v{TF+15}, {(N//2-HN)*512}, v{ga}")
                            I(f"s_sub_u32 s43, s41, {base}")
                            I(f"v_cndmask_b32 v{va}, v{ga}, v{TF+15}, vcc")
                            I(f"v_cmp_gt_i32 s[44:45], s43, v{r0}")
                            e.nop(1)
                            I("s_or_b64 exec, vcc, s[44:45]")
                        if t == 3:
                            I(f"s_sub_u32 s43, s41, {base-HN}")
                            I(f"v_cmp_gt_i32 vcc, s43, v{r0}")
                            e.nop(1)
                            I("s_mov_b64 exec, vcc")
                        I(f"s_waitcnt lgkmcnt({1-k})")
                        if t == 3: I(f"s_cbranch_execz L2_wo3{k}")
                        I(f"buffer_store_dwordx4 v[{TF+4+4*k}:{TF+7+4*k}], v{va}, s[12:15], s42 offen {fl}")
                        if t == 3: e.label(f"L2_wo3{k}")
                        if t in (1, 3): I("s_mov_b64 exec, -1")
                    if t != 2:
                        I(f"v_mov_b32 v{a1}, 1")
                        I("s_mov_b64 exec, 1")
                        I(f"ds_add_u32 v{z}, v{a1} offset:{OUTR + 4*t}")
                        I("s_mov_b64 exec, -1")
                else:
                    I(f"s_mov_b32 s42, {t*16*512 + ((N//2-HN)*512 if t >= 2 else 0)}")
                    va = X1
                    if t == 1:
                        va = TF
                        I(f"v_add_u32 v{TF}, {(N//2-HN)*512}, v{X1}")
                        I(f"v_cndmask_b32 v{TF}, v{X1}, v{TF}, s[84:85]")
                        I("s_mov_b64 exec, s[94:95]")
                    if t == 3:
                        I("s_mov_b64 exec, s[50:51]")
                        I("s_cbranch_execz L2_nost3")
                    for i in range(4):
                        I(f"buffer_store_dwordx2 v[{TF+4+2*i}:{TF+5+2*i}], v{va}, s[12:15], s42 offen offset:{i*128} {c.out_flags if (t == 2 or c.out_early is None) else c.out_early}")
                    if t == 3: e.label("L2_nost3")
                    if t in (1, 3): I("s_mov_b64 exec, -1")
                e.label(f"L2_nofin{t}")
    stamp(e, c, 11)
    I("s_cmp_lg_u32 s24, 0")
    e.branch("s_cbranch_scc1 L2_m_exit")
    I("s_add_u32 s89, s89, 1")
    I("s_branch L2_m_slow")
    e.label("L2_m_overflow")
    I("s_mov_b32 s89, 0")
    I("s_mov_b32 s23, 1")
    I("s_waitcnt vmcnt(0)")
    for k in range(64):
        I(f"v_mov_b32 v{G+k}, 0")
    e.label("L2_m_slow")
    I("s_waitcnt vmcnt(0) lgkmcnt(0)")
    I("s_barrier")
    I(f"s_cmp_eq_u32 s89, {2*NCH-1}")
    I("s_cselect_b32 s24, 1, 0")
    I("s_cmp_lg_u32 s21, 1")
    I("s_cbranch_scc1 L2_m_nz")
    for k in range(4): I(f"v_mov_b32 v{TF+k}, 0")
    I(f"v_lshlrev_b32 v{TF+4}, 2, v{X0}")
    I(f"ds_write_b128 v{TF+4}, v[{TF}:{TF+3}]")
    I("s_waitcnt lgkmcnt(0)")
    e.label("L2_m_nz")
    I("s_barrier")
    e.branch("s_branch L2_m_round")
    e.label("L2_m_exit")
    if c.stamps:
        I("s_waitcnt vmcnt(0)")
        stamp(e, c, 12)
        stamp_store(e, c, TF)
    e.label("L_end")
    I("s_endpgm")
    e.label("L_codeend")
    return KNAME, 128, 96

def gather_loop(e, c, L):
    I = e.I
    RAW, T, NEXT, DONE, GDONE, OSC, PL1, BREADY, INFO = (L[k] for k in "RAW T NEXT DONE GDONE OSC PL1 BREADY INFO".split())
    VLANE, VINFO, VNEXT, VLOFF, VMASK, VOW, VOR, VSCRW, VTRA, VWR, VL16, VT0, VT1, VONE = (L[k] for k in
        "VLANE VINFO VNEXT VLOFF VMASK VOW VOR VSCRW VTRA VWR VL16 VT0 VT1 VONE".split())
    ACC, LD, B, A, AD = 0, 32, 64, 96, 100
    sA, sR, sH, sN, sNV = 32, 33, 34, 35, 37
    sCN, sCH, sCF, sCR, sL = 38, 39, 40, 41, 36
    uid = [0]
    def lab(p):
        uid[0] += 1
        return f"L2_{p}{uid[0]}"
    def fetch_issue():
        I("s_mov_b64 exec, 1")
        I(f"ds_add_rtn_u32 v{VNEXT}, v{VL16}, v{VONE} offset:{NEXT}")
        I("s_mov_b64 exec, -1")
    NIT = 2*NODES + (16 if c.split else 0)
    def setup_item(none_label):
        I(f"v_readfirstlane_b32 s42, v{VNEXT}")
        e.nop(1)
        if c.static1: I("s_add_u32 s42, s42, 12")
        I(f"s_cmp_ge_u32 s42, {NIT}")
        I(f"s_cbranch_scc1 {none_label}")
        t, sp, dn = lab("bw"), lab("sp"), lab("sd")
        if c.split:
            I(f"s_cmp_ge_u32 s42, {2*NODES-16}")
            I(f"s_cbranch_scc1 {sp}")
        I(f"s_cmp_ge_u32 s42, {NODES}")
        I(f"s_cselect_b32 s{sH}, 256, 0")
        I(f"s_cselect_b32 s43, {NODES}, 0")
        I(f"s_cmp_ge_u32 s42, {NODES+16}")
        I(f"s_cselect_b32 s43, {NODES-32}, s43")
        I(f"s_cmp_ge_u32 s42, {NODES+18}")
        I(f"s_cselect_b32 s43, {NODES+2}, s43")
        I(f"s_sub_u32 s{sN}, s42, s43")
        I(f"s_cmp_lt_u32 s{sN}, s48")
        I(f"s_cbranch_scc1 {t}")
        stamp(e, c, 29)
        I(f"v_mov_b32 v{VT0}, 0")
        spin(e, t, VT1, VT0, BREADY, 4, 45, 44, sleep=1)
        I(f"v_lshrrev_b32 v{VT0}, 2, v{VL16}")
        I(f"ds_read_b32 v{VINFO}, v{VT0} offset:{INFO}")
        I("s_movk_i32 s48, 64")
        I("s_waitcnt lgkmcnt(0)")
        stamp(e, c, 30)
        e.label(t)
        I(f"v_readlane_b32 s42, v{VINFO}, s{sN}")
        e.nop(1)
        I(f"s_lshr_b32 s{sR}, s42, 16")
        I("s_and_b32 s42, s42, 0xffff")
        I(f"s_lshl_b32 s{sA}, s42, 4")
        if c.split:
            I(f"s_branch {dn}")
            e.label(sp)
            I(f"s_sub_u32 s42, s42, {2*NODES-16}")
            I("s_lshr_b32 s43, s42, 1")
            I(f"s_add_u32 s{sN}, s43, 32")
            I(f"s_cmp_lt_u32 s{sN}, s48")
            I(f"s_cbranch_scc1 {t}b")
            I(f"v_mov_b32 v{VT0}, 0")
            spin(e, t + "c", VT1, VT0, BREADY, 4, 45, 44, sleep=1)
            I(f"v_lshrrev_b32 v{VT0}, 2, v{VL16}")
            I(f"ds_read_b32 v{VINFO}, v{VT0} offset:{INFO}")
            I("s_movk_i32 s48, 64")
            I("s_waitcnt lgkmcnt(0)")
            e.label(t + "b")
            I(f"v_readlane_b32 s44, v{VINFO}, s{sN}")
            I(f"s_movk_i32 s{sH}, 256")
            I(f"s_lshr_b32 s{sR}, s44, 16")
            I("s_and_b32 s44, s44, 0xffff")
            I(f"s_min_u32 s45, s{sR}, 32")
            I("s_bitcmp1_b32 s42, 0")
            I(f"s_cbranch_scc1 {sp}h")
            I(f"s_mov_b32 s{sR}, s45")
            I(f"s_lshl_b32 s{sA}, s44, 4")
            I(f"s_branch {dn}")
            e.label(sp + "h")
            I(f"s_sub_u32 s{sR}, s{sR}, s45")
            I("s_add_u32 s44, s44, s45")
            I(f"s_lshl_b32 s{sA}, s44, 4")
            I(f"s_or_b32 s{sN}, s43, 64")
            e.label(dn)
    def off_read(hf):
        I(f"ds_read_b128 v[{AD}:{AD+3}], v{VOR} offset:{OSC+128*hf}")
        I(f"ds_read_b128 v[{AD+4}:{AD+7}], v{VOR} offset:{OSC+128*hf+16}")
    def off_add():
        if c.addtid: return
        for i in range(8):
            I(f"v_add_u32 v{AD+i}, v{AD+i}, v{VLOFF}")
    def prep_block():
        r = B
        I(f"v_add_u32 v{VT0}, s{sA}, v{VL16}")
        I(f"ds_read_b128 v[{r}:{r+3}], v{VT0} offset:{RAW}")
        l = lab("nf")
        I(f"s_cmp_gt_u32 s{sR}, 64")
        I(f"s_cbranch_scc1 {l}")
        fetch_issue()
        e.label(l)
        I(f"v_cmp_gt_u32 vcc, s{sR}, v{VLANE}")
        I("s_waitcnt lgkmcnt(0)")
        I(f"v_lshrrev_b32 v{r+11}, 16, v{r+3}")
        if c.addtid:
            I(f"v_lshlrev_b32 v{r+11}, 5, v{r+11}")
            I(f"v_sub_u32 v{r+11}, v{r+11}, v{VLOFF}")
        else:
            I(f"v_lshlrev_b32 v{r+11}, 9, v{r+11}")
            if c.oobtail: I(f"v_cndmask_b32 v{r+11}, 2.0, v{r+11}, vcc")
        I(f"ds_write_b32 v{VOW}, v{r+11} offset:{OSC}")
        off_read(0)
        if not c.x_noexp:
            I(f"v_cndmask_b32 v{r}, 0, v{r}, vcc")
            I(f"v_cndmask_b32 v{r+1}, 0, v{r+1}, vcc")
            I(f"v_lshlrev_b32 v{r+8}, 16, v{r+2}")
            I(f"v_and_b32 v{r+9}, v{VMASK}, v{r+2}")
            I(f"v_lshlrev_b32 v{r+10}, 16, v{r+3}")
            I(f"v_lshlrev_b32 v{r+4}, 16, v{r}")
            I(f"v_and_b32 v{r+5}, v{VMASK}, v{r}")
            I(f"v_lshlrev_b32 v{r+6}, 16, v{r+1}")
            I(f"v_and_b32 v{r+7}, v{VMASK}, v{r+1}")
            for j in range(3):
                for d in range(4):
                    I(f"v_mul_f32 v{r+12+4*j+d}, v{r+4+d}, v{r+8+j}")
            I(f"v_cvt_pk_bf16_f32 v{r+2}, v{r+12}, v{r+13}")
            I(f"v_cvt_pk_bf16_f32 v{r+3}, v{r+14}, v{r+15}")
            for k in range(4):
                I(f"v_cvt_pk_bf16_f32 v{r+24+k}, v{r+16+2*k}, v{r+17+2*k}")
        I(f"ds_write_b128 v{VSCRW}, v[{r}:{r+3}]")
        I(f"ds_write_b128 v{VSCRW}, v[{r+24}:{r+27}] offset:{PL1}")
        I("s_waitcnt lgkmcnt(2)")
        off_add()
    def ld(i):
        if c.x_noload: return
        I(f"buffer_load_dwordx4 v[{LD+4*i}:{LD+4*i+3}], v{AD+i}, s[4:7], {'0' if c.x_samehalf else 's%d' % sH} {'idxen' if c.addtid else 'offen'}")
    def perm(q, jj, k16=False):
        if c.x_noperm: return
        d = B + 2*q + jj if k16 else B + 4*q + jj
        I(f"v_perm_b32 v{d}, v{LD+4*(2*jj+1)+q//2}, v{LD+4*(2*jj)+q//2}, s{29 if q & 1 else 28}")
    def loads_partial(done):
        for i in range(7):
            I(f"s_cmp_le_u32 s{sL}, {4*i}")
            I(f"s_cbranch_scc1 {done}")
            ld(i)
    def perms_loads():
        part, done = lab("pp"), lab("pd")
        I("s_waitcnt vmcnt(0)")
        I(f"s_cmp_le_u32 s{sL}, 28")
        I(f"s_cbranch_scc1 {part}")
        for jj in range(4):
            for q in range(8): perm(q, jj)
            ld(2*jj); ld(2*jj+1)
        I(f"s_branch {done}")
        e.label(part)
        for jj in range(4):
            for q in range(8): perm(q, jj)
        loads_partial(done)
        e.label(done)
    def mfmas(first, k16=False):
        if c.x_nomfma: return
        for q in range(8):
            d = f"v[{ACC+4*q}:{ACC+4*q+3}]"
            if k16: I(f"v_mfma_f32_16x16x16_bf16 {d}, v[{A}:{A+1}], v[{B+2*q}:{B+2*q+1}], {'0' if first else d}")
            else: I(f"v_mfma_f32_16x16x32_bf16 {d}, v[{A}:{A+3}], v[{B+4*q}:{B+4*q+3}], {'0' if first else d}")
    def tr_read(hf):
        I(f"ds_read_b64_tr_b16 v[{A}:{A+1}], v{VTRA} offset:{512*hf}")
        I(f"ds_read_b64_tr_b16 v[{A+2}:{A+3}], v{VTRA} offset:{512*hf+256}")

    if c.stamps: I("s_mov_b32 s92, 16")
    setup_item("L2_g_done")
    prep_block()
    for i in range(8): ld(i)
    for first in (1, 0):
        e.label(f"L2_A{first}")
        tr_read(0)
        I(f"s_cmp_gt_u32 s{sR}, 32")
        I(f"s_cbranch_scc1 L2_AB{first}")
        I(f"s_mov_b32 s{sCF}, {first}")
        I(f"s_mov_b32 s{sCR}, s{sR}")
        I("s_branch L2_XN")
        e.label(f"L2_AB{first}")
        off_read(1)
        I(f"s_sub_u32 s{sL}, s{sR}, 32")
        I("s_waitcnt lgkmcnt(0)")
        off_add()
        perms_loads()
        mfmas(first)
        if first: I("s_branch L2_B")
    e.label("L2_B")
    tr_read(1)
    I(f"s_cmp_gt_u32 s{sR}, 64")
    I("s_cbranch_scc0 L2_BN")
    I(f"s_sub_u32 s{sR}, s{sR}, 64")
    I(f"s_add_u32 s{sA}, s{sA}, 1024")
    I(f"s_mov_b32 s{sL}, s{sR}")
    prep_block()
    perms_loads()
    I("s_waitcnt lgkmcnt(0)")
    mfmas(0)
    I("s_branch L2_A0")
    e.label("L2_BN")
    I(f"s_mov_b32 s{sCF}, 0")
    I(f"s_sub_u32 s{sCR}, s{sR}, 32")
    e.label("L2_XN")
    I(f"s_mov_b32 s{sCN}, s{sN}")
    I(f"s_mov_b32 s{sCH}, s{sH}")
    I(f"s_mov_b32 s{sNV}, 1")
    setup_item("L2_XN_none")
    I(f"s_mov_b32 s{sL}, s{sR}")
    prep_block()
    I("s_branch L2_XN_go")
    e.label("L2_XN_none")
    I(f"s_mov_b32 s{sNV}, 0")
    I(f"s_mov_b32 s{sL}, 0")
    e.label("L2_XN_go")
    I(f"s_cmp_le_u32 s{sCR}, 16")
    I("s_cbranch_scc1 L2_XN_k16")
    perms_loads()
    I("s_waitcnt lgkmcnt(0)")
    I(f"s_cmp_eq_u32 s{sCF}, 0")
    I("s_cbranch_scc1 L2_XN_acc")
    mfmas(1)
    I("s_branch L2_XN_epi")
    e.label("L2_XN_acc")
    mfmas(0)
    I("s_branch L2_XN_epi")
    e.label("L2_XN_k16")
    I("s_waitcnt vmcnt(0)")
    for jj in range(2):
        for q in range(8): perm(q, jj, True)
    I(f"s_cmp_le_u32 s{sL}, 28")
    I("s_cbranch_scc1 L2_XN_k16p")
    for i in range(8): ld(i)
    I("s_branch L2_XN_k16d")
    e.label("L2_XN_k16p")
    loads_partial("L2_XN_k16d")
    e.label("L2_XN_k16d")
    I("s_waitcnt lgkmcnt(0)")
    I(f"s_cmp_eq_u32 s{sCF}, 0")
    I("s_cbranch_scc1 L2_XN_k16acc")
    mfmas(1, True)
    I("s_branch L2_XN_epi")
    e.label("L2_XN_k16acc")
    mfmas(0, True)
    e.label("L2_XN_epi")
    I(f"s_lshl_b32 s42, s{sCH}, 5")
    I(f"v_add_u32 v{VT0}, s42, v{VWR}")
    for q in range(8):
        I(f"ds_read_b128 v[{B+4*q}:{B+4*q+3}], v{VT0} offset:{q*1024}")
    I(f"s_lshr_b32 s43, s{sCN}, 4")
    I(f"s_lshl_b32 s43, s43, 2")
    I(f"s_cmp_eq_u32 s{sCH}, 0")
    I("s_cbranch_scc1 L2_nowar")
    I(f"v_mov_b32 v{VT1}, s43")
    spin(e, "war", VT0, VT1, GDONE, 4, 45, 44)
    if c.split:
        I("s_cmp_eq_u32 s43, 16")
        I("s_cselect_b32 s43, 8, s43")
    I("s_add_u32 s43, s43, 16")
    e.label("L2_nowar")
    I(f"s_and_b32 s44, s{sCN}, 15")
    I("s_lshl_b32 s44, s44, 4")
    I(f"s_and_b32 s45, s{sCN}, 63")
    I(f"s_lshl_b32 s45, s45, 10")
    I(f"s_add_u32 s45, s45, {T}")
    I(f"v_xor_b32 v{VT0}, s44, v{VL16}")
    I(f"v_add_u32 v{VT0}, s45, v{VT0}")
    I(f"v_mov_b32 v{VT1}, s43")
    I("s_waitcnt lgkmcnt(0)")
    for q in range(8):
        I(f"v_mul_f32 v{B+4*q}, v{B+4*q}, v{ACC+4*q}")
    for d in range(1, 4):
        for q in range(8):
            I(f"v_fmac_f32 v{B+4*q}, v{B+4*q+d}, v{ACC+4*q+d}")
    for k in range(4):
        I(f"v_cvt_pk_bf16_f32 v{A+k}, v{B+8*k}, v{B+8*k+4}")
    I(f"ds_write_b128 v{VT0}, v[{A}:{A+3}]")
    if not c.nowait: I("s_waitcnt lgkmcnt(0)")
    I("s_mov_b64 exec, 1")
    I(f"ds_add_u32 v{VT1}, v{VONE} offset:{DONE}")
    I("s_mov_b64 exec, -1")
    if c.stamps:
        I("s_memrealtime s[90:91]")
        I("s_waitcnt lgkmcnt(0)")
        I("s_mov_b32 m0, s92")
        I(f"v_writelane_b32 v{STV}, s90, m0")
        I("s_add_u32 s92, s92, 1")
        I("s_min_u32 s92, s92, 23")
    I(f"s_cmp_lg_u32 s{sNV}, 0")
    I("s_cbranch_scc1 L2_A1")

def gather_loop_s(e, c, L):
    I = e.I
    RAW, T, NEXT, DONE, GDONE, OSC, PL1, BREADY, INFO = (L[k] for k in "RAW T NEXT DONE GDONE OSC PL1 BREADY INFO".split())
    VLANE, VINFO, VNEXT, VLOFF, VMASK, VOW, VOR, VSCRW, VTRA, VWR, VL16, VT0, VT1, VONE = (L[k] for k in
        "VLANE VINFO VNEXT VLOFF VMASK VOW VOR VSCRW VTRA VWR VL16 VT0 VT1 VONE".split())
    VTRB, VIDX = L["VJ"], L["VSEL"]
    ACC, LD, B, A, AD = 0, 32, 64, 96, 100
    sA, sR, sH, sN, sNV = 32, 33, 34, 35, 37
    sCN, sCH, sCR, sL = 38, 39, 41, 36
    uid = [0]
    def lab(p):
        uid[0] += 1
        return f"L3_{p}{uid[0]}"
    def fetch_issue():
        I("s_mov_b64 exec, 1")
        I(f"ds_add_rtn_u32 v{VNEXT}, v{VL16}, v{VONE} offset:{NEXT}")
        I("s_mov_b64 exec, -1")
    def setup_item(none_label):
        I(f"v_readfirstlane_b32 s42, v{VNEXT}")
        e.nop(1)
        I(f"s_cmp_ge_u32 s42, {2*NODES}")
        I(f"s_cbranch_scc1 {none_label}")
        I(f"s_cmp_ge_u32 s42, {NODES}")
        I(f"s_cselect_b32 s{sH}, 256, 0")
        I(f"s_cselect_b32 s43, {NODES}, 0")
        I(f"s_cmp_ge_u32 s42, {NODES+16}")
        I(f"s_cselect_b32 s43, {NODES-32}, s43")
        I(f"s_cmp_ge_u32 s42, {NODES+18}")
        I(f"s_cselect_b32 s43, {NODES+2}, s43")
        I(f"s_sub_u32 s{sN}, s42, s43")
        t = lab("bw")
        I(f"s_cmp_lt_u32 s{sN}, s48")
        I(f"s_cbranch_scc1 {t}")
        stamp(e, c, 29)
        I(f"v_mov_b32 v{VT0}, 0")
        spin(e, t, VT1, VT0, BREADY, 4, 45, 44, sleep=1)
        I(f"v_lshrrev_b32 v{VT0}, 2, v{VL16}")
        I(f"ds_read_b32 v{VINFO}, v{VT0} offset:{INFO}")
        I("s_movk_i32 s48, 64")
        I("s_waitcnt lgkmcnt(0)")
        stamp(e, c, 30)
        e.label(t)
        I(f"v_readlane_b32 s42, v{VINFO}, s{sN}")
        e.nop(1)
        I(f"s_lshr_b32 s{sR}, s42, 16")
        I("s_and_b32 s42, s42, 0xffff")
        I(f"s_lshl_b32 s{sA}, s42, 4")
    def off_read(hf):
        I(f"ds_read_b128 v[{AD}:{AD+3}], v{VOR} offset:{OSC+128*hf}")
        I(f"ds_read_b128 v[{AD+4}:{AD+7}], v{VOR} offset:{OSC+128*hf+16}")
    def off_add():
        for i in range(8):
            I(f"v_add_u32 v{AD+i}, v{AD+i}, v{VLOFF}")
    def prep_block():
        r = B
        I(f"v_add_u32 v{VT0}, s{sA}, v{VL16}")
        I(f"ds_read_b128 v[{r}:{r+3}], v{VT0} offset:{RAW}")
        l = lab("nf")
        I(f"s_cmp_gt_u32 s{sR}, 64")
        I(f"s_cbranch_scc1 {l}")
        fetch_issue()
        e.label(l)
        I(f"v_cmp_gt_u32 vcc, s{sR}, v{VLANE}")
        I("s_waitcnt lgkmcnt(0)")
        I(f"v_lshrrev_b32 v{r+11}, 16, v{r+3}")
        I(f"v_lshlrev_b32 v{r+11}, 9, v{r+11}")
        I(f"v_cndmask_b32 v{r+11}, 2.0, v{r+11}, vcc")
        I(f"ds_write_b32 v{VOW}, v{r+11} offset:{OSC}")
        off_read(0)
        I(f"v_cndmask_b32 v{r}, 0, v{r}, vcc")
        I(f"v_cndmask_b32 v{r+1}, 0, v{r+1}, vcc")
        I(f"v_lshlrev_b32 v{r+8}, 16, v{r+2}")
        I(f"v_and_b32 v{r+9}, v{VMASK}, v{r+2}")
        I(f"v_lshlrev_b32 v{r+10}, 16, v{r+3}")
        I(f"v_lshlrev_b32 v{r+4}, 16, v{r}")
        I(f"v_and_b32 v{r+5}, v{VMASK}, v{r}")
        I(f"v_lshlrev_b32 v{r+6}, 16, v{r+1}")
        I(f"v_and_b32 v{r+7}, v{VMASK}, v{r+1}")
        for j in range(3):
            for d in range(4):
                I(f"v_mul_f32 v{r+12+4*j+d}, v{r+4+d}, v{r+8+j}")
        I(f"v_cvt_pk_bf16_f32 v{r+2}, v{r+12}, v{r+13}")
        I(f"v_cvt_pk_bf16_f32 v{r+3}, v{r+14}, v{r+15}")
        for k in range(4):
            I(f"v_cvt_pk_bf16_f32 v{r+24+k}, v{r+16+2*k}, v{r+17+2*k}")
        I(f"ds_write_b128 v{VSCRW}, v[{r}:{r+3}]")
        I(f"ds_write_b128 v{VSCRW}, v[{r+24}:{r+27}] offset:{PL1}")
        I("s_waitcnt lgkmcnt(2)")
        off_add()
    def ld(i):
        if c.x_noload: return
        I(f"buffer_load_dwordx4 v[{LD+4*i}:{LD+4*i+3}], v{AD+i}, s[4:7], s{sH} offen")
    def moves(jj, k16=False):
        for p in range(4):
            d = B + (4 if k16 else 8) * p + 2 * jj
            a, b = LD + 8*jj + (p & 2), LD + 8*jj + 4 + (p & 2)
            I(f"v_pk_mov_b32 v[{d}:{d+1}], v[{a}:{a+1}], v[{b}:{b+1}] op_sel:[{p&1},{p&1}]")
    def loads_partial(done):
        for i in range(7):
            I(f"s_cmp_le_u32 s{sL}, {4*i}")
            I(f"s_cbranch_scc1 {done}")
            ld(i)
    def moves_loads():
        part, done = lab("pp"), lab("pd")
        I("s_waitcnt vmcnt(0)")
        I(f"s_cmp_le_u32 s{sL}, 28")
        I(f"s_cbranch_scc1 {part}")
        for jj in range(4):
            moves(jj)
            ld(2*jj); ld(2*jj+1)
        I(f"s_branch {done}")
        e.label(part)
        for jj in range(4): moves(jj)
        loads_partial(done)
        e.label(done)
    def macs(k16=False):
        for q in range(8):
            d = f"v[{ACC+4*q}:{ACC+4*q+3}]"
            p = q >> 1
            if k16: I(f"v_smfmac_f32_16x16x32_bf16 {d}, v[{A}:{A+1}], v[{B+4*p}:{B+4*p+3}], v{VIDX} cbsz:0 abid:{2*(q&1)}")
            else: I(f"v_smfmac_f32_16x16x64_bf16 {d}, v[{A}:{A+3}], v[{B+8*p}:{B+8*p+7}], v{VIDX} cbsz:0 abid:{q&1}")
    def tr32(hf):
        I(f"ds_read_b64_tr_b16 v[{A}:{A+1}], v{VTRB} offset:{512*hf}")
        I(f"ds_read_b64_tr_b16 v[{A+2}:{A+3}], v{VTRB} offset:{512*hf+16}")
    def tr16(hf):
        I(f"ds_read_b64_tr_b16 v[{A}:{A+1}], v{VTRA} offset:{512*hf}")
    def zero_acc():
        if c.zpk:
            for k in range(0, 32, 2): I(f"v_pk_mov_b32 v[{ACC+k}:{ACC+k+1}], 0, 0")
        else:
            for k in range(32): I(f"v_mov_b32 v{ACC+k}, 0")

    if c.stamps: I("s_mov_b32 s92, 16")
    I(f"v_lshrrev_b32 v{VT0}, 4, v{VLANE}")
    I(f"v_lshrrev_b32 v{VT1}, 5, v{VLANE}")
    I(f"v_mul_u32_u24 v{VT1}, 12, v{VT1}")
    I(f"v_add_u32 v{VT0}, v{VT0}, v{VT1}")
    I(f"v_lshl_add_u32 v{VTRB}, v{VT0}, 4, v{VTRA}")
    I(f"v_mov_b32 v{VIDX}, 0xdddd8888")
    setup_item("L2_g_done")
    prep_block()
    for i in range(8): ld(i)
    zero_acc()
    e.label("L3_A")
    I(f"s_mov_b32 s{sCR}, s{sR}")
    I(f"s_cmp_gt_u32 s{sR}, 32")
    I("s_cbranch_scc0 L3_AN")
    tr32(0)
    off_read(1)
    I(f"s_sub_u32 s{sL}, s{sR}, 32")
    I("s_waitcnt lgkmcnt(0)")
    off_add()
    moves_loads()
    macs()
    I(f"s_sub_u32 s{sCR}, s{sR}, 32")
    I(f"s_cmp_gt_u32 s{sR}, 64")
    I("s_cbranch_scc0 L3_BN")
    tr32(1)
    I(f"s_sub_u32 s{sR}, s{sR}, 64")
    I(f"s_add_u32 s{sA}, s{sA}, 1024")
    I(f"s_mov_b32 s{sL}, s{sR}")
    prep_block()
    moves_loads()
    I("s_waitcnt lgkmcnt(0)")
    macs()
    I("s_branch L3_A")
    for hf, nm in ((0, "AN"), (1, "BN")):
        e.label(f"L3_{nm}")
        I(f"s_cmp_le_u32 s{sCR}, 16")
        I(f"s_cbranch_scc1 L3_{nm}16")
        tr32(hf)
        I("s_branch L3_XN")
        e.label(f"L3_{nm}16")
        tr16(hf)
        if hf == 0: I("s_branch L3_XN")
    e.label("L3_XN")
    I(f"s_mov_b32 s{sCN}, s{sN}")
    I(f"s_mov_b32 s{sCH}, s{sH}")
    I(f"s_mov_b32 s{sNV}, 1")
    setup_item("L3_XN_none")
    I(f"s_mov_b32 s{sL}, s{sR}")
    prep_block()
    I("s_branch L3_XN_go")
    e.label("L3_XN_none")
    I(f"s_mov_b32 s{sNV}, 0")
    I(f"s_mov_b32 s{sL}, 0")
    e.label("L3_XN_go")
    I(f"s_cmp_le_u32 s{sCR}, 16")
    I("s_cbranch_scc1 L3_XN_k16")
    moves_loads()
    I("s_waitcnt lgkmcnt(0)")
    macs()
    I("s_branch L3_XN_epi")
    e.label("L3_XN_k16")
    I("s_waitcnt vmcnt(0)")
    moves(0, True); moves(1, True)
    I(f"s_cmp_le_u32 s{sL}, 28")
    I("s_cbranch_scc1 L3_XN_k16p")
    for i in range(8): ld(i)
    I("s_branch L3_XN_k16d")
    e.label("L3_XN_k16p")
    loads_partial("L3_XN_k16d")
    e.label("L3_XN_k16d")
    I("s_waitcnt lgkmcnt(0)")
    macs(True)
    e.label("L3_XN_epi")
    I(f"s_lshl_b32 s42, s{sCH}, 5")
    I(f"v_add_u32 v{VT0}, s42, v{VWR}")
    for q in range(8):
        I(f"ds_read_b128 v[{B+4*q}:{B+4*q+3}], v{VT0} offset:{q*1024}")
    I(f"s_lshr_b32 s43, s{sCN}, 4")
    I(f"s_lshl_b32 s43, s43, 2")
    I(f"s_cmp_eq_u32 s{sCH}, 0")
    I("s_cbranch_scc1 L3_nowar")
    I(f"v_mov_b32 v{VT1}, s43")
    spin(e, "war", VT0, VT1, GDONE, 4, 45, 44)
    I("s_add_u32 s43, s43, 16")
    e.label("L3_nowar")
    I(f"s_and_b32 s44, s{sCN}, 15")
    I("s_lshl_b32 s44, s44, 4")
    I(f"s_lshl_b32 s45, s{sCN}, 10")
    I(f"s_add_u32 s45, s45, {T}")
    I(f"v_xor_b32 v{VT0}, s44, v{VL16}")
    I(f"v_add_u32 v{VT0}, s45, v{VT0}")
    I(f"v_mov_b32 v{VT1}, s43")
    I("s_waitcnt lgkmcnt(0)")
    for q in range(8):
        I(f"v_mul_f32 v{B+4*q}, v{B+4*q}, v{ACC+4*q}")
    for d in range(1, 4):
        for q in range(8):
            I(f"v_fmac_f32 v{B+4*q}, v{B+4*q+d}, v{ACC+4*q+d}")
    for k in range(4):
        I(f"v_cvt_pk_bf16_f32 v{A+k}, v{B+8*k}, v{B+8*k+4}")
    I(f"ds_write_b128 v{VT0}, v[{A}:{A+3}]")
    I("s_mov_b64 exec, 1")
    I(f"ds_add_u32 v{VT1}, v{VONE} offset:{DONE}")
    I("s_mov_b64 exec, -1")
    zero_acc()
    if c.stamps:
        I("s_memrealtime s[90:91]")
        I("s_waitcnt lgkmcnt(0)")
        I("s_mov_b32 m0, s92")
        I(f"v_writelane_b32 v{STV}, s90, m0")
        I("s_add_u32 s92, s92, 1")
        I("s_min_u32 s92, s92, 23")
    I(f"s_cmp_lg_u32 s{sNV}, 0")
    I("s_cbranch_scc1 L3_A")

HEADER = """; equiformer tensor-product message passing, one persistent launch (one workgroup per CU):
"""

def gen_probe(e, c):
    kA, a0, a1, sA, oA, kB, b0, b1, sB, oB = c.probe.split(",")
    kernel_header(e, "eqprobe_kernel")
    I = e.I
    I("s_cmp_ge_u32 s2, 1")
    I("s_cbranch_scc1 LP_end")
    I("s_memrealtime s[20:21]")
    I("s_load_dwordx2 s[4:5], s[0:1], 88")
    I("s_waitcnt lgkmcnt(0)")
    srd(e, 8, 4, 32 << 20)
    I(f"v_min_u32 v1, {c.nwg-1}, v0")
    I("v_lshlrev_b32 v1, 11, v1")
    I("v_mov_b32 v10, 0"); I("v_mov_b32 v11, -1"); I("v_mov_b32 v12, 0")
    I("ds_write_b32 v10, v11 offset:0"); I("ds_write_b32 v10, v12 offset:4"); I("ds_write_b32 v10, v11 offset:8"); I("ds_write_b32 v10, v12 offset:12")
    I("s_waitcnt lgkmcnt(0)"); I("s_barrier")
    regs = []
    for (k, w0, w1, sl, off) in ((kA, a0, a1, sA, 0), (kB, b0, b1, sB, 8)):
        if k == "now":
            I(f"v_mov_b32 v{16+len(regs)}, s20"); regs.append(off); continue
        I(f"s_mov_b32 s12, {STAMPOFF}")
        for w in range(int(w0), int(w1)):
            I(f"buffer_load_dword v{16+len(regs)}, v1, s[8:11], s12 offen offset:{w*128 + int(sl)*4}")
            regs.append(off)
    I("s_waitcnt vmcnt(0)")
    for off, op in ((0, oA), (8, oB)):
        idx = [n for n, o in enumerate(regs) if o == off]
        for n in idx[1:]:
            I(f"v_{op}_u32 v{16+idx[0]}, v{16+idx[0]}, v{16+n}")
        I(f"ds_{op}_u32 v10, v{16+idx[0]} offset:{off + (0 if op == 'min' else 4)}")
    I("s_waitcnt lgkmcnt(0)"); I("s_barrier")
    I(f"ds_read_b32 v3, v10 offset:{0 if oA == 'min' else 4}")
    I(f"ds_read_b32 v4, v10 offset:{8 if oB == 'min' else 12}")
    I("s_waitcnt lgkmcnt(0)")
    I("v_sub_u32 v3, v3, v4")
    I("v_min_u32 v3, 0x2000, v3")
    I("v_readfirstlane_b32 s14, v3")
    I("s_memrealtime s[16:17]")
    I("s_mul_i32 s14, s14, 10")
    I("s_waitcnt lgkmcnt(0)")
    e.label("LP_spin")
    I("s_memrealtime s[18:19]")
    I("s_waitcnt lgkmcnt(0)")
    I("s_sub_u32 s18, s18, s16")
    I("s_cmp_lt_u32 s18, s14")
    I("s_cbranch_scc1 LP_spin")
    e.label("LP_end")
    I("s_endpgm")
    return "eqprobe_kernel", 64, 32

def generate(c):
    e = Emitter()
    e.raw('.amdgcn_target "amdgcn-amd-amdhsa--gfx950"')
    e.raw(".text")
    k = gen_main(e, c)
    head = HEADER + f"; @launch grid=({c.nwg},1,1) block=(1024,1,1) lds={c.lds}\n"
    tail = '.section .rodata,"a"\n.p2align 6\n' + kd(*k)
    if c.probe:
        kp = gen_probe(e, c)
        head = HEADER + f"; @launch kernel={KNAME} grid=({c.nwg},1,1) block=(1024,1,1) lds={c.lds}\n; @launch kernel=eqprobe_kernel grid=(1,1,1) block=(256,1,1) lds=64\n"
        tail += ".p2align 6\n" + kd(*kp)
    return head + e.text() + tail

if __name__ == "__main__":
    c = Cfg()
    out = sys.argv[1]
    for kv in sys.argv[2:]:
        k, v = kv.split("=", 1)
        old = getattr(c, k)
        setattr(c, k, type(old)(int(v)) if isinstance(old, (bool, int)) else v.replace("+", " "))
    open(out, "w").write(generate(c))
```

```python
import sys
from emit import Emitter

N, E = 12500, 800000
NODES, HN = 50, 25
NCH = 250
CSTRIDE = 70784
PAYOFF, TABOFF, KEYOFF = 0, 51200, 67584
KSTAGE = 51200
WSBYTES = NCH * CSTRIDE
KIN = 20
KNAME = "gather_scatter__tensor_product_equiv_equiformer__graph_kernel"
STAMPOFF = 24 << 20

class Cfg:
    nwg = 250
    st_flags = "sc1"
    ld_flags = "nt"
    rec_flags = "sc1"
    out_flags = "sc1"
    pfx_lines = 64
    pfx0_lines = 96
    stamps = False
    cap = 1888
    x_noperm = 0
    x_noexp = 0
    x_nomfma = 0
    x_noload = 0
    x_samehalf = 0
    x_nobload = 0
    codepf = 26
    tlbpf = 0
    codeearly = 0
    sleep = 12
    psleep = 2
    probe = ""
    addtid = 0
    split = 0
    static1 = 1
    mallpf = 0
    mallpos = 0
    nop2 = 0
    pdelay = 0
    ppipe = 0
    pgap = 8
    wrlds = 0
    wideout = 1
    out_early = None
    paypos = 2
    pfwait = 0
    smf = 0
    zpk = 1
    splitw = 0
    cpfwg = 32
    wlate = 0
    coal = 1
    pf1_tile = -1
    pf1_lines = 256
    prio_g = 0
    prio_m = 0
    ld2_flags = None
    nowait = 1
    fastlast = 1
    pfx2_lines = 0
    pfx2_pos = 0
    oobtail = 1
    bearly = 1
    tidw3 = "0x00800000"

def srd(e, d, b, nbytes, w1=None, w3="0x20000"):
    e.I(f"s_mov_b32 s{d}, s{b}")
    if w1: e.I(f"s_or_b32 s{d+1}, s{b+1}, {w1}")
    else: e.I(f"s_mov_b32 s{d+1}, s{b+1}")
    e.I(f"s_mov_b32 s{d+2}, {nbytes}")
    e.I(f"s_mov_b32 s{d+3}, {w3}")

def scan64(e, v):
    for sh in (1, 2, 4, 8):
        e.I(f"v_add_u32_dpp v{v}, v{v}, v{v} row_shr:{sh} row_mask:0xf bank_mask:0xf")
    e.I(f"v_add_u32_dpp v{v}, v{v}, v{v} row_bcast:15 row_mask:0xa bank_mask:0xf")
    e.I(f"v_add_u32_dpp v{v}, v{v}, v{v} row_bcast:31 row_mask:0xc bank_mask:0xf")

def prefetch_x(e, nlines, vt, vtid, nthreads, slice_s, half, srdx, first=0, lds=False):
    if nlines <= 0: return 0
    e.I(f"s_mul_i32 s46, s{slice_s}, 782")
    if first: e.I(f"s_add_u32 s46, s46, {first}")
    e.I(f"s_mov_b32 s47, {nlines}")
    it = (nlines + nthreads - 1) // nthreads
    for k in range(it):
        e.I(f"v_add_u32 v{vt}, {k*nthreads}, v{vtid}")
        e.I(f"v_cmp_gt_u32 vcc, s47, v{vt}")
        e.I(f"v_add_u32 v{vt}, s46, v{vt}")
        e.I(f"v_and_b32 v{vt+1}, 1, v{vt}")
        e.I(f"v_lshrrev_b32 v{vt}, 1, v{vt}")
        e.I(f"v_lshlrev_b32 v{vt}, 9, v{vt}")
        e.I(f"v_lshl_add_u32 v{vt}, v{vt+1}, 7, v{vt}")
        e.I(f"v_cndmask_b32 v{vt}, 2.0, v{vt}, vcc")
        if lds:
            if half: e.I(f"v_add_u32 v{vt}, 256, v{vt}")
            e.I(f"buffer_load_dword v{vt}, s[{srdx}:{srdx+3}], 0 offen lds")
        else:
            e.I(f"buffer_load_dword v{vt+2}, v{vt}, s[{srdx}:{srdx+3}], 0 offen offset:{half*256}")
    return it

STV, TIDV = 127, 126
def stamp(e, c, slot, ins="s_memrealtime"):
    if not c.stamps: return
    e.I(f"{ins} s[90:91]")
    e.I("s_waitcnt lgkmcnt(0)")
    e.I(f"v_writelane_b32 v{STV}, s90, {slot}")

def stamp_store(e, c, vtmp):
    if not c.stamps: return
    e.I(f"v_lshrrev_b32 v{vtmp}, 6, v{TIDV}")
    e.I(f"s_lshl_b32 s90, s2, 4")
    e.I(f"v_add_u32 v{vtmp}, s90, v{vtmp}")
    e.I(f"v_lshlrev_b32 v{vtmp}, 7, v{vtmp}")
    e.I(f"v_and_b32 v{vtmp+1}, 63, v{TIDV}")
    e.I(f"v_lshl_add_u32 v{vtmp}, v{vtmp+1}, 2, v{vtmp}")
    e.I(f"v_cmp_gt_u32 vcc, 32, v{vtmp+1}")
    e.I(f"v_cndmask_b32 v{vtmp}, 2.0, v{vtmp}, vcc")
    e.I(f"s_mov_b32 s90, {STAMPOFF}")
    e.I(f"buffer_store_dword v{STV}, v{vtmp}, s[8:11], s90 offen")

def kernel_header(e, name):
    e.raw(f".globl {name}")
    e.raw(".p2align 8")
    e.raw(f".type {name},@function")
    e.raw(f"{name}:")
    e.hist = []

def kd(name, nv, ns):
    return f""".amdhsa_kernel {name}
  .amdhsa_next_free_vgpr {nv}
  .amdhsa_next_free_sgpr {ns}
  .amdhsa_accum_offset {(nv+3)//4*4}
  .amdhsa_group_segment_fixed_size 0
  .amdhsa_kernarg_size 96
  .amdhsa_user_sgpr_count 2
  .amdhsa_user_sgpr_kernarg_segment_ptr 1
  .amdhsa_system_sgpr_workgroup_id_x 1
  .amdhsa_float_denorm_mode_32 3
.end_amdhsa_kernel
"""

def path_of(jp, blk):
    if blk == 0: return (0, 0, 1) if jp == 0 else (2, jp, 1)
    k = blk - 1
    if jp == 0: return (3, 1 + k, 1)
    j = jp - 1
    if j == k: return (1, 0, 1)
    i = 3 - j - k
    return (4, 1 + i, 1 if k == (j + 1) % 3 else -1)

class Lay: pass

def spin(e, tag, vdst, vaddr, off, need, scnt, sval, sleep=None, bound="0x400000"):
    I = e.I
    I(f"s_mov_b32 s{scnt}, 0")
    e.label(f"L_sp{tag}")
    I(f"ds_read_b32 v{vdst}, v{vaddr} offset:{off}")
    I("s_waitcnt lgkmcnt(0)")
    I(f"v_readfirstlane_b32 s{sval}, v{vdst}")
    I(f"s_add_u32 s{scnt}, s{scnt}, 1")
    I(f"s_cmp_ge_u32 s{sval}, {need}")
    I(f"s_cbranch_scc1 L_sp{tag}_ok")
    if sleep: I(f"s_sleep {sleep}")
    I(f"s_cmp_lt_u32 s{scnt}, {bound}")
    I(f"s_cbranch_scc1 L_sp{tag}")
    e.label(f"L_sp{tag}_ok")

def tag_bad(e, dst, r, tmp, odd):
    I = e.I
    I(f"v_xor_b32 v{tmp}, s87, v{r}")
    I(f"v_xor_b32 v{dst}, s86, v{r+1}")
    I(f"v_lshrrev_b32 v{tmp}, 24, v{tmp}")
    I(f"v_or_b32 v{dst}, v{dst}, v{tmp}")
    I(f"v_xor_b32 v{tmp}, s3, v{r+3}")
    I(f"v_lshrrev_b32 v{tmp}, 12, v{tmp}")
    I(f"v_cndmask_b32 v{dst}, v{dst}, v{tmp}, {odd}")

def gen_main(e, c):
    L = Lay()
    CAP = c.cap
    NWG = c.nwg
    BOFF = CAP + 64
    HIST, HIST2, CUR2, CNT = 0, 256, 512, 768
    NEXT, DONE, GDONE, BSYNC, BREADY, TOTB = CNT, CNT + 16, CNT + 64, CNT + 96, CNT + 100, CNT + 104
    OUTW, OUTR, BST = CNT + 112, CNT + 128, CNT + 108
    HISTB, HIST2B, CUR2B, INFO, NONCE = 1024, 1280, 1536, 1792, 2048
    RAW = 2176
    T = (RAW + 2 * BOFF * 16 + 255) // 256 * 256
    WRAD = T + NODES * 1024
    SCR = WRAD + 16384
    H1 = WRAD
    TI = SCR
    CEB = RAW + BOFF * 16
    SSTR, PL1, OSC = 2368, (1040 if c.smf else 1056), 2080
    lds = max(SCR + 12 * SSTR, T + 64 * 1024)
    assert lds <= 163840 and 2 * BOFF >= 3200 + 64, lds
    c.lds = lds
    kernel_header(e, KNAME)
    I = e.I
    wsbytes = (32 << 20) if c.stamps else WSBYTES
    sf, rf, lf = c.st_flags, c.rec_flags, c.ld_flags
    ODD = "s[26:27]"
    I(f"s_cmp_ge_u32 s2, {NWG}")
    I("s_cbranch_scc1 L_end")
    if c.stamps:
        I(f"v_mov_b32 v{STV}, 0")
        I(f"v_mov_b32 v{TIDV}, v0")
    stamp(e, c, 0)
    stamp(e, c, 26, "s_memtime")
    I("s_load_dwordx8 s[32:39], s[0:1], 0")
    I("s_load_dwordx8 s[40:47], s[0:1], 32")
    if NWG > NCH:
        I(f"s_cmp_lt_u32 s2, {NCH}")
        I("s_cselect_b32 s51, 800, 0")
    else:
        I("s_movk_i32 s51, 800")
    if c.coal:
        I("s_mul_i32 s48, s2, 1600")
        I("v_add_u32 v3, s48, v0")
        I("v_cmp_gt_u32 vcc, s51, v0")
        I("v_lshlrev_b32 v28, 3, v3")
        I("v_lshlrev_b32 v30, 4, v3")
        I("v_mul_u32_u24 v3, 12, v3")
        I("v_add_u32 v29, 6400, v28")
        if c.paypos:
            I("v_add_u32 v31, 12800, v30")
            I("v_add_u32 v27, 9600, v3")
        I("s_and_saveexec_b64 s[26:27], vcc")
        I("s_cbranch_execz L1_noload")
        I("s_waitcnt lgkmcnt(0)")
        I(f"global_load_dwordx2 v[4:5], v28, s[40:41] {lf}")
        I(f"global_load_dwordx2 v[6:7], v29, s[40:41] {lf}")
        if not c.paypos:
            I("v_add_u32 v31, 12800, v30")
            I("v_add_u32 v27, 9600, v3")
        lds_ = [f"global_load_dwordx2 v[8:9], v28, s[38:39] {lf}", f"global_load_dwordx2 v[10:11], v29, s[38:39] {lf}",
                f"global_load_dwordx4 v[12:15], v30, s[36:37] {lf}", f"global_load_dwordx4 v[16:19], v31, s[36:37] {lf}",
                f"global_load_dwordx3 v[20:22], v3, s[34:35] {lf}", f"global_load_dwordx3 v[24:26], v27, s[34:35] {lf}"]
        def pay_loads():
            for k in ((0, 2, 4, 1, 3, 5) if c.splitw == 2 else range(6)): I(lds_[k])
        if c.paypos == 0: pay_loads()
    else:
        I("s_mul_i32 s48, s2, 800")
        I("v_add_u32 v3, s48, v0")
        I("v_cmp_gt_u32 vcc, s51, v0")
        I("v_lshlrev_b32 v26, 4, v3")
        I("v_lshlrev_b32 v27, 5, v3")
        I("v_mul_u32_u24 v3, 24, v3")
        I("s_and_saveexec_b64 s[26:27], vcc")
        I("s_cbranch_execz L1_noload")
        I("s_waitcnt lgkmcnt(0)")
        l2 = lf if c.ld2_flags is None else c.ld2_flags
        I(f"global_load_dwordx4 v[4:7], v26, s[40:41] {l2}")
        I(f"global_load_dwordx4 v[8:11], v26, s[38:39] {l2}")
        I(f"global_load_dwordx4 v[12:15], v27, s[36:37] {lf}")
        I(f"global_load_dwordx4 v[16:19], v27, s[36:37] offset:16 {lf}")
        I(f"global_load_dwordx4 v[20:23], v3, s[34:35] {lf}")
        I(f"global_load_dwordx2 v[24:25], v3, s[34:35] offset:16 {lf}")
    e.label("L1_noload")
    I("s_mov_b64 exec, -1")
    if c.paypos == 3:
        I(f"v_lshlrev_b32 v40, 1, v0")
        I(f"v_and_b32 v40, -4, v40")
        I(f"v_add_u32 v40, {H1}, v40")
        I("v_mov_b32 v41, 0")
        I("ds_write_b32 v40, v41")
        I("s_waitcnt lgkmcnt(0)")
        I("s_barrier")
        I("s_and_saveexec_b64 s[26:27], vcc")
        I("s_cbranch_execz L1_noload2")
        pay_loads()
        e.label("L1_noload2")
        I("s_mov_b64 exec, -1")
    if c.codepf and c.codeearly:
        I("s_getpc_b64 s[52:53]")
        I(f"s_mov_b32 s54, {c.codepf*1024}")
        I("s_mov_b32 s55, 0x20000")
        I("v_subrev_u32 v72, 768, v0")
        I("v_lshlrev_b32 v72, 7, v72")
        I("s_cmp_lg_u64 vcc, -1")
        I("s_cbranch_scc0 L1_nocpf")
        I("buffer_load_dword v73, v72, s[52:55], 0 offen")
        e.label("L1_nocpf")
    I("s_load_dwordx4 s[80:83], s[0:1], 72")
    I("s_load_dwordx2 s[84:85], s[0:1], 88")
    I("v_lshlrev_b32 v1, 4, v0")
    I("v_lshlrev_b32 v2, 5, v0")
    I("v_readfirstlane_b32 s21, v0")
    I("s_lshr_b32 s21, s21, 6")
    I("s_waitcnt lgkmcnt(0)")
    if c.addtid:
        srd(e, 4, 32, N * 512, w1=f"{16 << 16}", w3=c.tidw3)
    else:
        srd(e, 4, 32, N * 512)
    srd(e, 8, 84, wsbytes)
    srd(e, 12, 80, N * 512)
    srd(e, 16, 42, 2560)
    srd(e, 68, 44, 16384)
    srd(e, 72, 46, 24576)
    srd(e, 76, 82, 256)
    I("s_and_b32 s20, s2, 7")
    I("s_lshr_b32 s31, s2, 3")
    if NWG == 250:
        I("s_min_u32 s22, s20, 2")
        I("s_mul_i32 s20, s20, 31")
        I("s_add_u32 s20, s20, s22")
    else:
        I("s_lshl_b32 s20, s20, 5")
    I("s_add_u32 s20, s20, s31")
    I("s_mov_b32 s22, 0")
    I(f"s_movk_i32 s23, {NCH}")
    I("s_mov_b32 s24, 1")
    I("s_mov_b32 s26, 0xaaaaaaaa")
    I("s_mov_b32 s27, 0xaaaaaaaa")
    I("s_mov_b32 s28, 0x05040100")
    I("s_mov_b32 s29, 0x07060302")
    I("s_mov_b32 s30, 0xffff0000")
    I(f"s_mul_i32 s51, s2, {CSTRIDE}")
    I("s_cmp_ge_u32 s21, 13")
    I("s_cbranch_scc1 L1_aux")
    if c.paypos == 1:
        I("s_mov_b64 exec, vcc")
        pay_loads()
        I("s_mov_b64 exec, -1")
    I(f"s_mov_b32 s46, {H1}")
    if c.paypos != 3:
        I("v_lshl_add_u32 v40, v0, 2, s46")
        I("v_mov_b32 v41, 0")
    I("v_mov_b32 v42, 1")
    I(f"s_movk_i32 s49, {RAW}")
    I("s_mov_b32 s50, 0x05040302")
    I(f"s_mov_b32 s45, {(TI + 8 - 8*H1) & 0xffffffff}")
    if NWG == 250:
        I("s_mov_b32 s48, -25")
        I("s_movk_i32 s47, 249")
    else:
        I("s_movk_i32 s47, 6249")
        I("s_movk_i32 s48, -6250")
        I("s_mov_b32 s44, 1600210")
        I("v_mov_b32 v43, 65532")
    if c.paypos != 3:
        I("s_cmp_ge_u32 s21, 8")
        I("s_cbranch_scc1 L1_nz")
        I("ds_write_b32 v40, v41")
        I("s_waitcnt lgkmcnt(0)")
        e.label("L1_nz")
        I("s_barrier")
    I("s_and_b64 exec, exec, vcc")
    if c.paypos == 2: pay_loads()
    I(f"s_waitcnt vmcnt({6 if c.coal else 5})")
    stamp(e, c, 1)
    R4 = range(4)
    if NWG == 250:
        for i in R4: I(f"v_mul_u32_u24 v{44+i}, 0x147b, v{4+i}")
        for i in R4: I(f"v_lshrrev_b32 v{44+i}, 17, v{44+i}")
        for i in R4: I(f"v_cmp_lt_u32 s[{32+2*i}:{33+2*i}], s47, v{44+i}")
        for i in R4: I(f"v_cndmask_b32 v{36+i}, 0, 1, s[{32+2*i}:{33+2*i}]")
        for i in R4:
            I(f"v_sub_u32 v{48+i}, v{44+i}, v{36+i}")
            I(f"v_mad_u32_u24 v{44+i}, v{36+i}, 6, v{44+i}")
        for i in R4:
            I(f"v_mad_i32_i24 v{4+i}, v{48+i}, s48, v{4+i}")
            I(f"v_lshl_add_u32 v{44+i}, v{44+i}, 2, s46")
    else:
        for i in R4: I(f"v_cmp_lt_u32 s[{32+2*i}:{33+2*i}], s47, v{4+i}")
        for i in R4: I(f"v_cndmask_b32 v{36+i}, 0, 1, s[{32+2*i}:{33+2*i}]")
        for i in R4: I(f"v_mad_i32_i24 v{4+i}, v{36+i}, s48, v{4+i}")
        for i in R4: I(f"v_mul_u32_u24 v{44+i}, 0xa7c, v{4+i}")
        for i in R4: I(f"v_lshrrev_b32 v{44+i}, 16, v{44+i}")
        for i in R4: I(f"v_mad_u32_u24 v{48+i}, v{44+i}, s44, v43")
        for i in R4:
            I(f"v_lshrrev_b32 v{48+i}, 16, v{48+i}")
            I(f"v_mad_u32_u24 v{4+i}, v{36+i}, 25, v{4+i}")
        for i in R4:
            I(f"v_sub_u32 v{4+i}, v{4+i}, v{48+i}")
            I(f"v_lshl_add_u32 v{44+i}, v{36+i}, 8, v{44+i}")
        for i in R4: I(f"v_lshl_add_u32 v{44+i}, v{44+i}, 2, s46")
    for i in R4: I(f"ds_add_rtn_u32 v{36+i}, v{44+i}, v42")
    for i in R4: I(f"v_lshl_add_u32 v{48+i}, v{44+i}, 3, s45")
    for i in R4: I(f"v_lshlrev_b32 v{4+i}, 2, v{4+i}")
    I("s_waitcnt lgkmcnt(0)")
    I("s_barrier")
    for i in R4: I(f"v_min_u32 v{28+i}, {KIN}, v{36+i}")
    for i in R4: I(f"v_add_u32 v{48+i}, v{48+i}, v{28+i}")
    I("s_cmp_eq_u32 s21, 0")
    I("s_cbranch_scc1 L1_scan")
    for i in R4: I(f"ds_write_b8 v{48+i}, v{4+i}")
    I("s_branch L1_noscan")
    e.label("L1_scan")
    I("v_add_u32 v60, s46, v2")
    I("ds_read_b128 v[52:55], v60")
    I("ds_read_b128 v[56:59], v60 offset:16")
    I("s_waitcnt lgkmcnt(0)")
    I("v_mov_b32 v64, 0")
    I("v_mov_b32 v65, v52")
    for k in range(2, 8):
        I(f"v_add_u32 v{64+k}, v{63+k}, v{51+k}")
    I("v_add_u32 v61, v71, v59")
    I("v_max3_u32 v63, v52, v53, v54")
    I("v_max3_u32 v63, v63, v55, v56")
    I("v_max3_u32 v63, v63, v57, v58")
    I("v_max_u32 v63, v63, v59")
    I(f"v_cmp_lt_u32 s[42:43], {KIN}, v63")
    I("v_mov_b32 v62, v61")
    scan64(e, 62)
    I("v_sub_u32 v62, v62, v61")
    for k in range(8):
        I(f"v_add_u32 v{64+k}, v{64+k}, v62")
    I("ds_write_b128 v60, v[64:67] offset:2048")
    I("ds_write_b128 v60, v[68:71] offset:2064")
    I("s_cmp_lg_u64 s[42:43], 0")
    I("s_cselect_b32 s42, 1, 0")
    I("v_mov_b32 v63, s42")
    I(f"ds_write_b32 v41, v63 offset:{NONCE+8}")
    for i in R4: I(f"ds_write_b8 v{48+i}, v{4+i}")
    I("s_waitcnt lgkmcnt(4)")
    e.label("L1_noscan")
    I("s_barrier")
    stamp(e, c, 8)
    for i in R4: I(f"ds_read_b32 v{44+i}, v{44+i} offset:2048")
    I(f"ds_read_b32 v28, v41 offset:{NONCE+8}")
    I("s_waitcnt lgkmcnt(0)")
    I("v_readfirstlane_b32 s42, v28")
    for i in R4:
        I(f"v_add_u32 v{36+i}, v{36+i}, v{44+i}")
        I(f"v_lshl_add_u32 v{44+i}, v{36+i}, 4, s49")
    I("s_cmp_eq_u32 s42, 0")
    I("s_cbranch_scc1 L1_nokeys")
    for i in R4:
        I(f"ds_write_b8 v{36+i}, v{4+i} offset:{RAW+KSTAGE}")
    e.label("L1_nokeys")
    if not c.splitw:
        r3 = 24 if c.coal else 23
        if c.stamps: I("s_waitcnt vmcnt(0)")
        stamp(e, c, 31)
        I("s_waitcnt vmcnt(1)")
        I("v_mov_b32 v28, v20")
        I("v_perm_b32 v29, v8, v21, s28")
        I("ds_write2_b64 v44, v[12:13], v[28:29] offset0:0 offset1:1")
        I("v_alignbit_b32 v30, v22, v21, 16")
        I("v_perm_b32 v31, v9, v22, s50")
        I("ds_write2_b64 v45, v[14:15], v[30:31] offset0:0 offset1:1")
        I("s_waitcnt vmcnt(0)")
        stamp(e, c, 2)
        I(f"v_mov_b32 v32, v{r3}")
        I(f"v_perm_b32 v33, v10, v{r3+1}, s28")
        I("ds_write2_b64 v46, v[16:17], v[32:33] offset0:0 offset1:1")
        I(f"v_alignbit_b32 v34, v{r3+2}, v{r3+1}, 16")
        I(f"v_perm_b32 v35, v11, v{r3+2}, s50")
        I("ds_write2_b64 v47, v[18:19], v[34:35] offset0:0 offset1:1")
    elif c.splitw == 2:
        I("s_waitcnt vmcnt(3)")
        I("v_mov_b32 v28, v12"); I("v_mov_b32 v29, v13"); I("v_mov_b32 v30, v20")
        I("v_perm_b32 v31, v8, v21, s28")
        I("ds_write_b128 v44, v[28:31]")
        I("v_mov_b32 v12, v14"); I("v_mov_b32 v13, v15")
        I("v_alignbit_b32 v14, v22, v21, 16")
        I("v_perm_b32 v15, v9, v22, s50")
        I("ds_write_b128 v45, v[12:15]")
        I("s_waitcnt vmcnt(0)")
        stamp(e, c, 2)
        I("v_mov_b32 v32, v16"); I("v_mov_b32 v33, v17"); I("v_mov_b32 v34, v24")
        I("v_perm_b32 v35, v10, v25, s28")
        I("ds_write_b128 v46, v[32:35]")
        I("v_mov_b32 v16, v18"); I("v_mov_b32 v17, v19")
        I("v_alignbit_b32 v18, v26, v25, 16")
        I("v_perm_b32 v19, v11, v26, s50")
        I("ds_write_b128 v47, v[16:19]")
    else:
        I("s_waitcnt vmcnt(2)")
        for i in R4:
            I(f"ds_write_b64 v{44+i}, v[{12+2*i}:{13+2*i}]")
        I("s_waitcnt vmcnt(1)")
        I("v_mov_b32 v28, v20")
        I("v_perm_b32 v29, v8, v21, s28")
        I("ds_write_b64 v44, v[28:29] offset:8")
        I("v_alignbit_b32 v30, v22, v21, 16")
        I("v_perm_b32 v31, v9, v22, s50")
        I("ds_write_b64 v45, v[30:31] offset:8")
        I("s_waitcnt vmcnt(0)")
        stamp(e, c, 2)
        r3 = 24 if c.coal else 23
        I(f"v_mov_b32 v32, v{r3}")
        I(f"v_perm_b32 v33, v10, v{r3+1}, s28")
        I("ds_write_b64 v46, v[32:33] offset:8")
        I(f"v_alignbit_b32 v34, v{r3+2}, v{r3+1}, 16")
        I(f"v_perm_b32 v35, v11, v{r3+2}, s50")
        I("ds_write_b64 v47, v[34:35] offset:8")
    I("s_mov_b64 exec, -1")
    I("s_waitcnt lgkmcnt(0)")
    I("s_branch L1_copy")
    e.label("L1_aux")
    I("v_subrev_u32 v64, 832, v0")
    I("v_lshlrev_b32 v65, 4, v64")
    def mall_touch():
        if c.mallpf == 1:
            I("s_mul_i32 s46, s2, 50")
            I("v_lshrrev_b32 v60, 1, v64")
            I("v_cmp_gt_u32 vcc, 50, v60")
            I("v_add_u32 v60, s46, v60")
            I("v_lshlrev_b32 v60, 9, v60")
            I("v_and_b32 v61, 1, v64")
            I("v_lshl_add_u32 v60, v61, 7, v60")
            I("v_cndmask_b32 v60, 2.0, v60, vcc")
            I("buffer_load_dword v62, v60, s[4:7], 0 offen offset:256")
        elif c.mallpf == 2:
            I("s_mul_i32 s46, s2, 25600")
            I("v_lshlrev_b32 v60, 7, v64")
            I("buffer_load_dword v62, v60, s[4:7], s46 offen")
    prefetch_x(e, c.pfx0_lines, 60, 64, 192, 31, 0, 4)
    if c.mallpos == 0: mall_touch()
    if c.tlbpf:
        I("v_and_b32 v74, 63, v0")
        I(f"s_mov_b32 s42, {WSBYTES // 64 // 128 * 128}")
        I("v_mul_u32_u24 v75, s42, v74")
        I(f"s_mov_b32 s42, {N * 512 // 64 // 128 * 128}")
        I("v_mul_u32_u24 v74, s42, v74")
        I("s_cmp_lg_u32 s21, 14")
        I("s_cbranch_scc1 L1_notlb")
        if c.tlbpf & 1: I("buffer_load_dword v76, v75, s[8:11], 0 offen")
        if c.tlbpf & 2: I("buffer_load_dword v77, v74, s[4:7], 0 offen")
        if c.tlbpf & 4: I("buffer_load_dword v78, v74, s[12:15], 0 offen")
        e.label("L1_notlb")
    if c.codepf and not c.codeearly:
        I(f"s_cmp_ge_u32 s2, {c.cpfwg}")
        I("s_cbranch_scc1 L1_nocpf")
        I("s_getpc_b64 s[40:41]")
        e.label("L_cpf")
        I("s_mov_b32 s42, L_codeend-L_cpf")
        I("s_mov_b32 s43, 0x20000")
        I("v_lshlrev_b32 v72, 7, v64")
        I("buffer_load_dword v73, v72, s[40:43], 0 offen")
        e.label("L1_nocpf")
    I("s_cmp_lg_u32 s21, 15")
    I("s_cbranch_scc1 L1_notag")
    I("s_cmp_lg_u32 s2, 0")
    I("s_cbranch_scc1 L1_notag")
    I("s_memrealtime s[44:45]")
    I("s_waitcnt lgkmcnt(0)")
    I("s_and_b32 s45, s45, 0x7f")
    I("s_or_b32 s45, s45, 0x80")
    I("s_lshl_b32 s45, s45, 24")
    I("v_mov_b32 v68, s44")
    I("v_mov_b32 v69, s45")
    I("s_mov_b64 exec, 1")
    I("buffer_store_dwordx2 v[68:69], off, s[76:79], 0 sc1")
    I("s_mov_b64 exec, -1")
    e.label("L1_notag")
    I("s_cmp_lg_u32 s21, 13")
    I("s_cbranch_scc1 L1_nozero")
    for k in range(4): I(f"v_mov_b32 v{4+k}, 0")
    I("ds_write_b128 v65, v[4:7]")
    I("ds_write_b128 v65, v[4:7] offset:1024")
    e.label("L1_nozero")
    if c.paypos != 3: I("s_barrier")
    I("s_barrier"); I("s_barrier")
    I("s_cmp_lg_u32 s21, 15")
    I("s_cbranch_scc1 L1_notag2")
    I("s_mov_b32 s44, 0")
    e.label("L1_tagpoll")
    I("buffer_load_dwordx2 v[68:69], off, s[76:79], 0 sc1")
    I("s_add_u32 s44, s44, 1")
    I("s_waitcnt vmcnt(0)")
    I("v_readfirstlane_b32 s45, v69")
    e.nop(1)
    I("s_cmp_lg_u32 s45, 0")
    I("s_cbranch_scc1 L1_tagok")
    I("s_cmp_lt_u32 s44, 0x100000")
    I("s_cbranch_scc1 L1_tagpoll")
    e.label("L1_tagok")
    I("v_mov_b32 v70, 0")
    I("s_mov_b64 exec, 1")
    I(f"ds_write_b64 v70, v[68:69] offset:{NONCE}")
    I("s_mov_b64 exec, -1")
    e.label("L1_notag2")
    def w_loads():
        for k in range(8):
            I(f"s_movk_i32 s46, {k*3072}")
            I(f"buffer_load_dwordx4 v[{28+4*k}:{31+4*k}], v65, s[72:75], s46 offen")
        for k in range(6):
            I(f"s_movk_i32 s46, {k*3072}")
            I(f"buffer_load_dwordx4 v[{72+4*k}:{75+4*k}], v65, s[68:71], s46 offen")
    if not c.wlate: w_loads()
    if c.wrlds: I("buffer_load_dwordx4 v[68:71], v65, s[16:19], 0 offen")
    if c.mallpos == 1: mall_touch()
    if c.pfwait: I("s_waitcnt vmcnt(0)")
    prefetch_x(e, c.pfx_lines, 60, 64, 192, 31, 0, 4, c.pfx0_lines)
    I("s_waitcnt lgkmcnt(0)")
    e.flush()
    e.label("L1_copy")
    I("s_barrier")
    stamp(e, c, 3)
    I(f"v_mov_b32 v25, {H1+2048+1024}")
    I("ds_read_b32 v99, v25")
    I(f"ds_read_b128 v[8:11], v1 offset:{RAW}")
    I(f"ds_read_b128 v[12:15], v1 offset:{RAW+16384}")
    I("v_mov_b32 v25, 0")
    I(f"ds_read_b96 v[96:98], v25 offset:{NONCE}")
    I(f"v_add_u32 v25, {TI}, v1")
    I(f"ds_read_b128 v[16:19], v1 offset:{RAW+32768}")
    I(f"ds_read_b128 v[20:23], v1 offset:{RAW+49152}")
    I("ds_read_b128 v[100:103], v25")
    I("v_lshrrev_b32 v25, 1, v0")
    I("v_lshlrev_b32 v25, 2, v25")
    I(f"v_add_u32 v25, {H1}, v25")
    I("ds_read2st64_b32 v[104:105], v25 offset0:0 offset1:8")
    I("ds_read_b32 v106, v25 offset:1024")
    I("v_add_u32 v2, 16384, v1")
    I("v_add_u32 v25, 1024, v0")
    I("s_waitcnt lgkmcnt(8)")
    I("v_add_u32 v99, 7, v99")
    I("v_and_b32 v99, -8, v99")
    I("v_cmp_lt_u32 s[52:53], v0, v99")
    I("v_cmp_lt_u32 s[54:55], v25, v99")
    I("v_readfirstlane_b32 s88, v99")
    I("v_add_u32 v3, 32768, v1")
    I("v_add_u32 v24, 49152, v1")
    I("s_mov_b64 exec, s[52:53]")
    I("s_waitcnt lgkmcnt(7)")
    I(f"buffer_store_dwordx4 v[8:11], v1, s[8:11], s51 offen {sf}")
    I("s_mov_b64 exec, s[54:55]")
    I("s_cbranch_execz L1_nop1")
    I("s_waitcnt lgkmcnt(6)")
    I(f"buffer_store_dwordx4 v[12:15], v2, s[8:11], s51 offen {sf}")
    e.label("L1_nop1")
    I("s_mov_b64 exec, -1")
    I("s_movk_i32 s48, 128")
    I("v_cmp_gt_u32 s[92:93], s48, v0")
    I("s_waitcnt lgkmcnt(0)")
    I("v_readfirstlane_b32 s86, v96")
    I("v_readfirstlane_b32 s87, v97")
    I("v_readfirstlane_b32 s42, v98")
    def patch(r, cnt, st, c2, t):
        I(f"v_lshl_or_b32 v{t}, v{cnt}, 12, v{st}")
        I(f"v_or_b32 v{t}, v97, v{t}")
        I(f"v_cndmask_b32 v{r}, v{t}, v{r}, {ODD}")
        I(f"v_cndmask_b32 v{r+1}, v96, v{r+1}, {ODD}")
        if c2 is None: I(f"v_lshlrev_b32 v{t}, 12, v96")
        else: I(f"v_lshl_or_b32 v{t}, v96, 12, v{c2}")
        I(f"v_cndmask_b32 v{r+3}, v{r+3}, v{t}, {ODD}")
    patch(100, 104, 105, 106, 104)
    I("s_lshl_b32 s3, s86, 12")
    I(f"s_add_u32 s49, s51, {TABOFF}")
    I("s_cmp_gt_u32 s88, 2048")
    I("s_cselect_b32 s25, 0, 8")
    I("s_cmp_eq_u32 s42, 0")
    I("s_cbranch_scc1 L1_nokeyst")
    I(f"s_add_u32 s42, s51, {KEYOFF-KSTAGE}")
    I("v_subrev_u32 v25, 128, v0")
    I("s_movk_i32 s43, 200")
    I("v_cmp_gt_u32 vcc, s43, v25")
    I("s_and_saveexec_b64 s[44:45], vcc")
    I("s_cbranch_execz L1_nokeyst2")
    I(f"buffer_store_dwordx4 v[20:23], v24, s[8:11], s42 offen {sf}")
    e.label("L1_nokeyst2")
    I("s_mov_b64 exec, -1")
    e.label("L1_nokeyst")
    stamp(e, c, 4)
    def rest_stores(tag):
        I(f"buffer_store_dwordx4 v[16:19], v3, s[8:11], s51 offen {sf}")
        for k, (m, neg, regs, va) in enumerate((("s[54:55]", 1, "v[12:15]", "v2"), ("s[92:93]", 0, "v[20:23]", "v24"), ("s[52:53]", 1, "v[8:11]", "v1"))):
            I(f"s_not_b64 exec, {m}" if neg else f"s_mov_b64 exec, {m}")
            I(f"s_cbranch_execz L_stskip{tag}{k}")
            I(f"buffer_store_dwordx4 {regs}, {va}, s[8:11], s51 offen {sf}")
            e.label(f"L_stskip{tag}{k}")
        I("s_mov_b64 exec, -1")
    def handoff2(tag):
        I("s_cmp_lg_u32 s25, 0")
        I(f"s_cbranch_scc1 L_usual{tag}")
        rest_stores(tag + "e")
        e.label(f"L_usual{tag}")
        I("s_waitcnt vmcnt(0) lgkmcnt(0)")
        stamp(e, c, 6)
        I("s_barrier")
        I("s_cmp_ge_u32 s21, 8")
        I(f"s_cbranch_scc1 L_noearly{tag}")
        I(f"buffer_store_dwordx4 v[100:103], v1, s[8:11], s49 offen {sf}")
        e.label(f"L_noearly{tag}")
        I("s_cmp_eq_u32 s25, 0")
        I(f"s_cbranch_scc1 L_norest{tag}")
        rest_stores(tag + "l")
        e.label(f"L_norest{tag}")
        stamp(e, c, 5)
    def handoff(tag, mid):
        I("s_waitcnt vmcnt(0)")
        stamp(e, c, 6)
        I("s_barrier")
        I("s_cmp_ge_u32 s21, s25")
        I(f"s_cbranch_scc1 L_noearly{tag}")
        I(f"buffer_store_dwordx4 v[100:103], v1, s[8:11], s49 offen {sf}")
        e.label(f"L_noearly{tag}")
        I(f"buffer_store_dwordx4 v[16:19], v3, s[8:11], s51 offen {sf}")
        for k, (m, neg, regs, va) in enumerate((("s[54:55]", 1, "v[12:15]", "v2"), ("s[92:93]", 0, "v[20:23]", "v24"), ("s[52:53]", 1, "v[8:11]", "v1"))):
            I(f"s_not_b64 exec, {m}" if neg else f"s_mov_b64 exec, {m}")
            I(f"s_cbranch_execz L_stskip{tag}{k}")
            I(f"buffer_store_dwordx4 {regs}, {va}, s[8:11], s51 offen {sf}")
            e.label(f"L_stskip{tag}{k}")
        I("s_mov_b64 exec, -1")
        mid()
        I("s_waitcnt vmcnt(0) lgkmcnt(0)")
        stamp(e, c, 5)
        I("s_barrier")
        I("s_cmp_lt_u32 s21, s25")
        I(f"s_cbranch_scc1 L_nolate{tag}")
        I(f"buffer_store_dwordx4 v[100:103], v1, s[8:11], s49 offen {sf}")
        e.label(f"L_nolate{tag}")
    I("s_cmp_lt_u32 s21, 4")
    e.branch("s_cbranch_scc1 L2_gemm")

    if c.wlate:
        I("s_cmp_lt_u32 s21, 13")
        I("s_cbranch_scc1 L2_noWl")
        w_loads()
        e.label("L2_noWl")
    VLANE, VINFO, VNEXT = 108, 109, 110
    VLOFF, VMASK, VOW, VOR, VSCRW, VTRA, VWR, VL16 = 111, 112, 113, 114, 115, 116, 117, 118
    VT0, VT1, VONE, VSEL = 119, 120, 121, 122
    VJ, VCH, VSEG = 123, 124, 125
    I(f"v_and_b32 v{VLANE}, 63, v0")
    I(f"v_mov_b32 v{VONE}, 1")
    I(f"v_mov_b32 v{VMASK}, s30")
    I(f"v_lshrrev_b32 v{VT1}, 4, v{VLANE}")
    I(f"v_lshlrev_b32 v{VL16}, 4, v{VLANE}")
    if c.addtid:
        I(f"v_and_b32 v{VT0}, 3, v{VLANE}")
        I(f"v_lshlrev_b32 v{VLOFF}, 4, v{VT0}")
    else:
        I(f"v_and_b32 v{VT0}, 15, v{VLANE}")
        I(f"v_lshlrev_b32 v{VLOFF}, 4, v{VT0}")
    I("s_sub_u32 s43, s21, 4")
    I(f"s_mul_i32 s43, s43, {SSTR}")
    I(f"s_add_u32 s43, s43, {SCR}")
    I(f"v_add_u32 v{VSCRW}, s43, v{VL16}")
    I(f"v_lshlrev_b32 v{VOR}, 5, v{VT1}")
    I(f"v_add_u32 v{VOR}, s43, v{VOR}")
    I(f"v_lshlrev_b32 v{VTRA}, 4, v{VT1}")
    I(f"v_bfe_u32 v{VT1}, v{VLANE}, 2, 2")
    I(f"v_lshl_add_u32 v{VTRA}, v{VT1}, 6, v{VTRA}")
    I(f"v_and_b32 v{VT1}, 1, v{VLANE}")
    I(f"v_lshl_add_u32 v{VTRA}, v{VT1}, 3, v{VTRA}")
    I(f"v_bfe_u32 v{VT1}, v{VLANE}, 1, 1")
    I(f"v_mul_u32_u24 v{VT1}, {PL1}, v{VT1}")
    I(f"v_add3_u32 v{VTRA}, v{VTRA}, v{VT1}, s43")
    I(f"v_and_b32 v{VOW}, 32, v{VLANE}")
    I(f"v_and_b32 v{VT1}, 3, v{VLANE}")
    I(f"v_lshl_add_u32 v{VOW}, v{VT1}, 3, v{VOW}")
    I(f"v_bfe_u32 v{VT1}, v{VLANE}, 2, 3")
    I(f"v_add_u32 v{VOW}, v{VOW}, v{VT1}")
    I(f"v_lshlrev_b32 v{VOW}, 2, v{VOW}")
    I(f"v_add_u32 v{VOW}, s43, v{VOW}")
    I(f"v_add_u32 v{VWR}, {WRAD}, v{VL16}")
    I("s_sub_u32 s42, s21, 4")
    I("s_mul_i32 s83, s42, 24")
    I(f"v_and_b32 v{VJ}, 7, v{VLANE}")
    I(f"v_lshrrev_b32 v{VSEG}, 3, v{VLANE}")
    I(f"s_mov_b32 s42, {CSTRIDE}")
    I(f"v_mul_u32_u24 v{VCH}, s42, v{VSEG}")
    I(f"v_lshlrev_b32 v{VSEG}, 5, v{VSEG}")
    I(f"v_add_u32 v{VSEG}, s43, v{VSEG}")
    I(f"v_or_b32 v{VSEL}, 0x0c0c0c00, v{VJ}")
    NP, NW = 3, 3
    I(f"s_mul_i32 s79, s83, {CSTRIDE}")
    for p in range(NP):
        I(f"s_add_u32 s{74+p}, s79, {8*p*CSTRIDE+PAYOFF}")
        I(f"s_add_u32 s{80+p}, s79, {8*p*CSTRIDE+KEYOFF}")
    I("s_mov_b32 s78, 0x100000")
    I("s_mov_b32 s88, s20")
    I("s_mov_b32 s89, 0")
    I(f"s_movk_i32 s48, {HN}")
    def w_stage():
        I("s_cmp_lt_u32 s21, 13")
        I("s_cbranch_scc1 L2_noW")
        if c.nop2: I(f"s_waitcnt vmcnt({1 if c.pfx_lines else 0})")
        I(f"v_add_u32 v65, {T}, v65")
        for k in range(8):
            I(f"ds_write_b128 v65, v[{28+4*k}:{31+4*k}] offset:{16384 + k*3072}")
        for k in range(5):
            I(f"ds_write_b128 v65, v[{72+4*k}:{75+4*k}] offset:{k*3072}")
        if c.wrlds: I("ds_write_b128 v65, v[68:71] offset:40960")
        I("s_cmp_lg_u32 s21, 13")
        I("s_cbranch_scc1 L2_noW")
        I(f"ds_write_b128 v65, v[92:95] offset:{5*3072}")
        e.label("L2_noW")
    if c.nop2:
        w_stage()
        handoff2("g")
    else:
        handoff("g", w_stage)
    if c.pdelay: I(f"s_sleep {c.pdelay}")
    PAY, KEY, RNK, CNTR, KAD, PAD, X, EN = 0, 36, 45, 54, 57, 60, 64, 72
    MSK = 50
    e.label("L2_g_round")
    I(f"v_and_b32 v{VJ}, 7, v{VLANE}")
    I(f"v_or_b32 v{VSEL}, 0x0c0c0c00, v{VJ}")
    I(f"v_lshrrev_b32 v{X}, 1, v{VLANE}")
    I(f"s_sub_u32 s42, {NCH}, s83")
    I("s_min_i32 s42, s42, 24")
    I(f"v_cmp_gt_i32 s[46:47], s42, v{X}")
    I(f"s_mov_b32 s42, {CSTRIDE}")
    I(f"v_mul_u32_u24 v{X+1}, s42, v{X}")
    I(f"v_and_b32 v{X+2}, 16, v{VL16}")
    I(f"v_add_u32 v{X+1}, v{X+1}, v{X+2}")
    I(f"v_cndmask_b32 v{X+1}, 2.0, v{X+1}, s[46:47]")
    I("s_lshl_b32 s43, s88, 5")
    I(f"s_add_u32 s43, s43, {TABOFF}")
    I("s_add_u32 s43, s43, s79")
    I("s_mov_b32 s44, 0")
    I(f"v_lshl_add_u32 v{VT1}, v{VJ}, 4, v{VCH}")
    if c.ppipe:
        def pl(r): I(f"buffer_load_dwordx4 v[{r}:{r+3}], v{X+1}, s[8:11], s43 offen sc1")
        def chk(r, ok):
            I("s_waitcnt vmcnt(1)")
            tag_bad(e, X+2, r, X+3, ODD)
            I(f"v_cmp_ne_u32 vcc, 0, v{X+2}")
            e.nop(2)
            I("s_and_b64 vcc, vcc, s[46:47]")
            I(f"s_cbranch_scc0 {ok}")
        I("s_waitcnt vmcnt(0)")
        pl(96)
        I(f"s_sleep {c.pgap}")
        e.label("L2_poll")
        pl(104)
        chk(96, "L2_poll_oka")
        pl(96)
        I("s_add_u32 s44, s44, 1")
        chk(104, "L2_poll_okb")
        I("s_cmp_lt_u32 s44, s78")
        I("s_cbranch_scc1 L2_poll")
        I("s_mov_b32 s78, 0")
        e.label("L2_poll_okb")
        for k in range(4): I(f"v_mov_b32 v{EN+k}, v{104+k}")
        I("s_branch L2_poll_ok")
        e.label("L2_poll_oka")
        for k in range(4): I(f"v_mov_b32 v{EN+k}, v{96+k}")
    else:
        if c.nop2:
            I(f"buffer_load_dwordx4 v[{EN}:{EN+3}], v{X+1}, s[8:11], s43 offen sc1")
            I("s_mov_b64 exec, 1")
            I("s_waitcnt vmcnt(0)")
            I(f"ds_add_u32 v{VL16}, v{VONE} offset:{BST}")
            I("s_mov_b64 exec, -1")
            I("s_branch L2_poll_chk")
        e.label("L2_poll")
        I(f"buffer_load_dwordx4 v[{EN}:{EN+3}], v{X+1}, s[8:11], s43 offen sc1")
        I("s_add_u32 s44, s44, 1")
        I("s_waitcnt vmcnt(0)")
        e.label("L2_poll_chk")
        tag_bad(e, X+2, EN, X+3, ODD)
        I(f"v_cmp_ne_u32 vcc, 0, v{X+2}")
        e.nop(2)
        I("s_and_b64 vcc, vcc, s[46:47]")
        I("s_cbranch_scc0 L2_poll_ok")
        I(f"s_sleep {c.psleep}")
        I("s_cmp_lt_u32 s44, s78")
        I("s_cbranch_scc1 L2_poll")
        I("s_mov_b32 s78, 0")
    e.label("L2_poll_ok")
    I("s_cmp_lg_u32 s23, 1")
    I("s_cbranch_scc1 L2_nofilter")
    I("s_sub_u32 s42, s22, s83")
    I(f"v_cmp_eq_u32 vcc, s42, v{X}")
    I(f"v_cndmask_b32 v{EN}, 0, v{EN}, vcc")
    e.label("L2_nofilter")
    I(f"ds_write_b128 v{VSCRW}, v[{EN}:{EN+3}]")
    I(f"v_add_u32 v{X+1}, 8, v{VJ}")
    stamp(e, c, 7)
    def msk(p, w): return f"s[{MSK+4*p+2*w}:{MSK+4*p+2*w+1}]" if w < 2 else f"s[{MSK+12+2*p}:{MSK+13+2*p}]"
    def pay(p, w): return f"v[{PAY+12*p+4*w}:{PAY+12*p+4*w+3}]"
    for p in range(NP):
        I(f"ds_read_b128 v[{EN+8*p}:{EN+8*p+3}], v{VSEG} offset:{256*p}")
        I(f"ds_read_b128 v[{EN+8*p+4}:{EN+8*p+7}], v{VSEG} offset:{256*p+16}")
    for p in range(NP):
        en, cnt = EN + 8*p, CNTR + p
        if p == 0: I("s_waitcnt lgkmcnt(0)")
        I(f"v_bfe_u32 v{cnt}, v{en}, 12, 12")
        I(f"v_and_b32 v{PAD+p}, 0xfff, v{en}")
        I(f"v_cmp_lt_u32 {msk(p,0)}, v{VJ}, v{cnt}")
        I(f"v_cmp_lt_u32 {msk(p,1)}, v{X+1}, v{cnt}")
        I(f"v_perm_b32 v{KEY+3*p}, v{en+3}, v{en+2}, v{VSEL}")
        I(f"v_perm_b32 v{KEY+3*p+1}, v{en+5}, v{en+4}, v{VSEL}")
        I(f"v_lshl_add_u32 v{PAD+p}, v{PAD+p}, 4, v{VT1}")
        for w in range(2):
            I(f"s_mov_b64 exec, {msk(p,w)}")
            I(f"s_cbranch_execz L2_nop{p}")
            I(f"ds_add_rtn_u32 v{RNK+3*p+w}, v{KEY+3*p+w}, v{VONE} offset:{HIST}")
            I(f"buffer_load_dwordx4 {pay(p,w)}, v{PAD+p}, s[8:11], s{74+p} offen offset:{128*w} {rf}")
        e.label(f"L2_nop{p}")
        I("s_mov_b64 exec, -1")
    I(f"v_max3_u32 v{VT0}, v{CNTR}, v{CNTR+1}, v{CNTR+2}")
    I(f"v_cmp_lt_u32 vcc, 16, v{VT0}")
    I("s_mov_b32 s25, 0")
    e.nop(1)
    I("s_cmp_eq_u64 vcc, 0")
    I("s_cbranch_scc1 L2_noextraA")
    I("s_mov_b32 s25, 1")
    I(f"v_add_u32 v{X+2}, 16, v{VJ}")
    for p in range(NP):
        en = EN + 8*p
        I(f"v_min_u32 v{X+3}, {KIN}, v{CNTR+p}")
        I(f"v_cmp_lt_u32 {msk(p,2)}, v{X+2}, v{X+3}")
        I(f"v_perm_b32 v{KEY+3*p+2}, v{en+6}, v{en+6}, v{VSEL}")
        I(f"v_sub_u32 v{KAD+p}, v{PAD+p}, v{VCH}")
        I(f"v_lshrrev_b32 v{KAD+p}, 4, v{KAD+p}")
        I(f"v_add_u32 v{KAD+p}, v{KAD+p}, v{VCH}")
        e.flush()
        I(f"s_mov_b64 exec, {msk(p,2)}")
        I(f"ds_add_rtn_u32 v{RNK+3*p+2}, v{KEY+3*p+2}, v{VONE} offset:{HIST}")
        I(f"buffer_load_dwordx4 {pay(p,2)}, v{PAD+p}, s[8:11], s{74+p} offen offset:256 {rf}")
        I("s_mov_b64 exec, -1")

    def extra_count(tag, first, vj, vkad, vcnt, skey, vone, hist, y):
        I(f"v_add_u32 v{y}, {first}, v{vj}")
        I(f"v_add_u32 v{y+1}, {first}, v{vkad}")
        e.label(f"L_xa{tag}")
        I(f"v_cmp_lt_u32 vcc, v{y}, v{vcnt}")
        I("s_and_saveexec_b64 s[44:45], vcc")
        e.branch(f"s_cbranch_execz L_xa{tag}_done")
        I(f"buffer_load_ubyte v{y+2}, v{y+1}, s[8:11], s{skey} offen {rf}")
        I("s_waitcnt vmcnt(0)")
        I(f"ds_add_u32 v{y+2}, v{vone} offset:{hist}")
        I("s_mov_b64 exec, -1")
        I(f"v_add_u32 v{y}, 8, v{y}")
        I(f"v_add_u32 v{y+1}, 8, v{y+1}")
        e.branch(f"s_branch L_xa{tag}")
        e.label(f"L_xa{tag}_done")
        I("s_mov_b64 exec, -1")
    def extra_move(tag, first, vj, vkad, vpad, vcnt, skey, spay, vone, cur, vbase, y, d):
        I(f"v_add_u32 v{y}, {first}, v{vj}")
        I(f"v_add_u32 v{y+1}, {first}, v{vkad}")
        I(f"v_add_u32 v{vpad}, {16*first}, v{vpad}")
        e.label(f"L_xb{tag}")
        I(f"v_cmp_lt_u32 vcc, v{y}, v{vcnt}")
        I("s_and_saveexec_b64 s[44:45], vcc")
        e.branch(f"s_cbranch_execz L_xb{tag}_done")
        I(f"buffer_load_ubyte v{y+2}, v{y+1}, s[8:11], s{skey} offen {rf}")
        I(f"buffer_load_dwordx4 v[{d}:{d+3}], v{vpad}, s[8:11], s{spay} offen {rf}")
        I("s_waitcnt vmcnt(0)")
        I(f"ds_add_rtn_u32 v{y+3}, v{y+2}, v{vone} offset:{cur}")
        I("s_mov_b64 exec, -1")
        I(f"ds_bpermute_b32 v{y+2}, v{y+2}, v{vbase}")
        I("s_waitcnt lgkmcnt(0)")
        I(f"v_add_lshl_u32 v{y+2}, v{y+2}, v{y+3}, 4")
        I("s_mov_b64 exec, vcc")
        I(f"ds_write_b128 v{y+2}, v[{d}:{d+3}] offset:{RAW}")
        I("s_mov_b64 exec, -1")
        I(f"v_add_u32 v{y}, 8, v{y}")
        I(f"v_add_u32 v{y+1}, 8, v{y+1}")
        I(f"v_add_u32 v{vpad}, 128, v{vpad}")
        e.branch(f"s_branch L_xb{tag}")
        e.label(f"L_xb{tag}_done")
        I("s_mov_b64 exec, -1")
    for p in range(NP):
        extra_count(f"a{p}", KIN, VJ, KAD+p, CNTR+p, 80+p, VONE, HIST2, X)
    e.label("L2_noextraA")
    I("s_waitcnt lgkmcnt(0)")
    stamp(e, c, 14)
    I("s_barrier")
    stamp(e, c, 15)
    C1, CT, BS = X + 4, X + 5, X + 6
    I(f"v_lshlrev_b32 v{VT0}, 2, v{VLANE}")
    I(f"ds_read_b32 v{C1}, v{VT0} offset:{HIST}")
    I(f"ds_read_b32 v{CT}, v{VT0} offset:{HIST2}")
    I("s_waitcnt lgkmcnt(0)")
    I(f"v_add_u32 v{CT}, v{C1}, v{CT}")
    I(f"v_mov_b32 v{BS}, v{CT}")
    scan64(e, BS)
    I(f"v_readlane_b32 s46, v{BS}, 63")
    I(f"v_sub_u32 v{BS}, v{BS}, v{CT}")
    I(f"s_cmp_eq_u32 s23, 1")
    I(f"s_cselect_b32 s42, -1, {CAP}")
    for p in range(NP):
        for w in range(2):
            I(f"ds_bpermute_b32 v{KEY+3*p+w}, v{KEY+3*p+w}, v{BS}")
    I(f"v_lshl_or_b32 v{VINFO}, v{CT}, 16, v{BS}")
    I(f"s_cmp_gt_u32 s46, s42")
    I("s_cbranch_scc1 L2_g_overflow")
    I("s_cmp_lg_u32 s21, 5")
    I("s_cbranch_scc1 L2_noinfo")
    I(f"s_mov_b64 exec, {(1 << HN) - 1}")
    I(f"ds_write_b32 v{VT0}, v{VINFO} offset:{INFO}")
    I("s_mov_b64 exec, -1")
    e.label("L2_noinfo")
    I("s_cmp_lg_u32 s21, 4")
    I("s_cbranch_scc1 L2_noguard")
    I("s_lshl_b32 s46, s46, 4")
    for k in range(4): I(f"v_mov_b32 v{EN+k}, 0")
    I(f"v_add_u32 v{VT0}, s46, v{VL16}")
    I(f"ds_write_b128 v{VT0}, v[{EN}:{EN+3}] offset:{RAW}")
    e.label("L2_noguard")
    I("s_waitcnt lgkmcnt(0)")
    for p in range(NP):
        for w in range(2):
            I(f"v_add_lshl_u32 v{KEY+3*p+w}, v{KEY+3*p+w}, v{RNK+3*p+w}, 4")
    stamp(e, c, 27)
    I("s_waitcnt vmcnt(0)")
    stamp(e, c, 9)
    for p in range(NP):
        for w in range(2):
            I(f"s_mov_b64 exec, {msk(p,w)}")
            I(f"ds_write_b128 v{KEY+3*p+w}, {pay(p,w)} offset:{RAW}")
    I("s_mov_b64 exec, -1")
    I("s_cmp_eq_u32 s25, 0")
    I("s_cbranch_scc1 L2_noextraB")
    for p in range(NP):
        I(f"ds_bpermute_b32 v{KEY+3*p+2}, v{KEY+3*p+2}, v{BS}")
    I("s_waitcnt lgkmcnt(0)")
    for p in range(NP):
        I(f"v_add_lshl_u32 v{KEY+3*p+2}, v{KEY+3*p+2}, v{RNK+3*p+2}, 4")
        I(f"s_mov_b64 exec, {msk(p,2)}")
        I(f"ds_write_b128 v{KEY+3*p+2}, {pay(p,2)} offset:{RAW}")
        I("s_mov_b64 exec, -1")
    I(f"v_add_u32 v{BS}, v{BS}, v{C1}")
    for p in range(NP):
        extra_move(f"a{p}", KIN, VJ, KAD+p, PAD+p, CNTR+p, 80+p, 74+p, VONE, CUR2, BS, X, EN)
    e.label("L2_noextraB")
    I("s_waitcnt lgkmcnt(0)")
    stamp(e, c, 28)
    I("s_barrier")
    I(f"ds_read_b32 v{VT0}, v{VL16} offset:{TOTB}")
    if c.static1:
        I("s_sub_u32 s42, s21, 16")
        I(f"v_mov_b32 v{VNEXT}, s42")
    else:
        I("s_mov_b64 exec, 1")
        I(f"ds_add_rtn_u32 v{VNEXT}, v{VL16}, v{VONE} offset:{NEXT}")
        I("s_mov_b64 exec, -1")
    I("s_waitcnt lgkmcnt(0)")
    I(f"v_readfirstlane_b32 s42, v{VT0}")
    e.nop(1)
    I(f"s_cmp_gt_u32 s42, {CAP}")
    I("s_cbranch_scc1 L2_g_overflow")
    stamp(e, c, 10)
    stamp(e, c, 24, "s_memtime")
    if c.prio_g: I(f"s_setprio {c.prio_g}")
    (gather_loop_s if c.smf else gather_loop)(e, c, locals())
    e.label("L2_g_done")
    stamp(e, c, 11)
    stamp(e, c, 25, "s_memtime")
    I("s_cmp_lg_u32 s24, 0")
    e.branch("s_cbranch_scc1 L2_g_exit")
    I("s_add_u32 s89, s89, 1")
    I("s_branch L2_g_slow")
    e.label("L2_g_overflow")
    I("s_mov_b32 s89, 0")
    I("s_mov_b32 s23, 1")
    I("s_movk_i32 s48, 64")
    e.label("L2_g_slow")
    I("s_waitcnt vmcnt(0) lgkmcnt(0)")
    I("s_barrier")
    I("s_lshr_b32 s22, s89, 1")
    I("s_and_b32 s88, s89, 1")
    I("s_lshl_b32 s88, s88, 8")
    I("s_add_u32 s88, s88, s20")
    I(f"s_cmp_eq_u32 s89, {2*NCH-1}")
    I("s_cselect_b32 s24, 1, 0")
    I("s_barrier")
    e.branch("s_branch L2_g_round")
    e.label("L2_g_exit")
    stamp_store(e, c, 90)
    I("s_endpgm")

    e.label("L2_gemm")
    W, G, TA, TF = 0, 40, 104, 108
    X0, X1 = 124, 125
    I("v_and_b32 v104, 63, v0")
    I("v_lshlrev_b32 v105, 4, v104")
    lut = 0
    for jp in range(4):
        for blk in range(4):
            p, i, s = path_of(jp, blk)
            lut |= (p | (8 if s < 0 else 0)) << (4 * (jp * 4 + blk))
    I(f"s_mov_b32 s44, {lut & 0xffffffff}")
    I(f"s_mov_b32 s45, {lut >> 32}")
    for h in range(2):
        I("v_lshrrev_b32 v106, 4, v104")
        I("v_bfe_u32 v107, v104, 3, 1")
        I("v_lshl_add_u32 v106, v106, 2, v107")
        I(f"v_add_lshl_u32 v106, v106, {2*h}, 2")
        I(f"v_lshrrev_b64 v[108:109], v106, s[44:45]")
        I(f"v_and_b32 v106, 7, v108")
        I(f"v_and_b32 v{110+h}, 8, v108")
        I(f"v_lshlrev_b32 v{110+h}, 28, v{110+h}")
        I("v_and_b32 v107, 7, v104")
        I("v_lshlrev_b32 v107, 3, v107")
        I("v_lshl_add_u32 v106, v106, 6, v107")
        I("v_add_u32 v106, s21, v106")
        I(f"v_lshlrev_b32 v{112+h}, 1, v106")
        if c.wrlds: I(f"v_add_u32 v{112+h}, {T+40960}, v{112+h}")
    I("v_mov_b32 v117, v0")
    TB2 = 40
    if c.nop2:
        I("s_lshl_b32 s42, s21, 11")
        I(f"s_add_u32 s43, s42, {TI+8192}")
        I("v_add_u32 v114, s43, v105")
        I(f"ds_read_b128 v[{TB2}:{TB2+3}], v114")
        I(f"ds_read_b128 v[{TB2+4}:{TB2+7}], v114 offset:1024")
        I("v_lshrrev_b32 v114, 1, v104")
        I("s_lshl_b32 s43, s21, 8")
        I(f"s_add_u32 s43, s43, {H1+1024}")
        I("v_lshl_add_u32 v114, v114, 2, s43")
        I(f"ds_read2st64_b32 v[{TB2+8}:{TB2+9}], v114 offset0:0 offset1:8")
        I("v_add_u32 v114, 128, v114")
        I(f"ds_read2st64_b32 v[{TB2+10}:{TB2+11}], v114 offset0:0 offset1:8")
        I(f"s_add_u32 s39, s42, s49")
        I("s_add_u32 s39, s39, 8192")
        I("s_waitcnt lgkmcnt(0)")
        patch(TB2, TB2+8, TB2+9, None, TB2+8)
        patch(TB2+4, TB2+10, TB2+11, None, TB2+10)
        I(f"v_mov_b32 v{TB2+8}, v105")
        handoff2("m")
        I("v_mov_b32 v56, 0")
        I("v_mov_b32 v57, 1")
        I("s_mov_b64 exec, 1")
        I("s_waitcnt vmcnt(0)")
        I(f"ds_add_u32 v56, v57 offset:{BST}")
        I("s_mov_b64 exec, -1")
        if c.nop2 == 2:
            spin(e, "bst", 57, 56, BST, 16, 44, 42, sleep=1)
            I(f"buffer_store_dwordx4 v[{TB2}:{TB2+3}], v{TB2+8}, s[8:11], s39 offen {sf}")
            I(f"buffer_store_dwordx4 v[{TB2+4}:{TB2+7}], v{TB2+8}, s[8:11], s39 offen offset:1024 {sf}")
    else:
        handoff("m", lambda: None)
    if c.pfx2_pos == 0: prefetch_x(e, c.pfx2_lines, 114, 117, 256, 31, 0, 4, c.pfx_lines)
    WT = 80
    for k in range(4):
        h, qo = k >> 1, (k & 1) * 4
        for d in range(4):
            if c.wrlds: I(f"ds_read_u16 v{WT+4*k+d}, v{112+h} offset:{d*640+qo*2}")
            else: I(f"buffer_load_ushort v{WT+4*k+d}, v{112+h}, s[16:19], 0 offen offset:{d*640+qo*2}")
    I("v_lshrrev_b32 v106, 4, v104")
    I("v_lshlrev_b32 v106, 10, v106")
    I("v_bfe_u32 v107, v104, 2, 2")
    I("v_lshl_add_u32 v106, v107, 7, v106")
    I("v_and_b32 v107, 3, v104")
    I("v_lshl_add_u32 v106, v107, 3, v106")
    I("s_lshl_b32 s42, s21, 5")
    I(f"s_add_u32 s42, s42, {T}")
    I("v_add_u32 v106, s42, v106")
    for f in range(10):
        I(f"ds_read_b64_tr_b16 v[{W+4*f}:{W+4*f+1}], v106 offset:{f*4096}")
        I(f"ds_read_b64_tr_b16 v[{W+4*f+2}:{W+4*f+3}], v106 offset:{f*4096+512}")
    I("s_lshl_b32 s42, s21, 10")
    I(f"s_add_u32 s43, s42, {WRAD}")
    I("v_add_u32 v105, s43, v105")
    I("s_waitcnt lgkmcnt(0)" if c.wrlds else "s_waitcnt vmcnt(0)")
    for k in range(4):
        h = k >> 1
        for d in range(4):
            I(f"v_lshlrev_b32 v{WT+4*k+d}, 16, v{WT+4*k+d}")
            I(f"v_xor_b32 v{WT+4*k+d}, v{110+h}, v{WT+4*k+d}")
        I(f"ds_write_b128 v105, v[{WT+4*k}:{WT+4*k+3}] offset:{(k>>1)*8192 + (k&1)*4096}")
    I("v_and_b32 v106, 15, v104")
    I("v_lshrrev_b32 v107, 4, v104")
    I(f"v_lshlrev_b32 v{X0}, 2, v104")
    if NWG == 250:
        I(f"s_mul_i32 s42, s20, {HN}")
        I(f"s_movk_i32 s44, {HN}")
    else:
        I("s_mul_i32 s42, s20, 1600210")
        I("s_add_u32 s42, s42, 65532")
        I("s_add_u32 s44, s42, 1600210")
        I("s_lshr_b32 s42, s42, 16")
        I("s_lshr_b32 s44, s44, 16")
        I(f"s_min_u32 s44, s44, {N//2}")
        I("s_sub_u32 s44, s44, s42")
    I("s_lshl_b32 s42, s42, 9")
    I("s_mov_b32 s40, s42")
    I("s_mov_b32 s41, s44")
    I("s_lshl_b32 s43, s21, 5")
    I("s_add_u32 s42, s42, s43")
    I(f"v_lshlrev_b32 v{X1}, 9, v106")
    I(f"v_lshl_add_u32 v{X1}, v107, 3, v{X1}")
    I(f"v_add_u32 v{X1}, s42, v{X1}")
    I(f"v_cmp_le_u32 s[84:85], {HN-16}, v106")
    I(f"s_sub_u32 s43, s44, {48-HN}")
    I("v_cmp_gt_i32 s[50:51], s43, v106")
    I("s_sub_u32 s43, s44, 16")
    I("v_cmp_gt_i32 s[94:95], s43, v106")
    I("v_lshlrev_b32 v108, 10, v106")
    I(f"v_add_u32 v108, {T}, v108")
    I("s_or_b64 s[94:95], s[94:95], s[84:85]")
    for u in (3, 2, 1, 0):
        I(f"v_add_u32 v109, {4*u}, v107")
        I("v_xor_b32 v109, v109, v106")
        I(f"v_lshl_add_u32 v{TF+4+u}, v109, 4, v108")
    I("s_waitcnt lgkmcnt(0)")
    for u in range(4):
        I(f"v_mov_b32 v{TA+u}, v{TF+4+u}")
    I("s_mov_b32 s89, 0")
    NPB = 8
    TB, KA, SJ, KB, RB = 40, 48, 56, 64, 80
    LJ, LCH, LONE, Y = 96, 97, 98, 99
    MB = 52
    def mb(p, w): return f"s[{MB+4*p+2*w}:{MB+4*p+2*w+1}]"
    LA, PA0, PA1, TOA = KB, KB + 1, KB + 2, KB + 3
    I(f"v_lshrrev_b32 v{Y}, 2, v{X0}")
    I("s_lshl_b32 s42, s21, 11")
    I(f"v_lshl_add_u32 v{LA}, v{Y}, 4, s42")
    I(f"v_lshrrev_b32 v{Y+1}, 1, v{Y}")
    I("s_lshl_b32 s43, s21, 5")
    I(f"s_sub_u32 s44, {NCH-128}, s43")
    I(f"v_cmp_gt_i32 s[46:47], s44, v{Y+1}")
    I(f"s_mov_b32 s44, {CSTRIDE}")
    I(f"v_mul_u32_u24 v{Y+1}, s44, v{Y+1}")
    I(f"v_and_b32 v{Y+2}, 16, v{LA}")
    I(f"v_add_u32 v{PA0}, v{Y+1}, v{Y+2}")
    I(f"v_cndmask_b32 v{PA1}, 2.0, v{PA0}, s[46:47]")
    I(f"v_and_b32 v{LJ}, 7, v{Y}")
    I(f"v_lshrrev_b32 v{Y+1}, 3, v{Y}")
    I(f"v_mul_u32_u24 v{LCH}, s44, v{Y+1}")
    I(f"v_lshl_add_u32 v{RB}, v{Y+1}, 5, s42")
    I("s_mul_i32 s38, s43, s44")
    I(f"v_add_u32 v{LCH}, s38, v{LCH}")
    I(f"v_mov_b32 v{LONE}, 1")
    I("s_lshl_b32 s36, s20, 5")
    I(f"s_add_u32 s36, s36, {TABOFF+8192}")
    I("s_add_u32 s36, s36, s38")
    I(f"s_add_u32 s37, s36, {128*CSTRIDE}")
    I("s_lshl_b32 s42, s21, 6")
    I(f"v_add_u32 v{Y}, s42, v{Y}")
    I(f"v_mul_u32_u24 v{Y+1}, 0xaab, v{Y}")
    I(f"v_lshrrev_b32 v{Y+1}, 16, v{Y+1}")
    I(f"v_mul_u32_u24 v{Y+1}, {SSTR-24*32}, v{Y+1}")
    I(f"v_lshl_add_u32 v{TOA}, v{Y}, 5, v{Y+1}")
    I(f"v_add_u32 v{TOA}, {SCR+28}, v{TOA}")
    I(f"s_movk_i32 s42, {NCH}")
    I(f"v_cmp_gt_u32 s[92:93], s42, v{Y}")
    if c.pfx2_pos == 1:
        I("s_mov_b64 s[40:41], s[46:47]")
        prefetch_x(e, c.pfx2_lines, 114, 117, 256, 31, 0, 4, c.pfx_lines)
        I("s_mov_b64 s[46:47], s[40:41]")
    if c.nop2 == 1:
        spin(e, "bst", 57, 56, BST, 16, 44, 42, sleep=1)
        I(f"buffer_store_dwordx4 v[{TB2}:{TB2+3}], v{TB2+8}, s[8:11], s39 offen {sf}")
        I(f"buffer_store_dwordx4 v[{TB2+4}:{TB2+7}], v{TB2+8}, s[8:11], s39 offen offset:1024 {sf}")
    stamp(e, c, 14)
    e.label("L2_m_round")
    I("s_barrier")
    I("s_cmp_eq_u32 s23, 1")
    I("s_cbranch_scc1 L2_m_slowC")
    def pollB_issue():
        I(f"buffer_load_dwordx4 v[{TF+4}:{TF+7}], v{PA0}, s[8:11], s36 offen sc1")
        I(f"buffer_load_dwordx4 v[{TF+8}:{TF+11}], v{PA1}, s[8:11], s37 offen sc1")
    I(f"ds_read_b32 v{TF}, v{X0} offset:{HIST}")
    I(f"ds_read_b32 v{TF+1}, v{X0} offset:{HIST2}")
    I(f"ds_read_b32 v{Y}, v{TOA}")
    I("s_waitcnt lgkmcnt(0)")
    I(f"v_add_u32 v{TF}, v{TF}, v{TF+1}")
    I(f"v_and_b32 v{Y}, 0xfff, v{Y}")
    I(f"v_cndmask_b32 v{Y}, 0, v{Y}, s[92:93]")
    scan64(e, TF)
    scan64(e, Y)
    I(f"v_readlane_b32 s42, v{TF}, 63")
    I(f"v_mov_b32 v{Y+2}, 0")
    I("s_mov_b32 exec_lo, 0")
    I("s_mov_b32 exec_hi, 0x80000000")
    I(f"ds_add_u32 v{Y+2}, v{Y} offset:{TOTB}")
    I("s_mov_b64 exec, -1")
    I(f"s_cmp_gt_u32 s42, {CAP}")
    I("s_cbranch_scc1 L2_m_overflow")
    if c.bearly: pollB_issue()
    I("s_waitcnt lgkmcnt(0)")
    I("s_barrier")
    I(f"ds_read_b32 v{Y}, v{Y+2} offset:{TOTB}")
    SEL = Y + 4
    E2 = [TF, TF + 8]
    I("s_mov_b32 s44, 0")
    I("s_waitcnt lgkmcnt(0)")
    I(f"v_readfirstlane_b32 s42, v{Y}")
    I(f"v_or_b32 v{SEL}, 0x0c0c0c00, v{LJ}")
    I(f"s_cmp_gt_u32 s42, {CAP}")
    I("s_cbranch_scc1 L2_m_overflow")
    stamp(e, c, 10)
    I("s_mov_b32 s34, s42")
    if c.x_nobload: I("s_branch L2_bnoxb")
    if c.bearly: I("s_branch L2_pollB_w")
    e.label("L2_pollB")
    pollB_issue()
    e.label("L2_pollB_w")
    I("s_add_u32 s44, s44, 1")
    I("s_waitcnt vmcnt(0)")
    tag_bad(e, Y, TF+4, Y+1, ODD)
    tag_bad(e, Y+2, TF+8, Y+1, ODD)
    I(f"v_cndmask_b32 v{Y+2}, 0, v{Y+2}, s[46:47]")
    I(f"v_or_b32 v{Y}, v{Y}, v{Y+2}")
    I(f"v_cmp_ne_u32 vcc, 0, v{Y}")
    e.nop(2)
    I("s_cmp_eq_u64 vcc, 0")
    I("s_cbranch_scc1 L2_pollB_ok")
    I(f"s_sleep {c.psleep}")
    I("s_cmp_lt_u32 s44, 0x100000")
    I("s_cbranch_scc1 L2_pollB")
    e.label("L2_pollB_ok")
    stamp(e, c, 7)
    I(f"ds_write_b128 v{LA}, v[{TF+4}:{TF+7}] offset:{CEB}")
    I(f"ds_write_b128 v{LA}, v[{TF+8}:{TF+11}] offset:{CEB+1024}")
    def boff(p): return ((128 if p >= 4 else 0) + 8 * (p & 3)) * CSTRIDE
    def ent_read(p):
        r = E2[p & 1]
        I(f"ds_read_b128 v[{r}:{r+3}], v{RB} offset:{CEB+256*p}")
        I(f"ds_read_b64 v[{r+4}:{r+5}], v{RB} offset:{CEB+256*p+16}")
    ent_read(0); ent_read(1)
    I(f"v_add_u32 v{Y+1}, 8, v{LJ}")
    for p in range(NPB):
        r = E2[p & 1]
        I(f"s_waitcnt lgkmcnt({2 if p < NPB-1 else 0})")
        I(f"v_and_b32 v{SJ+p}, 0xfff, v{r}")
        I(f"v_bfe_u32 v{TB+p}, v{r}, 12, 12")
        I(f"v_perm_b32 v{KB+2*p}, v{r+3}, v{r+2}, v{SEL}")
        I(f"v_perm_b32 v{KB+2*p+1}, v{r+5}, v{r+4}, v{SEL}")
        if p + 2 < NPB: ent_read(p + 2)
        I(f"v_add_u32 v{SJ+p}, v{SJ+p}, v{LJ}")
        I(f"v_cmp_lt_u32 {mb(p,0)}, v{LJ}, v{TB+p}")
        I(f"v_cmp_lt_u32 {mb(p,1)}, v{Y+1}, v{TB+p}")
        I(f"v_lshl_add_u32 v{SJ+p}, v{SJ+p}, 4, v{LCH}")
    P0 = [TF, TF+4, TF+8, TF+12]
    def pay_issue(p, w, reg):
        I(f"s_mov_b32 s42, {boff(p)+PAYOFF}")
        I("s_mov_b64 exec, -1")
        I(f"v_cndmask_b32 v{Y+2+w}, 2.0, v{SJ+p}, {mb(p,w)}")
        I(f"buffer_load_dwordx4 v[{reg}:{reg+3}], v{Y+2+w}, s[8:11], s42 offen offset:{128*w} {rf}")
    for k in range(4): pay_issue(k >> 1, k & 1, P0[k])
    I(f"v_max3_u32 v{Y}, v{TB}, v{TB+1}, v{TB+2}")
    I(f"v_max3_u32 v{Y}, v{Y}, v{TB+3}, v{TB+4}")
    I(f"v_max3_u32 v{Y}, v{Y}, v{TB+5}, v{TB+6}")
    I(f"v_max_u32 v{Y}, v{Y}, v{TB+7}")
    I(f"v_cmp_lt_u32 vcc, 16, v{Y}")
    I(f"v_mov_b32 v{Y+1}, v{RB}")
    for p in range(NPB):
        for w in range(2):
            I(f"s_mov_b64 exec, {mb(p,w)}")
            I(f"ds_add_rtn_u32 v{RB+2*p+w}, v{KB+2*p+w}, v{LONE} offset:{HISTB}")
    I("s_mov_b64 exec, -1")
    I("s_cmp_lg_u64 vcc, 0")
    I("s_cselect_b32 s35, 1, 0")
    I("s_cbranch_scc0 L2_bnoxa")
    def w2mask(p):
        I(f"v_min_u32 v{Y+2}, {KIN}, v{TB+p}")
        I(f"v_add_u32 v{Y+3}, 16, v{LJ}")
        I(f"v_cmp_lt_u32 vcc, v{Y+3}, v{Y+2}")
        I("s_and_saveexec_b64 s[44:45], vcc")
    for p in range(NPB):
        w2mask(p)
        e.branch(f"s_cbranch_execz L2_bw2a{p}")
        I(f"ds_read_b32 v{KA+p}, v{Y+1} offset:{CEB+256*p+24}")
        I("s_waitcnt lgkmcnt(0)")
        I(f"v_perm_b32 v{KA+p}, v{KA+p}, v{KA+p}, v{SEL}")
        I(f"ds_add_rtn_u32 v{Y+2}, v{KA+p}, v{LONE} offset:{HISTB}")
        I("s_waitcnt lgkmcnt(0)")
        I(f"v_lshl_or_b32 v{KA+p}, v{Y+2}, 8, v{KA+p}")
        e.label(f"L2_bw2a{p}")
        I("s_mov_b64 exec, -1")
    def key_addr(p, dst):
        I(f"v_sub_u32 v{dst}, v{SJ+p}, v{LCH}")
        I(f"v_lshrrev_b32 v{dst}, 4, v{dst}")
        I(f"v_add_u32 v{dst}, v{dst}, v{LCH}")
    for p in range(NPB):
        I(f"s_mov_b32 s42, {boff(p)+KEYOFF}")
        key_addr(p, Y+3)
        extra_count(f"b{p}", KIN, LJ, Y+3, TB+p, 42, LONE, HIST2B, Y)
    e.label("L2_bnoxa")
    I("s_mov_b64 exec, 1")
    I(f"v_mov_b32 v{Y+2}, 0")
    I("s_waitcnt lgkmcnt(0)")
    I(f"ds_add_u32 v{Y+2}, v{LONE} offset:{BSYNC}")
    I("s_mov_b64 exec, -1")
    I(f"v_mov_b32 v{Y+2}, 0")
    spin(e, "bs", Y, Y+2, BSYNC, 4, 44, 42)
    BB = Y + 4
    I(f"ds_read_b32 v{Y}, v{X0} offset:{HISTB}")
    I(f"ds_read_b32 v{Y+1}, v{X0} offset:{HIST2B}")
    I("s_waitcnt lgkmcnt(0)")
    I(f"v_add_u32 v{Y+1}, v{Y}, v{Y+1}")
    I(f"v_mov_b32 v{BB}, v{Y+1}")
    scan64(e, BB)
    I(f"v_sub_u32 v{BB}, v{BB}, v{Y+1}")
    I(f"v_add_u32 v{BB}, {BOFF}, v{BB}")
    for k in range(2*NPB):
        I(f"ds_bpermute_b32 v{KB+k}, v{KB+k}, v{BB}")
    I("s_cmp_lg_u32 s21, 0")
    I("s_cbranch_scc1 L2_bnoinfo")
    I(f"v_lshl_or_b32 v{Y+1}, v{Y+1}, 16, v{BB}")
    I(f"s_mov_b32 exec_lo, {((1 << 32) - (1 << HN))}")
    I(f"ds_write_b32 v{X0}, v{Y+1} offset:{INFO}")
    I("s_mov_b64 exec, -1")
    e.label("L2_bnoinfo")
    I("s_waitcnt lgkmcnt(0)")
    for k in range(2*NPB):
        I(f"v_add_lshl_u32 v{KB+k}, v{KB+k}, v{RB+k}, 4")
    I(f"v_mov_b32 v{LONE}, v{Y}")
    regs = P0 + [RB, RB+4, RB+8, RB+12]
    for k in range(4, 8): pay_issue(k >> 1, k & 1, regs[k])
    for k in range(16):
        I(f"s_waitcnt vmcnt({min(7, 15-k)})")
        I(f"s_mov_b64 exec, {mb(k>>1, k&1)}")
        I(f"ds_write_b128 v{KB+k}, v[{regs[k&7]}:{regs[k&7]+3}] offset:{RAW}")
        if k + 8 < 16: pay_issue((k+8) >> 1, (k+8) & 1, regs[k&7])
    I("s_mov_b64 exec, -1")
    I("s_cmp_eq_u32 s35, 0")
    I("s_cbranch_scc1 L2_bnoxb")
    for p in range(NPB):
        I(f"v_and_b32 v{Y}, 0xff, v{KA+p}")
        I(f"ds_bpermute_b32 v{Y}, v{Y}, v{BB}")
        w2mask(p)
        e.branch(f"s_cbranch_execz L2_bw2b{p}")
        I(f"s_mov_b32 s42, {boff(p)+PAYOFF}")
        I(f"buffer_load_dwordx4 v[{TF}:{TF+3}], v{SJ+p}, s[8:11], s42 offen offset:256 {rf}")
        I(f"v_lshrrev_b32 v{KA+p}, 8, v{KA+p}")
        I("s_waitcnt vmcnt(0) lgkmcnt(0)")
        I(f"v_add_lshl_u32 v{Y}, v{Y}, v{KA+p}, 4")
        I(f"ds_write_b128 v{Y}, v[{TF}:{TF+3}] offset:{RAW}")
        e.label(f"L2_bw2b{p}")
        I("s_mov_b64 exec, -1")
        I("s_waitcnt lgkmcnt(0)")
    I(f"v_add_u32 v{BB}, v{BB}, v{LONE}")
    I(f"v_mov_b32 v{LONE}, 1")
    for p in range(NPB):
        I(f"s_mov_b32 s42, {boff(p)+KEYOFF}")
        I(f"s_mov_b32 s43, {boff(p)+PAYOFF}")
        key_addr(p, KA+p)
        extra_move(f"b{p}", KIN, LJ, KA+p, SJ+p, TB+p, 42, 43, LONE, CUR2B, BB, Y, TF)
    e.label("L2_bnoxb")
    I("s_waitcnt lgkmcnt(0)")
    for k in range(64):
        I(f"v_mov_b32 v{G+k}, 0")
    I("s_cmp_lg_u32 s21, 1")
    I("s_cbranch_scc1 L2_bnoguard")
    I(f"s_add_u32 s42, s34, {BOFF}")
    I("s_lshl_b32 s42, s42, 4")
    I(f"v_lshl_add_u32 v{TF}, v{X0}, 2, s42")
    I(f"ds_write_b128 v{TF}, v[{G}:{G+3}] offset:{RAW}")
    I("s_waitcnt lgkmcnt(0)")
    e.label("L2_bnoguard")
    I(f"v_mov_b32 v{TF}, 1")
    I("s_mov_b64 exec, 1")
    I(f"ds_add_u32 v{G}, v{TF} offset:{BREADY}")
    I("s_mov_b64 exec, -1")
    stamp(e, c, 13)
    I("s_branch L2_m_tiles")
    e.label("L2_m_slowC")
    I("s_barrier")
    e.label("L2_m_tiles")
    if c.prio_m: I(f"s_setprio {c.prio_m}")
    for h in range(2):
        for t in ((0, 3, 1, 2) if h else range(4)):
            need = 16 if t < 3 else NODES - 48
            last = (h, t) == (1, 2)
            if last and c.split: need = 32
            I(f"v_mov_b32 v{TF}, 0")
            spin(e, f"t{h}{t}", TF+1, TF, DONE + 16*h + 4*t, need, 43, 42, sleep=(1 if last else c.sleep))
            stamp(e, c, 16 + 4*h + t)
            srcs = [t] + ([0] if last and c.split else [])
            steps = [(tt, ks) for tt in srcs for ks in range(16)]
            def mf(ks, r):
                jp, blk = ks >> 2, 2 * h + ((ks >> 1) & 1)
                p, i, sg = path_of(jp, blk)
                f = p * 2 + (ks & 1)
                g = G + 16 * t + 4 * i
                I(f"v_mfma_f32_16x16x32_bf16 v[{g}:{g+3}], v[{W+4*f}:{W+4*f+3}], v[{r}:{r+3}], v[{g}:{g+3}]")
            def rd(n, r):
                tt, ks = steps[n]
                I(f"ds_read_b128 v[{r}:{r+3}], v{TA+(ks&3)} offset:{tt*16384 + (ks>>2)*256}")
            if last and c.fastlast and not c.split:
                I("s_cmp_eq_u32 s24, 0")
                I("s_cbranch_scc1 L2_lastslow")
                fr = [TF + 4*n for n in range(4)] + [G + 4*n for n in range(8)] + [G + 48 + 4*n for n in range(4)]
                order = [0, 2, 4, 8, 1, 3, 5, 9, 6, 10, 12, 14, 7, 11, 13, 15]
                for n, ks in enumerate(order): rd(ks, fr[n])
                for n, ks in enumerate(order):
                    I(f"s_waitcnt lgkmcnt({15-n})")
                    mf(ks, fr[n])
                I("s_branch L2_lastdone")
                e.label("L2_lastslow")
            for n in range(4): rd(n, TF + 4*n)
            for n in range(len(steps)):
                I(f"s_waitcnt lgkmcnt({min(3, len(steps)-1-n)})")
                mf(steps[n][1], TF + 4*(n&3))
                if n + 4 < len(steps): rd(n + 4, TF + 4*(n&3))
            if last and c.fastlast and not c.split: e.label("L2_lastdone")
            if (h, t) == (1, 0) and c.split:
                I(f"v_mov_b32 v{TF}, 0")
                I(f"v_mov_b32 v{TF+1}, 1")
                I("s_mov_b64 exec, 1")
                I(f"ds_add_u32 v{TF}, v{TF+1} offset:{GDONE + 16}")
                I("s_mov_b64 exec, -1")
            if h == 0:
                I(f"v_mov_b32 v{TF}, 0")
                I(f"v_mov_b32 v{TF+1}, 1")
                I("s_mov_b64 exec, 1")
                I(f"ds_add_u32 v{TF}, v{TF+1} offset:{GDONE + 4*t}")
                I("s_mov_b64 exec, -1")
                if t == c.pf1_tile:
                    I(f"s_movk_i32 m0, {HIST2B}")
                    I("s_lshl_b32 s42, s21, 6")
                    I(f"v_lshrrev_b32 v{TF+3}, 2, v{X0}")
                    I(f"v_add_u32 v{TF+3}, s42, v{TF+3}")
                    prefetch_x(e, c.pf1_lines, TF + 4, TF + 3, 256, 31, 1, 4, lds=True)
            else:
                I("s_cmp_eq_u32 s24, 0")
                e.branch(f"s_cbranch_scc1 L2_nofin{t}")
                g = G + 16 * t
                I("s_mov_b32 s42, 0xbfb8aa3b")
                for r in range(4): I(f"v_mul_f32 v{TF+r}, s42, v{g+r}")
                for r in range(4): I(f"v_exp_f32 v{TF+r}, v{TF+r}")
                for r in range(4): I(f"v_add_f32 v{TF+r}, 1.0, v{TF+r}")
                for r in range(4): I(f"v_rcp_f32 v{TF+r}, v{TF+r}")
                for i in range(1, 4):
                    for r in range(4): I(f"v_mul_f32 v{g+4*i+r}, v{g+4*i+r}, v{TF+r}")
                for i in range(4):
                    I(f"v_cvt_pk_bf16_f32 v{TF+4+2*i}, v{g+4*i}, v{g+4*i+1}")
                    I(f"v_cvt_pk_bf16_f32 v{TF+5+2*i}, v{g+4*i+2}, v{g+4*i+3}")
                fl = c.out_flags if (t == 2 or c.out_early is None) else c.out_early
                if c.wideout:
                    prev = {0: None, 3: 0, 1: 3, 2: 1}[t]
                    z, a1, a2 = TF, TF + 1, TF + 2
                    I(f"v_mov_b32 v{z}, 0")
                    if prev is not None: spin(e, f"or{t}", a1, z, OUTR + 4*prev, 4, 43, 42)
                    I(f"v_bfe_u32 v{a1}, v{X0}, 2, 4")
                    I(f"v_lshrrev_b32 v{a2}, 7, v{X0}")
                    I("s_lshl_b32 s42, s21, 1")
                    I(f"v_add_u32 v{a2}, s42, v{a2}")
                    I(f"v_xor_b32 v{a2}, v{a2}, v{a1}")
                    I(f"v_and_b32 v{a2}, 7, v{a2}")
                    I(f"v_lshlrev_b32 v{a2}, 4, v{a2}")
                    I(f"v_lshl_add_u32 v{a2}, v{a1}, 9, v{a2}")
                    I(f"v_bfe_u32 v{a1}, v{X0}, 6, 1")
                    I(f"v_lshl_add_u32 v{a2}, v{a1}, 3, v{a2}")
                    I(f"v_add_u32 v{a2}, {WRAD}, v{a2}")
                    for i in range(4):
                        I(f"ds_write_b64 v{a2}, v[{TF+4+2*i}:{TF+5+2*i}] offset:{i*128}")
                    I(f"v_mov_b32 v{a1}, 1")
                    I("s_mov_b64 exec, 1")
                    I(f"ds_add_u32 v{z}, v{a1} offset:{OUTW + 4*t}")
                    I("s_mov_b64 exec, -1")
                    r0, ga, la = TF + 12, TF + 13, TF + 3
                    I(f"v_lshrrev_b32 v{r0}, 7, v{X0}")
                    I("s_lshl_b32 s42, s21, 2")
                    I(f"v_add_u32 v{r0}, s42, v{r0}")
                    I(f"v_bfe_u32 v{ga}, v{X0}, 2, 5")
                    I(f"v_and_b32 v{a2}, 7, v{r0}")
                    I(f"v_xor_b32 v{la}, v{ga}, v{a2}")
                    I(f"v_lshlrev_b32 v{la}, 4, v{la}")
                    I(f"v_lshl_add_u32 v{la}, v{r0}, 9, v{la}")
                    I(f"v_add_u32 v{la}, {WRAD}, v{la}")
                    I(f"v_xor_b32 v{a2}, 32, v{la}")
                    I(f"v_lshlrev_b32 v{ga}, 4, v{ga}")
                    I(f"v_lshl_add_u32 v{ga}, v{r0}, 9, v{ga}")
                    I(f"v_add_u32 v{ga}, s40, v{ga}")
                    spin(e, f"ow{t}", a1, z, OUTW + 4*t, 4, 43, 42)
                    I(f"ds_read_b128 v[{TF+4}:{TF+7}], v{la}")
                    I(f"ds_read_b128 v[{TF+8}:{TF+11}], v{a2} offset:1024")
                    for k in range(2):
                        base = 16*t + 2*k
                        I(f"s_mov_b32 s42, {base*512 + ((N//2-HN)*512 if t >= 2 else 0)}")
                        va = ga
                        if t == 1:
                            va = TF + 14
                            I(f"v_cmp_le_u32 vcc, {HN-base}, v{r0}")
                            I(f"v_add_u32 v{TF+15}, {(N//2-HN)*512}, v{ga}")
                            I(f"s_sub_u32 s43, s41, {base}")
                            I(f"v_cndmask_b32 v{va}, v{ga}, v{TF+15}, vcc")
                            I(f"v_cmp_gt_i32 s[44:45], s43, v{r0}")
                            e.nop(1)
                            I("s_or_b64 exec, vcc, s[44:45]")
                        if t == 3:
                            I(f"s_sub_u32 s43, s41, {base-HN}")
                            I(f"v_cmp_gt_i32 vcc, s43, v{r0}")
                            e.nop(1)
                            I("s_mov_b64 exec, vcc")
                        I(f"s_waitcnt lgkmcnt({1-k})")
                        if t == 3: I(f"s_cbranch_execz L2_wo3{k}")
                        I(f"buffer_store_dwordx4 v[{TF+4+4*k}:{TF+7+4*k}], v{va}, s[12:15], s42 offen {fl}")
                        if t == 3: e.label(f"L2_wo3{k}")
                        if t in (1, 3): I("s_mov_b64 exec, -1")
                    if t != 2:
                        I(f"v_mov_b32 v{a1}, 1")
                        I("s_mov_b64 exec, 1")
                        I(f"ds_add_u32 v{z}, v{a1} offset:{OUTR + 4*t}")
                        I("s_mov_b64 exec, -1")
                else:
                    I(f"s_mov_b32 s42, {t*16*512 + ((N//2-HN)*512 if t >= 2 else 0)}")
                    va = X1
                    if t == 1:
                        va = TF
                        I(f"v_add_u32 v{TF}, {(N//2-HN)*512}, v{X1}")
                        I(f"v_cndmask_b32 v{TF}, v{X1}, v{TF}, s[84:85]")
                        I("s_mov_b64 exec, s[94:95]")
                    if t == 3:
                        I("s_mov_b64 exec, s[50:51]")
                        I("s_cbranch_execz L2_nost3")
                    for i in range(4):
                        I(f"buffer_store_dwordx2 v[{TF+4+2*i}:{TF+5+2*i}], v{va}, s[12:15], s42 offen offset:{i*128} {c.out_flags if (t == 2 or c.out_early is None) else c.out_early}")
                    if t == 3: e.label("L2_nost3")
                    if t in (1, 3): I("s_mov_b64 exec, -1")
                e.label(f"L2_nofin{t}")
    stamp(e, c, 11)
    I("s_cmp_lg_u32 s24, 0")
    e.branch("s_cbranch_scc1 L2_m_exit")
    I("s_add_u32 s89, s89, 1")
    I("s_branch L2_m_slow")
    e.label("L2_m_overflow")
    I("s_mov_b32 s89, 0")
    I("s_mov_b32 s23, 1")
    I("s_waitcnt vmcnt(0)")
    for k in range(64):
        I(f"v_mov_b32 v{G+k}, 0")
    e.label("L2_m_slow")
    I("s_waitcnt vmcnt(0) lgkmcnt(0)")
    I("s_barrier")
    I(f"s_cmp_eq_u32 s89, {2*NCH-1}")
    I("s_cselect_b32 s24, 1, 0")
    I("s_cmp_lg_u32 s21, 1")
    I("s_cbranch_scc1 L2_m_nz")
    for k in range(4): I(f"v_mov_b32 v{TF+k}, 0")
    I(f"v_lshlrev_b32 v{TF+4}, 2, v{X0}")
    I(f"ds_write_b128 v{TF+4}, v[{TF}:{TF+3}]")
    I("s_waitcnt lgkmcnt(0)")
    e.label("L2_m_nz")
    I("s_barrier")
    e.branch("s_branch L2_m_round")
    e.label("L2_m_exit")
    if c.stamps:
        I("s_waitcnt vmcnt(0)")
        stamp(e, c, 12)
        stamp_store(e, c, TF)
    e.label("L_end")
    I("s_endpgm")
    e.label("L_codeend")
    return KNAME, 128, 96

def gather_loop(e, c, L):
    I = e.I
    RAW, T, NEXT, DONE, GDONE, OSC, PL1, BREADY, INFO = (L[k] for k in "RAW T NEXT DONE GDONE OSC PL1 BREADY INFO".split())
    VLANE, VINFO, VNEXT, VLOFF, VMASK, VOW, VOR, VSCRW, VTRA, VWR, VL16, VT0, VT1, VONE = (L[k] for k in
        "VLANE VINFO VNEXT VLOFF VMASK VOW VOR VSCRW VTRA VWR VL16 VT0 VT1 VONE".split())
    ACC, LD, B, A, AD = 0, 32, 64, 96, 100
    sA, sR, sH, sN, sNV = 32, 33, 34, 35, 37
    sCN, sCH, sCF, sCR, sL = 38, 39, 40, 41, 36
    uid = [0]
    def lab(p):
        uid[0] += 1
        return f"L2_{p}{uid[0]}"
    def fetch_issue():
        I("s_mov_b64 exec, 1")
        I(f"ds_add_rtn_u32 v{VNEXT}, v{VL16}, v{VONE} offset:{NEXT}")
        I("s_mov_b64 exec, -1")
    NIT = 2*NODES + (16 if c.split else 0)
    def setup_item(none_label):
        I(f"v_readfirstlane_b32 s42, v{VNEXT}")
        e.nop(1)
        if c.static1: I("s_add_u32 s42, s42, 12")
        I(f"s_cmp_ge_u32 s42, {NIT}")
        I(f"s_cbranch_scc1 {none_label}")
        t, sp, dn = lab("bw"), lab("sp"), lab("sd")
        if c.split:
            I(f"s_cmp_ge_u32 s42, {2*NODES-16}")
            I(f"s_cbranch_scc1 {sp}")
        I(f"s_cmp_ge_u32 s42, {NODES}")
        I(f"s_cselect_b32 s{sH}, 256, 0")
        I(f"s_cselect_b32 s43, {NODES}, 0")
        I(f"s_cmp_ge_u32 s42, {NODES+16}")
        I(f"s_cselect_b32 s43, {NODES-32}, s43")
        I(f"s_cmp_ge_u32 s42, {NODES+18}")
        I(f"s_cselect_b32 s43, {NODES+2}, s43")
        I(f"s_sub_u32 s{sN}, s42, s43")
        I(f"s_cmp_lt_u32 s{sN}, s48")
        I(f"s_cbranch_scc1 {t}")
        stamp(e, c, 29)
        I(f"v_mov_b32 v{VT0}, 0")
        spin(e, t, VT1, VT0, BREADY, 4, 45, 44, sleep=1)
        I(f"v_lshrrev_b32 v{VT0}, 2, v{VL16}")
        I(f"ds_read_b32 v{VINFO}, v{VT0} offset:{INFO}")
        I("s_movk_i32 s48, 64")
        I("s_waitcnt lgkmcnt(0)")
        stamp(e, c, 30)
        e.label(t)
        I(f"v_readlane_b32 s42, v{VINFO}, s{sN}")
        e.nop(1)
        I(f"s_lshr_b32 s{sR}, s42, 16")
        I("s_and_b32 s42, s42, 0xffff")
        I(f"s_lshl_b32 s{sA}, s42, 4")
        if c.split:
            I(f"s_branch {dn}")
            e.label(sp)
            I(f"s_sub_u32 s42, s42, {2*NODES-16}")
            I("s_lshr_b32 s43, s42, 1")
            I(f"s_add_u32 s{sN}, s43, 32")
            I(f"s_cmp_lt_u32 s{sN}, s48")
            I(f"s_cbranch_scc1 {t}b")
            I(f"v_mov_b32 v{VT0}, 0")
            spin(e, t + "c", VT1, VT0, BREADY, 4, 45, 44, sleep=1)
            I(f"v_lshrrev_b32 v{VT0}, 2, v{VL16}")
            I(f"ds_read_b32 v{VINFO}, v{VT0} offset:{INFO}")
            I("s_movk_i32 s48, 64")
            I("s_waitcnt lgkmcnt(0)")
            e.label(t + "b")
            I(f"v_readlane_b32 s44, v{VINFO}, s{sN}")
            I(f"s_movk_i32 s{sH}, 256")
            I(f"s_lshr_b32 s{sR}, s44, 16")
            I("s_and_b32 s44, s44, 0xffff")
            I(f"s_min_u32 s45, s{sR}, 32")
            I("s_bitcmp1_b32 s42, 0")
            I(f"s_cbranch_scc1 {sp}h")
            I(f"s_mov_b32 s{sR}, s45")
            I(f"s_lshl_b32 s{sA}, s44, 4")
            I(f"s_branch {dn}")
            e.label(sp + "h")
            I(f"s_sub_u32 s{sR}, s{sR}, s45")
            I("s_add_u32 s44, s44, s45")
            I(f"s_lshl_b32 s{sA}, s44, 4")
            I(f"s_or_b32 s{sN}, s43, 64")
            e.label(dn)
    def off_read(hf):
        I(f"ds_read_b128 v[{AD}:{AD+3}], v{VOR} offset:{OSC+128*hf}")
        I(f"ds_read_b128 v[{AD+4}:{AD+7}], v{VOR} offset:{OSC+128*hf+16}")
    def off_add():
        if c.addtid: return
        for i in range(8):
            I(f"v_add_u32 v{AD+i}, v{AD+i}, v{VLOFF}")
    def prep_block():
        r = B
        I(f"v_add_u32 v{VT0}, s{sA}, v{VL16}")
        I(f"ds_read_b128 v[{r}:{r+3}], v{VT0} offset:{RAW}")
        l = lab("nf")
        I(f"s_cmp_gt_u32 s{sR}, 64")
        I(f"s_cbranch_scc1 {l}")
        fetch_issue()
        e.label(l)
        I(f"v_cmp_gt_u32 vcc, s{sR}, v{VLANE}")
        I("s_waitcnt lgkmcnt(0)")
        I(f"v_lshrrev_b32 v{r+11}, 16, v{r+3}")
        if c.addtid:
            I(f"v_lshlrev_b32 v{r+11}, 5, v{r+11}")
            I(f"v_sub_u32 v{r+11}, v{r+11}, v{VLOFF}")
        else:
            I(f"v_lshlrev_b32 v{r+11}, 9, v{r+11}")
            if c.oobtail: I(f"v_cndmask_b32 v{r+11}, 2.0, v{r+11}, vcc")
        I(f"ds_write_b32 v{VOW}, v{r+11} offset:{OSC}")
        off_read(0)
        if not c.x_noexp:
            I(f"v_cndmask_b32 v{r}, 0, v{r}, vcc")
            I(f"v_cndmask_b32 v{r+1}, 0, v{r+1}, vcc")
            I(f"v_lshlrev_b32 v{r+8}, 16, v{r+2}")
            I(f"v_and_b32 v{r+9}, v{VMASK}, v{r+2}")
            I(f"v_lshlrev_b32 v{r+10}, 16, v{r+3}")
            I(f"v_lshlrev_b32 v{r+4}, 16, v{r}")
            I(f"v_and_b32 v{r+5}, v{VMASK}, v{r}")
            I(f"v_lshlrev_b32 v{r+6}, 16, v{r+1}")
            I(f"v_and_b32 v{r+7}, v{VMASK}, v{r+1}")
            for j in range(3):
                for d in range(4):
                    I(f"v_mul_f32 v{r+12+4*j+d}, v{r+4+d}, v{r+8+j}")
            I(f"v_cvt_pk_bf16_f32 v{r+2}, v{r+12}, v{r+13}")
            I(f"v_cvt_pk_bf16_f32 v{r+3}, v{r+14}, v{r+15}")
            for k in range(4):
                I(f"v_cvt_pk_bf16_f32 v{r+24+k}, v{r+16+2*k}, v{r+17+2*k}")
        I(f"ds_write_b128 v{VSCRW}, v[{r}:{r+3}]")
        I(f"ds_write_b128 v{VSCRW}, v[{r+24}:{r+27}] offset:{PL1}")
        I("s_waitcnt lgkmcnt(2)")
        off_add()
    def ld(i):
        if c.x_noload: return
        I(f"buffer_load_dwordx4 v[{LD+4*i}:{LD+4*i+3}], v{AD+i}, s[4:7], {'0' if c.x_samehalf else 's%d' % sH} {'idxen' if c.addtid else 'offen'}")
    def perm(q, jj, k16=False):
        if c.x_noperm: return
        d = B + 2*q + jj if k16 else B + 4*q + jj
        I(f"v_perm_b32 v{d}, v{LD+4*(2*jj+1)+q//2}, v{LD+4*(2*jj)+q//2}, s{29 if q & 1 else 28}")
    def loads_partial(done):
        for i in range(7):
            I(f"s_cmp_le_u32 s{sL}, {4*i}")
            I(f"s_cbranch_scc1 {done}")
            ld(i)
    def perms_loads():
        part, done = lab("pp"), lab("pd")
        I("s_waitcnt vmcnt(0)")
        I(f"s_cmp_le_u32 s{sL}, 28")
        I(f"s_cbranch_scc1 {part}")
        for jj in range(4):
            for q in range(8): perm(q, jj)
            ld(2*jj); ld(2*jj+1)
        I(f"s_branch {done}")
        e.label(part)
        for jj in range(4):
            for q in range(8): perm(q, jj)
        loads_partial(done)
        e.label(done)
    def mfmas(first, k16=False):
        if c.x_nomfma: return
        for q in range(8):
            d = f"v[{ACC+4*q}:{ACC+4*q+3}]"
            if k16: I(f"v_mfma_f32_16x16x16_bf16 {d}, v[{A}:{A+1}], v[{B+2*q}:{B+2*q+1}], {'0' if first else d}")
            else: I(f"v_mfma_f32_16x16x32_bf16 {d}, v[{A}:{A+3}], v[{B+4*q}:{B+4*q+3}], {'0' if first else d}")
    def tr_read(hf):
        I(f"ds_read_b64_tr_b16 v[{A}:{A+1}], v{VTRA} offset:{512*hf}")
        I(f"ds_read_b64_tr_b16 v[{A+2}:{A+3}], v{VTRA} offset:{512*hf+256}")

    if c.stamps: I("s_mov_b32 s92, 16")
    setup_item("L2_g_done")
    prep_block()
    for i in range(8): ld(i)
    for first in (1, 0):
        e.label(f"L2_A{first}")
        tr_read(0)
        I(f"s_cmp_gt_u32 s{sR}, 32")
        I(f"s_cbranch_scc1 L2_AB{first}")
        I(f"s_mov_b32 s{sCF}, {first}")
        I(f"s_mov_b32 s{sCR}, s{sR}")
        I("s_branch L2_XN")
        e.label(f"L2_AB{first}")
        off_read(1)
        I(f"s_sub_u32 s{sL}, s{sR}, 32")
        I("s_waitcnt lgkmcnt(0)")
        off_add()
        perms_loads()
        mfmas(first)
        if first: I("s_branch L2_B")
    e.label("L2_B")
    tr_read(1)
    I(f"s_cmp_gt_u32 s{sR}, 64")
    I("s_cbranch_scc0 L2_BN")
    I(f"s_sub_u32 s{sR}, s{sR}, 64")
    I(f"s_add_u32 s{sA}, s{sA}, 1024")
    I(f"s_mov_b32 s{sL}, s{sR}")
    prep_block()
    perms_loads()
    I("s_waitcnt lgkmcnt(0)")
    mfmas(0)
    I("s_branch L2_A0")
    e.label("L2_BN")
    I(f"s_mov_b32 s{sCF}, 0")
    I(f"s_sub_u32 s{sCR}, s{sR}, 32")
    e.label("L2_XN")
    I(f"s_mov_b32 s{sCN}, s{sN}")
    I(f"s_mov_b32 s{sCH}, s{sH}")
    I(f"s_mov_b32 s{sNV}, 1")
    setup_item("L2_XN_none")
    I(f"s_mov_b32 s{sL}, s{sR}")
    prep_block()
    I("s_branch L2_XN_go")
    e.label("L2_XN_none")
    I(f"s_mov_b32 s{sNV}, 0")
    I(f"s_mov_b32 s{sL}, 0")
    e.label("L2_XN_go")
    I(f"s_cmp_le_u32 s{sCR}, 16")
    I("s_cbranch_scc1 L2_XN_k16")
    perms_loads()
    I("s_waitcnt lgkmcnt(0)")
    I(f"s_cmp_eq_u32 s{sCF}, 0")
    I("s_cbranch_scc1 L2_XN_acc")
    mfmas(1)
    I("s_branch L2_XN_epi")
    e.label("L2_XN_acc")
    mfmas(0)
    I("s_branch L2_XN_epi")
    e.label("L2_XN_k16")
    I("s_waitcnt vmcnt(0)")
    for jj in range(2):
        for q in range(8): perm(q, jj, True)
    I(f"s_cmp_le_u32 s{sL}, 28")
    I("s_cbranch_scc1 L2_XN_k16p")
    for i in range(8): ld(i)
    I("s_branch L2_XN_k16d")
    e.label("L2_XN_k16p")
    loads_partial("L2_XN_k16d")
    e.label("L2_XN_k16d")
    I("s_waitcnt lgkmcnt(0)")
    I(f"s_cmp_eq_u32 s{sCF}, 0")
    I("s_cbranch_scc1 L2_XN_k16acc")
    mfmas(1, True)
    I("s_branch L2_XN_epi")
    e.label("L2_XN_k16acc")
    mfmas(0, True)
    e.label("L2_XN_epi")
    I(f"s_lshl_b32 s42, s{sCH}, 5")
    I(f"v_add_u32 v{VT0}, s42, v{VWR}")
    for q in range(8):
        I(f"ds_read_b128 v[{B+4*q}:{B+4*q+3}], v{VT0} offset:{q*1024}")
    I(f"s_lshr_b32 s43, s{sCN}, 4")
    I(f"s_lshl_b32 s43, s43, 2")
    I(f"s_cmp_eq_u32 s{sCH}, 0")
    I("s_cbranch_scc1 L2_nowar")
    I(f"v_mov_b32 v{VT1}, s43")
    spin(e, "war", VT0, VT1, GDONE, 4, 45, 44)
    if c.split:
        I("s_cmp_eq_u32 s43, 16")
        I("s_cselect_b32 s43, 8, s43")
    I("s_add_u32 s43, s43, 16")
    e.label("L2_nowar")
    I(f"s_and_b32 s44, s{sCN}, 15")
    I("s_lshl_b32 s44, s44, 4")
    I(f"s_and_b32 s45, s{sCN}, 63")
    I(f"s_lshl_b32 s45, s45, 10")
    I(f"s_add_u32 s45, s45, {T}")
    I(f"v_xor_b32 v{VT0}, s44, v{VL16}")
    I(f"v_add_u32 v{VT0}, s45, v{VT0}")
    I(f"v_mov_b32 v{VT1}, s43")
    I("s_waitcnt lgkmcnt(0)")
    for q in range(8):
        I(f"v_mul_f32 v{B+4*q}, v{B+4*q}, v{ACC+4*q}")
    for d in range(1, 4):
        for q in range(8):
            I(f"v_fmac_f32 v{B+4*q}, v{B+4*q+d}, v{ACC+4*q+d}")
    for k in range(4):
        I(f"v_cvt_pk_bf16_f32 v{A+k}, v{B+8*k}, v{B+8*k+4}")
    I(f"ds_write_b128 v{VT0}, v[{A}:{A+3}]")
    if not c.nowait: I("s_waitcnt lgkmcnt(0)")
    I("s_mov_b64 exec, 1")
    I(f"ds_add_u32 v{VT1}, v{VONE} offset:{DONE}")
    I("s_mov_b64 exec, -1")
    if c.stamps:
        I("s_memrealtime s[90:91]")
        I("s_waitcnt lgkmcnt(0)")
        I("s_mov_b32 m0, s92")
        I(f"v_writelane_b32 v{STV}, s90, m0")
        I("s_add_u32 s92, s92, 1")
        I("s_min_u32 s92, s92, 23")
    I(f"s_cmp_lg_u32 s{sNV}, 0")
    I("s_cbranch_scc1 L2_A1")

def gather_loop_s(e, c, L):
    I = e.I
    RAW, T, NEXT, DONE, GDONE, OSC, PL1, BREADY, INFO = (L[k] for k in "RAW T NEXT DONE GDONE OSC PL1 BREADY INFO".split())
    VLANE, VINFO, VNEXT, VLOFF, VMASK, VOW, VOR, VSCRW, VTRA, VWR, VL16, VT0, VT1, VONE = (L[k] for k in
        "VLANE VINFO VNEXT VLOFF VMASK VOW VOR VSCRW VTRA VWR VL16 VT0 VT1 VONE".split())
    VTRB, VIDX = L["VJ"], L["VSEL"]
    ACC, LD, B, A, AD = 0, 32, 64, 96, 100
    sA, sR, sH, sN, sNV = 32, 33, 34, 35, 37
    sCN, sCH, sCR, sL = 38, 39, 41, 36
    uid = [0]
    def lab(p):
        uid[0] += 1
        return f"L3_{p}{uid[0]}"
    def fetch_issue():
        I("s_mov_b64 exec, 1")
        I(f"ds_add_rtn_u32 v{VNEXT}, v{VL16}, v{VONE} offset:{NEXT}")
        I("s_mov_b64 exec, -1")
    def setup_item(none_label):
        I(f"v_readfirstlane_b32 s42, v{VNEXT}")
        e.nop(1)
        I(f"s_cmp_ge_u32 s42, {2*NODES}")
        I(f"s_cbranch_scc1 {none_label}")
        I(f"s_cmp_ge_u32 s42, {NODES}")
        I(f"s_cselect_b32 s{sH}, 256, 0")
        I(f"s_cselect_b32 s43, {NODES}, 0")
        I(f"s_cmp_ge_u32 s42, {NODES+16}")
        I(f"s_cselect_b32 s43, {NODES-32}, s43")
        I(f"s_cmp_ge_u32 s42, {NODES+18}")
        I(f"s_cselect_b32 s43, {NODES+2}, s43")
        I(f"s_sub_u32 s{sN}, s42, s43")
        t = lab("bw")
        I(f"s_cmp_lt_u32 s{sN}, s48")
        I(f"s_cbranch_scc1 {t}")
        stamp(e, c, 29)
        I(f"v_mov_b32 v{VT0}, 0")
        spin(e, t, VT1, VT0, BREADY, 4, 45, 44, sleep=1)
        I(f"v_lshrrev_b32 v{VT0}, 2, v{VL16}")
        I(f"ds_read_b32 v{VINFO}, v{VT0} offset:{INFO}")
        I("s_movk_i32 s48, 64")
        I("s_waitcnt lgkmcnt(0)")
        stamp(e, c, 30)
        e.label(t)
        I(f"v_readlane_b32 s42, v{VINFO}, s{sN}")
        e.nop(1)
        I(f"s_lshr_b32 s{sR}, s42, 16")
        I("s_and_b32 s42, s42, 0xffff")
        I(f"s_lshl_b32 s{sA}, s42, 4")
    def off_read(hf):
        I(f"ds_read_b128 v[{AD}:{AD+3}], v{VOR} offset:{OSC+128*hf}")
        I(f"ds_read_b128 v[{AD+4}:{AD+7}], v{VOR} offset:{OSC+128*hf+16}")
    def off_add():
        for i in range(8):
            I(f"v_add_u32 v{AD+i}, v{AD+i}, v{VLOFF}")
    def prep_block():
        r = B
        I(f"v_add_u32 v{VT0}, s{sA}, v{VL16}")
        I(f"ds_read_b128 v[{r}:{r+3}], v{VT0} offset:{RAW}")
        l = lab("nf")
        I(f"s_cmp_gt_u32 s{sR}, 64")
        I(f"s_cbranch_scc1 {l}")
        fetch_issue()
        e.label(l)
        I(f"v_cmp_gt_u32 vcc, s{sR}, v{VLANE}")
        I("s_waitcnt lgkmcnt(0)")
        I(f"v_lshrrev_b32 v{r+11}, 16, v{r+3}")
        I(f"v_lshlrev_b32 v{r+11}, 9, v{r+11}")
        I(f"v_cndmask_b32 v{r+11}, 2.0, v{r+11}, vcc")
        I(f"ds_write_b32 v{VOW}, v{r+11} offset:{OSC}")
        off_read(0)
        I(f"v_cndmask_b32 v{r}, 0, v{r}, vcc")
        I(f"v_cndmask_b32 v{r+1}, 0, v{r+1}, vcc")
        I(f"v_lshlrev_b32 v{r+8}, 16, v{r+2}")
        I(f"v_and_b32 v{r+9}, v{VMASK}, v{r+2}")
        I(f"v_lshlrev_b32 v{r+10}, 16, v{r+3}")
        I(f"v_lshlrev_b32 v{r+4}, 16, v{r}")
        I(f"v_and_b32 v{r+5}, v{VMASK}, v{r}")
        I(f"v_lshlrev_b32 v{r+6}, 16, v{r+1}")
        I(f"v_and_b32 v{r+7}, v{VMASK}, v{r+1}")
        for j in range(3):
            for d in range(4):
                I(f"v_mul_f32 v{r+12+4*j+d}, v{r+4+d}, v{r+8+j}")
        I(f"v_cvt_pk_bf16_f32 v{r+2}, v{r+12}, v{r+13}")
        I(f"v_cvt_pk_bf16_f32 v{r+3}, v{r+14}, v{r+15}")
        for k in range(4):
            I(f"v_cvt_pk_bf16_f32 v{r+24+k}, v{r+16+2*k}, v{r+17+2*k}")
        I(f"ds_write_b128 v{VSCRW}, v[{r}:{r+3}]")
        I(f"ds_write_b128 v{VSCRW}, v[{r+24}:{r+27}] offset:{PL1}")
        I("s_waitcnt lgkmcnt(2)")
        off_add()
    def ld(i):
        if c.x_noload: return
        I(f"buffer_load_dwordx4 v[{LD+4*i}:{LD+4*i+3}], v{AD+i}, s[4:7], s{sH} offen")
    def moves(jj, k16=False):
        for p in range(4):
            d = B + (4 if k16 else 8) * p + 2 * jj
            a, b = LD + 8*jj + (p & 2), LD + 8*jj + 4 + (p & 2)
            I(f"v_pk_mov_b32 v[{d}:{d+1}], v[{a}:{a+1}], v[{b}:{b+1}] op_sel:[{p&1},{p&1}]")
    def loads_partial(done):
        for i in range(7):
            I(f"s_cmp_le_u32 s{sL}, {4*i}")
            I(f"s_cbranch_scc1 {done}")
            ld(i)
    def moves_loads():
        part, done = lab("pp"), lab("pd")
        I("s_waitcnt vmcnt(0)")
        I(f"s_cmp_le_u32 s{sL}, 28")
        I(f"s_cbranch_scc1 {part}")
        for jj in range(4):
            moves(jj)
            ld(2*jj); ld(2*jj+1)
        I(f"s_branch {done}")
        e.label(part)
        for jj in range(4): moves(jj)
        loads_partial(done)
        e.label(done)
    def macs(k16=False):
        for q in range(8):
            d = f"v[{ACC+4*q}:{ACC+4*q+3}]"
            p = q >> 1
            if k16: I(f"v_smfmac_f32_16x16x32_bf16 {d}, v[{A}:{A+1}], v[{B+4*p}:{B+4*p+3}], v{VIDX} cbsz:0 abid:{2*(q&1)}")
            else: I(f"v_smfmac_f32_16x16x64_bf16 {d}, v[{A}:{A+3}], v[{B+8*p}:{B+8*p+7}], v{VIDX} cbsz:0 abid:{q&1}")
    def tr32(hf):
        I(f"ds_read_b64_tr_b16 v[{A}:{A+1}], v{VTRB} offset:{512*hf}")
        I(f"ds_read_b64_tr_b16 v[{A+2}:{A+3}], v{VTRB} offset:{512*hf+16}")
    def tr16(hf):
        I(f"ds_read_b64_tr_b16 v[{A}:{A+1}], v{VTRA} offset:{512*hf}")
    def zero_acc():
        if c.zpk:
            for k in range(0, 32, 2): I(f"v_pk_mov_b32 v[{ACC+k}:{ACC+k+1}], 0, 0")
        else:
            for k in range(32): I(f"v_mov_b32 v{ACC+k}, 0")

    if c.stamps: I("s_mov_b32 s92, 16")
    I(f"v_lshrrev_b32 v{VT0}, 4, v{VLANE}")
    I(f"v_lshrrev_b32 v{VT1}, 5, v{VLANE}")
    I(f"v_mul_u32_u24 v{VT1}, 12, v{VT1}")
    I(f"v_add_u32 v{VT0}, v{VT0}, v{VT1}")
    I(f"v_lshl_add_u32 v{VTRB}, v{VT0}, 4, v{VTRA}")
    I(f"v_mov_b32 v{VIDX}, 0xdddd8888")
    setup_item("L2_g_done")
    prep_block()
    for i in range(8): ld(i)
    zero_acc()
    e.label("L3_A")
    I(f"s_mov_b32 s{sCR}, s{sR}")
    I(f"s_cmp_gt_u32 s{sR}, 32")
    I("s_cbranch_scc0 L3_AN")
    tr32(0)
    off_read(1)
    I(f"s_sub_u32 s{sL}, s{sR}, 32")
    I("s_waitcnt lgkmcnt(0)")
    off_add()
    moves_loads()
    macs()
    I(f"s_sub_u32 s{sCR}, s{sR}, 32")
    I(f"s_cmp_gt_u32 s{sR}, 64")
    I("s_cbranch_scc0 L3_BN")
    tr32(1)
    I(f"s_sub_u32 s{sR}, s{sR}, 64")
    I(f"s_add_u32 s{sA}, s{sA}, 1024")
    I(f"s_mov_b32 s{sL}, s{sR}")
    prep_block()
    moves_loads()
    I("s_waitcnt lgkmcnt(0)")
    macs()
    I("s_branch L3_A")
    for hf, nm in ((0, "AN"), (1, "BN")):
        e.label(f"L3_{nm}")
        I(f"s_cmp_le_u32 s{sCR}, 16")
        I(f"s_cbranch_scc1 L3_{nm}16")
        tr32(hf)
        I("s_branch L3_XN")
        e.label(f"L3_{nm}16")
        tr16(hf)
        if hf == 0: I("s_branch L3_XN")
    e.label("L3_XN")
    I(f"s_mov_b32 s{sCN}, s{sN}")
    I(f"s_mov_b32 s{sCH}, s{sH}")
    I(f"s_mov_b32 s{sNV}, 1")
    setup_item("L3_XN_none")
    I(f"s_mov_b32 s{sL}, s{sR}")
    prep_block()
    I("s_branch L3_XN_go")
    e.label("L3_XN_none")
    I(f"s_mov_b32 s{sNV}, 0")
    I(f"s_mov_b32 s{sL}, 0")
    e.label("L3_XN_go")
    I(f"s_cmp_le_u32 s{sCR}, 16")
    I("s_cbranch_scc1 L3_XN_k16")
    moves_loads()
    I("s_waitcnt lgkmcnt(0)")
    macs()
    I("s_branch L3_XN_epi")
    e.label("L3_XN_k16")
    I("s_waitcnt vmcnt(0)")
    moves(0, True); moves(1, True)
    I(f"s_cmp_le_u32 s{sL}, 28")
    I("s_cbranch_scc1 L3_XN_k16p")
    for i in range(8): ld(i)
    I("s_branch L3_XN_k16d")
    e.label("L3_XN_k16p")
    loads_partial("L3_XN_k16d")
    e.label("L3_XN_k16d")
    I("s_waitcnt lgkmcnt(0)")
    macs(True)
    e.label("L3_XN_epi")
    I(f"s_lshl_b32 s42, s{sCH}, 5")
    I(f"v_add_u32 v{VT0}, s42, v{VWR}")
    for q in range(8):
        I(f"ds_read_b128 v[{B+4*q}:{B+4*q+3}], v{VT0} offset:{q*1024}")
    I(f"s_lshr_b32 s43, s{sCN}, 4")
    I(f"s_lshl_b32 s43, s43, 2")
    I(f"s_cmp_eq_u32 s{sCH}, 0")
    I("s_cbranch_scc1 L3_nowar")
    I(f"v_mov_b32 v{VT1}, s43")
    spin(e, "war", VT0, VT1, GDONE, 4, 45, 44)
    I("s_add_u32 s43, s43, 16")
    e.label("L3_nowar")
    I(f"s_and_b32 s44, s{sCN}, 15")
    I("s_lshl_b32 s44, s44, 4")
    I(f"s_lshl_b32 s45, s{sCN}, 10")
    I(f"s_add_u32 s45, s45, {T}")
    I(f"v_xor_b32 v{VT0}, s44, v{VL16}")
    I(f"v_add_u32 v{VT0}, s45, v{VT0}")
    I(f"v_mov_b32 v{VT1}, s43")
    I("s_waitcnt lgkmcnt(0)")
    for q in range(8):
        I(f"v_mul_f32 v{B+4*q}, v{B+4*q}, v{ACC+4*q}")
    for d in range(1, 4):
        for q in range(8):
            I(f"v_fmac_f32 v{B+4*q}, v{B+4*q+d}, v{ACC+4*q+d}")
    for k in range(4):
        I(f"v_cvt_pk_bf16_f32 v{A+k}, v{B+8*k}, v{B+8*k+4}")
    I(f"ds_write_b128 v{VT0}, v[{A}:{A+3}]")
    I("s_mov_b64 exec, 1")
    I(f"ds_add_u32 v{VT1}, v{VONE} offset:{DONE}")
    I("s_mov_b64 exec, -1")
    zero_acc()
    if c.stamps:
        I("s_memrealtime s[90:91]")
        I("s_waitcnt lgkmcnt(0)")
        I("s_mov_b32 m0, s92")
        I(f"v_writelane_b32 v{STV}, s90, m0")
        I("s_add_u32 s92, s92, 1")
        I("s_min_u32 s92, s92, 23")
    I(f"s_cmp_lg_u32 s{sNV}, 0")
    I("s_cbranch_scc1 L3_A")

HEADER = """; equiformer tensor-product message passing, one persistent launch (one workgroup per CU):
"""

def gen_probe(e, c):
    kA, a0, a1, sA, oA, kB, b0, b1, sB, oB = c.probe.split(",")
    kernel_header(e, "eqprobe_kernel")
    I = e.I
    I("s_cmp_ge_u32 s2, 1")
    I("s_cbranch_scc1 LP_end")
    I("s_memrealtime s[20:21]")
    I("s_load_dwordx2 s[4:5], s[0:1], 88")
    I("s_waitcnt lgkmcnt(0)")
    srd(e, 8, 4, 32 << 20)
    I(f"v_min_u32 v1, {c.nwg-1}, v0")
    I("v_lshlrev_b32 v1, 11, v1")
    I("v_mov_b32 v10, 0"); I("v_mov_b32 v11, -1"); I("v_mov_b32 v12, 0")
    I("ds_write_b32 v10, v11 offset:0"); I("ds_write_b32 v10, v12 offset:4"); I("ds_write_b32 v10, v11 offset:8"); I("ds_write_b32 v10, v12 offset:12")
    I("s_waitcnt lgkmcnt(0)"); I("s_barrier")
    regs = []
    for (k, w0, w1, sl, off) in ((kA, a0, a1, sA, 0), (kB, b0, b1, sB, 8)):
        if k == "now":
            I(f"v_mov_b32 v{16+len(regs)}, s20"); regs.append(off); continue
        I(f"s_mov_b32 s12, {STAMPOFF}")
        for w in range(int(w0), int(w1)):
            I(f"buffer_load_dword v{16+len(regs)}, v1, s[8:11], s12 offen offset:{w*128 + int(sl)*4}")
            regs.append(off)
    I("s_waitcnt vmcnt(0)")
    for off, op in ((0, oA), (8, oB)):
        idx = [n for n, o in enumerate(regs) if o == off]
        for n in idx[1:]:
            I(f"v_{op}_u32 v{16+idx[0]}, v{16+idx[0]}, v{16+n}")
        I(f"ds_{op}_u32 v10, v{16+idx[0]} offset:{off + (0 if op == 'min' else 4)}")
    I("s_waitcnt lgkmcnt(0)"); I("s_barrier")
    I(f"ds_read_b32 v3, v10 offset:{0 if oA == 'min' else 4}")
    I(f"ds_read_b32 v4, v10 offset:{8 if oB == 'min' else 12}")
    I("s_waitcnt lgkmcnt(0)")
    I("v_sub_u32 v3, v3, v4")
    I("v_min_u32 v3, 0x2000, v3")
    I("v_readfirstlane_b32 s14, v3")
    I("s_memrealtime s[16:17]")
    I("s_mul_i32 s14, s14, 10")
    I("s_waitcnt lgkmcnt(0)")
    e.label("LP_spin")
    I("s_memrealtime s[18:19]")
    I("s_waitcnt lgkmcnt(0)")
    I("s_sub_u32 s18, s18, s16")
    I("s_cmp_lt_u32 s18, s14")
    I("s_cbranch_scc1 LP_spin")
    e.label("LP_end")
    I("s_endpgm")
    return "eqprobe_kernel", 64, 32

def generate(c):
    e = Emitter()
    e.raw('.amdgcn_target "amdgcn-amd-amdhsa--gfx950"')
    e.raw(".text")
    k = gen_main(e, c)
    head = HEADER + f"; @launch grid=({c.nwg},1,1) block=(1024,1,1) lds={c.lds}\n"
    tail = '.section .rodata,"a"\n.p2align 6\n' + kd(*k)
    if c.probe:
        kp = gen_probe(e, c)
        head = HEADER + f"; @launch kernel={KNAME} grid=({c.nwg},1,1) block=(1024,1,1) lds={c.lds}\n; @launch kernel=eqprobe_kernel grid=(1,1,1) block=(256,1,1) lds=64\n"
        tail += ".p2align 6\n" + kd(*kp)
    return head + e.text() + tail

if __name__ == "__main__":
    c = Cfg()
    out = sys.argv[1]
    for kv in sys.argv[2:]:
        k, v = kv.split("=", 1)
        old = getattr(c, k)
        setattr(c, k, type(old)(int(v)) if isinstance(old, (bool, int)) else v.replace("+", " "))
    open(out, "w").write(generate(c))
```

```python
import sys
from emit import Emitter

N, E = 12500, 800000
NODES, HN = 50, 25
NCH = 250
CSTRIDE = 70784
PAYOFF, TABOFF, KEYOFF = 0, 51200, 67584
KSTAGE = 51200
WSBYTES = NCH * CSTRIDE
KIN = 20
KNAME = "gather_scatter__tensor_product_equiv_equiformer__graph_kernel"
STAMPOFF = 24 << 20

class Cfg:
    nwg = 250
    st_flags = "sc1"
    ld_flags = "nt"
    rec_flags = "sc1"
    out_flags = "sc1"
    pfx_lines = 64
    pfx0_lines = 96
    stamps = False
    cap = 1888
    x_noperm = 0
    x_noexp = 0
    x_nomfma = 0
    x_noload = 0
    x_samehalf = 0
    x_nobload = 0
    codepf = 26
    tlbpf = 0
    codeearly = 0
    sleep = 12
    psleep = 2
    probe = ""
    addtid = 0
    split = 0
    static1 = 1
    cpfs = 1
    cpfstep = 64
    prio_pro = 0
    totlate = 0
    mallpf = 0
    mallpos = 0
    nop2 = 0
    pdelay = 0
    ppipe = 0
    pgap = 8
    wrlds = 0
    wideout = 1
    out_early = None
    paypos = 2
    pfwait = 0
    smf = 0
    zpk = 1
    splitw = 0
    cpfwg = 32
    wlate = 0
    coal = 1
    pf1_tile = -1
    pf1_lines = 256
    prio_g = 0
    prio_m = 0
    ld2_flags = None
    nowait = 1
    fastlast = 1
    pfx2_lines = 0
    pfx2_pos = 0
    oobtail = 1
    bearly = 1
    tidw3 = "0x00800000"

def srd(e, d, b, nbytes, w1=None, w3="0x20000"):
    e.I(f"s_mov_b32 s{d}, s{b}")
    if w1: e.I(f"s_or_b32 s{d+1}, s{b+1}, {w1}")
    else: e.I(f"s_mov_b32 s{d+1}, s{b+1}")
    e.I(f"s_mov_b32 s{d+2}, {nbytes}")
    e.I(f"s_mov_b32 s{d+3}, {w3}")

def scan64(e, v):
    for sh in (1, 2, 4, 8):
        e.I(f"v_add_u32_dpp v{v}, v{v}, v{v} row_shr:{sh} row_mask:0xf bank_mask:0xf")
    e.I(f"v_add_u32_dpp v{v}, v{v}, v{v} row_bcast:15 row_mask:0xa bank_mask:0xf")
    e.I(f"v_add_u32_dpp v{v}, v{v}, v{v} row_bcast:31 row_mask:0xc bank_mask:0xf")

def prefetch_x(e, nlines, vt, vtid, nthreads, slice_s, half, srdx, first=0, lds=False):
    if nlines <= 0: return 0
    e.I(f"s_mul_i32 s46, s{slice_s}, 782")
    if first: e.I(f"s_add_u32 s46, s46, {first}")
    e.I(f"s_mov_b32 s47, {nlines}")
    it = (nlines + nthreads - 1) // nthreads
    for k in range(it):
        e.I(f"v_add_u32 v{vt}, {k*nthreads}, v{vtid}")
        e.I(f"v_cmp_gt_u32 vcc, s47, v{vt}")
        e.I(f"v_add_u32 v{vt}, s46, v{vt}")
        e.I(f"v_and_b32 v{vt+1}, 1, v{vt}")
        e.I(f"v_lshrrev_b32 v{vt}, 1, v{vt}")
        e.I(f"v_lshlrev_b32 v{vt}, 9, v{vt}")
        e.I(f"v_lshl_add_u32 v{vt}, v{vt+1}, 7, v{vt}")
        e.I(f"v_cndmask_b32 v{vt}, 2.0, v{vt}, vcc")
        if lds:
            if half: e.I(f"v_add_u32 v{vt}, 256, v{vt}")
            e.I(f"buffer_load_dword v{vt}, s[{srdx}:{srdx+3}], 0 offen lds")
        else:
            e.I(f"buffer_load_dword v{vt+2}, v{vt}, s[{srdx}:{srdx+3}], 0 offen offset:{half*256}")
    return it

STV, TIDV = 127, 126
def stamp(e, c, slot, ins="s_memrealtime"):
    if not c.stamps: return
    e.I(f"{ins} s[90:91]")
    e.I("s_waitcnt lgkmcnt(0)")
    e.I(f"v_writelane_b32 v{STV}, s90, {slot}")

def stamp_store(e, c, vtmp):
    if not c.stamps: return
    e.I(f"v_lshrrev_b32 v{vtmp}, 6, v{TIDV}")
    e.I(f"s_lshl_b32 s90, s2, 4")
    e.I(f"v_add_u32 v{vtmp}, s90, v{vtmp}")
    e.I(f"v_lshlrev_b32 v{vtmp}, 7, v{vtmp}")
    e.I(f"v_and_b32 v{vtmp+1}, 63, v{TIDV}")
    e.I(f"v_lshl_add_u32 v{vtmp}, v{vtmp+1}, 2, v{vtmp}")
    e.I(f"v_cmp_gt_u32 vcc, 32, v{vtmp+1}")
    e.I(f"v_cndmask_b32 v{vtmp}, 2.0, v{vtmp}, vcc")
    e.I(f"s_mov_b32 s90, {STAMPOFF}")
    e.I(f"buffer_store_dword v{STV}, v{vtmp}, s[8:11], s90 offen")

def kernel_header(e, name):
    e.raw(f".globl {name}")
    e.raw(".p2align 8")
    e.raw(f".type {name},@function")
    e.raw(f"{name}:")
    e.hist = []

def kd(name, nv, ns):
    return f""".amdhsa_kernel {name}
  .amdhsa_next_free_vgpr {nv}
  .amdhsa_next_free_sgpr {ns}
  .amdhsa_accum_offset {(nv+3)//4*4}
  .amdhsa_group_segment_fixed_size 0
  .amdhsa_kernarg_size 96
  .amdhsa_user_sgpr_count 2
  .amdhsa_user_sgpr_kernarg_segment_ptr 1
  .amdhsa_system_sgpr_workgroup_id_x 1
  .amdhsa_float_denorm_mode_32 3
.end_amdhsa_kernel
"""

def path_of(jp, blk):
    if blk == 0: return (0, 0, 1) if jp == 0 else (2, jp, 1)
    k = blk - 1
    if jp == 0: return (3, 1 + k, 1)
    j = jp - 1
    if j == k: return (1, 0, 1)
    i = 3 - j - k
    return (4, 1 + i, 1 if k == (j + 1) % 3 else -1)

class Lay: pass

def spin(e, tag, vdst, vaddr, off, need, scnt, sval, sleep=None, bound="0x400000"):
    I = e.I
    I(f"s_mov_b32 s{scnt}, 0")
    e.label(f"L_sp{tag}")
    I(f"ds_read_b32 v{vdst}, v{vaddr} offset:{off}")
    I("s_waitcnt lgkmcnt(0)")
    I(f"v_readfirstlane_b32 s{sval}, v{vdst}")
    I(f"s_add_u32 s{scnt}, s{scnt}, 1")
    I(f"s_cmp_ge_u32 s{sval}, {need}")
    I(f"s_cbranch_scc1 L_sp{tag}_ok")
    if sleep: I(f"s_sleep {sleep}")
    I(f"s_cmp_lt_u32 s{scnt}, {bound}")
    I(f"s_cbranch_scc1 L_sp{tag}")
    e.label(f"L_sp{tag}_ok")

def tag_bad(e, dst, r, tmp, odd):
    I = e.I
    I(f"v_xor_b32 v{tmp}, s87, v{r}")
    I(f"v_xor_b32 v{dst}, s86, v{r+1}")
    I(f"v_lshrrev_b32 v{tmp}, 24, v{tmp}")
    I(f"v_or_b32 v{dst}, v{dst}, v{tmp}")
    I(f"v_xor_b32 v{tmp}, s3, v{r+3}")
    I(f"v_lshrrev_b32 v{tmp}, 12, v{tmp}")
    I(f"v_cndmask_b32 v{dst}, v{dst}, v{tmp}, {odd}")

def gen_main(e, c):
    L = Lay()
    CAP = c.cap
    NWG = c.nwg
    BOFF = CAP + 64
    HIST, HIST2, CUR2, CNT = 0, 256, 512, 768
    NEXT, DONE, GDONE, BSYNC, BREADY, TOTB = CNT, CNT + 16, CNT + 64, CNT + 96, CNT + 100, CNT + 104
    OUTW, OUTR, BST = CNT + 112, CNT + 128, CNT + 108
    HISTB, HIST2B, CUR2B, INFO, NONCE = 1024, 1280, 1536, 1792, 2048
    RAW = 2176
    T = (RAW + 2 * BOFF * 16 + 255) // 256 * 256
    WRAD = T + NODES * 1024
    SCR = WRAD + 16384
    H1 = WRAD
    TI = SCR
    CEB = RAW + BOFF * 16
    SSTR, PL1, OSC = 2368, (1040 if c.smf else 1056), 2080
    lds = max(SCR + 12 * SSTR, T + 64 * 1024)
    assert lds <= 163840 and 2 * BOFF >= 3200 + 64, lds
    c.lds = lds
    kernel_header(e, KNAME)
    I = e.I
    wsbytes = (32 << 20) if c.stamps else WSBYTES
    sf, rf, lf = c.st_flags, c.rec_flags, c.ld_flags
    ODD = "s[26:27]"
    I(f"s_cmp_ge_u32 s2, {NWG}")
    I("s_cbranch_scc1 L_end")
    if c.stamps:
        I(f"v_mov_b32 v{STV}, 0")
        I(f"v_mov_b32 v{TIDV}, v0")
    stamp(e, c, 0)
    stamp(e, c, 26, "s_memtime")
    I("s_load_dwordx8 s[32:39], s[0:1], 0")
    I("s_load_dwordx8 s[40:47], s[0:1], 32")
    if NWG > NCH:
        I(f"s_cmp_lt_u32 s2, {NCH}")
        I("s_cselect_b32 s51, 800, 0")
    else:
        I("s_movk_i32 s51, 800")
    if c.coal:
        I("s_mul_i32 s48, s2, 1600")
        I("v_add_u32 v3, s48, v0")
        I("v_cmp_gt_u32 vcc, s51, v0")
        I("v_lshlrev_b32 v28, 3, v3")
        I("v_lshlrev_b32 v30, 4, v3")
        I("v_mul_u32_u24 v3, 12, v3")
        I("v_add_u32 v29, 6400, v28")
        if c.paypos:
            I("v_add_u32 v31, 12800, v30")
            I("v_add_u32 v27, 9600, v3")
        I("s_and_saveexec_b64 s[26:27], vcc")
        I("s_cbranch_execz L1_noload")
        I("s_waitcnt lgkmcnt(0)")
        I(f"global_load_dwordx2 v[4:5], v28, s[40:41] {lf}")
        I(f"global_load_dwordx2 v[6:7], v29, s[40:41] {lf}")
        if not c.paypos:
            I("v_add_u32 v31, 12800, v30")
            I("v_add_u32 v27, 9600, v3")
        lds_ = [f"global_load_dwordx2 v[8:9], v28, s[38:39] {lf}", f"global_load_dwordx2 v[10:11], v29, s[38:39] {lf}",
                f"global_load_dwordx4 v[12:15], v30, s[36:37] {lf}", f"global_load_dwordx4 v[16:19], v31, s[36:37] {lf}",
                f"global_load_dwordx3 v[20:22], v3, s[34:35] {lf}", f"global_load_dwordx3 v[24:26], v27, s[34:35] {lf}"]
        def pay_loads():
            for k in ((0, 2, 4, 1, 3, 5) if c.splitw == 2 else range(6)): I(lds_[k])
        if c.paypos == 0: pay_loads()
    else:
        I("s_mul_i32 s48, s2, 800")
        I("v_add_u32 v3, s48, v0")
        I("v_cmp_gt_u32 vcc, s51, v0")
        I("v_lshlrev_b32 v26, 4, v3")
        I("v_lshlrev_b32 v27, 5, v3")
        I("v_mul_u32_u24 v3, 24, v3")
        I("s_and_saveexec_b64 s[26:27], vcc")
        I("s_cbranch_execz L1_noload")
        I("s_waitcnt lgkmcnt(0)")
        l2 = lf if c.ld2_flags is None else c.ld2_flags
        I(f"global_load_dwordx4 v[4:7], v26, s[40:41] {l2}")
        I(f"global_load_dwordx4 v[8:11], v26, s[38:39] {l2}")
        I(f"global_load_dwordx4 v[12:15], v27, s[36:37] {lf}")
        I(f"global_load_dwordx4 v[16:19], v27, s[36:37] offset:16 {lf}")
        I(f"global_load_dwordx4 v[20:23], v3, s[34:35] {lf}")
        I(f"global_load_dwordx2 v[24:25], v3, s[34:35] offset:16 {lf}")
    e.label("L1_noload")
    I("s_mov_b64 exec, -1")
    if c.paypos == 3:
        I(f"v_lshlrev_b32 v40, 1, v0")
        I(f"v_and_b32 v40, -4, v40")
        I(f"v_add_u32 v40, {H1}, v40")
        I("v_mov_b32 v41, 0")
        I("ds_write_b32 v40, v41")
        I("s_waitcnt lgkmcnt(0)")
        I("s_barrier")
        I("s_and_saveexec_b64 s[26:27], vcc")
        I("s_cbranch_execz L1_noload2")
        pay_loads()
        e.label("L1_noload2")
        I("s_mov_b64 exec, -1")
    if c.codepf and c.codeearly:
        I("s_getpc_b64 s[52:53]")
        I(f"s_mov_b32 s54, {c.codepf*1024}")
        I("s_mov_b32 s55, 0x20000")
        I("v_subrev_u32 v72, 768, v0")
        I("v_lshlrev_b32 v72, 7, v72")
        I("s_cmp_lg_u64 vcc, -1")
        I("s_cbranch_scc0 L1_nocpf")
        I("buffer_load_dword v73, v72, s[52:55], 0 offen")
        e.label("L1_nocpf")
    I("s_load_dwordx4 s[80:83], s[0:1], 72")
    I("s_load_dwordx2 s[84:85], s[0:1], 88")
    I("v_lshlrev_b32 v1, 4, v0")
    I("v_lshlrev_b32 v2, 5, v0")
    I("v_readfirstlane_b32 s21, v0")
    I("s_lshr_b32 s21, s21, 6")
    I("s_waitcnt lgkmcnt(0)")
    if c.addtid:
        srd(e, 4, 32, N * 512, w1=f"{16 << 16}", w3=c.tidw3)
    else:
        srd(e, 4, 32, N * 512)
    srd(e, 8, 84, wsbytes)
    srd(e, 12, 80, N * 512)
    srd(e, 16, 42, 2560)
    srd(e, 68, 44, 16384)
    srd(e, 72, 46, 24576)
    srd(e, 76, 82, 256)
    I("s_and_b32 s20, s2, 7")
    I("s_lshr_b32 s31, s2, 3")
    if NWG == 250:
        I("s_min_u32 s22, s20, 2")
        I("s_mul_i32 s20, s20, 31")
        I("s_add_u32 s20, s20, s22")
    else:
        I("s_lshl_b32 s20, s20, 5")
    I("s_add_u32 s20, s20, s31")
    I("s_mov_b32 s22, 0")
    I(f"s_movk_i32 s23, {NCH}")
    I("s_mov_b32 s24, 1")
    I("s_mov_b32 s26, 0xaaaaaaaa")
    I("s_mov_b32 s27, 0xaaaaaaaa")
    I("s_mov_b32 s28, 0x05040100")
    I("s_mov_b32 s29, 0x07060302")
    I("s_mov_b32 s30, 0xffff0000")
    I(f"s_mul_i32 s51, s2, {CSTRIDE}")
    I("s_cmp_ge_u32 s21, 13")
    I("s_cbranch_scc1 L1_aux")
    if c.paypos == 1:
        I("s_mov_b64 exec, vcc")
        pay_loads()
        I("s_mov_b64 exec, -1")
    I(f"s_mov_b32 s46, {H1}")
    if c.paypos != 3:
        I("v_lshl_add_u32 v40, v0, 2, s46")
        I("v_mov_b32 v41, 0")
    I("v_mov_b32 v42, 1")
    I(f"s_movk_i32 s49, {RAW}")
    I("s_mov_b32 s50, 0x05040302")
    I(f"s_mov_b32 s45, {(TI + 8 - 8*H1) & 0xffffffff}")
    if NWG == 250:
        I("s_mov_b32 s48, -25")
        I("s_movk_i32 s47, 249")
    else:
        I("s_movk_i32 s47, 6249")
        I("s_movk_i32 s48, -6250")
        I("s_mov_b32 s44, 1600210")
        I("v_mov_b32 v43, 65532")
    if c.paypos != 3:
        I("s_cmp_ge_u32 s21, 8")
        I("s_cbranch_scc1 L1_nz")
        I("ds_write_b32 v40, v41")
        I("s_waitcnt lgkmcnt(0)")
        e.label("L1_nz")
        I("s_barrier")
    I("s_and_b64 exec, exec, vcc")
    if c.paypos == 2: pay_loads()
    I(f"s_waitcnt vmcnt({6 if c.coal else 5})")
    stamp(e, c, 1)
    R4 = range(4)
    if NWG == 250:
        for i in R4: I(f"v_mul_u32_u24 v{44+i}, 0x147b, v{4+i}")
        for i in R4: I(f"v_lshrrev_b32 v{44+i}, 17, v{44+i}")
        for i in R4: I(f"v_cmp_lt_u32 s[{32+2*i}:{33+2*i}], s47, v{44+i}")
        for i in R4: I(f"v_cndmask_b32 v{36+i}, 0, 1, s[{32+2*i}:{33+2*i}]")
        for i in R4:
            I(f"v_sub_u32 v{48+i}, v{44+i}, v{36+i}")
            I(f"v_mad_u32_u24 v{44+i}, v{36+i}, 6, v{44+i}")
        for i in R4:
            I(f"v_mad_i32_i24 v{4+i}, v{48+i}, s48, v{4+i}")
            I(f"v_lshl_add_u32 v{44+i}, v{44+i}, 2, s46")
    else:
        for i in R4: I(f"v_cmp_lt_u32 s[{32+2*i}:{33+2*i}], s47, v{4+i}")
        for i in R4: I(f"v_cndmask_b32 v{36+i}, 0, 1, s[{32+2*i}:{33+2*i}]")
        for i in R4: I(f"v_mad_i32_i24 v{4+i}, v{36+i}, s48, v{4+i}")
        for i in R4: I(f"v_mul_u32_u24 v{44+i}, 0xa7c, v{4+i}")
        for i in R4: I(f"v_lshrrev_b32 v{44+i}, 16, v{44+i}")
        for i in R4: I(f"v_mad_u32_u24 v{48+i}, v{44+i}, s44, v43")
        for i in R4:
            I(f"v_lshrrev_b32 v{48+i}, 16, v{48+i}")
            I(f"v_mad_u32_u24 v{4+i}, v{36+i}, 25, v{4+i}")
        for i in R4:
            I(f"v_sub_u32 v{4+i}, v{4+i}, v{48+i}")
            I(f"v_lshl_add_u32 v{44+i}, v{36+i}, 8, v{44+i}")
        for i in R4: I(f"v_lshl_add_u32 v{44+i}, v{44+i}, 2, s46")
    for i in R4: I(f"ds_add_rtn_u32 v{36+i}, v{44+i}, v42")
    for i in R4: I(f"v_lshl_add_u32 v{48+i}, v{44+i}, 3, s45")
    for i in R4: I(f"v_lshlrev_b32 v{4+i}, 2, v{4+i}")
    I("s_waitcnt lgkmcnt(0)")
    I("s_barrier")
    for i in R4: I(f"v_min_u32 v{28+i}, {KIN}, v{36+i}")
    for i in R4: I(f"v_add_u32 v{48+i}, v{48+i}, v{28+i}")
    I("s_cmp_eq_u32 s21, 0")
    I("s_cbranch_scc1 L1_scan")
    for i in R4: I(f"ds_write_b8 v{48+i}, v{4+i}")
    I("s_branch L1_noscan")
    e.label("L1_scan")
    I("v_add_u32 v60, s46, v2")
    I("ds_read_b128 v[52:55], v60")
    I("ds_read_b128 v[56:59], v60 offset:16")
    I("s_waitcnt lgkmcnt(0)")
    I("v_mov_b32 v64, 0")
    I("v_mov_b32 v65, v52")
    for k in range(2, 8):
        I(f"v_add_u32 v{64+k}, v{63+k}, v{51+k}")
    I("v_add_u32 v61, v71, v59")
    I("v_max3_u32 v63, v52, v53, v54")
    I("v_max3_u32 v63, v63, v55, v56")
    I("v_max3_u32 v63, v63, v57, v58")
    I("v_max_u32 v63, v63, v59")
    I(f"v_cmp_lt_u32 s[42:43], {KIN}, v63")
    I("v_mov_b32 v62, v61")
    scan64(e, 62)
    I("v_sub_u32 v62, v62, v61")
    for k in range(8):
        I(f"v_add_u32 v{64+k}, v{64+k}, v62")
    I("ds_write_b128 v60, v[64:67] offset:2048")
    I("ds_write_b128 v60, v[68:71] offset:2064")
    I("s_cmp_lg_u64 s[42:43], 0")
    I("s_cselect_b32 s42, 1, 0")
    I("v_mov_b32 v63, s42")
    I(f"ds_write_b32 v41, v63 offset:{NONCE+8}")
    for i in R4: I(f"ds_write_b8 v{48+i}, v{4+i}")
    I("s_waitcnt lgkmcnt(4)")
    e.label("L1_noscan")
    I("s_barrier")
    stamp(e, c, 8)
    for i in R4: I(f"ds_read_b32 v{44+i}, v{44+i} offset:2048")
    I(f"ds_read_b32 v28, v41 offset:{NONCE+8}")
    I("s_waitcnt lgkmcnt(0)")
    I("v_readfirstlane_b32 s42, v28")
    for i in R4:
        I(f"v_add_u32 v{36+i}, v{36+i}, v{44+i}")
        I(f"v_lshl_add_u32 v{44+i}, v{36+i}, 4, s49")
    I("s_cmp_eq_u32 s42, 0")
    I("s_cbranch_scc1 L1_nokeys")
    for i in R4:
        I(f"ds_write_b8 v{36+i}, v{4+i} offset:{RAW+KSTAGE}")
    e.label("L1_nokeys")
    if not c.splitw:
        r3 = 24 if c.coal else 23
        if c.stamps: I("s_waitcnt vmcnt(0)")
        stamp(e, c, 31)
        I("s_waitcnt vmcnt(1)")
        I("v_mov_b32 v28, v20")
        I("v_perm_b32 v29, v8, v21, s28")
        I("ds_write2_b64 v44, v[12:13], v[28:29] offset0:0 offset1:1")
        I("v_alignbit_b32 v30, v22, v21, 16")
        I("v_perm_b32 v31, v9, v22, s50")
        I("ds_write2_b64 v45, v[14:15], v[30:31] offset0:0 offset1:1")
        I("s_waitcnt vmcnt(0)")
        stamp(e, c, 2)
        I(f"v_mov_b32 v32, v{r3}")
        I(f"v_perm_b32 v33, v10, v{r3+1}, s28")
        I("ds_write2_b64 v46, v[16:17], v[32:33] offset0:0 offset1:1")
        I(f"v_alignbit_b32 v34, v{r3+2}, v{r3+1}, 16")
        I(f"v_perm_b32 v35, v11, v{r3+2}, s50")
        I("ds_write2_b64 v47, v[18:19], v[34:35] offset0:0 offset1:1")
    elif c.splitw == 2:
        I("s_waitcnt vmcnt(3)")
        I("v_mov_b32 v28, v12"); I("v_mov_b32 v29, v13"); I("v_mov_b32 v30, v20")
        I("v_perm_b32 v31, v8, v21, s28")
        I("ds_write_b128 v44, v[28:31]")
        I("v_mov_b32 v12, v14"); I("v_mov_b32 v13, v15")
        I("v_alignbit_b32 v14, v22, v21, 16")
        I("v_perm_b32 v15, v9, v22, s50")
        I("ds_write_b128 v45, v[12:15]")
        I("s_waitcnt vmcnt(0)")
        stamp(e, c, 2)
        I("v_mov_b32 v32, v16"); I("v_mov_b32 v33, v17"); I("v_mov_b32 v34, v24")
        I("v_perm_b32 v35, v10, v25, s28")
        I("ds_write_b128 v46, v[32:35]")
        I("v_mov_b32 v16, v18"); I("v_mov_b32 v17, v19")
        I("v_alignbit_b32 v18, v26, v25, 16")
        I("v_perm_b32 v19, v11, v26, s50")
        I("ds_write_b128 v47, v[16:19]")
    else:
        I("s_waitcnt vmcnt(2)")
        for i in R4:
            I(f"ds_write_b64 v{44+i}, v[{12+2*i}:{13+2*i}]")
        I("s_waitcnt vmcnt(1)")
        I("v_mov_b32 v28, v20")
        I("v_perm_b32 v29, v8, v21, s28")
        I("ds_write_b64 v44, v[28:29] offset:8")
        I("v_alignbit_b32 v30, v22, v21, 16")
        I("v_perm_b32 v31, v9, v22, s50")
        I("ds_write_b64 v45, v[30:31] offset:8")
        I("s_waitcnt vmcnt(0)")
        stamp(e, c, 2)
        r3 = 24 if c.coal else 23
        I(f"v_mov_b32 v32, v{r3}")
        I(f"v_perm_b32 v33, v10, v{r3+1}, s28")
        I("ds_write_b64 v46, v[32:33] offset:8")
        I(f"v_alignbit_b32 v34, v{r3+2}, v{r3+1}, 16")
        I(f"v_perm_b32 v35, v11, v{r3+2}, s50")
        I("ds_write_b64 v47, v[34:35] offset:8")
    I("s_mov_b64 exec, -1")
    I("s_waitcnt lgkmcnt(0)")
    I("s_branch L1_copy")
    e.label("L1_aux")
    I("v_subrev_u32 v64, 832, v0")
    I("v_lshlrev_b32 v65, 4, v64")
    def mall_touch():
        if c.mallpf == 1:
            I("s_mul_i32 s46, s2, 50")
            I("v_lshrrev_b32 v60, 1, v64")
            I("v_cmp_gt_u32 vcc, 50, v60")
            I("v_add_u32 v60, s46, v60")
            I("v_lshlrev_b32 v60, 9, v60")
            I("v_and_b32 v61, 1, v64")
            I("v_lshl_add_u32 v60, v61, 7, v60")
            I("v_cndmask_b32 v60, 2.0, v60, vcc")
            I("buffer_load_dword v62, v60, s[4:7], 0 offen offset:256")
        elif c.mallpf == 2:
            I("s_mul_i32 s46, s2, 25600")
            I("v_lshlrev_b32 v60, 7, v64")
            I("buffer_load_dword v62, v60, s[4:7], s46 offen")
    prefetch_x(e, c.pfx0_lines, 60, 64, 192, 31, 0, 4)
    if c.mallpos == 0: mall_touch()
    if c.tlbpf:
        I("v_and_b32 v74, 63, v0")
        I(f"s_mov_b32 s42, {WSBYTES // 64 // 128 * 128}")
        I("v_mul_u32_u24 v75, s42, v74")
        I(f"s_mov_b32 s42, {N * 512 // 64 // 128 * 128}")
        I("v_mul_u32_u24 v74, s42, v74")
        I("s_cmp_lg_u32 s21, 14")
        I("s_cbranch_scc1 L1_notlb")
        if c.tlbpf & 1: I("buffer_load_dword v76, v75, s[8:11], 0 offen")
        if c.tlbpf & 2: I("buffer_load_dword v77, v74, s[4:7], 0 offen")
        if c.tlbpf & 4: I("buffer_load_dword v78, v74, s[12:15], 0 offen")
        e.label("L1_notlb")
    if c.codepf and c.cpfs:
        I("s_getpc_b64 s[40:41]")
        e.label("L_cpf")
        I("s_mul_i32 s42, s31, 3")
        I("s_add_u32 s42, s42, s21")
        I("s_sub_u32 s42, s42, 13")
        I("s_lshl_b32 s42, s42, 8")
        for k in range(256 // c.cpfstep):
            I("s_min_u32 s43, s42, L_codeend-L_cpf-4")
            I(f"s_load_dword s{94 + (k & 1)}, s[40:41], s43")
            if k < 256 // c.cpfstep - 1: I(f"s_add_u32 s42, s42, {c.cpfstep}")
    else:
        if c.codepf and not c.codeearly:
            I(f"s_cmp_ge_u32 s2, {c.cpfwg}")
            I("s_cbranch_scc1 L1_nocpf")
            I("s_getpc_b64 s[40:41]")
            e.label("L_cpf")
            I("s_mov_b32 s42, L_codeend-L_cpf")
            I("s_mov_b32 s43, 0x20000")
            I("v_lshlrev_b32 v72, 7, v64")
            I("buffer_load_dword v73, v72, s[40:43], 0 offen")
            e.label("L1_nocpf")
    I("s_cmp_lg_u32 s21, 15")
    I("s_cbranch_scc1 L1_notag")
    I("s_cmp_lg_u32 s2, 0")
    I("s_cbranch_scc1 L1_notag")
    I("s_memrealtime s[44:45]")
    I("s_waitcnt lgkmcnt(0)")
    I("s_and_b32 s45, s45, 0x7f")
    I("s_or_b32 s45, s45, 0x80")
    I("s_lshl_b32 s45, s45, 24")
    I("v_mov_b32 v68, s44")
    I("v_mov_b32 v69, s45")
    I("s_mov_b64 exec, 1")
    I("buffer_store_dwordx2 v[68:69], off, s[76:79], 0 sc1")
    I("s_mov_b64 exec, -1")
    e.label("L1_notag")
    I("s_cmp_lg_u32 s21, 13")
    I("s_cbranch_scc1 L1_nozero")
    for k in range(4): I(f"v_mov_b32 v{4+k}, 0")
    I("ds_write_b128 v65, v[4:7]")
    I("ds_write_b128 v65, v[4:7] offset:1024")
    e.label("L1_nozero")
    if c.paypos != 3: I("s_barrier")
    I("s_barrier"); I("s_barrier")
    I("s_cmp_lg_u32 s21, 15")
    I("s_cbranch_scc1 L1_notag2")
    I("s_mov_b32 s44, 0")
    e.label("L1_tagpoll")
    I("buffer_load_dwordx2 v[68:69], off, s[76:79], 0 sc1")
    I("s_add_u32 s44, s44, 1")
    I("s_waitcnt vmcnt(0)")
    I("v_readfirstlane_b32 s45, v69")
    e.nop(1)
    I("s_cmp_lg_u32 s45, 0")
    I("s_cbranch_scc1 L1_tagok")
    I("s_cmp_lt_u32 s44, 0x100000")
    I("s_cbranch_scc1 L1_tagpoll")
    e.label("L1_tagok")
    I("v_mov_b32 v70, 0")
    I("s_mov_b64 exec, 1")
    I(f"ds_write_b64 v70, v[68:69] offset:{NONCE}")
    I("s_mov_b64 exec, -1")
    e.label("L1_notag2")
    def w_loads():
        for k in range(8):
            I(f"s_movk_i32 s46, {k*3072}")
            I(f"buffer_load_dwordx4 v[{28+4*k}:{31+4*k}], v65, s[72:75], s46 offen")
        for k in range(6):
            I(f"s_movk_i32 s46, {k*3072}")
            I(f"buffer_load_dwordx4 v[{72+4*k}:{75+4*k}], v65, s[68:71], s46 offen")
    if not c.wlate: w_loads()
    if c.wrlds: I("buffer_load_dwordx4 v[68:71], v65, s[16:19], 0 offen")
    if c.mallpos == 1: mall_touch()
    if c.pfwait: I("s_waitcnt vmcnt(0)")
    prefetch_x(e, c.pfx_lines, 60, 64, 192, 31, 0, 4, c.pfx0_lines)
    I("s_waitcnt lgkmcnt(0)")
    e.flush()
    e.label("L1_copy")
    I("s_barrier")
    stamp(e, c, 3)
    I(f"v_mov_b32 v25, {H1+2048+1024}")
    I("ds_read_b32 v99, v25")
    I(f"ds_read_b128 v[8:11], v1 offset:{RAW}")
    I(f"ds_read_b128 v[12:15], v1 offset:{RAW+16384}")
    I("v_mov_b32 v25, 0")
    I(f"ds_read_b96 v[96:98], v25 offset:{NONCE}")
    I(f"v_add_u32 v25, {TI}, v1")
    I(f"ds_read_b128 v[16:19], v1 offset:{RAW+32768}")
    I(f"ds_read_b128 v[20:23], v1 offset:{RAW+49152}")
    I("ds_read_b128 v[100:103], v25")
    I("v_lshrrev_b32 v25, 1, v0")
    I("v_lshlrev_b32 v25, 2, v25")
    I(f"v_add_u32 v25, {H1}, v25")
    I("ds_read2st64_b32 v[104:105], v25 offset0:0 offset1:8")
    I("ds_read_b32 v106, v25 offset:1024")
    I("v_add_u32 v2, 16384, v1")
    I("v_add_u32 v25, 1024, v0")
    I("s_waitcnt lgkmcnt(8)")
    I("v_add_u32 v99, 7, v99")
    I("v_and_b32 v99, -8, v99")
    I("v_cmp_lt_u32 s[52:53], v0, v99")
    I("v_cmp_lt_u32 s[54:55], v25, v99")
    I("v_readfirstlane_b32 s88, v99")
    I("v_add_u32 v3, 32768, v1")
    I("v_add_u32 v24, 49152, v1")
    I("s_mov_b64 exec, s[52:53]")
    I("s_waitcnt lgkmcnt(7)")
    I(f"buffer_store_dwordx4 v[8:11], v1, s[8:11], s51 offen {sf}")
    I("s_mov_b64 exec, s[54:55]")
    I("s_cbranch_execz L1_nop1")
    I("s_waitcnt lgkmcnt(6)")
    I(f"buffer_store_dwordx4 v[12:15], v2, s[8:11], s51 offen {sf}")
    e.label("L1_nop1")
    I("s_mov_b64 exec, -1")
    I("s_movk_i32 s48, 128")
    I("v_cmp_gt_u32 s[92:93], s48, v0")
    I("s_waitcnt lgkmcnt(0)")
    I("v_readfirstlane_b32 s86, v96")
    I("v_readfirstlane_b32 s87, v97")
    I("v_readfirstlane_b32 s42, v98")
    def patch(r, cnt, st, c2, t):
        I(f"v_lshl_or_b32 v{t}, v{cnt}, 12, v{st}")
        I(f"v_or_b32 v{t}, v97, v{t}")
        I(f"v_cndmask_b32 v{r}, v{t}, v{r}, {ODD}")
        I(f"v_cndmask_b32 v{r+1}, v96, v{r+1}, {ODD}")
        if c2 is None: I(f"v_lshlrev_b32 v{t}, 12, v96")
        else: I(f"v_lshl_or_b32 v{t}, v96, 12, v{c2}")
        I(f"v_cndmask_b32 v{r+3}, v{r+3}, v{t}, {ODD}")
    patch(100, 104, 105, 106, 104)
    I("s_lshl_b32 s3, s86, 12")
    I(f"s_add_u32 s49, s51, {TABOFF}")
    I("s_cmp_gt_u32 s88, 2048")
    I("s_cselect_b32 s25, 0, 8")
    I("s_cmp_eq_u32 s42, 0")
    I("s_cbranch_scc1 L1_nokeyst")
    I(f"s_add_u32 s42, s51, {KEYOFF-KSTAGE}")
    I("v_subrev_u32 v25, 128, v0")
    I("s_movk_i32 s43, 200")
    I("v_cmp_gt_u32 vcc, s43, v25")
    I("s_and_saveexec_b64 s[44:45], vcc")
    I("s_cbranch_execz L1_nokeyst2")
    I(f"buffer_store_dwordx4 v[20:23], v24, s[8:11], s42 offen {sf}")
    e.label("L1_nokeyst2")
    I("s_mov_b64 exec, -1")
    e.label("L1_nokeyst")
    stamp(e, c, 4)
    def rest_stores(tag):
        I(f"buffer_store_dwordx4 v[16:19], v3, s[8:11], s51 offen {sf}")
        for k, (m, neg, regs, va) in enumerate((("s[54:55]", 1, "v[12:15]", "v2"), ("s[92:93]", 0, "v[20:23]", "v24"), ("s[52:53]", 1, "v[8:11]", "v1"))):
            I(f"s_not_b64 exec, {m}" if neg else f"s_mov_b64 exec, {m}")
            I(f"s_cbranch_execz L_stskip{tag}{k}")
            I(f"buffer_store_dwordx4 {regs}, {va}, s[8:11], s51 offen {sf}")
            e.label(f"L_stskip{tag}{k}")
        I("s_mov_b64 exec, -1")
    def handoff2(tag):
        I("s_cmp_lg_u32 s25, 0")
        I(f"s_cbranch_scc1 L_usual{tag}")
        rest_stores(tag + "e")
        e.label(f"L_usual{tag}")
        I("s_waitcnt vmcnt(0) lgkmcnt(0)")
        stamp(e, c, 6)
        I("s_barrier")
        I("s_cmp_ge_u32 s21, 8")
        I(f"s_cbranch_scc1 L_noearly{tag}")
        I(f"buffer_store_dwordx4 v[100:103], v1, s[8:11], s49 offen {sf}")
        e.label(f"L_noearly{tag}")
        I("s_cmp_eq_u32 s25, 0")
        I(f"s_cbranch_scc1 L_norest{tag}")
        rest_stores(tag + "l")
        e.label(f"L_norest{tag}")
        stamp(e, c, 5)
    def handoff(tag, mid):
        I("s_waitcnt vmcnt(0)")
        stamp(e, c, 6)
        I("s_barrier")
        I("s_cmp_ge_u32 s21, s25")
        I(f"s_cbranch_scc1 L_noearly{tag}")
        I(f"buffer_store_dwordx4 v[100:103], v1, s[8:11], s49 offen {sf}")
        e.label(f"L_noearly{tag}")
        I(f"buffer_store_dwordx4 v[16:19], v3, s[8:11], s51 offen {sf}")
        for k, (m, neg, regs, va) in enumerate((("s[54:55]", 1, "v[12:15]", "v2"), ("s[92:93]", 0, "v[20:23]", "v24"), ("s[52:53]", 1, "v[8:11]", "v1"))):
            I(f"s_not_b64 exec, {m}" if neg else f"s_mov_b64 exec, {m}")
            I(f"s_cbranch_execz L_stskip{tag}{k}")
            I(f"buffer_store_dwordx4 {regs}, {va}, s[8:11], s51 offen {sf}")
            e.label(f"L_stskip{tag}{k}")
        I("s_mov_b64 exec, -1")
        mid()
        I("s_waitcnt vmcnt(0) lgkmcnt(0)")
        stamp(e, c, 5)
        I("s_barrier")
        I("s_cmp_lt_u32 s21, s25")
        I(f"s_cbranch_scc1 L_nolate{tag}")
        I(f"buffer_store_dwordx4 v[100:103], v1, s[8:11], s49 offen {sf}")
        e.label(f"L_nolate{tag}")
    I("s_cmp_lt_u32 s21, 4")
    e.branch("s_cbranch_scc1 L2_gemm")

    if c.wlate:
        I("s_cmp_lt_u32 s21, 13")
        I("s_cbranch_scc1 L2_noWl")
        w_loads()
        e.label("L2_noWl")
    VLANE, VINFO, VNEXT = 108, 109, 110
    VLOFF, VMASK, VOW, VOR, VSCRW, VTRA, VWR, VL16 = 111, 112, 113, 114, 115, 116, 117, 118
    VT0, VT1, VONE, VSEL = 119, 120, 121, 122
    VJ, VCH, VSEG = 123, 124, 125
    I(f"v_and_b32 v{VLANE}, 63, v0")
    I(f"v_mov_b32 v{VONE}, 1")
    I(f"v_mov_b32 v{VMASK}, s30")
    I(f"v_lshrrev_b32 v{VT1}, 4, v{VLANE}")
    I(f"v_lshlrev_b32 v{VL16}, 4, v{VLANE}")
    if c.addtid:
        I(f"v_and_b32 v{VT0}, 3, v{VLANE}")
        I(f"v_lshlrev_b32 v{VLOFF}, 4, v{VT0}")
    else:
        I(f"v_and_b32 v{VT0}, 15, v{VLANE}")
        I(f"v_lshlrev_b32 v{VLOFF}, 4, v{VT0}")
    I("s_sub_u32 s43, s21, 4")
    I(f"s_mul_i32 s43, s43, {SSTR}")
    I(f"s_add_u32 s43, s43, {SCR}")
    I(f"v_add_u32 v{VSCRW}, s43, v{VL16}")
    I(f"v_lshlrev_b32 v{VOR}, 5, v{VT1}")
    I(f"v_add_u32 v{VOR}, s43, v{VOR}")
    I(f"v_lshlrev_b32 v{VTRA}, 4, v{VT1}")
    I(f"v_bfe_u32 v{VT1}, v{VLANE}, 2, 2")
    I(f"v_lshl_add_u32 v{VTRA}, v{VT1}, 6, v{VTRA}")
    I(f"v_and_b32 v{VT1}, 1, v{VLANE}")
    I(f"v_lshl_add_u32 v{VTRA}, v{VT1}, 3, v{VTRA}")
    I(f"v_bfe_u32 v{VT1}, v{VLANE}, 1, 1")
    I(f"v_mul_u32_u24 v{VT1}, {PL1}, v{VT1}")
    I(f"v_add3_u32 v{VTRA}, v{VTRA}, v{VT1}, s43")
    I(f"v_and_b32 v{VOW}, 32, v{VLANE}")
    I(f"v_and_b32 v{VT1}, 3, v{VLANE}")
    I(f"v_lshl_add_u32 v{VOW}, v{VT1}, 3, v{VOW}")
    I(f"v_bfe_u32 v{VT1}, v{VLANE}, 2, 3")
    I(f"v_add_u32 v{VOW}, v{VOW}, v{VT1}")
    I(f"v_lshlrev_b32 v{VOW}, 2, v{VOW}")
    I(f"v_add_u32 v{VOW}, s43, v{VOW}")
    I(f"v_add_u32 v{VWR}, {WRAD}, v{VL16}")
    I("s_sub_u32 s42, s21, 4")
    I("s_mul_i32 s83, s42, 24")
    I(f"v_and_b32 v{VJ}, 7, v{VLANE}")
    I(f"v_lshrrev_b32 v{VSEG}, 3, v{VLANE}")
    I(f"s_mov_b32 s42, {CSTRIDE}")
    I(f"v_mul_u32_u24 v{VCH}, s42, v{VSEG}")
    I(f"v_lshlrev_b32 v{VSEG}, 5, v{VSEG}")
    I(f"v_add_u32 v{VSEG}, s43, v{VSEG}")
    I(f"v_or_b32 v{VSEL}, 0x0c0c0c00, v{VJ}")
    NP, NW = 3, 3
    I(f"s_mul_i32 s79, s83, {CSTRIDE}")
    for p in range(NP):
        I(f"s_add_u32 s{74+p}, s79, {8*p*CSTRIDE+PAYOFF}")
        I(f"s_add_u32 s{80+p}, s79, {8*p*CSTRIDE+KEYOFF}")
    I("s_mov_b32 s78, 0x100000")
    I("s_mov_b32 s88, s20")
    I("s_mov_b32 s89, 0")
    I(f"s_movk_i32 s48, {HN}")
    def w_stage():
        I("s_cmp_lt_u32 s21, 13")
        I("s_cbranch_scc1 L2_noW")
        if c.nop2: I(f"s_waitcnt vmcnt({1 if c.pfx_lines else 0})")
        I(f"v_add_u32 v65, {T}, v65")
        for k in range(8):
            I(f"ds_write_b128 v65, v[{28+4*k}:{31+4*k}] offset:{16384 + k*3072}")
        for k in range(5):
            I(f"ds_write_b128 v65, v[{72+4*k}:{75+4*k}] offset:{k*3072}")
        if c.wrlds: I("ds_write_b128 v65, v[68:71] offset:40960")
        I("s_cmp_lg_u32 s21, 13")
        I("s_cbranch_scc1 L2_noW")
        I(f"ds_write_b128 v65, v[92:95] offset:{5*3072}")
        e.label("L2_noW")
    if c.nop2:
        w_stage()
        handoff2("g")
    else:
        handoff("g", w_stage)
    if c.pdelay: I(f"s_sleep {c.pdelay}")
    if c.prio_pro: I(f"s_setprio {c.prio_pro}")
    PAY, KEY, RNK, CNTR, KAD, PAD, X, EN = 0, 36, 45, 54, 57, 60, 64, 72
    MSK = 50
    e.label("L2_g_round")
    I(f"v_and_b32 v{VJ}, 7, v{VLANE}")
    I(f"v_or_b32 v{VSEL}, 0x0c0c0c00, v{VJ}")
    I(f"v_lshrrev_b32 v{X}, 1, v{VLANE}")
    I(f"s_sub_u32 s42, {NCH}, s83")
    I("s_min_i32 s42, s42, 24")
    I(f"v_cmp_gt_i32 s[46:47], s42, v{X}")
    I(f"s_mov_b32 s42, {CSTRIDE}")
    I(f"v_mul_u32_u24 v{X+1}, s42, v{X}")
    I(f"v_and_b32 v{X+2}, 16, v{VL16}")
    I(f"v_add_u32 v{X+1}, v{X+1}, v{X+2}")
    I(f"v_cndmask_b32 v{X+1}, 2.0, v{X+1}, s[46:47]")
    I("s_lshl_b32 s43, s88, 5")
    I(f"s_add_u32 s43, s43, {TABOFF}")
    I("s_add_u32 s43, s43, s79")
    I("s_mov_b32 s44, 0")
    I(f"v_lshl_add_u32 v{VT1}, v{VJ}, 4, v{VCH}")
    if c.ppipe:
        def pl(r): I(f"buffer_load_dwordx4 v[{r}:{r+3}], v{X+1}, s[8:11], s43 offen sc1")
        def chk(r, ok):
            I("s_waitcnt vmcnt(1)")
            tag_bad(e, X+2, r, X+3, ODD)
            I(f"v_cmp_ne_u32 vcc, 0, v{X+2}")
            e.nop(2)
            I("s_and_b64 vcc, vcc, s[46:47]")
            I(f"s_cbranch_scc0 {ok}")
        I("s_waitcnt vmcnt(0)")
        pl(96)
        I(f"s_sleep {c.pgap}")
        e.label("L2_poll")
        pl(104)
        chk(96, "L2_poll_oka")
        pl(96)
        I("s_add_u32 s44, s44, 1")
        chk(104, "L2_poll_okb")
        I("s_cmp_lt_u32 s44, s78")
        I("s_cbranch_scc1 L2_poll")
        I("s_mov_b32 s78, 0")
        e.label("L2_poll_okb")
        for k in range(4): I(f"v_mov_b32 v{EN+k}, v{104+k}")
        I("s_branch L2_poll_ok")
        e.label("L2_poll_oka")
        for k in range(4): I(f"v_mov_b32 v{EN+k}, v{96+k}")
    else:
        if c.nop2:
            I(f"buffer_load_dwordx4 v[{EN}:{EN+3}], v{X+1}, s[8:11], s43 offen sc1")
            I("s_mov_b64 exec, 1")
            I("s_waitcnt vmcnt(0)")
            I(f"ds_add_u32 v{VL16}, v{VONE} offset:{BST}")
            I("s_mov_b64 exec, -1")
            I("s_branch L2_poll_chk")
        e.label("L2_poll")
        I(f"buffer_load_dwordx4 v[{EN}:{EN+3}], v{X+1}, s[8:11], s43 offen sc1")
        I("s_add_u32 s44, s44, 1")
        I("s_waitcnt vmcnt(0)")
        e.label("L2_poll_chk")
        tag_bad(e, X+2, EN, X+3, ODD)
        I(f"v_cmp_ne_u32 vcc, 0, v{X+2}")
        e.nop(2)
        I("s_and_b64 vcc, vcc, s[46:47]")
        I("s_cbranch_scc0 L2_poll_ok")
        I(f"s_sleep {c.psleep}")
        I("s_cmp_lt_u32 s44, s78")
        I("s_cbranch_scc1 L2_poll")
        I("s_mov_b32 s78, 0")
    e.label("L2_poll_ok")
    I("s_cmp_lg_u32 s23, 1")
    I("s_cbranch_scc1 L2_nofilter")
    I("s_sub_u32 s42, s22, s83")
    I(f"v_cmp_eq_u32 vcc, s42, v{X}")
    I(f"v_cndmask_b32 v{EN}, 0, v{EN}, vcc")
    e.label("L2_nofilter")
    I(f"ds_write_b128 v{VSCRW}, v[{EN}:{EN+3}]")
    I(f"v_add_u32 v{X+1}, 8, v{VJ}")
    stamp(e, c, 7)
    def msk(p, w): return f"s[{MSK+4*p+2*w}:{MSK+4*p+2*w+1}]" if w < 2 else f"s[{MSK+12+2*p}:{MSK+13+2*p}]"
    def pay(p, w): return f"v[{PAY+12*p+4*w}:{PAY+12*p+4*w+3}]"
    for p in range(NP):
        I(f"ds_read_b128 v[{EN+8*p}:{EN+8*p+3}], v{VSEG} offset:{256*p}")
        I(f"ds_read_b128 v[{EN+8*p+4}:{EN+8*p+7}], v{VSEG} offset:{256*p+16}")
    for p in range(NP):
        en, cnt = EN + 8*p, CNTR + p
        if p == 0: I("s_waitcnt lgkmcnt(0)")
        I(f"v_bfe_u32 v{cnt}, v{en}, 12, 12")
        I(f"v_and_b32 v{PAD+p}, 0xfff, v{en}")
        I(f"v_cmp_lt_u32 {msk(p,0)}, v{VJ}, v{cnt}")
        I(f"v_cmp_lt_u32 {msk(p,1)}, v{X+1}, v{cnt}")
        I(f"v_perm_b32 v{KEY+3*p}, v{en+3}, v{en+2}, v{VSEL}")
        I(f"v_perm_b32 v{KEY+3*p+1}, v{en+5}, v{en+4}, v{VSEL}")
        I(f"v_lshl_add_u32 v{PAD+p}, v{PAD+p}, 4, v{VT1}")
        for w in range(2):
            I(f"s_mov_b64 exec, {msk(p,w)}")
            I(f"s_cbranch_execz L2_nop{p}")
            I(f"ds_add_rtn_u32 v{RNK+3*p+w}, v{KEY+3*p+w}, v{VONE} offset:{HIST}")
            I(f"buffer_load_dwordx4 {pay(p,w)}, v{PAD+p}, s[8:11], s{74+p} offen offset:{128*w} {rf}")
        e.label(f"L2_nop{p}")
        I("s_mov_b64 exec, -1")
    I(f"v_max3_u32 v{VT0}, v{CNTR}, v{CNTR+1}, v{CNTR+2}")
    I(f"v_cmp_lt_u32 vcc, 16, v{VT0}")
    I("s_mov_b32 s25, 0")
    e.nop(1)
    I("s_cmp_eq_u64 vcc, 0")
    I("s_cbranch_scc1 L2_noextraA")
    I("s_mov_b32 s25, 1")
    I(f"v_add_u32 v{X+2}, 16, v{VJ}")
    for p in range(NP):
        en = EN + 8*p
        I(f"v_min_u32 v{X+3}, {KIN}, v{CNTR+p}")
        I(f"v_cmp_lt_u32 {msk(p,2)}, v{X+2}, v{X+3}")
        I(f"v_perm_b32 v{KEY+3*p+2}, v{en+6}, v{en+6}, v{VSEL}")
        I(f"v_sub_u32 v{KAD+p}, v{PAD+p}, v{VCH}")
        I(f"v_lshrrev_b32 v{KAD+p}, 4, v{KAD+p}")
        I(f"v_add_u32 v{KAD+p}, v{KAD+p}, v{VCH}")
        e.flush()
        I(f"s_mov_b64 exec, {msk(p,2)}")
        I(f"ds_add_rtn_u32 v{RNK+3*p+2}, v{KEY+3*p+2}, v{VONE} offset:{HIST}")
        I(f"buffer_load_dwordx4 {pay(p,2)}, v{PAD+p}, s[8:11], s{74+p} offen offset:256 {rf}")
        I("s_mov_b64 exec, -1")

    def extra_count(tag, first, vj, vkad, vcnt, skey, vone, hist, y):
        I(f"v_add_u32 v{y}, {first}, v{vj}")
        I(f"v_add_u32 v{y+1}, {first}, v{vkad}")
        e.label(f"L_xa{tag}")
        I(f"v_cmp_lt_u32 vcc, v{y}, v{vcnt}")
        I("s_and_saveexec_b64 s[44:45], vcc")
        e.branch(f"s_cbranch_execz L_xa{tag}_done")
        I(f"buffer_load_ubyte v{y+2}, v{y+1}, s[8:11], s{skey} offen {rf}")
        I("s_waitcnt vmcnt(0)")
        I(f"ds_add_u32 v{y+2}, v{vone} offset:{hist}")
        I("s_mov_b64 exec, -1")
        I(f"v_add_u32 v{y}, 8, v{y}")
        I(f"v_add_u32 v{y+1}, 8, v{y+1}")
        e.branch(f"s_branch L_xa{tag}")
        e.label(f"L_xa{tag}_done")
        I("s_mov_b64 exec, -1")
    def extra_move(tag, first, vj, vkad, vpad, vcnt, skey, spay, vone, cur, vbase, y, d):
        I(f"v_add_u32 v{y}, {first}, v{vj}")
        I(f"v_add_u32 v{y+1}, {first}, v{vkad}")
        I(f"v_add_u32 v{vpad}, {16*first}, v{vpad}")
        e.label(f"L_xb{tag}")
        I(f"v_cmp_lt_u32 vcc, v{y}, v{vcnt}")
        I("s_and_saveexec_b64 s[44:45], vcc")
        e.branch(f"s_cbranch_execz L_xb{tag}_done")
        I(f"buffer_load_ubyte v{y+2}, v{y+1}, s[8:11], s{skey} offen {rf}")
        I(f"buffer_load_dwordx4 v[{d}:{d+3}], v{vpad}, s[8:11], s{spay} offen {rf}")
        I("s_waitcnt vmcnt(0)")
        I(f"ds_add_rtn_u32 v{y+3}, v{y+2}, v{vone} offset:{cur}")
        I("s_mov_b64 exec, -1")
        I(f"ds_bpermute_b32 v{y+2}, v{y+2}, v{vbase}")
        I("s_waitcnt lgkmcnt(0)")
        I(f"v_add_lshl_u32 v{y+2}, v{y+2}, v{y+3}, 4")
        I("s_mov_b64 exec, vcc")
        I(f"ds_write_b128 v{y+2}, v[{d}:{d+3}] offset:{RAW}")
        I("s_mov_b64 exec, -1")
        I(f"v_add_u32 v{y}, 8, v{y}")
        I(f"v_add_u32 v{y+1}, 8, v{y+1}")
        I(f"v_add_u32 v{vpad}, 128, v{vpad}")
        e.branch(f"s_branch L_xb{tag}")
        e.label(f"L_xb{tag}_done")
        I("s_mov_b64 exec, -1")
    for p in range(NP):
        extra_count(f"a{p}", KIN, VJ, KAD+p, CNTR+p, 80+p, VONE, HIST2, X)
    e.label("L2_noextraA")
    I("s_waitcnt lgkmcnt(0)")
    stamp(e, c, 14)
    I("s_barrier")
    stamp(e, c, 15)
    C1, CT, BS = X + 4, X + 5, X + 6
    I(f"v_lshlrev_b32 v{VT0}, 2, v{VLANE}")
    I(f"ds_read_b32 v{C1}, v{VT0} offset:{HIST}")
    I(f"ds_read_b32 v{CT}, v{VT0} offset:{HIST2}")
    I("s_waitcnt lgkmcnt(0)")
    I(f"v_add_u32 v{CT}, v{C1}, v{CT}")
    I(f"v_mov_b32 v{BS}, v{CT}")
    scan64(e, BS)
    I(f"v_readlane_b32 s46, v{BS}, 63")
    I(f"v_sub_u32 v{BS}, v{BS}, v{CT}")
    I(f"s_cmp_eq_u32 s23, 1")
    I(f"s_cselect_b32 s42, -1, {CAP}")
    for p in range(NP):
        for w in range(2):
            I(f"ds_bpermute_b32 v{KEY+3*p+w}, v{KEY+3*p+w}, v{BS}")
    I(f"v_lshl_or_b32 v{VINFO}, v{CT}, 16, v{BS}")
    I(f"s_cmp_gt_u32 s46, s42")
    I("s_cbranch_scc1 L2_g_overflow")
    I("s_cmp_lg_u32 s21, 5")
    I("s_cbranch_scc1 L2_noinfo")
    I(f"s_mov_b64 exec, {(1 << HN) - 1}")
    I(f"ds_write_b32 v{VT0}, v{VINFO} offset:{INFO}")
    I("s_mov_b64 exec, -1")
    e.label("L2_noinfo")
    I("s_cmp_lg_u32 s21, 4")
    I("s_cbranch_scc1 L2_noguard")
    I("s_lshl_b32 s46, s46, 4")
    for k in range(4): I(f"v_mov_b32 v{EN+k}, 0")
    I(f"v_add_u32 v{VT0}, s46, v{VL16}")
    I(f"ds_write_b128 v{VT0}, v[{EN}:{EN+3}] offset:{RAW}")
    e.label("L2_noguard")
    I("s_waitcnt lgkmcnt(0)")
    for p in range(NP):
        for w in range(2):
            I(f"v_add_lshl_u32 v{KEY+3*p+w}, v{KEY+3*p+w}, v{RNK+3*p+w}, 4")
    stamp(e, c, 27)
    I("s_waitcnt vmcnt(0)")
    stamp(e, c, 9)
    for p in range(NP):
        for w in range(2):
            I(f"s_mov_b64 exec, {msk(p,w)}")
            I(f"ds_write_b128 v{KEY+3*p+w}, {pay(p,w)} offset:{RAW}")
    I("s_mov_b64 exec, -1")
    I("s_cmp_eq_u32 s25, 0")
    I("s_cbranch_scc1 L2_noextraB")
    for p in range(NP):
        I(f"ds_bpermute_b32 v{KEY+3*p+2}, v{KEY+3*p+2}, v{BS}")
    I("s_waitcnt lgkmcnt(0)")
    for p in range(NP):
        I(f"v_add_lshl_u32 v{KEY+3*p+2}, v{KEY+3*p+2}, v{RNK+3*p+2}, 4")
        I(f"s_mov_b64 exec, {msk(p,2)}")
        I(f"ds_write_b128 v{KEY+3*p+2}, {pay(p,2)} offset:{RAW}")
        I("s_mov_b64 exec, -1")
    I(f"v_add_u32 v{BS}, v{BS}, v{C1}")
    for p in range(NP):
        extra_move(f"a{p}", KIN, VJ, KAD+p, PAD+p, CNTR+p, 80+p, 74+p, VONE, CUR2, BS, X, EN)
    e.label("L2_noextraB")
    I("s_waitcnt lgkmcnt(0)")
    stamp(e, c, 28)
    I("s_barrier")
    I(f"ds_read_b32 v{96 if c.totlate else VT0}, v{VL16} offset:{TOTB}")
    if c.static1:
        I("s_sub_u32 s42, s21, 16")
        I(f"v_mov_b32 v{VNEXT}, s42")
    else:
        I("s_mov_b64 exec, 1")
        I(f"ds_add_rtn_u32 v{VNEXT}, v{VL16}, v{VONE} offset:{NEXT}")
        I("s_mov_b64 exec, -1")
    if not c.totlate:
        I("s_waitcnt lgkmcnt(0)")
        I(f"v_readfirstlane_b32 s42, v{VT0}")
        e.nop(1)
        I(f"s_cmp_gt_u32 s42, {CAP}")
        I("s_cbranch_scc1 L2_g_overflow")
    stamp(e, c, 10)
    stamp(e, c, 24, "s_memtime")
    if c.prio_g: I(f"s_setprio {c.prio_g}")
    elif c.prio_pro and c.prio_pro < 3: I("s_setprio 0")
    (gather_loop_s if c.smf else gather_loop)(e, c, locals())
    e.label("L2_g_done")
    stamp(e, c, 11)
    stamp(e, c, 25, "s_memtime")
    I("s_cmp_lg_u32 s24, 0")
    e.branch("s_cbranch_scc1 L2_g_exit")
    I("s_add_u32 s89, s89, 1")
    I("s_branch L2_g_slow")
    e.label("L2_g_overflow")
    I("s_mov_b32 s89, 0")
    I("s_mov_b32 s23, 1")
    I("s_movk_i32 s48, 64")
    e.label("L2_g_slow")
    I("s_waitcnt vmcnt(0) lgkmcnt(0)")
    I("s_barrier")
    I("s_lshr_b32 s22, s89, 1")
    I("s_and_b32 s88, s89, 1")
    I("s_lshl_b32 s88, s88, 8")
    I("s_add_u32 s88, s88, s20")
    I(f"s_cmp_eq_u32 s89, {2*NCH-1}")
    I("s_cselect_b32 s24, 1, 0")
    I("s_barrier")
    e.branch("s_branch L2_g_round")
    e.label("L2_g_exit")
    stamp_store(e, c, 90)
    I("s_endpgm")

    e.label("L2_gemm")
    W, G, TA, TF = 0, 40, 104, 108
    X0, X1 = 124, 125
    I("v_and_b32 v104, 63, v0")
    I("v_lshlrev_b32 v105, 4, v104")
    lut = 0
    for jp in range(4):
        for blk in range(4):
            p, i, s = path_of(jp, blk)
            lut |= (p | (8 if s < 0 else 0)) << (4 * (jp * 4 + blk))
    I(f"s_mov_b32 s44, {lut & 0xffffffff}")
    I(f"s_mov_b32 s45, {lut >> 32}")
    for h in range(2):
        I("v_lshrrev_b32 v106, 4, v104")
        I("v_bfe_u32 v107, v104, 3, 1")
        I("v_lshl_add_u32 v106, v106, 2, v107")
        I(f"v_add_lshl_u32 v106, v106, {2*h}, 2")
        I(f"v_lshrrev_b64 v[108:109], v106, s[44:45]")
        I(f"v_and_b32 v106, 7, v108")
        I(f"v_and_b32 v{110+h}, 8, v108")
        I(f"v_lshlrev_b32 v{110+h}, 28, v{110+h}")
        I("v_and_b32 v107, 7, v104")
        I("v_lshlrev_b32 v107, 3, v107")
        I("v_lshl_add_u32 v106, v106, 6, v107")
        I("v_add_u32 v106, s21, v106")
        I(f"v_lshlrev_b32 v{112+h}, 1, v106")
        if c.wrlds: I(f"v_add_u32 v{112+h}, {T+40960}, v{112+h}")
    I("v_mov_b32 v117, v0")
    TB2 = 40
    if c.nop2:
        I("s_lshl_b32 s42, s21, 11")
        I(f"s_add_u32 s43, s42, {TI+8192}")
        I("v_add_u32 v114, s43, v105")
        I(f"ds_read_b128 v[{TB2}:{TB2+3}], v114")
        I(f"ds_read_b128 v[{TB2+4}:{TB2+7}], v114 offset:1024")
        I("v_lshrrev_b32 v114, 1, v104")
        I("s_lshl_b32 s43, s21, 8")
        I(f"s_add_u32 s43, s43, {H1+1024}")
        I("v_lshl_add_u32 v114, v114, 2, s43")
        I(f"ds_read2st64_b32 v[{TB2+8}:{TB2+9}], v114 offset0:0 offset1:8")
        I("v_add_u32 v114, 128, v114")
        I(f"ds_read2st64_b32 v[{TB2+10}:{TB2+11}], v114 offset0:0 offset1:8")
        I(f"s_add_u32 s39, s42, s49")
        I("s_add_u32 s39, s39, 8192")
        I("s_waitcnt lgkmcnt(0)")
        patch(TB2, TB2+8, TB2+9, None, TB2+8)
        patch(TB2+4, TB2+10, TB2+11, None, TB2+10)
        I(f"v_mov_b32 v{TB2+8}, v105")
        handoff2("m")
        I("v_mov_b32 v56, 0")
        I("v_mov_b32 v57, 1")
        I("s_mov_b64 exec, 1")
        I("s_waitcnt vmcnt(0)")
        I(f"ds_add_u32 v56, v57 offset:{BST}")
        I("s_mov_b64 exec, -1")
        if c.nop2 == 2:
            spin(e, "bst", 57, 56, BST, 16, 44, 42, sleep=1)
            I(f"buffer_store_dwordx4 v[{TB2}:{TB2+3}], v{TB2+8}, s[8:11], s39 offen {sf}")
            I(f"buffer_store_dwordx4 v[{TB2+4}:{TB2+7}], v{TB2+8}, s[8:11], s39 offen offset:1024 {sf}")
    else:
        handoff("m", lambda: None)
    if c.pfx2_pos == 0: prefetch_x(e, c.pfx2_lines, 114, 117, 256, 31, 0, 4, c.pfx_lines)
    WT = 80
    for k in range(4):
        h, qo = k >> 1, (k & 1) * 4
        for d in range(4):
            if c.wrlds: I(f"ds_read_u16 v{WT+4*k+d}, v{112+h} offset:{d*640+qo*2}")
            else: I(f"buffer_load_ushort v{WT+4*k+d}, v{112+h}, s[16:19], 0 offen offset:{d*640+qo*2}")
    I("v_lshrrev_b32 v106, 4, v104")
    I("v_lshlrev_b32 v106, 10, v106")
    I("v_bfe_u32 v107, v104, 2, 2")
    I("v_lshl_add_u32 v106, v107, 7, v106")
    I("v_and_b32 v107, 3, v104")
    I("v_lshl_add_u32 v106, v107, 3, v106")
    I("s_lshl_b32 s42, s21, 5")
    I(f"s_add_u32 s42, s42, {T}")
    I("v_add_u32 v106, s42, v106")
    for f in range(10):
        I(f"ds_read_b64_tr_b16 v[{W+4*f}:{W+4*f+1}], v106 offset:{f*4096}")
        I(f"ds_read_b64_tr_b16 v[{W+4*f+2}:{W+4*f+3}], v106 offset:{f*4096+512}")
    I("s_lshl_b32 s42, s21, 10")
    I(f"s_add_u32 s43, s42, {WRAD}")
    I("v_add_u32 v105, s43, v105")
    I("s_waitcnt lgkmcnt(0)" if c.wrlds else "s_waitcnt vmcnt(0)")
    for k in range(4):
        h = k >> 1
        for d in range(4):
            I(f"v_lshlrev_b32 v{WT+4*k+d}, 16, v{WT+4*k+d}")
            I(f"v_xor_b32 v{WT+4*k+d}, v{110+h}, v{WT+4*k+d}")
        I(f"ds_write_b128 v105, v[{WT+4*k}:{WT+4*k+3}] offset:{(k>>1)*8192 + (k&1)*4096}")
    I("v_and_b32 v106, 15, v104")
    I("v_lshrrev_b32 v107, 4, v104")
    I(f"v_lshlrev_b32 v{X0}, 2, v104")
    if NWG == 250:
        I(f"s_mul_i32 s42, s20, {HN}")
        I(f"s_movk_i32 s44, {HN}")
    else:
        I("s_mul_i32 s42, s20, 1600210")
        I("s_add_u32 s42, s42, 65532")
        I("s_add_u32 s44, s42, 1600210")
        I("s_lshr_b32 s42, s42, 16")
        I("s_lshr_b32 s44, s44, 16")
        I(f"s_min_u32 s44, s44, {N//2}")
        I("s_sub_u32 s44, s44, s42")
    I("s_lshl_b32 s42, s42, 9")
    I("s_mov_b32 s40, s42")
    I("s_mov_b32 s41, s44")
    I("s_lshl_b32 s43, s21, 5")
    I("s_add_u32 s42, s42, s43")
    I(f"v_lshlrev_b32 v{X1}, 9, v106")
    I(f"v_lshl_add_u32 v{X1}, v107, 3, v{X1}")
    I(f"v_add_u32 v{X1}, s42, v{X1}")
    I(f"v_cmp_le_u32 s[84:85], {HN-16}, v106")
    I(f"s_sub_u32 s43, s44, {48-HN}")
    I("v_cmp_gt_i32 s[50:51], s43, v106")
    I("s_sub_u32 s43, s44, 16")
    I("v_cmp_gt_i32 s[94:95], s43, v106")
    I("v_lshlrev_b32 v108, 10, v106")
    I(f"v_add_u32 v108, {T}, v108")
    I("s_or_b64 s[94:95], s[94:95], s[84:85]")
    for u in (3, 2, 1, 0):
        I(f"v_add_u32 v109, {4*u}, v107")
        I("v_xor_b32 v109, v109, v106")
        I(f"v_lshl_add_u32 v{TF+4+u}, v109, 4, v108")
    I("s_waitcnt lgkmcnt(0)")
    for u in range(4):
        I(f"v_mov_b32 v{TA+u}, v{TF+4+u}")
    I("s_mov_b32 s89, 0")
    NPB = 8
    TB, KA, SJ, KB, RB = 40, 48, 56, 64, 80
    LJ, LCH, LONE, Y = 96, 97, 98, 99
    MB = 52
    def mb(p, w): return f"s[{MB+4*p+2*w}:{MB+4*p+2*w+1}]"
    LA, PA0, PA1, TOA = KB, KB + 1, KB + 2, KB + 3
    I(f"v_lshrrev_b32 v{Y}, 2, v{X0}")
    I("s_lshl_b32 s42, s21, 11")
    I(f"v_lshl_add_u32 v{LA}, v{Y}, 4, s42")
    I(f"v_lshrrev_b32 v{Y+1}, 1, v{Y}")
    I("s_lshl_b32 s43, s21, 5")
    I(f"s_sub_u32 s44, {NCH-128}, s43")
    I(f"v_cmp_gt_i32 s[46:47], s44, v{Y+1}")
    I(f"s_mov_b32 s44, {CSTRIDE}")
    I(f"v_mul_u32_u24 v{Y+1}, s44, v{Y+1}")
    I(f"v_and_b32 v{Y+2}, 16, v{LA}")
    I(f"v_add_u32 v{PA0}, v{Y+1}, v{Y+2}")
    I(f"v_cndmask_b32 v{PA1}, 2.0, v{PA0}, s[46:47]")
    I(f"v_and_b32 v{LJ}, 7, v{Y}")
    I(f"v_lshrrev_b32 v{Y+1}, 3, v{Y}")
    I(f"v_mul_u32_u24 v{LCH}, s44, v{Y+1}")
    I(f"v_lshl_add_u32 v{RB}, v{Y+1}, 5, s42")
    I("s_mul_i32 s38, s43, s44")
    I(f"v_add_u32 v{LCH}, s38, v{LCH}")
    I(f"v_mov_b32 v{LONE}, 1")
    I("s_lshl_b32 s36, s20, 5")
    I(f"s_add_u32 s36, s36, {TABOFF+8192}")
    I("s_add_u32 s36, s36, s38")
    I(f"s_add_u32 s37, s36, {128*CSTRIDE}")
    I("s_lshl_b32 s42, s21, 6")
    I(f"v_add_u32 v{Y}, s42, v{Y}")
    I(f"v_mul_u32_u24 v{Y+1}, 0xaab, v{Y}")
    I(f"v_lshrrev_b32 v{Y+1}, 16, v{Y+1}")
    I(f"v_mul_u32_u24 v{Y+1}, {SSTR-24*32}, v{Y+1}")
    I(f"v_lshl_add_u32 v{TOA}, v{Y}, 5, v{Y+1}")
    I(f"v_add_u32 v{TOA}, {SCR+28}, v{TOA}")
    I(f"s_movk_i32 s42, {NCH}")
    I(f"v_cmp_gt_u32 s[92:93], s42, v{Y}")
    if c.pfx2_pos == 1:
        I("s_mov_b64 s[40:41], s[46:47]")
        prefetch_x(e, c.pfx2_lines, 114, 117, 256, 31, 0, 4, c.pfx_lines)
        I("s_mov_b64 s[46:47], s[40:41]")
    if c.nop2 == 1:
        spin(e, "bst", 57, 56, BST, 16, 44, 42, sleep=1)
        I(f"buffer_store_dwordx4 v[{TB2}:{TB2+3}], v{TB2+8}, s[8:11], s39 offen {sf}")
        I(f"buffer_store_dwordx4 v[{TB2+4}:{TB2+7}], v{TB2+8}, s[8:11], s39 offen offset:1024 {sf}")
    stamp(e, c, 14)
    e.label("L2_m_round")
    I("s_barrier")
    I("s_cmp_eq_u32 s23, 1")
    I("s_cbranch_scc1 L2_m_slowC")
    def pollB_issue():
        I(f"buffer_load_dwordx4 v[{TF+4}:{TF+7}], v{PA0}, s[8:11], s36 offen sc1")
        I(f"buffer_load_dwordx4 v[{TF+8}:{TF+11}], v{PA1}, s[8:11], s37 offen sc1")
    I(f"ds_read_b32 v{TF}, v{X0} offset:{HIST}")
    I(f"ds_read_b32 v{TF+1}, v{X0} offset:{HIST2}")
    I(f"ds_read_b32 v{Y}, v{TOA}")
    I("s_waitcnt lgkmcnt(0)")
    I(f"v_add_u32 v{TF}, v{TF}, v{TF+1}")
    I(f"v_and_b32 v{Y}, 0xfff, v{Y}")
    I(f"v_cndmask_b32 v{Y}, 0, v{Y}, s[92:93]")
    scan64(e, TF)
    scan64(e, Y)
    I(f"v_readlane_b32 s42, v{TF}, 63")
    I(f"v_mov_b32 v{Y+2}, 0")
    I("s_mov_b32 exec_lo, 0")
    I("s_mov_b32 exec_hi, 0x80000000")
    I(f"ds_add_u32 v{Y+2}, v{Y} offset:{TOTB}")
    I("s_mov_b64 exec, -1")
    I(f"s_cmp_gt_u32 s42, {CAP}")
    I("s_cbranch_scc1 L2_m_overflow")
    if c.bearly: pollB_issue()
    I("s_waitcnt lgkmcnt(0)")
    I("s_barrier")
    I(f"ds_read_b32 v{Y}, v{Y+2} offset:{TOTB}")
    SEL = Y + 4
    E2 = [TF, TF + 8]
    I("s_mov_b32 s44, 0")
    I("s_waitcnt lgkmcnt(0)")
    I(f"v_readfirstlane_b32 s42, v{Y}")
    I(f"v_or_b32 v{SEL}, 0x0c0c0c00, v{LJ}")
    I(f"s_cmp_gt_u32 s42, {CAP}")
    I("s_cbranch_scc1 L2_m_overflow")
    stamp(e, c, 10)
    I("s_mov_b32 s34, s42")
    if c.x_nobload: I("s_branch L2_bnoxb")
    if c.bearly: I("s_branch L2_pollB_w")
    e.label("L2_pollB")
    pollB_issue()
    e.label("L2_pollB_w")
    I("s_add_u32 s44, s44, 1")
    I("s_waitcnt vmcnt(0)")
    tag_bad(e, Y, TF+4, Y+1, ODD)
    tag_bad(e, Y+2, TF+8, Y+1, ODD)
    I(f"v_cndmask_b32 v{Y+2}, 0, v{Y+2}, s[46:47]")
    I(f"v_or_b32 v{Y}, v{Y}, v{Y+2}")
    I(f"v_cmp_ne_u32 vcc, 0, v{Y}")
    e.nop(2)
    I("s_cmp_eq_u64 vcc, 0")
    I("s_cbranch_scc1 L2_pollB_ok")
    I(f"s_sleep {c.psleep}")
    I("s_cmp_lt_u32 s44, 0x100000")
    I("s_cbranch_scc1 L2_pollB")
    e.label("L2_pollB_ok")
    stamp(e, c, 7)
    I(f"ds_write_b128 v{LA}, v[{TF+4}:{TF+7}] offset:{CEB}")
    I(f"ds_write_b128 v{LA}, v[{TF+8}:{TF+11}] offset:{CEB+1024}")
    def boff(p): return ((128 if p >= 4 else 0) + 8 * (p & 3)) * CSTRIDE
    def ent_read(p):
        r = E2[p & 1]
        I(f"ds_read_b128 v[{r}:{r+3}], v{RB} offset:{CEB+256*p}")
        I(f"ds_read_b64 v[{r+4}:{r+5}], v{RB} offset:{CEB+256*p+16}")
    ent_read(0); ent_read(1)
    I(f"v_add_u32 v{Y+1}, 8, v{LJ}")
    for p in range(NPB):
        r = E2[p & 1]
        I(f"s_waitcnt lgkmcnt({2 if p < NPB-1 else 0})")
        I(f"v_and_b32 v{SJ+p}, 0xfff, v{r}")
        I(f"v_bfe_u32 v{TB+p}, v{r}, 12, 12")
        I(f"v_perm_b32 v{KB+2*p}, v{r+3}, v{r+2}, v{SEL}")
        I(f"v_perm_b32 v{KB+2*p+1}, v{r+5}, v{r+4}, v{SEL}")
        if p + 2 < NPB: ent_read(p + 2)
        I(f"v_add_u32 v{SJ+p}, v{SJ+p}, v{LJ}")
        I(f"v_cmp_lt_u32 {mb(p,0)}, v{LJ}, v{TB+p}")
        I(f"v_cmp_lt_u32 {mb(p,1)}, v{Y+1}, v{TB+p}")
        I(f"v_lshl_add_u32 v{SJ+p}, v{SJ+p}, 4, v{LCH}")
    P0 = [TF, TF+4, TF+8, TF+12]
    def pay_issue(p, w, reg):
        I(f"s_mov_b32 s42, {boff(p)+PAYOFF}")
        I("s_mov_b64 exec, -1")
        I(f"v_cndmask_b32 v{Y+2+w}, 2.0, v{SJ+p}, {mb(p,w)}")
        I(f"buffer_load_dwordx4 v[{reg}:{reg+3}], v{Y+2+w}, s[8:11], s42 offen offset:{128*w} {rf}")
    for k in range(4): pay_issue(k >> 1, k & 1, P0[k])
    I(f"v_max3_u32 v{Y}, v{TB}, v{TB+1}, v{TB+2}")
    I(f"v_max3_u32 v{Y}, v{Y}, v{TB+3}, v{TB+4}")
    I(f"v_max3_u32 v{Y}, v{Y}, v{TB+5}, v{TB+6}")
    I(f"v_max_u32 v{Y}, v{Y}, v{TB+7}")
    I(f"v_cmp_lt_u32 vcc, 16, v{Y}")
    I(f"v_mov_b32 v{Y+1}, v{RB}")
    for p in range(NPB):
        for w in range(2):
            I(f"s_mov_b64 exec, {mb(p,w)}")
            I(f"ds_add_rtn_u32 v{RB+2*p+w}, v{KB+2*p+w}, v{LONE} offset:{HISTB}")
    I("s_mov_b64 exec, -1")
    I("s_cmp_lg_u64 vcc, 0")
    I("s_cselect_b32 s35, 1, 0")
    I("s_cbranch_scc0 L2_bnoxa")
    def w2mask(p):
        I(f"v_min_u32 v{Y+2}, {KIN}, v{TB+p}")
        I(f"v_add_u32 v{Y+3}, 16, v{LJ}")
        I(f"v_cmp_lt_u32 vcc, v{Y+3}, v{Y+2}")
        I("s_and_saveexec_b64 s[44:45], vcc")
    for p in range(NPB):
        w2mask(p)
        e.branch(f"s_cbranch_execz L2_bw2a{p}")
        I(f"ds_read_b32 v{KA+p}, v{Y+1} offset:{CEB+256*p+24}")
        I("s_waitcnt lgkmcnt(0)")
        I(f"v_perm_b32 v{KA+p}, v{KA+p}, v{KA+p}, v{SEL}")
        I(f"ds_add_rtn_u32 v{Y+2}, v{KA+p}, v{LONE} offset:{HISTB}")
        I("s_waitcnt lgkmcnt(0)")
        I(f"v_lshl_or_b32 v{KA+p}, v{Y+2}, 8, v{KA+p}")
        e.label(f"L2_bw2a{p}")
        I("s_mov_b64 exec, -1")
    def key_addr(p, dst):
        I(f"v_sub_u32 v{dst}, v{SJ+p}, v{LCH}")
        I(f"v_lshrrev_b32 v{dst}, 4, v{dst}")
        I(f"v_add_u32 v{dst}, v{dst}, v{LCH}")
    for p in range(NPB):
        I(f"s_mov_b32 s42, {boff(p)+KEYOFF}")
        key_addr(p, Y+3)
        extra_count(f"b{p}", KIN, LJ, Y+3, TB+p, 42, LONE, HIST2B, Y)
    e.label("L2_bnoxa")
    I("s_mov_b64 exec, 1")
    I(f"v_mov_b32 v{Y+2}, 0")
    I("s_waitcnt lgkmcnt(0)")
    I(f"ds_add_u32 v{Y+2}, v{LONE} offset:{BSYNC}")
    I("s_mov_b64 exec, -1")
    I(f"v_mov_b32 v{Y+2}, 0")
    spin(e, "bs", Y, Y+2, BSYNC, 4, 44, 42)
    BB = Y + 4
    I(f"ds_read_b32 v{Y}, v{X0} offset:{HISTB}")
    I(f"ds_read_b32 v{Y+1}, v{X0} offset:{HIST2B}")
    I("s_waitcnt lgkmcnt(0)")
    I(f"v_add_u32 v{Y+1}, v{Y}, v{Y+1}")
    I(f"v_mov_b32 v{BB}, v{Y+1}")
    scan64(e, BB)
    I(f"v_sub_u32 v{BB}, v{BB}, v{Y+1}")
    I(f"v_add_u32 v{BB}, {BOFF}, v{BB}")
    for k in range(2*NPB):
        I(f"ds_bpermute_b32 v{KB+k}, v{KB+k}, v{BB}")
    I("s_cmp_lg_u32 s21, 0")
    I("s_cbranch_scc1 L2_bnoinfo")
    I(f"v_lshl_or_b32 v{Y+1}, v{Y+1}, 16, v{BB}")
    I(f"s_mov_b32 exec_lo, {((1 << 32) - (1 << HN))}")
    I(f"ds_write_b32 v{X0}, v{Y+1} offset:{INFO}")
    I("s_mov_b64 exec, -1")
    e.label("L2_bnoinfo")
    I("s_waitcnt lgkmcnt(0)")
    for k in range(2*NPB):
        I(f"v_add_lshl_u32 v{KB+k}, v{KB+k}, v{RB+k}, 4")
    I(f"v_mov_b32 v{LONE}, v{Y}")
    regs = P0 + [RB, RB+4, RB+8, RB+12]
    for k in range(4, 8): pay_issue(k >> 1, k & 1, regs[k])
    for k in range(16):
        I(f"s_waitcnt vmcnt({min(7, 15-k)})")
        I(f"s_mov_b64 exec, {mb(k>>1, k&1)}")
        I(f"ds_write_b128 v{KB+k}, v[{regs[k&7]}:{regs[k&7]+3}] offset:{RAW}")
        if k + 8 < 16: pay_issue((k+8) >> 1, (k+8) & 1, regs[k&7])
    I("s_mov_b64 exec, -1")
    I("s_cmp_eq_u32 s35, 0")
    I("s_cbranch_scc1 L2_bnoxb")
    for p in range(NPB):
        I(f"v_and_b32 v{Y}, 0xff, v{KA+p}")
        I(f"ds_bpermute_b32 v{Y}, v{Y}, v{BB}")
        w2mask(p)
        e.branch(f"s_cbranch_execz L2_bw2b{p}")
        I(f"s_mov_b32 s42, {boff(p)+PAYOFF}")
        I(f"buffer_load_dwordx4 v[{TF}:{TF+3}], v{SJ+p}, s[8:11], s42 offen offset:256 {rf}")
        I(f"v_lshrrev_b32 v{KA+p}, 8, v{KA+p}")
        I("s_waitcnt vmcnt(0) lgkmcnt(0)")
        I(f"v_add_lshl_u32 v{Y}, v{Y}, v{KA+p}, 4")
        I(f"ds_write_b128 v{Y}, v[{TF}:{TF+3}] offset:{RAW}")
        e.label(f"L2_bw2b{p}")
        I("s_mov_b64 exec, -1")
        I("s_waitcnt lgkmcnt(0)")
    I(f"v_add_u32 v{BB}, v{BB}, v{LONE}")
    I(f"v_mov_b32 v{LONE}, 1")
    for p in range(NPB):
        I(f"s_mov_b32 s42, {boff(p)+KEYOFF}")
        I(f"s_mov_b32 s43, {boff(p)+PAYOFF}")
        key_addr(p, KA+p)
        extra_move(f"b{p}", KIN, LJ, KA+p, SJ+p, TB+p, 42, 43, LONE, CUR2B, BB, Y, TF)
    e.label("L2_bnoxb")
    I("s_waitcnt lgkmcnt(0)")
    for k in range(64):
        I(f"v_mov_b32 v{G+k}, 0")
    I("s_cmp_lg_u32 s21, 1")
    I("s_cbranch_scc1 L2_bnoguard")
    I(f"s_add_u32 s42, s34, {BOFF}")
    I("s_lshl_b32 s42, s42, 4")
    I(f"v_lshl_add_u32 v{TF}, v{X0}, 2, s42")
    I(f"ds_write_b128 v{TF}, v[{G}:{G+3}] offset:{RAW}")
    I("s_waitcnt lgkmcnt(0)")
    e.label("L2_bnoguard")
    I(f"v_mov_b32 v{TF}, 1")
    I("s_mov_b64 exec, 1")
    I(f"ds_add_u32 v{G}, v{TF} offset:{BREADY}")
    I("s_mov_b64 exec, -1")
    stamp(e, c, 13)
    I("s_branch L2_m_tiles")
    e.label("L2_m_slowC")
    I("s_barrier")
    e.label("L2_m_tiles")
    if c.prio_m: I(f"s_setprio {c.prio_m}")
    for h in range(2):
        for t in ((0, 3, 1, 2) if h else range(4)):
            need = 16 if t < 3 else NODES - 48
            last = (h, t) == (1, 2)
            if last and c.split: need = 32
            I(f"v_mov_b32 v{TF}, 0")
            spin(e, f"t{h}{t}", TF+1, TF, DONE + 16*h + 4*t, need, 43, 42, sleep=(1 if last else c.sleep))
            stamp(e, c, 16 + 4*h + t)
            srcs = [t] + ([0] if last and c.split else [])
            steps = [(tt, ks) for tt in srcs for ks in range(16)]
            def mf(ks, r):
                jp, blk = ks >> 2, 2 * h + ((ks >> 1) & 1)
                p, i, sg = path_of(jp, blk)
                f = p * 2 + (ks & 1)
                g = G + 16 * t + 4 * i
                I(f"v_mfma_f32_16x16x32_bf16 v[{g}:{g+3}], v[{W+4*f}:{W+4*f+3}], v[{r}:{r+3}], v[{g}:{g+3}]")
            def rd(n, r):
                tt, ks = steps[n]
                I(f"ds_read_b128 v[{r}:{r+3}], v{TA+(ks&3)} offset:{tt*16384 + (ks>>2)*256}")
            if last and c.fastlast and not c.split:
                I("s_cmp_eq_u32 s24, 0")
                I("s_cbranch_scc1 L2_lastslow")
                fr = [TF + 4*n for n in range(4)] + [G + 4*n for n in range(8)] + [G + 48 + 4*n for n in range(4)]
                order = [0, 2, 4, 8, 1, 3, 5, 9, 6, 10, 12, 14, 7, 11, 13, 15]
                for n, ks in enumerate(order): rd(ks, fr[n])
                for n, ks in enumerate(order):
                    I(f"s_waitcnt lgkmcnt({15-n})")
                    mf(ks, fr[n])
                I("s_branch L2_lastdone")
                e.label("L2_lastslow")
            for n in range(4): rd(n, TF + 4*n)
            for n in range(len(steps)):
                I(f"s_waitcnt lgkmcnt({min(3, len(steps)-1-n)})")
                mf(steps[n][1], TF + 4*(n&3))
                if n + 4 < len(steps): rd(n + 4, TF + 4*(n&3))
            if last and c.fastlast and not c.split: e.label("L2_lastdone")
            if (h, t) == (1, 0) and c.split:
                I(f"v_mov_b32 v{TF}, 0")
                I(f"v_mov_b32 v{TF+1}, 1")
                I("s_mov_b64 exec, 1")
                I(f"ds_add_u32 v{TF}, v{TF+1} offset:{GDONE + 16}")
                I("s_mov_b64 exec, -1")
            if h == 0:
                I(f"v_mov_b32 v{TF}, 0")
                I(f"v_mov_b32 v{TF+1}, 1")
                I("s_mov_b64 exec, 1")
                I(f"ds_add_u32 v{TF}, v{TF+1} offset:{GDONE + 4*t}")
                I("s_mov_b64 exec, -1")
                if t == c.pf1_tile:
                    I(f"s_movk_i32 m0, {HIST2B}")
                    I("s_lshl_b32 s42, s21, 6")
                    I(f"v_lshrrev_b32 v{TF+3}, 2, v{X0}")
                    I(f"v_add_u32 v{TF+3}, s42, v{TF+3}")
                    prefetch_x(e, c.pf1_lines, TF + 4, TF + 3, 256, 31, 1, 4, lds=True)
            else:
                I("s_cmp_eq_u32 s24, 0")
                e.branch(f"s_cbranch_scc1 L2_nofin{t}")
                g = G + 16 * t
                I("s_mov_b32 s42, 0xbfb8aa3b")
                for r in range(4): I(f"v_mul_f32 v{TF+r}, s42, v{g+r}")
                for r in range(4): I(f"v_exp_f32 v{TF+r}, v{TF+r}")
                for r in range(4): I(f"v_add_f32 v{TF+r}, 1.0, v{TF+r}")
                for r in range(4): I(f"v_rcp_f32 v{TF+r}, v{TF+r}")
                for i in range(1, 4):
                    for r in range(4): I(f"v_mul_f32 v{g+4*i+r}, v{g+4*i+r}, v{TF+r}")
                for i in range(4):
                    I(f"v_cvt_pk_bf16_f32 v{TF+4+2*i}, v{g+4*i}, v{g+4*i+1}")
                    I(f"v_cvt_pk_bf16_f32 v{TF+5+2*i}, v{g+4*i+2}, v{g+4*i+3}")
                fl = c.out_flags if (t == 2 or c.out_early is None) else c.out_early
                if c.wideout:
                    prev = {0: None, 3: 0, 1: 3, 2: 1}[t]
                    z, a1, a2 = TF, TF + 1, TF + 2
                    I(f"v_mov_b32 v{z}, 0")
                    if prev is not None: spin(e, f"or{t}", a1, z, OUTR + 4*prev, 4, 43, 42)
                    I(f"v_bfe_u32 v{a1}, v{X0}, 2, 4")
                    I(f"v_lshrrev_b32 v{a2}, 7, v{X0}")
                    I("s_lshl_b32 s42, s21, 1")
                    I(f"v_add_u32 v{a2}, s42, v{a2}")
                    I(f"v_xor_b32 v{a2}, v{a2}, v{a1}")
                    I(f"v_and_b32 v{a2}, 7, v{a2}")
                    I(f"v_lshlrev_b32 v{a2}, 4, v{a2}")
                    I(f"v_lshl_add_u32 v{a2}, v{a1}, 9, v{a2}")
                    I(f"v_bfe_u32 v{a1}, v{X0}, 6, 1")
                    I(f"v_lshl_add_u32 v{a2}, v{a1}, 3, v{a2}")
                    I(f"v_add_u32 v{a2}, {WRAD}, v{a2}")
                    for i in range(4):
                        I(f"ds_write_b64 v{a2}, v[{TF+4+2*i}:{TF+5+2*i}] offset:{i*128}")
                    I(f"v_mov_b32 v{a1}, 1")
                    I("s_mov_b64 exec, 1")
                    I(f"ds_add_u32 v{z}, v{a1} offset:{OUTW + 4*t}")
                    I("s_mov_b64 exec, -1")
                    r0, ga, la = TF + 12, TF + 13, TF + 3
                    I(f"v_lshrrev_b32 v{r0}, 7, v{X0}")
                    I("s_lshl_b32 s42, s21, 2")
                    I(f"v_add_u32 v{r0}, s42, v{r0}")
                    I(f"v_bfe_u32 v{ga}, v{X0}, 2, 5")
                    I(f"v_and_b32 v{a2}, 7, v{r0}")
                    I(f"v_xor_b32 v{la}, v{ga}, v{a2}")
                    I(f"v_lshlrev_b32 v{la}, 4, v{la}")
                    I(f"v_lshl_add_u32 v{la}, v{r0}, 9, v{la}")
                    I(f"v_add_u32 v{la}, {WRAD}, v{la}")
                    I(f"v_xor_b32 v{a2}, 32, v{la}")
                    I(f"v_lshlrev_b32 v{ga}, 4, v{ga}")
                    I(f"v_lshl_add_u32 v{ga}, v{r0}, 9, v{ga}")
                    I(f"v_add_u32 v{ga}, s40, v{ga}")
                    spin(e, f"ow{t}", a1, z, OUTW + 4*t, 4, 43, 42)
                    I(f"ds_read_b128 v[{TF+4}:{TF+7}], v{la}")
                    I(f"ds_read_b128 v[{TF+8}:{TF+11}], v{a2} offset:1024")
                    for k in range(2):
                        base = 16*t + 2*k
                        I(f"s_mov_b32 s42, {base*512 + ((N//2-HN)*512 if t >= 2 else 0)}")
                        va = ga
                        if t == 1:
                            va = TF + 14
                            I(f"v_cmp_le_u32 vcc, {HN-base}, v{r0}")
                            I(f"v_add_u32 v{TF+15}, {(N//2-HN)*512}, v{ga}")
                            I(f"s_sub_u32 s43, s41, {base}")
                            I(f"v_cndmask_b32 v{va}, v{ga}, v{TF+15}, vcc")
                            I(f"v_cmp_gt_i32 s[44:45], s43, v{r0}")
                            e.nop(1)
                            I("s_or_b64 exec, vcc, s[44:45]")
                        if t == 3:
                            I(f"s_sub_u32 s43, s41, {base-HN}")
                            I(f"v_cmp_gt_i32 vcc, s43, v{r0}")
                            e.nop(1)
                            I("s_mov_b64 exec, vcc")
                        I(f"s_waitcnt lgkmcnt({1-k})")
                        if t == 3: I(f"s_cbranch_execz L2_wo3{k}")
                        I(f"buffer_store_dwordx4 v[{TF+4+4*k}:{TF+7+4*k}], v{va}, s[12:15], s42 offen {fl}")
                        if t == 3: e.label(f"L2_wo3{k}")
                        if t in (1, 3): I("s_mov_b64 exec, -1")
                    if t != 2:
                        I(f"v_mov_b32 v{a1}, 1")
                        I("s_mov_b64 exec, 1")
                        I(f"ds_add_u32 v{z}, v{a1} offset:{OUTR + 4*t}")
                        I("s_mov_b64 exec, -1")
                else:
                    I(f"s_mov_b32 s42, {t*16*512 + ((N//2-HN)*512 if t >= 2 else 0)}")
                    va = X1
                    if t == 1:
                        va = TF
                        I(f"v_add_u32 v{TF}, {(N//2-HN)*512}, v{X1}")
                        I(f"v_cndmask_b32 v{TF}, v{X1}, v{TF}, s[84:85]")
                        I("s_mov_b64 exec, s[94:95]")
                    if t == 3:
                        I("s_mov_b64 exec, s[50:51]")
                        I("s_cbranch_execz L2_nost3")
                    for i in range(4):
                        I(f"buffer_store_dwordx2 v[{TF+4+2*i}:{TF+5+2*i}], v{va}, s[12:15], s42 offen offset:{i*128} {c.out_flags if (t == 2 or c.out_early is None) else c.out_early}")
                    if t == 3: e.label("L2_nost3")
                    if t in (1, 3): I("s_mov_b64 exec, -1")
                e.label(f"L2_nofin{t}")
    stamp(e, c, 11)
    I("s_cmp_lg_u32 s24, 0")
    e.branch("s_cbranch_scc1 L2_m_exit")
    I("s_add_u32 s89, s89, 1")
    I("s_branch L2_m_slow")
    e.label("L2_m_overflow")
    I("s_mov_b32 s89, 0")
    I("s_mov_b32 s23, 1")
    I("s_waitcnt vmcnt(0)")
    for k in range(64):
        I(f"v_mov_b32 v{G+k}, 0")
    e.label("L2_m_slow")
    I("s_waitcnt vmcnt(0) lgkmcnt(0)")
    I("s_barrier")
    I(f"s_cmp_eq_u32 s89, {2*NCH-1}")
    I("s_cselect_b32 s24, 1, 0")
    I("s_cmp_lg_u32 s21, 1")
    I("s_cbranch_scc1 L2_m_nz")
    for k in range(4): I(f"v_mov_b32 v{TF+k}, 0")
    I(f"v_lshlrev_b32 v{TF+4}, 2, v{X0}")
    I(f"ds_write_b128 v{TF+4}, v[{TF}:{TF+3}]")
    I("s_waitcnt lgkmcnt(0)")
    e.label("L2_m_nz")
    I("s_barrier")
    e.branch("s_branch L2_m_round")
    e.label("L2_m_exit")
    if c.stamps:
        I("s_waitcnt vmcnt(0)")
        stamp(e, c, 12)
        stamp_store(e, c, TF)
    e.label("L_end")
    I("s_endpgm")
    e.label("L_codeend")
    return KNAME, 128, 96

def gather_loop(e, c, L):
    I = e.I
    RAW, T, NEXT, DONE, GDONE, OSC, PL1, BREADY, INFO = (L[k] for k in "RAW T NEXT DONE GDONE OSC PL1 BREADY INFO".split())
    VLANE, VINFO, VNEXT, VLOFF, VMASK, VOW, VOR, VSCRW, VTRA, VWR, VL16, VT0, VT1, VONE = (L[k] for k in
        "VLANE VINFO VNEXT VLOFF VMASK VOW VOR VSCRW VTRA VWR VL16 VT0 VT1 VONE".split())
    ACC, LD, B, A, AD = 0, 32, 64, 96, 100
    sA, sR, sH, sN, sNV = 32, 33, 34, 35, 37
    sCN, sCH, sCF, sCR, sL = 38, 39, 40, 41, 36
    uid = [0]
    def lab(p):
        uid[0] += 1
        return f"L2_{p}{uid[0]}"
    def fetch_issue():
        I("s_mov_b64 exec, 1")
        I(f"ds_add_rtn_u32 v{VNEXT}, v{VL16}, v{VONE} offset:{NEXT}")
        I("s_mov_b64 exec, -1")
    NIT = 2*NODES + (16 if c.split else 0)
    def setup_item(none_label):
        I(f"v_readfirstlane_b32 s42, v{VNEXT}")
        e.nop(1)
        if c.static1: I("s_add_u32 s42, s42, 12")
        I(f"s_cmp_ge_u32 s42, {NIT}")
        I(f"s_cbranch_scc1 {none_label}")
        t, sp, dn = lab("bw"), lab("sp"), lab("sd")
        if c.split:
            I(f"s_cmp_ge_u32 s42, {2*NODES-16}")
            I(f"s_cbranch_scc1 {sp}")
        I(f"s_cmp_ge_u32 s42, {NODES}")
        I(f"s_cselect_b32 s{sH}, 256, 0")
        I(f"s_cselect_b32 s43, {NODES}, 0")
        I(f"s_cmp_ge_u32 s42, {NODES+16}")
        I(f"s_cselect_b32 s43, {NODES-32}, s43")
        I(f"s_cmp_ge_u32 s42, {NODES+18}")
        I(f"s_cselect_b32 s43, {NODES+2}, s43")
        I(f"s_sub_u32 s{sN}, s42, s43")
        I(f"s_cmp_lt_u32 s{sN}, s48")
        I(f"s_cbranch_scc1 {t}")
        stamp(e, c, 29)
        I(f"v_mov_b32 v{VT0}, 0")
        spin(e, t, VT1, VT0, BREADY, 4, 45, 44, sleep=1)
        I(f"v_lshrrev_b32 v{VT0}, 2, v{VL16}")
        I(f"ds_read_b32 v{VINFO}, v{VT0} offset:{INFO}")
        I("s_movk_i32 s48, 64")
        I("s_waitcnt lgkmcnt(0)")
        stamp(e, c, 30)
        e.label(t)
        I(f"v_readlane_b32 s42, v{VINFO}, s{sN}")
        e.nop(1)
        I(f"s_lshr_b32 s{sR}, s42, 16")
        I("s_and_b32 s42, s42, 0xffff")
        I(f"s_lshl_b32 s{sA}, s42, 4")
        if c.split:
            I(f"s_branch {dn}")
            e.label(sp)
            I(f"s_sub_u32 s42, s42, {2*NODES-16}")
            I("s_lshr_b32 s43, s42, 1")
            I(f"s_add_u32 s{sN}, s43, 32")
            I(f"s_cmp_lt_u32 s{sN}, s48")
            I(f"s_cbranch_scc1 {t}b")
            I(f"v_mov_b32 v{VT0}, 0")
            spin(e, t + "c", VT1, VT0, BREADY, 4, 45, 44, sleep=1)
            I(f"v_lshrrev_b32 v{VT0}, 2, v{VL16}")
            I(f"ds_read_b32 v{VINFO}, v{VT0} offset:{INFO}")
            I("s_movk_i32 s48, 64")
            I("s_waitcnt lgkmcnt(0)")
            e.label(t + "b")
            I(f"v_readlane_b32 s44, v{VINFO}, s{sN}")
            I(f"s_movk_i32 s{sH}, 256")
            I(f"s_lshr_b32 s{sR}, s44, 16")
            I("s_and_b32 s44, s44, 0xffff")
            I(f"s_min_u32 s45, s{sR}, 32")
            I("s_bitcmp1_b32 s42, 0")
            I(f"s_cbranch_scc1 {sp}h")
            I(f"s_mov_b32 s{sR}, s45")
            I(f"s_lshl_b32 s{sA}, s44, 4")
            I(f"s_branch {dn}")
            e.label(sp + "h")
            I(f"s_sub_u32 s{sR}, s{sR}, s45")
            I("s_add_u32 s44, s44, s45")
            I(f"s_lshl_b32 s{sA}, s44, 4")
            I(f"s_or_b32 s{sN}, s43, 64")
            e.label(dn)
    def off_read(hf):
        I(f"ds_read_b128 v[{AD}:{AD+3}], v{VOR} offset:{OSC+128*hf}")
        I(f"ds_read_b128 v[{AD+4}:{AD+7}], v{VOR} offset:{OSC+128*hf+16}")
    def off_add():
        if c.addtid: return
        for i in range(8):
            I(f"v_add_u32 v{AD+i}, v{AD+i}, v{VLOFF}")
    def prep_block():
        r = B
        I(f"v_add_u32 v{VT0}, s{sA}, v{VL16}")
        I(f"ds_read_b128 v[{r}:{r+3}], v{VT0} offset:{RAW}")
        l = lab("nf")
        I(f"s_cmp_gt_u32 s{sR}, 64")
        I(f"s_cbranch_scc1 {l}")
        fetch_issue()
        e.label(l)
        I(f"v_cmp_gt_u32 vcc, s{sR}, v{VLANE}")
        I("s_waitcnt lgkmcnt(0)")
        I(f"v_lshrrev_b32 v{r+11}, 16, v{r+3}")
        if c.addtid:
            I(f"v_lshlrev_b32 v{r+11}, 5, v{r+11}")
            I(f"v_sub_u32 v{r+11}, v{r+11}, v{VLOFF}")
        else:
            I(f"v_lshlrev_b32 v{r+11}, 9, v{r+11}")
            if c.oobtail: I(f"v_cndmask_b32 v{r+11}, 2.0, v{r+11}, vcc")
        I(f"ds_write_b32 v{VOW}, v{r+11} offset:{OSC}")
        off_read(0)
        if not c.x_noexp:
            I(f"v_cndmask_b32 v{r}, 0, v{r}, vcc")
            I(f"v_cndmask_b32 v{r+1}, 0, v{r+1}, vcc")
            I(f"v_lshlrev_b32 v{r+8}, 16, v{r+2}")
            I(f"v_and_b32 v{r+9}, v{VMASK}, v{r+2}")
            I(f"v_lshlrev_b32 v{r+10}, 16, v{r+3}")
            I(f"v_lshlrev_b32 v{r+4}, 16, v{r}")
            I(f"v_and_b32 v{r+5}, v{VMASK}, v{r}")
            I(f"v_lshlrev_b32 v{r+6}, 16, v{r+1}")
            I(f"v_and_b32 v{r+7}, v{VMASK}, v{r+1}")
            for j in range(3):
                for d in range(4):
                    I(f"v_mul_f32 v{r+12+4*j+d}, v{r+4+d}, v{r+8+j}")
            I(f"v_cvt_pk_bf16_f32 v{r+2}, v{r+12}, v{r+13}")
            I(f"v_cvt_pk_bf16_f32 v{r+3}, v{r+14}, v{r+15}")
            for k in range(4):
                I(f"v_cvt_pk_bf16_f32 v{r+24+k}, v{r+16+2*k}, v{r+17+2*k}")
        I(f"ds_write_b128 v{VSCRW}, v[{r}:{r+3}]")
        I(f"ds_write_b128 v{VSCRW}, v[{r+24}:{r+27}] offset:{PL1}")
        I("s_waitcnt lgkmcnt(2)")
        off_add()
    def ld(i):
        if c.x_noload: return
        I(f"buffer_load_dwordx4 v[{LD+4*i}:{LD+4*i+3}], v{AD+i}, s[4:7], {'0' if c.x_samehalf else 's%d' % sH} {'idxen' if c.addtid else 'offen'}")
    def perm(q, jj, k16=False):
        if c.x_noperm: return
        d = B + 2*q + jj if k16 else B + 4*q + jj
        I(f"v_perm_b32 v{d}, v{LD+4*(2*jj+1)+q//2}, v{LD+4*(2*jj)+q//2}, s{29 if q & 1 else 28}")
    def loads_partial(done):
        for i in range(7):
            I(f"s_cmp_le_u32 s{sL}, {4*i}")
            I(f"s_cbranch_scc1 {done}")
            ld(i)
    def perms_loads():
        part, done = lab("pp"), lab("pd")
        I("s_waitcnt vmcnt(0)")
        I(f"s_cmp_le_u32 s{sL}, 28")
        I(f"s_cbranch_scc1 {part}")
        for jj in range(4):
            for q in range(8): perm(q, jj)
            ld(2*jj); ld(2*jj+1)
        I(f"s_branch {done}")
        e.label(part)
        for jj in range(4):
            for q in range(8): perm(q, jj)
        loads_partial(done)
        e.label(done)
    def mfmas(first, k16=False):
        if c.x_nomfma: return
        for q in range(8):
            d = f"v[{ACC+4*q}:{ACC+4*q+3}]"
            if k16: I(f"v_mfma_f32_16x16x16_bf16 {d}, v[{A}:{A+1}], v[{B+2*q}:{B+2*q+1}], {'0' if first else d}")
            else: I(f"v_mfma_f32_16x16x32_bf16 {d}, v[{A}:{A+3}], v[{B+4*q}:{B+4*q+3}], {'0' if first else d}")
    def tr_read(hf):
        I(f"ds_read_b64_tr_b16 v[{A}:{A+1}], v{VTRA} offset:{512*hf}")
        I(f"ds_read_b64_tr_b16 v[{A+2}:{A+3}], v{VTRA} offset:{512*hf+256}")

    if c.stamps: I("s_mov_b32 s92, 16")
    setup_item("L2_g_done")
    prep_block()
    if c.totlate:
        I("v_readfirstlane_b32 s42, v96")
        e.nop(1)
        I(f"s_cmp_gt_u32 s42, {c.cap}")
        I("s_cbranch_scc1 L2_g_overflow")
    for i in range(8): ld(i)
    if c.prio_pro == 3: I("s_setprio 0")
    for first in (1, 0):
        e.label(f"L2_A{first}")
        tr_read(0)
        I(f"s_cmp_gt_u32 s{sR}, 32")
        I(f"s_cbranch_scc1 L2_AB{first}")
        I(f"s_mov_b32 s{sCF}, {first}")
        I(f"s_mov_b32 s{sCR}, s{sR}")
        I("s_branch L2_XN")
        e.label(f"L2_AB{first}")
        off_read(1)
        I(f"s_sub_u32 s{sL}, s{sR}, 32")
        I("s_waitcnt lgkmcnt(0)")
        off_add()
        perms_loads()
        mfmas(first)
        if first: I("s_branch L2_B")
    e.label("L2_B")
    tr_read(1)
    I(f"s_cmp_gt_u32 s{sR}, 64")
    I("s_cbranch_scc0 L2_BN")
    I(f"s_sub_u32 s{sR}, s{sR}, 64")
    I(f"s_add_u32 s{sA}, s{sA}, 1024")
    I(f"s_mov_b32 s{sL}, s{sR}")
    prep_block()
    perms_loads()
    I("s_waitcnt lgkmcnt(0)")
    mfmas(0)
    I("s_branch L2_A0")
    e.label("L2_BN")
    I(f"s_mov_b32 s{sCF}, 0")
    I(f"s_sub_u32 s{sCR}, s{sR}, 32")
    e.label("L2_XN")
    I(f"s_mov_b32 s{sCN}, s{sN}")
    I(f"s_mov_b32 s{sCH}, s{sH}")
    I(f"s_mov_b32 s{sNV}, 1")
    setup_item("L2_XN_none")
    I(f"s_mov_b32 s{sL}, s{sR}")
    prep_block()
    I("s_branch L2_XN_go")
    e.label("L2_XN_none")
    I(f"s_mov_b32 s{sNV}, 0")
    I(f"s_mov_b32 s{sL}, 0")
    e.label("L2_XN_go")
    I(f"s_cmp_le_u32 s{sCR}, 16")
    I("s_cbranch_scc1 L2_XN_k16")
    perms_loads()
    I("s_waitcnt lgkmcnt(0)")
    I(f"s_cmp_eq_u32 s{sCF}, 0")
    I("s_cbranch_scc1 L2_XN_acc")
    mfmas(1)
    I("s_branch L2_XN_epi")
    e.label("L2_XN_acc")
    mfmas(0)
    I("s_branch L2_XN_epi")
    e.label("L2_XN_k16")
    I("s_waitcnt vmcnt(0)")
    for jj in range(2):
        for q in range(8): perm(q, jj, True)
    I(f"s_cmp_le_u32 s{sL}, 28")
    I("s_cbranch_scc1 L2_XN_k16p")
    for i in range(8): ld(i)
    I("s_branch L2_XN_k16d")
    e.label("L2_XN_k16p")
    loads_partial("L2_XN_k16d")
    e.label("L2_XN_k16d")
    I("s_waitcnt lgkmcnt(0)")
    I(f"s_cmp_eq_u32 s{sCF}, 0")
    I("s_cbranch_scc1 L2_XN_k16acc")
    mfmas(1, True)
    I("s_branch L2_XN_epi")
    e.label("L2_XN_k16acc")
    mfmas(0, True)
    e.label("L2_XN_epi")
    I(f"s_lshl_b32 s42, s{sCH}, 5")
    I(f"v_add_u32 v{VT0}, s42, v{VWR}")
    for q in range(8):
        I(f"ds_read_b128 v[{B+4*q}:{B+4*q+3}], v{VT0} offset:{q*1024}")
    I(f"s_lshr_b32 s43, s{sCN}, 4")
    I(f"s_lshl_b32 s43, s43, 2")
    I(f"s_cmp_eq_u32 s{sCH}, 0")
    I("s_cbranch_scc1 L2_nowar")
    I(f"v_mov_b32 v{VT1}, s43")
    spin(e, "war", VT0, VT1, GDONE, 4, 45, 44)
    if c.split:
        I("s_cmp_eq_u32 s43, 16")
        I("s_cselect_b32 s43, 8, s43")
    I("s_add_u32 s43, s43, 16")
    e.label("L2_nowar")
    I(f"s_and_b32 s44, s{sCN}, 15")
    I("s_lshl_b32 s44, s44, 4")
    I(f"s_and_b32 s45, s{sCN}, 63")
    I(f"s_lshl_b32 s45, s45, 10")
    I(f"s_add_u32 s45, s45, {T}")
    I(f"v_xor_b32 v{VT0}, s44, v{VL16}")
    I(f"v_add_u32 v{VT0}, s45, v{VT0}")
    I(f"v_mov_b32 v{VT1}, s43")
    I("s_waitcnt lgkmcnt(0)")
    for q in range(8):
        I(f"v_mul_f32 v{B+4*q}, v{B+4*q}, v{ACC+4*q}")
    for d in range(1, 4):
        for q in range(8):
            I(f"v_fmac_f32 v{B+4*q}, v{B+4*q+d}, v{ACC+4*q+d}")
    for k in range(4):
        I(f"v_cvt_pk_bf16_f32 v{A+k}, v{B+8*k}, v{B+8*k+4}")
    I(f"ds_write_b128 v{VT0}, v[{A}:{A+3}]")
    if not c.nowait: I("s_waitcnt lgkmcnt(0)")
    I("s_mov_b64 exec, 1")
    I(f"ds_add_u32 v{VT1}, v{VONE} offset:{DONE}")
    I("s_mov_b64 exec, -1")
    if c.stamps:
        I("s_memrealtime s[90:91]")
        I("s_waitcnt lgkmcnt(0)")
        I("s_mov_b32 m0, s92")
        I(f"v_writelane_b32 v{STV}, s90, m0")
        I("s_add_u32 s92, s92, 1")
        I("s_min_u32 s92, s92, 23")
    I(f"s_cmp_lg_u32 s{sNV}, 0")
    I("s_cbranch_scc1 L2_A1")

def gather_loop_s(e, c, L):
    I = e.I
    RAW, T, NEXT, DONE, GDONE, OSC, PL1, BREADY, INFO = (L[k] for k in "RAW T NEXT DONE GDONE OSC PL1 BREADY INFO".split())
    VLANE, VINFO, VNEXT, VLOFF, VMASK, VOW, VOR, VSCRW, VTRA, VWR, VL16, VT0, VT1, VONE = (L[k] for k in
        "VLANE VINFO VNEXT VLOFF VMASK VOW VOR VSCRW VTRA VWR VL16 VT0 VT1 VONE".split())
    VTRB, VIDX = L["VJ"], L["VSEL"]
    ACC, LD, B, A, AD = 0, 32, 64, 96, 100
    sA, sR, sH, sN, sNV = 32, 33, 34, 35, 37
    sCN, sCH, sCR, sL = 38, 39, 41, 36
    uid = [0]
    def lab(p):
        uid[0] += 1
        return f"L3_{p}{uid[0]}"
    def fetch_issue():
        I("s_mov_b64 exec, 1")
        I(f"ds_add_rtn_u32 v{VNEXT}, v{VL16}, v{VONE} offset:{NEXT}")
        I("s_mov_b64 exec, -1")
    def setup_item(none_label):
        I(f"v_readfirstlane_b32 s42, v{VNEXT}")
        e.nop(1)
        I(f"s_cmp_ge_u32 s42, {2*NODES}")
        I(f"s_cbranch_scc1 {none_label}")
        I(f"s_cmp_ge_u32 s42, {NODES}")
        I(f"s_cselect_b32 s{sH}, 256, 0")
        I(f"s_cselect_b32 s43, {NODES}, 0")
        I(f"s_cmp_ge_u32 s42, {NODES+16}")
        I(f"s_cselect_b32 s43, {NODES-32}, s43")
        I(f"s_cmp_ge_u32 s42, {NODES+18}")
        I(f"s_cselect_b32 s43, {NODES+2}, s43")
        I(f"s_sub_u32 s{sN}, s42, s43")
        t = lab("bw")
        I(f"s_cmp_lt_u32 s{sN}, s48")
        I(f"s_cbranch_scc1 {t}")
        stamp(e, c, 29)
        I(f"v_mov_b32 v{VT0}, 0")
        spin(e, t, VT1, VT0, BREADY, 4, 45, 44, sleep=1)
        I(f"v_lshrrev_b32 v{VT0}, 2, v{VL16}")
        I(f"ds_read_b32 v{VINFO}, v{VT0} offset:{INFO}")
        I("s_movk_i32 s48, 64")
        I("s_waitcnt lgkmcnt(0)")
        stamp(e, c, 30)
        e.label(t)
        I(f"v_readlane_b32 s42, v{VINFO}, s{sN}")
        e.nop(1)
        I(f"s_lshr_b32 s{sR}, s42, 16")
        I("s_and_b32 s42, s42, 0xffff")
        I(f"s_lshl_b32 s{sA}, s42, 4")
    def off_read(hf):
        I(f"ds_read_b128 v[{AD}:{AD+3}], v{VOR} offset:{OSC+128*hf}")
        I(f"ds_read_b128 v[{AD+4}:{AD+7}], v{VOR} offset:{OSC+128*hf+16}")
    def off_add():
        for i in range(8):
            I(f"v_add_u32 v{AD+i}, v{AD+i}, v{VLOFF}")
    def prep_block():
        r = B
        I(f"v_add_u32 v{VT0}, s{sA}, v{VL16}")
        I(f"ds_read_b128 v[{r}:{r+3}], v{VT0} offset:{RAW}")
        l = lab("nf")
        I(f"s_cmp_gt_u32 s{sR}, 64")
        I(f"s_cbranch_scc1 {l}")
        fetch_issue()
        e.label(l)
        I(f"v_cmp_gt_u32 vcc, s{sR}, v{VLANE}")
        I("s_waitcnt lgkmcnt(0)")
        I(f"v_lshrrev_b32 v{r+11}, 16, v{r+3}")
        I(f"v_lshlrev_b32 v{r+11}, 9, v{r+11}")
        I(f"v_cndmask_b32 v{r+11}, 2.0, v{r+11}, vcc")
        I(f"ds_write_b32 v{VOW}, v{r+11} offset:{OSC}")
        off_read(0)
        I(f"v_cndmask_b32 v{r}, 0, v{r}, vcc")
        I(f"v_cndmask_b32 v{r+1}, 0, v{r+1}, vcc")
        I(f"v_lshlrev_b32 v{r+8}, 16, v{r+2}")
        I(f"v_and_b32 v{r+9}, v{VMASK}, v{r+2}")
        I(f"v_lshlrev_b32 v{r+10}, 16, v{r+3}")
        I(f"v_lshlrev_b32 v{r+4}, 16, v{r}")
        I(f"v_and_b32 v{r+5}, v{VMASK}, v{r}")
        I(f"v_lshlrev_b32 v{r+6}, 16, v{r+1}")
        I(f"v_and_b32 v{r+7}, v{VMASK}, v{r+1}")
        for j in range(3):
            for d in range(4):
                I(f"v_mul_f32 v{r+12+4*j+d}, v{r+4+d}, v{r+8+j}")
        I(f"v_cvt_pk_bf16_f32 v{r+2}, v{r+12}, v{r+13}")
        I(f"v_cvt_pk_bf16_f32 v{r+3}, v{r+14}, v{r+15}")
        for k in range(4):
            I(f"v_cvt_pk_bf16_f32 v{r+24+k}, v{r+16+2*k}, v{r+17+2*k}")
        I(f"ds_write_b128 v{VSCRW}, v[{r}:{r+3}]")
        I(f"ds_write_b128 v{VSCRW}, v[{r+24}:{r+27}] offset:{PL1}")
        I("s_waitcnt lgkmcnt(2)")
        off_add()
    def ld(i):
        if c.x_noload: return
        I(f"buffer_load_dwordx4 v[{LD+4*i}:{LD+4*i+3}], v{AD+i}, s[4:7], s{sH} offen")
    def moves(jj, k16=False):
        for p in range(4):
            d = B + (4 if k16 else 8) * p + 2 * jj
            a, b = LD + 8*jj + (p & 2), LD + 8*jj + 4 + (p & 2)
            I(f"v_pk_mov_b32 v[{d}:{d+1}], v[{a}:{a+1}], v[{b}:{b+1}] op_sel:[{p&1},{p&1}]")
    def loads_partial(done):
        for i in range(7):
            I(f"s_cmp_le_u32 s{sL}, {4*i}")
            I(f"s_cbranch_scc1 {done}")
            ld(i)
    def moves_loads():
        part, done = lab("pp"), lab("pd")
        I("s_waitcnt vmcnt(0)")
        I(f"s_cmp_le_u32 s{sL}, 28")
        I(f"s_cbranch_scc1 {part}")
        for jj in range(4):
            moves(jj)
            ld(2*jj); ld(2*jj+1)
        I(f"s_branch {done}")
        e.label(part)
        for jj in range(4): moves(jj)
        loads_partial(done)
        e.label(done)
    def macs(k16=False):
        for q in range(8):
            d = f"v[{ACC+4*q}:{ACC+4*q+3}]"
            p = q >> 1
            if k16: I(f"v_smfmac_f32_16x16x32_bf16 {d}, v[{A}:{A+1}], v[{B+4*p}:{B+4*p+3}], v{VIDX} cbsz:0 abid:{2*(q&1)}")
            else: I(f"v_smfmac_f32_16x16x64_bf16 {d}, v[{A}:{A+3}], v[{B+8*p}:{B+8*p+7}], v{VIDX} cbsz:0 abid:{q&1}")
    def tr32(hf):
        I(f"ds_read_b64_tr_b16 v[{A}:{A+1}], v{VTRB} offset:{512*hf}")
        I(f"ds_read_b64_tr_b16 v[{A+2}:{A+3}], v{VTRB} offset:{512*hf+16}")
    def tr16(hf):
        I(f"ds_read_b64_tr_b16 v[{A}:{A+1}], v{VTRA} offset:{512*hf}")
    def zero_acc():
        if c.zpk:
            for k in range(0, 32, 2): I(f"v_pk_mov_b32 v[{ACC+k}:{ACC+k+1}], 0, 0")
        else:
            for k in range(32): I(f"v_mov_b32 v{ACC+k}, 0")

    if c.stamps: I("s_mov_b32 s92, 16")
    I(f"v_lshrrev_b32 v{VT0}, 4, v{VLANE}")
    I(f"v_lshrrev_b32 v{VT1}, 5, v{VLANE}")
    I(f"v_mul_u32_u24 v{VT1}, 12, v{VT1}")
    I(f"v_add_u32 v{VT0}, v{VT0}, v{VT1}")
    I(f"v_lshl_add_u32 v{VTRB}, v{VT0}, 4, v{VTRA}")
    I(f"v_mov_b32 v{VIDX}, 0xdddd8888")
    setup_item("L2_g_done")
    prep_block()
    for i in range(8): ld(i)
    zero_acc()
    e.label("L3_A")
    I(f"s_mov_b32 s{sCR}, s{sR}")
    I(f"s_cmp_gt_u32 s{sR}, 32")
    I("s_cbranch_scc0 L3_AN")
    tr32(0)
    off_read(1)
    I(f"s_sub_u32 s{sL}, s{sR}, 32")
    I("s_waitcnt lgkmcnt(0)")
    off_add()
    moves_loads()
    macs()
    I(f"s_sub_u32 s{sCR}, s{sR}, 32")
    I(f"s_cmp_gt_u32 s{sR}, 64")
    I("s_cbranch_scc0 L3_BN")
    tr32(1)
    I(f"s_sub_u32 s{sR}, s{sR}, 64")
    I(f"s_add_u32 s{sA}, s{sA}, 1024")
    I(f"s_mov_b32 s{sL}, s{sR}")
    prep_block()
    moves_loads()
    I("s_waitcnt lgkmcnt(0)")
    macs()
    I("s_branch L3_A")
    for hf, nm in ((0, "AN"), (1, "BN")):
        e.label(f"L3_{nm}")
        I(f"s_cmp_le_u32 s{sCR}, 16")
        I(f"s_cbranch_scc1 L3_{nm}16")
        tr32(hf)
        I("s_branch L3_XN")
        e.label(f"L3_{nm}16")
        tr16(hf)
        if hf == 0: I("s_branch L3_XN")
    e.label("L3_XN")
    I(f"s_mov_b32 s{sCN}, s{sN}")
    I(f"s_mov_b32 s{sCH}, s{sH}")
    I(f"s_mov_b32 s{sNV}, 1")
    setup_item("L3_XN_none")
    I(f"s_mov_b32 s{sL}, s{sR}")
    prep_block()
    I("s_branch L3_XN_go")
    e.label("L3_XN_none")
    I(f"s_mov_b32 s{sNV}, 0")
    I(f"s_mov_b32 s{sL}, 0")
    e.label("L3_XN_go")
    I(f"s_cmp_le_u32 s{sCR}, 16")
    I("s_cbranch_scc1 L3_XN_k16")
    moves_loads()
    I("s_waitcnt lgkmcnt(0)")
    macs()
    I("s_branch L3_XN_epi")
    e.label("L3_XN_k16")
    I("s_waitcnt vmcnt(0)")
    moves(0, True); moves(1, True)
    I(f"s_cmp_le_u32 s{sL}, 28")
    I("s_cbranch_scc1 L3_XN_k16p")
    for i in range(8): ld(i)
    I("s_branch L3_XN_k16d")
    e.label("L3_XN_k16p")
    loads_partial("L3_XN_k16d")
    e.label("L3_XN_k16d")
    I("s_waitcnt lgkmcnt(0)")
    macs(True)
    e.label("L3_XN_epi")
    I(f"s_lshl_b32 s42, s{sCH}, 5")
    I(f"v_add_u32 v{VT0}, s42, v{VWR}")
    for q in range(8):
        I(f"ds_read_b128 v[{B+4*q}:{B+4*q+3}], v{VT0} offset:{q*1024}")
    I(f"s_lshr_b32 s43, s{sCN}, 4")
    I(f"s_lshl_b32 s43, s43, 2")
    I(f"s_cmp_eq_u32 s{sCH}, 0")
    I("s_cbranch_scc1 L3_nowar")
    I(f"v_mov_b32 v{VT1}, s43")
    spin(e, "war", VT0, VT1, GDONE, 4, 45, 44)
    I("s_add_u32 s43, s43, 16")
    e.label("L3_nowar")
    I(f"s_and_b32 s44, s{sCN}, 15")
    I("s_lshl_b32 s44, s44, 4")
    I(f"s_lshl_b32 s45, s{sCN}, 10")
    I(f"s_add_u32 s45, s45, {T}")
    I(f"v_xor_b32 v{VT0}, s44, v{VL16}")
    I(f"v_add_u32 v{VT0}, s45, v{VT0}")
    I(f"v_mov_b32 v{VT1}, s43")
    I("s_waitcnt lgkmcnt(0)")
    for q in range(8):
        I(f"v_mul_f32 v{B+4*q}, v{B+4*q}, v{ACC+4*q}")
    for d in range(1, 4):
        for q in range(8):
            I(f"v_fmac_f32 v{B+4*q}, v{B+4*q+d}, v{ACC+4*q+d}")
    for k in range(4):
        I(f"v_cvt_pk_bf16_f32 v{A+k}, v{B+8*k}, v{B+8*k+4}")
    I(f"ds_write_b128 v{VT0}, v[{A}:{A+3}]")
    I("s_mov_b64 exec, 1")
    I(f"ds_add_u32 v{VT1}, v{VONE} offset:{DONE}")
    I("s_mov_b64 exec, -1")
    zero_acc()
    if c.stamps:
        I("s_memrealtime s[90:91]")
        I("s_waitcnt lgkmcnt(0)")
        I("s_mov_b32 m0, s92")
        I(f"v_writelane_b32 v{STV}, s90, m0")
        I("s_add_u32 s92, s92, 1")
        I("s_min_u32 s92, s92, 23")
    I(f"s_cmp_lg_u32 s{sNV}, 0")
    I("s_cbranch_scc1 L3_A")

HEADER = """; equiformer tensor-product message passing, one persistent launch (one workgroup per CU):
"""

def gen_probe(e, c):
    kA, a0, a1, sA, oA, kB, b0, b1, sB, oB = c.probe.split(",")
    kernel_header(e, "eqprobe_kernel")
    I = e.I
    I("s_cmp_ge_u32 s2, 1")
    I("s_cbranch_scc1 LP_end")
    I("s_memrealtime s[20:21]")
    I("s_load_dwordx2 s[4:5], s[0:1], 88")
    I("s_waitcnt lgkmcnt(0)")
    srd(e, 8, 4, 32 << 20)
    I(f"v_min_u32 v1, {c.nwg-1}, v0")
    I("v_lshlrev_b32 v1, 11, v1")
    I("v_mov_b32 v10, 0"); I("v_mov_b32 v11, -1"); I("v_mov_b32 v12, 0")
    I("ds_write_b32 v10, v11 offset:0"); I("ds_write_b32 v10, v12 offset:4"); I("ds_write_b32 v10, v11 offset:8"); I("ds_write_b32 v10, v12 offset:12")
    I("s_waitcnt lgkmcnt(0)"); I("s_barrier")
    regs = []
    for (k, w0, w1, sl, off) in ((kA, a0, a1, sA, 0), (kB, b0, b1, sB, 8)):
        if k == "now":
            I(f"v_mov_b32 v{16+len(regs)}, s20"); regs.append(off); continue
        I(f"s_mov_b32 s12, {STAMPOFF}")
        for w in range(int(w0), int(w1)):
            I(f"buffer_load_dword v{16+len(regs)}, v1, s[8:11], s12 offen offset:{w*128 + int(sl)*4}")
            regs.append(off)
    I("s_waitcnt vmcnt(0)")
    for off, op in ((0, oA), (8, oB)):
        idx = [n for n, o in enumerate(regs) if o == off]
        for n in idx[1:]:
            I(f"v_{op}_u32 v{16+idx[0]}, v{16+idx[0]}, v{16+n}")
        I(f"ds_{op}_u32 v10, v{16+idx[0]} offset:{off + (0 if op == 'min' else 4)}")
    I("s_waitcnt lgkmcnt(0)"); I("s_barrier")
    I(f"ds_read_b32 v3, v10 offset:{0 if oA == 'min' else 4}")
    I(f"ds_read_b32 v4, v10 offset:{8 if oB == 'min' else 12}")
    I("s_waitcnt lgkmcnt(0)")
    I("v_sub_u32 v3, v3, v4")
    I("v_min_u32 v3, 0x2000, v3")
    I("v_readfirstlane_b32 s14, v3")
    I("s_memrealtime s[16:17]")
    I("s_mul_i32 s14, s14, 10")
    I("s_waitcnt lgkmcnt(0)")
    e.label("LP_spin")
    I("s_memrealtime s[18:19]")
    I("s_waitcnt lgkmcnt(0)")
    I("s_sub_u32 s18, s18, s16")
    I("s_cmp_lt_u32 s18, s14")
    I("s_cbranch_scc1 LP_spin")
    e.label("LP_end")
    I("s_endpgm")
    return "eqprobe_kernel", 64, 32

def generate(c):
    e = Emitter()
    e.raw('.amdgcn_target "amdgcn-amd-amdhsa--gfx950"')
    e.raw(".text")
    k = gen_main(e, c)
    head = HEADER + f"; @launch grid=({c.nwg},1,1) block=(1024,1,1) lds={c.lds}\n"
    tail = '.section .rodata,"a"\n.p2align 6\n' + kd(*k)
    if c.probe:
        kp = gen_probe(e, c)
        head = HEADER + f"; @launch kernel={KNAME} grid=({c.nwg},1,1) block=(1024,1,1) lds={c.lds}\n; @launch kernel=eqprobe_kernel grid=(1,1,1) block=(256,1,1) lds=64\n"
        tail += ".p2align 6\n" + kd(*kp)
    return head + e.text() + tail

if __name__ == "__main__":
    c = Cfg()
    out = sys.argv[1]
    for kv in sys.argv[2:]:
        k, v = kv.split("=", 1)
        old = getattr(c, k)
        setattr(c, k, type(old)(int(v)) if isinstance(old, (bool, int)) else v.replace("+", " "))
    open(out, "w").write(generate(c))
```

```python
import sys
from emit import Emitter

N, E = 12500, 800000
NODES, HN = 50, 25
NCH = 250
CSTRIDE = 70784
PAYOFF, TABOFF, KEYOFF = 0, 51200, 67584
KSTAGE = 51200
WSBYTES = NCH * CSTRIDE
KIN = 20
KNAME = "gather_scatter__tensor_product_equiv_equiformer__graph_kernel"
STAMPOFF = 24 << 20

class Cfg:
    nwg = 250
    st_flags = "sc1"
    ld_flags = "nt"
    rec_flags = "sc1"
    out_flags = "sc1"
    pfx_lines = 64
    pfx0_lines = 96
    stamps = False
    cap = 1888
    x_noperm = 0
    x_noexp = 0
    x_nomfma = 0
    x_noload = 0
    x_samehalf = 0
    x_nobload = 0
    codepf = 26
    tlbpf = 0
    codeearly = 0
    sleep = 12
    psleep = 2
    probe = ""
    addtid = 0
    split = 0
    static1 = 1
    wsoff = 0
    bdel = 0
    bdel2 = 0
    cpfs = 1
    cpfstep = 64
    prio_pro = 0
    totlate = 0
    mallpf = 0
    mallpos = 0
    nop2 = 0
    pdelay = 0
    ppipe = 0
    pgap = 8
    wrlds = 0
    wideout = 1
    out_early = None
    paypos = 2
    pfwait = 0
    smf = 0
    zpk = 1
    splitw = 0
    cpfwg = 32
    wlate = 0
    coal = 1
    pf1_tile = -1
    pf1_lines = 256
    prio_g = 0
    prio_m = 0
    ld2_flags = None
    nowait = 1
    fastlast = 1
    pfx2_lines = 0
    pfx2_pos = 0
    oobtail = 1
    bearly = 1
    tidw3 = "0x00800000"

def srd(e, d, b, nbytes, w1=None, w3="0x20000"):
    e.I(f"s_mov_b32 s{d}, s{b}")
    if w1: e.I(f"s_or_b32 s{d+1}, s{b+1}, {w1}")
    else: e.I(f"s_mov_b32 s{d+1}, s{b+1}")
    e.I(f"s_mov_b32 s{d+2}, {nbytes}")
    e.I(f"s_mov_b32 s{d+3}, {w3}")

def scan64(e, v):
    for sh in (1, 2, 4, 8):
        e.I(f"v_add_u32_dpp v{v}, v{v}, v{v} row_shr:{sh} row_mask:0xf bank_mask:0xf")
    e.I(f"v_add_u32_dpp v{v}, v{v}, v{v} row_bcast:15 row_mask:0xa bank_mask:0xf")
    e.I(f"v_add_u32_dpp v{v}, v{v}, v{v} row_bcast:31 row_mask:0xc bank_mask:0xf")

def prefetch_x(e, nlines, vt, vtid, nthreads, slice_s, half, srdx, first=0, lds=False):
    if nlines <= 0: return 0
    e.I(f"s_mul_i32 s46, s{slice_s}, 782")
    if first: e.I(f"s_add_u32 s46, s46, {first}")
    e.I(f"s_mov_b32 s47, {nlines}")
    it = (nlines + nthreads - 1) // nthreads
    for k in range(it):
        e.I(f"v_add_u32 v{vt}, {k*nthreads}, v{vtid}")
        e.I(f"v_cmp_gt_u32 vcc, s47, v{vt}")
        e.I(f"v_add_u32 v{vt}, s46, v{vt}")
        e.I(f"v_and_b32 v{vt+1}, 1, v{vt}")
        e.I(f"v_lshrrev_b32 v{vt}, 1, v{vt}")
        e.I(f"v_lshlrev_b32 v{vt}, 9, v{vt}")
        e.I(f"v_lshl_add_u32 v{vt}, v{vt+1}, 7, v{vt}")
        e.I(f"v_cndmask_b32 v{vt}, 2.0, v{vt}, vcc")
        if lds:
            if half: e.I(f"v_add_u32 v{vt}, 256, v{vt}")
            e.I(f"buffer_load_dword v{vt}, s[{srdx}:{srdx+3}], 0 offen lds")
        else:
            e.I(f"buffer_load_dword v{vt+2}, v{vt}, s[{srdx}:{srdx+3}], 0 offen offset:{half*256}")
    return it

STV, TIDV = 127, 126
def stamp(e, c, slot, ins="s_memrealtime"):
    if not c.stamps: return
    e.I(f"{ins} s[90:91]")
    e.I("s_waitcnt lgkmcnt(0)")
    e.I(f"v_writelane_b32 v{STV}, s90, {slot}")

def stamp_store(e, c, vtmp):
    if not c.stamps: return
    e.I(f"v_lshrrev_b32 v{vtmp}, 6, v{TIDV}")
    e.I(f"s_lshl_b32 s90, s2, 4")
    e.I(f"v_add_u32 v{vtmp}, s90, v{vtmp}")
    e.I(f"v_lshlrev_b32 v{vtmp}, 7, v{vtmp}")
    e.I(f"v_and_b32 v{vtmp+1}, 63, v{TIDV}")
    e.I(f"v_lshl_add_u32 v{vtmp}, v{vtmp+1}, 2, v{vtmp}")
    e.I(f"v_cmp_gt_u32 vcc, 32, v{vtmp+1}")
    e.I(f"v_cndmask_b32 v{vtmp}, 2.0, v{vtmp}, vcc")
    e.I(f"s_mov_b32 s90, {STAMPOFF}")
    e.I(f"buffer_store_dword v{STV}, v{vtmp}, s[8:11], s90 offen")

def kernel_header(e, name):
    e.raw(f".globl {name}")
    e.raw(".p2align 8")
    e.raw(f".type {name},@function")
    e.raw(f"{name}:")
    e.hist = []

def kd(name, nv, ns):
    return f""".amdhsa_kernel {name}
  .amdhsa_next_free_vgpr {nv}
  .amdhsa_next_free_sgpr {ns}
  .amdhsa_accum_offset {(nv+3)//4*4}
  .amdhsa_group_segment_fixed_size 0
  .amdhsa_kernarg_size 96
  .amdhsa_user_sgpr_count 2
  .amdhsa_user_sgpr_kernarg_segment_ptr 1
  .amdhsa_system_sgpr_workgroup_id_x 1
  .amdhsa_float_denorm_mode_32 3
.end_amdhsa_kernel
"""

def path_of(jp, blk):
    if blk == 0: return (0, 0, 1) if jp == 0 else (2, jp, 1)
    k = blk - 1
    if jp == 0: return (3, 1 + k, 1)
    j = jp - 1
    if j == k: return (1, 0, 1)
    i = 3 - j - k
    return (4, 1 + i, 1 if k == (j + 1) % 3 else -1)

class Lay: pass

def spin(e, tag, vdst, vaddr, off, need, scnt, sval, sleep=None, bound="0x400000"):
    I = e.I
    I(f"s_mov_b32 s{scnt}, 0")
    e.label(f"L_sp{tag}")
    I(f"ds_read_b32 v{vdst}, v{vaddr} offset:{off}")
    I("s_waitcnt lgkmcnt(0)")
    I(f"v_readfirstlane_b32 s{sval}, v{vdst}")
    I(f"s_add_u32 s{scnt}, s{scnt}, 1")
    I(f"s_cmp_ge_u32 s{sval}, {need}")
    I(f"s_cbranch_scc1 L_sp{tag}_ok")
    if sleep: I(f"s_sleep {sleep}")
    I(f"s_cmp_lt_u32 s{scnt}, {bound}")
    I(f"s_cbranch_scc1 L_sp{tag}")
    e.label(f"L_sp{tag}_ok")

def tag_bad(e, dst, r, tmp, odd):
    I = e.I
    I(f"v_xor_b32 v{tmp}, s87, v{r}")
    I(f"v_xor_b32 v{dst}, s86, v{r+1}")
    I(f"v_lshrrev_b32 v{tmp}, 24, v{tmp}")
    I(f"v_or_b32 v{dst}, v{dst}, v{tmp}")
    I(f"v_xor_b32 v{tmp}, s3, v{r+3}")
    I(f"v_lshrrev_b32 v{tmp}, 12, v{tmp}")
    I(f"v_cndmask_b32 v{dst}, v{dst}, v{tmp}, {odd}")

def gen_main(e, c):
    L = Lay()
    CAP = c.cap
    NWG = c.nwg
    BOFF = CAP + 64
    HIST, HIST2, CUR2, CNT = 0, 256, 512, 768
    NEXT, DONE, GDONE, BSYNC, BREADY, TOTB = CNT, CNT + 16, CNT + 64, CNT + 96, CNT + 100, CNT + 104
    OUTW, OUTR, BST = CNT + 112, CNT + 128, CNT + 108
    HISTB, HIST2B, CUR2B, INFO, NONCE = 1024, 1280, 1536, 1792, 2048
    RAW = 2176
    T = (RAW + 2 * BOFF * 16 + 255) // 256 * 256
    WRAD = T + NODES * 1024
    SCR = WRAD + 16384
    H1 = WRAD
    TI = SCR
    CEB = RAW + BOFF * 16
    SSTR, PL1, OSC = 2368, (1040 if c.smf else 1056), 2080
    lds = max(SCR + 12 * SSTR, T + 64 * 1024)
    assert lds <= 163840 and 2 * BOFF >= 3200 + 64, lds
    c.lds = lds
    kernel_header(e, KNAME)
    I = e.I
    wsbytes = (32 << 20) if c.stamps else WSBYTES
    sf, rf, lf = c.st_flags, c.rec_flags, c.ld_flags
    ODD = "s[26:27]"
    I(f"s_cmp_ge_u32 s2, {NWG}")
    I("s_cbranch_scc1 L_end")
    if c.stamps:
        I(f"v_mov_b32 v{STV}, 0")
        I(f"v_mov_b32 v{TIDV}, v0")
    stamp(e, c, 0)
    stamp(e, c, 26, "s_memtime")
    I("s_load_dwordx8 s[32:39], s[0:1], 0")
    I("s_load_dwordx8 s[40:47], s[0:1], 32")
    if NWG > NCH:
        I(f"s_cmp_lt_u32 s2, {NCH}")
        I("s_cselect_b32 s51, 800, 0")
    else:
        I("s_movk_i32 s51, 800")
    if c.coal:
        I("s_mul_i32 s48, s2, 1600")
        I("v_add_u32 v3, s48, v0")
        I("v_cmp_gt_u32 vcc, s51, v0")
        I("v_lshlrev_b32 v28, 3, v3")
        I("v_lshlrev_b32 v30, 4, v3")
        I("v_mul_u32_u24 v3, 12, v3")
        I("v_add_u32 v29, 6400, v28")
        if c.paypos:
            I("v_add_u32 v31, 12800, v30")
            I("v_add_u32 v27, 9600, v3")
        I("s_and_saveexec_b64 s[26:27], vcc")
        I("s_cbranch_execz L1_noload")
        I("s_waitcnt lgkmcnt(0)")
        I(f"global_load_dwordx2 v[4:5], v28, s[40:41] {lf}")
        I(f"global_load_dwordx2 v[6:7], v29, s[40:41] {lf}")
        if not c.paypos:
            I("v_add_u32 v31, 12800, v30")
            I("v_add_u32 v27, 9600, v3")
        lds_ = [f"global_load_dwordx2 v[8:9], v28, s[38:39] {lf}", f"global_load_dwordx2 v[10:11], v29, s[38:39] {lf}",
                f"global_load_dwordx4 v[12:15], v30, s[36:37] {lf}", f"global_load_dwordx4 v[16:19], v31, s[36:37] {lf}",
                f"global_load_dwordx3 v[20:22], v3, s[34:35] {lf}", f"global_load_dwordx3 v[24:26], v27, s[34:35] {lf}"]
        def pay_loads():
            for k in ((0, 2, 4, 1, 3, 5) if c.splitw == 2 else range(6)): I(lds_[k])
        if c.paypos == 0: pay_loads()
    else:
        I("s_mul_i32 s48, s2, 800")
        I("v_add_u32 v3, s48, v0")
        I("v_cmp_gt_u32 vcc, s51, v0")
        I("v_lshlrev_b32 v26, 4, v3")
        I("v_lshlrev_b32 v27, 5, v3")
        I("v_mul_u32_u24 v3, 24, v3")
        I("s_and_saveexec_b64 s[26:27], vcc")
        I("s_cbranch_execz L1_noload")
        I("s_waitcnt lgkmcnt(0)")
        l2 = lf if c.ld2_flags is None else c.ld2_flags
        I(f"global_load_dwordx4 v[4:7], v26, s[40:41] {l2}")
        I(f"global_load_dwordx4 v[8:11], v26, s[38:39] {l2}")
        I(f"global_load_dwordx4 v[12:15], v27, s[36:37] {lf}")
        I(f"global_load_dwordx4 v[16:19], v27, s[36:37] offset:16 {lf}")
        I(f"global_load_dwordx4 v[20:23], v3, s[34:35] {lf}")
        I(f"global_load_dwordx2 v[24:25], v3, s[34:35] offset:16 {lf}")
    e.label("L1_noload")
    I("s_mov_b64 exec, -1")
    if c.paypos == 3:
        I(f"v_lshlrev_b32 v40, 1, v0")
        I(f"v_and_b32 v40, -4, v40")
        I(f"v_add_u32 v40, {H1}, v40")
        I("v_mov_b32 v41, 0")
        I("ds_write_b32 v40, v41")
        I("s_waitcnt lgkmcnt(0)")
        I("s_barrier")
        I("s_and_saveexec_b64 s[26:27], vcc")
        I("s_cbranch_execz L1_noload2")
        pay_loads()
        e.label("L1_noload2")
        I("s_mov_b64 exec, -1")
    if c.codepf and c.codeearly:
        I("s_getpc_b64 s[52:53]")
        I(f"s_mov_b32 s54, {c.codepf*1024}")
        I("s_mov_b32 s55, 0x20000")
        I("v_subrev_u32 v72, 768, v0")
        I("v_lshlrev_b32 v72, 7, v72")
        I("s_cmp_lg_u64 vcc, -1")
        I("s_cbranch_scc0 L1_nocpf")
        I("buffer_load_dword v73, v72, s[52:55], 0 offen")
        e.label("L1_nocpf")
    I("s_load_dwordx4 s[80:83], s[0:1], 72")
    I("s_load_dwordx2 s[84:85], s[0:1], 88")
    I("v_lshlrev_b32 v1, 4, v0")
    I("v_lshlrev_b32 v2, 5, v0")
    I("v_readfirstlane_b32 s21, v0")
    I("s_lshr_b32 s21, s21, 6")
    I("s_waitcnt lgkmcnt(0)")
    if c.addtid:
        srd(e, 4, 32, N * 512, w1=f"{16 << 16}", w3=c.tidw3)
    else:
        srd(e, 4, 32, N * 512)
    if c.wsoff:
        I(f"s_add_u32 s84, s84, {c.wsoff << 20}")
        I("s_addc_u32 s85, s85, 0")
    srd(e, 8, 84, wsbytes)
    srd(e, 12, 80, N * 512)
    srd(e, 16, 42, 2560)
    srd(e, 68, 44, 16384)
    srd(e, 72, 46, 24576)
    srd(e, 76, 82, 256)
    I("s_and_b32 s20, s2, 7")
    I("s_lshr_b32 s31, s2, 3")
    if NWG == 250:
        I("s_min_u32 s22, s20, 2")
        I("s_mul_i32 s20, s20, 31")
        I("s_add_u32 s20, s20, s22")
    else:
        I("s_lshl_b32 s20, s20, 5")
    I("s_add_u32 s20, s20, s31")
    I("s_mov_b32 s22, 0")
    I(f"s_movk_i32 s23, {NCH}")
    I("s_mov_b32 s24, 1")
    I("s_mov_b32 s26, 0xaaaaaaaa")
    I("s_mov_b32 s27, 0xaaaaaaaa")
    I("s_mov_b32 s28, 0x05040100")
    I("s_mov_b32 s29, 0x07060302")
    I("s_mov_b32 s30, 0xffff0000")
    I(f"s_mul_i32 s51, s2, {CSTRIDE}")
    I("s_cmp_ge_u32 s21, 13")
    I("s_cbranch_scc1 L1_aux")
    if c.paypos == 1:
        I("s_mov_b64 exec, vcc")
        pay_loads()
        I("s_mov_b64 exec, -1")
    I(f"s_mov_b32 s46, {H1}")
    if c.paypos != 3:
        I("v_lshl_add_u32 v40, v0, 2, s46")
        I("v_mov_b32 v41, 0")
    I("v_mov_b32 v42, 1")
    I(f"s_movk_i32 s49, {RAW}")
    I("s_mov_b32 s50, 0x05040302")
    I(f"s_mov_b32 s45, {(TI + 8 - 8*H1) & 0xffffffff}")
    if NWG == 250:
        I("s_mov_b32 s48, -25")
        I("s_movk_i32 s47, 249")
    else:
        I("s_movk_i32 s47, 6249")
        I("s_movk_i32 s48, -6250")
        I("s_mov_b32 s44, 1600210")
        I("v_mov_b32 v43, 65532")
    if c.paypos != 3:
        I("s_cmp_ge_u32 s21, 8")
        I("s_cbranch_scc1 L1_nz")
        I("ds_write_b32 v40, v41")
        I("s_waitcnt lgkmcnt(0)")
        e.label("L1_nz")
        I("s_barrier")
    I("s_and_b64 exec, exec, vcc")
    if c.paypos == 2: pay_loads()
    I(f"s_waitcnt vmcnt({6 if c.coal else 5})")
    stamp(e, c, 1)
    R4 = range(4)
    if NWG == 250:
        for i in R4: I(f"v_mul_u32_u24 v{44+i}, 0x147b, v{4+i}")
        for i in R4: I(f"v_lshrrev_b32 v{44+i}, 17, v{44+i}")
        for i in R4: I(f"v_cmp_lt_u32 s[{32+2*i}:{33+2*i}], s47, v{44+i}")
        for i in R4: I(f"v_cndmask_b32 v{36+i}, 0, 1, s[{32+2*i}:{33+2*i}]")
        for i in R4:
            I(f"v_sub_u32 v{48+i}, v{44+i}, v{36+i}")
            I(f"v_mad_u32_u24 v{44+i}, v{36+i}, 6, v{44+i}")
        for i in R4:
            I(f"v_mad_i32_i24 v{4+i}, v{48+i}, s48, v{4+i}")
            I(f"v_lshl_add_u32 v{44+i}, v{44+i}, 2, s46")
    else:
        for i in R4: I(f"v_cmp_lt_u32 s[{32+2*i}:{33+2*i}], s47, v{4+i}")
        for i in R4: I(f"v_cndmask_b32 v{36+i}, 0, 1, s[{32+2*i}:{33+2*i}]")
        for i in R4: I(f"v_mad_i32_i24 v{4+i}, v{36+i}, s48, v{4+i}")
        for i in R4: I(f"v_mul_u32_u24 v{44+i}, 0xa7c, v{4+i}")
        for i in R4: I(f"v_lshrrev_b32 v{44+i}, 16, v{44+i}")
        for i in R4: I(f"v_mad_u32_u24 v{48+i}, v{44+i}, s44, v43")
        for i in R4:
            I(f"v_lshrrev_b32 v{48+i}, 16, v{48+i}")
            I(f"v_mad_u32_u24 v{4+i}, v{36+i}, 25, v{4+i}")
        for i in R4:
            I(f"v_sub_u32 v{4+i}, v{4+i}, v{48+i}")
            I(f"v_lshl_add_u32 v{44+i}, v{36+i}, 8, v{44+i}")
        for i in R4: I(f"v_lshl_add_u32 v{44+i}, v{44+i}, 2, s46")
    for i in R4: I(f"ds_add_rtn_u32 v{36+i}, v{44+i}, v42")
    for i in R4: I(f"v_lshl_add_u32 v{48+i}, v{44+i}, 3, s45")
    for i in R4: I(f"v_lshlrev_b32 v{4+i}, 2, v{4+i}")
    I("s_waitcnt lgkmcnt(0)")
    I("s_barrier")
    for i in R4: I(f"v_min_u32 v{28+i}, {KIN}, v{36+i}")
    for i in R4: I(f"v_add_u32 v{48+i}, v{48+i}, v{28+i}")
    I("s_cmp_eq_u32 s21, 0")
    I("s_cbranch_scc1 L1_scan")
    for i in R4: I(f"ds_write_b8 v{48+i}, v{4+i}")
    I("s_branch L1_noscan")
    e.label("L1_scan")
    I("v_add_u32 v60, s46, v2")
    I("ds_read_b128 v[52:55], v60")
    I("ds_read_b128 v[56:59], v60 offset:16")
    I("s_waitcnt lgkmcnt(0)")
    I("v_mov_b32 v64, 0")
    I("v_mov_b32 v65, v52")
    for k in range(2, 8):
        I(f"v_add_u32 v{64+k}, v{63+k}, v{51+k}")
    I("v_add_u32 v61, v71, v59")
    I("v_max3_u32 v63, v52, v53, v54")
    I("v_max3_u32 v63, v63, v55, v56")
    I("v_max3_u32 v63, v63, v57, v58")
    I("v_max_u32 v63, v63, v59")
    I(f"v_cmp_lt_u32 s[42:43], {KIN}, v63")
    I("v_mov_b32 v62, v61")
    scan64(e, 62)
    I("v_sub_u32 v62, v62, v61")
    for k in range(8):
        I(f"v_add_u32 v{64+k}, v{64+k}, v62")
    I("ds_write_b128 v60, v[64:67] offset:2048")
    I("ds_write_b128 v60, v[68:71] offset:2064")
    I("s_cmp_lg_u64 s[42:43], 0")
    I("s_cselect_b32 s42, 1, 0")
    I("v_mov_b32 v63, s42")
    I(f"ds_write_b32 v41, v63 offset:{NONCE+8}")
    for i in R4: I(f"ds_write_b8 v{48+i}, v{4+i}")
    I("s_waitcnt lgkmcnt(4)")
    e.label("L1_noscan")
    I("s_barrier")
    stamp(e, c, 8)
    for i in R4: I(f"ds_read_b32 v{44+i}, v{44+i} offset:2048")
    I(f"ds_read_b32 v28, v41 offset:{NONCE+8}")
    I("s_waitcnt lgkmcnt(0)")
    I("v_readfirstlane_b32 s42, v28")
    for i in R4:
        I(f"v_add_u32 v{36+i}, v{36+i}, v{44+i}")
        I(f"v_lshl_add_u32 v{44+i}, v{36+i}, 4, s49")
    I("s_cmp_eq_u32 s42, 0")
    I("s_cbranch_scc1 L1_nokeys")
    for i in R4:
        I(f"ds_write_b8 v{36+i}, v{4+i} offset:{RAW+KSTAGE}")
    e.label("L1_nokeys")
    if not c.splitw:
        r3 = 24 if c.coal else 23
        if c.stamps: I("s_waitcnt vmcnt(0)")
        stamp(e, c, 31)
        I("s_waitcnt vmcnt(1)")
        I("v_mov_b32 v28, v20")
        I("v_perm_b32 v29, v8, v21, s28")
        I("ds_write2_b64 v44, v[12:13], v[28:29] offset0:0 offset1:1")
        I("v_alignbit_b32 v30, v22, v21, 16")
        I("v_perm_b32 v31, v9, v22, s50")
        I("ds_write2_b64 v45, v[14:15], v[30:31] offset0:0 offset1:1")
        I("s_waitcnt vmcnt(0)")
        stamp(e, c, 2)
        I(f"v_mov_b32 v32, v{r3}")
        I(f"v_perm_b32 v33, v10, v{r3+1}, s28")
        I("ds_write2_b64 v46, v[16:17], v[32:33] offset0:0 offset1:1")
        I(f"v_alignbit_b32 v34, v{r3+2}, v{r3+1}, 16")
        I(f"v_perm_b32 v35, v11, v{r3+2}, s50")
        I("ds_write2_b64 v47, v[18:19], v[34:35] offset0:0 offset1:1")
    elif c.splitw == 2:
        I("s_waitcnt vmcnt(3)")
        I("v_mov_b32 v28, v12"); I("v_mov_b32 v29, v13"); I("v_mov_b32 v30, v20")
        I("v_perm_b32 v31, v8, v21, s28")
        I("ds_write_b128 v44, v[28:31]")
        I("v_mov_b32 v12, v14"); I("v_mov_b32 v13, v15")
        I("v_alignbit_b32 v14, v22, v21, 16")
        I("v_perm_b32 v15, v9, v22, s50")
        I("ds_write_b128 v45, v[12:15]")
        I("s_waitcnt vmcnt(0)")
        stamp(e, c, 2)
        I("v_mov_b32 v32, v16"); I("v_mov_b32 v33, v17"); I("v_mov_b32 v34, v24")
        I("v_perm_b32 v35, v10, v25, s28")
        I("ds_write_b128 v46, v[32:35]")
        I("v_mov_b32 v16, v18"); I("v_mov_b32 v17, v19")
        I("v_alignbit_b32 v18, v26, v25, 16")
        I("v_perm_b32 v19, v11, v26, s50")
        I("ds_write_b128 v47, v[16:19]")
    else:
        I("s_waitcnt vmcnt(2)")
        for i in R4:
            I(f"ds_write_b64 v{44+i}, v[{12+2*i}:{13+2*i}]")
        I("s_waitcnt vmcnt(1)")
        I("v_mov_b32 v28, v20")
        I("v_perm_b32 v29, v8, v21, s28")
        I("ds_write_b64 v44, v[28:29] offset:8")
        I("v_alignbit_b32 v30, v22, v21, 16")
        I("v_perm_b32 v31, v9, v22, s50")
        I("ds_write_b64 v45, v[30:31] offset:8")
        I("s_waitcnt vmcnt(0)")
        stamp(e, c, 2)
        r3 = 24 if c.coal else 23
        I(f"v_mov_b32 v32, v{r3}")
        I(f"v_perm_b32 v33, v10, v{r3+1}, s28")
        I("ds_write_b64 v46, v[32:33] offset:8")
        I(f"v_alignbit_b32 v34, v{r3+2}, v{r3+1}, 16")
        I(f"v_perm_b32 v35, v11, v{r3+2}, s50")
        I("ds_write_b64 v47, v[34:35] offset:8")
    I("s_mov_b64 exec, -1")
    I("s_waitcnt lgkmcnt(0)")
    I("s_branch L1_copy")
    e.label("L1_aux")
    I("v_subrev_u32 v64, 832, v0")
    I("v_lshlrev_b32 v65, 4, v64")
    def mall_touch():
        if c.mallpf == 1:
            I("s_mul_i32 s46, s2, 50")
            I("v_lshrrev_b32 v60, 1, v64")
            I("v_cmp_gt_u32 vcc, 50, v60")
            I("v_add_u32 v60, s46, v60")
            I("v_lshlrev_b32 v60, 9, v60")
            I("v_and_b32 v61, 1, v64")
            I("v_lshl_add_u32 v60, v61, 7, v60")
            I("v_cndmask_b32 v60, 2.0, v60, vcc")
            I("buffer_load_dword v62, v60, s[4:7], 0 offen offset:256")
        elif c.mallpf == 2:
            I("s_mul_i32 s46, s2, 25600")
            I("v_lshlrev_b32 v60, 7, v64")
            I("buffer_load_dword v62, v60, s[4:7], s46 offen")
    prefetch_x(e, c.pfx0_lines, 60, 64, 192, 31, 0, 4)
    if c.mallpos == 0: mall_touch()
    if c.tlbpf:
        I("v_and_b32 v74, 63, v0")
        I(f"s_mov_b32 s42, {WSBYTES // 64 // 128 * 128}")
        I("v_mul_u32_u24 v75, s42, v74")
        I(f"s_mov_b32 s42, {N * 512 // 64 // 128 * 128}")
        I("v_mul_u32_u24 v74, s42, v74")
        I("s_cmp_lg_u32 s21, 14")
        I("s_cbranch_scc1 L1_notlb")
        if c.tlbpf & 1: I("buffer_load_dword v76, v75, s[8:11], 0 offen")
        if c.tlbpf & 2: I("buffer_load_dword v77, v74, s[4:7], 0 offen")
        if c.tlbpf & 4: I("buffer_load_dword v78, v74, s[12:15], 0 offen")
        e.label("L1_notlb")
    if c.codepf and c.cpfs:
        I("s_getpc_b64 s[40:41]")
        e.label("L_cpf")
        I("s_mul_i32 s42, s31, 3")
        I("s_add_u32 s42, s42, s21")
        I("s_sub_u32 s42, s42, 13")
        I("s_lshl_b32 s42, s42, 8")
        for k in range(256 // c.cpfstep):
            I("s_min_u32 s43, s42, L_codeend-L_cpf-4")
            I(f"s_load_dword s{94 + (k & 1)}, s[40:41], s43")
            if k < 256 // c.cpfstep - 1: I(f"s_add_u32 s42, s42, {c.cpfstep}")
    else:
        if c.codepf and not c.codeearly:
            I(f"s_cmp_ge_u32 s2, {c.cpfwg}")
            I("s_cbranch_scc1 L1_nocpf")
            I("s_getpc_b64 s[40:41]")
            e.label("L_cpf")
            I("s_mov_b32 s42, L_codeend-L_cpf")
            I("s_mov_b32 s43, 0x20000")
            I("v_lshlrev_b32 v72, 7, v64")
            I("buffer_load_dword v73, v72, s[40:43], 0 offen")
            e.label("L1_nocpf")
    I("s_cmp_lg_u32 s21, 15")
    I("s_cbranch_scc1 L1_notag")
    I("s_cmp_lg_u32 s2, 0")
    I("s_cbranch_scc1 L1_notag")
    I("s_memrealtime s[44:45]")
    I("s_waitcnt lgkmcnt(0)")
    I("s_and_b32 s45, s45, 0x7f")
    I("s_or_b32 s45, s45, 0x80")
    I("s_lshl_b32 s45, s45, 24")
    I("v_mov_b32 v68, s44")
    I("v_mov_b32 v69, s45")
    I("s_mov_b64 exec, 1")
    I("buffer_store_dwordx2 v[68:69], off, s[76:79], 0 sc1")
    I("s_mov_b64 exec, -1")
    e.label("L1_notag")
    I("s_cmp_lg_u32 s21, 13")
    I("s_cbranch_scc1 L1_nozero")
    for k in range(4): I(f"v_mov_b32 v{4+k}, 0")
    I("ds_write_b128 v65, v[4:7]")
    I("ds_write_b128 v65, v[4:7] offset:1024")
    e.label("L1_nozero")
    if c.paypos != 3: I("s_barrier")
    I("s_barrier"); I("s_barrier")
    I("s_cmp_lg_u32 s21, 15")
    I("s_cbranch_scc1 L1_notag2")
    I("s_mov_b32 s44, 0")
    e.label("L1_tagpoll")
    I("buffer_load_dwordx2 v[68:69], off, s[76:79], 0 sc1")
    I("s_add_u32 s44, s44, 1")
    I("s_waitcnt vmcnt(0)")
    I("v_readfirstlane_b32 s45, v69")
    e.nop(1)
    I("s_cmp_lg_u32 s45, 0")
    I("s_cbranch_scc1 L1_tagok")
    I("s_cmp_lt_u32 s44, 0x100000")
    I("s_cbranch_scc1 L1_tagpoll")
    e.label("L1_tagok")
    I("v_mov_b32 v70, 0")
    I("s_mov_b64 exec, 1")
    I(f"ds_write_b64 v70, v[68:69] offset:{NONCE}")
    I("s_mov_b64 exec, -1")
    e.label("L1_notag2")
    def w_loads():
        for k in range(8):
            I(f"s_movk_i32 s46, {k*3072}")
            I(f"buffer_load_dwordx4 v[{28+4*k}:{31+4*k}], v65, s[72:75], s46 offen")
        for k in range(6):
            I(f"s_movk_i32 s46, {k*3072}")
            I(f"buffer_load_dwordx4 v[{72+4*k}:{75+4*k}], v65, s[68:71], s46 offen")
    if not c.wlate: w_loads()
    if c.wrlds: I("buffer_load_dwordx4 v[68:71], v65, s[16:19], 0 offen")
    if c.mallpos == 1: mall_touch()
    if c.pfwait: I("s_waitcnt vmcnt(0)")
    prefetch_x(e, c.pfx_lines, 60, 64, 192, 31, 0, 4, c.pfx0_lines)
    I("s_waitcnt lgkmcnt(0)")
    e.flush()
    e.label("L1_copy")
    I("s_barrier")
    stamp(e, c, 3)
    I(f"v_mov_b32 v25, {H1+2048+1024}")
    I("ds_read_b32 v99, v25")
    I(f"ds_read_b128 v[8:11], v1 offset:{RAW}")
    I(f"ds_read_b128 v[12:15], v1 offset:{RAW+16384}")
    I("v_mov_b32 v25, 0")
    I(f"ds_read_b96 v[96:98], v25 offset:{NONCE}")
    I(f"v_add_u32 v25, {TI}, v1")
    I(f"ds_read_b128 v[16:19], v1 offset:{RAW+32768}")
    I(f"ds_read_b128 v[20:23], v1 offset:{RAW+49152}")
    I("ds_read_b128 v[100:103], v25")
    I("v_lshrrev_b32 v25, 1, v0")
    I("v_lshlrev_b32 v25, 2, v25")
    I(f"v_add_u32 v25, {H1}, v25")
    I("ds_read2st64_b32 v[104:105], v25 offset0:0 offset1:8")
    I("ds_read_b32 v106, v25 offset:1024")
    I("v_add_u32 v2, 16384, v1")
    I("v_add_u32 v25, 1024, v0")
    I("s_waitcnt lgkmcnt(8)")
    I("v_add_u32 v99, 7, v99")
    I("v_and_b32 v99, -8, v99")
    I("v_cmp_lt_u32 s[52:53], v0, v99")
    I("v_cmp_lt_u32 s[54:55], v25, v99")
    I("v_readfirstlane_b32 s88, v99")
    I("v_add_u32 v3, 32768, v1")
    I("v_add_u32 v24, 49152, v1")
    I("s_mov_b64 exec, s[52:53]")
    I("s_waitcnt lgkmcnt(7)")
    I(f"buffer_store_dwordx4 v[8:11], v1, s[8:11], s51 offen {sf}")
    I("s_mov_b64 exec, s[54:55]")
    I("s_cbranch_execz L1_nop1")
    I("s_waitcnt lgkmcnt(6)")
    I(f"buffer_store_dwordx4 v[12:15], v2, s[8:11], s51 offen {sf}")
    e.label("L1_nop1")
    I("s_mov_b64 exec, -1")
    I("s_movk_i32 s48, 128")
    I("v_cmp_gt_u32 s[92:93], s48, v0")
    I("s_waitcnt lgkmcnt(0)")
    I("v_readfirstlane_b32 s86, v96")
    I("v_readfirstlane_b32 s87, v97")
    I("v_readfirstlane_b32 s42, v98")
    def patch(r, cnt, st, c2, t):
        I(f"v_lshl_or_b32 v{t}, v{cnt}, 12, v{st}")
        I(f"v_or_b32 v{t}, v97, v{t}")
        I(f"v_cndmask_b32 v{r}, v{t}, v{r}, {ODD}")
        I(f"v_cndmask_b32 v{r+1}, v96, v{r+1}, {ODD}")
        if c2 is None: I(f"v_lshlrev_b32 v{t}, 12, v96")
        else: I(f"v_lshl_or_b32 v{t}, v96, 12, v{c2}")
        I(f"v_cndmask_b32 v{r+3}, v{r+3}, v{t}, {ODD}")
    patch(100, 104, 105, 106, 104)
    I("s_lshl_b32 s3, s86, 12")
    I(f"s_add_u32 s49, s51, {TABOFF}")
    I("s_cmp_gt_u32 s88, 2048")
    I("s_cselect_b32 s25, 0, 8")
    I("s_cmp_eq_u32 s42, 0")
    I("s_cbranch_scc1 L1_nokeyst")
    I(f"s_add_u32 s42, s51, {KEYOFF-KSTAGE}")
    I("v_subrev_u32 v25, 128, v0")
    I("s_movk_i32 s43, 200")
    I("v_cmp_gt_u32 vcc, s43, v25")
    I("s_and_saveexec_b64 s[44:45], vcc")
    I("s_cbranch_execz L1_nokeyst2")
    I(f"buffer_store_dwordx4 v[20:23], v24, s[8:11], s42 offen {sf}")
    e.label("L1_nokeyst2")
    I("s_mov_b64 exec, -1")
    e.label("L1_nokeyst")
    stamp(e, c, 4)
    def rest_stores(tag):
        I(f"buffer_store_dwordx4 v[16:19], v3, s[8:11], s51 offen {sf}")
        for k, (m, neg, regs, va) in enumerate((("s[54:55]", 1, "v[12:15]", "v2"), ("s[92:93]", 0, "v[20:23]", "v24"), ("s[52:53]", 1, "v[8:11]", "v1"))):
            I(f"s_not_b64 exec, {m}" if neg else f"s_mov_b64 exec, {m}")
            I(f"s_cbranch_execz L_stskip{tag}{k}")
            I(f"buffer_store_dwordx4 {regs}, {va}, s[8:11], s51 offen {sf}")
            e.label(f"L_stskip{tag}{k}")
        I("s_mov_b64 exec, -1")
    def handoff2(tag):
        I("s_cmp_lg_u32 s25, 0")
        I(f"s_cbranch_scc1 L_usual{tag}")
        rest_stores(tag + "e")
        e.label(f"L_usual{tag}")
        I("s_waitcnt vmcnt(0) lgkmcnt(0)")
        stamp(e, c, 6)
        I("s_barrier")
        I("s_cmp_ge_u32 s21, 8")
        I(f"s_cbranch_scc1 L_noearly{tag}")
        I(f"buffer_store_dwordx4 v[100:103], v1, s[8:11], s49 offen {sf}")
        e.label(f"L_noearly{tag}")
        I("s_cmp_eq_u32 s25, 0")
        I(f"s_cbranch_scc1 L_norest{tag}")
        rest_stores(tag + "l")
        e.label(f"L_norest{tag}")
        stamp(e, c, 5)
    def handoff(tag, mid):
        I("s_waitcnt vmcnt(0)")
        stamp(e, c, 6)
        I("s_barrier")
        I("s_cmp_ge_u32 s21, s25")
        I(f"s_cbranch_scc1 L_noearly{tag}")
        I(f"buffer_store_dwordx4 v[100:103], v1, s[8:11], s49 offen {sf}")
        e.label(f"L_noearly{tag}")
        I(f"buffer_store_dwordx4 v[16:19], v3, s[8:11], s51 offen {sf}")
        for k, (m, neg, regs, va) in enumerate((("s[54:55]", 1, "v[12:15]", "v2"), ("s[92:93]", 0, "v[20:23]", "v24"), ("s[52:53]", 1, "v[8:11]", "v1"))):
            I(f"s_not_b64 exec, {m}" if neg else f"s_mov_b64 exec, {m}")
            I(f"s_cbranch_execz L_stskip{tag}{k}")
            I(f"buffer_store_dwordx4 {regs}, {va}, s[8:11], s51 offen {sf}")
            e.label(f"L_stskip{tag}{k}")
        I("s_mov_b64 exec, -1")
        mid()
        I("s_waitcnt vmcnt(0) lgkmcnt(0)")
        stamp(e, c, 5)
        I("s_barrier")
        I("s_cmp_lt_u32 s21, s25")
        I(f"s_cbranch_scc1 L_nolate{tag}")
        I(f"buffer_store_dwordx4 v[100:103], v1, s[8:11], s49 offen {sf}")
        e.label(f"L_nolate{tag}")
    I("s_cmp_lt_u32 s21, 4")
    e.branch("s_cbranch_scc1 L2_gemm")

    if c.wlate:
        I("s_cmp_lt_u32 s21, 13")
        I("s_cbranch_scc1 L2_noWl")
        w_loads()
        e.label("L2_noWl")
    VLANE, VINFO, VNEXT = 108, 109, 110
    VLOFF, VMASK, VOW, VOR, VSCRW, VTRA, VWR, VL16 = 111, 112, 113, 114, 115, 116, 117, 118
    VT0, VT1, VONE, VSEL = 119, 120, 121, 122
    VJ, VCH, VSEG = 123, 124, 125
    I(f"v_and_b32 v{VLANE}, 63, v0")
    I(f"v_mov_b32 v{VONE}, 1")
    I(f"v_mov_b32 v{VMASK}, s30")
    I(f"v_lshrrev_b32 v{VT1}, 4, v{VLANE}")
    I(f"v_lshlrev_b32 v{VL16}, 4, v{VLANE}")
    if c.addtid:
        I(f"v_and_b32 v{VT0}, 3, v{VLANE}")
        I(f"v_lshlrev_b32 v{VLOFF}, 4, v{VT0}")
    else:
        I(f"v_and_b32 v{VT0}, 15, v{VLANE}")
        I(f"v_lshlrev_b32 v{VLOFF}, 4, v{VT0}")
    I("s_sub_u32 s43, s21, 4")
    I(f"s_mul_i32 s43, s43, {SSTR}")
    I(f"s_add_u32 s43, s43, {SCR}")
    I(f"v_add_u32 v{VSCRW}, s43, v{VL16}")
    I(f"v_lshlrev_b32 v{VOR}, 5, v{VT1}")
    I(f"v_add_u32 v{VOR}, s43, v{VOR}")
    I(f"v_lshlrev_b32 v{VTRA}, 4, v{VT1}")
    I(f"v_bfe_u32 v{VT1}, v{VLANE}, 2, 2")
    I(f"v_lshl_add_u32 v{VTRA}, v{VT1}, 6, v{VTRA}")
    I(f"v_and_b32 v{VT1}, 1, v{VLANE}")
    I(f"v_lshl_add_u32 v{VTRA}, v{VT1}, 3, v{VTRA}")
    I(f"v_bfe_u32 v{VT1}, v{VLANE}, 1, 1")
    I(f"v_mul_u32_u24 v{VT1}, {PL1}, v{VT1}")
    I(f"v_add3_u32 v{VTRA}, v{VTRA}, v{VT1}, s43")
    I(f"v_and_b32 v{VOW}, 32, v{VLANE}")
    I(f"v_and_b32 v{VT1}, 3, v{VLANE}")
    I(f"v_lshl_add_u32 v{VOW}, v{VT1}, 3, v{VOW}")
    I(f"v_bfe_u32 v{VT1}, v{VLANE}, 2, 3")
    I(f"v_add_u32 v{VOW}, v{VOW}, v{VT1}")
    I(f"v_lshlrev_b32 v{VOW}, 2, v{VOW}")
    I(f"v_add_u32 v{VOW}, s43, v{VOW}")
    I(f"v_add_u32 v{VWR}, {WRAD}, v{VL16}")
    I("s_sub_u32 s42, s21, 4")
    I("s_mul_i32 s83, s42, 24")
    I(f"v_and_b32 v{VJ}, 7, v{VLANE}")
    I(f"v_lshrrev_b32 v{VSEG}, 3, v{VLANE}")
    I(f"s_mov_b32 s42, {CSTRIDE}")
    I(f"v_mul_u32_u24 v{VCH}, s42, v{VSEG}")
    I(f"v_lshlrev_b32 v{VSEG}, 5, v{VSEG}")
    I(f"v_add_u32 v{VSEG}, s43, v{VSEG}")
    I(f"v_or_b32 v{VSEL}, 0x0c0c0c00, v{VJ}")
    NP, NW = 3, 3
    I(f"s_mul_i32 s79, s83, {CSTRIDE}")
    for p in range(NP):
        I(f"s_add_u32 s{74+p}, s79, {8*p*CSTRIDE+PAYOFF}")
        I(f"s_add_u32 s{80+p}, s79, {8*p*CSTRIDE+KEYOFF}")
    I("s_mov_b32 s78, 0x100000")
    I("s_mov_b32 s88, s20")
    I("s_mov_b32 s89, 0")
    I(f"s_movk_i32 s48, {HN}")
    def w_stage():
        I("s_cmp_lt_u32 s21, 13")
        I("s_cbranch_scc1 L2_noW")
        if c.nop2: I(f"s_waitcnt vmcnt({1 if c.pfx_lines else 0})")
        I(f"v_add_u32 v65, {T}, v65")
        for k in range(8):
            I(f"ds_write_b128 v65, v[{28+4*k}:{31+4*k}] offset:{16384 + k*3072}")
        for k in range(5):
            I(f"ds_write_b128 v65, v[{72+4*k}:{75+4*k}] offset:{k*3072}")
        if c.wrlds: I("ds_write_b128 v65, v[68:71] offset:40960")
        I("s_cmp_lg_u32 s21, 13")
        I("s_cbranch_scc1 L2_noW")
        I(f"ds_write_b128 v65, v[92:95] offset:{5*3072}")
        e.label("L2_noW")
    if c.nop2:
        w_stage()
        handoff2("g")
    else:
        handoff("g", w_stage)
    if c.pdelay: I(f"s_sleep {c.pdelay}")
    if c.prio_pro: I(f"s_setprio {c.prio_pro}")
    PAY, KEY, RNK, CNTR, KAD, PAD, X, EN = 0, 36, 45, 54, 57, 60, 64, 72
    MSK = 50
    e.label("L2_g_round")
    I(f"v_and_b32 v{VJ}, 7, v{VLANE}")
    I(f"v_or_b32 v{VSEL}, 0x0c0c0c00, v{VJ}")
    I(f"v_lshrrev_b32 v{X}, 1, v{VLANE}")
    I(f"s_sub_u32 s42, {NCH}, s83")
    I("s_min_i32 s42, s42, 24")
    I(f"v_cmp_gt_i32 s[46:47], s42, v{X}")
    I(f"s_mov_b32 s42, {CSTRIDE}")
    I(f"v_mul_u32_u24 v{X+1}, s42, v{X}")
    I(f"v_and_b32 v{X+2}, 16, v{VL16}")
    I(f"v_add_u32 v{X+1}, v{X+1}, v{X+2}")
    I(f"v_cndmask_b32 v{X+1}, 2.0, v{X+1}, s[46:47]")
    I("s_lshl_b32 s43, s88, 5")
    I(f"s_add_u32 s43, s43, {TABOFF}")
    I("s_add_u32 s43, s43, s79")
    I("s_mov_b32 s44, 0")
    I(f"v_lshl_add_u32 v{VT1}, v{VJ}, 4, v{VCH}")
    if c.ppipe:
        def pl(r): I(f"buffer_load_dwordx4 v[{r}:{r+3}], v{X+1}, s[8:11], s43 offen sc1")
        def chk(r, ok):
            I("s_waitcnt vmcnt(1)")
            tag_bad(e, X+2, r, X+3, ODD)
            I(f"v_cmp_ne_u32 vcc, 0, v{X+2}")
            e.nop(2)
            I("s_and_b64 vcc, vcc, s[46:47]")
            I(f"s_cbranch_scc0 {ok}")
        I("s_waitcnt vmcnt(0)")
        pl(96)
        I(f"s_sleep {c.pgap}")
        e.label("L2_poll")
        pl(104)
        chk(96, "L2_poll_oka")
        pl(96)
        I("s_add_u32 s44, s44, 1")
        chk(104, "L2_poll_okb")
        I("s_cmp_lt_u32 s44, s78")
        I("s_cbranch_scc1 L2_poll")
        I("s_mov_b32 s78, 0")
        e.label("L2_poll_okb")
        for k in range(4): I(f"v_mov_b32 v{EN+k}, v{104+k}")
        I("s_branch L2_poll_ok")
        e.label("L2_poll_oka")
        for k in range(4): I(f"v_mov_b32 v{EN+k}, v{96+k}")
    else:
        if c.nop2:
            I(f"buffer_load_dwordx4 v[{EN}:{EN+3}], v{X+1}, s[8:11], s43 offen sc1")
            I("s_mov_b64 exec, 1")
            I("s_waitcnt vmcnt(0)")
            I(f"ds_add_u32 v{VL16}, v{VONE} offset:{BST}")
            I("s_mov_b64 exec, -1")
            I("s_branch L2_poll_chk")
        e.label("L2_poll")
        I(f"buffer_load_dwordx4 v[{EN}:{EN+3}], v{X+1}, s[8:11], s43 offen sc1")
        I("s_add_u32 s44, s44, 1")
        I("s_waitcnt vmcnt(0)")
        e.label("L2_poll_chk")
        tag_bad(e, X+2, EN, X+3, ODD)
        I(f"v_cmp_ne_u32 vcc, 0, v{X+2}")
        e.nop(2)
        I("s_and_b64 vcc, vcc, s[46:47]")
        I("s_cbranch_scc0 L2_poll_ok")
        I(f"s_sleep {c.psleep}")
        I("s_cmp_lt_u32 s44, s78")
        I("s_cbranch_scc1 L2_poll")
        I("s_mov_b32 s78, 0")
    e.label("L2_poll_ok")
    I("s_cmp_lg_u32 s23, 1")
    I("s_cbranch_scc1 L2_nofilter")
    I("s_sub_u32 s42, s22, s83")
    I(f"v_cmp_eq_u32 vcc, s42, v{X}")
    I(f"v_cndmask_b32 v{EN}, 0, v{EN}, vcc")
    e.label("L2_nofilter")
    I(f"ds_write_b128 v{VSCRW}, v[{EN}:{EN+3}]")
    I(f"v_add_u32 v{X+1}, 8, v{VJ}")
    stamp(e, c, 7)
    def msk(p, w): return f"s[{MSK+4*p+2*w}:{MSK+4*p+2*w+1}]" if w < 2 else f"s[{MSK+12+2*p}:{MSK+13+2*p}]"
    def pay(p, w): return f"v[{PAY+12*p+4*w}:{PAY+12*p+4*w+3}]"
    for p in range(NP):
        I(f"ds_read_b128 v[{EN+8*p}:{EN+8*p+3}], v{VSEG} offset:{256*p}")
        I(f"ds_read_b128 v[{EN+8*p+4}:{EN+8*p+7}], v{VSEG} offset:{256*p+16}")
    for p in range(NP):
        en, cnt = EN + 8*p, CNTR + p
        if p == 0: I("s_waitcnt lgkmcnt(0)")
        I(f"v_bfe_u32 v{cnt}, v{en}, 12, 12")
        I(f"v_and_b32 v{PAD+p}, 0xfff, v{en}")
        I(f"v_cmp_lt_u32 {msk(p,0)}, v{VJ}, v{cnt}")
        I(f"v_cmp_lt_u32 {msk(p,1)}, v{X+1}, v{cnt}")
        I(f"v_perm_b32 v{KEY+3*p}, v{en+3}, v{en+2}, v{VSEL}")
        I(f"v_perm_b32 v{KEY+3*p+1}, v{en+5}, v{en+4}, v{VSEL}")
        I(f"v_lshl_add_u32 v{PAD+p}, v{PAD+p}, 4, v{VT1}")
        for w in range(2):
            I(f"s_mov_b64 exec, {msk(p,w)}")
            I(f"s_cbranch_execz L2_nop{p}")
            I(f"ds_add_rtn_u32 v{RNK+3*p+w}, v{KEY+3*p+w}, v{VONE} offset:{HIST}")
            I(f"buffer_load_dwordx4 {pay(p,w)}, v{PAD+p}, s[8:11], s{74+p} offen offset:{128*w} {rf}")
        e.label(f"L2_nop{p}")
        I("s_mov_b64 exec, -1")
    I(f"v_max3_u32 v{VT0}, v{CNTR}, v{CNTR+1}, v{CNTR+2}")
    I(f"v_cmp_lt_u32 vcc, 16, v{VT0}")
    I("s_mov_b32 s25, 0")
    e.nop(1)
    I("s_cmp_eq_u64 vcc, 0")
    I("s_cbranch_scc1 L2_noextraA")
    I("s_mov_b32 s25, 1")
    I(f"v_add_u32 v{X+2}, 16, v{VJ}")
    for p in range(NP):
        en = EN + 8*p
        I(f"v_min_u32 v{X+3}, {KIN}, v{CNTR+p}")
        I(f"v_cmp_lt_u32 {msk(p,2)}, v{X+2}, v{X+3}")
        I(f"v_perm_b32 v{KEY+3*p+2}, v{en+6}, v{en+6}, v{VSEL}")
        I(f"v_sub_u32 v{KAD+p}, v{PAD+p}, v{VCH}")
        I(f"v_lshrrev_b32 v{KAD+p}, 4, v{KAD+p}")
        I(f"v_add_u32 v{KAD+p}, v{KAD+p}, v{VCH}")
        e.flush()
        I(f"s_mov_b64 exec, {msk(p,2)}")
        I(f"ds_add_rtn_u32 v{RNK+3*p+2}, v{KEY+3*p+2}, v{VONE} offset:{HIST}")
        I(f"buffer_load_dwordx4 {pay(p,2)}, v{PAD+p}, s[8:11], s{74+p} offen offset:256 {rf}")
        I("s_mov_b64 exec, -1")

    def extra_count(tag, first, vj, vkad, vcnt, skey, vone, hist, y):
        I(f"v_add_u32 v{y}, {first}, v{vj}")
        I(f"v_add_u32 v{y+1}, {first}, v{vkad}")
        e.label(f"L_xa{tag}")
        I(f"v_cmp_lt_u32 vcc, v{y}, v{vcnt}")
        I("s_and_saveexec_b64 s[44:45], vcc")
        e.branch(f"s_cbranch_execz L_xa{tag}_done")
        I(f"buffer_load_ubyte v{y+2}, v{y+1}, s[8:11], s{skey} offen {rf}")
        I("s_waitcnt vmcnt(0)")
        I(f"ds_add_u32 v{y+2}, v{vone} offset:{hist}")
        I("s_mov_b64 exec, -1")
        I(f"v_add_u32 v{y}, 8, v{y}")
        I(f"v_add_u32 v{y+1}, 8, v{y+1}")
        e.branch(f"s_branch L_xa{tag}")
        e.label(f"L_xa{tag}_done")
        I("s_mov_b64 exec, -1")
    def extra_move(tag, first, vj, vkad, vpad, vcnt, skey, spay, vone, cur, vbase, y, d):
        I(f"v_add_u32 v{y}, {first}, v{vj}")
        I(f"v_add_u32 v{y+1}, {first}, v{vkad}")
        I(f"v_add_u32 v{vpad}, {16*first}, v{vpad}")
        e.label(f"L_xb{tag}")
        I(f"v_cmp_lt_u32 vcc, v{y}, v{vcnt}")
        I("s_and_saveexec_b64 s[44:45], vcc")
        e.branch(f"s_cbranch_execz L_xb{tag}_done")
        I(f"buffer_load_ubyte v{y+2}, v{y+1}, s[8:11], s{skey} offen {rf}")
        I(f"buffer_load_dwordx4 v[{d}:{d+3}], v{vpad}, s[8:11], s{spay} offen {rf}")
        I("s_waitcnt vmcnt(0)")
        I(f"ds_add_rtn_u32 v{y+3}, v{y+2}, v{vone} offset:{cur}")
        I("s_mov_b64 exec, -1")
        I(f"ds_bpermute_b32 v{y+2}, v{y+2}, v{vbase}")
        I("s_waitcnt lgkmcnt(0)")
        I(f"v_add_lshl_u32 v{y+2}, v{y+2}, v{y+3}, 4")
        I("s_mov_b64 exec, vcc")
        I(f"ds_write_b128 v{y+2}, v[{d}:{d+3}] offset:{RAW}")
        I("s_mov_b64 exec, -1")
        I(f"v_add_u32 v{y}, 8, v{y}")
        I(f"v_add_u32 v{y+1}, 8, v{y+1}")
        I(f"v_add_u32 v{vpad}, 128, v{vpad}")
        e.branch(f"s_branch L_xb{tag}")
        e.label(f"L_xb{tag}_done")
        I("s_mov_b64 exec, -1")
    for p in range(NP):
        extra_count(f"a{p}", KIN, VJ, KAD+p, CNTR+p, 80+p, VONE, HIST2, X)
    e.label("L2_noextraA")
    I("s_waitcnt lgkmcnt(0)")
    stamp(e, c, 14)
    I("s_barrier")
    stamp(e, c, 15)
    C1, CT, BS = X + 4, X + 5, X + 6
    I(f"v_lshlrev_b32 v{VT0}, 2, v{VLANE}")
    I(f"ds_read_b32 v{C1}, v{VT0} offset:{HIST}")
    I(f"ds_read_b32 v{CT}, v{VT0} offset:{HIST2}")
    I("s_waitcnt lgkmcnt(0)")
    I(f"v_add_u32 v{CT}, v{C1}, v{CT}")
    I(f"v_mov_b32 v{BS}, v{CT}")
    scan64(e, BS)
    I(f"v_readlane_b32 s46, v{BS}, 63")
    I(f"v_sub_u32 v{BS}, v{BS}, v{CT}")
    I(f"s_cmp_eq_u32 s23, 1")
    I(f"s_cselect_b32 s42, -1, {CAP}")
    for p in range(NP):
        for w in range(2):
            I(f"ds_bpermute_b32 v{KEY+3*p+w}, v{KEY+3*p+w}, v{BS}")
    I(f"v_lshl_or_b32 v{VINFO}, v{CT}, 16, v{BS}")
    I(f"s_cmp_gt_u32 s46, s42")
    I("s_cbranch_scc1 L2_g_overflow")
    I("s_cmp_lg_u32 s21, 5")
    I("s_cbranch_scc1 L2_noinfo")
    I(f"s_mov_b64 exec, {(1 << HN) - 1}")
    I(f"ds_write_b32 v{VT0}, v{VINFO} offset:{INFO}")
    I("s_mov_b64 exec, -1")
    e.label("L2_noinfo")
    I("s_cmp_lg_u32 s21, 4")
    I("s_cbranch_scc1 L2_noguard")
    I("s_lshl_b32 s46, s46, 4")
    for k in range(4): I(f"v_mov_b32 v{EN+k}, 0")
    I(f"v_add_u32 v{VT0}, s46, v{VL16}")
    I(f"ds_write_b128 v{VT0}, v[{EN}:{EN+3}] offset:{RAW}")
    e.label("L2_noguard")
    I("s_waitcnt lgkmcnt(0)")
    for p in range(NP):
        for w in range(2):
            I(f"v_add_lshl_u32 v{KEY+3*p+w}, v{KEY+3*p+w}, v{RNK+3*p+w}, 4")
    stamp(e, c, 27)
    I("s_waitcnt vmcnt(0)")
    stamp(e, c, 9)
    for p in range(NP):
        for w in range(2):
            I(f"s_mov_b64 exec, {msk(p,w)}")
            I(f"ds_write_b128 v{KEY+3*p+w}, {pay(p,w)} offset:{RAW}")
    I("s_mov_b64 exec, -1")
    I("s_cmp_eq_u32 s25, 0")
    I("s_cbranch_scc1 L2_noextraB")
    for p in range(NP):
        I(f"ds_bpermute_b32 v{KEY+3*p+2}, v{KEY+3*p+2}, v{BS}")
    I("s_waitcnt lgkmcnt(0)")
    for p in range(NP):
        I(f"v_add_lshl_u32 v{KEY+3*p+2}, v{KEY+3*p+2}, v{RNK+3*p+2}, 4")
        I(f"s_mov_b64 exec, {msk(p,2)}")
        I(f"ds_write_b128 v{KEY+3*p+2}, {pay(p,2)} offset:{RAW}")
        I("s_mov_b64 exec, -1")
    I(f"v_add_u32 v{BS}, v{BS}, v{C1}")
    for p in range(NP):
        extra_move(f"a{p}", KIN, VJ, KAD+p, PAD+p, CNTR+p, 80+p, 74+p, VONE, CUR2, BS, X, EN)
    e.label("L2_noextraB")
    I("s_waitcnt lgkmcnt(0)")
    stamp(e, c, 28)
    I("s_barrier")
    I(f"ds_read_b32 v{96 if c.totlate else VT0}, v{VL16} offset:{TOTB}")
    if c.static1:
        I("s_sub_u32 s42, s21, 16")
        I(f"v_mov_b32 v{VNEXT}, s42")
    else:
        I("s_mov_b64 exec, 1")
        I(f"ds_add_rtn_u32 v{VNEXT}, v{VL16}, v{VONE} offset:{NEXT}")
        I("s_mov_b64 exec, -1")
    if not c.totlate:
        I("s_waitcnt lgkmcnt(0)")
        I(f"v_readfirstlane_b32 s42, v{VT0}")
        e.nop(1)
        I(f"s_cmp_gt_u32 s42, {CAP}")
        I("s_cbranch_scc1 L2_g_overflow")
    stamp(e, c, 10)
    stamp(e, c, 24, "s_memtime")
    if c.prio_g: I(f"s_setprio {c.prio_g}")
    elif c.prio_pro and c.prio_pro < 3: I("s_setprio 0")
    (gather_loop_s if c.smf else gather_loop)(e, c, locals())
    e.label("L2_g_done")
    stamp(e, c, 11)
    stamp(e, c, 25, "s_memtime")
    I("s_cmp_lg_u32 s24, 0")
    e.branch("s_cbranch_scc1 L2_g_exit")
    I("s_add_u32 s89, s89, 1")
    I("s_branch L2_g_slow")
    e.label("L2_g_overflow")
    I("s_mov_b32 s89, 0")
    I("s_mov_b32 s23, 1")
    I("s_movk_i32 s48, 64")
    e.label("L2_g_slow")
    I("s_waitcnt vmcnt(0) lgkmcnt(0)")
    I("s_barrier")
    I("s_lshr_b32 s22, s89, 1")
    I("s_and_b32 s88, s89, 1")
    I("s_lshl_b32 s88, s88, 8")
    I("s_add_u32 s88, s88, s20")
    I(f"s_cmp_eq_u32 s89, {2*NCH-1}")
    I("s_cselect_b32 s24, 1, 0")
    I("s_barrier")
    e.branch("s_branch L2_g_round")
    e.label("L2_g_exit")
    stamp_store(e, c, 90)
    I("s_endpgm")

    e.label("L2_gemm")
    W, G, TA, TF = 0, 40, 104, 108
    X0, X1 = 124, 125
    I("v_and_b32 v104, 63, v0")
    I("v_lshlrev_b32 v105, 4, v104")
    lut = 0
    for jp in range(4):
        for blk in range(4):
            p, i, s = path_of(jp, blk)
            lut |= (p | (8 if s < 0 else 0)) << (4 * (jp * 4 + blk))
    I(f"s_mov_b32 s44, {lut & 0xffffffff}")
    I(f"s_mov_b32 s45, {lut >> 32}")
    for h in range(2):
        I("v_lshrrev_b32 v106, 4, v104")
        I("v_bfe_u32 v107, v104, 3, 1")
        I("v_lshl_add_u32 v106, v106, 2, v107")
        I(f"v_add_lshl_u32 v106, v106, {2*h}, 2")
        I(f"v_lshrrev_b64 v[108:109], v106, s[44:45]")
        I(f"v_and_b32 v106, 7, v108")
        I(f"v_and_b32 v{110+h}, 8, v108")
        I(f"v_lshlrev_b32 v{110+h}, 28, v{110+h}")
        I("v_and_b32 v107, 7, v104")
        I("v_lshlrev_b32 v107, 3, v107")
        I("v_lshl_add_u32 v106, v106, 6, v107")
        I("v_add_u32 v106, s21, v106")
        I(f"v_lshlrev_b32 v{112+h}, 1, v106")
        if c.wrlds: I(f"v_add_u32 v{112+h}, {T+40960}, v{112+h}")
    I("v_mov_b32 v117, v0")
    TB2 = 40
    if c.nop2:
        I("s_lshl_b32 s42, s21, 11")
        I(f"s_add_u32 s43, s42, {TI+8192}")
        I("v_add_u32 v114, s43, v105")
        I(f"ds_read_b128 v[{TB2}:{TB2+3}], v114")
        I(f"ds_read_b128 v[{TB2+4}:{TB2+7}], v114 offset:1024")
        I("v_lshrrev_b32 v114, 1, v104")
        I("s_lshl_b32 s43, s21, 8")
        I(f"s_add_u32 s43, s43, {H1+1024}")
        I("v_lshl_add_u32 v114, v114, 2, s43")
        I(f"ds_read2st64_b32 v[{TB2+8}:{TB2+9}], v114 offset0:0 offset1:8")
        I("v_add_u32 v114, 128, v114")
        I(f"ds_read2st64_b32 v[{TB2+10}:{TB2+11}], v114 offset0:0 offset1:8")
        I(f"s_add_u32 s39, s42, s49")
        I("s_add_u32 s39, s39, 8192")
        I("s_waitcnt lgkmcnt(0)")
        patch(TB2, TB2+8, TB2+9, None, TB2+8)
        patch(TB2+4, TB2+10, TB2+11, None, TB2+10)
        I(f"v_mov_b32 v{TB2+8}, v105")
        handoff2("m")
        I("v_mov_b32 v56, 0")
        I("v_mov_b32 v57, 1")
        I("s_mov_b64 exec, 1")
        I("s_waitcnt vmcnt(0)")
        I(f"ds_add_u32 v56, v57 offset:{BST}")
        I("s_mov_b64 exec, -1")
        if c.nop2 == 2:
            spin(e, "bst", 57, 56, BST, 16, 44, 42, sleep=1)
            I(f"buffer_store_dwordx4 v[{TB2}:{TB2+3}], v{TB2+8}, s[8:11], s39 offen {sf}")
            I(f"buffer_store_dwordx4 v[{TB2+4}:{TB2+7}], v{TB2+8}, s[8:11], s39 offen offset:1024 {sf}")
    else:
        handoff("m", lambda: None)
    if c.pfx2_pos == 0: prefetch_x(e, c.pfx2_lines, 114, 117, 256, 31, 0, 4, c.pfx_lines)
    WT = 80
    for k in range(4):
        h, qo = k >> 1, (k & 1) * 4
        for d in range(4):
            if c.wrlds: I(f"ds_read_u16 v{WT+4*k+d}, v{112+h} offset:{d*640+qo*2}")
            else: I(f"buffer_load_ushort v{WT+4*k+d}, v{112+h}, s[16:19], 0 offen offset:{d*640+qo*2}")
    I("v_lshrrev_b32 v106, 4, v104")
    I("v_lshlrev_b32 v106, 10, v106")
    I("v_bfe_u32 v107, v104, 2, 2")
    I("v_lshl_add_u32 v106, v107, 7, v106")
    I("v_and_b32 v107, 3, v104")
    I("v_lshl_add_u32 v106, v107, 3, v106")
    I("s_lshl_b32 s42, s21, 5")
    I(f"s_add_u32 s42, s42, {T}")
    I("v_add_u32 v106, s42, v106")
    for f in range(10):
        I(f"ds_read_b64_tr_b16 v[{W+4*f}:{W+4*f+1}], v106 offset:{f*4096}")
        I(f"ds_read_b64_tr_b16 v[{W+4*f+2}:{W+4*f+3}], v106 offset:{f*4096+512}")
    I("s_lshl_b32 s42, s21, 10")
    I(f"s_add_u32 s43, s42, {WRAD}")
    I("v_add_u32 v105, s43, v105")
    I("s_waitcnt lgkmcnt(0)" if c.wrlds else "s_waitcnt vmcnt(0)")
    for k in range(4):
        h = k >> 1
        for d in range(4):
            I(f"v_lshlrev_b32 v{WT+4*k+d}, 16, v{WT+4*k+d}")
            I(f"v_xor_b32 v{WT+4*k+d}, v{110+h}, v{WT+4*k+d}")
        I(f"ds_write_b128 v105, v[{WT+4*k}:{WT+4*k+3}] offset:{(k>>1)*8192 + (k&1)*4096}")
    I("v_and_b32 v106, 15, v104")
    I("v_lshrrev_b32 v107, 4, v104")
    I(f"v_lshlrev_b32 v{X0}, 2, v104")
    if NWG == 250:
        I(f"s_mul_i32 s42, s20, {HN}")
        I(f"s_movk_i32 s44, {HN}")
    else:
        I("s_mul_i32 s42, s20, 1600210")
        I("s_add_u32 s42, s42, 65532")
        I("s_add_u32 s44, s42, 1600210")
        I("s_lshr_b32 s42, s42, 16")
        I("s_lshr_b32 s44, s44, 16")
        I(f"s_min_u32 s44, s44, {N//2}")
        I("s_sub_u32 s44, s44, s42")
    I("s_lshl_b32 s42, s42, 9")
    I("s_mov_b32 s40, s42")
    I("s_mov_b32 s41, s44")
    I("s_lshl_b32 s43, s21, 5")
    I("s_add_u32 s42, s42, s43")
    I(f"v_lshlrev_b32 v{X1}, 9, v106")
    I(f"v_lshl_add_u32 v{X1}, v107, 3, v{X1}")
    I(f"v_add_u32 v{X1}, s42, v{X1}")
    I(f"v_cmp_le_u32 s[84:85], {HN-16}, v106")
    I(f"s_sub_u32 s43, s44, {48-HN}")
    I("v_cmp_gt_i32 s[50:51], s43, v106")
    I("s_sub_u32 s43, s44, 16")
    I("v_cmp_gt_i32 s[94:95], s43, v106")
    I("v_lshlrev_b32 v108, 10, v106")
    I(f"v_add_u32 v108, {T}, v108")
    I("s_or_b64 s[94:95], s[94:95], s[84:85]")
    for u in (3, 2, 1, 0):
        I(f"v_add_u32 v109, {4*u}, v107")
        I("v_xor_b32 v109, v109, v106")
        I(f"v_lshl_add_u32 v{TF+4+u}, v109, 4, v108")
    I("s_waitcnt lgkmcnt(0)")
    for u in range(4):
        I(f"v_mov_b32 v{TA+u}, v{TF+4+u}")
    I("s_mov_b32 s89, 0")
    NPB = 8
    TB, KA, SJ, KB, RB = 40, 48, 56, 64, 80
    LJ, LCH, LONE, Y = 96, 97, 98, 99
    MB = 52
    def mb(p, w): return f"s[{MB+4*p+2*w}:{MB+4*p+2*w+1}]"
    LA, PA0, PA1, TOA = KB, KB + 1, KB + 2, KB + 3
    I(f"v_lshrrev_b32 v{Y}, 2, v{X0}")
    I("s_lshl_b32 s42, s21, 11")
    I(f"v_lshl_add_u32 v{LA}, v{Y}, 4, s42")
    I(f"v_lshrrev_b32 v{Y+1}, 1, v{Y}")
    I("s_lshl_b32 s43, s21, 5")
    I(f"s_sub_u32 s44, {NCH-128}, s43")
    I(f"v_cmp_gt_i32 s[46:47], s44, v{Y+1}")
    I(f"s_mov_b32 s44, {CSTRIDE}")
    I(f"v_mul_u32_u24 v{Y+1}, s44, v{Y+1}")
    I(f"v_and_b32 v{Y+2}, 16, v{LA}")
    I(f"v_add_u32 v{PA0}, v{Y+1}, v{Y+2}")
    I(f"v_cndmask_b32 v{PA1}, 2.0, v{PA0}, s[46:47]")
    I(f"v_and_b32 v{LJ}, 7, v{Y}")
    I(f"v_lshrrev_b32 v{Y+1}, 3, v{Y}")
    I(f"v_mul_u32_u24 v{LCH}, s44, v{Y+1}")
    I(f"v_lshl_add_u32 v{RB}, v{Y+1}, 5, s42")
    I("s_mul_i32 s38, s43, s44")
    I(f"v_add_u32 v{LCH}, s38, v{LCH}")
    I(f"v_mov_b32 v{LONE}, 1")
    I("s_lshl_b32 s36, s20, 5")
    I(f"s_add_u32 s36, s36, {TABOFF+8192}")
    I("s_add_u32 s36, s36, s38")
    I(f"s_add_u32 s37, s36, {128*CSTRIDE}")
    I("s_lshl_b32 s42, s21, 6")
    I(f"v_add_u32 v{Y}, s42, v{Y}")
    I(f"v_mul_u32_u24 v{Y+1}, 0xaab, v{Y}")
    I(f"v_lshrrev_b32 v{Y+1}, 16, v{Y+1}")
    I(f"v_mul_u32_u24 v{Y+1}, {SSTR-24*32}, v{Y+1}")
    I(f"v_lshl_add_u32 v{TOA}, v{Y}, 5, v{Y+1}")
    I(f"v_add_u32 v{TOA}, {SCR+28}, v{TOA}")
    I(f"s_movk_i32 s42, {NCH}")
    I(f"v_cmp_gt_u32 s[92:93], s42, v{Y}")
    if c.pfx2_pos == 1:
        I("s_mov_b64 s[40:41], s[46:47]")
        prefetch_x(e, c.pfx2_lines, 114, 117, 256, 31, 0, 4, c.pfx_lines)
        I("s_mov_b64 s[46:47], s[40:41]")
    if c.nop2 == 1:
        spin(e, "bst", 57, 56, BST, 16, 44, 42, sleep=1)
        I(f"buffer_store_dwordx4 v[{TB2}:{TB2+3}], v{TB2+8}, s[8:11], s39 offen {sf}")
        I(f"buffer_store_dwordx4 v[{TB2+4}:{TB2+7}], v{TB2+8}, s[8:11], s39 offen offset:1024 {sf}")
    stamp(e, c, 14)
    e.label("L2_m_round")
    I("s_barrier")
    I("s_cmp_eq_u32 s23, 1")
    I("s_cbranch_scc1 L2_m_slowC")
    def pollB_issue():
        I(f"buffer_load_dwordx4 v[{TF+4}:{TF+7}], v{PA0}, s[8:11], s36 offen sc1")
        I(f"buffer_load_dwordx4 v[{TF+8}:{TF+11}], v{PA1}, s[8:11], s37 offen sc1")
    I(f"ds_read_b32 v{TF}, v{X0} offset:{HIST}")
    I(f"ds_read_b32 v{TF+1}, v{X0} offset:{HIST2}")
    I(f"ds_read_b32 v{Y}, v{TOA}")
    I("s_waitcnt lgkmcnt(0)")
    I(f"v_add_u32 v{TF}, v{TF}, v{TF+1}")
    I(f"v_and_b32 v{Y}, 0xfff, v{Y}")
    I(f"v_cndmask_b32 v{Y}, 0, v{Y}, s[92:93]")
    scan64(e, TF)
    scan64(e, Y)
    I(f"v_readlane_b32 s42, v{TF}, 63")
    I(f"v_mov_b32 v{Y+2}, 0")
    I("s_mov_b32 exec_lo, 0")
    I("s_mov_b32 exec_hi, 0x80000000")
    I(f"ds_add_u32 v{Y+2}, v{Y} offset:{TOTB}")
    I("s_mov_b64 exec, -1")
    I(f"s_cmp_gt_u32 s42, {CAP}")
    I("s_cbranch_scc1 L2_m_overflow")
    if c.bearly: pollB_issue()
    I("s_waitcnt lgkmcnt(0)")
    I("s_barrier")
    I(f"ds_read_b32 v{Y}, v{Y+2} offset:{TOTB}")
    SEL = Y + 4
    E2 = [TF, TF + 8]
    I("s_mov_b32 s44, 0")
    I("s_waitcnt lgkmcnt(0)")
    I(f"v_readfirstlane_b32 s42, v{Y}")
    I(f"v_or_b32 v{SEL}, 0x0c0c0c00, v{LJ}")
    I(f"s_cmp_gt_u32 s42, {CAP}")
    I("s_cbranch_scc1 L2_m_overflow")
    stamp(e, c, 10)
    I("s_mov_b32 s34, s42")
    if c.x_nobload: I("s_branch L2_bnoxb")
    for k in range(c.bdel // 64): I("s_sleep 64")
    if c.bdel % 64: I(f"s_sleep {c.bdel % 64}")
    if c.bearly: I("s_branch L2_pollB_w")
    e.label("L2_pollB")
    pollB_issue()
    e.label("L2_pollB_w")
    I("s_add_u32 s44, s44, 1")
    I("s_waitcnt vmcnt(0)")
    tag_bad(e, Y, TF+4, Y+1, ODD)
    tag_bad(e, Y+2, TF+8, Y+1, ODD)
    I(f"v_cndmask_b32 v{Y+2}, 0, v{Y+2}, s[46:47]")
    I(f"v_or_b32 v{Y}, v{Y}, v{Y+2}")
    I(f"v_cmp_ne_u32 vcc, 0, v{Y}")
    e.nop(2)
    I("s_cmp_eq_u64 vcc, 0")
    I("s_cbranch_scc1 L2_pollB_ok")
    I(f"s_sleep {c.psleep}")
    I("s_cmp_lt_u32 s44, 0x100000")
    I("s_cbranch_scc1 L2_pollB")
    e.label("L2_pollB_ok")
    stamp(e, c, 7)
    I(f"ds_write_b128 v{LA}, v[{TF+4}:{TF+7}] offset:{CEB}")
    I(f"ds_write_b128 v{LA}, v[{TF+8}:{TF+11}] offset:{CEB+1024}")
    def boff(p): return ((128 if p >= 4 else 0) + 8 * (p & 3)) * CSTRIDE
    def ent_read(p):
        r = E2[p & 1]
        I(f"ds_read_b128 v[{r}:{r+3}], v{RB} offset:{CEB+256*p}")
        I(f"ds_read_b64 v[{r+4}:{r+5}], v{RB} offset:{CEB+256*p+16}")
    ent_read(0); ent_read(1)
    I(f"v_add_u32 v{Y+1}, 8, v{LJ}")
    for p in range(NPB):
        r = E2[p & 1]
        I(f"s_waitcnt lgkmcnt({2 if p < NPB-1 else 0})")
        I(f"v_and_b32 v{SJ+p}, 0xfff, v{r}")
        I(f"v_bfe_u32 v{TB+p}, v{r}, 12, 12")
        I(f"v_perm_b32 v{KB+2*p}, v{r+3}, v{r+2}, v{SEL}")
        I(f"v_perm_b32 v{KB+2*p+1}, v{r+5}, v{r+4}, v{SEL}")
        if p + 2 < NPB: ent_read(p + 2)
        I(f"v_add_u32 v{SJ+p}, v{SJ+p}, v{LJ}")
        I(f"v_cmp_lt_u32 {mb(p,0)}, v{LJ}, v{TB+p}")
        I(f"v_cmp_lt_u32 {mb(p,1)}, v{Y+1}, v{TB+p}")
        I(f"v_lshl_add_u32 v{SJ+p}, v{SJ+p}, 4, v{LCH}")
    P0 = [TF, TF+4, TF+8, TF+12]
    def pay_issue(p, w, reg):
        I(f"s_mov_b32 s42, {boff(p)+PAYOFF}")
        I("s_mov_b64 exec, -1")
        I(f"v_cndmask_b32 v{Y+2+w}, 2.0, v{SJ+p}, {mb(p,w)}")
        I(f"buffer_load_dwordx4 v[{reg}:{reg+3}], v{Y+2+w}, s[8:11], s42 offen offset:{128*w} {rf}")
    for k in range(c.bdel2 // 64): I("s_sleep 64")
    if c.bdel2 % 64: I(f"s_sleep {c.bdel2 % 64}")
    for k in range(4): pay_issue(k >> 1, k & 1, P0[k])
    I(f"v_max3_u32 v{Y}, v{TB}, v{TB+1}, v{TB+2}")
    I(f"v_max3_u32 v{Y}, v{Y}, v{TB+3}, v{TB+4}")
    I(f"v_max3_u32 v{Y}, v{Y}, v{TB+5}, v{TB+6}")
    I(f"v_max_u32 v{Y}, v{Y}, v{TB+7}")
    I(f"v_cmp_lt_u32 vcc, 16, v{Y}")
    I(f"v_mov_b32 v{Y+1}, v{RB}")
    for p in range(NPB):
        for w in range(2):
            I(f"s_mov_b64 exec, {mb(p,w)}")
            I(f"ds_add_rtn_u32 v{RB+2*p+w}, v{KB+2*p+w}, v{LONE} offset:{HISTB}")
    I("s_mov_b64 exec, -1")
    I("s_cmp_lg_u64 vcc, 0")
    I("s_cselect_b32 s35, 1, 0")
    I("s_cbranch_scc0 L2_bnoxa")
    def w2mask(p):
        I(f"v_min_u32 v{Y+2}, {KIN}, v{TB+p}")
        I(f"v_add_u32 v{Y+3}, 16, v{LJ}")
        I(f"v_cmp_lt_u32 vcc, v{Y+3}, v{Y+2}")
        I("s_and_saveexec_b64 s[44:45], vcc")
    for p in range(NPB):
        w2mask(p)
        e.branch(f"s_cbranch_execz L2_bw2a{p}")
        I(f"ds_read_b32 v{KA+p}, v{Y+1} offset:{CEB+256*p+24}")
        I("s_waitcnt lgkmcnt(0)")
        I(f"v_perm_b32 v{KA+p}, v{KA+p}, v{KA+p}, v{SEL}")
        I(f"ds_add_rtn_u32 v{Y+2}, v{KA+p}, v{LONE} offset:{HISTB}")
        I("s_waitcnt lgkmcnt(0)")
        I(f"v_lshl_or_b32 v{KA+p}, v{Y+2}, 8, v{KA+p}")
        e.label(f"L2_bw2a{p}")
        I("s_mov_b64 exec, -1")
    def key_addr(p, dst):
        I(f"v_sub_u32 v{dst}, v{SJ+p}, v{LCH}")
        I(f"v_lshrrev_b32 v{dst}, 4, v{dst}")
        I(f"v_add_u32 v{dst}, v{dst}, v{LCH}")
    for p in range(NPB):
        I(f"s_mov_b32 s42, {boff(p)+KEYOFF}")
        key_addr(p, Y+3)
        extra_count(f"b{p}", KIN, LJ, Y+3, TB+p, 42, LONE, HIST2B, Y)
    e.label("L2_bnoxa")
    I("s_mov_b64 exec, 1")
    I(f"v_mov_b32 v{Y+2}, 0")
    I("s_waitcnt lgkmcnt(0)")
    I(f"ds_add_u32 v{Y+2}, v{LONE} offset:{BSYNC}")
    I("s_mov_b64 exec, -1")
    I(f"v_mov_b32 v{Y+2}, 0")
    spin(e, "bs", Y, Y+2, BSYNC, 4, 44, 42)
    BB = Y + 4
    I(f"ds_read_b32 v{Y}, v{X0} offset:{HISTB}")
    I(f"ds_read_b32 v{Y+1}, v{X0} offset:{HIST2B}")
    I("s_waitcnt lgkmcnt(0)")
    I(f"v_add_u32 v{Y+1}, v{Y}, v{Y+1}")
    I(f"v_mov_b32 v{BB}, v{Y+1}")
    scan64(e, BB)
    I(f"v_sub_u32 v{BB}, v{BB}, v{Y+1}")
    I(f"v_add_u32 v{BB}, {BOFF}, v{BB}")
    for k in range(2*NPB):
        I(f"ds_bpermute_b32 v{KB+k}, v{KB+k}, v{BB}")
    I("s_cmp_lg_u32 s21, 0")
    I("s_cbranch_scc1 L2_bnoinfo")
    I(f"v_lshl_or_b32 v{Y+1}, v{Y+1}, 16, v{BB}")
    I(f"s_mov_b32 exec_lo, {((1 << 32) - (1 << HN))}")
    I(f"ds_write_b32 v{X0}, v{Y+1} offset:{INFO}")
    I("s_mov_b64 exec, -1")
    e.label("L2_bnoinfo")
    I("s_waitcnt lgkmcnt(0)")
    for k in range(2*NPB):
        I(f"v_add_lshl_u32 v{KB+k}, v{KB+k}, v{RB+k}, 4")
    I(f"v_mov_b32 v{LONE}, v{Y}")
    regs = P0 + [RB, RB+4, RB+8, RB+12]
    for k in range(4, 8): pay_issue(k >> 1, k & 1, regs[k])
    for k in range(16):
        I(f"s_waitcnt vmcnt({min(7, 15-k)})")
        I(f"s_mov_b64 exec, {mb(k>>1, k&1)}")
        I(f"ds_write_b128 v{KB+k}, v[{regs[k&7]}:{regs[k&7]+3}] offset:{RAW}")
        if k + 8 < 16: pay_issue((k+8) >> 1, (k+8) & 1, regs[k&7])
    I("s_mov_b64 exec, -1")
    I("s_cmp_eq_u32 s35, 0")
    I("s_cbranch_scc1 L2_bnoxb")
    for p in range(NPB):
        I(f"v_and_b32 v{Y}, 0xff, v{KA+p}")
        I(f"ds_bpermute_b32 v{Y}, v{Y}, v{BB}")
        w2mask(p)
        e.branch(f"s_cbranch_execz L2_bw2b{p}")
        I(f"s_mov_b32 s42, {boff(p)+PAYOFF}")
        I(f"buffer_load_dwordx4 v[{TF}:{TF+3}], v{SJ+p}, s[8:11], s42 offen offset:256 {rf}")
        I(f"v_lshrrev_b32 v{KA+p}, 8, v{KA+p}")
        I("s_waitcnt vmcnt(0) lgkmcnt(0)")
        I(f"v_add_lshl_u32 v{Y}, v{Y}, v{KA+p}, 4")
        I(f"ds_write_b128 v{Y}, v[{TF}:{TF+3}] offset:{RAW}")
        e.label(f"L2_bw2b{p}")
        I("s_mov_b64 exec, -1")
        I("s_waitcnt lgkmcnt(0)")
    I(f"v_add_u32 v{BB}, v{BB}, v{LONE}")
    I(f"v_mov_b32 v{LONE}, 1")
    for p in range(NPB):
        I(f"s_mov_b32 s42, {boff(p)+KEYOFF}")
        I(f"s_mov_b32 s43, {boff(p)+PAYOFF}")
        key_addr(p, KA+p)
        extra_move(f"b{p}", KIN, LJ, KA+p, SJ+p, TB+p, 42, 43, LONE, CUR2B, BB, Y, TF)
    e.label("L2_bnoxb")
    I("s_waitcnt lgkmcnt(0)")
    for k in range(64):
        I(f"v_mov_b32 v{G+k}, 0")
    I("s_cmp_lg_u32 s21, 1")
    I("s_cbranch_scc1 L2_bnoguard")
    I(f"s_add_u32 s42, s34, {BOFF}")
    I("s_lshl_b32 s42, s42, 4")
    I(f"v_lshl_add_u32 v{TF}, v{X0}, 2, s42")
    I(f"ds_write_b128 v{TF}, v[{G}:{G+3}] offset:{RAW}")
    I("s_waitcnt lgkmcnt(0)")
    e.label("L2_bnoguard")
    I(f"v_mov_b32 v{TF}, 1")
    I("s_mov_b64 exec, 1")
    I(f"ds_add_u32 v{G}, v{TF} offset:{BREADY}")
    I("s_mov_b64 exec, -1")
    stamp(e, c, 13)
    I("s_branch L2_m_tiles")
    e.label("L2_m_slowC")
    I("s_barrier")
    e.label("L2_m_tiles")
    if c.prio_m: I(f"s_setprio {c.prio_m}")
    for h in range(2):
        for t in ((0, 3, 1, 2) if h else range(4)):
            need = 16 if t < 3 else NODES - 48
            last = (h, t) == (1, 2)
            if last and c.split: need = 32
            I(f"v_mov_b32 v{TF}, 0")
            spin(e, f"t{h}{t}", TF+1, TF, DONE + 16*h + 4*t, need, 43, 42, sleep=(1 if last else c.sleep))
            stamp(e, c, 16 + 4*h + t)
            srcs = [t] + ([0] if last and c.split else [])
            steps = [(tt, ks) for tt in srcs for ks in range(16)]
            def mf(ks, r):
                jp, blk = ks >> 2, 2 * h + ((ks >> 1) & 1)
                p, i, sg = path_of(jp, blk)
                f = p * 2 + (ks & 1)
                g = G + 16 * t + 4 * i
                I(f"v_mfma_f32_16x16x32_bf16 v[{g}:{g+3}], v[{W+4*f}:{W+4*f+3}], v[{r}:{r+3}], v[{g}:{g+3}]")
            def rd(n, r):
                tt, ks = steps[n]
                I(f"ds_read_b128 v[{r}:{r+3}], v{TA+(ks&3)} offset:{tt*16384 + (ks>>2)*256}")
            if last and c.fastlast and not c.split:
                I("s_cmp_eq_u32 s24, 0")
                I("s_cbranch_scc1 L2_lastslow")
                fr = [TF + 4*n for n in range(4)] + [G + 4*n for n in range(8)] + [G + 48 + 4*n for n in range(4)]
                order = [0, 2, 4, 8, 1, 3, 5, 9, 6, 10, 12, 14, 7, 11, 13, 15]
                for n, ks in enumerate(order): rd(ks, fr[n])
                for n, ks in enumerate(order):
                    I(f"s_waitcnt lgkmcnt({15-n})")
                    mf(ks, fr[n])
                I("s_branch L2_lastdone")
                e.label("L2_lastslow")
            for n in range(4): rd(n, TF + 4*n)
            for n in range(len(steps)):
                I(f"s_waitcnt lgkmcnt({min(3, len(steps)-1-n)})")
                mf(steps[n][1], TF + 4*(n&3))
                if n + 4 < len(steps): rd(n + 4, TF + 4*(n&3))
            if last and c.fastlast and not c.split: e.label("L2_lastdone")
            if (h, t) == (1, 0) and c.split:
                I(f"v_mov_b32 v{TF}, 0")
                I(f"v_mov_b32 v{TF+1}, 1")
                I("s_mov_b64 exec, 1")
                I(f"ds_add_u32 v{TF}, v{TF+1} offset:{GDONE + 16}")
                I("s_mov_b64 exec, -1")
            if h == 0:
                I(f"v_mov_b32 v{TF}, 0")
                I(f"v_mov_b32 v{TF+1}, 1")
                I("s_mov_b64 exec, 1")
                I(f"ds_add_u32 v{TF}, v{TF+1} offset:{GDONE + 4*t}")
                I("s_mov_b64 exec, -1")
                if t == c.pf1_tile:
                    I(f"s_movk_i32 m0, {HIST2B}")
                    I("s_lshl_b32 s42, s21, 6")
                    I(f"v_lshrrev_b32 v{TF+3}, 2, v{X0}")
                    I(f"v_add_u32 v{TF+3}, s42, v{TF+3}")
                    prefetch_x(e, c.pf1_lines, TF + 4, TF + 3, 256, 31, 1, 4, lds=True)
            else:
                I("s_cmp_eq_u32 s24, 0")
                e.branch(f"s_cbranch_scc1 L2_nofin{t}")
                g = G + 16 * t
                I("s_mov_b32 s42, 0xbfb8aa3b")
                for r in range(4): I(f"v_mul_f32 v{TF+r}, s42, v{g+r}")
                for r in range(4): I(f"v_exp_f32 v{TF+r}, v{TF+r}")
                for r in range(4): I(f"v_add_f32 v{TF+r}, 1.0, v{TF+r}")
                for r in range(4): I(f"v_rcp_f32 v{TF+r}, v{TF+r}")
                for i in range(1, 4):
                    for r in range(4): I(f"v_mul_f32 v{g+4*i+r}, v{g+4*i+r}, v{TF+r}")
                for i in range(4):
                    I(f"v_cvt_pk_bf16_f32 v{TF+4+2*i}, v{g+4*i}, v{g+4*i+1}")
                    I(f"v_cvt_pk_bf16_f32 v{TF+5+2*i}, v{g+4*i+2}, v{g+4*i+3}")
                fl = c.out_flags if (t == 2 or c.out_early is None) else c.out_early
                if c.wideout:
                    prev = {0: None, 3: 0, 1: 3, 2: 1}[t]
                    z, a1, a2 = TF, TF + 1, TF + 2
                    I(f"v_mov_b32 v{z}, 0")
                    if prev is not None: spin(e, f"or{t}", a1, z, OUTR + 4*prev, 4, 43, 42)
                    I(f"v_bfe_u32 v{a1}, v{X0}, 2, 4")
                    I(f"v_lshrrev_b32 v{a2}, 7, v{X0}")
                    I("s_lshl_b32 s42, s21, 1")
                    I(f"v_add_u32 v{a2}, s42, v{a2}")
                    I(f"v_xor_b32 v{a2}, v{a2}, v{a1}")
                    I(f"v_and_b32 v{a2}, 7, v{a2}")
                    I(f"v_lshlrev_b32 v{a2}, 4, v{a2}")
                    I(f"v_lshl_add_u32 v{a2}, v{a1}, 9, v{a2}")
                    I(f"v_bfe_u32 v{a1}, v{X0}, 6, 1")
                    I(f"v_lshl_add_u32 v{a2}, v{a1}, 3, v{a2}")
                    I(f"v_add_u32 v{a2}, {WRAD}, v{a2}")
                    for i in range(4):
                        I(f"ds_write_b64 v{a2}, v[{TF+4+2*i}:{TF+5+2*i}] offset:{i*128}")
                    I(f"v_mov_b32 v{a1}, 1")
                    I("s_mov_b64 exec, 1")
                    I(f"ds_add_u32 v{z}, v{a1} offset:{OUTW + 4*t}")
                    I("s_mov_b64 exec, -1")
                    r0, ga, la = TF + 12, TF + 13, TF + 3
                    I(f"v_lshrrev_b32 v{r0}, 7, v{X0}")
                    I("s_lshl_b32 s42, s21, 2")
                    I(f"v_add_u32 v{r0}, s42, v{r0}")
                    I(f"v_bfe_u32 v{ga}, v{X0}, 2, 5")
                    I(f"v_and_b32 v{a2}, 7, v{r0}")
                    I(f"v_xor_b32 v{la}, v{ga}, v{a2}")
                    I(f"v_lshlrev_b32 v{la}, 4, v{la}")
                    I(f"v_lshl_add_u32 v{la}, v{r0}, 9, v{la}")
                    I(f"v_add_u32 v{la}, {WRAD}, v{la}")
                    I(f"v_xor_b32 v{a2}, 32, v{la}")
                    I(f"v_lshlrev_b32 v{ga}, 4, v{ga}")
                    I(f"v_lshl_add_u32 v{ga}, v{r0}, 9, v{ga}")
                    I(f"v_add_u32 v{ga}, s40, v{ga}")
                    spin(e, f"ow{t}", a1, z, OUTW + 4*t, 4, 43, 42)
                    I(f"ds_read_b128 v[{TF+4}:{TF+7}], v{la}")
                    I(f"ds_read_b128 v[{TF+8}:{TF+11}], v{a2} offset:1024")
                    for k in range(2):
                        base = 16*t + 2*k
                        I(f"s_mov_b32 s42, {base*512 + ((N//2-HN)*512 if t >= 2 else 0)}")
                        va = ga
                        if t == 1:
                            va = TF + 14
                            I(f"v_cmp_le_u32 vcc, {HN-base}, v{r0}")
                            I(f"v_add_u32 v{TF+15}, {(N//2-HN)*512}, v{ga}")
                            I(f"s_sub_u32 s43, s41, {base}")
                            I(f"v_cndmask_b32 v{va}, v{ga}, v{TF+15}, vcc")
                            I(f"v_cmp_gt_i32 s[44:45], s43, v{r0}")
                            e.nop(1)
                            I("s_or_b64 exec, vcc, s[44:45]")
                        if t == 3:
                            I(f"s_sub_u32 s43, s41, {base-HN}")
                            I(f"v_cmp_gt_i32 vcc, s43, v{r0}")
                            e.nop(1)
                            I("s_mov_b64 exec, vcc")
                        I(f"s_waitcnt lgkmcnt({1-k})")
                        if t == 3: I(f"s_cbranch_execz L2_wo3{k}")
                        I(f"buffer_store_dwordx4 v[{TF+4+4*k}:{TF+7+4*k}], v{va}, s[12:15], s42 offen {fl}")
                        if t == 3: e.label(f"L2_wo3{k}")
                        if t in (1, 3): I("s_mov_b64 exec, -1")
                    if t != 2:
                        I(f"v_mov_b32 v{a1}, 1")
                        I("s_mov_b64 exec, 1")
                        I(f"ds_add_u32 v{z}, v{a1} offset:{OUTR + 4*t}")
                        I("s_mov_b64 exec, -1")
                else:
                    I(f"s_mov_b32 s42, {t*16*512 + ((N//2-HN)*512 if t >= 2 else 0)}")
                    va = X1
                    if t == 1:
                        va = TF
                        I(f"v_add_u32 v{TF}, {(N//2-HN)*512}, v{X1}")
                        I(f"v_cndmask_b32 v{TF}, v{X1}, v{TF}, s[84:85]")
                        I("s_mov_b64 exec, s[94:95]")
                    if t == 3:
                        I("s_mov_b64 exec, s[50:51]")
                        I("s_cbranch_execz L2_nost3")
                    for i in range(4):
                        I(f"buffer_store_dwordx2 v[{TF+4+2*i}:{TF+5+2*i}], v{va}, s[12:15], s42 offen offset:{i*128} {c.out_flags if (t == 2 or c.out_early is None) else c.out_early}")
                    if t == 3: e.label("L2_nost3")
                    if t in (1, 3): I("s_mov_b64 exec, -1")
                e.label(f"L2_nofin{t}")
    stamp(e, c, 11)
    I("s_cmp_lg_u32 s24, 0")
    e.branch("s_cbranch_scc1 L2_m_exit")
    I("s_add_u32 s89, s89, 1")
    I("s_branch L2_m_slow")
    e.label("L2_m_overflow")
    I("s_mov_b32 s89, 0")
    I("s_mov_b32 s23, 1")
    I("s_waitcnt vmcnt(0)")
    for k in range(64):
        I(f"v_mov_b32 v{G+k}, 0")
    e.label("L2_m_slow")
    I("s_waitcnt vmcnt(0) lgkmcnt(0)")
    I("s_barrier")
    I(f"s_cmp_eq_u32 s89, {2*NCH-1}")
    I("s_cselect_b32 s24, 1, 0")
    I("s_cmp_lg_u32 s21, 1")
    I("s_cbranch_scc1 L2_m_nz")
    for k in range(4): I(f"v_mov_b32 v{TF+k}, 0")
    I(f"v_lshlrev_b32 v{TF+4}, 2, v{X0}")
    I(f"ds_write_b128 v{TF+4}, v[{TF}:{TF+3}]")
    I("s_waitcnt lgkmcnt(0)")
    e.label("L2_m_nz")
    I("s_barrier")
    e.branch("s_branch L2_m_round")
    e.label("L2_m_exit")
    if c.stamps:
        I("s_waitcnt vmcnt(0)")
        stamp(e, c, 12)
        stamp_store(e, c, TF)
    e.label("L_end")
    I("s_endpgm")
    e.label("L_codeend")
    return KNAME, 128, 96

def gather_loop(e, c, L):
    I = e.I
    RAW, T, NEXT, DONE, GDONE, OSC, PL1, BREADY, INFO = (L[k] for k in "RAW T NEXT DONE GDONE OSC PL1 BREADY INFO".split())
    VLANE, VINFO, VNEXT, VLOFF, VMASK, VOW, VOR, VSCRW, VTRA, VWR, VL16, VT0, VT1, VONE = (L[k] for k in
        "VLANE VINFO VNEXT VLOFF VMASK VOW VOR VSCRW VTRA VWR VL16 VT0 VT1 VONE".split())
    ACC, LD, B, A, AD = 0, 32, 64, 96, 100
    sA, sR, sH, sN, sNV = 32, 33, 34, 35, 37
    sCN, sCH, sCF, sCR, sL = 38, 39, 40, 41, 36
    uid = [0]
    def lab(p):
        uid[0] += 1
        return f"L2_{p}{uid[0]}"
    def fetch_issue():
        I("s_mov_b64 exec, 1")
        I(f"ds_add_rtn_u32 v{VNEXT}, v{VL16}, v{VONE} offset:{NEXT}")
        I("s_mov_b64 exec, -1")
    NIT = 2*NODES + (16 if c.split else 0)
    def setup_item(none_label):
        I(f"v_readfirstlane_b32 s42, v{VNEXT}")
        e.nop(1)
        if c.static1: I("s_add_u32 s42, s42, 12")
        I(f"s_cmp_ge_u32 s42, {NIT}")
        I(f"s_cbranch_scc1 {none_label}")
        t, sp, dn = lab("bw"), lab("sp"), lab("sd")
        if c.split:
            I(f"s_cmp_ge_u32 s42, {2*NODES-16}")
            I(f"s_cbranch_scc1 {sp}")
        I(f"s_cmp_ge_u32 s42, {NODES}")
        I(f"s_cselect_b32 s{sH}, 256, 0")
        I(f"s_cselect_b32 s43, {NODES}, 0")
        I(f"s_cmp_ge_u32 s42, {NODES+16}")
        I(f"s_cselect_b32 s43, {NODES-32}, s43")
        I(f"s_cmp_ge_u32 s42, {NODES+18}")
        I(f"s_cselect_b32 s43, {NODES+2}, s43")
        I(f"s_sub_u32 s{sN}, s42, s43")
        I(f"s_cmp_lt_u32 s{sN}, s48")
        I(f"s_cbranch_scc1 {t}")
        stamp(e, c, 29)
        I(f"v_mov_b32 v{VT0}, 0")
        spin(e, t, VT1, VT0, BREADY, 4, 45, 44, sleep=1)
        I(f"v_lshrrev_b32 v{VT0}, 2, v{VL16}")
        I(f"ds_read_b32 v{VINFO}, v{VT0} offset:{INFO}")
        I("s_movk_i32 s48, 64")
        I("s_waitcnt lgkmcnt(0)")
        stamp(e, c, 30)
        e.label(t)
        I(f"v_readlane_b32 s42, v{VINFO}, s{sN}")
        e.nop(1)
        I(f"s_lshr_b32 s{sR}, s42, 16")
        I("s_and_b32 s42, s42, 0xffff")
        I(f"s_lshl_b32 s{sA}, s42, 4")
        if c.split:
            I(f"s_branch {dn}")
            e.label(sp)
            I(f"s_sub_u32 s42, s42, {2*NODES-16}")
            I("s_lshr_b32 s43, s42, 1")
            I(f"s_add_u32 s{sN}, s43, 32")
            I(f"s_cmp_lt_u32 s{sN}, s48")
            I(f"s_cbranch_scc1 {t}b")
            I(f"v_mov_b32 v{VT0}, 0")
            spin(e, t + "c", VT1, VT0, BREADY, 4, 45, 44, sleep=1)
            I(f"v_lshrrev_b32 v{VT0}, 2, v{VL16}")
            I(f"ds_read_b32 v{VINFO}, v{VT0} offset:{INFO}")
            I("s_movk_i32 s48, 64")
            I("s_waitcnt lgkmcnt(0)")
            e.label(t + "b")
            I(f"v_readlane_b32 s44, v{VINFO}, s{sN}")
            I(f"s_movk_i32 s{sH}, 256")
            I(f"s_lshr_b32 s{sR}, s44, 16")
            I("s_and_b32 s44, s44, 0xffff")
            I(f"s_min_u32 s45, s{sR}, 32")
            I("s_bitcmp1_b32 s42, 0")
            I(f"s_cbranch_scc1 {sp}h")
            I(f"s_mov_b32 s{sR}, s45")
            I(f"s_lshl_b32 s{sA}, s44, 4")
            I(f"s_branch {dn}")
            e.label(sp + "h")
            I(f"s_sub_u32 s{sR}, s{sR}, s45")
            I("s_add_u32 s44, s44, s45")
            I(f"s_lshl_b32 s{sA}, s44, 4")
            I(f"s_or_b32 s{sN}, s43, 64")
            e.label(dn)
    def off_read(hf):
        I(f"ds_read_b128 v[{AD}:{AD+3}], v{VOR} offset:{OSC+128*hf}")
        I(f"ds_read_b128 v[{AD+4}:{AD+7}], v{VOR} offset:{OSC+128*hf+16}")
    def off_add():
        if c.addtid: return
        for i in range(8):
            I(f"v_add_u32 v{AD+i}, v{AD+i}, v{VLOFF}")
    def prep_block():
        r = B
        I(f"v_add_u32 v{VT0}, s{sA}, v{VL16}")
        I(f"ds_read_b128 v[{r}:{r+3}], v{VT0} offset:{RAW}")
        l = lab("nf")
        I(f"s_cmp_gt_u32 s{sR}, 64")
        I(f"s_cbranch_scc1 {l}")
        fetch_issue()
        e.label(l)
        I(f"v_cmp_gt_u32 vcc, s{sR}, v{VLANE}")
        I("s_waitcnt lgkmcnt(0)")
        I(f"v_lshrrev_b32 v{r+11}, 16, v{r+3}")
        if c.addtid:
            I(f"v_lshlrev_b32 v{r+11}, 5, v{r+11}")
            I(f"v_sub_u32 v{r+11}, v{r+11}, v{VLOFF}")
        else:
            I(f"v_lshlrev_b32 v{r+11}, 9, v{r+11}")
            if c.oobtail: I(f"v_cndmask_b32 v{r+11}, 2.0, v{r+11}, vcc")
        I(f"ds_write_b32 v{VOW}, v{r+11} offset:{OSC}")
        off_read(0)
        if not c.x_noexp:
            I(f"v_cndmask_b32 v{r}, 0, v{r}, vcc")
            I(f"v_cndmask_b32 v{r+1}, 0, v{r+1}, vcc")
            I(f"v_lshlrev_b32 v{r+8}, 16, v{r+2}")
            I(f"v_and_b32 v{r+9}, v{VMASK}, v{r+2}")
            I(f"v_lshlrev_b32 v{r+10}, 16, v{r+3}")
            I(f"v_lshlrev_b32 v{r+4}, 16, v{r}")
            I(f"v_and_b32 v{r+5}, v{VMASK}, v{r}")
            I(f"v_lshlrev_b32 v{r+6}, 16, v{r+1}")
            I(f"v_and_b32 v{r+7}, v{VMASK}, v{r+1}")
            for j in range(3):
                for d in range(4):
                    I(f"v_mul_f32 v{r+12+4*j+d}, v{r+4+d}, v{r+8+j}")
            I(f"v_cvt_pk_bf16_f32 v{r+2}, v{r+12}, v{r+13}")
            I(f"v_cvt_pk_bf16_f32 v{r+3}, v{r+14}, v{r+15}")
            for k in range(4):
                I(f"v_cvt_pk_bf16_f32 v{r+24+k}, v{r+16+2*k}, v{r+17+2*k}")
        I(f"ds_write_b128 v{VSCRW}, v[{r}:{r+3}]")
        I(f"ds_write_b128 v{VSCRW}, v[{r+24}:{r+27}] offset:{PL1}")
        I("s_waitcnt lgkmcnt(2)")
        off_add()
    def ld(i):
        if c.x_noload: return
        I(f"buffer_load_dwordx4 v[{LD+4*i}:{LD+4*i+3}], v{AD+i}, s[4:7], {'0' if c.x_samehalf else 's%d' % sH} {'idxen' if c.addtid else 'offen'}")
    def perm(q, jj, k16=False):
        if c.x_noperm: return
        d = B + 2*q + jj if k16 else B + 4*q + jj
        I(f"v_perm_b32 v{d}, v{LD+4*(2*jj+1)+q//2}, v{LD+4*(2*jj)+q//2}, s{29 if q & 1 else 28}")
    def loads_partial(done):
        for i in range(7):
            I(f"s_cmp_le_u32 s{sL}, {4*i}")
            I(f"s_cbranch_scc1 {done}")
            ld(i)
    def perms_loads():
        part, done = lab("pp"), lab("pd")
        I("s_waitcnt vmcnt(0)")
        I(f"s_cmp_le_u32 s{sL}, 28")
        I(f"s_cbranch_scc1 {part}")
        for jj in range(4):
            for q in range(8): perm(q, jj)
            ld(2*jj); ld(2*jj+1)
        I(f"s_branch {done}")
        e.label(part)
        for jj in range(4):
            for q in range(8): perm(q, jj)
        loads_partial(done)
        e.label(done)
    def mfmas(first, k16=False):
        if c.x_nomfma: return
        for q in range(8):
            d = f"v[{ACC+4*q}:{ACC+4*q+3}]"
            if k16: I(f"v_mfma_f32_16x16x16_bf16 {d}, v[{A}:{A+1}], v[{B+2*q}:{B+2*q+1}], {'0' if first else d}")
            else: I(f"v_mfma_f32_16x16x32_bf16 {d}, v[{A}:{A+3}], v[{B+4*q}:{B+4*q+3}], {'0' if first else d}")
    def tr_read(hf):
        I(f"ds_read_b64_tr_b16 v[{A}:{A+1}], v{VTRA} offset:{512*hf}")
        I(f"ds_read_b64_tr_b16 v[{A+2}:{A+3}], v{VTRA} offset:{512*hf+256}")

    if c.stamps: I("s_mov_b32 s92, 16")
    setup_item("L2_g_done")
    prep_block()
    if c.totlate:
        I("v_readfirstlane_b32 s42, v96")
        e.nop(1)
        I(f"s_cmp_gt_u32 s42, {c.cap}")
        I("s_cbranch_scc1 L2_g_overflow")
    for i in range(8): ld(i)
    if c.prio_pro == 3: I("s_setprio 0")
    for first in (1, 0):
        e.label(f"L2_A{first}")
        tr_read(0)
        I(f"s_cmp_gt_u32 s{sR}, 32")
        I(f"s_cbranch_scc1 L2_AB{first}")
        I(f"s_mov_b32 s{sCF}, {first}")
        I(f"s_mov_b32 s{sCR}, s{sR}")
        I("s_branch L2_XN")
        e.label(f"L2_AB{first}")
        off_read(1)
        I(f"s_sub_u32 s{sL}, s{sR}, 32")
        I("s_waitcnt lgkmcnt(0)")
        off_add()
        perms_loads()
        mfmas(first)
        if first: I("s_branch L2_B")
    e.label("L2_B")
    tr_read(1)
    I(f"s_cmp_gt_u32 s{sR}, 64")
    I("s_cbranch_scc0 L2_BN")
    I(f"s_sub_u32 s{sR}, s{sR}, 64")
    I(f"s_add_u32 s{sA}, s{sA}, 1024")
    I(f"s_mov_b32 s{sL}, s{sR}")
    prep_block()
    perms_loads()
    I("s_waitcnt lgkmcnt(0)")
    mfmas(0)
    I("s_branch L2_A0")
    e.label("L2_BN")
    I(f"s_mov_b32 s{sCF}, 0")
    I(f"s_sub_u32 s{sCR}, s{sR}, 32")
    e.label("L2_XN")
    I(f"s_mov_b32 s{sCN}, s{sN}")
    I(f"s_mov_b32 s{sCH}, s{sH}")
    I(f"s_mov_b32 s{sNV}, 1")
    setup_item("L2_XN_none")
    I(f"s_mov_b32 s{sL}, s{sR}")
    prep_block()
    I("s_branch L2_XN_go")
    e.label("L2_XN_none")
    I(f"s_mov_b32 s{sNV}, 0")
    I(f"s_mov_b32 s{sL}, 0")
    e.label("L2_XN_go")
    I(f"s_cmp_le_u32 s{sCR}, 16")
    I("s_cbranch_scc1 L2_XN_k16")
    perms_loads()
    I("s_waitcnt lgkmcnt(0)")
    I(f"s_cmp_eq_u32 s{sCF}, 0")
    I("s_cbranch_scc1 L2_XN_acc")
    mfmas(1)
    I("s_branch L2_XN_epi")
    e.label("L2_XN_acc")
    mfmas(0)
    I("s_branch L2_XN_epi")
    e.label("L2_XN_k16")
    I("s_waitcnt vmcnt(0)")
    for jj in range(2):
        for q in range(8): perm(q, jj, True)
    I(f"s_cmp_le_u32 s{sL}, 28")
    I("s_cbranch_scc1 L2_XN_k16p")
    for i in range(8): ld(i)
    I("s_branch L2_XN_k16d")
    e.label("L2_XN_k16p")
    loads_partial("L2_XN_k16d")
    e.label("L2_XN_k16d")
    I("s_waitcnt lgkmcnt(0)")
    I(f"s_cmp_eq_u32 s{sCF}, 0")
    I("s_cbranch_scc1 L2_XN_k16acc")
    mfmas(1, True)
    I("s_branch L2_XN_epi")
    e.label("L2_XN_k16acc")
    mfmas(0, True)
    e.label("L2_XN_epi")
    I(f"s_lshl_b32 s42, s{sCH}, 5")
    I(f"v_add_u32 v{VT0}, s42, v{VWR}")
    for q in range(8):
        I(f"ds_read_b128 v[{B+4*q}:{B+4*q+3}], v{VT0} offset:{q*1024}")
    I(f"s_lshr_b32 s43, s{sCN}, 4")
    I(f"s_lshl_b32 s43, s43, 2")
    I(f"s_cmp_eq_u32 s{sCH}, 0")
    I("s_cbranch_scc1 L2_nowar")
    I(f"v_mov_b32 v{VT1}, s43")
    spin(e, "war", VT0, VT1, GDONE, 4, 45, 44)
    if c.split:
        I("s_cmp_eq_u32 s43, 16")
        I("s_cselect_b32 s43, 8, s43")
    I("s_add_u32 s43, s43, 16")
    e.label("L2_nowar")
    I(f"s_and_b32 s44, s{sCN}, 15")
    I("s_lshl_b32 s44, s44, 4")
    I(f"s_and_b32 s45, s{sCN}, 63")
    I(f"s_lshl_b32 s45, s45, 10")
    I(f"s_add_u32 s45, s45, {T}")
    I(f"v_xor_b32 v{VT0}, s44, v{VL16}")
    I(f"v_add_u32 v{VT0}, s45, v{VT0}")
    I(f"v_mov_b32 v{VT1}, s43")
    I("s_waitcnt lgkmcnt(0)")
    for q in range(8):
        I(f"v_mul_f32 v{B+4*q}, v{B+4*q}, v{ACC+4*q}")
    for d in range(1, 4):
        for q in range(8):
            I(f"v_fmac_f32 v{B+4*q}, v{B+4*q+d}, v{ACC+4*q+d}")
    for k in range(4):
        I(f"v_cvt_pk_bf16_f32 v{A+k}, v{B+8*k}, v{B+8*k+4}")
    I(f"ds_write_b128 v{VT0}, v[{A}:{A+3}]")
    if not c.nowait: I("s_waitcnt lgkmcnt(0)")
    I("s_mov_b64 exec, 1")
    I(f"ds_add_u32 v{VT1}, v{VONE} offset:{DONE}")
    I("s_mov_b64 exec, -1")
    if c.stamps:
        I("s_memrealtime s[90:91]")
        I("s_waitcnt lgkmcnt(0)")
        I("s_mov_b32 m0, s92")
        I(f"v_writelane_b32 v{STV}, s90, m0")
        I("s_add_u32 s92, s92, 1")
        I("s_min_u32 s92, s92, 23")
    I(f"s_cmp_lg_u32 s{sNV}, 0")
    I("s_cbranch_scc1 L2_A1")

def gather_loop_s(e, c, L):
    I = e.I
    RAW, T, NEXT, DONE, GDONE, OSC, PL1, BREADY, INFO = (L[k] for k in "RAW T NEXT DONE GDONE OSC PL1 BREADY INFO".split())
    VLANE, VINFO, VNEXT, VLOFF, VMASK, VOW, VOR, VSCRW, VTRA, VWR, VL16, VT0, VT1, VONE = (L[k] for k in
        "VLANE VINFO VNEXT VLOFF VMASK VOW VOR VSCRW VTRA VWR VL16 VT0 VT1 VONE".split())
    VTRB, VIDX = L["VJ"], L["VSEL"]
    ACC, LD, B, A, AD = 0, 32, 64, 96, 100
    sA, sR, sH, sN, sNV = 32, 33, 34, 35, 37
    sCN, sCH, sCR, sL = 38, 39, 41, 36
    uid = [0]
    def lab(p):
        uid[0] += 1
        return f"L3_{p}{uid[0]}"
    def fetch_issue():
        I("s_mov_b64 exec, 1")
        I(f"ds_add_rtn_u32 v{VNEXT}, v{VL16}, v{VONE} offset:{NEXT}")
        I("s_mov_b64 exec, -1")
    def setup_item(none_label):
        I(f"v_readfirstlane_b32 s42, v{VNEXT}")
        e.nop(1)
        I(f"s_cmp_ge_u32 s42, {2*NODES}")
        I(f"s_cbranch_scc1 {none_label}")
        I(f"s_cmp_ge_u32 s42, {NODES}")
        I(f"s_cselect_b32 s{sH}, 256, 0")
        I(f"s_cselect_b32 s43, {NODES}, 0")
        I(f"s_cmp_ge_u32 s42, {NODES+16}")
        I(f"s_cselect_b32 s43, {NODES-32}, s43")
        I(f"s_cmp_ge_u32 s42, {NODES+18}")
        I(f"s_cselect_b32 s43, {NODES+2}, s43")
        I(f"s_sub_u32 s{sN}, s42, s43")
        t = lab("bw")
        I(f"s_cmp_lt_u32 s{sN}, s48")
        I(f"s_cbranch_scc1 {t}")
        stamp(e, c, 29)
        I(f"v_mov_b32 v{VT0}, 0")
        spin(e, t, VT1, VT0, BREADY, 4, 45, 44, sleep=1)
        I(f"v_lshrrev_b32 v{VT0}, 2, v{VL16}")
        I(f"ds_read_b32 v{VINFO}, v{VT0} offset:{INFO}")
        I("s_movk_i32 s48, 64")
        I("s_waitcnt lgkmcnt(0)")
        stamp(e, c, 30)
        e.label(t)
        I(f"v_readlane_b32 s42, v{VINFO}, s{sN}")
        e.nop(1)
        I(f"s_lshr_b32 s{sR}, s42, 16")
        I("s_and_b32 s42, s42, 0xffff")
        I(f"s_lshl_b32 s{sA}, s42, 4")
    def off_read(hf):
        I(f"ds_read_b128 v[{AD}:{AD+3}], v{VOR} offset:{OSC+128*hf}")
        I(f"ds_read_b128 v[{AD+4}:{AD+7}], v{VOR} offset:{OSC+128*hf+16}")
    def off_add():
        for i in range(8):
            I(f"v_add_u32 v{AD+i}, v{AD+i}, v{VLOFF}")
    def prep_block():
        r = B
        I(f"v_add_u32 v{VT0}, s{sA}, v{VL16}")
        I(f"ds_read_b128 v[{r}:{r+3}], v{VT0} offset:{RAW}")
        l = lab("nf")
        I(f"s_cmp_gt_u32 s{sR}, 64")
        I(f"s_cbranch_scc1 {l}")
        fetch_issue()
        e.label(l)
        I(f"v_cmp_gt_u32 vcc, s{sR}, v{VLANE}")
        I("s_waitcnt lgkmcnt(0)")
        I(f"v_lshrrev_b32 v{r+11}, 16, v{r+3}")
        I(f"v_lshlrev_b32 v{r+11}, 9, v{r+11}")
        I(f"v_cndmask_b32 v{r+11}, 2.0, v{r+11}, vcc")
        I(f"ds_write_b32 v{VOW}, v{r+11} offset:{OSC}")
        off_read(0)
        I(f"v_cndmask_b32 v{r}, 0, v{r}, vcc")
        I(f"v_cndmask_b32 v{r+1}, 0, v{r+1}, vcc")
        I(f"v_lshlrev_b32 v{r+8}, 16, v{r+2}")
        I(f"v_and_b32 v{r+9}, v{VMASK}, v{r+2}")
        I(f"v_lshlrev_b32 v{r+10}, 16, v{r+3}")
        I(f"v_lshlrev_b32 v{r+4}, 16, v{r}")
        I(f"v_and_b32 v{r+5}, v{VMASK}, v{r}")
        I(f"v_lshlrev_b32 v{r+6}, 16, v{r+1}")
        I(f"v_and_b32 v{r+7}, v{VMASK}, v{r+1}")
        for j in range(3):
            for d in range(4):
                I(f"v_mul_f32 v{r+12+4*j+d}, v{r+4+d}, v{r+8+j}")
        I(f"v_cvt_pk_bf16_f32 v{r+2}, v{r+12}, v{r+13}")
        I(f"v_cvt_pk_bf16_f32 v{r+3}, v{r+14}, v{r+15}")
        for k in range(4):
            I(f"v_cvt_pk_bf16_f32 v{r+24+k}, v{r+16+2*k}, v{r+17+2*k}")
        I(f"ds_write_b128 v{VSCRW}, v[{r}:{r+3}]")
        I(f"ds_write_b128 v{VSCRW}, v[{r+24}:{r+27}] offset:{PL1}")
        I("s_waitcnt lgkmcnt(2)")
        off_add()
    def ld(i):
        if c.x_noload: return
        I(f"buffer_load_dwordx4 v[{LD+4*i}:{LD+4*i+3}], v{AD+i}, s[4:7], s{sH} offen")
    def moves(jj, k16=False):
        for p in range(4):
            d = B + (4 if k16 else 8) * p + 2 * jj
            a, b = LD + 8*jj + (p & 2), LD + 8*jj + 4 + (p & 2)
            I(f"v_pk_mov_b32 v[{d}:{d+1}], v[{a}:{a+1}], v[{b}:{b+1}] op_sel:[{p&1},{p&1}]")
    def loads_partial(done):
        for i in range(7):
            I(f"s_cmp_le_u32 s{sL}, {4*i}")
            I(f"s_cbranch_scc1 {done}")
            ld(i)
    def moves_loads():
        part, done = lab("pp"), lab("pd")
        I("s_waitcnt vmcnt(0)")
        I(f"s_cmp_le_u32 s{sL}, 28")
        I(f"s_cbranch_scc1 {part}")
        for jj in range(4):
            moves(jj)
            ld(2*jj); ld(2*jj+1)
        I(f"s_branch {done}")
        e.label(part)
        for jj in range(4): moves(jj)
        loads_partial(done)
        e.label(done)
    def macs(k16=False):
        for q in range(8):
            d = f"v[{ACC+4*q}:{ACC+4*q+3}]"
            p = q >> 1
            if k16: I(f"v_smfmac_f32_16x16x32_bf16 {d}, v[{A}:{A+1}], v[{B+4*p}:{B+4*p+3}], v{VIDX} cbsz:0 abid:{2*(q&1)}")
            else: I(f"v_smfmac_f32_16x16x64_bf16 {d}, v[{A}:{A+3}], v[{B+8*p}:{B+8*p+7}], v{VIDX} cbsz:0 abid:{q&1}")
    def tr32(hf):
        I(f"ds_read_b64_tr_b16 v[{A}:{A+1}], v{VTRB} offset:{512*hf}")
        I(f"ds_read_b64_tr_b16 v[{A+2}:{A+3}], v{VTRB} offset:{512*hf+16}")
    def tr16(hf):
        I(f"ds_read_b64_tr_b16 v[{A}:{A+1}], v{VTRA} offset:{512*hf}")
    def zero_acc():
        if c.zpk:
            for k in range(0, 32, 2): I(f"v_pk_mov_b32 v[{ACC+k}:{ACC+k+1}], 0, 0")
        else:
            for k in range(32): I(f"v_mov_b32 v{ACC+k}, 0")

    if c.stamps: I("s_mov_b32 s92, 16")
    I(f"v_lshrrev_b32 v{VT0}, 4, v{VLANE}")
    I(f"v_lshrrev_b32 v{VT1}, 5, v{VLANE}")
    I(f"v_mul_u32_u24 v{VT1}, 12, v{VT1}")
    I(f"v_add_u32 v{VT0}, v{VT0}, v{VT1}")
    I(f"v_lshl_add_u32 v{VTRB}, v{VT0}, 4, v{VTRA}")
    I(f"v_mov_b32 v{VIDX}, 0xdddd8888")
    setup_item("L2_g_done")
    prep_block()
    for i in range(8): ld(i)
    zero_acc()
    e.label("L3_A")
    I(f"s_mov_b32 s{sCR}, s{sR}")
    I(f"s_cmp_gt_u32 s{sR}, 32")
    I("s_cbranch_scc0 L3_AN")
    tr32(0)
    off_read(1)
    I(f"s_sub_u32 s{sL}, s{sR}, 32")
    I("s_waitcnt lgkmcnt(0)")
    off_add()
    moves_loads()
    macs()
    I(f"s_sub_u32 s{sCR}, s{sR}, 32")
    I(f"s_cmp_gt_u32 s{sR}, 64")
    I("s_cbranch_scc0 L3_BN")
    tr32(1)
    I(f"s_sub_u32 s{sR}, s{sR}, 64")
    I(f"s_add_u32 s{sA}, s{sA}, 1024")
    I(f"s_mov_b32 s{sL}, s{sR}")
    prep_block()
    moves_loads()
    I("s_waitcnt lgkmcnt(0)")
    macs()
    I("s_branch L3_A")
    for hf, nm in ((0, "AN"), (1, "BN")):
        e.label(f"L3_{nm}")
        I(f"s_cmp_le_u32 s{sCR}, 16")
        I(f"s_cbranch_scc1 L3_{nm}16")
        tr32(hf)
        I("s_branch L3_XN")
        e.label(f"L3_{nm}16")
        tr16(hf)
        if hf == 0: I("s_branch L3_XN")
    e.label("L3_XN")
    I(f"s_mov_b32 s{sCN}, s{sN}")
    I(f"s_mov_b32 s{sCH}, s{sH}")
    I(f"s_mov_b32 s{sNV}, 1")
    setup_item("L3_XN_none")
    I(f"s_mov_b32 s{sL}, s{sR}")
    prep_block()
    I("s_branch L3_XN_go")
    e.label("L3_XN_none")
    I(f"s_mov_b32 s{sNV}, 0")
    I(f"s_mov_b32 s{sL}, 0")
    e.label("L3_XN_go")
    I(f"s_cmp_le_u32 s{sCR}, 16")
    I("s_cbranch_scc1 L3_XN_k16")
    moves_loads()
    I("s_waitcnt lgkmcnt(0)")
    macs()
    I("s_branch L3_XN_epi")
    e.label("L3_XN_k16")
    I("s_waitcnt vmcnt(0)")
    moves(0, True); moves(1, True)
    I(f"s_cmp_le_u32 s{sL}, 28")
    I("s_cbranch_scc1 L3_XN_k16p")
    for i in range(8): ld(i)
    I("s_branch L3_XN_k16d")
    e.label("L3_XN_k16p")
    loads_partial("L3_XN_k16d")
    e.label("L3_XN_k16d")
    I("s_waitcnt lgkmcnt(0)")
    macs(True)
    e.label("L3_XN_epi")
    I(f"s_lshl_b32 s42, s{sCH}, 5")
    I(f"v_add_u32 v{VT0}, s42, v{VWR}")
    for q in range(8):
        I(f"ds_read_b128 v[{B+4*q}:{B+4*q+3}], v{VT0} offset:{q*1024}")
    I(f"s_lshr_b32 s43, s{sCN}, 4")
    I(f"s_lshl_b32 s43, s43, 2")
    I(f"s_cmp_eq_u32 s{sCH}, 0")
    I("s_cbranch_scc1 L3_nowar")
    I(f"v_mov_b32 v{VT1}, s43")
    spin(e, "war", VT0, VT1, GDONE, 4, 45, 44)
    I("s_add_u32 s43, s43, 16")
    e.label("L3_nowar")
    I(f"s_and_b32 s44, s{sCN}, 15")
    I("s_lshl_b32 s44, s44, 4")
    I(f"s_lshl_b32 s45, s{sCN}, 10")
    I(f"s_add_u32 s45, s45, {T}")
    I(f"v_xor_b32 v{VT0}, s44, v{VL16}")
    I(f"v_add_u32 v{VT0}, s45, v{VT0}")
    I(f"v_mov_b32 v{VT1}, s43")
    I("s_waitcnt lgkmcnt(0)")
    for q in range(8):
        I(f"v_mul_f32 v{B+4*q}, v{B+4*q}, v{ACC+4*q}")
    for d in range(1, 4):
        for q in range(8):
            I(f"v_fmac_f32 v{B+4*q}, v{B+4*q+d}, v{ACC+4*q+d}")
    for k in range(4):
        I(f"v_cvt_pk_bf16_f32 v{A+k}, v{B+8*k}, v{B+8*k+4}")
    I(f"ds_write_b128 v{VT0}, v[{A}:{A+3}]")
    I("s_mov_b64 exec, 1")
    I(f"ds_add_u32 v{VT1}, v{VONE} offset:{DONE}")
    I("s_mov_b64 exec, -1")
    zero_acc()
    if c.stamps:
        I("s_memrealtime s[90:91]")
        I("s_waitcnt lgkmcnt(0)")
        I("s_mov_b32 m0, s92")
        I(f"v_writelane_b32 v{STV}, s90, m0")
        I("s_add_u32 s92, s92, 1")
        I("s_min_u32 s92, s92, 23")
    I(f"s_cmp_lg_u32 s{sNV}, 0")
    I("s_cbranch_scc1 L3_A")

HEADER = """; Kernarg (96 bytes, pointers): 0 x(12500,256)bf16  8 rhat(800000,3)bf16  16 e_attr(800000,4)bf16  24 src i32  32 dst i32
"""

def gen_probe(e, c):
    kA, a0, a1, sA, oA, kB, b0, b1, sB, oB = c.probe.split(",")
    kernel_header(e, "eqprobe_kernel")
    I = e.I
    I("s_cmp_ge_u32 s2, 1")
    I("s_cbranch_scc1 LP_end")
    I("s_memrealtime s[20:21]")
    I("s_load_dwordx2 s[4:5], s[0:1], 88")
    I("s_waitcnt lgkmcnt(0)")
    if c.wsoff:
        I(f"s_add_u32 s4, s4, {c.wsoff << 20}")
        I("s_addc_u32 s5, s5, 0")
    srd(e, 8, 4, 32 << 20)
    I(f"v_min_u32 v1, {c.nwg-1}, v0")
    I("v_lshlrev_b32 v1, 11, v1")
    I("v_mov_b32 v10, 0"); I("v_mov_b32 v11, -1"); I("v_mov_b32 v12, 0")
    I("ds_write_b32 v10, v11 offset:0"); I("ds_write_b32 v10, v12 offset:4"); I("ds_write_b32 v10, v11 offset:8"); I("ds_write_b32 v10, v12 offset:12")
    I("s_waitcnt lgkmcnt(0)"); I("s_barrier")
    regs = []
    for (k, w0, w1, sl, off) in ((kA, a0, a1, sA, 0), (kB, b0, b1, sB, 8)):
        if k == "now":
            I(f"v_mov_b32 v{16+len(regs)}, s20"); regs.append(off); continue
        I(f"s_mov_b32 s12, {STAMPOFF}")
        for w in range(int(w0), int(w1)):
            I(f"buffer_load_dword v{16+len(regs)}, v1, s[8:11], s12 offen offset:{w*128 + int(sl)*4}")
            regs.append(off)
    I("s_waitcnt vmcnt(0)")
    for off, op in ((0, oA), (8, oB)):
        idx = [n for n, o in enumerate(regs) if o == off]
        for n in idx[1:]:
            I(f"v_{op}_u32 v{16+idx[0]}, v{16+idx[0]}, v{16+n}")
        I(f"ds_{op}_u32 v10, v{16+idx[0]} offset:{off + (0 if op == 'min' else 4)}")
    I("s_waitcnt lgkmcnt(0)"); I("s_barrier")
    I(f"ds_read_b32 v3, v10 offset:{0 if oA == 'min' else 4}")
    I(f"ds_read_b32 v4, v10 offset:{8 if oB == 'min' else 12}")
    I("s_waitcnt lgkmcnt(0)")
    I("v_sub_u32 v3, v3, v4")
    I("v_min_u32 v3, 0x2000, v3")
    I("v_readfirstlane_b32 s14, v3")
    I("s_memrealtime s[16:17]")
    I("s_mul_i32 s14, s14, 10")
    I("s_waitcnt lgkmcnt(0)")
    e.label("LP_spin")
    I("s_memrealtime s[18:19]")
    I("s_waitcnt lgkmcnt(0)")
    I("s_sub_u32 s18, s18, s16")
    I("s_cmp_lt_u32 s18, s14")
    I("s_cbranch_scc1 LP_spin")
    e.label("LP_end")
    I("s_endpgm")
    return "eqprobe_kernel", 64, 32

def generate(c):
    e = Emitter()
    e.raw('.amdgcn_target "amdgcn-amd-amdhsa--gfx950"')
    e.raw(".text")
    k = gen_main(e, c)
    head = HEADER + f"; @launch grid=({c.nwg},1,1) block=(1024,1,1) lds={c.lds}\n"
    tail = '.section .rodata,"a"\n.p2align 6\n' + kd(*k)
    if c.probe:
        kp = gen_probe(e, c)
        head = HEADER + f"; @launch kernel={KNAME} grid=({c.nwg},1,1) block=(1024,1,1) lds={c.lds}\n; @launch kernel=eqprobe_kernel grid=(1,1,1) block=(256,1,1) lds=64\n"
        tail += ".p2align 6\n" + kd(*kp)
    return head + e.text() + tail

if __name__ == "__main__":
    c = Cfg()
    out = sys.argv[1]
    for kv in sys.argv[2:]:
        k, v = kv.split("=", 1)
        old = getattr(c, k)
        setattr(c, k, type(old)(int(v)) if isinstance(old, (bool, int)) else v.replace("+", " "))
    open(out, "w").write(generate(c))
```

```python
import sys
from emit import Emitter

N, E = 12500, 800000
NODES, HN = 50, 25
NCH = 250
CSTRIDE = 70784
PAYOFF, TABOFF, KEYOFF = 0, 51200, 67584
KSTAGE = 51200
WSBYTES = NCH * CSTRIDE
KIN = 20
KNAME = "gather_scatter__tensor_product_equiv_equiformer__graph_kernel"
STAMPOFF = 24 << 20

class Cfg:
    nwg = 250
    st_flags = "sc1"
    ld_flags = "nt"
    rec_flags = "sc1"
    out_flags = "sc1"
    pfx_lines = 64
    pfx0_lines = 96
    stamps = False
    cap = 1888
    x_noperm = 0
    x_noexp = 0
    x_nomfma = 0
    x_noload = 0
    x_samehalf = 0
    x_nobload = 0
    codepf = 26
    tlbpf = 0
    codeearly = 0
    sleep = 12
    psleep = 2
    probe = ""
    addtid = 0
    split = 0
    static1 = 1
    firstfast = 1
    prefin = 1
    wsoff = 0
    bdel = 0
    bdel2 = 0
    cpfs = 1
    cpfstep = 64
    prio_pro = 0
    totlate = 0
    mallpf = 0
    mallpos = 0
    nop2 = 0
    pdelay = 0
    ppipe = 0
    pgap = 8
    wrlds = 0
    wideout = 1
    out_early = None
    paypos = 2
    pfwait = 0
    smf = 0
    zpk = 1
    splitw = 0
    cpfwg = 32
    wlate = 0
    coal = 1
    pf1_tile = -1
    pf1_lines = 256
    prio_g = 0
    prio_m = 0
    ld2_flags = None
    nowait = 1
    fastlast = 1
    pfx2_lines = 0
    pfx2_pos = 0
    oobtail = 1
    bearly = 1
    tidw3 = "0x00800000"

def srd(e, d, b, nbytes, w1=None, w3="0x20000"):
    e.I(f"s_mov_b32 s{d}, s{b}")
    if w1: e.I(f"s_or_b32 s{d+1}, s{b+1}, {w1}")
    else: e.I(f"s_mov_b32 s{d+1}, s{b+1}")
    e.I(f"s_mov_b32 s{d+2}, {nbytes}")
    e.I(f"s_mov_b32 s{d+3}, {w3}")

def scan64(e, v):
    for sh in (1, 2, 4, 8):
        e.I(f"v_add_u32_dpp v{v}, v{v}, v{v} row_shr:{sh} row_mask:0xf bank_mask:0xf")
    e.I(f"v_add_u32_dpp v{v}, v{v}, v{v} row_bcast:15 row_mask:0xa bank_mask:0xf")
    e.I(f"v_add_u32_dpp v{v}, v{v}, v{v} row_bcast:31 row_mask:0xc bank_mask:0xf")

def prefetch_x(e, nlines, vt, vtid, nthreads, slice_s, half, srdx, first=0, lds=False):
    if nlines <= 0: return 0
    e.I(f"s_mul_i32 s46, s{slice_s}, 782")
    if first: e.I(f"s_add_u32 s46, s46, {first}")
    e.I(f"s_mov_b32 s47, {nlines}")
    it = (nlines + nthreads - 1) // nthreads
    for k in range(it):
        e.I(f"v_add_u32 v{vt}, {k*nthreads}, v{vtid}")
        e.I(f"v_cmp_gt_u32 vcc, s47, v{vt}")
        e.I(f"v_add_u32 v{vt}, s46, v{vt}")
        e.I(f"v_and_b32 v{vt+1}, 1, v{vt}")
        e.I(f"v_lshrrev_b32 v{vt}, 1, v{vt}")
        e.I(f"v_lshlrev_b32 v{vt}, 9, v{vt}")
        e.I(f"v_lshl_add_u32 v{vt}, v{vt+1}, 7, v{vt}")
        e.I(f"v_cndmask_b32 v{vt}, 2.0, v{vt}, vcc")
        if lds:
            if half: e.I(f"v_add_u32 v{vt}, 256, v{vt}")
            e.I(f"buffer_load_dword v{vt}, s[{srdx}:{srdx+3}], 0 offen lds")
        else:
            e.I(f"buffer_load_dword v{vt+2}, v{vt}, s[{srdx}:{srdx+3}], 0 offen offset:{half*256}")
    return it

STV, TIDV = 127, 126
def stamp(e, c, slot, ins="s_memrealtime"):
    if not c.stamps: return
    e.I(f"{ins} s[90:91]")
    e.I("s_waitcnt lgkmcnt(0)")
    e.I(f"v_writelane_b32 v{STV}, s90, {slot}")

def stamp_store(e, c, vtmp):
    if not c.stamps: return
    e.I(f"v_lshrrev_b32 v{vtmp}, 6, v{TIDV}")
    e.I(f"s_lshl_b32 s90, s2, 4")
    e.I(f"v_add_u32 v{vtmp}, s90, v{vtmp}")
    e.I(f"v_lshlrev_b32 v{vtmp}, 7, v{vtmp}")
    e.I(f"v_and_b32 v{vtmp+1}, 63, v{TIDV}")
    e.I(f"v_lshl_add_u32 v{vtmp}, v{vtmp+1}, 2, v{vtmp}")
    e.I(f"v_cmp_gt_u32 vcc, 32, v{vtmp+1}")
    e.I(f"v_cndmask_b32 v{vtmp}, 2.0, v{vtmp}, vcc")
    e.I(f"s_mov_b32 s90, {STAMPOFF}")
    e.I(f"buffer_store_dword v{STV}, v{vtmp}, s[8:11], s90 offen")

def kernel_header(e, name):
    e.raw(f".globl {name}")
    e.raw(".p2align 8")
    e.raw(f".type {name},@function")
    e.raw(f"{name}:")
    e.hist = []

def kd(name, nv, ns):
    return f""".amdhsa_kernel {name}
  .amdhsa_next_free_vgpr {nv}
  .amdhsa_next_free_sgpr {ns}
  .amdhsa_accum_offset {(nv+3)//4*4}
  .amdhsa_group_segment_fixed_size 0
  .amdhsa_kernarg_size 96
  .amdhsa_user_sgpr_count 2
  .amdhsa_user_sgpr_kernarg_segment_ptr 1
  .amdhsa_system_sgpr_workgroup_id_x 1
  .amdhsa_float_denorm_mode_32 3
.end_amdhsa_kernel
"""

def path_of(jp, blk):
    if blk == 0: return (0, 0, 1) if jp == 0 else (2, jp, 1)
    k = blk - 1
    if jp == 0: return (3, 1 + k, 1)
    j = jp - 1
    if j == k: return (1, 0, 1)
    i = 3 - j - k
    return (4, 1 + i, 1 if k == (j + 1) % 3 else -1)

class Lay: pass

def spin(e, tag, vdst, vaddr, off, need, scnt, sval, sleep=None, bound="0x400000"):
    I = e.I
    I(f"s_mov_b32 s{scnt}, 0")
    e.label(f"L_sp{tag}")
    I(f"ds_read_b32 v{vdst}, v{vaddr} offset:{off}")
    I("s_waitcnt lgkmcnt(0)")
    I(f"v_readfirstlane_b32 s{sval}, v{vdst}")
    I(f"s_add_u32 s{scnt}, s{scnt}, 1")
    I(f"s_cmp_ge_u32 s{sval}, {need}")
    I(f"s_cbranch_scc1 L_sp{tag}_ok")
    if sleep: I(f"s_sleep {sleep}")
    I(f"s_cmp_lt_u32 s{scnt}, {bound}")
    I(f"s_cbranch_scc1 L_sp{tag}")
    e.label(f"L_sp{tag}_ok")

def tag_bad(e, dst, r, tmp, odd):
    I = e.I
    I(f"v_xor_b32 v{tmp}, s87, v{r}")
    I(f"v_xor_b32 v{dst}, s86, v{r+1}")
    I(f"v_lshrrev_b32 v{tmp}, 24, v{tmp}")
    I(f"v_or_b32 v{dst}, v{dst}, v{tmp}")
    I(f"v_xor_b32 v{tmp}, s3, v{r+3}")
    I(f"v_lshrrev_b32 v{tmp}, 12, v{tmp}")
    I(f"v_cndmask_b32 v{dst}, v{dst}, v{tmp}, {odd}")

def gen_main(e, c):
    L = Lay()
    CAP = c.cap
    NWG = c.nwg
    BOFF = CAP + 64
    HIST, HIST2, CUR2, CNT = 0, 256, 512, 768
    NEXT, DONE, GDONE, BSYNC, BREADY, TOTB = CNT, CNT + 16, CNT + 64, CNT + 96, CNT + 100, CNT + 104
    OUTW, OUTR, BST = CNT + 112, CNT + 128, CNT + 108
    HISTB, HIST2B, CUR2B, INFO, NONCE = 1024, 1280, 1536, 1792, 2048
    RAW = 2176
    T = (RAW + 2 * BOFF * 16 + 255) // 256 * 256
    WRAD = T + NODES * 1024
    SCR = WRAD + 16384
    H1 = WRAD
    TI = SCR
    CEB = RAW + BOFF * 16
    SSTR, PL1, OSC = 2368, (1040 if c.smf else 1056), 2080
    lds = max(SCR + 12 * SSTR, T + 64 * 1024)
    assert lds <= 163840 and 2 * BOFF >= 3200 + 64, lds
    c.lds = lds
    kernel_header(e, KNAME)
    I = e.I
    wsbytes = (32 << 20) if c.stamps else WSBYTES
    sf, rf, lf = c.st_flags, c.rec_flags, c.ld_flags
    ODD = "s[26:27]"
    I(f"s_cmp_ge_u32 s2, {NWG}")
    I("s_cbranch_scc1 L_end")
    if c.stamps:
        I(f"v_mov_b32 v{STV}, 0")
        I(f"v_mov_b32 v{TIDV}, v0")
    stamp(e, c, 0)
    stamp(e, c, 26, "s_memtime")
    I("s_load_dwordx8 s[32:39], s[0:1], 0")
    I("s_load_dwordx8 s[40:47], s[0:1], 32")
    if NWG > NCH:
        I(f"s_cmp_lt_u32 s2, {NCH}")
        I("s_cselect_b32 s51, 800, 0")
    else:
        I("s_movk_i32 s51, 800")
    if c.coal:
        I("s_mul_i32 s48, s2, 1600")
        I("v_add_u32 v3, s48, v0")
        I("v_cmp_gt_u32 vcc, s51, v0")
        I("v_lshlrev_b32 v28, 3, v3")
        I("v_lshlrev_b32 v30, 4, v3")
        I("v_mul_u32_u24 v3, 12, v3")
        I("v_add_u32 v29, 6400, v28")
        if c.paypos:
            I("v_add_u32 v31, 12800, v30")
            I("v_add_u32 v27, 9600, v3")
        I("s_and_saveexec_b64 s[26:27], vcc")
        I("s_cbranch_execz L1_noload")
        I("s_waitcnt lgkmcnt(0)")
        I(f"global_load_dwordx2 v[4:5], v28, s[40:41] {lf}")
        I(f"global_load_dwordx2 v[6:7], v29, s[40:41] {lf}")
        if not c.paypos:
            I("v_add_u32 v31, 12800, v30")
            I("v_add_u32 v27, 9600, v3")
        lds_ = [f"global_load_dwordx2 v[8:9], v28, s[38:39] {lf}", f"global_load_dwordx2 v[10:11], v29, s[38:39] {lf}",
                f"global_load_dwordx4 v[12:15], v30, s[36:37] {lf}", f"global_load_dwordx4 v[16:19], v31, s[36:37] {lf}",
                f"global_load_dwordx3 v[20:22], v3, s[34:35] {lf}", f"global_load_dwordx3 v[24:26], v27, s[34:35] {lf}"]
        def pay_loads():
            for k in ((0, 2, 4, 1, 3, 5) if c.splitw == 2 else range(6)): I(lds_[k])
        if c.paypos == 0: pay_loads()
    else:
        I("s_mul_i32 s48, s2, 800")
        I("v_add_u32 v3, s48, v0")
        I("v_cmp_gt_u32 vcc, s51, v0")
        I("v_lshlrev_b32 v26, 4, v3")
        I("v_lshlrev_b32 v27, 5, v3")
        I("v_mul_u32_u24 v3, 24, v3")
        I("s_and_saveexec_b64 s[26:27], vcc")
        I("s_cbranch_execz L1_noload")
        I("s_waitcnt lgkmcnt(0)")
        l2 = lf if c.ld2_flags is None else c.ld2_flags
        I(f"global_load_dwordx4 v[4:7], v26, s[40:41] {l2}")
        I(f"global_load_dwordx4 v[8:11], v26, s[38:39] {l2}")
        I(f"global_load_dwordx4 v[12:15], v27, s[36:37] {lf}")
        I(f"global_load_dwordx4 v[16:19], v27, s[36:37] offset:16 {lf}")
        I(f"global_load_dwordx4 v[20:23], v3, s[34:35] {lf}")
        I(f"global_load_dwordx2 v[24:25], v3, s[34:35] offset:16 {lf}")
    e.label("L1_noload")
    I("s_mov_b64 exec, -1")
    if c.paypos == 3:
        I(f"v_lshlrev_b32 v40, 1, v0")
        I(f"v_and_b32 v40, -4, v40")
        I(f"v_add_u32 v40, {H1}, v40")
        I("v_mov_b32 v41, 0")
        I("ds_write_b32 v40, v41")
        I("s_waitcnt lgkmcnt(0)")
        I("s_barrier")
        I("s_and_saveexec_b64 s[26:27], vcc")
        I("s_cbranch_execz L1_noload2")
        pay_loads()
        e.label("L1_noload2")
        I("s_mov_b64 exec, -1")
    if c.codepf and c.codeearly:
        I("s_getpc_b64 s[52:53]")
        I(f"s_mov_b32 s54, {c.codepf*1024}")
        I("s_mov_b32 s55, 0x20000")
        I("v_subrev_u32 v72, 768, v0")
        I("v_lshlrev_b32 v72, 7, v72")
        I("s_cmp_lg_u64 vcc, -1")
        I("s_cbranch_scc0 L1_nocpf")
        I("buffer_load_dword v73, v72, s[52:55], 0 offen")
        e.label("L1_nocpf")
    I("s_load_dwordx4 s[80:83], s[0:1], 72")
    I("s_load_dwordx2 s[84:85], s[0:1], 88")
    I("v_lshlrev_b32 v1, 4, v0")
    I("v_lshlrev_b32 v2, 5, v0")
    I("v_readfirstlane_b32 s21, v0")
    I("s_lshr_b32 s21, s21, 6")
    I("s_waitcnt lgkmcnt(0)")
    if c.addtid:
        srd(e, 4, 32, N * 512, w1=f"{16 << 16}", w3=c.tidw3)
    else:
        srd(e, 4, 32, N * 512)
    if c.wsoff:
        I(f"s_add_u32 s84, s84, {c.wsoff << 20}")
        I("s_addc_u32 s85, s85, 0")
    srd(e, 8, 84, wsbytes)
    srd(e, 12, 80, N * 512)
    srd(e, 16, 42, 2560)
    srd(e, 68, 44, 16384)
    srd(e, 72, 46, 24576)
    srd(e, 76, 82, 256)
    I("s_and_b32 s20, s2, 7")
    I("s_lshr_b32 s31, s2, 3")
    if NWG == 250:
        I("s_min_u32 s22, s20, 2")
        I("s_mul_i32 s20, s20, 31")
        I("s_add_u32 s20, s20, s22")
    else:
        I("s_lshl_b32 s20, s20, 5")
    I("s_add_u32 s20, s20, s31")
    I("s_mov_b32 s22, 0")
    I(f"s_movk_i32 s23, {NCH}")
    I("s_mov_b32 s24, 1")
    I("s_mov_b32 s26, 0xaaaaaaaa")
    I("s_mov_b32 s27, 0xaaaaaaaa")
    I("s_mov_b32 s28, 0x05040100")
    I("s_mov_b32 s29, 0x07060302")
    I("s_mov_b32 s30, 0xffff0000")
    I(f"s_mul_i32 s51, s2, {CSTRIDE}")
    I("s_cmp_ge_u32 s21, 13")
    I("s_cbranch_scc1 L1_aux")
    if c.paypos == 1:
        I("s_mov_b64 exec, vcc")
        pay_loads()
        I("s_mov_b64 exec, -1")
    I(f"s_mov_b32 s46, {H1}")
    if c.paypos != 3:
        I("v_lshl_add_u32 v40, v0, 2, s46")
        I("v_mov_b32 v41, 0")
    I("v_mov_b32 v42, 1")
    I(f"s_movk_i32 s49, {RAW}")
    I("s_mov_b32 s50, 0x05040302")
    I(f"s_mov_b32 s45, {(TI + 8 - 8*H1) & 0xffffffff}")
    if NWG == 250:
        I("s_mov_b32 s48, -25")
        I("s_movk_i32 s47, 249")
    else:
        I("s_movk_i32 s47, 6249")
        I("s_movk_i32 s48, -6250")
        I("s_mov_b32 s44, 1600210")
        I("v_mov_b32 v43, 65532")
    if c.paypos != 3:
        I("s_cmp_ge_u32 s21, 8")
        I("s_cbranch_scc1 L1_nz")
        I("ds_write_b32 v40, v41")
        I("s_waitcnt lgkmcnt(0)")
        e.label("L1_nz")
        I("s_barrier")
    I("s_and_b64 exec, exec, vcc")
    if c.paypos == 2: pay_loads()
    I(f"s_waitcnt vmcnt({6 if c.coal else 5})")
    stamp(e, c, 1)
    R4 = range(4)
    if NWG == 250:
        for i in R4: I(f"v_mul_u32_u24 v{44+i}, 0x147b, v{4+i}")
        for i in R4: I(f"v_lshrrev_b32 v{44+i}, 17, v{44+i}")
        for i in R4: I(f"v_cmp_lt_u32 s[{32+2*i}:{33+2*i}], s47, v{44+i}")
        for i in R4: I(f"v_cndmask_b32 v{36+i}, 0, 1, s[{32+2*i}:{33+2*i}]")
        for i in R4:
            I(f"v_sub_u32 v{48+i}, v{44+i}, v{36+i}")
            I(f"v_mad_u32_u24 v{44+i}, v{36+i}, 6, v{44+i}")
        for i in R4:
            I(f"v_mad_i32_i24 v{4+i}, v{48+i}, s48, v{4+i}")
            I(f"v_lshl_add_u32 v{44+i}, v{44+i}, 2, s46")
    else:
        for i in R4: I(f"v_cmp_lt_u32 s[{32+2*i}:{33+2*i}], s47, v{4+i}")
        for i in R4: I(f"v_cndmask_b32 v{36+i}, 0, 1, s[{32+2*i}:{33+2*i}]")
        for i in R4: I(f"v_mad_i32_i24 v{4+i}, v{36+i}, s48, v{4+i}")
        for i in R4: I(f"v_mul_u32_u24 v{44+i}, 0xa7c, v{4+i}")
        for i in R4: I(f"v_lshrrev_b32 v{44+i}, 16, v{44+i}")
        for i in R4: I(f"v_mad_u32_u24 v{48+i}, v{44+i}, s44, v43")
        for i in R4:
            I(f"v_lshrrev_b32 v{48+i}, 16, v{48+i}")
            I(f"v_mad_u32_u24 v{4+i}, v{36+i}, 25, v{4+i}")
        for i in R4:
            I(f"v_sub_u32 v{4+i}, v{4+i}, v{48+i}")
            I(f"v_lshl_add_u32 v{44+i}, v{36+i}, 8, v{44+i}")
        for i in R4: I(f"v_lshl_add_u32 v{44+i}, v{44+i}, 2, s46")
    for i in R4: I(f"ds_add_rtn_u32 v{36+i}, v{44+i}, v42")
    for i in R4: I(f"v_lshl_add_u32 v{48+i}, v{44+i}, 3, s45")
    for i in R4: I(f"v_lshlrev_b32 v{4+i}, 2, v{4+i}")
    I("s_waitcnt lgkmcnt(0)")
    I("s_barrier")
    for i in R4: I(f"v_min_u32 v{28+i}, {KIN}, v{36+i}")
    for i in R4: I(f"v_add_u32 v{48+i}, v{48+i}, v{28+i}")
    I("s_cmp_eq_u32 s21, 0")
    I("s_cbranch_scc1 L1_scan")
    for i in R4: I(f"ds_write_b8 v{48+i}, v{4+i}")
    I("s_branch L1_noscan")
    e.label("L1_scan")
    I("v_add_u32 v60, s46, v2")
    I("ds_read_b128 v[52:55], v60")
    I("ds_read_b128 v[56:59], v60 offset:16")
    I("s_waitcnt lgkmcnt(0)")
    I("v_mov_b32 v64, 0")
    I("v_mov_b32 v65, v52")
    for k in range(2, 8):
        I(f"v_add_u32 v{64+k}, v{63+k}, v{51+k}")
    I("v_add_u32 v61, v71, v59")
    I("v_max3_u32 v63, v52, v53, v54")
    I("v_max3_u32 v63, v63, v55, v56")
    I("v_max3_u32 v63, v63, v57, v58")
    I("v_max_u32 v63, v63, v59")
    I(f"v_cmp_lt_u32 s[42:43], {KIN}, v63")
    I("v_mov_b32 v62, v61")
    scan64(e, 62)
    I("v_sub_u32 v62, v62, v61")
    for k in range(8):
        I(f"v_add_u32 v{64+k}, v{64+k}, v62")
    I("ds_write_b128 v60, v[64:67] offset:2048")
    I("ds_write_b128 v60, v[68:71] offset:2064")
    I("s_cmp_lg_u64 s[42:43], 0")
    I("s_cselect_b32 s42, 1, 0")
    I("v_mov_b32 v63, s42")
    I(f"ds_write_b32 v41, v63 offset:{NONCE+8}")
    for i in R4: I(f"ds_write_b8 v{48+i}, v{4+i}")
    I("s_waitcnt lgkmcnt(4)")
    e.label("L1_noscan")
    I("s_barrier")
    stamp(e, c, 8)
    for i in R4: I(f"ds_read_b32 v{44+i}, v{44+i} offset:2048")
    I(f"ds_read_b32 v28, v41 offset:{NONCE+8}")
    I("s_waitcnt lgkmcnt(0)")
    I("v_readfirstlane_b32 s42, v28")
    for i in R4:
        I(f"v_add_u32 v{36+i}, v{36+i}, v{44+i}")
        I(f"v_lshl_add_u32 v{44+i}, v{36+i}, 4, s49")
    I("s_cmp_eq_u32 s42, 0")
    I("s_cbranch_scc1 L1_nokeys")
    for i in R4:
        I(f"ds_write_b8 v{36+i}, v{4+i} offset:{RAW+KSTAGE}")
    e.label("L1_nokeys")
    if not c.splitw:
        r3 = 24 if c.coal else 23
        if c.stamps: I("s_waitcnt vmcnt(0)")
        stamp(e, c, 31)
        I("s_waitcnt vmcnt(1)")
        I("v_mov_b32 v28, v20")
        I("v_perm_b32 v29, v8, v21, s28")
        I("ds_write2_b64 v44, v[12:13], v[28:29] offset0:0 offset1:1")
        I("v_alignbit_b32 v30, v22, v21, 16")
        I("v_perm_b32 v31, v9, v22, s50")
        I("ds_write2_b64 v45, v[14:15], v[30:31] offset0:0 offset1:1")
        I("s_waitcnt vmcnt(0)")
        stamp(e, c, 2)
        I(f"v_mov_b32 v32, v{r3}")
        I(f"v_perm_b32 v33, v10, v{r3+1}, s28")
        I("ds_write2_b64 v46, v[16:17], v[32:33] offset0:0 offset1:1")
        I(f"v_alignbit_b32 v34, v{r3+2}, v{r3+1}, 16")
        I(f"v_perm_b32 v35, v11, v{r3+2}, s50")
        I("ds_write2_b64 v47, v[18:19], v[34:35] offset0:0 offset1:1")
    elif c.splitw == 2:
        I("s_waitcnt vmcnt(3)")
        I("v_mov_b32 v28, v12"); I("v_mov_b32 v29, v13"); I("v_mov_b32 v30, v20")
        I("v_perm_b32 v31, v8, v21, s28")
        I("ds_write_b128 v44, v[28:31]")
        I("v_mov_b32 v12, v14"); I("v_mov_b32 v13, v15")
        I("v_alignbit_b32 v14, v22, v21, 16")
        I("v_perm_b32 v15, v9, v22, s50")
        I("ds_write_b128 v45, v[12:15]")
        I("s_waitcnt vmcnt(0)")
        stamp(e, c, 2)
        I("v_mov_b32 v32, v16"); I("v_mov_b32 v33, v17"); I("v_mov_b32 v34, v24")
        I("v_perm_b32 v35, v10, v25, s28")
        I("ds_write_b128 v46, v[32:35]")
        I("v_mov_b32 v16, v18"); I("v_mov_b32 v17, v19")
        I("v_alignbit_b32 v18, v26, v25, 16")
        I("v_perm_b32 v19, v11, v26, s50")
        I("ds_write_b128 v47, v[16:19]")
    else:
        I("s_waitcnt vmcnt(2)")
        for i in R4:
            I(f"ds_write_b64 v{44+i}, v[{12+2*i}:{13+2*i}]")
        I("s_waitcnt vmcnt(1)")
        I("v_mov_b32 v28, v20")
        I("v_perm_b32 v29, v8, v21, s28")
        I("ds_write_b64 v44, v[28:29] offset:8")
        I("v_alignbit_b32 v30, v22, v21, 16")
        I("v_perm_b32 v31, v9, v22, s50")
        I("ds_write_b64 v45, v[30:31] offset:8")
        I("s_waitcnt vmcnt(0)")
        stamp(e, c, 2)
        r3 = 24 if c.coal else 23
        I(f"v_mov_b32 v32, v{r3}")
        I(f"v_perm_b32 v33, v10, v{r3+1}, s28")
        I("ds_write_b64 v46, v[32:33] offset:8")
        I(f"v_alignbit_b32 v34, v{r3+2}, v{r3+1}, 16")
        I(f"v_perm_b32 v35, v11, v{r3+2}, s50")
        I("ds_write_b64 v47, v[34:35] offset:8")
    I("s_mov_b64 exec, -1")
    I("s_waitcnt lgkmcnt(0)")
    I("s_branch L1_copy")
    e.label("L1_aux")
    I("v_subrev_u32 v64, 832, v0")
    I("v_lshlrev_b32 v65, 4, v64")
    def mall_touch():
        if c.mallpf == 1:
            I("s_mul_i32 s46, s2, 50")
            I("v_lshrrev_b32 v60, 1, v64")
            I("v_cmp_gt_u32 vcc, 50, v60")
            I("v_add_u32 v60, s46, v60")
            I("v_lshlrev_b32 v60, 9, v60")
            I("v_and_b32 v61, 1, v64")
            I("v_lshl_add_u32 v60, v61, 7, v60")
            I("v_cndmask_b32 v60, 2.0, v60, vcc")
            I("buffer_load_dword v62, v60, s[4:7], 0 offen offset:256")
        elif c.mallpf == 2:
            I("s_mul_i32 s46, s2, 25600")
            I("v_lshlrev_b32 v60, 7, v64")
            I("buffer_load_dword v62, v60, s[4:7], s46 offen")
    prefetch_x(e, c.pfx0_lines, 60, 64, 192, 31, 0, 4)
    if c.mallpos == 0: mall_touch()
    if c.tlbpf:
        I("v_and_b32 v74, 63, v0")
        I(f"s_mov_b32 s42, {WSBYTES // 64 // 128 * 128}")
        I("v_mul_u32_u24 v75, s42, v74")
        I(f"s_mov_b32 s42, {N * 512 // 64 // 128 * 128}")
        I("v_mul_u32_u24 v74, s42, v74")
        I("s_cmp_lg_u32 s21, 14")
        I("s_cbranch_scc1 L1_notlb")
        if c.tlbpf & 1: I("buffer_load_dword v76, v75, s[8:11], 0 offen")
        if c.tlbpf & 2: I("buffer_load_dword v77, v74, s[4:7], 0 offen")
        if c.tlbpf & 4: I("buffer_load_dword v78, v74, s[12:15], 0 offen")
        e.label("L1_notlb")
    if c.codepf and c.cpfs:
        I("s_getpc_b64 s[40:41]")
        e.label("L_cpf")
        I("s_mul_i32 s42, s31, 3")
        I("s_add_u32 s42, s42, s21")
        I("s_sub_u32 s42, s42, 13")
        I("s_lshl_b32 s42, s42, 8")
        for k in range(256 // c.cpfstep):
            I("s_min_u32 s43, s42, L_codeend-L_cpf-4")
            I(f"s_load_dword s{94 + (k & 1)}, s[40:41], s43")
            if k < 256 // c.cpfstep - 1: I(f"s_add_u32 s42, s42, {c.cpfstep}")
    else:
        if c.codepf and not c.codeearly:
            I(f"s_cmp_ge_u32 s2, {c.cpfwg}")
            I("s_cbranch_scc1 L1_nocpf")
            I("s_getpc_b64 s[40:41]")
            e.label("L_cpf")
            I("s_mov_b32 s42, L_codeend-L_cpf")
            I("s_mov_b32 s43, 0x20000")
            I("v_lshlrev_b32 v72, 7, v64")
            I("buffer_load_dword v73, v72, s[40:43], 0 offen")
            e.label("L1_nocpf")
    I("s_cmp_lg_u32 s21, 15")
    I("s_cbranch_scc1 L1_notag")
    I("s_cmp_lg_u32 s2, 0")
    I("s_cbranch_scc1 L1_notag")
    I("s_memrealtime s[44:45]")
    I("s_waitcnt lgkmcnt(0)")
    I("s_and_b32 s45, s45, 0x7f")
    I("s_or_b32 s45, s45, 0x80")
    I("s_lshl_b32 s45, s45, 24")
    I("v_mov_b32 v68, s44")
    I("v_mov_b32 v69, s45")
    I("s_mov_b64 exec, 1")
    I("buffer_store_dwordx2 v[68:69], off, s[76:79], 0 sc1")
    I("s_mov_b64 exec, -1")
    e.label("L1_notag")
    I("s_cmp_lg_u32 s21, 13")
    I("s_cbranch_scc1 L1_nozero")
    for k in range(4): I(f"v_mov_b32 v{4+k}, 0")
    I("ds_write_b128 v65, v[4:7]")
    I("ds_write_b128 v65, v[4:7] offset:1024")
    e.label("L1_nozero")
    if c.paypos != 3: I("s_barrier")
    I("s_barrier"); I("s_barrier")
    I("s_cmp_lg_u32 s21, 15")
    I("s_cbranch_scc1 L1_notag2")
    I("s_mov_b32 s44, 0")
    e.label("L1_tagpoll")
    I("buffer_load_dwordx2 v[68:69], off, s[76:79], 0 sc1")
    I("s_add_u32 s44, s44, 1")
    I("s_waitcnt vmcnt(0)")
    I("v_readfirstlane_b32 s45, v69")
    e.nop(1)
    I("s_cmp_lg_u32 s45, 0")
    I("s_cbranch_scc1 L1_tagok")
    I("s_cmp_lt_u32 s44, 0x100000")
    I("s_cbranch_scc1 L1_tagpoll")
    e.label("L1_tagok")
    I("v_mov_b32 v70, 0")
    I("s_mov_b64 exec, 1")
    I(f"ds_write_b64 v70, v[68:69] offset:{NONCE}")
    I("s_mov_b64 exec, -1")
    e.label("L1_notag2")
    def w_loads():
        for k in range(8):
            I(f"s_movk_i32 s46, {k*3072}")
            I(f"buffer_load_dwordx4 v[{28+4*k}:{31+4*k}], v65, s[72:75], s46 offen")
        for k in range(6):
            I(f"s_movk_i32 s46, {k*3072}")
            I(f"buffer_load_dwordx4 v[{72+4*k}:{75+4*k}], v65, s[68:71], s46 offen")
    if not c.wlate: w_loads()
    if c.wrlds: I("buffer_load_dwordx4 v[68:71], v65, s[16:19], 0 offen")
    if c.mallpos == 1: mall_touch()
    if c.pfwait: I("s_waitcnt vmcnt(0)")
    prefetch_x(e, c.pfx_lines, 60, 64, 192, 31, 0, 4, c.pfx0_lines)
    I("s_waitcnt lgkmcnt(0)")
    e.flush()
    e.label("L1_copy")
    I("s_barrier")
    stamp(e, c, 3)
    I(f"v_mov_b32 v25, {H1+2048+1024}")
    I("ds_read_b32 v99, v25")
    I(f"ds_read_b128 v[8:11], v1 offset:{RAW}")
    I(f"ds_read_b128 v[12:15], v1 offset:{RAW+16384}")
    I("v_mov_b32 v25, 0")
    I(f"ds_read_b96 v[96:98], v25 offset:{NONCE}")
    I(f"v_add_u32 v25, {TI}, v1")
    I(f"ds_read_b128 v[16:19], v1 offset:{RAW+32768}")
    I(f"ds_read_b128 v[20:23], v1 offset:{RAW+49152}")
    I("ds_read_b128 v[100:103], v25")
    I("v_lshrrev_b32 v25, 1, v0")
    I("v_lshlrev_b32 v25, 2, v25")
    I(f"v_add_u32 v25, {H1}, v25")
    I("ds_read2st64_b32 v[104:105], v25 offset0:0 offset1:8")
    I("ds_read_b32 v106, v25 offset:1024")
    I("v_add_u32 v2, 16384, v1")
    I("v_add_u32 v25, 1024, v0")
    I("s_waitcnt lgkmcnt(8)")
    I("v_add_u32 v99, 7, v99")
    I("v_and_b32 v99, -8, v99")
    I("v_cmp_lt_u32 s[52:53], v0, v99")
    I("v_cmp_lt_u32 s[54:55], v25, v99")
    I("v_readfirstlane_b32 s88, v99")
    I("v_add_u32 v3, 32768, v1")
    I("v_add_u32 v24, 49152, v1")
    I("s_mov_b64 exec, s[52:53]")
    I("s_waitcnt lgkmcnt(7)")
    I(f"buffer_store_dwordx4 v[8:11], v1, s[8:11], s51 offen {sf}")
    I("s_mov_b64 exec, s[54:55]")
    I("s_cbranch_execz L1_nop1")
    I("s_waitcnt lgkmcnt(6)")
    I(f"buffer_store_dwordx4 v[12:15], v2, s[8:11], s51 offen {sf}")
    e.label("L1_nop1")
    I("s_mov_b64 exec, -1")
    I("s_movk_i32 s48, 128")
    I("v_cmp_gt_u32 s[92:93], s48, v0")
    I("s_waitcnt lgkmcnt(0)")
    I("v_readfirstlane_b32 s86, v96")
    I("v_readfirstlane_b32 s87, v97")
    I("v_readfirstlane_b32 s42, v98")
    def patch(r, cnt, st, c2, t):
        I(f"v_lshl_or_b32 v{t}, v{cnt}, 12, v{st}")
        I(f"v_or_b32 v{t}, v97, v{t}")
        I(f"v_cndmask_b32 v{r}, v{t}, v{r}, {ODD}")
        I(f"v_cndmask_b32 v{r+1}, v96, v{r+1}, {ODD}")
        if c2 is None: I(f"v_lshlrev_b32 v{t}, 12, v96")
        else: I(f"v_lshl_or_b32 v{t}, v96, 12, v{c2}")
        I(f"v_cndmask_b32 v{r+3}, v{r+3}, v{t}, {ODD}")
    patch(100, 104, 105, 106, 104)
    I("s_lshl_b32 s3, s86, 12")
    I(f"s_add_u32 s49, s51, {TABOFF}")
    I("s_cmp_gt_u32 s88, 2048")
    I("s_cselect_b32 s25, 0, 8")
    I("s_cmp_eq_u32 s42, 0")
    I("s_cbranch_scc1 L1_nokeyst")
    I(f"s_add_u32 s42, s51, {KEYOFF-KSTAGE}")
    I("v_subrev_u32 v25, 128, v0")
    I("s_movk_i32 s43, 200")
    I("v_cmp_gt_u32 vcc, s43, v25")
    I("s_and_saveexec_b64 s[44:45], vcc")
    I("s_cbranch_execz L1_nokeyst2")
    I(f"buffer_store_dwordx4 v[20:23], v24, s[8:11], s42 offen {sf}")
    e.label("L1_nokeyst2")
    I("s_mov_b64 exec, -1")
    e.label("L1_nokeyst")
    stamp(e, c, 4)
    def rest_stores(tag):
        I(f"buffer_store_dwordx4 v[16:19], v3, s[8:11], s51 offen {sf}")
        for k, (m, neg, regs, va) in enumerate((("s[54:55]", 1, "v[12:15]", "v2"), ("s[92:93]", 0, "v[20:23]", "v24"), ("s[52:53]", 1, "v[8:11]", "v1"))):
            I(f"s_not_b64 exec, {m}" if neg else f"s_mov_b64 exec, {m}")
            I(f"s_cbranch_execz L_stskip{tag}{k}")
            I(f"buffer_store_dwordx4 {regs}, {va}, s[8:11], s51 offen {sf}")
            e.label(f"L_stskip{tag}{k}")
        I("s_mov_b64 exec, -1")
    def handoff2(tag):
        I("s_cmp_lg_u32 s25, 0")
        I(f"s_cbranch_scc1 L_usual{tag}")
        rest_stores(tag + "e")
        e.label(f"L_usual{tag}")
        I("s_waitcnt vmcnt(0) lgkmcnt(0)")
        stamp(e, c, 6)
        I("s_barrier")
        I("s_cmp_ge_u32 s21, 8")
        I(f"s_cbranch_scc1 L_noearly{tag}")
        I(f"buffer_store_dwordx4 v[100:103], v1, s[8:11], s49 offen {sf}")
        e.label(f"L_noearly{tag}")
        I("s_cmp_eq_u32 s25, 0")
        I(f"s_cbranch_scc1 L_norest{tag}")
        rest_stores(tag + "l")
        e.label(f"L_norest{tag}")
        stamp(e, c, 5)
    def handoff(tag, mid):
        I("s_waitcnt vmcnt(0)")
        stamp(e, c, 6)
        I("s_barrier")
        I("s_cmp_ge_u32 s21, s25")
        I(f"s_cbranch_scc1 L_noearly{tag}")
        I(f"buffer_store_dwordx4 v[100:103], v1, s[8:11], s49 offen {sf}")
        e.label(f"L_noearly{tag}")
        I(f"buffer_store_dwordx4 v[16:19], v3, s[8:11], s51 offen {sf}")
        for k, (m, neg, regs, va) in enumerate((("s[54:55]", 1, "v[12:15]", "v2"), ("s[92:93]", 0, "v[20:23]", "v24"), ("s[52:53]", 1, "v[8:11]", "v1"))):
            I(f"s_not_b64 exec, {m}" if neg else f"s_mov_b64 exec, {m}")
            I(f"s_cbranch_execz L_stskip{tag}{k}")
            I(f"buffer_store_dwordx4 {regs}, {va}, s[8:11], s51 offen {sf}")
            e.label(f"L_stskip{tag}{k}")
        I("s_mov_b64 exec, -1")
        mid()
        I("s_waitcnt vmcnt(0) lgkmcnt(0)")
        stamp(e, c, 5)
        I("s_barrier")
        I("s_cmp_lt_u32 s21, s25")
        I(f"s_cbranch_scc1 L_nolate{tag}")
        I(f"buffer_store_dwordx4 v[100:103], v1, s[8:11], s49 offen {sf}")
        e.label(f"L_nolate{tag}")
    I("s_cmp_lt_u32 s21, 4")
    e.branch("s_cbranch_scc1 L2_gemm")

    if c.wlate:
        I("s_cmp_lt_u32 s21, 13")
        I("s_cbranch_scc1 L2_noWl")
        w_loads()
        e.label("L2_noWl")
    VLANE, VINFO, VNEXT = 108, 109, 110
    VLOFF, VMASK, VOW, VOR, VSCRW, VTRA, VWR, VL16 = 111, 112, 113, 114, 115, 116, 117, 118
    VT0, VT1, VONE, VSEL = 119, 120, 121, 122
    VJ, VCH, VSEG = 123, 124, 125
    I(f"v_and_b32 v{VLANE}, 63, v0")
    I(f"v_mov_b32 v{VONE}, 1")
    I(f"v_mov_b32 v{VMASK}, s30")
    I(f"v_lshrrev_b32 v{VT1}, 4, v{VLANE}")
    I(f"v_lshlrev_b32 v{VL16}, 4, v{VLANE}")
    if c.addtid:
        I(f"v_and_b32 v{VT0}, 3, v{VLANE}")
        I(f"v_lshlrev_b32 v{VLOFF}, 4, v{VT0}")
    else:
        I(f"v_and_b32 v{VT0}, 15, v{VLANE}")
        I(f"v_lshlrev_b32 v{VLOFF}, 4, v{VT0}")
    I("s_sub_u32 s43, s21, 4")
    I(f"s_mul_i32 s43, s43, {SSTR}")
    I(f"s_add_u32 s43, s43, {SCR}")
    I(f"v_add_u32 v{VSCRW}, s43, v{VL16}")
    I(f"v_lshlrev_b32 v{VOR}, 5, v{VT1}")
    I(f"v_add_u32 v{VOR}, s43, v{VOR}")
    I(f"v_lshlrev_b32 v{VTRA}, 4, v{VT1}")
    I(f"v_bfe_u32 v{VT1}, v{VLANE}, 2, 2")
    I(f"v_lshl_add_u32 v{VTRA}, v{VT1}, 6, v{VTRA}")
    I(f"v_and_b32 v{VT1}, 1, v{VLANE}")
    I(f"v_lshl_add_u32 v{VTRA}, v{VT1}, 3, v{VTRA}")
    I(f"v_bfe_u32 v{VT1}, v{VLANE}, 1, 1")
    I(f"v_mul_u32_u24 v{VT1}, {PL1}, v{VT1}")
    I(f"v_add3_u32 v{VTRA}, v{VTRA}, v{VT1}, s43")
    I(f"v_and_b32 v{VOW}, 32, v{VLANE}")
    I(f"v_and_b32 v{VT1}, 3, v{VLANE}")
    I(f"v_lshl_add_u32 v{VOW}, v{VT1}, 3, v{VOW}")
    I(f"v_bfe_u32 v{VT1}, v{VLANE}, 2, 3")
    I(f"v_add_u32 v{VOW}, v{VOW}, v{VT1}")
    I(f"v_lshlrev_b32 v{VOW}, 2, v{VOW}")
    I(f"v_add_u32 v{VOW}, s43, v{VOW}")
    I(f"v_add_u32 v{VWR}, {WRAD}, v{VL16}")
    I("s_sub_u32 s42, s21, 4")
    I("s_mul_i32 s83, s42, 24")
    I(f"v_and_b32 v{VJ}, 7, v{VLANE}")
    I(f"v_lshrrev_b32 v{VSEG}, 3, v{VLANE}")
    I(f"s_mov_b32 s42, {CSTRIDE}")
    I(f"v_mul_u32_u24 v{VCH}, s42, v{VSEG}")
    I(f"v_lshlrev_b32 v{VSEG}, 5, v{VSEG}")
    I(f"v_add_u32 v{VSEG}, s43, v{VSEG}")
    I(f"v_or_b32 v{VSEL}, 0x0c0c0c00, v{VJ}")
    NP, NW = 3, 3
    I(f"s_mul_i32 s79, s83, {CSTRIDE}")
    for p in range(NP):
        I(f"s_add_u32 s{74+p}, s79, {8*p*CSTRIDE+PAYOFF}")
        I(f"s_add_u32 s{80+p}, s79, {8*p*CSTRIDE+KEYOFF}")
    I("s_mov_b32 s78, 0x100000")
    I("s_mov_b32 s88, s20")
    I("s_mov_b32 s89, 0")
    I(f"s_movk_i32 s48, {HN}")
    def w_stage():
        I("s_cmp_lt_u32 s21, 13")
        I("s_cbranch_scc1 L2_noW")
        if c.nop2: I(f"s_waitcnt vmcnt({1 if c.pfx_lines else 0})")
        I(f"v_add_u32 v65, {T}, v65")
        for k in range(8):
            I(f"ds_write_b128 v65, v[{28+4*k}:{31+4*k}] offset:{16384 + k*3072}")
        for k in range(5):
            I(f"ds_write_b128 v65, v[{72+4*k}:{75+4*k}] offset:{k*3072}")
        if c.wrlds: I("ds_write_b128 v65, v[68:71] offset:40960")
        I("s_cmp_lg_u32 s21, 13")
        I("s_cbranch_scc1 L2_noW")
        I(f"ds_write_b128 v65, v[92:95] offset:{5*3072}")
        e.label("L2_noW")
    if c.nop2:
        w_stage()
        handoff2("g")
    else:
        handoff("g", w_stage)
    if c.pdelay: I(f"s_sleep {c.pdelay}")
    if c.prio_pro: I(f"s_setprio {c.prio_pro}")
    PAY, KEY, RNK, CNTR, KAD, PAD, X, EN = 0, 36, 45, 54, 57, 60, 64, 72
    MSK = 50
    e.label("L2_g_round")
    I(f"v_and_b32 v{VJ}, 7, v{VLANE}")
    I(f"v_or_b32 v{VSEL}, 0x0c0c0c00, v{VJ}")
    I(f"v_lshrrev_b32 v{X}, 1, v{VLANE}")
    I(f"s_sub_u32 s42, {NCH}, s83")
    I("s_min_i32 s42, s42, 24")
    I(f"v_cmp_gt_i32 s[46:47], s42, v{X}")
    I(f"s_mov_b32 s42, {CSTRIDE}")
    I(f"v_mul_u32_u24 v{X+1}, s42, v{X}")
    I(f"v_and_b32 v{X+2}, 16, v{VL16}")
    I(f"v_add_u32 v{X+1}, v{X+1}, v{X+2}")
    I(f"v_cndmask_b32 v{X+1}, 2.0, v{X+1}, s[46:47]")
    I("s_lshl_b32 s43, s88, 5")
    I(f"s_add_u32 s43, s43, {TABOFF}")
    I("s_add_u32 s43, s43, s79")
    I("s_mov_b32 s44, 0")
    I(f"v_lshl_add_u32 v{VT1}, v{VJ}, 4, v{VCH}")
    if c.ppipe:
        def pl(r): I(f"buffer_load_dwordx4 v[{r}:{r+3}], v{X+1}, s[8:11], s43 offen sc1")
        def chk(r, ok):
            I("s_waitcnt vmcnt(1)")
            tag_bad(e, X+2, r, X+3, ODD)
            I(f"v_cmp_ne_u32 vcc, 0, v{X+2}")
            e.nop(2)
            I("s_and_b64 vcc, vcc, s[46:47]")
            I(f"s_cbranch_scc0 {ok}")
        I("s_waitcnt vmcnt(0)")
        pl(96)
        I(f"s_sleep {c.pgap}")
        e.label("L2_poll")
        pl(104)
        chk(96, "L2_poll_oka")
        pl(96)
        I("s_add_u32 s44, s44, 1")
        chk(104, "L2_poll_okb")
        I("s_cmp_lt_u32 s44, s78")
        I("s_cbranch_scc1 L2_poll")
        I("s_mov_b32 s78, 0")
        e.label("L2_poll_okb")
        for k in range(4): I(f"v_mov_b32 v{EN+k}, v{104+k}")
        I("s_branch L2_poll_ok")
        e.label("L2_poll_oka")
        for k in range(4): I(f"v_mov_b32 v{EN+k}, v{96+k}")
    else:
        if c.nop2:
            I(f"buffer_load_dwordx4 v[{EN}:{EN+3}], v{X+1}, s[8:11], s43 offen sc1")
            I("s_mov_b64 exec, 1")
            I("s_waitcnt vmcnt(0)")
            I(f"ds_add_u32 v{VL16}, v{VONE} offset:{BST}")
            I("s_mov_b64 exec, -1")
            I("s_branch L2_poll_chk")
        e.label("L2_poll")
        I(f"buffer_load_dwordx4 v[{EN}:{EN+3}], v{X+1}, s[8:11], s43 offen sc1")
        I("s_add_u32 s44, s44, 1")
        I("s_waitcnt vmcnt(0)")
        e.label("L2_poll_chk")
        tag_bad(e, X+2, EN, X+3, ODD)
        I(f"v_cmp_ne_u32 vcc, 0, v{X+2}")
        e.nop(2)
        I("s_and_b64 vcc, vcc, s[46:47]")
        I("s_cbranch_scc0 L2_poll_ok")
        I(f"s_sleep {c.psleep}")
        I("s_cmp_lt_u32 s44, s78")
        I("s_cbranch_scc1 L2_poll")
        I("s_mov_b32 s78, 0")
    e.label("L2_poll_ok")
    I("s_cmp_lg_u32 s23, 1")
    I("s_cbranch_scc1 L2_nofilter")
    I("s_sub_u32 s42, s22, s83")
    I(f"v_cmp_eq_u32 vcc, s42, v{X}")
    I(f"v_cndmask_b32 v{EN}, 0, v{EN}, vcc")
    e.label("L2_nofilter")
    I(f"ds_write_b128 v{VSCRW}, v[{EN}:{EN+3}]")
    I(f"v_add_u32 v{X+1}, 8, v{VJ}")
    stamp(e, c, 7)
    def msk(p, w): return f"s[{MSK+4*p+2*w}:{MSK+4*p+2*w+1}]" if w < 2 else f"s[{MSK+12+2*p}:{MSK+13+2*p}]"
    def pay(p, w): return f"v[{PAY+12*p+4*w}:{PAY+12*p+4*w+3}]"
    for p in range(NP):
        I(f"ds_read_b128 v[{EN+8*p}:{EN+8*p+3}], v{VSEG} offset:{256*p}")
        I(f"ds_read_b128 v[{EN+8*p+4}:{EN+8*p+7}], v{VSEG} offset:{256*p+16}")
    for p in range(NP):
        en, cnt = EN + 8*p, CNTR + p
        if p == 0: I("s_waitcnt lgkmcnt(0)")
        I(f"v_bfe_u32 v{cnt}, v{en}, 12, 12")
        I(f"v_and_b32 v{PAD+p}, 0xfff, v{en}")
        I(f"v_cmp_lt_u32 {msk(p,0)}, v{VJ}, v{cnt}")
        I(f"v_cmp_lt_u32 {msk(p,1)}, v{X+1}, v{cnt}")
        I(f"v_perm_b32 v{KEY+3*p}, v{en+3}, v{en+2}, v{VSEL}")
        I(f"v_perm_b32 v{KEY+3*p+1}, v{en+5}, v{en+4}, v{VSEL}")
        I(f"v_lshl_add_u32 v{PAD+p}, v{PAD+p}, 4, v{VT1}")
        for w in range(2):
            I(f"s_mov_b64 exec, {msk(p,w)}")
            I(f"s_cbranch_execz L2_nop{p}")
            I(f"ds_add_rtn_u32 v{RNK+3*p+w}, v{KEY+3*p+w}, v{VONE} offset:{HIST}")
            I(f"buffer_load_dwordx4 {pay(p,w)}, v{PAD+p}, s[8:11], s{74+p} offen offset:{128*w} {rf}")
        e.label(f"L2_nop{p}")
        I("s_mov_b64 exec, -1")
    I(f"v_max3_u32 v{VT0}, v{CNTR}, v{CNTR+1}, v{CNTR+2}")
    I(f"v_cmp_lt_u32 vcc, 16, v{VT0}")
    I("s_mov_b32 s25, 0")
    e.nop(1)
    I("s_cmp_eq_u64 vcc, 0")
    I("s_cbranch_scc1 L2_noextraA")
    I("s_mov_b32 s25, 1")
    I(f"v_add_u32 v{X+2}, 16, v{VJ}")
    for p in range(NP):
        en = EN + 8*p
        I(f"v_min_u32 v{X+3}, {KIN}, v{CNTR+p}")
        I(f"v_cmp_lt_u32 {msk(p,2)}, v{X+2}, v{X+3}")
        I(f"v_perm_b32 v{KEY+3*p+2}, v{en+6}, v{en+6}, v{VSEL}")
        I(f"v_sub_u32 v{KAD+p}, v{PAD+p}, v{VCH}")
        I(f"v_lshrrev_b32 v{KAD+p}, 4, v{KAD+p}")
        I(f"v_add_u32 v{KAD+p}, v{KAD+p}, v{VCH}")
        e.flush()
        I(f"s_mov_b64 exec, {msk(p,2)}")
        I(f"ds_add_rtn_u32 v{RNK+3*p+2}, v{KEY+3*p+2}, v{VONE} offset:{HIST}")
        I(f"buffer_load_dwordx4 {pay(p,2)}, v{PAD+p}, s[8:11], s{74+p} offen offset:256 {rf}")
        I("s_mov_b64 exec, -1")

    def extra_count(tag, first, vj, vkad, vcnt, skey, vone, hist, y):
        I(f"v_add_u32 v{y}, {first}, v{vj}")
        I(f"v_add_u32 v{y+1}, {first}, v{vkad}")
        e.label(f"L_xa{tag}")
        I(f"v_cmp_lt_u32 vcc, v{y}, v{vcnt}")
        I("s_and_saveexec_b64 s[44:45], vcc")
        e.branch(f"s_cbranch_execz L_xa{tag}_done")
        I(f"buffer_load_ubyte v{y+2}, v{y+1}, s[8:11], s{skey} offen {rf}")
        I("s_waitcnt vmcnt(0)")
        I(f"ds_add_u32 v{y+2}, v{vone} offset:{hist}")
        I("s_mov_b64 exec, -1")
        I(f"v_add_u32 v{y}, 8, v{y}")
        I(f"v_add_u32 v{y+1}, 8, v{y+1}")
        e.branch(f"s_branch L_xa{tag}")
        e.label(f"L_xa{tag}_done")
        I("s_mov_b64 exec, -1")
    def extra_move(tag, first, vj, vkad, vpad, vcnt, skey, spay, vone, cur, vbase, y, d):
        I(f"v_add_u32 v{y}, {first}, v{vj}")
        I(f"v_add_u32 v{y+1}, {first}, v{vkad}")
        I(f"v_add_u32 v{vpad}, {16*first}, v{vpad}")
        e.label(f"L_xb{tag}")
        I(f"v_cmp_lt_u32 vcc, v{y}, v{vcnt}")
        I("s_and_saveexec_b64 s[44:45], vcc")
        e.branch(f"s_cbranch_execz L_xb{tag}_done")
        I(f"buffer_load_ubyte v{y+2}, v{y+1}, s[8:11], s{skey} offen {rf}")
        I(f"buffer_load_dwordx4 v[{d}:{d+3}], v{vpad}, s[8:11], s{spay} offen {rf}")
        I("s_waitcnt vmcnt(0)")
        I(f"ds_add_rtn_u32 v{y+3}, v{y+2}, v{vone} offset:{cur}")
        I("s_mov_b64 exec, -1")
        I(f"ds_bpermute_b32 v{y+2}, v{y+2}, v{vbase}")
        I("s_waitcnt lgkmcnt(0)")
        I(f"v_add_lshl_u32 v{y+2}, v{y+2}, v{y+3}, 4")
        I("s_mov_b64 exec, vcc")
        I(f"ds_write_b128 v{y+2}, v[{d}:{d+3}] offset:{RAW}")
        I("s_mov_b64 exec, -1")
        I(f"v_add_u32 v{y}, 8, v{y}")
        I(f"v_add_u32 v{y+1}, 8, v{y+1}")
        I(f"v_add_u32 v{vpad}, 128, v{vpad}")
        e.branch(f"s_branch L_xb{tag}")
        e.label(f"L_xb{tag}_done")
        I("s_mov_b64 exec, -1")
    for p in range(NP):
        extra_count(f"a{p}", KIN, VJ, KAD+p, CNTR+p, 80+p, VONE, HIST2, X)
    e.label("L2_noextraA")
    I("s_waitcnt lgkmcnt(0)")
    stamp(e, c, 14)
    I("s_barrier")
    stamp(e, c, 15)
    C1, CT, BS = X + 4, X + 5, X + 6
    I(f"v_lshlrev_b32 v{VT0}, 2, v{VLANE}")
    I(f"ds_read_b32 v{C1}, v{VT0} offset:{HIST}")
    I(f"ds_read_b32 v{CT}, v{VT0} offset:{HIST2}")
    I("s_waitcnt lgkmcnt(0)")
    I(f"v_add_u32 v{CT}, v{C1}, v{CT}")
    I(f"v_mov_b32 v{BS}, v{CT}")
    scan64(e, BS)
    I(f"v_readlane_b32 s46, v{BS}, 63")
    I(f"v_sub_u32 v{BS}, v{BS}, v{CT}")
    I(f"s_cmp_eq_u32 s23, 1")
    I(f"s_cselect_b32 s42, -1, {CAP}")
    for p in range(NP):
        for w in range(2):
            I(f"ds_bpermute_b32 v{KEY+3*p+w}, v{KEY+3*p+w}, v{BS}")
    I(f"v_lshl_or_b32 v{VINFO}, v{CT}, 16, v{BS}")
    I(f"s_cmp_gt_u32 s46, s42")
    I("s_cbranch_scc1 L2_g_overflow")
    I("s_cmp_lg_u32 s21, 5")
    I("s_cbranch_scc1 L2_noinfo")
    I(f"s_mov_b64 exec, {(1 << HN) - 1}")
    I(f"ds_write_b32 v{VT0}, v{VINFO} offset:{INFO}")
    I("s_mov_b64 exec, -1")
    e.label("L2_noinfo")
    I("s_cmp_lg_u32 s21, 4")
    I("s_cbranch_scc1 L2_noguard")
    I("s_lshl_b32 s46, s46, 4")
    for k in range(4): I(f"v_mov_b32 v{EN+k}, 0")
    I(f"v_add_u32 v{VT0}, s46, v{VL16}")
    I(f"ds_write_b128 v{VT0}, v[{EN}:{EN+3}] offset:{RAW}")
    e.label("L2_noguard")
    I("s_waitcnt lgkmcnt(0)")
    for p in range(NP):
        for w in range(2):
            I(f"v_add_lshl_u32 v{KEY+3*p+w}, v{KEY+3*p+w}, v{RNK+3*p+w}, 4")
    stamp(e, c, 27)
    I("s_waitcnt vmcnt(0)")
    stamp(e, c, 9)
    for p in range(NP):
        for w in range(2):
            I(f"s_mov_b64 exec, {msk(p,w)}")
            I(f"ds_write_b128 v{KEY+3*p+w}, {pay(p,w)} offset:{RAW}")
    I("s_mov_b64 exec, -1")
    I("s_cmp_eq_u32 s25, 0")
    I("s_cbranch_scc1 L2_noextraB")
    for p in range(NP):
        I(f"ds_bpermute_b32 v{KEY+3*p+2}, v{KEY+3*p+2}, v{BS}")
    I("s_waitcnt lgkmcnt(0)")
    for p in range(NP):
        I(f"v_add_lshl_u32 v{KEY+3*p+2}, v{KEY+3*p+2}, v{RNK+3*p+2}, 4")
        I(f"s_mov_b64 exec, {msk(p,2)}")
        I(f"ds_write_b128 v{KEY+3*p+2}, {pay(p,2)} offset:{RAW}")
        I("s_mov_b64 exec, -1")
    I(f"v_add_u32 v{BS}, v{BS}, v{C1}")
    for p in range(NP):
        extra_move(f"a{p}", KIN, VJ, KAD+p, PAD+p, CNTR+p, 80+p, 74+p, VONE, CUR2, BS, X, EN)
    e.label("L2_noextraB")
    I("s_waitcnt lgkmcnt(0)")
    stamp(e, c, 28)
    I("s_barrier")
    I(f"ds_read_b32 v{96 if c.totlate else VT0}, v{VL16} offset:{TOTB}")
    if c.static1:
        I("s_sub_u32 s42, s21, 16")
        I(f"v_mov_b32 v{VNEXT}, s42")
    else:
        I("s_mov_b64 exec, 1")
        I(f"ds_add_rtn_u32 v{VNEXT}, v{VL16}, v{VONE} offset:{NEXT}")
        I("s_mov_b64 exec, -1")
    if not c.totlate:
        I("s_waitcnt lgkmcnt(0)")
        I(f"v_readfirstlane_b32 s42, v{VT0}")
        e.nop(1)
        I(f"s_cmp_gt_u32 s42, {CAP}")
        I("s_cbranch_scc1 L2_g_overflow")
    stamp(e, c, 10)
    stamp(e, c, 24, "s_memtime")
    if c.prio_g: I(f"s_setprio {c.prio_g}")
    elif c.prio_pro and c.prio_pro < 3: I("s_setprio 0")
    (gather_loop_s if c.smf else gather_loop)(e, c, locals())
    e.label("L2_g_done")
    stamp(e, c, 11)
    stamp(e, c, 25, "s_memtime")
    I("s_cmp_lg_u32 s24, 0")
    e.branch("s_cbranch_scc1 L2_g_exit")
    I("s_add_u32 s89, s89, 1")
    I("s_branch L2_g_slow")
    e.label("L2_g_overflow")
    I("s_mov_b32 s89, 0")
    I("s_mov_b32 s23, 1")
    I("s_movk_i32 s48, 64")
    e.label("L2_g_slow")
    I("s_waitcnt vmcnt(0) lgkmcnt(0)")
    I("s_barrier")
    I("s_lshr_b32 s22, s89, 1")
    I("s_and_b32 s88, s89, 1")
    I("s_lshl_b32 s88, s88, 8")
    I("s_add_u32 s88, s88, s20")
    I(f"s_cmp_eq_u32 s89, {2*NCH-1}")
    I("s_cselect_b32 s24, 1, 0")
    I("s_barrier")
    e.branch("s_branch L2_g_round")
    e.label("L2_g_exit")
    stamp_store(e, c, 90)
    I("s_endpgm")

    e.label("L2_gemm")
    W, G, TA, TF = 0, 40, 104, 108
    X0, X1 = 124, 125
    I("v_and_b32 v104, 63, v0")
    I("v_lshlrev_b32 v105, 4, v104")
    lut = 0
    for jp in range(4):
        for blk in range(4):
            p, i, s = path_of(jp, blk)
            lut |= (p | (8 if s < 0 else 0)) << (4 * (jp * 4 + blk))
    I(f"s_mov_b32 s44, {lut & 0xffffffff}")
    I(f"s_mov_b32 s45, {lut >> 32}")
    for h in range(2):
        I("v_lshrrev_b32 v106, 4, v104")
        I("v_bfe_u32 v107, v104, 3, 1")
        I("v_lshl_add_u32 v106, v106, 2, v107")
        I(f"v_add_lshl_u32 v106, v106, {2*h}, 2")
        I(f"v_lshrrev_b64 v[108:109], v106, s[44:45]")
        I(f"v_and_b32 v106, 7, v108")
        I(f"v_and_b32 v{110+h}, 8, v108")
        I(f"v_lshlrev_b32 v{110+h}, 28, v{110+h}")
        I("v_and_b32 v107, 7, v104")
        I("v_lshlrev_b32 v107, 3, v107")
        I("v_lshl_add_u32 v106, v106, 6, v107")
        I("v_add_u32 v106, s21, v106")
        I(f"v_lshlrev_b32 v{112+h}, 1, v106")
        if c.wrlds: I(f"v_add_u32 v{112+h}, {T+40960}, v{112+h}")
    I("v_mov_b32 v117, v0")
    TB2 = 40
    if c.nop2:
        I("s_lshl_b32 s42, s21, 11")
        I(f"s_add_u32 s43, s42, {TI+8192}")
        I("v_add_u32 v114, s43, v105")
        I(f"ds_read_b128 v[{TB2}:{TB2+3}], v114")
        I(f"ds_read_b128 v[{TB2+4}:{TB2+7}], v114 offset:1024")
        I("v_lshrrev_b32 v114, 1, v104")
        I("s_lshl_b32 s43, s21, 8")
        I(f"s_add_u32 s43, s43, {H1+1024}")
        I("v_lshl_add_u32 v114, v114, 2, s43")
        I(f"ds_read2st64_b32 v[{TB2+8}:{TB2+9}], v114 offset0:0 offset1:8")
        I("v_add_u32 v114, 128, v114")
        I(f"ds_read2st64_b32 v[{TB2+10}:{TB2+11}], v114 offset0:0 offset1:8")
        I(f"s_add_u32 s39, s42, s49")
        I("s_add_u32 s39, s39, 8192")
        I("s_waitcnt lgkmcnt(0)")
        patch(TB2, TB2+8, TB2+9, None, TB2+8)
        patch(TB2+4, TB2+10, TB2+11, None, TB2+10)
        I(f"v_mov_b32 v{TB2+8}, v105")
        handoff2("m")
        I("v_mov_b32 v56, 0")
        I("v_mov_b32 v57, 1")
        I("s_mov_b64 exec, 1")
        I("s_waitcnt vmcnt(0)")
        I(f"ds_add_u32 v56, v57 offset:{BST}")
        I("s_mov_b64 exec, -1")
        if c.nop2 == 2:
            spin(e, "bst", 57, 56, BST, 16, 44, 42, sleep=1)
            I(f"buffer_store_dwordx4 v[{TB2}:{TB2+3}], v{TB2+8}, s[8:11], s39 offen {sf}")
            I(f"buffer_store_dwordx4 v[{TB2+4}:{TB2+7}], v{TB2+8}, s[8:11], s39 offen offset:1024 {sf}")
    else:
        handoff("m", lambda: None)
    if c.pfx2_pos == 0: prefetch_x(e, c.pfx2_lines, 114, 117, 256, 31, 0, 4, c.pfx_lines)
    WT = 80
    for k in range(4):
        h, qo = k >> 1, (k & 1) * 4
        for d in range(4):
            if c.wrlds: I(f"ds_read_u16 v{WT+4*k+d}, v{112+h} offset:{d*640+qo*2}")
            else: I(f"buffer_load_ushort v{WT+4*k+d}, v{112+h}, s[16:19], 0 offen offset:{d*640+qo*2}")
    I("v_lshrrev_b32 v106, 4, v104")
    I("v_lshlrev_b32 v106, 10, v106")
    I("v_bfe_u32 v107, v104, 2, 2")
    I("v_lshl_add_u32 v106, v107, 7, v106")
    I("v_and_b32 v107, 3, v104")
    I("v_lshl_add_u32 v106, v107, 3, v106")
    I("s_lshl_b32 s42, s21, 5")
    I(f"s_add_u32 s42, s42, {T}")
    I("v_add_u32 v106, s42, v106")
    for f in range(10):
        I(f"ds_read_b64_tr_b16 v[{W+4*f}:{W+4*f+1}], v106 offset:{f*4096}")
        I(f"ds_read_b64_tr_b16 v[{W+4*f+2}:{W+4*f+3}], v106 offset:{f*4096+512}")
    I("s_lshl_b32 s42, s21, 10")
    I(f"s_add_u32 s43, s42, {WRAD}")
    I("v_add_u32 v105, s43, v105")
    I("s_waitcnt lgkmcnt(0)" if c.wrlds else "s_waitcnt vmcnt(0)")
    for k in range(4):
        h = k >> 1
        for d in range(4):
            I(f"v_lshlrev_b32 v{WT+4*k+d}, 16, v{WT+4*k+d}")
            I(f"v_xor_b32 v{WT+4*k+d}, v{110+h}, v{WT+4*k+d}")
        I(f"ds_write_b128 v105, v[{WT+4*k}:{WT+4*k+3}] offset:{(k>>1)*8192 + (k&1)*4096}")
    I("v_and_b32 v106, 15, v104")
    I("v_lshrrev_b32 v107, 4, v104")
    I(f"v_lshlrev_b32 v{X0}, 2, v104")
    if NWG == 250:
        I(f"s_mul_i32 s42, s20, {HN}")
        I(f"s_movk_i32 s44, {HN}")
    else:
        I("s_mul_i32 s42, s20, 1600210")
        I("s_add_u32 s42, s42, 65532")
        I("s_add_u32 s44, s42, 1600210")
        I("s_lshr_b32 s42, s42, 16")
        I("s_lshr_b32 s44, s44, 16")
        I(f"s_min_u32 s44, s44, {N//2}")
        I("s_sub_u32 s44, s44, s42")
    I("s_lshl_b32 s42, s42, 9")
    I("s_mov_b32 s40, s42")
    I("s_mov_b32 s41, s44")
    I("s_lshl_b32 s43, s21, 5")
    I("s_add_u32 s42, s42, s43")
    I(f"v_lshlrev_b32 v{X1}, 9, v106")
    I(f"v_lshl_add_u32 v{X1}, v107, 3, v{X1}")
    I(f"v_add_u32 v{X1}, s42, v{X1}")
    I(f"v_cmp_le_u32 s[84:85], {HN-16}, v106")
    I(f"s_sub_u32 s43, s44, {48-HN}")
    I("v_cmp_gt_i32 s[50:51], s43, v106")
    I("s_sub_u32 s43, s44, 16")
    I("v_cmp_gt_i32 s[94:95], s43, v106")
    I("v_lshlrev_b32 v108, 10, v106")
    I(f"v_add_u32 v108, {T}, v108")
    I("s_or_b64 s[94:95], s[94:95], s[84:85]")
    for u in (3, 2, 1, 0):
        I(f"v_add_u32 v109, {4*u}, v107")
        I("v_xor_b32 v109, v109, v106")
        I(f"v_lshl_add_u32 v{TF+4+u}, v109, 4, v108")
    I("s_waitcnt lgkmcnt(0)")
    for u in range(4):
        I(f"v_mov_b32 v{TA+u}, v{TF+4+u}")
    I("s_mov_b32 s89, 0")
    NPB = 8
    TB, KA, SJ, KB, RB = 40, 48, 56, 64, 80
    LJ, LCH, LONE, Y = 96, 97, 98, 99
    MB = 52
    def mb(p, w): return f"s[{MB+4*p+2*w}:{MB+4*p+2*w+1}]"
    LA, PA0, PA1, TOA = KB, KB + 1, KB + 2, KB + 3
    I(f"v_lshrrev_b32 v{Y}, 2, v{X0}")
    I("s_lshl_b32 s42, s21, 11")
    I(f"v_lshl_add_u32 v{LA}, v{Y}, 4, s42")
    I(f"v_lshrrev_b32 v{Y+1}, 1, v{Y}")
    I("s_lshl_b32 s43, s21, 5")
    I(f"s_sub_u32 s44, {NCH-128}, s43")
    I(f"v_cmp_gt_i32 s[46:47], s44, v{Y+1}")
    I(f"s_mov_b32 s44, {CSTRIDE}")
    I(f"v_mul_u32_u24 v{Y+1}, s44, v{Y+1}")
    I(f"v_and_b32 v{Y+2}, 16, v{LA}")
    I(f"v_add_u32 v{PA0}, v{Y+1}, v{Y+2}")
    I(f"v_cndmask_b32 v{PA1}, 2.0, v{PA0}, s[46:47]")
    I(f"v_and_b32 v{LJ}, 7, v{Y}")
    I(f"v_lshrrev_b32 v{Y+1}, 3, v{Y}")
    I(f"v_mul_u32_u24 v{LCH}, s44, v{Y+1}")
    I(f"v_lshl_add_u32 v{RB}, v{Y+1}, 5, s42")
    I("s_mul_i32 s38, s43, s44")
    I(f"v_add_u32 v{LCH}, s38, v{LCH}")
    I(f"v_mov_b32 v{LONE}, 1")
    I("s_lshl_b32 s36, s20, 5")
    I(f"s_add_u32 s36, s36, {TABOFF+8192}")
    I("s_add_u32 s36, s36, s38")
    I(f"s_add_u32 s37, s36, {128*CSTRIDE}")
    I("s_lshl_b32 s42, s21, 6")
    I(f"v_add_u32 v{Y}, s42, v{Y}")
    I(f"v_mul_u32_u24 v{Y+1}, 0xaab, v{Y}")
    I(f"v_lshrrev_b32 v{Y+1}, 16, v{Y+1}")
    I(f"v_mul_u32_u24 v{Y+1}, {SSTR-24*32}, v{Y+1}")
    I(f"v_lshl_add_u32 v{TOA}, v{Y}, 5, v{Y+1}")
    I(f"v_add_u32 v{TOA}, {SCR+28}, v{TOA}")
    I(f"s_movk_i32 s42, {NCH}")
    I(f"v_cmp_gt_u32 s[92:93], s42, v{Y}")
    if c.pfx2_pos == 1:
        I("s_mov_b64 s[40:41], s[46:47]")
        prefetch_x(e, c.pfx2_lines, 114, 117, 256, 31, 0, 4, c.pfx_lines)
        I("s_mov_b64 s[46:47], s[40:41]")
    if c.nop2 == 1:
        spin(e, "bst", 57, 56, BST, 16, 44, 42, sleep=1)
        I(f"buffer_store_dwordx4 v[{TB2}:{TB2+3}], v{TB2+8}, s[8:11], s39 offen {sf}")
        I(f"buffer_store_dwordx4 v[{TB2+4}:{TB2+7}], v{TB2+8}, s[8:11], s39 offen offset:1024 {sf}")
    stamp(e, c, 14)
    e.label("L2_m_round")
    I("s_barrier")
    I("s_cmp_eq_u32 s23, 1")
    I("s_cbranch_scc1 L2_m_slowC")
    def pollB_issue():
        I(f"buffer_load_dwordx4 v[{TF+4}:{TF+7}], v{PA0}, s[8:11], s36 offen sc1")
        I(f"buffer_load_dwordx4 v[{TF+8}:{TF+11}], v{PA1}, s[8:11], s37 offen sc1")
    I(f"ds_read_b32 v{TF}, v{X0} offset:{HIST}")
    I(f"ds_read_b32 v{TF+1}, v{X0} offset:{HIST2}")
    I(f"ds_read_b32 v{Y}, v{TOA}")
    I("s_waitcnt lgkmcnt(0)")
    I(f"v_add_u32 v{TF}, v{TF}, v{TF+1}")
    I(f"v_and_b32 v{Y}, 0xfff, v{Y}")
    I(f"v_cndmask_b32 v{Y}, 0, v{Y}, s[92:93]")
    scan64(e, TF)
    scan64(e, Y)
    I(f"v_readlane_b32 s42, v{TF}, 63")
    I(f"v_mov_b32 v{Y+2}, 0")
    I("s_mov_b32 exec_lo, 0")
    I("s_mov_b32 exec_hi, 0x80000000")
    I(f"ds_add_u32 v{Y+2}, v{Y} offset:{TOTB}")
    I("s_mov_b64 exec, -1")
    I(f"s_cmp_gt_u32 s42, {CAP}")
    I("s_cbranch_scc1 L2_m_overflow")
    if c.bearly: pollB_issue()
    I("s_waitcnt lgkmcnt(0)")
    I("s_barrier")
    I(f"ds_read_b32 v{Y}, v{Y+2} offset:{TOTB}")
    SEL = Y + 4
    E2 = [TF, TF + 8]
    I("s_mov_b32 s44, 0")
    I("s_waitcnt lgkmcnt(0)")
    I(f"v_readfirstlane_b32 s42, v{Y}")
    I(f"v_or_b32 v{SEL}, 0x0c0c0c00, v{LJ}")
    I(f"s_cmp_gt_u32 s42, {CAP}")
    I("s_cbranch_scc1 L2_m_overflow")
    stamp(e, c, 10)
    I("s_mov_b32 s34, s42")
    if c.x_nobload: I("s_branch L2_bnoxb")
    for k in range(c.bdel // 64): I("s_sleep 64")
    if c.bdel % 64: I(f"s_sleep {c.bdel % 64}")
    if c.bearly: I("s_branch L2_pollB_w")
    e.label("L2_pollB")
    pollB_issue()
    e.label("L2_pollB_w")
    I("s_add_u32 s44, s44, 1")
    I("s_waitcnt vmcnt(0)")
    tag_bad(e, Y, TF+4, Y+1, ODD)
    tag_bad(e, Y+2, TF+8, Y+1, ODD)
    I(f"v_cndmask_b32 v{Y+2}, 0, v{Y+2}, s[46:47]")
    I(f"v_or_b32 v{Y}, v{Y}, v{Y+2}")
    I(f"v_cmp_ne_u32 vcc, 0, v{Y}")
    e.nop(2)
    I("s_cmp_eq_u64 vcc, 0")
    I("s_cbranch_scc1 L2_pollB_ok")
    I(f"s_sleep {c.psleep}")
    I("s_cmp_lt_u32 s44, 0x100000")
    I("s_cbranch_scc1 L2_pollB")
    e.label("L2_pollB_ok")
    stamp(e, c, 7)
    I(f"ds_write_b128 v{LA}, v[{TF+4}:{TF+7}] offset:{CEB}")
    I(f"ds_write_b128 v{LA}, v[{TF+8}:{TF+11}] offset:{CEB+1024}")
    def boff(p): return ((128 if p >= 4 else 0) + 8 * (p & 3)) * CSTRIDE
    def ent_read(p):
        r = E2[p & 1]
        I(f"ds_read_b128 v[{r}:{r+3}], v{RB} offset:{CEB+256*p}")
        I(f"ds_read_b64 v[{r+4}:{r+5}], v{RB} offset:{CEB+256*p+16}")
    ent_read(0); ent_read(1)
    I(f"v_add_u32 v{Y+1}, 8, v{LJ}")
    for p in range(NPB):
        r = E2[p & 1]
        I(f"s_waitcnt lgkmcnt({2 if p < NPB-1 else 0})")
        I(f"v_and_b32 v{SJ+p}, 0xfff, v{r}")
        I(f"v_bfe_u32 v{TB+p}, v{r}, 12, 12")
        I(f"v_perm_b32 v{KB+2*p}, v{r+3}, v{r+2}, v{SEL}")
        I(f"v_perm_b32 v{KB+2*p+1}, v{r+5}, v{r+4}, v{SEL}")
        if p + 2 < NPB: ent_read(p + 2)
        I(f"v_add_u32 v{SJ+p}, v{SJ+p}, v{LJ}")
        I(f"v_cmp_lt_u32 {mb(p,0)}, v{LJ}, v{TB+p}")
        I(f"v_cmp_lt_u32 {mb(p,1)}, v{Y+1}, v{TB+p}")
        I(f"v_lshl_add_u32 v{SJ+p}, v{SJ+p}, 4, v{LCH}")
    P0 = [TF, TF+4, TF+8, TF+12]
    def pay_issue(p, w, reg):
        I(f"s_mov_b32 s42, {boff(p)+PAYOFF}")
        I("s_mov_b64 exec, -1")
        I(f"v_cndmask_b32 v{Y+2+w}, 2.0, v{SJ+p}, {mb(p,w)}")
        I(f"buffer_load_dwordx4 v[{reg}:{reg+3}], v{Y+2+w}, s[8:11], s42 offen offset:{128*w} {rf}")
    for k in range(c.bdel2 // 64): I("s_sleep 64")
    if c.bdel2 % 64: I(f"s_sleep {c.bdel2 % 64}")
    for k in range(4): pay_issue(k >> 1, k & 1, P0[k])
    I(f"v_max3_u32 v{Y}, v{TB}, v{TB+1}, v{TB+2}")
    I(f"v_max3_u32 v{Y}, v{Y}, v{TB+3}, v{TB+4}")
    I(f"v_max3_u32 v{Y}, v{Y}, v{TB+5}, v{TB+6}")
    I(f"v_max_u32 v{Y}, v{Y}, v{TB+7}")
    I(f"v_cmp_lt_u32 vcc, 16, v{Y}")
    I(f"v_mov_b32 v{Y+1}, v{RB}")
    for p in range(NPB):
        for w in range(2):
            I(f"s_mov_b64 exec, {mb(p,w)}")
            I(f"ds_add_rtn_u32 v{RB+2*p+w}, v{KB+2*p+w}, v{LONE} offset:{HISTB}")
    I("s_mov_b64 exec, -1")
    I("s_cmp_lg_u64 vcc, 0")
    I("s_cselect_b32 s35, 1, 0")
    I("s_cbranch_scc0 L2_bnoxa")
    def w2mask(p):
        I(f"v_min_u32 v{Y+2}, {KIN}, v{TB+p}")
        I(f"v_add_u32 v{Y+3}, 16, v{LJ}")
        I(f"v_cmp_lt_u32 vcc, v{Y+3}, v{Y+2}")
        I("s_and_saveexec_b64 s[44:45], vcc")
    for p in range(NPB):
        w2mask(p)
        e.branch(f"s_cbranch_execz L2_bw2a{p}")
        I(f"ds_read_b32 v{KA+p}, v{Y+1} offset:{CEB+256*p+24}")
        I("s_waitcnt lgkmcnt(0)")
        I(f"v_perm_b32 v{KA+p}, v{KA+p}, v{KA+p}, v{SEL}")
        I(f"ds_add_rtn_u32 v{Y+2}, v{KA+p}, v{LONE} offset:{HISTB}")
        I("s_waitcnt lgkmcnt(0)")
        I(f"v_lshl_or_b32 v{KA+p}, v{Y+2}, 8, v{KA+p}")
        e.label(f"L2_bw2a{p}")
        I("s_mov_b64 exec, -1")
    def key_addr(p, dst):
        I(f"v_sub_u32 v{dst}, v{SJ+p}, v{LCH}")
        I(f"v_lshrrev_b32 v{dst}, 4, v{dst}")
        I(f"v_add_u32 v{dst}, v{dst}, v{LCH}")
    for p in range(NPB):
        I(f"s_mov_b32 s42, {boff(p)+KEYOFF}")
        key_addr(p, Y+3)
        extra_count(f"b{p}", KIN, LJ, Y+3, TB+p, 42, LONE, HIST2B, Y)
    e.label("L2_bnoxa")
    I("s_mov_b64 exec, 1")
    I(f"v_mov_b32 v{Y+2}, 0")
    I("s_waitcnt lgkmcnt(0)")
    I(f"ds_add_u32 v{Y+2}, v{LONE} offset:{BSYNC}")
    I("s_mov_b64 exec, -1")
    I(f"v_mov_b32 v{Y+2}, 0")
    spin(e, "bs", Y, Y+2, BSYNC, 4, 44, 42)
    BB = Y + 4
    I(f"ds_read_b32 v{Y}, v{X0} offset:{HISTB}")
    I(f"ds_read_b32 v{Y+1}, v{X0} offset:{HIST2B}")
    I("s_waitcnt lgkmcnt(0)")
    I(f"v_add_u32 v{Y+1}, v{Y}, v{Y+1}")
    I(f"v_mov_b32 v{BB}, v{Y+1}")
    scan64(e, BB)
    I(f"v_sub_u32 v{BB}, v{BB}, v{Y+1}")
    I(f"v_add_u32 v{BB}, {BOFF}, v{BB}")
    for k in range(2*NPB):
        I(f"ds_bpermute_b32 v{KB+k}, v{KB+k}, v{BB}")
    I("s_cmp_lg_u32 s21, 0")
    I("s_cbranch_scc1 L2_bnoinfo")
    I(f"v_lshl_or_b32 v{Y+1}, v{Y+1}, 16, v{BB}")
    I(f"s_mov_b32 exec_lo, {((1 << 32) - (1 << HN))}")
    I(f"ds_write_b32 v{X0}, v{Y+1} offset:{INFO}")
    I("s_mov_b64 exec, -1")
    e.label("L2_bnoinfo")
    I("s_waitcnt lgkmcnt(0)")
    for k in range(2*NPB):
        I(f"v_add_lshl_u32 v{KB+k}, v{KB+k}, v{RB+k}, 4")
    I(f"v_mov_b32 v{LONE}, v{Y}")
    regs = P0 + [RB, RB+4, RB+8, RB+12]
    for k in range(4, 8): pay_issue(k >> 1, k & 1, regs[k])
    for k in range(16):
        I(f"s_waitcnt vmcnt({min(7, 15-k)})")
        I(f"s_mov_b64 exec, {mb(k>>1, k&1)}")
        I(f"ds_write_b128 v{KB+k}, v[{regs[k&7]}:{regs[k&7]+3}] offset:{RAW}")
        if k + 8 < 16: pay_issue((k+8) >> 1, (k+8) & 1, regs[k&7])
    I("s_mov_b64 exec, -1")
    I("s_cmp_eq_u32 s35, 0")
    I("s_cbranch_scc1 L2_bnoxb")
    for p in range(NPB):
        I(f"v_and_b32 v{Y}, 0xff, v{KA+p}")
        I(f"ds_bpermute_b32 v{Y}, v{Y}, v{BB}")
        w2mask(p)
        e.branch(f"s_cbranch_execz L2_bw2b{p}")
        I(f"s_mov_b32 s42, {boff(p)+PAYOFF}")
        I(f"buffer_load_dwordx4 v[{TF}:{TF+3}], v{SJ+p}, s[8:11], s42 offen offset:256 {rf}")
        I(f"v_lshrrev_b32 v{KA+p}, 8, v{KA+p}")
        I("s_waitcnt vmcnt(0) lgkmcnt(0)")
        I(f"v_add_lshl_u32 v{Y}, v{Y}, v{KA+p}, 4")
        I(f"ds_write_b128 v{Y}, v[{TF}:{TF+3}] offset:{RAW}")
        e.label(f"L2_bw2b{p}")
        I("s_mov_b64 exec, -1")
        I("s_waitcnt lgkmcnt(0)")
    I(f"v_add_u32 v{BB}, v{BB}, v{LONE}")
    I(f"v_mov_b32 v{LONE}, 1")
    for p in range(NPB):
        I(f"s_mov_b32 s42, {boff(p)+KEYOFF}")
        I(f"s_mov_b32 s43, {boff(p)+PAYOFF}")
        key_addr(p, KA+p)
        extra_move(f"b{p}", KIN, LJ, KA+p, SJ+p, TB+p, 42, 43, LONE, CUR2B, BB, Y, TF)
    e.label("L2_bnoxb")
    I("s_waitcnt lgkmcnt(0)")
    for k in range(64):
        I(f"v_mov_b32 v{G+k}, 0")
    I("s_cmp_lg_u32 s21, 1")
    I("s_cbranch_scc1 L2_bnoguard")
    I(f"s_add_u32 s42, s34, {BOFF}")
    I("s_lshl_b32 s42, s42, 4")
    I(f"v_lshl_add_u32 v{TF}, v{X0}, 2, s42")
    I(f"ds_write_b128 v{TF}, v[{G}:{G+3}] offset:{RAW}")
    I("s_waitcnt lgkmcnt(0)")
    e.label("L2_bnoguard")
    I(f"v_mov_b32 v{TF}, 1")
    I("s_mov_b64 exec, 1")
    I(f"ds_add_u32 v{G}, v{TF} offset:{BREADY}")
    I("s_mov_b64 exec, -1")
    stamp(e, c, 13)
    I("s_branch L2_m_tiles")
    e.label("L2_m_slowC")
    I("s_barrier")
    e.label("L2_m_tiles")
    if c.prio_m: I(f"s_setprio {c.prio_m}")
    for h in range(2):
        for t in ((0, 3, 1, 2) if h else range(4)):
            need = 16 if t < 3 else NODES - 48
            last = (h, t) == (1, 2)
            if c.prefin and c.wideout and h == 1:
                PW, PLA, PLB, PGA, PR0, PZ, PONE = 0, 1, 2, 3, 4, 5, 6
                I("s_cmp_eq_u32 s24, 0")
                I(f"s_cbranch_scc1 L2_nopre{t}")
                if t == 0:
                    I(f"v_bfe_u32 v7, v{X0}, 2, 4")
                    I(f"v_lshrrev_b32 v{PR0}, 7, v{X0}")
                    I("s_lshl_b32 s42, s21, 1")
                    I(f"v_add_u32 v{PW}, s42, v{PR0}")
                    I(f"v_xor_b32 v{PW}, v{PW}, v7")
                    I(f"v_and_b32 v{PW}, 7, v{PW}")
                    I(f"v_lshlrev_b32 v{PW}, 4, v{PW}")
                    I(f"v_lshl_add_u32 v{PW}, v7, 9, v{PW}")
                    I(f"v_bfe_u32 v7, v{X0}, 6, 1")
                    I(f"v_lshl_add_u32 v{PW}, v7, 3, v{PW}")
                    I(f"v_add_u32 v{PW}, {WRAD}, v{PW}")
                    I("s_lshl_b32 s42, s21, 2")
                    I(f"v_add_u32 v{PR0}, s42, v{PR0}")
                    I(f"v_bfe_u32 v{PGA}, v{X0}, 2, 5")
                    I(f"v_and_b32 v7, 7, v{PR0}")
                    I(f"v_xor_b32 v{PLA}, v{PGA}, v7")
                    I(f"v_lshlrev_b32 v{PLA}, 4, v{PLA}")
                    I(f"v_lshl_add_u32 v{PLA}, v{PR0}, 9, v{PLA}")
                    I(f"v_add_u32 v{PLA}, {WRAD}, v{PLA}")
                    I(f"v_xor_b32 v{PLB}, 32, v{PLA}")
                    I(f"v_lshlrev_b32 v{PGA}, 4, v{PGA}")
                    I(f"v_lshl_add_u32 v{PGA}, v{PR0}, 9, v{PGA}")
                    I(f"v_add_u32 v{PGA}, s40, v{PGA}")
                    I(f"v_mov_b32 v{PZ}, 0")
                    I(f"v_mov_b32 v{PONE}, 1")
                else:
                    spin(e, f"or{t}", 7, PZ, OUTR + 4*{3: 0, 1: 3, 2: 1}[t], 4, 43, 42)
                e.label(f"L2_nopre{t}")
            if last and c.split: need = 32
            I(f"v_mov_b32 v{TF}, 0")
            spin(e, f"t{h}{t}", TF+1, TF, DONE + 16*h + 4*t, need, 43, 42, sleep=(1 if last else c.sleep))
            stamp(e, c, 16 + 4*h + t)
            srcs = [t] + ([0] if last and c.split else [])
            steps = [(tt, ks) for tt in srcs for ks in range(16)]
            def mf(ks, r):
                jp, blk = ks >> 2, 2 * h + ((ks >> 1) & 1)
                p, i, sg = path_of(jp, blk)
                f = p * 2 + (ks & 1)
                g = G + 16 * t + 4 * i
                I(f"v_mfma_f32_16x16x32_bf16 v[{g}:{g+3}], v[{W+4*f}:{W+4*f+3}], v[{r}:{r+3}], v[{g}:{g+3}]")
            def rd(n, r):
                tt, ks = steps[n]
                I(f"ds_read_b128 v[{r}:{r+3}], v{TA+(ks&3)} offset:{tt*16384 + (ks>>2)*256}")
            if last and c.fastlast and not c.split:
                I("s_cmp_eq_u32 s24, 0")
                I("s_cbranch_scc1 L2_lastslow")
                fr = [TF + 4*n for n in range(4)] + [G + 4*n for n in range(8)] + [G + 48 + 4*n for n in range(4)]
                order = [0, 2, 4, 8, 1, 3, 5, 9, 6, 10, 12, 14, 7, 11, 13, 15]
                for n, ks in enumerate(order): rd(ks, fr[n])
                for n, ks in enumerate(order):
                    I(f"s_waitcnt lgkmcnt({15-n})")
                    mf(ks, fr[n])
                I("s_branch L2_lastdone")
                e.label("L2_lastslow")
            for n in range(4): rd(n, TF + 4*n)
            for n in range(len(steps)):
                I(f"s_waitcnt lgkmcnt({min(3, len(steps)-1-n)})")
                mf(steps[n][1], TF + 4*(n&3))
                if n + 4 < len(steps): rd(n + 4, TF + 4*(n&3))
            if last and c.fastlast and not c.split: e.label("L2_lastdone")
            if (h, t) == (1, 0) and c.split:
                I(f"v_mov_b32 v{TF}, 0")
                I(f"v_mov_b32 v{TF+1}, 1")
                I("s_mov_b64 exec, 1")
                I(f"ds_add_u32 v{TF}, v{TF+1} offset:{GDONE + 16}")
                I("s_mov_b64 exec, -1")
            if h == 0:
                I(f"v_mov_b32 v{TF}, 0")
                I(f"v_mov_b32 v{TF+1}, 1")
                I("s_mov_b64 exec, 1")
                I(f"ds_add_u32 v{TF}, v{TF+1} offset:{GDONE + 4*t}")
                I("s_mov_b64 exec, -1")
                if t == c.pf1_tile:
                    I(f"s_movk_i32 m0, {HIST2B}")
                    I("s_lshl_b32 s42, s21, 6")
                    I(f"v_lshrrev_b32 v{TF+3}, 2, v{X0}")
                    I(f"v_add_u32 v{TF+3}, s42, v{TF+3}")
                    prefetch_x(e, c.pf1_lines, TF + 4, TF + 3, 256, 31, 1, 4, lds=True)
            else:
                I("s_cmp_eq_u32 s24, 0")
                e.branch(f"s_cbranch_scc1 L2_nofin{t}")
                g = G + 16 * t
                I("s_mov_b32 s42, 0xbfb8aa3b")
                for r in range(4): I(f"v_mul_f32 v{TF+r}, s42, v{g+r}")
                for r in range(4): I(f"v_exp_f32 v{TF+r}, v{TF+r}")
                for r in range(4): I(f"v_add_f32 v{TF+r}, 1.0, v{TF+r}")
                for r in range(4): I(f"v_rcp_f32 v{TF+r}, v{TF+r}")
                for i in range(1, 4):
                    for r in range(4): I(f"v_mul_f32 v{g+4*i+r}, v{g+4*i+r}, v{TF+r}")
                for i in range(4):
                    I(f"v_cvt_pk_bf16_f32 v{TF+4+2*i}, v{g+4*i}, v{g+4*i+1}")
                    I(f"v_cvt_pk_bf16_f32 v{TF+5+2*i}, v{g+4*i+2}, v{g+4*i+3}")
                fl = c.out_flags if (t == 2 or c.out_early is None) else c.out_early
                if c.wideout and c.prefin:
                    z, a1, r0, ga = PZ, PONE, PR0, PGA
                    for i in range(4):
                        I(f"ds_write_b64 v{PW}, v[{TF+4+2*i}:{TF+5+2*i}] offset:{i*128}")
                    I("s_mov_b64 exec, 1")
                    I(f"ds_add_u32 v{PZ}, v{PONE} offset:{OUTW + 4*t}")
                    I("s_mov_b64 exec, -1")
                    spin(e, f"ow{t}", 7, PZ, OUTW + 4*t, 4, 43, 42)
                    I(f"ds_read_b128 v[{TF+4}:{TF+7}], v{PLA}")
                    I(f"ds_read_b128 v[{TF+8}:{TF+11}], v{PLB} offset:1024")
                elif c.wideout:
                    prev = {0: None, 3: 0, 1: 3, 2: 1}[t]
                    z, a1, a2 = TF, TF + 1, TF + 2
                    I(f"v_mov_b32 v{z}, 0")
                    if prev is not None: spin(e, f"or{t}", a1, z, OUTR + 4*prev, 4, 43, 42)
                    I(f"v_bfe_u32 v{a1}, v{X0}, 2, 4")
                    I(f"v_lshrrev_b32 v{a2}, 7, v{X0}")
                    I("s_lshl_b32 s42, s21, 1")
                    I(f"v_add_u32 v{a2}, s42, v{a2}")
                    I(f"v_xor_b32 v{a2}, v{a2}, v{a1}")
                    I(f"v_and_b32 v{a2}, 7, v{a2}")
                    I(f"v_lshlrev_b32 v{a2}, 4, v{a2}")
                    I(f"v_lshl_add_u32 v{a2}, v{a1}, 9, v{a2}")
                    I(f"v_bfe_u32 v{a1}, v{X0}, 6, 1")
                    I(f"v_lshl_add_u32 v{a2}, v{a1}, 3, v{a2}")
                    I(f"v_add_u32 v{a2}, {WRAD}, v{a2}")
                    for i in range(4):
                        I(f"ds_write_b64 v{a2}, v[{TF+4+2*i}:{TF+5+2*i}] offset:{i*128}")
                    I(f"v_mov_b32 v{a1}, 1")
                    I("s_mov_b64 exec, 1")
                    I(f"ds_add_u32 v{z}, v{a1} offset:{OUTW + 4*t}")
                    I("s_mov_b64 exec, -1")
                    r0, ga, la = TF + 12, TF + 13, TF + 3
                    I(f"v_lshrrev_b32 v{r0}, 7, v{X0}")
                    I("s_lshl_b32 s42, s21, 2")
                    I(f"v_add_u32 v{r0}, s42, v{r0}")
                    I(f"v_bfe_u32 v{ga}, v{X0}, 2, 5")
                    I(f"v_and_b32 v{a2}, 7, v{r0}")
                    I(f"v_xor_b32 v{la}, v{ga}, v{a2}")
                    I(f"v_lshlrev_b32 v{la}, 4, v{la}")
                    I(f"v_lshl_add_u32 v{la}, v{r0}, 9, v{la}")
                    I(f"v_add_u32 v{la}, {WRAD}, v{la}")
                    I(f"v_xor_b32 v{a2}, 32, v{la}")
                    I(f"v_lshlrev_b32 v{ga}, 4, v{ga}")
                    I(f"v_lshl_add_u32 v{ga}, v{r0}, 9, v{ga}")
                    I(f"v_add_u32 v{ga}, s40, v{ga}")
                    spin(e, f"ow{t}", a1, z, OUTW + 4*t, 4, 43, 42)
                    I(f"ds_read_b128 v[{TF+4}:{TF+7}], v{la}")
                    I(f"ds_read_b128 v[{TF+8}:{TF+11}], v{a2} offset:1024")
                if c.wideout:
                    for k in range(2):
                        base = 16*t + 2*k
                        I(f"s_mov_b32 s42, {base*512 + ((N//2-HN)*512 if t >= 2 else 0)}")
                        va = ga
                        if t == 1:
                            va = TF + 14
                            I(f"v_cmp_le_u32 vcc, {HN-base}, v{r0}")
                            I(f"v_add_u32 v{TF+15}, {(N//2-HN)*512}, v{ga}")
                            I(f"s_sub_u32 s43, s41, {base}")
                            I(f"v_cndmask_b32 v{va}, v{ga}, v{TF+15}, vcc")
                            I(f"v_cmp_gt_i32 s[44:45], s43, v{r0}")
                            e.nop(1)
                            I("s_or_b64 exec, vcc, s[44:45]")
                        if t == 3:
                            I(f"s_sub_u32 s43, s41, {base-HN}")
                            I(f"v_cmp_gt_i32 vcc, s43, v{r0}")
                            e.nop(1)
                            I("s_mov_b64 exec, vcc")
                        I(f"s_waitcnt lgkmcnt({1-k})")
                        if t == 3: I(f"s_cbranch_execz L2_wo3{k}")
                        I(f"buffer_store_dwordx4 v[{TF+4+4*k}:{TF+7+4*k}], v{va}, s[12:15], s42 offen {fl}")
                        if t == 3: e.label(f"L2_wo3{k}")
                        if t in (1, 3): I("s_mov_b64 exec, -1")
                    if t != 2:
                        if not c.prefin: I(f"v_mov_b32 v{a1}, 1")
                        I("s_mov_b64 exec, 1")
                        I(f"ds_add_u32 v{z}, v{a1} offset:{OUTR + 4*t}")
                        I("s_mov_b64 exec, -1")
                else:
                    I(f"s_mov_b32 s42, {t*16*512 + ((N//2-HN)*512 if t >= 2 else 0)}")
                    va = X1
                    if t == 1:
                        va = TF
                        I(f"v_add_u32 v{TF}, {(N//2-HN)*512}, v{X1}")
                        I(f"v_cndmask_b32 v{TF}, v{X1}, v{TF}, s[84:85]")
                        I("s_mov_b64 exec, s[94:95]")
                    if t == 3:
                        I("s_mov_b64 exec, s[50:51]")
                        I("s_cbranch_execz L2_nost3")
                    for i in range(4):
                        I(f"buffer_store_dwordx2 v[{TF+4+2*i}:{TF+5+2*i}], v{va}, s[12:15], s42 offen offset:{i*128} {c.out_flags if (t == 2 or c.out_early is None) else c.out_early}")
                    if t == 3: e.label("L2_nost3")
                    if t in (1, 3): I("s_mov_b64 exec, -1")
                e.label(f"L2_nofin{t}")
    stamp(e, c, 11)
    I("s_cmp_lg_u32 s24, 0")
    e.branch("s_cbranch_scc1 L2_m_exit")
    I("s_add_u32 s89, s89, 1")
    I("s_branch L2_m_slow")
    e.label("L2_m_overflow")
    I("s_mov_b32 s89, 0")
    I("s_mov_b32 s23, 1")
    I("s_waitcnt vmcnt(0)")
    for k in range(64):
        I(f"v_mov_b32 v{G+k}, 0")
    e.label("L2_m_slow")
    I("s_waitcnt vmcnt(0) lgkmcnt(0)")
    I("s_barrier")
    I(f"s_cmp_eq_u32 s89, {2*NCH-1}")
    I("s_cselect_b32 s24, 1, 0")
    I("s_cmp_lg_u32 s21, 1")
    I("s_cbranch_scc1 L2_m_nz")
    for k in range(4): I(f"v_mov_b32 v{TF+k}, 0")
    I(f"v_lshlrev_b32 v{TF+4}, 2, v{X0}")
    I(f"ds_write_b128 v{TF+4}, v[{TF}:{TF+3}]")
    I("s_waitcnt lgkmcnt(0)")
    e.label("L2_m_nz")
    I("s_barrier")
    e.branch("s_branch L2_m_round")
    e.label("L2_m_exit")
    if c.stamps:
        I("s_waitcnt vmcnt(0)")
        stamp(e, c, 12)
        stamp_store(e, c, TF)
    e.label("L_end")
    I("s_endpgm")
    e.label("L_codeend")
    return KNAME, 128, 96

def gather_loop(e, c, L):
    I = e.I
    RAW, T, NEXT, DONE, GDONE, OSC, PL1, BREADY, INFO = (L[k] for k in "RAW T NEXT DONE GDONE OSC PL1 BREADY INFO".split())
    VLANE, VINFO, VNEXT, VLOFF, VMASK, VOW, VOR, VSCRW, VTRA, VWR, VL16, VT0, VT1, VONE = (L[k] for k in
        "VLANE VINFO VNEXT VLOFF VMASK VOW VOR VSCRW VTRA VWR VL16 VT0 VT1 VONE".split())
    ACC, LD, B, A, AD = 0, 32, 64, 96, 100
    sA, sR, sH, sN, sNV = 32, 33, 34, 35, 37
    sCN, sCH, sCF, sCR, sL = 38, 39, 40, 41, 36
    uid = [0]
    def lab(p):
        uid[0] += 1
        return f"L2_{p}{uid[0]}"
    def fetch_issue():
        I("s_mov_b64 exec, 1")
        I(f"ds_add_rtn_u32 v{VNEXT}, v{VL16}, v{VONE} offset:{NEXT}")
        I("s_mov_b64 exec, -1")
    NIT = 2*NODES + (16 if c.split else 0)
    def setup_item(none_label):
        I(f"v_readfirstlane_b32 s42, v{VNEXT}")
        e.nop(1)
        if c.static1: I("s_add_u32 s42, s42, 12")
        I(f"s_cmp_ge_u32 s42, {NIT}")
        I(f"s_cbranch_scc1 {none_label}")
        t, sp, dn = lab("bw"), lab("sp"), lab("sd")
        if c.split:
            I(f"s_cmp_ge_u32 s42, {2*NODES-16}")
            I(f"s_cbranch_scc1 {sp}")
        I(f"s_cmp_ge_u32 s42, {NODES}")
        I(f"s_cselect_b32 s{sH}, 256, 0")
        I(f"s_cselect_b32 s43, {NODES}, 0")
        I(f"s_cmp_ge_u32 s42, {NODES+16}")
        I(f"s_cselect_b32 s43, {NODES-32}, s43")
        I(f"s_cmp_ge_u32 s42, {NODES+18}")
        I(f"s_cselect_b32 s43, {NODES+2}, s43")
        I(f"s_sub_u32 s{sN}, s42, s43")
        I(f"s_cmp_lt_u32 s{sN}, s48")
        I(f"s_cbranch_scc1 {t}")
        stamp(e, c, 29)
        I(f"v_mov_b32 v{VT0}, 0")
        spin(e, t, VT1, VT0, BREADY, 4, 45, 44, sleep=1)
        I(f"v_lshrrev_b32 v{VT0}, 2, v{VL16}")
        I(f"ds_read_b32 v{VINFO}, v{VT0} offset:{INFO}")
        I("s_movk_i32 s48, 64")
        I("s_waitcnt lgkmcnt(0)")
        stamp(e, c, 30)
        e.label(t)
        I(f"v_readlane_b32 s42, v{VINFO}, s{sN}")
        e.nop(1)
        I(f"s_lshr_b32 s{sR}, s42, 16")
        I("s_and_b32 s42, s42, 0xffff")
        I(f"s_lshl_b32 s{sA}, s42, 4")
        if c.split:
            I(f"s_branch {dn}")
            e.label(sp)
            I(f"s_sub_u32 s42, s42, {2*NODES-16}")
            I("s_lshr_b32 s43, s42, 1")
            I(f"s_add_u32 s{sN}, s43, 32")
            I(f"s_cmp_lt_u32 s{sN}, s48")
            I(f"s_cbranch_scc1 {t}b")
            I(f"v_mov_b32 v{VT0}, 0")
            spin(e, t + "c", VT1, VT0, BREADY, 4, 45, 44, sleep=1)
            I(f"v_lshrrev_b32 v{VT0}, 2, v{VL16}")
            I(f"ds_read_b32 v{VINFO}, v{VT0} offset:{INFO}")
            I("s_movk_i32 s48, 64")
            I("s_waitcnt lgkmcnt(0)")
            e.label(t + "b")
            I(f"v_readlane_b32 s44, v{VINFO}, s{sN}")
            I(f"s_movk_i32 s{sH}, 256")
            I(f"s_lshr_b32 s{sR}, s44, 16")
            I("s_and_b32 s44, s44, 0xffff")
            I(f"s_min_u32 s45, s{sR}, 32")
            I("s_bitcmp1_b32 s42, 0")
            I(f"s_cbranch_scc1 {sp}h")
            I(f"s_mov_b32 s{sR}, s45")
            I(f"s_lshl_b32 s{sA}, s44, 4")
            I(f"s_branch {dn}")
            e.label(sp + "h")
            I(f"s_sub_u32 s{sR}, s{sR}, s45")
            I("s_add_u32 s44, s44, s45")
            I(f"s_lshl_b32 s{sA}, s44, 4")
            I(f"s_or_b32 s{sN}, s43, 64")
            e.label(dn)
    def off_read(hf):
        I(f"ds_read_b128 v[{AD}:{AD+3}], v{VOR} offset:{OSC+128*hf}")
        I(f"ds_read_b128 v[{AD+4}:{AD+7}], v{VOR} offset:{OSC+128*hf+16}")
    def off_add():
        if c.addtid: return
        for i in range(8):
            I(f"v_add_u32 v{AD+i}, v{AD+i}, v{VLOFF}")
    def prep_block(first=False):
        r = B
        I(f"v_add_u32 v{VT0}, s{sA}, v{VL16}")
        I(f"ds_read_b128 v[{r}:{r+3}], v{VT0} offset:{RAW}")
        l = lab("nf")
        I(f"s_cmp_gt_u32 s{sR}, 64")
        I(f"s_cbranch_scc1 {l}")
        fetch_issue()
        e.label(l)
        I(f"v_cmp_gt_u32 vcc, s{sR}, v{VLANE}")
        I("s_waitcnt lgkmcnt(0)")
        I(f"v_lshrrev_b32 v{r+11}, 16, v{r+3}")
        if c.addtid:
            I(f"v_lshlrev_b32 v{r+11}, 5, v{r+11}")
            I(f"v_sub_u32 v{r+11}, v{r+11}, v{VLOFF}")
        else:
            I(f"v_lshlrev_b32 v{r+11}, 9, v{r+11}")
            if c.oobtail: I(f"v_cndmask_b32 v{r+11}, 2.0, v{r+11}, vcc")
        I(f"ds_write_b32 v{VOW}, v{r+11} offset:{OSC}")
        off_read(0)
        if first:
            if c.totlate:
                I("v_readfirstlane_b32 s42, v96")
                e.nop(1)
                I(f"s_cmp_gt_u32 s42, {c.cap}")
                I("s_cbranch_scc1 L2_g_overflow")
            I("s_waitcnt lgkmcnt(0)")
            off_add()
            for i in range(8): ld(i)
        if not c.x_noexp:
            I(f"v_cndmask_b32 v{r}, 0, v{r}, vcc")
            I(f"v_cndmask_b32 v{r+1}, 0, v{r+1}, vcc")
            I(f"v_lshlrev_b32 v{r+8}, 16, v{r+2}")
            I(f"v_and_b32 v{r+9}, v{VMASK}, v{r+2}")
            I(f"v_lshlrev_b32 v{r+10}, 16, v{r+3}")
            I(f"v_lshlrev_b32 v{r+4}, 16, v{r}")
            I(f"v_and_b32 v{r+5}, v{VMASK}, v{r}")
            I(f"v_lshlrev_b32 v{r+6}, 16, v{r+1}")
            I(f"v_and_b32 v{r+7}, v{VMASK}, v{r+1}")
            for j in range(3):
                for d in range(4):
                    I(f"v_mul_f32 v{r+12+4*j+d}, v{r+4+d}, v{r+8+j}")
            I(f"v_cvt_pk_bf16_f32 v{r+2}, v{r+12}, v{r+13}")
            I(f"v_cvt_pk_bf16_f32 v{r+3}, v{r+14}, v{r+15}")
            for k in range(4):
                I(f"v_cvt_pk_bf16_f32 v{r+24+k}, v{r+16+2*k}, v{r+17+2*k}")
        I(f"ds_write_b128 v{VSCRW}, v[{r}:{r+3}]")
        I(f"ds_write_b128 v{VSCRW}, v[{r+24}:{r+27}] offset:{PL1}")
        if first: return
        I("s_waitcnt lgkmcnt(2)")
        off_add()
    def ld(i):
        if c.x_noload: return
        I(f"buffer_load_dwordx4 v[{LD+4*i}:{LD+4*i+3}], v{AD+i}, s[4:7], {'0' if c.x_samehalf else 's%d' % sH} {'idxen' if c.addtid else 'offen'}")
    def perm(q, jj, k16=False):
        if c.x_noperm: return
        d = B + 2*q + jj if k16 else B + 4*q + jj
        I(f"v_perm_b32 v{d}, v{LD+4*(2*jj+1)+q//2}, v{LD+4*(2*jj)+q//2}, s{29 if q & 1 else 28}")
    def loads_partial(done):
        for i in range(7):
            I(f"s_cmp_le_u32 s{sL}, {4*i}")
            I(f"s_cbranch_scc1 {done}")
            ld(i)
    def perms_loads():
        part, done = lab("pp"), lab("pd")
        I("s_waitcnt vmcnt(0)")
        I(f"s_cmp_le_u32 s{sL}, 28")
        I(f"s_cbranch_scc1 {part}")
        for jj in range(4):
            for q in range(8): perm(q, jj)
            ld(2*jj); ld(2*jj+1)
        I(f"s_branch {done}")
        e.label(part)
        for jj in range(4):
            for q in range(8): perm(q, jj)
        loads_partial(done)
        e.label(done)
    def mfmas(first, k16=False):
        if c.x_nomfma: return
        for q in range(8):
            d = f"v[{ACC+4*q}:{ACC+4*q+3}]"
            if k16: I(f"v_mfma_f32_16x16x16_bf16 {d}, v[{A}:{A+1}], v[{B+2*q}:{B+2*q+1}], {'0' if first else d}")
            else: I(f"v_mfma_f32_16x16x32_bf16 {d}, v[{A}:{A+3}], v[{B+4*q}:{B+4*q+3}], {'0' if first else d}")
    def tr_read(hf):
        I(f"ds_read_b64_tr_b16 v[{A}:{A+1}], v{VTRA} offset:{512*hf}")
        I(f"ds_read_b64_tr_b16 v[{A+2}:{A+3}], v{VTRA} offset:{512*hf+256}")

    if c.stamps: I("s_mov_b32 s92, 16")
    setup_item("L2_g_done")
    if c.firstfast:
        prep_block(True)
    else:
        prep_block()
        if c.totlate:
            I("v_readfirstlane_b32 s42, v96")
            e.nop(1)
            I(f"s_cmp_gt_u32 s42, {c.cap}")
            I("s_cbranch_scc1 L2_g_overflow")
        for i in range(8): ld(i)
    if c.prio_pro == 3: I("s_setprio 0")
    for first in (1, 0):
        e.label(f"L2_A{first}")
        tr_read(0)
        I(f"s_cmp_gt_u32 s{sR}, 32")
        I(f"s_cbranch_scc1 L2_AB{first}")
        I(f"s_mov_b32 s{sCF}, {first}")
        I(f"s_mov_b32 s{sCR}, s{sR}")
        I("s_branch L2_XN")
        e.label(f"L2_AB{first}")
        off_read(1)
        I(f"s_sub_u32 s{sL}, s{sR}, 32")
        I("s_waitcnt lgkmcnt(0)")
        off_add()
        perms_loads()
        mfmas(first)
        if first: I("s_branch L2_B")
    e.label("L2_B")
    tr_read(1)
    I(f"s_cmp_gt_u32 s{sR}, 64")
    I("s_cbranch_scc0 L2_BN")
    I(f"s_sub_u32 s{sR}, s{sR}, 64")
    I(f"s_add_u32 s{sA}, s{sA}, 1024")
    I(f"s_mov_b32 s{sL}, s{sR}")
    prep_block()
    perms_loads()
    I("s_waitcnt lgkmcnt(0)")
    mfmas(0)
    I("s_branch L2_A0")
    e.label("L2_BN")
    I(f"s_mov_b32 s{sCF}, 0")
    I(f"s_sub_u32 s{sCR}, s{sR}, 32")
    e.label("L2_XN")
    I(f"s_mov_b32 s{sCN}, s{sN}")
    I(f"s_mov_b32 s{sCH}, s{sH}")
    I(f"s_mov_b32 s{sNV}, 1")
    setup_item("L2_XN_none")
    I(f"s_mov_b32 s{sL}, s{sR}")
    prep_block()
    I("s_branch L2_XN_go")
    e.label("L2_XN_none")
    I(f"s_mov_b32 s{sNV}, 0")
    I(f"s_mov_b32 s{sL}, 0")
    e.label("L2_XN_go")
    I(f"s_cmp_le_u32 s{sCR}, 16")
    I("s_cbranch_scc1 L2_XN_k16")
    perms_loads()
    I("s_waitcnt lgkmcnt(0)")
    I(f"s_cmp_eq_u32 s{sCF}, 0")
    I("s_cbranch_scc1 L2_XN_acc")
    mfmas(1)
    I("s_branch L2_XN_epi")
    e.label("L2_XN_acc")
    mfmas(0)
    I("s_branch L2_XN_epi")
    e.label("L2_XN_k16")
    I("s_waitcnt vmcnt(0)")
    for jj in range(2):
        for q in range(8): perm(q, jj, True)
    I(f"s_cmp_le_u32 s{sL}, 28")
    I("s_cbranch_scc1 L2_XN_k16p")
    for i in range(8): ld(i)
    I("s_branch L2_XN_k16d")
    e.label("L2_XN_k16p")
    loads_partial("L2_XN_k16d")
    e.label("L2_XN_k16d")
    I("s_waitcnt lgkmcnt(0)")
    I(f"s_cmp_eq_u32 s{sCF}, 0")
    I("s_cbranch_scc1 L2_XN_k16acc")
    mfmas(1, True)
    I("s_branch L2_XN_epi")
    e.label("L2_XN_k16acc")
    mfmas(0, True)
    e.label("L2_XN_epi")
    I(f"s_lshl_b32 s42, s{sCH}, 5")
    I(f"v_add_u32 v{VT0}, s42, v{VWR}")
    for q in range(8):
        I(f"ds_read_b128 v[{B+4*q}:{B+4*q+3}], v{VT0} offset:{q*1024}")
    I(f"s_lshr_b32 s43, s{sCN}, 4")
    I(f"s_lshl_b32 s43, s43, 2")
    I(f"s_cmp_eq_u32 s{sCH}, 0")
    I("s_cbranch_scc1 L2_nowar")
    I(f"v_mov_b32 v{VT1}, s43")
    spin(e, "war", VT0, VT1, GDONE, 4, 45, 44)
    if c.split:
        I("s_cmp_eq_u32 s43, 16")
        I("s_cselect_b32 s43, 8, s43")
    I("s_add_u32 s43, s43, 16")
    e.label("L2_nowar")
    I(f"s_and_b32 s44, s{sCN}, 15")
    I("s_lshl_b32 s44, s44, 4")
    I(f"s_and_b32 s45, s{sCN}, 63")
    I(f"s_lshl_b32 s45, s45, 10")
    I(f"s_add_u32 s45, s45, {T}")
    I(f"v_xor_b32 v{VT0}, s44, v{VL16}")
    I(f"v_add_u32 v{VT0}, s45, v{VT0}")
    I(f"v_mov_b32 v{VT1}, s43")
    I("s_waitcnt lgkmcnt(0)")
    for q in range(8):
        I(f"v_mul_f32 v{B+4*q}, v{B+4*q}, v{ACC+4*q}")
    for d in range(1, 4):
        for q in range(8):
            I(f"v_fmac_f32 v{B+4*q}, v{B+4*q+d}, v{ACC+4*q+d}")
    for k in range(4):
        I(f"v_cvt_pk_bf16_f32 v{A+k}, v{B+8*k}, v{B+8*k+4}")
    I(f"ds_write_b128 v{VT0}, v[{A}:{A+3}]")
    if not c.nowait: I("s_waitcnt lgkmcnt(0)")
    I("s_mov_b64 exec, 1")
    I(f"ds_add_u32 v{VT1}, v{VONE} offset:{DONE}")
    I("s_mov_b64 exec, -1")
    if c.stamps:
        I("s_memrealtime s[90:91]")
        I("s_waitcnt lgkmcnt(0)")
        I("s_mov_b32 m0, s92")
        I(f"v_writelane_b32 v{STV}, s90, m0")
        I("s_add_u32 s92, s92, 1")
        I("s_min_u32 s92, s92, 23")
    I(f"s_cmp_lg_u32 s{sNV}, 0")
    I("s_cbranch_scc1 L2_A1")

def gather_loop_s(e, c, L):
    I = e.I
    RAW, T, NEXT, DONE, GDONE, OSC, PL1, BREADY, INFO = (L[k] for k in "RAW T NEXT DONE GDONE OSC PL1 BREADY INFO".split())
    VLANE, VINFO, VNEXT, VLOFF, VMASK, VOW, VOR, VSCRW, VTRA, VWR, VL16, VT0, VT1, VONE = (L[k] for k in
        "VLANE VINFO VNEXT VLOFF VMASK VOW VOR VSCRW VTRA VWR VL16 VT0 VT1 VONE".split())
    VTRB, VIDX = L["VJ"], L["VSEL"]
    ACC, LD, B, A, AD = 0, 32, 64, 96, 100
    sA, sR, sH, sN, sNV = 32, 33, 34, 35, 37
    sCN, sCH, sCR, sL = 38, 39, 41, 36
    uid = [0]
    def lab(p):
        uid[0] += 1
        return f"L3_{p}{uid[0]}"
    def fetch_issue():
        I("s_mov_b64 exec, 1")
        I(f"ds_add_rtn_u32 v{VNEXT}, v{VL16}, v{VONE} offset:{NEXT}")
        I("s_mov_b64 exec, -1")
    def setup_item(none_label):
        I(f"v_readfirstlane_b32 s42, v{VNEXT}")
        e.nop(1)
        I(f"s_cmp_ge_u32 s42, {2*NODES}")
        I(f"s_cbranch_scc1 {none_label}")
        I(f"s_cmp_ge_u32 s42, {NODES}")
        I(f"s_cselect_b32 s{sH}, 256, 0")
        I(f"s_cselect_b32 s43, {NODES}, 0")
        I(f"s_cmp_ge_u32 s42, {NODES+16}")
        I(f"s_cselect_b32 s43, {NODES-32}, s43")
        I(f"s_cmp_ge_u32 s42, {NODES+18}")
        I(f"s_cselect_b32 s43, {NODES+2}, s43")
        I(f"s_sub_u32 s{sN}, s42, s43")
        t = lab("bw")
        I(f"s_cmp_lt_u32 s{sN}, s48")
        I(f"s_cbranch_scc1 {t}")
        stamp(e, c, 29)
        I(f"v_mov_b32 v{VT0}, 0")
        spin(e, t, VT1, VT0, BREADY, 4, 45, 44, sleep=1)
        I(f"v_lshrrev_b32 v{VT0}, 2, v{VL16}")
        I(f"ds_read_b32 v{VINFO}, v{VT0} offset:{INFO}")
        I("s_movk_i32 s48, 64")
        I("s_waitcnt lgkmcnt(0)")
        stamp(e, c, 30)
        e.label(t)
        I(f"v_readlane_b32 s42, v{VINFO}, s{sN}")
        e.nop(1)
        I(f"s_lshr_b32 s{sR}, s42, 16")
        I("s_and_b32 s42, s42, 0xffff")
        I(f"s_lshl_b32 s{sA}, s42, 4")
    def off_read(hf):
        I(f"ds_read_b128 v[{AD}:{AD+3}], v{VOR} offset:{OSC+128*hf}")
        I(f"ds_read_b128 v[{AD+4}:{AD+7}], v{VOR} offset:{OSC+128*hf+16}")
    def off_add():
        for i in range(8):
            I(f"v_add_u32 v{AD+i}, v{AD+i}, v{VLOFF}")
    def prep_block():
        r = B
        I(f"v_add_u32 v{VT0}, s{sA}, v{VL16}")
        I(f"ds_read_b128 v[{r}:{r+3}], v{VT0} offset:{RAW}")
        l = lab("nf")
        I(f"s_cmp_gt_u32 s{sR}, 64")
        I(f"s_cbranch_scc1 {l}")
        fetch_issue()
        e.label(l)
        I(f"v_cmp_gt_u32 vcc, s{sR}, v{VLANE}")
        I("s_waitcnt lgkmcnt(0)")
        I(f"v_lshrrev_b32 v{r+11}, 16, v{r+3}")
        I(f"v_lshlrev_b32 v{r+11}, 9, v{r+11}")
        I(f"v_cndmask_b32 v{r+11}, 2.0, v{r+11}, vcc")
        I(f"ds_write_b32 v{VOW}, v{r+11} offset:{OSC}")
        off_read(0)
        I(f"v_cndmask_b32 v{r}, 0, v{r}, vcc")
        I(f"v_cndmask_b32 v{r+1}, 0, v{r+1}, vcc")
        I(f"v_lshlrev_b32 v{r+8}, 16, v{r+2}")
        I(f"v_and_b32 v{r+9}, v{VMASK}, v{r+2}")
        I(f"v_lshlrev_b32 v{r+10}, 16, v{r+3}")
        I(f"v_lshlrev_b32 v{r+4}, 16, v{r}")
        I(f"v_and_b32 v{r+5}, v{VMASK}, v{r}")
        I(f"v_lshlrev_b32 v{r+6}, 16, v{r+1}")
        I(f"v_and_b32 v{r+7}, v{VMASK}, v{r+1}")
        for j in range(3):
            for d in range(4):
                I(f"v_mul_f32 v{r+12+4*j+d}, v{r+4+d}, v{r+8+j}")
        I(f"v_cvt_pk_bf16_f32 v{r+2}, v{r+12}, v{r+13}")
        I(f"v_cvt_pk_bf16_f32 v{r+3}, v{r+14}, v{r+15}")
        for k in range(4):
            I(f"v_cvt_pk_bf16_f32 v{r+24+k}, v{r+16+2*k}, v{r+17+2*k}")
        I(f"ds_write_b128 v{VSCRW}, v[{r}:{r+3}]")
        I(f"ds_write_b128 v{VSCRW}, v[{r+24}:{r+27}] offset:{PL1}")
        I("s_waitcnt lgkmcnt(2)")
        off_add()
    def ld(i):
        if c.x_noload: return
        I(f"buffer_load_dwordx4 v[{LD+4*i}:{LD+4*i+3}], v{AD+i}, s[4:7], s{sH} offen")
    def moves(jj, k16=False):
        for p in range(4):
            d = B + (4 if k16 else 8) * p + 2 * jj
            a, b = LD + 8*jj + (p & 2), LD + 8*jj + 4 + (p & 2)
            I(f"v_pk_mov_b32 v[{d}:{d+1}], v[{a}:{a+1}], v[{b}:{b+1}] op_sel:[{p&1},{p&1}]")
    def loads_partial(done):
        for i in range(7):
            I(f"s_cmp_le_u32 s{sL}, {4*i}")
            I(f"s_cbranch_scc1 {done}")
            ld(i)
    def moves_loads():
        part, done = lab("pp"), lab("pd")
        I("s_waitcnt vmcnt(0)")
        I(f"s_cmp_le_u32 s{sL}, 28")
        I(f"s_cbranch_scc1 {part}")
        for jj in range(4):
            moves(jj)
            ld(2*jj); ld(2*jj+1)
        I(f"s_branch {done}")
        e.label(part)
        for jj in range(4): moves(jj)
        loads_partial(done)
        e.label(done)
    def macs(k16=False):
        for q in range(8):
            d = f"v[{ACC+4*q}:{ACC+4*q+3}]"
            p = q >> 1
            if k16: I(f"v_smfmac_f32_16x16x32_bf16 {d}, v[{A}:{A+1}], v[{B+4*p}:{B+4*p+3}], v{VIDX} cbsz:0 abid:{2*(q&1)}")
            else: I(f"v_smfmac_f32_16x16x64_bf16 {d}, v[{A}:{A+3}], v[{B+8*p}:{B+8*p+7}], v{VIDX} cbsz:0 abid:{q&1}")
    def tr32(hf):
        I(f"ds_read_b64_tr_b16 v[{A}:{A+1}], v{VTRB} offset:{512*hf}")
        I(f"ds_read_b64_tr_b16 v[{A+2}:{A+3}], v{VTRB} offset:{512*hf+16}")
    def tr16(hf):
        I(f"ds_read_b64_tr_b16 v[{A}:{A+1}], v{VTRA} offset:{512*hf}")
    def zero_acc():
        if c.zpk:
            for k in range(0, 32, 2): I(f"v_pk_mov_b32 v[{ACC+k}:{ACC+k+1}], 0, 0")
        else:
            for k in range(32): I(f"v_mov_b32 v{ACC+k}, 0")

    if c.stamps: I("s_mov_b32 s92, 16")
    I(f"v_lshrrev_b32 v{VT0}, 4, v{VLANE}")
    I(f"v_lshrrev_b32 v{VT1}, 5, v{VLANE}")
    I(f"v_mul_u32_u24 v{VT1}, 12, v{VT1}")
    I(f"v_add_u32 v{VT0}, v{VT0}, v{VT1}")
    I(f"v_lshl_add_u32 v{VTRB}, v{VT0}, 4, v{VTRA}")
    I(f"v_mov_b32 v{VIDX}, 0xdddd8888")
    setup_item("L2_g_done")
    prep_block()
    for i in range(8): ld(i)
    zero_acc()
    e.label("L3_A")
    I(f"s_mov_b32 s{sCR}, s{sR}")
    I(f"s_cmp_gt_u32 s{sR}, 32")
    I("s_cbranch_scc0 L3_AN")
    tr32(0)
    off_read(1)
    I(f"s_sub_u32 s{sL}, s{sR}, 32")
    I("s_waitcnt lgkmcnt(0)")
    off_add()
    moves_loads()
    macs()
    I(f"s_sub_u32 s{sCR}, s{sR}, 32")
    I(f"s_cmp_gt_u32 s{sR}, 64")
    I("s_cbranch_scc0 L3_BN")
    tr32(1)
    I(f"s_sub_u32 s{sR}, s{sR}, 64")
    I(f"s_add_u32 s{sA}, s{sA}, 1024")
    I(f"s_mov_b32 s{sL}, s{sR}")
    prep_block()
    moves_loads()
    I("s_waitcnt lgkmcnt(0)")
    macs()
    I("s_branch L3_A")
    for hf, nm in ((0, "AN"), (1, "BN")):
        e.label(f"L3_{nm}")
        I(f"s_cmp_le_u32 s{sCR}, 16")
        I(f"s_cbranch_scc1 L3_{nm}16")
        tr32(hf)
        I("s_branch L3_XN")
        e.label(f"L3_{nm}16")
        tr16(hf)
        if hf == 0: I("s_branch L3_XN")
    e.label("L3_XN")
    I(f"s_mov_b32 s{sCN}, s{sN}")
    I(f"s_mov_b32 s{sCH}, s{sH}")
    I(f"s_mov_b32 s{sNV}, 1")
    setup_item("L3_XN_none")
    I(f"s_mov_b32 s{sL}, s{sR}")
    prep_block()
    I("s_branch L3_XN_go")
    e.label("L3_XN_none")
    I(f"s_mov_b32 s{sNV}, 0")
    I(f"s_mov_b32 s{sL}, 0")
    e.label("L3_XN_go")
    I(f"s_cmp_le_u32 s{sCR}, 16")
    I("s_cbranch_scc1 L3_XN_k16")
    moves_loads()
    I("s_waitcnt lgkmcnt(0)")
    macs()
    I("s_branch L3_XN_epi")
    e.label("L3_XN_k16")
    I("s_waitcnt vmcnt(0)")
    moves(0, True); moves(1, True)
    I(f"s_cmp_le_u32 s{sL}, 28")
    I("s_cbranch_scc1 L3_XN_k16p")
    for i in range(8): ld(i)
    I("s_branch L3_XN_k16d")
    e.label("L3_XN_k16p")
    loads_partial("L3_XN_k16d")
    e.label("L3_XN_k16d")
    I("s_waitcnt lgkmcnt(0)")
    macs(True)
    e.label("L3_XN_epi")
    I(f"s_lshl_b32 s42, s{sCH}, 5")
    I(f"v_add_u32 v{VT0}, s42, v{VWR}")
    for q in range(8):
        I(f"ds_read_b128 v[{B+4*q}:{B+4*q+3}], v{VT0} offset:{q*1024}")
    I(f"s_lshr_b32 s43, s{sCN}, 4")
    I(f"s_lshl_b32 s43, s43, 2")
    I(f"s_cmp_eq_u32 s{sCH}, 0")
    I("s_cbranch_scc1 L3_nowar")
    I(f"v_mov_b32 v{VT1}, s43")
    spin(e, "war", VT0, VT1, GDONE, 4, 45, 44)
    I("s_add_u32 s43, s43, 16")
    e.label("L3_nowar")
    I(f"s_and_b32 s44, s{sCN}, 15")
    I("s_lshl_b32 s44, s44, 4")
    I(f"s_lshl_b32 s45, s{sCN}, 10")
    I(f"s_add_u32 s45, s45, {T}")
    I(f"v_xor_b32 v{VT0}, s44, v{VL16}")
    I(f"v_add_u32 v{VT0}, s45, v{VT0}")
    I(f"v_mov_b32 v{VT1}, s43")
    I("s_waitcnt lgkmcnt(0)")
    for q in range(8):
        I(f"v_mul_f32 v{B+4*q}, v{B+4*q}, v{ACC+4*q}")
    for d in range(1, 4):
        for q in range(8):
            I(f"v_fmac_f32 v{B+4*q}, v{B+4*q+d}, v{ACC+4*q+d}")
    for k in range(4):
        I(f"v_cvt_pk_bf16_f32 v{A+k}, v{B+8*k}, v{B+8*k+4}")
    I(f"ds_write_b128 v{VT0}, v[{A}:{A+3}]")
    I("s_mov_b64 exec, 1")
    I(f"ds_add_u32 v{VT1}, v{VONE} offset:{DONE}")
    I("s_mov_b64 exec, -1")
    zero_acc()
    if c.stamps:
        I("s_memrealtime s[90:91]")
        I("s_waitcnt lgkmcnt(0)")
        I("s_mov_b32 m0, s92")
        I(f"v_writelane_b32 v{STV}, s90, m0")
        I("s_add_u32 s92, s92, 1")
        I("s_min_u32 s92, s92, 23")
    I(f"s_cmp_lg_u32 s{sNV}, 0")
    I("s_cbranch_scc1 L3_A")

HEADER = """; Kernarg (96 bytes, pointers): 0 x(12500,256)bf16  8 rhat(800000,3)bf16  16 e_attr(800000,4)bf16  24 src i32  32 dst i32
"""

def gen_probe(e, c):
    kA, a0, a1, sA, oA, kB, b0, b1, sB, oB = c.probe.split(",")
    kernel_header(e, "eqprobe_kernel")
    I = e.I
    I("s_cmp_ge_u32 s2, 1")
    I("s_cbranch_scc1 LP_end")
    I("s_memrealtime s[20:21]")
    I("s_load_dwordx2 s[4:5], s[0:1], 88")
    I("s_waitcnt lgkmcnt(0)")
    if c.wsoff:
        I(f"s_add_u32 s4, s4, {c.wsoff << 20}")
        I("s_addc_u32 s5, s5, 0")
    srd(e, 8, 4, 32 << 20)
    I(f"v_min_u32 v1, {c.nwg-1}, v0")
    I("v_lshlrev_b32 v1, 11, v1")
    I("v_mov_b32 v10, 0"); I("v_mov_b32 v11, -1"); I("v_mov_b32 v12, 0")
    I("ds_write_b32 v10, v11 offset:0"); I("ds_write_b32 v10, v12 offset:4"); I("ds_write_b32 v10, v11 offset:8"); I("ds_write_b32 v10, v12 offset:12")
    I("s_waitcnt lgkmcnt(0)"); I("s_barrier")
    regs = []
    for (k, w0, w1, sl, off) in ((kA, a0, a1, sA, 0), (kB, b0, b1, sB, 8)):
        if k == "now":
            I(f"v_mov_b32 v{16+len(regs)}, s20"); regs.append(off); continue
        I(f"s_mov_b32 s12, {STAMPOFF}")
        for w in range(int(w0), int(w1)):
            I(f"buffer_load_dword v{16+len(regs)}, v1, s[8:11], s12 offen offset:{w*128 + int(sl)*4}")
            regs.append(off)
    I("s_waitcnt vmcnt(0)")
    for off, op in ((0, oA), (8, oB)):
        idx = [n for n, o in enumerate(regs) if o == off]
        for n in idx[1:]:
            I(f"v_{op}_u32 v{16+idx[0]}, v{16+idx[0]}, v{16+n}")
        I(f"ds_{op}_u32 v10, v{16+idx[0]} offset:{off + (0 if op == 'min' else 4)}")
    I("s_waitcnt lgkmcnt(0)"); I("s_barrier")
    I(f"ds_read_b32 v3, v10 offset:{0 if oA == 'min' else 4}")
    I(f"ds_read_b32 v4, v10 offset:{8 if oB == 'min' else 12}")
    I("s_waitcnt lgkmcnt(0)")
    I("v_sub_u32 v3, v3, v4")
    I("v_min_u32 v3, 0x2000, v3")
    I("v_readfirstlane_b32 s14, v3")
    I("s_memrealtime s[16:17]")
    I("s_mul_i32 s14, s14, 10")
    I("s_waitcnt lgkmcnt(0)")
    e.label("LP_spin")
    I("s_memrealtime s[18:19]")
    I("s_waitcnt lgkmcnt(0)")
    I("s_sub_u32 s18, s18, s16")
    I("s_cmp_lt_u32 s18, s14")
    I("s_cbranch_scc1 LP_spin")
    e.label("LP_end")
    I("s_endpgm")
    return "eqprobe_kernel", 64, 32

def generate(c):
    e = Emitter()
    e.raw('.amdgcn_target "amdgcn-amd-amdhsa--gfx950"')
    e.raw(".text")
    k = gen_main(e, c)
    head = HEADER + f"; @launch grid=({c.nwg},1,1) block=(1024,1,1) lds={c.lds}\n"
    tail = '.section .rodata,"a"\n.p2align 6\n' + kd(*k)
    if c.probe:
        kp = gen_probe(e, c)
        head = HEADER + f"; @launch kernel={KNAME} grid=({c.nwg},1,1) block=(1024,1,1) lds={c.lds}\n; @launch kernel=eqprobe_kernel grid=(1,1,1) block=(256,1,1) lds=64\n"
        tail += ".p2align 6\n" + kd(*kp)
    return head + e.text() + tail

if __name__ == "__main__":
    c = Cfg()
    out = sys.argv[1]
    for kv in sys.argv[2:]:
        k, v = kv.split("=", 1)
        old = getattr(c, k)
        setattr(c, k, type(old)(int(v)) if isinstance(old, (bool, int)) else v.replace("+", " "))
    open(out, "w").write(generate(c))
```
